```python
import torch

def _softmax(x, axis=-1):
    return torch.softmax(x, dim=axis)
def _gelu(x):
    return torch.nn.functional.gelu(x, approximate="tanh")
def _silu(x):
    return torch.nn.functional.silu(x)
def _sigmoid(x):
    return torch.sigmoid(x)
def _layernorm(x, axis=-1, eps=1e-5):
    m = x.mean(dim=axis, keepdim=True)
    v = x.var(dim=axis, keepdim=True, unbiased=False)
    return (x - m) / torch.sqrt(v + eps)
def _scatter_add(tgt, idx, src, axis=0):
    return tgt.clone().index_add_(axis, idx, src)
def _segment_sum(src, seg, n):
    out = torch.zeros((n,) + src.shape[1:], dtype=src.dtype)
    return out.index_add_(0, seg, src)
def _pad(x, pw):
    flat = tuple(v for pair in reversed(pw) for v in pair)
    return torch.nn.functional.pad(x, flat)

kernel_name = 'parallel_sum__ssm_conv_s4__glu_gated_geglu__prompt'

def setup_inputs():

    _w = (lambda a: (lambda t: t.to(torch.bfloat16) if t.is_floating_point() else t)(torch.as_tensor(a)))
    def _A_setup():
        B, L, D, N = 1, 2048, 448, 256
        A_re = -(lambda _x: torch.exp(torch.as_tensor(_x)))((lambda *s: torch.randn(*s, dtype=torch.bfloat16) * 6.4)(D, N))
        A_im = torch.pi * (lambda *s: torch.randn(*s, dtype=torch.bfloat16) * 0.05)(D, N)
        B_re = (lambda *s: torch.randn(*s, dtype=torch.bfloat16) * 0.1)(D, N)
        B_im = (lambda *s: torch.randn(*s, dtype=torch.bfloat16) * 0.1)(D, N)
        C_re = (lambda *s: torch.randn(*s, dtype=torch.bfloat16) * 0.1)(D, N)
        C_im = (lambda *s: torch.randn(*s, dtype=torch.bfloat16) * 0.1)(D, N)
        log_dt = (lambda *s: torch.randn(*s, dtype=torch.bfloat16) * 0.05)(D) * 0.5 - 4.0
        Dskip = (lambda *s: torch.randn(*s, dtype=torch.bfloat16) * 0.05)(D)
        return {
            "u": _w((lambda *s: torch.randn(*s, dtype=torch.bfloat16) * 0.05)(B, L, D)),
            "A_re": _w(A_re),
            "A_im": _w(A_im),
            "B_re": _w(B_re),
            "B_im": _w(B_im),
            "C_re": _w(C_re),
            "C_im": _w(C_im),
            "log_dt": _w(log_dt),
            "Dskip": _w(Dskip),
        }
    _A_in = _A_setup()

    def _B_setup():
        B, S, Dm, Df = 1, 2048, 448, 1792
        return {
            "x": _w((lambda *s: torch.randn(*s, dtype=torch.bfloat16) * 0.05)(B, S, Dm)),
            "w_gate": _w((lambda *s: torch.randn(*s, dtype=torch.bfloat16) * 0.4)(Dm, Df) * (Dm ** -0.5)),
            "w_up": _w((lambda *s: torch.randn(*s, dtype=torch.bfloat16) * 0.4)(Dm, Df) * (Dm ** -0.5)),
            "w_down": _w((lambda *s: torch.randn(*s, dtype=torch.bfloat16) * 0.4)(Df, Dm) * (Df ** -0.5)),
        }
    _B_in = _B_setup()

    return {
        "A_u": _A_in["u"],
        "A_A_re": _A_in["A_re"],
        "A_A_im": _A_in["A_im"],
        "A_B_re": _A_in["B_re"],
        "A_B_im": _A_in["B_im"],
        "A_C_re": _A_in["C_re"],
        "A_C_im": _A_in["C_im"],
        "A_log_dt": _A_in["log_dt"],
        "A_Dskip": _A_in["Dskip"],
        "B_x": _B_in["x"],
        "B_w_gate": _B_in["w_gate"],
        "B_w_up": _B_in["w_up"],
        "B_w_down": _B_in["w_down"],
    }

def reference(A_u, A_A_re, A_A_im, A_B_re, A_B_im, A_C_re, A_C_im, A_log_dt, A_Dskip, B_x, B_w_gate, B_w_up, B_w_down):
    def _A_ref(u, A_re, A_im, B_re, B_im, C_re, C_im, log_dt, Dskip):
        Bsz, L, D = u.shape
        dt = torch.exp(log_dt)[:, None]
        A = A_re + 1j * A_im
        Bc = B_re + 1j * B_im
        Cc = C_re + 1j * C_im
        logdA = dt * A
        dB = dt * Bc
        l = (lambda x, dt: x.to(dt))(torch.arange(L), A_re.dtype)
        P = torch.exp(logdA[:, :, None] * l[None, None, :])
        K = torch.einsum("dn,dnl,dn->dl", Cc, P, dB).real
        L2 = 2 * L
        Kp = _pad(K, ((0, 0), (0, L)))
        up = (lambda x, *d: x.permute(*d))(u, 0, 2, 1)
        up = _pad(up, ((0, 0), (0, 0), (0, L)))
        Kf = (lambda x, axes=(-2,-1): torch.fft.rfft2(x.float(), dim=axes))(Kp[:, None, :], axes=(-2, -1))
        Uf = (lambda x, axes=(-2,-1): torch.fft.rfft2(x.float(), dim=axes))(up[:, :, None, :], axes=(-2, -1))
        Yf = Uf * Kf[None, :, :, :]
        y = (lambda x, s, axes=(-2,-1): torch.fft.irfft2(x, s=s, dim=axes).to(torch.bfloat16))(Yf, (1, L2), axes=(-2, -1))[:, :, 0, :L]
        y = (lambda x, *d: x.permute(*d))(y, 0, 2, 1) + u * Dskip[None, None, :]
        return y

    def _B_ref(x, w_gate, w_up, w_down):
        g = torch.einsum("bsd,df->bsf", x, w_gate)
        u = torch.einsum("bsd,df->bsf", x, w_up)
        h = _gelu(g) * u
        return torch.einsum("bsf,fd->bsd", h, w_down)

    x = A_u
    xn = _layernorm(x, axis=-1)
    return x + _A_ref(xn, A_A_re, A_A_im, A_B_re, A_B_im, A_C_re, A_C_im, A_log_dt, A_Dskip) + _B_ref(xn, B_w_gate, B_w_up, B_w_down)
```

```python
import re

TRANS = ("v_exp_f32", "v_log_f32", "v_rcp_f32", "v_rsq_f32", "v_sqrt_f32", "v_sin_f32", "v_cos_f32", "v_rcp_iflag_f32")

def _regs(tok):
    tok = tok.strip()
    neg = tok.lstrip("-")
    m = re.match(r"^(?:abs\()?\|?([vas])(\d+)\)?\|?$", neg)
    if m: return {(m.group(1), int(m.group(2)))}
    m = re.match(r"^(?:abs\()?([vas])\[(\d+):(\d+)\]\)?$", neg)
    if m: return {(m.group(1), i) for i in range(int(m.group(2)), int(m.group(3)) + 1)}
    if neg == "vcc": return {("s", 106), ("s", 107)}
    if neg == "vcc_lo": return {("s", 106)}
    if neg == "vcc_hi": return {("s", 107)}
    if neg == "exec": return {("s", 126), ("s", 127)}
    if neg == "m0": return {("s", 124)}
    return set()

class Ins:
    __slots__ = ("text", "mn", "ops", "wr", "rd", "kind", "blk", "passes", "srcc", "srcab", "ws", "lds_dma", "widestore", "sdata")
    def __init__(self, text, blk):
        self.text = text; self.blk = blk
        t = text.split(";")[0].strip()
        parts = t.split(None, 1)
        self.mn = parts[0]
        rest = parts[1] if len(parts) > 1 else ""
        ops = []; depth = 0; cur = ""
        for ch in rest:
            if ch in "[(": depth += 1
            if ch in "])": depth -= 1
            if ch == "," and depth == 0: ops.append(cur.strip()); cur = ""
            else: cur += ch
        if cur.strip(): ops.append(cur.strip())
        mods = ""
        if ops:
            sp = ops[-1].split(None, 1)
            ops[-1] = sp[0]; mods = sp[1] if len(sp) > 1 else ""
        self.ops = ops
        mn = self.mn
        R = [_regs(o) for o in ops]
        U = lambda l: set().union(*l) if l else set()
        self.wr = set(); self.rd = set(); self.passes = 0; self.srcc = set(); self.srcab = set()
        self.ws = 1; self.lds_dma = False; self.widestore = False; self.sdata = set()
        if mn == "s_nop":
            self.kind = "nop"; self.ws = int(ops[0], 0) + 1
        elif mn.startswith("v_mfma"):
            self.kind = "mfma"; self.wr = R[0]; self.srcab = R[1] | R[2]; self.srcc = R[3]; self.rd = self.srcab | self.srcc
            self.passes = 8 if "32x32x16" in mn else 4 if "16x16x32" in mn else 16
        elif mn.startswith("v_"):
            self.kind = "trans" if mn.replace("_e32", "").replace("_e64", "") in TRANS else "valu"
            if mn.startswith("v_permlane32_swap") or mn.startswith("v_permlane16_swap"):
                self.wr = R[0] | R[1]; self.rd = R[0] | R[1]; self.kind = "permlane"
            elif mn.startswith("v_cmp"):
                self.wr = R[0]; self.rd = U(R[1:])
            elif mn.startswith(("v_add_co", "v_sub_co", "v_subrev_co", "v_addc_co", "v_subb_co")):
                self.wr = R[0] | R[1]; self.rd = U(R[2:])
            else:
                self.wr = R[0]; self.rd = U(R[1:])
                if mn.startswith(("v_fmac", "v_dot2c", "v_pk_fmac", "v_writelane")) or "d16" in mn: self.rd |= R[0]
                if mn.startswith("v_cndmask") and len(ops) == 3: self.rd |= {("s", 106), ("s", 107)}
            if "dpp" in mn or "row_" in mods or "wave_" in mods or "quad_perm" in mods:
                self.kind = "dpp"; self.rd |= R[0]
            if mn.startswith(("v_readlane", "v_readfirstlane")): self.kind = "readlane"
            if mn.startswith("v_dot"): self.kind = "dot"
        elif mn.startswith("ds_"):
            self.kind = "ds"
            if mn.startswith(("ds_read", "ds_bpermute", "ds_permute", "ds_swizzle")) or "_rtn" in mn:
                self.wr = R[0]; self.rd = U(R[1:])
                if "d16" in mn: self.rd |= R[0]
            else: self.rd = U(R)
        elif mn.startswith(("buffer_", "global_")):
            self.kind = "vmem"
            islds = bool(re.search(r"\blds\b", mods)) or "_lds_" in mn
            if islds:
                self.lds_dma = True; self.rd = U(R) | {("s", 124)}
            elif "load" in mn:
                self.wr = R[0]; self.rd = U(R[1:])
                if "d16" in mn: self.rd |= R[0]
            elif "atomic" in mn and re.search(r"\bsc0\b", mods) and mn.startswith("global_"):
                self.wr = R[0]; self.rd = U(R[1:])
            elif "atomic" in mn and re.search(r"\bsc0\b", mods):
                self.wr = R[0]; self.rd = U(R)
            else:
                self.rd = U(R)
                if "dwordx4" in mn or "dwordx3" in mn:
                    self.widestore = True
                    self.sdata = R[0] if mn.startswith("buffer_") else R[1]
        elif mn.startswith("s_"):
            self.kind = "salu"
            if mn.startswith(("s_cmp", "s_waitcnt", "s_barrier", "s_branch", "s_cbranch", "s_endpgm", "s_setprio", "s_sleep", "s_bitcmp")):
                self.rd = U(R)
            else:
                self.wr = R[0] if R else set(); self.rd = U(R[1:])
                if "saveexec" in mn: self.wr |= {("s", 126), ("s", 127)}
        else:
            raise ValueError("unknown instr " + text)

VALUK = ("valu", "trans", "dpp", "permlane", "readlane", "dot")

def need(p, c):
    n = 0
    pv = {r for r in p.wr if r[0] in "va"}
    ps = {r for r in p.wr if r[0] == "s"}
    if p.kind in VALUK:
        if pv:
            if c.kind == "mfma" and pv & c.rd: n = max(n, 2)
            if c.kind == "dpp" and pv & c.rd: n = max(n, 2)
            if c.kind == "permlane" and pv & c.rd: n = max(n, 2)
            if c.kind == "readlane" and pv & c.rd: n = max(n, 1)
            if p.kind == "trans" and c.kind in VALUK + ("mfma",) and pv & (c.rd | c.wr): n = max(n, 1)
            if p.kind == "dot" and pv & (c.rd | c.wr):
                same = c.kind == "dot" and c.mn == p.mn and len(c.ops) >= 3 and not (pv & (_regs(c.ops[1]) | _regs(c.ops[2])))
                if not same: n = max(n, 3)
        if ps:
            if c.kind == "vmem" and ps & c.rd: n = max(n, 5)
            if c.kind in VALUK + ("mfma",) and ps & c.rd: n = max(n, 4 if c.kind == "readlane" else 2)
            if c.kind == "salu" and ps & c.rd: n = max(n, 1)
            if ps & {("s", 126), ("s", 127)}: n = max(n, 5)
    if p.kind == "mfma":
        big = {4: 8, 8: 12, 16: 20}[p.passes]
        if c.kind == "mfma":
            if p.wr & c.srcab: n = max(n, big)
            if p.wr & c.srcc and not (p.wr == c.srcc and p.passes == c.passes): n = max(n, {4: 6, 8: 10, 16: 18}[p.passes])
            if p.wr & c.wr and not (p.wr & c.srcc): n = max(n, big)
        elif p.wr & (c.rd | c.wr): n = max(n, big)
        if c.kind in VALUK and p.srcc & c.wr: n = max(n, {4: 3, 8: 7, 16: 15}[p.passes])
    if p.kind == "salu" and ("s", 124) in p.wr and c.kind == "vmem" and c.lds_dma: n = max(n, 1)
    if p.kind == "vmem" and p.widestore and p.sdata & c.wr: n = max(n, 2 if c.kind in VALUK else 1)
    return n

class Asm:
    def __init__(self):
        self.items = []
        self.blk = None
        self._blkid = 0
        self.vmq = []
    def __call__(self, text):
        for ln in text.strip().split("\n"):
            ln = ln.strip()
            if not ln or ln.startswith(";"): continue
            self.items.append(Ins(ln, self.blk))
    def raw(self, text): self.items.append(text)
    def label(self, l): self.items.append(l + ":")
    def comment(self, c): self.items.append("    ; " + c)
    def begin_opt(self): self._blkid += 1; self.blk = self._blkid
    def end_opt(self): self.blk = None
    def vm(self, text, tag=None):
        self(text); self.vmq.append(tag)
    def wait_vm(self, tag):
        idx = max(i for i, t in enumerate(self.vmq) if t == tag)
        n = len(self.vmq) - 1 - idx
        assert n <= 63
        self("s_waitcnt vmcnt(%d)" % n)
        self.vmq = self.vmq[idx + 1:]
    def wait_vm_all(self):
        self("s_waitcnt vmcnt(0)"); self.vmq = []
    def finalize(self):
        out = []
        hist = []
        for it in self.items:
            if isinstance(it, str):
                out.append(it); continue
            pad = 0; dist = 0
            for p in reversed(hist[-40:]):
                nd = need(p, it)
                if nd > dist: pad = max(pad, nd - dist)
                if p.blk is None or p.blk == it.blk: dist += p.ws
                if dist >= 24: break
            while pad > 0:
                k = min(pad, 16)
                nop = Ins("s_nop %d" % (k - 1), it.blk)
                hist.append(nop); out.append("    " + nop.text); pad -= k
            hist.append(it); out.append("    " + it.text)
        return "\n".join(out)
```

```python
import math, struct
from asmlib import Asm
from gen import fbits, srd, vr, WS_H, WS_XNT, WS_KREV, WS_KSC, WS_YAT, WS_SIZE, KSTRIDE

def gen_k2():
    a = Asm()
    RING = 20480; NW = 5; PD = 4; NST = 14
    L_YA = 4 * RING
    L_CV = L_YA + 8192
    CPS = 4160; O_U = 4 * CPS; O_XCH = O_U + 4608; CV_CH = O_XCH + 8192
    L_FLAG = L_CV + 2 * CV_CH
    LDS = L_FLAG + 64
    SX, SWD, SOUT, SWS, SDBG = 40, 44, 48, 52, 56
    sWV, sRT, sCT = 60, 61, 62
    sT0, sT1, sT2, sT3 = 64, 65, 66, 67
    sTT = [68, 69, 70, 71]
    sOW = 72; sKQB = 73; sCH = 74; sRH = 75; sCVB = 76; sCNT = 77

    a("s_cmp_ge_u32 s2, 224")
    a("s_cbranch_scc1 K2_END")
    a("s_load_dwordx2 s[16:17], s[0:1], 0")
    a("s_load_dwordx2 s[18:19], s[0:1], 64")
    a("s_load_dwordx8 s[20:27], s[0:1], 96")
    a("v_lshrrev_b32 v1, 6, v0")
    a("v_readfirstlane_b32 s%d, v1" % sWV)
    a("v_and_b32 v1, 63, v0")
    a("s_and_b32 s%d, s2, 7" % sT0)
    a("s_lshr_b32 s%d, s2, 3" % sT1)
    a("s_lshl_b32 s%d, s%d, 2" % (sT2, sT0))
    a("s_and_b32 s%d, s%d, 3" % (sT3, sT1))
    a("s_add_u32 s%d, s%d, s%d" % (sRT, sT2, sT3))
    a("s_lshr_b32 s%d, s%d, 2" % (sCT, sT1))
    a("v_and_b32 v2, 15, v1")
    a("v_lshrrev_b32 v3, 4, v1")
    a("s_waitcnt lgkmcnt(0)")
    srd(a, SX, 16, 2048 * 896)
    srd(a, SWD, 20, 1792 * 896)
    srd(a, SOUT, 22, 2048 * 896)
    srd(a, SDBG, 24, 256)
    srd(a, SWS, 26, WS_SIZE)
    a("s_cmp_ge_u32 s%d, 4" % sWV)
    a("s_cbranch_scc1 K2_CONV")

    a("s_mul_i32 s%d, s%d, %d" % (sKQB, sWV, RING))
    a("s_lshl_b32 s%d, s%d, 6" % (sT0, sRT))
    a("v_add_u32 v4, s%d, v2" % sT0)
    a("s_movk_i32 s%d, 3584" % sT1)
    a("v_mul_lo_u32 v4, v4, s%d" % sT1)
    a("v_lshl_add_u32 v4, v3, 4, v4")
    a("s_mul_i32 s%d, s%d, 896" % (sT0, sWV))
    a("v_add_u32 v4, s%d, v4" % sT0)
    for tt in range(4): a("s_mov_b32 s%d, %d" % (sTT[tt], WS_H + tt * 16 * 3584))
    a("v_lshrrev_b32 v5, 3, v1")
    a("s_mul_i32 s%d, s%d, 448" % (sT0, sWV))
    a("v_add_u32 v5, s%d, v5" % sT0)
    a("v_mul_u32_u24 v5, 896, v5")
    a("s_lshl_b32 s%d, s%d, 7" % (sT0, sCT))
    a("v_add_u32 v5, s%d, v5" % sT0)
    a("v_and_b32 v6, 1, v1")
    a("v_lshl_add_u32 v5, v6, 4, v5")
    a("v_bfe_u32 v6, v1, 1, 2")
    a("v_bfe_u32 v7, v1, 4, 1")
    a("v_xor_b32 v6, v6, v7")
    a("v_xor_b32 v7, 2, v6")
    a("v_lshl_add_u32 v6, v6, 5, v5")
    a("v_lshl_add_u32 v7, v7, 5, v5")
    a("v_lshrrev_b32 v8, 2, v2")
    a("v_lshl_add_u32 v8, v3, 3, v8")
    a("v_lshlrev_b32 v8, 7, v8")
    a("v_and_b32 v9, 3, v2")
    a("v_lshl_add_u32 v8, v9, 3, v8")
    a("v_add_u32 v8, s%d, v8" % sKQB)
    a("v_bfe_u32 v9, v2, 3, 1")
    a("v_and_b32 v10, 1, v3")
    a("v_lshl_add_u32 v9, v10, 1, v9")
    TRB = [12, 13, 14, 15]
    for ct in range(4):
        a("v_xor_b32 v10, %d, v9" % ct)
        a("v_lshl_add_u32 v%d, v10, 5, v8" % TRB[ct])
    HR = [96 + 16 * i for i in range(NW)]
    WF = [176, 192]
    ACC = lambda ct, tt: 32 + 16 * ct + 4 * tt
    def loads(st):
        slot = st % NW
        for tt in range(4):
            a.vm("buffer_load_dwordx4 %s, v4, s[%d:%d], s%d offen offset:%d" % (vr(HR[slot] + 4 * tt, 4), SWS, SWS + 3, sTT[tt], st * 64), ("st", st))
        for q in range(4):
            a("s_mov_b32 s%d, %d" % (sOW, (st * 32 + 8 * q) * 896))
            a("s_add_u32 m0, s%d, %d" % (sKQB, slot * 4096 + q * 1024))
            a.vm("buffer_load_dwordx4 v%d, s[%d:%d], s%d offen lds" % (6 + (q & 1), SWD, SWD + 3, sOW), ("st", st))
    for st in range(PD): loads(st)
    for r in range(32, 96): a("v_mov_b32 v%d, 0" % r)
    a("s_barrier")
    def trreads(st):
        slot = st % NW
        for ct in range(4):
            for hf in range(2):
                a("ds_read_b64_tr_b16 %s, v%d offset:%d" % (vr(WF[st & 1] + 4 * ct + 2 * hf, 2), TRB[ct], slot * 4096 + hf * 512))
    a.wait_vm(("st", 0))
    trreads(0)
    for st in range(NST):
        if st + 1 < NST:
            a.wait_vm(("st", st + 1))
            trreads(st + 1)
            a("s_waitcnt lgkmcnt(8)")
        else:
            a("s_waitcnt lgkmcnt(0)")
        for ct in range(4):
            for tt in range(4):
                a("v_mfma_f32_16x16x32_bf16 %s, %s, %s, %s" % (vr(ACC(ct, tt), 4), vr(WF[st & 1] + 4 * ct, 4), vr(HR[st % NW] + 4 * tt, 4), vr(ACC(ct, tt), 4)))
        if st + PD < NST: loads(st + PD)
    a("s_lshl_b32 s%d, s%d, 6" % (sT0, sRT))
    a("s_lshl_b32 s%d, s%d, 4" % (sT1, sWV))
    a("s_add_u32 s%d, s%d, s%d" % (sT0, sT0, sT1))
    a("v_add_u32 v16, s%d, v2" % sT0)
    a("v_mul_u32_u24 v16, 896, v16")
    a("v_lshl_add_u32 v16, v3, 4, v16")
    a("s_lshl_b32 s%d, s%d, 7" % (sT0, sCT))
    a("v_add_u32 v16, s%d, v16" % sT0)
    a.vm("buffer_load_dwordx4 v[96:99], v16, s[%d:%d], 0 offen" % (SX, SX + 3), "x")
    a.vm("buffer_load_dwordx4 v[100:103], v16, s[%d:%d], 0 offen offset:64" % (SX, SX + 3), "x")
    a("v_mul_u32_u24 v17, 272, v2")
    a("v_lshl_add_u32 v17, v3, 4, v17")
    a("v_add_u32 v17, s%d, v17" % sKQB)
    for ct in range(4):
        for tt in range(4):
            a("ds_write_b128 v17, %s offset:%d" % (vr(ACC(ct, tt), 4), tt * 16 * 272 + ct * 64))
    a("s_lshl_b32 s%d, s%d, 5" % (sT0, sCT))
    a("v_mov_b32 v18, s%d" % sT0)
    a("s_mov_b32 s%d, 0" % sCNT)
    a.wait_vm_all()
    a.label("K2_POLL")
    a("buffer_load_dword v19, v18, s[%d:%d], 0 offen sc1" % (SDBG, SDBG + 3))
    a("s_waitcnt vmcnt(0)")
    a("v_readfirstlane_b32 s%d, v19" % sT1)
    a("s_add_u32 s%d, s%d, 1" % (sCNT, sCNT))
    a("s_cmp_ge_u32 s%d, 128" % sT1)
    a("s_cbranch_scc1 K2_POLLED")
    a("s_sleep 2")
    a("s_cmp_lt_u32 s%d, 0x400000" % sCNT)
    a("s_cbranch_scc1 K2_POLL")
    a.label("K2_POLLED")
    a("s_lshl_b32 s%d, s%d, 4" % (sT0, sWV))
    a("v_lshrrev_b32 v18, 3, v1")
    a("v_add_u32 v18, s%d, v18" % sT0)
    a("s_lshl_b32 s%d, s%d, 6" % (sT0, sCT))
    a("v_add_u32 v19, s%d, v18" % sT0)
    a("v_lshlrev_b32 v19, 12, v19")
    a("v_and_b32 v20, 7, v1")
    a("v_lshl_add_u32 v19, v20, 4, v19")
    a("s_lshl_b32 s%d, s%d, 7" % (sT0, sRT))
    a("s_add_u32 s%d, s%d, %d" % (sT0, sT0, WS_YAT))
    a("s_add_u32 s%d, s%d, %d" % (sT1, sT0, 8 * 4096))
    a("buffer_load_dwordx4 v[104:107], v19, s[%d:%d], s%d offen sc1" % (SWS, SWS + 3, sT0))
    a("buffer_load_dwordx4 v[108:111], v19, s[%d:%d], s%d offen sc1" % (SWS, SWS + 3, sT1))
    a("s_lshl_b32 s%d, s%d, 11" % (sT0, sWV))
    a("s_add_u32 s%d, s%d, %d" % (sT0, sT0, L_YA))
    a("v_lshl_add_u32 v20, v1, 4, s%d" % sT0)
    a("s_waitcnt vmcnt(0)")
    a("ds_write_b128 v20, v[104:107]")
    a("ds_write_b128 v20, v[108:111] offset:1024")
    a("s_waitcnt lgkmcnt(0)")
    a("s_barrier")
    a("s_lshl_b32 s%d, s%d, 4" % (sT0, sWV))
    a("v_add_u32 v17, s%d, v2" % sT0)
    a("v_mul_u32_u24 v17, 272, v17")
    a("v_lshl_add_u32 v17, v3, 5, v17")
    a("v_add_u32 v18, %d, v17" % (2 * RING))
    for hc in range(2):
        for p in range(4):
            for hb in range(2):
                a("ds_read_b128 %s, v%d offset:%d" % (vr(32 + 32 * hc + 8 * p + 4 * hb, 4), 17 + (p >> 1), (p & 1) * RING + hc * 128 + hb * 16))
    a("v_lshrrev_b32 v19, 2, v2")
    a("v_lshl_add_u32 v19, v3, 3, v19")
    a("v_lshlrev_b32 v19, 7, v19")
    a("v_and_b32 v20, 3, v2")
    a("v_lshl_add_u32 v19, v20, 3, v19")
    a("s_lshl_b32 s%d, s%d, 5" % (sT0, sWV))
    a("s_add_u32 s%d, s%d, %d" % (sT0, sT0, L_YA))
    a("v_add_u32 v19, s%d, v19" % sT0)
    for hc in range(2):
        for hf in range(2):
            a("ds_read_b64_tr_b16 %s, v19 offset:%d" % (vr(104 + 4 * hc + 2 * hf, 2), hc * 4096 + hf * 512))
    a("s_waitcnt lgkmcnt(0)")
    for hc in range(2):
        b = 32 + 32 * hc
        for e in range(0, 8, 2):
            a("v_pk_add_f32 %s, %s, %s" % (vr(b + e, 2), vr(b + e, 2), vr(b + 8 + e, 2)))
            a("v_pk_add_f32 %s, %s, %s" % (vr(b + 16 + e, 2), vr(b + 16 + e, 2), vr(b + 24 + e, 2)))
            a("v_pk_add_f32 %s, %s, %s" % (vr(b + e, 2), vr(b + e, 2), vr(b + 16 + e, 2)))
        for w in range(4):
            xw = 96 + 4 * hc + w; yw = 104 + 4 * hc + w
            a("v_cvt_pk_bf16_f32 v20, v%d, v%d" % (b + 2 * w, b + 2 * w + 1))
            a("v_lshlrev_b32 v22, 16, v%d" % xw); a("v_and_b32 v23, 0xffff0000, v%d" % xw)
            a("v_lshlrev_b32 v24, 16, v%d" % yw); a("v_and_b32 v25, 0xffff0000, v%d" % yw)
            a("v_pk_add_f32 v[22:23], v[22:23], v[24:25]")
            a("v_cvt_pk_bf16_f32 v22, v22, v23")
            a("v_and_b32 v23, 0xffff0000, v22"); a("v_lshlrev_b32 v22, 16, v22")
            a("v_and_b32 v21, 0xffff0000, v20"); a("v_lshlrev_b32 v20, 16, v20")
            a("v_pk_add_f32 v[22:23], v[22:23], v[20:21]")
            a("v_cvt_pk_bf16_f32 v%d, v22, v23" % (112 + 4 * hc + w))
        a("buffer_store_dwordx4 %s, v16, s[%d:%d], 0 offen offset:%d" % (vr(112 + 4 * hc, 4), SOUT, SOUT + 3, hc * 64))
    a("s_endpgm")

    a.label("K2_CONV")
    a.vmq = []
    a("s_sub_u32 s%d, s%d, 4" % (sT0, sWV))
    a("s_and_b32 s%d, s%d, 1" % (sRH, sT0))
    a("s_lshr_b32 s%d, s%d, 1" % (sT0, sT0))
    a("s_lshl_b32 s%d, s2, 1" % sCH)
    a("s_add_u32 s%d, s%d, s%d" % (sCH, sCH, sT0))
    a("s_mul_i32 s%d, s%d, %d" % (sCVB, sT0, CV_CH))
    a("s_add_u32 s%d, s%d, %d" % (sCVB, sCVB, L_CV))
    a("s_mul_i32 s%d, s%d, %d" % (sT1, sCH, KSTRIDE))
    a("s_add_u32 s%d, s%d, %d" % (sT1, sT1, WS_KREV))
    a("s_lshl_b32 s%d, s%d, 11" % (sT2, sRH))
    a("s_add_u32 s%d, s%d, s%d" % (sT1, sT1, sT2))
    a("v_lshlrev_b32 v4, 4, v1")
    for it in range(2):
        b = 32 + 16 * it
        a.vm("buffer_load_dwordx4 %s, v4, s[%d:%d], s%d offen offset:%d" % (vr(b, 4), SWS, SWS + 3, sT1, it * 1024), "k%d" % it)
        a.vm("buffer_load_dwordx4 %s, v4, s[%d:%d], s%d offen offset:%d" % (vr(b + 4, 4), SWS, SWS + 3, sT1, it * 1024 + 4), "k%d" % it)
        a.vm("buffer_load_dword v%d, v4, s[%d:%d], s%d offen offset:%d" % (b + 8, SWS, SWS + 3, sT1, it * 1024 + 20), "k%d" % it)
    a("s_lshl_b32 s%d, s%d, 12" % (sT1, sCH))
    a("s_add_u32 s%d, s%d, %d" % (sT1, sT1, WS_XNT))
    a("s_add_u32 s%d, s%d, s%d" % (sT1, sT1, sT2))
    a("s_add_u32 s%d, s%d, s%d" % (sT3, sCVB, sT2))
    a("s_add_u32 m0, s%d, %d" % (sT3, O_U + 480))
    a.vm("buffer_load_dwordx4 v4, s[%d:%d], s%d offen lds" % (SWS, SWS + 3, sT1), "u")
    a.vm("buffer_load_dwordx4 v4, s[%d:%d], s%d offen offset:1024 lds" % (SWS, SWS + 3, sT1), "u")
    a("s_lshl_b32 s%d, s%d, 1" % (sT1, sCH))
    a("v_mov_b32 v5, s%d" % sT1)
    a.vm("global_load_ushort v8, v5, s[18:19]", "sc")
    a("s_lshl_b32 s%d, s%d, 2" % (sT1, sCH))
    a("s_add_u32 s%d, s%d, %d" % (sT1, sT1, WS_KSC))
    a("v_mov_b32 v5, s%d" % sT1)
    a.vm("buffer_load_dword v9, v5, s[%d:%d], 0 offen" % (SWS, SWS + 3), "sc")
    a("v_mov_b32 v12, 0"); a("v_mov_b32 v13, 0"); a("v_mov_b32 v14, 0"); a("v_mov_b32 v15, 0")
    a("v_add_u32 v5, %d, v4" % O_U)
    a("v_bfe_u32 v6, v1, 1, 2")
    a("v_mul_u32_u24 v6, %d, v6" % CPS)
    a("v_and_b32 v7, 1, v1")
    a("v_lshl_add_u32 v6, v7, 4, v6")
    a("v_add_u32 v6, 4096, v6")
    a("v_cmp_gt_u32 vcc, 32, v1")
    a("v_cndmask_b32 v5, v6, v5, vcc")
    a("v_add_u32 v5, s%d, v5" % sCVB)
    a("v_mov_b32 v6, %d" % L_FLAG)
    a("s_cmp_lg_u32 s%d, 0" % sRH)
    a("s_cbranch_scc1 K2_NOZ")
    a.begin_opt()
    a("s_mov_b32 exec_lo, 0x3fffffff"); a("s_mov_b32 exec_hi, 0xff")
    a("ds_write_b128 v5, v[12:15]")
    a("s_mov_b64 exec, 1")
    a("ds_write_b128 v6, v[12:15]")
    a("s_mov_b64 exec, -1")
    a.end_opt()
    a.label("K2_NOZ")
    a("s_add_u32 s%d, s%d, s%d" % (sT3, sCVB, sT2))
    a("v_add_u32 v5, s%d, v4" % sT3)
    for it in range(2):
        b = 32 + 16 * it
        a.wait_vm("k%d" % it)
        d = [b, b + 1, b + 2, b + 3, b + 7, b + 8]
        c1, c3 = 64 + 8 * it, 68 + 8 * it
        for i in range(4):
            a("v_alignbit_b32 v%d, v%d, v%d, 16" % (c1 + i, d[i + 1], d[i]))
            a("v_alignbit_b32 v%d, v%d, v%d, 16" % (c3 + i, d[i + 2], d[i + 1]))
        a("ds_write_b128 v5, %s offset:%d" % (vr(b, 4), it * 1024))
        a("ds_write_b128 v5, %s offset:%d" % (vr(c1, 4), CPS + it * 1024))
        a("ds_write_b128 v5, %s offset:%d" % (vr(b + 4, 4), 2 * CPS + it * 1024))
        a("ds_write_b128 v5, %s offset:%d" % (vr(c3, 4), 3 * CPS + it * 1024))
    a("v_sub_u32 v5, 3, v2"); a("v_and_b32 v5, 3, v5")
    a("v_mul_u32_u24 v6, %d, v5" % CPS)
    a("v_add_u32 v7, v2, v5")
    a("v_sub_u32 v7, %d, v7" % (2031 - 16 * 126))
    a("v_lshl_add_u32 v7, v3, 3, v7")
    a("v_lshl_add_u32 v6, v7, 1, v6")
    a("s_lshl_b32 s%d, s%d, 8" % (sT0, sRH))
    a("s_sub_u32 s%d, s%d, s%d" % (sT1, sCVB, sT0))
    a("v_add_u32 v6, s%d, v6" % sT1)
    a("v_lshlrev_b32 v7, 5, v2")
    a("v_lshl_add_u32 v7, v3, 4, v7")
    a("v_add_u32 v7, %d, v7" % (O_U + 448 - 448))
    a("v_add_u32 v7, s%d, v7" % sT1)
    CA = 16
    GS = [64, 128]; FS = [96, 160]
    a.wait_vm_all()
    a("s_waitcnt lgkmcnt(0)")
    a("s_barrier")
    for r in range(CA, CA + 32): a("v_mov_b32 v%d, 0" % r)
    def fr(ri):
        s = ri & 1
        for q in range(8):
            o = 32 * (126 - 16 * q - 2 * ri)
            a("ds_read_b64 %s, v6 offset:%d" % (vr(GS[s] + 4 * q, 2), o))
            a("ds_read_b64 %s, v6 offset:%d" % (vr(GS[s] + 4 * q + 2, 2), o + 8))
            a("ds_read_b128 %s, v7 offset:%d" % (vr(FS[s] + 4 * q, 4), 32 * (16 * q - 2 * ri + 14)))
    fr(0)
    for ri in range(4):
        s = ri & 1
        a("s_waitcnt lgkmcnt(0)")
        if ri + 1 < 4: fr(ri + 1)
        for q in range(8):
            for m in range(q, 8):
                a("v_mfma_f32_16x16x32_f16 %s, %s, %s, %s" % (vr(CA + 4 * m, 4), vr(GS[s] + 4 * q, 4), vr(FS[s] + 4 * (m - q), 4), vr(CA + 4 * m, 4)))
    a("s_lshl_b32 s%d, s%d, 12" % (sT0, sRH))
    a("s_add_u32 s%d, s%d, %d" % (sT1, sCVB, O_XCH))
    a("s_add_u32 s%d, s%d, s%d" % (sT2, sT1, sT0))
    a("s_xor_b32 s%d, s%d, 4096" % (sT0, sT0))
    a("s_add_u32 s%d, s%d, s%d" % (sT3, sT1, sT0))
    a("v_add_u32 v5, s%d, v4" % sT2)
    a("v_add_u32 v6, s%d, v4" % sT3)
    a("s_sub_u32 s%d, s%d, 4" % (sT0, sWV))
    a("s_lshl_b32 s%d, s%d, 2" % (sT0, sT0))
    a("s_add_u32 s%d, s%d, %d" % (sT0, sT0, L_FLAG))
    a("v_mov_b32 v10, s%d" % sT0)
    a("v_xor_b32 v11, 4, v10")
    a("v_mov_b32 v12, 1")
    a("s_cmp_lg_u32 s%d, 0" % sRH)
    a("s_cbranch_scc1 K2_X1")
    a.begin_opt()
    for i in range(4): a("ds_write_b128 v5, %s offset:%d" % (vr(CA + 16 + 4 * i, 4), i * 1024))
    a("s_branch K2_X2")
    a.end_opt()
    a.label("K2_X1")
    a.begin_opt()
    for i in range(4): a("ds_write_b128 v5, %s offset:%d" % (vr(CA + 4 * i, 4), i * 1024))
    for i in range(16): a("v_mov_b32 v%d, v%d" % (CA + i, CA + 16 + i))
    a.end_opt()
    a.label("K2_X2")
    a("s_waitcnt lgkmcnt(0)")
    a("ds_write_b32 v10, v12")
    a("v_lshlrev_b32 v13, 5, v2")
    a("v_lshl_add_u32 v13, v3, 3, v13")
    a("s_lshl_b32 s%d, s%d, 11" % (sT0, sRH))
    a("v_add_u32 v13, s%d, v13" % sT0)
    a("s_add_u32 s%d, s%d, %d" % (sT1, sCVB, O_U + 480))
    a("v_add_u32 v14, s%d, v13" % sT1)
    for i in range(4): a("ds_read_b64 %s, v14 offset:%d" % (vr(64 + 2 * i, 2), i * 512))
    a("s_mov_b32 s%d, 0" % sCNT)
    a.label("K2_XP")
    a("ds_read_b32 v15, v11")
    a("s_waitcnt lgkmcnt(0)")
    a("v_readfirstlane_b32 s%d, v15" % sT1)
    a("s_add_u32 s%d, s%d, 1" % (sCNT, sCNT))
    a("s_cmp_lg_u32 s%d, 0" % sT1)
    a("s_cbranch_scc1 K2_XD")
    a("s_cmp_lt_u32 s%d, 0x1000000" % sCNT)
    a("s_cbranch_scc1 K2_XP")
    a.label("K2_XD")
    for i in range(4): a("ds_read_b128 %s, v6 offset:%d" % (vr(CA + 16 + 4 * i, 4), i * 1024))
    a("v_lshlrev_b32 v8, 16, v8")
    a("s_lshl_b32 s%d, s%d, 12" % (sT0, sCH))
    a("s_add_u32 s%d, s%d, %d" % (sT0, sT0, WS_YAT))
    a("s_waitcnt lgkmcnt(0)")
    for i in range(4):
        for pr in range(2):
            y = CA + 4 * i + 2 * pr
            xw = 64 + 2 * i + pr
            a("v_pk_add_f32 %s, %s, %s" % (vr(y, 2), vr(y, 2), vr(y + 16, 2)))
            a("v_mul_f32 v%d, v9, v%d" % (y, y)); a("v_mul_f32 v%d, v9, v%d" % (y + 1, y + 1))
            a("v_cvt_pk_bf16_f32 v%d, v%d, v%d" % (y, y, y + 1))
            a("v_and_b32 v%d, 0xffff0000, v%d" % (y + 1, y)); a("v_lshlrev_b32 v%d, 16, v%d" % (y, y))
            a("v_cvt_f32_f16 v72, v%d" % xw)
            a("v_lshrrev_b32 v73, 16, v%d" % xw); a("v_cvt_f32_f16 v73, v73")
            a("v_mul_f32 v72, v8, v72"); a("v_mul_f32 v73, v8, v73")
            a("v_cvt_pk_bf16_f32 v72, v72, v73")
            a("v_and_b32 v73, 0xffff0000, v72"); a("v_lshlrev_b32 v72, 16, v72")
            a("v_pk_add_f32 %s, %s, v[72:73]" % (vr(y, 2), vr(y, 2)))
            a("v_cvt_pk_bf16_f32 v%d, v%d, v%d" % (76 + 2 * i + pr, y, y + 1))
        a("buffer_store_dwordx2 %s, v13, s[%d:%d], s%d offen offset:%d sc1" % (vr(76 + 2 * i, 2), SWS, SWS + 3, sT0, i * 512))
    a("s_lshr_b32 s%d, s%d, 6" % (sT0, sCH))
    a("s_lshl_b32 s%d, s%d, 5" % (sT0, sT0))
    a("v_mov_b32 v14, s%d" % sT0)
    a("s_waitcnt vmcnt(0)")
    a("s_mov_b64 exec, 1")
    a("buffer_atomic_add v12, v14, s[%d:%d], 0 offen" % (SDBG, SDBG + 3))
    a.label("K2_END")
    a("s_endpgm")
    return a.finalize(), 208, LDS
```

```python
import math, struct, sys
from asmlib import Asm

NAME = "parallel_sum__ssm_conv_s4__glu_gated_geglu__prompt"
def fbits(x): return "0x%08x" % struct.unpack("<I", struct.pack("<f", x))[0]
LOG2E = math.log2(math.e)

WS_H    = 0
WS_XNT  = 8 << 20
WS_KREV = 12 << 20
WS_KSC  = 16 << 20
WS_YAT  = 20 << 20
WS_SIZE = 32 << 20
KSTRIDE = 4160

def srd(a, d, p, nbytes):
    a("s_mov_b32 s%d, s%d" % (d, p))
    a("s_and_b32 s%d, s%d, 0xffff" % (d + 1, p + 1))
    a("s_mov_b32 s%d, 0x%x" % (d + 2, nbytes))
    a("s_mov_b32 s%d, 0x00020000" % (d + 3))

def vr(b, n=1): return "v%d" % b if n == 1 else "v[%d:%d]" % (b, b + n - 1)

def gen_k1():
    a = Asm()
    SLOT = 24576; NS = 6; NST = 14
    EXTRA = NS * SLOT
    L_STAT = EXTRA; L_CS = EXTRA + 4096; L_KEXP = EXTRA + 5120; L_XN = EXTRA + 8192
    L_STG = 3 * SLOT; STG_W = 4352; L_DV = L_STG + 8 * STG_W; DV_CH = 10368
    SX, SWG, SWU, SWS = 40, 44, 48, 52
    sWV, sR, sF, sWR, sWC, sCH, sMQ = 56, 57, 58, 59, 60, 61, 62
    sT0, sT1, sT2, sT3 = 64, 65, 66, 67
    sSC, sINV = 68, 69
    sONES = 70
    sOX, sOW = 72, 73
    sEX = 74

    a("s_cmp_ge_u32 s2, 224")
    a("s_cbranch_scc1 K1_END")
    a("s_load_dwordx16 s[16:31], s[0:1], 0")
    a("s_load_dwordx4 s[32:35], s[0:1], 80")
    a("s_load_dwordx2 s[36:37], s[0:1], 120")
    a("v_lshrrev_b32 v1, 6, v0")
    a("v_readfirstlane_b32 s%d, v1" % sWV)
    a("v_and_b32 v1, 63, v0")
    a("s_and_b32 s%d, s2, 7" % sT0)
    a("s_lshr_b32 s%d, s2, 3" % sT1)
    a("s_lshr_b32 s%d, s%d, 1" % (sT2, sT0))
    a("s_lshl_b32 s%d, s%d, 2" % (sT2, sT2))
    a("s_and_b32 s%d, s%d, 3" % (sT3, sT1))
    a("s_add_u32 s%d, s%d, s%d" % (sR, sT2, sT3))
    a("s_and_b32 s%d, s%d, 1" % (sT2, sT0))
    a("s_mul_i32 s%d, s%d, 7" % (sT2, sT2))
    a("s_lshr_b32 s%d, s%d, 2" % (sT3, sT1))
    a("s_add_u32 s%d, s%d, s%d" % (sF, sT2, sT3))
    a("s_and_b32 s%d, s%d, 1" % (sWR, sWV))
    a("s_lshr_b32 s%d, s%d, 1" % (sWC, sWV))
    a("s_lshr_b32 s%d, s%d, 2" % (sT0, sWV))
    a("s_lshl_b32 s%d, s2, 1" % sCH)
    a("s_add_u32 s%d, s%d, s%d" % (sCH, sCH, sT0))
    a("s_and_b32 s%d, s%d, 3" % (sMQ, sWV))
    a("s_mov_b32 s%d, 0x3f803f80" % sONES)
    a("s_lshl_b32 s%d, s%d, 8" % (sT0, sCH))
    a("s_lshl_b32 s%d, s%d, 6" % (sT1, sMQ))
    a("s_add_u32 s%d, s%d, s%d" % (sT0, sT0, sT1))
    a("v_add_u32 v16, s%d, v1" % sT0)
    a("v_lshlrev_b32 v16, 1, v16")
    a("s_lshl_b32 s%d, s%d, 1" % (sT1, sCH))
    a("v_mov_b32 v17, s%d" % sT1)
    a("v_lshrrev_b32 v2, 2, v1")
    a("s_lshl_b32 s%d, s%d, 7" % (sT0, sR))
    a("s_lshl_b32 s%d, s%d, 4" % (sT1, sWV))
    a("s_add_u32 s%d, s%d, s%d" % (sT0, sT0, sT1))
    a("v_add_u32 v2, s%d, v2" % sT0)
    a("v_mul_u32_u24 v2, 896, v2")
    a("v_lshrrev_b32 v3, 4, v1")
    a("v_xor_b32 v4, v1, v3")
    a("v_and_b32 v4, 3, v4")
    a("v_lshl_add_u32 v2, v4, 4, v2")
    a("s_lshl_b32 s%d, s%d, 2" % (sT0, sWV))
    a("v_add_u32 v5, s%d, v3" % sT0)
    a("s_movk_i32 s%d, 3584" % sT1)
    a("v_mul_lo_u32 v5, v5, s%d" % sT1)
    a("v_lshlrev_b32 v6, 2, v3")
    a("v_xor_b32 v6, v1, v6")
    a("v_and_b32 v6, 15, v6")
    a("v_lshl_add_u32 v5, v6, 4, v5")
    a("s_lshl_b32 s%d, s%d, 8" % (sT0, sF))
    a("v_add_u32 v3, s%d, v5" % sT0)
    a("s_waitcnt lgkmcnt(0)")
    srd(a, SX, 16, 2048 * 896)
    srd(a, SWG, 32, 448 * 3584)
    srd(a, SWU, 34, 448 * 3584)
    srd(a, SWS, 36, WS_SIZE)
    for i in range(6):
        a.vm("global_load_ushort v%d, v16, s[%d:%d]" % (20 + i, 18 + 2 * i, 19 + 2 * i), "param")
    a.vm("global_load_ushort v26, v17, s[30:31]", "param")

    def dma_stage(st):
        slot = st % NS
        a("s_mov_b32 s%d, %d" % (sOX, st * 64))
        a("s_mov_b32 s%d, %d" % (sOW, st * 32 * 3584))
        a("s_lshl_b32 s%d, s%d, 10" % (sT3, sWV))
        a("s_add_u32 m0, s%d, %d" % (sT3, slot * SLOT))
        a.vm("buffer_load_dwordx4 v2, s[%d:%d], s%d offen lds" % (SX, SX + 3, sOX), ("st", st))
        a("s_add_u32 m0, s%d, %d" % (sT3, slot * SLOT + 8192))
        a.vm("buffer_load_dwordx4 v3, s[%d:%d], s%d offen lds" % (SWG, SWG + 3, sOW), ("st", st))
        a("s_add_u32 m0, s%d, %d" % (sT3, slot * SLOT + 16384))
        a.vm("buffer_load_dwordx4 v3, s[%d:%d], s%d offen lds" % (SWU, SWU + 3, sOW), ("st", st))
    for st in range(3): dma_stage(st)

    a("v_lshlrev_b32 v4, 2, v0")
    a("v_add_u32 v4, %d, v4" % L_CS)
    a("v_mov_b32 v5, 0")
    a("s_cmp_ge_u32 s%d, 4" % sWV)
    a("s_cbranch_scc1 K1_NOZ")
    a.begin_opt()
    a("ds_write_b32 v4, v5")
    a.end_opt()
    a.label("K1_NOZ")

    a.wait_vm("param")
    Are, Aim, Bre, Bim, Cre, Cim, Ldt = 20, 21, 22, 23, 24, 25, 26
    for r in range(20, 27): a("v_lshlrev_b32 v%d, 16, v%d" % (r, r))
    a("v_mul_f32 v26, %s, v26" % fbits(LOG2E))
    a("v_exp_f32 v26, v26")
    a("v_cvt_pk_bf16_f32 v26, v26, v26")
    a("v_lshlrev_b32 v26, 16, v26")
    a("v_mul_f32 v20, v26, v20")
    a("v_mul_f32 v21, v26, v21")
    a("v_mul_f32 v22, v26, v22")
    a("v_mul_f32 v23, v26, v23")
    X0 = 28
    a("v_mul_f32 v28, v24, v22")
    a("v_fma_f32 v28, -v25, v23, v28")
    a("v_mul_f32 v29, v24, v23")
    a("v_fma_f32 v29, v25, v22, v29")
    a("v_max_f32 v27, abs(v28), abs(v29)")
    for sh in (1, 2, 4, 8):
        a("v_max_f32_dpp v27, v27, v27 row_shr:%d row_mask:0xf bank_mask:0xf" % sh)
    a("v_max_f32_dpp v27, v27, v27 row_bcast:15 row_mask:0xa bank_mask:0xf")
    a("v_max_f32_dpp v27, v27, v27 row_bcast:31 row_mask:0xc bank_mask:0xf")
    a("v_readlane_b32 s%d, v27, 63" % sT0)
    a("s_lshr_b32 s%d, s%d, 23" % (sT0, sT0))
    a("s_sub_u32 s%d, 254, s%d" % (sSC, sT0))
    a("s_lshl_b32 s%d, s%d, 23" % (sSC, sSC))
    a("s_lshl_b32 s%d, s%d, 23" % (sINV, sT0))
    a("v_mov_b32 v4, s%d" % sT0)
    a("s_lshl_b32 s%d, s%d, 2" % (sT1, sWV))
    a("s_add_u32 s%d, s%d, %d" % (sT1, sT1, L_KEXP))
    a("v_mov_b32 v5, s%d" % sT1)
    a("ds_write_b32 v5, v4")
    a("v_mul_f32 v28, s%d, v28" % sSC)
    a("v_mul_f32 v29, s%d, v29" % sSC)
    def cexp(d, L):
        a("v_mul_f32 v22, %s, v20" % fbits(L * LOG2E))
        a("v_mul_f32 v23, %s, v21" % fbits(L / (2 * math.pi)))
        a("v_exp_f32 v22, v22")
        a("v_fract_f32 v23, v23")
        a("v_cos_f32 v%d, v23" % d)
        a("v_sin_f32 v%d, v23" % (d + 1))
        a("v_mul_f32 v%d, v22, v%d" % (d, d))
        a("v_mul_f32 v%d, v22, v%d" % (d + 1, d + 1))
    E1, E8, E256, E2, E4, E16 = 30, 32, 34, 36, 38, 40
    TA, TB = 42, 44
    tmpi = [0]
    def cmul(d, x, y):
        t = (TA, TB)[tmpi[0] & 1]; tmpi[0] += 1
        a("v_pk_mul_f32 %s, %s, %s op_sel_hi:[1,0]" % (vr(t, 2), vr(x, 2), vr(y, 2)))
        a("v_pk_fma_f32 %s, %s, %s, %s op_sel:[1,1,0] op_sel_hi:[0,1,1] neg_lo:[1,0,0]" % (vr(d, 2), vr(x, 2), vr(y, 2), vr(t, 2)))
    cexp(E8, 8); cexp(E1, 1); cexp(E256, 256)
    cmul(E16, E8, E8); cmul(E2, E1, E1); cmul(E4, E2, E2)
    a("s_mul_i32 s%d, s%d, %d" % (sT0, sWV, STG_W))
    a("s_add_u32 s%d, s%d, %d" % (sT0, sT0, L_STG))
    a("v_lshl_add_u32 v4, v1, 2, s%d" % sT0)
    a("v_and_b32 v5, 15, v1")
    a("v_mul_u32_u24 v5, 272, v5")
    a("v_lshrrev_b32 v6, 4, v1")
    a("v_lshl_add_u32 v5, v6, 4, v5")
    a("v_add_u32 v5, s%d, v5" % sT0)
    PK = [46, 47, 48, 49]; pki = [0]
    def put(row, r, negim=False):
        p = PK[pki[0] & 3]; pki[0] += 1
        a("v_cvt_pk_f16_f32 v%d, v%d, %sv%d" % (p, r, "-" if negim else "", r + 1))
        a("ds_write_b32 v4, v%d offset:%d" % (p, row * 272))
    YF = [64, 80]; XF = [96, 112]
    def getfr(base):
        for ks in range(4):
            a("ds_read_b128 %s, v5 offset:%d" % (vr(base + 4 * ks, 4), ks * 64))
    Ya, Yb = 50, 52
    a("v_mov_b32 v50, 1.0"); a("v_mov_b32 v51, 0")
    a("v_mov_b32 v52, v%d" % E8); a("v_mov_b32 v53, v%d" % (E8 + 1))
    for j in range(0, 32, 2):
        put(j & 15, Ya); put((j + 1) & 15, Yb)
        if j + 2 < 32:
            cmul(Ya, Ya, E16); cmul(Yb, Yb, E16)
        if j == 14: getfr(YF[0])
    getfr(YF[1])
    Xa, Xb, Xc = 54, 56, 58
    put(0, X0, True)
    cmul(Xa, X0, E1); cmul(Xb, X0, E256)
    put(1, Xa, True); put(8, Xb, True)
    cmul(Xc, Xb, E2)
    for r in range(2, 8):
        cmul(Xa, Xa, E1); put(r, Xa, True)
        if r <= 4:
            put(9 + (r - 2), Xc, True)
            if r < 4: cmul(Xc, Xc, E2)
    cmul(Xb, Xb, E256); put(12, Xb, True)
    cmul(Xc, Xb, E4); put(13, Xc, True)
    cmul(Xb, Xb, E256); put(14, Xb, True)
    cmul(Xc, Xb, E4); put(15, Xc, True)
    getfr(XF[0])
    for r in range(5):
        cmul(Xb, Xb, E256); put(r, Xb, True)
    getfr(XF[1])
    D = [[128, 132], [136, 140]]
    for xt in range(2):
        for yt in range(2):
            for r in range(4): a("v_mov_b32 v%d, 0" % (D[xt][yt] + r))
    a("s_waitcnt lgkmcnt(0)")
    for ks in range(4):
        for xt in range(2):
            for yt in range(2):
                a("v_mfma_f32_16x16x32_f16 %s, %s, %s, %s" % (vr(D[xt][yt], 4), vr(XF[xt] + 4 * ks, 4), vr(YF[yt] + 4 * ks, 4), vr(D[xt][yt], 4)))
    a("v_and_b32 v7, 15, v1")
    a("v_cmp_eq_u32 vcc, 2, v6")
    a("v_mov_b32 v8, 8"); a("v_lshlrev_b32 v9, 2, v6")
    a("v_mov_b32 v10, 2")
    a("v_mov_b32 v11, 256")
    a("v_cndmask_b32 v8, v8, 4, vcc")
    a("v_cndmask_b32 v9, v9, v11, vcc")
    a("v_cmp_eq_u32 vcc, 3, v6")
    a("v_mov_b32 v11, 384"); a("v_mov_b32 v12, 64")
    a("v_cndmask_b32 v8, v8, 2, vcc")
    a("v_cndmask_b32 v9, v9, v11, vcc")
    a("v_cndmask_b32 v10, v10, v12, vcc")
    a("v_mad_u32_u24 v9, v8, v7, v9")
    a("s_lshr_b32 s%d, s%d, 2" % (sT0, sWV))
    a("s_mul_i32 s%d, s%d, %d" % (sT0, sT0, DV_CH))
    a("s_add_u32 s%d, s%d, %d" % (sT2, sT0, L_DV))
    a("s_lshl_b32 s%d, s%d, 2" % (sT1, sMQ))
    a("s_add_u32 s%d, s%d, s%d" % (sT0, sT2, sT1))
    a("v_lshl_add_u32 v9, v9, 4, s%d" % sT0)
    a("v_lshl_add_u32 v10, v10, 4, v9")
    a("v_lshl_add_u32 v11, v8, 8, v9")
    a("v_lshl_add_u32 v12, v8, 8, v10")
    a("v_lshl_add_u32 v13, v7, 4, s%d" % sT0)
    for xt in range(2):
        for yt in range(2):
            for r in range(4): a("v_mul_f32 v%d, s%d, v%d" % (D[xt][yt] + r, sINV, D[xt][yt] + r))
    for yt in range(2):
        for r in range(4):
            a("ds_write_b32 v%d, v%d offset:%d" % ((9, 10, 11, 12)[2 * yt + (r >> 1)], D[0][yt] + r, (r & 1) * 16))
    a("s_mov_b64 exec, 0xffff")
    for yt in range(2):
        for r in range(4):
            a("ds_write_b32 v13, v%d offset:%d" % (D[1][yt] + r, (512 + 32 * r + 16 * yt) * 16))
    a("s_mov_b32 exec_lo, 0x10000")
    a("ds_write_b32 v13, v%d offset:%d" % (D[1][0], 640 * 16))
    a("s_mov_b64 exec, -1")
    a("s_waitcnt lgkmcnt(0)")
    a("s_barrier")
    a("s_lshr_b32 s%d, s%d, 2" % (sT0, sWV))
    a("s_lshl_b32 s%d, s%d, 4" % (sT0, sT0))
    a("s_add_u32 s%d, s%d, %d" % (sT0, sT0, L_KEXP))
    a("v_mov_b32 v4, s%d" % sT0)
    a("ds_read_b128 v[8:11], v4")
    a("s_lshl_b32 s%d, s%d, 6" % (sT0, sMQ))
    a("v_add_u32 v4, s%d, v1" % sT0)
    a("v_lshlrev_b32 v5, 3, v4")
    a("v_cmp_gt_u32 vcc, 32, v4")
    for e in range(8):
        a("v_add_u32 v6, %d, v5" % e)
        a("v_cvt_f32_u32 v7, v6")
        a("v_cvt_pk_bf16_f32 v7, v7, v7")
        a("v_and_b32 v7, 0xffff, v7")
        a("v_subrev_u32 v7, 0x4280, v7")
        a("v_cndmask_b32 v7, v7, v6, vcc")
        a("v_lshl_add_u32 v7, v7, 4, s%d" % sT2)
        a("ds_read_b128 %s, v7" % vr(64 + 4 * e, 4))
    a("s_waitcnt lgkmcnt(8)")
    a("v_max_u32 v8, v8, v9"); a("v_max_u32 v10, v10, v11"); a("v_max_u32 v8, v8, v10")
    a("v_sub_u32 v9, 254, v8"); a("v_lshlrev_b32 v9, 23, v9")
    a("v_lshlrev_b32 v10, 23, v8")
    a("s_waitcnt lgkmcnt(0)")
    for e in range(8):
        b = 64 + 4 * e
        a("v_add_f32 v%d, v%d, v%d" % (b, b, b + 1))
        a("v_add_f32 v%d, v%d, v%d" % (b + 2, b + 2, b + 3))
        a("v_add_f32 v%d, v%d, v%d" % (b, b, b + 2))
        a("v_mul_f32 v%d, v9, v%d" % (b, b))
    for i in range(4):
        a("v_cvt_pk_f16_f32 v%d, v%d, v%d" % (12 + i, 64 + 4 * (7 - 2 * i), 64 + 4 * (6 - 2 * i)))
    a("s_mul_i32 s%d, s%d, %d" % (sT0, sCH, KSTRIDE))
    a("s_add_u32 s%d, s%d, %d" % (sT0, sT0, WS_KREV + 4080))
    a("v_lshlrev_b32 v5, 4, v4")
    a("v_sub_u32 v5, s%d, v5" % sT0)
    a.vm("buffer_store_dwordx4 v[12:15], v5, s[%d:%d], 0 offen" % (SWS, SWS + 3), "kst")
    a("s_cmp_lg_u32 s%d, 0" % sMQ)
    a("s_cbranch_scc1 K1_NOPAD")
    a.begin_opt()
    a("v_mov_b32 v16, 0"); a("v_mov_b32 v17, 0"); a("v_mov_b32 v18, 0"); a("v_mov_b32 v19, 0")
    a("s_add_u32 s%d, s%d, 16" % (sT0, sT0))
    a("v_lshl_add_u32 v6, v1, 4, s%d" % sT0)
    a("s_lshl_b32 s%d, s%d, 2" % (sT1, sCH))
    a("s_add_u32 s%d, s%d, %d" % (sT1, sT1, WS_KSC))
    a("v_mov_b32 v7, s%d" % sT1)
    a("s_mov_b64 exec, 0xf")
    a("buffer_store_dwordx4 v[16:19], v6, s[%d:%d], 0 offen" % (SWS, SWS + 3))
    a("s_mov_b64 exec, 1")
    a("buffer_store_dword v10, v7, s[%d:%d], 0 offen" % (SWS, SWS + 3))
    a("s_mov_b64 exec, -1")
    a("s_waitcnt vmcnt(0)")
    a.end_opt()
    a.label("K1_NOPAD")
    a("s_barrier")
    dma_stage(3); dma_stage(4)

    a("v_and_b32 v4, 31, v1")
    a("s_lshl_b32 s%d, s%d, 6" % (sT0, sWR))
    a("v_add_u32 v4, s%d, v4" % sT0)
    a("v_lshlrev_b32 v4, 6, v4")
    a("v_lshrrev_b32 v5, 5, v1")
    a("v_lshrrev_b32 v6, 2, v1")
    a("v_and_b32 v6, 3, v6")
    a("v_xor_b32 v7, v5, v6")
    a("v_lshl_add_u32 v4, v7, 4, v4")
    a("v_xor_b32 v5, 32, v4")
    a("v_lshrrev_b32 v7, 5, v1")
    a("v_lshl_add_u32 v7, v7, 3, v6")
    a("v_lshlrev_b32 v8, 8, v7")
    a("v_bfe_u32 v9, v1, 4, 1")
    a("v_lshlrev_b32 v9, 1, v9")
    a("v_bfe_u32 v10, v1, 1, 1")
    a("v_add_u32 v9, v9, v10")
    a("s_lshl_b32 s%d, s%d, 2" % (sT0, sWC))
    a("v_add_u32 v9, s%d, v9" % sT0)
    a("v_lshlrev_b32 v10, 2, v6")
    a("v_xor_b32 v9, v9, v10")
    a("v_lshl_add_u32 v8, v9, 4, v8")
    a("v_and_b32 v10, 1, v1")
    a("v_lshl_add_u32 v8, v10, 3, v8")
    a("v_add_u32 v8, 8192, v8")
    a("v_add_u32 v6, %d, v4" % (3 * SLOT))
    a("v_add_u32 v7, %d, v5" % (3 * SLOT))
    a("v_add_u32 v9, %d, v8" % (3 * SLOT))
    ACC = [[64, 80], [96, 112]]
    for r in range(64, 128): a("v_mov_b32 v%d, 0" % r)
    XS1, XS2, WCS = [10, 11], [12, 13], [14, 15]
    for r in range(10, 16): a("v_mov_b32 v%d, 0" % r)
    FR = [128, 144]
    def rd_frags(st, kk, fb):
        slot = st % NS
        hi = slot >= 3
        so = (slot - 3 * hi) * SLOT
        xa = ((4, 5), (6, 7))[hi][kk]; wa = (8, 9)[hi]
        for tt in range(2):
            a("ds_read_b128 %s, v%d offset:%d" % (vr(fb + 4 * tt, 4), xa, so + tt * 2048))
        for mat in range(2):
            for half in range(2):
                a("ds_read_b64_tr_b16 %s, v%d offset:%d" % (vr(fb + 8 + 4 * mat + 2 * half, 2), wa, so + mat * 8192 + kk * 4096 + half * 1024))
    lab = [0]
    def compute(i, fb):
        for mat in range(2):
            for tt in range(2):
                a("v_mfma_f32_32x32x16_bf16 %s, %s, %s, %s" % (vr(ACC[mat][tt], 16), vr(fb + 8 + 4 * mat, 4), vr(fb + 4 * tt, 4), vr(ACC[mat][tt], 16)))
        lab[0] += 1
        a("s_cmp_lg_u32 s%d, %d" % (sWC, i & 3))
        a("s_cbranch_scc1 K1_SX%d" % lab[0])
        a.begin_opt()
        for tt in range(2):
            for r in range(4):
                a("v_dot2_f32_bf16 v%d, v%d, s%d, v%d" % (XS1[tt], fb + 4 * tt + r, sONES, XS1[tt]))
                a("v_dot2_f32_bf16 v%d, v%d, v%d, v%d" % (XS2[tt], fb + 4 * tt + r, fb + 4 * tt + r, XS2[tt]))
        a.end_opt()
        a.label("K1_SX%d" % lab[0])
        a("s_cmp_lg_u32 s%d, %d" % (sWR, i & 1))
        a("s_cbranch_scc1 K1_SW%d" % lab[0])
        a.begin_opt()
        for r in range(4):
            for mat in range(2):
                a("v_dot2_f32_bf16 v%d, v%d, s%d, v%d" % (WCS[mat], fb + 8 + 4 * mat + r, sONES, WCS[mat]))
        a.end_opt()
        a.label("K1_SW%d" % lab[0])
    for st in range(NST):
        a.wait_vm(("st", st))
        a("s_barrier")
        if st + 5 < NST: dma_stage(st + 5)
        if st == NST - 3:
            a("v_lshrrev_b32 v16, 2, v0")
            a("s_lshl_b32 s%d, s%d, 7" % (sT0, sR))
            a("v_add_u32 v16, s%d, v16" % sT0)
            a("v_mul_u32_u24 v16, 896, v16")
            a("v_and_b32 v17, 3, v0")
            a("v_lshl_add_u32 v16, v17, 4, v16")
            a("s_lshl_b32 s%d, s%d, 6" % (sT0, sF))
            a.vm("buffer_load_dwordx4 v[20:23], v16, s[%d:%d], s%d offen" % (SX, SX + 3, sT0), "xre")
        rd_frags(st, 0, FR[0])
        rd_frags(st, 1, FR[1])
        a("s_waitcnt lgkmcnt(6)")
        compute(2 * st, FR[0])
        a("s_waitcnt lgkmcnt(0)")
        compute(2 * st + 1, FR[1])

    def halfsum(r, t):
        a("v_mov_b32 v%d, v%d" % (t, r))
        a("v_permlane32_swap_b32 v%d, v%d" % (r, t))
        a("v_add_f32 v%d, v%d, v%d" % (r, r, t))
    for r in range(10, 16): halfsum(r, 16)
    a("v_and_b32 v4, 31, v1")
    a("s_lshl_b32 s%d, s%d, 6" % (sT0, sWR))
    a("v_add_u32 v4, s%d, v4" % sT0)
    a("v_lshlrev_b32 v5, 4, v4")
    a("v_add_u32 v5, %d, v5" % L_STAT)
    a("s_lshl_b32 s%d, s%d, 2" % (sT0, sWC))
    a("v_add_u32 v6, s%d, v5" % sT0)
    for tt in range(2):
        a("ds_write_b32 v6, v%d offset:%d" % (XS1[tt], tt * 512))
        a("ds_write_b32 v6, v%d offset:%d" % (XS2[tt], 2048 + tt * 512))
    a("v_and_b32 v7, 31, v1")
    a("s_lshl_b32 s%d, s%d, 5" % (sT0, sWC))
    a("v_add_u32 v7, s%d, v7" % sT0)
    a("v_lshlrev_b32 v7, 2, v7")
    a("v_add_u32 v7, %d, v7" % L_CS)
    a("s_mov_b64 exec, 0xffffffff")
    a("ds_add_f32 v7, v14")
    a("ds_add_f32 v7, v15 offset:512")
    a("s_mov_b64 exec, -1")
    a("s_waitcnt lgkmcnt(0)")
    a("s_barrier")
    def stats(p1, p2, M, S):
        a("v_add_f32 v%d, v%d, v%d" % (p1, p1, p1 + 1)); a("v_add_f32 v%d, v%d, v%d" % (p1 + 2, p1 + 2, p1 + 3))
        a("v_add_f32 v%d, v%d, v%d" % (p2, p2, p2 + 1)); a("v_add_f32 v%d, v%d, v%d" % (p2 + 2, p2 + 2, p2 + 3))
        a("v_add_f32 v%d, v%d, v%d" % (p1, p1, p1 + 2)); a("v_add_f32 v%d, v%d, v%d" % (p2, p2, p2 + 2))
        a("v_mul_f32 v%d, %s, v%d" % (p1, fbits(1.0 / 448), p1))
        a("v_mul_f32 v%d, %s, v%d" % (p2, fbits(1.0 / 448), p2))
        a("v_fma_f32 v%d, -v%d, v%d, v%d" % (p2, p1, p1, p2))
        a("v_max_f32 v%d, 0, v%d" % (p2, p2))
        a("v_cvt_pk_bf16_f32 v%d, v%d, v%d" % (p1, p1, p2))
        a("v_lshlrev_b32 v%d, 16, v%d" % (M, p1))
        a("v_and_b32 v%d, 0xffff0000, v%d" % (p2, p1))
        a("v_add_f32 v%d, %s, v%d" % (p2, fbits(1e-5), p2))
        a("v_cvt_pk_bf16_f32 v%d, v%d, v%d" % (p2, p2, p2))
        a("v_lshlrev_b32 v%d, 16, v%d" % (p2, p2))
        a("v_sqrt_f32 v%d, v%d" % (p2, p2))
        a("v_cvt_pk_bf16_f32 v%d, v%d, v%d" % (p2, p2, p2))
        a("v_lshlrev_b32 v%d, 16, v%d" % (S, p2))
    a("ds_read_b128 v[24:27], v5"); a("ds_read_b128 v[28:31], v5 offset:2048")
    a("ds_read_b128 v[32:35], v5 offset:512"); a("ds_read_b128 v[36:39], v5 offset:2560")
    a("v_lshrrev_b32 v6, 2, v0")
    a("v_lshlrev_b32 v6, 4, v6")
    a("v_add_u32 v6, %d, v6" % L_STAT)
    a("ds_read_b128 v[40:43], v6"); a("ds_read_b128 v[44:47], v6 offset:2048")
    a("v_lshrrev_b32 v7, 5, v1")
    a("v_lshlrev_b32 v7, 4, v7")
    a("s_lshl_b32 s%d, s%d, 7" % (sT0, sWC))
    a("s_add_u32 s%d, s%d, %d" % (sT0, sT0, L_CS))
    a("v_add_u32 v7, s%d, v7" % sT0)
    CS = [128, 144]
    for mat in range(2):
        for q in range(4):
            a("ds_read_b128 %s, v7 offset:%d" % (vr(CS[mat] + 4 * q, 4), mat * 512 + q * 32))
    a("s_waitcnt lgkmcnt(8)")
    NM = [48, 50]; K1r = [52, 54]; K2r = [56, 58]; S2 = [60, 62]
    for tt in range(2):
        p1, p2 = (24, 28) if tt == 0 else (32, 36)
        stats(p1, p2, NM[tt], S2[tt])
        a("v_rcp_f32 v%d, v%d" % (p1, S2[tt]))
        a("v_sub_f32 v%d, 0, v%d" % (NM[tt], NM[tt]))
        a("v_mul_f32 v%d, v%d, v%d" % (S2[tt], S2[tt], S2[tt]))
        c = math.sqrt(2 / math.pi)
        k1 = -2 * c * LOG2E; k2 = k1 * 0.044715
        a("v_mul_f32 v%d, %s, v%d" % (K1r[tt], fbits(k1), p1))
        a("v_mul_f32 v%d, v%d, v%d" % (p1 + 1, p1, p1))
        a("v_mul_f32 v%d, v%d, v%d" % (p1 + 1, p1 + 1, p1))
        a("v_mul_f32 v%d, %s, v%d" % (K2r[tt], fbits(k2), p1 + 1))
    stats(40, 44, 16, 17)
    a("v_rcp_f32 v17, v17")
    a.wait_vm("xre")
    for i in range(4):
        a("v_lshlrev_b32 v24, 16, v%d" % (20 + i))
        a("v_and_b32 v25, 0xffff0000, v%d" % (20 + i))
        a("v_sub_f32 v24, v24, v16"); a("v_sub_f32 v25, v25, v16")
        a("v_cvt_pk_bf16_f32 v24, v24, v25")
        a("v_and_b32 v25, 0xffff0000, v24"); a("v_lshlrev_b32 v24, 16, v24")
        a("v_mul_f32 v24, v24, v17"); a("v_mul_f32 v25, v25, v17")
        a("v_cvt_pk_bf16_f32 v24, v24, v25")
        a("v_and_b32 v25, 0xffff0000, v24"); a("v_lshlrev_b32 v24, 16, v24")
        a("v_cvt_pk_f16_f32 v%d, v24, v25" % (20 + i))
    a("v_lshlrev_b32 v6, 4, v0")
    a("v_add_u32 v6, %d, v6" % L_XN)
    a("ds_write_b128 v6, v[20:23]")
    a("v_bfe_u32 v6, v1, 5, 1")
    a("v_lshlrev_b32 v6, 3, v6")
    a("v_bfe_u32 v7, v1, 2, 2")
    a("v_add_u32 v6, v6, v7")
    a("s_lshl_b32 s%d, s%d, 4" % (sT0, sWV))
    a("v_add_u32 v6, s%d, v6" % sT0)
    a("v_lshlrev_b32 v6, 6, v6")
    a("v_bfe_u32 v7, v1, 4, 1")
    a("v_lshl_add_u32 v6, v7, 5, v6")
    a("v_and_b32 v18, 3, v1")
    a("v_lshl_add_u32 v6, v18, 3, v6")
    a("v_add_u32 v6, %d, v6" % L_XN)
    a("s_waitcnt lgkmcnt(0)")
    a("ds_read_b64_tr_b16 v[20:21], v6")
    a("ds_read_b64_tr_b16 v[22:23], v6 offset:256")
    a("v_and_b32 v18, 31, v1")
    a("s_lshl_b32 s%d, s%d, 5" % (sT0, sF))
    a("v_add_u32 v18, s%d, v18" % sT0)
    a("v_lshlrev_b32 v18, 12, v18")
    a("v_bfe_u32 v19, v1, 5, 1")
    a("v_lshl_add_u32 v18, v19, 4, v18")
    a("s_lshl_b32 s%d, s%d, 8" % (sT0, sR))
    a("s_lshl_b32 s%d, s%d, 5" % (sT1, sWV))
    a("s_add_u32 s%d, s%d, s%d" % (sT0, sT0, sT1))
    a("s_add_u32 s%d, s%d, %d" % (sT0, sT0, WS_XNT))
    a("s_waitcnt lgkmcnt(0)")
    a.vm("buffer_store_dwordx4 v[20:23], v18, s[%d:%d], s%d offen" % (SWS, SWS + 3, sT0), "xnt")
    a("s_lshl_b32 s%d, s%d, 7" % (sT0, sR))
    a("v_add_u32 v4, s%d, v4" % sT0)
    a("s_movk_i32 s%d, 3584" % sT1)
    a("v_mul_lo_u32 v4, v4, s%d" % sT1)
    a("v_lshrrev_b32 v5, 5, v1")
    a("v_lshl_add_u32 v4, v5, 4, v4")
    a("s_lshl_b32 s%d, s%d, 8" % (sT0, sF))
    a("s_lshl_b32 s%d, s%d, 6" % (sT1, sWC))
    a("s_add_u32 s%d, s%d, s%d" % (sT0, sT0, sT1))
    a("v_add_u32 v4, s%d, v4" % sT0)
    a("v_add_u32 v5, %d, v4" % (32 * 3584))
    B = "op_sel_hi:[1,0,1]"
    for tt in range(2):
        for qp in range(2):
            HP = 24 + 4 * ((2 * tt + qp) & 1)
            for q2 in range(2):
                q = 2 * qp + q2
                for pr in range(2):
                    g = ACC[0][tt] + 4 * q + 2 * pr
                    u = ACC[1][tt] + 4 * q + 2 * pr
                    T = 32 + 2 * ((2 * q2 + pr) & 3)
                    a("v_pk_fma_f32 %s, %s, %s, %s %s" % (vr(g, 2), vr(CS[0] + 4 * q + 2 * pr, 2), vr(NM[tt], 2), vr(g, 2), B))
                    a("v_pk_fma_f32 %s, %s, %s, %s %s" % (vr(u, 2), vr(CS[1] + 4 * q + 2 * pr, 2), vr(NM[tt], 2), vr(u, 2), B))
                    a("v_pk_mul_f32 %s, %s, %s" % (vr(T, 2), vr(g, 2), vr(g, 2)))
                    a("v_pk_fma_f32 %s, %s, %s, %s op_sel_hi:[1,0,0]" % (vr(T, 2), vr(T, 2), vr(K2r[tt], 2), vr(K1r[tt], 2)))
                    a("v_pk_mul_f32 %s, %s, %s" % (vr(T, 2), vr(T, 2), vr(g, 2)))
                    a("v_exp_f32 v%d, v%d" % (T, T)); a("v_exp_f32 v%d, v%d" % (T + 1, T + 1))
                    a("v_pk_mul_f32 %s, %s, %s" % (vr(g, 2), vr(g, 2), vr(u, 2)))
                    a("v_pk_fma_f32 %s, %s, %s, %s op_sel_hi:[1,0,0]" % (vr(T, 2), vr(T, 2), vr(S2[tt], 2), vr(S2[tt], 2)))
                    a("v_rcp_f32 v%d, v%d" % (T, T)); a("v_rcp_f32 v%d, v%d" % (T + 1, T + 1))
                    a("v_pk_mul_f32 %s, %s, %s" % (vr(g, 2), vr(g, 2), vr(T, 2)))
                    a("v_cvt_pk_bf16_f32 v%d, v%d, v%d" % (HP + 2 * q2 + pr, g, g + 1))
            a("v_permlane32_swap_b32 v%d, v%d" % (HP, HP + 2))
            a("v_permlane32_swap_b32 v%d, v%d" % (HP + 1, HP + 3))
            a.vm("buffer_store_dwordx4 %s, v%d, s[%d:%d], 0 offen offset:%d" % (vr(HP, 4), 4 + tt, SWS, SWS + 3, qp * 32), "hst")
    a.label("K1_END")
    a("s_endpgm")
    return a.finalize(), 160, 163840

def wrap(kernels):
    out = []
    for name, grid, block, lds, body, nv in kernels:
        out.append("; @launch kernel=%s grid=(%d,1,1) block=(%d,1,1) lds=%d" % (name, grid, block, lds))
    out.append('.amdgcn_target "amdgcn-amd-amdhsa--gfx950"')
    out.append(".text")
    for name, grid, block, lds, body, nv in kernels:
        out += [".globl %s" % name, ".p2align 8", ".type %s,@function" % name, "%s:" % name, body]
    out.append('.section .rodata,"a"')
    for name, grid, block, lds, body, nv in kernels:
        out += [".p2align 6", ".amdhsa_kernel %s" % name,
                "  .amdhsa_next_free_vgpr %d" % nv, "  .amdhsa_next_free_sgpr 102", "  .amdhsa_accum_offset %d" % ((nv + 3) // 4 * 4),
                "  .amdhsa_group_segment_fixed_size 0", "  .amdhsa_kernarg_size 128", "  .amdhsa_user_sgpr_count 2",
                "  .amdhsa_user_sgpr_kernarg_segment_ptr 1", "  .amdhsa_system_sgpr_workgroup_id_x 1", ".end_amdhsa_kernel"]
    return "\n".join(out) + "\n"

if __name__ == "__main__":
    ks = []
    b, nv, lds = gen_k1(); ks.append(("k1_kernel", 224, 512, lds, b, nv))
    try:
        from gen_k2 import gen_k2
        b, nv, lds = gen_k2(); ks.append(("k2_kernel", 224, 512, lds, b, nv))
    except ImportError:
        pass
    open(sys.argv[1] if len(sys.argv) > 1 else "k.s", "w").write(wrap(ks))
```

```python
import math, os
from asmlib import Asm
from gen import Stamps, STAMP, fbits, srd, vr, WS_H, WS_XNT, WS_KREV, WS_KSC, WS_YAT, WS_SIZE, KSTRIDE, LOG2E
WS_XT = WS_XNT
WS_ST = 17 << 20
WS_FLAG = 18 << 20
WS_RC = 19 << 20
WS_CS = (19 << 20) + 65536
EXP = os.environ.get('EXP', '')

def gen_k1():
    a = Asm()
    st_ = Stamps(a); sk_ = Stamps(a); sp_ = Stamps(a)
    SLOT = 24576; NS = 5; NST = 14; PD = 4
    KG = NS * SLOT
    STG_W = 4352; L_STG = KG
    L_XCH = KG + 4 * STG_W
    L_STAT = L_XCH + 16384; L_CS = L_STAT + 2048; L_KEXP = L_CS + 1024
    LDS = L_KEXP + 64
    assert LDS <= 163840
    SX, SWG, SWU, SWS = 40, 44, 48, 52
    sWV, sR, sF, sWR, sWC, sCH, sHF = 56, 57, 58, 59, 60, 61, 62
    sT0, sT1, sT2, sT3 = 64, 65, 66, 67
    sSC, sINV, sONES, sWB = 68, 69, 70, 71
    sOX, sOW = 72, 73
    HB = 2 * SLOT

    a("s_cmp_ge_u32 s2, 256")
    a("s_cbranch_scc1 K1_END")
    st_("start"); sk_.n = st_.n; sk_.names = list(st_.names); sp_.n = st_.n; sp_.names = list(st_.names)
    a("s_load_dwordx16 s[16:31], s[0:1], 0")
    a("s_load_dwordx4 s[32:35], s[0:1], 80")
    a("s_load_dwordx4 s[12:15], s[0:1], 112")
    a("v_lshrrev_b32 v1, 6, v0")
    a("v_readfirstlane_b32 s%d, v1" % sWV)
    a("v_and_b32 v1, 63, v0")
    a("s_cmp_lt_u32 s2, 32")
    a("s_cbranch_scc1 K1_PROD")
    a("s_sub_u32 s2, s2, 32")
    a("s_and_b32 s%d, s2, 7" % sT0)
    a("s_lshr_b32 s%d, s2, 3" % sT1)
    a("s_lshr_b32 s%d, s%d, 1" % (sT2, sT0))
    a("s_lshl_b32 s%d, s%d, 2" % (sT2, sT2))
    a("s_and_b32 s%d, s%d, 3" % (sT3, sT1))
    a("s_add_u32 s%d, s%d, s%d" % (sR, sT2, sT3))
    a("s_and_b32 s%d, s%d, 1" % (sT2, sT0))
    a("s_mul_i32 s%d, s%d, 7" % (sT2, sT2))
    a("s_lshr_b32 s%d, s%d, 2" % (sT3, sT1))
    a("s_add_u32 s%d, s%d, s%d" % (sF, sT2, sT3))
    def wfrag_addr(dst, swc, t0, t1, t2):
        a("v_bfe_u32 v%d, v1, 2, 2" % t0)
        a("v_lshrrev_b32 v%d, 5, v1" % t1)
        a("v_lshl_add_u32 v%d, v%d, 3, v%d" % (t1, t1, t0))
        a("v_lshlrev_b32 v%d, 8, v%d" % (dst, t1))
        a("v_bfe_u32 v%d, v1, 4, 1" % t1)
        a("v_lshlrev_b32 v%d, 1, v%d" % (t1, t1))
        a("v_bfe_u32 v%d, v1, 1, 1" % t2)
        a("v_add_u32 v%d, v%d, v%d" % (t1, t1, t2))
        a("s_lshl_b32 s%d, s%d, 2" % (sT0, swc))
        a("v_add_u32 v%d, s%d, v%d" % (t1, sT0, t1))
        a("v_lshlrev_b32 v%d, 2, v%d" % (t2, t0))
        a("v_xor_b32 v%d, v%d, v%d" % (t1, t1, t2))
        a("v_lshl_add_u32 v%d, v%d, 4, v%d" % (dst, t1, dst))
        a("v_and_b32 v%d, 1, v1" % t2)
        a("v_lshl_add_u32 v%d, v%d, 3, v%d" % (dst, t2, dst))
        a("v_add_u32 v%d, 8192, v%d" % (dst, dst))
    a("s_cmp_ge_u32 s%d, 8" % sWV)
    a("s_cbranch_scc1 K1_KGEN")
    if "noffn" in EXP: a("s_endpgm")
    a("s_setprio %d" % int(os.environ.get("FPRIO", "2")))
    a("s_and_b32 s%d, s%d, 1" % (sWR, sWV))
    a("s_lshr_b32 s%d, s%d, 1" % (sWC, sWV))
    a("s_lshl_b32 s%d, s%d, 10" % (sWB, sWV))
    a("v_lshrrev_b32 v2, 2, v1")
    a("s_lshl_b32 s%d, s%d, 7" % (sT0, sR))
    a("s_lshl_b32 s%d, s%d, 4" % (sT1, sWV))
    a("s_add_u32 s%d, s%d, s%d" % (sT0, sT0, sT1))
    a("v_add_u32 v2, s%d, v2" % sT0)
    a("v_mul_u32_u24 v2, 896, v2")
    a("v_lshrrev_b32 v3, 4, v1")
    a("v_xor_b32 v4, v1, v3")
    a("v_and_b32 v4, 3, v4")
    a("v_lshl_add_u32 v2, v4, 4, v2")
    a("s_lshl_b32 s%d, s%d, 2" % (sT0, sWV))
    a("v_add_u32 v5, s%d, v3" % sT0)
    a("s_movk_i32 s%d, 3584" % sT1)
    a("v_mul_lo_u32 v5, v5, s%d" % sT1)
    a("v_lshlrev_b32 v6, 2, v3")
    a("v_xor_b32 v6, v1, v6")
    a("v_and_b32 v6, 15, v6")
    a("v_lshl_add_u32 v5, v6, 4, v5")
    a("s_lshl_b32 s%d, s%d, 8" % (sT0, sF))
    a("v_add_u32 v3, s%d, v5" % sT0)
    a("s_waitcnt lgkmcnt(0)")
    srd(a, SX, 16, 2048 * 896)
    srd(a, SWG, 32, 448 * 3584)
    srd(a, SWU, 34, 448 * 3584)
    srd(a, SWS, 14, WS_SIZE)
    def dma_stage(st):
        slot = st % NS
        if "nodma" in EXP:
            a.vmq.append(("st", st)); return
        a("s_mov_b32 s%d, %d" % (sOX, st * 64))
        a("s_mov_b32 s%d, %d" % (sOW, st * 32 * 3584))
        a("s_add_u32 m0, s%d, %d" % (sWB, slot * SLOT))
        a.vm("buffer_load_dwordx4 v2, s[%d:%d], s%d offen lds" % (SX, SX + 3, sOX), ("st", st))
        a("s_add_u32 m0, s%d, %d" % (sWB, slot * SLOT + 8192))
        a.vm("buffer_load_dwordx4 v3, s[%d:%d], s%d offen lds" % (SWG, SWG + 3, sOW), ("st", st))
        a("s_add_u32 m0, s%d, %d" % (sWB, slot * SLOT + 16384))
        a.vm("buffer_load_dwordx4 v3, s[%d:%d], s%d offen lds" % (SWU, SWU + 3, sOW), ("st", st))
    for st in range(PD): dma_stage(st)
    a("v_and_b32 v16, 31, v1")
    a("s_lshl_b32 s%d, s%d, 6" % (sT0, sWR))
    a("v_add_u32 v16, s%d, v16" % sT0)
    a("v_lshlrev_b32 v4, 6, v16")
    a("v_lshrrev_b32 v5, 5, v1")
    a("v_bfe_u32 v6, v1, 2, 2")
    a("v_xor_b32 v7, v5, v6")
    a("v_lshl_add_u32 v4, v7, 4, v4")
    a("v_xor_b32 v5, 32, v4")
    wfrag_addr(8, sWC, 9, 10, 11)
    a("v_add_u32 v6, %d, v4" % HB)
    a("v_add_u32 v7, %d, v5" % HB)
    a("v_add_u32 v9, %d, v8" % HB)
    ACC = [[64, 80], [96, 112]]
    for r in range(64, 128): a("v_mov_b32 v%d, 0" % r)
    FR = [128, 144]
    def rd_frags(st, kk):
        fb = FR[kk]
        if "nords" in EXP: return
        slot = st % NS
        hi = slot >= 2
        so = (slot - 2 * hi) * SLOT
        xa = ((4, 5), (6, 7))[hi][kk]; wa = (8, 9)[hi]
        for mat in range(2):
            for half in range(2):
                a("ds_read_b64_tr_b16 %s, v%d offset:%d" % (vr(fb + 8 + 4 * mat + 2 * half, 2), wa, so + mat * 8192 + kk * 4096 + half * 1024))
            a("ds_read_b128 %s, v%d offset:%d" % (vr(fb + 4 * mat, 4), xa, so + mat * 2048))
    def mfmas(kk):
        fb = FR[kk]
        if "nomfma" in EXP: return
        for mat in range(2):
            for tt in range(2):
                a("v_mfma_f32_32x32x16_bf16 %s, %s, %s, %s" % (vr(ACC[mat][tt], 16), vr(fb + 8 + 4 * mat, 4), vr(fb + 4 * tt, 4), vr(ACC[mat][tt], 16)))
    a("v_lshlrev_b32 v17, 4, v16")
    a("v_add_u32 v17, %d, v17" % L_STAT)
    a("v_lshrrev_b32 v20, 5, v1")
    a("v_lshlrev_b32 v20, 4, v20")
    a("s_lshl_b32 s%d, s%d, 7" % (sT0, sWC))
    a("s_add_u32 s%d, s%d, %d" % (sT0, sT0, L_CS))
    a("v_add_u32 v20, s%d, v20" % sT0)
    a("s_lshl_b32 s%d, s%d, 1" % (sT0, sR))
    a("s_add_u32 s%d, s%d, s%d" % (sT0, sT0, sWR))
    a("s_mul_i32 s%d, s%d, 56" % (sT0, sT0))
    a("s_lshl_b32 s%d, s%d, 2" % (sT1, sF))
    a("s_add_u32 s%d, s%d, s%d" % (sT0, sT0, sT1))
    a("s_add_u32 s%d, s%d, s%d" % (sT0, sT0, sWC))
    a("s_lshl_b32 s%d, s%d, 12" % (sT0, sT0))
    a("v_and_b32 v21, 15, v1")
    a("v_lshlrev_b32 v21, 4, v21")
    a("v_bfe_u32 v22, v1, 4, 1")
    a("v_lshl_add_u32 v21, v22, 10, v21")
    a("v_lshrrev_b32 v22, 5, v1")
    a("v_lshl_add_u32 v21, v22, 8, v21")
    a("v_add_u32 v21, s%d, v21" % sT0)
    a.wait_vm(("st", 0))
    a("s_barrier")
    st_("st0")
    rd_frags(0, 0)
    for st in range(NST):
        if st + 1 < NST: a.wait_vm(("st", st + 1))
        a("s_barrier")
        if st in (5, 10): st_("st%d" % st)
        if st + PD < NST: dma_stage(st + PD)
        rd_frags(st, 1)
        a("s_waitcnt lgkmcnt(6)")
        mfmas(0)
        if st + 1 < NST:
            rd_frags(st + 1, 0)
            a("s_waitcnt lgkmcnt(6)")
        else:
            a("s_waitcnt lgkmcnt(0)")
        mfmas(1)
    st_("loopend")
    a("s_barrier")
    CS = [128, 144]
    RC = [48, 52]
    a("ds_read_b128 v[48:51], v17"); a("ds_read_b128 v[52:55], v17 offset:512")
    for q in range(4):
        for mat in range(2):
            a("ds_read_b128 %s, v20 offset:%d" % (vr(CS[mat] + 4 * q, 4), mat * 512 + q * 32))
    st_("stats")
    first = True
    for tt in range(2):
        c0, c1 = vr(RC[tt], 2), vr(RC[tt] + 2, 2)
        for qp in range(2):
            HP = 24 + 4 * ((2 * tt + qp) & 1)
            for q2 in range(2):
                q = 2 * qp + q2
                if tt == 0: a("s_waitcnt lgkmcnt(%d)" % (6 - 2 * q))
                for pr in range(2):
                    g = ACC[0][tt] + 4 * q + 2 * pr
                    u = ACC[1][tt] + 4 * q + 2 * pr
                    T = 32 + 2 * ((2 * q2 + pr) & 3)
                    a("v_pk_fma_f32 %s, %s, %s, %s op_sel_hi:[1,0,1]" % (vr(g, 2), vr(CS[0] + 4 * q + 2 * pr, 2), c0, vr(g, 2)))
                    a("v_pk_fma_f32 %s, %s, %s, %s op_sel_hi:[1,0,1]" % (vr(u, 2), vr(CS[1] + 4 * q + 2 * pr, 2), c0, vr(u, 2)))
                    a("v_pk_mul_f32 %s, %s, %s" % (vr(T, 2), vr(g, 2), vr(g, 2)))
                    a("v_pk_fma_f32 %s, %s, %s, %s op_sel:[0,0,1] op_sel_hi:[1,0,1]" % (vr(T, 2), vr(T, 2), c1, c0))
                    a("v_pk_mul_f32 %s, %s, %s" % (vr(T, 2), vr(T, 2), vr(g, 2)))
                    a("v_exp_f32 v%d, v%d" % (T, T)); a("v_exp_f32 v%d, v%d" % (T + 1, T + 1))
                    a("v_pk_mul_f32 %s, %s, %s" % (vr(g, 2), vr(g, 2), vr(u, 2)))
                    a("v_pk_fma_f32 %s, %s, %s, %s op_sel:[0,1,1] op_sel_hi:[1,1,1]" % (vr(T, 2), vr(T, 2), c1, c1))
                    a("v_rcp_f32 v%d, v%d" % (T, T)); a("v_rcp_f32 v%d, v%d" % (T + 1, T + 1))
                    a("v_pk_mul_f32 %s, %s, %s" % (vr(g, 2), vr(g, 2), vr(T, 2)))
                    a("v_cvt_pk_bf16_f32 v%d, v%d, v%d" % (HP + 2 * q2 + pr, g, g + 1))
            a("v_permlane32_swap_b32 v%d, v%d" % (HP, HP + 2))
            a("v_permlane32_swap_b32 v%d, v%d" % (HP + 1, HP + 3))
            a("buffer_store_dwordx4 %s, v21, s[%d:%d], 0 offen offset:%d" % (vr(HP, 4), SWS, SWS + 3, tt * 2048 + qp * 512))
    st_("end")
    st_.store(0, sWV, SWS, 150)
    a("s_endpgm")

    a.label("K1_KGEN")
    a.vmq = []
    sKW = sWR
    a("s_setprio %d" % int(os.environ.get("KPRIO", "0")))
    a("s_load_dwordx2 s[38:39], s[0:1], 96")
    a("s_sub_u32 s%d, s%d, 8" % (sKW, sWV))
    a("s_and_b32 s%d, s%d, 1" % (sHF, sKW))
    a("s_lshr_b32 s%d, s%d, 1" % (sT0, sKW))
    a("s_lshl_b32 s%d, s2, 1" % sCH)
    a("s_add_u32 s%d, s%d, s%d" % (sCH, sCH, sT0))
    a("s_mov_b32 s%d, 0x3f803f80" % sONES)
    a("s_lshl_b32 s%d, s%d, 8" % (sT0, sCH))
    a("s_lshl_b32 s%d, s%d, 7" % (sT1, sHF))
    a("s_add_u32 s%d, s%d, s%d" % (sT0, sT0, sT1))
    a("v_add_u32 v2, s%d, v1" % sT0)
    a("v_lshlrev_b32 v2, 1, v2")
    a("s_lshl_b32 s%d, s%d, 1" % (sT1, sCH))
    a("v_mov_b32 v3, s%d" % sT1)
    a("s_waitcnt lgkmcnt(0)")
    srd(a, SX, 12, 256)
    srd(a, SWS, 14, WS_SIZE)
    srd(a, SWG, 38, 1792 * 896)
    P = [[20, 21, 22, 23, 24, 25], [120, 121, 122, 123, 124, 125]]
    for it in range(2):
        for i in range(6):
            a.vm("global_load_ushort v%d, v2, s[%d:%d] offset:%d" % (P[it][i], 18 + 2 * i, 19 + 2 * i, it * 128), "param")
    a.vm("global_load_ushort v26, v3, s[30:31]", "param")
    a("s_lshl_b32 s%d, s%d, 12" % (sT2, sKW))
    a("s_add_u32 s%d, s%d, %d" % (sT2, sT2, L_XCH))
    a("s_lshl_b32 s%d, s2, 4" % sT0); a("s_lshl_b32 s%d, s%d, 2" % (sT1, sKW)); a("s_add_u32 s%d, s%d, s%d" % (sT0, sT0, sT1))
    a("s_add_u32 s%d, s%d, %d" % (sT0, sT0, WS_FLAG))
    a("v_mov_b32 v8, s%d" % sT0); a("v_mov_b32 v9, 0")
    a("s_mov_b64 exec, 1")
    a.vm("buffer_store_dword v9, v8, s[%d:%d], 0 offen" % (SWS, SWS + 3), "fl")
    a("s_mov_b64 exec, -1")
    a("s_mul_i32 s%d, s%d, %d" % (sT3, sKW, STG_W))
    a("s_add_u32 s%d, s%d, %d" % (sT3, sT3, L_STG))
    a("v_and_b32 v7, 15, v1")
    a("v_lshrrev_b32 v6, 4, v1")
    a("v_mul_u32_u24 v5, 272, v7")
    a("v_lshl_add_u32 v8, v6, 4, s%d" % sT3)
    a("v_add_u32 v5, v5, v8")
    maps = [[0,1,2,3,4,5,6,7, 8,8,9,10,10,10,11,12],
            [0,0,0,1,1,1,2,2, 3,3,3,4,4,4,5,5],
            [6,6,6,6,6,7,7,7, 8,8,8,8,8,9,9,9],
            [10,10,10,10,10,11,11,11, 12,12,12,12,12,13,13,13]]
    XA = [12, 13, 14, 15]
    a("v_lshlrev_b32 v9, 2, v7")
    a("v_and_b32 v9, 31, v9")
    a("v_cmp_gt_u32 vcc, 8, v7")
    for t in range(4):
        lo = sum(maps[t][i] << (4 * i) for i in range(8)); hi = sum(maps[t][8 + i] << (4 * i) for i in range(8))
        a("v_mov_b32 v10, 0x%x" % hi); a("v_mov_b32 v11, 0x%x" % lo)
        a("v_cndmask_b32 v10, v10, v11, vcc")
        a("v_lshrrev_b32 v10, v9, v10")
        a("v_and_b32 v10, 15, v10")
        a("v_mul_u32_u24 v10, 272, v10")
        a("v_add_u32 v%d, v10, v8" % XA[t])
    D = lambda t, yt: 128 + 8 * t + 4 * yt
    for r in range(128, 160): a("v_mov_b32 v%d, 0" % r)

    KL = []
    def k(text): KL.append(text)
    k(("waitvm", "param"))
    for it in range(2):
        for r in P[it]: k("v_lshlrev_b32 v%d, 16, v%d" % (r, r))
    k("v_lshlrev_b32 v26, 16, v26")
    k("v_mul_f32 v26, %s, v26" % fbits(LOG2E))
    k("v_exp_f32 v26, v26")
    k("v_cvt_pk_bf16_f32 v26, v26, v26")
    k("v_lshlrev_b32 v26, 16, v26")
    WR = [28, 126]
    for it in range(2):
        p = P[it]
        k("v_mul_f32 v%d, v26, v%d" % (p[0], p[0])); k("v_mul_f32 v%d, v26, v%d" % (p[1], p[1]))
        k("v_mul_f32 v%d, v26, v%d" % (p[2], p[2])); k("v_mul_f32 v%d, v26, v%d" % (p[3], p[3]))
        w = WR[it]
        k("v_mul_f32 v%d, v%d, v%d" % (w, p[4], p[2])); k("v_fma_f32 v%d, -v%d, v%d, v%d" % (w, p[5], p[3], w))
        k("v_mul_f32 v%d, v%d, v%d" % (w + 1, p[4], p[3])); k("v_fma_f32 v%d, v%d, v%d, v%d" % (w + 1, p[5], p[2], w + 1))
    k("v_max_f32 v27, abs(v28), abs(v29)")
    k("v_max3_f32 v27, abs(v126), abs(v127), v27")
    for sh in (1, 2, 4, 8):
        k("v_max_f32_dpp v27, v27, v27 row_shr:%d row_mask:0xf bank_mask:0xf" % sh)
    k("v_max_f32_dpp v27, v27, v27 row_bcast:15 row_mask:0xa bank_mask:0xf")
    k("v_max_f32_dpp v27, v27, v27 row_bcast:31 row_mask:0xc bank_mask:0xf")
    k("v_readlane_b32 s%d, v27, 63" % sINV)
    k("s_lshr_b32 s%d, s%d, 23" % (sINV, sINV))
    k("s_sub_u32 s%d, 254, s%d" % (sSC, sINV))
    k("s_lshl_b32 s%d, s%d, 23" % (sSC, sSC))
    k("v_mov_b32 v10, s%d" % sINV)
    k("s_lshl_b32 s%d, s%d, 2" % (sT1, sKW))
    k("s_add_u32 s%d, s%d, %d" % (sT1, sT1, L_KEXP))
    k("v_mov_b32 v11, s%d" % sT1)
    k("ds_write_b32 v11, v10")
    for w in WR:
        k("v_mul_f32 v%d, s%d, v%d" % (w, sSC, w)); k("v_mul_f32 v%d, s%d, v%d" % (w + 1, sSC, w + 1))
    k("s_mov_b32 m0, s%d" % sT3)
    E1, E8, E256, E2, E4, E16 = 30, 32, 34, 36, 38, 40
    tmpi = [0]
    def cmul(d, x, y):
        t = 42 + (tmpi[0] & 3); tmpi[0] += 1
        k("v_mul_f32 v%d, v%d, v%d" % (t, x, y + 1))
        k("v_mul_f32 v%d, v%d, v%d" % (d, x, y) if d != y else None)
        k("v_fma_f32 v%d, -v%d, v%d, v%d" % (d, x + 1, y + 1, d))
        k("v_fma_f32 v%d, v%d, v%d, v%d" % (d + 1, x + 1, y, t))
    PK = [46, 47, 48, 49]; pki = [0]
    def put(row, r, negim=False):
        p = PK[pki[0] & 3]; pki[0] += 1
        k("v_cvt_pk_f16_f32 v%d, v%d, %sv%d" % (p, r, "-" if negim else "", r + 1))
        k("ds_write_addtid_b32 v%d offset:%d" % (p, row * 272))
    YF = [64, 80]; XFB = 96
    for it in range(2):
        are, aim = P[it][0], P[it][1]
        X0 = WR[it]
        if it == 1 and "nopf" not in EXP:
            k("s_lshr_b32 s%d, s2, 3" % sT0); k("s_mul_i32 s%d, s%d, %d" % (sT0, sT0, 448 * 128))
            k("s_mul_i32 s%d, s%d, %d" % (sT1, sKW, 112 * 128)); k("s_add_u32 s%d, s%d, s%d" % (sT0, sT0, sT1))
            k("v_lshlrev_b32 v16, 7, v1"); k("v_min_u32 v17, 47, v1"); k("v_lshlrev_b32 v17, 7, v17"); k("v_add_u32 v17, 8192, v17")
            k("buffer_load_dword v119, v16, s[%d:%d], s%d offen" % (SWG, SWG + 3, sT0))
            k("buffer_load_dword v119, v17, s[%d:%d], s%d offen" % (SWG, SWG + 3, sT0))
        def cexp(d, L):
            k("v_mul_f32 v16, %s, v%d" % (fbits(L * LOG2E), are))
            k("v_mul_f32 v17, %s, v%d" % (fbits(L / (2 * math.pi)), aim))
            k("v_exp_f32 v16, v16")
            k("v_fract_f32 v17, v17")
            k("v_cos_f32 v%d, v17" % d)
            k("v_sin_f32 v%d, v17" % (d + 1))
            k("v_mul_f32 v%d, v16, v%d" % (d, d))
            k("v_mul_f32 v%d, v16, v%d" % (d + 1, d + 1))
        cexp(E8, 8); cexp(E1, 1); cexp(E256, 256)
        cmul(E16, E8, E8); cmul(E2, E1, E1); cmul(E4, E2, E2)
        Ya, Yb = 50, 52
        k("v_mov_b32 v50, 1.0"); k("v_mov_b32 v51, 0")
        put(0, Ya); put(1, E8)
        cmul(Yb, E8, E16)
        put(2, E16); put(3, Yb)
        cmul(Ya, E16, E16)
        for j in range(4, 32, 2):
            cmul(Yb, Yb, E16)
            put(j & 15, Ya); put((j + 1) & 15, Yb)
            if j + 2 < 32: cmul(Ya, Ya, E16)
            if j == 14:
                for ks in range(4): k("ds_read_b128 %s, v5 offset:%d" % (vr(YF[0] + 4 * ks, 4), ks * 64))
        for ks in range(4): k("ds_read_b128 %s, v5 offset:%d" % (vr(YF[1] + 4 * ks, 4), ks * 64))
        Xa, Xb, Xc = 54, 56, 58
        put(0, X0, True)
        cmul(Xa, X0, E1); cmul(Xb, X0, E256)
        put(1, Xa, True); put(8, Xb, True)
        cmul(Xc, Xb, E2)
        for r in range(2, 8):
            cmul(Xa, Xa, E1); put(r, Xa, True)
            if r <= 5:
                put(9 + (r - 2), Xc, True)
                if r < 5: cmul(Xc, Xc, E2)
        def xtile(t):
            for ks in range(4): k("ds_read_b128 %s, v%d offset:%d" % (vr(XFB + 4 * ks, 4), XA[t], ks * 64))
        def xmfma(t):
            for ks in range(4):
                for yt in range(2):
                    k("v_mfma_f32_16x16x32_f16 %s, %s, %s, %s" % (vr(D(t, yt), 4), vr(XFB + 4 * ks, 4), vr(YF[yt] + 4 * ks, 4), vr(D(t, yt), 4)))
        xtile(0)
        for b in range(2):
            cmul(Xb, Xb, E256); put(3 * b, Xb, True)
            cmul(Xc, Xb, E4); put(3 * b + 1, Xc, True)
            cmul(Xa, Xb, E8); put(3 * b + 2, Xa, True)
        k("s_waitcnt lgkmcnt(6)")
        xmfma(0)
        xtile(1)
        for b in range(4):
            cmul(Xb, Xb, E256); put(6 + 2 * b, Xb, True)
            cmul(Xa, Xb, E8); put(7 + 2 * b, Xa, True)
        k("s_waitcnt lgkmcnt(8)")
        xmfma(1)
        for t in (2, 3):
            xtile(t)
            k("s_waitcnt lgkmcnt(0)")
            xmfma(t)
    KL = [x for x in KL if x is not None]
    if "kvalu" in EXP: KL = [x for x in KL if isinstance(x, tuple) or not (x.startswith("ds_") or x.startswith("v_mfma") or x.startswith("s_waitcnt"))]
    if "knods" in EXP: KL = [x for x in KL if isinstance(x, tuple) or not x.startswith("ds_write_addtid")]
    if "knomf" in EXP: KL = [x for x in KL if isinstance(x, tuple) or not x.startswith("v_mfma")]
    if "nokgen" in EXP: KL = []
    SBW = [160, 164, 112]
    NCH = int(os.environ.get("NCH", "12"))
    per = (len(KL) + NCH - 1) // NCH
    pos = [0]
    def emit_k(n):
        end = min(len(KL), pos[0] + n)
        while pos[0] < end:
            x = KL[pos[0]]; pos[0] += 1
            if isinstance(x, tuple): a.wait_vm(x[1])
            else: a(x)
    for st in range(NST):
        a("s_barrier")
        emit_k(per)
        if st == 0: sk_("c0")
    emit_k(len(KL))
    sk_("mfma")
    a("v_and_b32 v16, 31, v1"); a("v_lshlrev_b32 v16, 2, v16")
    a("s_mov_b32 s%d, 0" % sOX)
    a("s_waitcnt vmcnt(0)")
    a.label("K1_POLL")
    a("buffer_load_dword v17, v16, s[%d:%d], 0 offen sc1" % (SX, SX + 3))
    a("s_waitcnt vmcnt(0)")
    a("v_cmp_ne_u32 vcc, 1, v17")
    a("s_add_u32 s%d, s%d, 1" % (sOX, sOX))
    a("s_cmp_eq_u64 vcc, 0")
    a("s_cbranch_scc1 K1_POLLED")
    a("s_sleep 16")
    a("s_cmp_lt_u32 s%d, 0x400000" % sOX)
    a("s_cbranch_scc1 K1_POLL")
    a.label("K1_POLLED")
    a("s_lshl_b32 s%d, s%d, 11" % (sT0, sR)); a("s_lshl_b32 s%d, s%d, 9" % (sT1, sKW)); a("s_add_u32 s%d, s%d, s%d" % (sT0, sT0, sT1))
    a("s_add_u32 s%d, s%d, %d" % (sT0, sT0, WS_RC))
    a("v_lshlrev_b32 v17, 2, v16")
    a("buffer_load_dwordx4 v[160:163], v17, s[%d:%d], s%d offen sc1" % (SWS, SWS + 3, sT0))
    a("s_add_u32 s%d, s%d, %d" % (sT1, sT1, L_STAT))
    a("v_add_u32 v17, s%d, v17" % sT1)
    a("s_lshr_b32 s%d, s%d, 1" % (sT0, sKW)); a("s_mul_i32 s%d, s%d, 7168" % (sT0, sT0))
    a("s_lshl_b32 s%d, s%d, 9" % (sT1, sF)); a("s_add_u32 s%d, s%d, s%d" % (sT0, sT0, sT1))
    a("s_lshl_b32 s%d, s%d, 8" % (sT1, sHF)); a("s_add_u32 s%d, s%d, s%d" % (sT0, sT0, sT1))
    a("s_add_u32 s%d, s%d, %d" % (sT0, sT0, WS_CS))
    a("v_lshlrev_b32 v16, 2, v1")
    a("buffer_load_dword v164, v16, s[%d:%d], s%d offen sc1" % (SWS, SWS + 3, sT0))
    a("s_lshl_b32 s%d, s%d, 8" % (sT1, sKW)); a("s_add_u32 s%d, s%d, %d" % (sT1, sT1, L_CS))
    a("v_add_u32 v16, s%d, v16" % sT1)
    a("v_lshl_add_u32 v18, v1, 4, s%d" % sT2)
    a("s_xor_b32 s%d, s%d, 1" % (sT0, sKW))
    a("s_lshl_b32 s%d, s%d, 12" % (sT0, sT0))
    a("s_add_u32 s%d, s%d, %d" % (sT0, sT0, L_XCH))
    a("v_lshl_add_u32 v19, v1, 4, s%d" % sT0)
    a("s_cmp_lg_u32 s%d, 0" % sHF)
    a("s_cbranch_scc1 K1_X1")
    a.begin_opt()
    for i in range(4): a("ds_write_b128 v18, %s offset:%d" % (vr(144 + 4 * i, 4), i * 1024))
    a("s_branch K1_X2")
    a.end_opt()
    a.label("K1_X1")
    a.begin_opt()
    for i in range(4): a("ds_write_b128 v18, %s offset:%d" % (vr(128 + 4 * i, 4), i * 1024))
    for i in range(16): a("v_mov_b32 v%d, v%d" % (128 + i, 144 + i))
    a.end_opt()
    a.label("K1_X2")
    a("s_waitcnt lgkmcnt(0)")
    a("s_barrier")
    a("s_waitcnt vmcnt(0)")
    a("ds_write_b128 v17, v[160:163]")
    a("ds_write_b32 v16, v164")
    a("s_waitcnt lgkmcnt(0)")
    sk_("b13")
    a("s_barrier")
    a("s_and_b32 s%d, s%d, 2" % (sT0, sKW))
    a("s_lshl_b32 s%d, s%d, 2" % (sT0, sT0))
    a("s_add_u32 s%d, s%d, %d" % (sT0, sT0, L_KEXP))
    a("v_mov_b32 v10, s%d" % sT0)
    a("ds_read_b64 v[10:11], v10")
    for i in range(4): a("ds_read_b128 %s, v19 offset:%d" % (vr(144 + 4 * i, 4), i * 1024))
    a("s_waitcnt lgkmcnt(4)")
    a("v_max_u32 v18, v10, v11")
    a("v_add_u32 v19, v10, v11"); a("v_subrev_u32 v19, s%d, v19" % sINV)
    def fac(dst, esrc):
        a("v_sub_u32 v%d, %s, v18" % (dst, esrc))
        a("v_add_u32 v%d, 127, v%d" % (dst, dst))
        a("v_max_i32 v%d, 0, v%d" % (dst, dst))
        a("v_lshlrev_b32 v%d, 23, v%d" % (dst, dst))
    fac(20, "s%d" % sINV); fac(22, "v19")
    a("v_lshlrev_b32 v24, 23, v18")
    a("s_waitcnt lgkmcnt(0)")
    for i in range(0, 16, 2):
        a("v_pk_mul_f32 %s, %s, v[20:21] op_sel_hi:[1,0]" % (vr(128 + i, 2), vr(128 + i, 2)))
        a("v_pk_fma_f32 %s, %s, v[22:23], %s op_sel_hi:[1,0,1]" % (vr(128 + i, 2), vr(144 + i, 2), vr(128 + i, 2)))
    a("v_and_b32 v10, v6, v7"); a("v_and_b32 v10, s%d, v10" % sHF)
    a("v_cmp_ne_u32 vcc, 0, v10")
    for i in range(4): a("v_cndmask_b32 v%d, v%d, v%d, vcc" % (128 + 4 * i, 128 + 4 * i, 129 + 4 * i))
    a("v_lshrrev_b32 v10, 1, v6"); a("v_lshlrev_b32 v10, 9, v10")
    a("v_lshl_add_u32 v10, v7, 4, v10")
    a("v_and_b32 v11, 1, v6"); a("v_lshl_add_u32 v10, v11, 3, v10")
    a("s_mul_i32 s%d, s%d, %d" % (sT0, sCH, KSTRIDE))
    a("s_add_u32 s%d, s%d, %d" % (sT0, sT0, WS_KREV + 4088 - 1024 - 256))
    a("s_lshl_b32 s%d, s%d, 11" % (sT1, sHF))
    a("s_sub_u32 s%d, s%d, s%d" % (sT0, sT0, sT1))
    a("v_sub_u32 v10, s%d, v10" % sT0)
    for tl in range(2):
        for yt in range(2):
            b = 128 + 8 * tl + 4 * yt
            a("v_cvt_pk_f16_f32 v%d, v%d, v%d" % (64 + 4 * tl + 2 * yt, b + 3, b + 2))
            a("v_cvt_pk_f16_f32 v%d, v%d, v%d" % (65 + 4 * tl + 2 * yt, b + 1, b))
            a("buffer_store_dwordx2 %s, v10, s[%d:%d], 0 offen offset:%d" % (vr(64 + 4 * tl + 2 * yt, 2), SWS, SWS + 3, (1 - tl) * 1024 + (1 - yt) * 256))
    a("s_cmp_lg_u32 s%d, 0" % sHF)
    a("s_cbranch_scc1 K1_KDONE")
    a("v_mov_b32 v16, 0"); a("v_mov_b32 v17, 0"); a("v_mov_b32 v18, 0"); a("v_mov_b32 v19, 0")
    a("s_mul_i32 s%d, s%d, %d" % (sT0, sCH, KSTRIDE))
    a("s_add_u32 s%d, s%d, %d" % (sT0, sT0, WS_KREV + 4096))
    a("v_lshl_add_u32 v6, v1, 4, s%d" % sT0)
    a("s_lshl_b32 s%d, s%d, 2" % (sT1, sCH))
    a("s_add_u32 s%d, s%d, %d" % (sT1, sT1, WS_KSC))
    a("v_mov_b32 v7, s%d" % sT1)
    a("s_mov_b64 exec, 0xf")
    a("buffer_store_dwordx4 v[16:19], v6, s[%d:%d], 0 offen" % (SWS, SWS + 3))
    a("s_mov_b64 exec, 1")
    a("buffer_store_dword v24, v7, s[%d:%d], 0 offen" % (SWS, SWS + 3))
    a("s_mov_b64 exec, -1")
    a.label("K1_KDONE")
    sk_("end")
    sk_.store(1 << 19, sKW, SWS, 100)
    a("s_endpgm")
    a.label("K1_PROD")
    a.vmq = []
    XT_S = 912
    L_PC = 64 * XT_S
    a("s_waitcnt lgkmcnt(0)")
    srd(a, SX, 16, 2048 * 896)
    srd(a, SWS, 14, WS_SIZE)
    srd(a, SWU, 12, 256)
    a("s_mov_b32 s%d, 0x3f803f80" % sONES)
    a("v_lshrrev_b32 v2, 3, v1")
    a("v_and_b32 v3, 7, v1")
    a("s_cmp_ge_u32 s%d, 8" % sWV)
    a("s_cbranch_scc1 K1_PCS")
    a("s_lshl_b32 s%d, s%d, 3" % (sT0, sWV))
    a("v_add_u32 v4, s%d, v2" % sT0)
    a("s_lshl_b32 s%d, s2, 6" % sT1)
    a("v_add_u32 v5, s%d, v4" % sT1)
    a("v_mul_u32_u24 v6, 896, v5")
    a("v_lshl_add_u32 v6, v3, 4, v6")
    for i in range(7):
        a.vm("buffer_load_dwordx4 %s, v6, s[%d:%d], 0 offen offset:%d" % (vr(32 + 4 * i, 4), SX, SX + 3, i * 128), "x%d" % i)
    a("v_mov_b32 v10, 0"); a("v_mov_b32 v11, 0")
    a("v_mul_u32_u24 v7, %d, v4" % XT_S)
    a("v_lshl_add_u32 v7, v3, 4, v7")
    a("v_lshlrev_b32 v8, 4, v5")
    for i in range(7):
        a.wait_vm("x%d" % i)
        for r in range(4):
            a("v_dot2_f32_bf16 v10, v%d, s%d, v10" % (32 + 4 * i + r, sONES))
            a("v_dot2_f32_bf16 v11, v%d, v%d, v11" % (32 + 4 * i + r, 32 + 4 * i + r))
    for mod in ("quad_perm:[1,0,3,2]", "quad_perm:[2,3,0,1]", "row_half_mirror"):
        for r in (10, 11):
            a("v_add_f32_dpp v%d, v%d, v%d %s row_mask:0xf bank_mask:0xf" % (r, r, r, mod))
    c = math.sqrt(2 / math.pi); k1 = -2 * c * LOG2E; k2 = k1 * 0.044715
    a("v_mul_f32 v10, %s, v10" % fbits(1.0 / 448))
    a("v_mul_f32 v11, %s, v11" % fbits(1.0 / 448))
    a("v_fma_f32 v11, -v10, v10, v11")
    a("v_max_f32 v11, 0, v11")
    a("v_cvt_pk_bf16_f32 v10, v10, v11")
    a("v_lshlrev_b32 v12, 16, v10")
    a("v_and_b32 v11, 0xffff0000, v10")
    a("v_add_f32 v11, %s, v11" % fbits(1e-5))
    a("v_cvt_pk_bf16_f32 v11, v11, v11")
    a("v_lshlrev_b32 v11, 16, v11")
    a("v_sqrt_f32 v11, v11")
    a("v_cvt_pk_bf16_f32 v11, v11, v11")
    a("v_lshlrev_b32 v11, 16, v11")
    a("v_rcp_f32 v14, v11")
    a("v_sub_f32 v16, 0, v12")
    a("v_mul_f32 v19, v11, v11")
    a("v_mul_f32 v17, %s, v14" % fbits(k1))
    a("v_mul_f32 v10, v14, v14"); a("v_mul_f32 v10, v10, v14")
    a("v_mul_f32 v18, %s, v10" % fbits(k2))
    a("s_mov_b32 s%d, %d" % (sT0, WS_RC))
    a("s_mov_b32 exec_lo, 0x01010101"); a("s_mov_b32 exec_hi, 0x01010101")
    a("buffer_store_dwordx4 v[16:19], v8, s[%d:%d], s%d offen sc1" % (SWS, SWS + 3, sT0))
    a("s_mov_b64 exec, -1")
    for i in range(7):
        for r in range(4):
            w = 32 + 4 * i + r
            a("v_lshlrev_b32 v20, 16, v%d" % w); a("v_and_b32 v21, 0xffff0000, v%d" % w)
            a("v_pk_add_f32 v[20:21], v[20:21], v[16:17] op_sel_hi:[1,0]")
            a("v_cvt_pk_bf16_f32 v20, v20, v21")
            a("v_and_b32 v21, 0xffff0000, v20"); a("v_lshlrev_b32 v20, 16, v20")
            a("v_pk_mul_f32 v[20:21], v[20:21], v[14:15] op_sel_hi:[1,0]")
            a("v_cvt_pk_bf16_f32 v20, v20, v21")
            a("v_and_b32 v21, 0xffff0000, v20"); a("v_lshlrev_b32 v20, 16, v20")
            a("v_cvt_pk_f16_f32 v%d, v20, v21" % w)
        a("ds_write_b128 v7, %s offset:%d" % (vr(32 + 4 * i, 4), i * 128))
    a("s_branch K1_PJ")
    a.label("K1_PCS")
    a.vmq = []
    a("s_sub_u32 s%d, s%d, 8" % (sT3, sWV))
    a("s_lshr_b32 s%d, s%d, 1" % (sT0, sT3))
    a("s_cmp_eq_u32 s%d, 0" % sT0)
    a("s_cselect_b32 s%d, s32, s34" % SWG)
    a("s_cselect_b32 s%d, s33, s35" % (SWG + 1))
    a("s_and_b32 s%d, s%d, 0xffff" % (SWG + 1, SWG + 1))
    a("s_mov_b32 s%d, 0x%x" % (SWG + 2, 448 * 3584))
    a("s_mov_b32 s%d, 0x00020000" % (SWG + 3))
    a("s_and_b32 s%d, s%d, 1" % (sT1, sT3))
    a("s_mul_i32 s%d, s%d, %d" % (sT1, sT1, 224 * 3584))
    a("s_mul_i32 s%d, s2, 112" % sT2)
    a("s_add_u32 s%d, s%d, s%d" % (sT1, sT1, sT2))
    a("s_movk_i32 s%d, 3584" % sT2)
    a("v_mul_lo_u32 v6, v2, s%d" % sT2)
    a("v_min_u32 v4, 6, v3")
    a("v_lshl_add_u32 v6, v4, 4, v6")
    a("v_add_u32 v6, s%d, v6" % sT1)
    for i in range(28):
        a("s_mov_b32 s%d, %d" % (sOW, i * 8 * 3584))
        a.vm("buffer_load_dwordx4 %s, v6, s[%d:%d], s%d offen" % (vr(32 + 4 * i, 4), SWG, SWG + 3, sOW), "w%d" % i)
    for r in range(8, 16): a("v_mov_b32 v%d, 0" % r)
    for i in range(28):
        a.wait_vm("w%d" % i)
        for r in range(4):
            w = 32 + 4 * i + r
            a("v_lshlrev_b32 v20, 16, v%d" % w); a("v_and_b32 v21, 0xffff0000, v%d" % w)
            a("v_pk_add_f32 %s, %s, v[20:21]" % (vr(8 + 2 * r, 2), vr(8 + 2 * r, 2)))
    a("s_lshl_b32 s%d, s%d, 11" % (sT0, sT3))
    a("s_add_u32 s%d, s%d, %d" % (sT0, sT0, L_PC))
    a("v_lshl_add_u32 v7, v1, 5, s%d" % sT0)
    a("ds_write_b128 v7, v[8:11]"); a("ds_write_b128 v7, v[12:15] offset:16")
    a.label("K1_PJ")
    a("s_waitcnt lgkmcnt(0)")
    a("s_barrier")
    sp_("pbar")
    a("v_lshrrev_b32 v4, 4, v1"); a("v_and_b32 v5, 15, v1")
    a("v_lshrrev_b32 v6, 2, v5"); a("v_lshl_add_u32 v6, v4, 3, v6")
    a("v_mul_u32_u24 v6, %d, v6" % XT_S)
    a("v_and_b32 v7, 3, v5"); a("v_lshl_add_u32 v6, v7, 3, v6")
    a("v_lshlrev_b32 v7, 12, v5"); a("v_lshl_add_u32 v7, v4, 4, v7")
    a("s_lshl_b32 s%d, s2, 7" % sT2); a("s_add_u32 s%d, s%d, %d" % (sT2, sT2, WS_XNT))
    for i in range(5):
        a("s_add_u32 s%d, s%d, %d" % (sT0, sWV, 12 * i))
        if i == 4:
            a("s_cmp_ge_u32 s%d, 56" % sT0); a("s_cbranch_scc1 K1_PT")
        a("s_lshr_b32 s%d, s%d, 1" % (sT1, sT0)); a("s_and_b32 s%d, s%d, 1" % (sT0, sT0))
        a("s_mul_i32 s%d, s%d, %d" % (sOX, sT0, 32 * XT_S)); a("s_lshl_b32 s%d, s%d, 5" % (sOW, sT1)); a("s_add_u32 s%d, s%d, s%d" % (sOX, sOX, sOW))
        a("v_add_u32 v8, s%d, v6" % sOX)
        a("ds_read_b64_tr_b16 %s, v8" % vr(32 + 4 * i, 2))
        a("ds_read_b64_tr_b16 %s, v8 offset:%d" % (vr(34 + 4 * i, 2), 4 * XT_S))
        a("s_lshl_b32 s%d, s%d, 16" % (sT1, sT1)); a("s_lshl_b32 s%d, s%d, 6" % (sT0, sT0))
        a("s_add_u32 s%d, s%d, s%d" % (sT1, sT1, sT0)); a("s_add_u32 s%d, s%d, s%d" % (sT1, sT1, sT2))
        a("s_waitcnt lgkmcnt(0)")
        a("buffer_store_dwordx4 %s, v7, s[%d:%d], s%d offen" % (vr(32 + 4 * i, 4), SWS, SWS + 3, sT1))
    a.label("K1_PT")
    a("s_sub_u32 s%d, s%d, 8" % (sT3, sWV))
    a("s_cmp_ge_u32 s%d, 2" % sT3)
    a("s_cbranch_scc1 K1_PF")
    a.begin_opt()
    a("s_lshl_b32 s%d, s%d, 12" % (sT0, sT3)); a("s_add_u32 s%d, s%d, %d" % (sT0, sT0, L_PC))
    a("v_lshl_add_u32 v8, v1, 2, s%d" % sT0)
    for i in range(16): a("ds_read_b32 v%d, v8 offset:%d" % (64 + i, i * 256))
    a("s_waitcnt lgkmcnt(0)")
    for stp in (8, 4, 2, 1):
        for i in range(stp): a("v_add_f32 v%d, v%d, v%d" % (64 + i, 64 + i, 64 + i + stp))
    a("s_mul_i32 s%d, s%d, 7168" % (sT0, sT3)); a("s_mul_i32 s%d, s2, 224" % sT1); a("s_add_u32 s%d, s%d, s%d" % (sT0, sT0, sT1))
    a("s_add_u32 s%d, s%d, %d" % (sT0, sT0, WS_CS))
    a("v_lshlrev_b32 v8, 2, v1")
    a("s_mov_b32 exec_hi, 0x00ffffff")
    a("buffer_store_dword v64, v8, s[%d:%d], s%d offen sc1" % (SWS, SWS + 3, sT0))
    a("s_mov_b64 exec, -1")
    a.end_opt()
    a.label("K1_PF")
    a("s_waitcnt vmcnt(0)")
    a("s_barrier")
    a("s_cmp_lg_u32 s%d, 0" % sWV)
    a("s_cbranch_scc1 K1_END")
    a("s_lshl_b32 s%d, s2, 2" % sT0)
    a("v_mov_b32 v8, s%d" % sT0); a("v_mov_b32 v9, 1")
    a("s_mov_b64 exec, 1")
    a("buffer_store_dword v9, v8, s[%d:%d], 0 offen sc1" % (SWU, SWU + 3))
    a("s_mov_b64 exec, -1")
    sp_("end")
    sp_.store(3 << 18, sWV, SWS, 100)
    a.label("K1_END")
    a("s_endpgm")
    print("K1 kgen instrs:", len(KL))
    if STAMP: print("K1 stamps", st_.names, "kgen", sk_.names)
    return a.finalize(), 168, LDS, 768
```

```python
import math, struct, os
from asmlib import Asm
from gen1 import WS_ST, WS_XT, WS_FLAG
from gen import Stamps, STAMP, fbits, srd, vr, WS_H, WS_XNT, WS_KREV, WS_KSC, WS_YAT, WS_SIZE, KSTRIDE
EXP = os.environ.get('EXP', '')

def gen_k2():
    a = Asm()
    st_ = Stamps(a); s2_ = Stamps(a)
    RING = 20480; NW = 5; PD = 4; NST = 14
    L_YA = 4 * RING
    L_CV = L_YA + 8192
    CPS = 4160; O_U = 4 * CPS; O_XCH = O_U + 4608; CV_CH = O_XCH + 8192
    L_FLAG = L_CV + 2 * CV_CH
    LDS = L_FLAG + 64
    SX, SWD, SOUT, SWS = 40, 44, 48, 52
    sWV, sRT, sCT = 60, 61, 62
    sT0, sT1, sT2, sT3 = 64, 65, 66, 67
    sHO = 68
    sOW = 72; sKQB = 73; sCH = 74; sRH = 75; sCVB = 76; sCNT = 77; sCW = 78

    a("s_cmp_ge_u32 s2, 224")
    a("s_cbranch_scc1 K2_END")
    st_("start"); s2_.n = st_.n; s2_.names = list(st_.names)
    a("s_load_dwordx2 s[16:17], s[0:1], 0")
    a("s_load_dwordx2 s[18:19], s[0:1], 64")
    a("s_load_dwordx8 s[20:27], s[0:1], 96")
    a("v_lshrrev_b32 v1, 6, v0")
    a("v_readfirstlane_b32 s%d, v1" % sWV)
    a("v_and_b32 v1, 63, v0")
    a("s_and_b32 s%d, s2, 7" % sT0)
    a("s_lshr_b32 s%d, s2, 3" % sT1)
    a("s_lshl_b32 s%d, s%d, 2" % (sT2, sT0))
    a("s_and_b32 s%d, s%d, 3" % (sT3, sT1))
    a("s_add_u32 s%d, s%d, s%d" % (sRT, sT2, sT3))
    a("s_lshr_b32 s%d, s%d, 2" % (sCT, sT1))
    a("v_and_b32 v2, 15, v1")
    a("v_lshrrev_b32 v3, 4, v1")
    a("s_cmp_ge_u32 s%d, 4" % sWV)
    a("s_cbranch_scc1 K2_CONV")

    a("s_mul_i32 s%d, s%d, %d" % (sKQB, sWV, RING))
    a("s_mul_i32 s%d, s%d, 56" % (sT0, sRT))
    a("s_mul_i32 s%d, s%d, 14" % (sT1, sWV))
    a("s_add_u32 s%d, s%d, s%d" % (sT0, sT0, sT1))
    a("s_lshl_b32 s%d, s%d, 12" % (sT0, sT0))
    a("v_lshl_add_u32 v4, v1, 4, s%d" % sT0)
    a("v_lshrrev_b32 v5, 3, v1")
    a("s_mul_i32 s%d, s%d, 448" % (sT0, sWV))
    a("v_add_u32 v5, s%d, v5" % sT0)
    a("v_mul_u32_u24 v5, 896, v5")
    a("s_lshl_b32 s%d, s%d, 7" % (sT0, sCT))
    a("v_add_u32 v5, s%d, v5" % sT0)
    a("v_and_b32 v6, 1, v1")
    a("v_lshl_add_u32 v5, v6, 4, v5")
    a("v_bfe_u32 v6, v1, 1, 2")
    a("v_bfe_u32 v7, v1, 4, 1")
    a("v_xor_b32 v6, v6, v7")
    a("v_xor_b32 v7, 2, v6")
    a("v_lshl_add_u32 v6, v6, 5, v5")
    a("v_lshl_add_u32 v7, v7, 5, v5")
    a("s_waitcnt lgkmcnt(0)")
    srd(a, SX, 16, 2048 * 896)
    srd(a, SWD, 20, 1792 * 896)
    srd(a, SOUT, 22, 2048 * 896)
    srd(a, SWS, 26, WS_SIZE)
    HR = [96 + 16 * i for i in range(NW)]
    WF = [176, 192]
    ACC = lambda ct, tt: 32 + 16 * ct + 4 * tt
    def loads(st):
        slot = st % NW
        a("s_mov_b32 s%d, %d" % (sHO, WS_H + st * 4096))
        for tt in range(4):
            a.vm("buffer_load_dwordx4 %s, v4, s[%d:%d], s%d offen offset:%d" % (vr(HR[slot] + 4 * tt, 4), SWS, SWS + 3, sHO, tt * 1024), ("st", st))
        for q in range(4):
            a("s_mov_b32 s%d, %d" % (sOW, (st * 32 + 8 * q) * 896))
            a("s_add_u32 m0, s%d, %d" % (sKQB, slot * 4096 + q * 1024))
            a.vm("buffer_load_dwordx4 v%d, s[%d:%d], s%d offen lds" % (6 + (q & 1), SWD, SWD + 3, sOW), ("st", st))
    loads(0)
    a("s_barrier")
    for st in range(1, PD): loads(st)
    a("v_lshrrev_b32 v8, 2, v2")
    a("v_lshl_add_u32 v8, v3, 3, v8")
    a("v_lshlrev_b32 v8, 7, v8")
    a("v_and_b32 v9, 3, v2")
    a("v_lshl_add_u32 v8, v9, 3, v8")
    a("s_lshl_b32 s%d, s%d, 5" % (sT0, sWV))
    a("s_add_u32 s%d, s%d, %d" % (sT0, sT0, L_YA))
    a("v_add_u32 v19, s%d, v8" % sT0)
    a("v_add_u32 v8, s%d, v8" % sKQB)
    a("v_bfe_u32 v9, v2, 3, 1")
    a("v_and_b32 v10, 1, v3")
    a("v_lshl_add_u32 v9, v10, 1, v9")
    TRB = [12, 13, 14, 15]
    for ct in range(4):
        a("v_xor_b32 v10, %d, v9" % ct)
        a("v_lshl_add_u32 v%d, v10, 5, v8" % TRB[ct])
    for r in range(32, 96): a("v_mov_b32 v%d, 0" % r)
    a("s_lshl_b32 s%d, s%d, 6" % (sT0, sRT))
    a("s_lshl_b32 s%d, s%d, 4" % (sT1, sWV))
    a("s_add_u32 s%d, s%d, s%d" % (sT0, sT0, sT1))
    a("v_add_u32 v16, s%d, v2" % sT0)
    a("v_mul_u32_u24 v16, 896, v16")
    a("v_lshl_add_u32 v16, v3, 4, v16")
    a("s_lshl_b32 s%d, s%d, 7" % (sT0, sCT))
    a("v_add_u32 v16, s%d, v16" % sT0)
    a("v_mul_u32_u24 v11, 272, v2")
    a("v_lshl_add_u32 v11, v3, 4, v11")
    a("v_add_u32 v11, s%d, v11" % sKQB)
    a("v_add_u32 v17, s%d, v2" % sT1)
    a("v_mul_u32_u24 v17, 272, v17")
    a("v_lshl_add_u32 v17, v3, 5, v17")
    a("v_add_u32 v18, %d, v17" % (2 * RING))
    def trreads(st):
        slot = st % NW
        for ct in range(4):
            for hf in range(2):
                a("ds_read_b64_tr_b16 %s, v%d offset:%d" % (vr(WF[st & 1] + 4 * ct + 2 * hf, 2), TRB[ct], slot * 4096 + hf * 512))
    st_("bar1")
    a.wait_vm(("st", 0))
    st_("st0")
    trreads(0)
    for st in range(NST):
        if st + PD < NST: loads(st + PD)
        if st + 1 < NST:
            a.wait_vm(("st", st + 1))
            trreads(st + 1)
            a("s_waitcnt lgkmcnt(8)")
        else:
            a("s_waitcnt lgkmcnt(0)")
        for ct in range(4):
            for tt in range(4):
                a("v_mfma_f32_16x16x32_bf16 %s, %s, %s, %s" % (vr(ACC(ct, tt), 4), vr(WF[st & 1] + 4 * ct, 4), vr(HR[st % NW] + 4 * tt, 4), vr(ACC(ct, tt), 4)))
        if st == NST - PD:
            a.vm("buffer_load_dwordx4 v[20:23], v16, s[%d:%d], 0 offen" % (SX, SX + 3), "x")
            a.vm("buffer_load_dwordx4 v[24:27], v16, s[%d:%d], 0 offen offset:64" % (SX, SX + 3), "x")
        if st == int(os.environ.get("TRIG", "9")):
            a("v_mov_b32 v28, %d" % (L_FLAG + 32)); a("v_mov_b32 v29, 1")
            a("ds_write_b32 v28, v29")
            a("s_waitcnt lgkmcnt(0)") if False else None
        if st in (4, 9, 13): st_("st%de" % st)
    for ct in range(4):
        for tt in range(4):
            a("ds_write_b128 v11, %s offset:%d" % (vr(ACC(ct, tt), 4), tt * 16 * 272 + ct * 64))
    a("s_waitcnt lgkmcnt(0)")
    a("s_barrier")
    st_("bar2")
    for hc in range(2):
        for p in range(4):
            for hb in range(2):
                a("ds_read_b128 %s, v%d offset:%d" % (vr(32 + 32 * hc + 8 * p + 4 * hb, 4), 17 + (p >> 1), (p & 1) * RING + hc * 128 + hb * 16))
        for hf in range(2):
            a("ds_read_b64_tr_b16 %s, v19 offset:%d" % (vr(104 + 4 * hc + 2 * hf, 2), hc * 4096 + hf * 512))
    a.wait_vm("x")
    for hc in range(2):
        b = 32 + 32 * hc
        a("s_waitcnt lgkmcnt(%d)" % (10 - 10 * hc))
        for e in range(0, 8, 2):
            a("v_pk_add_f32 %s, %s, %s" % (vr(b + e, 2), vr(b + e, 2), vr(b + 8 + e, 2)))
            a("v_pk_add_f32 %s, %s, %s" % (vr(b + 16 + e, 2), vr(b + 16 + e, 2), vr(b + 24 + e, 2)))
            a("v_pk_add_f32 %s, %s, %s" % (vr(b + e, 2), vr(b + e, 2), vr(b + 16 + e, 2)))
        for w in range(4):
            xw = 20 + 4 * hc + w; yw = 104 + 4 * hc + w
            a("v_cvt_pk_bf16_f32 v96, v%d, v%d" % (b + 2 * w, b + 2 * w + 1))
            a("v_lshlrev_b32 v98, 16, v%d" % xw); a("v_and_b32 v99, 0xffff0000, v%d" % xw)
            a("v_lshlrev_b32 v100, 16, v%d" % yw); a("v_and_b32 v101, 0xffff0000, v%d" % yw)
            a("v_pk_add_f32 v[98:99], v[98:99], v[100:101]")
            a("v_cvt_pk_bf16_f32 v98, v98, v99")
            a("v_and_b32 v99, 0xffff0000, v98"); a("v_lshlrev_b32 v98, 16, v98")
            a("v_and_b32 v97, 0xffff0000, v96"); a("v_lshlrev_b32 v96, 16, v96")
            a("v_pk_add_f32 v[98:99], v[98:99], v[96:97]")
            a("v_cvt_pk_bf16_f32 v%d, v98, v99" % (112 + 4 * hc + w))
        a("buffer_store_dwordx4 %s, v16, s[%d:%d], 0 offen offset:%d" % (vr(112 + 4 * hc, 4), SOUT, SOUT + 3, hc * 64))
    st_("end")
    st_.store(1 << 20, sWV, SWS, 200)
    a("s_endpgm")

    a.label("K2_CONV")
    a.vmq = []
    a("s_setprio %d" % int(os.environ.get("CPRIO", "3")))
    a("s_sub_u32 s%d, s%d, 4" % (sCW, sWV))
    a("s_and_b32 s%d, s%d, 1" % (sRH, sCW))
    a("s_lshr_b32 s%d, s%d, 1" % (sT0, sCW))
    a("s_lshl_b32 s%d, s2, 1" % sCH)
    a("s_add_u32 s%d, s%d, s%d" % (sCH, sCH, sT0))
    a("s_mul_i32 s%d, s%d, %d" % (sCVB, sT0, CV_CH))
    a("s_add_u32 s%d, s%d, %d" % (sCVB, sCVB, L_CV))
    a("s_mul_i32 s%d, s%d, %d" % (sT1, sCH, KSTRIDE))
    a("s_add_u32 s%d, s%d, %d" % (sT1, sT1, WS_KREV))
    a("s_lshl_b32 s%d, s%d, 11" % (sT2, sRH))
    a("s_add_u32 s%d, s%d, s%d" % (sT1, sT1, sT2))
    a("v_lshlrev_b32 v4, 4, v1")
    a("v_lshlrev_b32 v10, 6, v1")
    a("s_waitcnt lgkmcnt(0)")
    srd(a, SWS, 26, WS_SIZE)
    for it in range(2):
        b = 32 + 16 * it
        a.vm("buffer_load_dwordx4 %s, v4, s[%d:%d], s%d offen offset:%d" % (vr(b, 4), SWS, SWS + 3, sT1, it * 1024), "k%d" % it)
        a.vm("buffer_load_dwordx4 %s, v4, s[%d:%d], s%d offen offset:%d" % (vr(b + 4, 4), SWS, SWS + 3, sT1, it * 1024 + 4), "k%d" % it)
        a.vm("buffer_load_dword v%d, v4, s[%d:%d], s%d offen offset:%d" % (b + 8, SWS, SWS + 3, sT1, it * 1024 + 20), "k%d" % it)
    a("s_lshl_b32 s%d, s%d, 12" % (sT1, sCH))
    a("s_add_u32 s%d, s%d, %d" % (sT1, sT1, WS_XNT))
    a("s_add_u32 s%d, s%d, s%d" % (sT1, sT1, sT2))
    a("s_add_u32 s%d, s%d, s%d" % (sT3, sCVB, sT2))
    a("s_add_u32 m0, s%d, %d" % (sT3, O_U + 480))
    a.vm("buffer_load_dwordx4 v4, s[%d:%d], s%d offen lds" % (SWS, SWS + 3, sT1), "u")
    a.vm("buffer_load_dwordx4 v4, s[%d:%d], s%d offen offset:1024 lds" % (SWS, SWS + 3, sT1), "u")
    a("s_lshl_b32 s%d, s%d, 1" % (sT1, sCH))
    a("v_mov_b32 v5, s%d" % sT1)
    a.vm("global_load_ushort v8, v5, s[18:19]", "sc")
    a("s_lshl_b32 s%d, s%d, 2" % (sT1, sCH))
    a("s_add_u32 s%d, s%d, %d" % (sT1, sT1, WS_KSC))
    a("v_mov_b32 v5, s%d" % sT1)
    a.vm("buffer_load_dword v9, v5, s[%d:%d], 0 offen" % (SWS, SWS + 3), "sc")
    a("v_mov_b32 v5, %d" % L_FLAG)
    a("v_mov_b32 v12, 0"); a("v_mov_b32 v13, 0"); a("v_mov_b32 v14, 0"); a("v_mov_b32 v15, 0")
    a("v_lshl_add_u32 v5, v2, 2, v5")
    a("ds_write_b32 v5, v12")
    a("s_waitcnt lgkmcnt(0)")
    a("s_barrier")
    a("v_add_u32 v5, %d, v4" % O_U)
    a("v_bfe_u32 v6, v1, 1, 2")
    a("v_mul_u32_u24 v6, %d, v6" % CPS)
    a("v_and_b32 v7, 1, v1")
    a("v_lshl_add_u32 v6, v7, 4, v6")
    a("v_add_u32 v6, 4096, v6")
    a("v_cmp_gt_u32 vcc, 32, v1")
    a("v_cndmask_b32 v5, v6, v5, vcc")
    a("v_add_u32 v5, s%d, v5" % sCVB)
    a("s_cmp_lg_u32 s%d, 0" % sRH)
    a("s_cbranch_scc1 K2_NOZ")
    a.begin_opt()
    a("s_mov_b32 exec_lo, 0x3fffffff"); a("s_mov_b32 exec_hi, 0xff")
    a("ds_write_b128 v5, v[12:15]")
    a("s_mov_b64 exec, -1")
    a.end_opt()
    a.label("K2_NOZ")
    a("v_sub_u32 v5, 3, v2"); a("v_and_b32 v5, 3, v5")
    a("v_mul_u32_u24 v6, %d, v5" % CPS)
    a("v_add_u32 v7, v2, v5")
    a("v_sub_u32 v7, %d, v7" % (2031 - 16 * 126))
    a("v_lshl_add_u32 v7, v3, 3, v7")
    a("v_lshl_add_u32 v6, v7, 1, v6")
    a("s_lshl_b32 s%d, s%d, 8" % (sT0, sRH))
    a("s_sub_u32 s%d, s%d, s%d" % (sT1, sCVB, sT0))
    a("v_add_u32 v6, s%d, v6" % sT1)
    a("v_lshlrev_b32 v7, 5, v2")
    a("v_lshl_add_u32 v7, v3, 4, v7")
    a("v_add_u32 v7, %d, v7" % O_U)
    a("v_add_u32 v7, s%d, v7" % sT1)
    a("s_add_u32 s%d, s%d, s%d" % (sT3, sCVB, sT2))
    a("v_add_u32 v5, s%d, v4" % sT3)
    for it in range(2):
        b = 32 + 16 * it
        a.wait_vm("k%d" % it)
        d = [b, b + 1, b + 2, b + 3, b + 7, b + 8]
        c1, c3 = 64 + 8 * it, 68 + 8 * it
        for i in range(4):
            a("v_alignbit_b32 v%d, v%d, v%d, 16" % (c1 + i, d[i + 1], d[i]))
            a("v_alignbit_b32 v%d, v%d, v%d, 16" % (c3 + i, d[i + 2], d[i + 1]))
        a("ds_write_b128 v5, %s offset:%d" % (vr(b, 4), it * 1024))
        a("ds_write_b128 v5, %s offset:%d" % (vr(c1, 4), CPS + it * 1024))
        a("ds_write_b128 v5, %s offset:%d" % (vr(b + 4, 4), 2 * CPS + it * 1024))
        a("ds_write_b128 v5, %s offset:%d" % (vr(c3, 4), 3 * CPS + it * 1024))
    CA = 16
    GS = [64, 128]; FS = [96, 160]
    a.wait_vm("u")
    a("s_lshl_b32 s%d, s%d, 2" % (sT0, sWV))
    a("s_add_u32 s%d, s%d, %d" % (sT0, sT0, L_FLAG))
    a("v_mov_b32 v10, s%d" % sT0)
    a("v_mov_b32 v11, %d" % (L_FLAG + 16))
    a("v_mov_b32 v12, 1")
    a("s_waitcnt lgkmcnt(0)")
    a("ds_write_b32 v10, v12")
    s2_("built")
    for r in range(CA, CA + 32): a("v_mov_b32 v%d, 0" % r)
    a("s_mov_b32 s%d, 0" % sCNT)
    a.label("K2_BP")
    a("ds_read_b128 v[12:15], v11")
    a("s_waitcnt lgkmcnt(0)")
    a("v_and_b32 v12, v12, v13"); a("v_and_b32 v14, v14, v15"); a("v_and_b32 v12, v12, v14")
    a("v_readfirstlane_b32 s%d, v12" % sT1)
    a("s_add_u32 s%d, s%d, 1" % (sCNT, sCNT))
    a("s_cmp_lg_u32 s%d, 0" % sT1)
    a("s_cbranch_scc1 K2_BD")
    a("s_cmp_lt_u32 s%d, 0x1000000" % sCNT)
    a("s_cbranch_scc1 K2_BP")
    a.label("K2_BD")
    s2_("bar1")
    def fr(ri):
        s = ri & 1
        for q in range(8):
            o = 32 * (126 - 16 * q - 2 * ri)
            a("ds_read_b64 %s, v6 offset:%d" % (vr(GS[s] + 4 * q, 2), o))
            a("ds_read_b64 %s, v6 offset:%d" % (vr(GS[s] + 4 * q + 2, 2), o + 8))
            a("ds_read_b128 %s, v7 offset:%d" % (vr(FS[s] + 4 * q, 4), 32 * (16 * q - 2 * ri + 14)))
    fr(0)
    for ri in range(4):
        s = ri & 1
        a("s_waitcnt lgkmcnt(0)")
        if ri + 1 < 4: fr(ri + 1)
        for q in range(8):
            for m in range(q, 8):
                a("v_mfma_f32_16x16x32_f16 %s, %s, %s, %s" % (vr(CA + 4 * m, 4), vr(GS[s] + 4 * q, 4), vr(FS[s] + 4 * (m - q), 4), vr(CA + 4 * m, 4)))
    s2_("mfma")
    a("s_lshl_b32 s%d, s%d, 12" % (sT0, sRH))
    a("s_add_u32 s%d, s%d, %d" % (sT1, sCVB, O_XCH))
    a("s_add_u32 s%d, s%d, s%d" % (sT2, sT1, sT0))
    a("s_xor_b32 s%d, s%d, 4096" % (sT0, sT0))
    a("s_add_u32 s%d, s%d, s%d" % (sT3, sT1, sT0))
    a("v_add_u32 v5, s%d, v4" % sT2)
    a("v_add_u32 v6, s%d, v4" % sT3)
    a("s_lshl_b32 s%d, s%d, 2" % (sT0, sCW))
    a("s_add_u32 s%d, s%d, %d" % (sT0, sT0, L_FLAG))
    a("v_mov_b32 v10, s%d" % sT0)
    a("v_xor_b32 v11, 4, v10")
    a("v_mov_b32 v12, 1")
    a("s_cmp_lg_u32 s%d, 0" % sRH)
    a("s_cbranch_scc1 K2_X1")
    a.begin_opt()
    for i in range(4): a("ds_write_b128 v5, %s offset:%d" % (vr(CA + 16 + 4 * i, 4), i * 1024))
    a("s_branch K2_X2")
    a.end_opt()
    a.label("K2_X1")
    a.begin_opt()
    for i in range(4): a("ds_write_b128 v5, %s offset:%d" % (vr(CA + 4 * i, 4), i * 1024))
    for i in range(16): a("v_mov_b32 v%d, v%d" % (CA + i, CA + 16 + i))
    a.end_opt()
    a.label("K2_X2")
    a("s_waitcnt lgkmcnt(0)")
    a("ds_write_b32 v10, v12")
    a("v_lshlrev_b32 v13, 5, v2")
    a("v_lshl_add_u32 v13, v3, 3, v13")
    a("s_lshl_b32 s%d, s%d, 11" % (sT0, sRH))
    a("v_add_u32 v13, s%d, v13" % sT0)
    a("s_add_u32 s%d, s%d, %d" % (sT1, sCVB, O_U + 480))
    a("v_add_u32 v14, s%d, v13" % sT1)
    for i in range(4): a("ds_read_b64 %s, v14 offset:%d" % (vr(64 + 2 * i, 2), i * 512))
    a.wait_vm_all()
    a("v_lshlrev_b32 v8, 16, v8")
    a("s_waitcnt lgkmcnt(0)")
    for i in range(4):
        for pr in range(2):
            xw = 64 + 2 * i + pr; o = 80 + 4 * i + 2 * pr
            a("v_cvt_f32_f16 v%d, v%d" % (o, xw))
            a("v_lshrrev_b32 v%d, 16, v%d" % (o + 1, xw)); a("v_cvt_f32_f16 v%d, v%d" % (o + 1, o + 1))
            a("v_mul_f32 v%d, v8, v%d" % (o, o)); a("v_mul_f32 v%d, v8, v%d" % (o + 1, o + 1))
            a("v_cvt_pk_bf16_f32 v%d, v%d, v%d" % (o, o, o + 1))
            a("v_and_b32 v%d, 0xffff0000, v%d" % (o + 1, o)); a("v_lshlrev_b32 v%d, 16, v%d" % (o, o))
    a("s_mov_b32 s%d, 0" % sCNT)
    a.label("K2_XP")
    a("ds_read_b32 v15, v11")
    a("s_waitcnt lgkmcnt(0)")
    a("v_readfirstlane_b32 s%d, v15" % sT1)
    a("s_add_u32 s%d, s%d, 1" % (sCNT, sCNT))
    a("s_cmp_lg_u32 s%d, 0" % sT1)
    a("s_cbranch_scc1 K2_XD")
    a("s_cmp_lt_u32 s%d, 0x1000000" % sCNT)
    a("s_cbranch_scc1 K2_XP")
    a.label("K2_XD")
    s2_("xch")
    for i in range(4): a("ds_read_b128 %s, v6 offset:%d" % (vr(CA + 16 + 4 * i, 4), i * 1024))
    a("s_lshl_b32 s%d, s%d, 12" % (sT0, sCH))
    a("s_add_u32 s%d, s%d, %d" % (sT0, sT0, WS_YAT))
    for i in range(4):
        a("s_waitcnt lgkmcnt(%d)" % (3 - i))
        for pr in range(2):
            y = CA + 4 * i + 2 * pr; o = 80 + 4 * i + 2 * pr
            a("v_add_f32 v%d, v%d, v%d" % (y, y, y + 16)); a("v_add_f32 v%d, v%d, v%d" % (y + 1, y + 1, y + 17))
            a("v_mul_f32 v%d, v9, v%d" % (y, y)); a("v_mul_f32 v%d, v9, v%d" % (y + 1, y + 1))
            a("v_cvt_pk_bf16_f32 v%d, v%d, v%d" % (y, y, y + 1))
            a("v_and_b32 v%d, 0xffff0000, v%d" % (y + 1, y)); a("v_lshlrev_b32 v%d, 16, v%d" % (y, y))
            a("v_add_f32 v%d, v%d, v%d" % (y, y, o)); a("v_add_f32 v%d, v%d, v%d" % (y + 1, y + 1, o + 1))
            a("v_cvt_pk_bf16_f32 v%d, v%d, v%d" % (72 + 2 * i + pr, y, y + 1))
        a("buffer_store_dwordx2 %s, v13, s[%d:%d], s%d offen offset:%d sc1" % (vr(72 + 2 * i, 2), SWS, SWS + 3, sT0, i * 512))
    a("s_lshl_b32 s%d, s%d, 3" % (sT0, sCH))
    a("s_lshl_b32 s%d, s%d, 2" % (sT1, sRH))
    a("s_add_u32 s%d, s%d, s%d" % (sT0, sT0, sT1))
    a("s_add_u32 s%d, s%d, %d" % (sT0, sT0, WS_FLAG))
    a("v_mov_b32 v14, s%d" % sT0)
    a("v_mov_b32 v12, 1")
    a("s_lshl_b32 s%d, s%d, 9" % (sT0, sCT))
    a("s_lshl_b32 s%d, s%d, 7" % (sT1, sCW))
    a("s_add_u32 s%d, s%d, s%d" % (sT0, sT0, sT1))
    a("s_add_u32 s%d, s%d, %d" % (sT0, sT0, WS_FLAG))
    a("v_and_b32 v18, 31, v1")
    a("v_lshl_add_u32 v18, v18, 2, s%d" % sT0)
    a("s_lshl_b32 s%d, s%d, 4" % (sT0, sCW))
    a("v_lshrrev_b32 v19, 3, v1")
    a("v_add_u32 v19, s%d, v19" % sT0)
    a("s_lshl_b32 s%d, s%d, 6" % (sT0, sCT))
    a("v_add_u32 v19, s%d, v19" % sT0)
    a("v_lshlrev_b32 v19, 12, v19")
    a("v_and_b32 v20, 7, v1")
    a("v_lshl_add_u32 v19, v20, 4, v19")
    a("s_lshl_b32 s%d, s%d, 7" % (sT2, sRT))
    a("s_add_u32 s%d, s%d, %d" % (sT2, sT2, WS_YAT))
    a("s_add_u32 s%d, s%d, %d" % (sT3, sT2, 8 * 4096))
    a("s_lshl_b32 s%d, s%d, 11" % (sT0, sCW))
    a("s_add_u32 s%d, s%d, %d" % (sT0, sT0, L_YA))
    a("v_lshl_add_u32 v20, v1, 4, s%d" % sT0)
    a("s_waitcnt vmcnt(0)")
    a("s_mov_b64 exec, 1")
    a("buffer_store_dword v12, v14, s[%d:%d], 0 offen sc1" % (SWS, SWS + 3))
    a("s_mov_b64 exec, -1")
    s2_("flag")
    a("s_setprio 0")
    a("v_mov_b32 v22, %d" % (L_FLAG + 32))
    a("s_mov_b32 s%d, 0" % sCNT)
    a.label("K2_WT")
    a("s_sleep 2")
    a("ds_read_b32 v21, v22")
    a("s_waitcnt lgkmcnt(0)")
    a("v_readfirstlane_b32 s%d, v21" % sT1)
    a("s_add_u32 s%d, s%d, 1" % (sCNT, sCNT))
    a("s_cmp_lg_u32 s%d, 0" % sT1)
    a("s_cbranch_scc1 K2_WD")
    a("s_cmp_lt_u32 s%d, 0x1000000" % sCNT)
    a("s_cbranch_scc1 K2_WT")
    a.label("K2_WD")
    a("s_mov_b32 s%d, 0" % sCNT)
    a.label("K2_POLL")
    a("buffer_load_dword v21, v18, s[%d:%d], 0 offen sc1" % (SWS, SWS + 3))
    a("s_waitcnt vmcnt(0)")
    a("v_cmp_ne_u32 vcc, 1, v21")
    a("s_add_u32 s%d, s%d, 1" % (sCNT, sCNT))
    a("s_cmp_eq_u64 vcc, 0")
    a("s_cbranch_scc1 K2_POLLED")
    a("s_sleep 16")
    a("s_cmp_lt_u32 s%d, 0x400000" % sCNT)
    a("s_cbranch_scc1 K2_POLL")
    a.label("K2_POLLED")
    s2_("polled")
    a("buffer_load_dwordx4 v[104:107], v19, s[%d:%d], s%d offen sc1" % (SWS, SWS + 3, sT2))
    a("buffer_load_dwordx4 v[108:111], v19, s[%d:%d], s%d offen sc1" % (SWS, SWS + 3, sT3))
    a("s_waitcnt vmcnt(0)")
    a("ds_write_b128 v20, v[104:107]")
    a("ds_write_b128 v20, v[108:111] offset:1024")
    a("s_waitcnt lgkmcnt(0)")
    s2_("end")
    s2_.store(1 << 20, sWV, SWS, 200)
    if STAMP: print("K2 ffn stamps", st_.names, "conv stamps", s2_.names)
    a.label("K2_END")
    a("s_endpgm")
    return a.finalize(), 208, LDS
```

```python
import math, struct, sys
from asmlib import Asm

NAME = "parallel_sum__ssm_conv_s4__glu_gated_geglu__prompt"
def fbits(x): return "0x%08x" % struct.unpack("<I", struct.pack("<f", x))[0]
LOG2E = math.log2(math.e)

WS_H    = 0
WS_XNT  = 8 << 20
WS_KREV = 12 << 20
WS_KSC  = 16 << 20
WS_YAT  = 20 << 20
WS_SIZE = 32 << 20
KSTRIDE = 4160

def srd(a, d, p, nbytes):
    a("s_mov_b32 s%d, s%d" % (d, p))
    a("s_and_b32 s%d, s%d, 0xffff" % (d + 1, p + 1))
    a("s_mov_b32 s%d, 0x%x" % (d + 2, nbytes))
    a("s_mov_b32 s%d, 0x00020000" % (d + 3))

import os
STAMP = int(os.environ.get("STAMP", "0"))
WS_DBG = 24 << 20
class Stamps:
    def __init__(self, a): self.a = a; self.n = 0; self.names = []
    def __call__(self, name):
        if not STAMP: return
        assert self.n < 10
        self.a("s_memtime s[%d:%d]" % (80 + 2 * self.n, 81 + 2 * self.n))
        self.a("s_waitcnt lgkmcnt(0)")
        self.n += 1; self.names.append(name)
    def store(self, koff, sWV, SWS, vt=250):
        if not STAMP: return
        a = self.a
        a("s_lshl_b32 s100, s2, 3")
        a("s_add_u32 s100, s100, s%d" % sWV)
        a("s_lshl_b32 s100, s100, 6")
        a("s_add_u32 s100, s100, %d" % (WS_DBG + koff))
        a("s_mov_b64 exec, 1")
        a("v_mov_b32 v%d, s100" % vt)
        for i in range(self.n):
            a("v_mov_b32 v%d, s%d" % (vt + 1, 80 + 2 * i))
            a("buffer_store_dword v%d, v%d, s[%d:%d], 0 offen offset:%d" % (vt + 1, vt, SWS, SWS + 3, 4 * i))
            a("s_waitcnt vmcnt(0)")
        a("s_mov_b64 exec, -1")

def vr(b, n=1): return "v%d" % b if n == 1 else "v[%d:%d]" % (b, b + n - 1)

def gen_k1():
    a = Asm()
    st_ = Stamps(a)
    SLOT = 24576; NS = 6; NST = 14
    EXTRA = NS * SLOT
    L_STAT = EXTRA; L_CS = EXTRA + 4096; L_KEXP = EXTRA + 5120; L_XN = EXTRA + 8192
    L_STG = 3 * SLOT; STG_W = 4352; L_DV = L_STG + 8 * STG_W; DV_CH = 10368
    SX, SWG, SWU, SWS = 40, 44, 48, 52
    sWV, sR, sF, sWR, sWC, sCH, sMQ = 56, 57, 58, 59, 60, 61, 62
    sT0, sT1, sT2, sT3 = 64, 65, 66, 67
    sSC, sINV = 68, 69
    sONES = 70
    sOX, sOW = 72, 73
    sEX = 74

    a("s_cmp_ge_u32 s2, 224")
    a("s_cbranch_scc1 K1_END")
    st_("start")
    a("s_load_dwordx16 s[16:31], s[0:1], 0")
    a("s_load_dwordx4 s[32:35], s[0:1], 80")
    a("s_load_dwordx2 s[36:37], s[0:1], 120")
    a("v_lshrrev_b32 v1, 6, v0")
    a("v_readfirstlane_b32 s%d, v1" % sWV)
    a("v_and_b32 v1, 63, v0")
    a("s_and_b32 s%d, s2, 7" % sT0)
    a("s_lshr_b32 s%d, s2, 3" % sT1)
    a("s_lshr_b32 s%d, s%d, 1" % (sT2, sT0))
    a("s_lshl_b32 s%d, s%d, 2" % (sT2, sT2))
    a("s_and_b32 s%d, s%d, 3" % (sT3, sT1))
    a("s_add_u32 s%d, s%d, s%d" % (sR, sT2, sT3))
    a("s_and_b32 s%d, s%d, 1" % (sT2, sT0))
    a("s_mul_i32 s%d, s%d, 7" % (sT2, sT2))
    a("s_lshr_b32 s%d, s%d, 2" % (sT3, sT1))
    a("s_add_u32 s%d, s%d, s%d" % (sF, sT2, sT3))
    a("s_and_b32 s%d, s%d, 1" % (sWR, sWV))
    a("s_lshr_b32 s%d, s%d, 1" % (sWC, sWV))
    a("s_lshr_b32 s%d, s%d, 2" % (sT0, sWV))
    a("s_lshl_b32 s%d, s2, 1" % sCH)
    a("s_add_u32 s%d, s%d, s%d" % (sCH, sCH, sT0))
    a("s_and_b32 s%d, s%d, 3" % (sMQ, sWV))
    a("s_mov_b32 s%d, 0x3f803f80" % sONES)
    a("s_lshl_b32 s%d, s%d, 8" % (sT0, sCH))
    a("s_lshl_b32 s%d, s%d, 6" % (sT1, sMQ))
    a("s_add_u32 s%d, s%d, s%d" % (sT0, sT0, sT1))
    a("v_add_u32 v16, s%d, v1" % sT0)
    a("v_lshlrev_b32 v16, 1, v16")
    a("s_lshl_b32 s%d, s%d, 1" % (sT1, sCH))
    a("v_mov_b32 v17, s%d" % sT1)
    a("v_lshrrev_b32 v2, 2, v1")
    a("s_lshl_b32 s%d, s%d, 7" % (sT0, sR))
    a("s_lshl_b32 s%d, s%d, 4" % (sT1, sWV))
    a("s_add_u32 s%d, s%d, s%d" % (sT0, sT0, sT1))
    a("v_add_u32 v2, s%d, v2" % sT0)
    a("v_mul_u32_u24 v2, 896, v2")
    a("v_lshrrev_b32 v3, 4, v1")
    a("v_xor_b32 v4, v1, v3")
    a("v_and_b32 v4, 3, v4")
    a("v_lshl_add_u32 v2, v4, 4, v2")
    a("s_lshl_b32 s%d, s%d, 2" % (sT0, sWV))
    a("v_add_u32 v5, s%d, v3" % sT0)
    a("s_movk_i32 s%d, 3584" % sT1)
    a("v_mul_lo_u32 v5, v5, s%d" % sT1)
    a("v_lshlrev_b32 v6, 2, v3")
    a("v_xor_b32 v6, v1, v6")
    a("v_and_b32 v6, 15, v6")
    a("v_lshl_add_u32 v5, v6, 4, v5")
    a("s_lshl_b32 s%d, s%d, 8" % (sT0, sF))
    a("v_add_u32 v3, s%d, v5" % sT0)
    a("s_waitcnt lgkmcnt(0)")
    srd(a, SX, 16, 2048 * 896)
    srd(a, SWG, 32, 448 * 3584)
    srd(a, SWU, 34, 448 * 3584)
    srd(a, SWS, 36, WS_SIZE)
    for i in range(6):
        a.vm("global_load_ushort v%d, v16, s[%d:%d]" % (20 + i, 18 + 2 * i, 19 + 2 * i), "param")
    a.vm("global_load_ushort v26, v17, s[30:31]", "param")

    def dma_stage(st):
        slot = st % NS
        a("s_mov_b32 s%d, %d" % (sOX, st * 64))
        a("s_mov_b32 s%d, %d" % (sOW, st * 32 * 3584))
        a("s_lshl_b32 s%d, s%d, 10" % (sT3, sWV))
        a("s_add_u32 m0, s%d, %d" % (sT3, slot * SLOT))
        a.vm("buffer_load_dwordx4 v2, s[%d:%d], s%d offen lds" % (SX, SX + 3, sOX), ("st", st))
        a("s_add_u32 m0, s%d, %d" % (sT3, slot * SLOT + 8192))
        a.vm("buffer_load_dwordx4 v3, s[%d:%d], s%d offen lds" % (SWG, SWG + 3, sOW), ("st", st))
        a("s_add_u32 m0, s%d, %d" % (sT3, slot * SLOT + 16384))
        a.vm("buffer_load_dwordx4 v3, s[%d:%d], s%d offen lds" % (SWU, SWU + 3, sOW), ("st", st))
    for st in range(3): dma_stage(st)

    a("v_lshlrev_b32 v4, 2, v0")
    a("v_add_u32 v4, %d, v4" % L_CS)
    a("v_mov_b32 v5, 0")
    a("s_cmp_ge_u32 s%d, 4" % sWV)
    a("s_cbranch_scc1 K1_NOZ")
    a.begin_opt()
    a("ds_write_b32 v4, v5")
    a.end_opt()
    a.label("K1_NOZ")

    a.wait_vm("param")
    st_("param")
    Are, Aim, Bre, Bim, Cre, Cim, Ldt = 20, 21, 22, 23, 24, 25, 26
    for r in range(20, 27): a("v_lshlrev_b32 v%d, 16, v%d" % (r, r))
    a("v_mul_f32 v26, %s, v26" % fbits(LOG2E))
    a("v_exp_f32 v26, v26")
    a("v_cvt_pk_bf16_f32 v26, v26, v26")
    a("v_lshlrev_b32 v26, 16, v26")
    a("v_mul_f32 v20, v26, v20")
    a("v_mul_f32 v21, v26, v21")
    a("v_mul_f32 v22, v26, v22")
    a("v_mul_f32 v23, v26, v23")
    X0 = 28
    a("v_mul_f32 v28, v24, v22")
    a("v_fma_f32 v28, -v25, v23, v28")
    a("v_mul_f32 v29, v24, v23")
    a("v_fma_f32 v29, v25, v22, v29")
    a("v_max_f32 v27, abs(v28), abs(v29)")
    for sh in (1, 2, 4, 8):
        a("v_max_f32_dpp v27, v27, v27 row_shr:%d row_mask:0xf bank_mask:0xf" % sh)
    a("v_max_f32_dpp v27, v27, v27 row_bcast:15 row_mask:0xa bank_mask:0xf")
    a("v_max_f32_dpp v27, v27, v27 row_bcast:31 row_mask:0xc bank_mask:0xf")
    a("v_readlane_b32 s%d, v27, 63" % sT0)
    a("s_lshr_b32 s%d, s%d, 23" % (sT0, sT0))
    a("s_sub_u32 s%d, 254, s%d" % (sSC, sT0))
    a("s_lshl_b32 s%d, s%d, 23" % (sSC, sSC))
    a("s_lshl_b32 s%d, s%d, 23" % (sINV, sT0))
    a("v_mov_b32 v4, s%d" % sT0)
    a("s_lshl_b32 s%d, s%d, 2" % (sT1, sWV))
    a("s_add_u32 s%d, s%d, %d" % (sT1, sT1, L_KEXP))
    a("v_mov_b32 v5, s%d" % sT1)
    a("ds_write_b32 v5, v4")
    a("v_mul_f32 v28, s%d, v28" % sSC)
    a("v_mul_f32 v29, s%d, v29" % sSC)
    def cexp(d, L):
        a("v_mul_f32 v22, %s, v20" % fbits(L * LOG2E))
        a("v_mul_f32 v23, %s, v21" % fbits(L / (2 * math.pi)))
        a("v_exp_f32 v22, v22")
        a("v_fract_f32 v23, v23")
        a("v_cos_f32 v%d, v23" % d)
        a("v_sin_f32 v%d, v23" % (d + 1))
        a("v_mul_f32 v%d, v22, v%d" % (d, d))
        a("v_mul_f32 v%d, v22, v%d" % (d + 1, d + 1))
    E1, E8, E256, E2, E4, E16 = 30, 32, 34, 36, 38, 40
    TA, TB = 42, 44
    tmpi = [0]
    def cmul(d, x, y):
        t = (TA, TB)[tmpi[0] & 1]; tmpi[0] += 1
        a("v_pk_mul_f32 %s, %s, %s op_sel_hi:[1,0]" % (vr(t, 2), vr(x, 2), vr(y, 2)))
        a("v_pk_fma_f32 %s, %s, %s, %s op_sel:[1,1,0] op_sel_hi:[0,1,1] neg_lo:[1,0,0]" % (vr(d, 2), vr(x, 2), vr(y, 2), vr(t, 2)))
    cexp(E8, 8); cexp(E1, 1); cexp(E256, 256)
    cmul(E16, E8, E8); cmul(E2, E1, E1); cmul(E4, E2, E2)
    a("s_mul_i32 s%d, s%d, %d" % (sT0, sWV, STG_W))
    a("s_add_u32 s%d, s%d, %d" % (sT0, sT0, L_STG))
    a("v_lshl_add_u32 v4, v1, 2, s%d" % sT0)
    a("v_and_b32 v5, 15, v1")
    a("v_mul_u32_u24 v5, 272, v5")
    a("v_lshrrev_b32 v6, 4, v1")
    a("v_lshl_add_u32 v5, v6, 4, v5")
    a("v_add_u32 v5, s%d, v5" % sT0)
    PK = [46, 47, 48, 49]; pki = [0]
    def put(row, r, negim=False):
        p = PK[pki[0] & 3]; pki[0] += 1
        a("v_cvt_pk_f16_f32 v%d, v%d, %sv%d" % (p, r, "-" if negim else "", r + 1))
        a("ds_write_b32 v4, v%d offset:%d" % (p, row * 272))
    YF = [64, 80]; XF = [96, 112]
    def getfr(base):
        for ks in range(4):
            a("ds_read_b128 %s, v5 offset:%d" % (vr(base + 4 * ks, 4), ks * 64))
    Ya, Yb = 50, 52
    a("v_mov_b32 v50, 1.0"); a("v_mov_b32 v51, 0")
    a("v_mov_b32 v52, v%d" % E8); a("v_mov_b32 v53, v%d" % (E8 + 1))
    for j in range(0, 32, 2):
        put(j & 15, Ya); put((j + 1) & 15, Yb)
        if j + 2 < 32:
            cmul(Ya, Ya, E16); cmul(Yb, Yb, E16)
        if j == 14: getfr(YF[0])
    getfr(YF[1])
    Xa, Xb, Xc = 54, 56, 58
    put(0, X0, True)
    cmul(Xa, X0, E1); cmul(Xb, X0, E256)
    put(1, Xa, True); put(8, Xb, True)
    cmul(Xc, Xb, E2)
    for r in range(2, 8):
        cmul(Xa, Xa, E1); put(r, Xa, True)
        if r <= 4:
            put(9 + (r - 2), Xc, True)
            if r < 4: cmul(Xc, Xc, E2)
    cmul(Xb, Xb, E256); put(12, Xb, True)
    cmul(Xc, Xb, E4); put(13, Xc, True)
    cmul(Xb, Xb, E256); put(14, Xb, True)
    cmul(Xc, Xb, E4); put(15, Xc, True)
    getfr(XF[0])
    for r in range(5):
        cmul(Xb, Xb, E256); put(r, Xb, True)
    getfr(XF[1])
    D = [[128, 132], [136, 140]]
    for xt in range(2):
        for yt in range(2):
            for r in range(4): a("v_mov_b32 v%d, 0" % (D[xt][yt] + r))
    a("s_waitcnt lgkmcnt(0)")
    for ks in range(4):
        for xt in range(2):
            for yt in range(2):
                a("v_mfma_f32_16x16x32_f16 %s, %s, %s, %s" % (vr(D[xt][yt], 4), vr(XF[xt] + 4 * ks, 4), vr(YF[yt] + 4 * ks, 4), vr(D[xt][yt], 4)))
    a("v_and_b32 v7, 15, v1")
    a("v_cmp_eq_u32 vcc, 2, v6")
    a("v_mov_b32 v8, 8"); a("v_lshlrev_b32 v9, 2, v6")
    a("v_mov_b32 v10, 2")
    a("v_mov_b32 v11, 256")
    a("v_cndmask_b32 v8, v8, 4, vcc")
    a("v_cndmask_b32 v9, v9, v11, vcc")
    a("v_cmp_eq_u32 vcc, 3, v6")
    a("v_mov_b32 v11, 384"); a("v_mov_b32 v12, 64")
    a("v_cndmask_b32 v8, v8, 2, vcc")
    a("v_cndmask_b32 v9, v9, v11, vcc")
    a("v_cndmask_b32 v10, v10, v12, vcc")
    a("v_mad_u32_u24 v9, v8, v7, v9")
    a("s_lshr_b32 s%d, s%d, 2" % (sT0, sWV))
    a("s_mul_i32 s%d, s%d, %d" % (sT0, sT0, DV_CH))
    a("s_add_u32 s%d, s%d, %d" % (sT2, sT0, L_DV))
    a("s_lshl_b32 s%d, s%d, 2" % (sT1, sMQ))
    a("s_add_u32 s%d, s%d, s%d" % (sT0, sT2, sT1))
    a("v_lshl_add_u32 v9, v9, 4, s%d" % sT0)
    a("v_lshl_add_u32 v10, v10, 4, v9")
    a("v_lshl_add_u32 v11, v8, 8, v9")
    a("v_lshl_add_u32 v12, v8, 8, v10")
    a("v_lshl_add_u32 v13, v7, 4, s%d" % sT0)
    for xt in range(2):
        for yt in range(2):
            for r in range(4): a("v_mul_f32 v%d, s%d, v%d" % (D[xt][yt] + r, sINV, D[xt][yt] + r))
    for yt in range(2):
        for r in range(4):
            a("ds_write_b32 v%d, v%d offset:%d" % ((9, 10, 11, 12)[2 * yt + (r >> 1)], D[0][yt] + r, (r & 1) * 16))
    a("s_mov_b64 exec, 0xffff")
    for yt in range(2):
        for r in range(4):
            a("ds_write_b32 v13, v%d offset:%d" % (D[1][yt] + r, (512 + 32 * r + 16 * yt) * 16))
    a("s_mov_b32 exec_lo, 0x10000")
    a("ds_write_b32 v13, v%d offset:%d" % (D[1][0], 640 * 16))
    a("s_mov_b64 exec, -1")
    a("s_waitcnt lgkmcnt(0)")
    st_("kgen_mfma")
    a("s_barrier")
    a("s_lshr_b32 s%d, s%d, 2" % (sT0, sWV))
    a("s_lshl_b32 s%d, s%d, 4" % (sT0, sT0))
    a("s_add_u32 s%d, s%d, %d" % (sT0, sT0, L_KEXP))
    a("v_mov_b32 v4, s%d" % sT0)
    a("ds_read_b128 v[8:11], v4")
    a("s_lshl_b32 s%d, s%d, 6" % (sT0, sMQ))
    a("v_add_u32 v4, s%d, v1" % sT0)
    a("v_lshlrev_b32 v5, 3, v4")
    a("v_cmp_gt_u32 vcc, 32, v4")
    for e in range(8):
        a("v_add_u32 v6, %d, v5" % e)
        a("v_cvt_f32_u32 v7, v6")
        a("v_cvt_pk_bf16_f32 v7, v7, v7")
        a("v_and_b32 v7, 0xffff, v7")
        a("v_subrev_u32 v7, 0x4280, v7")
        a("v_cndmask_b32 v7, v7, v6, vcc")
        a("v_lshl_add_u32 v7, v7, 4, s%d" % sT2)
        a("ds_read_b128 %s, v7" % vr(64 + 4 * e, 4))
    a("s_waitcnt lgkmcnt(8)")
    a("v_max_u32 v8, v8, v9"); a("v_max_u32 v10, v10, v11"); a("v_max_u32 v8, v8, v10")
    a("v_sub_u32 v9, 254, v8"); a("v_lshlrev_b32 v9, 23, v9")
    a("v_lshlrev_b32 v10, 23, v8")
    a("s_waitcnt lgkmcnt(0)")
    for e in range(8):
        b = 64 + 4 * e
        a("v_add_f32 v%d, v%d, v%d" % (b, b, b + 1))
        a("v_add_f32 v%d, v%d, v%d" % (b + 2, b + 2, b + 3))
        a("v_add_f32 v%d, v%d, v%d" % (b, b, b + 2))
        a("v_mul_f32 v%d, v9, v%d" % (b, b))
    for i in range(4):
        a("v_cvt_pk_f16_f32 v%d, v%d, v%d" % (12 + i, 64 + 4 * (7 - 2 * i), 64 + 4 * (6 - 2 * i)))
    a("s_mul_i32 s%d, s%d, %d" % (sT0, sCH, KSTRIDE))
    a("s_add_u32 s%d, s%d, %d" % (sT0, sT0, WS_KREV + 4080))
    a("v_lshlrev_b32 v5, 4, v4")
    a("v_sub_u32 v5, s%d, v5" % sT0)
    a.vm("buffer_store_dwordx4 v[12:15], v5, s[%d:%d], 0 offen" % (SWS, SWS + 3), "kst")
    a("s_cmp_lg_u32 s%d, 0" % sMQ)
    a("s_cbranch_scc1 K1_NOPAD")
    a.begin_opt()
    a("v_mov_b32 v16, 0"); a("v_mov_b32 v17, 0"); a("v_mov_b32 v18, 0"); a("v_mov_b32 v19, 0")
    a("s_add_u32 s%d, s%d, 16" % (sT0, sT0))
    a("v_lshl_add_u32 v6, v1, 4, s%d" % sT0)
    a("s_lshl_b32 s%d, s%d, 2" % (sT1, sCH))
    a("s_add_u32 s%d, s%d, %d" % (sT1, sT1, WS_KSC))
    a("v_mov_b32 v7, s%d" % sT1)
    a("s_mov_b64 exec, 0xf")
    a("buffer_store_dwordx4 v[16:19], v6, s[%d:%d], 0 offen" % (SWS, SWS + 3))
    a("s_mov_b64 exec, 1")
    a("buffer_store_dword v10, v7, s[%d:%d], 0 offen" % (SWS, SWS + 3))
    a("s_mov_b64 exec, -1")
    a("s_waitcnt vmcnt(0)")
    a.end_opt()
    a.label("K1_NOPAD")
    st_("gather")
    a("s_barrier")
    dma_stage(3); dma_stage(4)

    a("v_and_b32 v4, 31, v1")
    a("s_lshl_b32 s%d, s%d, 6" % (sT0, sWR))
    a("v_add_u32 v4, s%d, v4" % sT0)
    a("v_lshlrev_b32 v4, 6, v4")
    a("v_lshrrev_b32 v5, 5, v1")
    a("v_lshrrev_b32 v6, 2, v1")
    a("v_and_b32 v6, 3, v6")
    a("v_xor_b32 v7, v5, v6")
    a("v_lshl_add_u32 v4, v7, 4, v4")
    a("v_xor_b32 v5, 32, v4")
    a("v_lshrrev_b32 v7, 5, v1")
    a("v_lshl_add_u32 v7, v7, 3, v6")
    a("v_lshlrev_b32 v8, 8, v7")
    a("v_bfe_u32 v9, v1, 4, 1")
    a("v_lshlrev_b32 v9, 1, v9")
    a("v_bfe_u32 v10, v1, 1, 1")
    a("v_add_u32 v9, v9, v10")
    a("s_lshl_b32 s%d, s%d, 2" % (sT0, sWC))
    a("v_add_u32 v9, s%d, v9" % sT0)
    a("v_lshlrev_b32 v10, 2, v6")
    a("v_xor_b32 v9, v9, v10")
    a("v_lshl_add_u32 v8, v9, 4, v8")
    a("v_and_b32 v10, 1, v1")
    a("v_lshl_add_u32 v8, v10, 3, v8")
    a("v_add_u32 v8, 8192, v8")
    a("v_add_u32 v6, %d, v4" % (3 * SLOT))
    a("v_add_u32 v7, %d, v5" % (3 * SLOT))
    a("v_add_u32 v9, %d, v8" % (3 * SLOT))
    ACC = [[64, 80], [96, 112]]
    for r in range(64, 128): a("v_mov_b32 v%d, 0" % r)
    XS1, XS2, WCS = [10, 11], [12, 13], [14, 15]
    for r in range(10, 16): a("v_mov_b32 v%d, 0" % r)
    FR = [128, 144]
    def rd_frags(st, kk, fb):
        slot = st % NS
        hi = slot >= 3
        so = (slot - 3 * hi) * SLOT
        xa = ((4, 5), (6, 7))[hi][kk]; wa = (8, 9)[hi]
        for tt in range(2):
            a("ds_read_b128 %s, v%d offset:%d" % (vr(fb + 4 * tt, 4), xa, so + tt * 2048))
        for mat in range(2):
            for half in range(2):
                a("ds_read_b64_tr_b16 %s, v%d offset:%d" % (vr(fb + 8 + 4 * mat + 2 * half, 2), wa, so + mat * 8192 + kk * 4096 + half * 1024))
    lab = [0]
    def compute(i, fb):
        for mat in range(2):
            for tt in range(2):
                a("v_mfma_f32_32x32x16_bf16 %s, %s, %s, %s" % (vr(ACC[mat][tt], 16), vr(fb + 8 + 4 * mat, 4), vr(fb + 4 * tt, 4), vr(ACC[mat][tt], 16)))
        lab[0] += 1
        a("s_cmp_lg_u32 s%d, %d" % (sWC, i & 3))
        a("s_cbranch_scc1 K1_SX%d" % lab[0])
        a.begin_opt()
        for tt in range(2):
            for r in range(4):
                a("v_dot2_f32_bf16 v%d, v%d, s%d, v%d" % (XS1[tt], fb + 4 * tt + r, sONES, XS1[tt]))
                a("v_dot2_f32_bf16 v%d, v%d, v%d, v%d" % (XS2[tt], fb + 4 * tt + r, fb + 4 * tt + r, XS2[tt]))
        a.end_opt()
        a.label("K1_SX%d" % lab[0])
        a("s_cmp_lg_u32 s%d, %d" % (sWR, i & 1))
        a("s_cbranch_scc1 K1_SW%d" % lab[0])
        a.begin_opt()
        for r in range(4):
            for mat in range(2):
                a("v_dot2_f32_bf16 v%d, v%d, s%d, v%d" % (WCS[mat], fb + 8 + 4 * mat + r, sONES, WCS[mat]))
        a.end_opt()
        a.label("K1_SW%d" % lab[0])
    for st in range(NST):
        a.wait_vm(("st", st))
        a("s_barrier")
        if st in (0, 5, 10): st_("st%d" % st)
        if st + 5 < NST: dma_stage(st + 5)
        if st == NST - 3:
            a("v_lshrrev_b32 v16, 2, v0")
            a("s_lshl_b32 s%d, s%d, 7" % (sT0, sR))
            a("v_add_u32 v16, s%d, v16" % sT0)
            a("v_mul_u32_u24 v16, 896, v16")
            a("v_and_b32 v17, 3, v0")
            a("v_lshl_add_u32 v16, v17, 4, v16")
            a("s_lshl_b32 s%d, s%d, 6" % (sT0, sF))
            a.vm("buffer_load_dwordx4 v[20:23], v16, s[%d:%d], s%d offen" % (SX, SX + 3, sT0), "xre")
        rd_frags(st, 0, FR[0])
        rd_frags(st, 1, FR[1])
        a("s_waitcnt lgkmcnt(6)")
        compute(2 * st, FR[0])
        a("s_waitcnt lgkmcnt(0)")
        compute(2 * st + 1, FR[1])

    st_("loopend")
    def halfsum(r, t):
        a("v_mov_b32 v%d, v%d" % (t, r))
        a("v_permlane32_swap_b32 v%d, v%d" % (r, t))
        a("v_add_f32 v%d, v%d, v%d" % (r, r, t))
    for r in range(10, 16): halfsum(r, 16)
    a("v_and_b32 v4, 31, v1")
    a("s_lshl_b32 s%d, s%d, 6" % (sT0, sWR))
    a("v_add_u32 v4, s%d, v4" % sT0)
    a("v_lshlrev_b32 v5, 4, v4")
    a("v_add_u32 v5, %d, v5" % L_STAT)
    a("s_lshl_b32 s%d, s%d, 2" % (sT0, sWC))
    a("v_add_u32 v6, s%d, v5" % sT0)
    for tt in range(2):
        a("ds_write_b32 v6, v%d offset:%d" % (XS1[tt], tt * 512))
        a("ds_write_b32 v6, v%d offset:%d" % (XS2[tt], 2048 + tt * 512))
    a("v_and_b32 v7, 31, v1")
    a("s_lshl_b32 s%d, s%d, 5" % (sT0, sWC))
    a("v_add_u32 v7, s%d, v7" % sT0)
    a("v_lshlrev_b32 v7, 2, v7")
    a("v_add_u32 v7, %d, v7" % L_CS)
    a("s_mov_b64 exec, 0xffffffff")
    a("ds_add_f32 v7, v14")
    a("ds_add_f32 v7, v15 offset:512")
    a("s_mov_b64 exec, -1")
    a("s_waitcnt lgkmcnt(0)")
    a("s_barrier")
    def stats(p1, p2, M, S):
        a("v_add_f32 v%d, v%d, v%d" % (p1, p1, p1 + 1)); a("v_add_f32 v%d, v%d, v%d" % (p1 + 2, p1 + 2, p1 + 3))
        a("v_add_f32 v%d, v%d, v%d" % (p2, p2, p2 + 1)); a("v_add_f32 v%d, v%d, v%d" % (p2 + 2, p2 + 2, p2 + 3))
        a("v_add_f32 v%d, v%d, v%d" % (p1, p1, p1 + 2)); a("v_add_f32 v%d, v%d, v%d" % (p2, p2, p2 + 2))
        a("v_mul_f32 v%d, %s, v%d" % (p1, fbits(1.0 / 448), p1))
        a("v_mul_f32 v%d, %s, v%d" % (p2, fbits(1.0 / 448), p2))
        a("v_fma_f32 v%d, -v%d, v%d, v%d" % (p2, p1, p1, p2))
        a("v_max_f32 v%d, 0, v%d" % (p2, p2))
        a("v_cvt_pk_bf16_f32 v%d, v%d, v%d" % (p1, p1, p2))
        a("v_lshlrev_b32 v%d, 16, v%d" % (M, p1))
        a("v_and_b32 v%d, 0xffff0000, v%d" % (p2, p1))
        a("v_add_f32 v%d, %s, v%d" % (p2, fbits(1e-5), p2))
        a("v_cvt_pk_bf16_f32 v%d, v%d, v%d" % (p2, p2, p2))
        a("v_lshlrev_b32 v%d, 16, v%d" % (p2, p2))
        a("v_sqrt_f32 v%d, v%d" % (p2, p2))
        a("v_cvt_pk_bf16_f32 v%d, v%d, v%d" % (p2, p2, p2))
        a("v_lshlrev_b32 v%d, 16, v%d" % (S, p2))
    a("ds_read_b128 v[24:27], v5"); a("ds_read_b128 v[28:31], v5 offset:2048")
    a("ds_read_b128 v[32:35], v5 offset:512"); a("ds_read_b128 v[36:39], v5 offset:2560")
    a("v_lshrrev_b32 v6, 2, v0")
    a("v_lshlrev_b32 v6, 4, v6")
    a("v_add_u32 v6, %d, v6" % L_STAT)
    a("ds_read_b128 v[40:43], v6"); a("ds_read_b128 v[44:47], v6 offset:2048")
    a("v_lshrrev_b32 v7, 5, v1")
    a("v_lshlrev_b32 v7, 4, v7")
    a("s_lshl_b32 s%d, s%d, 7" % (sT0, sWC))
    a("s_add_u32 s%d, s%d, %d" % (sT0, sT0, L_CS))
    a("v_add_u32 v7, s%d, v7" % sT0)
    CS = [128, 144]
    for mat in range(2):
        for q in range(4):
            a("ds_read_b128 %s, v7 offset:%d" % (vr(CS[mat] + 4 * q, 4), mat * 512 + q * 32))
    a("s_waitcnt lgkmcnt(8)")
    NM = [48, 50]; K1r = [52, 54]; K2r = [56, 58]; S2 = [60, 62]
    for tt in range(2):
        p1, p2 = (24, 28) if tt == 0 else (32, 36)
        stats(p1, p2, NM[tt], S2[tt])
        a("v_rcp_f32 v%d, v%d" % (p1, S2[tt]))
        a("v_sub_f32 v%d, 0, v%d" % (NM[tt], NM[tt]))
        a("v_mul_f32 v%d, v%d, v%d" % (S2[tt], S2[tt], S2[tt]))
        c = math.sqrt(2 / math.pi)
        k1 = -2 * c * LOG2E; k2 = k1 * 0.044715
        a("v_mul_f32 v%d, %s, v%d" % (K1r[tt], fbits(k1), p1))
        a("v_mul_f32 v%d, v%d, v%d" % (p1 + 1, p1, p1))
        a("v_mul_f32 v%d, v%d, v%d" % (p1 + 1, p1 + 1, p1))
        a("v_mul_f32 v%d, %s, v%d" % (K2r[tt], fbits(k2), p1 + 1))
    stats(40, 44, 16, 17)
    a("v_rcp_f32 v17, v17")
    a.wait_vm("xre")
    for i in range(4):
        a("v_lshlrev_b32 v24, 16, v%d" % (20 + i))
        a("v_and_b32 v25, 0xffff0000, v%d" % (20 + i))
        a("v_sub_f32 v24, v24, v16"); a("v_sub_f32 v25, v25, v16")
        a("v_cvt_pk_bf16_f32 v24, v24, v25")
        a("v_and_b32 v25, 0xffff0000, v24"); a("v_lshlrev_b32 v24, 16, v24")
        a("v_mul_f32 v24, v24, v17"); a("v_mul_f32 v25, v25, v17")
        a("v_cvt_pk_bf16_f32 v24, v24, v25")
        a("v_and_b32 v25, 0xffff0000, v24"); a("v_lshlrev_b32 v24, 16, v24")
        a("v_cvt_pk_f16_f32 v%d, v24, v25" % (20 + i))
    a("v_lshlrev_b32 v6, 4, v0")
    a("v_add_u32 v6, %d, v6" % L_XN)
    a("ds_write_b128 v6, v[20:23]")
    a("v_bfe_u32 v6, v1, 5, 1")
    a("v_lshlrev_b32 v6, 3, v6")
    a("v_bfe_u32 v7, v1, 2, 2")
    a("v_add_u32 v6, v6, v7")
    a("s_lshl_b32 s%d, s%d, 4" % (sT0, sWV))
    a("v_add_u32 v6, s%d, v6" % sT0)
    a("v_lshlrev_b32 v6, 6, v6")
    a("v_bfe_u32 v7, v1, 4, 1")
    a("v_lshl_add_u32 v6, v7, 5, v6")
    a("v_and_b32 v18, 3, v1")
    a("v_lshl_add_u32 v6, v18, 3, v6")
    a("v_add_u32 v6, %d, v6" % L_XN)
    a("s_waitcnt lgkmcnt(0)")
    a("ds_read_b64_tr_b16 v[20:21], v6")
    a("ds_read_b64_tr_b16 v[22:23], v6 offset:256")
    a("v_and_b32 v18, 31, v1")
    a("s_lshl_b32 s%d, s%d, 5" % (sT0, sF))
    a("v_add_u32 v18, s%d, v18" % sT0)
    a("v_lshlrev_b32 v18, 12, v18")
    a("v_bfe_u32 v19, v1, 5, 1")
    a("v_lshl_add_u32 v18, v19, 4, v18")
    a("s_lshl_b32 s%d, s%d, 8" % (sT0, sR))
    a("s_lshl_b32 s%d, s%d, 5" % (sT1, sWV))
    a("s_add_u32 s%d, s%d, s%d" % (sT0, sT0, sT1))
    a("s_add_u32 s%d, s%d, %d" % (sT0, sT0, WS_XNT))
    a("s_waitcnt lgkmcnt(0)")
    a.vm("buffer_store_dwordx4 v[20:23], v18, s[%d:%d], s%d offen" % (SWS, SWS + 3, sT0), "xnt")
    st_("xnt")
    a("s_lshl_b32 s%d, s%d, 1" % (sT0, sR))
    a("s_add_u32 s%d, s%d, s%d" % (sT0, sT0, sWR))
    a("s_mul_i32 s%d, s%d, 56" % (sT0, sT0))
    a("s_lshl_b32 s%d, s%d, 2" % (sT1, sF))
    a("s_add_u32 s%d, s%d, s%d" % (sT0, sT0, sT1))
    a("s_add_u32 s%d, s%d, s%d" % (sT0, sT0, sWC))
    a("s_lshl_b32 s%d, s%d, 12" % (sT0, sT0))
    a("v_and_b32 v4, 15, v1")
    a("v_lshlrev_b32 v4, 4, v4")
    a("v_bfe_u32 v5, v1, 4, 1")
    a("v_lshl_add_u32 v4, v5, 10, v4")
    a("v_lshrrev_b32 v5, 5, v1")
    a("v_lshl_add_u32 v4, v5, 8, v4")
    a("v_add_u32 v4, s%d, v4" % sT0)
    B = "op_sel_hi:[1,0,1]"
    for tt in range(2):
        for qp in range(2):
            HP = 24 + 4 * ((2 * tt + qp) & 1)
            for q2 in range(2):
                q = 2 * qp + q2
                for pr in range(2):
                    g = ACC[0][tt] + 4 * q + 2 * pr
                    u = ACC[1][tt] + 4 * q + 2 * pr
                    T = 32 + 2 * ((2 * q2 + pr) & 3)
                    a("v_pk_fma_f32 %s, %s, %s, %s %s" % (vr(g, 2), vr(CS[0] + 4 * q + 2 * pr, 2), vr(NM[tt], 2), vr(g, 2), B))
                    a("v_pk_fma_f32 %s, %s, %s, %s %s" % (vr(u, 2), vr(CS[1] + 4 * q + 2 * pr, 2), vr(NM[tt], 2), vr(u, 2), B))
                    a("v_pk_mul_f32 %s, %s, %s" % (vr(T, 2), vr(g, 2), vr(g, 2)))
                    a("v_pk_fma_f32 %s, %s, %s, %s op_sel_hi:[1,0,0]" % (vr(T, 2), vr(T, 2), vr(K2r[tt], 2), vr(K1r[tt], 2)))
                    a("v_pk_mul_f32 %s, %s, %s" % (vr(T, 2), vr(T, 2), vr(g, 2)))
                    a("v_exp_f32 v%d, v%d" % (T, T)); a("v_exp_f32 v%d, v%d" % (T + 1, T + 1))
                    a("v_pk_mul_f32 %s, %s, %s" % (vr(g, 2), vr(g, 2), vr(u, 2)))
                    a("v_pk_fma_f32 %s, %s, %s, %s op_sel_hi:[1,0,0]" % (vr(T, 2), vr(T, 2), vr(S2[tt], 2), vr(S2[tt], 2)))
                    a("v_rcp_f32 v%d, v%d" % (T, T)); a("v_rcp_f32 v%d, v%d" % (T + 1, T + 1))
                    a("v_pk_mul_f32 %s, %s, %s" % (vr(g, 2), vr(g, 2), vr(T, 2)))
                    a("v_cvt_pk_bf16_f32 v%d, v%d, v%d" % (HP + 2 * q2 + pr, g, g + 1))
            a("v_permlane32_swap_b32 v%d, v%d" % (HP, HP + 2))
            a("v_permlane32_swap_b32 v%d, v%d" % (HP + 1, HP + 3))
            a.vm("buffer_store_dwordx4 %s, v4, s[%d:%d], 0 offen offset:%d" % (vr(HP, 4), SWS, SWS + 3, tt * 2048 + qp * 512), "hst")
    st_("end")
    st_.store(0, sWV, SWS, 150)
    a.label("K1_END")
    a("s_endpgm")
    if STAMP: print("K1 stamps", st_.names)
    return a.finalize(), 160, 163840

def wrap(kernels):
    out = []
    for name, grid, block, lds, body, nv in kernels:
        out.append("; @launch kernel=%s grid=(%d,1,1) block=(%d,1,1) lds=%d" % (name, grid, block, lds))
    out.append('.amdgcn_target "amdgcn-amd-amdhsa--gfx950"')
    out.append(".text")
    for name, grid, block, lds, body, nv in kernels:
        out += [".globl %s" % name, ".p2align 8", ".type %s,@function" % name, "%s:" % name, body]
    out.append('.section .rodata,"a"')
    for name, grid, block, lds, body, nv in kernels:
        out += [".p2align 6", ".amdhsa_kernel %s" % name,
                "  .amdhsa_next_free_vgpr %d" % nv, "  .amdhsa_next_free_sgpr 102", "  .amdhsa_accum_offset %d" % ((nv + 3) // 4 * 4),
                "  .amdhsa_group_segment_fixed_size 0", "  .amdhsa_kernarg_size 128", "  .amdhsa_user_sgpr_count 2",
                "  .amdhsa_user_sgpr_kernarg_segment_ptr 1", "  .amdhsa_system_sgpr_workgroup_id_x 1", ".end_amdhsa_kernel"]
    return "\n".join(out) + "\n"

if __name__ == "__main__":
    ks = []
    import gen1
    b, nv, lds, blk = gen1.gen_k1(); ks.append(("k1_kernel", 256, blk, lds, b, nv))
    try:
        from gen_k2 import gen_k2
        b, nv, lds = gen_k2(); ks.append(("k2_kernel", 224, 512, lds, b, nv))
    except ImportError:
        pass
    open(sys.argv[1] if len(sys.argv) > 1 else "k.s", "w").write(wrap(ks))
```

```python
from asmlib import Asm
from gen import srd, WS_SIZE, WS_DBG
def gen_k3(sel, regions=None):
    a = Asm()
    a("s_cmp_ge_u32 s2, 1"); a("s_cbranch_scc1 K3_END")
    a("s_memrealtime s[20:21]")
    a("s_load_dwordx4 s[4:7], s[0:1], 112")
    a("s_waitcnt lgkmcnt(0)")
    srd(a, 8, 6, WS_SIZE); srd(a, 12, 4, 256)
    a("v_lshlrev_b32 v1, 6, v0")
    a("v_mov_b32 v10, 0"); a("v_mov_b32 v11, -1"); a("v_mov_b32 v12, -1"); a("v_mov_b32 v13, 0"); a("v_mov_b32 v14, -1"); a("v_mov_b32 v15, -1")
    a("v_and_b32 v2, 7, v0"); a("v_cmp_gt_u32 vcc, 4, v2")
    a("s_mov_b64 s[30:31], vcc")
    for reg, koff in ((0, 0), (1, 1 << 19), (2, 1 << 20)):
        if reg == 1: a("s_mov_b64 exec, s[30:31]")
        for i in range(28):
            a("s_mov_b32 s22, %d" % (WS_DBG + koff + i * 4096))
            a("buffer_load_dwordx2 v[4:5], v1, s[8:11], s22 offen sc1")
            a("s_waitcnt vmcnt(0)")
            a("v_sub_u32 v4, s20, v4"); a("v_sub_u32 v5, s20, v5")
            if reg < 2:
                a("v_max_u32 v10, v10, v4"); a("v_min_u32 v11, v11, v4"); a("v_min_u32 v12, v12, v5")
            else:
                a("v_max_u32 v13, v13, v4"); a("v_min_u32 v15, v15, v4"); a("v_min_u32 v14, v14, v5")
        if reg == 1: a("s_mov_b64 exec, -1")
    for r, op in ((10, "max"), (11, "min"), (12, "min"), (13, "max"), (14, "min"), (15, "min")):
        a("v_readlane_b32 s%d, v%d, 0" % (30 + r, r))
        for l in range(1, 64):
            a("v_readlane_b32 s22, v%d, %d" % (r, l))
            a("s_%s_u32 s%d, s%d, s22" % (op, 30 + r, 30 + r))
    a("s_sub_u32 s50, s40, s42")
    a("s_sub_u32 s51, s42, s43")
    a("s_sub_u32 s52, s43, s44")
    a("s_mov_b32 s53, s44")
    a("s_sub_u32 s54, s40, s41")
    a("s_sub_u32 s55, s43, s45")
    a("s_mov_b32 s56, 0")
    a("s_mov_b64 exec, 1")
    a("v_mov_b32 v1, 0")
    for i in range(6):
        a("v_mov_b32 v2, s%d" % (50 + i))
        a("buffer_store_dword v2, v1, s[12:15], 0 offen offset:%d" % (4 * i))
    a("s_waitcnt vmcnt(0)")
    idx = "ABCDEFZ".index(sel)
    a("s_min_u32 s57, s%d, 20000" % (50 + idx))
    a("s_lshl_b32 s57, s57, 2")
    a("s_memrealtime s[24:25]"); a("s_waitcnt lgkmcnt(0)")
    a.label("K3_L")
    a("s_memrealtime s[26:27]"); a("s_waitcnt lgkmcnt(0)")
    a("s_sub_u32 s28, s26, s24")
    a("s_cmp_lt_u32 s28, s57")
    a("s_cbranch_scc1 K3_L")
    a.label("K3_END")
    a("s_endpgm")
    return a.finalize()
```

```python
import math, struct, sys
from asmlib import Asm

NAME = "parallel_sum__ssm_conv_s4__glu_gated_geglu__prompt"
def fbits(x): return "0x%08x" % struct.unpack("<I", struct.pack("<f", x))[0]
LOG2E = math.log2(math.e)

WS_H    = 0
WS_XNT  = 8 << 20
WS_KREV = 12 << 20
WS_KSC  = 16 << 20
WS_YAT  = 20 << 20
WS_SIZE = 32 << 20
KSTRIDE = 4160

def srd(a, d, p, nbytes):
    a("s_mov_b32 s%d, s%d" % (d, p))
    a("s_and_b32 s%d, s%d, 0xffff" % (d + 1, p + 1))
    a("s_mov_b32 s%d, 0x%x" % (d + 2, nbytes))
    a("s_mov_b32 s%d, 0x00020000" % (d + 3))

import os
STAMP = int(os.environ.get("STAMP", "0"))
RT = os.environ.get("RT", "")
WS_DBG = 24 << 20
class Stamps:
    def __init__(self, a): self.a = a; self.n = 0; self.names = []
    def __call__(self, name):
        if not STAMP: return
        if RT and name not in ("start", "end"): return
        assert self.n < 10
        self.a("%s s[%d:%d]" % ("s_memrealtime" if RT else "s_memtime", 80 + 2 * self.n, 81 + 2 * self.n))
        self.a("s_waitcnt lgkmcnt(0)")
        self.n += 1; self.names.append(name)
    def store(self, koff, sWV, SWS, vt=250):
        if not STAMP: return
        a = self.a
        a("s_lshl_b32 s100, s2, 3")
        a("s_add_u32 s100, s100, s%d" % sWV)
        a("s_lshl_b32 s100, s100, 6")
        a("s_add_u32 s100, s100, %d" % (WS_DBG + koff))
        a("s_mov_b64 exec, 1")
        a("v_mov_b32 v%d, s100" % vt)
        for i in range(self.n):
            a("v_mov_b32 v%d, s%d" % (vt + 1, 80 + 2 * i))
            a("buffer_store_dword v%d, v%d, s[%d:%d], 0 offen offset:%d" % (vt + 1, vt, SWS, SWS + 3, 4 * i))
            a("s_waitcnt vmcnt(0)")
        a("s_mov_b64 exec, -1")

def vr(b, n=1): return "v%d" % b if n == 1 else "v[%d:%d]" % (b, b + n - 1)

def gen_k1():
    a = Asm()
    st_ = Stamps(a)
    SLOT = 24576; NS = 6; NST = 14
    EXTRA = NS * SLOT
    L_STAT = EXTRA; L_CS = EXTRA + 4096; L_KEXP = EXTRA + 5120; L_XN = EXTRA + 8192
    L_STG = 3 * SLOT; STG_W = 4352; L_DV = L_STG + 8 * STG_W; DV_CH = 10368
    SX, SWG, SWU, SWS = 40, 44, 48, 52
    sWV, sR, sF, sWR, sWC, sCH, sMQ = 56, 57, 58, 59, 60, 61, 62
    sT0, sT1, sT2, sT3 = 64, 65, 66, 67
    sSC, sINV = 68, 69
    sONES = 70
    sOX, sOW = 72, 73
    sEX = 74

    a("s_cmp_ge_u32 s2, 224")
    a("s_cbranch_scc1 K1_END")
    st_("start")
    a("s_load_dwordx16 s[16:31], s[0:1], 0")
    a("s_load_dwordx4 s[32:35], s[0:1], 80")
    a("s_load_dwordx2 s[36:37], s[0:1], 120")
    a("v_lshrrev_b32 v1, 6, v0")
    a("v_readfirstlane_b32 s%d, v1" % sWV)
    a("v_and_b32 v1, 63, v0")
    a("s_and_b32 s%d, s2, 7" % sT0)
    a("s_lshr_b32 s%d, s2, 3" % sT1)
    a("s_lshr_b32 s%d, s%d, 1" % (sT2, sT0))
    a("s_lshl_b32 s%d, s%d, 2" % (sT2, sT2))
    a("s_and_b32 s%d, s%d, 3" % (sT3, sT1))
    a("s_add_u32 s%d, s%d, s%d" % (sR, sT2, sT3))
    a("s_and_b32 s%d, s%d, 1" % (sT2, sT0))
    a("s_mul_i32 s%d, s%d, 7" % (sT2, sT2))
    a("s_lshr_b32 s%d, s%d, 2" % (sT3, sT1))
    a("s_add_u32 s%d, s%d, s%d" % (sF, sT2, sT3))
    a("s_and_b32 s%d, s%d, 1" % (sWR, sWV))
    a("s_lshr_b32 s%d, s%d, 1" % (sWC, sWV))
    a("s_lshr_b32 s%d, s%d, 2" % (sT0, sWV))
    a("s_lshl_b32 s%d, s2, 1" % sCH)
    a("s_add_u32 s%d, s%d, s%d" % (sCH, sCH, sT0))
    a("s_and_b32 s%d, s%d, 3" % (sMQ, sWV))
    a("s_mov_b32 s%d, 0x3f803f80" % sONES)
    a("s_lshl_b32 s%d, s%d, 8" % (sT0, sCH))
    a("s_lshl_b32 s%d, s%d, 6" % (sT1, sMQ))
    a("s_add_u32 s%d, s%d, s%d" % (sT0, sT0, sT1))
    a("v_add_u32 v16, s%d, v1" % sT0)
    a("v_lshlrev_b32 v16, 1, v16")
    a("s_lshl_b32 s%d, s%d, 1" % (sT1, sCH))
    a("v_mov_b32 v17, s%d" % sT1)
    a("v_lshrrev_b32 v2, 2, v1")
    a("s_lshl_b32 s%d, s%d, 7" % (sT0, sR))
    a("s_lshl_b32 s%d, s%d, 4" % (sT1, sWV))
    a("s_add_u32 s%d, s%d, s%d" % (sT0, sT0, sT1))
    a("v_add_u32 v2, s%d, v2" % sT0)
    a("v_mul_u32_u24 v2, 896, v2")
    a("v_lshrrev_b32 v3, 4, v1")
    a("v_xor_b32 v4, v1, v3")
    a("v_and_b32 v4, 3, v4")
    a("v_lshl_add_u32 v2, v4, 4, v2")
    a("s_lshl_b32 s%d, s%d, 2" % (sT0, sWV))
    a("v_add_u32 v5, s%d, v3" % sT0)
    a("s_movk_i32 s%d, 3584" % sT1)
    a("v_mul_lo_u32 v5, v5, s%d" % sT1)
    a("v_lshlrev_b32 v6, 2, v3")
    a("v_xor_b32 v6, v1, v6")
    a("v_and_b32 v6, 15, v6")
    a("v_lshl_add_u32 v5, v6, 4, v5")
    a("s_lshl_b32 s%d, s%d, 8" % (sT0, sF))
    a("v_add_u32 v3, s%d, v5" % sT0)
    a("s_waitcnt lgkmcnt(0)")
    srd(a, SX, 16, 2048 * 896)
    srd(a, SWG, 32, 448 * 3584)
    srd(a, SWU, 34, 448 * 3584)
    srd(a, SWS, 36, WS_SIZE)
    for i in range(6):
        a.vm("global_load_ushort v%d, v16, s[%d:%d]" % (20 + i, 18 + 2 * i, 19 + 2 * i), "param")
    a.vm("global_load_ushort v26, v17, s[30:31]", "param")

    def dma_stage(st):
        slot = st % NS
        a("s_mov_b32 s%d, %d" % (sOX, st * 64))
        a("s_mov_b32 s%d, %d" % (sOW, st * 32 * 3584))
        a("s_lshl_b32 s%d, s%d, 10" % (sT3, sWV))
        a("s_add_u32 m0, s%d, %d" % (sT3, slot * SLOT))
        a.vm("buffer_load_dwordx4 v2, s[%d:%d], s%d offen lds" % (SX, SX + 3, sOX), ("st", st))
        a("s_add_u32 m0, s%d, %d" % (sT3, slot * SLOT + 8192))
        a.vm("buffer_load_dwordx4 v3, s[%d:%d], s%d offen lds" % (SWG, SWG + 3, sOW), ("st", st))
        a("s_add_u32 m0, s%d, %d" % (sT3, slot * SLOT + 16384))
        a.vm("buffer_load_dwordx4 v3, s[%d:%d], s%d offen lds" % (SWU, SWU + 3, sOW), ("st", st))
    for st in range(3): dma_stage(st)

    a("v_lshlrev_b32 v4, 2, v0")
    a("v_add_u32 v4, %d, v4" % L_CS)
    a("v_mov_b32 v5, 0")
    a("s_cmp_ge_u32 s%d, 4" % sWV)
    a("s_cbranch_scc1 K1_NOZ")
    a.begin_opt()
    a("ds_write_b32 v4, v5")
    a.end_opt()
    a.label("K1_NOZ")

    a.wait_vm("param")
    st_("param")
    Are, Aim, Bre, Bim, Cre, Cim, Ldt = 20, 21, 22, 23, 24, 25, 26
    for r in range(20, 27): a("v_lshlrev_b32 v%d, 16, v%d" % (r, r))
    a("v_mul_f32 v26, %s, v26" % fbits(LOG2E))
    a("v_exp_f32 v26, v26")
    a("v_cvt_pk_bf16_f32 v26, v26, v26")
    a("v_lshlrev_b32 v26, 16, v26")
    a("v_mul_f32 v20, v26, v20")
    a("v_mul_f32 v21, v26, v21")
    a("v_mul_f32 v22, v26, v22")
    a("v_mul_f32 v23, v26, v23")
    X0 = 28
    a("v_mul_f32 v28, v24, v22")
    a("v_fma_f32 v28, -v25, v23, v28")
    a("v_mul_f32 v29, v24, v23")
    a("v_fma_f32 v29, v25, v22, v29")
    a("v_max_f32 v27, abs(v28), abs(v29)")
    for sh in (1, 2, 4, 8):
        a("v_max_f32_dpp v27, v27, v27 row_shr:%d row_mask:0xf bank_mask:0xf" % sh)
    a("v_max_f32_dpp v27, v27, v27 row_bcast:15 row_mask:0xa bank_mask:0xf")
    a("v_max_f32_dpp v27, v27, v27 row_bcast:31 row_mask:0xc bank_mask:0xf")
    a("v_readlane_b32 s%d, v27, 63" % sT0)
    a("s_lshr_b32 s%d, s%d, 23" % (sT0, sT0))
    a("s_sub_u32 s%d, 254, s%d" % (sSC, sT0))
    a("s_lshl_b32 s%d, s%d, 23" % (sSC, sSC))
    a("s_lshl_b32 s%d, s%d, 23" % (sINV, sT0))
    a("v_mov_b32 v4, s%d" % sT0)
    a("s_lshl_b32 s%d, s%d, 2" % (sT1, sWV))
    a("s_add_u32 s%d, s%d, %d" % (sT1, sT1, L_KEXP))
    a("v_mov_b32 v5, s%d" % sT1)
    a("ds_write_b32 v5, v4")
    a("v_mul_f32 v28, s%d, v28" % sSC)
    a("v_mul_f32 v29, s%d, v29" % sSC)
    def cexp(d, L):
        a("v_mul_f32 v22, %s, v20" % fbits(L * LOG2E))
        a("v_mul_f32 v23, %s, v21" % fbits(L / (2 * math.pi)))
        a("v_exp_f32 v22, v22")
        a("v_fract_f32 v23, v23")
        a("v_cos_f32 v%d, v23" % d)
        a("v_sin_f32 v%d, v23" % (d + 1))
        a("v_mul_f32 v%d, v22, v%d" % (d, d))
        a("v_mul_f32 v%d, v22, v%d" % (d + 1, d + 1))
    E1, E8, E256, E2, E4, E16 = 30, 32, 34, 36, 38, 40
    TA, TB = 42, 44
    tmpi = [0]
    def cmul(d, x, y):
        t = (TA, TB)[tmpi[0] & 1]; tmpi[0] += 1
        a("v_pk_mul_f32 %s, %s, %s op_sel_hi:[1,0]" % (vr(t, 2), vr(x, 2), vr(y, 2)))
        a("v_pk_fma_f32 %s, %s, %s, %s op_sel:[1,1,0] op_sel_hi:[0,1,1] neg_lo:[1,0,0]" % (vr(d, 2), vr(x, 2), vr(y, 2), vr(t, 2)))
    cexp(E8, 8); cexp(E1, 1); cexp(E256, 256)
    cmul(E16, E8, E8); cmul(E2, E1, E1); cmul(E4, E2, E2)
    a("s_mul_i32 s%d, s%d, %d" % (sT0, sWV, STG_W))
    a("s_add_u32 s%d, s%d, %d" % (sT0, sT0, L_STG))
    a("v_lshl_add_u32 v4, v1, 2, s%d" % sT0)
    a("v_and_b32 v5, 15, v1")
    a("v_mul_u32_u24 v5, 272, v5")
    a("v_lshrrev_b32 v6, 4, v1")
    a("v_lshl_add_u32 v5, v6, 4, v5")
    a("v_add_u32 v5, s%d, v5" % sT0)
    PK = [46, 47, 48, 49]; pki = [0]
    def put(row, r, negim=False):
        p = PK[pki[0] & 3]; pki[0] += 1
        a("v_cvt_pk_f16_f32 v%d, v%d, %sv%d" % (p, r, "-" if negim else "", r + 1))
        a("ds_write_b32 v4, v%d offset:%d" % (p, row * 272))
    YF = [64, 80]; XF = [96, 112]
    def getfr(base):
        for ks in range(4):
            a("ds_read_b128 %s, v5 offset:%d" % (vr(base + 4 * ks, 4), ks * 64))
    Ya, Yb = 50, 52
    a("v_mov_b32 v50, 1.0"); a("v_mov_b32 v51, 0")
    a("v_mov_b32 v52, v%d" % E8); a("v_mov_b32 v53, v%d" % (E8 + 1))
    for j in range(0, 32, 2):
        put(j & 15, Ya); put((j + 1) & 15, Yb)
        if j + 2 < 32:
            cmul(Ya, Ya, E16); cmul(Yb, Yb, E16)
        if j == 14: getfr(YF[0])
    getfr(YF[1])
    Xa, Xb, Xc = 54, 56, 58
    put(0, X0, True)
    cmul(Xa, X0, E1); cmul(Xb, X0, E256)
    put(1, Xa, True); put(8, Xb, True)
    cmul(Xc, Xb, E2)
    for r in range(2, 8):
        cmul(Xa, Xa, E1); put(r, Xa, True)
        if r <= 4:
            put(9 + (r - 2), Xc, True)
            if r < 4: cmul(Xc, Xc, E2)
    cmul(Xb, Xb, E256); put(12, Xb, True)
    cmul(Xc, Xb, E4); put(13, Xc, True)
    cmul(Xb, Xb, E256); put(14, Xb, True)
    cmul(Xc, Xb, E4); put(15, Xc, True)
    getfr(XF[0])
    for r in range(5):
        cmul(Xb, Xb, E256); put(r, Xb, True)
    getfr(XF[1])
    D = [[128, 132], [136, 140]]
    for xt in range(2):
        for yt in range(2):
            for r in range(4): a("v_mov_b32 v%d, 0" % (D[xt][yt] + r))
    a("s_waitcnt lgkmcnt(0)")
    for ks in range(4):
        for xt in range(2):
            for yt in range(2):
                a("v_mfma_f32_16x16x32_f16 %s, %s, %s, %s" % (vr(D[xt][yt], 4), vr(XF[xt] + 4 * ks, 4), vr(YF[yt] + 4 * ks, 4), vr(D[xt][yt], 4)))
    a("v_and_b32 v7, 15, v1")
    a("v_cmp_eq_u32 vcc, 2, v6")
    a("v_mov_b32 v8, 8"); a("v_lshlrev_b32 v9, 2, v6")
    a("v_mov_b32 v10, 2")
    a("v_mov_b32 v11, 256")
    a("v_cndmask_b32 v8, v8, 4, vcc")
    a("v_cndmask_b32 v9, v9, v11, vcc")
    a("v_cmp_eq_u32 vcc, 3, v6")
    a("v_mov_b32 v11, 384"); a("v_mov_b32 v12, 64")
    a("v_cndmask_b32 v8, v8, 2, vcc")
    a("v_cndmask_b32 v9, v9, v11, vcc")
    a("v_cndmask_b32 v10, v10, v12, vcc")
    a("v_mad_u32_u24 v9, v8, v7, v9")
    a("s_lshr_b32 s%d, s%d, 2" % (sT0, sWV))
    a("s_mul_i32 s%d, s%d, %d" % (sT0, sT0, DV_CH))
    a("s_add_u32 s%d, s%d, %d" % (sT2, sT0, L_DV))
    a("s_lshl_b32 s%d, s%d, 2" % (sT1, sMQ))
    a("s_add_u32 s%d, s%d, s%d" % (sT0, sT2, sT1))
    a("v_lshl_add_u32 v9, v9, 4, s%d" % sT0)
    a("v_lshl_add_u32 v10, v10, 4, v9")
    a("v_lshl_add_u32 v11, v8, 8, v9")
    a("v_lshl_add_u32 v12, v8, 8, v10")
    a("v_lshl_add_u32 v13, v7, 4, s%d" % sT0)
    for xt in range(2):
        for yt in range(2):
            for r in range(4): a("v_mul_f32 v%d, s%d, v%d" % (D[xt][yt] + r, sINV, D[xt][yt] + r))
    for yt in range(2):
        for r in range(4):
            a("ds_write_b32 v%d, v%d offset:%d" % ((9, 10, 11, 12)[2 * yt + (r >> 1)], D[0][yt] + r, (r & 1) * 16))
    a("s_mov_b64 exec, 0xffff")
    for yt in range(2):
        for r in range(4):
            a("ds_write_b32 v13, v%d offset:%d" % (D[1][yt] + r, (512 + 32 * r + 16 * yt) * 16))
    a("s_mov_b32 exec_lo, 0x10000")
    a("ds_write_b32 v13, v%d offset:%d" % (D[1][0], 640 * 16))
    a("s_mov_b64 exec, -1")
    a("s_waitcnt lgkmcnt(0)")
    st_("kgen_mfma")
    a("s_barrier")
    a("s_lshr_b32 s%d, s%d, 2" % (sT0, sWV))
    a("s_lshl_b32 s%d, s%d, 4" % (sT0, sT0))
    a("s_add_u32 s%d, s%d, %d" % (sT0, sT0, L_KEXP))
    a("v_mov_b32 v4, s%d" % sT0)
    a("ds_read_b128 v[8:11], v4")
    a("s_lshl_b32 s%d, s%d, 6" % (sT0, sMQ))
    a("v_add_u32 v4, s%d, v1" % sT0)
    a("v_lshlrev_b32 v5, 3, v4")
    a("v_cmp_gt_u32 vcc, 32, v4")
    for e in range(8):
        a("v_add_u32 v6, %d, v5" % e)
        a("v_cvt_f32_u32 v7, v6")
        a("v_cvt_pk_bf16_f32 v7, v7, v7")
        a("v_and_b32 v7, 0xffff, v7")
        a("v_subrev_u32 v7, 0x4280, v7")
        a("v_cndmask_b32 v7, v7, v6, vcc")
        a("v_lshl_add_u32 v7, v7, 4, s%d" % sT2)
        a("ds_read_b128 %s, v7" % vr(64 + 4 * e, 4))
    a("s_waitcnt lgkmcnt(8)")
    a("v_max_u32 v8, v8, v9"); a("v_max_u32 v10, v10, v11"); a("v_max_u32 v8, v8, v10")
    a("v_sub_u32 v9, 254, v8"); a("v_lshlrev_b32 v9, 23, v9")
    a("v_lshlrev_b32 v10, 23, v8")
    a("s_waitcnt lgkmcnt(0)")
    for e in range(8):
        b = 64 + 4 * e
        a("v_add_f32 v%d, v%d, v%d" % (b, b, b + 1))
        a("v_add_f32 v%d, v%d, v%d" % (b + 2, b + 2, b + 3))
        a("v_add_f32 v%d, v%d, v%d" % (b, b, b + 2))
        a("v_mul_f32 v%d, v9, v%d" % (b, b))
    for i in range(4):
        a("v_cvt_pk_f16_f32 v%d, v%d, v%d" % (12 + i, 64 + 4 * (7 - 2 * i), 64 + 4 * (6 - 2 * i)))
    a("s_mul_i32 s%d, s%d, %d" % (sT0, sCH, KSTRIDE))
    a("s_add_u32 s%d, s%d, %d" % (sT0, sT0, WS_KREV + 4080))
    a("v_lshlrev_b32 v5, 4, v4")
    a("v_sub_u32 v5, s%d, v5" % sT0)
    a.vm("buffer_store_dwordx4 v[12:15], v5, s[%d:%d], 0 offen" % (SWS, SWS + 3), "kst")
    a("s_cmp_lg_u32 s%d, 0" % sMQ)
    a("s_cbranch_scc1 K1_NOPAD")
    a.begin_opt()
    a("v_mov_b32 v16, 0"); a("v_mov_b32 v17, 0"); a("v_mov_b32 v18, 0"); a("v_mov_b32 v19, 0")
    a("s_add_u32 s%d, s%d, 16" % (sT0, sT0))
    a("v_lshl_add_u32 v6, v1, 4, s%d" % sT0)
    a("s_lshl_b32 s%d, s%d, 2" % (sT1, sCH))
    a("s_add_u32 s%d, s%d, %d" % (sT1, sT1, WS_KSC))
    a("v_mov_b32 v7, s%d" % sT1)
    a("s_mov_b64 exec, 0xf")
    a("buffer_store_dwordx4 v[16:19], v6, s[%d:%d], 0 offen" % (SWS, SWS + 3))
    a("s_mov_b64 exec, 1")
    a("buffer_store_dword v10, v7, s[%d:%d], 0 offen" % (SWS, SWS + 3))
    a("s_mov_b64 exec, -1")
    a("s_waitcnt vmcnt(0)")
    a.end_opt()
    a.label("K1_NOPAD")
    st_("gather")
    a("s_barrier")
    dma_stage(3); dma_stage(4)

    a("v_and_b32 v4, 31, v1")
    a("s_lshl_b32 s%d, s%d, 6" % (sT0, sWR))
    a("v_add_u32 v4, s%d, v4" % sT0)
    a("v_lshlrev_b32 v4, 6, v4")
    a("v_lshrrev_b32 v5, 5, v1")
    a("v_lshrrev_b32 v6, 2, v1")
    a("v_and_b32 v6, 3, v6")
    a("v_xor_b32 v7, v5, v6")
    a("v_lshl_add_u32 v4, v7, 4, v4")
    a("v_xor_b32 v5, 32, v4")
    a("v_lshrrev_b32 v7, 5, v1")
    a("v_lshl_add_u32 v7, v7, 3, v6")
    a("v_lshlrev_b32 v8, 8, v7")
    a("v_bfe_u32 v9, v1, 4, 1")
    a("v_lshlrev_b32 v9, 1, v9")
    a("v_bfe_u32 v10, v1, 1, 1")
    a("v_add_u32 v9, v9, v10")
    a("s_lshl_b32 s%d, s%d, 2" % (sT0, sWC))
    a("v_add_u32 v9, s%d, v9" % sT0)
    a("v_lshlrev_b32 v10, 2, v6")
    a("v_xor_b32 v9, v9, v10")
    a("v_lshl_add_u32 v8, v9, 4, v8")
    a("v_and_b32 v10, 1, v1")
    a("v_lshl_add_u32 v8, v10, 3, v8")
    a("v_add_u32 v8, 8192, v8")
    a("v_add_u32 v6, %d, v4" % (3 * SLOT))
    a("v_add_u32 v7, %d, v5" % (3 * SLOT))
    a("v_add_u32 v9, %d, v8" % (3 * SLOT))
    ACC = [[64, 80], [96, 112]]
    for r in range(64, 128): a("v_mov_b32 v%d, 0" % r)
    XS1, XS2, WCS = [10, 11], [12, 13], [14, 15]
    for r in range(10, 16): a("v_mov_b32 v%d, 0" % r)
    FR = [128, 144]
    def rd_frags(st, kk, fb):
        slot = st % NS
        hi = slot >= 3
        so = (slot - 3 * hi) * SLOT
        xa = ((4, 5), (6, 7))[hi][kk]; wa = (8, 9)[hi]
        for tt in range(2):
            a("ds_read_b128 %s, v%d offset:%d" % (vr(fb + 4 * tt, 4), xa, so + tt * 2048))
        for mat in range(2):
            for half in range(2):
                a("ds_read_b64_tr_b16 %s, v%d offset:%d" % (vr(fb + 8 + 4 * mat + 2 * half, 2), wa, so + mat * 8192 + kk * 4096 + half * 1024))
    lab = [0]
    def compute(i, fb):
        for mat in range(2):
            for tt in range(2):
                a("v_mfma_f32_32x32x16_bf16 %s, %s, %s, %s" % (vr(ACC[mat][tt], 16), vr(fb + 8 + 4 * mat, 4), vr(fb + 4 * tt, 4), vr(ACC[mat][tt], 16)))
        lab[0] += 1
        a("s_cmp_lg_u32 s%d, %d" % (sWC, i & 3))
        a("s_cbranch_scc1 K1_SX%d" % lab[0])
        a.begin_opt()
        for tt in range(2):
            for r in range(4):
                a("v_dot2_f32_bf16 v%d, v%d, s%d, v%d" % (XS1[tt], fb + 4 * tt + r, sONES, XS1[tt]))
                a("v_dot2_f32_bf16 v%d, v%d, v%d, v%d" % (XS2[tt], fb + 4 * tt + r, fb + 4 * tt + r, XS2[tt]))
        a.end_opt()
        a.label("K1_SX%d" % lab[0])
        a("s_cmp_lg_u32 s%d, %d" % (sWR, i & 1))
        a("s_cbranch_scc1 K1_SW%d" % lab[0])
        a.begin_opt()
        for r in range(4):
            for mat in range(2):
                a("v_dot2_f32_bf16 v%d, v%d, s%d, v%d" % (WCS[mat], fb + 8 + 4 * mat + r, sONES, WCS[mat]))
        a.end_opt()
        a.label("K1_SW%d" % lab[0])
    for st in range(NST):
        a.wait_vm(("st", st))
        a("s_barrier")
        if st in (0, 5, 10): st_("st%d" % st)
        if st + 5 < NST: dma_stage(st + 5)
        if st == NST - 3:
            a("v_lshrrev_b32 v16, 2, v0")
            a("s_lshl_b32 s%d, s%d, 7" % (sT0, sR))
            a("v_add_u32 v16, s%d, v16" % sT0)
            a("v_mul_u32_u24 v16, 896, v16")
            a("v_and_b32 v17, 3, v0")
            a("v_lshl_add_u32 v16, v17, 4, v16")
            a("s_lshl_b32 s%d, s%d, 6" % (sT0, sF))
            a.vm("buffer_load_dwordx4 v[20:23], v16, s[%d:%d], s%d offen" % (SX, SX + 3, sT0), "xre")
        rd_frags(st, 0, FR[0])
        rd_frags(st, 1, FR[1])
        a("s_waitcnt lgkmcnt(6)")
        compute(2 * st, FR[0])
        a("s_waitcnt lgkmcnt(0)")
        compute(2 * st + 1, FR[1])

    st_("loopend")
    def halfsum(r, t):
        a("v_mov_b32 v%d, v%d" % (t, r))
        a("v_permlane32_swap_b32 v%d, v%d" % (r, t))
        a("v_add_f32 v%d, v%d, v%d" % (r, r, t))
    for r in range(10, 16): halfsum(r, 16)
    a("v_and_b32 v4, 31, v1")
    a("s_lshl_b32 s%d, s%d, 6" % (sT0, sWR))
    a("v_add_u32 v4, s%d, v4" % sT0)
    a("v_lshlrev_b32 v5, 4, v4")
    a("v_add_u32 v5, %d, v5" % L_STAT)
    a("s_lshl_b32 s%d, s%d, 2" % (sT0, sWC))
    a("v_add_u32 v6, s%d, v5" % sT0)
    for tt in range(2):
        a("ds_write_b32 v6, v%d offset:%d" % (XS1[tt], tt * 512))
        a("ds_write_b32 v6, v%d offset:%d" % (XS2[tt], 2048 + tt * 512))
    a("v_and_b32 v7, 31, v1")
    a("s_lshl_b32 s%d, s%d, 5" % (sT0, sWC))
    a("v_add_u32 v7, s%d, v7" % sT0)
    a("v_lshlrev_b32 v7, 2, v7")
    a("v_add_u32 v7, %d, v7" % L_CS)
    a("s_mov_b64 exec, 0xffffffff")
    a("ds_add_f32 v7, v14")
    a("ds_add_f32 v7, v15 offset:512")
    a("s_mov_b64 exec, -1")
    a("s_waitcnt lgkmcnt(0)")
    a("s_barrier")
    def stats(p1, p2, M, S):
        a("v_add_f32 v%d, v%d, v%d" % (p1, p1, p1 + 1)); a("v_add_f32 v%d, v%d, v%d" % (p1 + 2, p1 + 2, p1 + 3))
        a("v_add_f32 v%d, v%d, v%d" % (p2, p2, p2 + 1)); a("v_add_f32 v%d, v%d, v%d" % (p2 + 2, p2 + 2, p2 + 3))
        a("v_add_f32 v%d, v%d, v%d" % (p1, p1, p1 + 2)); a("v_add_f32 v%d, v%d, v%d" % (p2, p2, p2 + 2))
        a("v_mul_f32 v%d, %s, v%d" % (p1, fbits(1.0 / 448), p1))
        a("v_mul_f32 v%d, %s, v%d" % (p2, fbits(1.0 / 448), p2))
        a("v_fma_f32 v%d, -v%d, v%d, v%d" % (p2, p1, p1, p2))
        a("v_max_f32 v%d, 0, v%d" % (p2, p2))
        a("v_cvt_pk_bf16_f32 v%d, v%d, v%d" % (p1, p1, p2))
        a("v_lshlrev_b32 v%d, 16, v%d" % (M, p1))
        a("v_and_b32 v%d, 0xffff0000, v%d" % (p2, p1))
        a("v_add_f32 v%d, %s, v%d" % (p2, fbits(1e-5), p2))
        a("v_cvt_pk_bf16_f32 v%d, v%d, v%d" % (p2, p2, p2))
        a("v_lshlrev_b32 v%d, 16, v%d" % (p2, p2))
        a("v_sqrt_f32 v%d, v%d" % (p2, p2))
        a("v_cvt_pk_bf16_f32 v%d, v%d, v%d" % (p2, p2, p2))
        a("v_lshlrev_b32 v%d, 16, v%d" % (S, p2))
    a("ds_read_b128 v[24:27], v5"); a("ds_read_b128 v[28:31], v5 offset:2048")
    a("ds_read_b128 v[32:35], v5 offset:512"); a("ds_read_b128 v[36:39], v5 offset:2560")
    a("v_lshrrev_b32 v6, 2, v0")
    a("v_lshlrev_b32 v6, 4, v6")
    a("v_add_u32 v6, %d, v6" % L_STAT)
    a("ds_read_b128 v[40:43], v6"); a("ds_read_b128 v[44:47], v6 offset:2048")
    a("v_lshrrev_b32 v7, 5, v1")
    a("v_lshlrev_b32 v7, 4, v7")
    a("s_lshl_b32 s%d, s%d, 7" % (sT0, sWC))
    a("s_add_u32 s%d, s%d, %d" % (sT0, sT0, L_CS))
    a("v_add_u32 v7, s%d, v7" % sT0)
    CS = [128, 144]
    for mat in range(2):
        for q in range(4):
            a("ds_read_b128 %s, v7 offset:%d" % (vr(CS[mat] + 4 * q, 4), mat * 512 + q * 32))
    a("s_waitcnt lgkmcnt(8)")
    NM = [48, 50]; K1r = [52, 54]; K2r = [56, 58]; S2 = [60, 62]
    for tt in range(2):
        p1, p2 = (24, 28) if tt == 0 else (32, 36)
        stats(p1, p2, NM[tt], S2[tt])
        a("v_rcp_f32 v%d, v%d" % (p1, S2[tt]))
        a("v_sub_f32 v%d, 0, v%d" % (NM[tt], NM[tt]))
        a("v_mul_f32 v%d, v%d, v%d" % (S2[tt], S2[tt], S2[tt]))
        c = math.sqrt(2 / math.pi)
        k1 = -2 * c * LOG2E; k2 = k1 * 0.044715
        a("v_mul_f32 v%d, %s, v%d" % (K1r[tt], fbits(k1), p1))
        a("v_mul_f32 v%d, v%d, v%d" % (p1 + 1, p1, p1))
        a("v_mul_f32 v%d, v%d, v%d" % (p1 + 1, p1 + 1, p1))
        a("v_mul_f32 v%d, %s, v%d" % (K2r[tt], fbits(k2), p1 + 1))
    stats(40, 44, 16, 17)
    a("v_rcp_f32 v17, v17")
    a.wait_vm("xre")
    for i in range(4):
        a("v_lshlrev_b32 v24, 16, v%d" % (20 + i))
        a("v_and_b32 v25, 0xffff0000, v%d" % (20 + i))
        a("v_sub_f32 v24, v24, v16"); a("v_sub_f32 v25, v25, v16")
        a("v_cvt_pk_bf16_f32 v24, v24, v25")
        a("v_and_b32 v25, 0xffff0000, v24"); a("v_lshlrev_b32 v24, 16, v24")
        a("v_mul_f32 v24, v24, v17"); a("v_mul_f32 v25, v25, v17")
        a("v_cvt_pk_bf16_f32 v24, v24, v25")
        a("v_and_b32 v25, 0xffff0000, v24"); a("v_lshlrev_b32 v24, 16, v24")
        a("v_cvt_pk_f16_f32 v%d, v24, v25" % (20 + i))
    a("v_lshlrev_b32 v6, 4, v0")
    a("v_add_u32 v6, %d, v6" % L_XN)
    a("ds_write_b128 v6, v[20:23]")
    a("v_bfe_u32 v6, v1, 5, 1")
    a("v_lshlrev_b32 v6, 3, v6")
    a("v_bfe_u32 v7, v1, 2, 2")
    a("v_add_u32 v6, v6, v7")
    a("s_lshl_b32 s%d, s%d, 4" % (sT0, sWV))
    a("v_add_u32 v6, s%d, v6" % sT0)
    a("v_lshlrev_b32 v6, 6, v6")
    a("v_bfe_u32 v7, v1, 4, 1")
    a("v_lshl_add_u32 v6, v7, 5, v6")
    a("v_and_b32 v18, 3, v1")
    a("v_lshl_add_u32 v6, v18, 3, v6")
    a("v_add_u32 v6, %d, v6" % L_XN)
    a("s_waitcnt lgkmcnt(0)")
    a("ds_read_b64_tr_b16 v[20:21], v6")
    a("ds_read_b64_tr_b16 v[22:23], v6 offset:256")
    a("v_and_b32 v18, 31, v1")
    a("s_lshl_b32 s%d, s%d, 5" % (sT0, sF))
    a("v_add_u32 v18, s%d, v18" % sT0)
    a("v_lshlrev_b32 v18, 12, v18")
    a("v_bfe_u32 v19, v1, 5, 1")
    a("v_lshl_add_u32 v18, v19, 4, v18")
    a("s_lshl_b32 s%d, s%d, 8" % (sT0, sR))
    a("s_lshl_b32 s%d, s%d, 5" % (sT1, sWV))
    a("s_add_u32 s%d, s%d, s%d" % (sT0, sT0, sT1))
    a("s_add_u32 s%d, s%d, %d" % (sT0, sT0, WS_XNT))
    a("s_waitcnt lgkmcnt(0)")
    a.vm("buffer_store_dwordx4 v[20:23], v18, s[%d:%d], s%d offen" % (SWS, SWS + 3, sT0), "xnt")
    st_("xnt")
    a("s_lshl_b32 s%d, s%d, 1" % (sT0, sR))
    a("s_add_u32 s%d, s%d, s%d" % (sT0, sT0, sWR))
    a("s_mul_i32 s%d, s%d, 56" % (sT0, sT0))
    a("s_lshl_b32 s%d, s%d, 2" % (sT1, sF))
    a("s_add_u32 s%d, s%d, s%d" % (sT0, sT0, sT1))
    a("s_add_u32 s%d, s%d, s%d" % (sT0, sT0, sWC))
    a("s_lshl_b32 s%d, s%d, 12" % (sT0, sT0))
    a("v_and_b32 v4, 15, v1")
    a("v_lshlrev_b32 v4, 4, v4")
    a("v_bfe_u32 v5, v1, 4, 1")
    a("v_lshl_add_u32 v4, v5, 10, v4")
    a("v_lshrrev_b32 v5, 5, v1")
    a("v_lshl_add_u32 v4, v5, 8, v4")
    a("v_add_u32 v4, s%d, v4" % sT0)
    B = "op_sel_hi:[1,0,1]"
    for tt in range(2):
        for qp in range(2):
            HP = 24 + 4 * ((2 * tt + qp) & 1)
            for q2 in range(2):
                q = 2 * qp + q2
                for pr in range(2):
                    g = ACC[0][tt] + 4 * q + 2 * pr
                    u = ACC[1][tt] + 4 * q + 2 * pr
                    T = 32 + 2 * ((2 * q2 + pr) & 3)
                    a("v_pk_fma_f32 %s, %s, %s, %s %s" % (vr(g, 2), vr(CS[0] + 4 * q + 2 * pr, 2), vr(NM[tt], 2), vr(g, 2), B))
                    a("v_pk_fma_f32 %s, %s, %s, %s %s" % (vr(u, 2), vr(CS[1] + 4 * q + 2 * pr, 2), vr(NM[tt], 2), vr(u, 2), B))
                    a("v_pk_mul_f32 %s, %s, %s" % (vr(T, 2), vr(g, 2), vr(g, 2)))
                    a("v_pk_fma_f32 %s, %s, %s, %s op_sel_hi:[1,0,0]" % (vr(T, 2), vr(T, 2), vr(K2r[tt], 2), vr(K1r[tt], 2)))
                    a("v_pk_mul_f32 %s, %s, %s" % (vr(T, 2), vr(T, 2), vr(g, 2)))
                    a("v_exp_f32 v%d, v%d" % (T, T)); a("v_exp_f32 v%d, v%d" % (T + 1, T + 1))
                    a("v_pk_mul_f32 %s, %s, %s" % (vr(g, 2), vr(g, 2), vr(u, 2)))
                    a("v_pk_fma_f32 %s, %s, %s, %s op_sel_hi:[1,0,0]" % (vr(T, 2), vr(T, 2), vr(S2[tt], 2), vr(S2[tt], 2)))
                    a("v_rcp_f32 v%d, v%d" % (T, T)); a("v_rcp_f32 v%d, v%d" % (T + 1, T + 1))
                    a("v_pk_mul_f32 %s, %s, %s" % (vr(g, 2), vr(g, 2), vr(T, 2)))
                    a("v_cvt_pk_bf16_f32 v%d, v%d, v%d" % (HP + 2 * q2 + pr, g, g + 1))
            a("v_permlane32_swap_b32 v%d, v%d" % (HP, HP + 2))
            a("v_permlane32_swap_b32 v%d, v%d" % (HP + 1, HP + 3))
            a.vm("buffer_store_dwordx4 %s, v4, s[%d:%d], 0 offen offset:%d" % (vr(HP, 4), SWS, SWS + 3, tt * 2048 + qp * 512), "hst")
    st_("end")
    st_.store(0, sWV, SWS, 150)
    a.label("K1_END")
    a("s_endpgm")
    if STAMP: print("K1 stamps", st_.names)
    return a.finalize(), 160, 163840

def wrap(kernels):
    out = []
    for name, grid, block, lds, body, nv in kernels:
        out.append("; @launch kernel=%s grid=(%d,1,1) block=(%d,1,1) lds=%d" % (name, grid, block, lds))
    out.append('.amdgcn_target "amdgcn-amd-amdhsa--gfx950"')
    out.append(".text")
    for name, grid, block, lds, body, nv in kernels:
        out += [".globl %s" % name, ".p2align 8", ".type %s,@function" % name, "%s:" % name, body]
    out.append('.section .rodata,"a"')
    for name, grid, block, lds, body, nv in kernels:
        out += [".p2align 6", ".amdhsa_kernel %s" % name,
                "  .amdhsa_next_free_vgpr %d" % nv, "  .amdhsa_next_free_sgpr 102", "  .amdhsa_accum_offset %d" % ((nv + 3) // 4 * 4),
                "  .amdhsa_group_segment_fixed_size 0", "  .amdhsa_kernarg_size 128", "  .amdhsa_user_sgpr_count 2",
                "  .amdhsa_user_sgpr_kernarg_segment_ptr 1", "  .amdhsa_system_sgpr_workgroup_id_x 1", ".end_amdhsa_kernel"]
    return "\n".join(out) + "\n"

if __name__ == "__main__":
    ks = []
    import gen1
    b, nv, lds, blk = gen1.gen_k1(); ks.append(("k1_kernel", 256, blk, lds, b, nv))
    try:
        from gen_k2 import gen_k2
        b, nv, lds = gen_k2(); ks.append(("k2_kernel", 224, 512, lds, b, nv))
    except ImportError:
        pass
    if RT:
        import gen_k3
        ks.append(("k3_kernel", 1, 64, 0, gen_k3.gen_k3(RT), 64))
    open(sys.argv[1] if len(sys.argv) > 1 else "k.s", "w").write(wrap(ks))
```

```python
from asmlib import Asm
from gen import srd, WS_SIZE, WS_DBG
def gen_k3(sel, regions=None):
    a = Asm()
    a("s_cmp_ge_u32 s2, 1"); a("s_cbranch_scc1 K3_END")
    a("s_memrealtime s[20:21]")
    a("s_load_dwordx4 s[4:7], s[0:1], 112")
    a("s_waitcnt lgkmcnt(0)")
    srd(a, 8, 6, WS_SIZE); srd(a, 12, 4, 256)
    a("v_lshlrev_b32 v1, 6, v0")
    a("v_mov_b32 v10, 0"); a("v_mov_b32 v11, -1"); a("v_mov_b32 v12, -1"); a("v_mov_b32 v13, 0"); a("v_mov_b32 v14, -1"); a("v_mov_b32 v15, -1")
    a("v_mov_b32 v16, 0"); a("v_and_b32 v2, 7, v0"); a("v_cmp_gt_u32 vcc, 4, v2")
    a("s_mov_b64 s[30:31], vcc")
    for reg, koff in ((0, 0), (1, 1 << 19), (2, 1 << 20)):
        if reg == 1: a("s_mov_b64 exec, s[30:31]")
        for i in range(28):
            a("s_mov_b32 s22, %d" % (WS_DBG + koff + i * 4096))
            a("buffer_load_dwordx3 v[4:6], v1, s[8:11], s22 offen sc1")
            a("s_waitcnt vmcnt(0)")
            a("v_sub_u32 v4, s20, v4"); a("v_sub_u32 v5, s20, v5")
            if reg < 2:
                a("v_max_u32 v10, v10, v4"); a("v_min_u32 v11, v11, v4"); a("v_min_u32 v12, v12, v5")
            else:
                a("v_add_u32 v16, v16, v6"); a("v_max_u32 v13, v13, v4"); a("v_min_u32 v15, v15, v4"); a("v_min_u32 v14, v14, v5")
        if reg == 1: a("s_mov_b64 exec, -1")
    for r, op in ((10, "max"), (11, "min"), (12, "min"), (13, "max"), (14, "min"), (15, "min"), (16, "add")):
        a("v_readlane_b32 s%d, v%d, 0" % (30 + r, r))
        for l in range(1, 64):
            a("v_readlane_b32 s22, v%d, %d" % (r, l))
            a("s_%s_u32 s%d, s%d, s22" % (op, 30 + r, 30 + r))
    a("s_sub_u32 s50, s40, s42")
    a("s_sub_u32 s51, s42, s43")
    a("s_sub_u32 s52, s43, s44")
    a("s_mov_b32 s53, s44")
    a("s_sub_u32 s54, s40, s41")
    a("s_sub_u32 s55, s43, s45")
    a("s_lshr_b32 s56, s46, 1"); a("s_mov_b32 s57, 0")
    a("s_mov_b64 exec, 1")
    a("v_mov_b32 v1, 0")
    for i in range(7):
        a("v_mov_b32 v2, s%d" % (50 + i))
        a("buffer_store_dword v2, v1, s[12:15], 0 offen offset:%d" % (4 * i))
    a("s_waitcnt vmcnt(0)")
    idx = "ABCDEFGZ".index(sel)
    a("s_min_u32 s58, s%d, 20000" % (50 + idx))
    a("s_lshl_b32 s58, s58, 2")
    a("s_memrealtime s[24:25]"); a("s_waitcnt lgkmcnt(0)")
    a.label("K3_L")
    a("s_memrealtime s[26:27]"); a("s_waitcnt lgkmcnt(0)")
    a("s_sub_u32 s28, s26, s24")
    a("s_cmp_lt_u32 s28, s58")
    a("s_cbranch_scc1 K3_L")
    a.label("K3_END")
    a("s_endpgm")
    return a.finalize()
```

```python
import math, struct, sys
from asmlib import Asm

NAME = "parallel_sum__ssm_conv_s4__glu_gated_geglu__prompt"
def fbits(x): return "0x%08x" % struct.unpack("<I", struct.pack("<f", x))[0]
LOG2E = math.log2(math.e)

WS_H    = 0
WS_XNT  = 8 << 20
WS_KREV = 12 << 20
WS_KSC  = 16 << 20
WS_YAT  = 20 << 20
WS_SIZE = 32 << 20
KSTRIDE = 4160

def srd(a, d, p, nbytes):
    a("s_mov_b32 s%d, s%d" % (d, p))
    a("s_and_b32 s%d, s%d, 0xffff" % (d + 1, p + 1))
    a("s_mov_b32 s%d, 0x%x" % (d + 2, nbytes))
    a("s_mov_b32 s%d, 0x00020000" % (d + 3))

import os
STAMP = int(os.environ.get("STAMP", "0"))
RT = os.environ.get("RT", "")
WS_DBG = 24 << 20
class Stamps:
    def __init__(self, a): self.a = a; self.n = 0; self.names = []
    def __call__(self, name):
        if not STAMP: return
        if RT and name not in ("start", "end"): return
        assert self.n < 10
        self.a("%s s[%d:%d]" % ("s_memrealtime" if RT else "s_memtime", 80 + 2 * self.n, 81 + 2 * self.n))
        self.a("s_waitcnt lgkmcnt(0)")
        self.n += 1; self.names.append(name)
    def store(self, koff, sWV, SWS, vt=250):
        if not STAMP: return
        a = self.a
        a("s_lshl_b32 s100, s2, 3")
        a("s_add_u32 s100, s100, s%d" % sWV)
        a("s_lshl_b32 s100, s100, 6")
        a("s_add_u32 s100, s100, %d" % (WS_DBG + koff))
        a("s_mov_b64 exec, 1")
        a("v_mov_b32 v%d, s100" % vt)
        for i in range(self.n):
            a("v_mov_b32 v%d, s%d" % (vt + 1, 80 + 2 * i))
            a("buffer_store_dword v%d, v%d, s[%d:%d], 0 offen offset:%d" % (vt + 1, vt, SWS, SWS + 3, 4 * i))
            a("s_waitcnt vmcnt(0)")
        if RT:
            a("s_getreg_b32 s100, hwreg(HW_REG_XCC_ID, 0, 4)")
            a("s_and_b32 s101, s2, 7")
            a("s_cmp_eq_u32 s100, s101")
            a("s_cselect_b32 s100, 1, 0")
            a("v_mov_b32 v%d, s100" % (vt + 1))
            a("buffer_store_dword v%d, v%d, s[%d:%d], 0 offen offset:8" % (vt + 1, vt, SWS, SWS + 3))
            a("s_waitcnt vmcnt(0)")
        a("s_mov_b64 exec, -1")

def vr(b, n=1): return "v%d" % b if n == 1 else "v[%d:%d]" % (b, b + n - 1)

def gen_k1():
    a = Asm()
    st_ = Stamps(a)
    SLOT = 24576; NS = 6; NST = 14
    EXTRA = NS * SLOT
    L_STAT = EXTRA; L_CS = EXTRA + 4096; L_KEXP = EXTRA + 5120; L_XN = EXTRA + 8192
    L_STG = 3 * SLOT; STG_W = 4352; L_DV = L_STG + 8 * STG_W; DV_CH = 10368
    SX, SWG, SWU, SWS = 40, 44, 48, 52
    sWV, sR, sF, sWR, sWC, sCH, sMQ = 56, 57, 58, 59, 60, 61, 62
    sT0, sT1, sT2, sT3 = 64, 65, 66, 67
    sSC, sINV = 68, 69
    sONES = 70
    sOX, sOW = 72, 73
    sEX = 74

    a("s_cmp_ge_u32 s2, 224")
    a("s_cbranch_scc1 K1_END")
    st_("start")
    a("s_load_dwordx16 s[16:31], s[0:1], 0")
    a("s_load_dwordx4 s[32:35], s[0:1], 80")
    a("s_load_dwordx2 s[36:37], s[0:1], 120")
    a("v_lshrrev_b32 v1, 6, v0")
    a("v_readfirstlane_b32 s%d, v1" % sWV)
    a("v_and_b32 v1, 63, v0")
    a("s_and_b32 s%d, s2, 7" % sT0)
    a("s_lshr_b32 s%d, s2, 3" % sT1)
    a("s_lshr_b32 s%d, s%d, 1" % (sT2, sT0))
    a("s_lshl_b32 s%d, s%d, 2" % (sT2, sT2))
    a("s_and_b32 s%d, s%d, 3" % (sT3, sT1))
    a("s_add_u32 s%d, s%d, s%d" % (sR, sT2, sT3))
    a("s_and_b32 s%d, s%d, 1" % (sT2, sT0))
    a("s_mul_i32 s%d, s%d, 7" % (sT2, sT2))
    a("s_lshr_b32 s%d, s%d, 2" % (sT3, sT1))
    a("s_add_u32 s%d, s%d, s%d" % (sF, sT2, sT3))
    a("s_and_b32 s%d, s%d, 1" % (sWR, sWV))
    a("s_lshr_b32 s%d, s%d, 1" % (sWC, sWV))
    a("s_lshr_b32 s%d, s%d, 2" % (sT0, sWV))
    a("s_lshl_b32 s%d, s2, 1" % sCH)
    a("s_add_u32 s%d, s%d, s%d" % (sCH, sCH, sT0))
    a("s_and_b32 s%d, s%d, 3" % (sMQ, sWV))
    a("s_mov_b32 s%d, 0x3f803f80" % sONES)
    a("s_lshl_b32 s%d, s%d, 8" % (sT0, sCH))
    a("s_lshl_b32 s%d, s%d, 6" % (sT1, sMQ))
    a("s_add_u32 s%d, s%d, s%d" % (sT0, sT0, sT1))
    a("v_add_u32 v16, s%d, v1" % sT0)
    a("v_lshlrev_b32 v16, 1, v16")
    a("s_lshl_b32 s%d, s%d, 1" % (sT1, sCH))
    a("v_mov_b32 v17, s%d" % sT1)
    a("v_lshrrev_b32 v2, 2, v1")
    a("s_lshl_b32 s%d, s%d, 7" % (sT0, sR))
    a("s_lshl_b32 s%d, s%d, 4" % (sT1, sWV))
    a("s_add_u32 s%d, s%d, s%d" % (sT0, sT0, sT1))
    a("v_add_u32 v2, s%d, v2" % sT0)
    a("v_mul_u32_u24 v2, 896, v2")
    a("v_lshrrev_b32 v3, 4, v1")
    a("v_xor_b32 v4, v1, v3")
    a("v_and_b32 v4, 3, v4")
    a("v_lshl_add_u32 v2, v4, 4, v2")
    a("s_lshl_b32 s%d, s%d, 2" % (sT0, sWV))
    a("v_add_u32 v5, s%d, v3" % sT0)
    a("s_movk_i32 s%d, 3584" % sT1)
    a("v_mul_lo_u32 v5, v5, s%d" % sT1)
    a("v_lshlrev_b32 v6, 2, v3")
    a("v_xor_b32 v6, v1, v6")
    a("v_and_b32 v6, 15, v6")
    a("v_lshl_add_u32 v5, v6, 4, v5")
    a("s_lshl_b32 s%d, s%d, 8" % (sT0, sF))
    a("v_add_u32 v3, s%d, v5" % sT0)
    a("s_waitcnt lgkmcnt(0)")
    srd(a, SX, 16, 2048 * 896)
    srd(a, SWG, 32, 448 * 3584)
    srd(a, SWU, 34, 448 * 3584)
    srd(a, SWS, 36, WS_SIZE)
    for i in range(6):
        a.vm("global_load_ushort v%d, v16, s[%d:%d]" % (20 + i, 18 + 2 * i, 19 + 2 * i), "param")
    a.vm("global_load_ushort v26, v17, s[30:31]", "param")

    def dma_stage(st):
        slot = st % NS
        a("s_mov_b32 s%d, %d" % (sOX, st * 64))
        a("s_mov_b32 s%d, %d" % (sOW, st * 32 * 3584))
        a("s_lshl_b32 s%d, s%d, 10" % (sT3, sWV))
        a("s_add_u32 m0, s%d, %d" % (sT3, slot * SLOT))
        a.vm("buffer_load_dwordx4 v2, s[%d:%d], s%d offen lds" % (SX, SX + 3, sOX), ("st", st))
        a("s_add_u32 m0, s%d, %d" % (sT3, slot * SLOT + 8192))
        a.vm("buffer_load_dwordx4 v3, s[%d:%d], s%d offen lds" % (SWG, SWG + 3, sOW), ("st", st))
        a("s_add_u32 m0, s%d, %d" % (sT3, slot * SLOT + 16384))
        a.vm("buffer_load_dwordx4 v3, s[%d:%d], s%d offen lds" % (SWU, SWU + 3, sOW), ("st", st))
    for st in range(3): dma_stage(st)

    a("v_lshlrev_b32 v4, 2, v0")
    a("v_add_u32 v4, %d, v4" % L_CS)
    a("v_mov_b32 v5, 0")
    a("s_cmp_ge_u32 s%d, 4" % sWV)
    a("s_cbranch_scc1 K1_NOZ")
    a.begin_opt()
    a("ds_write_b32 v4, v5")
    a.end_opt()
    a.label("K1_NOZ")

    a.wait_vm("param")
    st_("param")
    Are, Aim, Bre, Bim, Cre, Cim, Ldt = 20, 21, 22, 23, 24, 25, 26
    for r in range(20, 27): a("v_lshlrev_b32 v%d, 16, v%d" % (r, r))
    a("v_mul_f32 v26, %s, v26" % fbits(LOG2E))
    a("v_exp_f32 v26, v26")
    a("v_cvt_pk_bf16_f32 v26, v26, v26")
    a("v_lshlrev_b32 v26, 16, v26")
    a("v_mul_f32 v20, v26, v20")
    a("v_mul_f32 v21, v26, v21")
    a("v_mul_f32 v22, v26, v22")
    a("v_mul_f32 v23, v26, v23")
    X0 = 28
    a("v_mul_f32 v28, v24, v22")
    a("v_fma_f32 v28, -v25, v23, v28")
    a("v_mul_f32 v29, v24, v23")
    a("v_fma_f32 v29, v25, v22, v29")
    a("v_max_f32 v27, abs(v28), abs(v29)")
    for sh in (1, 2, 4, 8):
        a("v_max_f32_dpp v27, v27, v27 row_shr:%d row_mask:0xf bank_mask:0xf" % sh)
    a("v_max_f32_dpp v27, v27, v27 row_bcast:15 row_mask:0xa bank_mask:0xf")
    a("v_max_f32_dpp v27, v27, v27 row_bcast:31 row_mask:0xc bank_mask:0xf")
    a("v_readlane_b32 s%d, v27, 63" % sT0)
    a("s_lshr_b32 s%d, s%d, 23" % (sT0, sT0))
    a("s_sub_u32 s%d, 254, s%d" % (sSC, sT0))
    a("s_lshl_b32 s%d, s%d, 23" % (sSC, sSC))
    a("s_lshl_b32 s%d, s%d, 23" % (sINV, sT0))
    a("v_mov_b32 v4, s%d" % sT0)
    a("s_lshl_b32 s%d, s%d, 2" % (sT1, sWV))
    a("s_add_u32 s%d, s%d, %d" % (sT1, sT1, L_KEXP))
    a("v_mov_b32 v5, s%d" % sT1)
    a("ds_write_b32 v5, v4")
    a("v_mul_f32 v28, s%d, v28" % sSC)
    a("v_mul_f32 v29, s%d, v29" % sSC)
    def cexp(d, L):
        a("v_mul_f32 v22, %s, v20" % fbits(L * LOG2E))
        a("v_mul_f32 v23, %s, v21" % fbits(L / (2 * math.pi)))
        a("v_exp_f32 v22, v22")
        a("v_fract_f32 v23, v23")
        a("v_cos_f32 v%d, v23" % d)
        a("v_sin_f32 v%d, v23" % (d + 1))
        a("v_mul_f32 v%d, v22, v%d" % (d, d))
        a("v_mul_f32 v%d, v22, v%d" % (d + 1, d + 1))
    E1, E8, E256, E2, E4, E16 = 30, 32, 34, 36, 38, 40
    TA, TB = 42, 44
    tmpi = [0]
    def cmul(d, x, y):
        t = (TA, TB)[tmpi[0] & 1]; tmpi[0] += 1
        a("v_pk_mul_f32 %s, %s, %s op_sel_hi:[1,0]" % (vr(t, 2), vr(x, 2), vr(y, 2)))
        a("v_pk_fma_f32 %s, %s, %s, %s op_sel:[1,1,0] op_sel_hi:[0,1,1] neg_lo:[1,0,0]" % (vr(d, 2), vr(x, 2), vr(y, 2), vr(t, 2)))
    cexp(E8, 8); cexp(E1, 1); cexp(E256, 256)
    cmul(E16, E8, E8); cmul(E2, E1, E1); cmul(E4, E2, E2)
    a("s_mul_i32 s%d, s%d, %d" % (sT0, sWV, STG_W))
    a("s_add_u32 s%d, s%d, %d" % (sT0, sT0, L_STG))
    a("v_lshl_add_u32 v4, v1, 2, s%d" % sT0)
    a("v_and_b32 v5, 15, v1")
    a("v_mul_u32_u24 v5, 272, v5")
    a("v_lshrrev_b32 v6, 4, v1")
    a("v_lshl_add_u32 v5, v6, 4, v5")
    a("v_add_u32 v5, s%d, v5" % sT0)
    PK = [46, 47, 48, 49]; pki = [0]
    def put(row, r, negim=False):
        p = PK[pki[0] & 3]; pki[0] += 1
        a("v_cvt_pk_f16_f32 v%d, v%d, %sv%d" % (p, r, "-" if negim else "", r + 1))
        a("ds_write_b32 v4, v%d offset:%d" % (p, row * 272))
    YF = [64, 80]; XF = [96, 112]
    def getfr(base):
        for ks in range(4):
            a("ds_read_b128 %s, v5 offset:%d" % (vr(base + 4 * ks, 4), ks * 64))
    Ya, Yb = 50, 52
    a("v_mov_b32 v50, 1.0"); a("v_mov_b32 v51, 0")
    a("v_mov_b32 v52, v%d" % E8); a("v_mov_b32 v53, v%d" % (E8 + 1))
    for j in range(0, 32, 2):
        put(j & 15, Ya); put((j + 1) & 15, Yb)
        if j + 2 < 32:
            cmul(Ya, Ya, E16); cmul(Yb, Yb, E16)
        if j == 14: getfr(YF[0])
    getfr(YF[1])
    Xa, Xb, Xc = 54, 56, 58
    put(0, X0, True)
    cmul(Xa, X0, E1); cmul(Xb, X0, E256)
    put(1, Xa, True); put(8, Xb, True)
    cmul(Xc, Xb, E2)
    for r in range(2, 8):
        cmul(Xa, Xa, E1); put(r, Xa, True)
        if r <= 4:
            put(9 + (r - 2), Xc, True)
            if r < 4: cmul(Xc, Xc, E2)
    cmul(Xb, Xb, E256); put(12, Xb, True)
    cmul(Xc, Xb, E4); put(13, Xc, True)
    cmul(Xb, Xb, E256); put(14, Xb, True)
    cmul(Xc, Xb, E4); put(15, Xc, True)
    getfr(XF[0])
    for r in range(5):
        cmul(Xb, Xb, E256); put(r, Xb, True)
    getfr(XF[1])
    D = [[128, 132], [136, 140]]
    for xt in range(2):
        for yt in range(2):
            for r in range(4): a("v_mov_b32 v%d, 0" % (D[xt][yt] + r))
    a("s_waitcnt lgkmcnt(0)")
    for ks in range(4):
        for xt in range(2):
            for yt in range(2):
                a("v_mfma_f32_16x16x32_f16 %s, %s, %s, %s" % (vr(D[xt][yt], 4), vr(XF[xt] + 4 * ks, 4), vr(YF[yt] + 4 * ks, 4), vr(D[xt][yt], 4)))
    a("v_and_b32 v7, 15, v1")
    a("v_cmp_eq_u32 vcc, 2, v6")
    a("v_mov_b32 v8, 8"); a("v_lshlrev_b32 v9, 2, v6")
    a("v_mov_b32 v10, 2")
    a("v_mov_b32 v11, 256")
    a("v_cndmask_b32 v8, v8, 4, vcc")
    a("v_cndmask_b32 v9, v9, v11, vcc")
    a("v_cmp_eq_u32 vcc, 3, v6")
    a("v_mov_b32 v11, 384"); a("v_mov_b32 v12, 64")
    a("v_cndmask_b32 v8, v8, 2, vcc")
    a("v_cndmask_b32 v9, v9, v11, vcc")
    a("v_cndmask_b32 v10, v10, v12, vcc")
    a("v_mad_u32_u24 v9, v8, v7, v9")
    a("s_lshr_b32 s%d, s%d, 2" % (sT0, sWV))
    a("s_mul_i32 s%d, s%d, %d" % (sT0, sT0, DV_CH))
    a("s_add_u32 s%d, s%d, %d" % (sT2, sT0, L_DV))
    a("s_lshl_b32 s%d, s%d, 2" % (sT1, sMQ))
    a("s_add_u32 s%d, s%d, s%d" % (sT0, sT2, sT1))
    a("v_lshl_add_u32 v9, v9, 4, s%d" % sT0)
    a("v_lshl_add_u32 v10, v10, 4, v9")
    a("v_lshl_add_u32 v11, v8, 8, v9")
    a("v_lshl_add_u32 v12, v8, 8, v10")
    a("v_lshl_add_u32 v13, v7, 4, s%d" % sT0)
    for xt in range(2):
        for yt in range(2):
            for r in range(4): a("v_mul_f32 v%d, s%d, v%d" % (D[xt][yt] + r, sINV, D[xt][yt] + r))
    for yt in range(2):
        for r in range(4):
            a("ds_write_b32 v%d, v%d offset:%d" % ((9, 10, 11, 12)[2 * yt + (r >> 1)], D[0][yt] + r, (r & 1) * 16))
    a("s_mov_b64 exec, 0xffff")
    for yt in range(2):
        for r in range(4):
            a("ds_write_b32 v13, v%d offset:%d" % (D[1][yt] + r, (512 + 32 * r + 16 * yt) * 16))
    a("s_mov_b32 exec_lo, 0x10000")
    a("ds_write_b32 v13, v%d offset:%d" % (D[1][0], 640 * 16))
    a("s_mov_b64 exec, -1")
    a("s_waitcnt lgkmcnt(0)")
    st_("kgen_mfma")
    a("s_barrier")
    a("s_lshr_b32 s%d, s%d, 2" % (sT0, sWV))
    a("s_lshl_b32 s%d, s%d, 4" % (sT0, sT0))
    a("s_add_u32 s%d, s%d, %d" % (sT0, sT0, L_KEXP))
    a("v_mov_b32 v4, s%d" % sT0)
    a("ds_read_b128 v[8:11], v4")
    a("s_lshl_b32 s%d, s%d, 6" % (sT0, sMQ))
    a("v_add_u32 v4, s%d, v1" % sT0)
    a("v_lshlrev_b32 v5, 3, v4")
    a("v_cmp_gt_u32 vcc, 32, v4")
    for e in range(8):
        a("v_add_u32 v6, %d, v5" % e)
        a("v_cvt_f32_u32 v7, v6")
        a("v_cvt_pk_bf16_f32 v7, v7, v7")
        a("v_and_b32 v7, 0xffff, v7")
        a("v_subrev_u32 v7, 0x4280, v7")
        a("v_cndmask_b32 v7, v7, v6, vcc")
        a("v_lshl_add_u32 v7, v7, 4, s%d" % sT2)
        a("ds_read_b128 %s, v7" % vr(64 + 4 * e, 4))
    a("s_waitcnt lgkmcnt(8)")
    a("v_max_u32 v8, v8, v9"); a("v_max_u32 v10, v10, v11"); a("v_max_u32 v8, v8, v10")
    a("v_sub_u32 v9, 254, v8"); a("v_lshlrev_b32 v9, 23, v9")
    a("v_lshlrev_b32 v10, 23, v8")
    a("s_waitcnt lgkmcnt(0)")
    for e in range(8):
        b = 64 + 4 * e
        a("v_add_f32 v%d, v%d, v%d" % (b, b, b + 1))
        a("v_add_f32 v%d, v%d, v%d" % (b + 2, b + 2, b + 3))
        a("v_add_f32 v%d, v%d, v%d" % (b, b, b + 2))
        a("v_mul_f32 v%d, v9, v%d" % (b, b))
    for i in range(4):
        a("v_cvt_pk_f16_f32 v%d, v%d, v%d" % (12 + i, 64 + 4 * (7 - 2 * i), 64 + 4 * (6 - 2 * i)))
    a("s_mul_i32 s%d, s%d, %d" % (sT0, sCH, KSTRIDE))
    a("s_add_u32 s%d, s%d, %d" % (sT0, sT0, WS_KREV + 4080))
    a("v_lshlrev_b32 v5, 4, v4")
    a("v_sub_u32 v5, s%d, v5" % sT0)
    a.vm("buffer_store_dwordx4 v[12:15], v5, s[%d:%d], 0 offen" % (SWS, SWS + 3), "kst")
    a("s_cmp_lg_u32 s%d, 0" % sMQ)
    a("s_cbranch_scc1 K1_NOPAD")
    a.begin_opt()
    a("v_mov_b32 v16, 0"); a("v_mov_b32 v17, 0"); a("v_mov_b32 v18, 0"); a("v_mov_b32 v19, 0")
    a("s_add_u32 s%d, s%d, 16" % (sT0, sT0))
    a("v_lshl_add_u32 v6, v1, 4, s%d" % sT0)
    a("s_lshl_b32 s%d, s%d, 2" % (sT1, sCH))
    a("s_add_u32 s%d, s%d, %d" % (sT1, sT1, WS_KSC))
    a("v_mov_b32 v7, s%d" % sT1)
    a("s_mov_b64 exec, 0xf")
    a("buffer_store_dwordx4 v[16:19], v6, s[%d:%d], 0 offen" % (SWS, SWS + 3))
    a("s_mov_b64 exec, 1")
    a("buffer_store_dword v10, v7, s[%d:%d], 0 offen" % (SWS, SWS + 3))
    a("s_mov_b64 exec, -1")
    a("s_waitcnt vmcnt(0)")
    a.end_opt()
    a.label("K1_NOPAD")
    st_("gather")
    a("s_barrier")
    dma_stage(3); dma_stage(4)

    a("v_and_b32 v4, 31, v1")
    a("s_lshl_b32 s%d, s%d, 6" % (sT0, sWR))
    a("v_add_u32 v4, s%d, v4" % sT0)
    a("v_lshlrev_b32 v4, 6, v4")
    a("v_lshrrev_b32 v5, 5, v1")
    a("v_lshrrev_b32 v6, 2, v1")
    a("v_and_b32 v6, 3, v6")
    a("v_xor_b32 v7, v5, v6")
    a("v_lshl_add_u32 v4, v7, 4, v4")
    a("v_xor_b32 v5, 32, v4")
    a("v_lshrrev_b32 v7, 5, v1")
    a("v_lshl_add_u32 v7, v7, 3, v6")
    a("v_lshlrev_b32 v8, 8, v7")
    a("v_bfe_u32 v9, v1, 4, 1")
    a("v_lshlrev_b32 v9, 1, v9")
    a("v_bfe_u32 v10, v1, 1, 1")
    a("v_add_u32 v9, v9, v10")
    a("s_lshl_b32 s%d, s%d, 2" % (sT0, sWC))
    a("v_add_u32 v9, s%d, v9" % sT0)
    a("v_lshlrev_b32 v10, 2, v6")
    a("v_xor_b32 v9, v9, v10")
    a("v_lshl_add_u32 v8, v9, 4, v8")
    a("v_and_b32 v10, 1, v1")
    a("v_lshl_add_u32 v8, v10, 3, v8")
    a("v_add_u32 v8, 8192, v8")
    a("v_add_u32 v6, %d, v4" % (3 * SLOT))
    a("v_add_u32 v7, %d, v5" % (3 * SLOT))
    a("v_add_u32 v9, %d, v8" % (3 * SLOT))
    ACC = [[64, 80], [96, 112]]
    for r in range(64, 128): a("v_mov_b32 v%d, 0" % r)
    XS1, XS2, WCS = [10, 11], [12, 13], [14, 15]
    for r in range(10, 16): a("v_mov_b32 v%d, 0" % r)
    FR = [128, 144]
    def rd_frags(st, kk, fb):
        slot = st % NS
        hi = slot >= 3
        so = (slot - 3 * hi) * SLOT
        xa = ((4, 5), (6, 7))[hi][kk]; wa = (8, 9)[hi]
        for tt in range(2):
            a("ds_read_b128 %s, v%d offset:%d" % (vr(fb + 4 * tt, 4), xa, so + tt * 2048))
        for mat in range(2):
            for half in range(2):
                a("ds_read_b64_tr_b16 %s, v%d offset:%d" % (vr(fb + 8 + 4 * mat + 2 * half, 2), wa, so + mat * 8192 + kk * 4096 + half * 1024))
    lab = [0]
    def compute(i, fb):
        for mat in range(2):
            for tt in range(2):
                a("v_mfma_f32_32x32x16_bf16 %s, %s, %s, %s" % (vr(ACC[mat][tt], 16), vr(fb + 8 + 4 * mat, 4), vr(fb + 4 * tt, 4), vr(ACC[mat][tt], 16)))
        lab[0] += 1
        a("s_cmp_lg_u32 s%d, %d" % (sWC, i & 3))
        a("s_cbranch_scc1 K1_SX%d" % lab[0])
        a.begin_opt()
        for tt in range(2):
            for r in range(4):
                a("v_dot2_f32_bf16 v%d, v%d, s%d, v%d" % (XS1[tt], fb + 4 * tt + r, sONES, XS1[tt]))
                a("v_dot2_f32_bf16 v%d, v%d, v%d, v%d" % (XS2[tt], fb + 4 * tt + r, fb + 4 * tt + r, XS2[tt]))
        a.end_opt()
        a.label("K1_SX%d" % lab[0])
        a("s_cmp_lg_u32 s%d, %d" % (sWR, i & 1))
        a("s_cbranch_scc1 K1_SW%d" % lab[0])
        a.begin_opt()
        for r in range(4):
            for mat in range(2):
                a("v_dot2_f32_bf16 v%d, v%d, s%d, v%d" % (WCS[mat], fb + 8 + 4 * mat + r, sONES, WCS[mat]))
        a.end_opt()
        a.label("K1_SW%d" % lab[0])
    for st in range(NST):
        a.wait_vm(("st", st))
        a("s_barrier")
        if st in (0, 5, 10): st_("st%d" % st)
        if st + 5 < NST: dma_stage(st + 5)
        if st == NST - 3:
            a("v_lshrrev_b32 v16, 2, v0")
            a("s_lshl_b32 s%d, s%d, 7" % (sT0, sR))
            a("v_add_u32 v16, s%d, v16" % sT0)
            a("v_mul_u32_u24 v16, 896, v16")
            a("v_and_b32 v17, 3, v0")
            a("v_lshl_add_u32 v16, v17, 4, v16")
            a("s_lshl_b32 s%d, s%d, 6" % (sT0, sF))
            a.vm("buffer_load_dwordx4 v[20:23], v16, s[%d:%d], s%d offen" % (SX, SX + 3, sT0), "xre")
        rd_frags(st, 0, FR[0])
        rd_frags(st, 1, FR[1])
        a("s_waitcnt lgkmcnt(6)")
        compute(2 * st, FR[0])
        a("s_waitcnt lgkmcnt(0)")
        compute(2 * st + 1, FR[1])

    st_("loopend")
    def halfsum(r, t):
        a("v_mov_b32 v%d, v%d" % (t, r))
        a("v_permlane32_swap_b32 v%d, v%d" % (r, t))
        a("v_add_f32 v%d, v%d, v%d" % (r, r, t))
    for r in range(10, 16): halfsum(r, 16)
    a("v_and_b32 v4, 31, v1")
    a("s_lshl_b32 s%d, s%d, 6" % (sT0, sWR))
    a("v_add_u32 v4, s%d, v4" % sT0)
    a("v_lshlrev_b32 v5, 4, v4")
    a("v_add_u32 v5, %d, v5" % L_STAT)
    a("s_lshl_b32 s%d, s%d, 2" % (sT0, sWC))
    a("v_add_u32 v6, s%d, v5" % sT0)
    for tt in range(2):
        a("ds_write_b32 v6, v%d offset:%d" % (XS1[tt], tt * 512))
        a("ds_write_b32 v6, v%d offset:%d" % (XS2[tt], 2048 + tt * 512))
    a("v_and_b32 v7, 31, v1")
    a("s_lshl_b32 s%d, s%d, 5" % (sT0, sWC))
    a("v_add_u32 v7, s%d, v7" % sT0)
    a("v_lshlrev_b32 v7, 2, v7")
    a("v_add_u32 v7, %d, v7" % L_CS)
    a("s_mov_b64 exec, 0xffffffff")
    a("ds_add_f32 v7, v14")
    a("ds_add_f32 v7, v15 offset:512")
    a("s_mov_b64 exec, -1")
    a("s_waitcnt lgkmcnt(0)")
    a("s_barrier")
    def stats(p1, p2, M, S):
        a("v_add_f32 v%d, v%d, v%d" % (p1, p1, p1 + 1)); a("v_add_f32 v%d, v%d, v%d" % (p1 + 2, p1 + 2, p1 + 3))
        a("v_add_f32 v%d, v%d, v%d" % (p2, p2, p2 + 1)); a("v_add_f32 v%d, v%d, v%d" % (p2 + 2, p2 + 2, p2 + 3))
        a("v_add_f32 v%d, v%d, v%d" % (p1, p1, p1 + 2)); a("v_add_f32 v%d, v%d, v%d" % (p2, p2, p2 + 2))
        a("v_mul_f32 v%d, %s, v%d" % (p1, fbits(1.0 / 448), p1))
        a("v_mul_f32 v%d, %s, v%d" % (p2, fbits(1.0 / 448), p2))
        a("v_fma_f32 v%d, -v%d, v%d, v%d" % (p2, p1, p1, p2))
        a("v_max_f32 v%d, 0, v%d" % (p2, p2))
        a("v_cvt_pk_bf16_f32 v%d, v%d, v%d" % (p1, p1, p2))
        a("v_lshlrev_b32 v%d, 16, v%d" % (M, p1))
        a("v_and_b32 v%d, 0xffff0000, v%d" % (p2, p1))
        a("v_add_f32 v%d, %s, v%d" % (p2, fbits(1e-5), p2))
        a("v_cvt_pk_bf16_f32 v%d, v%d, v%d" % (p2, p2, p2))
        a("v_lshlrev_b32 v%d, 16, v%d" % (p2, p2))
        a("v_sqrt_f32 v%d, v%d" % (p2, p2))
        a("v_cvt_pk_bf16_f32 v%d, v%d, v%d" % (p2, p2, p2))
        a("v_lshlrev_b32 v%d, 16, v%d" % (S, p2))
    a("ds_read_b128 v[24:27], v5"); a("ds_read_b128 v[28:31], v5 offset:2048")
    a("ds_read_b128 v[32:35], v5 offset:512"); a("ds_read_b128 v[36:39], v5 offset:2560")
    a("v_lshrrev_b32 v6, 2, v0")
    a("v_lshlrev_b32 v6, 4, v6")
    a("v_add_u32 v6, %d, v6" % L_STAT)
    a("ds_read_b128 v[40:43], v6"); a("ds_read_b128 v[44:47], v6 offset:2048")
    a("v_lshrrev_b32 v7, 5, v1")
    a("v_lshlrev_b32 v7, 4, v7")
    a("s_lshl_b32 s%d, s%d, 7" % (sT0, sWC))
    a("s_add_u32 s%d, s%d, %d" % (sT0, sT0, L_CS))
    a("v_add_u32 v7, s%d, v7" % sT0)
    CS = [128, 144]
    for mat in range(2):
        for q in range(4):
            a("ds_read_b128 %s, v7 offset:%d" % (vr(CS[mat] + 4 * q, 4), mat * 512 + q * 32))
    a("s_waitcnt lgkmcnt(8)")
    NM = [48, 50]; K1r = [52, 54]; K2r = [56, 58]; S2 = [60, 62]
    for tt in range(2):
        p1, p2 = (24, 28) if tt == 0 else (32, 36)
        stats(p1, p2, NM[tt], S2[tt])
        a("v_rcp_f32 v%d, v%d" % (p1, S2[tt]))
        a("v_sub_f32 v%d, 0, v%d" % (NM[tt], NM[tt]))
        a("v_mul_f32 v%d, v%d, v%d" % (S2[tt], S2[tt], S2[tt]))
        c = math.sqrt(2 / math.pi)
        k1 = -2 * c * LOG2E; k2 = k1 * 0.044715
        a("v_mul_f32 v%d, %s, v%d" % (K1r[tt], fbits(k1), p1))
        a("v_mul_f32 v%d, v%d, v%d" % (p1 + 1, p1, p1))
        a("v_mul_f32 v%d, v%d, v%d" % (p1 + 1, p1 + 1, p1))
        a("v_mul_f32 v%d, %s, v%d" % (K2r[tt], fbits(k2), p1 + 1))
    stats(40, 44, 16, 17)
    a("v_rcp_f32 v17, v17")
    a.wait_vm("xre")
    for i in range(4):
        a("v_lshlrev_b32 v24, 16, v%d" % (20 + i))
        a("v_and_b32 v25, 0xffff0000, v%d" % (20 + i))
        a("v_sub_f32 v24, v24, v16"); a("v_sub_f32 v25, v25, v16")
        a("v_cvt_pk_bf16_f32 v24, v24, v25")
        a("v_and_b32 v25, 0xffff0000, v24"); a("v_lshlrev_b32 v24, 16, v24")
        a("v_mul_f32 v24, v24, v17"); a("v_mul_f32 v25, v25, v17")
        a("v_cvt_pk_bf16_f32 v24, v24, v25")
        a("v_and_b32 v25, 0xffff0000, v24"); a("v_lshlrev_b32 v24, 16, v24")
        a("v_cvt_pk_f16_f32 v%d, v24, v25" % (20 + i))
    a("v_lshlrev_b32 v6, 4, v0")
    a("v_add_u32 v6, %d, v6" % L_XN)
    a("ds_write_b128 v6, v[20:23]")
    a("v_bfe_u32 v6, v1, 5, 1")
    a("v_lshlrev_b32 v6, 3, v6")
    a("v_bfe_u32 v7, v1, 2, 2")
    a("v_add_u32 v6, v6, v7")
    a("s_lshl_b32 s%d, s%d, 4" % (sT0, sWV))
    a("v_add_u32 v6, s%d, v6" % sT0)
    a("v_lshlrev_b32 v6, 6, v6")
    a("v_bfe_u32 v7, v1, 4, 1")
    a("v_lshl_add_u32 v6, v7, 5, v6")
    a("v_and_b32 v18, 3, v1")
    a("v_lshl_add_u32 v6, v18, 3, v6")
    a("v_add_u32 v6, %d, v6" % L_XN)
    a("s_waitcnt lgkmcnt(0)")
    a("ds_read_b64_tr_b16 v[20:21], v6")
    a("ds_read_b64_tr_b16 v[22:23], v6 offset:256")
    a("v_and_b32 v18, 31, v1")
    a("s_lshl_b32 s%d, s%d, 5" % (sT0, sF))
    a("v_add_u32 v18, s%d, v18" % sT0)
    a("v_lshlrev_b32 v18, 12, v18")
    a("v_bfe_u32 v19, v1, 5, 1")
    a("v_lshl_add_u32 v18, v19, 4, v18")
    a("s_lshl_b32 s%d, s%d, 8" % (sT0, sR))
    a("s_lshl_b32 s%d, s%d, 5" % (sT1, sWV))
    a("s_add_u32 s%d, s%d, s%d" % (sT0, sT0, sT1))
    a("s_add_u32 s%d, s%d, %d" % (sT0, sT0, WS_XNT))
    a("s_waitcnt lgkmcnt(0)")
    a.vm("buffer_store_dwordx4 v[20:23], v18, s[%d:%d], s%d offen" % (SWS, SWS + 3, sT0), "xnt")
    st_("xnt")
    a("s_lshl_b32 s%d, s%d, 1" % (sT0, sR))
    a("s_add_u32 s%d, s%d, s%d" % (sT0, sT0, sWR))
    a("s_mul_i32 s%d, s%d, 56" % (sT0, sT0))
    a("s_lshl_b32 s%d, s%d, 2" % (sT1, sF))
    a("s_add_u32 s%d, s%d, s%d" % (sT0, sT0, sT1))
    a("s_add_u32 s%d, s%d, s%d" % (sT0, sT0, sWC))
    a("s_lshl_b32 s%d, s%d, 12" % (sT0, sT0))
    a("v_and_b32 v4, 15, v1")
    a("v_lshlrev_b32 v4, 4, v4")
    a("v_bfe_u32 v5, v1, 4, 1")
    a("v_lshl_add_u32 v4, v5, 10, v4")
    a("v_lshrrev_b32 v5, 5, v1")
    a("v_lshl_add_u32 v4, v5, 8, v4")
    a("v_add_u32 v4, s%d, v4" % sT0)
    B = "op_sel_hi:[1,0,1]"
    for tt in range(2):
        for qp in range(2):
            HP = 24 + 4 * ((2 * tt + qp) & 1)
            for q2 in range(2):
                q = 2 * qp + q2
                for pr in range(2):
                    g = ACC[0][tt] + 4 * q + 2 * pr
                    u = ACC[1][tt] + 4 * q + 2 * pr
                    T = 32 + 2 * ((2 * q2 + pr) & 3)
                    a("v_pk_fma_f32 %s, %s, %s, %s %s" % (vr(g, 2), vr(CS[0] + 4 * q + 2 * pr, 2), vr(NM[tt], 2), vr(g, 2), B))
                    a("v_pk_fma_f32 %s, %s, %s, %s %s" % (vr(u, 2), vr(CS[1] + 4 * q + 2 * pr, 2), vr(NM[tt], 2), vr(u, 2), B))
                    a("v_pk_mul_f32 %s, %s, %s" % (vr(T, 2), vr(g, 2), vr(g, 2)))
                    a("v_pk_fma_f32 %s, %s, %s, %s op_sel_hi:[1,0,0]" % (vr(T, 2), vr(T, 2), vr(K2r[tt], 2), vr(K1r[tt], 2)))
                    a("v_pk_mul_f32 %s, %s, %s" % (vr(T, 2), vr(T, 2), vr(g, 2)))
                    a("v_exp_f32 v%d, v%d" % (T, T)); a("v_exp_f32 v%d, v%d" % (T + 1, T + 1))
                    a("v_pk_mul_f32 %s, %s, %s" % (vr(g, 2), vr(g, 2), vr(u, 2)))
                    a("v_pk_fma_f32 %s, %s, %s, %s op_sel_hi:[1,0,0]" % (vr(T, 2), vr(T, 2), vr(S2[tt], 2), vr(S2[tt], 2)))
                    a("v_rcp_f32 v%d, v%d" % (T, T)); a("v_rcp_f32 v%d, v%d" % (T + 1, T + 1))
                    a("v_pk_mul_f32 %s, %s, %s" % (vr(g, 2), vr(g, 2), vr(T, 2)))
                    a("v_cvt_pk_bf16_f32 v%d, v%d, v%d" % (HP + 2 * q2 + pr, g, g + 1))
            a("v_permlane32_swap_b32 v%d, v%d" % (HP, HP + 2))
            a("v_permlane32_swap_b32 v%d, v%d" % (HP + 1, HP + 3))
            a.vm("buffer_store_dwordx4 %s, v4, s[%d:%d], 0 offen offset:%d" % (vr(HP, 4), SWS, SWS + 3, tt * 2048 + qp * 512), "hst")
    st_("end")
    st_.store(0, sWV, SWS, 150)
    a.label("K1_END")
    a("s_endpgm")
    if STAMP: print("K1 stamps", st_.names)
    return a.finalize(), 160, 163840

def wrap(kernels):
    out = []
    for name, grid, block, lds, body, nv in kernels:
        out.append("; @launch kernel=%s grid=(%d,1,1) block=(%d,1,1) lds=%d" % (name, grid, block, lds))
    out.append('.amdgcn_target "amdgcn-amd-amdhsa--gfx950"')
    out.append(".text")
    for name, grid, block, lds, body, nv in kernels:
        out += [".globl %s" % name, ".p2align 8", ".type %s,@function" % name, "%s:" % name, body]
    out.append('.section .rodata,"a"')
    for name, grid, block, lds, body, nv in kernels:
        out += [".p2align 6", ".amdhsa_kernel %s" % name,
                "  .amdhsa_next_free_vgpr %d" % nv, "  .amdhsa_next_free_sgpr 102", "  .amdhsa_accum_offset %d" % ((nv + 3) // 4 * 4),
                "  .amdhsa_group_segment_fixed_size 0", "  .amdhsa_kernarg_size 128", "  .amdhsa_user_sgpr_count 2",
                "  .amdhsa_user_sgpr_kernarg_segment_ptr 1", "  .amdhsa_system_sgpr_workgroup_id_x 1", ".end_amdhsa_kernel"]
    return "\n".join(out) + "\n"

if __name__ == "__main__":
    ks = []
    import gen1
    b, nv, lds, blk = gen1.gen_k1(); ks.append(("k1_kernel", 256, blk, lds, b, nv))
    try:
        from gen_k2 import gen_k2
        b, nv, lds = gen_k2(); ks.append(("k2_kernel", 224, 512, lds, b, nv))
    except ImportError:
        pass
    if RT:
        import gen_k3
        ks.append(("k3_kernel", 1, 64, 0, gen_k3.gen_k3(RT), 64))
    open(sys.argv[1] if len(sys.argv) > 1 else "k.s", "w").write(wrap(ks))
```

```python
import re

TRANS = ("v_exp_f32", "v_log_f32", "v_rcp_f32", "v_rsq_f32", "v_sqrt_f32", "v_sin_f32", "v_cos_f32", "v_rcp_iflag_f32")

def _regs(tok):
    tok = tok.strip()
    neg = tok.lstrip("-")
    m = re.match(r"^(?:abs\()?\|?([vas])(\d+)\)?\|?$", neg)
    if m: return {(m.group(1), int(m.group(2)))}
    m = re.match(r"^(?:abs\()?([vas])\[(\d+):(\d+)\]\)?$", neg)
    if m: return {(m.group(1), i) for i in range(int(m.group(2)), int(m.group(3)) + 1)}
    if neg == "vcc": return {("s", 106), ("s", 107)}
    if neg == "vcc_lo": return {("s", 106)}
    if neg == "vcc_hi": return {("s", 107)}
    if neg == "exec": return {("s", 126), ("s", 127)}
    if neg == "m0": return {("s", 124)}
    return set()

class Ins:
    __slots__ = ("text", "mn", "ops", "wr", "rd", "kind", "blk", "passes", "srcc", "srcab", "ws", "lds_dma", "widestore", "sdata")
    def __init__(self, text, blk):
        self.text = text; self.blk = blk
        t = text.split(";")[0].strip()
        parts = t.split(None, 1)
        self.mn = parts[0]
        rest = parts[1] if len(parts) > 1 else ""
        ops = []; depth = 0; cur = ""
        for ch in rest:
            if ch in "[(": depth += 1
            if ch in "])": depth -= 1
            if ch == "," and depth == 0: ops.append(cur.strip()); cur = ""
            else: cur += ch
        if cur.strip(): ops.append(cur.strip())
        mods = ""
        if ops:
            sp = ops[-1].split(None, 1)
            ops[-1] = sp[0]; mods = sp[1] if len(sp) > 1 else ""
        self.ops = ops
        mn = self.mn
        R = [_regs(o) for o in ops]
        U = lambda l: set().union(*l) if l else set()
        self.wr = set(); self.rd = set(); self.passes = 0; self.srcc = set(); self.srcab = set()
        self.ws = 1; self.lds_dma = False; self.widestore = False; self.sdata = set()
        if mn == "s_nop":
            self.kind = "nop"; self.ws = int(ops[0], 0) + 1
        elif mn.startswith("v_mfma"):
            self.kind = "mfma"; self.wr = R[0]; self.srcab = R[1] | R[2]; self.srcc = R[3]; self.rd = self.srcab | self.srcc
            self.passes = 8 if "32x32x16" in mn else 4 if "16x16x32" in mn else 16
        elif mn.startswith("v_"):
            self.kind = "trans" if mn.replace("_e32", "").replace("_e64", "") in TRANS else "valu"
            if mn.startswith("v_permlane32_swap") or mn.startswith("v_permlane16_swap"):
                self.wr = R[0] | R[1]; self.rd = R[0] | R[1]; self.kind = "permlane"
            elif mn.startswith("v_cmp"):
                self.wr = R[0]; self.rd = U(R[1:])
            elif mn.startswith(("v_add_co", "v_sub_co", "v_subrev_co", "v_addc_co", "v_subb_co")):
                self.wr = R[0] | R[1]; self.rd = U(R[2:])
            else:
                self.wr = R[0]; self.rd = U(R[1:])
                if mn.startswith(("v_fmac", "v_dot2c", "v_pk_fmac", "v_writelane")) or "d16" in mn: self.rd |= R[0]
                if mn.startswith("v_cndmask") and len(ops) == 3: self.rd |= {("s", 106), ("s", 107)}
            if "dpp" in mn or "row_" in mods or "wave_" in mods or "quad_perm" in mods:
                self.kind = "dpp"; self.rd |= R[0]
            if mn.startswith(("v_readlane", "v_readfirstlane")): self.kind = "readlane"
            if mn.startswith("v_dot"): self.kind = "dot"
        elif mn.startswith("ds_"):
            self.kind = "ds"
            if mn.startswith(("ds_read", "ds_bpermute", "ds_permute", "ds_swizzle")) or "_rtn" in mn:
                self.wr = R[0]; self.rd = U(R[1:])
                if "d16" in mn: self.rd |= R[0]
            else: self.rd = U(R)
        elif mn.startswith(("buffer_", "global_")):
            self.kind = "vmem"
            islds = bool(re.search(r"\blds\b", mods)) or "_lds_" in mn
            if mn.startswith(("buffer_wbl2", "buffer_inv")):
                pass
            elif islds:
                self.lds_dma = True; self.rd = U(R) | {("s", 124)}
            elif "load" in mn:
                self.wr = R[0]; self.rd = U(R[1:])
                if "d16" in mn: self.rd |= R[0]
            elif "atomic" in mn and re.search(r"\bsc0\b", mods) and mn.startswith("global_"):
                self.wr = R[0]; self.rd = U(R[1:])
            elif "atomic" in mn and re.search(r"\bsc0\b", mods):
                self.wr = R[0]; self.rd = U(R)
            else:
                self.rd = U(R)
                if "dwordx4" in mn or "dwordx3" in mn:
                    self.widestore = True
                    self.sdata = R[0] if mn.startswith("buffer_") else R[1]
        elif mn.startswith("s_"):
            self.kind = "salu"
            if mn.startswith(("s_cmp", "s_waitcnt", "s_barrier", "s_branch", "s_cbranch", "s_endpgm", "s_setprio", "s_sleep", "s_bitcmp")):
                self.rd = U(R)
            else:
                self.wr = R[0] if R else set(); self.rd = U(R[1:])
                if "saveexec" in mn: self.wr |= {("s", 126), ("s", 127)}
        else:
            raise ValueError("unknown instr " + text)

import os
PKW = int(os.environ.get("PKW", "2"))
VALUK = ("valu", "trans", "dpp", "permlane", "readlane", "dot")

def need(p, c):
    n = 0
    pv = {r for r in p.wr if r[0] in "va"}
    ps = {r for r in p.wr if r[0] == "s"}
    if p.kind in VALUK:
        if pv:
            if c.kind == "mfma" and pv & c.rd: n = max(n, 2)
            if c.kind == "dpp" and pv & c.rd: n = max(n, 2)
            if c.kind == "permlane" and pv & c.rd: n = max(n, 2)
            if c.kind == "readlane" and pv & c.rd: n = max(n, 1)
            if p.mn.startswith("v_pk_") and p.mn.endswith("_f32") and not c.mn.startswith("v_pk_") and pv & c.rd: n = max(n, PKW)
            if p.kind == "trans" and c.kind in VALUK + ("mfma",) and pv & (c.rd | c.wr): n = max(n, 1)
            if p.kind == "dot" and pv & (c.rd | c.wr):
                same = c.kind == "dot" and c.mn == p.mn and len(c.ops) >= 3 and not (pv & (_regs(c.ops[1]) | _regs(c.ops[2])))
                if not same: n = max(n, 3)
        if ps:
            if c.kind == "vmem" and ps & c.rd: n = max(n, 5)
            if c.kind in VALUK + ("mfma",) and ps & c.rd: n = max(n, 4 if c.kind == "readlane" else 2)
            if c.kind == "salu" and ps & c.rd: n = max(n, 1)
            if ps & {("s", 126), ("s", 127)}: n = max(n, 5)
    if p.kind == "mfma":
        big = {4: 8, 8: 12, 16: 20}[p.passes]
        if c.kind == "mfma":
            if p.wr & c.srcab: n = max(n, big)
            if p.wr & c.srcc and not (p.wr == c.srcc and p.passes == c.passes): n = max(n, {4: 6, 8: 10, 16: 18}[p.passes])
            if p.wr & c.wr and not (p.wr & c.srcc): n = max(n, big)
        elif p.wr & (c.rd | c.wr): n = max(n, big)
        if c.kind in VALUK and p.srcc & c.wr: n = max(n, {4: 3, 8: 7, 16: 15}[p.passes])
    if p.kind == "salu" and ("s", 124) in p.wr and c.kind == "vmem" and c.lds_dma: n = max(n, 1)
    if p.kind == "vmem" and p.widestore and p.sdata & c.wr: n = max(n, 2 if c.kind in VALUK else 1)
    return n

class Asm:
    def __init__(self):
        self.items = []
        self.blk = None
        self._blkid = 0
        self.vmq = []
        self.dsq = []
    def __call__(self, text):
        for ln in text.strip().split("\n"):
            ln = ln.strip()
            if not ln or ln.startswith(";"): continue
            self.items.append(Ins(ln, self.blk))
    def raw(self, text): self.items.append(text)
    def label(self, l): self.items.append(l + ":")
    def comment(self, c): self.items.append("    ; " + c)
    def begin_opt(self): self._blkid += 1; self.blk = self._blkid
    def end_opt(self): self.blk = None
    def vm(self, text, tag=None):
        self(text); self.vmq.append(tag)
    def wait_vm(self, tag):
        if tag not in self.vmq: return
        idx = max(i for i, t in enumerate(self.vmq) if t == tag)
        n = len(self.vmq) - 1 - idx
        assert n <= 63
        self("s_waitcnt vmcnt(%d)" % n)
        self.vmq = self.vmq[idx + 1:]
    def ds(self, text, tag=None):
        self(text); self.dsq.append(tag)
    def wait_ds(self, tag):
        if tag not in self.dsq: return
        idx = max(i for i, t in enumerate(self.dsq) if t == tag)
        n = len(self.dsq) - 1 - idx
        self("s_waitcnt lgkmcnt(%d)" % min(n, 15))
        self.dsq = self.dsq[idx + 1:] if n <= 15 else self.dsq[len(self.dsq) - 15:]
    def wait_vm_all(self):
        self("s_waitcnt vmcnt(0)"); self.vmq = []
    def finalize(self):
        out = []
        hist = []
        for it in self.items:
            if isinstance(it, str):
                out.append(it); continue
            pad = 0; dist = 0
            for p in reversed(hist[-40:]):
                nd = need(p, it)
                if nd > dist: pad = max(pad, nd - dist)
                if p.blk is None or p.blk == it.blk: dist += p.ws
                if dist >= 24: break
            while pad > 0:
                k = min(pad, 16)
                nop = Ins("s_nop %d" % (k - 1), it.blk)
                hist.append(nop); out.append("    " + nop.text); pad -= k
            hist.append(it); out.append("    " + it.text)
        return "\n".join(out)
```

```python
import math, os
from gen4 import *

def get_nonce(a, L, va, vd):
    l1, l2 = L("GN"), L("GN")
    a("s_mov_b32 s%d, %d" % (sCNT, SPIN))
    a.label(l1)
    a("buffer_load_dwordx2 v[%d:%d], v%d, s[%d:%d], 0 offen sc1" % (vd, vd + 1, va, SDBG, SDBG + 3))
    a("s_waitcnt vmcnt(0)")
    a("v_readfirstlane_b32 s%d, v%d" % (sNON, vd)); a("v_readfirstlane_b32 s%d, v%d" % (sNON + 1, vd + 1))
    a("s_cmp_lg_u32 s%d, 0" % (sNON + 1))
    a("s_cbranch_scc1 %s" % l2)
    a("s_sleep 8")
    a("s_sub_u32 s%d, s%d, 1" % (sCNT, sCNT)); a("s_cmp_lg_u32 s%d, 0" % sCNT)
    a("s_cbranch_scc1 %s" % l1)
    a.label(l2)

def helper(a, sk_, L, spin_lds):
    a.label("K_HELP")
    a.vmq = []
    a("s_setprio %d" % int(os.environ.get("KPRIO", "0")))
    a("s_load_dwordx2 s[60:61], s[0:1], 64")
    a("s_sub_u32 s%d, s%d, 4" % (sKW, sWV))
    a("s_and_b32 s%d, s%d, 1" % (sHF, sKW))
    a("s_lshr_b32 s%d, s%d, 1" % (sT0, sKW))
    a("s_sub_u32 s%d, s2, 32" % sCH)
    a("s_lshl_b32 s%d, s%d, 1" % (sCH, sCH))
    a("s_add_u32 s%d, s%d, s%d" % (sCH, sCH, sT0))
    a("s_mul_i32 s%d, s%d, %d" % (sCVB, sT0, CV_CH))
    a("s_add_u32 s%d, s%d, %d" % (sCVB, sCVB, L_CV))
    a("s_lshl_b32 s%d, s%d, 8" % (sT0, sCH))
    a("s_lshl_b32 s%d, s%d, 7" % (sT1, sHF))
    a("s_add_u32 s%d, s%d, s%d" % (sT0, sT0, sT1))
    a("v_add_u32 v2, s%d, v1" % sT0)
    a("v_lshlrev_b32 v2, 1, v2")
    a("s_lshl_b32 s%d, s%d, 1" % (sT1, sCH))
    a("v_mov_b32 v3, s%d" % sT1)
    a("s_waitcnt lgkmcnt(0)")
    P = [[20, 21, 22, 23, 24, 25], [120, 121, 122, 123, 124, 125]]
    a.vm("global_load_ushort v26, v3, s[30:31]", "param")
    for it in range(2):
        for i in range(6):
            a.vm("global_load_ushort v%d, v2, s[%d:%d] offset:%d" % (P[it][i], 18 + 2 * i, 19 + 2 * i, it * 128), "param")
    a.vm("global_load_ushort v160, v3, s[60:61]", "param")
    if "l2pf" in EXP:
        assert not MAPB
        srd(a, SWG, 32, 448 * 3584); srd(a, SWU, 34, 448 * 3584); srd(a, SX, 16, 2048 * 896)
        a("s_lshr_b32 s%d, s2, 3" % sT0); a("s_sub_u32 s%d, s%d, 4" % (sT0, sT0)); a("s_lshl_b32 s%d, s%d, 2" % (sT0, sT0)); a("s_add_u32 s%d, s%d, s%d" % (sT0, sT0, sKW))
        a("v_mul_u32_u24 v16, 4682, v1"); a("v_lshrrev_b32 v16, 16, v16")
        a("v_mul_u32_u24 v17, 14, v16"); a("v_sub_u32 v17, v1, v17")
        a("v_min_u32 v16, 3, v16")
        a("v_mul_u32_u24 v16, 3584, v16"); a("v_lshl_add_u32 v16, v17, 7, v16")
        a("s_mul_i32 s%d, s%d, %d" % (sT1, sT0, 4 * 3584))
        a("s_and_b32 s%d, s2, 1" % sT2); a("s_mul_i32 s%d, s%d, 1792" % (sT2, sT2)); a("s_add_u32 s%d, s%d, s%d" % (sT1, sT1, sT2))
        a("v_lshrrev_b32 v17, 3, v1"); a("v_min_u32 v17, 4, v17"); a("s_mul_i32 s%d, s%d, 5" % (sT2, sT0)); a("v_add_u32 v17, s%d, v17" % sT2)
        a("v_min_u32 v17, 511, v17"); a("v_mul_u32_u24 v17, 896, v17")
        a("v_and_b32 v18, 7, v1"); a("v_min_u32 v18, 6, v18"); a("v_lshl_add_u32 v17, v18, 7, v17")
        a("s_bfe_u32 s%d, s2, 0x20001" % sT2); a("s_mul_i32 s%d, s%d, %d" % (sT2, sT2, 512 * 896))
        a("s_sleep %d" % int(os.environ.get("PFS", "0")))
        a.vm("buffer_load_dword v200, v16, s[%d:%d], s%d offen" % (SWG, SWG + 3, sT1), "pf")
        a.vm("buffer_load_dword v201, v16, s[%d:%d], s%d offen" % (SWU, SWU + 3, sT1), "pf")
        a.vm("buffer_load_dword v202, v17, s[%d:%d], s%d offen" % (SX, SX + 3, sT2), "pf")
    srd(a, SWS, 14, WS_SIZE)
    a("s_mul_i32 s%d, s%d, %d" % (sSTG, sKW, STG_W))
    a("s_add_u32 s%d, s%d, %d" % (sSTG, sSTG, L_STG))
    a("v_and_b32 v7, 15, v1")
    a("v_lshrrev_b32 v6, 4, v1")
    a("v_mul_u32_u24 v5, 272, v7")
    a("v_lshl_add_u32 v8, v6, 4, s%d" % sSTG)
    a("v_add_u32 v5, v5, v8")
    maps = [[0,1,2,3,4,5,6,7, 8,8,9,10,10,10,11,12],
            [0,0,0,1,1,1,2,2, 3,3,3,4,4,4,5,5],
            [6,6,6,6,6,7,7,7, 8,8,8,8,8,9,9,9],
            [10,10,10,10,10,11,11,11, 12,12,12,12,12,13,13,13]]
    XA = [12, 13, 14, 15]
    a("v_lshlrev_b32 v9, 2, v7")
    a("v_and_b32 v9, 31, v9")
    a("v_cmp_gt_u32 vcc, 8, v7")
    for t in range(4):
        lo = sum(maps[t][i] << (4 * i) for i in range(8)); hi = sum(maps[t][8 + i] << (4 * i) for i in range(8))
        a("v_mov_b32 v10, 0x%x" % hi); a("v_mov_b32 v11, 0x%x" % lo)
        a("v_cndmask_b32 v10, v10, v11, vcc")
        a("v_lshrrev_b32 v10, v9, v10")
        a("v_and_b32 v10, 15, v10")
        a("v_mul_u32_u24 v10, 272, v10")
        a("v_add_u32 v%d, v10, v8" % XA[t])
    D = lambda t, yt: 128 + 8 * t + 4 * yt
    for r in range(128, 160): a("v_mov_b32 v%d, 0" % r)
    a("s_add_u32 s%d, s%d, %d" % (sT0, sKW, L_SYNC)); a("v_mov_b32 v161, s%d" % sT0)
    a("s_xor_b32 s%d, s%d, 1" % (sT1, sKW)); a("s_add_u32 s%d, s%d, %d" % (sT1, sT1, L_SYNC)); a("v_mov_b32 v162, s%d" % sT1)
    a("v_mov_b32 v163, 1")
    srd(a, SDBG, 12, 256)
    a("s_and_b32 s%d, s2, 7" % sT0); a("s_lshl_b32 s%d, s%d, 8" % (sT0, sT0)); a("s_add_u32 s%d, s%d, %d" % (sT0, sT0, WS_PF))
    a("v_lshl_add_u32 v112, v1, 2, s%d" % sT0)
    a("v_mov_b32 v113, 64")
    a("v_mov_b32 v114, %d" % (L_SYNC + Y_RDA))
    a("s_cmp_lg_u32 s%d, 0" % sKW)
    a("s_cselect_b32 s%d, 0, 1" % sPM)
    def poll(issue=True):
        l = L("PE"); l2 = L("PE")
        a("s_cmp_eq_u32 s%d, 0" % sPM)
        a("s_cbranch_scc1 %s" % l)
        a.begin_opt()
        a("buffer_load_dword v115, v112, s[%d:%d], 0 offen sc1" % (SWS, SWS + 3))
        a("s_waitcnt vmcnt(0)")
        a("v_cmp_ne_u32 vcc, s%d, v115" % sNON)
        a("s_cmp_lg_u32 vcc_lo, 0")
        a("s_cbranch_scc1 %s" % l)
        a("s_mov_b64 exec, 1")
        a("ds_write_b8 v114, v163")
        a("s_cmp_lg_u32 vcc_hi, 0")
        a("s_cbranch_scc1 %s" % l2)
        a("ds_write_b8 v114, v163 offset:1")
        a("s_mov_b32 s%d, 0" % sPM)
        a.label(l2)
        a("s_mov_b64 exec, -1")
        a.end_opt()
        a.label(l)
    a("s_barrier")
    def setf(off):
        a("s_mov_b64 exec, 1")
        a("ds_write_b8 v161, v163 offset:%d" % off)
        a("s_mov_b64 exec, -1")
    def waitp(off, tmp=164, tmpa=165):
        a("v_add_u32 v%d, %d, v162" % (tmpa, off))
        spin_lds(tmpa, tmp, 1)
    k = a
    ln, ln2 = L("NF"), L("NF")
    a("s_cmp_eq_u32 s%d, 0" % sPM)
    a("s_cbranch_scc1 %s" % ln2)
    a.begin_opt()
    get_nonce(a, L, 113, 116)
    a("s_mov_b64 exec, 1")
    a("ds_write_b64 v114, v[116:117] offset:%d" % (Y_NON - Y_RDA))
    a("s_mov_b64 exec, -1")
    a.end_opt()
    a.label(ln2)
    a.wait_vm("param")
    sk_("param")
    for it in range(2):
        for r in P[it]: k("v_lshlrev_b32 v%d, 16, v%d" % (r, r))
    k("v_lshlrev_b32 v26, 16, v26")
    k("v_mul_f32 v26, %s, v26" % fbits(LOG2E))
    k("v_exp_f32 v26, v26")
    k("v_cvt_pk_bf16_f32 v26, v26, v26")
    k("v_lshlrev_b32 v26, 16, v26")
    WR = [28, 126]
    for it in range(2):
        p = P[it]
        k("v_mul_f32 v%d, v26, v%d" % (p[0], p[0])); k("v_mul_f32 v%d, v26, v%d" % (p[1], p[1]))
        k("v_mul_f32 v%d, v26, v%d" % (p[2], p[2])); k("v_mul_f32 v%d, v26, v%d" % (p[3], p[3]))
        w = WR[it]
        k("v_mul_f32 v%d, v%d, v%d" % (w, p[4], p[2])); k("v_fma_f32 v%d, -v%d, v%d, v%d" % (w, p[5], p[3], w))
        k("v_mul_f32 v%d, v%d, v%d" % (w + 1, p[4], p[3])); k("v_fma_f32 v%d, v%d, v%d, v%d" % (w + 1, p[5], p[2], w + 1))
    k("v_max_f32 v27, abs(v28), abs(v29)")
    k("v_max3_f32 v27, abs(v126), abs(v127), v27")
    for sh in (1, 2, 4, 8):
        k("v_max_f32_dpp v27, v27, v27 row_shr:%d row_mask:0xf bank_mask:0xf" % sh)
    k("v_max_f32_dpp v27, v27, v27 row_bcast:15 row_mask:0xa bank_mask:0xf")
    k("v_max_f32_dpp v27, v27, v27 row_bcast:31 row_mask:0xc bank_mask:0xf")
    k("v_readlane_b32 s%d, v27, 63" % sINV)
    k("s_lshr_b32 s%d, s%d, 23" % (sINV, sINV))
    k("s_sub_u32 s%d, 254, s%d" % (sSC, sINV))
    k("s_lshl_b32 s%d, s%d, 23" % (sSC, sSC))
    k("v_mov_b32 v10, s%d" % sINV)
    k("s_lshl_b32 s%d, s%d, 2" % (sT1, sKW))
    k("s_add_u32 s%d, s%d, %d" % (sT1, sT1, L_SYNC + Y_KEXP))
    k("v_mov_b32 v11, s%d" % sT1)
    k("ds_write_b32 v11, v10")
    for w in WR:
        k("v_mul_f32 v%d, s%d, v%d" % (w, sSC, w)); k("v_mul_f32 v%d, s%d, v%d" % (w + 1, sSC, w + 1))
    k("s_mov_b32 m0, s%d" % sSTG)
    E1, E8, E256, E2, E4, E16 = 30, 32, 34, 36, 38, 40
    tmpi = [0]
    def cmul(d, x, y):
        t = 42 + (tmpi[0] & 3); tmpi[0] += 1
        assert d != y
        k("v_mul_f32 v%d, v%d, v%d" % (t, x, y + 1))
        k("v_mul_f32 v%d, v%d, v%d" % (d, x, y))
        k("v_fma_f32 v%d, -v%d, v%d, v%d" % (d, x + 1, y + 1, d))
        k("v_fma_f32 v%d, v%d, v%d, v%d" % (d + 1, x + 1, y, t))
    PK = [46, 47, 48, 49]; pki = [0]
    def put(row, r, negim=False):
        p = PK[pki[0] & 3]; pki[0] += 1
        k("v_cvt_pk_f16_f32 v%d, v%d, %sv%d" % (p, r, "-" if negim else "", r + 1))
        k("ds_write_addtid_b32 v%d offset:%d" % (p, row * 272))
    YF = [64, 80]; XFB = 96
    for it in range(2 if "nokgen" not in EXP else 0):
        are, aim = P[it][0], P[it][1]
        X0 = WR[it]
        def cexp(d, Lx):
            k("v_mul_f32 v16, %s, v%d" % (fbits(Lx * LOG2E), are))
            k("v_mul_f32 v17, %s, v%d" % (fbits(Lx / (2 * math.pi)), aim))
            k("v_exp_f32 v16, v16")
            k("v_fract_f32 v17, v17")
            k("v_cos_f32 v%d, v17" % d)
            k("v_sin_f32 v%d, v17" % (d + 1))
            k("v_mul_f32 v%d, v16, v%d" % (d, d))
            k("v_mul_f32 v%d, v16, v%d" % (d + 1, d + 1))
        cexp(E8, 8); cexp(E1, 1); cexp(E256, 256)
        cmul(E16, E8, E8); cmul(E2, E1, E1); cmul(E4, E2, E2)
        Ya, Yb = 50, 52
        k("v_mov_b32 v50, 1.0"); k("v_mov_b32 v51, 0")
        put(0, Ya); put(1, E8)
        cmul(Yb, E8, E16)
        put(2, E16); put(3, Yb)
        cmul(Ya, E16, E16)
        for j in range(4, 32, 2):
            cmul(Yb, Yb, E16)
            put(j & 15, Ya); put((j + 1) & 15, Yb)
            if j + 2 < 32: cmul(Ya, Ya, E16)
            if j == 14:
                for ks in range(4): k("ds_read_b128 %s, v5 offset:%d" % (vr(YF[0] + 4 * ks, 4), ks * 64))
        for ks in range(4): k("ds_read_b128 %s, v5 offset:%d" % (vr(YF[1] + 4 * ks, 4), ks * 64))
        Xa, Xb, Xc = 54, 56, 58
        put(0, X0, True)
        cmul(Xa, X0, E1); cmul(Xb, X0, E256)
        put(1, Xa, True); put(8, Xb, True)
        cmul(Xc, Xb, E2)
        for r in range(2, 8):
            cmul(Xa, Xa, E1); put(r, Xa, True)
            if r <= 5:
                put(9 + (r - 2), Xc, True)
                if r < 5: cmul(Xc, Xc, E2)
        def xtile(t):
            for ks in range(4): k("ds_read_b128 %s, v%d offset:%d" % (vr(XFB + 4 * ks, 4), XA[t], ks * 64))
        def xmfma(t):
            for ks in range(4):
                for yt in range(2):
                    k("v_mfma_f32_16x16x32_f16 %s, %s, %s, %s" % (vr(D(t, yt), 4), vr(XFB + 4 * ks, 4), vr(YF[yt] + 4 * ks, 4), vr(D(t, yt), 4)))
        xtile(0)
        for b in range(2):
            cmul(Xb, Xb, E256); put(3 * b, Xb, True)
            cmul(Xc, Xb, E4); put(3 * b + 1, Xc, True)
            cmul(Xa, Xb, E8); put(3 * b + 2, Xa, True)
        k("s_waitcnt lgkmcnt(6)")
        xmfma(0)
        xtile(1)
        for b in range(4):
            cmul(Xb, Xb, E256); put(6 + 2 * b, Xb, True)
            cmul(Xa, Xb, E8); put(7 + 2 * b, Xa, True)
        k("s_waitcnt lgkmcnt(8)")
        xmfma(1)
        for t in (2, 3):
            xtile(t)
            k("s_waitcnt lgkmcnt(0)")
            xmfma(t)
    sk_("kgen")
    poll()
    a("v_lshl_add_u32 v18, v1, 4, s%d" % sSTG)
    a("s_xor_b32 s%d, s%d, 1" % (sT0, sKW))
    a("s_mul_i32 s%d, s%d, %d" % (sT0, sT0, STG_W))
    a("s_add_u32 s%d, s%d, %d" % (sT0, sT0, L_STG))
    a("v_lshl_add_u32 v19, v1, 4, s%d" % sT0)
    x1, x2 = L("X"), L("X")
    a("s_cmp_lg_u32 s%d, 0" % sHF)
    a("s_cbranch_scc1 %s" % x1)
    a.begin_opt()
    for i in range(4): a("ds_write_b128 v18, %s offset:%d" % (vr(144 + 4 * i, 4), i * 1024))
    a("s_branch %s" % x2)
    a.end_opt()
    a.label(x1)
    a.begin_opt()
    for i in range(4): a("ds_write_b128 v18, %s offset:%d" % (vr(128 + 4 * i, 4), i * 1024))
    for i in range(16): a("v_mov_b32 v%d, v%d" % (128 + i, 144 + i))
    a.end_opt()
    a.label(x2)
    setf(Y_KX)
    waitp(Y_KX)
    a("s_and_b32 s%d, s%d, 2" % (sT0, sKW))
    a("s_lshl_b32 s%d, s%d, 2" % (sT0, sT0))
    a("s_add_u32 s%d, s%d, %d" % (sT0, sT0, L_SYNC + Y_KEXP))
    a("v_mov_b32 v10, s%d" % sT0)
    a("ds_read_b64 v[10:11], v10")
    for i in range(4): a("ds_read_b128 %s, v19 offset:%d" % (vr(144 + 4 * i, 4), i * 1024))
    a("s_waitcnt lgkmcnt(4)")
    a("v_max_u32 v16, v10, v11")
    a("v_add_u32 v17, v10, v11"); a("v_subrev_u32 v17, s%d, v17" % sINV)
    def fac(dst, esrc):
        a("v_sub_u32 v%d, %s, v16" % (dst, esrc))
        a("v_add_u32 v%d, 127, v%d" % (dst, dst))
        a("v_max_i32 v%d, 0, v%d" % (dst, dst))
        a("v_lshlrev_b32 v%d, 23, v%d" % (dst, dst))
    fac(20, "s%d" % sINV); fac(22, "v17")
    a("v_lshlrev_b32 v9, 23, v16")
    a("s_waitcnt lgkmcnt(0)")
    for i in range(16):
        a("v_mul_f32 v%d, v20, v%d" % (128 + i, 128 + i))
        a("v_fmac_f32 v%d, v22, v%d" % (128 + i, 144 + i))
    a("v_and_b32 v10, v6, v7"); a("v_and_b32 v10, s%d, v10" % sHF)
    a("v_cmp_ne_u32 vcc, 0, v10")
    for i in range(4): a("v_cndmask_b32 v%d, v%d, v%d, vcc" % (128 + 4 * i, 128 + 4 * i, 129 + 4 * i))
    a("v_lshrrev_b32 v10, 1, v6"); a("v_lshlrev_b32 v10, 9, v10")
    a("v_lshl_add_u32 v10, v7, 4, v10")
    a("v_and_b32 v11, 1, v6"); a("v_lshl_add_u32 v10, v11, 3, v10")
    a("s_add_u32 s%d, s%d, %d" % (sT0, sCVB, 4088 - 1024 - 256))
    a("s_lshl_b32 s%d, s%d, 11" % (sT2, sHF))
    a("s_sub_u32 s%d, s%d, s%d" % (sT0, sT0, sT2))
    a("v_sub_u32 v10, s%d, v10" % sT0)
    for tl in range(2):
        for yt in range(2):
            b = 128 + 8 * tl + 4 * yt
            a("v_cvt_pk_f16_f32 v%d, v%d, v%d" % (64 + 4 * tl + 2 * yt, b + 3, b + 2))
            a("v_cvt_pk_f16_f32 v%d, v%d, v%d" % (65 + 4 * tl + 2 * yt, b + 1, b))
    a("v_and_b32 v11, 3, v1"); a("v_add_u32 v11, %d, v11" % (L_SYNC + Y_CNT))
    poll()
    spin_lds(11, 164, 10, slp=4, off=Y_RD)
    for tl in range(2):
        for yt in range(2):
            a("ds_write_b64 v10, %s offset:%d" % (vr(64 + 4 * tl + 2 * yt, 2), (1 - tl) * 1024 + (1 - yt) * 256))
    if "dbgk" in EXP:
        a("s_mul_i32 s%d, s%d, %d" % (sT0, sCH, KSTRIDE)); a("s_sub_u32 s%d, s%d, s%d" % (sT0, sT0, sCVB)); a("s_add_u32 s%d, s%d, %d" % (sT0, sT0, WS_KREV))
        for tl in range(2):
            for yt in range(2):
                a("buffer_store_dwordx2 %s, v10, s[%d:%d], s%d offen offset:%d" % (vr(64 + 4 * tl + 2 * yt, 2), SWS, SWS + 3, sT0, (1 - tl) * 1024 + (1 - yt) * 256))
        a("s_lshl_b32 s%d, s%d, 2" % (sT0, sCH)); a("s_add_u32 s%d, s%d, %d" % (sT0, sT0, WS_KSC)); a("v_mov_b32 v11, s%d" % sT0)
        a("buffer_store_dword v9, v11, s[%d:%d], 0 offen" % (SWS, SWS + 3))
    a("s_setprio %d" % int(os.environ.get("CPRIO", "1")))
    a("v_mov_b32 v2, v7"); a("v_mov_b32 v3, v6")
    a("v_lshlrev_b32 v4, 4, v1")
    a("v_mov_b32 v12, 0"); a("v_mov_b32 v13, 0"); a("v_mov_b32 v14, 0"); a("v_mov_b32 v15, 0")
    a("v_add_u32 v5, %d, v4" % O_U)
    a("v_bfe_u32 v6, v1, 2, 2")
    a("v_mul_u32_u24 v6, %d, v6" % CPS)
    a("v_and_b32 v7, 3, v1")
    a("v_lshl_add_u32 v6, v7, 4, v6")
    a("v_add_u32 v6, 4096, v6")
    a("v_cmp_gt_u32 vcc, 32, v1")
    a("v_cndmask_b32 v5, v6, v5, vcc")
    a("v_add_u32 v5, s%d, v5" % sCVB)
    nz = L("NZ")
    a("s_cmp_lg_u32 s%d, 0" % sHF)
    a("s_cbranch_scc1 %s" % nz)
    a.begin_opt()
    a("s_mov_b32 exec_lo, 0x3fffffff"); a("s_mov_b32 exec_hi, 0xffff")
    a("ds_write_b128 v5, v[12:15]")
    a("s_mov_b64 exec, -1")
    a.end_opt()
    a.label(nz)
    setf(Y_C0)
    a("v_sub_u32 v5, 3, v2"); a("v_and_b32 v5, 3, v5")
    a("v_mul_u32_u24 v6, %d, v5" % CPS)
    a("v_add_u32 v7, v2, v5")
    a("v_sub_u32 v7, %d, v7" % (2031 - 16 * 126))
    a("v_lshl_add_u32 v7, v3, 3, v7")
    a("v_lshl_add_u32 v6, v7, 1, v6")
    a("s_lshl_b32 s%d, s%d, 8" % (sT0, sHF))
    a("s_sub_u32 s%d, s%d, s%d" % (sT1, sCVB, sT0))
    a("v_add_u32 v6, s%d, v6" % sT1)
    a("v_lshlrev_b32 v7, 5, v2")
    a("v_lshl_add_u32 v7, v3, 4, v7")
    a("v_add_u32 v7, %d, v7" % O_U)
    a("v_add_u32 v7, s%d, v7" % sT1)
    a("s_add_u32 s%d, s%d, s%d" % (sT3, sCVB, sT2))
    a("v_add_u32 v5, s%d, v4" % sT3)
    waitp(Y_C0)
    for it in range(2):
        b = 32 + 8 * it
        a("ds_read_b128 %s, v5 offset:%d" % (vr(b, 4), it * 1024))
        a("ds_read_b64 %s, v5 offset:%d" % (vr(b + 4, 2), it * 1024 + 16))
    for it in range(2):
        b = 32 + 8 * it
        a("s_waitcnt lgkmcnt(%d)" % (2 if it == 0 else 3))
        d = [b + i for i in range(6)]
        c1, c2, c3 = 64 + 12 * it, 68 + 12 * it, 72 + 12 * it
        for i in range(4):
            a("v_alignbit_b32 v%d, v%d, v%d, 16" % (c1 + i, d[i + 1], d[i]))
            a("v_mov_b32 v%d, v%d" % (c2 + i, d[i + 1]))
            a("v_alignbit_b32 v%d, v%d, v%d, 16" % (c3 + i, d[i + 2], d[i + 1]))
        a("ds_write_b128 v5, %s offset:%d" % (vr(c1, 4), CPS + it * 1024))
        a("ds_write_b128 v5, %s offset:%d" % (vr(c2, 4), 2 * CPS + it * 1024))
        a("ds_write_b128 v5, %s offset:%d" % (vr(c3, 4), 3 * CPS + it * 1024))
    sk_("copies")
    lq, lq2 = L("PB"), L("PB")
    a("s_mov_b32 s%d, %d" % (sOX, SPIN))
    a.label(lq)
    poll()
    a("s_cmp_eq_u32 s%d, 0" % sPM)
    a("s_cbranch_scc1 %s" % lq2)
    a("s_sleep %d" % int(os.environ.get("PSL", "6")))
    a("s_sub_u32 s%d, s%d, 1" % (sOX, sOX)); a("s_cmp_lg_u32 s%d, 0" % sOX)
    a("s_cbranch_scc1 %s" % lq)
    a.label(lq2)
    a("v_mov_b32 v10, %d" % (L_SYNC + Y_RDB))
    spin_lds(10, 164, 1, slp=4)
    sk_("rdyB")
    a("ds_read_b64 v[166:167], v10 offset:%d" % (Y_NON - Y_RDB))
    a("s_lshl_b32 s%d, s%d, 12" % (sT1, sCH))
    a("s_add_u32 s%d, s%d, %d" % (sT1, sT1, WS_XNT))
    a("s_add_u32 s%d, s%d, s%d" % (sT1, sT1, sT2))
    a("s_add_u32 m0, s%d, %d" % (sT3, O_U + 480))
    a.vm("buffer_load_dwordx4 v4, s[%d:%d], s%d offen lds" % (SWS, SWS + 3, sT1), "u")
    a.vm("buffer_load_dwordx4 v4, s[%d:%d], s%d offen offset:1024 lds" % (SWS, SWS + 3, sT1), "u")
    CA = 16; G = 64; F = 96
    for r in range(CA, CA + 32): a("v_mov_b32 v%d, 0" % r)
    a.wait_vm("u")
    a("s_waitcnt lgkmcnt(0)")
    setf(Y_BL)
    waitp(Y_BL)
    sk_("built")
    def rg(ri, q):
        o = 32 * (126 - 16 * q - 2 * ri)
        a("ds_read_b64 %s, v6 offset:%d" % (vr(G + 4 * q, 2), o))
        a("ds_read_b64 %s, v6 offset:%d" % (vr(G + 4 * q + 2, 2), o + 8))
    def rf(ri, j):
        a("ds_read_b128 %s, v7 offset:%d" % (vr(F + 4 * j, 4), 32 * (16 * j - 2 * ri + 14)))
    for q in range(8): rg(0, q); rf(0, 7 - q)
    for ri in range(4 if "noconv" not in EXP else 0):
        for q in range(8):
            for m in range(7, q - 1, -1):
                if q == 0:
                    a("s_waitcnt lgkmcnt(%d)" % min(15, 3 * m))
                a("v_mfma_f32_16x16x32_f16 %s, %s, %s, %s" % (vr(CA + 4 * m, 4), vr(G + 4 * q, 4), vr(F + 4 * (m - q), 4), vr(CA + 4 * m, 4)))
            if ri + 1 < 4: rg(ri + 1, q); rf(ri + 1, 7 - q)
    sk_("mfma")
    a("v_lshl_add_u32 v5, v1, 4, s%d" % sSTG)
    x1, x2 = L("X"), L("X")
    a("s_cmp_lg_u32 s%d, 0" % sHF)
    a("s_cbranch_scc1 %s" % x1)
    a.begin_opt()
    for i in range(4): a("ds_write_b128 v5, %s offset:%d" % (vr(CA + 16 + 4 * i, 4), i * 1024))
    a("s_branch %s" % x2)
    a.end_opt()
    a.label(x1)
    a.begin_opt()
    for i in range(4): a("ds_write_b128 v5, %s offset:%d" % (vr(CA + 4 * i, 4), i * 1024))
    for i in range(16): a("v_mov_b32 v%d, v%d" % (CA + i, CA + 16 + i))
    a.end_opt()
    a.label(x2)
    setf(Y_CX)
    a("v_lshlrev_b32 v13, 5, v2")
    a("v_lshl_add_u32 v13, v3, 3, v13")
    a("v_add_u32 v13, s%d, v13" % sT2)
    a("s_add_u32 s%d, s%d, %d" % (sT1, sCVB, O_U + 480))
    a("v_add_u32 v14, s%d, v13" % sT1)
    for i in range(4): a("ds_read_b64 %s, v14 offset:%d" % (vr(64 + 2 * i, 2), i * 512))
    a("v_lshlrev_b32 v8, 16, v160")
    a("s_waitcnt lgkmcnt(0)")
    for i in range(4):
        for pr in range(2):
            xw = 64 + 2 * i + pr; o = 80 + 4 * i + 2 * pr
            a("v_cvt_f32_f16 v%d, v%d" % (o, xw))
            a("v_lshrrev_b32 v%d, 16, v%d" % (o + 1, xw)); a("v_cvt_f32_f16 v%d, v%d" % (o + 1, o + 1))
            a("v_mul_f32 v%d, v8, v%d" % (o, o)); a("v_mul_f32 v%d, v8, v%d" % (o + 1, o + 1))
            a("v_cvt_pk_bf16_f32 v%d, v%d, v%d" % (o, o, o + 1))
            a("v_and_b32 v%d, 0xffff0000, v%d" % (o + 1, o)); a("v_lshlrev_b32 v%d, 16, v%d" % (o, o))
    waitp(Y_CX)
    a("s_xor_b32 s%d, s%d, 1" % (sT0, sKW))
    a("s_mul_i32 s%d, s%d, %d" % (sT0, sT0, STG_W))
    a("s_add_u32 s%d, s%d, %d" % (sT0, sT0, L_STG))
    a("v_lshl_add_u32 v6, v1, 4, s%d" % sT0)
    for i in range(4): a("ds_read_b128 %s, v6 offset:%d" % (vr(CA + 16 + 4 * i, 4), i * 1024))
    a("s_lshl_b32 s%d, s%d, 12" % (sT0, sCH))
    a("s_add_u32 s%d, s%d, %d" % (sT0, sT0, WS_YAT))
    for i in range(4):
        a("s_waitcnt lgkmcnt(%d)" % (3 - i))
        for pr in range(2):
            y = CA + 4 * i + 2 * pr; o = 80 + 4 * i + 2 * pr
            a("v_add_f32 v%d, v%d, v%d" % (y, y, y + 16)); a("v_add_f32 v%d, v%d, v%d" % (y + 1, y + 1, y + 17))
            a("v_mul_f32 v%d, v9, v%d" % (y, y)); a("v_mul_f32 v%d, v9, v%d" % (y + 1, y + 1))
            a("v_cvt_pk_bf16_f32 v%d, v%d, v%d" % (y, y, y + 1))
            a("v_and_b32 v%d, 0xffff0000, v%d" % (y + 1, y)); a("v_lshlrev_b32 v%d, 16, v%d" % (y, y))
            a("v_add_f32 v%d, v%d, v%d" % (y, y, o)); a("v_add_f32 v%d, v%d, v%d" % (y + 1, y + 1, o + 1))
            a("v_cvt_pk_bf16_f32 v%d, v%d, v%d" % (72 + 2 * i + pr, y, y + 1))
        a("buffer_store_dwordx2 %s, v13, s[%d:%d], s%d offen offset:%d sc1" % (vr(72 + 2 * i, 2), SWS, SWS + 3, sT0, i * 512))
    setf(Y_XR)
    a("s_lshl_b32 s%d, s%d, 4" % (sT0, sCH))
    a("s_lshl_b32 s%d, s%d, 3" % (sT1, sHF))
    a("s_add_u32 s%d, s%d, s%d" % (sT0, sT0, sT1))
    a("s_add_u32 s%d, s%d, %d" % (sT0, sT0, WS_CF))
    a("v_mov_b32 v14, s%d" % sT0)
    a("v_readfirstlane_b32 s%d, v166" % sNON); a("v_readfirstlane_b32 s%d, v167" % (sNON + 1))
    a("s_lshl_b32 s%d, s%d, 10" % (sT0, sCT))
    a("s_lshl_b32 s%d, s%d, 8" % (sT1, sKW))
    a("s_add_u32 s%d, s%d, s%d" % (sT0, sT0, sT1))
    a("s_lshr_b32 s%d, s%d, 4" % (sT1, sRT2)); a("s_lshl_b32 s%d, s%d, 3" % (sT1, sT1))
    a("s_add_u32 s%d, s%d, s%d" % (sT0, sT0, sT1))
    a("s_add_u32 s%d, s%d, %d" % (sT0, sT0, WS_CF))
    a("v_lshl_add_u32 v18, v2, 4, s%d" % sT0)
    a("s_lshl_b32 s%d, s%d, 4" % (sT0, sKW))
    a("v_lshrrev_b32 v19, 3, v1")
    a("v_add_u32 v19, s%d, v19" % sT0)
    a("s_lshl_b32 s%d, s%d, 6" % (sT0, sCT))
    a("v_add_u32 v19, s%d, v19" % sT0)
    a("v_lshlrev_b32 v19, 12, v19")
    a("v_and_b32 v20, 7, v1")
    a("v_lshl_add_u32 v19, v20, 4, v19")
    a("s_lshl_b32 s%d, s%d, 7" % (sT2, sRT2))
    a("s_add_u32 s%d, s%d, %d" % (sT2, sT2, WS_YAT))
    a("s_add_u32 s%d, s%d, %d" % (sT3, sT2, 8 * 4096))
    if "wbl2" in EXP: a("buffer_wbl2 sc1")
    a("s_waitcnt vmcnt(0)")
    a("s_mov_b64 exec, 1")
    a("buffer_store_dwordx2 v[166:167], v14, s[%d:%d], 0 offen sc1" % (SWS, SWS + 3))
    a("s_mov_b64 exec, -1")
    sk_("flag")
    a("s_setprio 0")
    a("s_sleep %d" % int(os.environ.get("CSL0", "8")))
    lp, ld = L("CP"), L("CP")
    a("s_mov_b32 s%d, %d" % (sOX, SPIN))
    a.label(lp)
    a("s_mov_b64 exec, 0xffff")
    a("buffer_load_dwordx2 v[20:21], v18, s[%d:%d], 0 offen sc1" % (SWS, SWS + 3))
    a("s_waitcnt vmcnt(0)")
    a("v_cmp_ne_u64 vcc, s[%d:%d], v[20:21]" % (sNON, sNON + 1))
    a("s_mov_b64 exec, -1")
    a("s_cbranch_vccz %s" % ld)
    a("s_sleep %d" % int(os.environ.get("CSL", "8")))
    a("s_sub_u32 s%d, s%d, 1" % (sOX, sOX)); a("s_cmp_lg_u32 s%d, 0" % sOX)
    a("s_cbranch_scc1 %s" % lp)
    a.label(ld)
    sk_("polled")
    a("buffer_load_dwordx4 v[104:107], v19, s[%d:%d], s%d offen" % (SWS, SWS + 3, sT2))
    a("buffer_load_dwordx4 v[108:111], v19, s[%d:%d], s%d offen" % (SWS, SWS + 3, sT3))
    waitp(Y_XR)
    a("s_waitcnt vmcnt(0)")
    a("ds_write_b128 v5, v[104:107]")
    a("ds_write_b128 v5, v[108:111] offset:1024")
    setf(Y_YA)
    a("s_waitcnt lgkmcnt(0)")
    sk_("end")
    sk_.store(100)
    a("s_endpgm")

def producer(a, sp_, L):
    a.label("K_PROD")
    a.vmq = []
    XT_S = 912
    L_PC = 64 * XT_S
    a("v_lshrrev_b32 v2, 3, v1")
    a("v_and_b32 v3, 7, v1")
    a("s_lshl_b32 s%d, s%d, 3" % (sT0, sWV))
    a("v_add_u32 v4, s%d, v2" % sT0)
    a("s_lshl_b32 s%d, s2, 6" % sT1)
    a("v_add_u32 v5, s%d, v4" % sT1)
    a("v_mul_u32_u24 v6, 896, v5")
    a("v_lshl_add_u32 v6, v3, 4, v6")
    a("s_lshr_b32 s%d, s%d, 1" % (sT1, sWV))
    a("s_mul_i32 s%d, s%d, %d" % (sT1, sT1, 112 * 3584))
    a("s_min_u32 s%d, s2, 27" % sT2)
    a("s_lshl_b32 s%d, s%d, 7" % (sT2, sT2))
    a("s_add_u32 s%d, s%d, s%d" % (sT1, sT1, sT2))
    a("s_movk_i32 s%d, 3584" % sT2)
    a("v_mul_lo_u32 v9, v2, s%d" % sT2)
    a("v_lshl_add_u32 v9, v3, 4, v9")
    a("v_add_u32 v9, s%d, v9" % sT1)
    a("s_waitcnt lgkmcnt(0)")
    srd(a, SX, 16, 2048 * 896)
    for i in range(7):
        a.vm("buffer_load_dwordx4 %s, v6, s[%d:%d], 0 offen offset:%d" % (vr(32 + 4 * i, 4), SX, SX + 3, i * 128), "x%d" % i)
    a("s_bitcmp0_b32 s%d, 0" % sWV)
    a("s_cselect_b32 s%d, s32, s34" % SWG)
    a("s_cselect_b32 s%d, s33, s35" % (SWG + 1))
    a("s_and_b32 s%d, s%d, 0xffff" % (SWG + 1, SWG + 1))
    a("s_mov_b32 s%d, 0x%x" % (SWG + 2, 448 * 3584))
    a("s_mov_b32 s%d, 0x00020000" % (SWG + 3))
    for i in range(14):
        a("s_mov_b32 s%d, %d" % (sOW, i * 8 * 3584))
        a.vm("buffer_load_dwordx4 %s, v9, s[%d:%d], s%d offen" % (vr(64 + 4 * i, 4), SWG, SWG + 3, sOW), "w%d" % i)
    srd(a, SWS, 14, WS_SIZE)
    srd(a, SDBG, 12, 256)
    a("s_mov_b32 s%d, 0x3f803f80" % sONES)
    ln = L("NN")
    a("s_or_b32 s%d, s2, s%d" % (sT0, sWV))
    a("s_cbranch_scc1 %s" % ln)
    a.begin_opt()
    a("s_memrealtime s[%d:%d]" % (sNON, sNON + 1))
    a("s_waitcnt lgkmcnt(0)")
    a("s_or_b32 s%d, s%d, 0x40000000" % (sNON + 1, sNON + 1))
    a("v_mov_b32 v12, s%d" % sNON); a("v_mov_b32 v13, s%d" % (sNON + 1)); a("v_mov_b32 v14, 64")
    a("s_mov_b64 exec, 1")
    a("buffer_store_dwordx2 v[12:13], v14, s[%d:%d], 0 offen sc1" % (SDBG, SDBG + 3))
    a("s_mov_b64 exec, -1")
    a.end_opt()
    a.label(ln)
    a("v_mov_b32 v10, 0"); a("v_mov_b32 v11, 0"); a("v_mov_b32 v12, 0"); a("v_mov_b32 v13, 0")
    a("v_mul_u32_u24 v7, %d, v4" % XT_S)
    a("v_lshl_add_u32 v7, v3, 4, v7")
    a("v_lshlrev_b32 v8, 4, v5")
    for i in range(7):
        a.wait_vm("x%d" % i)
        for r in range(4):
            a("v_dot2_f32_bf16 v%d, v%d, s%d, v%d" % (10 + 2 * (r & 1), 32 + 4 * i + r, sONES, 10 + 2 * (r & 1)))
            a("v_dot2_f32_bf16 v%d, v%d, v%d, v%d" % (11 + 2 * (r & 1), 32 + 4 * i + r, 32 + 4 * i + r, 11 + 2 * (r & 1)))
    a("v_add_f32 v10, v10, v12"); a("v_add_f32 v11, v11, v13")
    for mod in ("quad_perm:[1,0,3,2]", "quad_perm:[2,3,0,1]", "row_half_mirror"):
        for r in (10, 11):
            a("v_add_f32_dpp v%d, v%d, v%d %s row_mask:0xf bank_mask:0xf" % (r, r, r, mod))
    c = math.sqrt(2 / math.pi); k1 = -2 * c * LOG2E; k2 = k1 * 0.044715
    a("v_mul_f32 v10, %s, v10" % fbits(1.0 / 448))
    a("v_mul_f32 v11, %s, v11" % fbits(1.0 / 448))
    a("v_fma_f32 v11, -v10, v10, v11")
    a("v_max_f32 v11, 0, v11")
    a("v_cvt_pk_bf16_f32 v10, v10, v11")
    a("v_lshlrev_b32 v12, 16, v10")
    a("v_and_b32 v11, 0xffff0000, v10")
    a("v_add_f32 v11, %s, v11" % fbits(1e-5))
    a("v_cvt_pk_bf16_f32 v11, v11, v11")
    a("v_lshlrev_b32 v11, 16, v11")
    a("v_sqrt_f32 v11, v11")
    a("v_cvt_pk_bf16_f32 v11, v11, v11")
    a("v_lshlrev_b32 v11, 16, v11")
    a("v_rcp_f32 v14, v11")
    a("v_sub_f32 v16, 0, v12")
    a("v_mul_f32 v19, v11, v11")
    a("v_mul_f32 v17, %s, v14" % fbits(k1))
    a("v_mul_f32 v10, v14, v14"); a("v_mul_f32 v10, v10, v14")
    a("v_mul_f32 v18, %s, v10" % fbits(k2))
    a("s_mov_b32 s%d, %d" % (sT0, WS_RC))
    a("s_mov_b32 exec_lo, 0x01010101"); a("s_mov_b32 exec_hi, 0x01010101")
    a.vm("buffer_store_dwordx4 v[16:19], v8, s[%d:%d], s%d offen sc1" % (SWS, SWS + 3, sT0), "rc")
    a("s_mov_b64 exec, -1")
    sp_("stats")
    for r in range(120, 128): a("v_mov_b32 v%d, 0" % r)
    for i in range(14):
        a.wait_vm("w%d" % i)
        for r in range(4):
            w = 64 + 4 * i + r; t = 20 + 2 * (r & 1)
            a("v_lshlrev_b32 v%d, 16, v%d" % (t, w)); a("v_and_b32 v%d, 0xffff0000, v%d" % (t + 1, w))
            a("v_pk_add_f32 %s, %s, %s" % (vr(120 + 2 * r, 2), vr(120 + 2 * r, 2), vr(t, 2)))
    for r in range(120, 128): a("v_add_f32_dpp v%d, v%d, v%d row_ror:8 row_mask:0xf bank_mask:0xf" % (r, r, r))
    for op in ("v_permlane16_swap_b32", "v_permlane32_swap_b32"):
        for r in range(8): a("v_mov_b32 v%d, v%d" % (128 + r, 120 + r))
        for r in range(8): a("%s v%d, v%d" % (op, 120 + r, 128 + r))
        for r in range(8): a("v_add_f32 v%d, v%d, v%d" % (120 + r, 120 + r, 128 + r))
    a("s_lshl_b32 s%d, s%d, 8" % (sT0, sWV))
    a("s_add_u32 s%d, s%d, %d" % (sT0, sT0, L_PC))
    a("v_lshl_add_u32 v9, v3, 5, s%d" % sT0)
    a("s_mov_b64 exec, 0xff")
    a("ds_write_b128 v9, v[120:123]"); a("ds_write_b128 v9, v[124:127] offset:16")
    a("s_mov_b64 exec, -1")
    a("s_waitcnt vmcnt(0) lgkmcnt(0)"); a.vmq = []
    a("s_barrier")
    sp_("pbar")
    la = L("PA")
    a("s_cmp_lg_u32 s%d, 0" % sWV)
    a("s_cbranch_scc1 %s" % la)
    a.begin_opt()
    a("v_mov_b32 v20, 64")
    get_nonce(a, L, 20, 22)
    a("v_lshlrev_b32 v9, 2, v1")
    a("v_add_u32 v20, %d, v9" % L_PC)
    for i in range(8): a("ds_read_b32 v%d, v20 offset:%d" % (120 + i, i * 256))
    a("s_min_u32 s%d, s2, 27" % sT1)
    a("s_lshl_b32 s%d, s%d, 8" % (sT1, sT1)); a("s_add_u32 s%d, s%d, %d" % (sT0, sT1, WS_CS)); a("s_add_u32 s%d, s%d, 7168" % (sT1, sT0))
    a("s_waitcnt lgkmcnt(0)")
    for m in range(2):
        a("v_add_f32 v%d, v%d, v%d" % (120 + m, 120 + m, 122 + m)); a("v_add_f32 v%d, v%d, v%d" % (124 + m, 124 + m, 126 + m))
        a("v_add_f32 v%d, v%d, v%d" % (120 + m, 120 + m, 124 + m))
        a("buffer_store_dword v%d, v9, s[%d:%d], s%d offen sc1" % (120 + m, SWS, SWS + 3, (sT0, sT1)[m]))
    a.end_opt()
    a.label(la)
    for i in range(7):
        for r in range(4):
            w = 32 + 4 * i + r; t = 20 + 2 * (r & 1)
            a("v_lshlrev_b32 v%d, 16, v%d" % (t, w)); a("v_and_b32 v%d, 0xffff0000, v%d" % (t + 1, w))
            a("v_pk_add_f32 %s, %s, v[16:17] op_sel_hi:[1,0]" % (vr(t, 2), vr(t, 2)))
            a("v_cvt_pk_bf16_f32 v%d, v%d, v%d" % (t, t, t + 1))
            a("v_and_b32 v%d, 0xffff0000, v%d" % (t + 1, t)); a("v_lshlrev_b32 v%d, 16, v%d" % (t, t))
            a("v_pk_mul_f32 %s, %s, v[14:15] op_sel_hi:[1,0]" % (vr(t, 2), vr(t, 2)))
            a("v_cvt_pk_bf16_f32 v%d, v%d, v%d" % (t, t, t + 1))
            a("v_and_b32 v%d, 0xffff0000, v%d" % (t + 1, t)); a("v_lshlrev_b32 v%d, 16, v%d" % (t, t))
            a("v_cvt_pk_f16_f32 v%d, v%d, v%d" % (w, t, t + 1))
        a("ds_write_b128 v7, %s offset:%d" % (vr(32 + 4 * i, 4), i * 128))
    lb = L("PA")
    a("s_lshl_b32 s%d, s2, 2" % sT0); a("s_add_u32 s%d, s%d, %d" % (sT0, sT0, WS_PF))
    a("v_lshl_add_u32 v8, v1, 8, s%d" % sT0); a("v_mov_b32 v9, s%d" % sNON)
    a("s_cmp_lg_u32 s%d, 0" % sWV)
    a("s_cbranch_scc1 %s" % lb)
    a.begin_opt()
    a("s_waitcnt vmcnt(0)")
    a("s_mov_b64 exec, 0xff")
    a("buffer_store_dword v9, v8, s[%d:%d], 0 offen sc1" % (SWS, SWS + 3))
    a("s_mov_b64 exec, -1")
    a.end_opt()
    a.label(lb)
    sp_("flagA")
    a("s_waitcnt lgkmcnt(0)")
    a("s_barrier")
    a("v_lshrrev_b32 v4, 4, v1"); a("v_and_b32 v5, 15, v1")
    a("v_lshrrev_b32 v6, 2, v5"); a("v_lshl_add_u32 v6, v4, 3, v6")
    a("v_mul_u32_u24 v6, %d, v6" % XT_S)
    a("v_and_b32 v7, 3, v5"); a("v_lshl_add_u32 v6, v7, 3, v6")
    a("v_lshlrev_b32 v7, 12, v5"); a("v_lshl_add_u32 v7, v4, 4, v7")
    a("s_lshr_b32 s%d, s%d, 1" % (sT1, sWV)); a("s_and_b32 s%d, s%d, 1" % (sT0, sWV))
    a("s_mul_i32 s%d, s%d, %d" % (sOX, sT0, 32 * XT_S)); a("s_lshl_b32 s%d, s%d, 5" % (sOW, sT1)); a("s_add_u32 s%d, s%d, s%d" % (sOX, sOX, sOW))
    a("v_add_u32 v6, s%d, v6" % sOX)
    a("s_lshl_b32 s%d, s2, 7" % sT2); a("s_add_u32 s%d, s%d, %d" % (sT2, sT2, WS_XNT))
    a("s_lshl_b32 s%d, s%d, 16" % (sT1, sT1)); a("s_lshl_b32 s%d, s%d, 6" % (sT0, sT0))
    a("s_add_u32 s%d, s%d, s%d" % (sT1, sT1, sT0)); a("s_add_u32 s%d, s%d, s%d" % (sT1, sT1, sT2))
    for i in range(7):
        a("ds_read_b64_tr_b16 %s, v6 offset:%d" % (vr(32 + 4 * i, 2), i * 128))
        a("ds_read_b64_tr_b16 %s, v6 offset:%d" % (vr(34 + 4 * i, 2), i * 128 + 4 * XT_S))
    for i in range(7):
        a("s_waitcnt lgkmcnt(%d)" % (12 - 2 * i))
        a("buffer_store_dwordx4 %s, v7, s[%d:%d], s%d offen sc1" % (vr(32 + 4 * i, 4), SWS, SWS + 3, sT1))
        if i < 6: a("s_add_u32 s%d, s%d, %d" % (sT1, sT1, 4 << 16))
    sp_("st")
    a("s_waitcnt vmcnt(0)")
    a("s_barrier")
    a("s_cmp_lg_u32 s%d, 0" % sWV)
    a("s_cbranch_scc1 K_END")
    a("s_mov_b64 exec, 0xff")
    a("buffer_store_dword v9, v8, s[%d:%d], 0 offen offset:128 sc1" % (SWS, SWS + 3))
    a("s_mov_b64 exec, -1")
    sp_("end")
    sp_.store(100)
```

```python
import math, os, sys, struct
from asmlib import Asm
def fbits(x): return "0x%08x" % struct.unpack("<I", struct.pack("<f", x))[0]
LOG2E = math.log2(math.e)
def vr(b, n=1): return "v%d" % b if n == 1 else "v[%d:%d]" % (b, b + n - 1)
EXP = os.environ.get('EXP', '')
STAMP = int(os.environ.get("STAMP", "0"))
RT = os.environ.get("RT", "")
MAPB = int(os.environ.get("MAPB", "1"))
WS_H = 0; WS_XNT = 8 << 20; WS_KREV = 12 << 20; WS_KSC = 16 << 20
WS_HF = 17 << 20
WS_CF = 18 << 20
WS_PF = (18 << 20) + 65536
WS_RC = 19 << 20; WS_CS = (19 << 20) + 65536
WS_YAT = 20 << 20; WS_DBG = 24 << 20; WS_SIZE = 32 << 20
KSTRIDE = 4160
SPIN = 0x100000

def srd(a, d, p, nbytes):
    a("s_mov_b32 s%d, s%d" % (d, p))
    a("s_and_b32 s%d, s%d, 0xffff" % (d + 1, p + 1))
    a("s_mov_b32 s%d, 0x%x" % (d + 2, nbytes))
    a("s_mov_b32 s%d, 0x00020000" % (d + 3))

SX, SWG, SWU, SWS, SWD, SOUT, SDBG = 40, 44, 48, 52, 56, 60, 64
sWV, sR, sF, sWR, sWC, sRT2, sCT = 68, 69, 70, 71, 72, 73, 74
sLD = 75
sT0, sT1, sT2, sT3 = 76, 77, 78, 79
sOX, sOW, sWB, sCNT = 80, 81, 82, 83
sNON = 84
sPM = 86
sCH, sHF, sKW, sSC, sINV = 3, 4, 5, 6, 7
sONES, sCVB, sSTG = 38, 39, 36
STB = 88

class Stamps:
    def __init__(self, a, base=None):
        self.a = a; self.n = base.n if base else 0; self.names = list(base.names) if base else []
    def __call__(self, name):
        if not STAMP: return
        if RT and name not in ("start", "end"): return
        assert self.n < 12, name
        self.a("%s s[100:101]" % ("s_memrealtime" if RT else "s_memtime"))
        self.a("s_waitcnt lgkmcnt(0)")
        self.a("s_mov_b32 s%d, s100" % (STB + self.n))
        self.n += 1; self.names.append(name)
    def store(self, vt):
        if not STAMP: return
        a = self.a
        a("s_lshl_b32 s100, s2, 4"); a("s_add_u32 s100, s100, s%d" % sWV); a("s_lshl_b32 s100, s100, 6")
        a("s_add_u32 s100, s100, %d" % WS_DBG)
        a("s_mov_b64 exec, 1")
        a("v_mov_b32 v%d, s100" % vt)
        for i in range(self.n):
            a("v_mov_b32 v%d, s%d" % (vt + 1, STB + i))
            a("buffer_store_dword v%d, v%d, s[%d:%d], 0 offen offset:%d" % (vt + 1, vt, SWS, SWS + 3, 4 * i))
            a("s_waitcnt vmcnt(0)")
        a("s_mov_b64 exec, -1")

L_W = 0
L_X = [65536, 98304 + 17408, 81920]
RING = 98304
STG_W = 4352; L_STG = RING
L_CV = RING + 4 * STG_W
CPS = 4160; O_U = 4 * CPS; CV_CH = O_U + 4608
L_SYNC = L_CV + 2 * CV_CH
LDS = L_SYNC + 128
assert L_X[1] == L_CV and LDS <= 163840
Y_CNT = 0; Y_RDA = 8; Y_RDB = 9; Y_NON = 16; Y_KX = 24; Y_C0 = 28; Y_BL = 32; Y_CX = 36; Y_XR = 40; Y_YA = 44; Y_KEXP = 48; Y_RD = 64
W2R = 24576
L_EXTRA = L_CV

def gen():
    a = Asm()
    lab = [0]
    def L(p): lab[0] += 1; return "%s_%d" % (p, lab[0])
    st_ = Stamps(a)
    def spin_lds(addr, tmp, need, width="u8", slp=1, off=0):
        l1, l2 = L("SP"), L("SD")
        a("s_mov_b32 s%d, %d" % (sCNT, SPIN))
        a.label(l1)
        a("ds_read_%s v%d, v%d offset:%d" % (width, tmp, addr, off))
        a("s_waitcnt lgkmcnt(0)")
        a("v_cmp_gt_u32 vcc, %d, v%d" % (need, tmp))
        a("s_cbranch_vccz %s" % l2)
        if slp: a("s_sleep %d" % slp)
        a("s_sub_u32 s%d, s%d, 1" % (sCNT, sCNT))
        a("s_cmp_lg_u32 s%d, 0" % sCNT)
        a("s_cbranch_scc1 %s" % l1)
        a.label(l2)

    a("s_cmp_ge_u32 s2, 256")
    a("s_cbranch_scc1 K_END")
    st_("start")
    a("s_load_dwordx16 s[16:31], s[0:1], 0")
    a("s_load_dwordx4 s[32:35], s[0:1], 80")
    a("s_load_dwordx8 s[8:15], s[0:1], 96")
    a("v_lshrrev_b32 v1, 6, v0")
    a("v_readfirstlane_b32 s%d, v1" % sWV)
    a("v_and_b32 v1, 63, v0")
    a("s_cmp_lt_u32 s2, 32")
    a("s_cbranch_scc1 K_PROD")
    a("s_and_b32 s%d, s2, 7" % sT0)
    a("s_lshr_b32 s%d, s2, 3" % sT1)
    a("s_sub_u32 s%d, s%d, 4" % (sT1, sT1))
    if MAPB:
        a("s_and_b32 s%d, s%d, 1" % (sT3, sT1))
        a("s_lshl_b32 s%d, s%d, 1" % (sR, sT0)); a("s_add_u32 s%d, s%d, s%d" % (sR, sR, sT3))
        a("s_lshr_b32 s%d, s%d, 1" % (sF, sT1))
    else:
        a("s_lshr_b32 s%d, s%d, 1" % (sT2, sT0)); a("s_lshl_b32 s%d, s%d, 2" % (sT2, sT2))
        a("s_and_b32 s%d, s%d, 3" % (sT3, sT1)); a("s_add_u32 s%d, s%d, s%d" % (sR, sT2, sT3))
        a("s_and_b32 s%d, s%d, 1" % (sT2, sT0)); a("s_mul_i32 s%d, s%d, 7" % (sT2, sT2))
        a("s_lshr_b32 s%d, s%d, 2" % (sT3, sT1)); a("s_add_u32 s%d, s%d, s%d" % (sF, sT2, sT3))
    a("s_and_b32 s%d, s%d, 3" % (sT3, sT1))
    a("s_lshl_b32 s%d, s%d, 2" % (sRT2, sT0)); a("s_add_u32 s%d, s%d, s%d" % (sRT2, sRT2, sT3))
    a("s_lshr_b32 s%d, s%d, 2" % (sCT, sT1))
    a("s_cmp_ge_u32 s%d, 4" % sWV)
    a("s_cbranch_scc1 K_HELP")
    sf_ = Stamps(a, st_); sh_ = Stamps(a, st_); sp_ = Stamps(a, st_)
    NST = 14
    FPRIO = int(os.environ.get("FPRIO", "2"))
    a("s_setprio %d" % FPRIO)
    a("s_and_b32 s%d, s%d, 1" % (sWR, sWV))
    a("s_lshr_b32 s%d, s%d, 1" % (sWC, sWV))
    a("s_lshl_b32 s%d, s%d, 11" % (sWB, sWV))
    a("s_lshl_b32 s%d, s%d, 12" % (sOX, sWV))
    a("v_lshrrev_b32 v2, 3, v1")
    a("s_lshl_b32 s%d, s%d, 7" % (sT0, sR))
    a("s_lshl_b32 s%d, s%d, 5" % (sT1, sWV))
    a("s_add_u32 s%d, s%d, s%d" % (sT0, sT0, sT1))
    a("v_add_u32 v2, s%d, v2" % sT0)
    a("v_mul_u32_u24 v2, 896, v2")
    a("v_lshrrev_b32 v5, 4, v1")
    a("v_xor_b32 v6, v1, v5")
    a("v_and_b32 v6, 7, v6")
    a("v_xor_b32 v7, 4, v6")
    a("v_lshl_add_u32 v3, v7, 4, v2")
    a("v_add_u32 v3, %d, v3" % (8 * 896))
    a("v_lshl_add_u32 v2, v6, 4, v2")
    a("s_lshl_b32 s%d, s%d, 3" % (sT0, sWV))
    a("v_add_u32 v4, s%d, v5" % sT0)
    a("s_movk_i32 s%d, 3584" % sT1)
    a("v_mul_lo_u32 v4, v4, s%d" % sT1)
    a("v_lshlrev_b32 v6, 2, v5")
    a("v_xor_b32 v6, v1, v6")
    a("v_and_b32 v6, 15, v6")
    a("v_lshl_add_u32 v4, v6, 4, v4")
    a("s_lshl_b32 s%d, s%d, 8" % (sT0, sF))
    a("v_add_u32 v4, s%d, v4" % sT0)
    a("s_waitcnt lgkmcnt(0)")
    srd(a, SX, 16, 2048 * 896)
    srd(a, SWG, 32, 448 * 3584)
    srd(a, SWU, 34, 448 * 3584)
    def dma_x(b):
        out = []
        if "nodma" in EXP and b > 2: return out
        for i in range(4):
            out.append(["s_add_u32 m0, s%d, %d" % (sOX, L_X[b % 3] + i * 1024),
                        "s_movk_i32 s%d, %d" % (sOW, b * 128 + (i >> 1) * 16 * 896),
                        ("buffer_load_dwordx4 v%d, s[%d:%d], s%d offen lds" % (2 + (i & 1), SX, SX + 3, sOW), ("x", b))])
        return out
    def dma_w(st):
        out = []
        if "nodma" in EXP and st > 3: return out
        slot = st % 4
        for i in range(2):
            for mat in range(2):
                S = (SWG, SWU)[mat]
                g = []
                if mat == 0: g.append("s_mov_b32 s%d, %d" % (sOW, (st * 32 + 4 * i) * 3584))
                g.append("s_add_u32 m0, s%d, %d" % (sWB, L_W + slot * 16384 + mat * 8192 + i * 1024))
                g.append(("buffer_load_dwordx4 v4, s[%d:%d], s%d offen lds" % (S, S + 3, sOW), ("w", st)))
                out.append(g)
        return out
    def emit(g):
        for x in g:
            if callable(x): x()
            elif isinstance(x, tuple) and x[0].startswith("ds_"): a.ds(x[0], x[1])
            elif isinstance(x, tuple): a.vm(x[0], x[1])
            else: a(x)
    for g in dma_x(0) + dma_w(0) + dma_w(1) + dma_x(1) + dma_w(2): emit(g)

    srd(a, SWS, 14, WS_SIZE)
    srd(a, SWD, 8, 1792 * 896)
    srd(a, SOUT, 10, 2048 * 896)
    a("v_lshlrev_b32 v15, 2, v1")
    a("v_mov_b32 v13, 0")
    a("v_add_u32 v12, %d, v15" % L_SYNC)
    a("s_cmp_lg_u32 s%d, 0" % sWV)
    a("s_cselect_b32 exec_lo, 0, -1"); a("s_mov_b32 exec_hi, 0")
    a("ds_write_b32 v12, v13")
    a("s_mov_b64 exec, -1")
    a("s_waitcnt lgkmcnt(0)")
    a("s_barrier")
    for g in dma_w(3) + dma_x(2): emit(g)
    a("v_and_b32 v16, 31, v1")
    a("s_lshl_b32 s%d, s%d, 6" % (sT0, sWR))
    a("v_add_u32 v16, s%d, v16" % sT0)
    a("v_lshrrev_b32 v17, 5, v1")
    a("v_bfe_u32 v18, v1, 1, 3")
    a("v_xor_b32 v18, v17, v18")
    a("v_lshlrev_b32 v5, 7, v16")
    a("v_lshl_add_u32 v5, v18, 4, v5")
    a("v_add_u32 v5, 65536, v5")
    a("v_xor_b32 v6, 32, v5"); a("v_xor_b32 v7, 64, v5"); a("v_xor_b32 v8, 96, v5")
    a("v_bfe_u32 v19, v1, 2, 2")
    a("v_lshl_add_u32 v20, v17, 3, v19")
    a("v_lshlrev_b32 v9, 8, v20")
    a("v_bfe_u32 v20, v1, 4, 1"); a("v_lshlrev_b32 v20, 1, v20")
    a("v_bfe_u32 v21, v1, 1, 1"); a("v_add_u32 v20, v20, v21")
    a("s_lshl_b32 s%d, s%d, 3" % (sT0, sWC))
    a("v_add_u32 v20, s%d, v20" % sT0)
    a("v_lshlrev_b32 v21, 2, v19")
    a("v_xor_b32 v20, v20, v21")
    a("v_lshl_add_u32 v9, v20, 4, v9")
    a("v_and_b32 v21, 1, v1")
    a("v_lshl_add_u32 v9, v21, 3, v9")
    a("v_xor_b32 v0, 64, v9")
    a("v_and_b32 v11, 3, v1"); a("v_add_u32 v11, %d, v11" % (L_SYNC + Y_CNT))
    a("s_add_u32 s%d, s%d, %d" % (sT0, sWV, L_SYNC + Y_CNT)); a("v_mov_b32 v12, s%d" % sT0)
    a("v_mov_b32 v10, %d" % (L_SYNC + Y_RDA))
    a("s_lshl_b32 s%d, s%d, 11" % (sT0, sR)); a("s_add_u32 s%d, s%d, %d" % (sT0, sT0, WS_RC))
    a("v_lshl_add_u32 v18, v16, 4, s%d" % sT0)
    a("s_lshl_b32 s%d, s%d, 9" % (sT0, sF)); a("s_lshl_b32 s%d, s%d, 8" % (sT1, sWC)); a("s_add_u32 s%d, s%d, s%d" % (sT0, sT0, sT1))
    a("s_add_u32 s%d, s%d, %d" % (sT0, sT0, WS_CS))
    a("v_lshl_add_u32 v19, v17, 4, s%d" % sT0)
    a("s_lshl_b32 s%d, s%d, 1" % (sT0, sR))
    a("s_add_u32 s%d, s%d, s%d" % (sT0, sT0, sWR))
    a("s_lshl_b32 s%d, s%d, 1" % (sT1, sF))
    a("s_add_u32 s%d, s%d, s%d" % (sT1, sT1, sWC))
    a("s_lshl_b32 s%d, s%d, 1" % (sT1, sT1))
    a("s_lshl_b32 s%d, s%d, 6" % (sT2, sT0)); a("s_add_u32 s%d, s%d, s%d" % (sT2, sT2, sT1)); a("s_lshl_b32 s%d, s%d, 3" % (sT2, sT2))
    a("s_add_u32 s%d, s%d, %d" % (sT2, sT2, WS_HF))
    a("v_mov_b32 v21, s%d" % sT2)
    a("s_mul_i32 s%d, s%d, 56" % (sT0, sT0))
    a("s_add_u32 s%d, s%d, s%d" % (sT0, sT0, sT1))
    a("s_lshl_b32 s%d, s%d, 12" % (sT0, sT0))
    a("v_and_b32 v20, 15, v1")
    a("v_lshlrev_b32 v20, 4, v20")
    a("v_bfe_u32 v22, v1, 4, 1")
    a("v_lshl_add_u32 v20, v22, 10, v20")
    a("v_lshl_add_u32 v20, v17, 8, v20")
    a("v_add_u32 v20, s%d, v20" % sT0)
    a("s_mov_b32 s%d, 0" % sLD)
    ACC = lambda ff, mat, tt: 128 + 64 * ff + 32 * mat + 16 * tt
    for r in range(128, 256): a("v_mov_b32 v%d, 0" % r)
    FR = [80, 104]
    RC = [24, 28]; CS0 = [32, 48]; CS1 = [80, 96]
    def rd_frags(st, kk):
        if "nords" in EXP: return []
        fb = FR[kk]
        slot = st % 4
        xo = L_X[(st >> 1) % 3] - 65536
        xa = 5 + 2 * (st & 1) + kk
        out = []
        def wr(ff, mat):
            return [("ds_read_b64_tr_b16 %s, v%d offset:%d" % (vr(fb + 8 + 8 * ff + 4 * mat + 2 * half, 2), (9, 0)[ff], L_W + slot * 16384 + mat * 8192 + kk * 4096 + half * 1024), ("fr", st, kk, ff, mat)) for half in range(2)]
        xr = lambda tt: [("ds_read_b128 %s, v%d offset:%d" % (vr(fb + 4 * tt, 4), xa, xo + tt * 4096), ("fx", st, kk, tt))]
        return [xr(0) + wr(0, 0) + xr(1), wr(0, 1), wr(1, 0), wr(1, 1)]
    def mfmas(kk):
        fb = FR[kk]
        if "nomfma" in EXP: return ["s_nop 0"] * 8
        return ["v_mfma_f32_32x32x16_bf16 %s, %s, %s, %s" % (vr(ACC(ff, mat, tt), 16), vr(fb + 8 + 8 * ff + 4 * mat, 4), vr(fb + 4 * tt, 4), vr(ACC(ff, mat, tt), 16))
                for ff in range(2) for mat in range(2) for tt in range(2)]
    def inter(st, kk, groups):
        for i, m in enumerate(mfmas(kk)):
            ff, mat, tt = i >> 2, (i >> 1) & 1, i & 1
            if i == 1: a.wait_ds(("fx", st, kk, 1))
            a.wait_ds(("fr", st, kk, ff, mat))
            a(m)
            for sl, g in groups:
                if sl == i: emit(g)
    def arrive(v, off=0):
        a("v_mov_b32 v13, %d" % v)
        a("s_mov_b64 exec, 1")
        a.ds("ds_write_b8 v12, v13 offset:%d" % off, "sig")
        a("s_mov_b64 exec, -1")
    deferred = []
    def check(v, r=14, off=0):
        l = L("CK"); lo = L("CKO")
        a("v_cmp_gt_u32 vcc, %d, v%d" % (v, r))
        a("s_cbranch_vccnz %s" % lo)
        a.label(l)
        def slow():
            a.label(lo)
            spin_lds(11, r, v, slp=0, off=off)
            a("s_nop 4")
            a("s_branch %s" % l)
        deferred.append(slow)
    def wait_stage(st):
        tags = [t for t in a.vmq if t in (("w", st), ("x", st >> 1))]
        if tags: a.wait_vm(tags[-1])
    def cs_loads(CS, ff):
        a("s_mov_b32 s%d, 7168" % sT0)
        for q in range(4):
            a("buffer_load_dwordx4 %s, v19, s[%d:%d], 0 offen offset:%d" % (vr(CS[0] + 4 * q, 4), SWS, SWS + 3, ff * 128 + q * 32))
            a("buffer_load_dwordx4 %s, v19, s[%d:%d], s%d offen offset:%d" % (vr(CS[1] + 4 * q, 4), SWS, SWS + 3, sT0, ff * 128 + q * 32))
    def const_loads():
        for tt in range(2):
            a("buffer_load_dwordx4 %s, v18, s[%d:%d], 0 offen offset:%d" % (vr(RC[tt], 4), SWS, SWS + 3, tt * 512))
        cs_loads(CS0, 0)
        a("ds_read_b64 v[22:23], v10 offset:%d" % (Y_NON - Y_RDA))
        a("s_mov_b32 s%d, 1" % sLD)
    def try_const():
        l = L("CL"); lo = L("CLO")
        a("v_readfirstlane_b32 s%d, v17" % sT0)
        a("s_andn2_b32 s%d, s%d, s%d" % (sT0, sT0, sLD))
        a("s_cbranch_scc1 %s" % lo)
        a.label(l)
        def slow():
            a.label(lo)
            const_loads()
            a("s_branch %s" % l)
        deferred.append(slow)
    PA = int(os.environ.get("PA", "6"))
    wait_stage(0)
    arrive(1)
    spin_lds(11, 14, 1, slp=0)
    sf_("st0")
    for g in rd_frags(0, 0): emit(g)
    for st in range(NST):
        if st in (7,): sf_("st%d" % st)
        G = []
        if st + 1 < NST:
            G.append((0, [lambda st=st: wait_stage(st + 1), lambda st=st: arrive(st + 2)]))
        G += [(i, g) for i, g in enumerate(rd_frags(st, 1))]
        if st >= NST - 2: G.append((4, [lambda: a.wait_ds("pC"), try_const]))
        if 1 <= st and st + 3 < NST:
            G.append((3, [lambda: a.wait_ds("pR"), lambda st=st: check(st, 16, Y_RD)]))
            d = dma_w(st + 3)
            for i, g in enumerate(d): G.append((3 + i, g))
        if st + 1 < NST: G.append((PA, [("ds_read_u8 v14, v11", "pA")]))
        inter(st, 0, G)
        G = []
        if st + 1 < NST:
            G.append((0, [lambda: a.wait_ds("pA"), lambda st=st: check(st + 2)]))
            G += [(i, g) for i, g in enumerate(rd_frags(st + 1, 0))]
        G.append((6 if st + 1 == NST else 0, [lambda st=st: arrive(st + 1, Y_RD)]))
        if 2 <= st and st % 2 == 0 and st // 2 + 2 < 7:
            for i, g in enumerate(dma_x(st // 2 + 2)): G.append((3 + i, g))
        if NST - 3 <= st < NST - 1: G.append((7, [("ds_read_u8 v17, v10", "pC")]))
        if st + 4 < NST: G.append((7, [("ds_read_u8 v16, v11 offset:%d" % Y_RD, "pR")]))
        inter(st, 1, G)
    a.dsq = []
    sf_("loopend")
    l = L("CL")
    a("s_cmp_lg_u32 s%d, 0" % sLD)
    a("s_cbranch_scc1 %s" % l)
    a.begin_opt()
    spin_lds(10, 13, 1, slp=2)
    const_loads()
    a.end_opt()
    a.label(l)
    cs_loads(CS1, 1)
    a("v_lshrrev_b32 v5, 3, v1")
    a("s_mul_i32 s%d, s%d, 448" % (sT0, sWV))
    a("v_add_u32 v5, s%d, v5" % sT0)
    a("v_mul_u32_u24 v5, 896, v5")
    a("s_lshl_b32 s%d, s%d, 7" % (sT0, sCT))
    a("v_add_u32 v5, s%d, v5" % sT0)
    a("v_and_b32 v6, 1, v1")
    a("v_lshl_add_u32 v5, v6, 4, v5")
    a("v_bfe_u32 v6, v1, 1, 2")
    a("v_bfe_u32 v7, v1, 4, 1")
    a("v_xor_b32 v6, v6, v7")
    a("v_xor_b32 v7, 2, v6")
    a("v_lshl_add_u32 v2, v6, 5, v5")
    a("v_lshl_add_u32 v3, v7, 5, v5")
    a("s_mul_i32 s%d, s%d, %d" % (sWB, sWV, W2R))
    a("ds_read_u8 v14, v11 offset:%d" % Y_RD)
    NW = 6
    J = lambda s: 2 * (s % 7) + s // 7
    def dma_wd(s):
        for q in range(4):
            a("s_mov_b32 s%d, %d" % (sOW, (J(s) * 32 + 8 * q) * 896))
            a("s_add_u32 m0, s%d, %d" % (sWB, (s % NW) * 4096 + q * 1024))
            a.vm("buffer_load_dwordx4 v%d, s[%d:%d], s%d offen lds" % (2 + (q & 1), SWD, SWD + 3, sOW), ("wd", s))
    a("s_waitcnt vmcnt(8) lgkmcnt(0)"); a.vmq = ["cs1"] * 8
    a("v_readfirstlane_b32 s%d, v22" % sNON); a("v_readfirstlane_b32 s%d, v23" % (sNON + 1))
    sf_("stats")
    check(14, 14, Y_RD)
    def flag(ff):
        a.wait_vm(("hst", ff))
        a("s_mov_b64 exec, 1")
        a.vm("buffer_store_dwordx2 v[22:23], v21, s[%d:%d], 0 offen offset:%d sc1" % (SWS, SWS + 3, ff * 8), "hfl")
        a("s_mov_b64 exec, -1")
    blk = 0
    for ff in range(2):
        CS = (CS0, CS1)[ff]
        if ff == 1: a.wait_vm("cs1")
        for tt in range(2):
            r0 = RC[tt]
            for qp in range(2):
                if blk < NW: dma_wd(blk)
                if blk == 6: flag(0)
                HP = 112 + 4 * (blk & 3); blk += 1
                for q2 in range(2):
                    q = 2 * qp + q2
                    seqs = []
                    for e in range(4):
                        g = ACC(ff, 0, tt) + 4 * q + e; u = ACC(ff, 1, tt) + 4 * q + e; T = 64 + 4 * q2 + e
                        seqs.append([
                        "v_fmac_f32 v%d, v%d, v%d" % (g, CS[0] + 4 * q + e, r0),
                        "v_mul_f32 v%d, v%d, v%d" % (T, g, g),
                        "v_fma_f32 v%d, v%d, v%d, v%d" % (T, T, r0 + 2, r0 + 1),
                        "v_mul_f32 v%d, v%d, v%d" % (T, T, g),
                        "v_exp_f32 v%d, v%d" % (T, T),
                        "v_fmac_f32 v%d, v%d, v%d" % (u, CS[1] + 4 * q + e, r0),
                        "v_fma_f32 v%d, v%d, v%d, v%d" % (T, T, r0 + 3, r0 + 3),
                        "v_rcp_f32 v%d, v%d" % (T, T),
                        "v_mul_f32 v%d, v%d, v%d" % (g, g, u),
                        "v_mul_f32 v%d, v%d, v%d" % (g, g, T),
                        ("v_cvt_pk_bf16_f32 v%d, v%d, v%d" % (HP + 2 * q2 + e // 2, g - 1, g)) if e & 1 else None])
                    for i in range(len(seqs[0])):
                        for sq in seqs:
                            if sq[i]: a(sq[i])
                a("v_permlane32_swap_b32 v%d, v%d" % (HP, HP + 2))
                a("v_permlane32_swap_b32 v%d, v%d" % (HP + 1, HP + 3))
                a("s_movk_i32 s%d, %d" % (sT0, ff * 4096))
                a.vm("buffer_store_dwordx4 %s, v20, s[%d:%d], s%d offen offset:%d sc1" % (vr(HP, 4), SWS, SWS + 3, sT0, tt * 2048 + qp * 512), ("hst", ff))
    sf_("gelu")
    A2 = lambda ct, tt: 32 + 16 * ct + 4 * tt
    WB = [128 + 16 * i for i in range(NW)]; NH = 4; HB = [224, 240, 96, 112]
    a("v_and_b32 v16, 15, v1"); a("v_lshrrev_b32 v17, 4, v1")
    a("v_lshrrev_b32 v8, 2, v16")
    a("v_lshl_add_u32 v8, v17, 3, v8")
    a("v_lshlrev_b32 v8, 7, v8")
    a("v_and_b32 v9, 3, v16")
    a("v_lshl_add_u32 v8, v9, 3, v8")
    a("v_add_u32 v13, s%d, v8" % sWB)
    a("v_bfe_u32 v9, v16, 3, 1")
    a("v_and_b32 v14, 1, v17")
    a("v_lshl_add_u32 v9, v14, 1, v9")
    TRB = [4, 5, 6, 7]
    for ct in range(4):
        a("v_xor_b32 v14, %d, v9" % ct)
        a("v_lshl_add_u32 v%d, v14, 5, v13" % TRB[ct])
    def trw(s):
        for ct in range(4):
            for hf in range(2):
                a("ds_read_b64_tr_b16 %s, v%d offset:%d" % (vr(WB[s % NW] + 4 * ct + 2 * hf, 2), TRB[ct], (s % NW) * 4096 + hf * 512))
    a.wait_vm(("wd", NW - 1))
    for s in range(NW): trw(s)
    a("s_mul_i32 s%d, s%d, 56" % (sT0, sRT2))
    a("s_mul_i32 s%d, s%d, 14" % (sT1, sWV))
    a("s_add_u32 s%d, s%d, s%d" % (sT0, sT0, sT1))
    a("s_lshl_b32 s%d, s%d, 12" % (sT0, sT0))
    a("v_lshl_add_u32 v9, v1, 4, s%d" % sT0)
    a("s_lshl_b32 s%d, s%d, 9" % (sT0, sRT2))
    a("s_add_u32 s%d, s%d, %d" % (sT0, sT0, WS_HF))
    a("v_min_u32 v8, 55, v1")
    a("v_lshl_add_u32 v8, v8, 3, s%d" % sT0)
    flag(1)
    sf_("flag1")
    a("s_waitcnt lgkmcnt(0)")
    for s in range(NW, 2 * NW): dma_wd(s)
    for r in range(32, 96): a("v_mov_b32 v%d, 0" % r)
    a("s_lshl_b32 s%d, s%d, 6" % (sT0, sRT2)); a("s_lshl_b32 s%d, s%d, 4" % (sT1, sWV)); a("s_add_u32 s%d, s%d, s%d" % (sT0, sT0, sT1))
    a("v_add_u32 v18, s%d, v16" % sT0)
    a("v_mul_u32_u24 v18, 896, v18")
    a("v_lshl_add_u32 v18, v17, 4, v18")
    a("s_lshl_b32 s%d, s%d, 7" % (sT0, sCT))
    a("v_add_u32 v18, s%d, v18" % sT0)
    a("v_xor_b32 v14, v17, v16")
    a("v_lshlrev_b32 v19, 8, v16"); a("v_lshl_add_u32 v19, v14, 4, v19")
    a("v_add_u32 v19, s%d, v19" % sWB)
    a("v_xor_b32 v20, 64, v19"); a("v_xor_b32 v21, 128, v19"); a("v_xor_b32 v22, 192, v19")
    def hwait(ph):
        lh = L("HP"); lh2 = L("HP"); lh3 = L("HP")
        a("s_cmp_lg_u32 s%d, 0" % sWV)
        a("s_cbranch_scc1 %s" % lh3)
        a.begin_opt()
        a("s_mov_b32 s%d, %d" % (sT3, SPIN))
        a.label(lh)
        a("buffer_load_dwordx2 v[14:15], v8, s[%d:%d], 0 offen sc1" % (SWS, SWS + 3))
        a("s_waitcnt vmcnt(0)")
        a("v_cmp_ne_u64 vcc, s[%d:%d], v[14:15]" % (sNON, sNON + 1))
        a("v_mov_b32 v13, 2")
        a("s_cbranch_vccz %s" % lh2)
        if ph == 0:
            a("v_mov_b32 v13, 1")
            a("s_and_b32 s%d, vcc_lo, 0x55555555" % sT0); a("s_and_b32 s%d, vcc_hi, 0x00555555" % sT1)
            a("s_or_b32 s%d, s%d, s%d" % (sT0, sT0, sT1))
            a("s_cbranch_scc0 %s" % lh2)
        a("s_sleep %d" % int(os.environ.get("HSL", "2")))
        a("s_sub_u32 s%d, s%d, 1" % (sT3, sT3)); a("s_cmp_lg_u32 s%d, 0" % sT3)
        a("s_cbranch_scc1 %s" % lh)
        a.label(lh2)
        a("s_mov_b64 exec, 1")
        a("ds_write_b8 v10, v13 offset:2")
        a("s_mov_b64 exec, -1")
        a.end_opt()
        a.label(lh3)
        spin_lds(10, 15, ph + 1, slp=1, off=2)
    def hwait2():
        l = L("HW")
        a("ds_read_u8 v15, v10 offset:2")
        a("s_waitcnt lgkmcnt(0)")
        a("v_cmp_gt_u32 vcc, 2, v15")
        a("s_cbranch_vccz %s" % l)
        a.begin_opt()
        hwait(1)
        a.end_opt()
        a.label(l)
    hwait(0)
    sf_("hpoll")
    def ld_h(s):
        a("s_mov_b32 s%d, %d" % (sOX, WS_H + J(s) * 4096))
        for tt in range(4):
            a.vm("buffer_load_dwordx4 %s, v9, s[%d:%d], s%d offen offset:%d" % (vr(HB[s % NH] + 4 * tt, 4), SWS, SWS + 3, sOX, tt * 1024), ("h", s, tt))
    for s in range(NH): ld_h(s)
    for s in range(14):
        if s >= NW: a("s_waitcnt lgkmcnt(%d)" % min(15, 8 * min(NW - 1, 13 - s)))
        for tt in range(4):
            a.wait_vm(("h", s, tt))
            for ct in range(4):
                a("v_mfma_f32_16x16x32_bf16 %s, %s, %s, %s" % (vr(A2(ct, tt), 4), vr(WB[s % NW] + 4 * ct, 4), vr(HB[s % NH] + 4 * tt, 4), vr(A2(ct, tt), 4)))
        if s + NH == 7: hwait2(); sf_("hpoll2")
        if s + NH < 14: ld_h(s + NH)
        if s == 10:
            a.vm("buffer_load_dwordx4 v[24:27], v18, s[%d:%d], 0 offen" % (SX, SX + 3), "x")
            a.vm("buffer_load_dwordx4 v[28:31], v18, s[%d:%d], 0 offen offset:64" % (SX, SX + 3), "x")
        if s + NW < 14:
            a.wait_vm(("wd", s + NW))
            trw(s + NW)
            if s + 2 * NW < 14:
                a("s_waitcnt lgkmcnt(0)")
                dma_wd(s + 2 * NW)
    sf_("f2end")
    for tt in range(4):
        for ct in range(4):
            a("ds_write_b128 v%d, %s offset:%d" % (19 + ct, vr(A2(ct, tt), 4), tt * 4096))
    a("v_lshlrev_b32 v14, 1, v17"); a("v_xor_b32 v14, v14, v16")
    a("v_lshlrev_b32 v4, 8, v16"); a("v_lshl_add_u32 v4, v14, 4, v4")
    a("s_lshl_b32 s%d, s%d, 12" % (sT0, sWV))
    a("v_add_u32 v4, s%d, v4" % sT0)
    a("v_xor_b32 v5, 16, v4"); a("v_xor_b32 v6, 128, v4"); a("v_xor_b32 v7, 144, v4")
    a("v_add_u32 v0, %d, v4" % (2 * W2R)); a("v_add_u32 v2, %d, v5" % (2 * W2R)); a("v_add_u32 v3, %d, v6" % (2 * W2R)); a("v_add_u32 v8, %d, v7" % (2 * W2R))
    a("v_lshrrev_b32 v14, 1, v17")
    a("v_mul_u32_u24 v14, %d, v14" % STG_W)
    a("v_and_b32 v15, 1, v17"); a("v_lshlrev_b32 v15, 3, v15"); a("v_lshrrev_b32 v13, 2, v16"); a("v_add_u32 v15, v15, v13")
    a("v_lshl_add_u32 v14, v15, 7, v14")
    a("v_and_b32 v15, 3, v16"); a("v_lshl_add_u32 v14, v15, 3, v14")
    a("s_lshl_b32 s%d, s%d, 5" % (sT2, sWV)); a("s_add_u32 s%d, s%d, %d" % (sT2, sT2, L_STG))
    a("v_add_u32 v14, s%d, v14" % sT2)
    a("s_waitcnt lgkmcnt(0)")
    arrive(17)
    spin_lds(11, 15, 1, slp=1, off=Y_YA)
    sf_("ya")
    for hc in range(2):
        for hf in range(2):
            a("ds_read_b64_tr_b16 %s, v14 offset:%d" % (vr(96 + 4 * hc + 2 * hf, 2), hc * 2 * STG_W + hf * 512))
    a.wait_vm("x")
    a("s_waitcnt lgkmcnt(0)")
    for w in range(8):
        xw = 24 + w; yw = 96 + w; o = 104 + 2 * w
        a("v_lshlrev_b32 v%d, 16, v%d" % (o, xw)); a("v_and_b32 v%d, 0xffff0000, v%d" % (o + 1, xw))
        a("v_lshlrev_b32 v120, 16, v%d" % yw); a("v_and_b32 v121, 0xffff0000, v%d" % yw)
        a("v_add_f32 v%d, v%d, v120" % (o, o)); a("v_add_f32 v%d, v%d, v121" % (o + 1, o + 1))
        a("v_cvt_pk_bf16_f32 v%d, v%d, v%d" % (o, o, o + 1))
        a("v_and_b32 v%d, 0xffff0000, v%d" % (o + 1, o)); a("v_lshlrev_b32 v%d, 16, v%d" % (o, o))
    spin_lds(11, 15, 17, slp=0)
    for s in range(4):
        for c in range(4):
            ad = ((4, 5, 6, 7), (0, 2, 3, 8))[s >> 1][c]
            a("ds_read_b128 %s, v%d offset:%d" % (vr(128 + 16 * s + 4 * c, 4), ad, (s & 1) * W2R))
    for hc in range(2):
        a("s_waitcnt lgkmcnt(%d)" % (2 - 2 * hc))
        for e in range(8):
            b = 128 + 8 * hc + e
            a("v_add_f32 v%d, v%d, v%d" % (b, b, b + 16)); a("v_add_f32 v%d, v%d, v%d" % (b + 32, b + 32, b + 48))
            a("v_add_f32 v%d, v%d, v%d" % (b, b, b + 32))
        for w in range(4):
            b = 128 + 8 * hc + 2 * w; o = 104 + 8 * hc + 2 * w
            a("v_cvt_pk_bf16_f32 v120, v%d, v%d" % (b, b + 1))
            a("v_and_b32 v121, 0xffff0000, v120"); a("v_lshlrev_b32 v120, 16, v120")
            a("v_add_f32 v120, v120, v%d" % o); a("v_add_f32 v121, v121, v%d" % (o + 1))
            a("v_cvt_pk_bf16_f32 v%d, v120, v121" % (192 + 4 * hc + w))
        a("buffer_store_dwordx4 %s, v18, s[%d:%d], 0 offen offset:%d" % (vr(192 + 4 * hc, 4), SOUT, SOUT + 3, hc * 64))
    sf_("end")
    sf_.store(150)
    a("s_endpgm")
    for f in deferred: f()

    import gen4h as gen3h
    gen3h.helper(a, sh_, L, spin_lds)
    gen3h.producer(a, sp_, L)
    a.label("K_END")
    a("s_endpgm")
    if STAMP: print("ffn", sf_.names, "\nhelp", sh_.names, "\nprod", sp_.names)
    return a.finalize()

def wrap(kernels):
    out = []
    for name, grid, block, lds, body, nv in kernels:
        if len(kernels) > 1: out.append("; @launch kernel=%s grid=(%d,1,1) block=(%d,1,1) lds=%d" % (name, grid, block, lds))
        else: out.append("; @launch grid=(%d,1,1) block=(%d,1,1) lds=%d" % (grid, block, lds))
    out.append('.amdgcn_target "amdgcn-amd-amdhsa--gfx950"')
    out.append(".text")
    for name, grid, block, lds, body, nv in kernels:
        out += [".globl %s" % name, ".p2align 8", ".type %s,@function" % name, "%s:" % name, body]
    out.append('.section .rodata,"a"')
    for name, grid, block, lds, body, nv in kernels:
        out += [".p2align 6", ".amdhsa_kernel %s" % name,
                "  .amdhsa_next_free_vgpr %d" % nv, "  .amdhsa_next_free_sgpr 102", "  .amdhsa_accum_offset %d" % ((nv + 3) // 4 * 4),
                "  .amdhsa_group_segment_fixed_size 0", "  .amdhsa_kernarg_size 128", "  .amdhsa_user_sgpr_count 2",
                "  .amdhsa_user_sgpr_kernarg_segment_ptr 1", "  .amdhsa_system_sgpr_workgroup_id_x 1", ".end_amdhsa_kernel"]
    return "\n".join(out) + "\n"

if __name__ == "__main__":
    sys.modules["gen4"] = sys.modules["__main__"]
    NAME = "parallel_sum__ssm_conv_s4__glu_gated_geglu__prompt_kernel"
    ks = [(NAME, 256, 512, LDS, gen(), 256)]
    open(sys.argv[1] if len(sys.argv) > 1 else "k.s", "w").write(wrap(ks))
```

```python
import math, os, sys, struct
from asmlib import Asm
def fbits(x): return "0x%08x" % struct.unpack("<I", struct.pack("<f", x))[0]
LOG2E = math.log2(math.e)
def vr(b, n=1): return "v%d" % b if n == 1 else "v[%d:%d]" % (b, b + n - 1)
EXP = os.environ.get('EXP', '')
STAMP = int(os.environ.get("STAMP", "0"))
RT = os.environ.get("RT", "")
MAPB = int(os.environ.get("MAPB", "1"))
WS_H = 0; WS_XNT = 8 << 20; WS_KREV = 12 << 20; WS_KSC = 16 << 20
WS_HF = 17 << 20
WS_CF = 18 << 20
WS_PF = (18 << 20) + 65536
WS_RC = 19 << 20; WS_CS = (19 << 20) + 65536
WS_YAT = 20 << 20; WS_DBG = 24 << 20; WS_SIZE = 32 << 20
KSTRIDE = 4160
SPIN = 0x100000

def srd(a, d, p, nbytes):
    a("s_mov_b32 s%d, s%d" % (d, p))
    a("s_and_b32 s%d, s%d, 0xffff" % (d + 1, p + 1))
    a("s_mov_b32 s%d, 0x%x" % (d + 2, nbytes))
    a("s_mov_b32 s%d, 0x00020000" % (d + 3))

SX, SWG, SWU, SWS, SWD, SOUT, SDBG = 40, 44, 48, 52, 56, 60, 64
sWV, sR, sF, sWR, sWC, sRT2, sCT = 68, 69, 70, 71, 72, 73, 74
sLD = 75
sT0, sT1, sT2, sT3 = 76, 77, 78, 79
sOX, sOW, sWB, sCNT = 80, 81, 82, 83
sNON = 84
sPM = 86
sCH, sHF, sKW, sSC, sINV = 3, 4, 5, 6, 7
sONES, sCVB, sSTG = 38, 39, 36
STB = 88

class Stamps:
    def __init__(self, a, base=None):
        self.a = a; self.n = base.n if base else 0; self.names = list(base.names) if base else []
    def __call__(self, name):
        if not STAMP: return
        if RT and name not in ("start", "end"): return
        assert self.n < 12, name
        self.a("%s s[100:101]" % ("s_memrealtime" if RT else "s_memtime"))
        self.a("s_waitcnt lgkmcnt(0)")
        self.a("s_mov_b32 s%d, s100" % (STB + self.n))
        self.n += 1; self.names.append(name)
    def store(self, vt):
        if not STAMP: return
        a = self.a
        a("s_lshl_b32 s100, s2, 4"); a("s_add_u32 s100, s100, s%d" % sWV); a("s_lshl_b32 s100, s100, 6")
        a("s_add_u32 s100, s100, %d" % WS_DBG)
        a("s_mov_b64 exec, 1")
        a("v_mov_b32 v%d, s100" % vt)
        for i in range(self.n):
            a("v_mov_b32 v%d, s%d" % (vt + 1, STB + i))
            a("buffer_store_dword v%d, v%d, s[%d:%d], 0 offen offset:%d" % (vt + 1, vt, SWS, SWS + 3, 4 * i))
            a("s_waitcnt vmcnt(0)")
        a("s_mov_b64 exec, -1")

L_W = 0
L_X = [65536, 98304 + 17408, 81920]
RING = 98304
STG_W = 4352; L_STG = RING
L_CV = RING + 4 * STG_W
CPS = 4160; O_U = 4 * CPS; CV_CH = O_U + 4608
L_SYNC = L_CV + 2 * CV_CH
LDS = L_SYNC + 128
assert L_X[1] == L_CV and LDS <= 163840
Y_CNT = 0; Y_RDA = 8; Y_RDB = 9; Y_NON = 16; Y_KX = 24; Y_C0 = 28; Y_BL = 32; Y_CX = 36; Y_XR = 40; Y_YA = 44; Y_KEXP = 48; Y_RD = 64
W2R = 24576
L_EXTRA = L_CV

def gen():
    a = Asm()
    lab = [0]
    def L(p): lab[0] += 1; return "%s_%d" % (p, lab[0])
    st_ = Stamps(a)
    def spin_lds(addr, tmp, need, width="u8", slp=1, off=0):
        l1, l2 = L("SP"), L("SD")
        a("s_mov_b32 s%d, %d" % (sCNT, SPIN))
        a.label(l1)
        a("ds_read_%s v%d, v%d offset:%d" % (width, tmp, addr, off))
        a("s_waitcnt lgkmcnt(0)")
        a("v_cmp_gt_u32 vcc, %d, v%d" % (need, tmp))
        a("s_cbranch_vccz %s" % l2)
        if slp: a("s_sleep %d" % slp)
        a("s_sub_u32 s%d, s%d, 1" % (sCNT, sCNT))
        a("s_cmp_lg_u32 s%d, 0" % sCNT)
        a("s_cbranch_scc1 %s" % l1)
        a.label(l2)

    a("s_cmp_ge_u32 s2, 256")
    a("s_cbranch_scc1 K_END")
    st_("start")
    a("s_load_dwordx16 s[16:31], s[0:1], 0")
    a("s_load_dwordx4 s[32:35], s[0:1], 80")
    a("s_load_dwordx8 s[8:15], s[0:1], 96")
    a("v_lshrrev_b32 v1, 6, v0")
    a("v_readfirstlane_b32 s%d, v1" % sWV)
    a("v_and_b32 v1, 63, v0")
    a("s_cmp_lt_u32 s2, 32")
    a("s_cbranch_scc1 K_PROD")
    a("s_and_b32 s%d, s2, 7" % sT0)
    a("s_lshr_b32 s%d, s2, 3" % sT1)
    a("s_sub_u32 s%d, s%d, 4" % (sT1, sT1))
    if MAPB:
        a("s_and_b32 s%d, s%d, 1" % (sT3, sT1))
        a("s_lshl_b32 s%d, s%d, 1" % (sR, sT0)); a("s_add_u32 s%d, s%d, s%d" % (sR, sR, sT3))
        a("s_lshr_b32 s%d, s%d, 1" % (sF, sT1))
    else:
        a("s_lshr_b32 s%d, s%d, 1" % (sT2, sT0)); a("s_lshl_b32 s%d, s%d, 2" % (sT2, sT2))
        a("s_and_b32 s%d, s%d, 3" % (sT3, sT1)); a("s_add_u32 s%d, s%d, s%d" % (sR, sT2, sT3))
        a("s_and_b32 s%d, s%d, 1" % (sT2, sT0)); a("s_mul_i32 s%d, s%d, 7" % (sT2, sT2))
        a("s_lshr_b32 s%d, s%d, 2" % (sT3, sT1)); a("s_add_u32 s%d, s%d, s%d" % (sF, sT2, sT3))
    a("s_and_b32 s%d, s%d, 3" % (sT3, sT1))
    a("s_lshl_b32 s%d, s%d, 2" % (sRT2, sT0)); a("s_add_u32 s%d, s%d, s%d" % (sRT2, sRT2, sT3))
    a("s_lshr_b32 s%d, s%d, 2" % (sCT, sT1))
    a("s_cmp_ge_u32 s%d, 4" % sWV)
    a("s_cbranch_scc1 K_HELP")
    sf_ = Stamps(a, st_); sh_ = Stamps(a, st_); sp_ = Stamps(a, st_)
    NST = 14
    FPRIO = int(os.environ.get("FPRIO", "2"))
    a("s_setprio %d" % FPRIO)
    a("s_and_b32 s%d, s%d, 1" % (sWR, sWV))
    a("s_lshr_b32 s%d, s%d, 1" % (sWC, sWV))
    a("s_lshl_b32 s%d, s%d, 11" % (sWB, sWV))
    a("s_lshl_b32 s%d, s%d, 12" % (sOX, sWV))
    a("v_lshrrev_b32 v2, 3, v1")
    a("s_lshl_b32 s%d, s%d, 7" % (sT0, sR))
    a("s_lshl_b32 s%d, s%d, 5" % (sT1, sWV))
    a("s_add_u32 s%d, s%d, s%d" % (sT0, sT0, sT1))
    a("v_add_u32 v2, s%d, v2" % sT0)
    a("v_mul_u32_u24 v2, 896, v2")
    a("v_lshrrev_b32 v5, 4, v1")
    a("v_xor_b32 v6, v1, v5")
    a("v_and_b32 v6, 7, v6")
    a("v_xor_b32 v7, 4, v6")
    a("v_lshl_add_u32 v3, v7, 4, v2")
    a("v_add_u32 v3, %d, v3" % (8 * 896))
    a("v_lshl_add_u32 v2, v6, 4, v2")
    a("s_lshl_b32 s%d, s%d, 3" % (sT0, sWV))
    a("v_add_u32 v4, s%d, v5" % sT0)
    a("s_movk_i32 s%d, 3584" % sT1)
    a("v_mul_lo_u32 v4, v4, s%d" % sT1)
    a("v_lshlrev_b32 v6, 2, v5")
    a("v_xor_b32 v6, v1, v6")
    a("v_and_b32 v6, 15, v6")
    a("v_lshl_add_u32 v4, v6, 4, v4")
    a("s_lshl_b32 s%d, s%d, 8" % (sT0, sF))
    a("v_add_u32 v4, s%d, v4" % sT0)
    a("s_waitcnt lgkmcnt(0)")
    srd(a, SX, 16, 2048 * 896)
    srd(a, SWG, 32, 448 * 3584)
    srd(a, SWU, 34, 448 * 3584)
    def dma_x(b):
        out = []
        if "nodma" in EXP and b > 2: return out
        for i in range(4):
            out.append(["s_add_u32 m0, s%d, %d" % (sOX, L_X[b % 3] + i * 1024),
                        "s_movk_i32 s%d, %d" % (sOW, b * 128 + (i >> 1) * 16 * 896),
                        ("buffer_load_dwordx4 v%d, s[%d:%d], s%d offen lds" % (2 + (i & 1), SX, SX + 3, sOW), ("x", b))])
        return out
    def dma_w(st):
        out = []
        if "nodma" in EXP and st > 3: return out
        slot = st % 4
        for i in range(2):
            for mat in range(2):
                S = (SWG, SWU)[mat]
                g = []
                if mat == 0: g.append("s_mov_b32 s%d, %d" % (sOW, (st * 32 + 4 * i) * 3584))
                g.append("s_add_u32 m0, s%d, %d" % (sWB, L_W + slot * 16384 + mat * 8192 + i * 1024))
                g.append(("buffer_load_dwordx4 v4, s[%d:%d], s%d offen lds" % (S, S + 3, sOW), ("w", st)))
                out.append(g)
        return out
    def emit(g):
        for x in g:
            if callable(x): x()
            elif isinstance(x, tuple) and x[0].startswith("ds_"): a.ds(x[0], x[1])
            elif isinstance(x, tuple): a.vm(x[0], x[1])
            else: a(x)
    for g in dma_x(0) + dma_w(0) + dma_w(1) + dma_x(1) + dma_w(2): emit(g)

    srd(a, SWS, 14, WS_SIZE)
    srd(a, SWD, 8, 1792 * 896)
    srd(a, SOUT, 10, 2048 * 896)
    a("v_lshlrev_b32 v15, 2, v1")
    a("v_mov_b32 v13, 0")
    a("v_add_u32 v12, %d, v15" % L_SYNC)
    a("s_cmp_lg_u32 s%d, 0" % sWV)
    a("s_cselect_b32 exec_lo, 0, -1"); a("s_mov_b32 exec_hi, 0")
    a("ds_write_b32 v12, v13")
    a("s_mov_b64 exec, -1")
    a("s_waitcnt lgkmcnt(0)")
    a("s_barrier")
    for g in dma_w(3) + dma_x(2): emit(g)
    a("v_and_b32 v16, 31, v1")
    a("s_lshl_b32 s%d, s%d, 6" % (sT0, sWR))
    a("v_add_u32 v16, s%d, v16" % sT0)
    a("v_lshrrev_b32 v17, 5, v1")
    a("v_bfe_u32 v18, v1, 1, 3")
    a("v_xor_b32 v18, v17, v18")
    a("v_lshlrev_b32 v5, 7, v16")
    a("v_lshl_add_u32 v5, v18, 4, v5")
    a("v_add_u32 v5, 65536, v5")
    a("v_xor_b32 v6, 32, v5"); a("v_xor_b32 v7, 64, v5"); a("v_xor_b32 v8, 96, v5")
    a("v_bfe_u32 v19, v1, 2, 2")
    a("v_lshl_add_u32 v20, v17, 3, v19")
    a("v_lshlrev_b32 v9, 8, v20")
    a("v_bfe_u32 v20, v1, 4, 1"); a("v_lshlrev_b32 v20, 1, v20")
    a("v_bfe_u32 v21, v1, 1, 1"); a("v_add_u32 v20, v20, v21")
    a("s_lshl_b32 s%d, s%d, 3" % (sT0, sWC))
    a("v_add_u32 v20, s%d, v20" % sT0)
    a("v_lshlrev_b32 v21, 2, v19")
    a("v_xor_b32 v20, v20, v21")
    a("v_lshl_add_u32 v9, v20, 4, v9")
    a("v_and_b32 v21, 1, v1")
    a("v_lshl_add_u32 v9, v21, 3, v9")
    a("v_xor_b32 v0, 64, v9")
    a("v_and_b32 v11, 3, v1"); a("v_add_u32 v11, %d, v11" % (L_SYNC + Y_CNT))
    a("s_add_u32 s%d, s%d, %d" % (sT0, sWV, L_SYNC + Y_CNT)); a("v_mov_b32 v12, s%d" % sT0)
    a("v_mov_b32 v10, %d" % (L_SYNC + Y_RDA))
    a("s_lshl_b32 s%d, s%d, 11" % (sT0, sR)); a("s_add_u32 s%d, s%d, %d" % (sT0, sT0, WS_RC))
    a("v_lshl_add_u32 v18, v16, 4, s%d" % sT0)
    a("s_lshl_b32 s%d, s%d, 9" % (sT0, sF)); a("s_lshl_b32 s%d, s%d, 8" % (sT1, sWC)); a("s_add_u32 s%d, s%d, s%d" % (sT0, sT0, sT1))
    a("s_add_u32 s%d, s%d, %d" % (sT0, sT0, WS_CS))
    a("v_lshl_add_u32 v19, v17, 4, s%d" % sT0)
    a("s_lshl_b32 s%d, s%d, 1" % (sT0, sR))
    a("s_add_u32 s%d, s%d, s%d" % (sT0, sT0, sWR))
    a("s_lshl_b32 s%d, s%d, 1" % (sT1, sF))
    a("s_add_u32 s%d, s%d, s%d" % (sT1, sT1, sWC))
    a("s_lshl_b32 s%d, s%d, 1" % (sT1, sT1))
    a("s_lshl_b32 s%d, s%d, 6" % (sT2, sT0)); a("s_add_u32 s%d, s%d, s%d" % (sT2, sT2, sT1)); a("s_lshl_b32 s%d, s%d, 3" % (sT2, sT2))
    a("s_add_u32 s%d, s%d, %d" % (sT2, sT2, WS_HF))
    a("v_mov_b32 v21, s%d" % sT2)
    a("s_mul_i32 s%d, s%d, 56" % (sT0, sT0))
    a("s_add_u32 s%d, s%d, s%d" % (sT0, sT0, sT1))
    a("s_lshl_b32 s%d, s%d, 12" % (sT0, sT0))
    a("v_and_b32 v20, 15, v1")
    a("v_lshlrev_b32 v20, 4, v20")
    a("v_bfe_u32 v22, v1, 4, 1")
    a("v_lshl_add_u32 v20, v22, 10, v20")
    a("v_lshl_add_u32 v20, v17, 8, v20")
    a("v_add_u32 v20, s%d, v20" % sT0)
    a("s_mov_b32 s%d, 0" % sLD)
    ACC = lambda ff, mat, tt: 128 + 64 * ff + 32 * mat + 16 * tt
    for r in range(128, 256): a("v_mov_b32 v%d, 0" % r)
    FR = [80, 104]
    RC = [24, 28]; CS0 = [32, 48]; CS1 = [80, 96]
    def rd_frags(st, kk):
        if "nords" in EXP: return []
        fb = FR[kk]
        slot = st % 4
        xo = L_X[(st >> 1) % 3] - 65536
        xa = 5 + 2 * (st & 1) + kk
        out = []
        def wr(ff, mat):
            return [("ds_read_b64_tr_b16 %s, v%d offset:%d" % (vr(fb + 8 + 8 * ff + 4 * mat + 2 * half, 2), (9, 0)[ff], L_W + slot * 16384 + mat * 8192 + kk * 4096 + half * 1024), ("fr", st, kk, ff, mat)) for half in range(2)]
        xr = lambda tt: [("ds_read_b128 %s, v%d offset:%d" % (vr(fb + 4 * tt, 4), xa, xo + tt * 4096), ("fx", st, kk, tt))]
        return [xr(0) + wr(0, 0) + xr(1), wr(0, 1), wr(1, 0), wr(1, 1)]
    def mfmas(kk):
        fb = FR[kk]
        if "nomfma" in EXP: return ["s_nop 0"] * 8
        return ["v_mfma_f32_32x32x16_bf16 %s, %s, %s, %s" % (vr(ACC(ff, mat, tt), 16), vr(fb + 8 + 8 * ff + 4 * mat, 4), vr(fb + 4 * tt, 4), vr(ACC(ff, mat, tt), 16))
                for ff in range(2) for mat in range(2) for tt in range(2)]
    def inter(st, kk, groups):
        for i, m in enumerate(mfmas(kk)):
            ff, mat, tt = i >> 2, (i >> 1) & 1, i & 1
            if i == 1: a.wait_ds(("fx", st, kk, 1))
            a.wait_ds(("fr", st, kk, ff, mat))
            a(m)
            for sl, g in groups:
                if sl == i: emit(g)
    def arrive(v, off=0):
        a("v_mov_b32 v13, %d" % v)
        a("s_mov_b64 exec, 1")
        a.ds("ds_write_b8 v12, v13 offset:%d" % off, "sig")
        a("s_mov_b64 exec, -1")
    deferred = []
    def check(v, r=14, off=0):
        l = L("CK"); lo = L("CKO")
        a("v_cmp_gt_u32 vcc, %d, v%d" % (v, r))
        a("s_cbranch_vccnz %s" % lo)
        a.label(l)
        def slow():
            a.label(lo)
            spin_lds(11, r, v, slp=0, off=off)
            a("s_nop 4")
            a("s_branch %s" % l)
        deferred.append(slow)
    def wait_stage(st):
        tags = [t for t in a.vmq if t in (("w", st), ("x", st >> 1))]
        if tags: a.wait_vm(tags[-1])
    def cs_loads(CS, ff):
        a("s_mov_b32 s%d, 7168" % sT0)
        for q in range(4):
            a("buffer_load_dwordx4 %s, v19, s[%d:%d], 0 offen offset:%d" % (vr(CS[0] + 4 * q, 4), SWS, SWS + 3, ff * 128 + q * 32))
            a("buffer_load_dwordx4 %s, v19, s[%d:%d], s%d offen offset:%d" % (vr(CS[1] + 4 * q, 4), SWS, SWS + 3, sT0, ff * 128 + q * 32))
    def const_loads():
        for tt in range(2):
            a("buffer_load_dwordx4 %s, v18, s[%d:%d], 0 offen offset:%d" % (vr(RC[tt], 4), SWS, SWS + 3, tt * 512))
        cs_loads(CS0, 0)
        a("ds_read_b64 v[22:23], v10 offset:%d" % (Y_NON - Y_RDA))
        a("s_mov_b32 s%d, 1" % sLD)
    def try_const():
        l = L("CL"); lo = L("CLO")
        a("v_readfirstlane_b32 s%d, v17" % sT0)
        a("s_andn2_b32 s%d, s%d, s%d" % (sT0, sT0, sLD))
        a("s_cbranch_scc1 %s" % lo)
        a.label(l)
        def slow():
            a.label(lo)
            const_loads()
            a("s_branch %s" % l)
        deferred.append(slow)
    PA = int(os.environ.get("PA", "6"))
    wait_stage(0)
    arrive(1)
    spin_lds(11, 14, 1, slp=0)
    sf_("st0")
    for g in rd_frags(0, 0): emit(g)
    for st in range(NST):
        if st in (7,): sf_("st%d" % st)
        G = []
        if st + 1 < NST:
            G.append((0, [lambda st=st: wait_stage(st + 1), lambda st=st: arrive(st + 2)]))
        G += [(i, g) for i, g in enumerate(rd_frags(st, 1))]
        if st >= NST - 2: G.append((4, [lambda: a.wait_ds("pC"), try_const]))
        if 1 <= st and st + 3 < NST:
            G.append((3, [lambda: a.wait_ds("pR"), lambda st=st: check(st, 16, Y_RD)]))
            d = dma_w(st + 3)
            for i, g in enumerate(d): G.append((3 + i, g))
        if st + 1 < NST: G.append((PA, [("ds_read_u8 v14, v11", "pA")]))
        inter(st, 0, G)
        G = []
        if st + 1 < NST:
            G.append((0, [lambda: a.wait_ds("pA"), lambda st=st: check(st + 2)]))
            G += [(i, g) for i, g in enumerate(rd_frags(st + 1, 0))]
        G.append((6 if st + 1 == NST else 0, [lambda st=st: arrive(st + 1, Y_RD)]))
        if 2 <= st and st % 2 == 0 and st // 2 + 2 < 7:
            for i, g in enumerate(dma_x(st // 2 + 2)): G.append((3 + i, g))
        if NST - 3 <= st < NST - 1: G.append((7, [("ds_read_u8 v17, v10", "pC")]))
        if st + 4 < NST: G.append((7, [("ds_read_u8 v16, v11 offset:%d" % Y_RD, "pR")]))
        inter(st, 1, G)
    a.dsq = []
    sf_("loopend")
    l = L("CL")
    a("s_cmp_lg_u32 s%d, 0" % sLD)
    a("s_cbranch_scc1 %s" % l)
    a.begin_opt()
    spin_lds(10, 13, 1, slp=2)
    const_loads()
    a.end_opt()
    a.label(l)
    cs_loads(CS1, 1)
    a("v_lshrrev_b32 v5, 3, v1")
    a("s_mul_i32 s%d, s%d, 448" % (sT0, sWV))
    a("v_add_u32 v5, s%d, v5" % sT0)
    a("v_mul_u32_u24 v5, 896, v5")
    a("s_lshl_b32 s%d, s%d, 7" % (sT0, sCT))
    a("v_add_u32 v5, s%d, v5" % sT0)
    a("v_and_b32 v6, 1, v1")
    a("v_lshl_add_u32 v5, v6, 4, v5")
    a("v_bfe_u32 v6, v1, 1, 2")
    a("v_bfe_u32 v7, v1, 4, 1")
    a("v_xor_b32 v6, v6, v7")
    a("v_xor_b32 v7, 2, v6")
    a("v_lshl_add_u32 v2, v6, 5, v5")
    a("v_lshl_add_u32 v3, v7, 5, v5")
    a("s_mul_i32 s%d, s%d, %d" % (sWB, sWV, W2R))
    a("ds_read_u8 v14, v11 offset:%d" % Y_RD)
    NW = 6
    J = lambda s: 2 * (s % 7) + s // 7
    def dma_wd(s):
        for q in range(4):
            a("s_mov_b32 s%d, %d" % (sOW, (J(s) * 32 + 8 * q) * 896))
            a("s_add_u32 m0, s%d, %d" % (sWB, (s % NW) * 4096 + q * 1024))
            a.vm("buffer_load_dwordx4 v%d, s[%d:%d], s%d offen lds" % (2 + (q & 1), SWD, SWD + 3, sOW), ("wd", s))
    a("s_waitcnt vmcnt(8) lgkmcnt(0)"); a.vmq = ["cs1"] * 8
    a("v_readfirstlane_b32 s%d, v22" % sNON); a("v_readfirstlane_b32 s%d, v23" % (sNON + 1))
    sf_("stats")
    check(14, 14, Y_RD)
    def flag(ff):
        a.wait_vm(("hst", ff))
        a("s_mov_b64 exec, 1")
        a.vm("buffer_store_dwordx2 v[22:23], v21, s[%d:%d], 0 offen offset:%d sc1" % (SWS, SWS + 3, ff * 8), "hfl")
        a("s_mov_b64 exec, -1")
    blk = 0
    for ff in range(2):
        CS = (CS0, CS1)[ff]
        if ff == 1: a.wait_vm("cs1")
        for tt in range(2):
            r0 = RC[tt]
            for qp in range(2):
                if blk < NW: dma_wd(blk)
                if blk == 6: flag(0)
                HP = 112 + 4 * (blk & 3); blk += 1
                for q2 in range(2):
                    q = 2 * qp + q2
                    seqs = []
                    for e in range(4):
                        g = ACC(ff, 0, tt) + 4 * q + e; u = ACC(ff, 1, tt) + 4 * q + e; T = 64 + 4 * q2 + e
                        seqs.append([
                        "v_fmac_f32 v%d, v%d, v%d" % (g, CS[0] + 4 * q + e, r0),
                        "v_mul_f32 v%d, v%d, v%d" % (T, g, g),
                        "v_fma_f32 v%d, v%d, v%d, v%d" % (T, T, r0 + 2, r0 + 1),
                        "v_mul_f32 v%d, v%d, v%d" % (T, T, g),
                        "v_exp_f32 v%d, v%d" % (T, T),
                        "v_fmac_f32 v%d, v%d, v%d" % (u, CS[1] + 4 * q + e, r0),
                        "v_fma_f32 v%d, v%d, v%d, v%d" % (T, T, r0 + 3, r0 + 3),
                        "v_rcp_f32 v%d, v%d" % (T, T),
                        "v_mul_f32 v%d, v%d, v%d" % (g, g, u),
                        "v_mul_f32 v%d, v%d, v%d" % (g, g, T),
                        ("v_cvt_pk_bf16_f32 v%d, v%d, v%d" % (HP + 2 * q2 + e // 2, g - 1, g)) if e & 1 else None])
                    for i in range(len(seqs[0])):
                        for sq in seqs:
                            if sq[i]: a(sq[i])
                a("v_permlane32_swap_b32 v%d, v%d" % (HP, HP + 2))
                a("v_permlane32_swap_b32 v%d, v%d" % (HP + 1, HP + 3))
                a("s_movk_i32 s%d, %d" % (sT0, ff * 4096))
                a.vm("buffer_store_dwordx4 %s, v20, s[%d:%d], s%d offen offset:%d sc1" % (vr(HP, 4), SWS, SWS + 3, sT0, tt * 2048 + qp * 512), ("hst", ff))
    sf_("gelu")
    A2 = lambda ct, tt: 32 + 16 * ct + 4 * tt
    WB = [128 + 16 * i for i in range(NW)]; NH = 4; HB = [224, 240, 96, 112]
    a("v_and_b32 v16, 15, v1"); a("v_lshrrev_b32 v17, 4, v1")
    a("v_lshrrev_b32 v8, 2, v16")
    a("v_lshl_add_u32 v8, v17, 3, v8")
    a("v_lshlrev_b32 v8, 7, v8")
    a("v_and_b32 v9, 3, v16")
    a("v_lshl_add_u32 v8, v9, 3, v8")
    a("v_add_u32 v13, s%d, v8" % sWB)
    a("v_bfe_u32 v9, v16, 3, 1")
    a("v_and_b32 v14, 1, v17")
    a("v_lshl_add_u32 v9, v14, 1, v9")
    TRB = [4, 5, 6, 7]
    for ct in range(4):
        a("v_xor_b32 v14, %d, v9" % ct)
        a("v_lshl_add_u32 v%d, v14, 5, v13" % TRB[ct])
    def trw(s):
        for ct in range(4):
            for hf in range(2):
                a("ds_read_b64_tr_b16 %s, v%d offset:%d" % (vr(WB[s % NW] + 4 * ct + 2 * hf, 2), TRB[ct], (s % NW) * 4096 + hf * 512))
    a.wait_vm(("wd", NW - 1))
    for s in range(NW): trw(s)
    a("s_mul_i32 s%d, s%d, 56" % (sT0, sRT2))
    a("s_mul_i32 s%d, s%d, 14" % (sT1, sWV))
    a("s_add_u32 s%d, s%d, s%d" % (sT0, sT0, sT1))
    a("s_lshl_b32 s%d, s%d, 12" % (sT0, sT0))
    a("v_lshl_add_u32 v9, v1, 4, s%d" % sT0)
    a("s_lshl_b32 s%d, s%d, 9" % (sT0, sRT2))
    a("s_add_u32 s%d, s%d, %d" % (sT0, sT0, WS_HF))
    a("v_min_u32 v8, 55, v1")
    a("v_lshl_add_u32 v8, v8, 3, s%d" % sT0)
    flag(1)
    sf_("flag1")
    a("s_waitcnt lgkmcnt(0)")
    for s in range(NW, 2 * NW): dma_wd(s)
    for r in range(32, 96): a("v_mov_b32 v%d, 0" % r)
    a("s_lshl_b32 s%d, s%d, 6" % (sT0, sRT2)); a("s_lshl_b32 s%d, s%d, 4" % (sT1, sWV)); a("s_add_u32 s%d, s%d, s%d" % (sT0, sT0, sT1))
    a("v_add_u32 v18, s%d, v16" % sT0)
    a("v_mul_u32_u24 v18, 896, v18")
    a("v_lshl_add_u32 v18, v17, 4, v18")
    a("s_lshl_b32 s%d, s%d, 7" % (sT0, sCT))
    a("v_add_u32 v18, s%d, v18" % sT0)
    a("v_xor_b32 v14, v17, v16")
    a("v_lshlrev_b32 v19, 8, v16"); a("v_lshl_add_u32 v19, v14, 4, v19")
    a("v_add_u32 v19, s%d, v19" % sWB)
    a("v_xor_b32 v20, 64, v19"); a("v_xor_b32 v21, 128, v19"); a("v_xor_b32 v22, 192, v19")
    def hwait(ph):
        lh = L("HP"); lh2 = L("HP"); lh3 = L("HP")
        a("s_cmp_lg_u32 s%d, 0" % sWV)
        a("s_cbranch_scc1 %s" % lh3)
        a.begin_opt()
        a("s_mov_b32 s%d, %d" % (sT3, SPIN))
        a.label(lh)
        a("buffer_load_dwordx2 v[14:15], v8, s[%d:%d], 0 offen sc1" % (SWS, SWS + 3))
        a("s_waitcnt vmcnt(0)")
        a("v_cmp_ne_u64 vcc, s[%d:%d], v[14:15]" % (sNON, sNON + 1))
        a("v_mov_b32 v13, 2")
        a("s_cbranch_vccz %s" % lh2)
        if ph == 0:
            a("v_mov_b32 v13, 1")
            a("s_and_b32 s%d, vcc_lo, 0x55555555" % sT0); a("s_and_b32 s%d, vcc_hi, 0x00555555" % sT1)
            a("s_or_b32 s%d, s%d, s%d" % (sT0, sT0, sT1))
            a("s_cbranch_scc0 %s" % lh2)
        a("s_sleep %d" % int(os.environ.get("HSL", "2")))
        a("s_sub_u32 s%d, s%d, 1" % (sT3, sT3)); a("s_cmp_lg_u32 s%d, 0" % sT3)
        a("s_cbranch_scc1 %s" % lh)
        a.label(lh2)
        a("s_mov_b64 exec, 1")
        a("ds_write_b8 v10, v13 offset:2")
        a("s_mov_b64 exec, -1")
        a.end_opt()
        a.label(lh3)
        spin_lds(10, 15, ph + 1, slp=1, off=2)
    def hwait2():
        l = L("HW")
        a("ds_read_u8 v15, v10 offset:2")
        a("s_waitcnt lgkmcnt(0)")
        a("v_cmp_gt_u32 vcc, 2, v15")
        a("s_cbranch_vccz %s" % l)
        a.begin_opt()
        hwait(1)
        a.end_opt()
        a.label(l)
    hwait(0)
    sf_("hpoll")
    def ld_h(s):
        a("s_mov_b32 s%d, %d" % (sOX, WS_H + J(s) * 4096))
        for tt in range(4):
            a.vm("buffer_load_dwordx4 %s, v9, s[%d:%d], s%d offen offset:%d" % (vr(HB[s % NH] + 4 * tt, 4), SWS, SWS + 3, sOX, tt * 1024), ("h", s, tt))
    for s in range(NH): ld_h(s)
    for s in range(14):
        if s >= NW: a("s_waitcnt lgkmcnt(%d)" % min(15, 8 * min(NW - 1, 13 - s)))
        for tt in range(4):
            a.wait_vm(("h", s, tt))
            for ct in range(4):
                a("v_mfma_f32_16x16x32_bf16 %s, %s, %s, %s" % (vr(A2(ct, tt), 4), vr(WB[s % NW] + 4 * ct, 4), vr(HB[s % NH] + 4 * tt, 4), vr(A2(ct, tt), 4)))
        if s + NH == 7: hwait2(); sf_("hpoll2")
        if s + NH < 14: ld_h(s + NH)
        if s == 10:
            a.vm("buffer_load_dwordx4 v[24:27], v18, s[%d:%d], 0 offen" % (SX, SX + 3), "x")
            a.vm("buffer_load_dwordx4 v[28:31], v18, s[%d:%d], 0 offen offset:64" % (SX, SX + 3), "x")
        if s + NW < 14:
            a.wait_vm(("wd", s + NW))
            trw(s + NW)
            if s + 2 * NW < 14:
                a("s_waitcnt lgkmcnt(0)")
                dma_wd(s + 2 * NW)
    sf_("f2end")
    for tt in range(4):
        for ct in range(4):
            a("ds_write_b128 v%d, %s offset:%d" % (19 + ct, vr(A2(ct, tt), 4), tt * 4096))
    a("v_lshlrev_b32 v14, 1, v17"); a("v_xor_b32 v14, v14, v16")
    a("v_lshlrev_b32 v4, 8, v16"); a("v_lshl_add_u32 v4, v14, 4, v4")
    a("s_lshl_b32 s%d, s%d, 12" % (sT0, sWV))
    a("v_add_u32 v4, s%d, v4" % sT0)
    a("v_xor_b32 v5, 16, v4"); a("v_xor_b32 v6, 128, v4"); a("v_xor_b32 v7, 144, v4")
    a("v_add_u32 v0, %d, v4" % (2 * W2R)); a("v_add_u32 v2, %d, v5" % (2 * W2R)); a("v_add_u32 v3, %d, v6" % (2 * W2R)); a("v_add_u32 v8, %d, v7" % (2 * W2R))
    a("v_lshrrev_b32 v14, 1, v17")
    a("v_mul_u32_u24 v14, %d, v14" % STG_W)
    a("v_and_b32 v15, 1, v17"); a("v_lshlrev_b32 v15, 3, v15"); a("v_lshrrev_b32 v13, 2, v16"); a("v_add_u32 v15, v15, v13")
    a("v_lshl_add_u32 v14, v15, 7, v14")
    a("v_and_b32 v15, 3, v16"); a("v_lshl_add_u32 v14, v15, 3, v14")
    a("s_lshl_b32 s%d, s%d, 5" % (sT2, sWV)); a("s_add_u32 s%d, s%d, %d" % (sT2, sT2, L_STG))
    a("v_add_u32 v14, s%d, v14" % sT2)
    a("s_waitcnt lgkmcnt(0)")
    arrive(17)
    spin_lds(11, 15, 1, slp=1, off=Y_YA)
    sf_("ya")
    for hc in range(2):
        for hf in range(2):
            a("ds_read_b64_tr_b16 %s, v14 offset:%d" % (vr(96 + 4 * hc + 2 * hf, 2), hc * 2 * STG_W + hf * 512))
    a.wait_vm("x")
    a("s_waitcnt lgkmcnt(0)")
    for w in range(8):
        xw = 24 + w; yw = 96 + w; o = 104 + 2 * w
        a("v_lshlrev_b32 v%d, 16, v%d" % (o, xw)); a("v_and_b32 v%d, 0xffff0000, v%d" % (o + 1, xw))
        a("v_lshlrev_b32 v120, 16, v%d" % yw); a("v_and_b32 v121, 0xffff0000, v%d" % yw)
        a("v_add_f32 v%d, v%d, v120" % (o, o)); a("v_add_f32 v%d, v%d, v121" % (o + 1, o + 1))
        a("v_cvt_pk_bf16_f32 v%d, v%d, v%d" % (o, o, o + 1))
        a("v_and_b32 v%d, 0xffff0000, v%d" % (o + 1, o)); a("v_lshlrev_b32 v%d, 16, v%d" % (o, o))
    spin_lds(11, 15, 17, slp=0)
    for s in range(4):
        for c in range(4):
            ad = ((4, 5, 6, 7), (0, 2, 3, 8))[s >> 1][c]
            a("ds_read_b128 %s, v%d offset:%d" % (vr(128 + 16 * s + 4 * c, 4), ad, (s & 1) * W2R))
    for hc in range(2):
        a("s_waitcnt lgkmcnt(%d)" % (2 - 2 * hc))
        for e in range(8):
            b = 128 + 8 * hc + e
            a("v_add_f32 v%d, v%d, v%d" % (b, b, b + 16)); a("v_add_f32 v%d, v%d, v%d" % (b + 32, b + 32, b + 48))
            a("v_add_f32 v%d, v%d, v%d" % (b, b, b + 32))
        for w in range(4):
            b = 128 + 8 * hc + 2 * w; o = 104 + 8 * hc + 2 * w
            a("v_cvt_pk_bf16_f32 v120, v%d, v%d" % (b, b + 1))
            a("v_and_b32 v121, 0xffff0000, v120"); a("v_lshlrev_b32 v120, 16, v120")
            a("v_add_f32 v120, v120, v%d" % o); a("v_add_f32 v121, v121, v%d" % (o + 1))
            a("v_cvt_pk_bf16_f32 v%d, v120, v121" % (192 + 4 * hc + w))
        a("buffer_store_dwordx4 %s, v18, s[%d:%d], 0 offen offset:%d" % (vr(192 + 4 * hc, 4), SOUT, SOUT + 3, hc * 64))
    sf_("end")
    if "span" in EXP:
        srd(a, SDBG, 12, 256)
        a("s_waitcnt vmcnt(0)")
        a("s_memrealtime s[100:101]"); a("s_waitcnt lgkmcnt(0)")
        a("s_sub_u32 s100, s100, s%d" % sNON)
        a("v_mov_b32 v150, s100"); a("v_mov_b32 v151, 0")
        a("s_cmp_lg_u32 s%d, 0" % sWV); a("s_cselect_b32 exec_lo, 0, 1"); a("s_mov_b32 exec_hi, 0")
        a("buffer_atomic_umax v150, v151, s[%d:%d], 0 offen sc1" % (SDBG, SDBG + 3))
        a("s_lshl_b32 s100, s2, 2"); a("s_add_u32 s100, s100, %d" % WS_DBG); a("v_mov_b32 v151, s100")
        a("buffer_store_dword v150, v151, s[%d:%d], 0 offen sc1" % (SWS, SWS + 3))
        a("s_mov_b64 exec, -1")
    sf_.store(150)
    a("s_endpgm")
    for f in deferred: f()

    import gen4h as gen3h
    gen3h.helper(a, sh_, L, spin_lds)
    gen3h.producer(a, sp_, L)
    a.label("K_END")
    a("s_endpgm")
    if STAMP: print("ffn", sf_.names, "\nhelp", sh_.names, "\nprod", sp_.names)
    return a.finalize()

def wrap(kernels):
    out = []
    for name, grid, block, lds, body, nv in kernels:
        if len(kernels) > 1: out.append("; @launch kernel=%s grid=(%d,1,1) block=(%d,1,1) lds=%d" % (name, grid, block, lds))
        else: out.append("; @launch grid=(%d,1,1) block=(%d,1,1) lds=%d" % (grid, block, lds))
    out.append('.amdgcn_target "amdgcn-amd-amdhsa--gfx950"')
    out.append(".text")
    for name, grid, block, lds, body, nv in kernels:
        out += [".globl %s" % name, ".p2align 8", ".type %s,@function" % name, "%s:" % name, body]
    out.append('.section .rodata,"a"')
    for name, grid, block, lds, body, nv in kernels:
        out += [".p2align 6", ".amdhsa_kernel %s" % name,
                "  .amdhsa_next_free_vgpr %d" % nv, "  .amdhsa_next_free_sgpr 102", "  .amdhsa_accum_offset %d" % ((nv + 3) // 4 * 4),
                "  .amdhsa_group_segment_fixed_size 0", "  .amdhsa_kernarg_size 128", "  .amdhsa_user_sgpr_count 2",
                "  .amdhsa_user_sgpr_kernarg_segment_ptr 1", "  .amdhsa_system_sgpr_workgroup_id_x 1", ".end_amdhsa_kernel"]
    return "\n".join(out) + "\n"

if __name__ == "__main__":
    sys.modules["gen4"] = sys.modules["__main__"]
    NAME = "parallel_sum__ssm_conv_s4__glu_gated_geglu__prompt_kernel"
    ks = [(NAME, 256, 512, LDS, gen(), 256)]
    if "delay" in EXP:
        b = Asm()
        b("s_cmp_ge_u32 s2, 1"); b("s_cbranch_scc1 K3_END")
        b("s_load_dwordx4 s[4:7], s[0:1], 112"); b("s_waitcnt lgkmcnt(0)")
        srd(b, 8, 6, WS_SIZE); srd(b, 12, 4, 256)
        b("v_lshlrev_b32 v1, 2, v0"); b("v_mov_b32 v10, 0")
        for i in range(4):
            b("s_mov_b32 s22, %d" % (WS_DBG + 128 + i * 256 - (32 if i == 3 else 0) * 4))
            b("buffer_load_dword v4, v1, s[8:11], s22 offen sc1"); b("s_waitcnt vmcnt(0)"); b("v_max_u32 v10, v10, v4")
        b("v_readlane_b32 s30, v10, 0")
        for l in range(1, 64):
            b("v_readlane_b32 s22, v10, %d" % l); b("s_max_u32 s30, s30, s22")
        b("s_mov_b64 exec, 1"); b("v_mov_b32 v1, 0"); b("v_mov_b32 v2, s30")
        b("buffer_store_dword v2, v1, s[12:15], 0 offen"); b("s_waitcnt vmcnt(0)")
        b("s_min_u32 s30, s30, 20000"); b("s_mul_i32 s30, s30, %d" % int(os.environ.get("DM", "4")))
        b("s_memrealtime s[24:25]"); b("s_waitcnt lgkmcnt(0)")
        b.label("K3_L")
        b("s_memrealtime s[26:27]"); b("s_waitcnt lgkmcnt(0)"); b("s_sub_u32 s28, s26, s24"); b("s_cmp_lt_u32 s28, s30"); b("s_cbranch_scc1 K3_L")
        b.label("K3_END"); b("s_endpgm")
        ks = [("k1_kernel",) + ks[0][1:], ("k3_kernel", 1, 64, 0, b.finalize(), 64)]
    open(sys.argv[1] if len(sys.argv) > 1 else "k.s", "w").write(wrap(ks))
```

```python
import re

TRANS = ("v_exp_f32", "v_log_f32", "v_rcp_f32", "v_rsq_f32", "v_sqrt_f32", "v_sin_f32", "v_cos_f32", "v_rcp_iflag_f32")

def _regs(tok):
    tok = tok.strip()
    neg = tok.lstrip("-")
    m = re.match(r"^(?:abs\()?\|?([vas])(\d+)\)?\|?$", neg)
    if m: return {(m.group(1), int(m.group(2)))}
    m = re.match(r"^(?:abs\()?([vas])\[(\d+):(\d+)\]\)?$", neg)
    if m: return {(m.group(1), i) for i in range(int(m.group(2)), int(m.group(3)) + 1)}
    if neg == "vcc": return {("s", 106), ("s", 107)}
    if neg == "vcc_lo": return {("s", 106)}
    if neg == "vcc_hi": return {("s", 107)}
    if neg == "exec": return {("s", 126), ("s", 127)}
    if neg == "m0": return {("s", 124)}
    return set()

class Ins:
    __slots__ = ("text", "mn", "ops", "wr", "rd", "kind", "blk", "passes", "srcc", "srcab", "ws", "lds_dma", "widestore", "sdata", "nopkw")
    def __init__(self, text, blk):
        self.text = text; self.blk = blk; self.nopkw = False
        t = text.split(";")[0].strip()
        parts = t.split(None, 1)
        self.mn = parts[0]
        rest = parts[1] if len(parts) > 1 else ""
        ops = []; depth = 0; cur = ""
        for ch in rest:
            if ch in "[(": depth += 1
            if ch in "])": depth -= 1
            if ch == "," and depth == 0: ops.append(cur.strip()); cur = ""
            else: cur += ch
        if cur.strip(): ops.append(cur.strip())
        mods = ""
        if ops:
            sp = ops[-1].split(None, 1)
            ops[-1] = sp[0]; mods = sp[1] if len(sp) > 1 else ""
        self.ops = ops
        mn = self.mn
        R = [_regs(o) for o in ops]
        U = lambda l: set().union(*l) if l else set()
        self.wr = set(); self.rd = set(); self.passes = 0; self.srcc = set(); self.srcab = set()
        self.ws = 1; self.lds_dma = False; self.widestore = False; self.sdata = set()
        if mn == "s_nop":
            self.kind = "nop"; self.ws = int(ops[0], 0) + 1
        elif mn.startswith("v_mfma"):
            self.kind = "mfma"; self.wr = R[0]; self.srcab = R[1] | R[2]; self.srcc = R[3]; self.rd = self.srcab | self.srcc
            self.passes = 8 if "32x32x16" in mn else 4 if "16x16x32" in mn else 16
        elif mn.startswith("v_"):
            self.kind = "trans" if mn.replace("_e32", "").replace("_e64", "") in TRANS else "valu"
            if mn.startswith("v_permlane32_swap") or mn.startswith("v_permlane16_swap"):
                self.wr = R[0] | R[1]; self.rd = R[0] | R[1]; self.kind = "permlane"
            elif mn.startswith("v_cmp"):
                self.wr = R[0]; self.rd = U(R[1:])
            elif mn.startswith(("v_add_co", "v_sub_co", "v_subrev_co", "v_addc_co", "v_subb_co")):
                self.wr = R[0] | R[1]; self.rd = U(R[2:])
            else:
                self.wr = R[0]; self.rd = U(R[1:])
                if mn.startswith(("v_fmac", "v_dot2c", "v_pk_fmac", "v_writelane")) or "d16" in mn: self.rd |= R[0]
                if mn.startswith("v_cndmask") and len(ops) == 3: self.rd |= {("s", 106), ("s", 107)}
            if "dpp" in mn or "row_" in mods or "wave_" in mods or "quad_perm" in mods:
                self.kind = "dpp"; self.rd |= R[0]
            if mn.startswith(("v_readlane", "v_readfirstlane")): self.kind = "readlane"
            if mn.startswith("v_dot"): self.kind = "dot"
        elif mn.startswith("ds_"):
            self.kind = "ds"
            if mn.startswith(("ds_read", "ds_bpermute", "ds_permute", "ds_swizzle")) or "_rtn" in mn:
                self.wr = R[0]; self.rd = U(R[1:])
                if "d16" in mn: self.rd |= R[0]
            else: self.rd = U(R)
        elif mn.startswith(("buffer_", "global_")):
            self.kind = "vmem"
            islds = bool(re.search(r"\blds\b", mods)) or "_lds_" in mn
            if mn.startswith(("buffer_wbl2", "buffer_inv")):
                pass
            elif islds:
                self.lds_dma = True; self.rd = U(R) | {("s", 124)}
            elif "load" in mn:
                self.wr = R[0]; self.rd = U(R[1:])
                if "d16" in mn: self.rd |= R[0]
            elif "atomic" in mn and re.search(r"\bsc0\b", mods) and mn.startswith("global_"):
                self.wr = R[0]; self.rd = U(R[1:])
            elif "atomic" in mn and re.search(r"\bsc0\b", mods):
                self.wr = R[0]; self.rd = U(R)
            else:
                self.rd = U(R)
                if "dwordx4" in mn or "dwordx3" in mn:
                    self.widestore = True
                    self.sdata = R[0] if mn.startswith("buffer_") else R[1]
        elif mn.startswith("s_"):
            self.kind = "salu"
            if mn.startswith(("s_cmp", "s_waitcnt", "s_barrier", "s_branch", "s_cbranch", "s_endpgm", "s_setprio", "s_sleep", "s_bitcmp")):
                self.rd = U(R)
            else:
                self.wr = R[0] if R else set(); self.rd = U(R[1:])
                if "saveexec" in mn: self.wr |= {("s", 126), ("s", 127)}
        else:
            raise ValueError("unknown instr " + text)

import os
PKW = int(os.environ.get("PKW", "2"))
VALUK = ("valu", "trans", "dpp", "permlane", "readlane", "dot")

def need(p, c):
    n = 0
    pv = {r for r in p.wr if r[0] in "va"}
    ps = {r for r in p.wr if r[0] == "s"}
    if p.kind in VALUK:
        if pv:
            if c.kind == "mfma" and pv & c.rd: n = max(n, 2)
            if c.kind == "dpp" and pv & c.rd: n = max(n, 2)
            if c.kind == "permlane" and pv & c.rd: n = max(n, 2)
            if c.kind == "readlane" and pv & c.rd: n = max(n, 1)
            if p.mn.startswith("v_pk_") and not p.nopkw and p.mn.endswith("_f32") and not c.mn.startswith("v_pk_") and pv & c.rd: n = max(n, PKW)
            if p.kind == "trans" and c.kind in VALUK + ("mfma",) and pv & (c.rd | c.wr): n = max(n, 1)
            if p.kind == "dot" and pv & (c.rd | c.wr):
                same = c.kind == "dot" and c.mn == p.mn and len(c.ops) >= 3 and not (pv & (_regs(c.ops[1]) | _regs(c.ops[2])))
                if not same: n = max(n, 3)
        if ps:
            if c.kind == "vmem" and ps & c.rd: n = max(n, 5)
            if c.kind in VALUK + ("mfma",) and ps & c.rd: n = max(n, 4 if c.kind == "readlane" else 2)
            if c.kind == "salu" and ps & c.rd: n = max(n, 1)
            if ps & {("s", 126), ("s", 127)}: n = max(n, 5)
    if p.kind == "mfma":
        big = {4: 8, 8: 12, 16: 20}[p.passes]
        if c.kind == "mfma":
            if p.wr & c.srcab: n = max(n, big)
            if p.wr & c.srcc and not (p.wr == c.srcc and p.passes == c.passes): n = max(n, {4: 6, 8: 10, 16: 18}[p.passes])
            if p.wr & c.wr and not (p.wr & c.srcc): n = max(n, big)
        elif p.wr & (c.rd | c.wr): n = max(n, big)
        if c.kind in VALUK and p.srcc & c.wr: n = max(n, {4: 3, 8: 7, 16: 15}[p.passes])
    if p.kind == "salu" and ("s", 124) in p.wr and c.kind == "vmem" and c.lds_dma: n = max(n, 1)
    if p.kind == "vmem" and p.widestore and p.sdata & c.wr: n = max(n, 2 if c.kind in VALUK else 1)
    return n

class Asm:
    def __init__(self):
        self.items = []
        self.blk = None
        self.nopkw = False
        self._blkid = 0
        self.vmq = []
        self.dsq = []
    def __call__(self, text):
        for ln in text.strip().split("\n"):
            ln = ln.strip()
            if not ln or ln.startswith(";"): continue
            self.items.append(Ins(ln, self.blk)); self.items[-1].nopkw = self.nopkw
    def raw(self, text): self.items.append(text)
    def label(self, l): self.items.append(l + ":")
    def comment(self, c): self.items.append("    ; " + c)
    def begin_opt(self): self._blkid += 1; self.blk = self._blkid
    def end_opt(self): self.blk = None
    def vm(self, text, tag=None):
        self(text); self.vmq.append(tag)
    def wait_vm(self, tag):
        if tag not in self.vmq: return
        idx = max(i for i, t in enumerate(self.vmq) if t == tag)
        n = len(self.vmq) - 1 - idx
        assert n <= 63
        self("s_waitcnt vmcnt(%d)" % n)
        self.vmq = self.vmq[idx + 1:]
    def ds(self, text, tag=None):
        self(text); self.dsq.append(tag)
    def wait_ds(self, tag):
        if tag not in self.dsq: return
        idx = max(i for i, t in enumerate(self.dsq) if t == tag)
        n = len(self.dsq) - 1 - idx
        self("s_waitcnt lgkmcnt(%d)" % min(n, 15))
        self.dsq = self.dsq[idx + 1:] if n <= 15 else self.dsq[len(self.dsq) - 15:]
    def wait_vm_all(self):
        self("s_waitcnt vmcnt(0)"); self.vmq = []
    def finalize(self):
        out = []
        hist = []
        for it in self.items:
            if isinstance(it, str):
                out.append(it); continue
            pad = 0; dist = 0
            for p in reversed(hist[-40:]):
                nd = need(p, it)
                if nd > dist: pad = max(pad, nd - dist)
                if p.blk is None or p.blk == it.blk: dist += p.ws
                if dist >= 24: break
            while pad > 0:
                k = min(pad, 16)
                nop = Ins("s_nop %d" % (k - 1), it.blk)
                hist.append(nop); out.append("    " + nop.text); pad -= k
            hist.append(it); out.append("    " + it.text)
        return "\n".join(out)
```

```python
import math, os
from gen4 import *

def get_nonce(a, L, va, vd):
    l1, l2 = L("GN"), L("GN")
    a("s_mov_b32 s%d, %d" % (sCNT, SPIN))
    a.label(l1)
    a("buffer_load_dwordx2 v[%d:%d], v%d, s[%d:%d], 0 offen sc1" % (vd, vd + 1, va, SDBG, SDBG + 3))
    a("s_waitcnt vmcnt(0)")
    a("v_readfirstlane_b32 s%d, v%d" % (sNON, vd)); a("v_readfirstlane_b32 s%d, v%d" % (sNON + 1, vd + 1))
    a("s_cmp_lg_u32 s%d, 0" % (sNON + 1))
    a("s_cbranch_scc1 %s" % l2)
    a("s_sleep 8")
    a("s_sub_u32 s%d, s%d, 1" % (sCNT, sCNT)); a("s_cmp_lg_u32 s%d, 0" % sCNT)
    a("s_cbranch_scc1 %s" % l1)
    a.label(l2)

def helper(a, sk_, L, spin_lds):
    a.label("K_HELP")
    a.vmq = []
    a("s_setprio %d" % int(os.environ.get("KPRIO", "0")))
    a("s_load_dwordx2 s[60:61], s[0:1], 64")
    a("s_sub_u32 s%d, s%d, 4" % (sKW, sWV))
    a("s_and_b32 s%d, s%d, 1" % (sHF, sKW))
    a("s_lshr_b32 s%d, s%d, 1" % (sT0, sKW))
    a("s_sub_u32 s%d, s2, 32" % sCH)
    a("s_lshl_b32 s%d, s%d, 1" % (sCH, sCH))
    a("s_add_u32 s%d, s%d, s%d" % (sCH, sCH, sT0))
    a("s_mul_i32 s%d, s%d, %d" % (sCVB, sT0, CV_CH))
    a("s_add_u32 s%d, s%d, %d" % (sCVB, sCVB, L_CV))
    a("s_lshl_b32 s%d, s%d, 8" % (sT0, sCH))
    a("s_lshl_b32 s%d, s%d, 7" % (sT1, sHF))
    a("s_add_u32 s%d, s%d, s%d" % (sT0, sT0, sT1))
    a("v_add_u32 v2, s%d, v1" % sT0)
    a("v_lshlrev_b32 v2, 1, v2")
    a("s_lshl_b32 s%d, s%d, 1" % (sT1, sCH))
    a("v_mov_b32 v3, s%d" % sT1)
    a("s_waitcnt lgkmcnt(0)")
    P = [[20, 21, 22, 23, 24, 25], [120, 121, 122, 123, 124, 125]]
    a.vm("global_load_ushort v26, v3, s[30:31]", "param")
    for it in range(2):
        for i in range(6):
            a.vm("global_load_ushort v%d, v2, s[%d:%d] offset:%d" % (P[it][i], 18 + 2 * i, 19 + 2 * i, it * 128), "param")
    a.vm("global_load_ushort v160, v3, s[60:61]", "param")
    if "l2pf" in EXP:
        assert not MAPB
        srd(a, SWG, 32, 448 * 3584); srd(a, SWU, 34, 448 * 3584); srd(a, SX, 16, 2048 * 896)
        a("s_lshr_b32 s%d, s2, 3" % sT0); a("s_sub_u32 s%d, s%d, 4" % (sT0, sT0)); a("s_lshl_b32 s%d, s%d, 2" % (sT0, sT0)); a("s_add_u32 s%d, s%d, s%d" % (sT0, sT0, sKW))
        a("v_mul_u32_u24 v16, 4682, v1"); a("v_lshrrev_b32 v16, 16, v16")
        a("v_mul_u32_u24 v17, 14, v16"); a("v_sub_u32 v17, v1, v17")
        a("v_min_u32 v16, 3, v16")
        a("v_mul_u32_u24 v16, 3584, v16"); a("v_lshl_add_u32 v16, v17, 7, v16")
        a("s_mul_i32 s%d, s%d, %d" % (sT1, sT0, 4 * 3584))
        a("s_and_b32 s%d, s2, 1" % sT2); a("s_mul_i32 s%d, s%d, 1792" % (sT2, sT2)); a("s_add_u32 s%d, s%d, s%d" % (sT1, sT1, sT2))
        a("v_lshrrev_b32 v17, 3, v1"); a("v_min_u32 v17, 4, v17"); a("s_mul_i32 s%d, s%d, 5" % (sT2, sT0)); a("v_add_u32 v17, s%d, v17" % sT2)
        a("v_min_u32 v17, 511, v17"); a("v_mul_u32_u24 v17, 896, v17")
        a("v_and_b32 v18, 7, v1"); a("v_min_u32 v18, 6, v18"); a("v_lshl_add_u32 v17, v18, 7, v17")
        a("s_bfe_u32 s%d, s2, 0x20001" % sT2); a("s_mul_i32 s%d, s%d, %d" % (sT2, sT2, 512 * 896))
        a("s_sleep %d" % int(os.environ.get("PFS", "0")))
        a.vm("buffer_load_dword v200, v16, s[%d:%d], s%d offen" % (SWG, SWG + 3, sT1), "pf")
        a.vm("buffer_load_dword v201, v16, s[%d:%d], s%d offen" % (SWU, SWU + 3, sT1), "pf")
        a.vm("buffer_load_dword v202, v17, s[%d:%d], s%d offen" % (SX, SX + 3, sT2), "pf")
    srd(a, SWS, 14, WS_SIZE)
    a("s_mul_i32 s%d, s%d, %d" % (sSTG, sKW, STG_W))
    a("s_add_u32 s%d, s%d, %d" % (sSTG, sSTG, L_STG))
    a("v_and_b32 v7, 15, v1")
    a("v_lshrrev_b32 v6, 4, v1")
    a("v_mul_u32_u24 v5, 272, v7")
    a("v_lshl_add_u32 v8, v6, 4, s%d" % sSTG)
    a("v_add_u32 v5, v5, v8")
    maps = [[0,1,2,3,4,5,6,7, 8,8,9,10,10,10,11,12],
            [0,0,0,1,1,1,2,2, 3,3,3,4,4,4,5,5],
            [6,6,6,6,6,7,7,7, 8,8,8,8,8,9,9,9],
            [10,10,10,10,10,11,11,11, 12,12,12,12,12,13,13,13]]
    XA = [12, 13, 14, 15]
    a("v_lshlrev_b32 v9, 2, v7")
    a("v_and_b32 v9, 31, v9")
    a("v_cmp_gt_u32 vcc, 8, v7")
    for t in range(4):
        lo = sum(maps[t][i] << (4 * i) for i in range(8)); hi = sum(maps[t][8 + i] << (4 * i) for i in range(8))
        a("v_mov_b32 v10, 0x%x" % hi); a("v_mov_b32 v11, 0x%x" % lo)
        a("v_cndmask_b32 v10, v10, v11, vcc")
        a("v_lshrrev_b32 v10, v9, v10")
        a("v_and_b32 v10, 15, v10")
        a("v_mul_u32_u24 v10, 272, v10")
        a("v_add_u32 v%d, v10, v8" % XA[t])
    D = lambda t, yt: 128 + 8 * t + 4 * yt
    for r in range(128, 160): a("v_mov_b32 v%d, 0" % r)
    a("s_add_u32 s%d, s%d, %d" % (sT0, sKW, L_SYNC)); a("v_mov_b32 v161, s%d" % sT0)
    a("s_xor_b32 s%d, s%d, 1" % (sT1, sKW)); a("s_add_u32 s%d, s%d, %d" % (sT1, sT1, L_SYNC)); a("v_mov_b32 v162, s%d" % sT1)
    a("v_mov_b32 v163, 1")
    srd(a, SDBG, 12, 256)
    a("s_and_b32 s%d, s2, 7" % sT0); a("s_lshl_b32 s%d, s%d, 8" % (sT0, sT0)); a("s_add_u32 s%d, s%d, %d" % (sT0, sT0, WS_PF))
    a("v_and_b32 v112, 31, v1"); a("v_lshl_add_u32 v112, v112, 2, s%d" % sT0)
    a("v_mov_b32 v113, 64")
    a("v_mov_b32 v114, %d" % (L_SYNC + Y_RDA))
    a("s_cmp_lg_u32 s%d, 0" % sKW)
    a("s_cselect_b32 s%d, 0, 1" % sPM)
    def setf(off):
        a("s_mov_b64 exec, 1")
        a("ds_write_b8 v161, v163 offset:%d" % off)
        a("s_mov_b64 exec, -1")
    def waitp(off, tmp=164, tmpa=165):
        a("v_add_u32 v%d, %d, v162" % (tmpa, off))
        spin_lds(tmpa, tmp, 1)
    k = a
    ln, ln2 = L("NF"), L("NF")
    a("s_cmp_eq_u32 s%d, 0" % sPM)
    a("s_cbranch_scc1 %s" % ln2)
    a.begin_opt()
    get_nonce(a, L, 113, 116)
    a("s_mov_b64 exec, 1")
    a("ds_write_b64 v114, v[116:117] offset:%d" % (Y_NON - Y_RDA))
    a("s_mov_b64 exec, -1")
    a.end_opt()
    a.label(ln2)
    a.wait_vm("param")
    sk_("param")
    for it in range(2):
        for r in P[it]: k("v_lshlrev_b32 v%d, 16, v%d" % (r, r))
    k("v_lshlrev_b32 v26, 16, v26")
    k("v_mul_f32 v26, %s, v26" % fbits(LOG2E))
    k("v_exp_f32 v26, v26")
    k("v_cvt_pk_bf16_f32 v26, v26, v26")
    k("v_lshlrev_b32 v26, 16, v26")
    WR = [28, 126]
    for it in range(2):
        p = P[it]
        k("v_mul_f32 v%d, v26, v%d" % (p[0], p[0])); k("v_mul_f32 v%d, v26, v%d" % (p[1], p[1]))
        k("v_mul_f32 v%d, v26, v%d" % (p[2], p[2])); k("v_mul_f32 v%d, v26, v%d" % (p[3], p[3]))
        w = WR[it]
        k("v_mul_f32 v%d, v%d, v%d" % (w, p[4], p[2])); k("v_fma_f32 v%d, -v%d, v%d, v%d" % (w, p[5], p[3], w))
        k("v_mul_f32 v%d, v%d, v%d" % (w + 1, p[4], p[3])); k("v_fma_f32 v%d, v%d, v%d, v%d" % (w + 1, p[5], p[2], w + 1))
    k("v_max_f32 v27, abs(v28), abs(v29)")
    k("v_max3_f32 v27, abs(v126), abs(v127), v27")
    for sh in (1, 2, 4, 8):
        k("v_max_f32_dpp v27, v27, v27 row_shr:%d row_mask:0xf bank_mask:0xf" % sh)
    k("v_max_f32_dpp v27, v27, v27 row_bcast:15 row_mask:0xa bank_mask:0xf")
    k("v_max_f32_dpp v27, v27, v27 row_bcast:31 row_mask:0xc bank_mask:0xf")
    k("v_readlane_b32 s%d, v27, 63" % sINV)
    k("s_lshr_b32 s%d, s%d, 23" % (sINV, sINV))
    k("s_sub_u32 s%d, 254, s%d" % (sSC, sINV))
    k("s_lshl_b32 s%d, s%d, 23" % (sSC, sSC))
    k("v_mov_b32 v10, s%d" % sINV)
    k("s_lshl_b32 s%d, s%d, 2" % (sT1, sKW))
    k("s_add_u32 s%d, s%d, %d" % (sT1, sT1, L_SYNC + Y_KEXP))
    k("v_mov_b32 v11, s%d" % sT1)
    k("ds_write_b32 v11, v10")
    for w in WR:
        k("v_mul_f32 v%d, s%d, v%d" % (w, sSC, w)); k("v_mul_f32 v%d, s%d, v%d" % (w + 1, sSC, w + 1))
    k("s_mov_b32 m0, s%d" % sSTG)
    E1, E8, E256, E2, E4, E16 = 30, 32, 34, 36, 38, 40
    tmpi = [0]
    def cmul(d, x, y):
        t = 42 + (tmpi[0] & 3); tmpi[0] += 1
        assert d != y
        k("v_mul_f32 v%d, v%d, v%d" % (t, x, y + 1))
        k("v_mul_f32 v%d, v%d, v%d" % (d, x, y))
        k("v_fma_f32 v%d, -v%d, v%d, v%d" % (d, x + 1, y + 1, d))
        k("v_fma_f32 v%d, v%d, v%d, v%d" % (d + 1, x + 1, y, t))
    PK = [46, 47, 48, 49]; pki = [0]
    def put(row, r, negim=False):
        p = PK[pki[0] & 3]; pki[0] += 1
        k("v_cvt_pk_f16_f32 v%d, v%d, %sv%d" % (p, r, "-" if negim else "", r + 1))
        k("ds_write_addtid_b32 v%d offset:%d" % (p, row * 272))
    YF = [64, 80]; XFB = 96
    for it in range(2 if "nokgen" not in EXP else 0):
        are, aim = P[it][0], P[it][1]
        X0 = WR[it]
        def cexp(d, Lx):
            k("v_mul_f32 v16, %s, v%d" % (fbits(Lx * LOG2E), are))
            k("v_mul_f32 v17, %s, v%d" % (fbits(Lx / (2 * math.pi)), aim))
            k("v_exp_f32 v16, v16")
            k("v_fract_f32 v17, v17")
            k("v_cos_f32 v%d, v17" % d)
            k("v_sin_f32 v%d, v17" % (d + 1))
            k("v_mul_f32 v%d, v16, v%d" % (d, d))
            k("v_mul_f32 v%d, v16, v%d" % (d + 1, d + 1))
        cexp(E8, 8); cexp(E1, 1); cexp(E256, 256)
        cmul(E16, E8, E8); cmul(E2, E1, E1); cmul(E4, E2, E2)
        Ya, Yb = 50, 52
        k("v_mov_b32 v50, 1.0"); k("v_mov_b32 v51, 0")
        put(0, Ya); put(1, E8)
        cmul(Yb, E8, E16)
        put(2, E16); put(3, Yb)
        cmul(Ya, E16, E16)
        for j in range(4, 32, 2):
            cmul(Yb, Yb, E16)
            put(j & 15, Ya); put((j + 1) & 15, Yb)
            if j + 2 < 32: cmul(Ya, Ya, E16)
            if j == 14:
                for ks in range(4): k("ds_read_b128 %s, v5 offset:%d" % (vr(YF[0] + 4 * ks, 4), ks * 64))
        for ks in range(4): k("ds_read_b128 %s, v5 offset:%d" % (vr(YF[1] + 4 * ks, 4), ks * 64))
        Xa, Xb, Xc = 54, 56, 58
        put(0, X0, True)
        cmul(Xa, X0, E1); cmul(Xb, X0, E256)
        put(1, Xa, True); put(8, Xb, True)
        cmul(Xc, Xb, E2)
        for r in range(2, 8):
            cmul(Xa, Xa, E1); put(r, Xa, True)
            if r <= 5:
                put(9 + (r - 2), Xc, True)
                if r < 5: cmul(Xc, Xc, E2)
        def xtile(t):
            for ks in range(4): k("ds_read_b128 %s, v%d offset:%d" % (vr(XFB + 4 * ks, 4), XA[t], ks * 64))
        def xmfma(t):
            for ks in range(4):
                for yt in range(2):
                    k("v_mfma_f32_16x16x32_f16 %s, %s, %s, %s" % (vr(D(t, yt), 4), vr(XFB + 4 * ks, 4), vr(YF[yt] + 4 * ks, 4), vr(D(t, yt), 4)))
        xtile(0)
        for b in range(2):
            cmul(Xb, Xb, E256); put(3 * b, Xb, True)
            cmul(Xc, Xb, E4); put(3 * b + 1, Xc, True)
            cmul(Xa, Xb, E8); put(3 * b + 2, Xa, True)
        k("s_waitcnt lgkmcnt(6)")
        xmfma(0)
        xtile(1)
        for b in range(4):
            cmul(Xb, Xb, E256); put(6 + 2 * b, Xb, True)
            cmul(Xa, Xb, E8); put(7 + 2 * b, Xa, True)
        k("s_waitcnt lgkmcnt(8)")
        xmfma(1)
        for t in (2, 3):
            xtile(t)
            k("s_waitcnt lgkmcnt(0)")
            xmfma(t)
    sk_("kgen")
    a("v_mov_b32 v168, v112")
    a("s_cmp_lg_u32 s%d, 0" % sPM); a("s_cselect_b32 exec_lo, -1, 0"); a("s_mov_b32 exec_hi, 0")
    a("buffer_load_dword v169, v168, s[%d:%d], 0 offen offset:128 sc1" % (SWS, SWS + 3))
    a("s_mov_b64 exec, -1")
    a("v_lshl_add_u32 v18, v1, 4, s%d" % sSTG)
    a("s_xor_b32 s%d, s%d, 1" % (sT0, sKW))
    a("s_mul_i32 s%d, s%d, %d" % (sT0, sT0, STG_W))
    a("s_add_u32 s%d, s%d, %d" % (sT0, sT0, L_STG))
    a("v_lshl_add_u32 v19, v1, 4, s%d" % sT0)
    x1, x2 = L("X"), L("X")
    a("s_cmp_lg_u32 s%d, 0" % sHF)
    a("s_cbranch_scc1 %s" % x1)
    a.begin_opt()
    for i in range(4): a("ds_write_b128 v18, %s offset:%d" % (vr(144 + 4 * i, 4), i * 1024))
    a("s_branch %s" % x2)
    a.end_opt()
    a.label(x1)
    a.begin_opt()
    for i in range(4): a("ds_write_b128 v18, %s offset:%d" % (vr(128 + 4 * i, 4), i * 1024))
    for i in range(16): a("v_mov_b32 v%d, v%d" % (128 + i, 144 + i))
    a.end_opt()
    a.label(x2)
    setf(Y_KX)
    waitp(Y_KX)
    a("s_and_b32 s%d, s%d, 2" % (sT0, sKW))
    a("s_lshl_b32 s%d, s%d, 2" % (sT0, sT0))
    a("s_add_u32 s%d, s%d, %d" % (sT0, sT0, L_SYNC + Y_KEXP))
    a("v_mov_b32 v10, s%d" % sT0)
    a("ds_read_b64 v[10:11], v10")
    for i in range(4): a("ds_read_b128 %s, v19 offset:%d" % (vr(144 + 4 * i, 4), i * 1024))
    a("s_waitcnt lgkmcnt(4)")
    a("v_max_u32 v16, v10, v11")
    a("v_add_u32 v17, v10, v11"); a("v_subrev_u32 v17, s%d, v17" % sINV)
    def fac(dst, esrc):
        a("v_sub_u32 v%d, %s, v16" % (dst, esrc))
        a("v_add_u32 v%d, 127, v%d" % (dst, dst))
        a("v_max_i32 v%d, 0, v%d" % (dst, dst))
        a("v_lshlrev_b32 v%d, 23, v%d" % (dst, dst))
    fac(20, "s%d" % sINV); fac(22, "v17")
    a("v_lshlrev_b32 v9, 23, v16")
    a("s_waitcnt lgkmcnt(0)")
    for i in range(16):
        a("v_mul_f32 v%d, v20, v%d" % (128 + i, 128 + i))
        a("v_fmac_f32 v%d, v22, v%d" % (128 + i, 144 + i))
    a("v_and_b32 v10, v6, v7"); a("v_and_b32 v10, s%d, v10" % sHF)
    a("v_cmp_ne_u32 vcc, 0, v10")
    for i in range(4): a("v_cndmask_b32 v%d, v%d, v%d, vcc" % (128 + 4 * i, 128 + 4 * i, 129 + 4 * i))
    a("v_lshrrev_b32 v10, 1, v6"); a("v_lshlrev_b32 v10, 9, v10")
    a("v_lshl_add_u32 v10, v7, 4, v10")
    a("v_and_b32 v11, 1, v6"); a("v_lshl_add_u32 v10, v11, 3, v10")
    a("s_add_u32 s%d, s%d, %d" % (sT0, sCVB, 4088 - 1024 - 256))
    a("s_lshl_b32 s%d, s%d, 11" % (sT2, sHF))
    a("s_sub_u32 s%d, s%d, s%d" % (sT0, sT0, sT2))
    a("v_sub_u32 v10, s%d, v10" % sT0)
    for tl in range(2):
        for yt in range(2):
            b = 128 + 8 * tl + 4 * yt
            a("v_cvt_pk_f16_f32 v%d, v%d, v%d" % (64 + 4 * tl + 2 * yt, b + 3, b + 2))
            a("v_cvt_pk_f16_f32 v%d, v%d, v%d" % (65 + 4 * tl + 2 * yt, b + 1, b))
    a("v_and_b32 v11, 3, v1"); a("v_add_u32 v11, %d, v11" % (L_SYNC + Y_CNT))
    spin_lds(11, 164, 10, slp=4, off=Y_RD)
    for tl in range(2):
        for yt in range(2):
            a("ds_write_b64 v10, %s offset:%d" % (vr(64 + 4 * tl + 2 * yt, 2), (1 - tl) * 1024 + (1 - yt) * 256))
    if "dbgk" in EXP:
        a("s_mul_i32 s%d, s%d, %d" % (sT0, sCH, KSTRIDE)); a("s_sub_u32 s%d, s%d, s%d" % (sT0, sT0, sCVB)); a("s_add_u32 s%d, s%d, %d" % (sT0, sT0, WS_KREV))
        for tl in range(2):
            for yt in range(2):
                a("buffer_store_dwordx2 %s, v10, s[%d:%d], s%d offen offset:%d" % (vr(64 + 4 * tl + 2 * yt, 2), SWS, SWS + 3, sT0, (1 - tl) * 1024 + (1 - yt) * 256))
        a("s_lshl_b32 s%d, s%d, 2" % (sT0, sCH)); a("s_add_u32 s%d, s%d, %d" % (sT0, sT0, WS_KSC)); a("v_mov_b32 v11, s%d" % sT0)
        a("buffer_store_dword v9, v11, s[%d:%d], 0 offen" % (SWS, SWS + 3))
    a("s_setprio %d" % int(os.environ.get("CPRIO", "3")))
    a("v_mov_b32 v2, v7"); a("v_mov_b32 v3, v6")
    a("v_lshlrev_b32 v4, 4, v1")
    a("v_mov_b32 v12, 0"); a("v_mov_b32 v13, 0"); a("v_mov_b32 v14, 0"); a("v_mov_b32 v15, 0")
    a("v_add_u32 v5, %d, v4" % O_U)
    a("v_bfe_u32 v6, v1, 2, 2")
    a("v_mul_u32_u24 v6, %d, v6" % CPS)
    a("v_and_b32 v7, 3, v1")
    a("v_lshl_add_u32 v6, v7, 4, v6")
    a("v_add_u32 v6, 4096, v6")
    a("v_cmp_gt_u32 vcc, 32, v1")
    a("v_cndmask_b32 v5, v6, v5, vcc")
    a("v_add_u32 v5, s%d, v5" % sCVB)
    nz = L("NZ")
    a("s_cmp_lg_u32 s%d, 0" % sHF)
    a("s_cbranch_scc1 %s" % nz)
    a.begin_opt()
    a("s_mov_b32 exec_lo, 0x3fffffff"); a("s_mov_b32 exec_hi, 0xffff")
    a("ds_write_b128 v5, v[12:15]")
    a("s_mov_b64 exec, -1")
    a.end_opt()
    a.label(nz)
    setf(Y_C0)
    a("v_sub_u32 v5, 3, v2"); a("v_and_b32 v5, 3, v5")
    a("v_mul_u32_u24 v6, %d, v5" % CPS)
    a("v_add_u32 v7, v2, v5")
    a("v_sub_u32 v7, %d, v7" % (2031 - 16 * 126))
    a("v_lshl_add_u32 v7, v3, 3, v7")
    a("v_lshl_add_u32 v6, v7, 1, v6")
    a("s_lshl_b32 s%d, s%d, 8" % (sT0, sHF))
    a("s_sub_u32 s%d, s%d, s%d" % (sT1, sCVB, sT0))
    a("v_add_u32 v6, s%d, v6" % sT1)
    a("v_lshlrev_b32 v7, 5, v2")
    a("v_lshl_add_u32 v7, v3, 4, v7")
    a("v_add_u32 v7, %d, v7" % O_U)
    a("v_add_u32 v7, s%d, v7" % sT1)
    a("s_add_u32 s%d, s%d, s%d" % (sT3, sCVB, sT2))
    a("v_add_u32 v5, s%d, v4" % sT3)
    lq, lq2, lq3 = L("PB"), L("PB"), L("PB")
    a("s_cmp_eq_u32 s%d, 0" % sPM)
    a("s_cbranch_scc1 %s" % lq3)
    a.begin_opt()
    a("s_mov_b32 s%d, %d" % (sOX, SPIN))
    a.label(lq)
    a("s_waitcnt vmcnt(0)")
    a("v_cmp_ne_u32 vcc, s%d, v169" % sNON)
    a("s_cmp_eq_u32 vcc_lo, 0")
    a("s_cbranch_scc1 %s" % lq2)
    a("s_sleep %d" % int(os.environ.get("PSL", "8")))
    a("s_mov_b32 exec_hi, 0")
    a("buffer_load_dword v169, v168, s[%d:%d], 0 offen offset:128 sc1" % (SWS, SWS + 3))
    a("s_mov_b64 exec, -1")
    a("s_sub_u32 s%d, s%d, 1" % (sOX, sOX)); a("s_cmp_lg_u32 s%d, 0" % sOX)
    a("s_cbranch_scc1 %s" % lq)
    a.label(lq2)
    a("s_mov_b64 exec, 1")
    a("ds_write_b8 v114, v163 offset:1")
    a("s_mov_b64 exec, -1")
    a.end_opt()
    a.label(lq3)
    spin_lds(114, 164, 1, slp=2, off=1)
    a("ds_read_b64 v[166:167], v114 offset:%d" % (Y_NON - Y_RDA))
    sk_("rdyB")
    a("s_lshl_b32 s%d, s%d, 12" % (sT1, sCH))
    a("s_add_u32 s%d, s%d, %d" % (sT1, sT1, WS_XNT))
    a("s_add_u32 s%d, s%d, s%d" % (sT1, sT1, sT2))
    a("s_add_u32 m0, s%d, %d" % (sT3, O_U + 480))
    a.vm("buffer_load_dwordx4 v4, s[%d:%d], s%d offen lds" % (SWS, SWS + 3, sT1), "u")
    a.vm("buffer_load_dwordx4 v4, s[%d:%d], s%d offen offset:1024 lds" % (SWS, SWS + 3, sT1), "u")
    waitp(Y_C0)
    for it in range(2):
        b = 32 + 8 * it
        a("ds_read_b128 %s, v5 offset:%d" % (vr(b, 4), it * 1024))
        a("ds_read_b64 %s, v5 offset:%d" % (vr(b + 4, 2), it * 1024 + 16))
    for it in range(2):
        b = 32 + 8 * it
        a("s_waitcnt lgkmcnt(%d)" % (2 if it == 0 else 3))
        d = [b + i for i in range(6)]
        c1, c2, c3 = 64 + 12 * it, 68 + 12 * it, 72 + 12 * it
        for i in range(4):
            a("v_alignbit_b32 v%d, v%d, v%d, 16" % (c1 + i, d[i + 1], d[i]))
            a("v_mov_b32 v%d, v%d" % (c2 + i, d[i + 1]))
            a("v_alignbit_b32 v%d, v%d, v%d, 16" % (c3 + i, d[i + 2], d[i + 1]))
        a("ds_write_b128 v5, %s offset:%d" % (vr(c1, 4), CPS + it * 1024))
        a("ds_write_b128 v5, %s offset:%d" % (vr(c2, 4), 2 * CPS + it * 1024))
        a("ds_write_b128 v5, %s offset:%d" % (vr(c3, 4), 3 * CPS + it * 1024))
    sk_("copies")
    CA = 16; G = 64; F = 96
    for r in range(CA, CA + 32): a("v_mov_b32 v%d, 0" % r)
    a.wait_vm("u")
    a("s_waitcnt lgkmcnt(0)")
    setf(Y_BL)
    waitp(Y_BL)
    sk_("built")
    def rg(ri, q):
        o = 32 * (126 - 16 * q - 2 * ri)
        a("ds_read_b64 %s, v6 offset:%d" % (vr(G + 4 * q, 2), o))
        a("ds_read_b64 %s, v6 offset:%d" % (vr(G + 4 * q + 2, 2), o + 8))
    def rf(ri, j):
        a("ds_read_b128 %s, v7 offset:%d" % (vr(F + 4 * j, 4), 32 * (16 * j - 2 * ri + 14)))
    for q in range(8): rg(0, q); rf(0, 7 - q)
    for ri in range(4 if "noconv" not in EXP else 0):
        for q in range(8):
            for m in range(7, q - 1, -1):
                if q == 0:
                    a("s_waitcnt lgkmcnt(%d)" % min(15, 3 * m))
                a("v_mfma_f32_16x16x32_f16 %s, %s, %s, %s" % (vr(CA + 4 * m, 4), vr(G + 4 * q, 4), vr(F + 4 * (m - q), 4), vr(CA + 4 * m, 4)))
            if ri + 1 < 4: rg(ri + 1, q); rf(ri + 1, 7 - q)
    sk_("mfma")
    a("v_lshl_add_u32 v5, v1, 4, s%d" % sSTG)
    x1, x2 = L("X"), L("X")
    a("s_cmp_lg_u32 s%d, 0" % sHF)
    a("s_cbranch_scc1 %s" % x1)
    a.begin_opt()
    for i in range(4): a("ds_write_b128 v5, %s offset:%d" % (vr(CA + 16 + 4 * i, 4), i * 1024))
    a("s_branch %s" % x2)
    a.end_opt()
    a.label(x1)
    a.begin_opt()
    for i in range(4): a("ds_write_b128 v5, %s offset:%d" % (vr(CA + 4 * i, 4), i * 1024))
    for i in range(16): a("v_mov_b32 v%d, v%d" % (CA + i, CA + 16 + i))
    a.end_opt()
    a.label(x2)
    setf(Y_CX)
    a("v_lshlrev_b32 v13, 5, v2")
    a("v_lshl_add_u32 v13, v3, 3, v13")
    a("v_add_u32 v13, s%d, v13" % sT2)
    a("s_add_u32 s%d, s%d, %d" % (sT1, sCVB, O_U + 480))
    a("v_add_u32 v14, s%d, v13" % sT1)
    for i in range(4): a("ds_read_b64 %s, v14 offset:%d" % (vr(64 + 2 * i, 2), i * 512))
    a("v_lshlrev_b32 v8, 16, v160")
    a("s_waitcnt lgkmcnt(0)")
    for i in range(4):
        for pr in range(2):
            xw = 64 + 2 * i + pr; o = 80 + 4 * i + 2 * pr
            a("v_cvt_f32_f16 v%d, v%d" % (o, xw))
            a("v_lshrrev_b32 v%d, 16, v%d" % (o + 1, xw)); a("v_cvt_f32_f16 v%d, v%d" % (o + 1, o + 1))
            a("v_mul_f32 v%d, v8, v%d" % (o, o)); a("v_mul_f32 v%d, v8, v%d" % (o + 1, o + 1))
            a("v_cvt_pk_bf16_f32 v%d, v%d, v%d" % (o, o, o + 1))
            a("v_and_b32 v%d, 0xffff0000, v%d" % (o + 1, o)); a("v_lshlrev_b32 v%d, 16, v%d" % (o, o))
    waitp(Y_CX)
    a("s_xor_b32 s%d, s%d, 1" % (sT0, sKW))
    a("s_mul_i32 s%d, s%d, %d" % (sT0, sT0, STG_W))
    a("s_add_u32 s%d, s%d, %d" % (sT0, sT0, L_STG))
    a("v_lshl_add_u32 v6, v1, 4, s%d" % sT0)
    for i in range(4): a("ds_read_b128 %s, v6 offset:%d" % (vr(CA + 16 + 4 * i, 4), i * 1024))
    a("s_lshl_b32 s%d, s%d, 12" % (sT0, sCH))
    a("s_add_u32 s%d, s%d, %d" % (sT0, sT0, WS_YAT))
    for i in range(4):
        a("s_waitcnt lgkmcnt(%d)" % (3 - i))
        for pr in range(2):
            y = CA + 4 * i + 2 * pr; o = 80 + 4 * i + 2 * pr
            a("v_add_f32 v%d, v%d, v%d" % (y, y, y + 16)); a("v_add_f32 v%d, v%d, v%d" % (y + 1, y + 1, y + 17))
            a("v_mul_f32 v%d, v9, v%d" % (y, y)); a("v_mul_f32 v%d, v9, v%d" % (y + 1, y + 1))
            a("v_cvt_pk_bf16_f32 v%d, v%d, v%d" % (y, y, y + 1))
            a("v_and_b32 v%d, 0xffff0000, v%d" % (y + 1, y)); a("v_lshlrev_b32 v%d, 16, v%d" % (y, y))
            a("v_add_f32 v%d, v%d, v%d" % (y, y, o)); a("v_add_f32 v%d, v%d, v%d" % (y + 1, y + 1, o + 1))
            a("v_cvt_pk_bf16_f32 v%d, v%d, v%d" % (72 + 2 * i + pr, y, y + 1))
        a("buffer_store_dwordx2 %s, v13, s[%d:%d], s%d offen offset:%d sc1" % (vr(72 + 2 * i, 2), SWS, SWS + 3, sT0, i * 512))
    setf(Y_XR)
    a("s_lshl_b32 s%d, s%d, 4" % (sT0, sCH))
    a("s_lshl_b32 s%d, s%d, 3" % (sT1, sHF))
    a("s_add_u32 s%d, s%d, s%d" % (sT0, sT0, sT1))
    a("s_add_u32 s%d, s%d, %d" % (sT0, sT0, WS_CF))
    a("v_mov_b32 v14, s%d" % sT0)
    a("v_readfirstlane_b32 s%d, v166" % sNON); a("v_readfirstlane_b32 s%d, v167" % (sNON + 1))
    a("s_lshl_b32 s%d, s%d, 10" % (sT0, sCT))
    a("s_lshl_b32 s%d, s%d, 8" % (sT1, sKW))
    a("s_add_u32 s%d, s%d, s%d" % (sT0, sT0, sT1))
    a("s_lshr_b32 s%d, s%d, 4" % (sT1, sRT2)); a("s_lshl_b32 s%d, s%d, 3" % (sT1, sT1))
    a("s_add_u32 s%d, s%d, s%d" % (sT0, sT0, sT1))
    a("s_add_u32 s%d, s%d, %d" % (sT0, sT0, WS_CF))
    a("v_lshl_add_u32 v18, v2, 4, s%d" % sT0)
    a("s_lshl_b32 s%d, s%d, 4" % (sT0, sKW))
    a("v_lshrrev_b32 v19, 3, v1")
    a("v_add_u32 v19, s%d, v19" % sT0)
    a("s_lshl_b32 s%d, s%d, 6" % (sT0, sCT))
    a("v_add_u32 v19, s%d, v19" % sT0)
    a("v_lshlrev_b32 v19, 12, v19")
    a("v_and_b32 v20, 7, v1")
    a("v_lshl_add_u32 v19, v20, 4, v19")
    a("s_lshl_b32 s%d, s%d, 7" % (sT2, sRT2))
    a("s_add_u32 s%d, s%d, %d" % (sT2, sT2, WS_YAT))
    a("s_add_u32 s%d, s%d, %d" % (sT3, sT2, 8 * 4096))
    if "wbl2" in EXP: a("buffer_wbl2 sc1")
    a("s_waitcnt vmcnt(0)")
    a("s_mov_b64 exec, 1")
    a("buffer_store_dwordx2 v[166:167], v14, s[%d:%d], 0 offen sc1" % (SWS, SWS + 3))
    a("s_mov_b64 exec, -1")
    sk_("flag")
    a("s_setprio 0")
    a("s_sleep %d" % int(os.environ.get("CSL0", "8")))
    lp, ld = L("CP"), L("CP")
    a("s_mov_b32 s%d, %d" % (sOX, SPIN))
    a.label(lp)
    a("s_mov_b64 exec, 0xffff")
    a("buffer_load_dwordx2 v[20:21], v18, s[%d:%d], 0 offen sc1" % (SWS, SWS + 3))
    a("s_waitcnt vmcnt(0)")
    a("v_cmp_ne_u64 vcc, s[%d:%d], v[20:21]" % (sNON, sNON + 1))
    a("s_mov_b64 exec, -1")
    a("s_cbranch_vccz %s" % ld)
    a("s_sleep %d" % int(os.environ.get("CSL", "8")))
    a("s_sub_u32 s%d, s%d, 1" % (sOX, sOX)); a("s_cmp_lg_u32 s%d, 0" % sOX)
    a("s_cbranch_scc1 %s" % lp)
    a.label(ld)
    sk_("polled")
    a("buffer_load_dwordx4 v[104:107], v19, s[%d:%d], s%d offen" % (SWS, SWS + 3, sT2))
    a("buffer_load_dwordx4 v[108:111], v19, s[%d:%d], s%d offen" % (SWS, SWS + 3, sT3))
    waitp(Y_XR)
    a("s_waitcnt vmcnt(0)")
    a("ds_write_b128 v5, v[104:107]")
    a("ds_write_b128 v5, v[108:111] offset:1024")
    setf(Y_YA)
    a("s_waitcnt lgkmcnt(0)")
    sk_("end")
    sk_.store(100)
    a("s_endpgm")

def producer(a, sp_, L):
    a.label("K_PROD")
    a.vmq = []
    a.nopkw = True
    XT_S = 912
    L_PC = 64 * XT_S
    a("v_lshrrev_b32 v2, 3, v1")
    a("v_and_b32 v3, 7, v1")
    a("s_lshr_b32 s%d, s2, 3" % sT1)
    if MAPB:
        a("s_and_b32 s%d, s2, 7" % sT0); a("s_lshl_b32 s%d, s%d, 2" % (sR, sT0)); a("s_add_u32 s%d, s%d, s%d" % (sR, sR, sT1))
        a("s_min_u32 s%d, s2, 27" % sF)
    else:
        a("s_bfe_u32 s%d, s2, 0x20001" % sT0); a("s_lshl_b32 s%d, s%d, 3" % (sR, sT0)); a("s_lshl_b32 s%d, s%d, 1" % (sT1, sT1))
        a("s_add_u32 s%d, s%d, s%d" % (sR, sR, sT1)); a("s_and_b32 s%d, s2, 1" % sT0); a("s_add_u32 s%d, s%d, s%d" % (sR, sR, sT0))
        a("s_lshr_b32 s%d, s2, 1" % sF); a("s_min_u32 s%d, s%d, 13" % (sF, sF)); a("s_mul_i32 s%d, s%d, 14" % (sT0, sT0)); a("s_add_u32 s%d, s%d, s%d" % (sF, sF, sT0))
    a("s_lshl_b32 s%d, s%d, 3" % (sT0, sWV))
    a("v_add_u32 v4, s%d, v2" % sT0)
    a("s_lshl_b32 s%d, s%d, 6" % (sT1, sR))
    a("v_add_u32 v5, s%d, v4" % sT1)
    a("v_mul_u32_u24 v6, 896, v5")
    a("v_lshl_add_u32 v6, v3, 4, v6")
    a("s_lshr_b32 s%d, s%d, 1" % (sT1, sWV))
    a("s_mul_i32 s%d, s%d, %d" % (sT1, sT1, 112 * 3584))
    a("s_lshl_b32 s%d, s%d, 7" % (sT2, sF))
    a("s_add_u32 s%d, s%d, s%d" % (sT1, sT1, sT2))
    a("s_movk_i32 s%d, 3584" % sT2)
    a("v_mul_lo_u32 v9, v2, s%d" % sT2)
    a("v_lshl_add_u32 v9, v3, 4, v9")
    a("v_add_u32 v9, s%d, v9" % sT1)
    a("s_waitcnt lgkmcnt(0)")
    srd(a, SX, 16, 2048 * 896)
    for i in range(7):
        a.vm("buffer_load_dwordx4 %s, v6, s[%d:%d], 0 offen offset:%d" % (vr(32 + 4 * i, 4), SX, SX + 3, i * 128), "x%d" % i)
    a("s_bitcmp0_b32 s%d, 0" % sWV)
    a("s_cselect_b32 s%d, s32, s34" % SWG)
    a("s_cselect_b32 s%d, s33, s35" % (SWG + 1))
    a("s_and_b32 s%d, s%d, 0xffff" % (SWG + 1, SWG + 1))
    a("s_mov_b32 s%d, 0x%x" % (SWG + 2, 448 * 3584))
    a("s_mov_b32 s%d, 0x00020000" % (SWG + 3))
    for i in range(14):
        a("s_mov_b32 s%d, %d" % (sOW, i * 8 * 3584))
        a.vm("buffer_load_dwordx4 %s, v9, s[%d:%d], s%d offen" % (vr(64 + 4 * i, 4), SWG, SWG + 3, sOW), "w%d" % i)
    srd(a, SWS, 14, WS_SIZE)
    srd(a, SDBG, 12, 256)
    a("s_mov_b32 s%d, 0x3f803f80" % sONES)
    ln = L("NN")
    a("s_or_b32 s%d, s2, s%d" % (sT0, sWV))
    a("s_cbranch_scc1 %s" % ln)
    a.begin_opt()
    a("s_memrealtime s[%d:%d]" % (sNON, sNON + 1))
    a("s_waitcnt lgkmcnt(0)")
    a("s_or_b32 s%d, s%d, 0x40000000" % (sNON + 1, sNON + 1))
    a("v_mov_b32 v12, s%d" % sNON); a("v_mov_b32 v13, s%d" % (sNON + 1)); a("v_mov_b32 v14, 64")
    a("s_mov_b64 exec, 1")
    a("buffer_store_dwordx2 v[12:13], v14, s[%d:%d], 0 offen sc1" % (SDBG, SDBG + 3))
    a("s_mov_b64 exec, -1")
    a.end_opt()
    a.label(ln)
    a("v_mov_b32 v10, 0"); a("v_mov_b32 v11, 0"); a("v_mov_b32 v12, 0"); a("v_mov_b32 v13, 0")
    a("v_mul_u32_u24 v7, %d, v4" % XT_S)
    a("v_lshl_add_u32 v7, v3, 4, v7")
    a("v_lshlrev_b32 v8, 4, v5")
    for i in range(7):
        a.wait_vm("x%d" % i)
        for r in range(4):
            a("v_dot2_f32_bf16 v%d, v%d, s%d, v%d" % (10 + 2 * (r & 1), 32 + 4 * i + r, sONES, 10 + 2 * (r & 1)))
            a("v_dot2_f32_bf16 v%d, v%d, v%d, v%d" % (11 + 2 * (r & 1), 32 + 4 * i + r, 32 + 4 * i + r, 11 + 2 * (r & 1)))
    a("v_add_f32 v10, v10, v12"); a("v_add_f32 v11, v11, v13")
    for mod in ("quad_perm:[1,0,3,2]", "quad_perm:[2,3,0,1]", "row_half_mirror"):
        for r in (10, 11):
            a("v_add_f32_dpp v%d, v%d, v%d %s row_mask:0xf bank_mask:0xf" % (r, r, r, mod))
    c = math.sqrt(2 / math.pi); k1 = -2 * c * LOG2E; k2 = k1 * 0.044715
    a("v_mul_f32 v10, %s, v10" % fbits(1.0 / 448))
    a("v_mul_f32 v11, %s, v11" % fbits(1.0 / 448))
    a("v_fma_f32 v11, -v10, v10, v11")
    a("v_max_f32 v11, 0, v11")
    a("v_cvt_pk_bf16_f32 v10, v10, v11")
    a("v_lshlrev_b32 v12, 16, v10")
    a("v_and_b32 v11, 0xffff0000, v10")
    a("v_add_f32 v11, %s, v11" % fbits(1e-5))
    a("v_cvt_pk_bf16_f32 v11, v11, v11")
    a("v_lshlrev_b32 v11, 16, v11")
    a("v_sqrt_f32 v11, v11")
    a("v_cvt_pk_bf16_f32 v11, v11, v11")
    a("v_lshlrev_b32 v11, 16, v11")
    a("v_rcp_f32 v14, v11")
    a("v_sub_f32 v16, 0, v12")
    a("v_mul_f32 v19, v11, v11")
    a("v_mul_f32 v17, %s, v14" % fbits(k1))
    a("v_mul_f32 v10, v14, v14"); a("v_mul_f32 v10, v10, v14")
    a("v_mul_f32 v18, %s, v10" % fbits(k2))
    a("s_mov_b32 s%d, %d" % (sT0, WS_RC))
    a("s_mov_b32 exec_lo, 0x01010101"); a("s_mov_b32 exec_hi, 0x01010101")
    a.vm("buffer_store_dwordx4 v[16:19], v8, s[%d:%d], s%d offen sc1" % (SWS, SWS + 3, sT0), "rc")
    a("s_mov_b64 exec, -1")
    sp_("stats")
    for r in range(120, 128): a("v_mov_b32 v%d, 0" % r)
    for i in range(14):
        a.wait_vm("w%d" % i)
        for r in range(4):
            w = 64 + 4 * i + r; t = 20 + 2 * (r & 1)
            a("v_lshlrev_b32 v%d, 16, v%d" % (t, w)); a("v_and_b32 v%d, 0xffff0000, v%d" % (t + 1, w))
            a("v_pk_add_f32 %s, %s, %s" % (vr(120 + 2 * r, 2), vr(120 + 2 * r, 2), vr(t, 2)))
    for r in range(120, 128): a("v_add_f32_dpp v%d, v%d, v%d row_ror:8 row_mask:0xf bank_mask:0xf" % (r, r, r))
    for op in ("v_permlane16_swap_b32", "v_permlane32_swap_b32"):
        for r in range(8): a("v_mov_b32 v%d, v%d" % (128 + r, 120 + r))
        for r in range(8): a("%s v%d, v%d" % (op, 120 + r, 128 + r))
        for r in range(8): a("v_add_f32 v%d, v%d, v%d" % (120 + r, 120 + r, 128 + r))
    a("s_lshl_b32 s%d, s%d, 8" % (sT0, sWV))
    a("s_add_u32 s%d, s%d, %d" % (sT0, sT0, L_PC))
    a("v_lshl_add_u32 v9, v3, 5, s%d" % sT0)
    a("s_mov_b64 exec, 0xff")
    a("ds_write_b128 v9, v[120:123]"); a("ds_write_b128 v9, v[124:127] offset:16")
    a("s_mov_b64 exec, -1")
    lw = L("PA")
    a("s_cmp_lg_u32 s%d, 0" % sWV)
    a("s_cbranch_scc1 %s" % lw)
    a.begin_opt()
    a("v_mov_b32 v20, 64")
    get_nonce(a, L, 20, 22)
    a.end_opt()
    a.label(lw)
    a("s_waitcnt vmcnt(0) lgkmcnt(0)"); a.vmq = []
    a("s_barrier")
    sp_("pbar0")
    a("s_lshl_b32 s%d, s2, 2" % sT2); a("s_add_u32 s%d, s%d, %d" % (sT2, sT2, WS_PF))
    a("v_lshl_add_u32 v8, v1, 8, s%d" % sT2); a("v_mov_b32 v10, s%d" % sNON)
    la = L("PA")
    a("s_cmp_lg_u32 s%d, 0" % sWV)
    a("s_cbranch_scc1 %s" % la)
    a.begin_opt()
    a("v_lshlrev_b32 v9, 2, v1")
    a("v_add_u32 v20, %d, v9" % L_PC)
    for i in range(8): a("ds_read_b32 v%d, v20 offset:%d" % (120 + i, i * 256))
    a("s_lshl_b32 s%d, s%d, 8" % (sT1, sF)); a("s_add_u32 s%d, s%d, %d" % (sT0, sT1, WS_CS)); a("s_add_u32 s%d, s%d, 7168" % (sT1, sT0))
    a("s_waitcnt lgkmcnt(0)")
    for m in range(2):
        a("v_add_f32 v%d, v%d, v%d" % (120 + m, 120 + m, 122 + m)); a("v_add_f32 v%d, v%d, v%d" % (124 + m, 124 + m, 126 + m))
        a("v_add_f32 v%d, v%d, v%d" % (120 + m, 120 + m, 124 + m))
        a("buffer_store_dword v%d, v9, s[%d:%d], s%d offen sc1" % (120 + m, SWS, SWS + 3, (sT0, sT1)[m]))
    a.end_opt()
    a.label(la)
    for i in range(7):
        for r in range(4):
            w = 32 + 4 * i + r; t = 20 + 2 * (r & 1)
            a("v_lshlrev_b32 v%d, 16, v%d" % (t, w)); a("v_and_b32 v%d, 0xffff0000, v%d" % (t + 1, w))
            a("v_pk_add_f32 %s, %s, v[16:17] op_sel_hi:[1,0]" % (vr(t, 2), vr(t, 2)))
            a("v_cvt_pk_bf16_f32 v%d, v%d, v%d" % (t, t, t + 1))
            a("v_and_b32 v%d, 0xffff0000, v%d" % (t + 1, t)); a("v_lshlrev_b32 v%d, 16, v%d" % (t, t))
            a("v_pk_mul_f32 %s, %s, v[14:15] op_sel_hi:[1,0]" % (vr(t, 2), vr(t, 2)))
            a("v_cvt_pk_bf16_f32 v%d, v%d, v%d" % (t, t, t + 1))
            a("v_and_b32 v%d, 0xffff0000, v%d" % (t + 1, t)); a("v_lshlrev_b32 v%d, 16, v%d" % (t, t))
            a("v_cvt_pk_f16_f32 v%d, v%d, v%d" % (w, t, t + 1))
        a("ds_write_b128 v7, %s offset:%d" % (vr(32 + 4 * i, 4), i * 128))
        if i == 2:
            lb = L("PA")
            a("s_cmp_lg_u32 s%d, 0" % sWV)
            a("s_cbranch_scc1 %s" % lb)
            a.begin_opt()
            a("s_waitcnt vmcnt(0)")
            a("s_mov_b64 exec, 0xff")
            a("buffer_store_dword v10, v8, s[%d:%d], 0 offen sc1" % (SWS, SWS + 3))
            a("s_mov_b64 exec, -1")
            a.end_opt()
            a.label(lb)
            sp_("flagA")
    a("v_lshrrev_b32 v4, 4, v1"); a("v_and_b32 v5, 15, v1")
    a("v_lshrrev_b32 v6, 2, v5"); a("v_lshl_add_u32 v6, v4, 3, v6")
    a("v_mul_u32_u24 v6, %d, v6" % XT_S)
    a("v_and_b32 v7, 3, v5"); a("v_lshl_add_u32 v6, v7, 3, v6")
    a("v_lshlrev_b32 v7, 12, v5"); a("v_lshl_add_u32 v7, v4, 4, v7")
    a("s_lshr_b32 s%d, s%d, 1" % (sT1, sWV)); a("s_and_b32 s%d, s%d, 1" % (sT0, sWV))
    a("s_mul_i32 s%d, s%d, %d" % (sOX, sT0, 32 * XT_S)); a("s_lshl_b32 s%d, s%d, 5" % (sOW, sT1)); a("s_add_u32 s%d, s%d, s%d" % (sOX, sOX, sOW))
    a("v_add_u32 v6, s%d, v6" % sOX)
    a("s_lshl_b32 s%d, s%d, 7" % (sT2, sR)); a("s_add_u32 s%d, s%d, %d" % (sT2, sT2, WS_XNT))
    a("s_lshl_b32 s%d, s%d, 16" % (sT1, sT1)); a("s_lshl_b32 s%d, s%d, 6" % (sT0, sT0))
    a("s_add_u32 s%d, s%d, s%d" % (sT1, sT1, sT0)); a("s_add_u32 s%d, s%d, s%d" % (sT1, sT1, sT2))
    a("s_waitcnt lgkmcnt(0)")
    a("s_barrier")
    sp_("pbar")
    for i in range(7):
        a("ds_read_b64_tr_b16 %s, v6 offset:%d" % (vr(32 + 4 * i, 2), i * 128))
        a("ds_read_b64_tr_b16 %s, v6 offset:%d" % (vr(34 + 4 * i, 2), i * 128 + 4 * XT_S))
    for i in range(7):
        a("s_waitcnt lgkmcnt(%d)" % (12 - 2 * i))
        a.vm("buffer_store_dwordx4 %s, v7, s[%d:%d], s%d offen sc1" % (vr(32 + 4 * i, 4), SWS, SWS + 3, sT1), "xst")
        if i < 6: a("s_add_u32 s%d, s%d, %d" % (sT1, sT1, 4 << 16))
    sp_("st")
    a("s_waitcnt vmcnt(0)")
    a("s_barrier")
    a("s_cmp_lg_u32 s%d, 0" % sWV)
    a("s_cbranch_scc1 K_END")
    a("s_mov_b64 exec, 0xff")
    a("buffer_store_dword v10, v8, s[%d:%d], 0 offen offset:128 sc1" % (SWS, SWS + 3))
    a("s_mov_b64 exec, -1")
    sp_("end")
    sp_.store(100)
```

```python
import math, os, sys, struct
from asmlib import Asm
def fbits(x): return "0x%08x" % struct.unpack("<I", struct.pack("<f", x))[0]
LOG2E = math.log2(math.e)
def vr(b, n=1): return "v%d" % b if n == 1 else "v[%d:%d]" % (b, b + n - 1)
EXP = os.environ.get('EXP', '')
STAMP = int(os.environ.get("STAMP", "0"))
RT = os.environ.get("RT", "")
MAPB = int(os.environ.get("MAPB", "0"))
WS_H = 0; WS_XNT = 8 << 20; WS_KREV = 12 << 20; WS_KSC = 16 << 20
WS_HF = 17 << 20
WS_CF = 18 << 20
WS_PF = (18 << 20) + 65536
WS_RC = 19 << 20; WS_CS = (19 << 20) + 65536
WS_YAT = 20 << 20; WS_DBG = 24 << 20; WS_SIZE = 32 << 20
KSTRIDE = 4160
SPIN = 0x100000

def srd(a, d, p, nbytes):
    a("s_mov_b32 s%d, s%d" % (d, p))
    a("s_and_b32 s%d, s%d, 0xffff" % (d + 1, p + 1))
    a("s_mov_b32 s%d, 0x%x" % (d + 2, nbytes))
    a("s_mov_b32 s%d, 0x00020000" % (d + 3))

SX, SWG, SWU, SWS, SWD, SOUT, SDBG = 40, 44, 48, 52, 56, 60, 64
sWV, sR, sF, sWR, sWC, sRT2, sCT = 68, 69, 70, 71, 72, 73, 74
sLD = 75
sT0, sT1, sT2, sT3 = 76, 77, 78, 79
sOX, sOW, sWB, sCNT = 80, 81, 82, 83
sNON = 84
sPM = 86
sCH, sHF, sKW, sSC, sINV = 3, 4, 5, 6, 7
sONES, sCVB, sSTG = 38, 39, 36
STB = 88

class Stamps:
    def __init__(self, a, base=None):
        self.a = a; self.n = base.n if base else 0; self.names = list(base.names) if base else []
    def __call__(self, name):
        if not STAMP: return
        if RT and name not in ("start", "end"): return
        if "su" in EXP and self.n >= 11 and name != "end": return
        assert self.n < 12, name
        self.a("%s s[100:101]" % ("s_memrealtime" if RT else "s_memtime"))
        self.a("s_waitcnt lgkmcnt(0)")
        self.a("s_mov_b32 s%d, s100" % (STB + self.n))
        self.n += 1; self.names.append(name)
    def store(self, vt):
        if not STAMP: return
        a = self.a
        a("s_lshl_b32 s100, s2, 4"); a("s_add_u32 s100, s100, s%d" % sWV); a("s_lshl_b32 s100, s100, 6")
        a("s_add_u32 s100, s100, %d" % WS_DBG)
        a("s_mov_b64 exec, 1")
        a("v_mov_b32 v%d, s100" % vt)
        for i in range(self.n):
            a("v_mov_b32 v%d, s%d" % (vt + 1, STB + i))
            a("buffer_store_dword v%d, v%d, s[%d:%d], 0 offen offset:%d" % (vt + 1, vt, SWS, SWS + 3, 4 * i))
            a("s_waitcnt vmcnt(0)")
        a("s_mov_b64 exec, -1")

L_W = 0
L_X = [65536, 98304 + 17408, 81920]
RING = 98304
STG_W = 4352; L_STG = RING
L_CV = RING + 4 * STG_W
CPS = 4160; O_U = 4 * CPS; CV_CH = O_U + 4608
L_SYNC = L_CV + 2 * CV_CH
LDS = L_SYNC + 128 + 384
assert L_X[1] == L_CV and LDS <= 163840
Y_CNT = 0; Y_RDA = 8; Y_RDB = 9; Y_NON = 16; Y_KX = 24; Y_C0 = 28; Y_BL = 32; Y_CX = 36; Y_XR = 40; Y_YA = 44; Y_KEXP = 48; Y_RD = 64
W2R = 24576
L_EXTRA = L_CV

def gen():
    a = Asm()
    lab = [0]
    def L(p): lab[0] += 1; return "%s_%d" % (p, lab[0])
    st_ = Stamps(a)
    def spin_lds(addr, tmp, need, width="u8", slp=1, off=0):
        l1, l2 = L("SP"), L("SD")
        a("s_mov_b32 s%d, %d" % (sCNT, SPIN))
        a.label(l1)
        a("ds_read_%s v%d, v%d offset:%d" % (width, tmp, addr, off))
        a("s_waitcnt lgkmcnt(0)")
        a("v_cmp_gt_u32 vcc, %d, v%d" % (need, tmp))
        a("s_cbranch_vccz %s" % l2)
        if slp: a("s_sleep %d" % slp)
        a("s_sub_u32 s%d, s%d, 1" % (sCNT, sCNT))
        a("s_cmp_lg_u32 s%d, 0" % sCNT)
        a("s_cbranch_scc1 %s" % l1)
        a.label(l2)

    a("s_cmp_ge_u32 s2, 256")
    a("s_cbranch_scc1 K_END")
    st_("start")
    a("v_lshrrev_b32 v1, 6, v0")
    a("v_readfirstlane_b32 s%d, v1" % sWV)
    a("v_and_b32 v1, 63, v0")
    a("s_cmp_lg_u32 s%d, 7" % sWV)
    a("s_cbranch_scc1 K_NZ")
    a.begin_opt()
    a("v_lshlrev_b32 v2, 2, v1"); a("v_add_u32 v2, %d, v2" % L_SYNC); a("v_mov_b32 v3, 0")
    a("ds_write_b32 v2, v3")
    a("s_waitcnt lgkmcnt(0)")
    a.end_opt()
    a.label("K_NZ")
    a("s_load_dwordx16 s[16:31], s[0:1], 0")
    a("s_load_dwordx4 s[32:35], s[0:1], 80")
    a("s_load_dwordx8 s[8:15], s[0:1], 96")
    a("s_cmp_lt_u32 s2, 32")
    a("s_cbranch_scc1 K_PROD")
    a("s_barrier")
    a("s_and_b32 s%d, s2, 7" % sT0)
    a("s_lshr_b32 s%d, s2, 3" % sT1)
    a("s_sub_u32 s%d, s%d, 4" % (sT1, sT1))
    if MAPB:
        a("s_and_b32 s%d, s%d, 1" % (sT3, sT1))
        a("s_lshl_b32 s%d, s%d, 1" % (sR, sT0)); a("s_add_u32 s%d, s%d, s%d" % (sR, sR, sT3))
        a("s_lshr_b32 s%d, s%d, 1" % (sF, sT1))
    else:
        a("s_lshr_b32 s%d, s%d, 1" % (sT2, sT0)); a("s_lshl_b32 s%d, s%d, 2" % (sT2, sT2))
        a("s_and_b32 s%d, s%d, 3" % (sT3, sT1)); a("s_add_u32 s%d, s%d, s%d" % (sR, sT2, sT3))
        a("s_and_b32 s%d, s%d, 1" % (sT2, sT0)); a("s_mul_i32 s%d, s%d, 7" % (sT2, sT2))
        a("s_lshr_b32 s%d, s%d, 2" % (sT3, sT1)); a("s_add_u32 s%d, s%d, s%d" % (sF, sT2, sT3))
    a("s_and_b32 s%d, s%d, 3" % (sT3, sT1))
    a("s_lshl_b32 s%d, s%d, 2" % (sRT2, sT0)); a("s_add_u32 s%d, s%d, s%d" % (sRT2, sRT2, sT3))
    a("s_lshr_b32 s%d, s%d, 2" % (sCT, sT1))
    a("s_cmp_ge_u32 s%d, 4" % sWV)
    a("s_cbranch_scc1 K_HELP")
    sf_ = Stamps(a, st_); sh_ = Stamps(a, st_); sp_ = Stamps(a, st_)
    NST = 14
    FPRIO = int(os.environ.get("FPRIO", "2"))
    a("s_setprio %d" % FPRIO)
    a("s_and_b32 s%d, s%d, 1" % (sWR, sWV))
    a("s_lshr_b32 s%d, s%d, 1" % (sWC, sWV))
    a("s_lshl_b32 s%d, s%d, 11" % (sWB, sWV))
    a("s_lshl_b32 s%d, s%d, 12" % (sOX, sWV))
    a("v_lshrrev_b32 v2, 3, v1")
    a("s_lshl_b32 s%d, s%d, 7" % (sT0, sR))
    a("s_lshl_b32 s%d, s%d, 5" % (sT1, sWV))
    a("s_add_u32 s%d, s%d, s%d" % (sT0, sT0, sT1))
    a("v_add_u32 v2, s%d, v2" % sT0)
    a("v_mul_u32_u24 v2, 896, v2")
    a("v_lshrrev_b32 v5, 4, v1")
    a("v_xor_b32 v6, v1, v5")
    a("v_and_b32 v6, 7, v6")
    a("v_xor_b32 v7, 4, v6")
    a("v_lshl_add_u32 v3, v7, 4, v2")
    a("v_add_u32 v3, %d, v3" % (8 * 896))
    a("v_lshl_add_u32 v2, v6, 4, v2")
    a("s_lshl_b32 s%d, s%d, 3" % (sT0, sWV))
    a("v_add_u32 v4, s%d, v5" % sT0)
    a("s_movk_i32 s%d, 3584" % sT1)
    a("v_mul_lo_u32 v4, v4, s%d" % sT1)
    a("v_lshlrev_b32 v6, 2, v5")
    a("v_xor_b32 v6, v1, v6")
    a("v_and_b32 v6, 15, v6")
    a("v_lshl_add_u32 v4, v6, 4, v4")
    a("s_lshl_b32 s%d, s%d, 8" % (sT0, sF))
    a("v_add_u32 v4, s%d, v4" % sT0)
    a("s_waitcnt lgkmcnt(0)")
    if "su" in EXP: sf_("karg")
    srd(a, SX, 16, 2048 * 896)
    srd(a, SWG, 32, 448 * 3584)
    srd(a, SWU, 34, 448 * 3584)
    def dma_x(b):
        out = []
        if "nodma" in EXP and b > 2: return out
        for i in range(4):
            out.append(["s_add_u32 m0, s%d, %d" % (sOX, L_X[b % 3] + i * 1024),
                        "s_movk_i32 s%d, %d" % (sOW, b * 128 + (i >> 1) * 16 * 896),
                        ("buffer_load_dwordx4 v%d, s[%d:%d], s%d offen lds" % (2 + (i & 1), SX, SX + 3, sOW), ("x", b))])
        return out
    def dma_w(st):
        out = []
        if "nodma" in EXP and st > 3: return out
        slot = st % 4
        for i in range(2):
            for mat in range(2):
                S = (SWG, SWU)[mat]
                g = []
                g.append("s_mov_b32 s%d, %d" % (sOW, (st * 32 + 4 * i) * 3584))
                g.append("s_add_u32 m0, s%d, %d" % (sWB, L_W + slot * 16384 + mat * 8192 + i * 1024))
                g.append(("buffer_load_dwordx4 v4, s[%d:%d], s%d offen lds" % (S, S + 3, sOW), ("w", st)))
                out.append(g)
        return out
    def emit(g, a=a):
        for x in g:
            if callable(x): x()
            elif isinstance(x, tuple) and x[0].startswith("ds_"): a.ds(x[0], x[1])
            elif isinstance(x, tuple): a.vm(x[0], x[1])
            else: a(x)
    for g in dma_x(0) + dma_w(0): emit(g)
    if "su" in EXP: sf_("dma0")
    pend = dma_w(1) + dma_x(1) + dma_w(2) + dma_w(3) + dma_x(2)
    a_real = a
    class IL:
        def __init__(s_): s_.n = 0
        def __call__(s_, t):
            a_real(t); s_.n += 1
            if s_.n % 4 == 0 and pend: emit(pend.pop(0))
    a = IL()
    srd(a, SWS, 14, WS_SIZE)
    srd(a, SWD, 8, 1792 * 896)
    srd(a, SOUT, 10, 2048 * 896)
    a("v_lshlrev_b32 v15, 2, v1")
    a("v_and_b32 v16, 31, v1")
    a("s_lshl_b32 s%d, s%d, 6" % (sT0, sWR))
    a("v_add_u32 v16, s%d, v16" % sT0)
    a("v_lshrrev_b32 v17, 5, v1")
    a("v_bfe_u32 v18, v1, 1, 3")
    a("v_xor_b32 v18, v17, v18")
    a("v_lshlrev_b32 v5, 7, v16")
    a("v_lshl_add_u32 v5, v18, 4, v5")
    a("v_add_u32 v5, 65536, v5")
    a("v_xor_b32 v6, 32, v5"); a("v_xor_b32 v7, 64, v5"); a("v_xor_b32 v8, 96, v5")
    a("v_bfe_u32 v19, v1, 2, 2")
    a("v_lshl_add_u32 v20, v17, 3, v19")
    a("v_lshlrev_b32 v9, 8, v20")
    a("v_bfe_u32 v20, v1, 4, 1"); a("v_lshlrev_b32 v20, 1, v20")
    a("v_bfe_u32 v21, v1, 1, 1"); a("v_add_u32 v20, v20, v21")
    a("s_lshl_b32 s%d, s%d, 3" % (sT0, sWC))
    a("v_add_u32 v20, s%d, v20" % sT0)
    a("v_lshlrev_b32 v21, 2, v19")
    a("v_xor_b32 v20, v20, v21")
    a("v_lshl_add_u32 v9, v20, 4, v9")
    a("v_and_b32 v21, 1, v1")
    a("v_lshl_add_u32 v9, v21, 3, v9")
    a("v_xor_b32 v0, 64, v9")
    a("v_and_b32 v11, 3, v1"); a("v_add_u32 v11, %d, v11" % (L_SYNC + Y_CNT))
    a("s_add_u32 s%d, s%d, %d" % (sT0, sWV, L_SYNC + Y_CNT)); a("v_mov_b32 v12, s%d" % sT0)
    a("v_add_u32 v13, %d, v15" % (L_SYNC + 128)); a("v_cmp_eq_u32 vcc, 0, v1"); a("v_cndmask_b32 v12, v13, v12, vcc")
    a("v_mov_b32 v10, %d" % (L_SYNC + Y_RDA))
    a("s_and_b32 s%d, s2, 7" % sT0); a("s_lshl_b32 s%d, s%d, 8" % (sT0, sT0)); a("s_add_u32 s%d, s%d, %d" % (sT0, sT0, WS_PF))
    a("v_and_b32 v15, 124, v15"); a("v_add_u32 v15, s%d, v15" % sT0)
    a("s_lshl_b32 s%d, s%d, 11" % (sT0, sR)); a("s_add_u32 s%d, s%d, %d" % (sT0, sT0, WS_RC))
    a("v_lshl_add_u32 v18, v16, 4, s%d" % sT0)
    a("s_lshl_b32 s%d, s%d, 9" % (sT0, sF)); a("s_lshl_b32 s%d, s%d, 8" % (sT1, sWC)); a("s_add_u32 s%d, s%d, s%d" % (sT0, sT0, sT1))
    a("s_add_u32 s%d, s%d, %d" % (sT0, sT0, WS_CS))
    a("v_lshl_add_u32 v19, v17, 4, s%d" % sT0)
    a("s_lshl_b32 s%d, s%d, 1" % (sT0, sR))
    a("s_add_u32 s%d, s%d, s%d" % (sT0, sT0, sWR))
    a("s_lshl_b32 s%d, s%d, 1" % (sT1, sF))
    a("s_add_u32 s%d, s%d, s%d" % (sT1, sT1, sWC))
    a("s_lshl_b32 s%d, s%d, 1" % (sT1, sT1))
    a("s_lshl_b32 s%d, s%d, 6" % (sT2, sT0)); a("s_add_u32 s%d, s%d, s%d" % (sT2, sT2, sT1)); a("s_lshl_b32 s%d, s%d, 3" % (sT2, sT2))
    a("s_add_u32 s%d, s%d, %d" % (sT2, sT2, WS_HF))
    a("v_mov_b32 v21, s%d" % sT2)
    a("s_mul_i32 s%d, s%d, 56" % (sT0, sT0))
    a("s_add_u32 s%d, s%d, s%d" % (sT0, sT0, sT1))
    a("s_lshl_b32 s%d, s%d, 12" % (sT0, sT0))
    a("v_and_b32 v20, 15, v1")
    a("v_lshlrev_b32 v20, 4, v20")
    a("v_bfe_u32 v22, v1, 4, 1")
    a("v_lshl_add_u32 v20, v22, 10, v20")
    a("v_lshl_add_u32 v20, v17, 8, v20")
    a("v_add_u32 v20, s%d, v20" % sT0)
    a("s_mov_b32 s%d, 0" % sLD)
    a = a_real
    while pend: emit(pend.pop(0))
    ACC = lambda ff, mat, tt: 128 + 64 * ff + 32 * mat + 16 * tt
    FR = [80, 104]
    RC = [24, 28]; CS0 = [32, 48]; CS1 = [80, 96]
    def rd_frags(st, kk):
        if "nords" in EXP: return []
        fb = FR[kk]
        slot = st % 4
        xo = L_X[(st >> 1) % 3] - 65536
        xa = 5 + 2 * (st & 1) + kk
        out = []
        def wr(ff, mat):
            return [("ds_read_b64_tr_b16 %s, v%d offset:%d" % (vr(fb + 8 + 8 * ff + 4 * mat + 2 * half, 2), (9, 0)[ff], L_W + slot * 16384 + mat * 8192 + kk * 4096 + half * 1024), ("fr", st, kk, ff, mat)) for half in range(2)]
        xr = lambda tt: [("ds_read_b128 %s, v%d offset:%d" % (vr(fb + 4 * tt, 4), xa, xo + tt * 4096), ("fx", st, kk, tt))]
        return [xr(0) + wr(0, 0), xr(1), wr(0, 1), wr(1, 0), wr(1, 1)]
    def mfmas(kk, first=False):
        fb = FR[kk]
        if "nomfma" in EXP: return ["s_nop 0"] * 8
        return ["v_mfma_f32_32x32x16_bf16 %s, %s, %s, %s" % (vr(ACC(ff, mat, tt), 16), vr(fb + 8 + 8 * ff + 4 * mat, 4), vr(fb + 4 * tt, 4), "0" if first else vr(ACC(ff, mat, tt), 16))
                for ff in range(2) for mat in range(2) for tt in range(2)]
    def inter(st, kk, groups):
        for i, m in enumerate(mfmas(kk, st == 0 and kk == 0)):
            ff, mat, tt = i >> 2, (i >> 1) & 1, i & 1
            if i == 1: a.wait_ds(("fx", st, kk, 1))
            a.wait_ds(("fr", st, kk, ff, mat))
            a(m)
            for sl, g in groups:
                if sl == i: emit(g)
    def arrive(v, off=0):
        a("v_mov_b32 v13, %d" % v)
        a.ds("ds_write_b8 v12, v13 offset:%d" % off, "sig")
    deferred = []
    def check(v, r=14, off=0):
        l = L("CK"); lo = L("CKO")
        if "nochk" in EXP and v < 14: return
        a("v_cmp_gt_u32 vcc, %d, v%d" % (v, r))
        a("s_cbranch_vccnz %s" % lo)
        a.label(l)
        def slow():
            a.label(lo)
            spin_lds(11, r, v, slp=0, off=off)
            a("s_nop 4")
            a("s_branch %s" % l)
        deferred.append(slow)
    def wait_stage(st):
        tags = [t for t in a.vmq if t in (("w", st), ("x", st >> 1))]
        if "novm" in EXP and st > 0: return
        if tags: a.wait_vm(tags[-1])
    def cs_loads(CS, ff):
        a("s_mov_b32 s%d, 7168" % sT0)
        for q in range(4):
            a("buffer_load_dwordx4 %s, v19, s[%d:%d], 0 offen offset:%d" % (vr(CS[0] + 4 * q, 4), SWS, SWS + 3, ff * 128 + q * 32))
            a("buffer_load_dwordx4 %s, v19, s[%d:%d], s%d offen offset:%d" % (vr(CS[1] + 4 * q, 4), SWS, SWS + 3, sT0, ff * 128 + q * 32))
    def const_loads():
        for tt in range(2):
            a("buffer_load_dwordx4 %s, v18, s[%d:%d], 0 offen offset:%d" % (vr(RC[tt], 4), SWS, SWS + 3, tt * 512))
        cs_loads(CS0, 0)
        a("s_mov_b32 s%d, 1" % sLD)
    def get_non():
        a.wait_ds("non")
        a("v_readfirstlane_b32 s%d, v22" % sNON); a("v_readfirstlane_b32 s%d, v23" % (sNON + 1))
    def pollA():
        a("buffer_load_dword v17, v15, s[%d:%d], 0 offen sc1" % (SWS, SWS + 3))
    def try_const():
        l = L("CL"); lo = L("CLO")
        a("s_waitcnt vmcnt(0)")
        a("v_cmp_ne_u32 vcc, s%d, v17" % sNON)
        a("s_cbranch_vccz %s" % lo)
        a.label(l)
        def slow():
            a.label(lo)
            a("s_cmp_eq_u32 s%d, 0" % (sNON + 1))
            a("s_cbranch_scc1 %s" % l)
            const_loads()
            a("s_branch %s" % l)
        deferred.append(slow)
    PA = int(os.environ.get("PA", "5"))
    RS = [int(c) for c in os.environ.get("RS", "01234")]
    if "su" in EXP: sf_("pre")
    wait_stage(0)
    if "su" in EXP: sf_("land0")
    arrive(1)
    spin_lds(11, 14, 1, slp=0)
    sf_("st0")
    for g in rd_frags(0, 0): emit(g)
    for st in range(NST):
        if st in (7,): sf_("st%d" % st)
        D = []
        if 1 <= st and st + 3 < NST:
            D = dma_w(st + 3)
            if st % 2 == 0 and st // 2 + 2 < 7: D = D + dma_x(st // 2 + 2)[:2]
            if st % 2 == 1 and st >= 3 and st // 2 + 2 < 7: D = D + dma_x(st // 2 + 2)[2:]
        DS = [(0, 4), (0, 6), (1, 1), (1, 3), (1, 5), (1, 7)]
        G = []
        if st + 1 < NST:
            G.append((0, [lambda st=st: wait_stage(st + 1), lambda st=st: arrive(st + 2)]))
        G += [(RS[i], g) for i, g in enumerate(rd_frags(st, 1))]
        if st == NST - 3: G.append((5, [("ds_read_b64 v[22:23], v10 offset:%d" % (Y_NON - Y_RDA), "non")]))
        if st == NST - 2: G.append((1, [get_non, pollA]))
        if st == NST - 1: G.append((4, [try_const]))
        if D: G.append((3, [lambda: a.wait_ds("pR"), lambda st=st: check(st, 16, Y_RD)]))
        G += [(DS[i][1], g) for i, g in enumerate(D) if DS[i][0] == 0]
        if st + 1 < NST: G.append((PA, [("ds_read_u8 v14, v11", "pA")]))
        inter(st, 0, G)
        G = []
        if st + 1 < NST:
            G.append((0, [lambda: a.wait_ds("pA"), lambda st=st: check(st + 2)]))
            G += [(RS[i], g) for i, g in enumerate(rd_frags(st + 1, 0))]
        G.append((6 if st + 1 == NST else 0, [lambda st=st: arrive(st + 1, Y_RD)]))
        G += [(DS[i][1], g) for i, g in enumerate(D) if DS[i][0] == 1]
        if st + 4 < NST: G.append((7, [("ds_read_u8 v16, v11 offset:%d" % Y_RD, "pR")]))
        inter(st, 1, G)
    a.dsq = []
    sf_("loopend")
    l = L("CL"); lo = L("CLO"); l1 = L("CLP"); l2 = L("CLP")
    a("s_cmp_eq_u32 s%d, 0" % sLD)
    a("s_cbranch_scc1 %s" % lo)
    a.label(l)
    def slow(l=l, lo=lo):
        a.label(lo)
        a("s_mov_b32 s%d, %d" % (sCNT, SPIN))
        a.label(l1)
        a("ds_read_b64 v[22:23], v10 offset:%d" % (Y_NON - Y_RDA))
        pollA()
        a("s_waitcnt vmcnt(0) lgkmcnt(0)")
        a("v_readfirstlane_b32 s%d, v22" % sNON); a("v_readfirstlane_b32 s%d, v23" % (sNON + 1))
        a("v_cmp_ne_u32 vcc, s%d, v17" % sNON)
        a("s_cmp_eq_u32 s%d, 0" % (sNON + 1))
        a("s_cselect_b64 s[%d:%d], -1, vcc" % (sT0, sT0 + 1))
        a("s_cmp_eq_u64 s[%d:%d], 0" % (sT0, sT0 + 1))
        a("s_cbranch_scc1 %s" % l2)
        a("s_sleep 2")
        a("s_sub_u32 s%d, s%d, 1" % (sCNT, sCNT)); a("s_cmp_lg_u32 s%d, 0" % sCNT)
        a("s_cbranch_scc1 %s" % l1)
        a.label(l2)
        const_loads()
        a("s_branch %s" % l)
    deferred.append(slow)
    cs_loads(CS1, 1)
    a("v_lshrrev_b32 v5, 3, v1")
    a("s_mul_i32 s%d, s%d, 448" % (sT0, sWV))
    a("v_add_u32 v5, s%d, v5" % sT0)
    a("v_mul_u32_u24 v5, 896, v5")
    a("s_lshl_b32 s%d, s%d, 7" % (sT0, sCT))
    a("v_add_u32 v5, s%d, v5" % sT0)
    a("v_and_b32 v6, 1, v1")
    a("v_lshl_add_u32 v5, v6, 4, v5")
    a("v_bfe_u32 v6, v1, 1, 2")
    a("v_bfe_u32 v7, v1, 4, 1")
    a("v_xor_b32 v6, v6, v7")
    a("v_xor_b32 v7, 2, v6")
    a("v_lshl_add_u32 v2, v6, 5, v5")
    a("v_lshl_add_u32 v3, v7, 5, v5")
    a("s_mul_i32 s%d, s%d, %d" % (sWB, sWV, W2R))
    a("ds_read_u8 v14, v11 offset:%d" % Y_RD)
    NW = 6
    J = lambda s: 2 * (s % 7) + s // 7
    def dma_wd(s):
        for q in range(4):
            a("s_mov_b32 s%d, %d" % (sOW, (J(s) * 32 + 8 * q) * 896))
            a("s_add_u32 m0, s%d, %d" % (sWB, (s % NW) * 4096 + q * 1024))
            a.vm("buffer_load_dwordx4 v%d, s[%d:%d], s%d offen lds" % (2 + (q & 1), SWD, SWD + 3, sOW), ("wd", s))
    a("s_waitcnt vmcnt(8) lgkmcnt(0)"); a.vmq = ["cs1"] * 8
    sf_("stats")
    check(14, 14, Y_RD)
    def flag(ff):
        a.wait_vm(("hst", ff))
        a("s_mov_b64 exec, 1")
        a.vm("buffer_store_dwordx2 v[22:23], v21, s[%d:%d], 0 offen offset:%d sc1" % (SWS, SWS + 3, ff * 8), "hfl")
        a("s_mov_b64 exec, -1")
    blk = 0
    for ff in range(2):
        CS = (CS0, CS1)[ff]
        if ff == 1: a.wait_vm("cs1")
        for tt in range(2):
            r0 = RC[tt]
            for qp in range(2):
                if blk < NW: dma_wd(blk)
                if blk == 6: flag(0)
                HP = 112 + 4 * (blk & 3); blk += 1
                for q2 in range(2):
                    q = 2 * qp + q2
                    seqs = []
                    for e in range(4):
                        g = ACC(ff, 0, tt) + 4 * q + e; u = ACC(ff, 1, tt) + 4 * q + e; T = 64 + 4 * q2 + e
                        seqs.append([
                        "v_fmac_f32 v%d, v%d, v%d" % (g, CS[0] + 4 * q + e, r0),
                        "v_mul_f32 v%d, v%d, v%d" % (T, g, g),
                        "v_fma_f32 v%d, v%d, v%d, v%d" % (T, T, r0 + 2, r0 + 1),
                        "v_mul_f32 v%d, v%d, v%d" % (T, T, g),
                        "v_exp_f32 v%d, v%d" % (T, T),
                        "v_fmac_f32 v%d, v%d, v%d" % (u, CS[1] + 4 * q + e, r0),
                        "v_fma_f32 v%d, v%d, v%d, v%d" % (T, T, r0 + 3, r0 + 3),
                        "v_rcp_f32 v%d, v%d" % (T, T),
                        "v_mul_f32 v%d, v%d, v%d" % (g, g, u),
                        "v_mul_f32 v%d, v%d, v%d" % (g, g, T),
                        ("v_cvt_pk_bf16_f32 v%d, v%d, v%d" % (HP + 2 * q2 + e // 2, g - 1, g)) if e & 1 else None])
                    for i in range(len(seqs[0])):
                        for sq in seqs:
                            if sq[i]: a(sq[i])
                a("v_permlane32_swap_b32 v%d, v%d" % (HP, HP + 2))
                a("v_permlane32_swap_b32 v%d, v%d" % (HP + 1, HP + 3))
                a("s_movk_i32 s%d, %d" % (sT0, ff * 4096))
                a.vm("buffer_store_dwordx4 %s, v20, s[%d:%d], s%d offen offset:%d sc1" % (vr(HP, 4), SWS, SWS + 3, sT0, tt * 2048 + qp * 512), ("hst", ff))
    sf_("gelu")
    A2 = lambda ct, tt: 32 + 16 * ct + 4 * tt
    WB = [128 + 16 * i for i in range(NW)]; NH = 4; HB = [224, 240, 96, 112]
    a("v_and_b32 v16, 15, v1"); a("v_lshrrev_b32 v17, 4, v1")
    a("v_lshrrev_b32 v8, 2, v16")
    a("v_lshl_add_u32 v8, v17, 3, v8")
    a("v_lshlrev_b32 v8, 7, v8")
    a("v_and_b32 v9, 3, v16")
    a("v_lshl_add_u32 v8, v9, 3, v8")
    a("v_add_u32 v13, s%d, v8" % sWB)
    a("v_bfe_u32 v9, v16, 3, 1")
    a("v_and_b32 v14, 1, v17")
    a("v_lshl_add_u32 v9, v14, 1, v9")
    TRB = [4, 5, 6, 7]
    for ct in range(4):
        a("v_xor_b32 v14, %d, v9" % ct)
        a("v_lshl_add_u32 v%d, v14, 5, v13" % TRB[ct])
    def trw(s):
        for ct in range(4):
            for hf in range(2):
                a("ds_read_b64_tr_b16 %s, v%d offset:%d" % (vr(WB[s % NW] + 4 * ct + 2 * hf, 2), TRB[ct], (s % NW) * 4096 + hf * 512))
    a("s_mul_i32 s%d, s%d, 14" % (sT1, sWV))
    a("s_lshl_b32 s%d, s%d, 9" % (sT0, sRT2))
    a("s_add_u32 s%d, s%d, %d" % (sT0, sT0, WS_HF))
    a("v_lshl_add_u32 v8, v1, 3, s%d" % sT0)
    a("s_cmp_lg_u32 s%d, 0" % sWV)
    a("s_cselect_b32 s%d, 0, -1" % sPM); a("s_cselect_b32 s%d, 0, 0xffffff" % (sPM + 1))
    def hpoll():
        a("s_mov_b64 exec, s[%d:%d]" % (sPM, sPM + 1))
        a.vm("buffer_load_dwordx2 v[14:15], v8, s[%d:%d], 0 offen sc1" % (SWS, SWS + 3), "hp")
        a("s_mov_b64 exec, -1")
    hpoll()
    a.wait_vm(("wd", NW - 1))
    for s in range(NW): trw(s)
    a("s_mul_i32 s%d, s%d, 56" % (sT0, sRT2))
    a("s_add_u32 s%d, s%d, s%d" % (sT0, sT0, sT1))
    a("s_lshl_b32 s%d, s%d, 12" % (sT0, sT0))
    a("v_lshl_add_u32 v9, v1, 4, s%d" % sT0)
    flag(1)
    sf_("flag1")
    a("s_waitcnt lgkmcnt(0)")
    for s in range(NW, 2 * NW): dma_wd(s)
    a("s_lshl_b32 s%d, s%d, 6" % (sT0, sRT2)); a("s_lshl_b32 s%d, s%d, 4" % (sT1, sWV)); a("s_add_u32 s%d, s%d, s%d" % (sT0, sT0, sT1))
    a("v_add_u32 v18, s%d, v16" % sT0)
    a("v_mul_u32_u24 v18, 896, v18")
    a("v_lshl_add_u32 v18, v17, 4, v18")
    a("s_lshl_b32 s%d, s%d, 7" % (sT0, sCT))
    a("v_add_u32 v18, s%d, v18" % sT0)
    a("v_xor_b32 v13, v17, v16")
    a("v_lshlrev_b32 v19, 8, v16"); a("v_lshl_add_u32 v19, v13, 4, v19")
    a("v_add_u32 v19, s%d, v19" % sWB)
    a("v_xor_b32 v20, 64, v19"); a("v_xor_b32 v21, 128, v19"); a("v_xor_b32 v22, 192, v19")
    def hwait(ph):
        l = L("HP"); lo = L("HPO"); l1 = L("HPL"); l2 = L("HPW"); l3 = L("HPS")
        a.wait_vm("hp")
        a("s_cmp_lg_u32 s%d, 0" % sPM)
        a("s_cbranch_scc1 %s" % lo)
        a.label(l)
        a("ds_read_u8 v13, v10 offset:2")
        a("s_waitcnt lgkmcnt(0)")
        a("v_cmp_gt_u32 vcc, %d, v13" % (ph + 1))
        a("s_cbranch_vccnz %s" % l3)
        a.label(l2)
        def slow():
            a.label(l3)
            spin_lds(10, 13, ph + 1, slp=1, off=2)
            a("s_branch %s" % l2)
            a.label(lo)
            a("s_mov_b32 s%d, %d" % (sT3, SPIN))
            a.label(l1)
            a("v_cmp_ne_u64 vcc, s[%d:%d], v[14:15]" % (sNON, sNON + 1))
            a("s_and_b64 vcc, vcc, s[%d:%d]" % (sPM, sPM + 1))
            a("v_mov_b32 v13, 2")
            lp = L("HPP")
            a("s_cbranch_scc0 %s" % lp)
            if ph == 0:
                a("v_mov_b32 v13, 1")
                a("s_and_b32 s%d, vcc_lo, 0x55555555" % sT0); a("s_and_b32 s%d, vcc_hi, 0x55555555" % sT1)
                a("s_or_b32 s%d, s%d, s%d" % (sT0, sT0, sT1))
                a("s_cbranch_scc0 %s" % (lp + "b"))
            a("s_sleep %d" % int(os.environ.get("HSL", "3")))
            a("s_mov_b64 exec, s[%d:%d]" % (sPM, sPM + 1))
            a("buffer_load_dwordx2 v[14:15], v8, s[%d:%d], 0 offen sc1" % (SWS, SWS + 3))
            a("s_mov_b64 exec, -1")
            a("s_waitcnt vmcnt(0)")
            a("s_sub_u32 s%d, s%d, 1" % (sT3, sT3)); a("s_cmp_lg_u32 s%d, 0" % sT3)
            a("s_cbranch_scc1 %s" % l1)
            a.label(lp)
            a("s_mov_b64 s[%d:%d], 0" % (sPM, sPM + 1))
            a.label(lp + "b")
            a("s_mov_b64 exec, 1")
            a("ds_write_b8 v10, v13 offset:2")
            a("s_mov_b64 exec, -1")
            a("s_branch %s" % l2)
        deferred.append(slow)
    hwait(0)
    sf_("hpoll")
    def ld_h(s):
        a("s_mov_b32 s%d, %d" % (sOX, WS_H + J(s) * 4096))
        for tt in range(4):
            a.vm("buffer_load_dwordx4 %s, v9, s[%d:%d], s%d offen offset:%d" % (vr(HB[s % NH] + 4 * tt, 4), SWS, SWS + 3, sOX, tt * 1024), ("h", s, tt))
    for s in range(NH): ld_h(s)
    for s in range(14):
        if s >= NW: a("s_waitcnt lgkmcnt(%d)" % min(15, 8 * min(NW - 1, 13 - s)))
        for tt in range(4):
            a.wait_vm(("h", s, tt))
            for ct in range(4):
                a("v_mfma_f32_16x16x32_bf16 %s, %s, %s, %s" % (vr(A2(ct, tt), 4), vr(WB[s % NW] + 4 * ct, 4), vr(HB[s % NH] + 4 * tt, 4), "0" if s == 0 else vr(A2(ct, tt), 4)))
        HW2 = int(os.environ.get("HW2", "5"))
        if s == HW2 - 2: hpoll()
        if s == HW2:
            hwait(1); sf_("hpoll2")
            for s2 in range(7, s + NH): ld_h(s2)
        if s + NH < 14 and (s + NH < 7 or s >= HW2): ld_h(s + NH)
        if s == 10:
            a.vm("buffer_load_dwordx4 v[24:27], v18, s[%d:%d], 0 offen" % (SX, SX + 3), "x")
            a.vm("buffer_load_dwordx4 v[28:31], v18, s[%d:%d], 0 offen offset:64" % (SX, SX + 3), "x")
        if s + NW < 14:
            a.wait_vm(("wd", s + NW))
            trw(s + NW)
            if s + 2 * NW < 14:
                a("s_waitcnt lgkmcnt(0)")
                dma_wd(s + 2 * NW)
    sf_("f2end")
    for tt in range(4):
        for ct in range(4):
            a("ds_write_b128 v%d, %s offset:%d" % (19 + ct, vr(A2(ct, tt), 4), tt * 4096))
    a("v_lshlrev_b32 v14, 1, v17"); a("v_xor_b32 v14, v14, v16")
    a("v_lshlrev_b32 v4, 8, v16"); a("v_lshl_add_u32 v4, v14, 4, v4")
    a("s_lshl_b32 s%d, s%d, 12" % (sT0, sWV))
    a("v_add_u32 v4, s%d, v4" % sT0)
    a("v_xor_b32 v5, 16, v4"); a("v_xor_b32 v6, 128, v4"); a("v_xor_b32 v7, 144, v4")
    a("v_add_u32 v0, %d, v4" % (2 * W2R)); a("v_add_u32 v2, %d, v5" % (2 * W2R)); a("v_add_u32 v3, %d, v6" % (2 * W2R)); a("v_add_u32 v8, %d, v7" % (2 * W2R))
    a("v_lshrrev_b32 v14, 1, v17")
    a("v_mul_u32_u24 v14, %d, v14" % STG_W)
    a("v_and_b32 v15, 1, v17"); a("v_lshlrev_b32 v15, 3, v15"); a("v_lshrrev_b32 v13, 2, v16"); a("v_add_u32 v15, v15, v13")
    a("v_lshl_add_u32 v14, v15, 7, v14")
    a("v_and_b32 v15, 3, v16"); a("v_lshl_add_u32 v14, v15, 3, v14")
    a("s_lshl_b32 s%d, s%d, 5" % (sT2, sWV)); a("s_add_u32 s%d, s%d, %d" % (sT2, sT2, L_STG))
    a("v_add_u32 v14, s%d, v14" % sT2)
    a("s_waitcnt lgkmcnt(0)")
    arrive(17)
    spin_lds(11, 15, 1, slp=1, off=Y_YA)
    sf_("ya")
    for hc in range(2):
        for hf in range(2):
            a("ds_read_b64_tr_b16 %s, v14 offset:%d" % (vr(96 + 4 * hc + 2 * hf, 2), hc * 2 * STG_W + hf * 512))
    a.wait_vm("x")
    a("s_waitcnt lgkmcnt(0)")
    for w in range(8):
        xw = 24 + w; yw = 96 + w; o = 104 + 2 * w
        a("v_lshlrev_b32 v%d, 16, v%d" % (o, xw)); a("v_and_b32 v%d, 0xffff0000, v%d" % (o + 1, xw))
        a("v_lshlrev_b32 v120, 16, v%d" % yw); a("v_and_b32 v121, 0xffff0000, v%d" % yw)
        a("v_add_f32 v%d, v%d, v120" % (o, o)); a("v_add_f32 v%d, v%d, v121" % (o + 1, o + 1))
        a("v_cvt_pk_bf16_f32 v%d, v%d, v%d" % (o, o, o + 1))
        a("v_and_b32 v%d, 0xffff0000, v%d" % (o + 1, o)); a("v_lshlrev_b32 v%d, 16, v%d" % (o, o))
    spin_lds(11, 15, 17, slp=0)
    for s in range(4):
        for c in range(4):
            ad = ((4, 5, 6, 7), (0, 2, 3, 8))[s >> 1][c]
            a("ds_read_b128 %s, v%d offset:%d" % (vr(128 + 16 * s + 4 * c, 4), ad, (s & 1) * W2R))
    for hc in range(2):
        a("s_waitcnt lgkmcnt(%d)" % (2 - 2 * hc))
        for e in range(8):
            b = 128 + 8 * hc + e
            a("v_add_f32 v%d, v%d, v%d" % (b, b, b + 16)); a("v_add_f32 v%d, v%d, v%d" % (b + 32, b + 32, b + 48))
            a("v_add_f32 v%d, v%d, v%d" % (b, b, b + 32))
        for w in range(4):
            b = 128 + 8 * hc + 2 * w; o = 104 + 8 * hc + 2 * w
            a("v_cvt_pk_bf16_f32 v120, v%d, v%d" % (b, b + 1))
            a("v_and_b32 v121, 0xffff0000, v120"); a("v_lshlrev_b32 v120, 16, v120")
            a("v_add_f32 v120, v120, v%d" % o); a("v_add_f32 v121, v121, v%d" % (o + 1))
            a("v_cvt_pk_bf16_f32 v%d, v120, v121" % (192 + 4 * hc + w))
        a("buffer_store_dwordx4 %s, v18, s[%d:%d], 0 offen offset:%d" % (vr(192 + 4 * hc, 4), SOUT, SOUT + 3, hc * 64) + os.environ.get("OUTM", ""))
    sf_("end")
    if "span" in EXP:
        srd(a, SDBG, 12, 256)
        a("s_waitcnt vmcnt(0)")
        a("s_memrealtime s[100:101]"); a("s_waitcnt lgkmcnt(0)")
        a("s_sub_u32 s100, s100, s%d" % sNON)
        a("v_mov_b32 v150, s100"); a("v_mov_b32 v151, 0")
        a("s_cmp_lg_u32 s%d, 0" % sWV); a("s_cselect_b32 exec_lo, 0, 1"); a("s_mov_b32 exec_hi, 0")
        a("buffer_atomic_umax v150, v151, s[%d:%d], 0 offen sc1" % (SDBG, SDBG + 3))
        a("s_lshl_b32 s100, s2, 2"); a("s_add_u32 s100, s100, %d" % WS_DBG); a("v_mov_b32 v151, s100")
        a("buffer_store_dword v150, v151, s[%d:%d], 0 offen sc1" % (SWS, SWS + 3))
        a("s_mov_b64 exec, -1")
    sf_.store(150)
    a("s_endpgm")
    for f in deferred: f()

    import gen4h as gen3h
    gen3h.helper(a, sh_, L, spin_lds)
    gen3h.producer(a, sp_, L)
    a.label("K_END")
    a("s_endpgm")
    if STAMP: print("ffn", sf_.names, "\nhelp", sh_.names, "\nprod", sp_.names)
    return a.finalize()

def wrap(kernels):
    out = []
    for name, grid, block, lds, body, nv in kernels:
        if len(kernels) > 1: out.append("; @launch kernel=%s grid=(%d,1,1) block=(%d,1,1) lds=%d" % (name, grid, block, lds))
        else: out.append("; @launch grid=(%d,1,1) block=(%d,1,1) lds=%d" % (grid, block, lds))
    out.append('.amdgcn_target "amdgcn-amd-amdhsa--gfx950"')
    out.append(".text")
    for name, grid, block, lds, body, nv in kernels:
        out += [".globl %s" % name, ".p2align 8", ".type %s,@function" % name, "%s:" % name, body]
    out.append('.section .rodata,"a"')
    for name, grid, block, lds, body, nv in kernels:
        out += [".p2align 6", ".amdhsa_kernel %s" % name,
                "  .amdhsa_next_free_vgpr %d" % nv, "  .amdhsa_next_free_sgpr 102", "  .amdhsa_accum_offset %d" % ((nv + 3) // 4 * 4),
                "  .amdhsa_group_segment_fixed_size 0", "  .amdhsa_kernarg_size 128", "  .amdhsa_user_sgpr_count 2",
                "  .amdhsa_user_sgpr_kernarg_segment_ptr 1", "  .amdhsa_system_sgpr_workgroup_id_x 1", ".end_amdhsa_kernel"]
    return "\n".join(out) + "\n"

if __name__ == "__main__":
    sys.modules["gen4"] = sys.modules["__main__"]
    NAME = "parallel_sum__ssm_conv_s4__glu_gated_geglu__prompt_kernel"
    ks = [(NAME, 256, 512, LDS, gen(), 256)]
    if "delay" in EXP:
        b = Asm()
        b("s_cmp_ge_u32 s2, 1"); b("s_cbranch_scc1 K3_END")
        b("s_load_dwordx4 s[4:7], s[0:1], 112"); b("s_waitcnt lgkmcnt(0)")
        srd(b, 8, 6, WS_SIZE); srd(b, 12, 4, 256)
        b("v_lshlrev_b32 v1, 2, v0"); b("v_mov_b32 v10, 0")
        for i in range(4):
            b("s_mov_b32 s22, %d" % (WS_DBG + 128 + i * 256 - (32 if i == 3 else 0) * 4))
            b("buffer_load_dword v4, v1, s[8:11], s22 offen sc1"); b("s_waitcnt vmcnt(0)"); b("v_max_u32 v10, v10, v4")
        b("v_readlane_b32 s30, v10, 0")
        for l in range(1, 64):
            b("v_readlane_b32 s22, v10, %d" % l); b("s_max_u32 s30, s30, s22")
        b("s_mov_b64 exec, 1"); b("v_mov_b32 v1, 0"); b("v_mov_b32 v2, s30")
        b("buffer_store_dword v2, v1, s[12:15], 0 offen"); b("s_waitcnt vmcnt(0)")
        b("s_min_u32 s30, s30, 20000"); b("s_mul_i32 s30, s30, %d" % int(os.environ.get("DM", "4")))
        b("s_memrealtime s[24:25]"); b("s_waitcnt lgkmcnt(0)")
        b.label("K3_L")
        b("s_memrealtime s[26:27]"); b("s_waitcnt lgkmcnt(0)"); b("s_sub_u32 s28, s26, s24"); b("s_cmp_lt_u32 s28, s30"); b("s_cbranch_scc1 K3_L")
        b.label("K3_END"); b("s_endpgm")
        ks = [("k1_kernel",) + ks[0][1:], ("k3_kernel", 1, 64, 0, b.finalize(), 64)]
    open(sys.argv[1] if len(sys.argv) > 1 else "k.s", "w").write(wrap(ks))
```

```python
import math, os
from gen4 import *

def get_nonce(a, L, va, vd, pre=False):
    l1, l2, l3 = L("GN"), L("GN"), L("GN")
    a("s_mov_b32 s%d, %d" % (sCNT, SPIN))
    if pre: a("s_branch %s" % l3)
    a.label(l1)
    a("buffer_load_dwordx2 v[%d:%d], v%d, s[%d:%d], 0 offen sc1" % (vd, vd + 1, va, SDBG, SDBG + 3))
    a.label(l3)
    a("s_waitcnt vmcnt(0)")
    a("v_readfirstlane_b32 s%d, v%d" % (sNON, vd)); a("v_readfirstlane_b32 s%d, v%d" % (sNON + 1, vd + 1))
    a("s_cmp_lg_u32 s%d, 0" % (sNON + 1))
    a("s_cbranch_scc1 %s" % l2)
    a("s_sleep 8")
    a("s_sub_u32 s%d, s%d, 1" % (sCNT, sCNT)); a("s_cmp_lg_u32 s%d, 0" % sCNT)
    a("s_cbranch_scc1 %s" % l1)
    a.label(l2)

def helper(a, sk_, L, spin_lds):
    a.label("K_HELP")
    a.vmq = []
    a("s_setprio 3")
    a("s_load_dwordx2 s[60:61], s[0:1], 64")
    a("s_sub_u32 s%d, s%d, 4" % (sKW, sWV))
    a("s_and_b32 s%d, s%d, 1" % (sHF, sKW))
    a("s_lshr_b32 s%d, s%d, 1" % (sT0, sKW))
    a("s_sub_u32 s%d, s2, 32" % sCH)
    a("s_lshl_b32 s%d, s%d, 1" % (sCH, sCH))
    a("s_add_u32 s%d, s%d, s%d" % (sCH, sCH, sT0))
    a("s_mul_i32 s%d, s%d, %d" % (sCVB, sT0, CV_CH))
    a("s_add_u32 s%d, s%d, %d" % (sCVB, sCVB, L_CV))
    a("s_lshl_b32 s%d, s%d, 8" % (sT0, sCH))
    a("s_lshl_b32 s%d, s%d, 7" % (sT1, sHF))
    a("s_add_u32 s%d, s%d, s%d" % (sT0, sT0, sT1))
    a("v_add_u32 v2, s%d, v1" % sT0)
    a("v_lshlrev_b32 v2, 1, v2")
    a("s_lshl_b32 s%d, s%d, 1" % (sT1, sCH))
    a("v_mov_b32 v3, s%d" % sT1)
    a("s_waitcnt lgkmcnt(0)")
    P = [[20, 21, 22, 23, 24, 25], [120, 121, 122, 123, 124, 125]]
    a.vm("global_load_ushort v26, v3, s[30:31]", "param")
    for it in range(2):
        for i in range(6):
            a.vm("global_load_ushort v%d, v2, s[%d:%d] offset:%d" % (P[it][i], 18 + 2 * i, 19 + 2 * i, it * 128), "param")
    a.vm("global_load_ushort v160, v3, s[60:61]", "param")
    a("s_setprio %d" % int(os.environ.get("KPRIO", "0")))
    if "l2pf" in EXP:
        assert not MAPB
        srd(a, SWG, 32, 448 * 3584); srd(a, SWU, 34, 448 * 3584); srd(a, SX, 16, 2048 * 896)
        a("s_lshr_b32 s%d, s2, 3" % sT0); a("s_sub_u32 s%d, s%d, 4" % (sT0, sT0)); a("s_lshl_b32 s%d, s%d, 2" % (sT0, sT0)); a("s_add_u32 s%d, s%d, s%d" % (sT0, sT0, sKW))
        a("v_mul_u32_u24 v16, 4682, v1"); a("v_lshrrev_b32 v16, 16, v16")
        a("v_mul_u32_u24 v17, 14, v16"); a("v_sub_u32 v17, v1, v17")
        a("v_min_u32 v16, 3, v16")
        a("v_mul_u32_u24 v16, 3584, v16"); a("v_lshl_add_u32 v16, v17, 7, v16")
        a("s_mul_i32 s%d, s%d, %d" % (sT1, sT0, 4 * 3584))
        a("s_and_b32 s%d, s2, 1" % sT2); a("s_mul_i32 s%d, s%d, 1792" % (sT2, sT2)); a("s_add_u32 s%d, s%d, s%d" % (sT1, sT1, sT2))
        a("v_lshrrev_b32 v17, 3, v1"); a("v_min_u32 v17, 4, v17"); a("s_mul_i32 s%d, s%d, 5" % (sT2, sT0)); a("v_add_u32 v17, s%d, v17" % sT2)
        a("v_min_u32 v17, 511, v17"); a("v_mul_u32_u24 v17, 896, v17")
        a("v_and_b32 v18, 7, v1"); a("v_min_u32 v18, 6, v18"); a("v_lshl_add_u32 v17, v18, 7, v17")
        a("s_bfe_u32 s%d, s2, 0x20001" % sT2); a("s_mul_i32 s%d, s%d, %d" % (sT2, sT2, 512 * 896))
        a("s_sleep %d" % int(os.environ.get("PFS", "0")))
        a.vm("buffer_load_dword v200, v16, s[%d:%d], s%d offen" % (SWG, SWG + 3, sT1), "pf")
        a.vm("buffer_load_dword v201, v16, s[%d:%d], s%d offen" % (SWU, SWU + 3, sT1), "pf")
        a.vm("buffer_load_dword v202, v17, s[%d:%d], s%d offen" % (SX, SX + 3, sT2), "pf")
    srd(a, SWS, 14, WS_SIZE)
    a("s_mul_i32 s%d, s%d, %d" % (sSTG, sKW, STG_W))
    a("s_add_u32 s%d, s%d, %d" % (sSTG, sSTG, L_STG))
    a("v_and_b32 v7, 15, v1")
    a("v_lshrrev_b32 v6, 4, v1")
    a("v_mul_u32_u24 v5, 272, v7")
    a("v_lshl_add_u32 v8, v6, 4, s%d" % sSTG)
    a("v_add_u32 v5, v5, v8")
    maps = [[0,1,2,3,4,5,6,7, 8,8,9,10,10,10,11,12],
            [0,0,0,1,1,1,2,2, 3,3,3,4,4,4,5,5],
            [6,6,6,6,6,7,7,7, 8,8,8,8,8,9,9,9],
            [10,10,10,10,10,11,11,11, 12,12,12,12,12,13,13,13]]
    XA = [12, 13, 14, 15]
    a("v_lshlrev_b32 v9, 2, v7")
    a("v_and_b32 v9, 31, v9")
    a("v_cmp_gt_u32 vcc, 8, v7")
    for t in range(4):
        lo = sum(maps[t][i] << (4 * i) for i in range(8)); hi = sum(maps[t][8 + i] << (4 * i) for i in range(8))
        a("v_mov_b32 v10, 0x%x" % hi); a("v_mov_b32 v11, 0x%x" % lo)
        a("v_cndmask_b32 v10, v10, v11, vcc")
        a("v_lshrrev_b32 v10, v9, v10")
        a("v_and_b32 v10, 15, v10")
        a("v_mul_u32_u24 v10, 272, v10")
        a("v_add_u32 v%d, v10, v8" % XA[t])
    D = lambda t, yt: 128 + 8 * t + 4 * yt
    for r in range(128, 160): a("v_mov_b32 v%d, 0" % r)
    a("s_add_u32 s%d, s%d, %d" % (sT0, sKW, L_SYNC)); a("v_mov_b32 v161, s%d" % sT0)
    a("s_xor_b32 s%d, s%d, 1" % (sT1, sKW)); a("s_add_u32 s%d, s%d, %d" % (sT1, sT1, L_SYNC)); a("v_mov_b32 v162, s%d" % sT1)
    a("v_mov_b32 v163, 1")
    srd(a, SDBG, 12, 256)
    a("s_and_b32 s%d, s2, 7" % sT0); a("s_lshl_b32 s%d, s%d, 8" % (sT0, sT0)); a("s_add_u32 s%d, s%d, %d" % (sT0, sT0, WS_PF))
    a("v_and_b32 v112, 31, v1"); a("v_lshl_add_u32 v112, v112, 2, s%d" % sT0)
    a("v_mov_b32 v113, 64")
    a("v_mov_b32 v114, %d" % (L_SYNC + Y_RDA))
    a("s_cmp_lg_u32 s%d, 0" % sKW)
    a("s_cselect_b32 s%d, 0, 1" % sPM)
    def setf(off):
        a("s_mov_b64 exec, 1")
        a("ds_write_b8 v161, v163 offset:%d" % off)
        a("s_mov_b64 exec, -1")
    def waitp(off, tmp=164, tmpa=165):
        a("v_add_u32 v%d, %d, v162" % (tmpa, off))
        spin_lds(tmpa, tmp, 1)
    k = a
    def nonce_pub():
        ln2 = L("NF")
        a("s_cmp_eq_u32 s%d, 0" % sPM)
        a("s_cbranch_scc1 %s" % ln2)
        a.begin_opt()
        get_nonce(a, L, 113, 116, pre=True)
        a("s_mov_b64 exec, 1")
        a("ds_write_b64 v114, v[116:117] offset:%d" % (Y_NON - Y_RDA))
        a("s_mov_b64 exec, -1")
        a.end_opt()
        a.label(ln2)
    a.wait_vm("param")
    sk_("param")
    a("s_mov_b32 exec_lo, s%d" % sPM); a("s_mov_b32 exec_hi, 0")
    a("buffer_load_dwordx2 v[116:117], v113, s[%d:%d], 0 offen sc1" % (SDBG, SDBG + 3))
    a("s_mov_b64 exec, -1")
    if "nokgen" in EXP: nonce_pub()
    for it in range(2):
        for r in P[it]: k("v_lshlrev_b32 v%d, 16, v%d" % (r, r))
    k("v_lshlrev_b32 v26, 16, v26")
    k("v_mul_f32 v26, %s, v26" % fbits(LOG2E))
    k("v_exp_f32 v26, v26")
    k("v_cvt_pk_bf16_f32 v26, v26, v26")
    k("v_lshlrev_b32 v26, 16, v26")
    WR = [28, 126]
    for it in range(2):
        p = P[it]
        k("v_mul_f32 v%d, v26, v%d" % (p[0], p[0])); k("v_mul_f32 v%d, v26, v%d" % (p[1], p[1]))
        k("v_mul_f32 v%d, v26, v%d" % (p[2], p[2])); k("v_mul_f32 v%d, v26, v%d" % (p[3], p[3]))
        w = WR[it]
        k("v_mul_f32 v%d, v%d, v%d" % (w, p[4], p[2])); k("v_fma_f32 v%d, -v%d, v%d, v%d" % (w, p[5], p[3], w))
        k("v_mul_f32 v%d, v%d, v%d" % (w + 1, p[4], p[3])); k("v_fma_f32 v%d, v%d, v%d, v%d" % (w + 1, p[5], p[2], w + 1))
    k("v_max_f32 v27, abs(v28), abs(v29)")
    k("v_max3_f32 v27, abs(v126), abs(v127), v27")
    for sh in (1, 2, 4, 8):
        k("v_max_f32_dpp v27, v27, v27 row_shr:%d row_mask:0xf bank_mask:0xf" % sh)
    k("v_max_f32_dpp v27, v27, v27 row_bcast:15 row_mask:0xa bank_mask:0xf")
    k("v_max_f32_dpp v27, v27, v27 row_bcast:31 row_mask:0xc bank_mask:0xf")
    k("v_readlane_b32 s%d, v27, 63" % sINV)
    k("s_lshr_b32 s%d, s%d, 23" % (sINV, sINV))
    k("s_sub_u32 s%d, 254, s%d" % (sSC, sINV))
    k("s_lshl_b32 s%d, s%d, 23" % (sSC, sSC))
    k("v_mov_b32 v10, s%d" % sINV)
    k("s_lshl_b32 s%d, s%d, 2" % (sT1, sKW))
    k("s_add_u32 s%d, s%d, %d" % (sT1, sT1, L_SYNC + Y_KEXP))
    k("v_mov_b32 v11, s%d" % sT1)
    k("ds_write_b32 v11, v10")
    for w in WR:
        k("v_mul_f32 v%d, s%d, v%d" % (w, sSC, w)); k("v_mul_f32 v%d, s%d, v%d" % (w + 1, sSC, w + 1))
    k("s_mov_b32 m0, s%d" % sSTG)
    E1, E8, E256, E2, E4, E16 = 30, 32, 34, 36, 38, 40
    tmpi = [0]
    def cmul(d, x, y):
        t = 42 + (tmpi[0] & 3); tmpi[0] += 1
        assert d != y
        k("v_mul_f32 v%d, v%d, v%d" % (t, x, y + 1))
        k("v_mul_f32 v%d, v%d, v%d" % (d, x, y))
        k("v_fma_f32 v%d, -v%d, v%d, v%d" % (d, x + 1, y + 1, d))
        k("v_fma_f32 v%d, v%d, v%d, v%d" % (d + 1, x + 1, y, t))
    PK = [46, 47, 48, 49]; pki = [0]
    def put(row, r, negim=False):
        p = PK[pki[0] & 3]; pki[0] += 1
        k("v_cvt_pk_f16_f32 v%d, v%d, %sv%d" % (p, r, "-" if negim else "", r + 1))
        k("ds_write_addtid_b32 v%d offset:%d" % (p, row * 272))
    YF = [64, 80]; XFB = 96
    for it in range(2 if "nokgen" not in EXP else 0):
        are, aim = P[it][0], P[it][1]
        X0 = WR[it]
        def cexp(d, Lx):
            k("v_mul_f32 v16, %s, v%d" % (fbits(Lx * LOG2E), are))
            k("v_mul_f32 v17, %s, v%d" % (fbits(Lx / (2 * math.pi)), aim))
            k("v_exp_f32 v16, v16")
            k("v_fract_f32 v17, v17")
            k("v_cos_f32 v%d, v17" % d)
            k("v_sin_f32 v%d, v17" % (d + 1))
            k("v_mul_f32 v%d, v16, v%d" % (d, d))
            k("v_mul_f32 v%d, v16, v%d" % (d + 1, d + 1))
        cexp(E8, 8); cexp(E1, 1); cexp(E256, 256)
        cmul(E16, E8, E8); cmul(E2, E1, E1); cmul(E4, E2, E2)
        Ya, Yb = 50, 52
        k("v_mov_b32 v50, 1.0"); k("v_mov_b32 v51, 0")
        put(0, Ya); put(1, E8)
        cmul(Yb, E8, E16)
        put(2, E16); put(3, Yb)
        cmul(Ya, E16, E16)
        for j in range(4, 32, 2):
            cmul(Yb, Yb, E16)
            put(j & 15, Ya); put((j + 1) & 15, Yb)
            if j + 2 < 32: cmul(Ya, Ya, E16)
            if j == 14:
                for ks in range(4): k("ds_read_b128 %s, v5 offset:%d" % (vr(YF[0] + 4 * ks, 4), ks * 64))
        for ks in range(4): k("ds_read_b128 %s, v5 offset:%d" % (vr(YF[1] + 4 * ks, 4), ks * 64))
        Xa, Xb, Xc = 54, 56, 58
        if it == 0: nonce_pub()
        put(0, X0, True)
        cmul(Xa, X0, E1); cmul(Xb, X0, E256)
        put(1, Xa, True); put(8, Xb, True)
        cmul(Xc, Xb, E2)
        for r in range(2, 8):
            cmul(Xa, Xa, E1); put(r, Xa, True)
            if r <= 5:
                put(9 + (r - 2), Xc, True)
                if r < 5: cmul(Xc, Xc, E2)
        def xtile(t):
            for ks in range(4): k("ds_read_b128 %s, v%d offset:%d" % (vr(XFB + 4 * ks, 4), XA[t], ks * 64))
        def xmfma(t):
            for ks in range(4):
                for yt in range(2):
                    k("v_mfma_f32_16x16x32_f16 %s, %s, %s, %s" % (vr(D(t, yt), 4), vr(XFB + 4 * ks, 4), vr(YF[yt] + 4 * ks, 4), vr(D(t, yt), 4)))
        xtile(0)
        for b in range(2):
            cmul(Xb, Xb, E256); put(3 * b, Xb, True)
            cmul(Xc, Xb, E4); put(3 * b + 1, Xc, True)
            cmul(Xa, Xb, E8); put(3 * b + 2, Xa, True)
        k("s_waitcnt lgkmcnt(6)")
        xmfma(0)
        xtile(1)
        for b in range(4):
            cmul(Xb, Xb, E256); put(6 + 2 * b, Xb, True)
            cmul(Xa, Xb, E8); put(7 + 2 * b, Xa, True)
        k("s_waitcnt lgkmcnt(8)")
        xmfma(1)
        for t in (2, 3):
            xtile(t)
            k("s_waitcnt lgkmcnt(0)")
            xmfma(t)
    sk_("kgen")
    a("v_mov_b32 v168, v112")
    a("s_cmp_lg_u32 s%d, 0" % sPM); a("s_cselect_b32 exec_lo, -1, 0"); a("s_mov_b32 exec_hi, 0")
    a("buffer_load_dword v169, v168, s[%d:%d], 0 offen offset:128 sc1" % (SWS, SWS + 3))
    a("s_mov_b64 exec, -1")
    a("v_lshl_add_u32 v18, v1, 4, s%d" % sSTG)
    a("s_xor_b32 s%d, s%d, 1" % (sT0, sKW))
    a("s_mul_i32 s%d, s%d, %d" % (sT0, sT0, STG_W))
    a("s_add_u32 s%d, s%d, %d" % (sT0, sT0, L_STG))
    a("v_lshl_add_u32 v19, v1, 4, s%d" % sT0)
    x1, x2 = L("X"), L("X")
    a("s_cmp_lg_u32 s%d, 0" % sHF)
    a("s_cbranch_scc1 %s" % x1)
    a.begin_opt()
    for i in range(4): a("ds_write_b128 v18, %s offset:%d" % (vr(144 + 4 * i, 4), i * 1024))
    a("s_branch %s" % x2)
    a.end_opt()
    a.label(x1)
    a.begin_opt()
    for i in range(4): a("ds_write_b128 v18, %s offset:%d" % (vr(128 + 4 * i, 4), i * 1024))
    for i in range(16): a("v_mov_b32 v%d, v%d" % (128 + i, 144 + i))
    a.end_opt()
    a.label(x2)
    setf(Y_KX)
    waitp(Y_KX)
    a("s_and_b32 s%d, s%d, 2" % (sT0, sKW))
    a("s_lshl_b32 s%d, s%d, 2" % (sT0, sT0))
    a("s_add_u32 s%d, s%d, %d" % (sT0, sT0, L_SYNC + Y_KEXP))
    a("v_mov_b32 v10, s%d" % sT0)
    a("ds_read_b64 v[10:11], v10")
    for i in range(4): a("ds_read_b128 %s, v19 offset:%d" % (vr(144 + 4 * i, 4), i * 1024))
    a("s_waitcnt lgkmcnt(4)")
    a("v_max_u32 v16, v10, v11")
    a("v_add_u32 v17, v10, v11"); a("v_subrev_u32 v17, s%d, v17" % sINV)
    def fac(dst, esrc):
        a("v_sub_u32 v%d, %s, v16" % (dst, esrc))
        a("v_add_u32 v%d, 127, v%d" % (dst, dst))
        a("v_max_i32 v%d, 0, v%d" % (dst, dst))
        a("v_lshlrev_b32 v%d, 23, v%d" % (dst, dst))
    fac(20, "s%d" % sINV); fac(22, "v17")
    a("v_lshlrev_b32 v9, 23, v16")
    a("s_waitcnt lgkmcnt(0)")
    for i in range(16):
        a("v_mul_f32 v%d, v20, v%d" % (128 + i, 128 + i))
        a("v_fmac_f32 v%d, v22, v%d" % (128 + i, 144 + i))
    a("v_and_b32 v10, v6, v7"); a("v_and_b32 v10, s%d, v10" % sHF)
    a("v_cmp_ne_u32 vcc, 0, v10")
    for i in range(4): a("v_cndmask_b32 v%d, v%d, v%d, vcc" % (128 + 4 * i, 128 + 4 * i, 129 + 4 * i))
    a("v_lshrrev_b32 v10, 1, v6"); a("v_lshlrev_b32 v10, 9, v10")
    a("v_lshl_add_u32 v10, v7, 4, v10")
    a("v_and_b32 v11, 1, v6"); a("v_lshl_add_u32 v10, v11, 3, v10")
    a("s_add_u32 s%d, s%d, %d" % (sT0, sCVB, 4088 - 1024 - 256))
    a("s_lshl_b32 s%d, s%d, 11" % (sT2, sHF))
    a("s_sub_u32 s%d, s%d, s%d" % (sT0, sT0, sT2))
    a("v_sub_u32 v10, s%d, v10" % sT0)
    for tl in range(2):
        for yt in range(2):
            b = 128 + 8 * tl + 4 * yt
            a("v_cvt_pk_f16_f32 v%d, v%d, v%d" % (64 + 4 * tl + 2 * yt, b + 3, b + 2))
            a("v_cvt_pk_f16_f32 v%d, v%d, v%d" % (65 + 4 * tl + 2 * yt, b + 1, b))
    a("v_and_b32 v11, 3, v1"); a("v_add_u32 v11, %d, v11" % (L_SYNC + Y_CNT))
    spin_lds(11, 164, 10, slp=4, off=Y_RD)
    for tl in range(2):
        for yt in range(2):
            a("ds_write_b64 v10, %s offset:%d" % (vr(64 + 4 * tl + 2 * yt, 2), (1 - tl) * 1024 + (1 - yt) * 256))
    if "dbgk" in EXP:
        a("s_mul_i32 s%d, s%d, %d" % (sT0, sCH, KSTRIDE)); a("s_sub_u32 s%d, s%d, s%d" % (sT0, sT0, sCVB)); a("s_add_u32 s%d, s%d, %d" % (sT0, sT0, WS_KREV))
        for tl in range(2):
            for yt in range(2):
                a("buffer_store_dwordx2 %s, v10, s[%d:%d], s%d offen offset:%d" % (vr(64 + 4 * tl + 2 * yt, 2), SWS, SWS + 3, sT0, (1 - tl) * 1024 + (1 - yt) * 256))
        a("s_lshl_b32 s%d, s%d, 2" % (sT0, sCH)); a("s_add_u32 s%d, s%d, %d" % (sT0, sT0, WS_KSC)); a("v_mov_b32 v11, s%d" % sT0)
        a("buffer_store_dword v9, v11, s[%d:%d], 0 offen" % (SWS, SWS + 3))
    a("s_setprio %d" % int(os.environ.get("CPRIO", "3")))
    a("v_mov_b32 v2, v7"); a("v_mov_b32 v3, v6")
    a("v_lshlrev_b32 v4, 4, v1")
    a("v_mov_b32 v12, 0"); a("v_mov_b32 v13, 0"); a("v_mov_b32 v14, 0"); a("v_mov_b32 v15, 0")
    a("v_add_u32 v5, %d, v4" % O_U)
    a("v_bfe_u32 v6, v1, 2, 2")
    a("v_mul_u32_u24 v6, %d, v6" % CPS)
    a("v_and_b32 v7, 3, v1")
    a("v_lshl_add_u32 v6, v7, 4, v6")
    a("v_add_u32 v6, 4096, v6")
    a("v_cmp_gt_u32 vcc, 32, v1")
    a("v_cndmask_b32 v5, v6, v5, vcc")
    a("v_add_u32 v5, s%d, v5" % sCVB)
    nz = L("NZ")
    a("s_cmp_lg_u32 s%d, 0" % sHF)
    a("s_cbranch_scc1 %s" % nz)
    a.begin_opt()
    a("s_mov_b32 exec_lo, 0x3fffffff"); a("s_mov_b32 exec_hi, 0xffff")
    a("ds_write_b128 v5, v[12:15]")
    a("s_mov_b64 exec, -1")
    a.end_opt()
    a.label(nz)
    setf(Y_C0)
    a("v_sub_u32 v5, 3, v2"); a("v_and_b32 v5, 3, v5")
    a("v_mul_u32_u24 v6, %d, v5" % CPS)
    a("v_add_u32 v7, v2, v5")
    a("v_sub_u32 v7, %d, v7" % (2031 - 16 * 126))
    a("v_lshl_add_u32 v7, v3, 3, v7")
    a("v_lshl_add_u32 v6, v7, 1, v6")
    a("s_lshl_b32 s%d, s%d, 8" % (sT0, sHF))
    a("s_sub_u32 s%d, s%d, s%d" % (sT1, sCVB, sT0))
    a("v_add_u32 v6, s%d, v6" % sT1)
    a("v_lshlrev_b32 v7, 5, v2")
    a("v_lshl_add_u32 v7, v3, 4, v7")
    a("v_add_u32 v7, %d, v7" % O_U)
    a("v_add_u32 v7, s%d, v7" % sT1)
    a("s_add_u32 s%d, s%d, s%d" % (sT3, sCVB, sT2))
    a("v_add_u32 v5, s%d, v4" % sT3)
    lq, lq2, lq3 = L("PB"), L("PB"), L("PB")
    a("s_cmp_eq_u32 s%d, 0" % sPM)
    a("s_cbranch_scc1 %s" % lq3)
    a.begin_opt()
    a("s_mov_b32 s%d, %d" % (sOX, SPIN))
    a.label(lq)
    a("s_waitcnt vmcnt(0)")
    a("v_cmp_ne_u32 vcc, s%d, v169" % sNON)
    a("s_cmp_eq_u32 vcc_lo, 0")
    a("s_cbranch_scc1 %s" % lq2)
    a("s_sleep %d" % int(os.environ.get("PSL", "8")))
    a("s_mov_b32 exec_hi, 0")
    a("buffer_load_dword v169, v168, s[%d:%d], 0 offen offset:128 sc1" % (SWS, SWS + 3))
    a("s_mov_b64 exec, -1")
    a("s_sub_u32 s%d, s%d, 1" % (sOX, sOX)); a("s_cmp_lg_u32 s%d, 0" % sOX)
    a("s_cbranch_scc1 %s" % lq)
    a.label(lq2)
    a("s_mov_b64 exec, 1")
    a("ds_write_b8 v114, v163 offset:1")
    a("s_mov_b64 exec, -1")
    a.end_opt()
    a.label(lq3)
    spin_lds(114, 164, 1, slp=2, off=1)
    a("ds_read_b64 v[166:167], v114 offset:%d" % (Y_NON - Y_RDA))
    sk_("rdyB")
    a("s_lshl_b32 s%d, s%d, 12" % (sT1, sCH))
    a("s_add_u32 s%d, s%d, %d" % (sT1, sT1, WS_XNT))
    a("s_add_u32 s%d, s%d, s%d" % (sT1, sT1, sT2))
    a("s_add_u32 m0, s%d, %d" % (sT3, O_U + 480))
    a.vm("buffer_load_dwordx4 v4, s[%d:%d], s%d offen lds" % (SWS, SWS + 3, sT1), "u")
    a.vm("buffer_load_dwordx4 v4, s[%d:%d], s%d offen offset:1024 lds" % (SWS, SWS + 3, sT1), "u")
    waitp(Y_C0)
    for it in range(2):
        b = 32 + 8 * it
        a("ds_read_b128 %s, v5 offset:%d" % (vr(b, 4), it * 1024))
        a("ds_read_b64 %s, v5 offset:%d" % (vr(b + 4, 2), it * 1024 + 16))
    for it in range(2):
        b = 32 + 8 * it
        a("s_waitcnt lgkmcnt(%d)" % (2 if it == 0 else 3))
        d = [b + i for i in range(6)]
        c1, c2, c3 = 64 + 12 * it, 68 + 12 * it, 72 + 12 * it
        for i in range(4):
            a("v_alignbit_b32 v%d, v%d, v%d, 16" % (c1 + i, d[i + 1], d[i]))
            a("v_mov_b32 v%d, v%d" % (c2 + i, d[i + 1]))
            a("v_alignbit_b32 v%d, v%d, v%d, 16" % (c3 + i, d[i + 2], d[i + 1]))
        a("ds_write_b128 v5, %s offset:%d" % (vr(c1, 4), CPS + it * 1024))
        a("ds_write_b128 v5, %s offset:%d" % (vr(c2, 4), 2 * CPS + it * 1024))
        a("ds_write_b128 v5, %s offset:%d" % (vr(c3, 4), 3 * CPS + it * 1024))
    sk_("copies")
    CA = 16; G = 64; F = 96
    for r in range(CA, CA + 32): a("v_mov_b32 v%d, 0" % r)
    a.wait_vm("u")
    a("s_waitcnt lgkmcnt(0)")
    setf(Y_BL)
    waitp(Y_BL)
    sk_("built")
    def rg(ri, q):
        o = 32 * (126 - 16 * q - 2 * ri)
        a("ds_read_b64 %s, v6 offset:%d" % (vr(G + 4 * q, 2), o))
        a("ds_read_b64 %s, v6 offset:%d" % (vr(G + 4 * q + 2, 2), o + 8))
    def rf(ri, j):
        a("ds_read_b128 %s, v7 offset:%d" % (vr(F + 4 * j, 4), 32 * (16 * j - 2 * ri + 14)))
    for q in range(8): rg(0, q); rf(0, 7 - q)
    for ri in range(4 if "noconv" not in EXP else 0):
        for q in range(8):
            for m in range(7, q - 1, -1):
                if q == 0:
                    a("s_waitcnt lgkmcnt(%d)" % min(15, 3 * m))
                a("v_mfma_f32_16x16x32_f16 %s, %s, %s, %s" % (vr(CA + 4 * m, 4), vr(G + 4 * q, 4), vr(F + 4 * (m - q), 4), vr(CA + 4 * m, 4)))
            if ri + 1 < 4: rg(ri + 1, q); rf(ri + 1, 7 - q)
    sk_("mfma")
    a("v_lshl_add_u32 v5, v1, 4, s%d" % sSTG)
    x1, x2 = L("X"), L("X")
    a("s_cmp_lg_u32 s%d, 0" % sHF)
    a("s_cbranch_scc1 %s" % x1)
    a.begin_opt()
    for i in range(4): a("ds_write_b128 v5, %s offset:%d" % (vr(CA + 16 + 4 * i, 4), i * 1024))
    a("s_branch %s" % x2)
    a.end_opt()
    a.label(x1)
    a.begin_opt()
    for i in range(4): a("ds_write_b128 v5, %s offset:%d" % (vr(CA + 4 * i, 4), i * 1024))
    for i in range(16): a("v_mov_b32 v%d, v%d" % (CA + i, CA + 16 + i))
    a.end_opt()
    a.label(x2)
    setf(Y_CX)
    a("v_lshlrev_b32 v13, 5, v2")
    a("v_lshl_add_u32 v13, v3, 3, v13")
    a("v_add_u32 v13, s%d, v13" % sT2)
    a("s_add_u32 s%d, s%d, %d" % (sT1, sCVB, O_U + 480))
    a("v_add_u32 v14, s%d, v13" % sT1)
    for i in range(4): a("ds_read_b64 %s, v14 offset:%d" % (vr(64 + 2 * i, 2), i * 512))
    a("v_lshlrev_b32 v8, 16, v160")
    a("s_waitcnt lgkmcnt(0)")
    for i in range(4):
        for pr in range(2):
            xw = 64 + 2 * i + pr; o = 80 + 4 * i + 2 * pr
            a("v_cvt_f32_f16 v%d, v%d" % (o, xw))
            a("v_lshrrev_b32 v%d, 16, v%d" % (o + 1, xw)); a("v_cvt_f32_f16 v%d, v%d" % (o + 1, o + 1))
            a("v_mul_f32 v%d, v8, v%d" % (o, o)); a("v_mul_f32 v%d, v8, v%d" % (o + 1, o + 1))
            a("v_cvt_pk_bf16_f32 v%d, v%d, v%d" % (o, o, o + 1))
            a("v_and_b32 v%d, 0xffff0000, v%d" % (o + 1, o)); a("v_lshlrev_b32 v%d, 16, v%d" % (o, o))
    waitp(Y_CX)
    a("s_xor_b32 s%d, s%d, 1" % (sT0, sKW))
    a("s_mul_i32 s%d, s%d, %d" % (sT0, sT0, STG_W))
    a("s_add_u32 s%d, s%d, %d" % (sT0, sT0, L_STG))
    a("v_lshl_add_u32 v6, v1, 4, s%d" % sT0)
    for i in range(4): a("ds_read_b128 %s, v6 offset:%d" % (vr(CA + 16 + 4 * i, 4), i * 1024))
    a("s_lshl_b32 s%d, s%d, 12" % (sT0, sCH))
    a("s_add_u32 s%d, s%d, %d" % (sT0, sT0, WS_YAT))
    for i in range(4):
        a("s_waitcnt lgkmcnt(%d)" % (3 - i))
        for pr in range(2):
            y = CA + 4 * i + 2 * pr; o = 80 + 4 * i + 2 * pr
            a("v_add_f32 v%d, v%d, v%d" % (y, y, y + 16)); a("v_add_f32 v%d, v%d, v%d" % (y + 1, y + 1, y + 17))
            a("v_mul_f32 v%d, v9, v%d" % (y, y)); a("v_mul_f32 v%d, v9, v%d" % (y + 1, y + 1))
            a("v_cvt_pk_bf16_f32 v%d, v%d, v%d" % (y, y, y + 1))
            a("v_and_b32 v%d, 0xffff0000, v%d" % (y + 1, y)); a("v_lshlrev_b32 v%d, 16, v%d" % (y, y))
            a("v_add_f32 v%d, v%d, v%d" % (y, y, o)); a("v_add_f32 v%d, v%d, v%d" % (y + 1, y + 1, o + 1))
            a("v_cvt_pk_bf16_f32 v%d, v%d, v%d" % (72 + 2 * i + pr, y, y + 1))
        a("buffer_store_dwordx2 %s, v13, s[%d:%d], s%d offen offset:%d sc1" % (vr(72 + 2 * i, 2), SWS, SWS + 3, sT0, i * 512))
    setf(Y_XR)
    a("s_lshl_b32 s%d, s%d, 4" % (sT0, sCH))
    a("s_lshl_b32 s%d, s%d, 3" % (sT1, sHF))
    a("s_add_u32 s%d, s%d, s%d" % (sT0, sT0, sT1))
    a("s_add_u32 s%d, s%d, %d" % (sT0, sT0, WS_CF))
    a("v_mov_b32 v14, s%d" % sT0)
    a("v_readfirstlane_b32 s%d, v166" % sNON); a("v_readfirstlane_b32 s%d, v167" % (sNON + 1))
    a("s_lshl_b32 s%d, s%d, 10" % (sT0, sCT))
    a("s_lshl_b32 s%d, s%d, 8" % (sT1, sKW))
    a("s_add_u32 s%d, s%d, s%d" % (sT0, sT0, sT1))
    a("s_lshr_b32 s%d, s%d, 4" % (sT1, sRT2)); a("s_lshl_b32 s%d, s%d, 3" % (sT1, sT1))
    a("s_add_u32 s%d, s%d, s%d" % (sT0, sT0, sT1))
    a("s_add_u32 s%d, s%d, %d" % (sT0, sT0, WS_CF))
    a("v_lshl_add_u32 v18, v2, 4, s%d" % sT0)
    a("s_lshl_b32 s%d, s%d, 4" % (sT0, sKW))
    a("v_lshrrev_b32 v19, 3, v1")
    a("v_add_u32 v19, s%d, v19" % sT0)
    a("s_lshl_b32 s%d, s%d, 6" % (sT0, sCT))
    a("v_add_u32 v19, s%d, v19" % sT0)
    a("v_lshlrev_b32 v19, 12, v19")
    a("v_and_b32 v20, 7, v1")
    a("v_lshl_add_u32 v19, v20, 4, v19")
    a("s_lshl_b32 s%d, s%d, 7" % (sT2, sRT2))
    a("s_add_u32 s%d, s%d, %d" % (sT2, sT2, WS_YAT))
    a("s_add_u32 s%d, s%d, %d" % (sT3, sT2, 8 * 4096))
    if "wbl2" in EXP: a("buffer_wbl2 sc1")
    a("s_waitcnt vmcnt(0)")
    a("s_mov_b64 exec, 1")
    a("buffer_store_dwordx2 v[166:167], v14, s[%d:%d], 0 offen sc1" % (SWS, SWS + 3))
    a("s_mov_b64 exec, -1")
    sk_("flag")
    a("s_setprio 0")
    a("s_sleep %d" % int(os.environ.get("CSL0", "8")))
    lp, ld = L("CP"), L("CP")
    a("s_mov_b32 s%d, %d" % (sOX, SPIN))
    a.label(lp)
    a("s_mov_b64 exec, 0xffff")
    a("buffer_load_dwordx2 v[20:21], v18, s[%d:%d], 0 offen sc1" % (SWS, SWS + 3))
    a("s_waitcnt vmcnt(0)")
    a("v_cmp_ne_u64 vcc, s[%d:%d], v[20:21]" % (sNON, sNON + 1))
    a("s_mov_b64 exec, -1")
    a("s_cbranch_vccz %s" % ld)
    a("s_sleep %d" % int(os.environ.get("CSL", "8")))
    a("s_sub_u32 s%d, s%d, 1" % (sOX, sOX)); a("s_cmp_lg_u32 s%d, 0" % sOX)
    a("s_cbranch_scc1 %s" % lp)
    a.label(ld)
    sk_("polled")
    a("buffer_load_dwordx4 v[104:107], v19, s[%d:%d], s%d offen" % (SWS, SWS + 3, sT2))
    a("buffer_load_dwordx4 v[108:111], v19, s[%d:%d], s%d offen" % (SWS, SWS + 3, sT3))
    waitp(Y_XR)
    a("s_waitcnt vmcnt(0)")
    a("ds_write_b128 v5, v[104:107]")
    a("ds_write_b128 v5, v[108:111] offset:1024")
    setf(Y_YA)
    a("s_waitcnt lgkmcnt(0)")
    sk_("end")
    sk_.store(100)
    a("s_endpgm")

def producer(a, sp_, L):
    a.label("K_PROD")
    a.vmq = []
    a.nopkw = True
    XT_S = 912
    L_PC = 64 * XT_S
    a("v_lshrrev_b32 v2, 3, v1")
    a("v_and_b32 v3, 7, v1")
    a("s_lshr_b32 s%d, s2, 3" % sT1)
    if MAPB:
        a("s_and_b32 s%d, s2, 7" % sT0); a("s_lshl_b32 s%d, s%d, 2" % (sR, sT0)); a("s_add_u32 s%d, s%d, s%d" % (sR, sR, sT1))
        a("s_min_u32 s%d, s2, 27" % sF)
    else:
        a("s_bfe_u32 s%d, s2, 0x20001" % sT0); a("s_lshl_b32 s%d, s%d, 3" % (sR, sT0)); a("s_lshl_b32 s%d, s%d, 1" % (sT1, sT1))
        a("s_add_u32 s%d, s%d, s%d" % (sR, sR, sT1)); a("s_and_b32 s%d, s2, 1" % sT0); a("s_add_u32 s%d, s%d, s%d" % (sR, sR, sT0))
        a("s_lshr_b32 s%d, s2, 1" % sF); a("s_min_u32 s%d, s%d, 13" % (sF, sF)); a("s_mul_i32 s%d, s%d, 14" % (sT0, sT0)); a("s_add_u32 s%d, s%d, s%d" % (sF, sF, sT0))
    a("s_lshl_b32 s%d, s%d, 3" % (sT0, sWV))
    a("v_add_u32 v4, s%d, v2" % sT0)
    a("s_lshl_b32 s%d, s%d, 6" % (sT1, sR))
    a("v_add_u32 v5, s%d, v4" % sT1)
    a("v_mul_u32_u24 v6, 896, v5")
    a("v_lshl_add_u32 v6, v3, 4, v6")
    a("s_lshr_b32 s%d, s%d, 1" % (sT1, sWV))
    a("s_mul_i32 s%d, s%d, %d" % (sT1, sT1, 112 * 3584))
    a("s_lshl_b32 s%d, s%d, 7" % (sT2, sF))
    a("s_add_u32 s%d, s%d, s%d" % (sT1, sT1, sT2))
    a("s_movk_i32 s%d, 3584" % sT2)
    a("v_mul_lo_u32 v9, v2, s%d" % sT2)
    a("v_lshl_add_u32 v9, v3, 4, v9")
    a("v_add_u32 v9, s%d, v9" % sT1)
    a("s_waitcnt lgkmcnt(0)")
    srd(a, SX, 16, 2048 * 896)
    for i in range(7):
        a.vm("buffer_load_dwordx4 %s, v6, s[%d:%d], 0 offen offset:%d" % (vr(32 + 4 * i, 4), SX, SX + 3, i * 128), "x%d" % i)
    a("s_bitcmp0_b32 s%d, 0" % sWV)
    a("s_cselect_b32 s%d, s32, s34" % SWG)
    a("s_cselect_b32 s%d, s33, s35" % (SWG + 1))
    a("s_and_b32 s%d, s%d, 0xffff" % (SWG + 1, SWG + 1))
    a("s_mov_b32 s%d, 0x%x" % (SWG + 2, 448 * 3584))
    a("s_mov_b32 s%d, 0x00020000" % (SWG + 3))
    for i in range(14):
        a("s_mov_b32 s%d, %d" % (sOW, i * 8 * 3584))
        a.vm("buffer_load_dwordx4 %s, v9, s[%d:%d], s%d offen" % (vr(64 + 4 * i, 4), SWG, SWG + 3, sOW), "w%d" % i)
    srd(a, SWS, 14, WS_SIZE)
    srd(a, SDBG, 12, 256)
    a("s_mov_b32 s%d, 0x3f803f80" % sONES)
    ln = L("NN")
    a("s_or_b32 s%d, s2, s%d" % (sT0, sWV))
    a("s_cbranch_scc1 %s" % ln)
    a.begin_opt()
    a("s_memrealtime s[%d:%d]" % (sNON, sNON + 1))
    a("s_waitcnt lgkmcnt(0)")
    a("s_or_b32 s%d, s%d, 0x40000000" % (sNON + 1, sNON + 1))
    a("v_mov_b32 v12, s%d" % sNON); a("v_mov_b32 v13, s%d" % (sNON + 1)); a("v_mov_b32 v14, 64")
    a("s_mov_b64 exec, 1")
    a("buffer_store_dwordx2 v[12:13], v14, s[%d:%d], 0 offen sc1" % (SDBG, SDBG + 3))
    a("s_mov_b64 exec, -1")
    a.end_opt()
    a.label(ln)
    a("v_mov_b32 v10, 0"); a("v_mov_b32 v11, 0"); a("v_mov_b32 v12, 0"); a("v_mov_b32 v13, 0")
    a("v_mul_u32_u24 v7, %d, v4" % XT_S)
    a("v_lshl_add_u32 v7, v3, 4, v7")
    a("v_lshlrev_b32 v8, 4, v5")
    for i in range(7):
        a.wait_vm("x%d" % i)
        for r in range(4):
            a("v_dot2_f32_bf16 v%d, v%d, s%d, v%d" % (10 + 2 * (r & 1), 32 + 4 * i + r, sONES, 10 + 2 * (r & 1)))
            a("v_dot2_f32_bf16 v%d, v%d, v%d, v%d" % (11 + 2 * (r & 1), 32 + 4 * i + r, 32 + 4 * i + r, 11 + 2 * (r & 1)))
    a("v_add_f32 v10, v10, v12"); a("v_add_f32 v11, v11, v13")
    for mod in ("quad_perm:[1,0,3,2]", "quad_perm:[2,3,0,1]", "row_half_mirror"):
        for r in (10, 11):
            a("v_add_f32_dpp v%d, v%d, v%d %s row_mask:0xf bank_mask:0xf" % (r, r, r, mod))
    c = math.sqrt(2 / math.pi); k1 = -2 * c * LOG2E; k2 = k1 * 0.044715
    a("v_mul_f32 v10, %s, v10" % fbits(1.0 / 448))
    a("v_mul_f32 v11, %s, v11" % fbits(1.0 / 448))
    a("v_fma_f32 v11, -v10, v10, v11")
    a("v_max_f32 v11, 0, v11")
    a("v_cvt_pk_bf16_f32 v10, v10, v11")
    a("v_lshlrev_b32 v12, 16, v10")
    a("v_and_b32 v11, 0xffff0000, v10")
    a("v_add_f32 v11, %s, v11" % fbits(1e-5))
    a("v_cvt_pk_bf16_f32 v11, v11, v11")
    a("v_lshlrev_b32 v11, 16, v11")
    a("v_sqrt_f32 v11, v11")
    a("v_cvt_pk_bf16_f32 v11, v11, v11")
    a("v_lshlrev_b32 v11, 16, v11")
    a("v_rcp_f32 v14, v11")
    a("v_sub_f32 v16, 0, v12")
    a("v_mul_f32 v19, v11, v11")
    a("v_mul_f32 v17, %s, v14" % fbits(k1))
    a("v_mul_f32 v10, v14, v14"); a("v_mul_f32 v10, v10, v14")
    a("v_mul_f32 v18, %s, v10" % fbits(k2))
    a("s_mov_b32 s%d, %d" % (sT0, WS_RC))
    a("s_mov_b32 exec_lo, 0x01010101"); a("s_mov_b32 exec_hi, 0x01010101")
    a.vm("buffer_store_dwordx4 v[16:19], v8, s[%d:%d], s%d offen sc1" % (SWS, SWS + 3, sT0), "rc")
    a("s_mov_b64 exec, -1")
    sp_("stats")
    for r in range(120, 128): a("v_mov_b32 v%d, 0" % r)
    for i in range(14):
        a.wait_vm("w%d" % i)
        for r in range(4):
            w = 64 + 4 * i + r; t = 20 + 2 * (r & 1)
            a("v_lshlrev_b32 v%d, 16, v%d" % (t, w)); a("v_and_b32 v%d, 0xffff0000, v%d" % (t + 1, w))
            a("v_pk_add_f32 %s, %s, %s" % (vr(120 + 2 * r, 2), vr(120 + 2 * r, 2), vr(t, 2)))
    for r in range(120, 128): a("v_add_f32_dpp v%d, v%d, v%d row_ror:8 row_mask:0xf bank_mask:0xf" % (r, r, r))
    for op in ("v_permlane16_swap_b32", "v_permlane32_swap_b32"):
        for r in range(8): a("v_mov_b32 v%d, v%d" % (128 + r, 120 + r))
        for r in range(8): a("%s v%d, v%d" % (op, 120 + r, 128 + r))
        for r in range(8): a("v_add_f32 v%d, v%d, v%d" % (120 + r, 120 + r, 128 + r))
    a("s_lshl_b32 s%d, s%d, 8" % (sT0, sWV))
    a("s_add_u32 s%d, s%d, %d" % (sT0, sT0, L_PC))
    a("v_lshl_add_u32 v9, v3, 5, s%d" % sT0)
    a("s_mov_b64 exec, 0xff")
    a("ds_write_b128 v9, v[120:123]"); a("ds_write_b128 v9, v[124:127] offset:16")
    a("s_mov_b64 exec, -1")
    lw = L("PA")
    a("s_cmp_lg_u32 s%d, 0" % sWV)
    a("s_cbranch_scc1 %s" % lw)
    a.begin_opt()
    a("v_mov_b32 v20, 64")
    get_nonce(a, L, 20, 22)
    a.end_opt()
    a.label(lw)
    a("s_waitcnt vmcnt(0) lgkmcnt(0)"); a.vmq = []
    a("s_barrier")
    sp_("pbar0")
    a("s_lshl_b32 s%d, s2, 2" % sT2); a("s_add_u32 s%d, s%d, %d" % (sT2, sT2, WS_PF))
    a("v_lshl_add_u32 v8, v1, 8, s%d" % sT2); a("v_mov_b32 v10, s%d" % sNON)
    la = L("PA")
    a("s_cmp_lg_u32 s%d, 0" % sWV)
    a("s_cbranch_scc1 %s" % la)
    a.begin_opt()
    a("v_lshlrev_b32 v9, 2, v1")
    a("v_add_u32 v20, %d, v9" % L_PC)
    for i in range(8): a("ds_read_b32 v%d, v20 offset:%d" % (120 + i, i * 256))
    a("s_lshl_b32 s%d, s%d, 8" % (sT1, sF)); a("s_add_u32 s%d, s%d, %d" % (sT0, sT1, WS_CS)); a("s_add_u32 s%d, s%d, 7168" % (sT1, sT0))
    a("s_waitcnt lgkmcnt(0)")
    for m in range(2):
        a("v_add_f32 v%d, v%d, v%d" % (120 + m, 120 + m, 122 + m)); a("v_add_f32 v%d, v%d, v%d" % (124 + m, 124 + m, 126 + m))
        a("v_add_f32 v%d, v%d, v%d" % (120 + m, 120 + m, 124 + m))
        a("buffer_store_dword v%d, v9, s[%d:%d], s%d offen sc1" % (120 + m, SWS, SWS + 3, (sT0, sT1)[m]))
    a.end_opt()
    a.label(la)
    for i in range(7):
        for r in range(4):
            w = 32 + 4 * i + r; t = 20 + 2 * (r & 1)
            a("v_lshlrev_b32 v%d, 16, v%d" % (t, w)); a("v_and_b32 v%d, 0xffff0000, v%d" % (t + 1, w))
            a("v_pk_add_f32 %s, %s, v[16:17] op_sel_hi:[1,0]" % (vr(t, 2), vr(t, 2)))
            a("v_cvt_pk_bf16_f32 v%d, v%d, v%d" % (t, t, t + 1))
            a("v_and_b32 v%d, 0xffff0000, v%d" % (t + 1, t)); a("v_lshlrev_b32 v%d, 16, v%d" % (t, t))
            a("v_pk_mul_f32 %s, %s, v[14:15] op_sel_hi:[1,0]" % (vr(t, 2), vr(t, 2)))
            a("v_cvt_pk_bf16_f32 v%d, v%d, v%d" % (t, t, t + 1))
            a("v_and_b32 v%d, 0xffff0000, v%d" % (t + 1, t)); a("v_lshlrev_b32 v%d, 16, v%d" % (t, t))
            a("v_cvt_pk_f16_f32 v%d, v%d, v%d" % (w, t, t + 1))
        a("ds_write_b128 v7, %s offset:%d" % (vr(32 + 4 * i, 4), i * 128))
        if i == 2:
            lb = L("PA")
            a("s_cmp_lg_u32 s%d, 0" % sWV)
            a("s_cbranch_scc1 %s" % lb)
            a.begin_opt()
            a("s_waitcnt vmcnt(0)")
            a("s_mov_b64 exec, 0xff")
            a("buffer_store_dword v10, v8, s[%d:%d], 0 offen sc1" % (SWS, SWS + 3))
            a("s_mov_b64 exec, -1")
            a.end_opt()
            a.label(lb)
            sp_("flagA")
    a("v_lshrrev_b32 v4, 4, v1"); a("v_and_b32 v5, 15, v1")
    a("v_lshrrev_b32 v6, 2, v5"); a("v_lshl_add_u32 v6, v4, 3, v6")
    a("v_mul_u32_u24 v6, %d, v6" % XT_S)
    a("v_and_b32 v7, 3, v5"); a("v_lshl_add_u32 v6, v7, 3, v6")
    a("v_lshlrev_b32 v7, 12, v5"); a("v_lshl_add_u32 v7, v4, 4, v7")
    a("s_lshr_b32 s%d, s%d, 1" % (sT1, sWV)); a("s_and_b32 s%d, s%d, 1" % (sT0, sWV))
    a("s_mul_i32 s%d, s%d, %d" % (sOX, sT0, 32 * XT_S)); a("s_lshl_b32 s%d, s%d, 5" % (sOW, sT1)); a("s_add_u32 s%d, s%d, s%d" % (sOX, sOX, sOW))
    a("v_add_u32 v6, s%d, v6" % sOX)
    a("s_lshl_b32 s%d, s%d, 7" % (sT2, sR)); a("s_add_u32 s%d, s%d, %d" % (sT2, sT2, WS_XNT))
    a("s_lshl_b32 s%d, s%d, 16" % (sT1, sT1)); a("s_lshl_b32 s%d, s%d, 6" % (sT0, sT0))
    a("s_add_u32 s%d, s%d, s%d" % (sT1, sT1, sT0)); a("s_add_u32 s%d, s%d, s%d" % (sT1, sT1, sT2))
    a("s_waitcnt lgkmcnt(0)")
    a("s_barrier")
    sp_("pbar")
    for i in range(7):
        a("ds_read_b64_tr_b16 %s, v6 offset:%d" % (vr(32 + 4 * i, 2), i * 128))
        a("ds_read_b64_tr_b16 %s, v6 offset:%d" % (vr(34 + 4 * i, 2), i * 128 + 4 * XT_S))
    for i in range(7):
        a("s_waitcnt lgkmcnt(%d)" % (12 - 2 * i))
        a.vm("buffer_store_dwordx4 %s, v7, s[%d:%d], s%d offen sc1" % (vr(32 + 4 * i, 4), SWS, SWS + 3, sT1), "xst")
        if i < 6: a("s_add_u32 s%d, s%d, %d" % (sT1, sT1, 4 << 16))
    sp_("st")
    a("s_waitcnt vmcnt(0)")
    a("s_barrier")
    a("s_cmp_lg_u32 s%d, 0" % sWV)
    a("s_cbranch_scc1 K_END")
    a("s_mov_b64 exec, 0xff")
    a("buffer_store_dword v10, v8, s[%d:%d], 0 offen offset:128 sc1" % (SWS, SWS + 3))
    a("s_mov_b64 exec, -1")
    sp_("end")
    sp_.store(100)
```

```python
import math, os, sys, struct
from asmlib import Asm
def fbits(x): return "0x%08x" % struct.unpack("<I", struct.pack("<f", x))[0]
LOG2E = math.log2(math.e)
def vr(b, n=1): return "v%d" % b if n == 1 else "v[%d:%d]" % (b, b + n - 1)
EXP = os.environ.get('EXP', '')
STAMP = int(os.environ.get("STAMP", "0"))
RT = os.environ.get("RT", "")
MAPB = int(os.environ.get("MAPB", "0"))
WS_H = 0; WS_XNT = 8 << 20; WS_KREV = 12 << 20; WS_KSC = 16 << 20
WS_HF = 17 << 20
WS_CF = 18 << 20
WS_PF = (18 << 20) + 65536
WS_RC = 19 << 20; WS_CS = (19 << 20) + 65536
WS_YAT = 20 << 20; WS_DBG = 24 << 20; WS_SIZE = 32 << 20
KSTRIDE = 4160
SPIN = 0x8000

def srd(a, d, p, nbytes):
    a("s_mov_b32 s%d, s%d" % (d, p))
    a("s_and_b32 s%d, s%d, 0xffff" % (d + 1, p + 1))
    a("s_mov_b32 s%d, 0x%x" % (d + 2, nbytes))
    a("s_mov_b32 s%d, 0x00020000" % (d + 3))

SX, SWG, SWU, SWS, SWD, SOUT, SDBG = 40, 44, 48, 52, 56, 60, 64
sWV, sR, sF, sWR, sWC, sRT2, sCT = 68, 69, 70, 71, 72, 73, 74
sLD = 75
sT0, sT1, sT2, sT3 = 76, 77, 78, 79
sOX, sOW, sWB, sCNT = 80, 81, 82, 83
sNON = 84
sPM = 86
sCH, sHF, sKW, sSC, sINV = 3, 4, 5, 6, 7
sONES, sCVB, sSTG = 38, 39, 36
STB = 88

class Stamps:
    def __init__(self, a, base=None):
        self.a = a; self.n = base.n if base else 0; self.names = list(base.names) if base else []
    def __call__(self, name):
        if not STAMP: return
        if RT and name not in ("start", "end"): return
        if "su" in EXP and self.n >= 11 and name != "end": return
        assert self.n < 12, name
        self.a("%s s[100:101]" % ("s_memrealtime" if RT else "s_memtime"))
        self.a("s_waitcnt lgkmcnt(0)")
        self.a("s_mov_b32 s%d, s100" % (STB + self.n))
        self.n += 1; self.names.append(name)
    def store(self, vt):
        if not STAMP: return
        a = self.a
        a("s_lshl_b32 s100, s2, 4"); a("s_add_u32 s100, s100, s%d" % sWV); a("s_lshl_b32 s100, s100, 6")
        a("s_add_u32 s100, s100, %d" % WS_DBG)
        a("s_mov_b64 exec, 1")
        a("v_mov_b32 v%d, s100" % vt)
        for i in range(self.n):
            a("v_mov_b32 v%d, s%d" % (vt + 1, STB + i))
            a("buffer_store_dword v%d, v%d, s[%d:%d], 0 offen offset:%d" % (vt + 1, vt, SWS, SWS + 3, 4 * i))
            a("s_waitcnt vmcnt(0)")
        a("s_mov_b64 exec, -1")

L_W = 0
L_X = [65536, 98304 + 17408, 81920]
RING = 98304
STG_W = 4352; L_STG = RING
L_CV = RING + 4 * STG_W
CPS = 4160; O_U = 4 * CPS; CV_CH = O_U + 4608
L_SYNC = L_CV + 2 * CV_CH
LDS = L_SYNC + 128 + 384
assert L_X[1] == L_CV and LDS <= 163840
Y_CNT = 0; Y_RDA = 8; Y_RDB = 9; Y_NON = 16; Y_KX = 24; Y_C0 = 28; Y_BL = 32; Y_CX = 36; Y_XR = 40; Y_YA = 44; Y_KEXP = 48; Y_RD = 64
W2R = 24576
L_EXTRA = L_CV

def gen():
    a = Asm()
    lab = [0]
    def L(p): lab[0] += 1; return "%s_%d" % (p, lab[0])
    st_ = Stamps(a)
    def spin_lds(addr, tmp, need, width="u8", slp=1, off=0):
        l1, l2 = L("SP"), L("SD")
        a("s_mov_b32 s%d, %d" % (sCNT, SPIN))
        a.label(l1)
        a("ds_read_%s v%d, v%d offset:%d" % (width, tmp, addr, off))
        a("s_waitcnt lgkmcnt(0)")
        a("v_cmp_gt_u32 vcc, %d, v%d" % (need, tmp))
        a("s_cbranch_vccz %s" % l2)
        if slp: a("s_sleep %d" % slp)
        a("s_sub_u32 s%d, s%d, 1" % (sCNT, sCNT))
        a("s_cmp_lg_u32 s%d, 0" % sCNT)
        a("s_cbranch_scc1 %s" % l1)
        a.label(l2)

    a("s_cmp_ge_u32 s2, 256")
    a("s_cbranch_scc1 K_END")
    st_("start")
    a("v_lshrrev_b32 v1, 6, v0")
    a("v_readfirstlane_b32 s%d, v1" % sWV)
    a("v_and_b32 v1, 63, v0")
    a("s_cmp_lg_u32 s%d, 7" % sWV)
    a("s_cbranch_scc1 K_NZ")
    a.begin_opt()
    a("v_lshlrev_b32 v2, 2, v1"); a("v_add_u32 v2, %d, v2" % L_SYNC); a("v_mov_b32 v3, 0")
    a("ds_write_b32 v2, v3")
    a("s_waitcnt lgkmcnt(0)")
    a.end_opt()
    a.label("K_NZ")
    a("s_load_dwordx16 s[16:31], s[0:1], 0")
    a("s_load_dwordx4 s[32:35], s[0:1], 80")
    a("s_load_dwordx8 s[8:15], s[0:1], 96")
    a("s_cmp_lt_u32 s2, 32")
    a("s_cbranch_scc1 K_PROD")
    a("s_barrier")
    a("s_and_b32 s%d, s2, 7" % sT0)
    a("s_lshr_b32 s%d, s2, 3" % sT1)
    a("s_sub_u32 s%d, s%d, 4" % (sT1, sT1))
    if MAPB:
        a("s_and_b32 s%d, s%d, 1" % (sT3, sT1))
        a("s_lshl_b32 s%d, s%d, 1" % (sR, sT0)); a("s_add_u32 s%d, s%d, s%d" % (sR, sR, sT3))
        a("s_lshr_b32 s%d, s%d, 1" % (sF, sT1))
    else:
        a("s_lshr_b32 s%d, s%d, 1" % (sT2, sT0)); a("s_lshl_b32 s%d, s%d, 2" % (sT2, sT2))
        a("s_and_b32 s%d, s%d, 3" % (sT3, sT1)); a("s_add_u32 s%d, s%d, s%d" % (sR, sT2, sT3))
        a("s_and_b32 s%d, s%d, 1" % (sT2, sT0)); a("s_mul_i32 s%d, s%d, 7" % (sT2, sT2))
        a("s_lshr_b32 s%d, s%d, 2" % (sT3, sT1)); a("s_add_u32 s%d, s%d, s%d" % (sF, sT2, sT3))
    a("s_and_b32 s%d, s%d, 3" % (sT3, sT1))
    a("s_lshl_b32 s%d, s%d, 2" % (sRT2, sT0)); a("s_add_u32 s%d, s%d, s%d" % (sRT2, sRT2, sT3))
    a("s_lshr_b32 s%d, s%d, 2" % (sCT, sT1))
    a("s_cmp_ge_u32 s%d, 4" % sWV)
    a("s_cbranch_scc1 K_HELP")
    sf_ = Stamps(a, st_); sh_ = Stamps(a, st_); sp_ = Stamps(a, st_)
    NST = 14
    FPRIO = int(os.environ.get("FPRIO", "2"))
    a("s_setprio %d" % FPRIO)
    a("s_and_b32 s%d, s%d, 1" % (sWR, sWV))
    a("s_lshr_b32 s%d, s%d, 1" % (sWC, sWV))
    a("s_lshl_b32 s%d, s%d, 11" % (sWB, sWV))
    a("s_lshl_b32 s%d, s%d, 12" % (sOX, sWV))
    a("v_lshrrev_b32 v2, 3, v1")
    a("s_lshl_b32 s%d, s%d, 7" % (sT0, sR))
    a("s_lshl_b32 s%d, s%d, 5" % (sT1, sWV))
    a("s_add_u32 s%d, s%d, s%d" % (sT0, sT0, sT1))
    a("v_add_u32 v2, s%d, v2" % sT0)
    a("v_mul_u32_u24 v2, 896, v2")
    a("v_lshrrev_b32 v5, 4, v1")
    a("v_xor_b32 v6, v1, v5")
    a("v_and_b32 v6, 7, v6")
    a("v_xor_b32 v7, 4, v6")
    a("v_lshl_add_u32 v3, v7, 4, v2")
    a("v_add_u32 v3, %d, v3" % (8 * 896))
    a("v_lshl_add_u32 v2, v6, 4, v2")
    a("s_lshl_b32 s%d, s%d, 3" % (sT0, sWV))
    a("v_add_u32 v4, s%d, v5" % sT0)
    a("s_movk_i32 s%d, 3584" % sT1)
    a("v_mul_lo_u32 v4, v4, s%d" % sT1)
    a("v_lshlrev_b32 v6, 2, v5")
    a("v_xor_b32 v6, v1, v6")
    a("v_and_b32 v6, 15, v6")
    a("v_lshl_add_u32 v4, v6, 4, v4")
    a("s_lshl_b32 s%d, s%d, 8" % (sT0, sF))
    a("v_add_u32 v4, s%d, v4" % sT0)
    a("s_waitcnt lgkmcnt(0)")
    if "su" in EXP: sf_("karg")
    srd(a, SX, 16, 2048 * 896)
    srd(a, SWG, 32, 448 * 3584)
    srd(a, SWU, 34, 448 * 3584)
    def dma_x(b):
        out = []
        if "nodma" in EXP and b > 2: return out
        for i in range(4):
            out.append(["s_add_u32 m0, s%d, %d" % (sOX, L_X[b % 3] + i * 1024),
                        "s_movk_i32 s%d, %d" % (sOW, b * 128 + (i >> 1) * 16 * 896),
                        ("buffer_load_dwordx4 v%d, s[%d:%d], s%d offen lds" % (2 + (i & 1), SX, SX + 3, sOW), ("x", b))])
        return out
    def dma_w(st):
        out = []
        if "nodma" in EXP and st > 3: return out
        slot = st % 4
        for i in range(2):
            for mat in range(2):
                S = (SWG, SWU)[mat]
                g = []
                g.append("s_mov_b32 s%d, %d" % (sOW, (st * 32 + 4 * i) * 3584))
                g.append("s_add_u32 m0, s%d, %d" % (sWB, L_W + slot * 16384 + mat * 8192 + i * 1024))
                g.append(("buffer_load_dwordx4 v4, s[%d:%d], s%d offen lds" % (S, S + 3, sOW), ("w", st)))
                out.append(g)
        return out
    def emit(g, a=a):
        for x in g:
            if callable(x): x()
            elif isinstance(x, tuple) and x[0].startswith("ds_"): a.ds(x[0], x[1])
            elif isinstance(x, tuple): a.vm(x[0], x[1])
            else: a(x)
    for g in dma_x(0) + dma_w(0): emit(g)
    if "su" in EXP: sf_("dma0")
    pend = dma_w(1) + dma_x(1) + dma_w(2) + dma_w(3) + dma_x(2)
    a_real = a
    class IL:
        def __init__(s_): s_.n = 0
        def __call__(s_, t):
            a_real(t); s_.n += 1
            if s_.n % 4 == 0 and pend: emit(pend.pop(0))
    a = IL()
    srd(a, SWS, 14, WS_SIZE)
    srd(a, SWD, 8, 1792 * 896)
    srd(a, SOUT, 10, 2048 * 896)
    a("v_lshlrev_b32 v15, 2, v1")
    a("v_and_b32 v16, 31, v1")
    a("s_lshl_b32 s%d, s%d, 6" % (sT0, sWR))
    a("v_add_u32 v16, s%d, v16" % sT0)
    a("v_lshrrev_b32 v17, 5, v1")
    a("v_bfe_u32 v18, v1, 1, 3")
    a("v_xor_b32 v18, v17, v18")
    a("v_lshlrev_b32 v5, 7, v16")
    a("v_lshl_add_u32 v5, v18, 4, v5")
    a("v_add_u32 v5, 65536, v5")
    a("v_xor_b32 v6, 32, v5"); a("v_xor_b32 v7, 64, v5"); a("v_xor_b32 v8, 96, v5")
    a("v_bfe_u32 v19, v1, 2, 2")
    a("v_lshl_add_u32 v20, v17, 3, v19")
    a("v_lshlrev_b32 v9, 8, v20")
    a("v_bfe_u32 v20, v1, 4, 1"); a("v_lshlrev_b32 v20, 1, v20")
    a("v_bfe_u32 v21, v1, 1, 1"); a("v_add_u32 v20, v20, v21")
    a("s_lshl_b32 s%d, s%d, 3" % (sT0, sWC))
    a("v_add_u32 v20, s%d, v20" % sT0)
    a("v_lshlrev_b32 v21, 2, v19")
    a("v_xor_b32 v20, v20, v21")
    a("v_lshl_add_u32 v9, v20, 4, v9")
    a("v_and_b32 v21, 1, v1")
    a("v_lshl_add_u32 v9, v21, 3, v9")
    a("v_xor_b32 v0, 64, v9")
    a("v_and_b32 v11, 3, v1"); a("v_add_u32 v11, %d, v11" % (L_SYNC + Y_CNT))
    a("s_add_u32 s%d, s%d, %d" % (sT0, sWV, L_SYNC + Y_CNT)); a("v_mov_b32 v12, s%d" % sT0)
    a("v_add_u32 v13, %d, v15" % (L_SYNC + 128)); a("v_cmp_eq_u32 vcc, 0, v1"); a("v_cndmask_b32 v12, v13, v12, vcc")
    a("v_mov_b32 v10, %d" % (L_SYNC + Y_RDA))
    a("s_and_b32 s%d, s2, 7" % sT0); a("s_lshl_b32 s%d, s%d, 8" % (sT0, sT0)); a("s_add_u32 s%d, s%d, %d" % (sT0, sT0, WS_PF))
    a("v_and_b32 v15, 124, v15"); a("v_add_u32 v15, s%d, v15" % sT0)
    a("s_lshl_b32 s%d, s%d, 11" % (sT0, sR)); a("s_add_u32 s%d, s%d, %d" % (sT0, sT0, WS_RC))
    a("v_lshl_add_u32 v18, v16, 4, s%d" % sT0)
    a("s_lshl_b32 s%d, s%d, 9" % (sT0, sF)); a("s_lshl_b32 s%d, s%d, 8" % (sT1, sWC)); a("s_add_u32 s%d, s%d, s%d" % (sT0, sT0, sT1))
    a("s_add_u32 s%d, s%d, %d" % (sT0, sT0, WS_CS))
    a("v_lshl_add_u32 v19, v17, 4, s%d" % sT0)
    a("s_lshl_b32 s%d, s%d, 1" % (sT0, sR))
    a("s_add_u32 s%d, s%d, s%d" % (sT0, sT0, sWR))
    a("s_lshl_b32 s%d, s%d, 1" % (sT1, sF))
    a("s_add_u32 s%d, s%d, s%d" % (sT1, sT1, sWC))
    a("s_lshl_b32 s%d, s%d, 1" % (sT1, sT1))
    a("s_lshl_b32 s%d, s%d, 6" % (sT2, sT0)); a("s_add_u32 s%d, s%d, s%d" % (sT2, sT2, sT1)); a("s_lshl_b32 s%d, s%d, 3" % (sT2, sT2))
    a("s_add_u32 s%d, s%d, %d" % (sT2, sT2, WS_HF))
    a("v_mov_b32 v21, s%d" % sT2)
    a("s_mul_i32 s%d, s%d, 56" % (sT0, sT0))
    a("s_add_u32 s%d, s%d, s%d" % (sT0, sT0, sT1))
    a("s_lshl_b32 s%d, s%d, 12" % (sT0, sT0))
    a("v_and_b32 v20, 15, v1")
    a("v_lshlrev_b32 v20, 4, v20")
    a("v_bfe_u32 v22, v1, 4, 1")
    a("v_lshl_add_u32 v20, v22, 10, v20")
    a("v_lshl_add_u32 v20, v17, 8, v20")
    a("v_add_u32 v20, s%d, v20" % sT0)
    a("s_mov_b32 s%d, 0" % sLD)
    a = a_real
    while pend: emit(pend.pop(0))
    ACC = lambda ff, mat, tt: 128 + 64 * ff + 32 * mat + 16 * tt
    FR = [80, 104]
    RC = [24, 28]; CS0 = [32, 48]; CS1 = [80, 96]
    def rd_frags(st, kk):
        if "nords" in EXP: return []
        fb = FR[kk]
        slot = st % 4
        xo = L_X[(st >> 1) % 3] - 65536
        xa = 5 + 2 * (st & 1) + kk
        out = []
        def wr(ff, mat):
            return [("ds_read_b64_tr_b16 %s, v%d offset:%d" % (vr(fb + 8 + 8 * ff + 4 * mat + 2 * half, 2), (9, 0)[ff], L_W + slot * 16384 + mat * 8192 + kk * 4096 + half * 1024), ("fr", st, kk, ff, mat)) for half in range(2)]
        xr = lambda tt: [("ds_read_b128 %s, v%d offset:%d" % (vr(fb + 4 * tt, 4), xa, xo + tt * 4096), ("fx", st, kk, tt))]
        return [xr(0) + wr(0, 0), xr(1), wr(0, 1), wr(1, 0), wr(1, 1)]
    def mfmas(kk, first=False):
        fb = FR[kk]
        if "nomfma" in EXP: return ["s_nop 0"] * 8
        return ["v_mfma_f32_32x32x16_bf16 %s, %s, %s, %s" % (vr(ACC(ff, mat, tt), 16), vr(fb + 8 + 8 * ff + 4 * mat, 4), vr(fb + 4 * tt, 4), "0" if first else vr(ACC(ff, mat, tt), 16))
                for ff in range(2) for mat in range(2) for tt in range(2)]
    def inter(st, kk, groups):
        for i, m in enumerate(mfmas(kk, st == 0 and kk == 0)):
            ff, mat, tt = i >> 2, (i >> 1) & 1, i & 1
            if i == 1: a.wait_ds(("fx", st, kk, 1))
            a.wait_ds(("fr", st, kk, ff, mat))
            a(m)
            for sl, g in groups:
                if sl == i: emit(g)
    def arrive(v, off=0):
        a("v_mov_b32 v13, %d" % v)
        a.ds("ds_write_b8 v12, v13 offset:%d" % off, "sig")
    deferred = []
    def check(v, r=14, off=0):
        l = L("CK"); lo = L("CKO")
        if "nochk" in EXP and v < 14: return
        a("v_cmp_gt_u32 vcc, %d, v%d" % (v, r))
        a("s_cbranch_vccnz %s" % lo)
        a.label(l)
        def slow():
            a.label(lo)
            spin_lds(11, r, v, slp=0, off=off)
            a("s_nop 4")
            a("s_branch %s" % l)
        deferred.append(slow)
    def wait_stage(st):
        tags = [t for t in a.vmq if t in (("w", st), ("x", st >> 1))]
        if "novm" in EXP and st > 0: return
        if tags: a.wait_vm(tags[-1])
    def cs_loads(CS, ff):
        a("s_mov_b32 s%d, 7168" % sT0)
        for q in range(4):
            a("buffer_load_dwordx4 %s, v19, s[%d:%d], 0 offen offset:%d" % (vr(CS[0] + 4 * q, 4), SWS, SWS + 3, ff * 128 + q * 32))
            a("buffer_load_dwordx4 %s, v19, s[%d:%d], s%d offen offset:%d" % (vr(CS[1] + 4 * q, 4), SWS, SWS + 3, sT0, ff * 128 + q * 32))
    def const_loads():
        for tt in range(2):
            a("buffer_load_dwordx4 %s, v18, s[%d:%d], 0 offen offset:%d" % (vr(RC[tt], 4), SWS, SWS + 3, tt * 512))
        cs_loads(CS0, 0)
        a("s_mov_b32 s%d, 1" % sLD)
    def get_non():
        a.wait_ds("non")
        a("v_readfirstlane_b32 s%d, v22" % sNON); a("v_readfirstlane_b32 s%d, v23" % (sNON + 1))
    def pollA():
        a("buffer_load_dword v17, v15, s[%d:%d], 0 offen sc1" % (SWS, SWS + 3))
    def try_const():
        l = L("CL"); lo = L("CLO")
        a("s_waitcnt vmcnt(0)")
        a("v_cmp_ne_u32 vcc, s%d, v17" % sNON)
        a("s_cbranch_vccz %s" % lo)
        a.label(l)
        def slow():
            a.label(lo)
            a("s_cmp_eq_u32 s%d, 0" % (sNON + 1))
            a("s_cbranch_scc1 %s" % l)
            const_loads()
            a("s_branch %s" % l)
        deferred.append(slow)
    PA = int(os.environ.get("PA", "5"))
    RS = [int(c) for c in os.environ.get("RS", "01234")]
    if "su" in EXP: sf_("pre")
    wait_stage(0)
    if "su" in EXP: sf_("land0")
    arrive(1)
    spin_lds(11, 14, 1, slp=0)
    sf_("st0")
    for g in rd_frags(0, 0): emit(g)
    for st in range(NST):
        if st in (7,): sf_("st%d" % st)
        D = []
        if 1 <= st and st + 3 < NST:
            D = dma_w(st + 3)
            if st % 2 == 0 and st // 2 + 2 < 7: D = D + dma_x(st // 2 + 2)[:2]
            if st % 2 == 1 and st >= 3 and st // 2 + 2 < 7: D = D + dma_x(st // 2 + 2)[2:]
        DS = [(0, 4), (0, 6), (1, 1), (1, 3), (1, 5), (1, 7)]
        G = []
        if st + 1 < NST:
            G.append((0, [lambda st=st: wait_stage(st + 1), lambda st=st: arrive(st + 2)]))
        G += [(RS[i], g) for i, g in enumerate(rd_frags(st, 1))]
        if st == NST - 3: G.append((5, [("ds_read_b64 v[22:23], v10 offset:%d" % (Y_NON - Y_RDA), "non")]))
        if st == NST - 2: G.append((1, [get_non, pollA]))
        if st == NST - 1: G.append((4, [try_const]))
        if D: G.append((3, [lambda: a.wait_ds("pR"), lambda st=st: check(st, 16, Y_RD)]))
        G += [(DS[i][1], g) for i, g in enumerate(D) if DS[i][0] == 0]
        if st + 1 < NST: G.append((PA, [("ds_read_u8 v14, v11", "pA")]))
        inter(st, 0, G)
        G = []
        if st + 1 < NST:
            G.append((0, [lambda: a.wait_ds("pA"), lambda st=st: check(st + 2)]))
            G += [(RS[i], g) for i, g in enumerate(rd_frags(st + 1, 0))]
        G.append((6 if st + 1 == NST else 0, [lambda st=st: arrive(st + 1, Y_RD)]))
        G += [(DS[i][1], g) for i, g in enumerate(D) if DS[i][0] == 1]
        if st + 4 < NST: G.append((7, [("ds_read_u8 v16, v11 offset:%d" % Y_RD, "pR")]))
        inter(st, 1, G)
    a.dsq = []
    sf_("loopend")
    l = L("CL"); lo = L("CLO"); l1 = L("CLP"); l2 = L("CLP")
    a("s_cmp_eq_u32 s%d, 0" % sLD)
    a("s_cbranch_scc1 %s" % lo)
    a.label(l)
    def slow(l=l, lo=lo):
        a.label(lo)
        a("s_mov_b32 s%d, %d" % (sCNT, SPIN))
        a.label(l1)
        a("ds_read_b64 v[22:23], v10 offset:%d" % (Y_NON - Y_RDA))
        pollA()
        a("s_waitcnt vmcnt(0) lgkmcnt(0)")
        a("v_readfirstlane_b32 s%d, v22" % sNON); a("v_readfirstlane_b32 s%d, v23" % (sNON + 1))
        a("v_cmp_ne_u32 vcc, s%d, v17" % sNON)
        a("s_cmp_eq_u32 s%d, 0" % (sNON + 1))
        a("s_cselect_b64 s[%d:%d], -1, vcc" % (sT0, sT0 + 1))
        a("s_cmp_eq_u64 s[%d:%d], 0" % (sT0, sT0 + 1))
        a("s_cbranch_scc1 %s" % l2)
        a("s_sleep 2")
        a("s_sub_u32 s%d, s%d, 1" % (sCNT, sCNT)); a("s_cmp_lg_u32 s%d, 0" % sCNT)
        a("s_cbranch_scc1 %s" % l1)
        a.label(l2)
        const_loads()
        a("s_branch %s" % l)
    deferred.append(slow)
    cs_loads(CS1, 1)
    a("v_lshrrev_b32 v5, 3, v1")
    a("s_mul_i32 s%d, s%d, 448" % (sT0, sWV))
    a("v_add_u32 v5, s%d, v5" % sT0)
    a("v_mul_u32_u24 v5, 896, v5")
    a("s_lshl_b32 s%d, s%d, 7" % (sT0, sCT))
    a("v_add_u32 v5, s%d, v5" % sT0)
    a("v_and_b32 v6, 1, v1")
    a("v_lshl_add_u32 v5, v6, 4, v5")
    a("v_bfe_u32 v6, v1, 1, 2")
    a("v_bfe_u32 v7, v1, 4, 1")
    a("v_xor_b32 v6, v6, v7")
    a("v_xor_b32 v7, 2, v6")
    a("v_lshl_add_u32 v2, v6, 5, v5")
    a("v_lshl_add_u32 v3, v7, 5, v5")
    a("s_mul_i32 s%d, s%d, %d" % (sWB, sWV, W2R))
    a("ds_read_u8 v14, v11 offset:%d" % Y_RD)
    NW = 6
    J = lambda s: 2 * (s % 7) + s // 7
    def dma_wd(s):
        for q in range(4):
            a("s_mov_b32 s%d, %d" % (sOW, (J(s) * 32 + 8 * q) * 896))
            a("s_add_u32 m0, s%d, %d" % (sWB, (s % NW) * 4096 + q * 1024))
            a.vm("buffer_load_dwordx4 v%d, s[%d:%d], s%d offen lds" % (2 + (q & 1), SWD, SWD + 3, sOW), ("wd", s))
    a("s_waitcnt vmcnt(8) lgkmcnt(0)"); a.vmq = ["cs1"] * 8
    sf_("stats")
    check(14, 14, Y_RD)
    def flag(ff):
        a.wait_vm(("hst", ff))
        a("s_mov_b64 exec, 1")
        a.vm("buffer_store_dwordx2 v[22:23], v21, s[%d:%d], 0 offen offset:%d sc1" % (SWS, SWS + 3, ff * 8), "hfl")
        a("s_mov_b64 exec, -1")
    blk = 0
    for ff in range(2):
        CS = (CS0, CS1)[ff]
        if ff == 1: a.wait_vm("cs1")
        for tt in range(2):
            r0 = RC[tt]
            for qp in range(2):
                if blk < NW: dma_wd(blk)
                if blk == 6: flag(0)
                HP = 112 + 4 * (blk & 3); blk += 1
                for q2 in range(2):
                    q = 2 * qp + q2
                    seqs = []
                    for e in range(4):
                        g = ACC(ff, 0, tt) + 4 * q + e; u = ACC(ff, 1, tt) + 4 * q + e; T = 64 + 4 * q2 + e
                        seqs.append([
                        "v_fmac_f32 v%d, v%d, v%d" % (g, CS[0] + 4 * q + e, r0),
                        "v_mul_f32 v%d, v%d, v%d" % (T, g, g),
                        "v_fma_f32 v%d, v%d, v%d, v%d" % (T, T, r0 + 2, r0 + 1),
                        "v_mul_f32 v%d, v%d, v%d" % (T, T, g),
                        "v_exp_f32 v%d, v%d" % (T, T),
                        "v_fmac_f32 v%d, v%d, v%d" % (u, CS[1] + 4 * q + e, r0),
                        "v_fma_f32 v%d, v%d, v%d, v%d" % (T, T, r0 + 3, r0 + 3),
                        "v_rcp_f32 v%d, v%d" % (T, T),
                        "v_mul_f32 v%d, v%d, v%d" % (g, g, u),
                        "v_mul_f32 v%d, v%d, v%d" % (g, g, T),
                        ("v_cvt_pk_bf16_f32 v%d, v%d, v%d" % (HP + 2 * q2 + e // 2, g - 1, g)) if e & 1 else None])
                    for i in range(len(seqs[0])):
                        for sq in seqs:
                            if sq[i]: a(sq[i])
                a("v_permlane32_swap_b32 v%d, v%d" % (HP, HP + 2))
                a("v_permlane32_swap_b32 v%d, v%d" % (HP + 1, HP + 3))
                a("s_movk_i32 s%d, %d" % (sT0, ff * 4096))
                a.vm("buffer_store_dwordx4 %s, v20, s[%d:%d], s%d offen offset:%d sc1" % (vr(HP, 4), SWS, SWS + 3, sT0, tt * 2048 + qp * 512), ("hst", ff))
    sf_("gelu")
    A2 = lambda ct, tt: 32 + 16 * ct + 4 * tt
    NV = int(os.environ.get("NV", "4")); NH = 10 - NV
    WB = [96 + 16 * i for i in range(NV)]; HB = [96 + 16 * NV + 16 * i for i in range(NH)]
    a("v_and_b32 v16, 15, v1"); a("v_lshrrev_b32 v17, 4, v1")
    a("v_lshrrev_b32 v8, 2, v16")
    a("v_lshl_add_u32 v8, v17, 3, v8")
    a("v_lshlrev_b32 v8, 7, v8")
    a("v_and_b32 v9, 3, v16")
    a("v_lshl_add_u32 v8, v9, 3, v8")
    a("v_add_u32 v13, s%d, v8" % sWB)
    a("v_bfe_u32 v9, v16, 3, 1")
    a("v_and_b32 v14, 1, v17")
    a("v_lshl_add_u32 v9, v14, 1, v9")
    TRB = [4, 5, 6, 7]
    for ct in range(4):
        a("v_xor_b32 v14, %d, v9" % ct)
        a("v_lshl_add_u32 v%d, v14, 5, v13" % TRB[ct])
    def trw(s):
        for ct in range(4):
            for hf in range(2):
                a.ds("ds_read_b64_tr_b16 %s, v%d offset:%d" % (vr(WB[s % NV] + 4 * ct + 2 * hf, 2), TRB[ct], (s % NW) * 4096 + hf * 512), ("tw", s))
    a("s_mul_i32 s%d, s%d, 14" % (sT1, sWV))
    a("s_lshl_b32 s%d, s%d, 9" % (sT0, sRT2))
    a("s_add_u32 s%d, s%d, %d" % (sT0, sT0, WS_HF))
    a("v_lshl_add_u32 v8, v1, 3, s%d" % sT0)
    a("s_cmp_lg_u32 s%d, 0" % sWV)
    a("s_cselect_b32 s%d, 0, -1" % sPM); a("s_cselect_b32 s%d, 0, 0xffffff" % (sPM + 1))
    def hpoll(r=14, tag="hp"):
        a("s_mov_b64 exec, s[%d:%d]" % (sPM, sPM + 1))
        a.vm("buffer_load_dwordx2 v[%d:%d], v8, s[%d:%d], 0 offen sc1" % (r, r + 1, SWS, SWS + 3), tag)
        a("s_mov_b64 exec, -1")
    def heval(r, tag):
        l = L("HE"); lo = L("HEO")
        a.wait_vm(tag)
        a("v_cmp_ne_u64 vcc, s[%d:%d], v[%d:%d]" % (sNON, sNON + 1, r, r + 1))
        a("s_and_b64 vcc, vcc, s[%d:%d]" % (sPM, sPM + 1))
        a("s_cbranch_scc0 %s" % lo)
        a.label(l)
        def slow():
            a.label(lo)
            a("s_cmp_eq_u32 s%d, 0" % sPM)
            a("s_cbranch_scc1 %s" % l)
            a("s_mov_b64 s[%d:%d], 0" % (sPM, sPM + 1))
            a("v_mov_b32 v13, 2")
            a("s_mov_b64 exec, 1")
            a("ds_write_b8 v10, v13 offset:2")
            a("s_mov_b64 exec, -1")
            a("s_branch %s" % l)
        deferred.append(slow)
    hpoll()
    a.wait_vm(("hst", 1)) if False else None
    a.wait_vm(("wd", NW - 1))
    a.dsq = []
    for s in range(NV): trw(s)
    a("s_mul_i32 s%d, s%d, 56" % (sT0, sRT2))
    a("s_add_u32 s%d, s%d, s%d" % (sT0, sT0, sT1))
    a("s_lshl_b32 s%d, s%d, 12" % (sT0, sT0))
    a("v_lshl_add_u32 v9, v1, 4, s%d" % sT0)
    flag(1)
    sf_("flag1")
    a("s_waitcnt lgkmcnt(0)")
    a.dsq = []
    for s in range(NW, NW + NV): dma_wd(s)
    a("s_lshl_b32 s%d, s%d, 6" % (sT0, sRT2)); a("s_lshl_b32 s%d, s%d, 4" % (sT1, sWV)); a("s_add_u32 s%d, s%d, s%d" % (sT0, sT0, sT1))
    a("v_add_u32 v18, s%d, v16" % sT0)
    a("v_mul_u32_u24 v18, 896, v18")
    a("v_lshl_add_u32 v18, v17, 4, v18")
    a("s_lshl_b32 s%d, s%d, 7" % (sT0, sCT))
    a("v_add_u32 v18, s%d, v18" % sT0)
    a("v_xor_b32 v13, v17, v16")
    a("v_lshlrev_b32 v19, 8, v16"); a("v_lshl_add_u32 v19, v13, 4, v19")
    a("v_add_u32 v19, s%d, v19" % sWB)
    a("v_xor_b32 v20, 64, v19"); a("v_xor_b32 v21, 128, v19"); a("v_xor_b32 v22, 192, v19")
    def hwait(ph):
        l = L("HP"); lo = L("HPO"); l1 = L("HPL"); l2 = L("HPW"); l3 = L("HPS")
        a.wait_vm("hp")
        a("s_cmp_lg_u32 s%d, 0" % sPM)
        a("s_cbranch_scc1 %s" % lo)
        a.label(l)
        a("ds_read_u8 v13, v10 offset:2")
        a("s_waitcnt lgkmcnt(0)")
        a("v_cmp_gt_u32 vcc, %d, v13" % (ph + 1))
        a("s_cbranch_vccnz %s" % l3)
        a.label(l2)
        def slow():
            a.label(l3)
            spin_lds(10, 13, ph + 1, slp=1, off=2)
            a("s_branch %s" % l2)
            a.label(lo)
            a("s_mov_b32 s%d, %d" % (sT3, SPIN))
            a.label(l1)
            a("v_cmp_ne_u64 vcc, s[%d:%d], v[14:15]" % (sNON, sNON + 1))
            a("s_and_b64 vcc, vcc, s[%d:%d]" % (sPM, sPM + 1))
            a("v_mov_b32 v13, 2")
            lp = L("HPP")
            a("s_cbranch_scc0 %s" % lp)
            if ph == 0:
                a("v_mov_b32 v13, 1")
                a("s_and_b32 s%d, vcc_lo, 0x55555555" % sT0); a("s_and_b32 s%d, vcc_hi, 0x55555555" % sT1)
                a("s_or_b32 s%d, s%d, s%d" % (sT0, sT0, sT1))
                a("s_cbranch_scc0 %s" % (lp + "b"))
            a("s_sleep %d" % int(os.environ.get("HSL", "3")))
            a("s_mov_b64 exec, s[%d:%d]" % (sPM, sPM + 1))
            a("buffer_load_dwordx2 v[14:15], v8, s[%d:%d], 0 offen sc1" % (SWS, SWS + 3))
            a("s_mov_b64 exec, -1")
            a("s_waitcnt vmcnt(0)")
            a("s_sub_u32 s%d, s%d, 1" % (sT3, sT3)); a("s_cmp_lg_u32 s%d, 0" % sT3)
            a("s_cbranch_scc1 %s" % l1)
            a.label(lp)
            a("s_mov_b64 s[%d:%d], 0" % (sPM, sPM + 1))
            a.label(lp + "b")
            a("s_mov_b64 exec, 1")
            a("ds_write_b8 v10, v13 offset:2")
            a("s_mov_b64 exec, -1")
            a("s_branch %s" % l2)
        deferred.append(slow)
    hwait(0)
    sf_("hpoll")
    def ld_h(s):
        a("s_mov_b32 s%d, %d" % (sOX, WS_H + J(s) * 4096))
        for tt in range(4):
            a.vm("buffer_load_dwordx4 %s, v9, s[%d:%d], s%d offen offset:%d" % (vr(HB[s % NH] + 4 * tt, 4), SWS, SWS + 3, sOX, tt * 1024), ("h", s, tt))
    for s in range(NH): ld_h(s)
    for s in range(14):
        a.wait_ds(("tw", s))
        for tt in range(4):
            a.wait_vm(("h", s, tt))
            for ct in range(4):
                a("v_mfma_f32_16x16x32_bf16 %s, %s, %s, %s" % (vr(A2(ct, tt), 4), vr(WB[s % NV] + 4 * ct, 4), vr(HB[s % NH] + 4 * tt, 4), "0" if s == 0 else vr(A2(ct, tt), 4)))
        HW2 = int(os.environ.get("HW2", "5"))
        PR = [24, 26, 28]
        if 2 <= s < HW2: heval(PR[(s - 2) % 3], ("hq", s - 2))
        if s < HW2 - 2: hpoll(PR[s % 3], ("hq", s))
        if s == HW2 - 2: hpoll()
        if s == HW2:
            hwait(1); sf_("hpoll2")
            for s2 in range(7, s + NH): ld_h(s2)
        if s + NH < 14 and (s + NH < 7 or s >= HW2): ld_h(s + NH)
        if s == 10:
            a.vm("buffer_load_dwordx4 v[24:27], v18, s[%d:%d], 0 offen" % (SX, SX + 3), "x")
            a.vm("buffer_load_dwordx4 v[28:31], v18, s[%d:%d], 0 offen offset:64" % (SX, SX + 3), "x")
        if s >= 1 and s - 1 + NV + NW < 14:
            a.wait_ds(("tw", s - 1 + NV))
            dma_wd(s - 1 + NV + NW)
        if s + NV < 14:
            a.wait_vm(("wd", s + NV))
            trw(s + NV)
    sf_("f2end")
    for tt in range(4):
        for ct in range(4):
            a("ds_write_b128 v%d, %s offset:%d" % (19 + ct, vr(A2(ct, tt), 4), tt * 4096))
    a("v_lshlrev_b32 v14, 1, v17"); a("v_xor_b32 v14, v14, v16")
    a("v_lshlrev_b32 v4, 8, v16"); a("v_lshl_add_u32 v4, v14, 4, v4")
    a("s_lshl_b32 s%d, s%d, 12" % (sT0, sWV))
    a("v_add_u32 v4, s%d, v4" % sT0)
    a("v_xor_b32 v5, 16, v4"); a("v_xor_b32 v6, 128, v4"); a("v_xor_b32 v7, 144, v4")
    a("v_add_u32 v0, %d, v4" % (2 * W2R)); a("v_add_u32 v2, %d, v5" % (2 * W2R)); a("v_add_u32 v3, %d, v6" % (2 * W2R)); a("v_add_u32 v8, %d, v7" % (2 * W2R))
    a("v_lshrrev_b32 v14, 1, v17")
    a("v_mul_u32_u24 v14, %d, v14" % STG_W)
    a("v_and_b32 v15, 1, v17"); a("v_lshlrev_b32 v15, 3, v15"); a("v_lshrrev_b32 v13, 2, v16"); a("v_add_u32 v15, v15, v13")
    a("v_lshl_add_u32 v14, v15, 7, v14")
    a("v_and_b32 v15, 3, v16"); a("v_lshl_add_u32 v14, v15, 3, v14")
    a("s_lshl_b32 s%d, s%d, 5" % (sT2, sWV)); a("s_add_u32 s%d, s%d, %d" % (sT2, sT2, L_STG))
    a("v_add_u32 v14, s%d, v14" % sT2)
    a("s_waitcnt lgkmcnt(0)")
    arrive(17)
    spin_lds(11, 15, 1, slp=1, off=Y_YA)
    sf_("ya")
    for hc in range(2):
        for hf in range(2):
            a("ds_read_b64_tr_b16 %s, v14 offset:%d" % (vr(96 + 4 * hc + 2 * hf, 2), hc * 2 * STG_W + hf * 512))
    a.wait_vm("x")
    a("s_waitcnt lgkmcnt(0)")
    for w in range(8):
        xw = 24 + w; yw = 96 + w; o = 104 + 2 * w
        a("v_lshlrev_b32 v%d, 16, v%d" % (o, xw)); a("v_and_b32 v%d, 0xffff0000, v%d" % (o + 1, xw))
        a("v_lshlrev_b32 v120, 16, v%d" % yw); a("v_and_b32 v121, 0xffff0000, v%d" % yw)
        a("v_add_f32 v%d, v%d, v120" % (o, o)); a("v_add_f32 v%d, v%d, v121" % (o + 1, o + 1))
        a("v_cvt_pk_bf16_f32 v%d, v%d, v%d" % (o, o, o + 1))
        a("v_and_b32 v%d, 0xffff0000, v%d" % (o + 1, o)); a("v_lshlrev_b32 v%d, 16, v%d" % (o, o))
    spin_lds(11, 15, 17, slp=0)
    for s in range(4):
        for c in range(4):
            ad = ((4, 5, 6, 7), (0, 2, 3, 8))[s >> 1][c]
            a("ds_read_b128 %s, v%d offset:%d" % (vr(128 + 16 * s + 4 * c, 4), ad, (s & 1) * W2R))
    for hc in range(2):
        a("s_waitcnt lgkmcnt(%d)" % (2 - 2 * hc))
        for e in range(8):
            b = 128 + 8 * hc + e
            a("v_add_f32 v%d, v%d, v%d" % (b, b, b + 16)); a("v_add_f32 v%d, v%d, v%d" % (b + 32, b + 32, b + 48))
            a("v_add_f32 v%d, v%d, v%d" % (b, b, b + 32))
        for w in range(4):
            b = 128 + 8 * hc + 2 * w; o = 104 + 8 * hc + 2 * w
            a("v_cvt_pk_bf16_f32 v120, v%d, v%d" % (b, b + 1))
            a("v_and_b32 v121, 0xffff0000, v120"); a("v_lshlrev_b32 v120, 16, v120")
            a("v_add_f32 v120, v120, v%d" % o); a("v_add_f32 v121, v121, v%d" % (o + 1))
            a("v_cvt_pk_bf16_f32 v%d, v120, v121" % (192 + 4 * hc + w))
        a("buffer_store_dwordx4 %s, v18, s[%d:%d], 0 offen offset:%d" % (vr(192 + 4 * hc, 4), SOUT, SOUT + 3, hc * 64) + os.environ.get("OUTM", ""))
    sf_("end")
    if "span" in EXP:
        srd(a, SDBG, 12, 256)
        a("s_waitcnt vmcnt(0)")
        a("s_memrealtime s[100:101]"); a("s_waitcnt lgkmcnt(0)")
        a("s_sub_u32 s100, s100, s%d" % sNON)
        a("v_mov_b32 v150, s100"); a("v_mov_b32 v151, 0")
        a("s_cmp_lg_u32 s%d, 0" % sWV); a("s_cselect_b32 exec_lo, 0, 1"); a("s_mov_b32 exec_hi, 0")
        a("buffer_atomic_umax v150, v151, s[%d:%d], 0 offen sc1" % (SDBG, SDBG + 3))
        a("s_lshl_b32 s100, s2, 2"); a("s_add_u32 s100, s100, %d" % WS_DBG); a("v_mov_b32 v151, s100")
        a("buffer_store_dword v150, v151, s[%d:%d], 0 offen sc1" % (SWS, SWS + 3))
        a("s_mov_b64 exec, -1")
    sf_.store(150)
    a("s_endpgm")
    for f in deferred: f()

    import gen4h as gen3h
    gen3h.helper(a, sh_, L, spin_lds)
    gen3h.producer(a, sp_, L)
    a.label("K_END")
    a("s_endpgm")
    if STAMP: print("ffn", sf_.names, "\nhelp", sh_.names, "\nprod", sp_.names)
    return a.finalize()

def wrap(kernels):
    out = []
    for name, grid, block, lds, body, nv in kernels:
        if len(kernels) > 1: out.append("; @launch kernel=%s grid=(%d,1,1) block=(%d,1,1) lds=%d" % (name, grid, block, lds))
        else: out.append("; @launch grid=(%d,1,1) block=(%d,1,1) lds=%d" % (grid, block, lds))
    out.append('.amdgcn_target "amdgcn-amd-amdhsa--gfx950"')
    out.append(".text")
    for name, grid, block, lds, body, nv in kernels:
        out += [".globl %s" % name, ".p2align 8", ".type %s,@function" % name, "%s:" % name, body]
    out.append('.section .rodata,"a"')
    for name, grid, block, lds, body, nv in kernels:
        out += [".p2align 6", ".amdhsa_kernel %s" % name,
                "  .amdhsa_next_free_vgpr %d" % nv, "  .amdhsa_next_free_sgpr 102", "  .amdhsa_accum_offset %d" % ((nv + 3) // 4 * 4),
                "  .amdhsa_group_segment_fixed_size 0", "  .amdhsa_kernarg_size 128", "  .amdhsa_user_sgpr_count 2",
                "  .amdhsa_user_sgpr_kernarg_segment_ptr 1", "  .amdhsa_system_sgpr_workgroup_id_x 1", ".end_amdhsa_kernel"]
    return "\n".join(out) + "\n"

if __name__ == "__main__":
    sys.modules["gen4"] = sys.modules["__main__"]
    NAME = "parallel_sum__ssm_conv_s4__glu_gated_geglu__prompt_kernel"
    ks = [(NAME, 256, 512, LDS, gen(), 256)]
    if "delay" in EXP:
        b = Asm()
        b("s_cmp_ge_u32 s2, 1"); b("s_cbranch_scc1 K3_END")
        b("s_load_dwordx4 s[4:7], s[0:1], 112"); b("s_waitcnt lgkmcnt(0)")
        srd(b, 8, 6, WS_SIZE); srd(b, 12, 4, 256)
        b("v_lshlrev_b32 v1, 2, v0"); b("v_mov_b32 v10, 0")
        for i in range(4):
            b("s_mov_b32 s22, %d" % (WS_DBG + 128 + i * 256 - (32 if i == 3 else 0) * 4))
            b("buffer_load_dword v4, v1, s[8:11], s22 offen sc1"); b("s_waitcnt vmcnt(0)"); b("v_max_u32 v10, v10, v4")
        b("v_readlane_b32 s30, v10, 0")
        for l in range(1, 64):
            b("v_readlane_b32 s22, v10, %d" % l); b("s_max_u32 s30, s30, s22")
        b("s_mov_b64 exec, 1"); b("v_mov_b32 v1, 0"); b("v_mov_b32 v2, s30")
        b("buffer_store_dword v2, v1, s[12:15], 0 offen"); b("s_waitcnt vmcnt(0)")
        b("s_min_u32 s30, s30, 20000"); b("s_mul_i32 s30, s30, %d" % int(os.environ.get("DM", "4")))
        b("s_memrealtime s[24:25]"); b("s_waitcnt lgkmcnt(0)")
        b.label("K3_L")
        b("s_memrealtime s[26:27]"); b("s_waitcnt lgkmcnt(0)"); b("s_sub_u32 s28, s26, s24"); b("s_cmp_lt_u32 s28, s30"); b("s_cbranch_scc1 K3_L")
        b.label("K3_END"); b("s_endpgm")
        ks = [("k1_kernel",) + ks[0][1:], ("k3_kernel", 1, 64, 0, b.finalize(), 64)]
    open(sys.argv[1] if len(sys.argv) > 1 else "k.s", "w").write(wrap(ks))
```

```python
import math, os, sys, struct
from asmlib import Asm
def fbits(x): return "0x%08x" % struct.unpack("<I", struct.pack("<f", x))[0]
LOG2E = math.log2(math.e)
def vr(b, n=1): return "v%d" % b if n == 1 else "v[%d:%d]" % (b, b + n - 1)
EXP = os.environ.get('EXP', '')
STAMP = int(os.environ.get("STAMP", "0"))
RT = os.environ.get("RT", "")
MAPB = int(os.environ.get("MAPB", "0"))
WS_H = 0; WS_XNT = 8 << 20; WS_KREV = 12 << 20; WS_KSC = 16 << 20
WS_HF = 17 << 20
WS_CF = 18 << 20
WS_PF = (18 << 20) + 65536
WS_RC = 19 << 20; WS_CS = (19 << 20) + 65536
WS_YAT = 20 << 20; WS_DBG = 24 << 20; WS_SIZE = 32 << 20
KSTRIDE = 4160
SPIN = 0x8000

def srd(a, d, p, nbytes):
    a("s_mov_b32 s%d, s%d" % (d, p))
    a("s_and_b32 s%d, s%d, 0xffff" % (d + 1, p + 1))
    a("s_mov_b32 s%d, 0x%x" % (d + 2, nbytes))
    a("s_mov_b32 s%d, 0x00020000" % (d + 3))

SX, SWG, SWU, SWS, SWD, SOUT, SDBG = 40, 44, 48, 52, 56, 60, 64
sWV, sR, sF, sWR, sWC, sRT2, sCT = 68, 69, 70, 71, 72, 73, 74
sLD = 75
sT0, sT1, sT2, sT3 = 76, 77, 78, 79
sOX, sOW, sWB, sCNT = 80, 81, 82, 83
sNON = 84
sPM = 86
sCH, sHF, sKW, sSC, sINV = 3, 4, 5, 6, 7
sONES, sCVB, sSTG = 38, 39, 36
STB = 88

class Stamps:
    def __init__(self, a, base=None):
        self.a = a; self.n = base.n if base else 0; self.names = list(base.names) if base else []
    def __call__(self, name):
        if not STAMP: return
        if RT == "1" and name not in ("start", "end"): return
        if "su" in EXP and self.n >= 11 and name != "end": return
        assert self.n < 12, name
        self.a("%s s[100:101]" % ("s_memrealtime" if RT else "s_memtime"))
        self.a("s_waitcnt lgkmcnt(0)")
        self.a("s_mov_b32 s%d, s100" % (STB + self.n))
        self.n += 1; self.names.append(name)
    def store(self, vt):
        if not STAMP: return
        a = self.a
        a("s_lshl_b32 s100, s2, 4"); a("s_add_u32 s100, s100, s%d" % sWV); a("s_lshl_b32 s100, s100, 6")
        a("s_add_u32 s100, s100, %d" % WS_DBG)
        a("s_mov_b64 exec, 1")
        a("v_mov_b32 v%d, s100" % vt)
        for i in range(self.n):
            a("v_mov_b32 v%d, s%d" % (vt + 1, STB + i))
            a("buffer_store_dword v%d, v%d, s[%d:%d], 0 offen offset:%d" % (vt + 1, vt, SWS, SWS + 3, 4 * i))
            a("s_waitcnt vmcnt(0)")
        a("s_mov_b64 exec, -1")

L_W = 0
L_X = [65536, 98304 + 17408, 81920]
RING = 98304
STG_W = 4352; L_STG = RING
L_CV = RING + 4 * STG_W
CPS = 4160; O_U = 4 * CPS; CV_CH = O_U + 4608
L_SYNC = L_CV + 2 * CV_CH
LDS = L_SYNC + 128 + 384
assert L_X[1] == L_CV and LDS <= 163840
Y_CNT = 0; Y_RDA = 8; Y_RDB = 9; Y_NON = 16; Y_KX = 24; Y_C0 = 28; Y_BL = 32; Y_CX = 36; Y_XR = 40; Y_YA = 44; Y_KEXP = 48; Y_RD = 64
W2R = 24576
L_EXTRA = L_CV

def gen():
    a = Asm()
    lab = [0]
    def L(p): lab[0] += 1; return "%s_%d" % (p, lab[0])
    st_ = Stamps(a)
    def spin_lds(addr, tmp, need, width="u8", slp=1, off=0):
        l1, l2 = L("SP"), L("SD")
        a("s_mov_b32 s%d, %d" % (sCNT, SPIN))
        a.label(l1)
        a("ds_read_%s v%d, v%d offset:%d" % (width, tmp, addr, off))
        a("s_waitcnt lgkmcnt(0)")
        a("v_cmp_gt_u32 vcc, %d, v%d" % (need, tmp))
        a("s_cbranch_vccz %s" % l2)
        if slp: a("s_sleep %d" % slp)
        a("s_sub_u32 s%d, s%d, 1" % (sCNT, sCNT))
        a("s_cmp_lg_u32 s%d, 0" % sCNT)
        a("s_cbranch_scc1 %s" % l1)
        a.label(l2)

    a("s_cmp_ge_u32 s2, 256")
    a("s_cbranch_scc1 K_END")
    st_("start")
    a("v_lshrrev_b32 v1, 6, v0")
    a("v_readfirstlane_b32 s%d, v1" % sWV)
    a("v_and_b32 v1, 63, v0")
    a("s_cmp_lg_u32 s%d, 7" % sWV)
    a("s_cbranch_scc1 K_NZ")
    a.begin_opt()
    a("v_lshlrev_b32 v2, 2, v1"); a("v_add_u32 v2, %d, v2" % L_SYNC); a("v_mov_b32 v3, 0")
    a("ds_write_b32 v2, v3")
    a("s_waitcnt lgkmcnt(0)")
    a.end_opt()
    a.label("K_NZ")
    a("s_load_dwordx16 s[16:31], s[0:1], 0")
    a("s_load_dwordx4 s[32:35], s[0:1], 80")
    a("s_load_dwordx8 s[8:15], s[0:1], 96")
    a("s_cmp_lt_u32 s2, 32")
    a("s_cbranch_scc1 K_PROD")
    a("s_barrier")
    a("s_and_b32 s%d, s2, 7" % sT0)
    a("s_lshr_b32 s%d, s2, 3" % sT1)
    a("s_sub_u32 s%d, s%d, 4" % (sT1, sT1))
    if MAPB:
        a("s_and_b32 s%d, s%d, 1" % (sT3, sT1))
        a("s_lshl_b32 s%d, s%d, 1" % (sR, sT0)); a("s_add_u32 s%d, s%d, s%d" % (sR, sR, sT3))
        a("s_lshr_b32 s%d, s%d, 1" % (sF, sT1))
    else:
        a("s_lshr_b32 s%d, s%d, 1" % (sT2, sT0)); a("s_lshl_b32 s%d, s%d, 2" % (sT2, sT2))
        a("s_and_b32 s%d, s%d, 3" % (sT3, sT1)); a("s_add_u32 s%d, s%d, s%d" % (sR, sT2, sT3))
        a("s_and_b32 s%d, s%d, 1" % (sT2, sT0)); a("s_mul_i32 s%d, s%d, 7" % (sT2, sT2))
        a("s_lshr_b32 s%d, s%d, 2" % (sT3, sT1)); a("s_add_u32 s%d, s%d, s%d" % (sF, sT2, sT3))
    a("s_and_b32 s%d, s%d, 3" % (sT3, sT1))
    a("s_lshl_b32 s%d, s%d, 2" % (sRT2, sT0)); a("s_add_u32 s%d, s%d, s%d" % (sRT2, sRT2, sT3))
    a("s_lshr_b32 s%d, s%d, 2" % (sCT, sT1))
    a("s_cmp_ge_u32 s%d, 4" % sWV)
    a("s_cbranch_scc1 K_HELP")
    sf_ = Stamps(a, st_); sh_ = Stamps(a, st_); sp_ = Stamps(a, st_)
    NST = 14
    FPRIO = int(os.environ.get("FPRIO", "2"))
    a("s_setprio %d" % FPRIO)
    a("s_and_b32 s%d, s%d, 1" % (sWR, sWV))
    a("s_lshr_b32 s%d, s%d, 1" % (sWC, sWV))
    a("s_lshl_b32 s%d, s%d, 11" % (sWB, sWV))
    a("s_lshl_b32 s%d, s%d, 12" % (sOX, sWV))
    a("v_lshrrev_b32 v2, 3, v1")
    a("s_lshl_b32 s%d, s%d, 7" % (sT0, sR))
    a("s_lshl_b32 s%d, s%d, 5" % (sT1, sWV))
    a("s_add_u32 s%d, s%d, s%d" % (sT0, sT0, sT1))
    a("v_add_u32 v2, s%d, v2" % sT0)
    a("v_mul_u32_u24 v2, 896, v2")
    a("v_lshrrev_b32 v5, 4, v1")
    a("v_xor_b32 v6, v1, v5")
    a("v_and_b32 v6, 7, v6")
    a("v_xor_b32 v7, 4, v6")
    a("v_lshl_add_u32 v3, v7, 4, v2")
    a("v_add_u32 v3, %d, v3" % (8 * 896))
    a("v_lshl_add_u32 v2, v6, 4, v2")
    a("s_lshl_b32 s%d, s%d, 3" % (sT0, sWV))
    a("v_add_u32 v4, s%d, v5" % sT0)
    a("s_movk_i32 s%d, 3584" % sT1)
    a("v_mul_lo_u32 v4, v4, s%d" % sT1)
    a("v_lshlrev_b32 v6, 2, v5")
    a("v_xor_b32 v6, v1, v6")
    a("v_and_b32 v6, 15, v6")
    a("v_lshl_add_u32 v4, v6, 4, v4")
    a("s_lshl_b32 s%d, s%d, 8" % (sT0, sF))
    a("v_add_u32 v4, s%d, v4" % sT0)
    a("s_waitcnt lgkmcnt(0)")
    if "su" in EXP: sf_("karg")
    srd(a, SX, 16, 2048 * 896)
    srd(a, SWG, 32, 448 * 3584)
    srd(a, SWU, 34, 448 * 3584)
    def dma_x(b):
        out = []
        if "nodma" in EXP and b > 2: return out
        for i in range(4):
            out.append(["s_add_u32 m0, s%d, %d" % (sOX, L_X[b % 3] + i * 1024),
                        "s_movk_i32 s%d, %d" % (sOW, b * 128 + (i >> 1) * 16 * 896),
                        ("buffer_load_dwordx4 v%d, s[%d:%d], s%d offen lds" % (2 + (i & 1), SX, SX + 3, sOW), ("x", b))])
        return out
    def dma_w(st):
        out = []
        if "nodma" in EXP and st > 3: return out
        slot = st % 4
        for i in range(2):
            for mat in range(2):
                S = (SWG, SWU)[mat]
                g = []
                g.append("s_mov_b32 s%d, %d" % (sOW, (st * 32 + 4 * i) * 3584))
                g.append("s_add_u32 m0, s%d, %d" % (sWB, L_W + slot * 16384 + mat * 8192 + i * 1024))
                g.append(("buffer_load_dwordx4 v4, s[%d:%d], s%d offen lds" % (S, S + 3, sOW), ("w", st)))
                out.append(g)
        return out
    def emit(g, a=a):
        for x in g:
            if callable(x): x()
            elif isinstance(x, tuple) and x[0].startswith("ds_"): a.ds(x[0], x[1])
            elif isinstance(x, tuple): a.vm(x[0], x[1])
            else: a(x)
    for g in dma_x(0) + dma_w(0): emit(g)
    if "su" in EXP: sf_("dma0")
    pend = dma_w(1) + dma_x(1) + dma_w(2) + dma_w(3) + dma_x(2)
    a_real = a
    class IL:
        def __init__(s_): s_.n = 0
        def __call__(s_, t):
            a_real(t); s_.n += 1
            if s_.n % 4 == 0 and pend: emit(pend.pop(0))
    a = IL()
    srd(a, SWS, 14, WS_SIZE)
    srd(a, SWD, 8, 1792 * 896)
    srd(a, SOUT, 10, 2048 * 896)
    a("v_lshlrev_b32 v15, 2, v1")
    a("v_and_b32 v16, 31, v1")
    a("s_lshl_b32 s%d, s%d, 6" % (sT0, sWR))
    a("v_add_u32 v16, s%d, v16" % sT0)
    a("v_lshrrev_b32 v17, 5, v1")
    a("v_bfe_u32 v18, v1, 1, 3")
    a("v_xor_b32 v18, v17, v18")
    a("v_lshlrev_b32 v5, 7, v16")
    a("v_lshl_add_u32 v5, v18, 4, v5")
    a("v_add_u32 v5, 65536, v5")
    a("v_xor_b32 v6, 32, v5"); a("v_xor_b32 v7, 64, v5"); a("v_xor_b32 v8, 96, v5")
    a("v_bfe_u32 v19, v1, 2, 2")
    a("v_lshl_add_u32 v20, v17, 3, v19")
    a("v_lshlrev_b32 v9, 8, v20")
    a("v_bfe_u32 v20, v1, 4, 1"); a("v_lshlrev_b32 v20, 1, v20")
    a("v_bfe_u32 v21, v1, 1, 1"); a("v_add_u32 v20, v20, v21")
    a("s_lshl_b32 s%d, s%d, 3" % (sT0, sWC))
    a("v_add_u32 v20, s%d, v20" % sT0)
    a("v_lshlrev_b32 v21, 2, v19")
    a("v_xor_b32 v20, v20, v21")
    a("v_lshl_add_u32 v9, v20, 4, v9")
    a("v_and_b32 v21, 1, v1")
    a("v_lshl_add_u32 v9, v21, 3, v9")
    a("v_xor_b32 v0, 64, v9")
    a("v_and_b32 v11, 3, v1"); a("v_add_u32 v11, %d, v11" % (L_SYNC + Y_CNT))
    a("s_add_u32 s%d, s%d, %d" % (sT0, sWV, L_SYNC + Y_CNT)); a("v_mov_b32 v12, s%d" % sT0)
    a("v_add_u32 v13, %d, v15" % (L_SYNC + 128)); a("v_cmp_eq_u32 vcc, 0, v1"); a("v_cndmask_b32 v12, v13, v12, vcc")
    a("v_mov_b32 v10, %d" % (L_SYNC + Y_RDA))
    a("s_and_b32 s%d, s2, 7" % sT0); a("s_lshl_b32 s%d, s%d, 8" % (sT0, sT0)); a("s_add_u32 s%d, s%d, %d" % (sT0, sT0, WS_PF))
    a("v_and_b32 v15, 124, v15"); a("v_add_u32 v15, s%d, v15" % sT0)
    a("s_lshl_b32 s%d, s%d, 11" % (sT0, sR)); a("s_add_u32 s%d, s%d, %d" % (sT0, sT0, WS_RC))
    a("v_lshl_add_u32 v18, v16, 4, s%d" % sT0)
    a("s_lshl_b32 s%d, s%d, 9" % (sT0, sF)); a("s_lshl_b32 s%d, s%d, 8" % (sT1, sWC)); a("s_add_u32 s%d, s%d, s%d" % (sT0, sT0, sT1))
    a("s_add_u32 s%d, s%d, %d" % (sT0, sT0, WS_CS))
    a("v_lshl_add_u32 v19, v17, 4, s%d" % sT0)
    a("s_lshl_b32 s%d, s%d, 1" % (sT0, sR))
    a("s_add_u32 s%d, s%d, s%d" % (sT0, sT0, sWR))
    a("s_lshl_b32 s%d, s%d, 1" % (sT1, sF))
    a("s_add_u32 s%d, s%d, s%d" % (sT1, sT1, sWC))
    a("s_lshl_b32 s%d, s%d, 1" % (sT1, sT1))
    a("s_lshl_b32 s%d, s%d, 6" % (sT2, sT0)); a("s_add_u32 s%d, s%d, s%d" % (sT2, sT2, sT1)); a("s_lshl_b32 s%d, s%d, 3" % (sT2, sT2))
    a("s_add_u32 s%d, s%d, %d" % (sT2, sT2, WS_HF))
    a("v_mov_b32 v21, s%d" % sT2)
    a("s_mul_i32 s%d, s%d, 56" % (sT0, sT0))
    a("s_add_u32 s%d, s%d, s%d" % (sT0, sT0, sT1))
    a("s_lshl_b32 s%d, s%d, 12" % (sT0, sT0))
    a("v_and_b32 v20, 15, v1")
    a("v_lshlrev_b32 v20, 4, v20")
    a("v_bfe_u32 v22, v1, 4, 1")
    a("v_lshl_add_u32 v20, v22, 10, v20")
    a("v_lshl_add_u32 v20, v17, 8, v20")
    a("v_add_u32 v20, s%d, v20" % sT0)
    a("s_mov_b32 s%d, 0" % sLD)
    a = a_real
    while pend: emit(pend.pop(0))
    ACC = lambda ff, mat, tt: 128 + 64 * ff + 32 * mat + 16 * tt
    FR = [80, 104]
    RC = [24, 28]; CS0 = [32, 48]; CS1 = [80, 96]
    def rd_frags(st, kk):
        if "nords" in EXP: return []
        fb = FR[kk]
        slot = st % 4
        xo = L_X[(st >> 1) % 3] - 65536
        xa = 5 + 2 * (st & 1) + kk
        out = []
        def wr(ff, mat):
            return [("ds_read_b64_tr_b16 %s, v%d offset:%d" % (vr(fb + 8 + 8 * ff + 4 * mat + 2 * half, 2), (9, 0)[ff], L_W + slot * 16384 + mat * 8192 + kk * 4096 + half * 1024), ("fr", st, kk, ff, mat)) for half in range(2)]
        xr = lambda tt: [("ds_read_b128 %s, v%d offset:%d" % (vr(fb + 4 * tt, 4), xa, xo + tt * 4096), ("fx", st, kk, tt))]
        return [xr(0) + wr(0, 0), xr(1), wr(0, 1), wr(1, 0), wr(1, 1)]
    def mfmas(kk, first=False):
        fb = FR[kk]
        if "nomfma" in EXP: return ["s_nop 0"] * 8
        return ["v_mfma_f32_32x32x16_bf16 %s, %s, %s, %s" % (vr(ACC(ff, mat, tt), 16), vr(fb + 8 + 8 * ff + 4 * mat, 4), vr(fb + 4 * tt, 4), "0" if first else vr(ACC(ff, mat, tt), 16))
                for ff in range(2) for mat in range(2) for tt in range(2)]
    def inter(st, kk, groups):
        for i, m in enumerate(mfmas(kk, st == 0 and kk == 0)):
            ff, mat, tt = i >> 2, (i >> 1) & 1, i & 1
            if i == 1: a.wait_ds(("fx", st, kk, 1))
            a.wait_ds(("fr", st, kk, ff, mat))
            a(m)
            for sl, g in groups:
                if sl == i: emit(g)
    def arrive(v, off=0):
        a("v_mov_b32 v13, %d" % v)
        a.ds("ds_write_b8 v12, v13 offset:%d" % off, "sig")
    deferred = []
    def check(v, r=14, off=0):
        l = L("CK"); lo = L("CKO")
        if "nochk" in EXP and v < 14: return
        a("v_cmp_gt_u32 vcc, %d, v%d" % (v, r))
        a("s_cbranch_vccnz %s" % lo)
        a.label(l)
        def slow():
            a.label(lo)
            spin_lds(11, r, v, slp=0, off=off)
            a("s_nop 4")
            a("s_branch %s" % l)
        deferred.append(slow)
    def wait_stage(st):
        tags = [t for t in a.vmq if t in (("w", st), ("x", st >> 1))]
        if "novm" in EXP and st > 0: return
        if tags: a.wait_vm(tags[-1])
    def cs_loads(CS, ff):
        a("s_mov_b32 s%d, 7168" % sT0)
        for q in range(4):
            a("buffer_load_dwordx4 %s, v19, s[%d:%d], 0 offen offset:%d" % (vr(CS[0] + 4 * q, 4), SWS, SWS + 3, ff * 128 + q * 32))
            a("buffer_load_dwordx4 %s, v19, s[%d:%d], s%d offen offset:%d" % (vr(CS[1] + 4 * q, 4), SWS, SWS + 3, sT0, ff * 128 + q * 32))
    def const_loads():
        for tt in range(2):
            a("buffer_load_dwordx4 %s, v18, s[%d:%d], 0 offen offset:%d" % (vr(RC[tt], 4), SWS, SWS + 3, tt * 512))
        cs_loads(CS0, 0)
        a("s_mov_b32 s%d, 1" % sLD)
    def get_non():
        a.wait_ds("non")
        a("v_readfirstlane_b32 s%d, v22" % sNON); a("v_readfirstlane_b32 s%d, v23" % (sNON + 1))
    def pollA():
        a("buffer_load_dword v17, v15, s[%d:%d], 0 offen sc1" % (SWS, SWS + 3))
    def try_const():
        l = L("CL"); lo = L("CLO")
        a("s_waitcnt vmcnt(0)")
        a("v_cmp_ne_u32 vcc, s%d, v17" % sNON)
        a("s_cbranch_vccz %s" % lo)
        a.label(l)
        def slow():
            a.label(lo)
            a("s_cmp_eq_u32 s%d, 0" % (sNON + 1))
            a("s_cbranch_scc1 %s" % l)
            const_loads()
            a("s_branch %s" % l)
        deferred.append(slow)
    PA = int(os.environ.get("PA", "5"))
    RS = [int(c) for c in os.environ.get("RS", "01234")]
    if "su" in EXP: sf_("pre")
    wait_stage(0)
    if "su" in EXP: sf_("land0")
    arrive(1)
    spin_lds(11, 14, 1, slp=0)
    sf_("st0")
    for g in rd_frags(0, 0): emit(g)
    for st in range(NST):
        if st in (7,): sf_("st%d" % st)
        D = []
        if 1 <= st and st + 3 < NST:
            D = dma_w(st + 3)
            if st % 2 == 0 and st // 2 + 2 < 7: D = D + dma_x(st // 2 + 2)[:2]
            if st % 2 == 1 and st >= 3 and st // 2 + 2 < 7: D = D + dma_x(st // 2 + 2)[2:]
        DS = [(0, 4), (0, 6), (1, 1), (1, 3), (1, 5), (1, 7)]
        G = []
        if st + 1 < NST:
            G.append((0, [lambda st=st: wait_stage(st + 1), lambda st=st: arrive(st + 2)]))
        G += [(RS[i], g) for i, g in enumerate(rd_frags(st, 1))]
        if st == NST - 3: G.append((5, [("ds_read_b64 v[22:23], v10 offset:%d" % (Y_NON - Y_RDA), "non")]))
        if st == NST - 2: G.append((1, [get_non, pollA]))
        if st == NST - 1: G.append((4, [try_const]))
        if D: G.append((3, [lambda: a.wait_ds("pR"), lambda st=st: check(st, 16, Y_RD)]))
        G += [(DS[i][1], g) for i, g in enumerate(D) if DS[i][0] == 0]
        if st + 1 < NST: G.append((PA, [("ds_read_u8 v14, v11", "pA")]))
        inter(st, 0, G)
        G = []
        if st + 1 < NST:
            G.append((0, [lambda: a.wait_ds("pA"), lambda st=st: check(st + 2)]))
            G += [(RS[i], g) for i, g in enumerate(rd_frags(st + 1, 0))]
        G.append((6 if st + 1 == NST else 0, [lambda st=st: arrive(st + 1, Y_RD)]))
        G += [(DS[i][1], g) for i, g in enumerate(D) if DS[i][0] == 1]
        if st + 4 < NST: G.append((7, [("ds_read_u8 v16, v11 offset:%d" % Y_RD, "pR")]))
        inter(st, 1, G)
    a.dsq = []
    sf_("loopend")
    l = L("CL"); lo = L("CLO"); l1 = L("CLP"); l2 = L("CLP")
    a("s_cmp_eq_u32 s%d, 0" % sLD)
    a("s_cbranch_scc1 %s" % lo)
    a.label(l)
    def slow(l=l, lo=lo):
        a.label(lo)
        a("s_mov_b32 s%d, %d" % (sCNT, SPIN))
        a.label(l1)
        a("ds_read_b64 v[22:23], v10 offset:%d" % (Y_NON - Y_RDA))
        pollA()
        a("s_waitcnt vmcnt(0) lgkmcnt(0)")
        a("v_readfirstlane_b32 s%d, v22" % sNON); a("v_readfirstlane_b32 s%d, v23" % (sNON + 1))
        a("v_cmp_ne_u32 vcc, s%d, v17" % sNON)
        a("s_cmp_eq_u32 s%d, 0" % (sNON + 1))
        a("s_cselect_b64 s[%d:%d], -1, vcc" % (sT0, sT0 + 1))
        a("s_cmp_eq_u64 s[%d:%d], 0" % (sT0, sT0 + 1))
        a("s_cbranch_scc1 %s" % l2)
        a("s_sleep 2")
        a("s_sub_u32 s%d, s%d, 1" % (sCNT, sCNT)); a("s_cmp_lg_u32 s%d, 0" % sCNT)
        a("s_cbranch_scc1 %s" % l1)
        a.label(l2)
        const_loads()
        a("s_branch %s" % l)
    deferred.append(slow)
    cs_loads(CS1, 1)
    a("v_lshrrev_b32 v5, 3, v1")
    a("s_mul_i32 s%d, s%d, 448" % (sT0, sWV))
    a("v_add_u32 v5, s%d, v5" % sT0)
    a("v_mul_u32_u24 v5, 896, v5")
    a("s_lshl_b32 s%d, s%d, 7" % (sT0, sCT))
    a("v_add_u32 v5, s%d, v5" % sT0)
    a("v_and_b32 v6, 1, v1")
    a("v_lshl_add_u32 v5, v6, 4, v5")
    a("v_bfe_u32 v6, v1, 1, 2")
    a("v_bfe_u32 v7, v1, 4, 1")
    a("v_xor_b32 v6, v6, v7")
    a("v_xor_b32 v7, 2, v6")
    a("v_lshl_add_u32 v2, v6, 5, v5")
    a("v_lshl_add_u32 v3, v7, 5, v5")
    a("s_mul_i32 s%d, s%d, %d" % (sWB, sWV, W2R))
    a("ds_read_u8 v14, v11 offset:%d" % Y_RD)
    NW = 6
    J = lambda s: 2 * (s % 7) + s // 7
    def dma_wd(s):
        for q in range(4):
            a("s_mov_b32 s%d, %d" % (sOW, (J(s) * 32 + 8 * q) * 896))
            a("s_add_u32 m0, s%d, %d" % (sWB, (s % NW) * 4096 + q * 1024))
            a.vm("buffer_load_dwordx4 v%d, s[%d:%d], s%d offen lds" % (2 + (q & 1), SWD, SWD + 3, sOW), ("wd", s))
    a("s_waitcnt vmcnt(8) lgkmcnt(0)"); a.vmq = ["cs1"] * 8
    sf_("stats")
    check(14, 14, Y_RD)
    def flag(ff):
        a.wait_vm(("hst", ff))
        a("s_mov_b64 exec, 1")
        a.vm("buffer_store_dwordx2 v[22:23], v21, s[%d:%d], 0 offen offset:%d sc1" % (SWS, SWS + 3, ff * 8), "hfl")
        a("s_mov_b64 exec, -1")
    GD = int(os.environ.get("GD", "13")); GP = 11
    ev = []
    def at(t, item): ev.append((t, len(ev), item))
    n = 0
    for ff in range(2):
        CS = (CS0, CS1)[ff]
        for tt in range(2):
            r0 = RC[tt]
            for qp in range(2):
                blk = n // 8
                HP = 112 + 4 * (blk & 3)
                if blk < NW: at(n * GP - 0.5, lambda blk=blk: dma_wd(blk))
                if blk == 4: at(n * GP - 0.6, lambda: a.wait_vm("cs1"))
                if blk == 7: at(n * GP - 0.5, lambda: flag(0))
                for q2 in range(2):
                    q = 2 * qp + q2
                    for e in range(4):
                        g = ACC(ff, 0, tt) + 4 * q + e; u = ACC(ff, 1, tt) + 4 * q + e; T = 64 + (n & 15)
                        ops = [(0, "v_fmac_f32 v%d, v%d, v%d" % (g, CS[0] + 4 * q + e, r0)),
                        (1, "v_mul_f32 v%d, v%d, v%d" % (T, g, g)),
                        (2, "v_fma_f32 v%d, v%d, v%d, v%d" % (T, T, r0 + 2, r0 + 1)),
                        (3, "v_mul_f32 v%d, v%d, v%d" % (T, T, g)),
                        (4, "v_exp_f32 v%d, v%d" % (T, T)),
                        (5, "v_fmac_f32 v%d, v%d, v%d" % (u, CS[1] + 4 * q + e, r0)),
                        (6, "v_fma_f32 v%d, v%d, v%d, v%d" % (T, T, r0 + 3, r0 + 3)),
                        (7, "v_rcp_f32 v%d, v%d" % (T, T)),
                        (8, "v_mul_f32 v%d, v%d, v%d" % (g, g, u)),
                        (9, "v_mul_f32 v%d, v%d, v%d" % (g, g, T))]
                        if e & 1: ops.append((10, "v_cvt_pk_bf16_f32 v%d, v%d, v%d" % (HP + 2 * q2 + e // 2, g - 1, g)))
                        for k, o in ops: at(n * GP + k * GD, o)
                        n += 1
                t = (n - 1) * GP + 10 * GD
                at(t + 4, "v_permlane32_swap_b32 v%d, v%d" % (HP, HP + 2))
                at(t + 5, "v_permlane32_swap_b32 v%d, v%d" % (HP + 1, HP + 3))
                def st_h(HP=HP, ff=ff, tt=tt, qp=qp):
                    a("s_movk_i32 s%d, %d" % (sT0, ff * 4096))
                    a.vm("buffer_store_dwordx4 %s, v20, s[%d:%d], s%d offen offset:%d sc1" % (vr(HP, 4), SWS, SWS + 3, sT0, tt * 2048 + qp * 512), ("hst", ff))
                at(t + 8, st_h)
    for t, _, it in sorted(ev, key=lambda x: (x[0], x[1])):
        if callable(it): it()
        else: a(it)
    sf_("gelu")
    A2 = lambda ct, tt: 32 + 16 * ct + 4 * tt
    NV = int(os.environ.get("NV", "4")); NH = 10 - NV
    WB = [96 + 16 * i for i in range(NV)]; HB = [96 + 16 * NV + 16 * i for i in range(NH)]
    a("v_and_b32 v16, 15, v1"); a("v_lshrrev_b32 v17, 4, v1")
    a("v_lshrrev_b32 v8, 2, v16")
    a("v_lshl_add_u32 v8, v17, 3, v8")
    a("v_lshlrev_b32 v8, 7, v8")
    a("v_and_b32 v9, 3, v16")
    a("v_lshl_add_u32 v8, v9, 3, v8")
    a("v_add_u32 v13, s%d, v8" % sWB)
    a("v_bfe_u32 v9, v16, 3, 1")
    a("v_and_b32 v14, 1, v17")
    a("v_lshl_add_u32 v9, v14, 1, v9")
    TRB = [4, 5, 6, 7]
    for ct in range(4):
        a("v_xor_b32 v14, %d, v9" % ct)
        a("v_lshl_add_u32 v%d, v14, 5, v13" % TRB[ct])
    def trw(s):
        for ct in range(4):
            for hf in range(2):
                a.ds("ds_read_b64_tr_b16 %s, v%d offset:%d" % (vr(WB[s % NV] + 4 * ct + 2 * hf, 2), TRB[ct], (s % NW) * 4096 + hf * 512), ("tw", s))
    a("s_mul_i32 s%d, s%d, 14" % (sT1, sWV))
    a("s_lshl_b32 s%d, s%d, 9" % (sT0, sRT2))
    a("s_add_u32 s%d, s%d, %d" % (sT0, sT0, WS_HF))
    a("v_lshl_add_u32 v8, v1, 3, s%d" % sT0)
    a("s_cmp_lg_u32 s%d, 0" % sWV)
    a("s_cselect_b32 s%d, 0, -1" % sPM); a("s_cselect_b32 s%d, 0, 0xffffff" % (sPM + 1))
    def hpoll(r=14, tag="hp"):
        a("s_mov_b64 exec, s[%d:%d]" % (sPM, sPM + 1))
        a.vm("buffer_load_dwordx2 v[%d:%d], v8, s[%d:%d], 0 offen sc1" % (r, r + 1, SWS, SWS + 3), tag)
        a("s_mov_b64 exec, -1")
    def heval(r, tag):
        l = L("HE"); lo = L("HEO")
        a.wait_vm(tag)
        a("v_cmp_ne_u64 vcc, s[%d:%d], v[%d:%d]" % (sNON, sNON + 1, r, r + 1))
        a("s_and_b64 vcc, vcc, s[%d:%d]" % (sPM, sPM + 1))
        a("s_cbranch_scc0 %s" % lo)
        a.label(l)
        def slow():
            a.label(lo)
            a("s_cmp_eq_u32 s%d, 0" % sPM)
            a("s_cbranch_scc1 %s" % l)
            a("s_mov_b64 s[%d:%d], 0" % (sPM, sPM + 1))
            a("v_mov_b32 v13, 2")
            a("s_mov_b64 exec, 1")
            a("ds_write_b8 v10, v13 offset:2")
            a("s_mov_b64 exec, -1")
            a("s_branch %s" % l)
        deferred.append(slow)
    hpoll()
    a.wait_vm(("hst", 1)) if False else None
    a.wait_vm(("wd", NW - 1))
    a.dsq = []
    for s in range(NV): trw(s)
    a("s_mul_i32 s%d, s%d, 56" % (sT0, sRT2))
    a("s_add_u32 s%d, s%d, s%d" % (sT0, sT0, sT1))
    a("s_lshl_b32 s%d, s%d, 12" % (sT0, sT0))
    a("v_lshl_add_u32 v9, v1, 4, s%d" % sT0)
    flag(1)
    sf_("flag1")
    a("s_waitcnt lgkmcnt(0)")
    a.dsq = []
    for s in range(NW, NW + NV): dma_wd(s)
    a("s_lshl_b32 s%d, s%d, 6" % (sT0, sRT2)); a("s_lshl_b32 s%d, s%d, 4" % (sT1, sWV)); a("s_add_u32 s%d, s%d, s%d" % (sT0, sT0, sT1))
    a("v_add_u32 v18, s%d, v16" % sT0)
    a("v_mul_u32_u24 v18, 896, v18")
    a("v_lshl_add_u32 v18, v17, 4, v18")
    a("s_lshl_b32 s%d, s%d, 7" % (sT0, sCT))
    a("v_add_u32 v18, s%d, v18" % sT0)
    a("v_xor_b32 v13, v17, v16")
    a("v_lshlrev_b32 v19, 8, v16"); a("v_lshl_add_u32 v19, v13, 4, v19")
    a("v_add_u32 v19, s%d, v19" % sWB)
    a("v_xor_b32 v20, 64, v19"); a("v_xor_b32 v21, 128, v19"); a("v_xor_b32 v22, 192, v19")
    def hwait(ph):
        l = L("HP"); lo = L("HPO"); l1 = L("HPL"); l2 = L("HPW"); l3 = L("HPS")
        a.wait_vm("hp")
        a("s_cmp_lg_u32 s%d, 0" % sPM)
        a("s_cbranch_scc1 %s" % lo)
        a.label(l)
        a("ds_read_u8 v13, v10 offset:2")
        a("s_waitcnt lgkmcnt(0)")
        a("v_cmp_gt_u32 vcc, %d, v13" % (ph + 1))
        a("s_cbranch_vccnz %s" % l3)
        a.label(l2)
        def slow():
            a.label(l3)
            spin_lds(10, 13, ph + 1, slp=1, off=2)
            a("s_branch %s" % l2)
            a.label(lo)
            a("s_mov_b32 s%d, %d" % (sT3, SPIN))
            a.label(l1)
            a("v_cmp_ne_u64 vcc, s[%d:%d], v[14:15]" % (sNON, sNON + 1))
            a("s_and_b64 vcc, vcc, s[%d:%d]" % (sPM, sPM + 1))
            a("v_mov_b32 v13, 2")
            lp = L("HPP")
            a("s_cbranch_scc0 %s" % lp)
            if ph == 0:
                a("v_mov_b32 v13, 1")
                a("s_and_b32 s%d, vcc_lo, 0x55555555" % sT0); a("s_and_b32 s%d, vcc_hi, 0x55555555" % sT1)
                a("s_or_b32 s%d, s%d, s%d" % (sT0, sT0, sT1))
                a("s_cbranch_scc0 %s" % (lp + "b"))
            a("s_sleep %d" % int(os.environ.get("HSL", "3")))
            a("s_mov_b64 exec, s[%d:%d]" % (sPM, sPM + 1))
            a("buffer_load_dwordx2 v[14:15], v8, s[%d:%d], 0 offen sc1" % (SWS, SWS + 3))
            a("s_mov_b64 exec, -1")
            a("s_waitcnt vmcnt(0)")
            a("s_sub_u32 s%d, s%d, 1" % (sT3, sT3)); a("s_cmp_lg_u32 s%d, 0" % sT3)
            a("s_cbranch_scc1 %s" % l1)
            a.label(lp)
            a("s_mov_b64 s[%d:%d], 0" % (sPM, sPM + 1))
            a.label(lp + "b")
            a("s_mov_b64 exec, 1")
            a("ds_write_b8 v10, v13 offset:2")
            a("s_mov_b64 exec, -1")
            a("s_branch %s" % l2)
        deferred.append(slow)
    hwait(0)
    sf_("hpoll")
    def ld_h(s):
        a("s_mov_b32 s%d, %d" % (sOX, WS_H + J(s) * 4096))
        for tt in range(4):
            a.vm("buffer_load_dwordx4 %s, v9, s[%d:%d], s%d offen offset:%d" % (vr(HB[s % NH] + 4 * tt, 4), SWS, SWS + 3, sOX, tt * 1024), ("h", s, tt))
    for s in range(NH): ld_h(s)
    for s in range(14):
        a.wait_ds(("tw", s))
        for tt in range(4):
            a.wait_vm(("h", s, tt))
            for ct in range(4):
                a("v_mfma_f32_16x16x32_bf16 %s, %s, %s, %s" % (vr(A2(ct, tt), 4), vr(WB[s % NV] + 4 * ct, 4), vr(HB[s % NH] + 4 * tt, 4), "0" if s == 0 else vr(A2(ct, tt), 4)))
        HW2 = int(os.environ.get("HW2", "5"))
        PR = [24, 26, 28]
        if 2 <= s < HW2: heval(PR[(s - 2) % 3], ("hq", s - 2))
        if s < HW2 - 2: hpoll(PR[s % 3], ("hq", s))
        if s == HW2 - 2: hpoll()
        if s == HW2:
            hwait(1); sf_("hpoll2")
            for s2 in range(7, s + NH): ld_h(s2)
        if s + NH < 14 and (s + NH < 7 or s >= HW2): ld_h(s + NH)
        if s == 10:
            a.vm("buffer_load_dwordx4 v[24:27], v18, s[%d:%d], 0 offen" % (SX, SX + 3), "x")
            a.vm("buffer_load_dwordx4 v[28:31], v18, s[%d:%d], 0 offen offset:64" % (SX, SX + 3), "x")
        if s >= 1 and s - 1 + NV + NW < 14:
            a.wait_ds(("tw", s - 1 + NV))
            dma_wd(s - 1 + NV + NW)
        if s + NV < 14:
            a.wait_vm(("wd", s + NV))
            trw(s + NV)
    sf_("f2end")
    for tt in range(4):
        for ct in range(4):
            a("ds_write_b128 v%d, %s offset:%d" % (19 + ct, vr(A2(ct, tt), 4), tt * 4096))
    a("v_lshlrev_b32 v14, 1, v17"); a("v_xor_b32 v14, v14, v16")
    a("v_lshlrev_b32 v4, 8, v16"); a("v_lshl_add_u32 v4, v14, 4, v4")
    a("s_lshl_b32 s%d, s%d, 12" % (sT0, sWV))
    a("v_add_u32 v4, s%d, v4" % sT0)
    a("v_xor_b32 v5, 16, v4"); a("v_xor_b32 v6, 128, v4"); a("v_xor_b32 v7, 144, v4")
    a("v_add_u32 v0, %d, v4" % (2 * W2R)); a("v_add_u32 v2, %d, v5" % (2 * W2R)); a("v_add_u32 v3, %d, v6" % (2 * W2R)); a("v_add_u32 v8, %d, v7" % (2 * W2R))
    a("v_lshrrev_b32 v14, 1, v17")
    a("v_mul_u32_u24 v14, %d, v14" % STG_W)
    a("v_and_b32 v15, 1, v17"); a("v_lshlrev_b32 v15, 3, v15"); a("v_lshrrev_b32 v13, 2, v16"); a("v_add_u32 v15, v15, v13")
    a("v_lshl_add_u32 v14, v15, 7, v14")
    a("v_and_b32 v15, 3, v16"); a("v_lshl_add_u32 v14, v15, 3, v14")
    a("s_lshl_b32 s%d, s%d, 5" % (sT2, sWV)); a("s_add_u32 s%d, s%d, %d" % (sT2, sT2, L_STG))
    a("v_add_u32 v14, s%d, v14" % sT2)
    a("s_waitcnt lgkmcnt(0)")
    arrive(17)
    spin_lds(11, 15, 1, slp=1, off=Y_YA)
    sf_("ya")
    for hc in range(2):
        for hf in range(2):
            a("ds_read_b64_tr_b16 %s, v14 offset:%d" % (vr(96 + 4 * hc + 2 * hf, 2), hc * 2 * STG_W + hf * 512))
    a.wait_vm("x")
    a("s_waitcnt lgkmcnt(0)")
    for w in range(8):
        xw = 24 + w; yw = 96 + w; o = 104 + 2 * w
        a("v_lshlrev_b32 v%d, 16, v%d" % (o, xw)); a("v_and_b32 v%d, 0xffff0000, v%d" % (o + 1, xw))
        a("v_lshlrev_b32 v120, 16, v%d" % yw); a("v_and_b32 v121, 0xffff0000, v%d" % yw)
        a("v_add_f32 v%d, v%d, v120" % (o, o)); a("v_add_f32 v%d, v%d, v121" % (o + 1, o + 1))
        a("v_cvt_pk_bf16_f32 v%d, v%d, v%d" % (o, o, o + 1))
        a("v_and_b32 v%d, 0xffff0000, v%d" % (o + 1, o)); a("v_lshlrev_b32 v%d, 16, v%d" % (o, o))
    spin_lds(11, 15, 17, slp=0)
    for s in range(4):
        for c in range(4):
            ad = ((4, 5, 6, 7), (0, 2, 3, 8))[s >> 1][c]
            a("ds_read_b128 %s, v%d offset:%d" % (vr(128 + 16 * s + 4 * c, 4), ad, (s & 1) * W2R))
    for hc in range(2):
        a("s_waitcnt lgkmcnt(%d)" % (2 - 2 * hc))
        for e in range(8):
            b = 128 + 8 * hc + e
            a("v_add_f32 v%d, v%d, v%d" % (b, b, b + 16)); a("v_add_f32 v%d, v%d, v%d" % (b + 32, b + 32, b + 48))
            a("v_add_f32 v%d, v%d, v%d" % (b, b, b + 32))
        for w in range(4):
            b = 128 + 8 * hc + 2 * w; o = 104 + 8 * hc + 2 * w
            a("v_cvt_pk_bf16_f32 v120, v%d, v%d" % (b, b + 1))
            a("v_and_b32 v121, 0xffff0000, v120"); a("v_lshlrev_b32 v120, 16, v120")
            a("v_add_f32 v120, v120, v%d" % o); a("v_add_f32 v121, v121, v%d" % (o + 1))
            a("v_cvt_pk_bf16_f32 v%d, v120, v121" % (192 + 4 * hc + w))
        a("buffer_store_dwordx4 %s, v18, s[%d:%d], 0 offen offset:%d" % (vr(192 + 4 * hc, 4), SOUT, SOUT + 3, hc * 64) + os.environ.get("OUTM", ""))
    sf_("end")
    if "span" in EXP:
        srd(a, SDBG, 12, 256)
        a("s_waitcnt vmcnt(0)")
        a("s_memrealtime s[100:101]"); a("s_waitcnt lgkmcnt(0)")
        a("s_sub_u32 s100, s100, s%d" % sNON)
        a("v_mov_b32 v150, s100"); a("v_mov_b32 v151, 0")
        a("s_cmp_lg_u32 s%d, 0" % sWV); a("s_cselect_b32 exec_lo, 0, 1"); a("s_mov_b32 exec_hi, 0")
        a("buffer_atomic_umax v150, v151, s[%d:%d], 0 offen sc1" % (SDBG, SDBG + 3))
        a("s_lshl_b32 s100, s2, 2"); a("s_add_u32 s100, s100, %d" % WS_DBG); a("v_mov_b32 v151, s100")
        a("buffer_store_dword v150, v151, s[%d:%d], 0 offen sc1" % (SWS, SWS + 3))
        a("s_mov_b64 exec, -1")
    sf_.store(150)
    a("s_endpgm")
    for f in deferred: f()

    import gen4h as gen3h
    gen3h.helper(a, sh_, L, spin_lds)
    gen3h.producer(a, sp_, L)
    a.label("K_END")
    a("s_endpgm")
    if STAMP: print("ffn", sf_.names, "\nhelp", sh_.names, "\nprod", sp_.names)
    return a.finalize()

def wrap(kernels):
    out = []
    for name, grid, block, lds, body, nv in kernels:
        if len(kernels) > 1: out.append("; @launch kernel=%s grid=(%d,1,1) block=(%d,1,1) lds=%d" % (name, grid, block, lds))
        else: out.append("; @launch grid=(%d,1,1) block=(%d,1,1) lds=%d" % (grid, block, lds))
    out.append('.amdgcn_target "amdgcn-amd-amdhsa--gfx950"')
    out.append(".text")
    for name, grid, block, lds, body, nv in kernels:
        out += [".globl %s" % name, ".p2align 8", ".type %s,@function" % name, "%s:" % name, body]
    out.append('.section .rodata,"a"')
    for name, grid, block, lds, body, nv in kernels:
        out += [".p2align 6", ".amdhsa_kernel %s" % name,
                "  .amdhsa_next_free_vgpr %d" % nv, "  .amdhsa_next_free_sgpr 102", "  .amdhsa_accum_offset %d" % ((nv + 3) // 4 * 4),
                "  .amdhsa_group_segment_fixed_size 0", "  .amdhsa_kernarg_size 128", "  .amdhsa_user_sgpr_count 2",
                "  .amdhsa_user_sgpr_kernarg_segment_ptr 1", "  .amdhsa_system_sgpr_workgroup_id_x 1", ".end_amdhsa_kernel"]
    return "\n".join(out) + "\n"

if __name__ == "__main__":
    sys.modules["gen4"] = sys.modules["__main__"]
    NAME = "parallel_sum__ssm_conv_s4__glu_gated_geglu__prompt_kernel"
    ks = [(NAME, 256, 512, LDS, gen(), 256)]
    if "delay" in EXP:
        b = Asm()
        b("s_cmp_ge_u32 s2, 1"); b("s_cbranch_scc1 K3_END")
        b("s_load_dwordx4 s[4:7], s[0:1], 112"); b("s_waitcnt lgkmcnt(0)")
        srd(b, 8, 6, WS_SIZE); srd(b, 12, 4, 256)
        b("v_lshlrev_b32 v1, 2, v0"); b("v_mov_b32 v10, 0")
        for i in range(4):
            b("s_mov_b32 s22, %d" % (WS_DBG + 128 + i * 256 - (32 if i == 3 else 0) * 4))
            b("buffer_load_dword v4, v1, s[8:11], s22 offen sc1"); b("s_waitcnt vmcnt(0)"); b("v_max_u32 v10, v10, v4")
        b("v_readlane_b32 s30, v10, 0")
        for l in range(1, 64):
            b("v_readlane_b32 s22, v10, %d" % l); b("s_max_u32 s30, s30, s22")
        b("s_mov_b64 exec, 1"); b("v_mov_b32 v1, 0"); b("v_mov_b32 v2, s30")
        b("buffer_store_dword v2, v1, s[12:15], 0 offen"); b("s_waitcnt vmcnt(0)")
        b("s_min_u32 s30, s30, 20000"); b("s_mul_i32 s30, s30, %d" % int(os.environ.get("DM", "4")))
        b("s_memrealtime s[24:25]"); b("s_waitcnt lgkmcnt(0)")
        b.label("K3_L")
        b("s_memrealtime s[26:27]"); b("s_waitcnt lgkmcnt(0)"); b("s_sub_u32 s28, s26, s24"); b("s_cmp_lt_u32 s28, s30"); b("s_cbranch_scc1 K3_L")
        b.label("K3_END"); b("s_endpgm")
        ks = [("k1_kernel",) + ks[0][1:], ("k3_kernel", 1, 64, 0, b.finalize(), 64)]
    open(sys.argv[1] if len(sys.argv) > 1 else "k.s", "w").write(wrap(ks))
```

```python
import re

TRANS = ("v_exp_f32", "v_log_f32", "v_rcp_f32", "v_rsq_f32", "v_sqrt_f32", "v_sin_f32", "v_cos_f32", "v_rcp_iflag_f32")

def _regs(tok):
    tok = tok.strip()
    neg = tok.lstrip("-")
    m = re.match(r"^(?:abs\()?\|?([vas])(\d+)\)?\|?$", neg)
    if m: return {(m.group(1), int(m.group(2)))}
    m = re.match(r"^(?:abs\()?([vas])\[(\d+):(\d+)\]\)?$", neg)
    if m: return {(m.group(1), i) for i in range(int(m.group(2)), int(m.group(3)) + 1)}
    if neg == "vcc": return {("s", 106), ("s", 107)}
    if neg == "vcc_lo": return {("s", 106)}
    if neg == "vcc_hi": return {("s", 107)}
    if neg == "exec": return {("s", 126), ("s", 127)}
    if neg == "m0": return {("s", 124)}
    return set()

class Ins:
    __slots__ = ("text", "mn", "ops", "wr", "rd", "kind", "blk", "passes", "srcc", "srcab", "ws", "lds_dma", "widestore", "sdata", "nopkw")
    def __init__(self, text, blk):
        self.text = text; self.blk = blk; self.nopkw = False
        t = text.split(";")[0].strip()
        parts = t.split(None, 1)
        self.mn = parts[0]
        rest = parts[1] if len(parts) > 1 else ""
        ops = []; depth = 0; cur = ""
        for ch in rest:
            if ch in "[(": depth += 1
            if ch in "])": depth -= 1
            if ch == "," and depth == 0: ops.append(cur.strip()); cur = ""
            else: cur += ch
        if cur.strip(): ops.append(cur.strip())
        mods = ""
        if ops:
            sp = ops[-1].split(None, 1)
            ops[-1] = sp[0]; mods = sp[1] if len(sp) > 1 else ""
        self.ops = ops
        mn = self.mn
        R = [_regs(o) for o in ops]
        U = lambda l: set().union(*l) if l else set()
        self.wr = set(); self.rd = set(); self.passes = 0; self.srcc = set(); self.srcab = set()
        self.ws = 1; self.lds_dma = False; self.widestore = False; self.sdata = set()
        if mn == "s_nop":
            self.kind = "nop"; self.ws = int(ops[0], 0) + 1
        elif mn.startswith("v_mfma"):
            self.kind = "mfma"; self.wr = R[0]; self.srcab = R[1] | R[2]; self.srcc = R[3]; self.rd = self.srcab | self.srcc
            self.passes = 8 if "32x32x16" in mn else 4 if "16x16x32" in mn else 16
        elif mn.startswith("v_"):
            self.kind = "trans" if mn.replace("_e32", "").replace("_e64", "") in TRANS else "valu"
            if mn.startswith("v_swap"):
                self.wr = R[0] | R[1]; self.rd = R[0] | R[1]
            elif mn.startswith("v_permlane32_swap") or mn.startswith("v_permlane16_swap"):
                self.wr = R[0] | R[1]; self.rd = R[0] | R[1]; self.kind = "permlane"
            elif mn.startswith("v_cmp"):
                self.wr = R[0]; self.rd = U(R[1:])
            elif mn.startswith(("v_add_co", "v_sub_co", "v_subrev_co", "v_addc_co", "v_subb_co")):
                self.wr = R[0] | R[1]; self.rd = U(R[2:])
            else:
                self.wr = R[0]; self.rd = U(R[1:])
                if mn.startswith(("v_fmac", "v_dot2c", "v_pk_fmac", "v_writelane")) or "d16" in mn: self.rd |= R[0]
                if mn.startswith("v_cndmask") and len(ops) == 3: self.rd |= {("s", 106), ("s", 107)}
            if "dpp" in mn or "row_" in mods or "wave_" in mods or "quad_perm" in mods:
                self.kind = "dpp"; self.rd |= R[0]
            if mn.startswith(("v_readlane", "v_readfirstlane")): self.kind = "readlane"
            if mn.startswith("v_dot"): self.kind = "dot"
        elif mn.startswith("ds_"):
            self.kind = "ds"
            if mn.startswith(("ds_read", "ds_bpermute", "ds_permute", "ds_swizzle")) or "_rtn" in mn:
                self.wr = R[0]; self.rd = U(R[1:])
                if "d16" in mn: self.rd |= R[0]
            else: self.rd = U(R)
        elif mn.startswith(("buffer_", "global_")):
            self.kind = "vmem"
            islds = bool(re.search(r"\blds\b", mods)) or "_lds_" in mn
            if mn.startswith(("buffer_wbl2", "buffer_inv")):
                pass
            elif islds:
                self.lds_dma = True; self.rd = U(R) | {("s", 124)}
            elif "load" in mn:
                self.wr = R[0]; self.rd = U(R[1:])
                if "d16" in mn: self.rd |= R[0]
            elif "atomic" in mn and re.search(r"\bsc0\b", mods) and mn.startswith("global_"):
                self.wr = R[0]; self.rd = U(R[1:])
            elif "atomic" in mn and re.search(r"\bsc0\b", mods):
                self.wr = R[0]; self.rd = U(R)
            else:
                self.rd = U(R)
                if "dwordx4" in mn or "dwordx3" in mn:
                    self.widestore = True
                    self.sdata = R[0] if mn.startswith("buffer_") else R[1]
        elif mn.startswith("s_"):
            self.kind = "salu"
            if mn.startswith(("s_cmp", "s_waitcnt", "s_barrier", "s_branch", "s_cbranch", "s_endpgm", "s_setprio", "s_sleep", "s_bitcmp", "s_setpc")):
                self.rd = U(R)
            else:
                self.wr = R[0] if R else set(); self.rd = U(R[1:])
                if "saveexec" in mn: self.wr |= {("s", 126), ("s", 127)}
        else:
            raise ValueError("unknown instr " + text)

import os
PKW = int(os.environ.get("PKW", "2"))
VALUK = ("valu", "trans", "dpp", "permlane", "readlane", "dot")

def need(p, c):
    n = 0
    pv = {r for r in p.wr if r[0] in "va"}
    ps = {r for r in p.wr if r[0] == "s"}
    if p.kind in VALUK:
        if pv:
            if c.kind == "mfma" and pv & c.rd: n = max(n, 2)
            if c.kind == "dpp" and pv & c.rd: n = max(n, 2)
            if c.kind == "permlane" and pv & c.rd: n = max(n, 2)
            if c.kind == "readlane" and pv & c.rd: n = max(n, 1)
            if p.mn.startswith("v_pk_") and not p.nopkw and p.mn.endswith("_f32") and not c.mn.startswith("v_pk_") and pv & c.rd: n = max(n, PKW)
            if p.kind == "trans" and c.kind in VALUK + ("mfma",) and pv & (c.rd | c.wr): n = max(n, 1)
            if p.kind == "dot" and pv & (c.rd | c.wr):
                same = c.kind == "dot" and c.mn == p.mn and len(c.ops) >= 3 and not (pv & (_regs(c.ops[1]) | _regs(c.ops[2])))
                if not same: n = max(n, 3)
        if ps:
            if c.kind == "vmem" and ps & c.rd: n = max(n, 5)
            if c.kind in VALUK + ("mfma",) and ps & c.rd: n = max(n, 4 if c.kind == "readlane" else 2)
            if c.kind == "salu" and ps & c.rd: n = max(n, 1)
            if ps & {("s", 126), ("s", 127)}: n = max(n, 5)
    if p.kind == "mfma":
        big = {4: 8, 8: 12, 16: 20}[p.passes]
        if c.kind == "mfma":
            if p.wr & c.srcab: n = max(n, big)
            if p.wr & c.srcc and not (p.wr == c.srcc and p.passes == c.passes): n = max(n, {4: 6, 8: 10, 16: 18}[p.passes])
            if p.wr & c.wr and not (p.wr & c.srcc): n = max(n, big)
        elif p.wr & (c.rd | c.wr): n = max(n, big)
        if c.kind in VALUK and p.srcc & c.wr: n = max(n, {4: 3, 8: 7, 16: 15}[p.passes])
    if p.kind == "salu" and ("s", 124) in p.wr and c.kind == "vmem" and c.lds_dma: n = max(n, 1)
    if p.kind == "vmem" and p.widestore and p.sdata & c.wr: n = max(n, 2 if c.kind in VALUK else 1)
    return n

class Asm:
    def __init__(self):
        self.items = []
        self.blk = None
        self.nopkw = False
        self._blkid = 0
        self.vmq = []
        self.dsq = []
    def __call__(self, text):
        for ln in text.strip().split("\n"):
            ln = ln.strip()
            if not ln or ln.startswith(";"): continue
            self.items.append(Ins(ln, self.blk)); self.items[-1].nopkw = self.nopkw
    def raw(self, text): self.items.append(text)
    def label(self, l): self.items.append(l + ":")
    def comment(self, c): self.items.append("    ; " + c)
    def begin_opt(self): self._blkid += 1; self.blk = self._blkid
    def end_opt(self): self.blk = None
    def vm(self, text, tag=None):
        self(text); self.vmq.append(tag)
    def wait_vm(self, tag):
        if tag not in self.vmq: return
        idx = max(i for i, t in enumerate(self.vmq) if t == tag)
        n = len(self.vmq) - 1 - idx
        assert n <= 63
        self("s_waitcnt vmcnt(%d)" % n)
        self.vmq = self.vmq[idx + 1:]
    def ds(self, text, tag=None):
        self(text); self.dsq.append(tag)
    def wait_ds(self, tag):
        if tag not in self.dsq: return
        idx = max(i for i, t in enumerate(self.dsq) if t == tag)
        n = len(self.dsq) - 1 - idx
        self("s_waitcnt lgkmcnt(%d)" % min(n, 15))
        self.dsq = self.dsq[idx + 1:] if n <= 15 else self.dsq[len(self.dsq) - 15:]
    def wait_vm_all(self):
        self("s_waitcnt vmcnt(0)"); self.vmq = []
    def finalize(self):
        out = []
        hist = []
        for it in self.items:
            if isinstance(it, str):
                out.append(it); continue
            pad = 0; dist = 0
            for p in reversed(hist[-40:]):
                nd = need(p, it)
                if nd > dist: pad = max(pad, nd - dist)
                if p.blk is None or p.blk == it.blk: dist += p.ws
                if dist >= 24: break
            while pad > 0:
                k = min(pad, 16)
                nop = Ins("s_nop %d" % (k - 1), it.blk)
                hist.append(nop); out.append("    " + nop.text); pad -= k
            hist.append(it); out.append("    " + it.text)
        return "\n".join(out)
```

```python
import re

TRANS = ("v_exp_f32", "v_log_f32", "v_rcp_f32", "v_rsq_f32", "v_sqrt_f32", "v_sin_f32", "v_cos_f32", "v_rcp_iflag_f32")

def _regs(tok):
    tok = tok.strip()
    neg = tok.lstrip("-")
    m = re.match(r"^(?:abs\()?\|?([vas])(\d+)\)?\|?$", neg)
    if m: return {(m.group(1), int(m.group(2)))}
    m = re.match(r"^(?:abs\()?([vas])\[(\d+):(\d+)\]\)?$", neg)
    if m: return {(m.group(1), i) for i in range(int(m.group(2)), int(m.group(3)) + 1)}
    if neg == "vcc": return {("s", 106), ("s", 107)}
    if neg == "vcc_lo": return {("s", 106)}
    if neg == "vcc_hi": return {("s", 107)}
    if neg == "exec": return {("s", 126), ("s", 127)}
    if neg == "m0": return {("s", 124)}
    return set()

class Ins:
    __slots__ = ("text", "mn", "ops", "wr", "rd", "kind", "blk", "passes", "srcc", "srcab", "ws", "lds_dma", "widestore", "sdata", "nopkw")
    def __init__(self, text, blk):
        self.text = text; self.blk = blk; self.nopkw = False
        t = text.split(";")[0].strip()
        parts = t.split(None, 1)
        self.mn = parts[0]
        rest = parts[1] if len(parts) > 1 else ""
        ops = []; depth = 0; cur = ""
        for ch in rest:
            if ch in "[(": depth += 1
            if ch in "])": depth -= 1
            if ch == "," and depth == 0: ops.append(cur.strip()); cur = ""
            else: cur += ch
        if cur.strip(): ops.append(cur.strip())
        mods = ""
        if ops:
            sp = ops[-1].split(None, 1)
            ops[-1] = sp[0]; mods = sp[1] if len(sp) > 1 else ""
        self.ops = ops
        mn = self.mn
        R = [_regs(o) for o in ops]
        U = lambda l: set().union(*l) if l else set()
        self.wr = set(); self.rd = set(); self.passes = 0; self.srcc = set(); self.srcab = set()
        self.ws = 1; self.lds_dma = False; self.widestore = False; self.sdata = set()
        if mn == "s_nop":
            self.kind = "nop"; self.ws = int(ops[0], 0) + 1
        elif mn.startswith("v_mfma"):
            self.kind = "mfma"; self.wr = R[0]; self.srcab = R[1] | R[2]; self.srcc = R[3]; self.rd = self.srcab | self.srcc
            self.passes = 8 if "32x32x16" in mn else 4 if "16x16x32" in mn else 16
        elif mn.startswith("v_"):
            self.kind = "trans" if mn.replace("_e32", "").replace("_e64", "") in TRANS else "valu"
            if mn.startswith("v_swap"):
                self.wr = R[0] | R[1]; self.rd = R[0] | R[1]
            elif mn.startswith("v_permlane32_swap") or mn.startswith("v_permlane16_swap"):
                self.wr = R[0] | R[1]; self.rd = R[0] | R[1]; self.kind = "permlane"
            elif mn.startswith("v_cmp"):
                self.wr = R[0]; self.rd = U(R[1:])
            elif mn.startswith(("v_add_co", "v_sub_co", "v_subrev_co", "v_addc_co", "v_subb_co")):
                self.wr = R[0] | R[1]; self.rd = U(R[2:])
            else:
                self.wr = R[0]; self.rd = U(R[1:])
                if mn.startswith(("v_fmac", "v_dot2c", "v_pk_fmac", "v_writelane")) or "d16" in mn: self.rd |= R[0]
                if mn.startswith("v_cndmask") and len(ops) == 3: self.rd |= {("s", 106), ("s", 107)}
            if "dpp" in mn or "row_" in mods or "wave_" in mods or "quad_perm" in mods:
                self.kind = "dpp"; self.rd |= R[0]
            if mn.startswith(("v_readlane", "v_readfirstlane")): self.kind = "readlane"
            if mn.startswith("v_dot"): self.kind = "dot"
        elif mn.startswith("ds_"):
            self.kind = "ds"
            if mn.startswith(("ds_read", "ds_bpermute", "ds_permute", "ds_swizzle")) or "_rtn" in mn:
                self.wr = R[0]; self.rd = U(R[1:])
                if "d16" in mn: self.rd |= R[0]
            else: self.rd = U(R)
        elif mn.startswith(("buffer_", "global_")):
            self.kind = "vmem"
            islds = bool(re.search(r"\blds\b", mods)) or "_lds_" in mn
            if mn.startswith(("buffer_wbl2", "buffer_inv")):
                pass
            elif islds:
                self.lds_dma = True; self.rd = U(R) | {("s", 124)}
            elif "load" in mn:
                self.wr = R[0]; self.rd = U(R[1:])
                if "d16" in mn: self.rd |= R[0]
            elif "atomic" in mn and re.search(r"\bsc0\b", mods) and mn.startswith("global_"):
                self.wr = R[0]; self.rd = U(R[1:])
            elif "atomic" in mn and re.search(r"\bsc0\b", mods):
                self.wr = R[0]; self.rd = U(R)
            else:
                self.rd = U(R)
                if "dwordx4" in mn or "dwordx3" in mn:
                    self.widestore = True
                    self.sdata = R[0] if mn.startswith("buffer_") else R[1]
        elif mn.startswith("s_"):
            self.kind = "salu"
            if mn.startswith(("s_cmp", "s_waitcnt", "s_barrier", "s_branch", "s_cbranch", "s_endpgm", "s_setprio", "s_sleep", "s_bitcmp", "s_setpc")):
                self.rd = U(R)
            else:
                self.wr = R[0] if R else set(); self.rd = U(R[1:])
                if "saveexec" in mn: self.wr |= {("s", 126), ("s", 127)}
        else:
            raise ValueError("unknown instr " + text)

import os
PKW = int(os.environ.get("PKW", "2"))
VALUK = ("valu", "trans", "dpp", "permlane", "readlane", "dot")

def need(p, c):
    n = 0
    pv = {r for r in p.wr if r[0] in "va"}
    ps = {r for r in p.wr if r[0] == "s"}
    if p.kind in VALUK:
        if pv:
            if c.kind == "mfma" and pv & c.rd: n = max(n, 2)
            if c.kind == "dpp" and pv & c.rd: n = max(n, 2)
            if c.kind == "permlane" and pv & c.rd: n = max(n, 2)
            if c.kind == "readlane" and pv & c.rd: n = max(n, 1)
            if p.mn.startswith("v_pk_") and not p.nopkw and p.mn.endswith("_f32") and not c.mn.startswith("v_pk_") and pv & c.rd: n = max(n, PKW)
            if p.kind == "trans" and c.kind in VALUK + ("mfma",) and pv & (c.rd | c.wr): n = max(n, 1)
            if p.kind == "dot" and pv & (c.rd | c.wr):
                same = c.kind == "dot" and c.mn == p.mn and len(c.ops) >= 3 and not (pv & (_regs(c.ops[1]) | _regs(c.ops[2])))
                if not same: n = max(n, 3)
        if ps:
            if c.kind == "vmem" and ps & c.rd: n = max(n, 5)
            if c.kind in VALUK + ("mfma",) and ps & c.rd: n = max(n, 4 if c.kind == "readlane" else 2)
            if c.kind == "salu" and ps & c.rd: n = max(n, 1)
            if ps & {("s", 126), ("s", 127)}: n = max(n, 5)
    if p.kind == "mfma":
        big = {4: 8, 8: 12, 16: 20}[p.passes]
        if c.kind == "mfma":
            if p.wr & c.srcab: n = max(n, big)
            if p.wr & c.srcc and not (p.wr == c.srcc and p.passes == c.passes): n = max(n, {4: 6, 8: 10, 16: 18}[p.passes])
            if p.wr & c.wr and not (p.wr & c.srcc): n = max(n, big)
        elif p.wr & (c.rd | c.wr): n = max(n, big)
        if c.kind in VALUK and p.srcc & c.wr: n = max(n, {4: 3, 8: 7, 16: 15}[p.passes])
    if p.kind == "salu" and ("s", 124) in p.wr and c.kind == "vmem" and c.lds_dma: n = max(n, 1)
    if p.kind == "vmem" and p.widestore and p.sdata & c.wr: n = max(n, 2 if c.kind in VALUK else 1)
    return n

class Asm:
    def __init__(self):
        self.items = []
        self.blk = None
        self.nopkw = False
        self._blkid = 0
        self.vmq = []
        self.dsq = []
    def __call__(self, text):
        for ln in text.strip().split("\n"):
            ln = ln.strip()
            if not ln or ln.startswith(";"): continue
            self.items.append(Ins(ln, self.blk)); self.items[-1].nopkw = self.nopkw
    def raw(self, text): self.items.append(text)
    def label(self, l): self.items.append(l + ":")
    def comment(self, c): self.items.append("    ; " + c)
    def begin_opt(self): self._blkid += 1; self.blk = self._blkid
    def end_opt(self): self.blk = None
    def vm(self, text, tag=None):
        self(text); self.vmq.append(tag)
    def mark(self, tag):
        self.vmq.append(("MARK", tag))
    def wait_vm(self, tag):
        if ("MARK", tag) in self.vmq: tag = ("MARK", tag)
        if tag not in self.vmq: return
        idx = max(i for i, t in enumerate(self.vmq) if t == tag)
        n = sum(1 for t in self.vmq[idx + 1:] if not (isinstance(t, tuple) and t[0] == "MARK"))
        assert n <= 63
        self("s_waitcnt vmcnt(%d)" % n)
        self.vmq = self.vmq[idx + 1:]
    def ds(self, text, tag=None):
        self(text); self.dsq.append(tag)
    def wait_ds(self, tag):
        if tag not in self.dsq: return
        idx = max(i for i, t in enumerate(self.dsq) if t == tag)
        n = len(self.dsq) - 1 - idx
        self("s_waitcnt lgkmcnt(%d)" % min(n, 15))
        self.dsq = self.dsq[idx + 1:] if n <= 15 else self.dsq[len(self.dsq) - 15:]
    def wait_vm_all(self):
        self("s_waitcnt vmcnt(0)"); self.vmq = []
    def finalize(self):
        out = []
        hist = []
        for it in self.items:
            if isinstance(it, str):
                out.append(it); continue
            pad = 0; dist = 0
            for p in reversed(hist[-40:]):
                nd = need(p, it)
                if nd > dist: pad = max(pad, nd - dist)
                if p.blk is None or p.blk == it.blk: dist += p.ws
                if dist >= 24: break
            while pad > 0:
                k = min(pad, 16)
                nop = Ins("s_nop %d" % (k - 1), it.blk)
                hist.append(nop); out.append("    " + nop.text); pad -= k
            hist.append(it); out.append("    " + it.text)
        return "\n".join(out)
```

```python
import math, os
from gen8 import *

XST = ENV("XST", 4096); YST = ENV("YST", 4096)
def get_nonce(a, L, va, vd, pre=False):
    l1, l2, l3 = L("GN"), L("GN"), L("GN")
    a("s_mov_b32 s%d, %d" % (sCNT, SPIN))
    if pre: a("s_branch %s" % l3)
    a.label(l1)
    a("buffer_load_dwordx2 v[%d:%d], v%d, s[%d:%d], 0 offen sc1" % (vd, vd + 1, va, SDBG, SDBG + 3))
    a.label(l3)
    a("s_waitcnt vmcnt(0)")
    a("v_readfirstlane_b32 s%d, v%d" % (sNON, vd)); a("v_readfirstlane_b32 s%d, v%d" % (sNON + 1, vd + 1))
    a("s_cmp_lg_u32 s%d, 0" % (sNON + 1))
    a("s_cbranch_scc1 %s" % l2)
    a("s_sleep 8")
    a("s_sub_u32 s%d, s%d, 1" % (sCNT, sCNT)); a("s_cmp_lg_u32 s%d, 0" % sCNT)
    a("s_cbranch_scc1 %s" % l1)
    a.label(l2)

def helper(a, sk_, L, spin_lds):
    a.label("K_HELP")
    a.vmq = []
    a("s_setprio 3")
    a("s_load_dwordx2 s[60:61], s[0:1], 64")
    a("s_sub_u32 s%d, s%d, 4" % (sKW, sWV))
    a("s_cmp_lg_u32 s%d, 7" % sWV)
    a("s_cbranch_scc1 K_NZ")
    a.begin_opt()
    a("v_lshlrev_b32 v2, 2, v1"); a("v_add_u32 v2, %d, v2" % L_SYNC); a("v_mov_b32 v3, 0")
    a("ds_write_b32 v2, v3"); a("ds_write_b32 v2, v3 offset:512")
    a.end_opt()
    a.label("K_NZ")
    a("s_and_b32 s%d, s%d, 1" % (sHF, sKW))
    a("s_lshr_b32 s%d, s%d, 1" % (sT0, sKW))
    a("s_sub_u32 s%d, s2, 32" % sCH)
    a("s_lshl_b32 s%d, s%d, 1" % (sCH, sCH))
    a("s_add_u32 s%d, s%d, s%d" % (sCH, sCH, sT0))
    a("s_mul_i32 s%d, s%d, %d" % (sCVB, sT0, CV_CH))
    a("s_add_u32 s%d, s%d, %d" % (sCVB, sCVB, L_CV))
    a("s_lshl_b32 s%d, s%d, 8" % (sT0, sCH))
    a("s_lshl_b32 s%d, s%d, 7" % (sT1, sHF))
    a("s_add_u32 s%d, s%d, s%d" % (sT0, sT0, sT1))
    a("v_add_u32 v2, s%d, v1" % sT0)
    a("v_lshlrev_b32 v2, 1, v2")
    a("s_lshl_b32 s%d, s%d, 1" % (sT1, sCH))
    a("v_mov_b32 v3, s%d" % sT1)
    a("s_waitcnt lgkmcnt(0)")
    P = [[20, 21, 22, 23, 24, 25], [120, 121, 122, 123, 124, 125]]
    a.vm("global_load_ushort v26, v3, s[30:31]", "param")
    for it in range(2):
        for i in range(6):
            a.vm("global_load_ushort v%d, v2, s[%d:%d] offset:%d" % (P[it][i], 18 + 2 * i, 19 + 2 * i, it * 128), "param")
    a.vm("global_load_ushort v160, v3, s[60:61]", "param")
    a("s_setprio %d" % int(os.environ.get("KPRIO", "0")))
    a("s_barrier")
    srd(a, SWS, 14, WS_SIZE)
    a("s_mul_i32 s%d, s%d, %d" % (sSTG, sKW, STG_W))
    a("s_add_u32 s%d, s%d, %d" % (sSTG, sSTG, L_STG))
    a("v_and_b32 v7, 15, v1")
    a("v_lshrrev_b32 v6, 4, v1")
    a("v_mul_u32_u24 v5, 272, v7")
    a("v_lshl_add_u32 v8, v6, 4, s%d" % sSTG)
    a("v_add_u32 v5, v5, v8")
    maps = [[0,1,2,3,4,5,6,7, 8,8,9,10,10,10,11,12],
            [0,0,0,1,1,1,2,2, 3,3,3,4,4,4,5,5],
            [6,6,6,6,6,7,7,7, 8,8,8,8,8,9,9,9],
            [10,10,10,10,10,11,11,11, 12,12,12,12,12,13,13,13]]
    XA = [12, 13, 14, 15]
    a("v_lshlrev_b32 v9, 2, v7")
    a("v_and_b32 v9, 31, v9")
    a("v_cmp_gt_u32 vcc, 8, v7")
    for t in range(4):
        lo = sum(maps[t][i] << (4 * i) for i in range(8)); hi = sum(maps[t][8 + i] << (4 * i) for i in range(8))
        a("v_mov_b32 v10, 0x%x" % hi); a("v_mov_b32 v11, 0x%x" % lo)
        a("v_cndmask_b32 v10, v10, v11, vcc")
        a("v_lshrrev_b32 v10, v9, v10")
        a("v_and_b32 v10, 15, v10")
        a("v_mul_u32_u24 v10, 272, v10")
        a("v_add_u32 v%d, v10, v8" % XA[t])
    D = lambda t, yt: 128 + 8 * t + 4 * yt
    for r in range(128, 160): a("v_mov_b32 v%d, 0" % r)
    a("s_add_u32 s%d, s%d, %d" % (sT0, sKW, L_SYNC)); a("v_mov_b32 v161, s%d" % sT0)
    a("s_xor_b32 s%d, s%d, 1" % (sT1, sKW)); a("s_add_u32 s%d, s%d, %d" % (sT1, sT1, L_SYNC)); a("v_mov_b32 v162, s%d" % sT1)
    a("v_mov_b32 v163, 1")
    srd(a, SDBG, 12, 256)
    a("s_and_b32 s%d, s2, 7" % sT0); a("s_lshl_b32 s%d, s%d, 13" % (sT0, sT0)); a("s_add_u32 s%d, s%d, %d" % (sT0, sT0, WS_PF))
    a("v_and_b32 v112, 31, v1"); a("v_lshl_add_u32 v112, v112, 8, s%d" % sT0)
    a("v_mov_b32 v113, 64")
    a("v_mov_b32 v114, %d" % (L_SYNC + Y_RDA))
    a("s_cmp_lg_u32 s%d, 0" % sKW)
    a("s_cselect_b32 s%d, 0, 1" % sPM)
    def setf(off):
        a("s_mov_b64 exec, 1")
        a("ds_write_b8 v161, v163 offset:%d" % off)
        a("s_mov_b64 exec, -1")
    def waitp(off, tmp=164, tmpa=165):
        a("v_add_u32 v%d, %d, v162" % (tmpa, off))
        spin_lds(tmpa, tmp, 1)
    k = a
    def nonce_pub():
        ln2 = L("NF")
        a("s_cmp_eq_u32 s%d, 0" % sPM)
        a("s_cbranch_scc1 %s" % ln2)
        a.begin_opt()
        get_nonce(a, L, 113, 116, pre=True)
        a("s_mov_b64 exec, 1")
        a("ds_write_b64 v114, v[116:117] offset:%d" % (Y_NON - Y_RDA))
        a("s_mov_b64 exec, -1")
        a.end_opt()
        a.label(ln2)
    def pf_wd():
        srd(a, SWD, 8, 1792 * 896)
        a("s_lshr_b32 s%d, s2, 3" % sT0); a("s_sub_u32 s%d, s%d, 4" % (sT0, sT0)); a("s_lshl_b32 s%d, s%d, 2" % (sT0, sT0)); a("s_add_u32 s%d, s%d, s%d" % (sT0, sT0, sKW))
        a("s_mul_i32 s%d, s%d, %d" % (sT0, sT0, 112 * 128))
        a("v_lshlrev_b32 v200, 7, v1")
        a("s_add_u32 s%d, s%d, %d" % (sT1, sT0, 48 * 128))
        a("buffer_load_dword v201, v200, s[%d:%d], s%d offen" % (SWD, SWD + 3, sT0))
        a("buffer_load_dword v202, v200, s[%d:%d], s%d offen" % (SWD, SWD + 3, sT1))
    PFW = ENV("PFW", -1)
    a.wait_vm("param")
    if PFW == 0: pf_wd()
    sk_("param")
    a("s_mov_b32 exec_lo, s%d" % sPM); a("s_mov_b32 exec_hi, 0")
    a("buffer_load_dwordx2 v[116:117], v113, s[%d:%d], 0 offen sc1" % (SDBG, SDBG + 3))
    a("s_mov_b64 exec, -1")
    if "nokgen" in EXP: nonce_pub()
    for it in range(2):
        for r in P[it]: k("v_lshlrev_b32 v%d, 16, v%d" % (r, r))
    k("v_lshlrev_b32 v26, 16, v26")
    k("v_mul_f32 v26, %s, v26" % fbits(LOG2E))
    k("v_exp_f32 v26, v26")
    k("v_cvt_pk_bf16_f32 v26, v26, v26")
    k("v_lshlrev_b32 v26, 16, v26")
    WR = [28, 126]
    for it in range(2):
        p = P[it]
        k("v_mul_f32 v%d, v26, v%d" % (p[0], p[0])); k("v_mul_f32 v%d, v26, v%d" % (p[1], p[1]))
        k("v_mul_f32 v%d, v26, v%d" % (p[2], p[2])); k("v_mul_f32 v%d, v26, v%d" % (p[3], p[3]))
        w = WR[it]
        k("v_mul_f32 v%d, v%d, v%d" % (w, p[4], p[2])); k("v_fma_f32 v%d, -v%d, v%d, v%d" % (w, p[5], p[3], w))
        k("v_mul_f32 v%d, v%d, v%d" % (w + 1, p[4], p[3])); k("v_fma_f32 v%d, v%d, v%d, v%d" % (w + 1, p[5], p[2], w + 1))
    k("v_max_f32 v27, abs(v28), abs(v29)")
    k("v_max3_f32 v27, abs(v126), abs(v127), v27")
    for sh in (1, 2, 4, 8):
        k("v_max_f32_dpp v27, v27, v27 row_shr:%d row_mask:0xf bank_mask:0xf" % sh)
    k("v_max_f32_dpp v27, v27, v27 row_bcast:15 row_mask:0xa bank_mask:0xf")
    k("v_max_f32_dpp v27, v27, v27 row_bcast:31 row_mask:0xc bank_mask:0xf")
    k("v_readlane_b32 s%d, v27, 63" % sINV)
    k("s_lshr_b32 s%d, s%d, 23" % (sINV, sINV))
    k("s_sub_u32 s%d, 254, s%d" % (sSC, sINV))
    k("s_lshl_b32 s%d, s%d, 23" % (sSC, sSC))
    k("v_mov_b32 v10, s%d" % sINV)
    k("s_lshl_b32 s%d, s%d, 2" % (sT1, sKW))
    k("s_add_u32 s%d, s%d, %d" % (sT1, sT1, L_SYNC + Y_KEXP))
    k("v_mov_b32 v11, s%d" % sT1)
    k("ds_write_b32 v11, v10")
    for w in WR:
        k("v_mul_f32 v%d, s%d, v%d" % (w, sSC, w)); k("v_mul_f32 v%d, s%d, v%d" % (w + 1, sSC, w + 1))
    k("s_mov_b32 m0, s%d" % sSTG)
    E1, E8, E256, E2, E4, E16 = 30, 32, 34, 36, 38, 40
    tmpi = [0]
    def cmul(d, x, y):
        t = 42 + (tmpi[0] & 3); tmpi[0] += 1
        assert d != y
        k("v_mul_f32 v%d, v%d, v%d" % (t, x, y + 1))
        k("v_mul_f32 v%d, v%d, v%d" % (d, x, y))
        k("v_fma_f32 v%d, -v%d, v%d, v%d" % (d, x + 1, y + 1, d))
        k("v_fma_f32 v%d, v%d, v%d, v%d" % (d + 1, x + 1, y, t))
    PK = [46, 47, 48, 49]; pki = [0]
    def put(row, r, negim=False):
        p = PK[pki[0] & 3]; pki[0] += 1
        k("v_cvt_pk_f16_f32 v%d, v%d, %sv%d" % (p, r, "-" if negim else "", r + 1))
        k("ds_write_addtid_b32 v%d offset:%d" % (p, row * 272))
    YF = [64, 80]; XFB = 96
    for it in range(2 if "nokgen" not in EXP else 0):
        are, aim = P[it][0], P[it][1]
        if it == 1 and PFW == 1: pf_wd()
        X0 = WR[it]
        def cexp(d, Lx):
            k("v_mul_f32 v16, %s, v%d" % (fbits(Lx * LOG2E), are))
            k("v_mul_f32 v17, %s, v%d" % (fbits(Lx / (2 * math.pi)), aim))
            k("v_exp_f32 v16, v16")
            k("v_fract_f32 v17, v17")
            k("v_cos_f32 v%d, v17" % d)
            k("v_sin_f32 v%d, v17" % (d + 1))
            k("v_mul_f32 v%d, v16, v%d" % (d, d))
            k("v_mul_f32 v%d, v16, v%d" % (d + 1, d + 1))
        cexp(E8, 8); cexp(E1, 1); cexp(E256, 256)
        cmul(E16, E8, E8); cmul(E2, E1, E1); cmul(E4, E2, E2)
        Ya, Yb = 50, 52
        k("v_mov_b32 v50, 1.0"); k("v_mov_b32 v51, 0")
        put(0, Ya); put(1, E8)
        cmul(Yb, E8, E16)
        put(2, E16); put(3, Yb)
        cmul(Ya, E16, E16)
        for j in range(4, 32, 2):
            cmul(Yb, Yb, E16)
            put(j & 15, Ya); put((j + 1) & 15, Yb)
            if j + 2 < 32: cmul(Ya, Ya, E16)
            if j == 14:
                for ks in range(4): k("ds_read_b128 %s, v5 offset:%d" % (vr(YF[0] + 4 * ks, 4), ks * 64))
        for ks in range(4): k("ds_read_b128 %s, v5 offset:%d" % (vr(YF[1] + 4 * ks, 4), ks * 64))
        Xa, Xb, Xc = 54, 56, 58
        if it == 0: nonce_pub()
        put(0, X0, True)
        cmul(Xa, X0, E1); cmul(Xb, X0, E256)
        put(1, Xa, True); put(8, Xb, True)
        cmul(Xc, Xb, E2)
        for r in range(2, 8):
            cmul(Xa, Xa, E1); put(r, Xa, True)
            if r <= 5:
                put(9 + (r - 2), Xc, True)
                if r < 5: cmul(Xc, Xc, E2)
        def xtile(t):
            for ks in range(4): k("ds_read_b128 %s, v%d offset:%d" % (vr(XFB + 4 * ks, 4), XA[t], ks * 64))
        def xmfma(t):
            for ks in range(4):
                for yt in range(2):
                    k("v_mfma_f32_16x16x32_f16 %s, %s, %s, %s" % (vr(D(t, yt), 4), vr(XFB + 4 * ks, 4), vr(YF[yt] + 4 * ks, 4), vr(D(t, yt), 4)))
        xtile(0)
        for b in range(2):
            cmul(Xb, Xb, E256); put(3 * b, Xb, True)
            cmul(Xc, Xb, E4); put(3 * b + 1, Xc, True)
            cmul(Xa, Xb, E8); put(3 * b + 2, Xa, True)
        k("s_waitcnt lgkmcnt(6)")
        xmfma(0)
        xtile(1)
        for b in range(4):
            cmul(Xb, Xb, E256); put(6 + 2 * b, Xb, True)
            cmul(Xa, Xb, E8); put(7 + 2 * b, Xa, True)
        k("s_waitcnt lgkmcnt(8)")
        xmfma(1)
        for t in (2, 3):
            xtile(t)
            k("s_waitcnt lgkmcnt(0)")
            xmfma(t)
    sk_("kgen")
    a("v_mov_b32 v168, v112")
    a("s_cmp_lg_u32 s%d, 0" % sPM); a("s_cselect_b32 exec_lo, -1, 0"); a("s_mov_b32 exec_hi, 0")
    a("buffer_load_dword v169, v168, s[%d:%d], 0 offen sc1" % (SWS, SWS + 3))
    a("s_mov_b64 exec, -1")
    a("v_lshl_add_u32 v18, v1, 4, s%d" % sSTG)
    a("s_xor_b32 s%d, s%d, 1" % (sT0, sKW))
    a("s_mul_i32 s%d, s%d, %d" % (sT0, sT0, STG_W))
    a("s_add_u32 s%d, s%d, %d" % (sT0, sT0, L_STG))
    a("v_lshl_add_u32 v19, v1, 4, s%d" % sT0)
    x1, x2 = L("X"), L("X")
    a("s_cmp_lg_u32 s%d, 0" % sHF)
    a("s_cbranch_scc1 %s" % x1)
    a.begin_opt()
    for i in range(4): a("ds_write_b128 v18, %s offset:%d" % (vr(144 + 4 * i, 4), i * 1024))
    a("s_branch %s" % x2)
    a.end_opt()
    a.label(x1)
    a.begin_opt()
    for i in range(4): a("ds_write_b128 v18, %s offset:%d" % (vr(128 + 4 * i, 4), i * 1024))
    for i in range(16): a("v_mov_b32 v%d, v%d" % (128 + i, 144 + i))
    a.end_opt()
    a.label(x2)
    setf(Y_KX)
    waitp(Y_KX)
    a("s_and_b32 s%d, s%d, 2" % (sT0, sKW))
    a("s_lshl_b32 s%d, s%d, 2" % (sT0, sT0))
    a("s_add_u32 s%d, s%d, %d" % (sT0, sT0, L_SYNC + Y_KEXP))
    a("v_mov_b32 v10, s%d" % sT0)
    a("ds_read_b64 v[10:11], v10")
    for i in range(4): a("ds_read_b128 %s, v19 offset:%d" % (vr(144 + 4 * i, 4), i * 1024))
    a("s_waitcnt lgkmcnt(4)")
    a("v_max_u32 v16, v10, v11")
    a("v_add_u32 v17, v10, v11"); a("v_subrev_u32 v17, s%d, v17" % sINV)
    def fac(dst, esrc):
        a("v_sub_u32 v%d, %s, v16" % (dst, esrc))
        a("v_add_u32 v%d, 127, v%d" % (dst, dst))
        a("v_max_i32 v%d, 0, v%d" % (dst, dst))
        a("v_lshlrev_b32 v%d, 23, v%d" % (dst, dst))
    fac(20, "s%d" % sINV); fac(22, "v17")
    a("v_lshlrev_b32 v9, 23, v16")
    a("s_waitcnt lgkmcnt(0)")
    for i in range(16):
        a("v_mul_f32 v%d, v20, v%d" % (128 + i, 128 + i))
        a("v_fmac_f32 v%d, v22, v%d" % (128 + i, 144 + i))
    a("v_and_b32 v10, v6, v7"); a("v_and_b32 v10, s%d, v10" % sHF)
    a("v_cmp_ne_u32 vcc, 0, v10")
    for i in range(4): a("v_cndmask_b32 v%d, v%d, v%d, vcc" % (128 + 4 * i, 128 + 4 * i, 129 + 4 * i))
    a("v_lshrrev_b32 v10, 1, v6"); a("v_lshlrev_b32 v10, 9, v10")
    a("v_lshl_add_u32 v10, v7, 4, v10")
    a("v_and_b32 v11, 1, v6"); a("v_lshl_add_u32 v10, v11, 3, v10")
    a("s_add_u32 s%d, s%d, %d" % (sT0, sCVB, 4088 - 1024 - 256))
    a("s_lshl_b32 s%d, s%d, 11" % (sT2, sHF))
    a("s_sub_u32 s%d, s%d, s%d" % (sT0, sT0, sT2))
    a("v_sub_u32 v10, s%d, v10" % sT0)
    for tl in range(2):
        for yt in range(2):
            b = 128 + 8 * tl + 4 * yt
            a("v_cvt_pk_f16_f32 v%d, v%d, v%d" % (64 + 4 * tl + 2 * yt, b + 3, b + 2))
            a("v_cvt_pk_f16_f32 v%d, v%d, v%d" % (65 + 4 * tl + 2 * yt, b + 1, b))
    a("v_and_b32 v11, 3, v1"); a("v_add_u32 v11, %d, v11" % (L_SYNC + Y_CNT))
    spin_lds(11, 164, 10, slp=4, off=Y_RD)
    for tl in range(2):
        for yt in range(2):
            a("ds_write_b64 v10, %s offset:%d" % (vr(64 + 4 * tl + 2 * yt, 2), (1 - tl) * 1024 + (1 - yt) * 256))
    if "dbgk" in EXP:
        a("s_mul_i32 s%d, s%d, %d" % (sT0, sCH, KSTRIDE)); a("s_sub_u32 s%d, s%d, s%d" % (sT0, sT0, sCVB)); a("s_add_u32 s%d, s%d, %d" % (sT0, sT0, WS_KREV))
        for tl in range(2):
            for yt in range(2):
                a("buffer_store_dwordx2 %s, v10, s[%d:%d], s%d offen offset:%d" % (vr(64 + 4 * tl + 2 * yt, 2), SWS, SWS + 3, sT0, (1 - tl) * 1024 + (1 - yt) * 256))
        a("s_lshl_b32 s%d, s%d, 2" % (sT0, sCH)); a("s_add_u32 s%d, s%d, %d" % (sT0, sT0, WS_KSC)); a("v_mov_b32 v11, s%d" % sT0)
        a("buffer_store_dword v9, v11, s[%d:%d], 0 offen" % (SWS, SWS + 3))
    a("s_setprio %d" % int(os.environ.get("CPRIO", "3")))
    a("v_mov_b32 v2, v7"); a("v_mov_b32 v3, v6")
    a("v_lshlrev_b32 v4, 4, v1")
    a("v_mov_b32 v12, 0"); a("v_mov_b32 v13, 0"); a("v_mov_b32 v14, 0"); a("v_mov_b32 v15, 0")
    a("v_add_u32 v5, %d, v4" % O_U)
    a("v_bfe_u32 v6, v1, 2, 2")
    a("v_mul_u32_u24 v6, %d, v6" % CPS)
    a("v_and_b32 v7, 3, v1")
    a("v_lshl_add_u32 v6, v7, 4, v6")
    a("v_add_u32 v6, 4096, v6")
    a("v_cmp_gt_u32 vcc, 32, v1")
    a("v_cndmask_b32 v5, v6, v5, vcc")
    a("v_add_u32 v5, s%d, v5" % sCVB)
    nz = L("NZ")
    a("s_cmp_lg_u32 s%d, 0" % sHF)
    a("s_cbranch_scc1 %s" % nz)
    a.begin_opt()
    a("s_mov_b32 exec_lo, 0x3fffffff"); a("s_mov_b32 exec_hi, 0xffff")
    a("ds_write_b128 v5, v[12:15]")
    a("s_mov_b64 exec, -1")
    a.end_opt()
    a.label(nz)
    setf(Y_C0)
    a("v_sub_u32 v5, 3, v2"); a("v_and_b32 v5, 3, v5")
    a("v_mul_u32_u24 v6, %d, v5" % CPS)
    a("v_add_u32 v7, v2, v5")
    a("v_sub_u32 v7, %d, v7" % (2031 - 16 * 126))
    a("v_lshl_add_u32 v7, v3, 3, v7")
    a("v_lshl_add_u32 v6, v7, 1, v6")
    a("s_lshl_b32 s%d, s%d, 8" % (sT0, sHF))
    a("s_sub_u32 s%d, s%d, s%d" % (sT1, sCVB, sT0))
    a("v_add_u32 v6, s%d, v6" % sT1)
    a("v_lshlrev_b32 v7, 5, v2")
    a("v_lshl_add_u32 v7, v3, 4, v7")
    a("v_add_u32 v7, %d, v7" % O_U)
    a("v_add_u32 v7, s%d, v7" % sT1)
    a("s_add_u32 s%d, s%d, s%d" % (sT3, sCVB, sT2))
    a("v_add_u32 v5, s%d, v4" % sT3)
    lq, lq2, lq3 = L("PB"), L("PB"), L("PB")
    a("s_cmp_eq_u32 s%d, 0" % sPM)
    a("s_cbranch_scc1 %s" % lq3)
    a.begin_opt()
    a("s_mov_b32 s%d, %d" % (sOX, SPIN))
    a.label(lq)
    a("s_waitcnt vmcnt(0)")
    a("v_cmp_ne_u32 vcc, s%d, v169" % sNON)
    a("s_cmp_eq_u32 vcc_lo, 0")
    a("s_cbranch_scc1 %s" % lq2)
    a("s_sleep %d" % int(os.environ.get("PSL", "8")))
    a("s_mov_b32 exec_hi, 0")
    a("buffer_load_dword v169, v168, s[%d:%d], 0 offen sc1" % (SWS, SWS + 3))
    a("s_mov_b64 exec, -1")
    a("s_sub_u32 s%d, s%d, 1" % (sOX, sOX)); a("s_cmp_lg_u32 s%d, 0" % sOX)
    a("s_cbranch_scc1 %s" % lq)
    a.label(lq2)
    a("s_mov_b64 exec, 1")
    a("ds_write_b8 v114, v163 offset:1")
    a("s_mov_b64 exec, -1")
    a.end_opt()
    a.label(lq3)
    spin_lds(114, 164, 1, slp=2, off=1)
    a("ds_read_b64 v[166:167], v114 offset:%d" % (Y_NON - Y_RDA))
    sk_("rdyB")
    a("s_mul_i32 s%d, s%d, %d" % (sT1, sCH, XST))
    a("s_add_u32 s%d, s%d, %d" % (sT1, sT1, WS_XNT))
    a("s_add_u32 s%d, s%d, s%d" % (sT1, sT1, sT2))
    a("s_add_u32 m0, s%d, %d" % (sT3, O_U + 480))
    a.vm("buffer_load_dwordx4 v4, s[%d:%d], s%d offen lds" % (SWS, SWS + 3, sT1), "u")
    a.vm("buffer_load_dwordx4 v4, s[%d:%d], s%d offen offset:1024 lds" % (SWS, SWS + 3, sT1), "u")
    waitp(Y_C0)
    for it in range(2):
        b = 32 + 8 * it
        a("ds_read_b128 %s, v5 offset:%d" % (vr(b, 4), it * 1024))
        a("ds_read_b64 %s, v5 offset:%d" % (vr(b + 4, 2), it * 1024 + 16))
    for it in range(2):
        b = 32 + 8 * it
        a("s_waitcnt lgkmcnt(%d)" % (2 if it == 0 else 3))
        d = [b + i for i in range(6)]
        c1, c2, c3 = 64 + 12 * it, 68 + 12 * it, 72 + 12 * it
        for i in range(4):
            a("v_alignbit_b32 v%d, v%d, v%d, 16" % (c1 + i, d[i + 1], d[i]))
            a("v_mov_b32 v%d, v%d" % (c2 + i, d[i + 1]))
            a("v_alignbit_b32 v%d, v%d, v%d, 16" % (c3 + i, d[i + 2], d[i + 1]))
        a("ds_write_b128 v5, %s offset:%d" % (vr(c1, 4), CPS + it * 1024))
        a("ds_write_b128 v5, %s offset:%d" % (vr(c2, 4), 2 * CPS + it * 1024))
        a("ds_write_b128 v5, %s offset:%d" % (vr(c3, 4), 3 * CPS + it * 1024))
    sk_("copies")
    CA = 16; G = 64; F = 96
    for r in range(CA, CA + 32): a("v_mov_b32 v%d, 0" % r)
    a.wait_vm("u")
    a("s_waitcnt lgkmcnt(0)")
    setf(Y_BL)
    waitp(Y_BL)
    sk_("built")
    def rg(ri, q):
        o = 32 * (126 - 16 * q - 2 * ri)
        a("ds_read_b64 %s, v6 offset:%d" % (vr(G + 4 * q, 2), o))
        a("ds_read_b64 %s, v6 offset:%d" % (vr(G + 4 * q + 2, 2), o + 8))
    def rf(ri, j):
        a("ds_read_b128 %s, v7 offset:%d" % (vr(F + 4 * j, 4), 32 * (16 * j - 2 * ri + 14)))
    side = []
    S = side.append
    S("v_lshlrev_b32 v8, 16, v160")
    XW, XO = 176, 184
    for i in range(4):
        for pr in range(2):
            xw = XW + 2 * i + pr; o = XO + 4 * i + 2 * pr
            S("v_cvt_f32_f16 v%d, v%d" % (o, xw))
            S("v_lshrrev_b32 v%d, 16, v%d" % (o + 1, xw)); S("v_cvt_f32_f16 v%d, v%d" % (o + 1, o + 1))
            S("v_mul_f32 v%d, v8, v%d" % (o, o)); S("v_mul_f32 v%d, v8, v%d" % (o + 1, o + 1))
            S("v_cvt_pk_bf16_f32 v%d, v%d, v%d" % (o, o, o + 1))
            S("v_and_b32 v%d, 0xffff0000, v%d" % (o + 1, o)); S("v_lshlrev_b32 v%d, 16, v%d" % (o, o))
    S("v_lshl_add_u32 v5, v1, 4, s%d" % sSTG)
    S("s_xor_b32 s%d, s%d, 1" % (sT0, sKW))
    S("s_mul_i32 s%d, s%d, %d" % (sT0, sT0, STG_W))
    S("s_add_u32 s%d, s%d, %d" % (sT0, sT0, L_STG))
    S("v_lshl_add_u32 v200, v1, 4, s%d" % sT0)
    S("v_and_b32 v13, 1, v3"); S("v_lshlrev_b32 v13, 9, v13")
    S("v_lshrrev_b32 v14, 2, v2"); S("v_lshl_add_u32 v13, v14, 7, v13")
    S("v_lshrrev_b32 v14, 1, v3"); S("v_lshl_add_u32 v13, v14, 6, v13")
    S("v_and_b32 v14, 3, v2"); S("v_lshl_add_u32 v13, v14, 4, v13")
    S("v_add_u32 v13, s%d, v13" % sT2)
    S("s_and_b32 s%d, s%d, 0xfffe" % (sT0, sCH)); S("s_add_u32 s%d, s%d, s%d" % (sT0, sT0, sHF)); S("s_lshl_b32 s%d, s%d, 8" % (sT0, sT0))
    S("s_and_b32 s%d, s%d, 1" % (sT1, sCH)); S("s_lshl_b32 s%d, s%d, 3" % (sT1, sT1))
    S("s_add_u32 s%d, s%d, s%d" % (sT0, sT0, sT1))
    S("s_add_u32 s%d, s%d, %d" % (sT0, sT0, WS_CF))
    S("v_mov_b32 v14, s%d" % sT0)
    S("v_readfirstlane_b32 s%d, v166" % sNON); S("v_readfirstlane_b32 s%d, v167" % (sNON + 1))
    S("s_lshl_b32 s%d, s%d, 14" % (sT0, sCT))
    S("s_lshl_b32 s%d, s%d, 12" % (sT1, sKW))
    S("s_add_u32 s%d, s%d, s%d" % (sT0, sT0, sT1))
    S("s_lshr_b32 s%d, s%d, 4" % (sT1, sRT2)); S("s_lshl_b32 s%d, s%d, 8" % (sT1, sT1))
    S("s_add_u32 s%d, s%d, s%d" % (sT0, sT0, sT1))
    S("s_add_u32 s%d, s%d, %d" % (sT0, sT0, WS_CF))
    S("v_lshrrev_b32 v201, 1, v2"); S("v_lshl_add_u32 v201, v201, 9, s%d" % sT0)
    S("v_and_b32 v202, 1, v2"); S("v_lshl_add_u32 v201, v202, 3, v201")
    S("s_lshl_b32 s%d, s%d, 4" % (sT0, sKW))
    S("v_lshrrev_b32 v202, 3, v1")
    S("v_add_u32 v202, s%d, v202" % sT0)
    S("s_lshl_b32 s%d, s%d, 6" % (sT0, sCT))
    S("v_add_u32 v202, s%d, v202" % sT0)
    S("v_mul_u32_u24 v202, %d, v202" % YST)
    S("v_and_b32 v203, 7, v1")
    S("v_lshl_add_u32 v202, v203, 4, v202")
    S("s_lshl_b32 s%d, s%d, 7" % (sT2, sRT2))
    S("s_add_u32 s%d, s%d, %d" % (sT2, sT2, WS_YAT))
    S("s_add_u32 s%d, s%d, %d" % (sT3, sT2, 8 * YST))
    S("s_mul_i32 s%d, s%d, %d" % (sT0, sCH, YST))
    S("s_add_u32 s%d, s%d, %d" % (sT0, sT0, WS_YAT))
    S("v_add_u32 v165, %d, v162" % Y_CX)
    a("v_lshlrev_b32 v13, 5, v2")
    a("v_lshl_add_u32 v13, v3, 3, v13")
    a("s_add_u32 s%d, s%d, %d" % (sT1, sT3, O_U + 480))
    a("v_add_u32 v14, s%d, v13" % sT1)
    for i in range(4): a("ds_read_b64 %s, v14 offset:%d" % (vr(XW + 2 * i, 2), i * 512))
    for q in range(8): rg(0, q); rf(0, 7 - q)
    nm = 0
    for ri in range(4):
        for q in range(8):
            for m in range(7, q - 1, -1):
                if q == 0:
                    a("s_waitcnt lgkmcnt(%d)" % min(15, 3 * m))
                a("v_mfma_f32_16x16x32_f16 %s, %s, %s, %s" % (vr(CA + 4 * m, 4), vr(G + 4 * q, 4), vr(F + 4 * (m - q), 4), vr(CA + 4 * m, 4)))
                nm += 1
                if nm > 8 and side:
                    a(side.pop(0))
                    while side and side[0].startswith("s_"): a(side.pop(0))
            if ri + 1 < 4: rg(ri + 1, q); rf(ri + 1, 7 - q)
    assert not side
    sk_("mfma")
    x1, x2 = L("X"), L("X")
    a("s_cmp_lg_u32 s%d, 0" % sHF)
    a("s_cbranch_scc1 %s" % x1)
    a.begin_opt()
    for i in range(4): a("ds_write_b128 v5, %s offset:%d" % (vr(CA + 16 + 4 * i, 4), i * 1024))
    a("s_mov_b64 exec, 1")
    a("ds_write_b8 v161, v163 offset:%d" % Y_CX)
    a("s_mov_b64 exec, -1")
    a("s_branch %s" % x2)
    a.end_opt()
    a.label(x1)
    a.begin_opt()
    for i in range(4): a("ds_write_b128 v5, %s offset:%d" % (vr(CA + 4 * i, 4), i * 1024))
    a("s_mov_b64 exec, 1")
    a("ds_write_b8 v161, v163 offset:%d" % Y_CX)
    a("s_mov_b64 exec, -1")
    for i in range(16): a("v_mov_b32 v%d, v%d" % (CA + i, CA + 16 + i))
    a.end_opt()
    a.label(x2)
    spin_lds(165, 164, 1, slp=0)
    for i in range(4): a("ds_read_b128 %s, v200 offset:%d" % (vr(CA + 16 + 4 * i, 4), i * 1024))
    for i in range(4):
        a("s_waitcnt lgkmcnt(%d)" % (3 - i))
        for pr in range(2):
            y = CA + 4 * i + 2 * pr; o = XO + 4 * i + 2 * pr
            a("v_add_f32 v%d, v%d, v%d" % (y, y, y + 16)); a("v_add_f32 v%d, v%d, v%d" % (y + 1, y + 1, y + 17))
            a("v_mul_f32 v%d, v9, v%d" % (y, y)); a("v_mul_f32 v%d, v9, v%d" % (y + 1, y + 1))
            a("v_cvt_pk_bf16_f32 v%d, v%d, v%d" % (y, y, y + 1))
            a("v_and_b32 v%d, 0xffff0000, v%d" % (y + 1, y)); a("v_lshlrev_b32 v%d, 16, v%d" % (y, y))
            a("v_add_f32 v%d, v%d, v%d" % (y, y, o)); a("v_add_f32 v%d, v%d, v%d" % (y + 1, y + 1, o + 1))
            a("v_cvt_pk_bf16_f32 v%d, v%d, v%d" % (72 + 2 * i + pr, y, y + 1))
        if i & 1:
            b = 72 + 4 * (i >> 1)
            a("v_permlane16_swap_b32 v%d, v%d" % (b, b + 2)); a("v_permlane16_swap_b32 v%d, v%d" % (b + 1, b + 3))
            a("buffer_store_dwordx4 %s, v13, s[%d:%d], s%d offen offset:%d sc1" % (vr(b, 4), SWS, SWS + 3, sT0, (i >> 1) * 1024))
    setf(Y_XR)
    a("s_waitcnt vmcnt(0)")
    a("s_mov_b64 exec, 1")
    a("buffer_store_dwordx2 v[166:167], v14, s[%d:%d], 0 offen sc1" % (SWS, SWS + 3))
    a("s_mov_b64 exec, -1")
    sk_("flag")
    a("s_setprio 0")
    a("s_sleep %d" % int(os.environ.get("CSL0", "8")))
    lp, ld = L("CP"), L("CP")
    a("s_mov_b32 s%d, %d" % (sOX, SPIN))
    a.label(lp)
    a("s_mov_b64 exec, 0xffff")
    a("buffer_load_dwordx2 v[20:21], v201, s[%d:%d], 0 offen sc1" % (SWS, SWS + 3))
    a("s_waitcnt vmcnt(0)")
    a("v_cmp_ne_u64 vcc, s[%d:%d], v[20:21]" % (sNON, sNON + 1))
    a("s_mov_b64 exec, -1")
    a("s_cbranch_vccz %s" % ld)
    a("s_sleep %d" % int(os.environ.get("CSL", "8")))
    a("s_sub_u32 s%d, s%d, 1" % (sOX, sOX)); a("s_cmp_lg_u32 s%d, 0" % sOX)
    a("s_cbranch_scc1 %s" % lp)
    a.label(ld)
    sk_("polled")
    a("buffer_load_dwordx4 v[104:107], v202, s[%d:%d], s%d offen" % (SWS, SWS + 3, sT2))
    a("buffer_load_dwordx4 v[108:111], v202, s[%d:%d], s%d offen" % (SWS, SWS + 3, sT3))
    waitp(Y_XR)
    a("s_waitcnt vmcnt(0)")
    a("ds_write_b128 v5, v[104:107]")
    a("ds_write_b128 v5, v[108:111] offset:1024")
    setf(Y_YA)
    a("s_waitcnt lgkmcnt(0)")
    sk_("end")
    sk_.store(100)
    a("s_endpgm")

def producer(a, sp_, L, spin_lds):
    a.label("K_PROD")
    a.vmq = []
    a.nopkw = True
    XT_S = 912
    L_PC = 64 * XT_S
    a("v_lshrrev_b32 v2, 3, v1")
    a("v_and_b32 v3, 7, v1")
    a("s_lshr_b32 s%d, s2, 3" % sT1)
    a("s_bfe_u32 s%d, s2, 0x20001" % sT0); a("s_lshl_b32 s%d, s%d, 3" % (sR, sT0)); a("s_lshl_b32 s%d, s%d, 1" % (sT1, sT1))
    a("s_add_u32 s%d, s%d, s%d" % (sR, sR, sT1)); a("s_and_b32 s%d, s2, 1" % sT0); a("s_add_u32 s%d, s%d, s%d" % (sR, sR, sT0))
    a("s_lshr_b32 s%d, s2, 1" % sF); a("s_min_u32 s%d, s%d, 13" % (sF, sF)); a("s_mul_i32 s%d, s%d, 14" % (sT0, sT0)); a("s_add_u32 s%d, s%d, s%d" % (sF, sF, sT0))
    a("s_lshl_b32 s%d, s%d, 3" % (sT0, sWV))
    a("v_add_u32 v4, s%d, v2" % sT0)
    a("s_lshl_b32 s%d, s%d, 6" % (sT1, sR))
    a("v_add_u32 v5, s%d, v4" % sT1)
    a("v_mul_u32_u24 v6, 896, v5")
    a("v_lshl_add_u32 v6, v3, 4, v6")
    a("s_waitcnt lgkmcnt(0)")
    srd(a, SX, 16, 2048 * 896)
    for i in range(7):
        a.vm("buffer_load_dwordx4 %s, v6, s[%d:%d], 0 offen offset:%d" % (vr(32 + 4 * i, 4), SX, SX + 3, i * 128), "x%d" % i)
    srd(a, SWS, 14, WS_SIZE)
    srd(a, SDBG, 12, 256)
    ln = L("NN")
    a("s_or_b32 s%d, s2, s%d" % (sT0, sWV))
    a("s_cbranch_scc1 %s" % ln)
    a.begin_opt()
    a("s_memrealtime s[%d:%d]" % (sNON, sNON + 1))
    a("s_waitcnt lgkmcnt(0)")
    a("s_or_b32 s%d, s%d, 0x40000000" % (sNON + 1, sNON + 1)); a("s_or_b32 s%d, s%d, 1" % (sNON, sNON))
    a("v_mov_b32 v12, s%d" % sNON); a("v_mov_b32 v13, s%d" % (sNON + 1)); a("v_mov_b32 v14, 64")
    a("s_mov_b64 exec, 1")
    a("buffer_store_dwordx2 v[12:13], v14, s[%d:%d], 0 offen sc1" % (SDBG, SDBG + 3))
    a("s_mov_b64 exec, -1")
    a.end_opt()
    a.label(ln)
    a("s_lshr_b32 s%d, s%d, 1" % (sT1, sWV))
    a("s_mul_i32 s%d, s%d, %d" % (sT1, sT1, 112 * 3584))
    a("s_lshl_b32 s%d, s%d, 7" % (sT2, sF))
    a("s_add_u32 s%d, s%d, s%d" % (sT1, sT1, sT2))
    a("v_mul_u32_u24 v9, 3584, v2")
    a("v_lshl_add_u32 v9, v3, 4, v9")
    a("v_add_u32 v9, s%d, v9" % sT1)
    a("s_bitcmp0_b32 s%d, 0" % sWV)
    a("s_cselect_b32 s%d, s32, s34" % SWG)
    a("s_cselect_b32 s%d, s33, s35" % (SWG + 1))
    a("s_and_b32 s%d, s%d, 0xffff" % (SWG + 1, SWG + 1))
    a("s_mov_b32 s%d, 0x%x" % (SWG + 2, 448 * 3584))
    a("s_mov_b32 s%d, 0x00020000" % (SWG + 3))
    wq = list(range(14))
    def ldw(n):
        for _ in range(n):
            if not wq: return
            i = wq.pop(0)
            a("s_mov_b32 s%d, %d" % (sOW, i * 8 * 3584))
            a.vm("buffer_load_dwordx4 %s, v9, s[%d:%d], s%d offen" % (vr(64 + 4 * i, 4), SWG, SWG + 3, sOW), "w%d" % i)
    a("s_mov_b32 s%d, 0x3f803f80" % sONES)
    a("v_mov_b32 v10, 0"); a("v_mov_b32 v11, 0"); a("v_mov_b32 v12, 0"); a("v_mov_b32 v13, 0")
    a("v_mul_u32_u24 v7, %d, v4" % XT_S)
    a("v_lshl_add_u32 v7, v3, 4, v7")
    a("v_lshlrev_b32 v8, 4, v5")
    a("s_lshl_b32 s%d, s2, 8" % sT2); a("s_add_u32 s%d, s%d, %d" % (sT2, sT2, WS_PF))
    a("v_lshl_add_u32 v28, v1, 13, s%d" % sT2)
    a("s_lshl_b32 s%d, s%d, 8" % (sT0, sR)); a("s_add_u32 s%d, s%d, %d" % (sT0, sT0, WS_FR))
    a("s_lshl_b32 s%d, s%d, 8" % (sT1, sF)); a("s_add_u32 s%d, s%d, %d" % (sT1, sT1, WS_FC))
    a("s_cmp_eq_u32 s%d, 0" % sWV); a("s_cselect_b32 s%d, s%d, s%d" % (sT0, sT0, sT1)); a("v_mov_b32 v29, s%d" % sT0)
    a("v_mov_b32 v30, 64")
    for i in range(7):
        a.wait_vm("x%d" % i)
        for r in range(4):
            a("v_dot2_f32_bf16 v%d, v%d, s%d, v%d" % (10 + 2 * (r & 1), 32 + 4 * i + r, sONES, 10 + 2 * (r & 1)))
            a("v_dot2_f32_bf16 v%d, v%d, v%d, v%d" % (11 + 2 * (r & 1), 32 + 4 * i + r, 32 + 4 * i + r, 11 + 2 * (r & 1)))
    ldw(ENV("PW0", 6))
    a("v_add_f32 v10, v10, v12"); a("v_add_f32 v11, v11, v13")
    for mod in ("quad_perm:[1,0,3,2]", "quad_perm:[2,3,0,1]", "row_half_mirror"):
        for r in (10, 11):
            a("v_add_f32_dpp v%d, v%d, v%d %s row_mask:0xf bank_mask:0xf" % (r, r, r, mod))
    c = math.sqrt(2 / math.pi); k1 = -2 * c * LOG2E; k2 = k1 * 0.044715
    a("v_mul_f32 v10, %s, v10" % fbits(1.0 / 448))
    a("v_mul_f32 v11, %s, v11" % fbits(1.0 / 448))
    a("v_fma_f32 v11, -v10, v10, v11")
    a("v_max_f32 v11, 0, v11")
    a("v_cvt_pk_bf16_f32 v10, v10, v11")
    a("v_lshlrev_b32 v12, 16, v10")
    a("v_and_b32 v11, 0xffff0000, v10")
    a("v_add_f32 v11, %s, v11" % fbits(1e-5))
    a("v_cvt_pk_bf16_f32 v11, v11, v11")
    a("v_lshlrev_b32 v11, 16, v11")
    a("v_sqrt_f32 v11, v11")
    a("v_cvt_pk_bf16_f32 v11, v11, v11")
    a("v_lshlrev_b32 v11, 16, v11")
    a("v_rcp_f32 v14, v11")
    a("v_sub_f32 v16, 0, v12")
    a("v_cvt_pk_bf16_f32 v24, v16, v16")
    a("v_mul_f32 v27, v11, v11")
    a("v_mul_f32 v25, %s, v14" % fbits(k1))
    a("v_mul_f32 v10, v14, v14"); a("v_mul_f32 v10, v10, v14")
    a("v_mul_f32 v26, %s, v10" % fbits(k2))
    a("s_mov_b32 s%d, %d" % (sT0, WS_RC))
    a("s_mov_b32 exec_lo, 0x01010101"); a("s_mov_b32 exec_hi, 0x01010101")
    a.vm("buffer_store_dwordx4 v[24:27], v8, s[%d:%d], s%d offen sc1" % (SWS, SWS + 3, sT0), "rc")
    a("s_cmp_lt_u32 s%d, 2" % sWV); a("s_cselect_b32 exec_lo, 1, 0"); a("s_mov_b32 exec_hi, 0")
    a("buffer_load_dwordx2 v[18:19], v30, s[%d:%d], 0 offen sc1" % (SDBG, SDBG + 3))
    a("s_mov_b64 exec, -1")
    sp_("stats")
    for i in range(7):
        for r in range(4):
            w = 32 + 4 * i + r; t = 20 + 2 * (r & 1)
            a("v_lshlrev_b32 v%d, 16, v%d" % (t, w)); a("v_and_b32 v%d, 0xffff0000, v%d" % (t + 1, w))
            a("v_pk_add_f32 %s, %s, v[16:17] op_sel_hi:[1,0]" % (vr(t, 2), vr(t, 2)))
            a("v_cvt_pk_bf16_f32 v%d, v%d, v%d" % (t, t, t + 1))
            a("v_and_b32 v%d, 0xffff0000, v%d" % (t + 1, t)); a("v_lshlrev_b32 v%d, 16, v%d" % (t, t))
            a("v_pk_mul_f32 %s, %s, v[14:15] op_sel_hi:[1,0]" % (vr(t, 2), vr(t, 2)))
            a("v_cvt_pk_bf16_f32 v%d, v%d, v%d" % (t, t, t + 1))
            a("v_and_b32 v%d, 0xffff0000, v%d" % (t + 1, t)); a("v_lshlrev_b32 v%d, 16, v%d" % (t, t))
            a("v_cvt_pk_f16_f32 v%d, v%d, v%d" % (w, t, t + 1))
        a("ds_write_b128 v7, %s offset:%d" % (vr(32 + 4 * i, 4), i * 128))
        if i >= ENV("PW2", 0): ldw(ENV("PW1", 1))
    a("v_lshrrev_b32 v4, 4, v1"); a("v_and_b32 v5, 15, v1")
    a("v_lshrrev_b32 v6, 2, v5"); a("v_lshl_add_u32 v6, v4, 3, v6")
    a("v_bfe_u32 v7, v5, 1, 1"); a("v_lshl_add_u32 v6, v7, 5, v6")
    a("v_mul_u32_u24 v6, %d, v6" % XT_S)
    a("v_and_b32 v7, 1, v5"); a("v_lshl_add_u32 v6, v7, 3, v6")
    a("s_lshl_b32 s%d, s%d, 4" % (sOX, sWV))
    a("v_add_u32 v6, s%d, v6" % sOX)
    a("s_mul_i32 s%d, s%d, %d" % (sOX, sWV, 7 * 1152)); a("s_add_u32 s%d, s%d, %d" % (sOX, sOX, L_PC + 2048))
    a("v_and_b32 v31, 7, v5"); a("v_mul_u32_u24 v31, 144, v31"); a("v_lshl_add_u32 v31, v4, 4, v31")
    a("v_lshrrev_b32 v5, 3, v5"); a("v_lshl_add_u32 v31, v5, 6, v31"); a("v_add_u32 v31, s%d, v31" % sOX)
    a("v_mul_u32_u24 v8, 144, v2"); a("v_lshl_add_u32 v8, v3, 4, v8"); a("v_add_u32 v8, s%d, v8" % sOX)
    a("v_mul_u32_u24 v7, %d, v2" % XST); a("v_lshl_add_u32 v7, v3, 4, v7")
    a("s_lshl_b32 s%d, s%d, 7" % (sT2, sR)); a("s_add_u32 s%d, s%d, %d" % (sT2, sT2, WS_XNT))
    a("s_mul_i32 s%d, s%d, %d" % (sT1, sWV, 8 * XST)); a("s_add_u32 s%d, s%d, s%d" % (sT1, sT1, sT2))
    sp_("xn")
    ldw(14)
    a("s_mov_b32 s%d, 0x3f80" % sOX); a("s_mov_b32 s%d, 0x3f800000" % sOW)
    for r in range(120, 128): a("v_mov_b32 v%d, 0" % r)
    for i in range(14):
        a.wait_vm("w%d" % i)
        for r in range(4):
            w = 64 + 4 * i + r
            a("v_dot2_f32_bf16 v%d, v%d, s%d, v%d" % (120 + 2 * r, w, sOX, 120 + 2 * r))
            a("v_dot2_f32_bf16 v%d, v%d, s%d, v%d" % (121 + 2 * r, w, sOW, 121 + 2 * r))
    for r in range(120, 128): a("v_add_f32_dpp v%d, v%d, v%d row_ror:8 row_mask:0xf bank_mask:0xf" % (r, r, r))
    for op in ("v_permlane16_swap_b32", "v_permlane32_swap_b32"):
        for r in range(8): a("v_mov_b32 v%d, v%d" % (128 + r, 120 + r))
        for r in range(8): a("%s v%d, v%d" % (op, 120 + r, 128 + r))
        for r in range(8): a("v_add_f32 v%d, v%d, v%d" % (120 + r, 120 + r, 128 + r))
    a("s_lshl_b32 s%d, s%d, 8" % (sT0, sWV))
    a("s_add_u32 s%d, s%d, %d" % (sT0, sT0, L_PC))
    a("v_lshl_add_u32 v9, v3, 5, s%d" % sT0)
    a("s_mov_b64 exec, 0xff")
    a("ds_write_b128 v9, v[120:123]"); a("ds_write_b128 v9, v[124:127] offset:16")
    a("s_mov_b64 exec, -1")
    lw = L("PA")
    a("s_cmp_gt_u32 s%d, 1" % sWV)
    a("s_cbranch_scc1 %s" % lw)
    a.begin_opt()
    get_nonce(a, L, 30, 18, pre=True)
    a("v_mov_b32 v10, s%d" % sNON)
    a.end_opt()
    a.label(lw)
    a("s_waitcnt vmcnt(0) lgkmcnt(0)"); a.vmq = []
    sp_("sum")
    a("s_barrier")
    sp_("pbar")
    for i in range(7):
        a("ds_read_b64_tr_b16 %s, v6 offset:%d" % (vr(32 + 4 * i, 2), i * 128))
        a("ds_read_b64_tr_b16 %s, v6 offset:%d" % (vr(34 + 4 * i, 2), i * 128 + 4 * XT_S))
    for i in range(7):
        a("s_waitcnt lgkmcnt(%d)" % 12)
        a("ds_write_b128 v31, %s offset:%d" % (vr(32 + 4 * i, 4), i * 1152))
        a("ds_read_b128 %s, v8 offset:%d" % (vr(64 + 4 * i, 4), i * 1152))
    la = L("PA")
    a("s_cmp_lg_u32 s%d, 1" % sWV)
    a("s_cbranch_scc1 %s" % la)
    a.begin_opt()
    a("v_lshlrev_b32 v9, 2, v1")
    a("v_add_u32 v20, %d, v9" % L_PC)
    for i in range(8): a("ds_read_b32 v%d, v20 offset:%d" % (120 + i, i * 256))
    a("s_lshl_b32 s%d, s%d, 9" % (sT2, sF)); a("s_add_u32 s%d, s%d, %d" % (sT0, sT2, WS_CS)); a("s_add_u32 s%d, s%d, %d" % (sT2, sT0, CSM))
    a("v_lshlrev_b32 v9, 3, v1")
    a("s_waitcnt lgkmcnt(0)")
    for m in range(2):
        c = 120 + m; o = 128 + 2 * m
        a("v_add_f32 v%d, v%d, v%d" % (c, c, c + 2)); a("v_add_f32 v%d, v%d, v%d" % (c + 4, c + 4, c + 6))
        a("v_add_f32 v%d, v%d, v%d" % (c, c, c + 4))
        a("v_cvt_pk_bf16_f32 v%d, v%d, v%d" % (c + 2, c, c)); a("v_lshlrev_b32 v%d, 16, v%d" % (c + 2, c + 2))
        a("v_sub_f32 v%d, v%d, v%d" % (c + 2, c, c + 2))
        a("v_cvt_pk_bf16_f32 v%d, v%d, v%d" % (o, c, c + 2)); a("v_and_b32 v%d, 0xffff0000, v%d" % (c + 4, o))
        a("v_sub_f32 v%d, v%d, v%d" % (c + 2, c + 2, c + 4))
        a("v_cvt_pk_bf16_f32 v%d, v%d, 0" % (o + 1, c + 2))
        a("buffer_store_dwordx2 v[%d:%d], v9, s[%d:%d], s%d offen sc1" % (o, o + 1, SWS, SWS + 3, (sT0, sT2)[m]))
    a.end_opt()
    a.label(la)
    for i in range(7):
        a("s_waitcnt lgkmcnt(%d)" % (12 - 2 * i))
        a.vm("buffer_store_dwordx4 %s, v7, s[%d:%d], s%d offen sc1" % (vr(64 + 4 * i, 4), SWS, SWS + 3, sT1), "xst")
        if i < 6: a("s_add_u32 s%d, s%d, %d" % (sT1, sT1, 64 * XST))
    sp_("st")
    l1, l2 = L("PF"), L("PF")
    a("s_cmp_lt_u32 s%d, 2" % sWV)
    a("s_cbranch_scc1 %s" % l1)
    a("s_waitcnt vmcnt(0)")
    a("s_branch %s" % l2)
    a.label(l1)
    a("s_waitcnt vmcnt(7)")
    a("s_mov_b64 exec, 1")
    a("buffer_store_dword v10, v29, s[%d:%d], 0 offen sc1" % (SWS, SWS + 3))
    a("s_mov_b64 exec, -1")
    sp_("flagC")
    a("s_waitcnt vmcnt(1)")
    a.label(l2)
    a("s_barrier")
    a("s_cmp_lg_u32 s%d, 1" % sWV)
    a("s_cbranch_scc1 K_END")
    a("s_mov_b64 exec, 0xff")
    a("buffer_store_dword v10, v28, s[%d:%d], 0 offen sc1" % (SWS, SWS + 3))
    a("s_mov_b64 exec, -1")
    sp_("flagB")
    sp_.store(100)
```

```python
import math, os, sys, struct
from asmlib import Asm
def fbits(x): return "0x%08x" % struct.unpack("<I", struct.pack("<f", x))[0]
LOG2E = math.log2(math.e)
def vr(b, n=1): return "v%d" % b if n == 1 else "v[%d:%d]" % (b, b + n - 1)
EXP = os.environ.get('EXP', '')
STAMP = int(os.environ.get("STAMP", "0"))
RT = os.environ.get("RT", "")
MAPB = int(os.environ.get("MAPB", "0"))
WS_H = 0; WS_XNT = 8 << 20; WS_KREV = 12 << 20; WS_KSC = 16 << 20
WS_HF = 17 << 20
WS_CF = (17 << 20) + (1 << 19)
WS_PF = 18 << 20
WS_FR = WS_PF + 131072
WS_FC = WS_FR + 8192
WS_RC = 19 << 20; WS_CS = (19 << 20) + 65536
WS_YAT = 20 << 20; WS_DBG = 24 << 20; WS_SIZE = 32 << 20
KSTRIDE = 4160
SPIN = 0x8000

def srd(a, d, p, nbytes):
    a("s_mov_b32 s%d, s%d" % (d, p))
    a("s_and_b32 s%d, s%d, 0xffff" % (d + 1, p + 1))
    a("s_mov_b32 s%d, 0x%x" % (d + 2, nbytes))
    a("s_mov_b32 s%d, 0x00020000" % (d + 3))

SX, SWG, SWU, SWS, SWD, SOUT, SDBG = 40, 44, 48, 52, 56, 60, 64
sWV, sR, sF, sWR, sWC, sRT2, sCT = 68, 69, 70, 71, 72, 73, 74
sLD = 75
sT0, sT1, sT2, sT3 = 76, 77, 78, 79
sOX, sOW, sWB, sCNT = 80, 81, 82, 83
sNON = 84
sPM = 86
sCH, sHF, sKW, sSC, sINV = 3, 4, 5, 6, 7
sONES, sCVB, sSTG = 38, 39, 36
STB = 88

class Stamps:
    def __init__(self, a, base=None):
        self.a = a; self.n = base.n if base else 0; self.names = list(base.names) if base else []; self.ffn = False
    def __call__(self, name):
        if not STAMP: return
        if RT == "1" and name not in ("start", "end"): return
        if "su" in EXP and self.n >= 11 and name != "end": return
        if "f2a" in EXP and not (name in ("start", "flag1", "hpoll") or (name[:2] == "s_" and int(name[2:]) < 9)) and self.ffn: return
        if "f2b" in EXP and not (name in ("start", "hpoll2", "end") or (name[:2] == "s_" and int(name[2:]) >= 5)) and self.ffn: return
        if name[:2] == "s_" and "f2" not in EXP: return
        assert self.n < 12, name
        self.a("%s s[100:101]" % ("s_memrealtime" if RT else "s_memtime"))
        self.a("s_waitcnt lgkmcnt(0)")
        self.a("s_mov_b32 s%d, s100" % (STB + self.n))
        self.n += 1; self.names.append(name)
    def store(self, vt):
        if not STAMP: return
        a = self.a
        a("s_lshl_b32 s100, s2, 4"); a("s_add_u32 s100, s100, s%d" % sWV); a("s_lshl_b32 s100, s100, 6")
        a("s_add_u32 s100, s100, %d" % WS_DBG)
        a("s_mov_b64 exec, 1")
        a("v_mov_b32 v%d, s100" % vt)
        for i in range(self.n):
            a("v_mov_b32 v%d, s%d" % (vt + 1, STB + i))
            a("buffer_store_dword v%d, v%d, s[%d:%d], 0 offen offset:%d" % (vt + 1, vt, SWS, SWS + 3, 4 * i))
            a("s_waitcnt vmcnt(0)")
        a("s_mov_b64 exec, -1")

ENV = lambda k, d: int(os.environ.get(k, str(d)))
L_W = 0
L_X = [65536, 98304 + 17408, 81920]
RING = 98304
STG_W = 4352; L_STG = RING
L_CV = RING + 4 * STG_W
CPS = 4160; O_U = 4 * CPS; CV_CH = O_U + 4608
L_SYNC = L_CV + 2 * CV_CH
L_FL = L_SYNC + 512
LDS = L_FL + 256
assert L_X[1] == L_CV and LDS <= 163840
Y_CNT = 0; Y_RDA = 8; Y_RDB = 9; Y_NON = 16; Y_KX = 24; Y_C0 = 28; Y_BL = 32; Y_CX = 36; Y_XR = 40; Y_YA = 44; Y_KEXP = 48; Y_RD = 64
WDS = [32768, 49152, 81920, 0, 16384, 65536]
CSM = 1792 * 8
sFW = 36; sHD = 37
FSH = ENV('FSH', 8)

def gen():
    a = Asm()
    lab = [0]
    def L(p): lab[0] += 1; return "%s_%d" % (p, lab[0])
    st_ = Stamps(a)
    def spin_lds(addr, tmp, need, width="u8", slp=1, off=0):
        l1, l2 = L("SP"), L("SD")
        a("s_mov_b32 s%d, %d" % (sCNT, SPIN))
        a.label(l1)
        a("ds_read_%s v%d, v%d offset:%d" % (width, tmp, addr, off))
        a("s_waitcnt lgkmcnt(0)")
        a("v_cmp_gt_u32 vcc, %d, v%d" % (need, tmp))
        a("s_cbranch_vccz %s" % l2)
        if slp: a("s_sleep %d" % slp)
        a("s_sub_u32 s%d, s%d, 1" % (sCNT, sCNT))
        a("s_cmp_lg_u32 s%d, 0" % sCNT)
        a("s_cbranch_scc1 %s" % l1)
        a.label(l2)

    a("s_cmp_ge_u32 s2, 256")
    a("s_cbranch_scc1 K_END")
    st_("start")
    a("s_load_dwordx16 s[16:31], s[0:1], 0")
    a("s_load_dwordx4 s[32:35], s[0:1], 80")
    a("s_load_dwordx8 s[8:15], s[0:1], 96")
    a("v_lshrrev_b32 v1, 6, v0")
    a("v_readfirstlane_b32 s%d, v1" % sWV)
    a("v_and_b32 v1, 63, v0")
    CPF = ENV("CPF", 8)
    if CPF:
        a("s_cmp_ge_u32 s2, %d" % CPF)
        a("s_cbranch_scc1 K_NPF")
        a.begin_opt()
        a("s_getpc_b64 s[4:5]")
        a.label("K_PFB")
        a("v_lshlrev_b32 v2, 7, v0")
        a("v_min_u32 v2, K_END-K_PFB, v2")
        a("global_load_dword v255, v2, s[4:5]")
        a.end_opt()
        a.label("K_NPF")
    a("s_cmp_lt_u32 s2, 32")
    a("s_cbranch_scc1 K_PROD")
    a("s_and_b32 s%d, s2, 7" % sT0)
    a("s_lshr_b32 s%d, s2, 3" % sT1)
    a("s_sub_u32 s%d, s%d, 4" % (sT1, sT1))
    a("s_lshr_b32 s%d, s%d, 1" % (sT2, sT0)); a("s_lshl_b32 s%d, s%d, 2" % (sT2, sT2))
    a("s_and_b32 s%d, s%d, 3" % (sT3, sT1)); a("s_add_u32 s%d, s%d, s%d" % (sR, sT2, sT3))
    a("s_and_b32 s%d, s%d, 1" % (sT2, sT0)); a("s_mul_i32 s%d, s%d, 7" % (sT2, sT2))
    a("s_lshr_b32 s%d, s%d, 2" % (sCT, sT1)); a("s_add_u32 s%d, s%d, s%d" % (sF, sT2, sCT))
    a("s_lshl_b32 s%d, s%d, 2" % (sRT2, sT0)); a("s_add_u32 s%d, s%d, s%d" % (sRT2, sRT2, sT3))
    a("s_cmp_ge_u32 s%d, 4" % sWV)
    a("s_cbranch_scc1 K_HELP")
    sf_ = Stamps(a, st_); sf_.ffn = True; sh_ = Stamps(a, st_); sp_ = Stamps(a, st_)
    NST = 14
    a("s_setprio %d" % ENV("FPRIO", 2))
    a("s_and_b32 s%d, s%d, 1" % (sWR, sWV))
    a("s_lshr_b32 s%d, s%d, 1" % (sWC, sWV))
    a("s_lshl_b32 s%d, s%d, 11" % (sWB, sWV))
    a("s_lshl_b32 s%d, s%d, 12" % (sOX, sWV))
    a("v_lshrrev_b32 v2, 3, v1")
    a("s_lshl_b32 s%d, s%d, 7" % (sT0, sR))
    a("s_lshl_b32 s%d, s%d, 5" % (sT1, sWV))
    a("s_add_u32 s%d, s%d, s%d" % (sT0, sT0, sT1))
    a("v_add_u32 v2, s%d, v2" % sT0)
    a("v_mul_u32_u24 v2, 896, v2")
    a("v_lshrrev_b32 v5, 4, v1")
    a("v_xor_b32 v6, v1, v5")
    a("v_and_b32 v6, 7, v6")
    a("v_xor_b32 v7, 4, v6")
    a("v_lshl_add_u32 v3, v7, 4, v2")
    a("v_add_u32 v3, %d, v3" % (8 * 896))
    a("v_lshl_add_u32 v2, v6, 4, v2")
    a("v_mul_u32_u24 v4, 3584, v5")
    a("v_lshlrev_b32 v6, 2, v5")
    a("v_xor_b32 v6, v1, v6")
    a("v_and_b32 v6, 15, v6")
    a("v_lshl_add_u32 v4, v6, 4, v4")
    a("s_lshl_b32 s%d, s%d, 8" % (sT0, sF))
    a("s_mul_i32 s%d, s%d, %d" % (sT1, sWV, 8 * 3584)); a("s_add_u32 s%d, s%d, s%d" % (sT0, sT0, sT1))
    a("v_add_u32 v4, s%d, v4" % sT0)
    a("s_lshl_b32 s%d, s%d, 2" % (sFW, sWV)); a("s_add_u32 s%d, s%d, %d" % (sFW, sFW, L_FL))
    ROT = ENV("ROT", 0); ROT1 = ENV("ROT1", 0)
    RJ = [3, 4, 5, 6, 7, 38, 39]
    a("s_lshl_b32 s%d, s%d, 1" % (sT0, sT3)); a("s_add_u32 s%d, s%d, s%d" % (sT0, sT0, sCT)); a("s_lshl_b32 s%d, s%d, 7" % (sT0, sT0))
    for i in range(7 if ROT or ROT1 else 0):
        a("s_sub_u32 s%d, s%d, 896" % (sT1, sT0)); a("s_cmp_ge_u32 s%d, 896" % sT0); a("s_cselect_b32 s%d, s%d, s%d" % (RJ[i], sT1, sT0))
        if i < 6: a("s_add_u32 s%d, s%d, 128" % (sT0, RJ[i]))
    a("s_waitcnt lgkmcnt(0)")
    VFL, VFA = 50, 51
    def dma_x(b):
        out = []
        for i in range(4):
            out.append(["s_add_u32 m0, s%d, %d" % (sOX, L_X[b % 3] + i * 1024),
                        ("s_add_u32 s%d, s%d, %d" % (sOW, RJ[b], (i >> 1) * 16 * 896)) if ROT1 else "s_movk_i32 s%d, %d" % (sOW, b * 128 + (i >> 1) * 16 * 896),
                        ("buffer_load_dwordx4 v%d, s[%d:%d], s%d offen lds" % (2 + (i & 1), SX, SX + 3, sOW), ("x", b))])
        return out
    def dma_w(st):
        out = []
        slot = st % 4
        for i in range(2):
            for mat in range(2):
                S = (SWG, SWU)[mat]
                g = []
                if ROT1:
                    g.append("s_mul_i32 s%d, s%d, 1792" % (sOW, RJ[st >> 1])); g.append("s_add_u32 s%d, s%d, %d" % (sOW, sOW, ((st & 1) * 32 + 4 * i) * 3584))
                else: g.append("s_mov_b32 s%d, %d" % (sOW, (st * 32 + 4 * i) * 3584))
                g.append("s_add_u32 m0, s%d, %d" % (sWB, L_W + slot * 16384 + mat * 8192 + i * 1024))
                g.append(("buffer_load_dwordx4 v4, s[%d:%d], s%d offen lds" % (S, S + 3, sOW), ("w", st)))
                out.append(g)
        return out
    def dflag(idx):
        return ["s_add_u32 m0, s%d, %d" % (sFW, 16 * idx), "s_mov_b64 exec, 1",
                ("global_load_lds_dword v%d, s[0:1]" % VFL, "fl"), "s_mov_b64 exec, -1"]
    def emit(g, a=a):
        for x in g:
            if callable(x): x()
            elif isinstance(x, tuple) and x[0].startswith("ds_"): a.ds(x[0], x[1])
            elif isinstance(x, tuple): a.vm(x[0], x[1])
            else: a(x)
    srd(a, SX, 16, 2048 * 896)
    for g in dma_x(0): emit(g)
    srd(a, SWG, 32, 448 * 3584)
    srd(a, SWU, 34, 448 * 3584)
    for g in dma_w(0): emit(g)
    a("s_cmp_lg_u32 s15, 0"); a("s_cselect_b32 s%d, 31, 30" % sT0); a("s_lshl_b32 s%d, s%d, 2" % (sT0, sT0)); a("v_mov_b32 v%d, s%d" % (VFL, sT0))
    a("s_barrier")
    emit(dflag(0))
    pend = dma_w(1) + [dflag(1)] + dma_x(1) + dma_w(2) + [dflag(2)] + dma_w(3) + [dflag(3)] + dma_x(2)
    a_real = a
    ILN = ENV("ILN", 4)
    class IL:
        def __init__(s_): s_.n = 0
        def __call__(s_, t):
            a_real(t); s_.n += 1
            if s_.n % ILN == 0 and pend: emit(pend.pop(0))
    a = IL()
    a("v_lshlrev_b32 v15, 2, v1")
    a("v_and_b32 v11, 3, v1"); a("v_lshlrev_b32 v%d, 2, v11" % VFA); a("v_add_u32 v11, %d, v11" % (L_SYNC + Y_CNT))
    a("v_add_u32 v%d, %d, v%d" % (VFA, L_FL, VFA))
    a("s_add_u32 s%d, s%d, %d" % (sT0, sWV, L_SYNC + Y_CNT)); a("v_mov_b32 v12, s%d" % sT0)
    a("v_add_u32 v13, %d, v15" % (L_SYNC + 128)); a("v_cmp_eq_u32 vcc, 0, v1"); a("v_cndmask_b32 v12, v13, v12, vcc")
    a("v_mov_b32 v10, %d" % (L_SYNC + Y_RDA))
    a("v_and_b32 v16, 31, v1")
    a("s_lshl_b32 s%d, s%d, 6" % (sT0, sWR))
    a("v_add_u32 v22, s%d, v16" % sT0)
    a("v_lshrrev_b32 v17, 5, v1")
    a("v_bfe_u32 v18, v1, 1, 3")
    a("v_xor_b32 v18, v17, v18")
    a("v_lshlrev_b32 v5, 7, v22")
    a("v_lshl_add_u32 v5, v18, 4, v5")
    a("v_add_u32 v5, 65536, v5")
    a("v_xor_b32 v6, 32, v5"); a("v_xor_b32 v7, 64, v5"); a("v_xor_b32 v8, 96, v5")
    a("v_bfe_u32 v19, v1, 2, 2")
    a("v_lshl_add_u32 v20, v17, 3, v19")
    a("v_lshlrev_b32 v9, 8, v20")
    a("v_bfe_u32 v20, v1, 4, 1"); a("v_lshlrev_b32 v20, 1, v20")
    a("v_bfe_u32 v21, v1, 1, 1"); a("v_add_u32 v20, v20, v21")
    a("s_lshl_b32 s%d, s%d, 3" % (sT0, sWC))
    a("v_add_u32 v20, s%d, v20" % sT0)
    a("v_lshlrev_b32 v21, 2, v19")
    a("v_xor_b32 v20, v20, v21")
    a("v_lshl_add_u32 v9, v20, 4, v9")
    a("v_and_b32 v21, 1, v1")
    a("v_lshl_add_u32 v9, v21, 3, v9")
    a("v_xor_b32 v0, 64, v9")
    srd(a, SWS, 14, WS_SIZE)
    srd(a, SWD, 8, 1792 * 896)
    srd(a, SOUT, 10, 2048 * 896)
    a("s_lshl_b32 s%d, s%d, 11" % (sT0, sR)); a("s_add_u32 s%d, s%d, %d" % (sT0, sT0, WS_RC))
    a("v_lshl_add_u32 v18, v22, 4, s%d" % sT0)
    a("s_lshl_b32 s%d, s%d, 10" % (sT0, sF)); a("s_lshl_b32 s%d, s%d, 9" % (sT1, sWC)); a("s_add_u32 s%d, s%d, s%d" % (sT0, sT0, sT1))
    a("s_add_u32 s%d, s%d, %d" % (sT0, sT0, WS_CS))
    a("v_lshl_add_u32 v19, v16, 3, s%d" % sT0)
    a("v_lshl_add_u32 v19, v17, 2, v19")
    a("s_lshl_b32 s%d, s%d, 1" % (sT0, sR))
    a("s_add_u32 s%d, s%d, s%d" % (sT0, sT0, sWR))
    a("s_lshl_b32 s%d, s%d, 1" % (sT1, sF))
    a("s_add_u32 s%d, s%d, s%d" % (sT1, sT1, sWC))
    a("s_lshl_b32 s%d, s%d, 8" % (sT2, sT0)); a("s_add_u32 s%d, s%d, %d" % (sT2, sT2, WS_FR)); a("v_mov_b32 v15, s%d" % sT2)
    a("s_lshl_b32 s%d, s%d, 8" % (sT2, sT1)); a("s_add_u32 s%d, s%d, %d" % (sT2, sT2, WS_FC)); a("v_writelane_b32 v15, s%d, 1" % sT2)
    a("s_mul_i32 s%d, s%d, 37" % (sT3, sT1)); a("s_lshr_b32 s%d, s%d, 8" % (sT3, sT3)); a("s_add_u32 s%d, s%d, s%d" % (sT3, sT3, sT1))
    a("s_lshl_b32 s%d, s%d, 1" % (sT1, sT1))
    a("s_lshl_b32 s%d, s%d, 5" % (sT2, sT0)); a("s_add_u32 s%d, s%d, s%d" % (sT2, sT2, sT3)); a("s_lshl_b32 s%d, s%d, %d" % (sT2, sT2, FSH))
    a("s_add_u32 s%d, s%d, %d" % (sT2, sT2, WS_HF))
    a("v_mov_b32 v21, s%d" % sT2)
    a("s_mul_i32 s%d, s%d, 56" % (sT0, sT0))
    a("s_add_u32 s%d, s%d, s%d" % (sT0, sT0, sT1))
    a("s_lshl_b32 s%d, s%d, 12" % (sT0, sT0))
    a("v_and_b32 v20, 15, v1")
    a("v_lshlrev_b32 v20, 4, v20")
    a("v_bfe_u32 v22, v1, 4, 1")
    a("v_lshl_add_u32 v20, v22, 10, v20")
    a("v_lshl_add_u32 v20, v17, 8, v20")
    a("v_add_u32 v20, s%d, v20" % sT0)
    a("s_mov_b32 s%d, 0" % sLD)
    CA_, CB_ = 32, 42
    for r in range(33, 50):
        if r not in (34, 36, 38, 42, 46): a("v_mov_b32 v%d, 0" % r)
    a("v_lshrrev_b32 v16, 3, v1")
    a("s_mul_i32 s%d, s%d, %d" % (sT0, sWV, 448 * 896))
    a("v_mul_u32_u24 v16, 896, v16")
    a("s_lshl_b32 s%d, s%d, 7" % (sT1, sCT)); a("s_add_u32 s%d, s%d, s%d" % (sT0, sT0, sT1))
    a("v_add_u32 v16, s%d, v16" % sT0)
    a("v_and_b32 v17, 1, v1")
    a("v_lshl_add_u32 v16, v17, 4, v16")
    a("v_bfe_u32 v17, v1, 1, 2")
    a("v_xor_b32 v17, v17, v22")
    a("v_xor_b32 v22, 2, v17")
    a("v_lshl_add_u32 v52, v17, 5, v16")
    a("v_lshl_add_u32 v53, v22, 5, v16")
    a = a_real
    while pend: emit(pend.pop(0))
    ACC = lambda ff, mat, tt: 128 + 64 * ff + 32 * mat + 16 * tt
    FR = [80, 104]
    RC = [24, 28]
    NW = 6
    J = lambda s: 2 * (s % 7) + s // 7
    WDV = [52, 53]
    def dma_wd(s):
        if "now" in EXP and s >= 6: return []
        if "no12" in EXP and s >= 12: return []
        return [(["s_mul_i32 s%d, s%d, 448" % (sOW, RJ[s % 7]), "s_add_u32 s%d, s%d, %d" % (sOW, sOW, ((s // 7) * 32 + 8 * q) * 896)] if ROT else
                 ["s_mov_b32 s%d, %d" % (sOW, (J(s) * 32 + 8 * q) * 896)]) + [
                 "s_add_u32 m0, s%d, %d" % (sOX, WDS[s % NW] + q * 1024),
                 ("buffer_load_dwordx4 v%d, s[%d:%d], s%d offen lds" % (WDV[q & 1], SWD, SWD + 3, sOW), ("wd", s))] for q in range(4)]
    def rd_frags(st, kk):
        fb = FR[kk]
        slot = st % 4
        xo = L_X[(st >> 1) % 3] - 65536
        xa = 5 + 2 * (st & 1) + kk
        def wr(ff, mat):
            return [("ds_read_b64_tr_b16 %s, v%d offset:%d" % (vr(fb + 8 + 8 * ff + 4 * mat + 2 * half, 2), (9, 0)[ff], L_W + slot * 16384 + mat * 8192 + kk * 4096 + half * 1024), ("fr", st, kk, ff, mat)) for half in range(2)]
        xr = lambda tt: [("ds_read_b128 %s, v%d offset:%d" % (vr(fb + 4 * tt, 4), xa, xo + tt * 4096), ("fx", st, kk, tt))]
        return [xr(0) + wr(0, 0), xr(1), wr(0, 1), wr(1, 0), wr(1, 1)]
    def mfmas(kk, first=False):
        fb = FR[kk]
        return ["v_mfma_f32_32x32x16_bf16 %s, %s, %s, %s" % (vr(ACC(ff, mat, tt), 16), vr(fb + 8 + 8 * ff + 4 * mat, 4), vr(fb + 4 * tt, 4), "0" if first else vr(ACC(ff, mat, tt), 16))
                for ff in range(2) for mat in range(2) for tt in range(2)]
    def inter(st, kk, groups):
        for i, m in enumerate(mfmas(kk, st == 0 and kk == 0)):
            ff, mat, tt = i >> 2, (i >> 1) & 1, i & 1
            if i == 1: a.wait_ds(("fx", st, kk, 1))
            a.wait_ds(("fr", st, kk, ff, mat))
            a(m)
            for sl, g in groups:
                if sl == i: emit(g)
    def arrive(v, off=0):
        a("v_mov_b32 v13, %d" % v)
        a.ds("ds_write_b8 v12, v13 offset:%d" % off, "sig")
    deferred = []
    def check(v, kind):
        a("s_getpc_b64 s[20:21]")
        a("v_cmp_gt_u32 vcc, %d, v%d" % (v, 14 if kind == "F" else 16))
        a("s_cbranch_vccnz K_RT_%s" % kind)
    def retries():
        a("s_mov_b32 s18, %d" % (SPIN * 4))
        a("s_branch K_RTE")
        for kind in ("R", "F"):
            r = 14 if kind == "F" else 16
            a.label("K_RT_%s" % kind)
            a("ds_read_b32 v14, v%d" % VFA if kind == "F" else "ds_read_u8 v16, v11 offset:%d" % Y_RD)
            a("s_sub_i32 s18, s18, 1"); a("s_max_i32 s18, s18, 0")
            a("s_cmp_eq_u32 s18, 0"); a("s_cselect_b32 s19, 255, 0")
            a("s_waitcnt lgkmcnt(0)")
            a("v_or_b32 v%d, s19, v%d" % (r, r))
            a("s_setpc_b64 s[20:21]")
        a.label("K_RTE")
    def const_loads():
        for tt in range(2):
            a("buffer_load_dwordx4 %s, v18, s[%d:%d], 0 offen offset:%d" % (vr(RC[tt], 4), SWS, SWS + 3, tt * 512))
        a("s_movk_i32 s%d, %d" % (sT0, CSM))
        for ff in range(2):
            a("buffer_load_dword v%d, v19, s[%d:%d], 0 offen offset:%d" % (CA_ + 4 * ff, SWS, SWS + 3, ff * 256))
            a("buffer_load_dword v%d, v19, s[%d:%d], s%d offen offset:%d" % (CA_ + 4 * ff + 2, SWS, SWS + 3, sT0, ff * 256))
        a("s_mov_b32 s%d, 1" % sLD)
    def get_non():
        a.wait_ds("non")
        a("v_readfirstlane_b32 s%d, v22" % sNON); a("v_readfirstlane_b32 s%d, v23" % (sNON + 1))
    def pollA():
        a.vm("buffer_load_dword v17, v15, s[%d:%d], 0 offen sc1" % (SWS, SWS + 3), "pf")
    def try_const():
        l = L("CL"); lo = L("CLO")
        a.wait_vm("pf")
        a("v_cmp_ne_u32 vcc, s%d, v17" % sNON)
        a("s_cbranch_vccz %s" % lo)
        a.label(l)
        a.mark("cst")
        def slow():
            a.label(lo)
            a("s_cmp_eq_u32 s%d, 0" % (sNON + 1))
            a("s_cbranch_scc1 %s" % l)
            a("s_cmp_lg_u32 s%d, 0" % sLD)
            a("s_cbranch_scc1 %s" % l)
            const_loads()
            a("s_branch %s" % l)
        deferred.append(slow)
    PA = ENV("PA", 5)
    RS = [int(c) for c in os.environ.get("RS", "01234")]
    TP = [int(c) for c in os.environ.get("TP", "9,11").split(",")]
    EARLY = ENV("EARLY", 1)
    retries()
    a("v_mov_b32 v14, 0")
    check(1, "F")
    a.dsq = []
    sf_("st0")
    poll = ["v_add_u32 v%d, 16, v%d" % (VFA, VFA), ("ds_read_b32 v14, v%d" % VFA, "pA")]
    for g in rd_frags(0, 0): emit(g)
    def stageD(st):
        D = []
        if 1 <= st and st + 3 < NST:
            D = dma_w(st + 3)
            if st % 2 == 1 and st >= 3 and st // 2 + 2 < 7: D = D + dma_x(st // 2 + 2)[2:]
            D[-1] = D[-1] + dflag(st + 3)
            if st % 2 == 0 and st // 2 + 2 < 7: D = D + dma_x(st // 2 + 2)[:2]
        elif EARLY and st >= 11:
            D = {11: dma_wd(0), 12: dma_wd(1) + dma_wd(2)[:2], 13: dma_wd(2)[2:] + dma_wd(3)}[st]
        return D
    for st in range(NST):
        if st in (7,): sf_("st%d" % st)
        D = stageD(st)
        DS = [(0, 4), (0, 6), (1, 1), (1, 3), (1, 5), (1, 7)]
        G = []
        G += [(RS[i], g) for i, g in enumerate(rd_frags(st, 1))]
        if st + 1 in TP: G.append((5, [("ds_read_b64 v[22:23], v10 offset:%d" % (Y_NON - Y_RDA), "non")]))
        if st - 2 in TP: G.append((0, [try_const]))
        if st in TP: G.append((1, [get_non, pollA]))
        if D: G.append((3, [lambda: a.wait_ds("pR"), lambda st=st: check(st, "R")]))
        G += [(DS[i][1], g) for i, g in enumerate(D) if DS[i][0] == 0]
        if st + 1 < NST: G.append((PA, poll))
        inter(st, 0, G)
        G = []
        if st + 1 < NST:
            G.append((0, [lambda: a.wait_ds("pA"), lambda: check(1, "F")]))
            G += [(RS[i], g) for i, g in enumerate(rd_frags(st + 1, 0))]
        G.append((0, [lambda st=st: arrive(st + 1, Y_RD)]))
        G += [(DS[i][1], g) for i, g in enumerate(D) if DS[i][0] == 1]
        if st + 1 == NST or stageD(st + 1): G.append((7, [("ds_read_u8 v16, v11 offset:%d" % Y_RD, "pR")]))
        inter(st, 1, G)
    sf_("loopend")
    l = L("CL"); lo = L("CLO"); l1 = L("CLP"); l2 = L("CLP")
    a("s_cmp_eq_u32 s%d, 0" % sLD)
    a("s_cbranch_scc1 %s" % lo)
    a.wait_vm("cst")
    a.label(l)
    def slow(l=l, lo=lo):
        a.label(lo)
        a("s_mov_b32 s%d, %d" % (sCNT, SPIN))
        a.label(l1)
        a("ds_read_b64 v[22:23], v10 offset:%d" % (Y_NON - Y_RDA))
        a("buffer_load_dword v17, v15, s[%d:%d], 0 offen sc1" % (SWS, SWS + 3))
        a("s_waitcnt vmcnt(0) lgkmcnt(0)")
        a("v_readfirstlane_b32 s%d, v22" % sNON); a("v_readfirstlane_b32 s%d, v23" % (sNON + 1))
        a("v_cmp_ne_u32 vcc, s%d, v17" % sNON)
        a("s_cmp_eq_u32 s%d, 0" % (sNON + 1))
        a("s_cselect_b64 s[%d:%d], -1, vcc" % (sT0, sT0 + 1))
        a("s_cmp_eq_u64 s[%d:%d], 0" % (sT0, sT0 + 1))
        a("s_cbranch_scc1 %s" % l2)
        a("s_sleep 2")
        a("s_sub_u32 s%d, s%d, 1" % (sCNT, sCNT)); a("s_cmp_lg_u32 s%d, 0" % sCNT)
        a("s_cbranch_scc1 %s" % l1)
        a.label(l2)
        const_loads()
        a("s_waitcnt vmcnt(0)")
        a("s_branch %s" % l)
    deferred.append(slow)
    for tt in range(2): a("v_mov_b32 v%d, v%d" % (CB_ + 4 * tt, RC[tt]))
    corr = ["v_mfma_f32_32x32x16_bf16 %s, %s, %s, %s" % (vr(ACC(ff, mat, tt), 16), vr(CA_ + 4 * ff + 2 * mat, 4), vr(CB_ + 4 * tt, 4), vr(ACC(ff, mat, tt), 16))
            for ff in range(2) for tt in range(2) for mat in range(2)]
    a(corr[0]); a(corr[1])
    a("v_mov_b32 v2, v52"); a("v_mov_b32 v3, v53"); WDV = [2, 3]
    a("v_and_b32 v5, 15, v1"); a("v_lshrrev_b32 v18, 4, v1")
    a("v_lshrrev_b32 v8, 2, v5")
    a("v_lshl_add_u32 v8, v18, 3, v8")
    a("v_lshlrev_b32 v8, 7, v8")
    a("v_and_b32 v9, 3, v5")
    a("v_lshl_add_u32 v8, v9, 3, v8")
    a("v_add_u32 v13, s%d, v8" % sOX)
    a("v_bfe_u32 v9, v5, 3, 1")
    a("v_and_b32 v14, 1, v18")
    a("v_lshl_add_u32 v9, v14, 1, v9")
    a(corr[2])
    TRB = [[4, 5, 6, 7], [0, 10, 17, 19]]
    for ct in range(4):
        a("v_xor_b32 v14, %d, v9" % ct)
        a("v_lshl_add_u32 v%d, v14, 5, v13" % TRB[0][ct])
        a("v_add_u32 v%d, 65536, v%d" % (TRB[1][ct], TRB[0][ct]))
    a(corr[3])
    a("s_mul_i32 s%d, s%d, 14" % (sT1, sWV))
    a("s_lshl_b32 s%d, s%d, 2" % (sT0, sRT2)); a("s_add_u32 s%d, s%d, s%d" % (sT0, sT0, sWV)); a("s_lshl_b32 s%d, s%d, %d" % (sT0, sT0, FSH + 3))
    a("s_add_u32 s%d, s%d, %d" % (sT0, sT0, WS_HF))
    a("v_lshrrev_b32 v8, 1, v1"); a("v_lshlrev_b32 v8, %d, v8" % FSH); a("v_and_b32 v14, 1, v1"); a("v_lshl_add_u32 v8, v14, 2, v8")
    a("v_add_u32 v8, s%d, v8" % sT0)
    a("s_mul_i32 s%d, s%d, 56" % (sT0, sRT2))
    a("s_add_u32 s%d, s%d, s%d" % (sT0, sT0, sT1))
    a("s_lshl_b32 s%d, s%d, 12" % (sT0, sT0))
    a("v_lshl_add_u32 v9, v1, 4, s%d" % sT0)
    a("s_mov_b32 s%d, 0" % sHD)
    a.wait_ds("pR")
    check(14, "R")
    a.dsq = []
    sf_("stats")
    NV = ENV("NV", 6); NG = ENV("NG", 0)
    WBK = [80, 96, 32, 48, 160, 128, 176, 144]
    WB = {s: WBK[s] for s in range(NV)}
    def trw(s):
        a.wait_vm(("wd", s))
        hi = WDS[s % NW] >= 65536
        for ct in range(4):
            for hf in range(2):
                a.ds("ds_read_b64_tr_b16 %s, v%d offset:%d" % (vr(WB[s] + 4 * ct + 2 * hf, 2), TRB[hi][ct], WDS[s % NW] - 65536 * hi + hf * 512), ("tw", s))
    def hpoll(r=14, tag="hp"):
        a("s_mov_b64 exec, 0x3fff")
        a.vm("buffer_load_dword v%d, v8, s[%d:%d], 0 offen sc1" % (r, SWS, SWS + 3), tag)
        a("s_mov_b64 exec, -1")
    def flag(ff, trk=True):
        if trk: a.wait_vm(("hst", ff))
        a("s_mov_b64 exec, 1")
        t = "buffer_store_dword v22, v21, s[%d:%d], 0 offen offset:%d sc1" % (SWS, SWS + 3, ff * 4)
        if trk: a.vm(t, "hfl")
        else: a(t)
        a("s_mov_b64 exec, -1")
    GD = ENV("GD", 11); GP = 9
    ev = []
    def at(t, item): ev.append((t, len(ev), item))
    BT = 8 * GP
    for i in range(4, 8): at((i - 4) * 6 + 2, corr[i])
    def sched_dma(t, s, dt=5):
        for q, g in enumerate(dma_wd(s)): at(t + q * dt, lambda g=g: emit(g))
    if EARLY:
        sched_dma(0.1, 4); sched_dma(24.1, 5)
        TW = [float(x) for x in os.environ.get("TW", "0.7,1.4,2.1,2.8,3.5,4.2,5.0,5.7").split(",")]
    else:
        for s in range(6): sched_dma(s * BT + 0.1, s)
        TW = [float(x) for x in os.environ.get("TW", "3,4,5,6,7,8").split(",")]
    NGT = ENV("NGT", 0)
    for s in range(max(NG, NGT)):
        assert TW[s] * BT > [0, 0, 30, 30, 15 * GP + 4 * GD, 15 * GP + 8 * GD, 31 * GP + 4 * GD, 31 * GP + 8 * GD][s]
        at(TW[s] * BT, lambda s=s: trw(s))
        if s < NG:
            at(TW[s] * BT + 20, lambda s=s: a.wait_ds(("tw", s)))
            sched_dma(TW[s] * BT + 20.1, s + NW)
    at(float(os.environ.get("TF0", "7")) * BT - 0.5, lambda: flag(0))
    n = 0
    for ff in range(2):
        for tt in range(2):
            r0 = RC[tt]
            for qp in range(2):
                blk = n // 8
                HP = 112 + 4 * (blk & 3)
                for q2 in range(2):
                    q = 2 * qp + q2
                    for e in range(4):
                        g = ACC(ff, 0, tt) + 4 * q + e; u = ACC(ff, 1, tt) + 4 * q + e; T = 64 + (n & 15)
                        ops = [(0, "v_mul_f32 v%d, v%d, v%d" % (T, g, g)),
                        (1, "v_fma_f32 v%d, v%d, v%d, v%d" % (T, T, r0 + 2, r0 + 1)),
                        (2, "v_mul_f32 v%d, v%d, v%d" % (T, T, g)),
                        (3, "v_exp_f32 v%d, v%d" % (T, T)),
                        (4, "v_mul_f32 v%d, v%d, v%d" % (g, g, u)),
                        (5, "v_fma_f32 v%d, v%d, v%d, v%d" % (T, T, r0 + 3, r0 + 3)),
                        (6, "v_rcp_f32 v%d, v%d" % (T, T)),
                        (7, "v_mul_f32 v%d, v%d, v%d" % (g, g, T))]
                        if e & 1: ops.append((8, "v_cvt_pk_bf16_f32 v%d, v%d, v%d" % (HP + 2 * q2 + e // 2, g - 1, g)))
                        for k, o in ops: at(n * GP + k * GD, o)
                        n += 1
                t = (n - 1) * GP + 8 * GD
                at(t + 4, "v_permlane32_swap_b32 v%d, v%d" % (HP, HP + 2))
                at(t + 5, "v_permlane32_swap_b32 v%d, v%d" % (HP + 1, HP + 3))
                def st_h(HP=HP, ff=ff, tt=tt, qp=qp):
                    a("s_movk_i32 s%d, %d" % (sT0, ff * 4096))
                    a.vm("buffer_store_dwordx4 %s, v20, s[%d:%d], s%d offen offset:%d sc1" % (vr(HP, 4), SWS, SWS + 3, sT0, tt * 2048 + qp * 512), ("hst", ff))
                at(t + 8, st_h)
    for t, _, it in sorted(ev, key=lambda x: (x[0], x[1])):
        if callable(it): it()
        else: a(it)
    sf_("gelu")
    A2 = lambda ct, tt: 192 + 16 * ct + 4 * tt
    free = [64, 112] + WBK[NV:]
    HB = {}
    def ld_h(s, trk=True):
        if ENV("VERB", 0): print("ld_h", s, free)
        if s not in HB: HB[s] = free.pop(0)
        if ROT: a("s_lshl_b32 s%d, s%d, 6" % (sOW, RJ[s % 7])); a("s_add_u32 s%d, s%d, %d" % (sOW, sOW, WS_H + (s // 7) * 4096))
        else: a("s_mov_b32 s%d, %d" % (sOW, WS_H + J(s) * 4096))
        if "hsame" in EXP: a("s_mov_b32 s%d, 0" % sOW)
        for tt in range(4):
            t = "buffer_load_dwordx4 %s, v9, s[%d:%d], s%d offen offset:%d" % (vr(HB[s] + 4 * tt, 4), SWS, SWS + 3, sOW, tt * 1024)
            if trk: a.vm(t, ("h", s, tt))
            else: a(t)
    def spin_h(mask, lj, r=14):
        lo = L("HS"); l1 = L("HS")
        def slow():
            a.label(lo)
            a("s_mov_b32 s%d, %d" % (sT3, SPIN))
            a.label(l1)
            a("s_mov_b64 exec, 0x3fff")
            a("buffer_load_dword v%d, v8, s[%d:%d], 0 offen sc1" % (r, SWS, SWS + 3))
            a("s_mov_b64 exec, -1")
            a("s_waitcnt vmcnt(0)")
            a("v_cmp_ne_u32 vcc, s%d, v%d" % (sNON, r))
            a("s_and_b32 s%d, vcc_lo, 0x%x" % (sT0, mask))
            a("s_cbranch_scc0 %s" % lj)
            a("s_sleep %d" % ENV("HSL", 3))
            a("s_sub_u32 s%d, s%d, 1" % (sT3, sT3)); a("s_cmp_lg_u32 s%d, 0" % sT3)
            a("s_cbranch_scc1 %s" % l1)
            a("s_branch %s" % lj)
        deferred.append(slow)
        return lo
    hpoll()
    for s in range(max(NG, NGT), NV): trw(s)
    a("v_and_b32 v16, 15, v1"); a("v_lshrrev_b32 v13, 4, v1")
    a("s_lshl_b32 s%d, s%d, 6" % (sT0, sRT2)); a("s_lshl_b32 s%d, s%d, 4" % (sT1, sWV)); a("s_add_u32 s%d, s%d, s%d" % (sT0, sT0, sT1))
    a("v_add_u32 v18, s%d, v16" % sT0)
    a("v_mul_u32_u24 v18, 896, v18")
    a("v_lshl_add_u32 v18, v13, 4, v18")
    a("s_lshl_b32 s%d, s%d, 7" % (sT0, sCT))
    a("v_add_u32 v18, s%d, v18" % sT0)
    PREF = ENV("PREF", 0)
    a("s_waitcnt lgkmcnt(0)"); a.dsq = []
    wdq = [s + NW for s in range(NG, NV) if s + NW < 14]
    for s in wdq[:PREF]:
        for g in dma_wd(s): emit(g)
    flag(1)
    sf_("flag1")
    for s in wdq[PREF:]:
        for g in dma_wd(s): emit(g)
    lj = L("HJ")
    a.wait_vm("hp")
    a("v_cmp_ne_u32 vcc, s%d, v14" % sNON)
    a("s_and_b32 s%d, vcc_lo, 0x1555" % sT0)
    lo = spin_h(0x1555, lj)
    a("s_cbranch_scc1 %s" % lo)
    a.label(lj)
    sf_("hpoll")
    NHM = ENV("NHM", 4)
    nh = 0
    while free and nh < NHM: ld_h(nh); nh += 1
    HW2 = ENV("HW2", 5)
    PR = [26, 28, 30]
    ok2 = False
    nw = NV; nd = NV + NW
    for s in range(14):
        a.wait_ds(("tw", s))
        for tt in range(4):
            a.wait_vm(("h", s, tt))
            for ct in range(4):
                a("v_mfma_f32_16x16x32_bf16 %s, %s, %s, %s" % (vr(A2(ct, tt), 4), vr(WB[s] + 4 * ct, 4), vr(HB[s] + 4 * tt, 4), "0" if s == 0 else vr(A2(ct, tt), 4)))
        sf_("s_%d" % s)
        free.append(HB[s]); free.append(WB[s])
        if max(2, HW2 + 1 - ENV("NPOLL", 1)) <= s <= HW2:
            r = PR[(s - 2) % 3]
            a.wait_vm(("hq", s - 2))
            a("v_cmp_ne_u32 vcc, s%d, v%d" % (sNON, r))
            a("s_and_b32 s%d, vcc_lo, 0x3fff" % sT0)
            a("s_cselect_b32 s%d, s%d, 1" % (sHD, sHD))
        if HW2 - 1 - ENV("NPOLL", 1) <= s <= HW2 - 2: hpoll(PR[s % 3], ("hq", s))
        if s == HW2:
            lj = L("HJ")
            lo = spin_h(0x3fff, lj)
            a("s_cmp_eq_u32 s%d, 0" % sHD)
            a("s_cbranch_scc1 %s" % lo)
            a.label(lj)
            sf_("hpoll2")
            ok2 = True
        need_w = lambda: nw < 14 and (nw <= s + 2 or nw + NW < 14)
        while nh < 14 and free and nh - (s + 1) < NHM and (nh < 7 or ok2) and (len(free) > 1 or not need_w()):
            ld_h(nh); nh += 1
        if nd < 14 and nd - NW < nw:
            a.wait_ds(("tw", nd - NW))
            for g in dma_wd(nd): emit(g)
            nd += 1
        if need_w() or (nw < 14 and len(free) > ENV("WRES", 3)):
            WB[nw] = free.pop(0); trw(nw); nw += 1
        assert nw > s + 1 or nw == 14
        if s == 10:
            a.vm("buffer_load_dwordx4 v[24:27], v18, s[%d:%d], 0 offen" % (SX, SX + 3), "x")
            a.vm("buffer_load_dwordx4 v[28:31], v18, s[%d:%d], 0 offen offset:64" % (SX, SX + 3), "x")
        if s == 11:
            a("v_lshrrev_b32 v17, 4, v1")
            a("v_xor_b32 v13, v17, v16")
            a("v_lshlrev_b32 v19, 8, v16"); a("v_lshl_add_u32 v19, v13, 4, v19")
            a("v_add_u32 v19, s%d, v19" % sOX)
            a("v_xor_b32 v20, 64, v19"); a("v_xor_b32 v21, 128, v19"); a("v_xor_b32 v22, 192, v19")
    sf_("f2end")
    for tt in range(4):
        for ct in range(4):
            a("ds_write_b128 v%d, %s offset:%d" % (19 + ct, vr(A2(ct, tt), 4), tt * 16384))
    a("v_lshlrev_b32 v14, 1, v17"); a("v_xor_b32 v14, v14, v16")
    a("v_lshlrev_b32 v4, 8, v16"); a("v_lshl_add_u32 v4, v14, 4, v4")
    a("s_lshl_b32 s%d, s%d, 14" % (sT0, sWV))
    a("v_add_u32 v4, s%d, v4" % sT0)
    a("v_xor_b32 v5, 16, v4"); a("v_xor_b32 v6, 128, v4"); a("v_xor_b32 v7, 144, v4")
    a("v_lshrrev_b32 v14, 1, v17")
    a("v_mul_u32_u24 v14, %d, v14" % STG_W)
    a("v_and_b32 v15, 1, v17"); a("v_lshlrev_b32 v15, 3, v15"); a("v_lshrrev_b32 v13, 2, v16"); a("v_add_u32 v15, v15, v13")
    a("v_lshl_add_u32 v14, v15, 7, v14")
    a("v_and_b32 v15, 1, v16"); a("v_lshl_add_u32 v14, v15, 3, v14")
    a("v_bfe_u32 v15, v16, 1, 1"); a("v_lshl_add_u32 v14, v15, 6, v14")
    a("s_lshl_b32 s%d, s%d, 4" % (sT2, sWV)); a("s_add_u32 s%d, s%d, %d" % (sT2, sT2, L_STG))
    a("v_add_u32 v14, s%d, v14" % sT2)
    a("s_waitcnt lgkmcnt(0)")
    arrive(17)
    spin_lds(11, 15, 1, slp=1, off=Y_YA)
    sf_("ya")
    for hc in range(2):
        for hf in range(2):
            a("ds_read_b64_tr_b16 %s, v14 offset:%d" % (vr(96 + 4 * hc + 2 * hf, 2), hc * 2 * STG_W + hf * 512))
    a.wait_vm("x")
    a("s_waitcnt lgkmcnt(0)")
    for w in range(8):
        xw = 24 + w; yw = 96 + w; o = 104 + 2 * w
        a("v_lshlrev_b32 v%d, 16, v%d" % (o, xw)); a("v_and_b32 v%d, 0xffff0000, v%d" % (o + 1, xw))
        a("v_lshlrev_b32 v120, 16, v%d" % yw); a("v_and_b32 v121, 0xffff0000, v%d" % yw)
        a("v_add_f32 v%d, v%d, v120" % (o, o)); a("v_add_f32 v%d, v%d, v121" % (o + 1, o + 1))
        a("v_cvt_pk_bf16_f32 v%d, v%d, v%d" % (o, o, o + 1))
        a("v_and_b32 v%d, 0xffff0000, v%d" % (o + 1, o)); a("v_lshlrev_b32 v%d, 16, v%d" % (o, o))
    spin_lds(11, 15, 17, slp=0)
    for s in range(4):
        for c in range(4):
            a("ds_read_b128 %s, v%d offset:%d" % (vr(128 + 16 * s + 4 * c, 4), 4 + c, s * 4096))
    for hc in range(2):
        a("s_waitcnt lgkmcnt(%d)" % (2 - 2 * hc))
        for e in range(8):
            b = 128 + 8 * hc + e
            a("v_add_f32 v%d, v%d, v%d" % (b, b, b + 16)); a("v_add_f32 v%d, v%d, v%d" % (b + 32, b + 32, b + 48))
            a("v_add_f32 v%d, v%d, v%d" % (b, b, b + 32))
        for w in range(4):
            b = 128 + 8 * hc + 2 * w; o = 104 + 8 * hc + 2 * w
            a("v_cvt_pk_bf16_f32 v120, v%d, v%d" % (b, b + 1))
            a("v_and_b32 v121, 0xffff0000, v120"); a("v_lshlrev_b32 v120, 16, v120")
            a("v_add_f32 v120, v120, v%d" % o); a("v_add_f32 v121, v121, v%d" % (o + 1))
            a("v_cvt_pk_bf16_f32 v%d, v120, v121" % (192 + 4 * hc + w))
        a("buffer_store_dwordx4 %s, v18, s[%d:%d], 0 offen offset:%d" % (vr(192 + 4 * hc, 4), SOUT, SOUT + 3, hc * 64))
    sf_("end")
    sf_.store(150)
    a("s_endpgm")
    for f in deferred: f()

    import gen8h
    gen8h.helper(a, sh_, L, spin_lds)
    gen8h.producer(a, sp_, L, spin_lds)
    a.label("K_END")
    a("s_endpgm")
    if STAMP: print("ffn", sf_.names, "\nhelp", sh_.names, "\nprod", sp_.names)
    return a.finalize()

def wrap(kernels):
    out = []
    for name, grid, block, lds, body, nv in kernels:
        if len(kernels) > 1: out.append("; @launch kernel=%s grid=(%d,1,1) block=(%d,1,1) lds=%d" % (name, grid, block, lds))
        else: out.append("; @launch grid=(%d,1,1) block=(%d,1,1) lds=%d" % (grid, block, lds))
    out.append('.amdgcn_target "amdgcn-amd-amdhsa--gfx950"')
    out.append(".text")
    for name, grid, block, lds, body, nv in kernels:
        out += [".globl %s" % name, ".p2align 8", ".type %s,@function" % name, "%s:" % name, body]
    out.append('.section .rodata,"a"')
    for name, grid, block, lds, body, nv in kernels:
        out += [".p2align 6", ".amdhsa_kernel %s" % name,
                "  .amdhsa_next_free_vgpr %d" % nv, "  .amdhsa_next_free_sgpr 102", "  .amdhsa_accum_offset %d" % ((nv + 3) // 4 * 4),
                "  .amdhsa_group_segment_fixed_size 0", "  .amdhsa_kernarg_size 128", "  .amdhsa_user_sgpr_count 2",
                "  .amdhsa_user_sgpr_kernarg_segment_ptr 1", "  .amdhsa_system_sgpr_workgroup_id_x 1", ".end_amdhsa_kernel"]
    return "\n".join(out) + "\n"

if __name__ == "__main__":
    sys.modules["gen8"] = sys.modules["__main__"]
    NAME = "parallel_sum__ssm_conv_s4__glu_gated_geglu__prompt_kernel"
    ks = [(NAME, 256, 512, LDS, gen(), 256)]
    open(sys.argv[1] if len(sys.argv) > 1 else "k.s", "w").write(wrap(ks))
```

```python
import math, os
from gen8 import *

XST = ENV("XST", 4096); YST = ENV("YST", 4096)
def get_nonce(a, L, va, vd, pre=False):
    l1, l2, l3 = L("GN"), L("GN"), L("GN")
    a("s_mov_b32 s%d, %d" % (sCNT, SPIN))
    if pre: a("s_branch %s" % l3)
    a.label(l1)
    a("buffer_load_dwordx2 v[%d:%d], v%d, s[%d:%d], 0 offen sc1" % (vd, vd + 1, va, SDBG, SDBG + 3))
    a.label(l3)
    a("s_waitcnt vmcnt(0)")
    a("v_readfirstlane_b32 s%d, v%d" % (sNON, vd)); a("v_readfirstlane_b32 s%d, v%d" % (sNON + 1, vd + 1))
    a("s_cmp_lg_u32 s%d, 0" % (sNON + 1))
    a("s_cbranch_scc1 %s" % l2)
    a("s_sleep 8")
    a("s_sub_u32 s%d, s%d, 1" % (sCNT, sCNT)); a("s_cmp_lg_u32 s%d, 0" % sCNT)
    a("s_cbranch_scc1 %s" % l1)
    a.label(l2)

def helper(a, sk_, L, spin_lds):
    a.label("K_HELP")
    a.vmq = []
    a("s_setprio 3")
    a("s_load_dwordx2 s[60:61], s[0:1], 64")
    a("s_sub_u32 s%d, s%d, 4" % (sKW, sWV))
    a("s_cmp_lg_u32 s%d, 7" % sWV)
    a("s_cbranch_scc1 K_NZ")
    a.begin_opt()
    a("v_lshlrev_b32 v2, 2, v1"); a("v_add_u32 v2, %d, v2" % L_SYNC); a("v_mov_b32 v3, 0")
    a("ds_write_b32 v2, v3"); a("ds_write_b32 v2, v3 offset:512")
    a.end_opt()
    a.label("K_NZ")
    a("s_and_b32 s%d, s%d, 1" % (sHF, sKW))
    a("s_lshr_b32 s%d, s%d, 1" % (sT0, sKW))
    a("s_sub_u32 s%d, s2, 32" % sCH)
    a("s_lshl_b32 s%d, s%d, 1" % (sCH, sCH))
    a("s_add_u32 s%d, s%d, s%d" % (sCH, sCH, sT0))
    a("s_mul_i32 s%d, s%d, %d" % (sCVB, sT0, CV_CH))
    a("s_add_u32 s%d, s%d, %d" % (sCVB, sCVB, L_CV))
    a("s_lshl_b32 s%d, s%d, 8" % (sT0, sCH))
    a("s_lshl_b32 s%d, s%d, 7" % (sT1, sHF))
    a("s_add_u32 s%d, s%d, s%d" % (sT0, sT0, sT1))
    a("v_add_u32 v2, s%d, v1" % sT0)
    a("v_lshlrev_b32 v2, 1, v2")
    a("s_lshl_b32 s%d, s%d, 1" % (sT1, sCH))
    a("v_mov_b32 v3, s%d" % sT1)
    a("s_waitcnt lgkmcnt(0)")
    P = [[20, 21, 22, 23, 24, 25], [120, 121, 122, 123, 124, 125]]
    a.vm("global_load_ushort v26, v3, s[30:31]", "param")
    for it in range(2):
        for i in range(6):
            a.vm("global_load_ushort v%d, v2, s[%d:%d] offset:%d" % (P[it][i], 18 + 2 * i, 19 + 2 * i, it * 128), "param")
    a.vm("global_load_ushort v160, v3, s[60:61]", "param")
    a("s_setprio %d" % int(os.environ.get("KPRIO", "0")))
    a("s_barrier")
    srd(a, SWS, 14, WS_SIZE)
    a("s_mul_i32 s%d, s%d, %d" % (sSTG, sKW, STG_W))
    a("s_add_u32 s%d, s%d, %d" % (sSTG, sSTG, L_STG))
    a("v_and_b32 v7, 15, v1")
    a("v_lshrrev_b32 v6, 4, v1")
    a("v_mul_u32_u24 v5, 272, v7")
    a("v_lshl_add_u32 v8, v6, 4, s%d" % sSTG)
    a("v_add_u32 v5, v5, v8")
    maps = [[0,1,2,3,4,5,6,7, 8,8,9,10,10,10,11,12],
            [0,0,0,1,1,1,2,2, 3,3,3,4,4,4,5,5],
            [6,6,6,6,6,7,7,7, 8,8,8,8,8,9,9,9],
            [10,10,10,10,10,11,11,11, 12,12,12,12,12,13,13,13]]
    XA = [12, 13, 14, 15]
    a("v_lshlrev_b32 v9, 2, v7")
    a("v_and_b32 v9, 31, v9")
    a("v_cmp_gt_u32 vcc, 8, v7")
    for t in range(4):
        lo = sum(maps[t][i] << (4 * i) for i in range(8)); hi = sum(maps[t][8 + i] << (4 * i) for i in range(8))
        a("v_mov_b32 v10, 0x%x" % hi); a("v_mov_b32 v11, 0x%x" % lo)
        a("v_cndmask_b32 v10, v10, v11, vcc")
        a("v_lshrrev_b32 v10, v9, v10")
        a("v_and_b32 v10, 15, v10")
        a("v_mul_u32_u24 v10, 272, v10")
        a("v_add_u32 v%d, v10, v8" % XA[t])
    D = lambda t, yt: 128 + 8 * t + 4 * yt
    for r in range(128, 160): a("v_mov_b32 v%d, 0" % r)
    a("s_add_u32 s%d, s%d, %d" % (sT0, sKW, L_SYNC)); a("v_mov_b32 v161, s%d" % sT0)
    a("s_xor_b32 s%d, s%d, 1" % (sT1, sKW)); a("s_add_u32 s%d, s%d, %d" % (sT1, sT1, L_SYNC)); a("v_mov_b32 v162, s%d" % sT1)
    a("v_mov_b32 v163, 1")
    srd(a, SDBG, 12, 256)
    a("s_and_b32 s%d, s2, 7" % sT0); a("s_lshl_b32 s%d, s%d, 13" % (sT0, sT0)); a("s_add_u32 s%d, s%d, %d" % (sT0, sT0, WS_PF))
    a("v_and_b32 v112, 31, v1"); a("v_lshl_add_u32 v112, v112, 8, s%d" % sT0)
    a("v_mov_b32 v113, 64")
    a("v_mov_b32 v114, %d" % (L_SYNC + Y_RDA))
    a("s_cmp_lg_u32 s%d, 0" % sKW)
    a("s_cselect_b32 s%d, 0, 1" % sPM)
    def setf(off):
        a("s_mov_b64 exec, 1")
        a("ds_write_b8 v161, v163 offset:%d" % off)
        a("s_mov_b64 exec, -1")
    def waitp(off, tmp=164, tmpa=165):
        a("v_add_u32 v%d, %d, v162" % (tmpa, off))
        spin_lds(tmpa, tmp, 1)
    hooks = {}
    kc = [0]
    def k(t):
        a(t); kc[0] += 1
        if kc[0] in hooks: hooks.pop(kc[0])()
    if NSTA:
        srd(a, SWD, 8, 1792 * 896)
        a("v_lshrrev_b32 v16, 3, v1")
        a("s_mul_i32 s%d, s%d, %d" % (sT0, sKW, 448 * 896))
        a("v_mul_u32_u24 v16, 896, v16")
        a("s_lshl_b32 s%d, s%d, 7" % (sT1, sCT)); a("s_add_u32 s%d, s%d, s%d" % (sT0, sT0, sT1))
        a("v_add_u32 v16, s%d, v16" % sT0)
        a("v_and_b32 v17, 1, v1")
        a("v_lshl_add_u32 v16, v17, 4, v16")
        a("v_bfe_u32 v17, v1, 1, 2"); a("v_bfe_u32 v18, v1, 4, 1")
        a("v_xor_b32 v17, v17, v18")
        a("v_xor_b32 v18, 2, v17")
        a("v_lshl_add_u32 v170, v17, 5, v16")
        a("v_lshl_add_u32 v171, v18, 5, v16")
    def st_ld(n):
        s_ = 14 - NSTA + n // 4; q = n % 4
        a("s_mov_b32 s%d, %d" % (sOW, ((2 * (s_ % 7) + s_ // 7) * 32 + 8 * q) * 896))
        a("buffer_load_dwordx4 %s, v%d, s[%d:%d], s%d offen" % (vr(176 + 4 * n, 4), 170 + (q & 1), SWD, SWD + 3, sOW))
    SP0 = ENV("SP0", 500); SPD = ENV("SPD", 20)
    if SP0 >= 0:
        for n in range(4 * NSTA): hooks[SP0 + SPD * n] = lambda n=n: (st_ld(n), nst.append(n))
    nst = []
    a("v_lshlrev_b32 v172, 4, v1")
    a("s_cmp_lg_u32 s15, 0"); a("s_cselect_b32 s%d, 31, 30" % sT0); a("s_lshl_b32 s%d, s%d, 2" % (sT0, sT0)); a("v_mov_b32 v173, s%d" % sT0)
    def u_poll():
        a("s_cmp_lg_u32 s%d, 0" % sPM); a("s_cselect_b32 exec_lo, -1, 0"); a("s_mov_b32 exec_hi, 0")
        a("buffer_load_dword v169, v112, s[%d:%d], 0 offen sc1" % (SWS, SWS + 3))
        a("s_mov_b64 exec, -1")
        del nst[:]
    def u_dma():
        a("s_mul_i32 s%d, s%d, %d" % (sOW, sCH, XST))
        a("s_add_u32 s%d, s%d, %d" % (sOW, sOW, WS_XNT))
        for c in range(2):
            a("s_mov_b32 m0, %d" % (L_CV + c * CV_CH + O_U + 480))
            if c: a("s_add_u32 s%d, s%d, %d" % (sOW, sOW, XST))
            for q in range(4): a("buffer_load_dwordx4 v172, s[%d:%d], s%d offen offset:%d lds" % (SWS, SWS + 3, sOW, q * 1024))
        a("s_mov_b32 m0, %d" % (L_SYNC + Y_U))
        a("s_mov_b64 exec, 1")
        a("global_load_lds_dword v173, s[0:1]")
        a("s_mov_b64 exec, -1")
        a("s_mov_b32 s%d, 0" % sPM)
    def u_try():
        l = L("UT")
        a("s_cmp_eq_u32 s%d, 0" % sPM)
        a("s_cbranch_scc1 %s" % l)
        a.begin_opt()
        a("s_waitcnt vmcnt(%d)" % len(nst))
        a("v_cmp_ne_u32 vcc, s%d, v169" % sNON)
        a("s_cmp_lg_u32 vcc_lo, 0")
        a("s_cbranch_scc1 %s" % l)
        u_dma()
        a("s_mov_b32 m0, s%d" % sSTG)
        a.end_opt()
        a.label(l)
        a("s_nop 0")
    for p_ in os.environ.get("UP", "821").split(","):
        hooks[int(p_)] = u_poll; hooks[int(p_) + ENV("UD", 106)] = u_try
    def nonce_pub():
        ln2 = L("NF")
        a("s_cmp_eq_u32 s%d, 0" % sPM)
        a("s_cbranch_scc1 %s" % ln2)
        a.begin_opt()
        get_nonce(a, L, 113, 116, pre=True)
        a("s_mov_b64 exec, 1")
        a("ds_write_b64 v114, v[116:117] offset:%d" % (Y_NON - Y_RDA))
        a("s_mov_b64 exec, -1")
        a.end_opt()
        a.label(ln2)
    def pf_wd():
        srd(a, SWD, 8, 1792 * 896)
        a("s_lshr_b32 s%d, s2, 3" % sT0); a("s_sub_u32 s%d, s%d, 4" % (sT0, sT0)); a("s_lshl_b32 s%d, s%d, 2" % (sT0, sT0)); a("s_add_u32 s%d, s%d, s%d" % (sT0, sT0, sKW))
        a("s_mul_i32 s%d, s%d, %d" % (sT0, sT0, 112 * 128))
        a("v_lshlrev_b32 v200, 7, v1")
        a("s_add_u32 s%d, s%d, %d" % (sT1, sT0, 48 * 128))
        a("buffer_load_dword v201, v200, s[%d:%d], s%d offen" % (SWD, SWD + 3, sT0))
        a("buffer_load_dword v202, v200, s[%d:%d], s%d offen" % (SWD, SWD + 3, sT1))
    PFW = ENV("PFW", -1)
    a.wait_vm("param")
    if PFW == 0: pf_wd()
    sk_("param")
    a("s_mov_b32 exec_lo, s%d" % sPM); a("s_mov_b32 exec_hi, 0")
    a("buffer_load_dwordx2 v[116:117], v113, s[%d:%d], 0 offen sc1" % (SDBG, SDBG + 3))
    a("s_mov_b64 exec, -1")
    if "nokgen" in EXP: nonce_pub()
    for it in range(2):
        for r in P[it]: k("v_lshlrev_b32 v%d, 16, v%d" % (r, r))
    k("v_lshlrev_b32 v26, 16, v26")
    k("v_mul_f32 v26, %s, v26" % fbits(LOG2E))
    k("v_exp_f32 v26, v26")
    k("v_cvt_pk_bf16_f32 v26, v26, v26")
    k("v_lshlrev_b32 v26, 16, v26")
    WR = [28, 126]
    for it in range(2):
        p = P[it]
        k("v_mul_f32 v%d, v26, v%d" % (p[0], p[0])); k("v_mul_f32 v%d, v26, v%d" % (p[1], p[1]))
        k("v_mul_f32 v%d, v26, v%d" % (p[2], p[2])); k("v_mul_f32 v%d, v26, v%d" % (p[3], p[3]))
        w = WR[it]
        k("v_mul_f32 v%d, v%d, v%d" % (w, p[4], p[2])); k("v_fma_f32 v%d, -v%d, v%d, v%d" % (w, p[5], p[3], w))
        k("v_mul_f32 v%d, v%d, v%d" % (w + 1, p[4], p[3])); k("v_fma_f32 v%d, v%d, v%d, v%d" % (w + 1, p[5], p[2], w + 1))
    k("v_max_f32 v27, abs(v28), abs(v29)")
    k("v_max3_f32 v27, abs(v126), abs(v127), v27")
    for sh in (1, 2, 4, 8):
        k("v_max_f32_dpp v27, v27, v27 row_shr:%d row_mask:0xf bank_mask:0xf" % sh)
    k("v_max_f32_dpp v27, v27, v27 row_bcast:15 row_mask:0xa bank_mask:0xf")
    k("v_max_f32_dpp v27, v27, v27 row_bcast:31 row_mask:0xc bank_mask:0xf")
    k("v_readlane_b32 s%d, v27, 63" % sINV)
    k("s_lshr_b32 s%d, s%d, 23" % (sINV, sINV))
    k("s_sub_u32 s%d, 254, s%d" % (sSC, sINV))
    k("s_lshl_b32 s%d, s%d, 23" % (sSC, sSC))
    k("v_mov_b32 v10, s%d" % sINV)
    k("s_lshl_b32 s%d, s%d, 2" % (sT1, sKW))
    k("s_add_u32 s%d, s%d, %d" % (sT1, sT1, L_SYNC + Y_KEXP))
    k("v_mov_b32 v11, s%d" % sT1)
    k("ds_write_b32 v11, v10")
    for w in WR:
        k("v_mul_f32 v%d, s%d, v%d" % (w, sSC, w)); k("v_mul_f32 v%d, s%d, v%d" % (w + 1, sSC, w + 1))
    k("s_mov_b32 m0, s%d" % sSTG)
    E1, E8, E256, E2, E4, E16 = 30, 32, 34, 36, 38, 40
    tmpi = [0]
    def cmul(d, x, y):
        t = 42 + (tmpi[0] & 3); tmpi[0] += 1
        assert d != y
        k("v_mul_f32 v%d, v%d, v%d" % (t, x, y + 1))
        k("v_mul_f32 v%d, v%d, v%d" % (d, x, y))
        k("v_fma_f32 v%d, -v%d, v%d, v%d" % (d, x + 1, y + 1, d))
        k("v_fma_f32 v%d, v%d, v%d, v%d" % (d + 1, x + 1, y, t))
    PK = [46, 47, 48, 49]; pki = [0]
    def put(row, r, negim=False):
        p = PK[pki[0] & 3]; pki[0] += 1
        k("v_cvt_pk_f16_f32 v%d, v%d, %sv%d" % (p, r, "-" if negim else "", r + 1))
        if "nokw" in EXP: return
        if "halfkw" in EXP and (pki[0] & 1): return
        k("ds_write_addtid_b32 v%d offset:%d" % (p, row * 272))
    YF = [64, 80]; XFB = 96
    for it in range(2 if "nokgen" not in EXP else 0):
        are, aim = P[it][0], P[it][1]
        if it == 1 and PFW == 1: pf_wd()
        X0 = WR[it]
        def cexp(d, Lx):
            k("v_mul_f32 v16, %s, v%d" % (fbits(Lx * LOG2E), are))
            k("v_mul_f32 v17, %s, v%d" % (fbits(Lx / (2 * math.pi)), aim))
            k("v_exp_f32 v16, v16")
            k("v_fract_f32 v17, v17")
            k("v_cos_f32 v%d, v17" % d)
            k("v_sin_f32 v%d, v17" % (d + 1))
            k("v_mul_f32 v%d, v16, v%d" % (d, d))
            k("v_mul_f32 v%d, v16, v%d" % (d + 1, d + 1))
        cexp(E8, 8); cexp(E1, 1); cexp(E256, 256)
        cmul(E16, E8, E8); cmul(E2, E1, E1); cmul(E4, E2, E2)
        Ya, Yb = 50, 52
        k("v_mov_b32 v50, 1.0"); k("v_mov_b32 v51, 0")
        put(0, Ya); put(1, E8)
        cmul(Yb, E8, E16)
        put(2, E16); put(3, Yb)
        cmul(Ya, E16, E16)
        for j in range(4, 32, 2):
            cmul(Yb, Yb, E16)
            put(j & 15, Ya); put((j + 1) & 15, Yb)
            if j + 2 < 32: cmul(Ya, Ya, E16)
            if j == 14:
                for ks in range(4): k("ds_read_b128 %s, v5 offset:%d" % (vr(YF[0] + 4 * ks, 4), ks * 64))
        for ks in range(4): k("ds_read_b128 %s, v5 offset:%d" % (vr(YF[1] + 4 * ks, 4), ks * 64))
        Xa, Xb, Xc = 54, 56, 58
        if it == 0: nonce_pub()
        put(0, X0, True)
        cmul(Xa, X0, E1); cmul(Xb, X0, E256)
        put(1, Xa, True); put(8, Xb, True)
        cmul(Xc, Xb, E2)
        for r in range(2, 8):
            cmul(Xa, Xa, E1); put(r, Xa, True)
            if r <= 5:
                put(9 + (r - 2), Xc, True)
                if r < 5: cmul(Xc, Xc, E2)
        def xtile(t):
            for ks in range(4): k("ds_read_b128 %s, v%d offset:%d" % (vr(XFB + 4 * ks, 4), XA[t], ks * 64))
        def xmfma(t):
            for ks in range(4):
                for yt in range(2):
                    k("v_mfma_f32_16x16x32_f16 %s, %s, %s, %s" % (vr(D(t, yt), 4), vr(XFB + 4 * ks, 4), vr(YF[yt] + 4 * ks, 4), vr(D(t, yt), 4)))
        xtile(0)
        for b in range(2):
            cmul(Xb, Xb, E256); put(3 * b, Xb, True)
            cmul(Xc, Xb, E4); put(3 * b + 1, Xc, True)
            cmul(Xa, Xb, E8); put(3 * b + 2, Xa, True)
        k("s_waitcnt lgkmcnt(6)")
        xmfma(0)
        xtile(1)
        for b in range(4):
            cmul(Xb, Xb, E256); put(6 + 2 * b, Xb, True)
            cmul(Xa, Xb, E8); put(7 + 2 * b, Xa, True)
        k("s_waitcnt lgkmcnt(8)")
        xmfma(1)
        for t in (2, 3):
            xtile(t)
            k("s_waitcnt lgkmcnt(0)")
            xmfma(t)
    if ENV("VERB", 0): print("kgen instrs", kc[0])
    assert not hooks
    sk_("kgen")
    a("s_setprio %d" % ENV("XPRIO", 0))
    u_poll()
    a("v_lshl_add_u32 v18, v1, 4, s%d" % sSTG)
    a("s_xor_b32 s%d, s%d, 1" % (sT0, sKW))
    a("s_mul_i32 s%d, s%d, %d" % (sT0, sT0, STG_W))
    a("s_add_u32 s%d, s%d, %d" % (sT0, sT0, L_STG))
    a("v_lshl_add_u32 v19, v1, 4, s%d" % sT0)
    x1, x2 = L("X"), L("X")
    a("s_cmp_lg_u32 s%d, 0" % sHF)
    a("s_cbranch_scc1 %s" % x1)
    a.begin_opt()
    for i in range(4): a("ds_write_b128 v18, %s offset:%d" % (vr(144 + 4 * i, 4), i * 1024))
    a("s_branch %s" % x2)
    a.end_opt()
    a.label(x1)
    a.begin_opt()
    for i in range(4): a("ds_write_b128 v18, %s offset:%d" % (vr(128 + 4 * i, 4), i * 1024))
    for i in range(16): a("v_mov_b32 v%d, v%d" % (128 + i, 144 + i))
    a.end_opt()
    a.label(x2)
    setf(Y_KX)
    waitp(Y_KX)
    a("s_and_b32 s%d, s%d, 2" % (sT0, sKW))
    a("s_lshl_b32 s%d, s%d, 2" % (sT0, sT0))
    a("s_add_u32 s%d, s%d, %d" % (sT0, sT0, L_SYNC + Y_KEXP))
    a("v_mov_b32 v10, s%d" % sT0)
    a("ds_read_b64 v[10:11], v10")
    for i in range(4): a("ds_read_b128 %s, v19 offset:%d" % (vr(144 + 4 * i, 4), i * 1024))
    a("s_waitcnt lgkmcnt(4)")
    a("v_max_u32 v16, v10, v11")
    a("v_add_u32 v17, v10, v11"); a("v_subrev_u32 v17, s%d, v17" % sINV)
    def fac(dst, esrc):
        a("v_sub_u32 v%d, %s, v16" % (dst, esrc))
        a("v_add_u32 v%d, 127, v%d" % (dst, dst))
        a("v_max_i32 v%d, 0, v%d" % (dst, dst))
        a("v_lshlrev_b32 v%d, 23, v%d" % (dst, dst))
    fac(20, "s%d" % sINV); fac(22, "v17")
    a("v_lshlrev_b32 v9, 23, v16")
    a("s_waitcnt lgkmcnt(0)")
    for i in range(16):
        a("v_mul_f32 v%d, v20, v%d" % (128 + i, 128 + i))
        a("v_fmac_f32 v%d, v22, v%d" % (128 + i, 144 + i))
    a("v_and_b32 v10, v6, v7"); a("v_and_b32 v10, s%d, v10" % sHF)
    a("v_cmp_ne_u32 vcc, 0, v10")
    for i in range(4): a("v_cndmask_b32 v%d, v%d, v%d, vcc" % (128 + 4 * i, 128 + 4 * i, 129 + 4 * i))
    a("v_lshrrev_b32 v10, 1, v6"); a("v_lshlrev_b32 v10, 9, v10")
    a("v_lshl_add_u32 v10, v7, 4, v10")
    a("v_and_b32 v11, 1, v6"); a("v_lshl_add_u32 v10, v11, 3, v10")
    a("s_add_u32 s%d, s%d, %d" % (sT0, sCVB, 4088 - 1024 - 256))
    a("s_lshl_b32 s%d, s%d, 11" % (sT2, sHF))
    a("s_sub_u32 s%d, s%d, s%d" % (sT0, sT0, sT2))
    a("v_sub_u32 v10, s%d, v10" % sT0)
    for tl in range(2):
        for yt in range(2):
            b = 128 + 8 * tl + 4 * yt
            a("v_cvt_pk_f16_f32 v%d, v%d, v%d" % (64 + 4 * tl + 2 * yt, b + 3, b + 2))
            a("v_cvt_pk_f16_f32 v%d, v%d, v%d" % (65 + 4 * tl + 2 * yt, b + 1, b))
    a("v_and_b32 v11, 3, v1"); a("v_add_u32 v11, %d, v11" % (L_SYNC + Y_CNT))
    spin_lds(11, 164, 10, slp=4, off=Y_RD)
    for tl in range(2):
        for yt in range(2):
            a("ds_write_b64 v10, %s offset:%d" % (vr(64 + 4 * tl + 2 * yt, 2), (1 - tl) * 1024 + (1 - yt) * 256))
    if "dbgk" in EXP:
        a("s_mul_i32 s%d, s%d, %d" % (sT0, sCH, KSTRIDE)); a("s_sub_u32 s%d, s%d, s%d" % (sT0, sT0, sCVB)); a("s_add_u32 s%d, s%d, %d" % (sT0, sT0, WS_KREV))
        for tl in range(2):
            for yt in range(2):
                a("buffer_store_dwordx2 %s, v10, s[%d:%d], s%d offen offset:%d" % (vr(64 + 4 * tl + 2 * yt, 2), SWS, SWS + 3, sT0, (1 - tl) * 1024 + (1 - yt) * 256))
        a("s_lshl_b32 s%d, s%d, 2" % (sT0, sCH)); a("s_add_u32 s%d, s%d, %d" % (sT0, sT0, WS_KSC)); a("v_mov_b32 v11, s%d" % sT0)
        a("buffer_store_dword v9, v11, s[%d:%d], 0 offen" % (SWS, SWS + 3))
    a("s_setprio %d" % int(os.environ.get("CPRIO", "3")))
    a("v_mov_b32 v2, v7"); a("v_mov_b32 v3, v6")
    a("v_lshlrev_b32 v4, 4, v1")
    a("v_mov_b32 v12, 0"); a("v_mov_b32 v13, 0"); a("v_mov_b32 v14, 0"); a("v_mov_b32 v15, 0")
    a("v_add_u32 v5, %d, v4" % O_U)
    a("v_bfe_u32 v6, v1, 2, 2")
    a("v_mul_u32_u24 v6, %d, v6" % CPS)
    a("v_and_b32 v7, 3, v1")
    a("v_lshl_add_u32 v6, v7, 4, v6")
    a("v_add_u32 v6, 4096, v6")
    a("v_cmp_gt_u32 vcc, 32, v1")
    a("v_cndmask_b32 v5, v6, v5, vcc")
    a("v_add_u32 v5, s%d, v5" % sCVB)
    nz = L("NZ")
    a("s_cmp_lg_u32 s%d, 0" % sHF)
    a("s_cbranch_scc1 %s" % nz)
    a.begin_opt()
    a("s_mov_b32 exec_lo, 0x3fffffff"); a("s_mov_b32 exec_hi, 0xffff")
    a("ds_write_b128 v5, v[12:15]")
    a("s_mov_b64 exec, -1")
    a.end_opt()
    a.label(nz)
    setf(Y_C0)
    a("v_sub_u32 v5, 3, v2"); a("v_and_b32 v5, 3, v5")
    a("v_mul_u32_u24 v6, %d, v5" % CPS)
    a("v_add_u32 v7, v2, v5")
    a("v_sub_u32 v7, %d, v7" % (2031 - 16 * 126))
    a("v_lshl_add_u32 v7, v3, 3, v7")
    a("v_lshl_add_u32 v6, v7, 1, v6")
    a("s_lshl_b32 s%d, s%d, 8" % (sT0, sHF))
    a("s_sub_u32 s%d, s%d, s%d" % (sT1, sCVB, sT0))
    a("v_add_u32 v6, s%d, v6" % sT1)
    a("v_lshlrev_b32 v7, 5, v2")
    a("v_lshl_add_u32 v7, v3, 4, v7")
    a("v_add_u32 v7, %d, v7" % O_U)
    a("v_add_u32 v7, s%d, v7" % sT1)
    a("s_add_u32 s%d, s%d, s%d" % (sT3, sCVB, sT2))
    a("v_add_u32 v5, s%d, v4" % sT3)
    lq, lq2, lq3 = L("PB"), L("PB"), L("PB")
    a("s_cmp_eq_u32 s%d, 0" % sPM)
    a("s_cbranch_scc1 %s" % lq3)
    a.begin_opt()
    a("s_mov_b32 s%d, %d" % (sOX, SPIN))
    a.label(lq)
    a("s_waitcnt vmcnt(0)")
    a("v_cmp_ne_u32 vcc, s%d, v169" % sNON)
    a("s_cmp_eq_u32 vcc_lo, 0")
    a("s_cbranch_scc1 %s" % lq2)
    a("s_sleep %d" % int(os.environ.get("PSL", "8")))
    a("s_mov_b32 exec_hi, 0")
    a("buffer_load_dword v169, v112, s[%d:%d], 0 offen sc1" % (SWS, SWS + 3))
    a("s_mov_b64 exec, -1")
    a("s_sub_u32 s%d, s%d, 1" % (sOX, sOX)); a("s_cmp_lg_u32 s%d, 0" % sOX)
    a("s_cbranch_scc1 %s" % lq)
    a.label(lq2)
    u_dma()
    a.end_opt()
    a.label(lq3)
    sk_("rdyB")
    waitp(Y_C0)
    for it in range(2):
        b = 32 + 8 * it
        a("ds_read_b128 %s, v5 offset:%d" % (vr(b, 4), it * 1024))
        a("ds_read_b64 %s, v5 offset:%d" % (vr(b + 4, 2), it * 1024 + 16))
    for it in range(2):
        b = 32 + 8 * it
        a("s_waitcnt lgkmcnt(%d)" % (2 if it == 0 else 3))
        d = [b + i for i in range(6)]
        c1, c2, c3 = 64 + 12 * it, 68 + 12 * it, 72 + 12 * it
        for i in range(4):
            a("v_alignbit_b32 v%d, v%d, v%d, 16" % (c1 + i, d[i + 1], d[i]))
            a("v_mov_b32 v%d, v%d" % (c2 + i, d[i + 1]))
            a("v_alignbit_b32 v%d, v%d, v%d, 16" % (c3 + i, d[i + 2], d[i + 1]))
        a("ds_write_b128 v5, %s offset:%d" % (vr(c1, 4), CPS + it * 1024))
        a("ds_write_b128 v5, %s offset:%d" % (vr(c2, 4), 2 * CPS + it * 1024))
        a("ds_write_b128 v5, %s offset:%d" % (vr(c3, 4), 3 * CPS + it * 1024))
    sk_("copies")
    CA = 16; G = 64; F = 96
    for r in range(CA, CA + 32): a("v_mov_b32 v%d, 0" % r)
    setf(Y_BL)
    spin_lds(114, 164, 1, width="b32", slp=1, off=Y_U - Y_RDA)
    a("ds_read_b64 v[166:167], v114 offset:%d" % (Y_NON - Y_RDA))
    waitp(Y_BL)
    sk_("built")
    def rg(ri, q):
        o = 32 * (126 - 16 * q - 2 * ri)
        a("ds_read_b64 %s, v6 offset:%d" % (vr(G + 4 * q, 2), o))
        a("ds_read_b64 %s, v6 offset:%d" % (vr(G + 4 * q + 2, 2), o + 8))
    def rf(ri, j):
        a("ds_read_b128 %s, v7 offset:%d" % (vr(F + 4 * j, 4), 32 * (16 * j - 2 * ri + 14)))
    side = []
    S = side.append
    S("v_lshlrev_b32 v8, 16, v160")
    XW, XO = 128, 136
    for i in range(4):
        for pr in range(2):
            xw = XW + 2 * i + pr; o = XO + 4 * i + 2 * pr
            S("v_cvt_f32_f16 v%d, v%d" % (o, xw))
            S("v_lshrrev_b32 v%d, 16, v%d" % (o + 1, xw)); S("v_cvt_f32_f16 v%d, v%d" % (o + 1, o + 1))
            S("v_mul_f32 v%d, v8, v%d" % (o, o)); S("v_mul_f32 v%d, v8, v%d" % (o + 1, o + 1))
            S("v_cvt_pk_bf16_f32 v%d, v%d, v%d" % (o, o, o + 1))
            S("v_and_b32 v%d, 0xffff0000, v%d" % (o + 1, o)); S("v_lshlrev_b32 v%d, 16, v%d" % (o, o))
    S("v_lshl_add_u32 v5, v1, 4, s%d" % sSTG)
    S("s_xor_b32 s%d, s%d, 1" % (sT0, sKW))
    S("s_mul_i32 s%d, s%d, %d" % (sT0, sT0, STG_W))
    S("s_add_u32 s%d, s%d, %d" % (sT0, sT0, L_STG))
    S("v_lshl_add_u32 v152, v1, 4, s%d" % sT0)
    S("v_and_b32 v13, 1, v3"); S("v_lshlrev_b32 v13, 9, v13")
    S("v_lshrrev_b32 v14, 2, v2"); S("v_lshl_add_u32 v13, v14, 7, v13")
    S("v_lshrrev_b32 v14, 1, v3"); S("v_lshl_add_u32 v13, v14, 6, v13")
    S("v_and_b32 v14, 3, v2"); S("v_lshl_add_u32 v13, v14, 4, v13")
    S("v_add_u32 v13, s%d, v13" % sT2)
    S("s_and_b32 s%d, s%d, 0xfffe" % (sT0, sCH)); S("s_add_u32 s%d, s%d, s%d" % (sT0, sT0, sHF)); S("s_lshl_b32 s%d, s%d, 8" % (sT0, sT0))
    S("s_and_b32 s%d, s%d, 1" % (sT1, sCH)); S("s_lshl_b32 s%d, s%d, 3" % (sT1, sT1))
    S("s_add_u32 s%d, s%d, s%d" % (sT0, sT0, sT1))
    S("s_add_u32 s%d, s%d, %d" % (sT0, sT0, WS_CF))
    S("v_mov_b32 v14, s%d" % sT0)
    S("v_readfirstlane_b32 s%d, v166" % sNON); S("v_readfirstlane_b32 s%d, v167" % (sNON + 1))
    S("s_lshl_b32 s%d, s%d, 14" % (sT0, sCT))
    S("s_lshl_b32 s%d, s%d, 12" % (sT1, sKW))
    S("s_add_u32 s%d, s%d, s%d" % (sT0, sT0, sT1))
    S("s_lshr_b32 s%d, s%d, 4" % (sT1, sRT2)); S("s_lshl_b32 s%d, s%d, 8" % (sT1, sT1))
    S("s_add_u32 s%d, s%d, s%d" % (sT0, sT0, sT1))
    S("s_add_u32 s%d, s%d, %d" % (sT0, sT0, WS_CF))
    S("v_lshrrev_b32 v153, 1, v2"); S("v_lshl_add_u32 v153, v153, 9, s%d" % sT0)
    S("v_and_b32 v154, 1, v2"); S("v_lshl_add_u32 v153, v154, 3, v153")
    S("s_lshl_b32 s%d, s%d, 4" % (sT0, sKW))
    S("v_lshrrev_b32 v154, 3, v1")
    S("v_add_u32 v154, s%d, v154" % sT0)
    S("s_lshl_b32 s%d, s%d, 6" % (sT0, sCT))
    S("v_add_u32 v154, s%d, v154" % sT0)
    S("v_mul_u32_u24 v154, %d, v154" % YST)
    S("v_and_b32 v155, 7, v1")
    S("v_lshl_add_u32 v154, v155, 4, v154")
    S("s_lshl_b32 s%d, s%d, 7" % (sT2, sRT2))
    S("s_add_u32 s%d, s%d, %d" % (sT2, sT2, WS_YAT))
    S("s_add_u32 s%d, s%d, %d" % (sT3, sT2, 8 * YST))
    S("s_mul_i32 s%d, s%d, %d" % (sT0, sCH, YST))
    S("s_add_u32 s%d, s%d, %d" % (sT0, sT0, WS_YAT))
    S("v_add_u32 v165, %d, v162" % Y_CX)
    if NSTA:
        S("s_lshl_b32 s%d, s%d, 12" % (sOX, sKW)); S("v_lshl_add_u32 v156, v1, 4, s%d" % sOX); S("v_add_u32 v158, 65536, v156")
        S("s_lshl_b32 s%d, s%d, 13" % (sOX, sHF)); S("s_add_u32 s%d, s%d, s%d" % (sOX, sOX, sCVB)); S("v_lshl_add_u32 v157, v1, 4, s%d" % sOX)
        if SP0 < 0:
            side2 = []
            for n in range(4 * NSTA): side2.append(n)
    def copy_out():
        for n in range(4 * NSTA):
            s_ = 14 - NSTA + n // 4; q = n % 4
            if s_ >= 12: ad, of = 157, (s_ - 12) * 4096
            elif WDS[s_ % 6] >= 65536: ad, of = 158, WDS[s_ % 6] - 65536
            else: ad, of = 156, WDS[s_ % 6]
            a("ds_write_b128 v%d, %s offset:%d" % (ad, vr(176 + 4 * n, 4), of + q * 1024))
        setf(Y_WS)
    a("v_lshlrev_b32 v13, 5, v2")
    a("v_lshl_add_u32 v13, v3, 3, v13")
    a("s_add_u32 s%d, s%d, %d" % (sT1, sT3, O_U + 480))
    a("v_add_u32 v14, s%d, v13" % sT1)
    for i in range(4): a("ds_read_b64 %s, v14 offset:%d" % (vr(XW + 2 * i, 2), i * 512))
    for q in range(8): rg(0, q); rf(0, 7 - q)
    nm = 0
    for ri in range(4):
        for q in range(8):
            for m in range(7, q - 1, -1):
                if q == 0:
                    a("s_waitcnt lgkmcnt(%d)" % min(15, 3 * m))
                a("v_mfma_f32_16x16x32_f16 %s, %s, %s, %s" % (vr(CA + 4 * m, 4), vr(G + 4 * q, 4), vr(F + 4 * (m - q), 4), vr(CA + 4 * m, 4)))
                nm += 1
                if NSTA and SP0 < 0 and side2 and nm % ENV("SPM", 4) == 0: st_ld(side2.pop(0))
                if nm > 8 and side:
                    a(side.pop(0))
                    while side and side[0].startswith("s_"): a(side.pop(0))
            if ri + 1 < 4: rg(ri + 1, q); rf(ri + 1, 7 - q)
    assert not side
    sk_("mfma")
    x1, x2 = L("X"), L("X")
    a("s_cmp_lg_u32 s%d, 0" % sHF)
    a("s_cbranch_scc1 %s" % x1)
    a.begin_opt()
    for i in range(4): a("ds_write_b128 v5, %s offset:%d" % (vr(CA + 16 + 4 * i, 4), i * 1024))
    a("s_mov_b64 exec, 1")
    a("ds_write_b8 v161, v163 offset:%d" % Y_CX)
    a("s_mov_b64 exec, -1")
    a("s_branch %s" % x2)
    a.end_opt()
    a.label(x1)
    a.begin_opt()
    for i in range(4): a("ds_write_b128 v5, %s offset:%d" % (vr(CA + 4 * i, 4), i * 1024))
    a("s_mov_b64 exec, 1")
    a("ds_write_b8 v161, v163 offset:%d" % Y_CX)
    a("s_mov_b64 exec, -1")
    for i in range(16): a("v_mov_b32 v%d, v%d" % (CA + i, CA + 16 + i))
    a.end_opt()
    a.label(x2)
    spin_lds(165, 164, 1, slp=0)
    for i in range(4): a("ds_read_b128 %s, v152 offset:%d" % (vr(CA + 16 + 4 * i, 4), i * 1024))
    for i in range(4):
        a("s_waitcnt lgkmcnt(%d)" % (3 - i))
        for pr in range(2):
            y = CA + 4 * i + 2 * pr; o = XO + 4 * i + 2 * pr
            a("v_add_f32 v%d, v%d, v%d" % (y, y, y + 16)); a("v_add_f32 v%d, v%d, v%d" % (y + 1, y + 1, y + 17))
            a("v_mul_f32 v%d, v9, v%d" % (y, y)); a("v_mul_f32 v%d, v9, v%d" % (y + 1, y + 1))
            a("v_cvt_pk_bf16_f32 v%d, v%d, v%d" % (y, y, y + 1))
            a("v_and_b32 v%d, 0xffff0000, v%d" % (y + 1, y)); a("v_lshlrev_b32 v%d, 16, v%d" % (y, y))
            a("v_add_f32 v%d, v%d, v%d" % (y, y, o)); a("v_add_f32 v%d, v%d, v%d" % (y + 1, y + 1, o + 1))
            a("v_cvt_pk_bf16_f32 v%d, v%d, v%d" % (72 + 2 * i + pr, y, y + 1))
        if i & 1:
            b = 72 + 4 * (i >> 1)
            a("v_permlane16_swap_b32 v%d, v%d" % (b, b + 2)); a("v_permlane16_swap_b32 v%d, v%d" % (b + 1, b + 3))
            a("buffer_store_dwordx4 %s, v13, s[%d:%d], s%d offen offset:%d sc1" % (vr(b, 4), SWS, SWS + 3, sT0, (i >> 1) * 1024))
    setf(Y_XR)
    def cflag():
        a("s_waitcnt vmcnt(0)")
        a("s_mov_b64 exec, 1")
        a("buffer_store_dwordx2 v[166:167], v14, s[%d:%d], 0 offen sc1" % (SWS, SWS + 3))
        a("s_mov_b64 exec, -1")
    if NSTA:
        c1, c2 = L("CO"), L("CO")
        a("ds_read_u8 v164, v161 offset:%d" % Y_TR)
        a("s_waitcnt vmcnt(2) lgkmcnt(0)")
        a("v_cmp_gt_u32 vcc, 1, v164")
        a("s_cbranch_vccnz %s" % c1)
        a.begin_opt()
        copy_out(); cflag()
        a("s_branch %s" % c2)
        a.end_opt()
        a.label(c1)
        a.begin_opt()
        cflag()
        spin_lds(161, 164, 1, slp=1, off=Y_TR)
        copy_out()
        a.end_opt()
        a.label(c2)
    else: cflag()
    sk_("flag")
    a("s_setprio 0")
    a("s_sleep %d" % int(os.environ.get("CSL0", "8")))
    lp, ld = L("CP"), L("CP")
    a("s_mov_b32 s%d, %d" % (sOX, SPIN))
    a.label(lp)
    a("s_mov_b64 exec, 0xffff")
    a("buffer_load_dwordx2 v[20:21], v153, s[%d:%d], 0 offen sc1" % (SWS, SWS + 3))
    a("s_waitcnt vmcnt(0)")
    a("v_cmp_ne_u64 vcc, s[%d:%d], v[20:21]" % (sNON, sNON + 1))
    a("s_mov_b64 exec, -1")
    a("s_cbranch_vccz %s" % ld)
    a("s_sleep %d" % int(os.environ.get("CSL", "8")))
    a("s_sub_u32 s%d, s%d, 1" % (sOX, sOX)); a("s_cmp_lg_u32 s%d, 0" % sOX)
    a("s_cbranch_scc1 %s" % lp)
    a.label(ld)
    sk_("polled")
    a("buffer_load_dwordx4 v[104:107], v154, s[%d:%d], s%d offen" % (SWS, SWS + 3, sT2))
    a("buffer_load_dwordx4 v[108:111], v154, s[%d:%d], s%d offen" % (SWS, SWS + 3, sT3))
    waitp(Y_XR)
    a("s_waitcnt vmcnt(0)")
    a("ds_write_b128 v5, v[104:107]")
    a("ds_write_b128 v5, v[108:111] offset:1024")
    setf(Y_YA)
    a("s_waitcnt lgkmcnt(0)")
    sk_("end")
    sk_.store(100)
    a("s_endpgm")

def producer(a, sp_, L, spin_lds):
    a.label("K_PROD")
    a.vmq = []
    a.nopkw = True
    XT_S = 912
    L_PC = 64 * XT_S
    a("v_lshrrev_b32 v2, 3, v1")
    a("v_and_b32 v3, 7, v1")
    a("s_lshr_b32 s%d, s2, 3" % sT1)
    a("s_bfe_u32 s%d, s2, 0x20001" % sT0); a("s_lshl_b32 s%d, s%d, 3" % (sR, sT0)); a("s_lshl_b32 s%d, s%d, 1" % (sT1, sT1))
    a("s_add_u32 s%d, s%d, s%d" % (sR, sR, sT1)); a("s_and_b32 s%d, s2, 1" % sT0); a("s_add_u32 s%d, s%d, s%d" % (sR, sR, sT0))
    a("s_lshr_b32 s%d, s2, 1" % sF); a("s_min_u32 s%d, s%d, 13" % (sF, sF)); a("s_mul_i32 s%d, s%d, 14" % (sT0, sT0)); a("s_add_u32 s%d, s%d, s%d" % (sF, sF, sT0))
    a("s_lshl_b32 s%d, s%d, 3" % (sT0, sWV))
    a("v_add_u32 v4, s%d, v2" % sT0)
    a("s_lshl_b32 s%d, s%d, 6" % (sT1, sR))
    a("v_add_u32 v5, s%d, v4" % sT1)
    a("v_mul_u32_u24 v6, 896, v5")
    a("v_lshl_add_u32 v6, v3, 4, v6")
    a("s_waitcnt lgkmcnt(0)")
    srd(a, SX, 16, 2048 * 896)
    for i in range(7):
        a.vm("buffer_load_dwordx4 %s, v6, s[%d:%d], 0 offen offset:%d" % (vr(32 + 4 * i, 4), SX, SX + 3, i * 128), "x%d" % i)
    srd(a, SWS, 14, WS_SIZE)
    srd(a, SDBG, 12, 256)
    ln = L("NN")
    a("s_or_b32 s%d, s2, s%d" % (sT0, sWV))
    a("s_cbranch_scc1 %s" % ln)
    a.begin_opt()
    a("s_memrealtime s[%d:%d]" % (sNON, sNON + 1))
    a("s_waitcnt lgkmcnt(0)")
    a("s_or_b32 s%d, s%d, 0x40000000" % (sNON + 1, sNON + 1)); a("s_or_b32 s%d, s%d, 1" % (sNON, sNON))
    a("v_mov_b32 v12, s%d" % sNON); a("v_mov_b32 v13, s%d" % (sNON + 1)); a("v_mov_b32 v14, 64")
    a("s_mov_b64 exec, 1")
    a("buffer_store_dwordx2 v[12:13], v14, s[%d:%d], 0 offen sc1" % (SDBG, SDBG + 3))
    a("s_mov_b64 exec, -1")
    a.end_opt()
    a.label(ln)
    a("s_lshr_b32 s%d, s%d, 1" % (sT1, sWV))
    a("s_mul_i32 s%d, s%d, %d" % (sT1, sT1, 112 * 3584))
    a("s_lshl_b32 s%d, s%d, 7" % (sT2, sF))
    a("s_add_u32 s%d, s%d, s%d" % (sT1, sT1, sT2))
    a("v_mul_u32_u24 v9, 3584, v2")
    a("v_lshl_add_u32 v9, v3, 4, v9")
    a("v_add_u32 v9, s%d, v9" % sT1)
    a("s_bitcmp0_b32 s%d, 0" % sWV)
    a("s_cselect_b32 s%d, s32, s34" % SWG)
    a("s_cselect_b32 s%d, s33, s35" % (SWG + 1))
    a("s_and_b32 s%d, s%d, 0xffff" % (SWG + 1, SWG + 1))
    a("s_mov_b32 s%d, 0x%x" % (SWG + 2, 448 * 3584))
    a("s_mov_b32 s%d, 0x00020000" % (SWG + 3))
    wq = list(range(14))
    def ldw(n):
        for _ in range(n):
            if not wq: return
            i = wq.pop(0)
            a("s_mov_b32 s%d, %d" % (sOW, i * 8 * 3584))
            a.vm("buffer_load_dwordx4 %s, v9, s[%d:%d], s%d offen" % (vr(64 + 4 * i, 4), SWG, SWG + 3, sOW), "w%d" % i)
    a("s_mov_b32 s%d, 0x3f803f80" % sONES)
    a("v_mov_b32 v10, 0"); a("v_mov_b32 v11, 0"); a("v_mov_b32 v12, 0"); a("v_mov_b32 v13, 0")
    a("v_mul_u32_u24 v7, %d, v4" % XT_S)
    a("v_lshl_add_u32 v7, v3, 4, v7")
    a("v_lshlrev_b32 v8, 4, v5")
    a("s_lshl_b32 s%d, s2, 8" % sT2); a("s_add_u32 s%d, s%d, %d" % (sT2, sT2, WS_PF))
    a("v_lshl_add_u32 v28, v1, 13, s%d" % sT2)
    a("s_lshl_b32 s%d, s%d, 8" % (sT0, sR)); a("s_add_u32 s%d, s%d, %d" % (sT0, sT0, WS_FR))
    a("s_lshl_b32 s%d, s%d, 8" % (sT1, sF)); a("s_add_u32 s%d, s%d, %d" % (sT1, sT1, WS_FC))
    a("s_cmp_eq_u32 s%d, 0" % sWV); a("s_cselect_b32 s%d, s%d, s%d" % (sT0, sT0, sT1)); a("v_mov_b32 v29, s%d" % sT0)
    a("v_mov_b32 v30, 64")
    for i in range(7):
        a.wait_vm("x%d" % i)
        for r in range(4):
            a("v_dot2_f32_bf16 v%d, v%d, s%d, v%d" % (10 + 2 * (r & 1), 32 + 4 * i + r, sONES, 10 + 2 * (r & 1)))
            a("v_dot2_f32_bf16 v%d, v%d, v%d, v%d" % (11 + 2 * (r & 1), 32 + 4 * i + r, 32 + 4 * i + r, 11 + 2 * (r & 1)))
    ldw(ENV("PW0", 6))
    a("v_add_f32 v10, v10, v12"); a("v_add_f32 v11, v11, v13")
    for mod in ("quad_perm:[1,0,3,2]", "quad_perm:[2,3,0,1]", "row_half_mirror"):
        for r in (10, 11):
            a("v_add_f32_dpp v%d, v%d, v%d %s row_mask:0xf bank_mask:0xf" % (r, r, r, mod))
    c = math.sqrt(2 / math.pi); k1 = -2 * c * LOG2E; k2 = k1 * 0.044715
    a("v_mul_f32 v10, %s, v10" % fbits(1.0 / 448))
    a("v_mul_f32 v11, %s, v11" % fbits(1.0 / 448))
    a("v_fma_f32 v11, -v10, v10, v11")
    a("v_max_f32 v11, 0, v11")
    a("v_cvt_pk_bf16_f32 v10, v10, v11")
    a("v_lshlrev_b32 v12, 16, v10")
    a("v_and_b32 v11, 0xffff0000, v10")
    a("v_add_f32 v11, %s, v11" % fbits(1e-5))
    a("v_cvt_pk_bf16_f32 v11, v11, v11")
    a("v_lshlrev_b32 v11, 16, v11")
    a("v_sqrt_f32 v11, v11")
    a("v_cvt_pk_bf16_f32 v11, v11, v11")
    a("v_lshlrev_b32 v11, 16, v11")
    a("v_rcp_f32 v14, v11")
    a("v_sub_f32 v16, 0, v12")
    a("v_cvt_pk_bf16_f32 v24, v16, v16")
    a("v_mul_f32 v27, v11, v11")
    a("v_mul_f32 v25, %s, v14" % fbits(k1))
    a("v_mul_f32 v10, v14, v14"); a("v_mul_f32 v10, v10, v14")
    a("v_mul_f32 v26, %s, v10" % fbits(k2))
    a("s_mov_b32 s%d, %d" % (sT0, WS_RC))
    a("s_mov_b32 exec_lo, 0x01010101"); a("s_mov_b32 exec_hi, 0x01010101")
    a.vm("buffer_store_dwordx4 v[24:27], v8, s[%d:%d], s%d offen sc1" % (SWS, SWS + 3, sT0), "rc")
    a("s_cmp_lt_u32 s%d, 2" % sWV); a("s_cselect_b32 exec_lo, 1, 0"); a("s_mov_b32 exec_hi, 0")
    a("buffer_load_dwordx2 v[18:19], v30, s[%d:%d], 0 offen sc1" % (SDBG, SDBG + 3))
    a("s_mov_b64 exec, -1")
    sp_("stats")
    for i in range(7):
        for r in range(4):
            w = 32 + 4 * i + r; t = 20 + 2 * (r & 1)
            a("v_lshlrev_b32 v%d, 16, v%d" % (t, w)); a("v_and_b32 v%d, 0xffff0000, v%d" % (t + 1, w))
            a("v_pk_add_f32 %s, %s, v[16:17] op_sel_hi:[1,0]" % (vr(t, 2), vr(t, 2)))
            a("v_cvt_pk_bf16_f32 v%d, v%d, v%d" % (t, t, t + 1))
            a("v_and_b32 v%d, 0xffff0000, v%d" % (t + 1, t)); a("v_lshlrev_b32 v%d, 16, v%d" % (t, t))
            a("v_pk_mul_f32 %s, %s, v[14:15] op_sel_hi:[1,0]" % (vr(t, 2), vr(t, 2)))
            a("v_cvt_pk_bf16_f32 v%d, v%d, v%d" % (t, t, t + 1))
            a("v_and_b32 v%d, 0xffff0000, v%d" % (t + 1, t)); a("v_lshlrev_b32 v%d, 16, v%d" % (t, t))
            a("v_cvt_pk_f16_f32 v%d, v%d, v%d" % (w, t, t + 1))
        a("ds_write_b128 v7, %s offset:%d" % (vr(32 + 4 * i, 4), i * 128))
        if i >= ENV("PW2", 0): ldw(ENV("PW1", 1))
    a("v_lshrrev_b32 v4, 4, v1"); a("v_and_b32 v5, 15, v1")
    a("v_lshrrev_b32 v6, 2, v5"); a("v_lshl_add_u32 v6, v4, 3, v6")
    a("v_bfe_u32 v7, v5, 1, 1"); a("v_lshl_add_u32 v6, v7, 5, v6")
    a("v_mul_u32_u24 v6, %d, v6" % XT_S)
    a("v_and_b32 v7, 1, v5"); a("v_lshl_add_u32 v6, v7, 3, v6")
    a("s_lshl_b32 s%d, s%d, 4" % (sOX, sWV))
    a("v_add_u32 v6, s%d, v6" % sOX)
    a("s_mul_i32 s%d, s%d, %d" % (sOX, sWV, 7 * 1152)); a("s_add_u32 s%d, s%d, %d" % (sOX, sOX, L_PC + 2048))
    a("v_and_b32 v31, 7, v5"); a("v_mul_u32_u24 v31, 144, v31"); a("v_lshl_add_u32 v31, v4, 4, v31")
    a("v_lshrrev_b32 v5, 3, v5"); a("v_lshl_add_u32 v31, v5, 6, v31"); a("v_add_u32 v31, s%d, v31" % sOX)
    a("v_mul_u32_u24 v8, 144, v2"); a("v_lshl_add_u32 v8, v3, 4, v8"); a("v_add_u32 v8, s%d, v8" % sOX)
    a("v_mul_u32_u24 v7, %d, v2" % XST); a("v_lshl_add_u32 v7, v3, 4, v7")
    a("s_lshl_b32 s%d, s%d, 7" % (sT2, sR)); a("s_add_u32 s%d, s%d, %d" % (sT2, sT2, WS_XNT))
    a("s_mul_i32 s%d, s%d, %d" % (sT1, sWV, 8 * XST)); a("s_add_u32 s%d, s%d, s%d" % (sT1, sT1, sT2))
    sp_("xn")
    ldw(14)
    a("s_mov_b32 s%d, 0x3f80" % sOX); a("s_mov_b32 s%d, 0x3f800000" % sOW)
    for r in range(120, 128): a("v_mov_b32 v%d, 0" % r)
    for i in range(14):
        a.wait_vm("w%d" % i)
        for r in range(4):
            w = 64 + 4 * i + r
            a("v_dot2_f32_bf16 v%d, v%d, s%d, v%d" % (120 + 2 * r, w, sOX, 120 + 2 * r))
            a("v_dot2_f32_bf16 v%d, v%d, s%d, v%d" % (121 + 2 * r, w, sOW, 121 + 2 * r))
    for r in range(120, 128): a("v_add_f32_dpp v%d, v%d, v%d row_ror:8 row_mask:0xf bank_mask:0xf" % (r, r, r))
    for op in ("v_permlane16_swap_b32", "v_permlane32_swap_b32"):
        for r in range(8): a("v_mov_b32 v%d, v%d" % (128 + r, 120 + r))
        for r in range(8): a("%s v%d, v%d" % (op, 120 + r, 128 + r))
        for r in range(8): a("v_add_f32 v%d, v%d, v%d" % (120 + r, 120 + r, 128 + r))
    a("s_lshl_b32 s%d, s%d, 8" % (sT0, sWV))
    a("s_add_u32 s%d, s%d, %d" % (sT0, sT0, L_PC))
    a("v_lshl_add_u32 v9, v3, 5, s%d" % sT0)
    a("s_mov_b64 exec, 0xff")
    a("ds_write_b128 v9, v[120:123]"); a("ds_write_b128 v9, v[124:127] offset:16")
    a("s_mov_b64 exec, -1")
    lw = L("PA")
    a("s_cmp_gt_u32 s%d, 1" % sWV)
    a("s_cbranch_scc1 %s" % lw)
    a.begin_opt()
    get_nonce(a, L, 30, 18, pre=True)
    a("v_mov_b32 v10, s%d" % sNON)
    a.end_opt()
    a.label(lw)
    a("s_waitcnt vmcnt(0) lgkmcnt(0)"); a.vmq = []
    sp_("sum")
    a("s_barrier")
    sp_("pbar")
    for i in range(7):
        a("ds_read_b64_tr_b16 %s, v6 offset:%d" % (vr(32 + 4 * i, 2), i * 128))
        a("ds_read_b64_tr_b16 %s, v6 offset:%d" % (vr(34 + 4 * i, 2), i * 128 + 4 * XT_S))
    for i in range(7):
        a("s_waitcnt lgkmcnt(%d)" % 12)
        a("ds_write_b128 v31, %s offset:%d" % (vr(32 + 4 * i, 4), i * 1152))
        a("ds_read_b128 %s, v8 offset:%d" % (vr(64 + 4 * i, 4), i * 1152))
    la = L("PA")
    a("s_cmp_lg_u32 s%d, 1" % sWV)
    a("s_cbranch_scc1 %s" % la)
    a.begin_opt()
    a("v_lshlrev_b32 v9, 2, v1")
    a("v_add_u32 v20, %d, v9" % L_PC)
    for i in range(8): a("ds_read_b32 v%d, v20 offset:%d" % (120 + i, i * 256))
    a("s_lshl_b32 s%d, s%d, 9" % (sT2, sF)); a("s_add_u32 s%d, s%d, %d" % (sT0, sT2, WS_CS)); a("s_add_u32 s%d, s%d, %d" % (sT2, sT0, CSM))
    a("v_lshlrev_b32 v9, 3, v1")
    a("s_waitcnt lgkmcnt(0)")
    for m in range(2):
        c = 120 + m; o = 128 + 2 * m
        a("v_add_f32 v%d, v%d, v%d" % (c, c, c + 2)); a("v_add_f32 v%d, v%d, v%d" % (c + 4, c + 4, c + 6))
        a("v_add_f32 v%d, v%d, v%d" % (c, c, c + 4))
        a("v_cvt_pk_bf16_f32 v%d, v%d, v%d" % (c + 2, c, c)); a("v_lshlrev_b32 v%d, 16, v%d" % (c + 2, c + 2))
        a("v_sub_f32 v%d, v%d, v%d" % (c + 2, c, c + 2))
        a("v_cvt_pk_bf16_f32 v%d, v%d, v%d" % (o, c, c + 2)); a("v_and_b32 v%d, 0xffff0000, v%d" % (c + 4, o))
        a("v_sub_f32 v%d, v%d, v%d" % (c + 2, c + 2, c + 4))
        a("v_cvt_pk_bf16_f32 v%d, v%d, 0" % (o + 1, c + 2))
        a("buffer_store_dwordx2 v[%d:%d], v9, s[%d:%d], s%d offen sc1" % (o, o + 1, SWS, SWS + 3, (sT0, sT2)[m]))
    a.end_opt()
    a.label(la)
    for i in range(7):
        a("s_waitcnt lgkmcnt(%d)" % (12 - 2 * i))
        a.vm("buffer_store_dwordx4 %s, v7, s[%d:%d], s%d offen sc1" % (vr(64 + 4 * i, 4), SWS, SWS + 3, sT1), "xst")
        if i < 6: a("s_add_u32 s%d, s%d, %d" % (sT1, sT1, 64 * XST))
    sp_("st")
    l1, l2 = L("PF"), L("PF")
    a("s_cmp_lt_u32 s%d, 2" % sWV)
    a("s_cbranch_scc1 %s" % l1)
    a("s_waitcnt vmcnt(0)")
    a("s_branch %s" % l2)
    a.label(l1)
    a("s_waitcnt vmcnt(7)")
    a("s_mov_b64 exec, 1")
    a("buffer_store_dword v10, v29, s[%d:%d], 0 offen sc1" % (SWS, SWS + 3))
    a("s_mov_b64 exec, -1")
    sp_("flagC")
    a("s_waitcnt vmcnt(1)")
    a.label(l2)
    a("s_barrier")
    a("s_cmp_lg_u32 s%d, 1" % sWV)
    a("s_cbranch_scc1 K_END")
    a("s_mov_b64 exec, 0xff")
    a("buffer_store_dword v10, v28, s[%d:%d], 0 offen sc1" % (SWS, SWS + 3))
    a("s_mov_b64 exec, -1")
    sp_("flagB")
    sp_.store(100)
```

```python
import math, os, sys, struct
from asmlib import Asm
def fbits(x): return "0x%08x" % struct.unpack("<I", struct.pack("<f", x))[0]
LOG2E = math.log2(math.e)
def vr(b, n=1): return "v%d" % b if n == 1 else "v[%d:%d]" % (b, b + n - 1)
EXP = os.environ.get('EXP', '')
STAMP = int(os.environ.get("STAMP", "0"))
RT = os.environ.get("RT", "")
MAPB = int(os.environ.get("MAPB", "0"))
WS_H = 0; WS_XNT = 8 << 20; WS_KREV = 12 << 20; WS_KSC = 16 << 20
WS_HF = 17 << 20
WS_CF = (17 << 20) + (1 << 19)
WS_PF = 18 << 20
WS_FR = WS_PF + 131072
WS_FC = WS_FR + 8192
WS_RC = 19 << 20; WS_CS = (19 << 20) + 65536
WS_YAT = 20 << 20; WS_DBG = 24 << 20; WS_SIZE = 32 << 20
KSTRIDE = 4160
SPIN = 0x8000

def srd(a, d, p, nbytes):
    a("s_mov_b32 s%d, s%d" % (d, p))
    a("s_and_b32 s%d, s%d, 0xffff" % (d + 1, p + 1))
    a("s_mov_b32 s%d, 0x%x" % (d + 2, nbytes))
    a("s_mov_b32 s%d, 0x00020000" % (d + 3))

SX, SWG, SWU, SWS, SWD, SOUT, SDBG = 40, 44, 48, 52, 56, 60, 64
sWV, sR, sF, sWR, sWC, sRT2, sCT = 68, 69, 70, 71, 72, 73, 74
sLD = 75
sT0, sT1, sT2, sT3 = 76, 77, 78, 79
sOX, sOW, sWB, sCNT = 80, 81, 82, 83
sNON = 84
sPM = 86
sCH, sHF, sKW, sSC, sINV = 3, 4, 5, 6, 7
sONES, sCVB, sSTG = 38, 39, 36
STB = 88

class Stamps:
    def __init__(self, a, base=None):
        self.a = a; self.n = base.n if base else 0; self.names = list(base.names) if base else []; self.ffn = False
    def __call__(self, name):
        if not STAMP: return
        if RT == "1" and name not in ("start", "end"): return
        if "su" in EXP and self.n >= 11 and name != "end": return
        if "f2a" in EXP and not (name in ("start", "flag1", "hpoll") or (name[:2] == "s_" and int(name[2:]) < 9)) and self.ffn: return
        if "f2b" in EXP and not (name in ("start", "hpoll2", "end") or (name[:2] == "s_" and int(name[2:]) >= 5)) and self.ffn: return
        if name[:2] == "s_" and "f2" not in EXP: return
        assert self.n < 12, name
        self.a("%s s[100:101]" % ("s_memrealtime" if RT else "s_memtime"))
        self.a("s_waitcnt lgkmcnt(0)")
        self.a("s_mov_b32 s%d, s100" % (STB + self.n))
        self.n += 1; self.names.append(name)
    def store(self, vt):
        if not STAMP: return
        a = self.a
        a("s_lshl_b32 s100, s2, 4"); a("s_add_u32 s100, s100, s%d" % sWV); a("s_lshl_b32 s100, s100, 6")
        a("s_add_u32 s100, s100, %d" % WS_DBG)
        a("s_mov_b64 exec, 1")
        a("v_mov_b32 v%d, s100" % vt)
        for i in range(self.n):
            a("v_mov_b32 v%d, s%d" % (vt + 1, STB + i))
            a("buffer_store_dword v%d, v%d, s[%d:%d], 0 offen offset:%d" % (vt + 1, vt, SWS, SWS + 3, 4 * i))
            a("s_waitcnt vmcnt(0)")
        a("s_mov_b64 exec, -1")

ENV = lambda k, d: int(os.environ.get(k, str(d)))
L_W = 0
L_X = [65536, 98304 + 17408, 81920]
RING = 98304
STG_W = 4352; L_STG = RING
L_CV = RING + 4 * STG_W
CPS = 4160; O_U = 4 * CPS; CV_CH = O_U + 4608
L_SYNC = L_CV + 2 * CV_CH
L_FL = L_SYNC + 512
LDS = L_FL + 256
assert L_X[1] == L_CV and LDS <= 163840
Y_CNT = 0; Y_RDA = 8; Y_RDB = 9; Y_NON = 16; Y_KX = 24; Y_C0 = 28; Y_BL = 32; Y_CX = 36; Y_XR = 40; Y_YA = 44; Y_KEXP = 48; Y_RD = 64; Y_TR = 68; Y_WS = 72; Y_U = 76
NSTA = ENV('NSTA', 5)
WDS = [32768, 49152, 81920, 0, 16384, 65536]
CSM = 1792 * 8
sFW = 36; sHD = 37
FSH = ENV('FSH', 8)

def gen():
    a = Asm()
    lab = [0]
    def L(p): lab[0] += 1; return "%s_%d" % (p, lab[0])
    st_ = Stamps(a)
    def spin_lds(addr, tmp, need, width="u8", slp=1, off=0):
        l1, l2 = L("SP"), L("SD")
        a("s_mov_b32 s%d, %d" % (sCNT, SPIN))
        a.label(l1)
        a("ds_read_%s v%d, v%d offset:%d" % (width, tmp, addr, off))
        a("s_waitcnt lgkmcnt(0)")
        a("v_cmp_gt_u32 vcc, %d, v%d" % (need, tmp))
        a("s_cbranch_vccz %s" % l2)
        if slp: a("s_sleep %d" % slp)
        a("s_sub_u32 s%d, s%d, 1" % (sCNT, sCNT))
        a("s_cmp_lg_u32 s%d, 0" % sCNT)
        a("s_cbranch_scc1 %s" % l1)
        a.label(l2)

    a("s_cmp_ge_u32 s2, 256")
    a("s_cbranch_scc1 K_END")
    st_("start")
    a("s_load_dwordx16 s[16:31], s[0:1], 0")
    a("s_load_dwordx4 s[32:35], s[0:1], 80")
    a("s_load_dwordx8 s[8:15], s[0:1], 96")
    a("v_lshrrev_b32 v1, 6, v0")
    a("v_readfirstlane_b32 s%d, v1" % sWV)
    a("v_and_b32 v1, 63, v0")
    CPF = ENV("CPF", 8)
    if CPF:
        a("s_cmp_ge_u32 s2, %d" % CPF)
        a("s_cbranch_scc1 K_NPF")
        a.begin_opt()
        a("s_getpc_b64 s[4:5]")
        a.label("K_PFB")
        a("v_lshlrev_b32 v2, 7, v0")
        a("v_min_u32 v2, K_END-K_PFB, v2")
        a("global_load_dword v255, v2, s[4:5]")
        a.end_opt()
        a.label("K_NPF")
    a("s_cmp_lt_u32 s2, 32")
    a("s_cbranch_scc1 K_PROD")
    a("s_and_b32 s%d, s2, 7" % sT0)
    a("s_lshr_b32 s%d, s2, 3" % sT1)
    a("s_sub_u32 s%d, s%d, 4" % (sT1, sT1))
    a("s_lshr_b32 s%d, s%d, 1" % (sT2, sT0)); a("s_lshl_b32 s%d, s%d, 2" % (sT2, sT2))
    a("s_and_b32 s%d, s%d, 3" % (sT3, sT1)); a("s_add_u32 s%d, s%d, s%d" % (sR, sT2, sT3))
    a("s_and_b32 s%d, s%d, 1" % (sT2, sT0)); a("s_mul_i32 s%d, s%d, 7" % (sT2, sT2))
    a("s_lshr_b32 s%d, s%d, 2" % (sCT, sT1)); a("s_add_u32 s%d, s%d, s%d" % (sF, sT2, sCT))
    a("s_lshl_b32 s%d, s%d, 2" % (sRT2, sT0)); a("s_add_u32 s%d, s%d, s%d" % (sRT2, sRT2, sT3))
    a("s_cmp_ge_u32 s%d, 4" % sWV)
    a("s_cbranch_scc1 K_HELP")
    sf_ = Stamps(a, st_); sf_.ffn = True; sh_ = Stamps(a, st_); sp_ = Stamps(a, st_)
    NST = 14
    a("s_setprio %d" % ENV("FPRIO", 2))
    a("s_and_b32 s%d, s%d, 1" % (sWR, sWV))
    a("s_lshr_b32 s%d, s%d, 1" % (sWC, sWV))
    a("s_lshl_b32 s%d, s%d, 11" % (sWB, sWV))
    a("s_lshl_b32 s%d, s%d, 12" % (sOX, sWV))
    a("v_lshrrev_b32 v2, 3, v1")
    a("s_lshl_b32 s%d, s%d, 7" % (sT0, sR))
    a("s_lshl_b32 s%d, s%d, 5" % (sT1, sWV))
    a("s_add_u32 s%d, s%d, s%d" % (sT0, sT0, sT1))
    a("v_add_u32 v2, s%d, v2" % sT0)
    a("v_mul_u32_u24 v2, 896, v2")
    a("v_lshrrev_b32 v5, 4, v1")
    a("v_xor_b32 v6, v1, v5")
    a("v_and_b32 v6, 7, v6")
    a("v_xor_b32 v7, 4, v6")
    a("v_lshl_add_u32 v3, v7, 4, v2")
    a("v_add_u32 v3, %d, v3" % (8 * 896))
    a("v_lshl_add_u32 v2, v6, 4, v2")
    a("v_mul_u32_u24 v4, 3584, v5")
    a("v_lshlrev_b32 v6, 2, v5")
    a("v_xor_b32 v6, v1, v6")
    a("v_and_b32 v6, 15, v6")
    a("v_lshl_add_u32 v4, v6, 4, v4")
    a("s_lshl_b32 s%d, s%d, 8" % (sT0, sF))
    a("s_mul_i32 s%d, s%d, %d" % (sT1, sWV, 8 * 3584)); a("s_add_u32 s%d, s%d, s%d" % (sT0, sT0, sT1))
    a("v_add_u32 v4, s%d, v4" % sT0)
    a("s_lshl_b32 s%d, s%d, 2" % (sFW, sWV)); a("s_add_u32 s%d, s%d, %d" % (sFW, sFW, L_FL))
    ROT = ENV("ROT", 0); ROT1 = ENV("ROT1", 0)
    RJ = [3, 4, 5, 6, 7, 38, 39]
    a("s_lshl_b32 s%d, s%d, 1" % (sT0, sT3)); a("s_add_u32 s%d, s%d, s%d" % (sT0, sT0, sCT)); a("s_lshl_b32 s%d, s%d, 7" % (sT0, sT0))
    for i in range(7 if ROT or ROT1 else 0):
        a("s_sub_u32 s%d, s%d, 896" % (sT1, sT0)); a("s_cmp_ge_u32 s%d, 896" % sT0); a("s_cselect_b32 s%d, s%d, s%d" % (RJ[i], sT1, sT0))
        if i < 6: a("s_add_u32 s%d, s%d, 128" % (sT0, RJ[i]))
    a("s_waitcnt lgkmcnt(0)")
    VFL, VFA = 50, 51
    def dma_x(b):
        out = []
        for i in range(4):
            out.append(["s_add_u32 m0, s%d, %d" % (sOX, L_X[b % 3] + i * 1024),
                        ("s_add_u32 s%d, s%d, %d" % (sOW, RJ[b], (i >> 1) * 16 * 896)) if ROT1 else "s_movk_i32 s%d, %d" % (sOW, b * 128 + (i >> 1) * 16 * 896),
                        ("buffer_load_dwordx4 v%d, s[%d:%d], s%d offen lds" % (2 + (i & 1), SX, SX + 3, sOW), ("x", b))])
        return out
    def dma_w(st):
        out = []
        slot = st % 4
        for i in range(2):
            for mat in range(2):
                S = (SWG, SWU)[mat]
                g = []
                if ROT1:
                    g.append("s_mul_i32 s%d, s%d, 1792" % (sOW, RJ[st >> 1])); g.append("s_add_u32 s%d, s%d, %d" % (sOW, sOW, ((st & 1) * 32 + 4 * i) * 3584))
                else: g.append("s_mov_b32 s%d, %d" % (sOW, (st * 32 + 4 * i) * 3584))
                g.append("s_add_u32 m0, s%d, %d" % (sWB, L_W + slot * 16384 + mat * 8192 + i * 1024))
                g.append(("buffer_load_dwordx4 v4, s[%d:%d], s%d offen lds" % (S, S + 3, sOW), ("w", st)))
                out.append(g)
        return out
    def dflag(idx):
        return ["s_add_u32 m0, s%d, %d" % (sFW, 16 * idx), "s_mov_b64 exec, 1",
                ("global_load_lds_dword v%d, s[0:1]" % VFL, "fl"), "s_mov_b64 exec, -1"]
    def emit(g, a=a):
        for x in g:
            if callable(x): x()
            elif isinstance(x, tuple) and x[0].startswith("ds_"): a.ds(x[0], x[1])
            elif isinstance(x, tuple): a.vm(x[0], x[1])
            else: a(x)
    srd(a, SX, 16, 2048 * 896)
    for g in dma_x(0): emit(g)
    srd(a, SWG, 32, 448 * 3584)
    srd(a, SWU, 34, 448 * 3584)
    for g in dma_w(0): emit(g)
    a("s_cmp_lg_u32 s15, 0"); a("s_cselect_b32 s%d, 31, 30" % sT0); a("s_lshl_b32 s%d, s%d, 2" % (sT0, sT0)); a("v_mov_b32 v%d, s%d" % (VFL, sT0))
    a("s_barrier")
    emit(dflag(0))
    Q = []
    for k in range(1, 14):
        if k % 2 == 0: Q += [(max(0, k - 4), g) for g in dma_x(k // 2)]
        w_ = dma_w(k); w_[-1] = w_[-1] + dflag(k)
        Q += [(max(0, k - 3), g) for g in w_]
    NPRE = ENV("NPRE", 12)
    pend = [g for _, g in Q[:NPRE]]; Q = Q[NPRE:]
    a_real = a
    ILN = ENV("ILN", 4)
    class IL:
        def __init__(s_): s_.n = 0
        def __call__(s_, t):
            a_real(t); s_.n += 1
            if s_.n % ILN == 0 and pend: emit(pend.pop(0))
    a = IL()
    a("v_lshlrev_b32 v15, 2, v1")
    a("v_and_b32 v11, 3, v1"); a("v_lshlrev_b32 v%d, 2, v11" % VFA); a("v_add_u32 v11, %d, v11" % (L_SYNC + Y_CNT))
    a("v_add_u32 v%d, %d, v%d" % (VFA, L_FL, VFA))
    a("s_add_u32 s%d, s%d, %d" % (sT0, sWV, L_SYNC + Y_CNT)); a("v_mov_b32 v12, s%d" % sT0)
    a("v_add_u32 v13, %d, v15" % (L_SYNC + 128)); a("v_cmp_eq_u32 vcc, 0, v1"); a("v_cndmask_b32 v12, v13, v12, vcc")
    a("v_mov_b32 v10, %d" % (L_SYNC + Y_RDA))
    a("v_and_b32 v16, 31, v1")
    a("s_lshl_b32 s%d, s%d, 6" % (sT0, sWR))
    a("v_add_u32 v22, s%d, v16" % sT0)
    a("v_lshrrev_b32 v17, 5, v1")
    a("v_bfe_u32 v18, v1, 1, 3")
    a("v_xor_b32 v18, v17, v18")
    a("v_lshlrev_b32 v5, 7, v22")
    a("v_lshl_add_u32 v5, v18, 4, v5")
    a("v_add_u32 v5, 65536, v5")
    a("v_xor_b32 v6, 32, v5"); a("v_xor_b32 v7, 64, v5"); a("v_xor_b32 v8, 96, v5")
    a("v_bfe_u32 v19, v1, 2, 2")
    a("v_lshl_add_u32 v20, v17, 3, v19")
    a("v_lshlrev_b32 v9, 8, v20")
    a("v_bfe_u32 v20, v1, 4, 1"); a("v_lshlrev_b32 v20, 1, v20")
    a("v_bfe_u32 v21, v1, 1, 1"); a("v_add_u32 v20, v20, v21")
    a("s_lshl_b32 s%d, s%d, 3" % (sT0, sWC))
    a("v_add_u32 v20, s%d, v20" % sT0)
    a("v_lshlrev_b32 v21, 2, v19")
    a("v_xor_b32 v20, v20, v21")
    a("v_lshl_add_u32 v9, v20, 4, v9")
    a("v_and_b32 v21, 1, v1")
    a("v_lshl_add_u32 v9, v21, 3, v9")
    a("v_xor_b32 v0, 64, v9")
    srd(a, SWS, 14, WS_SIZE)
    srd(a, SWD, 8, 1792 * 896)
    srd(a, SOUT, 10, 2048 * 896)
    a("s_lshl_b32 s%d, s%d, 11" % (sT0, sR)); a("s_add_u32 s%d, s%d, %d" % (sT0, sT0, WS_RC))
    a("v_lshl_add_u32 v18, v22, 4, s%d" % sT0)
    a("s_lshl_b32 s%d, s%d, 10" % (sT0, sF)); a("s_lshl_b32 s%d, s%d, 9" % (sT1, sWC)); a("s_add_u32 s%d, s%d, s%d" % (sT0, sT0, sT1))
    a("s_add_u32 s%d, s%d, %d" % (sT0, sT0, WS_CS))
    a("v_lshl_add_u32 v19, v16, 3, s%d" % sT0)
    a("v_lshl_add_u32 v19, v17, 2, v19")
    a("s_lshl_b32 s%d, s%d, 1" % (sT0, sR))
    a("s_add_u32 s%d, s%d, s%d" % (sT0, sT0, sWR))
    a("s_lshl_b32 s%d, s%d, 1" % (sT1, sF))
    a("s_add_u32 s%d, s%d, s%d" % (sT1, sT1, sWC))
    a("s_lshl_b32 s%d, s%d, 8" % (sT2, sT0)); a("s_add_u32 s%d, s%d, %d" % (sT2, sT2, WS_FR)); a("v_mov_b32 v15, s%d" % sT2)
    a("s_lshl_b32 s%d, s%d, 8" % (sT2, sT1)); a("s_add_u32 s%d, s%d, %d" % (sT2, sT2, WS_FC)); a("v_writelane_b32 v15, s%d, 1" % sT2)
    a("s_mul_i32 s%d, s%d, 37" % (sT3, sT1)); a("s_lshr_b32 s%d, s%d, 8" % (sT3, sT3)); a("s_add_u32 s%d, s%d, s%d" % (sT3, sT3, sT1))
    a("s_lshl_b32 s%d, s%d, 1" % (sT1, sT1))
    a("s_lshl_b32 s%d, s%d, 5" % (sT2, sT0)); a("s_add_u32 s%d, s%d, s%d" % (sT2, sT2, sT3)); a("s_lshl_b32 s%d, s%d, %d" % (sT2, sT2, FSH))
    a("s_add_u32 s%d, s%d, %d" % (sT2, sT2, WS_HF))
    a("v_mov_b32 v21, s%d" % sT2)
    a("s_mul_i32 s%d, s%d, 56" % (sT0, sT0))
    a("s_add_u32 s%d, s%d, s%d" % (sT0, sT0, sT1))
    a("s_lshl_b32 s%d, s%d, 12" % (sT0, sT0))
    a("v_and_b32 v20, 15, v1")
    a("v_lshlrev_b32 v20, 4, v20")
    a("v_bfe_u32 v22, v1, 4, 1")
    a("v_lshl_add_u32 v20, v22, 10, v20")
    a("v_lshl_add_u32 v20, v17, 8, v20")
    a("v_add_u32 v20, s%d, v20" % sT0)
    a("s_mov_b32 s%d, 0" % sLD)
    CA_, CB_ = 32, 42
    for r in range(33, 50):
        if r not in (34, 36, 38, 42, 46): a("v_mov_b32 v%d, 0" % r)
    a("v_lshrrev_b32 v16, 3, v1")
    a("s_mul_i32 s%d, s%d, %d" % (sT0, sWV, 448 * 896))
    a("v_mul_u32_u24 v16, 896, v16")
    a("s_lshl_b32 s%d, s%d, 7" % (sT1, sCT)); a("s_add_u32 s%d, s%d, s%d" % (sT0, sT0, sT1))
    a("v_add_u32 v16, s%d, v16" % sT0)
    a("v_and_b32 v17, 1, v1")
    a("v_lshl_add_u32 v16, v17, 4, v16")
    a("v_bfe_u32 v17, v1, 1, 2")
    a("v_xor_b32 v17, v17, v22")
    a("v_xor_b32 v22, 2, v17")
    a("v_lshl_add_u32 v52, v17, 5, v16")
    a("v_lshl_add_u32 v53, v22, 5, v16")
    a = a_real
    while pend: emit(pend.pop(0))
    ACC = lambda ff, mat, tt: 128 + 64 * ff + 32 * mat + 16 * tt
    FR = [80, 104]
    RC = [24, 28]
    NW = 6
    J = lambda s: 2 * (s % 7) + s // 7
    WDV = [52, 53]
    def dma_wd(s):
        if "now" in EXP and s >= 6: return []
        if "no12" in EXP and s >= 12: return []
        return [(["s_mul_i32 s%d, s%d, 448" % (sOW, RJ[s % 7]), "s_add_u32 s%d, s%d, %d" % (sOW, sOW, ((s // 7) * 32 + 8 * q) * 896)] if ROT else
                 ["s_mov_b32 s%d, %d" % (sOW, (J(s) * 32 + 8 * q) * 896)]) + [
                 "s_add_u32 m0, s%d, %d" % (sOX, WDS[s % NW] + q * 1024),
                 ("buffer_load_dwordx4 v%d, s[%d:%d], s%d offen lds" % (WDV[q & 1], SWD, SWD + 3, sOW), ("wd", s))] for q in range(4)]
    def rd_frags(st, kk):
        fb = FR[kk]
        slot = st % 4
        xo = L_X[(st >> 1) % 3] - 65536
        xa = 5 + 2 * (st & 1) + kk
        def wr(ff, mat):
            return [("ds_read_b64_tr_b16 %s, v%d offset:%d" % (vr(fb + 8 + 8 * ff + 4 * mat + 2 * half, 2), (9, 0)[ff], L_W + slot * 16384 + mat * 8192 + kk * 4096 + half * 1024), ("fr", st, kk, ff, mat)) for half in range(2)]
        xr = lambda tt: [("ds_read_b128 %s, v%d offset:%d" % (vr(fb + 4 * tt, 4), xa, xo + tt * 4096), ("fx", st, kk, tt))]
        return [xr(0) + wr(0, 0), xr(1), wr(0, 1), wr(1, 0), wr(1, 1)]
    def mfmas(kk, first=False):
        fb = FR[kk]
        return ["v_mfma_f32_32x32x16_bf16 %s, %s, %s, %s" % (vr(ACC(ff, mat, tt), 16), vr(fb + 8 + 8 * ff + 4 * mat, 4), vr(fb + 4 * tt, 4), "0" if first else vr(ACC(ff, mat, tt), 16))
                for ff in range(2) for mat in range(2) for tt in range(2)]
    def inter(st, kk, groups):
        for i, m in enumerate(mfmas(kk, st == 0 and kk == 0)):
            ff, mat, tt = i >> 2, (i >> 1) & 1, i & 1
            if i == 1: a.wait_ds(("fx", st, kk, 1))
            a.wait_ds(("fr", st, kk, ff, mat))
            a(m)
            for sl, g in groups:
                if sl == i: emit(g)
    def arrive(v, off=0):
        a("v_mov_b32 v13, %d" % v)
        a.ds("ds_write_b8 v12, v13 offset:%d" % off, "sig")
    deferred = []
    def check(v, kind):
        a("s_getpc_b64 s[20:21]")
        a("v_cmp_gt_u32 vcc, %d, v%d" % (v, 14 if kind == "F" else 16))
        a("s_cbranch_vccnz K_RT_%s" % kind)
    def retries():
        a("s_mov_b32 s18, %d" % (SPIN * 4))
        a("s_branch K_RTE")
        for kind in ("R", "F"):
            r = 14 if kind == "F" else 16
            a.label("K_RT_%s" % kind)
            a("ds_read_b32 v14, v%d" % VFA if kind == "F" else "ds_read_u8 v16, v11 offset:%d" % Y_RD)
            a("s_sub_i32 s18, s18, 1"); a("s_max_i32 s18, s18, 0")
            a("s_cmp_eq_u32 s18, 0"); a("s_cselect_b32 s19, 255, 0")
            a("s_waitcnt lgkmcnt(0)")
            a("v_or_b32 v%d, s19, v%d" % (r, r))
            a("s_setpc_b64 s[20:21]")
        a.label("K_RTE")
    def const_loads():
        for tt in range(2):
            a("buffer_load_dwordx4 %s, v18, s[%d:%d], 0 offen offset:%d" % (vr(RC[tt], 4), SWS, SWS + 3, tt * 512))
        a("s_movk_i32 s%d, %d" % (sT0, CSM))
        for ff in range(2):
            a("buffer_load_dword v%d, v19, s[%d:%d], 0 offen offset:%d" % (CA_ + 4 * ff, SWS, SWS + 3, ff * 256))
            a("buffer_load_dword v%d, v19, s[%d:%d], s%d offen offset:%d" % (CA_ + 4 * ff + 2, SWS, SWS + 3, sT0, ff * 256))
        a("s_mov_b32 s%d, 1" % sLD)
    def get_non():
        a.wait_ds("non")
        a("v_readfirstlane_b32 s%d, v22" % sNON); a("v_readfirstlane_b32 s%d, v23" % (sNON + 1))
    def pollA():
        a.vm("buffer_load_dword v17, v15, s[%d:%d], 0 offen sc1" % (SWS, SWS + 3), "pf")
    def try_const():
        l = L("CL"); lo = L("CLO")
        a.wait_vm("pf")
        a("v_cmp_ne_u32 vcc, s%d, v17" % sNON)
        a("s_cbranch_vccz %s" % lo)
        a.label(l)
        a.mark("cst")
        def slow():
            a.label(lo)
            a("s_cmp_eq_u32 s%d, 0" % (sNON + 1))
            a("s_cbranch_scc1 %s" % l)
            a("s_cmp_lg_u32 s%d, 0" % sLD)
            a("s_cbranch_scc1 %s" % l)
            const_loads()
            a("s_branch %s" % l)
        deferred.append(slow)
    PA = ENV("PA", 5)
    RS = [int(c) for c in os.environ.get("RS", "01234")]
    TP = [int(c) for c in os.environ.get("TP", "9,11").split(",")]
    EARLY = ENV("EARLY", 1)
    retries()
    a("v_mov_b32 v14, 0")
    check(1, "F")
    a.dsq = []
    sf_("st0")
    poll = ["v_add_u32 v%d, 16, v%d" % (VFA, VFA), ("ds_read_b32 v14, v%d" % VFA, "pA")]
    for g in rd_frags(0, 0): emit(g)
    DMX = ENV("DMX", 6)
    if EARLY: Q += [(11, g) for g in dma_wd(0)] + [(12, g) for g in dma_wd(1) + dma_wd(2)] + [(13, g) for g in dma_wd(3)]
    SD = []
    for st in range(NST):
        D = []
        while Q and Q[0][0] <= st and len(D) < (DMX if st else 8): D.append(Q.pop(0)[1])
        SD.append(D)
    assert not Q
    if ENV("VERB", 0): print("DMA per stage", [len(d) for d in SD])
    stageD = lambda st: SD[st]
    for st in range(NST):
        if st in (7,) and not NSTA: sf_("st%d" % st)
        D = stageD(st)
        DS = [(0, 4), (0, 6), (1, 1), (1, 3), (1, 5), (1, 7)] if len(D) <= 6 else [(0, 3), (0, 5), (0, 7), (1, 1), (1, 2), (1, 4), (1, 5), (1, 7)]
        if st == 0: DS = [(0, 0), (0, 2), (0, 4), (0, 6), (1, 1), (1, 3), (1, 5), (1, 7)]
        G = []
        G += [(RS[i], g) for i, g in enumerate(rd_frags(st, 1))]
        if st + 1 in TP: G.append((5, [("ds_read_b64 v[22:23], v10 offset:%d" % (Y_NON - Y_RDA), "non")]))
        if st - 2 in TP: G.append((0, [try_const]))
        if st in TP: G.append((1, [get_non, pollA]))
        if D and st: G.append((3, [lambda: a.wait_ds("pR"), lambda st=st: check(st, "R")]))
        G += [(DS[i][1], g) for i, g in enumerate(D) if DS[i][0] == 0]
        if st + 1 < NST: G.append((PA, poll))
        inter(st, 0, G)
        G = []
        if st + 1 < NST:
            G.append((0, [lambda: a.wait_ds("pA"), lambda: check(1, "F")]))
            G += [(RS[i], g) for i, g in enumerate(rd_frags(st + 1, 0))]
        G.append((0, [lambda st=st: arrive(st + 1, Y_RD)]))
        G += [(DS[i][1], g) for i, g in enumerate(D) if DS[i][0] == 1]
        if st + 1 == NST or stageD(st + 1): G.append((7, [("ds_read_u8 v16, v11 offset:%d" % Y_RD, "pR")]))
        inter(st, 1, G)
    sf_("loopend")
    l = L("CL"); lo = L("CLO"); l1 = L("CLP"); l2 = L("CLP")
    a("s_cmp_eq_u32 s%d, 0" % sLD)
    a("s_cbranch_scc1 %s" % lo)
    a.wait_vm("cst")
    a.label(l)
    def slow(l=l, lo=lo):
        a.label(lo)
        a("s_mov_b32 s%d, %d" % (sCNT, SPIN))
        a.label(l1)
        a("ds_read_b64 v[22:23], v10 offset:%d" % (Y_NON - Y_RDA))
        a("buffer_load_dword v17, v15, s[%d:%d], 0 offen sc1" % (SWS, SWS + 3))
        a("s_waitcnt vmcnt(0) lgkmcnt(0)")
        a("v_readfirstlane_b32 s%d, v22" % sNON); a("v_readfirstlane_b32 s%d, v23" % (sNON + 1))
        a("v_cmp_ne_u32 vcc, s%d, v17" % sNON)
        a("s_cmp_eq_u32 s%d, 0" % (sNON + 1))
        a("s_cselect_b64 s[%d:%d], -1, vcc" % (sT0, sT0 + 1))
        a("s_cmp_eq_u64 s[%d:%d], 0" % (sT0, sT0 + 1))
        a("s_cbranch_scc1 %s" % l2)
        a("s_sleep 2")
        a("s_sub_u32 s%d, s%d, 1" % (sCNT, sCNT)); a("s_cmp_lg_u32 s%d, 0" % sCNT)
        a("s_cbranch_scc1 %s" % l1)
        a.label(l2)
        const_loads()
        a("s_waitcnt vmcnt(0)")
        a("s_branch %s" % l)
    deferred.append(slow)
    for tt in range(2): a("v_mov_b32 v%d, v%d" % (CB_ + 4 * tt, RC[tt]))
    corr = ["v_mfma_f32_32x32x16_bf16 %s, %s, %s, %s" % (vr(ACC(ff, mat, tt), 16), vr(CA_ + 4 * ff + 2 * mat, 4), vr(CB_ + 4 * tt, 4), vr(ACC(ff, mat, tt), 16))
            for ff in range(2) for tt in range(2) for mat in range(2)]
    a(corr[0]); a(corr[1])
    a("v_mov_b32 v2, v52"); a("v_mov_b32 v3, v53"); WDV = [2, 3]
    a("v_and_b32 v5, 15, v1"); a("v_lshrrev_b32 v18, 4, v1")
    a("v_lshrrev_b32 v8, 2, v5")
    a("v_lshl_add_u32 v8, v18, 3, v8")
    a("v_lshlrev_b32 v8, 7, v8")
    a("v_and_b32 v9, 3, v5")
    a("v_lshl_add_u32 v8, v9, 3, v8")
    a("v_add_u32 v13, s%d, v8" % sOX)
    a("v_bfe_u32 v9, v5, 3, 1")
    a("v_and_b32 v14, 1, v18")
    a("v_lshl_add_u32 v9, v14, 1, v9")
    a(corr[2])
    TRB = [[4, 5, 6, 7], [0, 10, 17, 19]]
    for ct in range(4):
        a("v_xor_b32 v14, %d, v9" % ct)
        a("v_lshl_add_u32 v%d, v14, 5, v13" % TRB[0][ct])
        a("v_add_u32 v%d, 65536, v%d" % (TRB[1][ct], TRB[0][ct]))
    a(corr[3])
    a("s_mul_i32 s%d, s%d, 14" % (sT1, sWV))
    a("s_lshl_b32 s%d, s%d, 2" % (sT0, sRT2)); a("s_add_u32 s%d, s%d, s%d" % (sT0, sT0, sWV)); a("s_lshl_b32 s%d, s%d, %d" % (sT0, sT0, FSH + 3))
    a("s_add_u32 s%d, s%d, %d" % (sT0, sT0, WS_HF))
    a("v_lshrrev_b32 v8, 1, v1"); a("v_lshlrev_b32 v8, %d, v8" % FSH); a("v_and_b32 v14, 1, v1"); a("v_lshl_add_u32 v8, v14, 2, v8")
    a("v_add_u32 v8, s%d, v8" % sT0)
    a("s_mul_i32 s%d, s%d, 56" % (sT0, sRT2))
    a("s_add_u32 s%d, s%d, s%d" % (sT0, sT0, sT1))
    a("s_lshl_b32 s%d, s%d, 12" % (sT0, sT0))
    a("v_lshl_add_u32 v9, v1, 4, s%d" % sT0)
    a("s_mov_b32 s%d, 0" % sHD)
    a.wait_ds("pR")
    check(14, "R")
    a.dsq = []
    sf_("stats")
    NV = ENV("NV", 6); NG = ENV("NG", 0)
    WBK = [80, 96, 32, 48, 160, 128, 176, 144]
    WB = {s: WBK[s] for s in range(NV)}
    def trw(s):
        if s >= 14 - NSTA:
            if s == 14 - NSTA:
                a("s_add_u32 s%d, s%d, %d" % (sT0, sWV, L_SYNC)); a("v_mov_b32 v15, s%d" % sT0)
                spin_lds(15, 14, 1, slp=1, off=Y_WS); a.dsq = []
                sf_("wst")
            if s == 12:
                a("s_mul_i32 s%d, s%d, %d" % (sT0, sWC, CV_CH - 16384)); a("s_add_u32 s%d, s%d, s%d" % (sT0, sT0, sOX)); a("s_add_u32 s%d, s%d, %d" % (sT0, sT0, L_CV))
                for ct in range(4): a("v_add_u32 v%d, s%d, v%d" % (TRB[0][ct], sT0, TRB[0][ct]))
        else: a.wait_vm(("wd", s))
        hi = WDS[s % NW] >= 65536; of = WDS[s % NW] - 65536 * hi
        if NSTA and s >= 12: hi = 0; of = (s - 12) * 4096
        for ct in range(4):
            for hf in range(2):
                a.ds("ds_read_b64_tr_b16 %s, v%d offset:%d" % (vr(WB[s] + 4 * ct + 2 * hf, 2), TRB[hi][ct], of + hf * 512), ("tw", s))
    def hpoll(r=14, tag="hp"):
        a("s_mov_b64 exec, 0x3fff")
        a.vm("buffer_load_dword v%d, v8, s[%d:%d], 0 offen sc1" % (r, SWS, SWS + 3), tag)
        a("s_mov_b64 exec, -1")
    def flag(ff, trk=True):
        if trk: a.wait_vm(("hst", ff))
        a("s_mov_b64 exec, 1")
        t = "buffer_store_dword v22, v21, s[%d:%d], 0 offen offset:%d sc1" % (SWS, SWS + 3, ff * 4)
        if trk: a.vm(t, "hfl")
        else: a(t)
        a("s_mov_b64 exec, -1")
    GD = ENV("GD", 11); GP = 9
    ev = []
    def at(t, item): ev.append((t, len(ev), item))
    BT = 8 * GP
    for i in range(4, 8): at((i - 4) * 6 + 2, corr[i])
    def sched_dma(t, s, dt=5):
        for q, g in enumerate(dma_wd(s)): at(t + q * dt, lambda g=g: emit(g))
    if EARLY:
        sched_dma(0.1, 4); sched_dma(24.1, 5)
        TW = [float(x) for x in os.environ.get("TW", "0.7,1.4,2.1,2.8,3.5,4.2,5.0,5.7").split(",")]
    else:
        for s in range(6): sched_dma(s * BT + 0.1, s)
        TW = [float(x) for x in os.environ.get("TW", "3,4,5,6,7,8").split(",")]
    NGT = ENV("NGT", 0)
    for s in range(max(NG, NGT)):
        assert TW[s] * BT > [0, 0, 30, 30, 15 * GP + 4 * GD, 15 * GP + 8 * GD, 31 * GP + 4 * GD, 31 * GP + 8 * GD][s]
        at(TW[s] * BT, lambda s=s: trw(s))
        if s < NG:
            at(TW[s] * BT + 20, lambda s=s: a.wait_ds(("tw", s)))
            sched_dma(TW[s] * BT + 20.1, s + NW)
    at(float(os.environ.get("TF0", "7")) * BT - 0.5, lambda: flag(0))
    n = 0
    for ff in range(2):
        for tt in range(2):
            r0 = RC[tt]
            for qp in range(2):
                blk = n // 8
                HP = 112 + 4 * (blk & 3)
                for q2 in range(2):
                    q = 2 * qp + q2
                    for e in range(4):
                        g = ACC(ff, 0, tt) + 4 * q + e; u = ACC(ff, 1, tt) + 4 * q + e; T = 64 + (n & 15)
                        ops = [(0, "v_mul_f32 v%d, v%d, v%d" % (T, g, g)),
                        (1, "v_fma_f32 v%d, v%d, v%d, v%d" % (T, T, r0 + 2, r0 + 1)),
                        (2, "v_mul_f32 v%d, v%d, v%d" % (T, T, g)),
                        (3, "v_exp_f32 v%d, v%d" % (T, T)),
                        (4, "v_mul_f32 v%d, v%d, v%d" % (g, g, u)),
                        (5, "v_fma_f32 v%d, v%d, v%d, v%d" % (T, T, r0 + 3, r0 + 3)),
                        (6, "v_rcp_f32 v%d, v%d" % (T, T)),
                        (7, "v_mul_f32 v%d, v%d, v%d" % (g, g, T))]
                        if e & 1: ops.append((8, "v_cvt_pk_bf16_f32 v%d, v%d, v%d" % (HP + 2 * q2 + e // 2, g - 1, g)))
                        for k, o in ops: at(n * GP + k * GD, o)
                        n += 1
                t = (n - 1) * GP + 8 * GD
                at(t + 4, "v_permlane32_swap_b32 v%d, v%d" % (HP, HP + 2))
                at(t + 5, "v_permlane32_swap_b32 v%d, v%d" % (HP + 1, HP + 3))
                def st_h(HP=HP, ff=ff, tt=tt, qp=qp):
                    a("s_movk_i32 s%d, %d" % (sT0, ff * 4096))
                    a.vm("buffer_store_dwordx4 %s, v20, s[%d:%d], s%d offen offset:%d sc1" % (vr(HP, 4), SWS, SWS + 3, sT0, tt * 2048 + qp * 512), ("hst", ff))
                at(t + 8, st_h)
    for t, _, it in sorted(ev, key=lambda x: (x[0], x[1])):
        if callable(it): it()
        else: a(it)
    sf_("gelu")
    A2 = lambda ct, tt: 192 + 16 * ct + 4 * tt
    free = [64, 112] + WBK[NV:]
    HB = {}
    def ld_h(s, trk=True):
        if ENV("VERB", 0): print("ld_h", s, free)
        if s not in HB: HB[s] = free.pop(0)
        if ROT: a("s_lshl_b32 s%d, s%d, 6" % (sOW, RJ[s % 7])); a("s_add_u32 s%d, s%d, %d" % (sOW, sOW, WS_H + (s // 7) * 4096))
        else: a("s_mov_b32 s%d, %d" % (sOW, WS_H + J(s) * 4096))
        if "hsame" in EXP: a("s_mov_b32 s%d, 0" % sOW)
        for tt in range(4):
            t = "buffer_load_dwordx4 %s, v9, s[%d:%d], s%d offen offset:%d" % (vr(HB[s] + 4 * tt, 4), SWS, SWS + 3, sOW, tt * 1024)
            if trk: a.vm(t, ("h", s, tt))
            else: a(t)
    def spin_h(mask, lj, r=14):
        lo = L("HS"); l1 = L("HS")
        def slow():
            a.label(lo)
            a("s_mov_b32 s%d, %d" % (sT3, SPIN))
            a.label(l1)
            a("s_mov_b64 exec, 0x3fff")
            a("buffer_load_dword v%d, v8, s[%d:%d], 0 offen sc1" % (r, SWS, SWS + 3))
            a("s_mov_b64 exec, -1")
            a("s_waitcnt vmcnt(0)")
            a("v_cmp_ne_u32 vcc, s%d, v%d" % (sNON, r))
            a("s_and_b32 s%d, vcc_lo, 0x%x" % (sT0, mask))
            a("s_cbranch_scc0 %s" % lj)
            a("s_sleep %d" % ENV("HSL", 3))
            a("s_sub_u32 s%d, s%d, 1" % (sT3, sT3)); a("s_cmp_lg_u32 s%d, 0" % sT3)
            a("s_cbranch_scc1 %s" % l1)
            a("s_branch %s" % lj)
        deferred.append(slow)
        return lo
    hpoll()
    for s in range(max(NG, NGT), NV): trw(s)
    a("v_and_b32 v16, 15, v1"); a("v_lshrrev_b32 v13, 4, v1")
    a("s_lshl_b32 s%d, s%d, 6" % (sT0, sRT2)); a("s_lshl_b32 s%d, s%d, 4" % (sT1, sWV)); a("s_add_u32 s%d, s%d, s%d" % (sT0, sT0, sT1))
    a("v_add_u32 v18, s%d, v16" % sT0)
    a("v_mul_u32_u24 v18, 896, v18")
    a("v_lshl_add_u32 v18, v13, 4, v18")
    a("s_lshl_b32 s%d, s%d, 7" % (sT0, sCT))
    a("v_add_u32 v18, s%d, v18" % sT0)
    a("s_waitcnt lgkmcnt(0)"); a.dsq = []
    if NSTA: arrive(1, Y_TR)
    ND = 14 - NSTA
    wdq = [s + NW for s in range(NG, NV) if s + NW < ND]
    flag(1)
    sf_("flag1")
    PREF = ENV("PREF", 3 if NSTA else 6)
    for s in wdq[:PREF]:
        for g in dma_wd(s): emit(g)
    wdq = wdq[PREF:]
    lj = L("HJ")
    a.wait_vm("hp")
    a("v_cmp_ne_u32 vcc, s%d, v14" % sNON)
    a("s_and_b32 s%d, vcc_lo, 0x1555" % sT0)
    lo = spin_h(0x1555, lj)
    a("s_cbranch_scc1 %s" % lo)
    a.label(lj)
    sf_("hpoll")
    NHM = ENV("NHM", 4)
    nh = 0
    while free and nh < NHM: ld_h(nh); nh += 1
    HW2 = ENV("HW2", 5)
    PR = [26, 28, 30]
    ok2 = False
    nw = NV; nd = NV + NW
    for s in range(14):
        a.wait_ds(("tw", s))
        for tt in range(4):
            a.wait_vm(("h", s, tt))
            for ct in range(4):
                a("v_mfma_f32_16x16x32_bf16 %s, %s, %s, %s" % (vr(A2(ct, tt), 4), vr(WB[s] + 4 * ct, 4), vr(HB[s] + 4 * tt, 4), "0" if s == 0 else vr(A2(ct, tt), 4)))
        sf_("s_%d" % s)
        free.append(HB[s]); free.append(WB[s])
        if max(2, HW2 + 1 - ENV("NPOLL", 1)) <= s <= HW2:
            r = PR[(s - 2) % 3]
            a.wait_vm(("hq", s - 2))
            a("v_cmp_ne_u32 vcc, s%d, v%d" % (sNON, r))
            a("s_and_b32 s%d, vcc_lo, 0x3fff" % sT0)
            a("s_cselect_b32 s%d, s%d, 1" % (sHD, sHD))
        if HW2 - 1 - ENV("NPOLL", 1) <= s <= HW2 - 2: hpoll(PR[s % 3], ("hq", s))
        if s == HW2:
            lj = L("HJ")
            lo = spin_h(0x3fff, lj)
            a("s_cmp_eq_u32 s%d, 0" % sHD)
            a("s_cbranch_scc1 %s" % lo)
            a.label(lj)
            sf_("hpoll2")
            ok2 = True
        need_w = lambda: nw < 14 and (nw <= s + 2 or nw + NW < ND)
        while nh < 14 and free and nh - (s + 1) < NHM and (nh < 7 or ok2) and (len(free) > 1 or not need_w()):
            ld_h(nh); nh += 1
        if wdq and s >= ENV("WQ0", 0):
            for g in dma_wd(wdq.pop(0)): emit(g)
        if nd < ND and nd - NW < nw:
            a.wait_ds(("tw", nd - NW))
            for g in dma_wd(nd): emit(g)
            nd += 1
        if need_w() or (not NSTA and nw < 14 and len(free) > ENV("WRES", 3)):
            WB[nw] = free.pop(0); trw(nw); nw += 1
        assert nw > s + 1 or nw == 14
        if s == 10:
            a.vm("buffer_load_dwordx4 v[24:27], v18, s[%d:%d], 0 offen" % (SX, SX + 3), "x")
            a.vm("buffer_load_dwordx4 v[28:31], v18, s[%d:%d], 0 offen offset:64" % (SX, SX + 3), "x")
        if s == 12:
            a("v_lshrrev_b32 v17, 4, v1")
            a("v_xor_b32 v13, v17, v16")
            a("v_lshlrev_b32 v19, 8, v16"); a("v_lshl_add_u32 v19, v13, 4, v19")
            a("v_add_u32 v19, s%d, v19" % sOX)
            a("v_xor_b32 v20, 64, v19"); a("v_xor_b32 v21, 128, v19"); a("v_xor_b32 v22, 192, v19")
    sf_("f2end")
    for tt in range(4):
        for ct in range(4):
            a("ds_write_b128 v%d, %s offset:%d" % (19 + ct, vr(A2(ct, tt), 4), tt * 16384))
    a("v_lshlrev_b32 v14, 1, v17"); a("v_xor_b32 v14, v14, v16")
    a("v_lshlrev_b32 v4, 8, v16"); a("v_lshl_add_u32 v4, v14, 4, v4")
    a("s_lshl_b32 s%d, s%d, 14" % (sT0, sWV))
    a("v_add_u32 v4, s%d, v4" % sT0)
    a("v_xor_b32 v5, 16, v4"); a("v_xor_b32 v6, 128, v4"); a("v_xor_b32 v7, 144, v4")
    a("v_lshrrev_b32 v14, 1, v17")
    a("v_mul_u32_u24 v14, %d, v14" % STG_W)
    a("v_and_b32 v15, 1, v17"); a("v_lshlrev_b32 v15, 3, v15"); a("v_lshrrev_b32 v13, 2, v16"); a("v_add_u32 v15, v15, v13")
    a("v_lshl_add_u32 v14, v15, 7, v14")
    a("v_and_b32 v15, 1, v16"); a("v_lshl_add_u32 v14, v15, 3, v14")
    a("v_bfe_u32 v15, v16, 1, 1"); a("v_lshl_add_u32 v14, v15, 6, v14")
    a("s_lshl_b32 s%d, s%d, 4" % (sT2, sWV)); a("s_add_u32 s%d, s%d, %d" % (sT2, sT2, L_STG))
    a("v_add_u32 v14, s%d, v14" % sT2)
    a("s_waitcnt lgkmcnt(0)")
    arrive(17)
    def ya_part():
        spin_lds(11, 15, 1, slp=1, off=Y_YA)
        for hc in range(2):
            for hf in range(2):
                a("ds_read_b64_tr_b16 %s, v14 offset:%d" % (vr(96 + 4 * hc + 2 * hf, 2), hc * 2 * STG_W + hf * 512))
        a("s_waitcnt lgkmcnt(0)")
        for w in range(8):
            yw = 96 + w; o = 104 + 2 * w
            a("v_lshlrev_b32 v120, 16, v%d" % yw); a("v_and_b32 v121, 0xffff0000, v%d" % yw)
            a("v_add_f32 v%d, v%d, v120" % (o, o)); a("v_add_f32 v%d, v%d, v121" % (o + 1, o + 1))
            a("v_cvt_pk_bf16_f32 v%d, v%d, v%d" % (o, o, o + 1))
            a("v_and_b32 v%d, 0xffff0000, v%d" % (o + 1, o)); a("v_lshlrev_b32 v%d, 16, v%d" % (o, o))
    def red_part():
        spin_lds(11, 15, 17, slp=0)
        for s in range(4):
            for c in range(4):
                a("ds_read_b128 %s, v%d offset:%d" % (vr(128 + 16 * s + 4 * c, 4), 4 + c, s * 4096))
        for hc in range(2):
            a("s_waitcnt lgkmcnt(%d)" % (2 - 2 * hc))
            for e in range(8):
                b = 128 + 8 * hc + e
                a("v_add_f32 v%d, v%d, v%d" % (b, b, b + 16)); a("v_add_f32 v%d, v%d, v%d" % (b + 32, b + 32, b + 48))
                a("v_add_f32 v%d, v%d, v%d" % (b, b, b + 32))
            for w in range(4):
                b = 128 + 8 * hc + 2 * w
                a("v_cvt_pk_bf16_f32 v%d, v%d, v%d" % (b, b, b + 1))
                a("v_and_b32 v%d, 0xffff0000, v%d" % (b + 1, b)); a("v_lshlrev_b32 v%d, 16, v%d" % (b, b))
    a("ds_read_u8 v15, v11 offset:%d" % Y_YA)
    a.wait_vm("x")
    for w in range(8):
        xw = 24 + w; o = 104 + 2 * w
        a("v_lshlrev_b32 v%d, 16, v%d" % (o, xw)); a("v_and_b32 v%d, 0xffff0000, v%d" % (o + 1, xw))
    e1, e2 = L("EP"), L("EP")
    a("s_waitcnt lgkmcnt(0)")
    a("v_cmp_gt_u32 vcc, 1, v15")
    a("s_cbranch_vccnz %s" % e1)
    a.begin_opt()
    ya_part(); red_part()
    a("s_branch %s" % e2)
    a.end_opt()
    a.label(e1)
    a.begin_opt()
    red_part(); ya_part()
    a.end_opt()
    a.label(e2)
    sf_("ya")
    for hc in range(2):
        for w in range(4):
            b = 128 + 8 * hc + 2 * w; o = 104 + 8 * hc + 2 * w
            a("v_add_f32 v%d, v%d, v%d" % (b, b, o)); a("v_add_f32 v%d, v%d, v%d" % (b + 1, b + 1, o + 1))
            a("v_cvt_pk_bf16_f32 v%d, v%d, v%d" % (192 + 4 * hc + w, b, b + 1))
        a("buffer_store_dwordx4 %s, v18, s[%d:%d], 0 offen offset:%d" % (vr(192 + 4 * hc, 4), SOUT, SOUT + 3, hc * 64))
    sf_("end")
    sf_.store(150)
    a("s_endpgm")
    for f in deferred: f()

    import gen8h
    gen8h.helper(a, sh_, L, spin_lds)
    gen8h.producer(a, sp_, L, spin_lds)
    a.label("K_END")
    a("s_endpgm")
    if STAMP: print("ffn", sf_.names, "\nhelp", sh_.names, "\nprod", sp_.names)
    return a.finalize()

def wrap(kernels):
    out = []
    for name, grid, block, lds, body, nv in kernels:
        if len(kernels) > 1: out.append("; @launch kernel=%s grid=(%d,1,1) block=(%d,1,1) lds=%d" % (name, grid, block, lds))
        else: out.append("; @launch grid=(%d,1,1) block=(%d,1,1) lds=%d" % (grid, block, lds))
    out.append('.amdgcn_target "amdgcn-amd-amdhsa--gfx950"')
    out.append(".text")
    for name, grid, block, lds, body, nv in kernels:
        out += [".globl %s" % name, ".p2align 8", ".type %s,@function" % name, "%s:" % name, body]
    out.append('.section .rodata,"a"')
    for name, grid, block, lds, body, nv in kernels:
        out += [".p2align 6", ".amdhsa_kernel %s" % name,
                "  .amdhsa_next_free_vgpr %d" % nv, "  .amdhsa_next_free_sgpr 102", "  .amdhsa_accum_offset %d" % ((nv + 3) // 4 * 4),
                "  .amdhsa_group_segment_fixed_size 0", "  .amdhsa_kernarg_size 128", "  .amdhsa_user_sgpr_count 2",
                "  .amdhsa_user_sgpr_kernarg_segment_ptr 1", "  .amdhsa_system_sgpr_workgroup_id_x 1", ".end_amdhsa_kernel"]
    return "\n".join(out) + "\n"

if __name__ == "__main__":
    sys.modules["gen8"] = sys.modules["__main__"]
    NAME = "parallel_sum__ssm_conv_s4__glu_gated_geglu__prompt_kernel"
    ks = [(NAME, 256, 512, LDS, gen(), 256)]
    open(sys.argv[1] if len(sys.argv) > 1 else "k.s", "w").write(wrap(ks))
```

```python
import math, os
from gen8 import *

XST = ENV("XST", 4096); YST = ENV("YST", 4096)
def get_nonce(a, L, va, vd, pre=False):
    l1, l2, l3 = L("GN"), L("GN"), L("GN")
    a("s_mov_b32 s%d, %d" % (sCNT, SPIN))
    if pre: a("s_branch %s" % l3)
    a.label(l1)
    a("buffer_load_dwordx2 v[%d:%d], v%d, s[%d:%d], 0 offen sc1" % (vd, vd + 1, va, SDBG, SDBG + 3))
    a.label(l3)
    a("s_waitcnt vmcnt(0)")
    a("v_readfirstlane_b32 s%d, v%d" % (sNON, vd)); a("v_readfirstlane_b32 s%d, v%d" % (sNON + 1, vd + 1))
    a("s_cmp_lg_u32 s%d, 0" % (sNON + 1))
    a("s_cbranch_scc1 %s" % l2)
    a("s_sleep 8")
    a("s_sub_u32 s%d, s%d, 1" % (sCNT, sCNT)); a("s_cmp_lg_u32 s%d, 0" % sCNT)
    a("s_cbranch_scc1 %s" % l1)
    a.label(l2)

def helper(a, sk_, L, spin_lds):
    a.label("K_HELP")
    a.vmq = []
    a("s_setprio 3")
    a("s_load_dwordx2 s[60:61], s[0:1], 64")
    a("s_sub_u32 s%d, s%d, 4" % (sKW, sWV))
    a("s_cmp_lg_u32 s%d, 7" % sWV)
    a("s_cbranch_scc1 K_NZ")
    a.begin_opt()
    a("v_lshlrev_b32 v2, 2, v1"); a("v_add_u32 v2, %d, v2" % L_SYNC); a("v_mov_b32 v3, 0")
    a("ds_write_b32 v2, v3")
    a("v_and_b32 v2, 3, v1"); a("v_mul_u32_u24 v2, %d, v2" % FLS); a("v_add_u32 v2, %d, v2" % (L_FL + 64)); a("ds_write_b32 v2, v3")
    a.end_opt()
    a.label("K_NZ")
    a("s_and_b32 s%d, s%d, 1" % (sHF, sKW))
    a("s_lshr_b32 s%d, s%d, 1" % (sT0, sKW))
    a("s_sub_u32 s%d, s2, 32" % sCH)
    a("s_lshl_b32 s%d, s%d, 1" % (sCH, sCH))
    a("s_add_u32 s%d, s%d, s%d" % (sCH, sCH, sT0))
    a("s_mul_i32 s%d, s%d, %d" % (sCVB, sT0, CV_CH))
    a("s_add_u32 s%d, s%d, %d" % (sCVB, sCVB, L_CV))
    a("s_lshl_b32 s%d, s%d, 8" % (sT0, sCH))
    a("s_lshl_b32 s%d, s%d, 7" % (sT1, sHF))
    a("s_add_u32 s%d, s%d, s%d" % (sT0, sT0, sT1))
    a("v_add_u32 v2, s%d, v1" % sT0)
    a("v_lshlrev_b32 v2, 1, v2")
    a("s_lshl_b32 s%d, s%d, 1" % (sT1, sCH))
    a("v_mov_b32 v3, s%d" % sT1)
    a("s_waitcnt lgkmcnt(0)")
    P = [[20, 21, 22, 23, 24, 25], [120, 121, 122, 123, 124, 125]]
    a.vm("global_load_ushort v26, v3, s[30:31]", "param")
    for it in range(2):
        for i in range(6):
            a.vm("global_load_ushort v%d, v2, s[%d:%d] offset:%d" % (P[it][i], 18 + 2 * i, 19 + 2 * i, it * 128), "param")
    a.vm("global_load_ushort v160, v3, s[60:61]", "param")
    a("s_setprio %d" % int(os.environ.get("KPRIO", "2")))
    a("s_barrier")
    srd(a, SWS, 14, WS_SIZE)
    a("s_mul_i32 s%d, s%d, %d" % (sSTG, sKW, STG_W))
    a("s_add_u32 s%d, s%d, %d" % (sSTG, sSTG, L_STG))
    a("v_and_b32 v7, 15, v1")
    a("v_lshrrev_b32 v6, 4, v1")
    a("v_mul_u32_u24 v5, 272, v7")
    a("v_lshl_add_u32 v8, v6, 4, s%d" % sSTG)
    a("v_add_u32 v5, v5, v8")
    maps = [[0,1,2,3,4,5,6,7, 8,8,9,10,10,10,11,12],
            [0,0,0,1,1,1,2,2, 3,3,3,4,4,4,5,5],
            [6,6,6,6,6,7,7,7, 8,8,8,8,8,9,9,9],
            [10,10,10,10,10,11,11,11, 12,12,12,12,12,13,13,13]]
    XA = [12, 13, 14, 15]
    a("v_lshlrev_b32 v9, 2, v7")
    a("v_and_b32 v9, 31, v9")
    a("v_cmp_gt_u32 vcc, 8, v7")
    for t in range(4):
        lo = sum(maps[t][i] << (4 * i) for i in range(8)); hi = sum(maps[t][8 + i] << (4 * i) for i in range(8))
        a("v_mov_b32 v10, 0x%x" % hi); a("v_mov_b32 v11, 0x%x" % lo)
        a("v_cndmask_b32 v10, v10, v11, vcc")
        a("v_lshrrev_b32 v10, v9, v10")
        a("v_and_b32 v10, 15, v10")
        a("v_mul_u32_u24 v10, 272, v10")
        a("v_add_u32 v%d, v10, v8" % XA[t])
    D = lambda t, yt: 128 + 8 * t + 4 * yt
    for r in range(128, 160): a("v_mov_b32 v%d, 0" % r)
    a("s_add_u32 s%d, s%d, %d" % (sT0, sKW, L_SYNC)); a("v_mov_b32 v161, s%d" % sT0)
    a("s_xor_b32 s%d, s%d, 1" % (sT1, sKW)); a("s_add_u32 s%d, s%d, %d" % (sT1, sT1, L_SYNC)); a("v_mov_b32 v162, s%d" % sT1)
    a("v_mov_b32 v163, 1")
    srd(a, SDBG, 12, 256)
    a("s_and_b32 s%d, s2, 7" % sT0); a("s_lshl_b32 s%d, s%d, 13" % (sT0, sT0)); a("s_add_u32 s%d, s%d, %d" % (sT0, sT0, WS_PF))
    a("v_and_b32 v112, 31, v1"); a("v_lshl_add_u32 v112, v112, 8, s%d" % sT0)
    a("v_mov_b32 v113, 64")
    a("v_mov_b32 v114, %d" % (L_SYNC + Y_RDA))
    a("s_cmp_lg_u32 s%d, 0" % sKW)
    a("s_cselect_b32 s%d, 0, 1" % sPM)
    def setf(off):
        a("s_mov_b64 exec, 1")
        a("ds_write_b8 v161, v163 offset:%d" % off)
        a("s_mov_b64 exec, -1")
    def waitp(off, tmp=164, tmpa=165):
        a("v_add_u32 v%d, %d, v162" % (tmpa, off))
        spin_lds(tmpa, tmp, 1)
    hooks = {}
    kc = [0]
    def k(t):
        a(t); kc[0] += 1
        if kc[0] in hooks: hooks.pop(kc[0])()
    if NSTA:
        srd(a, SWD, 8, 1792 * 896)
        a("v_lshrrev_b32 v16, 3, v1")
        a("s_mul_i32 s%d, s%d, %d" % (sT0, sKW, 448 * 896))
        a("v_mul_u32_u24 v16, 896, v16")
        a("s_lshl_b32 s%d, s%d, 7" % (sT1, sCT)); a("s_add_u32 s%d, s%d, s%d" % (sT0, sT0, sT1))
        a("v_add_u32 v16, s%d, v16" % sT0)
        a("v_bfe_u32 v18, v1, 4, 1"); a("v_xor_b32 v17, v1, v18"); a("v_and_b32 v17, 7, v17")
        a("v_lshl_add_u32 v170, v17, 4, v16")
    def st_ld(n):
        s_ = 14 - NSTA + n // 4; q = n % 4
        a("s_mov_b32 s%d, %d" % (sOW, ((2 * (s_ % 7) + s_ // 7) * 32 + 8 * q) * 896))
        a("buffer_load_dwordx4 %s, v%d, s[%d:%d], s%d offen" % (vr(176 + 4 * n, 4), 170, SWD, SWD + 3, sOW))
    SP0 = ENV("SP0", 500); SPD = ENV("SPD", 20)
    if SP0 >= 0:
        for n in range(4 * NSTA): hooks[SP0 + SPD * n] = lambda n=n: (st_ld(n), nst.append(n))
    nst = []
    a("v_lshlrev_b32 v172, 4, v1")
    a("s_cmp_lg_u32 s15, 0"); a("s_cselect_b32 s%d, 31, 30" % sT0); a("s_lshl_b32 s%d, s%d, 2" % (sT0, sT0)); a("v_mov_b32 v173, s%d" % sT0)
    def u_poll():
        a("s_cmp_lg_u32 s%d, 0" % sPM); a("s_cselect_b32 exec_lo, -1, 0"); a("s_mov_b32 exec_hi, 0")
        a("buffer_load_dword v169, v112, s[%d:%d], 0 offen sc1" % (SWS, SWS + 3))
        a("s_mov_b64 exec, -1")
        del nst[:]
    def u_dma():
        a("s_mul_i32 s%d, s%d, %d" % (sOW, sCH, XST))
        a("s_add_u32 s%d, s%d, %d" % (sOW, sOW, WS_XNT))
        for c in range(2):
            a("s_mov_b32 m0, %d" % (L_CV + c * CV_CH + O_U + 480))
            if c: a("s_add_u32 s%d, s%d, %d" % (sOW, sOW, XST))
            for q in range(4): a("buffer_load_dwordx4 v172, s[%d:%d], s%d offen offset:%d lds" % (SWS, SWS + 3, sOW, q * 1024))
        a("s_mov_b32 m0, %d" % (L_SYNC + Y_U))
        a("s_mov_b64 exec, 1")
        a("global_load_lds_dword v173, s[0:1]")
        a("s_mov_b64 exec, -1")
        a("s_mov_b32 s%d, 0" % sPM)
    def u_try():
        l = L("UT")
        a("s_cmp_eq_u32 s%d, 0" % sPM)
        a("s_cbranch_scc1 %s" % l)
        a.begin_opt()
        a("s_waitcnt vmcnt(%d)" % len(nst))
        a("v_cmp_ne_u32 vcc, s%d, v169" % sNON)
        a("s_cmp_lg_u32 vcc_lo, 0")
        a("s_cbranch_scc1 %s" % l)
        u_dma()
        a("s_mov_b32 m0, s%d" % sSTG)
        a.end_opt()
        a.label(l)
        a("s_nop 0")
    for p_ in os.environ.get("UP", "821").split(","):
        hooks[int(p_)] = u_poll; hooks[int(p_) + ENV("UD", 106)] = u_try
    def nonce_pub():
        ln2 = L("NF")
        a("s_cmp_eq_u32 s%d, 0" % sPM)
        a("s_cbranch_scc1 %s" % ln2)
        a.begin_opt()
        get_nonce(a, L, 113, 116, pre=True)
        a("s_mov_b64 exec, 1")
        a("ds_write_b64 v114, v[116:117] offset:%d" % (Y_NON - Y_RDA))
        a("s_mov_b64 exec, -1")
        a.end_opt()
        a.label(ln2)
    def pf_wd():
        srd(a, SWD, 8, 1792 * 896)
        a("s_lshr_b32 s%d, s2, 3" % sT0); a("s_sub_u32 s%d, s%d, 4" % (sT0, sT0)); a("s_lshl_b32 s%d, s%d, 2" % (sT0, sT0)); a("s_add_u32 s%d, s%d, s%d" % (sT0, sT0, sKW))
        a("s_mul_i32 s%d, s%d, %d" % (sT0, sT0, 112 * 128))
        a("v_lshlrev_b32 v200, 7, v1")
        a("s_add_u32 s%d, s%d, %d" % (sT1, sT0, 48 * 128))
        a("buffer_load_dword v201, v200, s[%d:%d], s%d offen" % (SWD, SWD + 3, sT0))
        a("buffer_load_dword v202, v200, s[%d:%d], s%d offen" % (SWD, SWD + 3, sT1))
    PFW = ENV("PFW", -1)
    a.wait_vm("param")
    if PFW == 0: pf_wd()
    sk_("param")
    a("s_mov_b32 exec_lo, s%d" % sPM); a("s_mov_b32 exec_hi, 0")
    a("buffer_load_dwordx2 v[116:117], v113, s[%d:%d], 0 offen sc1" % (SDBG, SDBG + 3))
    a("s_mov_b64 exec, -1")
    if "nokgen" in EXP: nonce_pub()
    for it in range(2):
        for r in P[it]: k("v_lshlrev_b32 v%d, 16, v%d" % (r, r))
    k("v_lshlrev_b32 v26, 16, v26")
    k("v_mul_f32 v26, %s, v26" % fbits(LOG2E))
    k("v_exp_f32 v26, v26")
    k("v_cvt_pk_bf16_f32 v26, v26, v26")
    k("v_lshlrev_b32 v26, 16, v26")
    WR = [28, 126]
    for it in range(2):
        p = P[it]
        k("v_mul_f32 v%d, v26, v%d" % (p[0], p[0])); k("v_mul_f32 v%d, v26, v%d" % (p[1], p[1]))
        k("v_mul_f32 v%d, v26, v%d" % (p[2], p[2])); k("v_mul_f32 v%d, v26, v%d" % (p[3], p[3]))
        w = WR[it]
        k("v_mul_f32 v%d, v%d, v%d" % (w, p[4], p[2])); k("v_fma_f32 v%d, -v%d, v%d, v%d" % (w, p[5], p[3], w))
        k("v_mul_f32 v%d, v%d, v%d" % (w + 1, p[4], p[3])); k("v_fma_f32 v%d, v%d, v%d, v%d" % (w + 1, p[5], p[2], w + 1))
    k("v_max_f32 v27, abs(v28), abs(v29)")
    k("v_max3_f32 v27, abs(v126), abs(v127), v27")
    for sh in (1, 2, 4, 8):
        k("v_max_f32_dpp v27, v27, v27 row_shr:%d row_mask:0xf bank_mask:0xf" % sh)
    k("v_max_f32_dpp v27, v27, v27 row_bcast:15 row_mask:0xa bank_mask:0xf")
    k("v_max_f32_dpp v27, v27, v27 row_bcast:31 row_mask:0xc bank_mask:0xf")
    k("v_readlane_b32 s%d, v27, 63" % sINV)
    k("s_lshr_b32 s%d, s%d, 23" % (sINV, sINV))
    k("s_sub_u32 s%d, 254, s%d" % (sSC, sINV))
    k("s_lshl_b32 s%d, s%d, 23" % (sSC, sSC))
    k("v_mov_b32 v10, s%d" % sINV)
    k("s_lshl_b32 s%d, s%d, 2" % (sT1, sKW))
    k("s_add_u32 s%d, s%d, %d" % (sT1, sT1, L_SYNC + Y_KEXP))
    k("v_mov_b32 v11, s%d" % sT1)
    k("ds_write_b32 v11, v10")
    for w in WR:
        k("v_mul_f32 v%d, s%d, v%d" % (w, sSC, w)); k("v_mul_f32 v%d, s%d, v%d" % (w + 1, sSC, w + 1))
    k("s_mov_b32 m0, s%d" % sSTG)
    E1, E8, E256, E2, E4, E16 = 30, 32, 34, 36, 38, 40
    tmpi = [0]
    def cmul(d, x, y):
        t = 42 + (tmpi[0] & 3); tmpi[0] += 1
        assert d != y
        k("v_mul_f32 v%d, v%d, v%d" % (t, x, y + 1))
        k("v_mul_f32 v%d, v%d, v%d" % (d, x, y))
        k("v_fma_f32 v%d, -v%d, v%d, v%d" % (d, x + 1, y + 1, d))
        k("v_fma_f32 v%d, v%d, v%d, v%d" % (d + 1, x + 1, y, t))
    PK = [46, 47, 48, 49]; pki = [0]
    def put(row, r, negim=False):
        p = PK[pki[0] & 3]; pki[0] += 1
        k("v_cvt_pk_f16_f32 v%d, v%d, %sv%d" % (p, r, "-" if negim else "", r + 1))
        if "nokw" in EXP or ("halfkw" in EXP and (pki[0] & 1)): k("; skip"); return
        k("ds_write_addtid_b32 v%d offset:%d" % (p, row * 272))
    YF = [64, 80]; XFB = 96
    for it in range(2 if "nokgen" not in EXP else 0):
        are, aim = P[it][0], P[it][1]
        if it == 1 and PFW == 1: pf_wd()
        X0 = WR[it]
        def cexp(d, Lx):
            k("v_mul_f32 v16, %s, v%d" % (fbits(Lx * LOG2E), are))
            k("v_mul_f32 v17, %s, v%d" % (fbits(Lx / (2 * math.pi)), aim))
            k("v_exp_f32 v16, v16")
            k("v_fract_f32 v17, v17")
            k("v_cos_f32 v%d, v17" % d)
            k("v_sin_f32 v%d, v17" % (d + 1))
            k("v_mul_f32 v%d, v16, v%d" % (d, d))
            k("v_mul_f32 v%d, v16, v%d" % (d + 1, d + 1))
        cexp(E8, 8); cexp(E1, 1); cexp(E256, 256)
        cmul(E16, E8, E8); cmul(E2, E1, E1); cmul(E4, E2, E2)
        Ya, Yb = 50, 52
        k("v_mov_b32 v50, 1.0"); k("v_mov_b32 v51, 0")
        put(0, Ya); put(1, E8)
        cmul(Yb, E8, E16)
        put(2, E16); put(3, Yb)
        cmul(Ya, E16, E16)
        for j in range(4, 32, 2):
            cmul(Yb, Yb, E16)
            put(j & 15, Ya); put((j + 1) & 15, Yb)
            if j + 2 < 32: cmul(Ya, Ya, E16)
            if j == 14:
                for ks in range(4): k("ds_read_b128 %s, v5 offset:%d" % (vr(YF[0] + 4 * ks, 4), ks * 64))
        for ks in range(4): k("ds_read_b128 %s, v5 offset:%d" % (vr(YF[1] + 4 * ks, 4), ks * 64))
        Xa, Xb, Xc = 54, 56, 58
        if it == 0: nonce_pub()
        put(0, X0, True)
        cmul(Xa, X0, E1); cmul(Xb, X0, E256)
        put(1, Xa, True); put(8, Xb, True)
        cmul(Xc, Xb, E2)
        for r in range(2, 8):
            cmul(Xa, Xa, E1); put(r, Xa, True)
            if r <= 5:
                put(9 + (r - 2), Xc, True)
                if r < 5: cmul(Xc, Xc, E2)
        def xtile(t):
            for ks in range(4): k("ds_read_b128 %s, v%d offset:%d" % (vr(XFB + 4 * ks, 4), XA[t], ks * 64))
        def xmfma(t):
            for ks in range(4):
                for yt in range(2):
                    k("v_mfma_f32_16x16x32_f16 %s, %s, %s, %s" % (vr(D(t, yt), 4), vr(XFB + 4 * ks, 4), vr(YF[yt] + 4 * ks, 4), vr(D(t, yt), 4)))
        xtile(0)
        for b in range(2):
            cmul(Xb, Xb, E256); put(3 * b, Xb, True)
            cmul(Xc, Xb, E4); put(3 * b + 1, Xc, True)
            cmul(Xa, Xb, E8); put(3 * b + 2, Xa, True)
        k("s_waitcnt lgkmcnt(6)")
        xmfma(0)
        xtile(1)
        for b in range(4):
            cmul(Xb, Xb, E256); put(6 + 2 * b, Xb, True)
            cmul(Xa, Xb, E8); put(7 + 2 * b, Xa, True)
        k("s_waitcnt lgkmcnt(8)")
        xmfma(1)
        for t in (2, 3):
            xtile(t)
            k("s_waitcnt lgkmcnt(0)")
            xmfma(t)
    if ENV("VERB", 0): print("kgen instrs", kc[0])
    if "nokgen" in EXP:
        for kk_ in sorted(hooks): hooks[kk_]()
        hooks.clear()
    assert not hooks
    sk_("kgen")
    a("s_setprio %d" % ENV("XPRIO", 0))
    u_poll()
    a("v_lshl_add_u32 v18, v1, 4, s%d" % sSTG)
    a("s_xor_b32 s%d, s%d, 1" % (sT0, sKW))
    a("s_mul_i32 s%d, s%d, %d" % (sT0, sT0, STG_W))
    a("s_add_u32 s%d, s%d, %d" % (sT0, sT0, L_STG))
    a("v_lshl_add_u32 v19, v1, 4, s%d" % sT0)
    x1, x2 = L("X"), L("X")
    a("s_cmp_lg_u32 s%d, 0" % sHF)
    a("s_cbranch_scc1 %s" % x1)
    a.begin_opt()
    for i in range(4): a("ds_write_b128 v18, %s offset:%d" % (vr(144 + 4 * i, 4), i * 1024))
    a("s_branch %s" % x2)
    a.end_opt()
    a.label(x1)
    a.begin_opt()
    for i in range(4): a("ds_write_b128 v18, %s offset:%d" % (vr(128 + 4 * i, 4), i * 1024))
    for i in range(16): a("v_mov_b32 v%d, v%d" % (128 + i, 144 + i))
    a.end_opt()
    a.label(x2)
    setf(Y_KX)
    waitp(Y_KX)
    a("s_and_b32 s%d, s%d, 2" % (sT0, sKW))
    a("s_lshl_b32 s%d, s%d, 2" % (sT0, sT0))
    a("s_add_u32 s%d, s%d, %d" % (sT0, sT0, L_SYNC + Y_KEXP))
    a("v_mov_b32 v10, s%d" % sT0)
    a("ds_read_b64 v[10:11], v10")
    for i in range(4): a("ds_read_b128 %s, v19 offset:%d" % (vr(144 + 4 * i, 4), i * 1024))
    a("s_waitcnt lgkmcnt(4)")
    a("v_max_u32 v16, v10, v11")
    a("v_add_u32 v17, v10, v11"); a("v_subrev_u32 v17, s%d, v17" % sINV)
    def fac(dst, esrc):
        a("v_sub_u32 v%d, %s, v16" % (dst, esrc))
        a("v_add_u32 v%d, 127, v%d" % (dst, dst))
        a("v_max_i32 v%d, 0, v%d" % (dst, dst))
        a("v_lshlrev_b32 v%d, 23, v%d" % (dst, dst))
    fac(20, "s%d" % sINV); fac(22, "v17")
    a("v_lshlrev_b32 v9, 23, v16")
    a("s_waitcnt lgkmcnt(0)")
    for i in range(16):
        a("v_mul_f32 v%d, v20, v%d" % (128 + i, 128 + i))
        a("v_fmac_f32 v%d, v22, v%d" % (128 + i, 144 + i))
    a("v_and_b32 v10, v6, v7"); a("v_and_b32 v10, s%d, v10" % sHF)
    a("v_cmp_ne_u32 vcc, 0, v10")
    for i in range(4): a("v_cndmask_b32 v%d, v%d, v%d, vcc" % (128 + 4 * i, 128 + 4 * i, 129 + 4 * i))
    a("v_lshrrev_b32 v10, 1, v6"); a("v_lshlrev_b32 v10, 9, v10")
    a("v_lshl_add_u32 v10, v7, 4, v10")
    a("v_and_b32 v11, 1, v6"); a("v_lshl_add_u32 v10, v11, 3, v10")
    a("s_add_u32 s%d, s%d, %d" % (sT0, sCVB, 4088 - 1024 - 256))
    a("s_lshl_b32 s%d, s%d, 11" % (sT2, sHF))
    a("s_sub_u32 s%d, s%d, s%d" % (sT0, sT0, sT2))
    a("v_sub_u32 v10, s%d, v10" % sT0)
    for tl in range(2):
        for yt in range(2):
            b = 128 + 8 * tl + 4 * yt
            a("v_cvt_pk_f16_f32 v%d, v%d, v%d" % (64 + 4 * tl + 2 * yt, b + 3, b + 2))
            a("v_cvt_pk_f16_f32 v%d, v%d, v%d" % (65 + 4 * tl + 2 * yt, b + 1, b))
    a("v_and_b32 v11, 3, v1"); a("v_add_u32 v11, %d, v11" % (L_SYNC + Y_CNT))
    spin_lds(11, 164, 10, slp=4, off=Y_RD)
    for tl in range(2):
        for yt in range(2):
            a("ds_write_b64 v10, %s offset:%d" % (vr(64 + 4 * tl + 2 * yt, 2), (1 - tl) * 1024 + (1 - yt) * 256))
    if "dbgk" in EXP:
        a("s_mul_i32 s%d, s%d, %d" % (sT0, sCH, KSTRIDE)); a("s_sub_u32 s%d, s%d, s%d" % (sT0, sT0, sCVB)); a("s_add_u32 s%d, s%d, %d" % (sT0, sT0, WS_KREV))
        for tl in range(2):
            for yt in range(2):
                a("buffer_store_dwordx2 %s, v10, s[%d:%d], s%d offen offset:%d" % (vr(64 + 4 * tl + 2 * yt, 2), SWS, SWS + 3, sT0, (1 - tl) * 1024 + (1 - yt) * 256))
        a("s_lshl_b32 s%d, s%d, 2" % (sT0, sCH)); a("s_add_u32 s%d, s%d, %d" % (sT0, sT0, WS_KSC)); a("v_mov_b32 v11, s%d" % sT0)
        a("buffer_store_dword v9, v11, s[%d:%d], 0 offen" % (SWS, SWS + 3))
    a("s_setprio %d" % int(os.environ.get("CPRIO", "2")))
    a("v_mov_b32 v2, v7"); a("v_mov_b32 v3, v6")
    a("v_lshlrev_b32 v4, 4, v1")
    a("v_mov_b32 v12, 0"); a("v_mov_b32 v13, 0"); a("v_mov_b32 v14, 0"); a("v_mov_b32 v15, 0")
    a("v_add_u32 v5, %d, v4" % O_U)
    a("v_bfe_u32 v6, v1, 2, 2")
    a("v_mul_u32_u24 v6, %d, v6" % CPS)
    a("v_and_b32 v7, 3, v1")
    a("v_lshl_add_u32 v6, v7, 4, v6")
    a("v_add_u32 v6, 4096, v6")
    a("v_cmp_gt_u32 vcc, 32, v1")
    a("v_cndmask_b32 v5, v6, v5, vcc")
    a("v_add_u32 v5, s%d, v5" % sCVB)
    nz = L("NZ")
    a("s_cmp_lg_u32 s%d, 0" % sHF)
    a("s_cbranch_scc1 %s" % nz)
    a.begin_opt()
    a("s_mov_b32 exec_lo, 0x3fffffff"); a("s_mov_b32 exec_hi, 0xffff")
    a("ds_write_b128 v5, v[12:15]")
    a("s_mov_b64 exec, -1")
    a.end_opt()
    a.label(nz)
    setf(Y_C0)
    a("v_sub_u32 v5, 3, v2"); a("v_and_b32 v5, 3, v5")
    a("v_mul_u32_u24 v6, %d, v5" % CPS)
    a("v_add_u32 v7, v2, v5")
    a("v_sub_u32 v7, %d, v7" % (2031 - 16 * 126))
    a("v_lshl_add_u32 v7, v3, 3, v7")
    a("v_lshl_add_u32 v6, v7, 1, v6")
    a("s_lshl_b32 s%d, s%d, 8" % (sT0, sHF))
    a("s_sub_u32 s%d, s%d, s%d" % (sT1, sCVB, sT0))
    a("v_add_u32 v6, s%d, v6" % sT1)
    a("v_lshlrev_b32 v7, 5, v2")
    a("v_lshl_add_u32 v7, v3, 4, v7")
    a("v_add_u32 v7, %d, v7" % O_U)
    a("v_add_u32 v7, s%d, v7" % sT1)
    a("s_add_u32 s%d, s%d, s%d" % (sT3, sCVB, sT2))
    a("v_add_u32 v5, s%d, v4" % sT3)
    lq, lq2, lq3 = L("PB"), L("PB"), L("PB")
    a("s_cmp_eq_u32 s%d, 0" % sPM)
    a("s_cbranch_scc1 %s" % lq3)
    a.begin_opt()
    a("s_mov_b32 s%d, %d" % (sOX, SPIN))
    a.label(lq)
    a("s_waitcnt vmcnt(0)")
    a("v_cmp_ne_u32 vcc, s%d, v169" % sNON)
    a("s_cmp_eq_u32 vcc_lo, 0")
    a("s_cbranch_scc1 %s" % lq2)
    a("s_sleep %d" % int(os.environ.get("PSL", "8")))
    a("s_mov_b32 exec_hi, 0")
    a("buffer_load_dword v169, v112, s[%d:%d], 0 offen sc1" % (SWS, SWS + 3))
    a("s_mov_b64 exec, -1")
    a("s_sub_u32 s%d, s%d, 1" % (sOX, sOX)); a("s_cmp_lg_u32 s%d, 0" % sOX)
    a("s_cbranch_scc1 %s" % lq)
    a.label(lq2)
    u_dma()
    a.end_opt()
    a.label(lq3)
    sk_("rdyB")
    waitp(Y_C0)
    for it in range(2):
        b = 32 + 8 * it
        a("ds_read_b128 %s, v5 offset:%d" % (vr(b, 4), it * 1024))
        a("ds_read_b64 %s, v5 offset:%d" % (vr(b + 4, 2), it * 1024 + 16))
    for it in range(2):
        b = 32 + 8 * it
        a("s_waitcnt lgkmcnt(%d)" % (2 if it == 0 else 3))
        d = [b + i for i in range(6)]
        c1, c2, c3 = 64 + 12 * it, 68 + 12 * it, 72 + 12 * it
        for i in range(4):
            a("v_alignbit_b32 v%d, v%d, v%d, 16" % (c1 + i, d[i + 1], d[i]))
            a("v_mov_b32 v%d, v%d" % (c2 + i, d[i + 1]))
            a("v_alignbit_b32 v%d, v%d, v%d, 16" % (c3 + i, d[i + 2], d[i + 1]))
        a("ds_write_b128 v5, %s offset:%d" % (vr(c1, 4), CPS + it * 1024))
        a("ds_write_b128 v5, %s offset:%d" % (vr(c2, 4), 2 * CPS + it * 1024))
        a("ds_write_b128 v5, %s offset:%d" % (vr(c3, 4), 3 * CPS + it * 1024))
    sk_("copies")
    CA = 16; G = 64; F = 96
    for r in range(CA, CA + 32): a("v_mov_b32 v%d, 0" % r)
    setf(Y_BL)
    spin_lds(114, 164, 1, width="b32", slp=1, off=Y_U - Y_RDA)
    a("ds_read_b64 v[166:167], v114 offset:%d" % (Y_NON - Y_RDA))
    waitp(Y_BL)
    sk_("built")
    a("s_setprio %d" % ENV("MPRIO", 1))
    def rg(ri, q):
        o = 32 * (126 - 16 * q - 2 * ri)
        a("ds_read_b64 %s, v6 offset:%d" % (vr(G + 4 * q, 2), o))
        a("ds_read_b64 %s, v6 offset:%d" % (vr(G + 4 * q + 2, 2), o + 8))
    def rf(ri, j):
        a("ds_read_b128 %s, v7 offset:%d" % (vr(F + 4 * j, 4), 32 * (16 * j - 2 * ri + 14)))
    side = []
    S = side.append
    S("v_lshlrev_b32 v8, 16, v160")
    XW, XO = 128, 136
    for i in range(4):
        for pr in range(2):
            xw = XW + 2 * i + pr; o = XO + 4 * i + 2 * pr
            S("v_cvt_f32_f16 v%d, v%d" % (o, xw))
            S("v_lshrrev_b32 v%d, 16, v%d" % (o + 1, xw)); S("v_cvt_f32_f16 v%d, v%d" % (o + 1, o + 1))
            S("v_mul_f32 v%d, v8, v%d" % (o, o)); S("v_mul_f32 v%d, v8, v%d" % (o + 1, o + 1))
            S("v_cvt_pk_bf16_f32 v%d, v%d, v%d" % (o, o, o + 1))
            S("v_and_b32 v%d, 0xffff0000, v%d" % (o + 1, o)); S("v_lshlrev_b32 v%d, 16, v%d" % (o, o))
    S("v_lshl_add_u32 v5, v1, 4, s%d" % sSTG)
    S("s_xor_b32 s%d, s%d, 1" % (sT0, sKW))
    S("s_mul_i32 s%d, s%d, %d" % (sT0, sT0, STG_W))
    S("s_add_u32 s%d, s%d, %d" % (sT0, sT0, L_STG))
    S("v_lshl_add_u32 v152, v1, 4, s%d" % sT0)
    S("v_and_b32 v13, 1, v3"); S("v_lshlrev_b32 v13, 9, v13")
    S("v_lshrrev_b32 v14, 2, v2"); S("v_lshl_add_u32 v13, v14, 7, v13")
    S("v_lshrrev_b32 v14, 1, v3"); S("v_lshl_add_u32 v13, v14, 6, v13")
    S("v_and_b32 v14, 3, v2"); S("v_lshl_add_u32 v13, v14, 4, v13")
    S("v_add_u32 v13, s%d, v13" % sT2)
    S("s_and_b32 s%d, s%d, 0xfffe" % (sT0, sCH)); S("s_add_u32 s%d, s%d, s%d" % (sT0, sT0, sHF)); S("s_lshl_b32 s%d, s%d, 8" % (sT0, sT0))
    S("s_and_b32 s%d, s%d, 1" % (sT1, sCH)); S("s_lshl_b32 s%d, s%d, 3" % (sT1, sT1))
    S("s_add_u32 s%d, s%d, s%d" % (sT0, sT0, sT1))
    S("s_add_u32 s%d, s%d, %d" % (sT0, sT0, WS_CF))
    S("v_mov_b32 v14, s%d" % sT0)
    S("v_readfirstlane_b32 s%d, v166" % sNON); S("v_readfirstlane_b32 s%d, v167" % (sNON + 1))
    S("s_lshl_b32 s%d, s%d, 14" % (sT0, sCT))
    S("s_lshl_b32 s%d, s%d, 12" % (sT1, sKW))
    S("s_add_u32 s%d, s%d, s%d" % (sT0, sT0, sT1))
    S("s_lshr_b32 s%d, s%d, 4" % (sT1, sRT2)); S("s_lshl_b32 s%d, s%d, 8" % (sT1, sT1))
    S("s_add_u32 s%d, s%d, s%d" % (sT0, sT0, sT1))
    S("s_add_u32 s%d, s%d, %d" % (sT0, sT0, WS_CF))
    S("v_lshrrev_b32 v153, 1, v2"); S("v_lshl_add_u32 v153, v153, 9, s%d" % sT0)
    S("v_and_b32 v154, 1, v2"); S("v_lshl_add_u32 v153, v154, 3, v153")
    S("s_lshl_b32 s%d, s%d, 4" % (sT0, sKW))
    S("v_lshrrev_b32 v154, 3, v1")
    S("v_add_u32 v154, s%d, v154" % sT0)
    S("s_lshl_b32 s%d, s%d, 6" % (sT0, sCT))
    S("v_add_u32 v154, s%d, v154" % sT0)
    S("v_mul_u32_u24 v154, %d, v154" % YST)
    S("v_and_b32 v155, 7, v1")
    S("v_lshl_add_u32 v154, v155, 4, v154")
    S("s_lshl_b32 s%d, s%d, 7" % (sT2, sRT2))
    S("s_add_u32 s%d, s%d, %d" % (sT2, sT2, WS_YAT))
    S("s_add_u32 s%d, s%d, %d" % (sT3, sT2, 8 * YST))
    S("s_mul_i32 s%d, s%d, %d" % (sT0, sCH, YST))
    S("s_add_u32 s%d, s%d, %d" % (sT0, sT0, WS_YAT))
    S("v_add_u32 v165, %d, v162" % Y_CX)
    if NSTA:
        S("s_lshl_b32 s%d, s%d, 13" % (sOX, sHF)); S("s_add_u32 s%d, s%d, s%d" % (sOX, sOX, sCVB)); S("v_lshl_add_u32 v157, v1, 4, s%d" % sOX)
        if SP0 < 0:
            side2 = []
            for n in range(4 * NSTA): side2.append(n)
    def copy_part(part):
        for n in range(4 * NSTA):
            s_ = 14 - NSTA + n // 4; q = n % 4
            if (s_ >= 12) != (part == 1): continue
            if s_ >= 12: ad, of = 157, (s_ - 12) * 4096
            elif WDS[s_ % 6] >= 65536: ad, of = 158, WDS[s_ % 6] - 65536
            else: ad, of = 156, WDS[s_ % 6]
            a("ds_write_b128 v%d, %s offset:%d" % (ad, vr(176 + 4 * n, 4), of + q * 1024))
        a("v_mov_b32 v159, %d" % (part + 1))
        a("s_mov_b64 exec, 1")
        a("ds_write_b8 v161, v159 offset:%d" % Y_WS)
        a("s_mov_b64 exec, -1")
    def copy_out():
        l = L("CA")
        a("s_cmp_lg_u32 s%d, 0" % sLD)
        a("s_cbranch_scc1 %s" % l)
        copy_part(0)
        a.label(l)
        copy_part(1)
    def copy_try():
        l = L("CA")
        a("v_cmp_gt_u32 vcc, 1, v164")
        a("s_cmp_lg_u32 s%d, 0" % sLD)
        a("s_cbranch_scc1 %s" % l)
        a("s_cbranch_vccnz %s" % l)
        a.begin_opt()
        a("s_waitcnt vmcnt(0)")
        a("s_mov_b32 s%d, 1" % sLD)
        copy_part(0)
        a.end_opt()
        a.label(l)
    CTRY = [int(x) for x in os.environ.get("CTRY", "9").split(",")]
    a("s_mov_b32 s%d, 0" % sLD)
    a("s_lshl_b32 s%d, s%d, 12" % (sOX, sKW)); a("v_lshl_add_u32 v156, v1, 4, s%d" % sOX); a("v_add_u32 v158, 65536, v156")
    a("v_lshlrev_b32 v13, 5, v2")
    a("v_lshl_add_u32 v13, v3, 3, v13")
    a("s_add_u32 s%d, s%d, %d" % (sT1, sT3, O_U + 480))
    a("v_add_u32 v14, s%d, v13" % sT1)
    for i in range(4): a("ds_read_b64 %s, v14 offset:%d" % (vr(XW + 2 * i, 2), i * 512))
    for q in range(8): rg(0, q); rf(0, 7 - q)
    nm = 0
    if "noconv" in EXP:
        a("s_waitcnt lgkmcnt(0)")
        while side: a(side.pop(0))
    for ri in range(4 if "noconv" not in EXP else 0):
        for q in range(8):
            for m in range(7, q - 1, -1):
                if q == 0:
                    a("s_waitcnt lgkmcnt(%d)" % min(15, 3 * m))
                a("v_mfma_f32_16x16x32_f16 %s, %s, %s, %s" % (vr(CA + 4 * m, 4), vr(G + 4 * q, 4), vr(F + 4 * (m - q), 4), vr(CA + 4 * m, 4)))
                nm += 1
                if NSTA and SP0 < 0 and side2 and nm % ENV("SPM", 4) == 0: st_ld(side2.pop(0))
                if nm > 8 and side:
                    a(side.pop(0))
                    while side and side[0].startswith("s_"): a(side.pop(0))
            if q == 0 and ri in CTRY: copy_try()
            if q == 7 and ri + 1 in CTRY: a("ds_read_u8 v164, v161 offset:%d" % Y_TR)
            if ri + 1 < 4: rg(ri + 1, q); rf(ri + 1, 7 - q)
    assert not side
    sk_("mfma")
    a("s_setprio %d" % ENV("PPRIO", 3))
    x1, x2 = L("X"), L("X")
    a("s_cmp_lg_u32 s%d, 0" % sHF)
    a("s_cbranch_scc1 %s" % x1)
    a.begin_opt()
    for i in range(4): a("ds_write_b128 v5, %s offset:%d" % (vr(CA + 16 + 4 * i, 4), i * 1024))
    a("s_mov_b64 exec, 1")
    a("ds_write_b8 v161, v163 offset:%d" % Y_CX)
    a("s_mov_b64 exec, -1")
    a("s_branch %s" % x2)
    a.end_opt()
    a.label(x1)
    a.begin_opt()
    for i in range(4): a("ds_write_b128 v5, %s offset:%d" % (vr(CA + 4 * i, 4), i * 1024))
    a("s_mov_b64 exec, 1")
    a("ds_write_b8 v161, v163 offset:%d" % Y_CX)
    a("s_mov_b64 exec, -1")
    for i in range(16): a("v_mov_b32 v%d, v%d" % (CA + i, CA + 16 + i))
    a.end_opt()
    a.label(x2)
    spin_lds(165, 164, 1, slp=0)
    for i in range(4): a("ds_read_b128 %s, v152 offset:%d" % (vr(CA + 16 + 4 * i, 4), i * 1024))
    for i in range(4):
        a("s_waitcnt lgkmcnt(%d)" % (3 - i))
        for pr in range(2):
            y = CA + 4 * i + 2 * pr; o = XO + 4 * i + 2 * pr
            a("v_add_f32 v%d, v%d, v%d" % (y, y, y + 16)); a("v_add_f32 v%d, v%d, v%d" % (y + 1, y + 1, y + 17))
            a("v_mul_f32 v%d, v9, v%d" % (y, y)); a("v_mul_f32 v%d, v9, v%d" % (y + 1, y + 1))
            a("v_cvt_pk_bf16_f32 v%d, v%d, v%d" % (y, y, y + 1))
            a("v_and_b32 v%d, 0xffff0000, v%d" % (y + 1, y)); a("v_lshlrev_b32 v%d, 16, v%d" % (y, y))
            a("v_add_f32 v%d, v%d, v%d" % (y, y, o)); a("v_add_f32 v%d, v%d, v%d" % (y + 1, y + 1, o + 1))
            a("v_cvt_pk_bf16_f32 v%d, v%d, v%d" % (72 + 2 * i + pr, y, y + 1))
        if i & 1:
            b = 72 + 4 * (i >> 1)
            a("v_permlane16_swap_b32 v%d, v%d" % (b, b + 2)); a("v_permlane16_swap_b32 v%d, v%d" % (b + 1, b + 3))
            a("buffer_store_dwordx4 %s, v13, s[%d:%d], s%d offen offset:%d sc1" % (vr(b, 4), SWS, SWS + 3, sT0, (i >> 1) * 1024))
    setf(Y_XR)
    def cflag():
        a("s_waitcnt vmcnt(0)")
        a("s_mov_b64 exec, 1")
        a("buffer_store_dwordx2 v[166:167], v14, s[%d:%d], 0 offen sc1" % (SWS, SWS + 3))
        a("s_mov_b64 exec, -1")
    if ENV("COA", 2) == 1:
        cflag()
        sk_("flag")
        spin_lds(161, 164, 1, slp=1, off=Y_TR)
        copy_out()
    elif ENV("COA", 2) == 2:
        a("ds_read_u8 v164, v161 offset:%d" % Y_TR)
        a("s_waitcnt vmcnt(2) lgkmcnt(0)")
        c1 = L("CO")
        a("v_cmp_gt_u32 vcc, 1, v164")
        a("s_cbranch_vccnz %s" % c1)
        a.begin_opt()
        a("s_mov_b32 s%d, 1" % sLD)
        copy_part(0)
        a.end_opt()
        a.label(c1)
        cflag()
        sk_("flag")
        spin_lds(161, 164, 1, slp=1, off=Y_TR)
        copy_out()
    elif NSTA:
        c1, c2 = L("CO"), L("CO")
        a("ds_read_u8 v164, v161 offset:%d" % Y_TR)
        a("s_waitcnt vmcnt(2) lgkmcnt(0)")
        a("v_cmp_gt_u32 vcc, 1, v164")
        a("s_cbranch_vccnz %s" % c1)
        a.begin_opt()
        copy_out(); cflag()
        a("s_branch %s" % c2)
        a.end_opt()
        a.label(c1)
        a.begin_opt()
        cflag()
        spin_lds(161, 164, 1, slp=1, off=Y_TR)
        copy_out()
        a.end_opt()
        a.label(c2)
    else: cflag()
    if not ENV("COA", 2): sk_("flag")
    a("s_setprio 0")
    a("s_sleep %d" % int(os.environ.get("CSL0", "8")))
    lp, ld = L("CP"), L("CP")
    a("s_mov_b32 s%d, %d" % (sOX, SPIN))
    a.label(lp)
    a("s_mov_b64 exec, 0xffff")
    a("buffer_load_dwordx2 v[20:21], v153, s[%d:%d], 0 offen sc1" % (SWS, SWS + 3))
    a("s_waitcnt vmcnt(0)")
    a("v_cmp_ne_u64 vcc, s[%d:%d], v[20:21]" % (sNON, sNON + 1))
    a("s_mov_b64 exec, -1")
    a("s_cbranch_vccz %s" % ld)
    a("s_sleep %d" % int(os.environ.get("CSL", "8")))
    a("s_sub_u32 s%d, s%d, 1" % (sOX, sOX)); a("s_cmp_lg_u32 s%d, 0" % sOX)
    a("s_cbranch_scc1 %s" % lp)
    a.label(ld)
    sk_("polled")
    a("buffer_load_dwordx4 v[104:107], v154, s[%d:%d], s%d offen" % (SWS, SWS + 3, sT2))
    a("buffer_load_dwordx4 v[108:111], v154, s[%d:%d], s%d offen" % (SWS, SWS + 3, sT3))
    waitp(Y_XR)
    a("s_waitcnt vmcnt(0)")
    a("ds_write_b128 v5, v[104:107]")
    a("ds_write_b128 v5, v[108:111] offset:1024")
    setf(Y_YA)
    a("s_waitcnt lgkmcnt(0)")
    sk_("end")
    sk_.store(100)
    a("s_endpgm")

def producer(a, sp_, L, spin_lds):
    a.label("K_PROD")
    a.vmq = []
    a.nopkw = True
    XT_S = 912
    L_PC = 64 * XT_S
    a("v_lshrrev_b32 v2, 3, v1")
    a("v_and_b32 v3, 7, v1")
    a("s_lshr_b32 s%d, s2, 3" % sT1)
    a("s_bfe_u32 s%d, s2, 0x20001" % sT0); a("s_lshl_b32 s%d, s%d, 3" % (sR, sT0)); a("s_lshl_b32 s%d, s%d, 1" % (sT1, sT1))
    a("s_add_u32 s%d, s%d, s%d" % (sR, sR, sT1)); a("s_and_b32 s%d, s2, 1" % sT0); a("s_add_u32 s%d, s%d, s%d" % (sR, sR, sT0))
    a("s_lshr_b32 s%d, s2, 1" % sF); a("s_min_u32 s%d, s%d, 13" % (sF, sF)); a("s_mul_i32 s%d, s%d, 14" % (sT0, sT0)); a("s_add_u32 s%d, s%d, s%d" % (sF, sF, sT0))
    a("s_lshl_b32 s%d, s%d, 3" % (sT0, sWV))
    a("v_add_u32 v4, s%d, v2" % sT0)
    a("s_lshl_b32 s%d, s%d, 6" % (sT1, sR))
    a("v_add_u32 v5, s%d, v4" % sT1)
    a("v_mul_u32_u24 v6, 896, v5")
    a("v_lshl_add_u32 v6, v3, 4, v6")
    a("s_waitcnt lgkmcnt(0)")
    srd(a, SX, 16, 2048 * 896)
    for i in range(7):
        a.vm("buffer_load_dwordx4 %s, v6, s[%d:%d], 0 offen offset:%d" % (vr(32 + 4 * i, 4), SX, SX + 3, i * 128), "x%d" % i)
    srd(a, SWS, 14, WS_SIZE)
    srd(a, SDBG, 12, 256)
    ln = L("NN")
    a("s_or_b32 s%d, s2, s%d" % (sT0, sWV))
    a("s_cbranch_scc1 %s" % ln)
    a.begin_opt()
    a("s_memrealtime s[%d:%d]" % (sNON, sNON + 1))
    a("s_waitcnt lgkmcnt(0)")
    a("s_or_b32 s%d, s%d, 0x40000000" % (sNON + 1, sNON + 1)); a("s_or_b32 s%d, s%d, 1" % (sNON, sNON))
    a("v_mov_b32 v12, s%d" % sNON); a("v_mov_b32 v13, s%d" % (sNON + 1)); a("v_mov_b32 v14, 64")
    a("s_mov_b64 exec, 1")
    a("buffer_store_dwordx2 v[12:13], v14, s[%d:%d], 0 offen sc1" % (SDBG, SDBG + 3))
    a("s_mov_b64 exec, -1")
    a.end_opt()
    a.label(ln)
    a("s_lshr_b32 s%d, s%d, 1" % (sT1, sWV))
    a("s_mul_i32 s%d, s%d, %d" % (sT1, sT1, 112 * 3584))
    a("s_lshl_b32 s%d, s%d, 7" % (sT2, sF))
    a("s_add_u32 s%d, s%d, s%d" % (sT1, sT1, sT2))
    a("v_mul_u32_u24 v9, 3584, v2")
    a("v_lshl_add_u32 v9, v3, 4, v9")
    a("v_add_u32 v9, s%d, v9" % sT1)
    a("s_bitcmp0_b32 s%d, 0" % sWV)
    a("s_cselect_b32 s%d, s32, s34" % SWG)
    a("s_cselect_b32 s%d, s33, s35" % (SWG + 1))
    a("s_and_b32 s%d, s%d, 0xffff" % (SWG + 1, SWG + 1))
    a("s_mov_b32 s%d, 0x%x" % (SWG + 2, 448 * 3584))
    a("s_mov_b32 s%d, 0x00020000" % (SWG + 3))
    wq = list(range(14))
    def ldw(n):
        for _ in range(n):
            if not wq: return
            i = wq.pop(0)
            a("s_mov_b32 s%d, %d" % (sOW, i * 8 * 3584))
            a.vm("buffer_load_dwordx4 %s, v9, s[%d:%d], s%d offen" % (vr(64 + 4 * i, 4), SWG, SWG + 3, sOW), "w%d" % i)
    a("s_mov_b32 s%d, 0x3f803f80" % sONES)
    a("v_mov_b32 v10, 0"); a("v_mov_b32 v11, 0"); a("v_mov_b32 v12, 0"); a("v_mov_b32 v13, 0")
    a("v_mul_u32_u24 v7, %d, v4" % XT_S)
    a("v_lshl_add_u32 v7, v3, 4, v7")
    a("v_lshlrev_b32 v8, 4, v5")
    a("s_lshl_b32 s%d, s2, 8" % sT2); a("s_add_u32 s%d, s%d, %d" % (sT2, sT2, WS_PF))
    a("v_lshl_add_u32 v28, v1, 13, s%d" % sT2)
    a("s_lshl_b32 s%d, s%d, 8" % (sT0, sR)); a("s_add_u32 s%d, s%d, %d" % (sT0, sT0, WS_FR))
    a("s_lshl_b32 s%d, s%d, 8" % (sT1, sF)); a("s_add_u32 s%d, s%d, %d" % (sT1, sT1, WS_FC))
    a("s_cmp_eq_u32 s%d, 0" % sWV); a("s_cselect_b32 s%d, s%d, s%d" % (sT0, sT0, sT1)); a("v_mov_b32 v29, s%d" % sT0)
    a("v_mov_b32 v30, 64")
    for i in range(7):
        a.wait_vm("x%d" % i)
        for r in range(4):
            a("v_dot2_f32_bf16 v%d, v%d, s%d, v%d" % (10 + 2 * (r & 1), 32 + 4 * i + r, sONES, 10 + 2 * (r & 1)))
            a("v_dot2_f32_bf16 v%d, v%d, v%d, v%d" % (11 + 2 * (r & 1), 32 + 4 * i + r, 32 + 4 * i + r, 11 + 2 * (r & 1)))
    ldw(ENV("PW0", 6))
    a("v_add_f32 v10, v10, v12"); a("v_add_f32 v11, v11, v13")
    for mod in ("quad_perm:[1,0,3,2]", "quad_perm:[2,3,0,1]", "row_half_mirror"):
        for r in (10, 11):
            a("v_add_f32_dpp v%d, v%d, v%d %s row_mask:0xf bank_mask:0xf" % (r, r, r, mod))
    c = math.sqrt(2 / math.pi); k1 = -2 * c * LOG2E; k2 = k1 * 0.044715
    a("v_mul_f32 v10, %s, v10" % fbits(1.0 / 448))
    a("v_mul_f32 v11, %s, v11" % fbits(1.0 / 448))
    a("v_fma_f32 v11, -v10, v10, v11")
    a("v_max_f32 v11, 0, v11")
    a("v_cvt_pk_bf16_f32 v10, v10, v11")
    a("v_lshlrev_b32 v12, 16, v10")
    a("v_and_b32 v11, 0xffff0000, v10")
    a("v_add_f32 v11, %s, v11" % fbits(1e-5))
    a("v_cvt_pk_bf16_f32 v11, v11, v11")
    a("v_lshlrev_b32 v11, 16, v11")
    a("v_sqrt_f32 v11, v11")
    a("v_cvt_pk_bf16_f32 v11, v11, v11")
    a("v_lshlrev_b32 v11, 16, v11")
    a("v_rcp_f32 v14, v11")
    a("v_sub_f32 v16, 0, v12")
    a("v_cvt_pk_bf16_f32 v24, v16, v16")
    a("v_mul_f32 v27, v11, v11")
    a("v_mul_f32 v25, %s, v14" % fbits(k1))
    a("v_mul_f32 v10, v14, v14"); a("v_mul_f32 v10, v10, v14")
    a("v_mul_f32 v26, %s, v10" % fbits(k2))
    a("s_mov_b32 s%d, %d" % (sT0, WS_RC))
    a("s_mov_b32 exec_lo, 0x01010101"); a("s_mov_b32 exec_hi, 0x01010101")
    a.vm("buffer_store_dwordx4 v[24:27], v8, s[%d:%d], s%d offen sc1" % (SWS, SWS + 3, sT0), "rc")
    a("s_cmp_lt_u32 s%d, 2" % sWV); a("s_cselect_b32 exec_lo, 1, 0"); a("s_mov_b32 exec_hi, 0")
    a("buffer_load_dwordx2 v[18:19], v30, s[%d:%d], 0 offen sc1" % (SDBG, SDBG + 3))
    a("s_mov_b64 exec, -1")
    sp_("stats")
    def xn_blk(i):
        for r in range(4):
            w = 32 + 4 * i + r; t = 20 + 2 * (r & 1)
            a("v_lshlrev_b32 v%d, 16, v%d" % (t, w)); a("v_and_b32 v%d, 0xffff0000, v%d" % (t + 1, w))
            a("v_pk_add_f32 %s, %s, v[16:17] op_sel_hi:[1,0]" % (vr(t, 2), vr(t, 2)))
            a("v_cvt_pk_bf16_f32 v%d, v%d, v%d" % (t, t, t + 1))
            a("v_and_b32 v%d, 0xffff0000, v%d" % (t + 1, t)); a("v_lshlrev_b32 v%d, 16, v%d" % (t, t))
            a("v_pk_mul_f32 %s, %s, v[14:15] op_sel_hi:[1,0]" % (vr(t, 2), vr(t, 2)))
            a("v_cvt_pk_bf16_f32 v%d, v%d, v%d" % (t, t, t + 1))
            a("v_and_b32 v%d, 0xffff0000, v%d" % (t + 1, t)); a("v_lshlrev_b32 v%d, 16, v%d" % (t, t))
            a("v_cvt_pk_f16_f32 v%d, v%d, v%d" % (w, t, t + 1))
        a("ds_write_b128 v7, %s offset:%d" % (vr(32 + 4 * i, 4), i * 128))
    NXA = ENV("NXA", 4)
    for i in range(NXA):
        xn_blk(i); ldw(ENV("PW1", 2))
    ldw(14)
    a("s_mov_b32 s%d, 0x3f80" % sOX); a("s_mov_b32 s%d, 0x3f800000" % sOW)
    for r in range(120, 128): a("v_mov_b32 v%d, 0" % r)
    for i in range(14):
        a.wait_vm("w%d" % i)
        for r in range(4):
            w = 64 + 4 * i + r
            a("v_dot2_f32_bf16 v%d, v%d, s%d, v%d" % (120 + 2 * r, w, sOX, 120 + 2 * r))
            a("v_dot2_f32_bf16 v%d, v%d, s%d, v%d" % (121 + 2 * r, w, sOW, 121 + 2 * r))
    for r in range(120, 128): a("v_add_f32_dpp v%d, v%d, v%d row_ror:8 row_mask:0xf bank_mask:0xf" % (r, r, r))
    for op in ("v_permlane16_swap_b32", "v_permlane32_swap_b32"):
        for r in range(8): a("v_mov_b32 v%d, v%d" % (128 + r, 120 + r))
        for r in range(8): a("%s v%d, v%d" % (op, 120 + r, 128 + r))
        for r in range(8): a("v_add_f32 v%d, v%d, v%d" % (120 + r, 120 + r, 128 + r))
    a("s_lshl_b32 s%d, s%d, 8" % (sT0, sWV))
    a("s_add_u32 s%d, s%d, %d" % (sT0, sT0, L_PC))
    a("v_lshl_add_u32 v9, v3, 5, s%d" % sT0)
    a("s_mov_b64 exec, 0xff")
    a("ds_write_b128 v9, v[120:123]"); a("ds_write_b128 v9, v[124:127] offset:16")
    a("s_mov_b64 exec, -1")
    lw = L("PA")
    a("s_cmp_gt_u32 s%d, 1" % sWV)
    a("s_cbranch_scc1 %s" % lw)
    a.begin_opt()
    get_nonce(a, L, 30, 18, pre=True)
    a("v_mov_b32 v10, s%d" % sNON)
    a.end_opt()
    a.label(lw)
    a("s_waitcnt vmcnt(0) lgkmcnt(0)"); a.vmq = []
    sp_("sum")
    a("s_barrier")
    sp_("pbar0")
    la = L("PA")
    a("s_cmp_lg_u32 s%d, 1" % sWV)
    a("s_cbranch_scc1 %s" % la)
    a.begin_opt()
    a("v_lshlrev_b32 v9, 2, v1")
    a("v_add_u32 v20, %d, v9" % L_PC)
    for i in range(8): a("ds_read_b32 v%d, v20 offset:%d" % (120 + i, i * 256))
    a("s_lshl_b32 s%d, s%d, 9" % (sT2, sF)); a("s_add_u32 s%d, s%d, %d" % (sT0, sT2, WS_CS)); a("s_add_u32 s%d, s%d, %d" % (sT2, sT0, CSM))
    a("v_lshlrev_b32 v9, 3, v1")
    a("s_waitcnt lgkmcnt(0)")
    for m in range(2):
        c = 120 + m; o = 128 + 2 * m
        a("v_add_f32 v%d, v%d, v%d" % (c, c, c + 2)); a("v_add_f32 v%d, v%d, v%d" % (c + 4, c + 4, c + 6))
        a("v_add_f32 v%d, v%d, v%d" % (c, c, c + 4))
        a("v_cvt_pk_bf16_f32 v%d, v%d, v%d" % (c + 2, c, c)); a("v_lshlrev_b32 v%d, 16, v%d" % (c + 2, c + 2))
        a("v_sub_f32 v%d, v%d, v%d" % (c + 2, c, c + 2))
        a("v_cvt_pk_bf16_f32 v%d, v%d, v%d" % (o, c, c + 2)); a("v_and_b32 v%d, 0xffff0000, v%d" % (c + 4, o))
        a("v_sub_f32 v%d, v%d, v%d" % (c + 2, c + 2, c + 4))
        a("v_cvt_pk_bf16_f32 v%d, v%d, 0" % (o + 1, c + 2))
        a("buffer_store_dwordx2 v[%d:%d], v9, s[%d:%d], s%d offen sc1" % (o, o + 1, SWS, SWS + 3, (sT0, sT2)[m]))
    a.end_opt()
    a.label(la)
    for i in range(NXA, 7):
        xn_blk(i)
        if i == min(6, NXA + ENV("NXF", 2)):
            lb = L("PA")
            a("s_cmp_gt_u32 s%d, 1" % sWV)
            a("s_cbranch_scc1 %s" % lb)
            a.begin_opt()
            a("s_waitcnt vmcnt(0)")
            a("s_mov_b64 exec, 1")
            a("buffer_store_dword v10, v29, s[%d:%d], 0 offen sc1" % (SWS, SWS + 3))
            a("s_mov_b64 exec, -1")
            a.end_opt()
            a.label(lb)
            sp_("flagC")
    a("v_lshrrev_b32 v4, 4, v1"); a("v_and_b32 v5, 15, v1")
    a("v_lshrrev_b32 v6, 2, v5"); a("v_lshl_add_u32 v6, v4, 3, v6")
    a("v_bfe_u32 v7, v5, 1, 1"); a("v_lshl_add_u32 v6, v7, 5, v6")
    a("v_mul_u32_u24 v6, %d, v6" % XT_S)
    a("v_and_b32 v7, 1, v5"); a("v_lshl_add_u32 v6, v7, 3, v6")
    a("s_lshl_b32 s%d, s%d, 4" % (sOX, sWV))
    a("v_add_u32 v6, s%d, v6" % sOX)
    a("s_mul_i32 s%d, s%d, %d" % (sOX, sWV, 7 * 1152)); a("s_add_u32 s%d, s%d, %d" % (sOX, sOX, L_PC + 2048))
    a("v_and_b32 v31, 7, v5"); a("v_mul_u32_u24 v31, 144, v31"); a("v_lshl_add_u32 v31, v4, 4, v31")
    a("v_lshrrev_b32 v5, 3, v5"); a("v_lshl_add_u32 v31, v5, 6, v31"); a("v_add_u32 v31, s%d, v31" % sOX)
    a("v_mul_u32_u24 v8, 144, v2"); a("v_lshl_add_u32 v8, v3, 4, v8"); a("v_add_u32 v8, s%d, v8" % sOX)
    a("v_mul_u32_u24 v7, %d, v2" % XST); a("v_lshl_add_u32 v7, v3, 4, v7")
    a("s_lshl_b32 s%d, s%d, 7" % (sT2, sR)); a("s_add_u32 s%d, s%d, %d" % (sT2, sT2, WS_XNT))
    a("s_mul_i32 s%d, s%d, %d" % (sT1, sWV, 8 * XST)); a("s_add_u32 s%d, s%d, s%d" % (sT1, sT1, sT2))
    a("s_waitcnt lgkmcnt(0)")
    a("s_barrier")
    sp_("pbar")
    for i in range(7):
        a("ds_read_b64_tr_b16 %s, v6 offset:%d" % (vr(32 + 4 * i, 2), i * 128))
        a("ds_read_b64_tr_b16 %s, v6 offset:%d" % (vr(34 + 4 * i, 2), i * 128 + 4 * XT_S))
    for i in range(7):
        a("s_waitcnt lgkmcnt(%d)" % 12)
        a("ds_write_b128 v31, %s offset:%d" % (vr(32 + 4 * i, 4), i * 1152))
        a("ds_read_b128 %s, v8 offset:%d" % (vr(64 + 4 * i, 4), i * 1152))
    for i in range(7):
        a("s_waitcnt lgkmcnt(%d)" % (12 - 2 * i))
        a.vm("buffer_store_dwordx4 %s, v7, s[%d:%d], s%d offen sc1" % (vr(64 + 4 * i, 4), SWS, SWS + 3, sT1), "xst")
        if i < 6: a("s_add_u32 s%d, s%d, %d" % (sT1, sT1, 64 * XST))
    sp_("st")
    a("s_waitcnt vmcnt(0)")
    a("s_barrier")
    a("s_cmp_lg_u32 s%d, 1" % sWV)
    a("s_cbranch_scc1 K_END")
    a("s_mov_b64 exec, 0xff")
    a("buffer_store_dword v10, v28, s[%d:%d], 0 offen sc1" % (SWS, SWS + 3))
    a("s_mov_b64 exec, -1")
    sp_("flagB")
    sp_.store(100)
```

```python
import math, os, sys, struct
from asmlib import Asm
def fbits(x): return "0x%08x" % struct.unpack("<I", struct.pack("<f", x))[0]
LOG2E = math.log2(math.e)
def vr(b, n=1): return "v%d" % b if n == 1 else "v[%d:%d]" % (b, b + n - 1)
EXP = os.environ.get('EXP', '')
STAMP = int(os.environ.get("STAMP", "0"))
RT = os.environ.get("RT", "")
MAPB = int(os.environ.get("MAPB", "0"))
WS_H = 0; WS_XNT = 8 << 20; WS_KREV = 12 << 20; WS_KSC = 16 << 20
WS_HF = 17 << 20
WS_CF = (17 << 20) + (1 << 19)
WS_PF = 18 << 20
WS_FR = WS_PF + 131072
WS_FC = WS_FR + 8192
WS_RC = 19 << 20; WS_CS = (19 << 20) + 65536
WS_YAT = 20 << 20; WS_DBG = 24 << 20; WS_SIZE = 32 << 20
KSTRIDE = 4160
SPIN = 0x8000

def srd(a, d, p, nbytes):
    a("s_mov_b32 s%d, s%d" % (d, p))
    a("s_and_b32 s%d, s%d, 0xffff" % (d + 1, p + 1))
    a("s_mov_b32 s%d, 0x%x" % (d + 2, nbytes))
    a("s_mov_b32 s%d, 0x00020000" % (d + 3))

SX, SWG, SWU, SWS, SWD, SOUT, SDBG = 40, 44, 48, 52, 56, 60, 64
sWV, sR, sF, sWR, sWC, sRT2, sCT = 68, 69, 70, 71, 72, 73, 74
sLD = 75
sT0, sT1, sT2, sT3 = 76, 77, 78, 79
sOX, sOW, sWB, sCNT = 80, 81, 82, 83
sNON = 84
sPM = 86
sCH, sHF, sKW, sSC, sINV = 3, 4, 5, 6, 7
sONES, sCVB, sSTG = 38, 39, 36
STB = 88

class Stamps:
    def __init__(self, a, base=None):
        self.a = a; self.n = base.n if base else 0; self.names = list(base.names) if base else []; self.ffn = False
    def __call__(self, name):
        if not STAMP: return
        if RT == "1" and name not in ("start", "end"): return
        if "su" in EXP and self.n >= 11 and name != "end": return
        if "f2a" in EXP and not (name in ("start", "flag1", "hpoll") or (name[:2] == "s_" and int(name[2:]) < 9)) and self.ffn: return
        if "f2b" in EXP and not (name in ("start", "f2end", "end") or (name[:2] == "s_" and int(name[2:]) >= 5)) and self.ffn: return
        if name[:2] == "s_" and "f2" not in EXP: return
        if name[:2] == "l_" and "lp" not in EXP: return
        if "lp" in EXP and self.ffn and not (name[:2] == "l_" or name in ("start", "st0", "loopend", "gelu")): return
        assert self.n < 12, name
        self.a("%s s[100:101]" % ("s_memrealtime" if RT else "s_memtime"))
        self.a("s_waitcnt lgkmcnt(0)")
        self.a("s_mov_b32 s%d, s100" % (STB + self.n))
        self.n += 1; self.names.append(name)
    def store(self, vt):
        if not STAMP: return
        a = self.a
        a("s_lshl_b32 s100, s2, 4"); a("s_add_u32 s100, s100, s%d" % sWV); a("s_lshl_b32 s100, s100, 6")
        a("s_add_u32 s100, s100, %d" % WS_DBG)
        a("s_mov_b64 exec, 1")
        a("v_mov_b32 v%d, s100" % vt)
        for i in range(self.n):
            a("v_mov_b32 v%d, s%d" % (vt + 1, STB + i))
            a("buffer_store_dword v%d, v%d, s[%d:%d], 0 offen offset:%d" % (vt + 1, vt, SWS, SWS + 3, 4 * i))
            a("s_waitcnt vmcnt(0)")
        a("s_mov_b64 exec, -1")

ENV = lambda k, d: int(os.environ.get(k, str(d)))
L_W = 0
L_X = [65536, 98304 + 17408, 81920]
RING = 98304
STG_W = 4352; L_STG = RING
L_CV = RING + 4 * STG_W
CPS = 4160; O_U = 4 * CPS; CV_CH = O_U + 4608
L_SYNC = L_CV + 2 * CV_CH
L_FL = L_SYNC + 512
LDS = L_FL + 256
assert L_X[1] == L_CV and LDS <= 163840
Y_CNT = 0; Y_RDA = 8; Y_RDB = 9; Y_NON = 16; Y_KX = 24; Y_C0 = 28; Y_BL = 32; Y_CX = 36; Y_XR = 40; Y_YA = 44; Y_KEXP = 48; Y_RD = 64; Y_TR = 68; Y_WS = 72; Y_U = 76
NSTA = ENV('NSTA', 5)
WDS = [32768, 49152, 81920, 0, 16384, 65536]
CSM = 1792 * 8
sFW = 36; sHD = 37
FSH = ENV('FSH', 8)

def gen():
    a = Asm()
    lab = [0]
    def L(p): lab[0] += 1; return "%s_%d" % (p, lab[0])
    st_ = Stamps(a)
    def spin_lds(addr, tmp, need, width="u8", slp=1, off=0):
        l1, l2 = L("SP"), L("SD")
        a("s_mov_b32 s%d, %d" % (sCNT, SPIN))
        a.label(l1)
        a("ds_read_%s v%d, v%d offset:%d" % (width, tmp, addr, off))
        a("s_waitcnt lgkmcnt(0)")
        a("v_cmp_gt_u32 vcc, %d, v%d" % (need, tmp))
        a("s_cbranch_vccz %s" % l2)
        if slp: a("s_sleep %d" % slp)
        a("s_sub_u32 s%d, s%d, 1" % (sCNT, sCNT))
        a("s_cmp_lg_u32 s%d, 0" % sCNT)
        a("s_cbranch_scc1 %s" % l1)
        a.label(l2)

    a("s_cmp_ge_u32 s2, 256")
    a("s_cbranch_scc1 K_END")
    st_("start")
    a("s_load_dwordx16 s[16:31], s[0:1], 0")
    a("s_load_dwordx4 s[32:35], s[0:1], 80")
    a("s_load_dwordx8 s[8:15], s[0:1], 96")
    a("v_lshrrev_b32 v1, 6, v0")
    a("v_readfirstlane_b32 s%d, v1" % sWV)
    a("v_and_b32 v1, 63, v0")
    CPF = ENV("CPF", 8)
    if CPF:
        a("s_cmp_ge_u32 s2, %d" % CPF)
        a("s_cbranch_scc1 K_NPF")
        a.begin_opt()
        a("s_getpc_b64 s[4:5]")
        a.label("K_PFB")
        a("v_lshlrev_b32 v2, 7, v0")
        a("v_min_u32 v2, K_END-K_PFB, v2")
        a("global_load_dword v255, v2, s[4:5]")
        a.end_opt()
        a.label("K_NPF")
    a("s_cmp_lt_u32 s2, 32")
    a("s_cbranch_scc1 K_PROD")
    a("s_and_b32 s%d, s2, 7" % sT0)
    a("s_lshr_b32 s%d, s2, 3" % sT1)
    a("s_sub_u32 s%d, s%d, 4" % (sT1, sT1))
    a("s_lshr_b32 s%d, s%d, 1" % (sT2, sT0)); a("s_lshl_b32 s%d, s%d, 2" % (sT2, sT2))
    a("s_and_b32 s%d, s%d, 3" % (sT3, sT1)); a("s_add_u32 s%d, s%d, s%d" % (sR, sT2, sT3))
    a("s_and_b32 s%d, s%d, 1" % (sT2, sT0)); a("s_mul_i32 s%d, s%d, 7" % (sT2, sT2))
    a("s_lshr_b32 s%d, s%d, 2" % (sCT, sT1)); a("s_add_u32 s%d, s%d, s%d" % (sF, sT2, sCT))
    a("s_lshl_b32 s%d, s%d, 2" % (sRT2, sT0)); a("s_add_u32 s%d, s%d, s%d" % (sRT2, sRT2, sT3))
    a("s_cmp_ge_u32 s%d, 4" % sWV)
    a("s_cbranch_scc1 K_HELP")
    sf_ = Stamps(a, st_); sf_.ffn = True; sh_ = Stamps(a, st_); sp_ = Stamps(a, st_)
    NST = 14
    a("s_setprio %d" % ENV("FPRIO", 2))
    a("s_and_b32 s%d, s%d, 1" % (sWR, sWV))
    a("s_lshr_b32 s%d, s%d, 1" % (sWC, sWV))
    a("s_lshl_b32 s%d, s%d, 11" % (sWB, sWV))
    a("s_lshl_b32 s%d, s%d, 12" % (sOX, sWV))
    a("v_lshrrev_b32 v2, 3, v1")
    a("s_lshl_b32 s%d, s%d, 7" % (sT0, sR))
    a("s_lshl_b32 s%d, s%d, 5" % (sT1, sWV))
    a("s_add_u32 s%d, s%d, s%d" % (sT0, sT0, sT1))
    a("v_add_u32 v2, s%d, v2" % sT0)
    a("v_mul_u32_u24 v2, 896, v2")
    a("v_lshrrev_b32 v5, 4, v1")
    a("v_xor_b32 v6, v1, v5")
    a("v_and_b32 v6, 7, v6")
    a("v_xor_b32 v7, 4, v6")
    a("v_lshl_add_u32 v3, v7, 4, v2")
    a("v_add_u32 v3, %d, v3" % (8 * 896))
    a("v_lshl_add_u32 v2, v6, 4, v2")
    a("v_mul_u32_u24 v4, 3584, v5")
    a("v_lshlrev_b32 v6, 2, v5")
    a("v_xor_b32 v6, v1, v6")
    a("v_and_b32 v6, 15, v6")
    a("v_lshl_add_u32 v4, v6, 4, v4")
    a("s_lshl_b32 s%d, s%d, 8" % (sT0, sF))
    a("s_mul_i32 s%d, s%d, %d" % (sT1, sWV, 8 * 3584)); a("s_add_u32 s%d, s%d, s%d" % (sT0, sT0, sT1))
    a("v_add_u32 v4, s%d, v4" % sT0)
    a("s_lshl_b32 s%d, s%d, 2" % (sFW, sWV)); a("s_add_u32 s%d, s%d, %d" % (sFW, sFW, L_FL))
    ROT = ENV("ROT", 0); ROT1 = ENV("ROT1", 0); ROT2 = ENV("ROT2", 0)
    RJ = [3, 4, 5, 6, 7, 38, 39]
    a("s_lshl_b32 s%d, s%d, 1" % (sT0, sT3)); a("s_add_u32 s%d, s%d, s%d" % (sT0, sT0, sCT)); a("s_lshl_b32 s%d, s%d, 7" % (sT0, sT0))
    for i in range(7 if ROT or ROT1 else 1 if ROT2 else 0):
        a("s_sub_u32 s%d, s%d, 896" % (sT1, sT0)); a("s_cmp_ge_u32 s%d, 896" % sT0); a("s_cselect_b32 s%d, s%d, s%d" % (RJ[i], sT1, sT0))
        if i < 6: a("s_add_u32 s%d, s%d, 128" % (sT0, RJ[i]))
    a("s_waitcnt lgkmcnt(0)")
    VFL, VFA = 50, 51
    def dma_x(b):
        out = []
        for i in range(4):
            out.append(["s_add_u32 m0, s%d, %d" % (sOX, L_X[b % 3] + i * 1024),
                        ("s_add_u32 s%d, s%d, %d" % (sOW, RJ[b], (i >> 1) * 16 * 896)) if ROT1 else "s_movk_i32 s%d, %d" % (sOW, b * 128 + (i >> 1) * 16 * 896),
                        ("buffer_load_dwordx4 v%d, s[%d:%d], s%d offen lds" % (2 + (i & 1), SX, SX + 3, sOW), ("x", b))])
        return out
    def dma_w(st):
        out = []
        slot = st % 4
        for i in range(2):
            for mat in range(2):
                S = (SWG, SWU)[mat]
                g = []
                if ROT1:
                    g.append("s_mul_i32 s%d, s%d, 1792" % (sOW, RJ[st >> 1])); g.append("s_add_u32 s%d, s%d, %d" % (sOW, sOW, ((st & 1) * 32 + 4 * i) * 3584))
                else: g.append("s_mov_b32 s%d, %d" % (sOW, (st * 32 + 4 * i) * 3584))
                g.append("s_add_u32 m0, s%d, %d" % (sWB, L_W + slot * 16384 + mat * 8192 + i * 1024))
                g.append(("buffer_load_dwordx4 v4, s[%d:%d], s%d offen lds" % (S, S + 3, sOW), ("w", st)))
                out.append(g)
        return out
    def dflag(idx):
        return ["s_add_u32 m0, s%d, %d" % (sFW, 16 * idx), "s_mov_b64 exec, 1",
                ("global_load_lds_dword v%d, s[0:1]" % VFL, "fl"), "s_mov_b64 exec, -1"]
    def emit(g, a=a):
        for x in g:
            if callable(x): x()
            elif isinstance(x, tuple) and x[0].startswith("ds_"): a.ds(x[0], x[1])
            elif isinstance(x, tuple): a.vm(x[0], x[1])
            else: a(x)
    srd(a, SX, 16, 2048 * 896)
    for g in dma_x(0): emit(g)
    srd(a, SWG, 32, 448 * 3584)
    srd(a, SWU, 34, 448 * 3584)
    for g in dma_w(0): emit(g)
    a("s_cmp_lg_u32 s15, 0"); a("s_cselect_b32 s%d, 31, 30" % sT0); a("s_lshl_b32 s%d, s%d, 2" % (sT0, sT0)); a("v_mov_b32 v%d, s%d" % (VFL, sT0))
    a("s_barrier")
    emit(dflag(0))
    Q = []
    for k in range(1, 14):
        if k % 2 == 0: Q += [(max(0, k - 4), g) for g in dma_x(k // 2)]
        w_ = dma_w(k); w_[-1] = w_[-1] + dflag(k)
        Q += [(max(0, k - 3), g) for g in w_]
    NPRE = ENV("NPRE", 12)
    pend = [g for _, g in Q[:NPRE]]; Q = Q[NPRE:]
    a_real = a
    ILN = ENV("ILN", 4)
    class IL:
        def __init__(s_): s_.n = 0
        def __call__(s_, t):
            a_real(t); s_.n += 1
            if s_.n % ILN == 0 and pend: emit(pend.pop(0))
    a = IL()
    a("v_lshlrev_b32 v15, 2, v1")
    a("v_and_b32 v11, 3, v1"); a("v_lshlrev_b32 v%d, 2, v11" % VFA); a("v_add_u32 v11, %d, v11" % (L_SYNC + Y_CNT))
    a("v_add_u32 v%d, %d, v%d" % (VFA, L_FL, VFA))
    a("s_add_u32 s%d, s%d, %d" % (sT0, sWV, L_SYNC + Y_CNT)); a("v_mov_b32 v12, s%d" % sT0)
    a("v_add_u32 v13, %d, v15" % (L_SYNC + 128)); a("v_cmp_eq_u32 vcc, 0, v1"); a("v_cndmask_b32 v12, v13, v12, vcc")
    a("v_mov_b32 v10, %d" % (L_SYNC + Y_RDA))
    a("v_and_b32 v16, 31, v1")
    a("s_lshl_b32 s%d, s%d, 6" % (sT0, sWR))
    a("v_add_u32 v22, s%d, v16" % sT0)
    a("v_lshrrev_b32 v17, 5, v1")
    a("v_bfe_u32 v18, v1, 1, 3")
    a("v_xor_b32 v18, v17, v18")
    a("v_lshlrev_b32 v5, 7, v22")
    a("v_lshl_add_u32 v5, v18, 4, v5")
    a("v_add_u32 v5, 65536, v5")
    a("v_xor_b32 v6, 32, v5"); a("v_xor_b32 v7, 64, v5"); a("v_xor_b32 v8, 96, v5")
    a("v_bfe_u32 v19, v1, 2, 2")
    a("v_lshl_add_u32 v20, v17, 3, v19")
    a("v_lshlrev_b32 v9, 8, v20")
    a("v_bfe_u32 v20, v1, 4, 1"); a("v_lshlrev_b32 v20, 1, v20")
    a("v_bfe_u32 v21, v1, 1, 1"); a("v_add_u32 v20, v20, v21")
    a("s_lshl_b32 s%d, s%d, 3" % (sT0, sWC))
    a("v_add_u32 v20, s%d, v20" % sT0)
    a("v_lshlrev_b32 v21, 2, v19")
    a("v_xor_b32 v20, v20, v21")
    a("v_lshl_add_u32 v9, v20, 4, v9")
    a("v_and_b32 v21, 1, v1")
    a("v_lshl_add_u32 v9, v21, 3, v9")
    a("v_xor_b32 v0, 64, v9")
    srd(a, SWS, 14, WS_SIZE)
    srd(a, SWD, 8, 1792 * 896)
    srd(a, SOUT, 10, 2048 * 896)
    a("s_lshl_b32 s%d, s%d, 11" % (sT0, sR)); a("s_add_u32 s%d, s%d, %d" % (sT0, sT0, WS_RC))
    a("v_lshl_add_u32 v18, v22, 4, s%d" % sT0)
    a("s_lshl_b32 s%d, s%d, 10" % (sT0, sF)); a("s_lshl_b32 s%d, s%d, 9" % (sT1, sWC)); a("s_add_u32 s%d, s%d, s%d" % (sT0, sT0, sT1))
    a("s_add_u32 s%d, s%d, %d" % (sT0, sT0, WS_CS))
    a("v_lshl_add_u32 v19, v16, 3, s%d" % sT0)
    a("v_lshl_add_u32 v19, v17, 2, v19")
    a("s_lshl_b32 s%d, s%d, 1" % (sT0, sR))
    a("s_add_u32 s%d, s%d, s%d" % (sT0, sT0, sWR))
    a("s_lshl_b32 s%d, s%d, 1" % (sT1, sF))
    a("s_add_u32 s%d, s%d, s%d" % (sT1, sT1, sWC))
    a("s_lshl_b32 s%d, s%d, 8" % (sT2, sT0)); a("s_add_u32 s%d, s%d, %d" % (sT2, sT2, WS_FR)); a("v_mov_b32 v15, s%d" % sT2)
    a("s_lshl_b32 s%d, s%d, 8" % (sT2, sT1)); a("s_add_u32 s%d, s%d, %d" % (sT2, sT2, WS_FC)); a("v_writelane_b32 v15, s%d, 1" % sT2)
    a("s_mul_i32 s%d, s%d, 37" % (sT3, sT1)); a("s_lshr_b32 s%d, s%d, 8" % (sT3, sT3)); a("s_add_u32 s%d, s%d, s%d" % (sT3, sT3, sT1))
    a("s_lshl_b32 s%d, s%d, 1" % (sT1, sT1))
    a("s_lshl_b32 s%d, s%d, 5" % (sT2, sT0)); a("s_add_u32 s%d, s%d, s%d" % (sT2, sT2, sT3)); a("s_lshl_b32 s%d, s%d, %d" % (sT2, sT2, FSH))
    a("s_add_u32 s%d, s%d, %d" % (sT2, sT2, WS_HF))
    a("v_mov_b32 v21, s%d" % sT2)
    a("s_mul_i32 s%d, s%d, 56" % (sT0, sT0))
    a("s_add_u32 s%d, s%d, s%d" % (sT0, sT0, sT1))
    a("s_lshl_b32 s%d, s%d, 12" % (sT0, sT0))
    a("v_and_b32 v20, 15, v1")
    a("v_lshlrev_b32 v20, 4, v20")
    a("v_bfe_u32 v22, v1, 4, 1")
    a("v_lshl_add_u32 v20, v22, 10, v20")
    a("v_lshl_add_u32 v20, v17, 8, v20")
    a("v_add_u32 v20, s%d, v20" % sT0)
    a("s_mov_b32 s%d, 0" % sLD)
    CA_, CB_ = 32, 42
    for r in range(33, 50):
        if r not in (34, 36, 38, 42, 46): a("v_mov_b32 v%d, 0" % r)
    a("v_lshrrev_b32 v16, 3, v1")
    a("s_mul_i32 s%d, s%d, %d" % (sT0, sWV, 448 * 896))
    a("v_mul_u32_u24 v16, 896, v16")
    a("s_lshl_b32 s%d, s%d, 7" % (sT1, sCT)); a("s_add_u32 s%d, s%d, s%d" % (sT0, sT0, sT1))
    a("v_add_u32 v16, s%d, v16" % sT0)
    a("v_xor_b32 v17, v1, v22"); a("v_and_b32 v17, 7, v17")
    a("v_lshl_add_u32 v52, v17, 4, v16")
    a = a_real
    while pend: emit(pend.pop(0))
    ACC = lambda ff, mat, tt: 128 + 64 * ff + 32 * mat + 16 * tt
    FR = [80, 104]
    RC = [24, 28]
    NW = 6
    J = lambda s: 2 * (s % 7) + s // 7
    WDV = [52, 52]
    def dma_wd(s):
        if "now" in EXP and s >= 6: return []
        if "no12" in EXP and s >= 12: return []
        return [(["s_mul_i32 s%d, s%d, 448" % (sOW, RJ[s % 7]), "s_add_u32 s%d, s%d, %d" % (sOW, sOW, ((s // 7) * 32 + 8 * q) * 896)] if ROT and s < 7 else
                 ["s_mov_b32 s%d, %d" % (sOW, (J(s) * 32 + 8 * q) * 896)]) + [
                 "s_add_u32 m0, s%d, %d" % (sOX, WDS[s % NW] + q * 1024),
                 ("buffer_load_dwordx4 v%d, s[%d:%d], s%d offen lds" % (WDV[q & 1], SWD, SWD + 3, sOW), ("wd", s))] for q in range(4)]
    def rd_frags(st, kk):
        fb = FR[kk]
        slot = st % 4
        xo = L_X[(st >> 1) % 3] - 65536
        xa = 5 + 2 * (st & 1) + kk
        def wr(ff, mat):
            return [("ds_read_b64_tr_b16 %s, v%d offset:%d" % (vr(fb + 8 + 8 * ff + 4 * mat + 2 * half, 2), (9, 0)[ff], L_W + slot * 16384 + mat * 8192 + kk * 4096 + half * 1024), ("fr", st, kk, ff, mat)) for half in range(2)]
        xr = lambda tt: [("ds_read_b128 %s, v%d offset:%d" % (vr(fb + 4 * tt, 4), xa, xo + tt * 4096), ("fx", st, kk, tt))]
        return [xr(0) + wr(0, 0), xr(1), wr(0, 1), wr(1, 0), wr(1, 1)]
    def mfmas(kk, first=False):
        fb = FR[kk]
        return ["v_mfma_f32_32x32x16_bf16 %s, %s, %s, %s" % (vr(ACC(ff, mat, tt), 16), vr(fb + 8 + 8 * ff + 4 * mat, 4), vr(fb + 4 * tt, 4), "0" if first else vr(ACC(ff, mat, tt), 16))
                for ff in range(2) for mat in range(2) for tt in range(2)]
    def inter(st, kk, groups):
        for i, m in enumerate(mfmas(kk, st == 0 and kk == 0)):
            ff, mat, tt = i >> 2, (i >> 1) & 1, i & 1
            if i == 1: a.wait_ds(("fx", st, kk, 1))
            a.wait_ds(("fr", st, kk, ff, mat))
            a(m)
            for sl, g in groups:
                if sl == i: emit(g)
    def arrive(v, off=0):
        a("v_mov_b32 v13, %d" % v)
        a.ds("ds_write_b8 v12, v13 offset:%d" % off, "sig")
    deferred = []
    def check(v, kind):
        a("s_getpc_b64 s[20:21]")
        a("v_cmp_gt_u32 vcc, %d, v%d" % (v, 14 if kind == "F" else 16))
        a("s_cbranch_vccnz K_RT_%s" % kind)
    def retries():
        a("s_mov_b32 s18, %d" % (SPIN * 4))
        a("s_branch K_RTE")
        for kind in ("R", "F"):
            r = 14 if kind == "F" else 16
            a.label("K_RT_%s" % kind)
            a("ds_read_b32 v14, v%d" % VFA if kind == "F" else "ds_read_u8 v16, v11 offset:%d" % Y_RD)
            a("s_sub_i32 s18, s18, 1"); a("s_max_i32 s18, s18, 0")
            a("s_cmp_eq_u32 s18, 0"); a("s_cselect_b32 s19, 255, 0")
            a("s_waitcnt lgkmcnt(0)")
            a("v_or_b32 v%d, s19, v%d" % (r, r))
            a("s_setpc_b64 s[20:21]")
        a.label("K_RTE")
    def const_loads():
        for tt in range(2):
            a("buffer_load_dwordx4 %s, v18, s[%d:%d], 0 offen offset:%d" % (vr(RC[tt], 4), SWS, SWS + 3, tt * 512))
        a("s_movk_i32 s%d, %d" % (sT0, CSM))
        for ff in range(2):
            a("buffer_load_dword v%d, v19, s[%d:%d], 0 offen offset:%d" % (CA_ + 4 * ff, SWS, SWS + 3, ff * 256))
            a("buffer_load_dword v%d, v19, s[%d:%d], s%d offen offset:%d" % (CA_ + 4 * ff + 2, SWS, SWS + 3, sT0, ff * 256))
        a("s_mov_b32 s%d, 1" % sLD)
    def get_non():
        a.wait_ds("non")
        a("v_readfirstlane_b32 s%d, v22" % sNON); a("v_readfirstlane_b32 s%d, v23" % (sNON + 1))
    def pollA():
        a.vm("buffer_load_dword v17, v15, s[%d:%d], 0 offen sc1" % (SWS, SWS + 3), "pf")
    def try_const():
        l = L("CL"); lo = L("CLO")
        a.wait_vm("pf")
        a("v_cmp_ne_u32 vcc, s%d, v17" % sNON)
        a("s_cbranch_vccz %s" % lo)
        a.label(l)
        a.mark("cst")
        def slow():
            a.label(lo)
            a("s_cmp_eq_u32 s%d, 0" % (sNON + 1))
            a("s_cbranch_scc1 %s" % l)
            a("s_cmp_lg_u32 s%d, 0" % sLD)
            a("s_cbranch_scc1 %s" % l)
            const_loads()
            a("s_branch %s" % l)
        deferred.append(slow)
    PA = ENV("PA", 3)
    RS = [int(c) for c in os.environ.get("RS", "01245")]
    TP = [int(c) for c in os.environ.get("TP", "9,11").split(",")]
    EARLY = ENV("EARLY", 1)
    retries()
    a("v_mov_b32 v14, 0")
    check(1, "F")
    a.dsq = []
    sf_("st0")
    a("s_setprio %d" % ENV("LPRIO", 3))
    poll = ["v_add_u32 v%d, 16, v%d" % (VFA, VFA), ("ds_read_b32 v14, v%d" % VFA, "pA")]
    for g in rd_frags(0, 0): emit(g)
    DMX = ENV("DMX", 6)
    if EARLY: Q += [(11, g) for g in dma_wd(0)] + [(12, g) for g in dma_wd(1) + dma_wd(2)] + [(13, g) for g in dma_wd(3)]
    SD = []
    for st in range(NST):
        D = []
        while Q and Q[0][0] <= st and len(D) < (DMX if st else 8): D.append(Q.pop(0)[1])
        SD.append(D)
    assert not Q
    if ENV("VERB", 0): print("DMA per stage", [len(d) for d in SD])
    stageD = lambda st: SD[st]
    for st in range(NST):
        if st in (7,) and not NSTA: sf_("st%d" % st)
        if st in (1, 2, 3, 4, 6, 8, 10, 12): sf_("l_%d" % st)
        D = stageD(st)
        DS = [(int(x) // 8, int(x) % 8) for x in os.environ.get("DS", "4,6,9,11,13,15").split(",")] if len(D) <= 6 else [(0, 3), (0, 5), (0, 7), (1, 1), (1, 2), (1, 4), (1, 5), (1, 7)]
        if st == 0: DS = [(0, 0), (0, 2), (0, 4), (0, 6), (1, 1), (1, 3), (1, 5), (1, 7)]
        G = []
        G += [(RS[i], g) for i, g in enumerate(rd_frags(st, 1))]
        if st + 1 in TP: G.append((5, [("ds_read_b64 v[22:23], v10 offset:%d" % (Y_NON - Y_RDA), "non")]))
        if st - 2 in TP: G.append((0, [try_const]))
        if st in TP: G.append((1, [get_non, pollA]))
        if D and st: G.append((ENV("RCK", 3), [lambda: a.wait_ds("pR"), lambda st=st: check(st, "R")]))
        G += [(DS[i][1], g) for i, g in enumerate(D) if DS[i][0] == 0]
        if st + 1 < NST: G.append((PA, poll))
        if ENV("ARS", 5) < 8: G.append((ENV("ARS", 5), [lambda st=st: arrive(st + 1, Y_RD)]))
        inter(st, 0, G)
        G = []
        if st + 1 < NST:
            G.append((0, [lambda: a.wait_ds("pA"), lambda: check(1, "F")]))
            G += [(RS[i], g) for i, g in enumerate(rd_frags(st + 1, 0))]
        if ENV("ARS", 5) >= 8: G.append((ENV("ARS", 5) - 8, [lambda st=st: arrive(st + 1, Y_RD)]))
        G += [(DS[i][1], g) for i, g in enumerate(D) if DS[i][0] == 1]
        if st + 1 == NST or stageD(st + 1): G.append((ENV("PRS", 7), [("ds_read_u8 v16, v11 offset:%d" % Y_RD, "pR")]))
        inter(st, 1, G)
    sf_("loopend")
    a("s_setprio %d" % ENV("GPRIO", 1))
    l = L("CL"); lo = L("CLO"); l1 = L("CLP"); l2 = L("CLP")
    a("s_cmp_eq_u32 s%d, 0" % sLD)
    a("s_cbranch_scc1 %s" % lo)
    a.wait_vm("cst")
    a.label(l)
    def slow(l=l, lo=lo):
        a.label(lo)
        a("s_mov_b32 s%d, %d" % (sCNT, SPIN))
        a.label(l1)
        a("ds_read_b64 v[22:23], v10 offset:%d" % (Y_NON - Y_RDA))
        a("buffer_load_dword v17, v15, s[%d:%d], 0 offen sc1" % (SWS, SWS + 3))
        a("s_waitcnt vmcnt(0) lgkmcnt(0)")
        a("v_readfirstlane_b32 s%d, v22" % sNON); a("v_readfirstlane_b32 s%d, v23" % (sNON + 1))
        a("v_cmp_ne_u32 vcc, s%d, v17" % sNON)
        a("s_cmp_eq_u32 s%d, 0" % (sNON + 1))
        a("s_cselect_b64 s[%d:%d], -1, vcc" % (sT0, sT0 + 1))
        a("s_cmp_eq_u64 s[%d:%d], 0" % (sT0, sT0 + 1))
        a("s_cbranch_scc1 %s" % l2)
        a("s_sleep 2")
        a("s_sub_u32 s%d, s%d, 1" % (sCNT, sCNT)); a("s_cmp_lg_u32 s%d, 0" % sCNT)
        a("s_cbranch_scc1 %s" % l1)
        a.label(l2)
        const_loads()
        a("s_waitcnt vmcnt(0)")
        a("s_branch %s" % l)
    deferred.append(slow)
    for tt in range(2): a("v_mov_b32 v%d, v%d" % (CB_ + 4 * tt, RC[tt]))
    corr = ["v_mfma_f32_32x32x16_bf16 %s, %s, %s, %s" % (vr(ACC(ff, mat, tt), 16), vr(CA_ + 4 * ff + 2 * mat, 4), vr(CB_ + 4 * tt, 4), vr(ACC(ff, mat, tt), 16))
            for ff in range(2) for tt in range(2) for mat in range(2)]
    a(corr[0]); a(corr[1])
    a("v_mov_b32 v2, v52"); WDV = [2, 2]
    a("s_lshl_b32 s%d, s%d, 2" % (sT0, sRT2)); a("s_add_u32 s%d, s%d, s%d" % (sT0, sT0, sWV)); a("s_lshl_b32 s%d, s%d, %d" % (sT0, sT0, FSH + 3))
    a("s_add_u32 s%d, s%d, %d" % (sT0, sT0, WS_HF))
    a("v_lshrrev_b32 v8, 1, v1"); a("v_lshlrev_b32 v8, %d, v8" % FSH); a("v_and_b32 v14, 1, v1"); a("v_lshl_add_u32 v8, v14, 2, v8")
    a("v_add_u32 v8, s%d, v8" % sT0)
    a(corr[2])
    TRB = [[4, 5], [6, 7]]
    a("v_bfe_u32 v13, v1, 2, 2"); a("v_lshrrev_b32 v14, 4, v1")
    a("v_lshl_add_u32 v13, v14, 3, v13")
    a("v_lshlrev_b32 v13, 7, v13")
    a("v_and_b32 v14, 3, v1")
    a("v_lshl_add_u32 v13, v14, 5, v13")
    a("v_bfe_u32 v14, v1, 3, 1")
    a("v_lshl_add_u32 v13, v14, 4, v13")
    a("v_add_u32 v4, s%d, v13" % sOX)
    a("v_xor_b32 v5, 16, v4")
    a("v_add_u32 v6, 65536, v4"); a("v_add_u32 v7, 65536, v5")
    a(corr[3])
    a("s_mov_b32 s%d, %d" % (sHD, 0x2aaa if "nogate" in EXP else 0))
    a.wait_ds("pR")
    check(14, "R")
    a.dsq = []
    sf_("stats")
    NV = ENV("NV", 6); NG = ENV("NG", 0)
    WBK = [80, 96, 32, 48, 160, 128, 176, 144]
    WB = {s: WBK[s] for s in range(NV)}
    def trw(s):
        a.wait_vm(("wd", s))
        hi = WDS[s % NW] >= 65536; of = WDS[s % NW] - 65536 * hi
        for ct in range(4):
            for hf in range(2):
                a.ds("ds_read_b64_tr_b16 %s, v%d offset:%d" % (vr(WB[s] + 4 * ct + 2 * hf, 2), TRB[hi][ct >> 1], of + hf * 512 + 8 * (ct & 1)), ("tw", s))
    HA = [9, 3, 0, 10]
    def hpoll(r=14, tag="hp"):
        a("s_mov_b64 exec, 0x3fff")
        a.vm("buffer_load_dword v%d, v8, s[%d:%d], 0 offen sc1" % (r, SWS, SWS + 3), tag)
        a("s_mov_b64 exec, -1")
    def flag(ff, trk=True):
        if trk: a.wait_vm(("hst", ff))
        a("s_mov_b64 exec, 1")
        t = "buffer_store_dword v22, v21, s[%d:%d], 0 offen offset:%d sc1" % (SWS, SWS + 3, ff * 4)
        if trk: a.vm(t, "hfl")
        else: a(t)
        a("s_mov_b64 exec, -1")
    GD = ENV("GD", 11); GP = 9
    ev = []
    def at(t, item): ev.append((t, len(ev), item))
    BT = 8 * GP
    for i in range(4, 8): at((i - 4) * 6 + 2, corr[i])
    def sched_dma(t, s, dt=5):
        for q, g in enumerate(dma_wd(s)): at(t + q * dt, lambda g=g: emit(g))
    if EARLY:
        sched_dma(0.1, 4); sched_dma(24.1, 5)
        TW = [float(x) for x in os.environ.get("TW", "0.7,1.4,2.1,2.8,3.5,4.2,5.0,5.7").split(",")]
    else:
        for s in range(6): sched_dma(s * BT + 0.1, s)
        TW = [float(x) for x in os.environ.get("TW", "3,4,5,6,7,8").split(",")]
    NGT = ENV("NGT", 0)
    for s in range(max(NG, NGT)):
        assert TW[s] * BT > [0, 0, 30, 30, 15 * GP + 4 * GD, 15 * GP + 8 * GD, 31 * GP + 4 * GD, 31 * GP + 8 * GD][s]
        at(TW[s] * BT, lambda s=s: trw(s))
        if s < NG:
            at(TW[s] * BT + 20, lambda s=s: a.wait_ds(("tw", s)))
            sched_dma(TW[s] * BT + 20.1, s + NW)
    at(float(os.environ.get("TF0", "7")) * BT - 0.5, lambda: flag(0))
    n = 0
    for ff in range(2):
        for tt in range(2):
            r0 = RC[tt]
            for qp in range(2):
                blk = n // 8
                HP = 112 + 4 * (blk & 3)
                for q2 in range(2):
                    q = 2 * qp + q2
                    for e in range(4):
                        g = ACC(ff, 0, tt) + 4 * q + e; u = ACC(ff, 1, tt) + 4 * q + e; T = 64 + (n & 15)
                        ops = [(0, "v_mul_f32 v%d, v%d, v%d" % (T, g, g)),
                        (1, "v_fma_f32 v%d, v%d, v%d, v%d" % (T, T, r0 + 2, r0 + 1)),
                        (2, "v_mul_f32 v%d, v%d, v%d" % (T, T, g)),
                        (3, "v_exp_f32 v%d, v%d" % (T, T)),
                        (4, "v_mul_f32 v%d, v%d, v%d" % (g, g, u)),
                        (5, "v_fma_f32 v%d, v%d, v%d, v%d" % (T, T, r0 + 3, r0 + 3)),
                        (6, "v_rcp_f32 v%d, v%d" % (T, T)),
                        (7, "v_mul_f32 v%d, v%d, v%d" % (g, g, T))]
                        if e & 1: ops.append((8, "v_cvt_pk_bf16_f32 v%d, v%d, v%d" % (HP + 2 * q2 + e // 2, g - 1, g)))
                        for k, o in ops: at(n * GP + k * GD, o)
                        n += 1
                t = (n - 1) * GP + 8 * GD
                at(t + 4, "v_permlane32_swap_b32 v%d, v%d" % (HP, HP + 2))
                at(t + 5, "v_permlane32_swap_b32 v%d, v%d" % (HP + 1, HP + 3))
                def st_h(HP=HP, ff=ff, tt=tt, qp=qp):
                    a("s_movk_i32 s%d, %d" % (sT0, ff * 4096))
                    a.vm("buffer_store_dwordx4 %s, v20, s[%d:%d], s%d offen offset:%d sc1" % (vr(HP, 4), SWS, SWS + 3, sT0, tt * 2048 + qp * 512), ("hst", ff))
                at(t + 8, st_h)
    for t, _, it in sorted(ev, key=lambda x: (x[0], x[1])):
        if callable(it): it()
        else: a(it)
    sf_("gelu")
    A2 = lambda ct, tt: 192 + 16 * ct + 4 * tt
    free = [64, 112] + WBK[NV:]
    HB = {}
    def ld_h(s, trk=True):
        if ENV("VERB", 0): print("ld_h", s, free)
        if s not in HB: HB[s] = free.pop(0)
        if ROT: a("s_lshl_b32 s%d, s%d, 6" % (sOW, RJ[s % 7])); a("s_add_u32 s%d, s%d, %d" % (sOW, sOW, WS_H + (s // 7) * 4096))
        else: a("s_mov_b32 s%d, %d" % (sOW, WS_H + J(s) * 4096))
        if "hsame" in EXP: a("s_mov_b32 s%d, 0" % sOW)
        for tt in range(4):
            t = "buffer_load_dwordx4 %s, v%d, s[%d:%d], s%d offen" % (vr(HB[s] + 4 * tt, 4), HA[tt], SWS, SWS + 3, sOW)
            if trk: a.vm(t, ("h", s, tt))
            else: a(t)
    def spin_h(mask, lj, r=14):
        lo = L("HS"); l1 = L("HS")
        def slow():
            a.label(lo)
            a("s_mov_b32 s%d, %d" % (sT3, SPIN))
            a.label(l1)
            a("s_mov_b64 exec, 0x3fff")
            a("buffer_load_dword v%d, v8, s[%d:%d], 0 offen sc1" % (r, SWS, SWS + 3))
            a("s_mov_b64 exec, -1")
            a("s_waitcnt vmcnt(0)")
            a("v_cmp_ne_u32 vcc, s%d, v%d" % (sNON, r))
            a("s_and_b32 s%d, vcc_lo, 0x%x" % (sT0, mask))
            a("s_cbranch_scc0 %s" % lj)
            a("s_sleep %d" % ENV("HSL", 3))
            a("s_sub_u32 s%d, s%d, 1" % (sT3, sT3)); a("s_cmp_lg_u32 s%d, 0" % sT3)
            a("s_cbranch_scc1 %s" % l1)
            a("s_branch %s" % lj)
        deferred.append(slow)
        return lo
    hpoll()
    for s in range(max(NG, NGT), NV): trw(s)
    a("s_mul_i32 s%d, s%d, 14" % (sT1, sWV))
    a("s_mul_i32 s%d, s%d, 56" % (sT0, sRT2))
    a("s_add_u32 s%d, s%d, s%d" % (sT0, sT0, sT1))
    a("s_lshl_b32 s%d, s%d, 12" % (sT0, sT0))
    for r in range(4):
        a("s_add_u32 s%d, s%d, %d" % (sT1, sWV, r)); a("s_and_b32 s%d, s%d, 3" % (sT1, sT1)); a("s_lshl_b32 s%d, s%d, 10" % (sT1, sT1))
        a("s_add_u32 s%d, s%d, s%d" % (sT1, sT1, sT0))
        a("v_lshl_add_u32 v%d, v1, 4, s%d" % (HA[r], sT1))
    a("v_and_b32 v17, 15, v1"); a("v_lshrrev_b32 v13, 4, v1")
    a("s_lshl_b32 s%d, s%d, 6" % (sT0, sRT2)); a("s_lshl_b32 s%d, s%d, 4" % (sT1, sWV)); a("s_add_u32 s%d, s%d, s%d" % (sT0, sT0, sT1))
    a("v_add_u32 v18, s%d, v17" % sT0)
    a("v_mul_u32_u24 v18, 896, v18")
    a("v_lshl_add_u32 v18, v13, 5, v18")
    a("s_lshl_b32 s%d, s%d, 7" % (sT0, sCT))
    a("v_add_u32 v18, s%d, v18" % sT0)
    a("v_mul_u32_u24 v16, %d, v13" % STG_W)
    a("v_lshrrev_b32 v13, 2, v17"); a("v_lshl_add_u32 v16, v13, 7, v16")
    a("v_and_b32 v13, 1, v17"); a("v_lshl_add_u32 v16, v13, 3, v16")
    a("v_bfe_u32 v13, v17, 1, 1"); a("v_lshl_add_u32 v16, v13, 6, v16")
    a("s_add_u32 s%d, s%d, %d" % (sT1, sT1, L_STG))
    a("v_add_u32 v16, s%d, v16" % sT1)
    a("v_lshl_add_u32 v19, v1, 4, s%d" % sOX)
    if NSTA: arrive(1, Y_TR)
    ND = 14 - NSTA
    wdq = [s + NW for s in range(NG, NV) if s + NW < ND]
    flag(1)
    sf_("flag1")
    a("s_waitcnt lgkmcnt(0)"); a.dsq = []
    a("s_setprio %d" % ENV("F2PRIO", 0))
    PREF = ENV("PREF", 3 if NSTA else 6)
    for s in wdq[:PREF]:
        for g in dma_wd(s): emit(g)
    wdq = wdq[PREF:]
    lj = L("HJ")
    a.wait_vm("hp")
    a("v_cmp_ne_u32 vcc, s%d, v14" % sNON)
    a("s_and_b32 s%d, vcc_lo, 0x1555" % sT0)
    lo = spin_h(0x1555, lj)
    a("s_cbranch_scc1 %s" % lo)
    a.label(lj)
    sf_("hpoll")
    NHM = ENV("NHM", 4)
    assert NSTA == 5 and NV == 6 and not wdq
    sRDY, sISS = sHD, sLD
    WTAB = 22; WOF = list(range(8, 15)); sHM = 16
    PR = [26, 28, 30]
    def dpoll(n):
        l = L("DP")
        a("s_cmp_eq_u32 s%d, 0x2aaa" % sRDY)
        a("s_cbranch_scc1 %s" % l)
        a("s_mov_b64 exec, 0x3fff")
        a("buffer_load_dword v%d, v8, s[%d:%d], 0 offen sc1" % (PR[n % 3], SWS, SWS + 3))
        a("s_mov_b64 exec, -1")
        a.label(l)
        a.mark(("hq", n))
    def deval(n):
        a.wait_vm(("hq", n))
        a("v_cmp_eq_u32 vcc, s%d, v%d" % (sNON, PR[n % 3]))
        a("s_and_b32 s%d, vcc_lo, 0x2aaa" % sT0)
        a("s_or_b32 s%d, s%d, s%d" % (sRDY, sRDY, sT0))
    def dslow():
        a.label("K_DS")
        a("s_mov_b64 exec, 0x3fff")
        a("buffer_load_dword v14, v8, s[%d:%d], 0 offen sc1" % (SWS, SWS + 3))
        a("s_mov_b64 exec, -1")
        a("s_sub_i32 s18, s18, 1"); a("s_max_i32 s18, s18, 0")
        a("s_cmp_eq_u32 s18, 0"); a("s_cselect_b32 s19, -1, 0")
        a("s_waitcnt vmcnt(0)")
        a("v_cmp_eq_u32 vcc, s%d, v14" % sNON)
        a("s_or_b32 s19, s19, vcc_lo")
        a("s_and_b32 s19, s19, 0x2aaa")
        a("s_or_b32 s%d, s%d, s19" % (sRDY, sRDY))
        a("s_setpc_b64 s[20:21]")
    deferred.append(dslow)
    sWL = 17
    def wslow():
        a.label("K_WS")
        a("ds_read_u8 v14, v15 offset:%d" % Y_WS)
        a("s_sub_i32 s18, s18, 1"); a("s_max_i32 s18, s18, 0")
        a("s_cmp_eq_u32 s18, 0"); a("s_cselect_b32 s19, 3, 0")
        a("s_waitcnt lgkmcnt(0)")
        a("v_readfirstlane_b32 s%d, v14" % sWL)
        a("s_sleep 1")
        a("s_or_b32 s%d, s%d, s19" % (sWL, sWL))
        a("s_setpc_b64 s[20:21]")
    deferred.append(wslow)
    def c_issue(s):
        HB[s] = free.pop(0)
        if s < 7: C = [["s_mov_b32 s%d, %d" % (sOW, WS_H + J(s) * 4096)]]
        else:
            C = [["s_getpc_b64 s[20:21]", "s_andn2_b32 s%d, s%d, s%d" % (sT0, sRDY, sISS), "s_cbranch_scc0 K_DS", "s_ff1_i32_b32 s%d, s%d" % (sT1, sT0)],
                 ["s_lshr_b32 m0, s%d, 1" % sT1, "s_lshl_b32 s%d, s%d, 12" % (sOW, sT1), "s_bitset1_b32 s%d, s%d" % (sISS, sT1), "s_movrels_b32 s%d, s%d" % (WOF[s - 7], WTAB)], []]
        for i, tt in enumerate((1, 2, 3, 0) if s == 13 else range(4)):
            ld = ("buffer_load_dwordx4 %s, v%d, s[%d:%d], s%d offen" % (vr(HB[s] + 4 * tt, 4), HA[tt], SWS, SWS + 3, sOW), ("h", s, tt))
            if "hsame" in EXP: C.append(["s_mov_b32 s%d, 0" % sOW, ld])
            elif "nold" in EXP and s >= 4: pass
            elif i == 0 or i % ENV("LB", 2): C[-1].append(ld)
            else: C.append([ld])
        return C
    def c_trw(s):
        WB[s] = free.pop(0)
        if s < 7:
            hi = WDS[s % NW] >= 65536; of = WDS[s % NW] - 65536 * hi
            C = [[lambda: a.wait_vm(("wd", s))]]
        else:
            hi = 1; of = 0
            C = [([lambda: a.wait_vm(("wd", 8))] if s == 7 else []) +
                 ["s_and_b32 s%d, s%d, 3" % (sT2, WOF[s - 7]), "s_getpc_b64 s[20:21]", "s_cmp_gt_u32 s%d, s%d" % (sT2, sWL), "s_cbranch_scc1 K_WS"],
                 ["s_sub_u32 s%d, s%d, s%d" % (WOF[s - 7], WOF[s - 7], sT2)] + ["v_add_u32 v%d, s%d, v%d" % (TRB[1][c2], WOF[s - 7], TRB[0][c2]) for c2 in range(2)], []]
        for ct in range(4):
            rd = [("ds_read_b64_tr_b16 %s, v%d offset:%d" % (vr(WB[s] + 4 * ct + 2 * hf, 2), TRB[hi][ct >> 1], of + hf * 512 + 8 * (ct & 1)), ("tw", s)) for hf in range(2)]
            if "notr" in EXP: continue
            if ct == 0: C[-1] += rd
            else: C.append(rd)
        return C
    nh = 0
    DP0 = ENV("DP0", 2)
    while free and nh < NHM:
        if nh == DP0: dpoll(0)
        for c in c_issue(nh): emit(c)
        nh += 1
    if DP0 >= NHM: dpoll(0)
    a("s_mov_b32 s%d, 0" % sISS)
    a("s_mov_b32 s18, %d" % (SPIN * 2)); a("s_mov_b32 s%d, %d" % (sWL, 3 if "nows" in EXP else 0))
    for k_ in range(5): a("s_mov_b32 s%d, %d" % (WTAB + k_, WDS[k_ + 1] + (k_ >= 2)))
    a("s_mul_i32 s%d, s%d, %d" % (sT0, sWC, CV_CH - 16384)); a("s_add_u32 s%d, s%d, s%d" % (sT0, sT0, sOX)); a("s_add_u32 s%d, s%d, %d" % (WTAB + 5, sT0, L_CV + 2))
    a("s_add_u32 s%d, s%d, 4096" % (WTAB + 6, WTAB + 5))
    a("s_add_u32 s%d, s%d, %d" % (sT0, sWV, L_SYNC)); a("v_mov_b32 v15, s%d" % sT0)
    nw = NV
    for r in range(1, 4):
        a("s_sub_u32 s%d, s%d, %d" % (sT1, sWV, r)); a("s_and_b32 s%d, s%d, 3" % (sT1, sT1)); a("s_lshl_b32 s%d, s%d, 12" % (sT1, sT1))
        a("v_lshl_add_u32 v%d, v1, 4, s%d" % (19 + r, sT1))
    PI = [int(x) for x in os.environ.get("PI", "-1,1,3,5").split(",")]
    PE = [int(x) for x in os.environ.get("PE", "2,4,6,8").split(",")]
    Q2 = []
    for s in range(14):
        a.wait_ds(("tw", s))
        gap = 0
        for tt in ((1, 2, 3, 0) if s == 13 else range(4)):
            a.wait_vm(("h", s, tt))
            for ct in range(4):
                a("v_mfma_f32_16x16x32_bf16 %s, %s, %s, %s" % (vr(A2(ct, tt), 4), vr(WB[s] + 4 * ct, 4), vr(HB[s] + 4 * tt, 4), "0" if s == 0 else vr(A2(ct, tt), 4)))
                gap += 1
                while Q2 and (len(Q2) > 16 - gap or gap == 16): emit(Q2.pop(0))
                if Q2: emit(Q2.pop(0))
                pr = {1: 0, 2: 1, 3: 2, 0: 3}[tt]
                if s == 13 and pr: a("ds_write_b128 v19, %s offset:%d" % (vr(A2(ct, pr), 4), (pr - 1) * 16384 + ct * 1024))
        sf_("s_%d" % s)
        if s == 5: sf_("s5")
        if s == 9: sf_("s9")
        free.append(HB[s]); free.append(WB[s])
        if s + 1 in PE: Q2.append([lambda n=PE.index(s + 1): deval(n)])
        if s + 1 in PI: Q2.append([lambda n=PI.index(s + 1): dpoll(n)])
        if nh < 14: Q2 += c_issue(nh); nh += 1
        if nw < 14 and nw <= s + ENV("TA", 2): Q2 += c_trw(nw); nw += 1
        assert nw > s + 2 or nw == 14
        if s == 8:
            Q2.append([("buffer_load_dwordx4 v[24:27], v18, s[%d:%d], 0 offen" % (SX, SX + 3), "x")])
            Q2.append([("buffer_load_dwordx4 v[28:31], v18, s[%d:%d], 0 offen offset:16" % (SX, SX + 3), "x")])
        if s == 12:
            XU, YR, R1, R2, R3 = [free.pop(0) for _ in range(5)]
            Q2.append([lambda: a.wait_vm("x")])
            for w in range(8):
                Q2.append(["v_lshlrev_b32 v%d, 16, v%d" % (XU + 2 * w, 24 + w), "v_and_b32 v%d, 0xffff0000, v%d" % (XU + 2 * w + 1, 24 + w)])
    arrive(17)
    a("ds_read_u8 v15, v11 offset:%d" % Y_YA)
    sf_("f2end")
    def ya_part():
        spin_lds(11, 15, 1, slp=1, off=Y_YA)
        for q in range(4): a("ds_read_b64_tr_b16 %s, v16 offset:%d" % (vr(YR + 2 * q, 2), q * 512))
        for w in range(8):
            if w % 2 == 0: a("s_waitcnt lgkmcnt(%d)" % (3 - w // 2))
            yw = YR + w; o = XU + 2 * w; t = YR + 8 + 2 * (w & 1)
            a("v_lshlrev_b32 v%d, 16, v%d" % (t, yw)); a("v_and_b32 v%d, 0xffff0000, v%d" % (t + 1, yw))
            a("v_add_f32 v%d, v%d, v%d" % (o, o, t)); a("v_add_f32 v%d, v%d, v%d" % (o + 1, o + 1, t + 1))
            a("v_cvt_pk_bf16_f32 v%d, v%d, v%d" % (o, o, o + 1))
            a("v_and_b32 v%d, 0xffff0000, v%d" % (o + 1, o)); a("v_lshlrev_b32 v%d, 16, v%d" % (o, o))
    def red_part():
        spin_lds(11, 15, 17, slp=0)
        for ct in range(4):
            for r, R in enumerate((R1, R2, R3)):
                a("ds_read_b128 %s, v%d offset:%d" % (vr(R + 4 * ct, 4), 20 + r, r * 16384 + ct * 1024))
        for ct in range(4):
            a("s_waitcnt lgkmcnt(%d)" % (9 - 3 * ct))
            for e in range(4):
                c = 4 * ct + e
                a("v_add_f32 v%d, v%d, v%d" % (R1 + c, R1 + c, A2(ct, 0) + e)); a("v_add_f32 v%d, v%d, v%d" % (R2 + c, R2 + c, R3 + c))
            for e in range(4):
                c = 4 * ct + e
                a("v_add_f32 v%d, v%d, v%d" % (R1 + c, R1 + c, R2 + c))
            for w in range(2):
                b = R1 + 4 * ct + 2 * w
                a("v_cvt_pk_bf16_f32 v%d, v%d, v%d" % (b, b, b + 1))
                a("v_and_b32 v%d, 0xffff0000, v%d" % (b + 1, b)); a("v_lshlrev_b32 v%d, 16, v%d" % (b, b))
    e1, e2 = L("EP"), L("EP")
    a("s_waitcnt lgkmcnt(0)")
    a("v_cmp_gt_u32 vcc, 1, v15")
    a("s_cbranch_vccnz %s" % e1)
    a.begin_opt()
    ya_part(); red_part()
    a("s_branch %s" % e2)
    a.end_opt()
    a.label(e1)
    a.begin_opt()
    red_part(); ya_part()
    a.end_opt()
    a.label(e2)
    sf_("ya")
    for hc in range(2):
        for w in range(4):
            b = R1 + 8 * hc + 2 * w; o = XU + 8 * hc + 2 * w
            a("v_add_f32 v%d, v%d, v%d" % (b, b, o)); a("v_add_f32 v%d, v%d, v%d" % (b + 1, b + 1, o + 1))
            a("v_cvt_pk_bf16_f32 v%d, v%d, v%d" % (R2 + 4 * hc + w, b, b + 1))
        a("buffer_store_dwordx4 %s, v18, s[%d:%d], 0 offen offset:%d" % (vr(R2 + 4 * hc, 4), SOUT, SOUT + 3, hc * 16) + " " + os.environ.get("OUTM", ""))
    sf_("end")
    sf_.store(24)
    a("s_endpgm")
    for f in deferred: f()

    import gen8h
    gen8h.helper(a, sh_, L, spin_lds)
    gen8h.producer(a, sp_, L, spin_lds)
    a.label("K_END")
    a("s_endpgm")
    if STAMP: print("ffn", sf_.names, "\nhelp", sh_.names, "\nprod", sp_.names)
    return a.finalize()

def wrap(kernels):
    out = []
    for name, grid, block, lds, body, nv in kernels:
        if len(kernels) > 1: out.append("; @launch kernel=%s grid=(%d,1,1) block=(%d,1,1) lds=%d" % (name, grid, block, lds))
        else: out.append("; @launch grid=(%d,1,1) block=(%d,1,1) lds=%d" % (grid, block, lds))
    out.append('.amdgcn_target "amdgcn-amd-amdhsa--gfx950"')
    out.append(".text")
    for name, grid, block, lds, body, nv in kernels:
        out += [".globl %s" % name, ".p2align 8", ".type %s,@function" % name, "%s:" % name, body]
    out.append('.section .rodata,"a"')
    for name, grid, block, lds, body, nv in kernels:
        out += [".p2align 6", ".amdhsa_kernel %s" % name,
                "  .amdhsa_next_free_vgpr %d" % nv, "  .amdhsa_next_free_sgpr 102", "  .amdhsa_accum_offset %d" % ((nv + 3) // 4 * 4),
                "  .amdhsa_group_segment_fixed_size 0", "  .amdhsa_kernarg_size 128", "  .amdhsa_user_sgpr_count 2",
                "  .amdhsa_user_sgpr_kernarg_segment_ptr 1", "  .amdhsa_system_sgpr_workgroup_id_x 1", ".end_amdhsa_kernel"]
    return "\n".join(out) + "\n"

if __name__ == "__main__":
    sys.modules["gen8"] = sys.modules["__main__"]
    NAME = "parallel_sum__ssm_conv_s4__glu_gated_geglu__prompt_kernel"
    ks = [(NAME, 256, 512, LDS, gen(), 256)]
    open(sys.argv[1] if len(sys.argv) > 1 else "k.s", "w").write(wrap(ks))
```

```python
import math, os, sys, struct
from asmlib import Asm
def fbits(x): return "0x%08x" % struct.unpack("<I", struct.pack("<f", x))[0]
LOG2E = math.log2(math.e)
def vr(b, n=1): return "v%d" % b if n == 1 else "v[%d:%d]" % (b, b + n - 1)
EXP = os.environ.get('EXP', '')
STAMP = int(os.environ.get("STAMP", "0"))
RT = os.environ.get("RT", "")
MAPB = int(os.environ.get("MAPB", "0"))
WS_H = 0; WS_XNT = 8 << 20; WS_KREV = 12 << 20; WS_KSC = 16 << 20
WS_HF = 17 << 20
WS_CF = (17 << 20) + (1 << 19)
WS_PF = 18 << 20
WS_FR = WS_PF + 131072
WS_FC = WS_FR + 8192
WS_RC = 19 << 20; WS_CS = (19 << 20) + 65536
WS_YAT = 20 << 20; WS_DBG = 24 << 20; WS_SIZE = 32 << 20
KSTRIDE = 4160
SPIN = 0x8000

def srd(a, d, p, nbytes):
    a("s_mov_b32 s%d, s%d" % (d, p))
    a("s_and_b32 s%d, s%d, 0xffff" % (d + 1, p + 1))
    a("s_mov_b32 s%d, 0x%x" % (d + 2, nbytes))
    a("s_mov_b32 s%d, 0x00020000" % (d + 3))

SX, SWG, SWU, SWS, SWD, SOUT, SDBG = 40, 44, 48, 52, 56, 60, 64
sWV, sR, sF, sWR, sWC, sRT2, sCT = 68, 69, 70, 71, 72, 73, 74
sLD = 75
sT0, sT1, sT2, sT3 = 76, 77, 78, 79
sOX, sOW, sWB, sCNT = 80, 81, 82, 83
sNON = 84
sPM = 86
sCH, sHF, sKW, sSC, sINV = 3, 4, 5, 6, 7
sONES, sCVB, sSTG = 38, 39, 36
STB = 88

class Stamps:
    def __init__(self, a, base=None):
        self.a = a; self.n = base.n if base else 0; self.names = list(base.names) if base else []; self.ffn = False
    def __call__(self, name):
        if not STAMP: return
        if RT == "1" and name not in ("start", "end"): return
        if "su" in EXP and self.n >= 11 and name != "end": return
        if "f2a" in EXP and not (name in ("start", "flag1", "hpoll") or (name[:2] == "s_" and int(name[2:]) < 9)) and self.ffn: return
        if "f2b" in EXP and not (name in ("start", "f2end", "end") or (name[:2] == "s_" and int(name[2:]) >= 5)) and self.ffn: return
        if name[:2] == "s_" and "f2" not in EXP: return
        if name[:2] == "l_" and "lp" not in EXP: return
        if "lp" in EXP and self.ffn and not (name[:2] == "l_" or name in ("start", "st0", "loopend", "gelu")): return
        assert self.n < 12, name
        self.a("%s s[100:101]" % ("s_memrealtime" if RT else "s_memtime"))
        self.a("s_waitcnt lgkmcnt(0)")
        self.a("s_mov_b32 s%d, s100" % (STB + self.n))
        self.n += 1; self.names.append(name)
    def store(self, vt):
        if not STAMP: return
        a = self.a
        a("s_lshl_b32 s100, s2, 4"); a("s_add_u32 s100, s100, s%d" % sWV); a("s_lshl_b32 s100, s100, 6")
        a("s_add_u32 s100, s100, %d" % WS_DBG)
        a("s_mov_b64 exec, 1")
        a("v_mov_b32 v%d, s100" % vt)
        for i in range(self.n):
            a("v_mov_b32 v%d, s%d" % (vt + 1, STB + i))
            a("buffer_store_dword v%d, v%d, s[%d:%d], 0 offen offset:%d" % (vt + 1, vt, SWS, SWS + 3, 4 * i))
            a("s_waitcnt vmcnt(0)")
        a("s_mov_b64 exec, -1")

ENV = lambda k, d: int(os.environ.get(k, str(d)))
L_W = 0
L_X = [65536, 98304 + 17408, 81920]
RING = 98304
STG_W = 4352; L_STG = RING
L_CV = RING + 4 * STG_W
CPS = 4160; O_U = 4 * CPS; CV_CH = O_U + 4608
L_SYNC = L_CV + 2 * CV_CH
L_FL = L_SYNC + 512
LDS = L_FL + 256
assert L_X[1] == L_CV and LDS <= 163840
Y_CNT = 0; Y_RDA = 8; Y_RDB = 9; Y_NON = 16; Y_KX = 24; Y_C0 = 28; Y_BL = 32; Y_CX = 36; Y_XR = 40; Y_YA = 44; Y_KEXP = 48; Y_RD = 64; Y_TR = 68; Y_WS = 72; Y_U = 76
NSTA = ENV('NSTA', 5)
WDS = [32768, 49152, 81920, 0, 16384, 65536]
CSM = 1792 * 8
sFW = 36; sHD = 37
FSH = ENV('FSH', 8)

def gen():
    a = Asm()
    lab = [0]
    def L(p): lab[0] += 1; return "%s_%d" % (p, lab[0])
    st_ = Stamps(a)
    def spin_lds(addr, tmp, need, width="u8", slp=1, off=0):
        l1, l2 = L("SP"), L("SD")
        a("s_mov_b32 s%d, %d" % (sCNT, SPIN))
        a.label(l1)
        a("ds_read_%s v%d, v%d offset:%d" % (width, tmp, addr, off))
        a("s_waitcnt lgkmcnt(0)")
        a("v_cmp_gt_u32 vcc, %d, v%d" % (need, tmp))
        a("s_cbranch_vccz %s" % l2)
        if slp: a("s_sleep %d" % slp)
        a("s_sub_u32 s%d, s%d, 1" % (sCNT, sCNT))
        a("s_cmp_lg_u32 s%d, 0" % sCNT)
        a("s_cbranch_scc1 %s" % l1)
        a.label(l2)

    a("s_cmp_ge_u32 s2, 256")
    a("s_cbranch_scc1 K_END")
    st_("start")
    a("s_load_dwordx16 s[16:31], s[0:1], 0")
    a("s_load_dwordx4 s[32:35], s[0:1], 80")
    a("s_load_dwordx8 s[8:15], s[0:1], 96")
    a("v_lshrrev_b32 v1, 6, v0")
    a("v_readfirstlane_b32 s%d, v1" % sWV)
    a("v_and_b32 v1, 63, v0")
    CPF = ENV("CPF", 8)
    if CPF:
        a("s_cmp_ge_u32 s2, %d" % CPF)
        a("s_cbranch_scc1 K_NPF")
        a.begin_opt()
        a("s_getpc_b64 s[4:5]")
        a.label("K_PFB")
        a("v_lshlrev_b32 v2, 7, v0")
        a("v_min_u32 v2, K_END-K_PFB, v2")
        a("global_load_dword v255, v2, s[4:5]")
        a.end_opt()
        a.label("K_NPF")
    a("s_cmp_lt_u32 s2, 32")
    a("s_cbranch_scc1 K_PROD")
    a("s_and_b32 s%d, s2, 7" % sT0)
    a("s_lshr_b32 s%d, s2, 3" % sT1)
    a("s_sub_u32 s%d, s%d, 4" % (sT1, sT1))
    a("s_lshr_b32 s%d, s%d, 1" % (sT2, sT0)); a("s_lshl_b32 s%d, s%d, 2" % (sT2, sT2))
    a("s_and_b32 s%d, s%d, 3" % (sT3, sT1)); a("s_add_u32 s%d, s%d, s%d" % (sR, sT2, sT3))
    a("s_and_b32 s%d, s%d, 1" % (sT2, sT0)); a("s_mul_i32 s%d, s%d, 7" % (sT2, sT2))
    a("s_lshr_b32 s%d, s%d, 2" % (sCT, sT1)); a("s_add_u32 s%d, s%d, s%d" % (sF, sT2, sCT))
    a("s_lshl_b32 s%d, s%d, 2" % (sRT2, sT0)); a("s_add_u32 s%d, s%d, s%d" % (sRT2, sRT2, sT3))
    a("s_cmp_ge_u32 s%d, 4" % sWV)
    a("s_cbranch_scc1 K_HELP")
    sf_ = Stamps(a, st_); sf_.ffn = True; sh_ = Stamps(a, st_); sp_ = Stamps(a, st_)
    NST = 14
    a("s_setprio %d" % ENV("FPRIO", 2))
    a("s_and_b32 s%d, s%d, 1" % (sWR, sWV))
    a("s_lshr_b32 s%d, s%d, 1" % (sWC, sWV))
    a("s_lshl_b32 s%d, s%d, 11" % (sWB, sWV))
    a("s_lshl_b32 s%d, s%d, 12" % (sOX, sWV))
    a("v_lshrrev_b32 v2, 3, v1")
    a("s_lshl_b32 s%d, s%d, 7" % (sT0, sR))
    a("s_lshl_b32 s%d, s%d, 5" % (sT1, sWV))
    a("s_add_u32 s%d, s%d, s%d" % (sT0, sT0, sT1))
    a("v_add_u32 v2, s%d, v2" % sT0)
    a("v_mul_u32_u24 v2, 896, v2")
    a("v_lshrrev_b32 v5, 4, v1")
    a("v_xor_b32 v6, v1, v5")
    a("v_and_b32 v6, 7, v6")
    a("v_xor_b32 v7, 4, v6")
    a("v_lshl_add_u32 v3, v7, 4, v2")
    a("v_add_u32 v3, %d, v3" % (8 * 896))
    a("v_lshl_add_u32 v2, v6, 4, v2")
    a("v_mul_u32_u24 v4, 3584, v5")
    a("v_lshlrev_b32 v6, 2, v5")
    a("v_xor_b32 v6, v1, v6")
    a("v_and_b32 v6, 15, v6")
    a("v_lshl_add_u32 v4, v6, 4, v4")
    a("s_lshl_b32 s%d, s%d, 8" % (sT0, sF))
    a("s_mul_i32 s%d, s%d, %d" % (sT1, sWV, 8 * 3584)); a("s_add_u32 s%d, s%d, s%d" % (sT0, sT0, sT1))
    a("v_add_u32 v4, s%d, v4" % sT0)
    a("s_lshl_b32 s%d, s%d, 2" % (sFW, sWV)); a("s_add_u32 s%d, s%d, %d" % (sFW, sFW, L_FL))
    ROT = ENV("ROT", 0); ROT1 = ENV("ROT1", 0); ROT2 = ENV("ROT2", 0)
    RJ = [3, 4, 5, 6, 7, 38, 39]
    a("s_lshl_b32 s%d, s%d, 1" % (sT0, sT3)); a("s_add_u32 s%d, s%d, s%d" % (sT0, sT0, sCT)); a("s_lshl_b32 s%d, s%d, 7" % (sT0, sT0))
    for i in range(7 if ROT or ROT1 else 1 if ROT2 else 0):
        a("s_sub_u32 s%d, s%d, 896" % (sT1, sT0)); a("s_cmp_ge_u32 s%d, 896" % sT0); a("s_cselect_b32 s%d, s%d, s%d" % (RJ[i], sT1, sT0))
        if i < 6: a("s_add_u32 s%d, s%d, 128" % (sT0, RJ[i]))
    a("s_waitcnt lgkmcnt(0)")
    VFL, VFA = 50, 51
    def dma_x(b):
        out = []
        for i in range(4):
            out.append(["s_add_u32 m0, s%d, %d" % (sOX, L_X[b % 3] + i * 1024),
                        ("s_add_u32 s%d, s%d, %d" % (sOW, RJ[b], (i >> 1) * 16 * 896)) if ROT1 else "s_movk_i32 s%d, %d" % (sOW, b * 128 + (i >> 1) * 16 * 896),
                        ("buffer_load_dwordx4 v%d, s[%d:%d], s%d offen lds" % (2 + (i & 1), SX, SX + 3, sOW), ("x", b))])
        return out
    def dma_w(st):
        out = []
        slot = st % 4
        for i in range(2):
            for mat in range(2):
                S = (SWG, SWU)[mat]
                g = []
                if ROT1:
                    g.append("s_mul_i32 s%d, s%d, 1792" % (sOW, RJ[st >> 1])); g.append("s_add_u32 s%d, s%d, %d" % (sOW, sOW, ((st & 1) * 32 + 4 * i) * 3584))
                else: g.append("s_mov_b32 s%d, %d" % (sOW, (st * 32 + 4 * i) * 3584))
                g.append("s_add_u32 m0, s%d, %d" % (sWB, L_W + slot * 16384 + mat * 8192 + i * 1024))
                g.append(("buffer_load_dwordx4 v4, s[%d:%d], s%d offen lds" % (S, S + 3, sOW), ("w", st)))
                out.append(g)
        return out
    def dflag(idx):
        return ["s_add_u32 m0, s%d, %d" % (sFW, 16 * idx), "s_mov_b64 exec, 1",
                ("global_load_lds_dword v%d, s[0:1]" % VFL, "fl"), "s_mov_b64 exec, -1"]
    def emit(g, a=a):
        for x in g:
            if callable(x): x()
            elif isinstance(x, tuple) and x[0].startswith("ds_"): a.ds(x[0], x[1])
            elif isinstance(x, tuple): a.vm(x[0], x[1])
            else: a(x)
    srd(a, SX, 16, 2048 * 896)
    for g in dma_x(0): emit(g)
    srd(a, SWG, 32, 448 * 3584)
    srd(a, SWU, 34, 448 * 3584)
    for g in dma_w(0): emit(g)
    a("s_cmp_lg_u32 s15, 0"); a("s_cselect_b32 s%d, 31, 30" % sT0); a("s_lshl_b32 s%d, s%d, 2" % (sT0, sT0)); a("v_mov_b32 v%d, s%d" % (VFL, sT0))
    a("s_barrier")
    emit(dflag(0))
    Q = []
    for k in range(1, 14):
        if k % 2 == 0: Q += [(max(0, k - 4), g) for g in dma_x(k // 2)]
        w_ = dma_w(k); w_[-1] = w_[-1] + dflag(k)
        Q += [(max(0, k - 3), g) for g in w_]
    if "nodma" in EXP: Q = Q[:20] + [(r_, g[3:]) for r_, g in Q[20:] if len(g) > 3]
    if "halfdma" in EXP: Q = Q[:20] + [(r_, g) for i_, (r_, g) in enumerate(Q[20:]) if len(g) > 3 or (i_ & 1)]
    NPRE = ENV("NPRE", 12)
    pend = [g for _, g in Q[:NPRE]]; Q = Q[NPRE:]
    a_real = a
    ILN = ENV("ILN", 4)
    class IL:
        def __init__(s_): s_.n = 0
        def __call__(s_, t):
            a_real(t); s_.n += 1
            if s_.n % ILN == 0 and pend: emit(pend.pop(0))
    a = IL()
    a("v_lshlrev_b32 v15, 2, v1")
    a("v_and_b32 v11, 3, v1"); a("v_lshlrev_b32 v%d, 2, v11" % VFA); a("v_add_u32 v11, %d, v11" % (L_SYNC + Y_CNT))
    a("v_add_u32 v%d, %d, v%d" % (VFA, L_FL, VFA))
    a("s_add_u32 s%d, s%d, %d" % (sT0, sWV, L_SYNC + Y_CNT)); a("v_mov_b32 v12, s%d" % sT0)
    a("v_add_u32 v13, %d, v15" % (L_SYNC + 128)); a("v_cmp_eq_u32 vcc, 0, v1"); a("v_cndmask_b32 v12, v13, v12, vcc")
    a("v_mov_b32 v10, %d" % (L_SYNC + Y_RDA))
    a("v_and_b32 v16, 31, v1")
    a("s_lshl_b32 s%d, s%d, 6" % (sT0, sWR))
    a("v_add_u32 v22, s%d, v16" % sT0)
    a("v_lshrrev_b32 v17, 5, v1")
    a("v_bfe_u32 v18, v1, 1, 3")
    a("v_xor_b32 v18, v17, v18")
    a("v_lshlrev_b32 v5, 7, v22")
    a("v_lshl_add_u32 v5, v18, 4, v5")
    a("v_add_u32 v5, 65536, v5")
    a("v_xor_b32 v6, 32, v5"); a("v_xor_b32 v7, 64, v5"); a("v_xor_b32 v8, 96, v5")
    a("v_bfe_u32 v19, v1, 2, 2")
    a("v_lshl_add_u32 v20, v17, 3, v19")
    a("v_lshlrev_b32 v9, 8, v20")
    a("v_bfe_u32 v20, v1, 4, 1"); a("v_lshlrev_b32 v20, 1, v20")
    a("v_bfe_u32 v21, v1, 1, 1"); a("v_add_u32 v20, v20, v21")
    a("s_lshl_b32 s%d, s%d, 3" % (sT0, sWC))
    a("v_add_u32 v20, s%d, v20" % sT0)
    a("v_lshlrev_b32 v21, 2, v19")
    a("v_xor_b32 v20, v20, v21")
    a("v_lshl_add_u32 v9, v20, 4, v9")
    a("v_and_b32 v21, 1, v1")
    a("v_lshl_add_u32 v9, v21, 3, v9")
    a("v_xor_b32 v0, 64, v9")
    srd(a, SWS, 14, WS_SIZE)
    srd(a, SWD, 8, 1792 * 896)
    srd(a, SOUT, 10, 2048 * 896)
    a("s_lshl_b32 s%d, s%d, 11" % (sT0, sR)); a("s_add_u32 s%d, s%d, %d" % (sT0, sT0, WS_RC))
    a("v_lshl_add_u32 v18, v22, 4, s%d" % sT0)
    a("s_lshl_b32 s%d, s%d, 10" % (sT0, sF)); a("s_lshl_b32 s%d, s%d, 9" % (sT1, sWC)); a("s_add_u32 s%d, s%d, s%d" % (sT0, sT0, sT1))
    a("s_add_u32 s%d, s%d, %d" % (sT0, sT0, WS_CS))
    a("v_lshl_add_u32 v19, v16, 3, s%d" % sT0)
    a("v_lshl_add_u32 v19, v17, 2, v19")
    a("s_lshl_b32 s%d, s%d, 1" % (sT0, sR))
    a("s_add_u32 s%d, s%d, s%d" % (sT0, sT0, sWR))
    a("s_lshl_b32 s%d, s%d, 1" % (sT1, sF))
    a("s_add_u32 s%d, s%d, s%d" % (sT1, sT1, sWC))
    a("s_lshl_b32 s%d, s%d, 8" % (sT2, sT0)); a("s_add_u32 s%d, s%d, %d" % (sT2, sT2, WS_FR)); a("v_mov_b32 v15, s%d" % sT2)
    a("s_lshl_b32 s%d, s%d, 8" % (sT2, sT1)); a("s_add_u32 s%d, s%d, %d" % (sT2, sT2, WS_FC)); a("v_writelane_b32 v15, s%d, 1" % sT2)
    a("s_mul_i32 s%d, s%d, 37" % (sT3, sT1)); a("s_lshr_b32 s%d, s%d, 8" % (sT3, sT3)); a("s_add_u32 s%d, s%d, s%d" % (sT3, sT3, sT1))
    a("s_lshl_b32 s%d, s%d, 1" % (sT1, sT1))
    a("s_lshl_b32 s%d, s%d, 5" % (sT2, sT0)); a("s_add_u32 s%d, s%d, s%d" % (sT2, sT2, sT3)); a("s_lshl_b32 s%d, s%d, %d" % (sT2, sT2, FSH))
    a("s_add_u32 s%d, s%d, %d" % (sT2, sT2, WS_HF))
    a("v_mov_b32 v21, s%d" % sT2)
    a("s_mul_i32 s%d, s%d, 56" % (sT0, sT0))
    a("s_add_u32 s%d, s%d, s%d" % (sT0, sT0, sT1))
    a("s_lshl_b32 s%d, s%d, 12" % (sT0, sT0))
    a("v_and_b32 v20, 15, v1")
    a("v_lshlrev_b32 v20, 4, v20")
    a("v_bfe_u32 v22, v1, 4, 1")
    a("v_lshl_add_u32 v20, v22, 10, v20")
    a("v_lshl_add_u32 v20, v17, 8, v20")
    a("v_add_u32 v20, s%d, v20" % sT0)
    a("s_mov_b32 s%d, 0" % sLD)
    CA_, CB_ = 32, 42
    for r in range(33, 50):
        if r not in (34, 36, 38, 42, 46): a("v_mov_b32 v%d, 0" % r)
    a("v_lshrrev_b32 v16, 3, v1")
    a("s_mul_i32 s%d, s%d, %d" % (sT0, sWV, 448 * 896))
    a("v_mul_u32_u24 v16, 896, v16")
    a("s_lshl_b32 s%d, s%d, 7" % (sT1, sCT)); a("s_add_u32 s%d, s%d, s%d" % (sT0, sT0, sT1))
    a("v_add_u32 v16, s%d, v16" % sT0)
    a("v_xor_b32 v17, v1, v22"); a("v_and_b32 v17, 7, v17")
    a("v_lshl_add_u32 v52, v17, 4, v16")
    a = a_real
    while pend: emit(pend.pop(0))
    ACC = lambda ff, mat, tt: 128 + 64 * ff + 32 * mat + 16 * tt
    FR = [80, 104]
    RC = [24, 28]
    NW = 6
    J = lambda s: 2 * (s % 7) + s // 7
    WDV = [52, 52]
    def dma_wd(s):
        if "now" in EXP and s >= 6: return []
        if "no12" in EXP and s >= 12: return []
        return [(["s_mul_i32 s%d, s%d, 448" % (sOW, RJ[s % 7]), "s_add_u32 s%d, s%d, %d" % (sOW, sOW, ((s // 7) * 32 + 8 * q) * 896)] if ROT and s < 7 else
                 ["s_mov_b32 s%d, %d" % (sOW, (J(s) * 32 + 8 * q) * 896)]) + [
                 "s_add_u32 m0, s%d, %d" % (sOX, WDS[s % NW] + q * 1024),
                 ("buffer_load_dwordx4 v%d, s[%d:%d], s%d offen lds" % (WDV[q & 1], SWD, SWD + 3, sOW), ("wd", s))] for q in range(4)]
    def rd_frags(st, kk):
        fb = FR[kk]
        slot = st % 4
        xo = L_X[(st >> 1) % 3] - 65536
        xa = 5 + 2 * (st & 1) + kk
        def wr(ff, mat):
            return [("ds_read_b64_tr_b16 %s, v%d offset:%d" % (vr(fb + 8 + 8 * ff + 4 * mat + 2 * half, 2), (9, 0)[ff], L_W + slot * 16384 + mat * 8192 + kk * 4096 + half * 1024), ("fr", st, kk, ff, mat)) for half in range(2)]
        xr = lambda tt: [("ds_read_b128 %s, v%d offset:%d" % (vr(fb + 4 * tt, 4), xa, xo + tt * 4096), ("fx", st, kk, tt))]
        return [xr(0) + wr(0, 0), xr(1), wr(0, 1), wr(1, 0), wr(1, 1)]
    def mfmas(kk, first=False):
        fb = FR[kk]
        return ["v_mfma_f32_32x32x16_bf16 %s, %s, %s, %s" % (vr(ACC(ff, mat, tt), 16), vr(fb + 8 + 8 * ff + 4 * mat, 4), vr(fb + 4 * tt, 4), "0" if first else vr(ACC(ff, mat, tt), 16))
                for ff in range(2) for mat in range(2) for tt in range(2)]
    def inter(st, kk, groups):
        for i, m in enumerate(mfmas(kk, st == 0 and kk == 0)):
            ff, mat, tt = i >> 2, (i >> 1) & 1, i & 1
            if i == 1: a.wait_ds(("fx", st, kk, 1))
            a.wait_ds(("fr", st, kk, ff, mat))
            a(m)
            for sl, g in groups:
                if sl == i: emit(g)
    def arrive(v, off=0):
        a("v_mov_b32 v13, %d" % v)
        a.ds("ds_write_b8 v12, v13 offset:%d" % off, "sig")
    deferred = []
    chk0 = [0]
    def check(v, kind):
        if "nochk" in EXP and 1 < len(a.vmq) and v < 14 and chk0[0]: return
        chk0[0] = 1
        a("s_getpc_b64 s[20:21]")
        a("v_cmp_gt_u32 vcc, %d, v%d" % (v, 14 if kind == "F" else 16))
        a("s_cbranch_vccnz K_RT_%s" % kind)
    def retries():
        a("s_mov_b32 s18, %d" % (SPIN * 4))
        a("s_branch K_RTE")
        for kind in ("R", "F"):
            r = 14 if kind == "F" else 16
            a.label("K_RT_%s" % kind)
            a("ds_read_b32 v14, v%d" % VFA if kind == "F" else "ds_read_u8 v16, v11 offset:%d" % Y_RD)
            a("s_sub_i32 s18, s18, 1"); a("s_max_i32 s18, s18, 0")
            a("s_cmp_eq_u32 s18, 0"); a("s_cselect_b32 s19, 255, 0")
            a("s_waitcnt lgkmcnt(0)")
            a("v_or_b32 v%d, s19, v%d" % (r, r))
            a("s_setpc_b64 s[20:21]")
        a.label("K_RTE")
    def const_loads():
        for tt in range(2):
            a("buffer_load_dwordx4 %s, v18, s[%d:%d], 0 offen offset:%d" % (vr(RC[tt], 4), SWS, SWS + 3, tt * 512))
        a("s_movk_i32 s%d, %d" % (sT0, CSM))
        for ff in range(2):
            a("buffer_load_dword v%d, v19, s[%d:%d], 0 offen offset:%d" % (CA_ + 4 * ff, SWS, SWS + 3, ff * 256))
            a("buffer_load_dword v%d, v19, s[%d:%d], s%d offen offset:%d" % (CA_ + 4 * ff + 2, SWS, SWS + 3, sT0, ff * 256))
        a("s_mov_b32 s%d, 1" % sLD)
    def get_non():
        a.wait_ds("non")
        a("v_readfirstlane_b32 s%d, v22" % sNON); a("v_readfirstlane_b32 s%d, v23" % (sNON + 1))
    def pollA():
        a.vm("buffer_load_dword v17, v15, s[%d:%d], 0 offen sc1" % (SWS, SWS + 3), "pf")
    def try_const():
        l = L("CL"); lo = L("CLO")
        a.wait_vm("pf")
        a("v_cmp_ne_u32 vcc, s%d, v17" % sNON)
        a("s_cbranch_vccz %s" % lo)
        a.label(l)
        a.mark("cst")
        def slow():
            a.label(lo)
            a("s_cmp_eq_u32 s%d, 0" % (sNON + 1))
            a("s_cbranch_scc1 %s" % l)
            a("s_cmp_lg_u32 s%d, 0" % sLD)
            a("s_cbranch_scc1 %s" % l)
            const_loads()
            a("s_branch %s" % l)
        deferred.append(slow)
    PA = ENV("PA", 3)
    RS = [int(c) for c in os.environ.get("RS", "01245")]
    TP = [int(c) for c in os.environ.get("TP", "9,11").split(",")]
    EARLY = ENV("EARLY", 1)
    retries()
    a("v_mov_b32 v14, 0")
    check(1, "F")
    a.dsq = []
    sf_("st0")
    a("s_setprio %d" % ENV("LPRIO", 3))
    poll = ["v_add_u32 v%d, 16, v%d" % (VFA, VFA), ("ds_read_b32 v14, v%d" % VFA, "pA")]
    for g in rd_frags(0, 0): emit(g)
    DMX = ENV("DMX", 6)
    if EARLY: Q += [(11, g) for g in dma_wd(0)] + [(12, g) for g in dma_wd(1) + dma_wd(2)] + [(13, g) for g in dma_wd(3)]
    SD = []
    for st in range(NST):
        D = []
        while Q and Q[0][0] <= st and len(D) < (DMX if st else 8): D.append(Q.pop(0)[1])
        SD.append(D)
    assert not Q
    if ENV("VERB", 0): print("DMA per stage", [len(d) for d in SD])
    stageD = lambda st: SD[st]
    for st in range(NST):
        if st in (7,) and not NSTA: sf_("st%d" % st)
        if st in (1, 2, 3, 4, 6, 8, 10, 12): sf_("l_%d" % st)
        D = stageD(st)
        DS = [(int(x) // 8, int(x) % 8) for x in os.environ.get("DS", "4,6,9,11,13,15").split(",")] if len(D) <= 6 else [(0, 3), (0, 5), (0, 7), (1, 1), (1, 2), (1, 4), (1, 5), (1, 7)]
        if st == 0: DS = [(0, 0), (0, 2), (0, 4), (0, 6), (1, 1), (1, 3), (1, 5), (1, 7)]
        G = []
        G += [(RS[i], g) for i, g in enumerate(rd_frags(st, 1))]
        if st + 1 in TP: G.append((5, [("ds_read_b64 v[22:23], v10 offset:%d" % (Y_NON - Y_RDA), "non")]))
        if st - 2 in TP: G.append((0, [try_const]))
        if st in TP: G.append((1, [get_non, pollA]))
        if D and st: G.append((ENV("RCK", 3), [lambda: a.wait_ds("pR"), lambda st=st: check(st, "R")]))
        G += [(DS[i][1], g) for i, g in enumerate(D) if DS[i][0] == 0]
        if st + 1 < NST: G.append((PA, poll))
        if ENV("ARS", 5) < 8: G.append((ENV("ARS", 5), [lambda st=st: arrive(st + 1, Y_RD)]))
        inter(st, 0, G)
        G = []
        if st + 1 < NST:
            G.append((0, [lambda: a.wait_ds("pA"), lambda: check(1, "F")]))
            G += [(RS[i], g) for i, g in enumerate(rd_frags(st + 1, 0))]
        if ENV("ARS", 5) >= 8: G.append((ENV("ARS", 5) - 8, [lambda st=st: arrive(st + 1, Y_RD)]))
        G += [(DS[i][1], g) for i, g in enumerate(D) if DS[i][0] == 1]
        if st + 1 == NST or stageD(st + 1): G.append((ENV("PRS", 7), [("ds_read_u8 v16, v11 offset:%d" % Y_RD, "pR")]))
        inter(st, 1, G)
    sf_("loopend")
    a("s_setprio %d" % ENV("GPRIO", 1))
    l = L("CL"); lo = L("CLO"); l1 = L("CLP"); l2 = L("CLP")
    a("s_cmp_eq_u32 s%d, 0" % sLD)
    a("s_cbranch_scc1 %s" % lo)
    a.wait_vm("cst")
    a.label(l)
    def slow(l=l, lo=lo):
        a.label(lo)
        a("s_mov_b32 s%d, %d" % (sCNT, SPIN))
        a.label(l1)
        a("ds_read_b64 v[22:23], v10 offset:%d" % (Y_NON - Y_RDA))
        a("buffer_load_dword v17, v15, s[%d:%d], 0 offen sc1" % (SWS, SWS + 3))
        a("s_waitcnt vmcnt(0) lgkmcnt(0)")
        a("v_readfirstlane_b32 s%d, v22" % sNON); a("v_readfirstlane_b32 s%d, v23" % (sNON + 1))
        a("v_cmp_ne_u32 vcc, s%d, v17" % sNON)
        a("s_cmp_eq_u32 s%d, 0" % (sNON + 1))
        a("s_cselect_b64 s[%d:%d], -1, vcc" % (sT0, sT0 + 1))
        a("s_cmp_eq_u64 s[%d:%d], 0" % (sT0, sT0 + 1))
        a("s_cbranch_scc1 %s" % l2)
        a("s_sleep 2")
        a("s_sub_u32 s%d, s%d, 1" % (sCNT, sCNT)); a("s_cmp_lg_u32 s%d, 0" % sCNT)
        a("s_cbranch_scc1 %s" % l1)
        a.label(l2)
        const_loads()
        a("s_waitcnt vmcnt(0)")
        a("s_branch %s" % l)
    deferred.append(slow)
    for tt in range(2): a("v_mov_b32 v%d, v%d" % (CB_ + 4 * tt, RC[tt]))
    corr = ["v_mfma_f32_32x32x16_bf16 %s, %s, %s, %s" % (vr(ACC(ff, mat, tt), 16), vr(CA_ + 4 * ff + 2 * mat, 4), vr(CB_ + 4 * tt, 4), vr(ACC(ff, mat, tt), 16))
            for ff in range(2) for tt in range(2) for mat in range(2)]
    a(corr[0]); a(corr[1])
    a("v_mov_b32 v2, v52"); WDV = [2, 2]
    a("s_lshl_b32 s%d, s%d, 2" % (sT0, sRT2)); a("s_add_u32 s%d, s%d, s%d" % (sT0, sT0, sWV)); a("s_lshl_b32 s%d, s%d, %d" % (sT0, sT0, FSH + 3))
    a("s_add_u32 s%d, s%d, %d" % (sT0, sT0, WS_HF))
    a("v_lshrrev_b32 v8, 1, v1"); a("v_lshlrev_b32 v8, %d, v8" % FSH); a("v_and_b32 v14, 1, v1"); a("v_lshl_add_u32 v8, v14, 2, v8")
    a("v_add_u32 v8, s%d, v8" % sT0)
    a(corr[2])
    TRB = [[4, 5], [6, 7]]
    a("v_bfe_u32 v13, v1, 2, 2"); a("v_lshrrev_b32 v14, 4, v1")
    a("v_lshl_add_u32 v13, v14, 3, v13")
    a("v_lshlrev_b32 v13, 7, v13")
    a("v_and_b32 v14, 3, v1")
    a("v_lshl_add_u32 v13, v14, 5, v13")
    a("v_bfe_u32 v14, v1, 3, 1")
    a("v_lshl_add_u32 v13, v14, 4, v13")
    a("v_add_u32 v4, s%d, v13" % sOX)
    a("v_xor_b32 v5, 16, v4")
    a("v_add_u32 v6, 65536, v4"); a("v_add_u32 v7, 65536, v5")
    a(corr[3])
    a("s_mov_b32 s%d, %d" % (sHD, 0x2aaa if "nogate" in EXP else 0))
    a.wait_ds("pR")
    check(14, "R")
    a.dsq = []
    sf_("stats")
    NV = ENV("NV", 6); NG = ENV("NG", 0)
    WBK = [80, 96, 32, 48, 160, 128, 176, 144]
    WB = {s: WBK[s] for s in range(NV)}
    def trw(s):
        a.wait_vm(("wd", s))
        hi = WDS[s % NW] >= 65536; of = WDS[s % NW] - 65536 * hi
        for ct in range(4):
            for hf in range(2):
                a.ds("ds_read_b64_tr_b16 %s, v%d offset:%d" % (vr(WB[s] + 4 * ct + 2 * hf, 2), TRB[hi][ct >> 1], of + hf * 512 + 8 * (ct & 1)), ("tw", s))
    HA = [9, 3, 0, 10]
    def hpoll(r=14, tag="hp"):
        a("s_mov_b64 exec, 0x3fff")
        a.vm("buffer_load_dword v%d, v8, s[%d:%d], 0 offen sc1" % (r, SWS, SWS + 3), tag)
        a("s_mov_b64 exec, -1")
    def flag(ff, trk=True):
        if trk: a.wait_vm(("hst", ff))
        a("s_mov_b64 exec, 1")
        t = "buffer_store_dword v22, v21, s[%d:%d], 0 offen offset:%d sc1" % (SWS, SWS + 3, ff * 4)
        if trk: a.vm(t, "hfl")
        else: a(t)
        a("s_mov_b64 exec, -1")
    GD = ENV("GD", 11); GP = 9; PKG = ENV("PKG", 0)
    ev = []
    def at(t, item): ev.append((t, len(ev), item))
    BT = 8 * GP
    for i in range(4, 8): at((i - 4) * 6 + 2, corr[i])
    def sched_dma(t, s, dt=5):
        for q, g in enumerate(dma_wd(s)): at(t + q * dt, lambda g=g: emit(g))
    if EARLY:
        sched_dma(0.1, 4); sched_dma(24.1, 5)
        TW = [float(x) for x in os.environ.get("TW", "0.7,1.4,2.1,2.8,3.5,4.2,5.0,5.7").split(",")]
    else:
        for s in range(6): sched_dma(s * BT + 0.1, s)
        TW = [float(x) for x in os.environ.get("TW", "3,4,5,6,7,8").split(",")]
    NGT = ENV("NGT", 0)
    for s in range(max(NG, NGT)):
        assert TW[s] * BT > [0, 0, 30, 30, 15 * GP + 4 * GD, 15 * GP + 8 * GD, 31 * GP + 4 * GD, 31 * GP + 8 * GD][s]
        at(TW[s] * BT, lambda s=s: trw(s))
        if s < NG:
            at(TW[s] * BT + 20, lambda s=s: a.wait_ds(("tw", s)))
            sched_dma(TW[s] * BT + 20.1, s + NW)
    at(float(os.environ.get("TF0", "7")) * BT - 0.5, lambda: flag(0))
    n = 0
    for ff in range(2):
        for tt in range(2):
            r0 = RC[tt]
            for qp in range(2):
                blk = n // 8
                HP = 112 + 4 * (blk & 3)
                for q2 in range(2):
                    q = 2 * qp + q2
                    for e in range(4):
                        g = ACC(ff, 0, tt) + 4 * q + e; u = ACC(ff, 1, tt) + 4 * q + e; T = 64 + (n & 15)
                        if PKG:
                            P2 = lambda r: vr(r, 2)
                            ops = [(3, "v_exp_f32 v%d, v%d" % (T, T)), (6, "v_rcp_f32 v%d, v%d" % (T, T))]
                            if e & 1 == 0:
                                ops += [(0, "v_pk_mul_f32 %s, %s, %s" % (P2(T), P2(g), P2(g))),
                                        (1, "v_pk_fma_f32 %s, %s, %s, %s op_sel:[0,0,1] op_sel_hi:[1,0,1]" % (P2(T), P2(T), P2(r0 + 2), P2(r0))),
                                        (2, "v_pk_mul_f32 %s, %s, %s" % (P2(T), P2(T), P2(g))),
                                        (4, "v_pk_mul_f32 %s, %s, %s" % (P2(g), P2(g), P2(u)))]
                            else:
                                ops += [(4.5 - GP / GD, "v_pk_fma_f32 %s, %s, %s, %s op_sel:[0,1,1] op_sel_hi:[1,1,1]" % (P2(T - 1), P2(T - 1), P2(r0 + 2), P2(r0 + 2))),
                                        (7, "v_pk_mul_f32 %s, %s, %s" % (P2(g - 1), P2(g - 1), P2(T - 1))),
                                        (8, "v_cvt_pk_bf16_f32 v%d, v%d, v%d" % (HP + 2 * q2 + e // 2, g - 1, g))]
                                ops[2] = (4, ops[2][1])
                        else:
                            ops = [(0, "v_mul_f32 v%d, v%d, v%d" % (T, g, g)),
                            (1, "v_fma_f32 v%d, v%d, v%d, v%d" % (T, T, r0 + 2, r0 + 1)),
                            (2, "v_mul_f32 v%d, v%d, v%d" % (T, T, g)),
                            (3, "v_exp_f32 v%d, v%d" % (T, T)),
                            (4, "v_mul_f32 v%d, v%d, v%d" % (g, g, u)),
                            (5, "v_fma_f32 v%d, v%d, v%d, v%d" % (T, T, r0 + 3, r0 + 3)),
                            (6, "v_rcp_f32 v%d, v%d" % (T, T)),
                            (7, "v_mul_f32 v%d, v%d, v%d" % (g, g, T))]
                            if e & 1: ops.append((8, "v_cvt_pk_bf16_f32 v%d, v%d, v%d" % (HP + 2 * q2 + e // 2, g - 1, g)))
                        for k, o in ops: at(n * GP + k * GD, o)
                        n += 1
                t = (n - 1) * GP + 8 * GD
                at(t + 4, "v_permlane32_swap_b32 v%d, v%d" % (HP, HP + 2))
                at(t + 5, "v_permlane32_swap_b32 v%d, v%d" % (HP + 1, HP + 3))
                def st_h(HP=HP, ff=ff, tt=tt, qp=qp):
                    a("s_movk_i32 s%d, %d" % (sT0, ff * 4096))
                    a.vm("buffer_store_dwordx4 %s, v20, s[%d:%d], s%d offen offset:%d sc1" % (vr(HP, 4), SWS, SWS + 3, sT0, tt * 2048 + qp * 512), ("hst", ff))
                at(t + 8, st_h)
    for t, _, it in sorted(ev, key=lambda x: (x[0], x[1])):
        if callable(it): it()
        else: a(it)
    sf_("gelu")
    A2 = lambda ct, tt: 192 + 16 * ct + 4 * tt
    free = [64, 112] + WBK[NV:]
    HB = {}
    def ld_h(s, trk=True):
        if ENV("VERB", 0): print("ld_h", s, free)
        if s not in HB: HB[s] = free.pop(0)
        if ROT: a("s_lshl_b32 s%d, s%d, 6" % (sOW, RJ[s % 7])); a("s_add_u32 s%d, s%d, %d" % (sOW, sOW, WS_H + (s // 7) * 4096))
        else: a("s_mov_b32 s%d, %d" % (sOW, WS_H + J(s) * 4096))
        if "hsame" in EXP: a("s_mov_b32 s%d, 0" % sOW)
        for tt in range(4):
            t = "buffer_load_dwordx4 %s, v%d, s[%d:%d], s%d offen" % (vr(HB[s] + 4 * tt, 4), HA[tt], SWS, SWS + 3, sOW)
            if trk: a.vm(t, ("h", s, tt))
            else: a(t)
    def spin_h(mask, lj, r=14):
        lo = L("HS"); l1 = L("HS")
        def slow():
            a.label(lo)
            a("s_mov_b32 s%d, %d" % (sT3, SPIN))
            a.label(l1)
            a("s_mov_b64 exec, 0x3fff")
            a("buffer_load_dword v%d, v8, s[%d:%d], 0 offen sc1" % (r, SWS, SWS + 3))
            a("s_mov_b64 exec, -1")
            a("s_waitcnt vmcnt(0)")
            a("v_cmp_ne_u32 vcc, s%d, v%d" % (sNON, r))
            a("s_and_b32 s%d, vcc_lo, 0x%x" % (sT0, mask))
            a("s_cbranch_scc0 %s" % lj)
            a("s_sleep %d" % ENV("HSL", 3))
            a("s_sub_u32 s%d, s%d, 1" % (sT3, sT3)); a("s_cmp_lg_u32 s%d, 0" % sT3)
            a("s_cbranch_scc1 %s" % l1)
            a("s_branch %s" % lj)
        deferred.append(slow)
        return lo
    hpoll()
    for s in range(max(NG, NGT), NV): trw(s)
    a("s_mul_i32 s%d, s%d, 14" % (sT1, sWV))
    a("s_mul_i32 s%d, s%d, 56" % (sT0, sRT2))
    a("s_add_u32 s%d, s%d, s%d" % (sT0, sT0, sT1))
    a("s_lshl_b32 s%d, s%d, 12" % (sT0, sT0))
    for r in range(4):
        a("s_add_u32 s%d, s%d, %d" % (sT1, sWV, r)); a("s_and_b32 s%d, s%d, 3" % (sT1, sT1)); a("s_lshl_b32 s%d, s%d, 10" % (sT1, sT1))
        a("s_add_u32 s%d, s%d, s%d" % (sT1, sT1, sT0))
        a("v_lshl_add_u32 v%d, v1, 4, s%d" % (HA[r], sT1))
    a("v_and_b32 v17, 15, v1"); a("v_lshrrev_b32 v13, 4, v1")
    a("s_lshl_b32 s%d, s%d, 6" % (sT0, sRT2)); a("s_lshl_b32 s%d, s%d, 4" % (sT1, sWV)); a("s_add_u32 s%d, s%d, s%d" % (sT0, sT0, sT1))
    a("v_add_u32 v18, s%d, v17" % sT0)
    a("v_mul_u32_u24 v18, 896, v18")
    a("v_lshl_add_u32 v18, v13, 5, v18")
    a("s_lshl_b32 s%d, s%d, 7" % (sT0, sCT))
    a("v_add_u32 v18, s%d, v18" % sT0)
    a.vm("buffer_load_dwordx4 v[24:27], v18, s[%d:%d], 0 offen" % (SX, SX + 3), "x")
    a.vm("buffer_load_dwordx4 v[28:31], v18, s[%d:%d], 0 offen offset:16" % (SX, SX + 3), "x")
    a("v_mul_u32_u24 v16, %d, v13" % STG_W)
    a("v_lshrrev_b32 v13, 2, v17"); a("v_lshl_add_u32 v16, v13, 7, v16")
    a("v_and_b32 v13, 1, v17"); a("v_lshl_add_u32 v16, v13, 3, v16")
    a("v_bfe_u32 v13, v17, 1, 1"); a("v_lshl_add_u32 v16, v13, 6, v16")
    a("s_add_u32 s%d, s%d, %d" % (sT1, sT1, L_STG))
    a("v_add_u32 v16, s%d, v16" % sT1)
    a("v_lshl_add_u32 v19, v1, 4, s%d" % sOX)
    if NSTA: arrive(1, Y_TR)
    ND = 14 - NSTA
    wdq = [s + NW for s in range(NG, NV) if s + NW < ND]
    flag(1)
    sf_("flag1")
    a("s_waitcnt lgkmcnt(0)"); a.dsq = []
    a("s_setprio %d" % ENV("F2PRIO", 0))
    PREF = ENV("PREF", 3 if NSTA else 6)
    for s in wdq[:PREF]:
        for g in dma_wd(s): emit(g)
    wdq = wdq[PREF:]
    lj = L("HJ")
    a.wait_vm("hp")
    a("v_cmp_ne_u32 vcc, s%d, v14" % sNON)
    a("s_and_b32 s%d, vcc_lo, 0x1555" % sT0)
    lo = spin_h(0x1555, lj)
    a("s_cbranch_scc1 %s" % lo)
    a.label(lj)
    sf_("hpoll")
    NHM = ENV("NHM", 4)
    assert NSTA == 5 and NV == 6 and not wdq
    sRDY, sISS = sHD, sLD
    WTAB = 22; WOF = list(range(8, 15)); sHM = 16
    PR = [23, 17, 2]
    def dpoll(n):
        l = L("DP")
        a("s_cmp_eq_u32 s%d, 0x2aaa" % sRDY)
        a("s_cbranch_scc1 %s" % l)
        a("s_mov_b64 exec, 0x3fff")
        a("buffer_load_dword v%d, v8, s[%d:%d], 0 offen sc1" % (PR[n % 3], SWS, SWS + 3))
        a("s_mov_b64 exec, -1")
        a.label(l)
        a.mark(("hq", n))
    def deval(n):
        a.wait_vm(("hq", n))
        a("v_cmp_eq_u32 vcc, s%d, v%d" % (sNON, PR[n % 3]))
        a("s_and_b32 s%d, vcc_lo, 0x2aaa" % sT0)
        a("s_or_b32 s%d, s%d, s%d" % (sRDY, sRDY, sT0))
    def dslow():
        a.label("K_DS")
        a("s_mov_b64 exec, 0x3fff")
        a("buffer_load_dword v14, v8, s[%d:%d], 0 offen sc1" % (SWS, SWS + 3))
        a("s_mov_b64 exec, -1")
        a("s_sub_i32 s18, s18, 1"); a("s_max_i32 s18, s18, 0")
        a("s_cmp_eq_u32 s18, 0"); a("s_cselect_b32 s19, -1, 0")
        a("s_waitcnt vmcnt(0)")
        a("v_cmp_eq_u32 vcc, s%d, v14" % sNON)
        a("s_or_b32 s19, s19, vcc_lo")
        a("s_and_b32 s19, s19, 0x2aaa")
        a("s_or_b32 s%d, s%d, s19" % (sRDY, sRDY))
        a("s_setpc_b64 s[20:21]")
    deferred.append(dslow)
    sWL = 17
    def wslow():
        a.label("K_WS")
        a("ds_read_u8 v14, v15 offset:%d" % Y_WS)
        a("s_sub_i32 s18, s18, 1"); a("s_max_i32 s18, s18, 0")
        a("s_cmp_eq_u32 s18, 0"); a("s_cselect_b32 s19, 3, 0")
        a("s_waitcnt lgkmcnt(0)")
        a("v_readfirstlane_b32 s%d, v14" % sWL)
        a("s_sleep 1")
        a("s_or_b32 s%d, s%d, s19" % (sWL, sWL))
        a("s_setpc_b64 s[20:21]")
    deferred.append(wslow)
    def c_issue(s):
        HB[s] = free.pop(0)
        if s < 7: C = [["s_mov_b32 s%d, %d" % (sOW, WS_H + J(s) * 4096)]]
        else:
            C = [["s_getpc_b64 s[20:21]", "s_andn2_b32 s%d, s%d, s%d" % (sT0, sRDY, sISS), "s_cbranch_scc0 K_DS", "s_ff1_i32_b32 s%d, s%d" % (sT1, sT0)],
                 ["s_lshr_b32 m0, s%d, 1" % sT1, "s_lshl_b32 s%d, s%d, 12" % (sOW, sT1), "s_bitset1_b32 s%d, s%d" % (sISS, sT1), "s_movrels_b32 s%d, s%d" % (WOF[s - 7], WTAB)], []]
        for i, tt in enumerate((1, 2, 3, 0) if s == 13 else range(4)):
            ld = ("buffer_load_dwordx4 %s, v%d, s[%d:%d], s%d offen" % (vr(HB[s] + 4 * tt, 4), HA[tt], SWS, SWS + 3, sOW), ("h", s, tt))
            if "hsame" in EXP: C.append(["s_mov_b32 s%d, 0" % sOW, ld])
            elif "nold" in EXP and s >= 4: pass
            elif i == 0 or i % ENV("LB", 2): C[-1].append(ld)
            else: C.append([ld])
        return C
    def c_trw(s):
        WB[s] = free.pop(0)
        if s < 7:
            hi = WDS[s % NW] >= 65536; of = WDS[s % NW] - 65536 * hi
            C = [[lambda: a.wait_vm(("wd", s))]]
        else:
            hi = 1; of = 0
            C = [([lambda: a.wait_vm(("wd", 8))] if s == 7 else []) +
                 ["s_and_b32 s%d, s%d, 3" % (sT2, WOF[s - 7]), "s_getpc_b64 s[20:21]", "s_cmp_gt_u32 s%d, s%d" % (sT2, sWL), "s_cbranch_scc1 K_WS"],
                 ["s_sub_u32 s%d, s%d, s%d" % (WOF[s - 7], WOF[s - 7], sT2)] + ["v_add_u32 v%d, s%d, v%d" % (TRB[1][c2], WOF[s - 7], TRB[0][c2]) for c2 in range(2)], []]
        for ct in range(4):
            rd = [("ds_read_b64_tr_b16 %s, v%d offset:%d" % (vr(WB[s] + 4 * ct + 2 * hf, 2), TRB[hi][ct >> 1], of + hf * 512 + 8 * (ct & 1)), ("tw", s)) for hf in range(2)]
            if "notr" in EXP: continue
            if ct == 0: C[-1] += rd
            else: C.append(rd)
        return C
    nh = 0
    DP0 = ENV("DP0", 2)
    while free and nh < NHM:
        if nh == DP0: dpoll(0)
        for c in c_issue(nh): emit(c)
        nh += 1
    if DP0 >= NHM: dpoll(0)
    a("s_mov_b32 s%d, 0" % sISS)
    a("s_mov_b32 s18, %d" % (SPIN * 2)); a("s_mov_b32 s%d, %d" % (sWL, 3 if "nows" in EXP else 0))
    for k_ in range(5): a("s_mov_b32 s%d, %d" % (WTAB + k_, WDS[k_ + 1] + (k_ >= 2)))
    a("s_mul_i32 s%d, s%d, %d" % (sT0, sWC, CV_CH - 16384)); a("s_add_u32 s%d, s%d, s%d" % (sT0, sT0, sOX)); a("s_add_u32 s%d, s%d, %d" % (WTAB + 5, sT0, L_CV + 2))
    a("s_add_u32 s%d, s%d, 4096" % (WTAB + 6, WTAB + 5))
    a("s_add_u32 s%d, s%d, %d" % (sT0, sWV, L_SYNC)); a("v_mov_b32 v15, s%d" % sT0)
    nw = NV
    for r in range(1, 4):
        a("s_sub_u32 s%d, s%d, %d" % (sT1, sWV, r)); a("s_and_b32 s%d, s%d, 3" % (sT1, sT1)); a("s_lshl_b32 s%d, s%d, 12" % (sT1, sT1))
        a("v_lshl_add_u32 v%d, v1, 4, s%d" % (19 + r, sT1))
    PI = [int(x) for x in os.environ.get("PI", "-1,1,3,5").split(",")]
    PE = [int(x) for x in os.environ.get("PE", "2,4,6,8").split(",")]
    Q2 = []
    for s in range(14):
        a.wait_ds(("tw", s))
        gap = 0
        for tt in ((1, 2, 3, 0) if s == 13 else range(4)):
            a.wait_vm(("h", s, tt))
            for ct in range(4):
                a("v_mfma_f32_16x16x32_bf16 %s, %s, %s, %s" % (vr(A2(ct, tt), 4), vr(WB[s] + 4 * ct, 4), vr(HB[s] + 4 * tt, 4), "0" if s == 0 else vr(A2(ct, tt), 4)))
                gap += 1
                while Q2 and (len(Q2) > 16 - gap or gap == 16): emit(Q2.pop(0))
                if Q2: emit(Q2.pop(0))
                pr = {1: 0, 2: 1, 3: 2, 0: 3}[tt]
                if s == 13 and pr: a("ds_write_b128 v19, %s offset:%d" % (vr(A2(ct, pr), 4), (pr - 1) * 16384 + ct * 1024))
        sf_("s_%d" % s)
        if s == 5: sf_("s5")
        if s == 9: sf_("s9")
        free.append(HB[s]); free.append(WB[s])
        if s + 1 in PE: Q2.append([lambda n=PE.index(s + 1): deval(n)])
        if s + 1 in PI: Q2.append([lambda n=PI.index(s + 1): dpoll(n)])
        if nh < 14: Q2 += c_issue(nh); nh += 1
        if nw < 14 and nw <= s + ENV("TA", 2): Q2 += c_trw(nw); nw += 1
        assert nw > s + 2 or nw == 14
        if s == 12: R1, R2, R3 = [free.pop(0) for _ in range(3)]
        if s == 10:
            XU, YR = [free.pop(0) for _ in range(2)]
            Q2.append([lambda: a.wait_vm("x")])
            for w in range(8):
                Q2.append(["v_lshlrev_b32 v%d, 16, v%d" % (XU + 2 * w, 24 + w), "v_and_b32 v%d, 0xffff0000, v%d" % (XU + 2 * w + 1, 24 + w)])
    arrive(17)
    a("ds_read_u8 v15, v11 offset:%d" % Y_YA)
    sf_("f2end")
    def ya_part(spin=True):
        if spin: spin_lds(11, 15, 1, slp=1, off=Y_YA)
        for q in range(4): a("ds_read_b64_tr_b16 %s, v16 offset:%d" % (vr(YR + 2 * q, 2), q * 512))
        for w in range(8):
            if w % 2 == 0: a("s_waitcnt lgkmcnt(%d)" % (3 - w // 2))
            yw = YR + w; o = XU + 2 * w; t = YR + 8 + 2 * (w & 1)
            a("v_lshlrev_b32 v%d, 16, v%d" % (t, yw)); a("v_and_b32 v%d, 0xffff0000, v%d" % (t + 1, yw))
            a("v_add_f32 v%d, v%d, v%d" % (o, o, t)); a("v_add_f32 v%d, v%d, v%d" % (o + 1, o + 1, t + 1))
            a("v_cvt_pk_bf16_f32 v%d, v%d, v%d" % (o, o, o + 1))
            a("v_and_b32 v%d, 0xffff0000, v%d" % (o + 1, o)); a("v_lshlrev_b32 v%d, 16, v%d" % (o, o))
    def red_part():
        spin_lds(11, 15, 17, slp=0)
        for ct in range(4):
            for r, R in enumerate((R1, R2, R3)):
                a("ds_read_b128 %s, v%d offset:%d" % (vr(R + 4 * ct, 4), 20 + r, r * 16384 + ct * 1024))
        for ct in range(4):
            a("s_waitcnt lgkmcnt(%d)" % (9 - 3 * ct))
            for e in range(4):
                c = 4 * ct + e
                a("v_add_f32 v%d, v%d, v%d" % (R1 + c, R1 + c, A2(ct, 0) + e)); a("v_add_f32 v%d, v%d, v%d" % (R2 + c, R2 + c, R3 + c))
            for e in range(4):
                c = 4 * ct + e
                a("v_add_f32 v%d, v%d, v%d" % (R1 + c, R1 + c, R2 + c))
            for w in range(2):
                b = R1 + 4 * ct + 2 * w
                a("v_cvt_pk_bf16_f32 v%d, v%d, v%d" % (b, b, b + 1))
                a("v_and_b32 v%d, 0xffff0000, v%d" % (b + 1, b)); a("v_lshlrev_b32 v%d, 16, v%d" % (b, b))
    e1, e2 = L("EP"), L("EP")
    a("s_waitcnt lgkmcnt(0)")
    a("v_cmp_gt_u32 vcc, 1, v15")
    a("s_cbranch_vccnz %s" % e1)
    a.begin_opt()
    ya_part(False); red_part()
    a("s_branch %s" % e2)
    a.end_opt()
    a.label(e1)
    a.begin_opt()
    red_part(); ya_part()
    a.end_opt()
    a.label(e2)
    sf_("ya")
    for hc in range(2):
        for w in range(4):
            b = R1 + 8 * hc + 2 * w; o = XU + 8 * hc + 2 * w
            a("v_add_f32 v%d, v%d, v%d" % (b, b, o)); a("v_add_f32 v%d, v%d, v%d" % (b + 1, b + 1, o + 1))
            a("v_cvt_pk_bf16_f32 v%d, v%d, v%d" % (R2 + 4 * hc + w, b, b + 1))
        a("buffer_store_dwordx4 %s, v18, s[%d:%d], 0 offen offset:%d" % (vr(R2 + 4 * hc, 4), SOUT, SOUT + 3, hc * 16) + " " + os.environ.get("OUTM", ""))
    sf_("end")
    sf_.store(24)
    a("s_endpgm")
    for f in deferred: f()

    import gen8h
    gen8h.helper(a, sh_, L, spin_lds)
    gen8h.producer(a, sp_, L, spin_lds)
    a.label("K_END")
    a("s_endpgm")
    if STAMP: print("ffn", sf_.names, "\nhelp", sh_.names, "\nprod", sp_.names)
    return a.finalize()

def wrap(kernels):
    out = []
    for name, grid, block, lds, body, nv in kernels:
        if len(kernels) > 1: out.append("; @launch kernel=%s grid=(%d,1,1) block=(%d,1,1) lds=%d" % (name, grid, block, lds))
        else: out.append("; @launch grid=(%d,1,1) block=(%d,1,1) lds=%d" % (grid, block, lds))
    out.append('.amdgcn_target "amdgcn-amd-amdhsa--gfx950"')
    out.append(".text")
    for name, grid, block, lds, body, nv in kernels:
        out += [".globl %s" % name, ".p2align 8", ".type %s,@function" % name, "%s:" % name, body]
    out.append('.section .rodata,"a"')
    for name, grid, block, lds, body, nv in kernels:
        out += [".p2align 6", ".amdhsa_kernel %s" % name,
                "  .amdhsa_next_free_vgpr %d" % nv, "  .amdhsa_next_free_sgpr 102", "  .amdhsa_accum_offset %d" % ((nv + 3) // 4 * 4),
                "  .amdhsa_group_segment_fixed_size 0", "  .amdhsa_kernarg_size 128", "  .amdhsa_user_sgpr_count 2",
                "  .amdhsa_user_sgpr_kernarg_segment_ptr 1", "  .amdhsa_system_sgpr_workgroup_id_x 1", ".end_amdhsa_kernel"]
    return "\n".join(out) + "\n"

if __name__ == "__main__":
    sys.modules["gen8"] = sys.modules["__main__"]
    NAME = "parallel_sum__ssm_conv_s4__glu_gated_geglu__prompt_kernel"
    ks = [(NAME, 256, 512, LDS, gen(), 256)]
    open(sys.argv[1] if len(sys.argv) > 1 else "k.s", "w").write(wrap(ks))
```

```python
import math, os, sys, struct
from asmlib import Asm
def fbits(x): return "0x%08x" % struct.unpack("<I", struct.pack("<f", x))[0]
LOG2E = math.log2(math.e)
def vr(b, n=1): return "v%d" % b if n == 1 else "v[%d:%d]" % (b, b + n - 1)
EXP = os.environ.get('EXP', '')
STAMP = int(os.environ.get("STAMP", "0"))
RT = os.environ.get("RT", "")
MAPB = int(os.environ.get("MAPB", "0"))
WS_H = 0; WS_XNT = 8 << 20; WS_KREV = 12 << 20; WS_KSC = 16 << 20
WS_HF = 17 << 20
WS_CF = (17 << 20) + (1 << 19)
WS_PF = 18 << 20
WS_FR = WS_PF + 131072
WS_FC = WS_FR + 8192
WS_RC = 19 << 20; WS_CS = (19 << 20) + 65536
WS_YAT = 20 << 20; WS_DBG = 24 << 20; WS_SIZE = 32 << 20
KSTRIDE = 4160
SPIN = 0x8000

def srd(a, d, p, nbytes):
    a("s_mov_b32 s%d, s%d" % (d, p))
    a("s_and_b32 s%d, s%d, 0xffff" % (d + 1, p + 1))
    a("s_mov_b32 s%d, 0x%x" % (d + 2, nbytes))
    a("s_mov_b32 s%d, 0x00020000" % (d + 3))

SX, SWG, SWU, SWS, SWD, SOUT, SDBG = 40, 44, 48, 52, 56, 60, 64
sWV, sR, sF, sWR, sWC, sRT2, sCT = 68, 69, 70, 71, 72, 73, 74
sLD = 75
sT0, sT1, sT2, sT3 = 76, 77, 78, 79
sOX, sOW, sWB, sCNT = 80, 81, 82, 83
sNON = 84
sPM = 86
sCH, sHF, sKW, sSC, sINV = 3, 4, 5, 6, 7
sONES, sCVB, sSTG = 38, 39, 36
STB = 88

class Stamps:
    def __init__(self, a, base=None):
        self.a = a; self.n = base.n if base else 0; self.names = list(base.names) if base else []; self.ffn = False
    def __call__(self, name):
        if os.environ.get("MEAS") == name and self.ffn:
            self.a("s_memrealtime s[100:101]"); self.a("s_waitcnt lgkmcnt(0)"); self.a("s_mov_b32 s99, s100")
        if not STAMP: return
        if RT == "1" and name not in ("start", "end"): return
        if "su" in EXP and self.n >= 11 and name != "end": return
        if "f2a" in EXP and not (name in ("start", "flag1", "hpoll") or (name[:2] == "s_" and int(name[2:]) < 9)) and self.ffn: return
        if "f2b" in EXP and not (name in ("start", "f2end", "end") or (name[:2] == "s_" and int(name[2:]) >= 5)) and self.ffn: return
        if name[:2] == "s_" and "f2" not in EXP: return
        if name[:2] == "l_" and "lp" not in EXP: return
        if "lp" in EXP and self.ffn and not (name[:2] == "l_" or name in ("start", "st0", "loopend", "gelu")): return
        assert self.n < 12, name
        self.a("%s s[100:101]" % ("s_memrealtime" if RT else "s_memtime"))
        self.a("s_waitcnt lgkmcnt(0)")
        self.a("s_mov_b32 s%d, s100" % (STB + self.n))
        self.n += 1; self.names.append(name)
    def store(self, vt):
        if not STAMP: return
        a = self.a
        a("s_lshl_b32 s100, s2, 4"); a("s_add_u32 s100, s100, s%d" % sWV); a("s_lshl_b32 s100, s100, 6")
        a("s_add_u32 s100, s100, %d" % WS_DBG)
        a("s_mov_b64 exec, 1")
        a("v_mov_b32 v%d, s100" % vt)
        for i in range(self.n):
            a("v_mov_b32 v%d, s%d" % (vt + 1, STB + i))
            a("buffer_store_dword v%d, v%d, s[%d:%d], 0 offen offset:%d" % (vt + 1, vt, SWS, SWS + 3, 4 * i))
            a("s_waitcnt vmcnt(0)")
        a("s_mov_b64 exec, -1")

ENV = lambda k, d: int(os.environ.get(k, str(d)))
L_W = 0
L_X = [65536, 98304 + 17408, 81920]
RING = 98304
STG_W = 4352; L_STG = RING
L_CV = RING + 4 * STG_W
CPS = 4160; O_U = 4 * CPS; CV_CH = O_U + 4608
L_SYNC = L_CV + 2 * CV_CH
L_FL = L_SYNC + 512
LDS = L_FL + 256
assert L_X[1] == L_CV and LDS <= 163840
Y_CNT = 0; Y_RDA = 8; Y_RDB = 9; Y_NON = 16; Y_KX = 24; Y_C0 = 28; Y_BL = 32; Y_CX = 36; Y_XR = 40; Y_YA = 44; Y_KEXP = 48; Y_RD = 64; Y_TR = 68; Y_WS = 72; Y_U = 76
NSTA = ENV('NSTA', 5)
WDS = [32768, 49152, 81920, 0, 16384, 65536]
CSM = 1792 * 8
sFW = 36; sHD = 37
FSH = ENV('FSH', 8)

def gen():
    a = Asm()
    lab = [0]
    def L(p): lab[0] += 1; return "%s_%d" % (p, lab[0])
    st_ = Stamps(a)
    def spin_lds(addr, tmp, need, width="u8", slp=1, off=0):
        l1, l2 = L("SP"), L("SD")
        a("s_mov_b32 s%d, %d" % (sCNT, SPIN))
        a.label(l1)
        a("ds_read_%s v%d, v%d offset:%d" % (width, tmp, addr, off))
        a("s_waitcnt lgkmcnt(0)")
        a("v_cmp_gt_u32 vcc, %d, v%d" % (need, tmp))
        a("s_cbranch_vccz %s" % l2)
        if slp: a("s_sleep %d" % slp)
        a("s_sub_u32 s%d, s%d, 1" % (sCNT, sCNT))
        a("s_cmp_lg_u32 s%d, 0" % sCNT)
        a("s_cbranch_scc1 %s" % l1)
        a.label(l2)

    a("s_cmp_ge_u32 s2, 256")
    a("s_cbranch_scc1 K_END")
    st_("start")
    a("s_load_dwordx16 s[16:31], s[0:1], 0")
    a("s_load_dwordx4 s[32:35], s[0:1], 80")
    a("s_load_dwordx8 s[8:15], s[0:1], 96")
    a("v_lshrrev_b32 v1, 6, v0")
    a("v_readfirstlane_b32 s%d, v1" % sWV)
    a("v_and_b32 v1, 63, v0")
    CPF = ENV("CPF", 8)
    if CPF:
        a("s_cmp_ge_u32 s2, %d" % CPF)
        a("s_cbranch_scc1 K_NPF")
        a.begin_opt()
        a("s_getpc_b64 s[4:5]")
        a.label("K_PFB")
        a("v_lshlrev_b32 v2, 7, v0")
        a("v_min_u32 v2, K_END-K_PFB, v2")
        a("global_load_dword v255, v2, s[4:5]")
        a.end_opt()
        a.label("K_NPF")
    a("s_cmp_lt_u32 s2, 32")
    a("s_cbranch_scc1 K_PROD")
    a("s_and_b32 s%d, s2, 7" % sT0)
    a("s_lshr_b32 s%d, s2, 3" % sT1)
    a("s_sub_u32 s%d, s%d, 4" % (sT1, sT1))
    a("s_lshr_b32 s%d, s%d, 1" % (sT2, sT0)); a("s_lshl_b32 s%d, s%d, 2" % (sT2, sT2))
    a("s_and_b32 s%d, s%d, 3" % (sT3, sT1)); a("s_add_u32 s%d, s%d, s%d" % (sR, sT2, sT3))
    a("s_and_b32 s%d, s%d, 1" % (sT2, sT0)); a("s_mul_i32 s%d, s%d, 7" % (sT2, sT2))
    a("s_lshr_b32 s%d, s%d, 2" % (sCT, sT1)); a("s_add_u32 s%d, s%d, s%d" % (sF, sT2, sCT))
    a("s_lshl_b32 s%d, s%d, 2" % (sRT2, sT0)); a("s_add_u32 s%d, s%d, s%d" % (sRT2, sRT2, sT3))
    a("s_cmp_ge_u32 s%d, 4" % sWV)
    a("s_cbranch_scc1 K_HELP")
    sf_ = Stamps(a, st_); sf_.ffn = True; sh_ = Stamps(a, st_); sp_ = Stamps(a, st_)
    NST = 14
    a("s_setprio %d" % ENV("FPRIO", 2))
    a("s_and_b32 s%d, s%d, 1" % (sWR, sWV))
    a("s_lshr_b32 s%d, s%d, 1" % (sWC, sWV))
    a("s_lshl_b32 s%d, s%d, 11" % (sWB, sWV))
    a("s_lshl_b32 s%d, s%d, 12" % (sOX, sWV))
    a("v_lshrrev_b32 v2, 3, v1")
    a("s_lshl_b32 s%d, s%d, 7" % (sT0, sR))
    a("s_lshl_b32 s%d, s%d, 5" % (sT1, sWV))
    a("s_add_u32 s%d, s%d, s%d" % (sT0, sT0, sT1))
    a("v_add_u32 v2, s%d, v2" % sT0)
    a("v_mul_u32_u24 v2, 896, v2")
    a("v_lshrrev_b32 v5, 4, v1")
    a("v_xor_b32 v6, v1, v5")
    a("v_and_b32 v6, 7, v6")
    a("v_xor_b32 v7, 4, v6")
    a("v_lshl_add_u32 v3, v7, 4, v2")
    a("v_add_u32 v3, %d, v3" % (8 * 896))
    a("v_lshl_add_u32 v2, v6, 4, v2")
    a("v_mul_u32_u24 v4, 3584, v5")
    a("v_lshlrev_b32 v6, 2, v5")
    a("v_xor_b32 v6, v1, v6")
    a("v_and_b32 v6, 15, v6")
    a("v_lshl_add_u32 v4, v6, 4, v4")
    a("s_lshl_b32 s%d, s%d, 8" % (sT0, sF))
    a("s_mul_i32 s%d, s%d, %d" % (sT1, sWV, 8 * 3584)); a("s_add_u32 s%d, s%d, s%d" % (sT0, sT0, sT1))
    a("v_add_u32 v4, s%d, v4" % sT0)
    a("s_lshl_b32 s%d, s%d, 2" % (sFW, sWV)); a("s_add_u32 s%d, s%d, %d" % (sFW, sFW, L_FL))
    ROT = ENV("ROT", 0); ROT1 = ENV("ROT1", 0); ROT2 = ENV("ROT2", 0)
    RJ = [3, 4, 5, 6, 7, 38, 39]
    a("s_lshl_b32 s%d, s%d, 1" % (sT0, sT3)); a("s_add_u32 s%d, s%d, s%d" % (sT0, sT0, sCT)); a("s_lshl_b32 s%d, s%d, 7" % (sT0, sT0))
    for i in range(7 if ROT or ROT1 else 1 if ROT2 else 0):
        a("s_sub_u32 s%d, s%d, 896" % (sT1, sT0)); a("s_cmp_ge_u32 s%d, 896" % sT0); a("s_cselect_b32 s%d, s%d, s%d" % (RJ[i], sT1, sT0))
        if i < 6: a("s_add_u32 s%d, s%d, 128" % (sT0, RJ[i]))
    a("s_waitcnt lgkmcnt(0)")
    VFL, VFA = 50, 51
    def dma_x(b):
        out = []
        for i in range(4):
            out.append(["s_add_u32 m0, s%d, %d" % (sOX, L_X[b % 3] + i * 1024),
                        ("s_add_u32 s%d, s%d, %d" % (sOW, RJ[b], (i >> 1) * 16 * 896)) if ROT1 else "s_movk_i32 s%d, %d" % (sOW, b * 128 + (i >> 1) * 16 * 896),
                        ("buffer_load_dwordx4 v%d, s[%d:%d], s%d offen lds" % (2 + (i & 1), SX, SX + 3, sOW), ("x", b))])
        return out
    def dma_w(st):
        out = []
        slot = st % 4
        for i in range(2):
            for mat in range(2):
                S = (SWG, SWU)[mat]
                g = []
                if ROT1:
                    g.append("s_mul_i32 s%d, s%d, 1792" % (sOW, RJ[st >> 1])); g.append("s_add_u32 s%d, s%d, %d" % (sOW, sOW, ((st & 1) * 32 + 4 * i) * 3584))
                else: g.append("s_mov_b32 s%d, %d" % (sOW, (st * 32 + 4 * i) * 3584))
                g.append("s_add_u32 m0, s%d, %d" % (sWB, L_W + slot * 16384 + mat * 8192 + i * 1024))
                g.append(("buffer_load_dwordx4 v4, s[%d:%d], s%d offen lds" % (S, S + 3, sOW), ("w", st)))
                out.append(g)
        return out
    def dflag(idx):
        return ["s_add_u32 m0, s%d, %d" % (sFW, 16 * idx), "s_mov_b64 exec, 1",
                ("global_load_lds_dword v%d, s[0:1]" % VFL, "fl"), "s_mov_b64 exec, -1"]
    def emit(g, a=a):
        for x in g:
            if callable(x): x()
            elif isinstance(x, tuple) and x[0].startswith("ds_"): a.ds(x[0], x[1])
            elif isinstance(x, tuple): a.vm(x[0], x[1])
            else: a(x)
    srd(a, SX, 16, 2048 * 896)
    for g in dma_x(0): emit(g)
    srd(a, SWG, 32, 448 * 3584)
    srd(a, SWU, 34, 448 * 3584)
    for g in dma_w(0): emit(g)
    a("s_cmp_lg_u32 s15, 0"); a("s_cselect_b32 s%d, 31, 30" % sT0); a("s_lshl_b32 s%d, s%d, 2" % (sT0, sT0)); a("v_mov_b32 v%d, s%d" % (VFL, sT0))
    a("s_barrier")
    emit(dflag(0))
    Q = []
    for k in range(1, 14):
        if k % 2 == 0: Q += [(max(0, k - 4), g) for g in dma_x(k // 2)]
        w_ = dma_w(k); w_[-1] = w_[-1] + dflag(k)
        Q += [(max(0, k - 3), g) for g in w_]
    if "nodma" in EXP: Q = Q[:20] + [(r_, g[3:]) for r_, g in Q[20:] if len(g) > 3]
    if "halfdma" in EXP: Q = Q[:20] + [(r_, g) for i_, (r_, g) in enumerate(Q[20:]) if len(g) > 3 or (i_ & 1)]
    NPRE = ENV("NPRE", 12)
    pend = [g for _, g in Q[:NPRE]]; Q = Q[NPRE:]
    a_real = a
    ILN = ENV("ILN", 4)
    class IL:
        def __init__(s_): s_.n = 0
        def __call__(s_, t):
            a_real(t); s_.n += 1
            if s_.n % ILN == 0 and pend: emit(pend.pop(0))
    a = IL()
    a("v_lshlrev_b32 v15, 2, v1")
    a("v_and_b32 v11, 3, v1"); a("v_lshlrev_b32 v%d, 2, v11" % VFA); a("v_add_u32 v11, %d, v11" % (L_SYNC + Y_CNT))
    a("v_add_u32 v%d, %d, v%d" % (VFA, L_FL, VFA))
    a("s_add_u32 s%d, s%d, %d" % (sT0, sWV, L_SYNC + Y_CNT)); a("v_mov_b32 v12, s%d" % sT0)
    a("v_add_u32 v13, %d, v15" % (L_SYNC + 128)); a("v_cmp_eq_u32 vcc, 0, v1"); a("v_cndmask_b32 v12, v13, v12, vcc")
    a("v_mov_b32 v10, %d" % (L_SYNC + Y_RDA))
    a("v_and_b32 v16, 31, v1")
    a("s_lshl_b32 s%d, s%d, 6" % (sT0, sWR))
    a("v_add_u32 v22, s%d, v16" % sT0)
    a("v_lshrrev_b32 v17, 5, v1")
    a("v_bfe_u32 v18, v1, 1, 3")
    a("v_xor_b32 v18, v17, v18")
    a("v_lshlrev_b32 v5, 7, v22")
    a("v_lshl_add_u32 v5, v18, 4, v5")
    a("v_add_u32 v5, 65536, v5")
    a("v_xor_b32 v6, 32, v5"); a("v_xor_b32 v7, 64, v5"); a("v_xor_b32 v8, 96, v5")
    a("v_bfe_u32 v19, v1, 2, 2")
    a("v_lshl_add_u32 v20, v17, 3, v19")
    a("v_lshlrev_b32 v9, 8, v20")
    a("v_bfe_u32 v20, v1, 4, 1"); a("v_lshlrev_b32 v20, 1, v20")
    a("v_bfe_u32 v21, v1, 1, 1"); a("v_add_u32 v20, v20, v21")
    a("s_lshl_b32 s%d, s%d, 3" % (sT0, sWC))
    a("v_add_u32 v20, s%d, v20" % sT0)
    a("v_lshlrev_b32 v21, 2, v19")
    a("v_xor_b32 v20, v20, v21")
    a("v_lshl_add_u32 v9, v20, 4, v9")
    a("v_and_b32 v21, 1, v1")
    a("v_lshl_add_u32 v9, v21, 3, v9")
    a("v_xor_b32 v0, 64, v9")
    srd(a, SWS, 14, WS_SIZE)
    srd(a, SWD, 8, 1792 * 896)
    srd(a, SOUT, 10, 2048 * 896)
    a("s_lshl_b32 s%d, s%d, 11" % (sT0, sR)); a("s_add_u32 s%d, s%d, %d" % (sT0, sT0, WS_RC))
    a("v_lshl_add_u32 v18, v22, 4, s%d" % sT0)
    a("s_lshl_b32 s%d, s%d, 10" % (sT0, sF)); a("s_lshl_b32 s%d, s%d, 9" % (sT1, sWC)); a("s_add_u32 s%d, s%d, s%d" % (sT0, sT0, sT1))
    a("s_add_u32 s%d, s%d, %d" % (sT0, sT0, WS_CS))
    a("v_lshl_add_u32 v19, v16, 3, s%d" % sT0)
    a("v_lshl_add_u32 v19, v17, 2, v19")
    a("s_lshl_b32 s%d, s%d, 1" % (sT0, sR))
    a("s_add_u32 s%d, s%d, s%d" % (sT0, sT0, sWR))
    a("s_lshl_b32 s%d, s%d, 1" % (sT1, sF))
    a("s_add_u32 s%d, s%d, s%d" % (sT1, sT1, sWC))
    a("s_lshl_b32 s%d, s%d, 8" % (sT2, sT0)); a("s_add_u32 s%d, s%d, %d" % (sT2, sT2, WS_FR)); a("v_mov_b32 v15, s%d" % sT2)
    a("s_lshl_b32 s%d, s%d, 8" % (sT2, sT1)); a("s_add_u32 s%d, s%d, %d" % (sT2, sT2, WS_FC)); a("v_writelane_b32 v15, s%d, 1" % sT2)
    a("s_mul_i32 s%d, s%d, 37" % (sT3, sT1)); a("s_lshr_b32 s%d, s%d, 8" % (sT3, sT3)); a("s_add_u32 s%d, s%d, s%d" % (sT3, sT3, sT1))
    a("s_lshl_b32 s%d, s%d, 1" % (sT1, sT1))
    a("s_lshl_b32 s%d, s%d, 5" % (sT2, sT0)); a("s_add_u32 s%d, s%d, s%d" % (sT2, sT2, sT3)); a("s_lshl_b32 s%d, s%d, %d" % (sT2, sT2, FSH))
    a("s_add_u32 s%d, s%d, %d" % (sT2, sT2, WS_HF))
    a("v_mov_b32 v21, s%d" % sT2)
    a("s_mul_i32 s%d, s%d, 56" % (sT0, sT0))
    a("s_add_u32 s%d, s%d, s%d" % (sT0, sT0, sT1))
    a("s_lshl_b32 s%d, s%d, 12" % (sT0, sT0))
    a("v_and_b32 v20, 15, v1")
    a("v_lshlrev_b32 v20, 4, v20")
    a("v_bfe_u32 v22, v1, 4, 1")
    a("v_lshl_add_u32 v20, v22, 10, v20")
    a("v_lshl_add_u32 v20, v17, 8, v20")
    a("v_add_u32 v20, s%d, v20" % sT0)
    a("s_mov_b32 s%d, 0" % sLD)
    CA_, CB_ = 32, 42
    for r in range(33, 50):
        if r not in (34, 36, 38, 42, 46): a("v_mov_b32 v%d, 0" % r)
    a("v_lshrrev_b32 v16, 3, v1")
    a("s_mul_i32 s%d, s%d, %d" % (sT0, sWV, 448 * 896))
    a("v_mul_u32_u24 v16, 896, v16")
    a("s_lshl_b32 s%d, s%d, 7" % (sT1, sCT)); a("s_add_u32 s%d, s%d, s%d" % (sT0, sT0, sT1))
    a("v_add_u32 v16, s%d, v16" % sT0)
    a("v_xor_b32 v17, v1, v22"); a("v_and_b32 v17, 7, v17")
    a("v_lshl_add_u32 v52, v17, 4, v16")
    a = a_real
    while pend: emit(pend.pop(0))
    ACC = lambda ff, mat, tt: 128 + 64 * ff + 32 * mat + 16 * tt
    FR = [80, 104]
    RC = [24, 28]
    NW = 6
    J = lambda s: 2 * (s % 7) + s // 7
    WDV = [52, 52]
    def dma_wd(s):
        if "now" in EXP and s >= 6: return []
        if "no12" in EXP and s >= 12: return []
        return [(["s_mul_i32 s%d, s%d, 448" % (sOW, RJ[s % 7]), "s_add_u32 s%d, s%d, %d" % (sOW, sOW, ((s // 7) * 32 + 8 * q) * 896)] if ROT and s < 7 else
                 ["s_mov_b32 s%d, %d" % (sOW, (J(s) * 32 + 8 * q) * 896)]) + [
                 "s_add_u32 m0, s%d, %d" % (sOX, WDS[s % NW] + q * 1024),
                 ("buffer_load_dwordx4 v%d, s[%d:%d], s%d offen lds" % (WDV[q & 1], SWD, SWD + 3, sOW), ("wd", s))] for q in range(4)]
    def rd_frags(st, kk):
        fb = FR[kk]
        slot = st % 4
        xo = L_X[(st >> 1) % 3] - 65536
        xa = 5 + 2 * (st & 1) + kk
        def wr(ff, mat):
            return [("ds_read_b64_tr_b16 %s, v%d offset:%d" % (vr(fb + 8 + 8 * ff + 4 * mat + 2 * half, 2), (9, 0)[ff], L_W + slot * 16384 + mat * 8192 + kk * 4096 + half * 1024), ("fr", st, kk, ff, mat)) for half in range(2)]
        xr = lambda tt: [("ds_read_b128 %s, v%d offset:%d" % (vr(fb + 4 * tt, 4), xa, xo + tt * 4096), ("fx", st, kk, tt))]
        return [xr(0) + wr(0, 0), xr(1), wr(0, 1), wr(1, 0), wr(1, 1)]
    def mfmas(kk, first=False):
        fb = FR[kk]
        return ["v_mfma_f32_32x32x16_bf16 %s, %s, %s, %s" % (vr(ACC(ff, mat, tt), 16), vr(fb + 8 + 8 * ff + 4 * mat, 4), vr(fb + 4 * tt, 4), "0" if first else vr(ACC(ff, mat, tt), 16))
                for ff in range(2) for mat in range(2) for tt in range(2)]
    def inter(st, kk, groups):
        for i, m in enumerate(mfmas(kk, st == 0 and kk == 0)):
            ff, mat, tt = i >> 2, (i >> 1) & 1, i & 1
            if i == 1: a.wait_ds(("fx", st, kk, 1))
            a.wait_ds(("fr", st, kk, ff, mat))
            a(m)
            for sl, g in groups:
                if sl == i: emit(g)
    def arrive(v, off=0):
        a("v_mov_b32 v13, %d" % v)
        a.ds("ds_write_b8 v12, v13 offset:%d" % off, "sig")
    deferred = []
    chk0 = [0]
    def check(v, kind):
        if "nochk" in EXP and 1 < len(a.vmq) and v < 14 and chk0[0]: return
        chk0[0] = 1
        a("s_getpc_b64 s[20:21]")
        a("v_cmp_gt_u32 vcc, %d, v%d" % (v, 14 if kind == "F" else 16))
        a("s_cbranch_vccnz K_RT_%s" % kind)
    def retries():
        a("s_mov_b32 s18, %d" % (SPIN * 4))
        a("s_branch K_RTE")
        for kind in ("R", "F"):
            r = 14 if kind == "F" else 16
            a.label("K_RT_%s" % kind)
            a("ds_read_b32 v14, v%d" % VFA if kind == "F" else "ds_read_u8 v16, v11 offset:%d" % Y_RD)
            a("s_sub_i32 s18, s18, 1"); a("s_max_i32 s18, s18, 0")
            a("s_cmp_eq_u32 s18, 0"); a("s_cselect_b32 s19, 255, 0")
            a("s_waitcnt lgkmcnt(0)")
            a("v_or_b32 v%d, s19, v%d" % (r, r))
            a("s_setpc_b64 s[20:21]")
        a.label("K_RTE")
    def const_loads():
        for tt in range(2):
            a("buffer_load_dwordx4 %s, v18, s[%d:%d], 0 offen offset:%d" % (vr(RC[tt], 4), SWS, SWS + 3, tt * 512))
        a("s_movk_i32 s%d, %d" % (sT0, CSM))
        for ff in range(2):
            a("buffer_load_dword v%d, v19, s[%d:%d], 0 offen offset:%d" % (CA_ + 4 * ff, SWS, SWS + 3, ff * 256))
            a("buffer_load_dword v%d, v19, s[%d:%d], s%d offen offset:%d" % (CA_ + 4 * ff + 2, SWS, SWS + 3, sT0, ff * 256))
        a("s_mov_b32 s%d, 1" % sLD)
    def get_non():
        a.wait_ds("non")
        a("v_readfirstlane_b32 s%d, v22" % sNON); a("v_readfirstlane_b32 s%d, v23" % (sNON + 1))
    def pollA():
        a.vm("buffer_load_dword v17, v15, s[%d:%d], 0 offen sc1" % (SWS, SWS + 3), "pf")
    def try_const():
        l = L("CL"); lo = L("CLO")
        a.wait_vm("pf")
        a("v_cmp_ne_u32 vcc, s%d, v17" % sNON)
        a("s_cbranch_vccz %s" % lo)
        a.label(l)
        a.mark("cst")
        def slow():
            a.label(lo)
            a("s_cmp_eq_u32 s%d, 0" % (sNON + 1))
            a("s_cbranch_scc1 %s" % l)
            a("s_cmp_lg_u32 s%d, 0" % sLD)
            a("s_cbranch_scc1 %s" % l)
            const_loads()
            a("s_branch %s" % l)
        deferred.append(slow)
    PA = ENV("PA", 3)
    RS = [int(c) for c in os.environ.get("RS", "01245")]
    TP = [int(c) for c in os.environ.get("TP", "9,11").split(",")]
    EARLY = ENV("EARLY", 1)
    retries()
    a("v_mov_b32 v14, 0")
    check(1, "F")
    a.dsq = []
    sf_("st0")
    a("s_setprio %d" % ENV("LPRIO", 3))
    poll = ["v_add_u32 v%d, 16, v%d" % (VFA, VFA), ("ds_read_b32 v14, v%d" % VFA, "pA")]
    for g in rd_frags(0, 0): emit(g)
    DMX = ENV("DMX", 6)
    if EARLY: Q += [(11, g) for g in dma_wd(0)] + [(12, g) for g in dma_wd(1) + dma_wd(2)] + [(13, g) for g in dma_wd(3)]
    SD = []
    for st in range(NST):
        D = []
        while Q and Q[0][0] <= st and len(D) < (DMX if st else 8): D.append(Q.pop(0)[1])
        SD.append(D)
    assert not Q
    if ENV("VERB", 0): print("DMA per stage", [len(d) for d in SD])
    stageD = lambda st: SD[st]
    for st in range(NST):
        if st in (7,) and not NSTA: sf_("st%d" % st)
        if st in (1, 2, 3, 4, 6, 8, 10, 12): sf_("l_%d" % st)
        D = stageD(st)
        DS = [(int(x) // 8, int(x) % 8) for x in os.environ.get("DS", "4,6,9,11,13,15").split(",")] if len(D) <= 6 else [(0, 3), (0, 5), (0, 7), (1, 1), (1, 2), (1, 4), (1, 5), (1, 7)]
        if st == 0: DS = [(0, 0), (0, 2), (0, 4), (0, 6), (1, 1), (1, 3), (1, 5), (1, 7)]
        G = []
        G += [(RS[i], g) for i, g in enumerate(rd_frags(st, 1))]
        if st + 1 in TP: G.append((5, [("ds_read_b64 v[22:23], v10 offset:%d" % (Y_NON - Y_RDA), "non")]))
        if st - 2 in TP: G.append((0, [try_const]))
        if st in TP: G.append((1, [get_non, pollA]))
        if D and st: G.append((ENV("RCK", 3), [lambda: a.wait_ds("pR"), lambda st=st: check(st, "R")]))
        G += [(DS[i][1], g) for i, g in enumerate(D) if DS[i][0] == 0]
        if st + 1 < NST: G.append((PA, poll))
        if ENV("ARS", 5) < 8: G.append((ENV("ARS", 5), [lambda st=st: arrive(st + 1, Y_RD)]))
        inter(st, 0, G)
        G = []
        if st + 1 < NST:
            G.append((0, [lambda: a.wait_ds("pA"), lambda: check(1, "F")]))
            G += [(RS[i], g) for i, g in enumerate(rd_frags(st + 1, 0))]
        if ENV("ARS", 5) >= 8: G.append((ENV("ARS", 5) - 8, [lambda st=st: arrive(st + 1, Y_RD)]))
        G += [(DS[i][1], g) for i, g in enumerate(D) if DS[i][0] == 1]
        if st + 1 == NST or stageD(st + 1): G.append((ENV("PRS", 7), [("ds_read_u8 v16, v11 offset:%d" % Y_RD, "pR")]))
        inter(st, 1, G)
    sf_("loopend")
    a("s_setprio %d" % ENV("GPRIO", 1))
    l = L("CL"); lo = L("CLO"); l1 = L("CLP"); l2 = L("CLP")
    a("s_cmp_eq_u32 s%d, 0" % sLD)
    a("s_cbranch_scc1 %s" % lo)
    a.wait_vm("cst")
    a.label(l)
    def slow(l=l, lo=lo):
        a.label(lo)
        a("s_mov_b32 s%d, %d" % (sCNT, SPIN))
        a.label(l1)
        a("ds_read_b64 v[22:23], v10 offset:%d" % (Y_NON - Y_RDA))
        a("buffer_load_dword v17, v15, s[%d:%d], 0 offen sc1" % (SWS, SWS + 3))
        a("s_waitcnt vmcnt(0) lgkmcnt(0)")
        a("v_readfirstlane_b32 s%d, v22" % sNON); a("v_readfirstlane_b32 s%d, v23" % (sNON + 1))
        a("v_cmp_ne_u32 vcc, s%d, v17" % sNON)
        a("s_cmp_eq_u32 s%d, 0" % (sNON + 1))
        a("s_cselect_b64 s[%d:%d], -1, vcc" % (sT0, sT0 + 1))
        a("s_cmp_eq_u64 s[%d:%d], 0" % (sT0, sT0 + 1))
        a("s_cbranch_scc1 %s" % l2)
        a("s_sleep 2")
        a("s_sub_u32 s%d, s%d, 1" % (sCNT, sCNT)); a("s_cmp_lg_u32 s%d, 0" % sCNT)
        a("s_cbranch_scc1 %s" % l1)
        a.label(l2)
        const_loads()
        a("s_waitcnt vmcnt(0)")
        a("s_branch %s" % l)
    deferred.append(slow)
    for tt in range(2): a("v_mov_b32 v%d, v%d" % (CB_ + 4 * tt, RC[tt]))
    corr = ["v_mfma_f32_32x32x16_bf16 %s, %s, %s, %s" % (vr(ACC(ff, mat, tt), 16), vr(CA_ + 4 * ff + 2 * mat, 4), vr(CB_ + 4 * tt, 4), vr(ACC(ff, mat, tt), 16))
            for ff in range(2) for tt in range(2) for mat in range(2)]
    a(corr[0]); a(corr[1])
    a("v_mov_b32 v2, v52"); WDV = [2, 2]
    a("s_lshl_b32 s%d, s%d, 2" % (sT0, sRT2)); a("s_add_u32 s%d, s%d, s%d" % (sT0, sT0, sWV)); a("s_lshl_b32 s%d, s%d, %d" % (sT0, sT0, FSH + 3))
    a("s_add_u32 s%d, s%d, %d" % (sT0, sT0, WS_HF))
    a("v_lshrrev_b32 v8, 1, v1"); a("v_lshlrev_b32 v8, %d, v8" % FSH); a("v_and_b32 v14, 1, v1"); a("v_lshl_add_u32 v8, v14, 2, v8")
    a("v_add_u32 v8, s%d, v8" % sT0)
    a(corr[2])
    TRB = [[4, 5], [6, 7]]
    a("v_bfe_u32 v13, v1, 2, 2"); a("v_lshrrev_b32 v14, 4, v1")
    a("v_lshl_add_u32 v13, v14, 3, v13")
    a("v_lshlrev_b32 v13, 7, v13")
    a("v_and_b32 v14, 3, v1")
    a("v_lshl_add_u32 v13, v14, 5, v13")
    a("v_bfe_u32 v14, v1, 3, 1")
    a("v_lshl_add_u32 v13, v14, 4, v13")
    a("v_add_u32 v4, s%d, v13" % sOX)
    a("v_xor_b32 v5, 16, v4")
    a("v_add_u32 v6, 65536, v4"); a("v_add_u32 v7, 65536, v5")
    a(corr[3])
    a("s_mov_b32 s%d, %d" % (sHD, 0x2aaa if "nogate" in EXP else 0))
    a.wait_ds("pR")
    check(14, "R")
    a.dsq = []
    sf_("stats")
    NV = ENV("NV", 6); NG = ENV("NG", 0)
    WBK = [80, 96, 32, 48, 160, 128, 176, 144]
    WB = {s: WBK[s] for s in range(NV)}
    def trw(s):
        a.wait_vm(("wd", s))
        hi = WDS[s % NW] >= 65536; of = WDS[s % NW] - 65536 * hi
        for ct in range(4):
            for hf in range(2):
                a.ds("ds_read_b64_tr_b16 %s, v%d offset:%d" % (vr(WB[s] + 4 * ct + 2 * hf, 2), TRB[hi][ct >> 1], of + hf * 512 + 8 * (ct & 1)), ("tw", s))
    HA = [9, 3, 0, 10]
    def hpoll(r=14, tag="hp"):
        a("s_mov_b64 exec, 0x3fff")
        a.vm("buffer_load_dword v%d, v8, s[%d:%d], 0 offen sc1" % (r, SWS, SWS + 3), tag)
        a("s_mov_b64 exec, -1")
    def flag(ff, trk=True):
        if trk: a.wait_vm(("hst", ff))
        a("s_mov_b64 exec, 1")
        t = "buffer_store_dword v22, v21, s[%d:%d], 0 offen offset:%d sc1" % (SWS, SWS + 3, ff * 4)
        if trk: a.vm(t, "hfl")
        else: a(t)
        a("s_mov_b64 exec, -1")
    GD = ENV("GD", 11); GP = 9; PKG = ENV("PKG", 0)
    ev = []
    def at(t, item): ev.append((t, len(ev), item))
    BT = 8 * GP
    for i in range(4, 8): at((i - 4) * 6 + 2, corr[i])
    def sched_dma(t, s, dt=5):
        for q, g in enumerate(dma_wd(s)): at(t + q * dt, lambda g=g: emit(g))
    if EARLY:
        sched_dma(0.1, 4); sched_dma(24.1, 5)
        TW = [float(x) for x in os.environ.get("TW", "0.7,1.4,2.1,2.8,3.5,4.2,5.0,5.7").split(",")]
    else:
        for s in range(6): sched_dma(s * BT + 0.1, s)
        TW = [float(x) for x in os.environ.get("TW", "3,4,5,6,7,8").split(",")]
    NGT = ENV("NGT", 0)
    for s in range(max(NG, NGT)):
        assert TW[s] * BT > [0, 0, 30, 30, 15 * GP + 4 * GD, 15 * GP + 8 * GD, 31 * GP + 4 * GD, 31 * GP + 8 * GD][s]
        at(TW[s] * BT, lambda s=s: trw(s))
        if s < NG:
            at(TW[s] * BT + 20, lambda s=s: a.wait_ds(("tw", s)))
            sched_dma(TW[s] * BT + 20.1, s + NW)
    at(float(os.environ.get("TF0", "7")) * BT - 0.5, lambda: flag(0))
    n = 0
    for ff in range(2):
        for tt in range(2):
            r0 = RC[tt]
            for qp in range(2):
                blk = n // 8
                HP = 112 + 4 * (blk & 3)
                for q2 in range(2):
                    q = 2 * qp + q2
                    for e in range(4):
                        g = ACC(ff, 0, tt) + 4 * q + e; u = ACC(ff, 1, tt) + 4 * q + e; T = 64 + (n & 15)
                        if PKG:
                            P2 = lambda r: vr(r, 2)
                            ops = [(3, "v_exp_f32 v%d, v%d" % (T, T)), (6, "v_rcp_f32 v%d, v%d" % (T, T))]
                            if e & 1 == 0:
                                ops += [(0, "v_pk_mul_f32 %s, %s, %s" % (P2(T), P2(g), P2(g))),
                                        (1, "v_pk_fma_f32 %s, %s, %s, %s op_sel:[0,0,1] op_sel_hi:[1,0,1]" % (P2(T), P2(T), P2(r0 + 2), P2(r0))),
                                        (2, "v_pk_mul_f32 %s, %s, %s" % (P2(T), P2(T), P2(g))),
                                        (4, "v_pk_mul_f32 %s, %s, %s" % (P2(g), P2(g), P2(u)))]
                            else:
                                ops += [(4.5 - GP / GD, "v_pk_fma_f32 %s, %s, %s, %s op_sel:[0,1,1] op_sel_hi:[1,1,1]" % (P2(T - 1), P2(T - 1), P2(r0 + 2), P2(r0 + 2))),
                                        (7, "v_pk_mul_f32 %s, %s, %s" % (P2(g - 1), P2(g - 1), P2(T - 1))),
                                        (8, "v_cvt_pk_bf16_f32 v%d, v%d, v%d" % (HP + 2 * q2 + e // 2, g - 1, g))]
                                ops[2] = (4, ops[2][1])
                        else:
                            ops = [(0, "v_mul_f32 v%d, v%d, v%d" % (T, g, g)),
                            (1, "v_fma_f32 v%d, v%d, v%d, v%d" % (T, T, r0 + 2, r0 + 1)),
                            (2, "v_mul_f32 v%d, v%d, v%d" % (T, T, g)),
                            (3, "v_exp_f32 v%d, v%d" % (T, T)),
                            (4, "v_mul_f32 v%d, v%d, v%d" % (g, g, u)),
                            (5, "v_fma_f32 v%d, v%d, v%d, v%d" % (T, T, r0 + 3, r0 + 3)),
                            (6, "v_rcp_f32 v%d, v%d" % (T, T)),
                            (7, "v_mul_f32 v%d, v%d, v%d" % (g, g, T))]
                            if e & 1: ops.append((8, "v_cvt_pk_bf16_f32 v%d, v%d, v%d" % (HP + 2 * q2 + e // 2, g - 1, g)))
                        for k, o in ops: at(n * GP + k * GD, o)
                        n += 1
                t = (n - 1) * GP + 8 * GD
                at(t + 4, "v_permlane32_swap_b32 v%d, v%d" % (HP, HP + 2))
                at(t + 5, "v_permlane32_swap_b32 v%d, v%d" % (HP + 1, HP + 3))
                def st_h(HP=HP, ff=ff, tt=tt, qp=qp):
                    a("s_movk_i32 s%d, %d" % (sT0, ff * 4096))
                    a.vm("buffer_store_dwordx4 %s, v20, s[%d:%d], s%d offen offset:%d sc1" % (vr(HP, 4), SWS, SWS + 3, sT0, tt * 2048 + qp * 512), ("hst", ff))
                at(t + 8, st_h)
    for t, _, it in sorted(ev, key=lambda x: (x[0], x[1])):
        if callable(it): it()
        else: a(it)
    sf_("gelu")
    A2 = lambda ct, tt: 192 + 16 * ct + 4 * tt
    free = [64, 112] + WBK[NV:]
    HB = {}
    def ld_h(s, trk=True):
        if ENV("VERB", 0): print("ld_h", s, free)
        if s not in HB: HB[s] = free.pop(0)
        if ROT: a("s_lshl_b32 s%d, s%d, 6" % (sOW, RJ[s % 7])); a("s_add_u32 s%d, s%d, %d" % (sOW, sOW, WS_H + (s // 7) * 4096))
        else: a("s_mov_b32 s%d, %d" % (sOW, WS_H + J(s) * 4096))
        if "hsame" in EXP: a("s_mov_b32 s%d, 0" % sOW)
        for tt in range(4):
            t = "buffer_load_dwordx4 %s, v%d, s[%d:%d], s%d offen" % (vr(HB[s] + 4 * tt, 4), HA[tt], SWS, SWS + 3, sOW)
            if trk: a.vm(t, ("h", s, tt))
            else: a(t)
    def spin_h(mask, lj, r=14):
        lo = L("HS"); l1 = L("HS")
        def slow():
            a.label(lo)
            a("s_mov_b32 s%d, %d" % (sT3, SPIN))
            a.label(l1)
            a("s_mov_b64 exec, 0x3fff")
            a("buffer_load_dword v%d, v8, s[%d:%d], 0 offen sc1" % (r, SWS, SWS + 3))
            a("s_mov_b64 exec, -1")
            a("s_waitcnt vmcnt(0)")
            a("v_cmp_ne_u32 vcc, s%d, v%d" % (sNON, r))
            a("s_and_b32 s%d, vcc_lo, 0x%x" % (sT0, mask))
            a("s_cbranch_scc0 %s" % lj)
            a("s_sleep %d" % ENV("HSL", 3))
            a("s_sub_u32 s%d, s%d, 1" % (sT3, sT3)); a("s_cmp_lg_u32 s%d, 0" % sT3)
            a("s_cbranch_scc1 %s" % l1)
            a("s_branch %s" % lj)
        deferred.append(slow)
        return lo
    hpoll()
    for s in range(max(NG, NGT), NV): trw(s)
    a("s_mul_i32 s%d, s%d, 14" % (sT1, sWV))
    a("s_mul_i32 s%d, s%d, 56" % (sT0, sRT2))
    a("s_add_u32 s%d, s%d, s%d" % (sT0, sT0, sT1))
    a("s_lshl_b32 s%d, s%d, 12" % (sT0, sT0))
    for r in range(4):
        a("s_add_u32 s%d, s%d, %d" % (sT1, sWV, r)); a("s_and_b32 s%d, s%d, 3" % (sT1, sT1)); a("s_lshl_b32 s%d, s%d, 10" % (sT1, sT1))
        a("s_add_u32 s%d, s%d, s%d" % (sT1, sT1, sT0))
        a("v_lshl_add_u32 v%d, v1, 4, s%d" % (HA[r], sT1))
    a("v_and_b32 v17, 15, v1"); a("v_lshrrev_b32 v13, 4, v1")
    a("s_lshl_b32 s%d, s%d, 6" % (sT0, sRT2)); a("s_lshl_b32 s%d, s%d, 4" % (sT1, sWV)); a("s_add_u32 s%d, s%d, s%d" % (sT0, sT0, sT1))
    a("v_add_u32 v18, s%d, v17" % sT0)
    a("v_mul_u32_u24 v18, 896, v18")
    a("v_lshl_add_u32 v18, v13, 5, v18")
    a("s_lshl_b32 s%d, s%d, 7" % (sT0, sCT))
    a("v_add_u32 v18, s%d, v18" % sT0)
    a.vm("buffer_load_dwordx4 v[24:27], v18, s[%d:%d], 0 offen" % (SX, SX + 3), "x")
    a.vm("buffer_load_dwordx4 v[28:31], v18, s[%d:%d], 0 offen offset:16" % (SX, SX + 3), "x")
    a("v_mul_u32_u24 v16, %d, v13" % STG_W)
    a("v_lshrrev_b32 v13, 2, v17"); a("v_lshl_add_u32 v16, v13, 7, v16")
    a("v_and_b32 v13, 1, v17"); a("v_lshl_add_u32 v16, v13, 3, v16")
    a("v_bfe_u32 v13, v17, 1, 1"); a("v_lshl_add_u32 v16, v13, 6, v16")
    a("s_add_u32 s%d, s%d, %d" % (sT1, sT1, L_STG))
    a("v_add_u32 v16, s%d, v16" % sT1)
    a("v_lshl_add_u32 v19, v1, 4, s%d" % sOX)
    if NSTA: arrive(1, Y_TR)
    ND = 14 - NSTA
    wdq = [s + NW for s in range(NG, NV) if s + NW < ND]
    flag(1)
    sf_("flag1")
    a("s_waitcnt lgkmcnt(0)"); a.dsq = []
    a("s_setprio %d" % ENV("F2PRIO", 0))
    PREF = ENV("PREF", 3 if NSTA else 6)
    for s in wdq[:PREF]:
        for g in dma_wd(s): emit(g)
    wdq = wdq[PREF:]
    lj = L("HJ")
    a.wait_vm("hp")
    a("v_cmp_ne_u32 vcc, s%d, v14" % sNON)
    a("s_and_b32 s%d, vcc_lo, 0x1555" % sT0)
    lo = spin_h(0x1555, lj)
    a("s_cbranch_scc1 %s" % lo)
    a.label(lj)
    sf_("hpoll")
    NHM = ENV("NHM", 4)
    assert NSTA == 5 and NV == 6 and not wdq
    sRDY, sISS = sHD, sLD
    WTAB = 22; WOF = list(range(8, 15)); sHM = 16
    PR = [23, 17, 2]
    def dpoll(n):
        l = L("DP")
        a("s_cmp_eq_u32 s%d, 0x2aaa" % sRDY)
        a("s_cbranch_scc1 %s" % l)
        a("s_mov_b64 exec, 0x3fff")
        a("buffer_load_dword v%d, v8, s[%d:%d], 0 offen sc1" % (PR[n % 3], SWS, SWS + 3))
        a("s_mov_b64 exec, -1")
        a.label(l)
        a.mark(("hq", n))
    def deval(n):
        a.wait_vm(("hq", n))
        a("v_cmp_eq_u32 vcc, s%d, v%d" % (sNON, PR[n % 3]))
        a("s_and_b32 s%d, vcc_lo, 0x2aaa" % sT0)
        a("s_or_b32 s%d, s%d, s%d" % (sRDY, sRDY, sT0))
    def dslow():
        a.label("K_DS")
        a("s_mov_b64 exec, 0x3fff")
        a("buffer_load_dword v14, v8, s[%d:%d], 0 offen sc1" % (SWS, SWS + 3))
        a("s_mov_b64 exec, -1")
        a("s_sub_i32 s18, s18, 1"); a("s_max_i32 s18, s18, 0")
        a("s_cmp_eq_u32 s18, 0"); a("s_cselect_b32 s19, -1, 0")
        a("s_waitcnt vmcnt(0)")
        a("v_cmp_eq_u32 vcc, s%d, v14" % sNON)
        a("s_or_b32 s19, s19, vcc_lo")
        a("s_and_b32 s19, s19, 0x2aaa")
        a("s_or_b32 s%d, s%d, s19" % (sRDY, sRDY))
        a("s_setpc_b64 s[20:21]")
    deferred.append(dslow)
    sWL = 17
    def wslow():
        a.label("K_WS")
        a("ds_read_u8 v14, v15 offset:%d" % Y_WS)
        a("s_sub_i32 s18, s18, 1"); a("s_max_i32 s18, s18, 0")
        a("s_cmp_eq_u32 s18, 0"); a("s_cselect_b32 s19, 3, 0")
        a("s_waitcnt lgkmcnt(0)")
        a("v_readfirstlane_b32 s%d, v14" % sWL)
        a("s_sleep 1")
        a("s_or_b32 s%d, s%d, s19" % (sWL, sWL))
        a("s_setpc_b64 s[20:21]")
    deferred.append(wslow)
    def c_issue(s):
        HB[s] = free.pop(0)
        if s < 7: C = [["s_mov_b32 s%d, %d" % (sOW, WS_H + J(s) * 4096)]]
        else:
            C = [["s_getpc_b64 s[20:21]", "s_andn2_b32 s%d, s%d, s%d" % (sT0, sRDY, sISS), "s_cbranch_scc0 K_DS", "s_ff1_i32_b32 s%d, s%d" % (sT1, sT0)],
                 ["s_lshr_b32 m0, s%d, 1" % sT1, "s_lshl_b32 s%d, s%d, 12" % (sOW, sT1), "s_bitset1_b32 s%d, s%d" % (sISS, sT1), "s_movrels_b32 s%d, s%d" % (WOF[s - 7], WTAB)], []]
        for i, tt in enumerate((1, 2, 3, 0) if s == 13 else range(4)):
            ld = ("buffer_load_dwordx4 %s, v%d, s[%d:%d], s%d offen" % (vr(HB[s] + 4 * tt, 4), HA[tt], SWS, SWS + 3, sOW), ("h", s, tt))
            if "hsame" in EXP: C.append(["s_mov_b32 s%d, 0" % sOW, ld])
            elif "nold" in EXP and s >= 4: pass
            elif i == 0 or i % ENV("LB", 2): C[-1].append(ld)
            else: C.append([ld])
        return C
    def c_trw(s):
        WB[s] = free.pop(0)
        if s < 7:
            hi = WDS[s % NW] >= 65536; of = WDS[s % NW] - 65536 * hi
            C = [[lambda: a.wait_vm(("wd", s))]]
        else:
            hi = 1; of = 0
            C = [([lambda: a.wait_vm(("wd", 8))] if s == 7 else []) +
                 ["s_and_b32 s%d, s%d, 3" % (sT2, WOF[s - 7]), "s_getpc_b64 s[20:21]", "s_cmp_gt_u32 s%d, s%d" % (sT2, sWL), "s_cbranch_scc1 K_WS"],
                 ["s_sub_u32 s%d, s%d, s%d" % (WOF[s - 7], WOF[s - 7], sT2)] + ["v_add_u32 v%d, s%d, v%d" % (TRB[1][c2], WOF[s - 7], TRB[0][c2]) for c2 in range(2)], []]
        for ct in range(4):
            rd = [("ds_read_b64_tr_b16 %s, v%d offset:%d" % (vr(WB[s] + 4 * ct + 2 * hf, 2), TRB[hi][ct >> 1], of + hf * 512 + 8 * (ct & 1)), ("tw", s)) for hf in range(2)]
            if "notr" in EXP: continue
            if ct == 0: C[-1] += rd
            else: C.append(rd)
        return C
    nh = 0
    DP0 = ENV("DP0", 2)
    while free and nh < NHM:
        if nh == DP0: dpoll(0)
        for c in c_issue(nh): emit(c)
        nh += 1
    if DP0 >= NHM: dpoll(0)
    a("s_mov_b32 s%d, 0" % sISS)
    a("s_mov_b32 s18, %d" % (SPIN * 2)); a("s_mov_b32 s%d, %d" % (sWL, 3 if "nows" in EXP else 0))
    for k_ in range(5): a("s_mov_b32 s%d, %d" % (WTAB + k_, WDS[k_ + 1] + (k_ >= 2)))
    a("s_mul_i32 s%d, s%d, %d" % (sT0, sWC, CV_CH - 16384)); a("s_add_u32 s%d, s%d, s%d" % (sT0, sT0, sOX)); a("s_add_u32 s%d, s%d, %d" % (WTAB + 5, sT0, L_CV + 2))
    a("s_add_u32 s%d, s%d, 4096" % (WTAB + 6, WTAB + 5))
    a("s_add_u32 s%d, s%d, %d" % (sT0, sWV, L_SYNC)); a("v_mov_b32 v15, s%d" % sT0)
    nw = NV
    for r in range(1, 4):
        a("s_sub_u32 s%d, s%d, %d" % (sT1, sWV, r)); a("s_and_b32 s%d, s%d, 3" % (sT1, sT1)); a("s_lshl_b32 s%d, s%d, 12" % (sT1, sT1))
        a("v_lshl_add_u32 v%d, v1, 4, s%d" % (19 + r, sT1))
    PI = [int(x) for x in os.environ.get("PI", "-1,1,3,5").split(",")]
    PE = [int(x) for x in os.environ.get("PE", "2,4,6,8").split(",")]
    Q2 = []
    for s in range(14):
        a.wait_ds(("tw", s))
        gap = 0
        for tt in ((1, 2, 3, 0) if s == 13 else range(4)):
            a.wait_vm(("h", s, tt))
            for ct in range(4):
                a("v_mfma_f32_16x16x32_bf16 %s, %s, %s, %s" % (vr(A2(ct, tt), 4), vr(WB[s] + 4 * ct, 4), vr(HB[s] + 4 * tt, 4), "0" if s == 0 else vr(A2(ct, tt), 4)))
                gap += 1
                while Q2 and (len(Q2) > 16 - gap or gap == 16): emit(Q2.pop(0))
                if Q2: emit(Q2.pop(0))
                pr = {1: 0, 2: 1, 3: 2, 0: 3}[tt]
                if s == 13 and pr: a("ds_write_b128 v19, %s offset:%d" % (vr(A2(ct, pr), 4), (pr - 1) * 16384 + ct * 1024))
        sf_("s_%d" % s)
        if s == 5: sf_("s5")
        if s == 9: sf_("s9")
        free.append(HB[s]); free.append(WB[s])
        if s + 1 in PE: Q2.append([lambda n=PE.index(s + 1): deval(n)])
        if s + 1 in PI: Q2.append([lambda n=PI.index(s + 1): dpoll(n)])
        if nh < 14: Q2 += c_issue(nh); nh += 1
        if nw < 14 and nw <= s + ENV("TA", 2): Q2 += c_trw(nw); nw += 1
        assert nw > s + 2 or nw == 14
        if s == 12: R1, R2, R3 = [free.pop(0) for _ in range(3)]
        if s == 10:
            XU, YR = [free.pop(0) for _ in range(2)]
            Q2.append([lambda: a.wait_vm("x")])
            for w in range(8):
                Q2.append(["v_lshlrev_b32 v%d, 16, v%d" % (XU + 2 * w, 24 + w), "v_and_b32 v%d, 0xffff0000, v%d" % (XU + 2 * w + 1, 24 + w)])
    arrive(17)
    a("ds_read_u8 v15, v11 offset:%d" % Y_YA)
    sf_("f2end")
    def ya_part(spin=True):
        if spin: spin_lds(11, 15, 1, slp=1, off=Y_YA)
        for q in range(4): a("ds_read_b64_tr_b16 %s, v16 offset:%d" % (vr(YR + 2 * q, 2), q * 512))
        for w in range(8):
            if w % 2 == 0: a("s_waitcnt lgkmcnt(%d)" % (3 - w // 2))
            yw = YR + w; o = XU + 2 * w; t = YR + 8 + 2 * (w & 1)
            a("v_lshlrev_b32 v%d, 16, v%d" % (t, yw)); a("v_and_b32 v%d, 0xffff0000, v%d" % (t + 1, yw))
            a("v_add_f32 v%d, v%d, v%d" % (o, o, t)); a("v_add_f32 v%d, v%d, v%d" % (o + 1, o + 1, t + 1))
            a("v_cvt_pk_bf16_f32 v%d, v%d, v%d" % (o, o, o + 1))
            a("v_and_b32 v%d, 0xffff0000, v%d" % (o + 1, o)); a("v_lshlrev_b32 v%d, 16, v%d" % (o, o))
    def red_part():
        spin_lds(11, 15, 17, slp=0)
        for ct in range(4):
            for r, R in enumerate((R1, R2, R3)):
                a("ds_read_b128 %s, v%d offset:%d" % (vr(R + 4 * ct, 4), 20 + r, r * 16384 + ct * 1024))
        for ct in range(4):
            a("s_waitcnt lgkmcnt(%d)" % (9 - 3 * ct))
            for e in range(4):
                c = 4 * ct + e
                a("v_add_f32 v%d, v%d, v%d" % (R1 + c, R1 + c, A2(ct, 0) + e)); a("v_add_f32 v%d, v%d, v%d" % (R2 + c, R2 + c, R3 + c))
            for e in range(4):
                c = 4 * ct + e
                a("v_add_f32 v%d, v%d, v%d" % (R1 + c, R1 + c, R2 + c))
            for w in range(2):
                b = R1 + 4 * ct + 2 * w
                a("v_cvt_pk_bf16_f32 v%d, v%d, v%d" % (b, b, b + 1))
                a("v_and_b32 v%d, 0xffff0000, v%d" % (b + 1, b)); a("v_lshlrev_b32 v%d, 16, v%d" % (b, b))
    e1, e2 = L("EP"), L("EP")
    a("s_waitcnt lgkmcnt(0)")
    a("v_cmp_gt_u32 vcc, 1, v15")
    a("s_cbranch_vccnz %s" % e1)
    a.begin_opt()
    ya_part(False); red_part()
    a("s_branch %s" % e2)
    a.end_opt()
    a.label(e1)
    a.begin_opt()
    red_part(); ya_part()
    a.end_opt()
    a.label(e2)
    sf_("ya")
    for hc in range(2):
        for w in range(4):
            b = R1 + 8 * hc + 2 * w; o = XU + 8 * hc + 2 * w
            a("v_add_f32 v%d, v%d, v%d" % (b, b, o)); a("v_add_f32 v%d, v%d, v%d" % (b + 1, b + 1, o + 1))
            a("v_cvt_pk_bf16_f32 v%d, v%d, v%d" % (R2 + 4 * hc + w, b, b + 1))
        a("buffer_store_dwordx4 %s, v18, s[%d:%d], 0 offen offset:%d" % (vr(R2 + 4 * hc, 4), SOUT, SOUT + 3, hc * 16) + " " + os.environ.get("OUTM", ""))
    sf_("end")
    sf_.store(24)
    if os.environ.get("MEAS"):
        a("s_sub_u32 s100, s99, s%d" % sNON)
        a("v_mov_b32 v24, s100")
        a("s_cmp_lg_u32 s%d, 0" % sWV); a("s_cbranch_scc1 K_END")
        a("s_mov_b64 exec, 1")
        a("s_lshl_b32 s100, s2, 2"); a("s_add_u32 s100, s100, %d" % WS_DBG); a("v_mov_b32 v25, s100")
        a("buffer_store_dword v24, v25, s[%d:%d], 0 offen sc1" % (SWS, SWS + 3))
    a("s_endpgm")
    for f in deferred: f()

    import gen8h
    gen8h.helper(a, sh_, L, spin_lds)
    gen8h.producer(a, sp_, L, spin_lds)
    a.label("K_END")
    a("s_endpgm")
    if STAMP: print("ffn", sf_.names, "\nhelp", sh_.names, "\nprod", sp_.names)
    return a.finalize()

def wrap(kernels):
    out = []
    for name, grid, block, lds, body, nv in kernels:
        if len(kernels) > 1: out.append("; @launch kernel=%s grid=(%d,1,1) block=(%d,1,1) lds=%d" % (name, grid, block, lds))
        else: out.append("; @launch grid=(%d,1,1) block=(%d,1,1) lds=%d" % (grid, block, lds))
    out.append('.amdgcn_target "amdgcn-amd-amdhsa--gfx950"')
    out.append(".text")
    for name, grid, block, lds, body, nv in kernels:
        out += [".globl %s" % name, ".p2align 8", ".type %s,@function" % name, "%s:" % name, body]
    out.append('.section .rodata,"a"')
    for name, grid, block, lds, body, nv in kernels:
        out += [".p2align 6", ".amdhsa_kernel %s" % name,
                "  .amdhsa_next_free_vgpr %d" % nv, "  .amdhsa_next_free_sgpr 102", "  .amdhsa_accum_offset %d" % ((nv + 3) // 4 * 4),
                "  .amdhsa_group_segment_fixed_size 0", "  .amdhsa_kernarg_size 128", "  .amdhsa_user_sgpr_count 2",
                "  .amdhsa_user_sgpr_kernarg_segment_ptr 1", "  .amdhsa_system_sgpr_workgroup_id_x 1", ".end_amdhsa_kernel"]
    return "\n".join(out) + "\n"

if __name__ == "__main__":
    sys.modules["gen8"] = sys.modules["__main__"]
    NAME = "parallel_sum__ssm_conv_s4__glu_gated_geglu__prompt_kernel"
    ks = [(NAME, 256, 512, LDS, gen(), 256)]
    if os.environ.get("MEAS"):
        b = Asm()
        b("s_cmp_ge_u32 s2, 1"); b("s_cbranch_scc1 K3_END")
        b("s_load_dwordx4 s[4:7], s[0:1], 112"); b("s_waitcnt lgkmcnt(0)")
        srd(b, 8, 6, WS_SIZE); srd(b, 12, 4, 256)
        b("v_lshlrev_b32 v1, 2, v0"); b("v_mov_b32 v10, 0")
        for i in range(4):
            b("s_mov_b32 s22, %d" % (WS_DBG + 128 + i * 256 - (32 if i == 3 else 0) * 4))
            b("buffer_load_dword v4, v1, s[8:11], s22 offen sc1"); b("s_waitcnt vmcnt(0)"); b("v_max_u32 v10, v10, v4")
        b("v_readlane_b32 s30, v10, 0")
        for l in range(1, 64):
            b("v_readlane_b32 s22, v10, %d" % l); b("s_max_u32 s30, s30, s22")
        b("s_mov_b64 exec, 1"); b("v_mov_b32 v1, 0"); b("v_mov_b32 v2, s30")
        b("buffer_store_dword v2, v1, s[12:15], 0 offen"); b("s_waitcnt vmcnt(0)")
        b("s_min_u32 s30, s30, 20000"); b("s_mul_i32 s30, s30, %d" % int(os.environ.get("DM", "4")))
        b("s_memrealtime s[24:25]"); b("s_waitcnt lgkmcnt(0)")
        b.label("K3_L")
        b("s_memrealtime s[26:27]"); b("s_waitcnt lgkmcnt(0)"); b("s_sub_u32 s28, s26, s24"); b("s_cmp_lt_u32 s28, s30"); b("s_cbranch_scc1 K3_L")
        b.label("K3_END"); b("s_endpgm")
        ks = [("k1_kernel",) + ks[0][1:], ("k3_kernel", 1, 64, 0, b.finalize(), 64)]
    open(sys.argv[1] if len(sys.argv) > 1 else "k.s", "w").write(wrap(ks))
```

```python
import math, os, sys, struct
from asmlib import Asm
def fbits(x): return "0x%08x" % struct.unpack("<I", struct.pack("<f", x))[0]
LOG2E = math.log2(math.e)
def vr(b, n=1): return "v%d" % b if n == 1 else "v[%d:%d]" % (b, b + n - 1)
EXP = os.environ.get('EXP', '')
STAMP = int(os.environ.get("STAMP", "0"))
RT = os.environ.get("RT", "")
MAPB = int(os.environ.get("MAPB", "0"))
WS_H = 0; WS_XNT = 8 << 20; WS_KREV = 12 << 20; WS_KSC = 16 << 20
WS_HF = 17 << 20
WS_CF = (17 << 20) + (1 << 19)
WS_PF = 18 << 20
WS_FR = WS_PF + 131072
WS_FC = WS_FR + 8192
WS_RC = 19 << 20; WS_CS = (19 << 20) + 65536
WS_YAT = 20 << 20; WS_DBG = 24 << 20; WS_SIZE = 32 << 20
KSTRIDE = 4160
SPIN = 0x8000

def srd(a, d, p, nbytes):
    a("s_mov_b32 s%d, s%d" % (d, p))
    a("s_and_b32 s%d, s%d, 0xffff" % (d + 1, p + 1))
    a("s_mov_b32 s%d, 0x%x" % (d + 2, nbytes))
    a("s_mov_b32 s%d, 0x00020000" % (d + 3))

SX, SWG, SWU, SWS, SWD, SOUT, SDBG = 40, 44, 48, 52, 56, 60, 64
sWV, sR, sF, sWR, sWC, sRT2, sCT = 68, 69, 70, 71, 72, 73, 74
sLD = 75
sT0, sT1, sT2, sT3 = 76, 77, 78, 79
sOX, sOW, sWB, sCNT = 80, 81, 82, 83
sNON = 84
sPM = 86
sCH, sHF, sKW, sSC, sINV = 3, 4, 5, 6, 7
sONES, sCVB, sSTG = 38, 39, 36
STB = 88

class Stamps:
    def __init__(self, a, base=None):
        self.a = a; self.n = base.n if base else 0; self.names = list(base.names) if base else []; self.ffn = False
    def __call__(self, name):
        if os.environ.get("MEAS") == name and self.ffn:
            self.a("s_memrealtime s[100:101]"); self.a("s_waitcnt lgkmcnt(0)"); self.a("s_mov_b32 s99, s100")
        if not STAMP: return
        if RT == "1" and name not in ("start", "end"): return
        if "su" in EXP and self.n >= 11 and name != "end": return
        if "f2a" in EXP and not (name in ("start", "flag1", "hpoll") or (name[:2] == "s_" and int(name[2:]) < 9)) and self.ffn: return
        if "f2b" in EXP and not (name in ("start", "f2end", "end") or (name[:2] == "s_" and int(name[2:]) >= 5)) and self.ffn: return
        if name[:2] == "s_" and "f2" not in EXP: return
        if name[:2] == "l_" and "lp" not in EXP: return
        if "lp" in EXP and self.ffn and not (name[:2] == "l_" or name in ("start", "st0", "loopend", "gelu")): return
        assert self.n < 12, name
        self.a("%s s[100:101]" % ("s_memrealtime" if RT else "s_memtime"))
        self.a("s_waitcnt lgkmcnt(0)")
        self.a("s_mov_b32 s%d, s100" % (STB + self.n))
        self.n += 1; self.names.append(name)
    def store(self, vt):
        if not STAMP: return
        a = self.a
        a("s_lshl_b32 s100, s2, 4"); a("s_add_u32 s100, s100, s%d" % sWV); a("s_lshl_b32 s100, s100, 6")
        a("s_add_u32 s100, s100, %d" % WS_DBG)
        a("s_mov_b64 exec, 1")
        a("v_mov_b32 v%d, s100" % vt)
        for i in range(self.n):
            a("v_mov_b32 v%d, s%d" % (vt + 1, STB + i))
            a("buffer_store_dword v%d, v%d, s[%d:%d], 0 offen offset:%d" % (vt + 1, vt, SWS, SWS + 3, 4 * i))
            a("s_waitcnt vmcnt(0)")
        a("s_mov_b64 exec, -1")

ENV = lambda k, d: int(os.environ.get(k, str(d)))
L_W = 0
L_X = [65536, 98304 + 17408, 81920]
RING = 98304
STG_W = 4352; L_STG = RING
L_CV = RING + 4 * STG_W
CPS = 4160; O_U = 4 * CPS; CV_CH = O_U + 4608
L_SYNC = L_CV + 2 * CV_CH
L_FL = L_SYNC + 512
FLS = 320
LDS = L_FL + 4 * FLS
assert L_X[1] == L_CV and LDS <= 163840
Y_CNT = 0; Y_RDA = 8; Y_RDB = 9; Y_NON = 16; Y_KX = 24; Y_C0 = 28; Y_BL = 32; Y_CX = 36; Y_XR = 40; Y_YA = 44; Y_KEXP = 48; Y_RD = 64; Y_TR = 68; Y_WS = 72; Y_U = 76
NSTA = ENV('NSTA', 5)
WDS = [32768, 49152, 81920, 0, 16384, 65536]
CSM = 1792 * 8
sFW = 36; sHD = 37
FSH = ENV('FSH', 8)

def gen():
    a = Asm()
    lab = [0]
    def L(p): lab[0] += 1; return "%s_%d" % (p, lab[0])
    st_ = Stamps(a)
    def spin_lds(addr, tmp, need, width="u8", slp=1, off=0):
        l1, l2 = L("SP"), L("SD")
        a("s_mov_b32 s%d, %d" % (sCNT, SPIN))
        a.label(l1)
        a("ds_read_%s v%d, v%d offset:%d" % (width, tmp, addr, off))
        a("s_waitcnt lgkmcnt(0)")
        a("v_cmp_gt_u32 vcc, %d, v%d" % (need, tmp))
        a("s_cbranch_vccz %s" % l2)
        if slp: a("s_sleep %d" % slp)
        a("s_sub_u32 s%d, s%d, 1" % (sCNT, sCNT))
        a("s_cmp_lg_u32 s%d, 0" % sCNT)
        a("s_cbranch_scc1 %s" % l1)
        a.label(l2)

    a("s_cmp_ge_u32 s2, 256")
    a("s_cbranch_scc1 K_END")
    st_("start")
    a("s_load_dwordx16 s[16:31], s[0:1], 0")
    a("s_load_dwordx4 s[32:35], s[0:1], 80")
    a("s_load_dwordx8 s[8:15], s[0:1], 96")
    a("v_lshrrev_b32 v1, 6, v0")
    a("v_readfirstlane_b32 s%d, v1" % sWV)
    a("v_and_b32 v1, 63, v0")
    CPF = ENV("CPF", 8)
    if CPF:
        a("s_cmp_ge_u32 s2, %d" % CPF)
        a("s_cbranch_scc1 K_NPF")
        a.begin_opt()
        a("s_getpc_b64 s[4:5]")
        a.label("K_PFB")
        a("v_lshlrev_b32 v2, 7, v0")
        a("v_min_u32 v2, K_END-K_PFB, v2")
        a("global_load_dword v255, v2, s[4:5]")
        a.end_opt()
        a.label("K_NPF")
    a("s_cmp_lt_u32 s2, 32")
    a("s_cbranch_scc1 K_PROD")
    a("s_and_b32 s%d, s2, 7" % sT0)
    a("s_lshr_b32 s%d, s2, 3" % sT1)
    a("s_sub_u32 s%d, s%d, 4" % (sT1, sT1))
    a("s_lshr_b32 s%d, s%d, 1" % (sT2, sT0)); a("s_lshl_b32 s%d, s%d, 2" % (sT2, sT2))
    a("s_and_b32 s%d, s%d, 3" % (sT3, sT1)); a("s_add_u32 s%d, s%d, s%d" % (sR, sT2, sT3))
    a("s_and_b32 s%d, s%d, 1" % (sT2, sT0)); a("s_mul_i32 s%d, s%d, 7" % (sT2, sT2))
    a("s_lshr_b32 s%d, s%d, 2" % (sCT, sT1)); a("s_add_u32 s%d, s%d, s%d" % (sF, sT2, sCT))
    a("s_lshl_b32 s%d, s%d, 2" % (sRT2, sT0)); a("s_add_u32 s%d, s%d, s%d" % (sRT2, sRT2, sT3))
    a("s_cmp_ge_u32 s%d, 4" % sWV)
    a("s_cbranch_scc1 K_HELP")
    sf_ = Stamps(a, st_); sf_.ffn = True; sh_ = Stamps(a, st_); sp_ = Stamps(a, st_)
    NST = 14
    a("s_setprio %d" % ENV("FPRIO", 2))
    a("s_and_b32 s%d, s%d, 1" % (sWR, sWV))
    a("s_lshr_b32 s%d, s%d, 1" % (sWC, sWV))
    a("s_lshl_b32 s%d, s%d, 11" % (sWB, sWV))
    a("s_lshl_b32 s%d, s%d, 12" % (sOX, sWV))
    a("v_lshrrev_b32 v2, 3, v1")
    a("s_lshl_b32 s%d, s%d, 7" % (sT0, sR))
    a("s_lshl_b32 s%d, s%d, 5" % (sT1, sWV))
    a("s_add_u32 s%d, s%d, s%d" % (sT0, sT0, sT1))
    a("v_add_u32 v2, s%d, v2" % sT0)
    a("v_mul_u32_u24 v2, 896, v2")
    a("v_lshrrev_b32 v5, 4, v1")
    a("v_xor_b32 v6, v1, v5")
    a("v_and_b32 v6, 7, v6")
    a("v_xor_b32 v7, 4, v6")
    a("v_lshl_add_u32 v3, v7, 4, v2")
    a("v_add_u32 v3, %d, v3" % (8 * 896 - 1024))
    a("v_lshl_add_u32 v2, v6, 4, v2")
    a("v_add_u32 v56, %d, v2" % (16 * 896 - 2048)); a("v_add_u32 v57, %d, v3" % (16 * 896 - 2048))
    a("v_mul_u32_u24 v4, 3584, v5")
    a("v_lshlrev_b32 v6, 2, v5")
    a("v_xor_b32 v6, v1, v6")
    a("v_and_b32 v6, 15, v6")
    a("v_lshl_add_u32 v4, v6, 4, v4")
    a("s_lshl_b32 s%d, s%d, 8" % (sT0, sF))
    a("s_mul_i32 s%d, s%d, %d" % (sT1, sWV, 8 * 3584)); a("s_add_u32 s%d, s%d, s%d" % (sT0, sT0, sT1))
    a("v_add_u32 v4, s%d, v4" % sT0)
    a("v_add_u32 v58, %d, v4" % (4 * 3584 - 2048))
    a("s_mul_i32 s%d, s%d, %d" % (sFW, sWV, FLS)); a("s_add_u32 s%d, s%d, %d" % (sFW, sFW, L_FL))
    ROT = ENV("ROT", 0); ROT1 = ENV("ROT1", 0); ROT2 = ENV("ROT2", 0)
    RJ = [3, 4, 5, 6, 7, 38, 39]
    a("s_lshl_b32 s%d, s%d, 1" % (sT0, sT3)); a("s_add_u32 s%d, s%d, s%d" % (sT0, sT0, sCT)); a("s_lshl_b32 s%d, s%d, 7" % (sT0, sT0))
    for i in range(7 if ROT or ROT1 else 1 if ROT2 else 0):
        a("s_sub_u32 s%d, s%d, 896" % (sT1, sT0)); a("s_cmp_ge_u32 s%d, 896" % sT0); a("s_cselect_b32 s%d, s%d, s%d" % (RJ[i], sT1, sT0))
        if i < 6: a("s_add_u32 s%d, s%d, 128" % (sT0, RJ[i]))
    a("s_waitcnt lgkmcnt(0)")
    VFL, VFA = 50, 51
    cur = {}
    def setr(r, txt):
        def f():
            if cur.get(r) != txt: cur[r] = txt; a0(txt)
        return f
    a0 = a
    sOW2, sOWX = 5, 6
    def dma_x(b):
        return [[setr("m0", "s_add_u32 m0, s%d, %d" % (sOX, L_X[b % 3])), setr("ox", "s_movk_i32 s%d, %d" % (sOWX, b * 128)),
                 ("buffer_load_dwordx4 v%d, s[%d:%d], s%d offen offset:%d lds" % ((2, 3, 56, 57)[i], SX, SX + 3, sOWX, i * 1024), ("x", b))] for i in range(4)]
    def dma_w(st):
        out = []
        for i in range(2):
            for mat in range(2):
                S = (SWG, SWU)[mat]
                if st == 0 and mat:
                    out.append([setr("m0", "s_add_u32 m0, s%d, %d" % (sOX, L_W + 1024)),
                                ("buffer_load_dwordx4 v%d, s[%d:%d], 0 offen offset:%d lds" % ((4, 58)[i], S, S + 3, i * 2048), ("w", st))])
                    continue
                so = (sOW, sOW2)[mat]
                out.append([setr("m0", "s_add_u32 m0, s%d, %d" % (sOX, L_W + (st % 4) * 16384)), setr(so, "s_mov_b32 s%d, %d" % (so, st * 32 * 3584 - mat * 1024)),
                            ("buffer_load_dwordx4 v%d, s[%d:%d], s%d offen offset:%d lds" % ((4, 58)[i], S, S + 3, so, i * 2048 + mat * 1024), ("w", st))])
        if st == 0: out = [out[0], out[2], out[1], out[3]]
        return out
    def dflag(idx):
        return [setr("m0", "s_mov_b32 m0, s%d" % sFW), ("global_load_lds_dword v%d, s[30:31] offset:%d" % (VFL, 4 * idx), "fl")]
    def emit(g, a=a):
        for x in g:
            if callable(x): x()
            elif isinstance(x, tuple) and x[0].startswith("ds_"): a.ds(x[0], x[1])
            elif isinstance(x, tuple): a.vm(x[0], x[1])
            else: a(x)
    srd(a, SX, 16, 2048 * 896)
    for g in dma_x(0): emit(g)
    srd(a, SWG, 32, 448 * 3584)
    srd(a, SWU, 34, 448 * 3584)
    for g in dma_w(0): emit(g)
    a("v_mov_b32 v%d, 0" % VFL)
    a("s_getpc_b64 s[30:31]")
    a.label("K_TB")
    a("s_add_u32 s30, s30, K_TAB-K_TB"); a("s_addc_u32 s31, s31, 0")
    a("s_barrier")
    emit(dflag(0))
    Q = []
    for k in range(1, 14):
        if k % 2 == 0: Q += [(max(0, k - 4), g) for g in dma_x(k // 2)]
        w_ = dma_w(k); w_[-1] = w_[-1] + dflag(k)
        Q += [(max(0, k - 3), g) for g in w_]
    NPRE = ENV("NPRE", 12)
    pend = [g for _, g in Q[:NPRE]]; Q = Q[NPRE:]
    a_real = a
    ILN = ENV("ILN", 4)
    class IL:
        def __init__(s_): s_.n = 0
        def __call__(s_, t):
            a_real(t); s_.n += 1
            if s_.n % ILN == 0 and pend: emit(pend.pop(0))
    a = IL()
    a("v_lshlrev_b32 v15, 2, v1")
    a("v_and_b32 v11, 3, v1"); a("v_mul_u32_u24 v%d, %d, v11" % (VFA, FLS)); a("v_add_u32 v11, %d, v11" % (L_SYNC + Y_CNT))
    a("v_add_u32 v%d, %d, v%d" % (VFA, L_FL + 64, VFA))
    a("s_add_u32 s%d, s%d, %d" % (sT0, sWV, L_SYNC + Y_CNT)); a("v_mov_b32 v12, s%d" % sT0)
    a("v_add_u32 v13, %d, v15" % (L_SYNC + 128)); a("v_cmp_eq_u32 vcc, 0, v1"); a("v_cndmask_b32 v12, v13, v12, vcc")
    a("v_mov_b32 v10, %d" % (L_SYNC + Y_RDA))
    a("v_and_b32 v16, 31, v1")
    a("s_lshl_b32 s%d, s%d, 6" % (sT0, sWR))
    a("v_add_u32 v22, s%d, v16" % sT0)
    a("v_lshrrev_b32 v17, 5, v1")
    a("v_bfe_u32 v18, v1, 1, 3")
    a("v_xor_b32 v18, v17, v18")
    a("v_lshlrev_b32 v5, 7, v22")
    a("v_lshl_add_u32 v5, v18, 4, v5")
    a("v_add_u32 v5, 65536, v5")
    a("v_xor_b32 v6, 32, v5"); a("v_xor_b32 v7, 64, v5"); a("v_xor_b32 v8, 96, v5")
    a("v_bfe_u32 v19, v1, 2, 2")
    a("v_lshl_add_u32 v20, v17, 4, v19")
    a("v_lshlrev_b32 v9, 8, v20")
    a("v_bfe_u32 v20, v1, 4, 1"); a("v_lshlrev_b32 v20, 1, v20")
    a("v_bfe_u32 v21, v1, 1, 1"); a("v_add_u32 v20, v20, v21")
    a("s_lshl_b32 s%d, s%d, 3" % (sT0, sWC))
    a("v_add_u32 v20, s%d, v20" % sT0)
    a("v_lshlrev_b32 v21, 2, v19")
    a("v_xor_b32 v20, v20, v21")
    a("v_lshl_add_u32 v9, v20, 4, v9")
    a("v_and_b32 v21, 1, v1")
    a("v_lshl_add_u32 v9, v21, 3, v9")
    a("v_xor_b32 v0, 64, v9")
    srd(a, SWS, 14, WS_SIZE)
    srd(a, SWD, 8, 1792 * 896)
    srd(a, SOUT, 10, 2048 * 896)
    a("s_lshl_b32 s%d, s%d, 11" % (sT0, sR)); a("s_add_u32 s%d, s%d, %d" % (sT0, sT0, WS_RC))
    a("v_lshl_add_u32 v18, v22, 4, s%d" % sT0)
    a("s_lshl_b32 s%d, s%d, 10" % (sT0, sF)); a("s_lshl_b32 s%d, s%d, 9" % (sT1, sWC)); a("s_add_u32 s%d, s%d, s%d" % (sT0, sT0, sT1))
    a("s_add_u32 s%d, s%d, %d" % (sT0, sT0, WS_CS))
    a("v_lshl_add_u32 v19, v16, 3, s%d" % sT0)
    a("v_lshl_add_u32 v19, v17, 2, v19")
    a("s_lshl_b32 s%d, s%d, 1" % (sT0, sR))
    a("s_add_u32 s%d, s%d, s%d" % (sT0, sT0, sWR))
    a("s_lshl_b32 s%d, s%d, 1" % (sT1, sF))
    a("s_add_u32 s%d, s%d, s%d" % (sT1, sT1, sWC))
    a("s_lshl_b32 s%d, s%d, 8" % (sT2, sT0)); a("s_add_u32 s%d, s%d, %d" % (sT2, sT2, WS_FR)); a("v_mov_b32 v15, s%d" % sT2)
    a("s_lshl_b32 s%d, s%d, 8" % (sT2, sT1)); a("s_add_u32 s%d, s%d, %d" % (sT2, sT2, WS_FC)); a("v_writelane_b32 v15, s%d, 1" % sT2)
    a("s_mul_i32 s%d, s%d, 37" % (sT3, sT1)); a("s_lshr_b32 s%d, s%d, 8" % (sT3, sT3)); a("s_add_u32 s%d, s%d, s%d" % (sT3, sT3, sT1))
    a("s_lshl_b32 s%d, s%d, 1" % (sT1, sT1))
    a("s_lshl_b32 s%d, s%d, 5" % (sT2, sT0)); a("s_add_u32 s%d, s%d, s%d" % (sT2, sT2, sT3)); a("s_lshl_b32 s%d, s%d, %d" % (sT2, sT2, FSH))
    a("s_add_u32 s%d, s%d, %d" % (sT2, sT2, WS_HF))
    a("v_mov_b32 v21, s%d" % sT2)
    a("s_mul_i32 s%d, s%d, 56" % (sT0, sT0))
    a("s_add_u32 s%d, s%d, s%d" % (sT0, sT0, sT1))
    a("s_lshl_b32 s%d, s%d, 12" % (sT0, sT0))
    a("v_and_b32 v20, 15, v1")
    a("v_lshlrev_b32 v20, 4, v20")
    a("v_bfe_u32 v22, v1, 4, 1")
    a("v_lshl_add_u32 v20, v22, 10, v20")
    a("v_lshl_add_u32 v20, v17, 8, v20")
    a("v_add_u32 v20, s%d, v20" % sT0)
    a("s_mov_b32 s%d, 0" % sLD)
    CA_, CB_ = 32, 42
    for r in range(33, 50):
        if r not in (34, 36, 38, 42, 46): a("v_mov_b32 v%d, 0" % r)
    a("v_lshrrev_b32 v16, 3, v1")
    a("s_mul_i32 s%d, s%d, %d" % (sT0, sWV, 448 * 896))
    a("v_mul_u32_u24 v16, 896, v16")
    a("s_lshl_b32 s%d, s%d, 7" % (sT1, sCT)); a("s_add_u32 s%d, s%d, s%d" % (sT0, sT0, sT1))
    a("v_add_u32 v16, s%d, v16" % sT0)
    a("v_xor_b32 v17, v1, v22"); a("v_and_b32 v17, 7, v17")
    a("v_lshl_add_u32 v52, v17, 4, v16")
    for q in range(1, 4): a("v_add_u32 v%d, %d, v52" % (52 + q, q * (8 * 896 - 1024)))
    a = a_real
    while pend: emit(pend.pop(0))
    ACC = lambda ff, mat, tt: 128 + 64 * ff + 32 * mat + 16 * tt
    FR = [80, 104]
    RC = [24, 28]
    NW = 6
    J = lambda s: 2 * (s % 7) + s // 7
    WDV = [52, 52]
    def dma_wd(s):
        if "now" in EXP and s >= 6: return []
        if s < 6:
            return [[setr("m0", "s_add_u32 m0, s%d, %d" % (sOX, WDS[s % NW])), setr(sOW, "s_mov_b32 s%d, %d" % (sOW, J(s) * 32 * 896)),
                     ("buffer_load_dwordx4 v%d, s[%d:%d], s%d offen offset:%d lds" % (52 + q, SWD, SWD + 3, sOW, q * 1024), ("wd", s))] for q in range(4)]
        return [["s_add_u32 m0, s%d, %d" % (sOX, WDS[s % NW] + q * 1024), "s_mov_b32 s%d, %d" % (sOW, (J(s) * 32 + 8 * q) * 896),
                 ("buffer_load_dwordx4 v2, s[%d:%d], s%d offen lds" % (SWD, SWD + 3, sOW), ("wd", s))] for q in range(4)]
    def rd_frags(st, kk):
        fb = FR[kk]
        slot = st % 4
        xo = L_X[(st >> 1) % 3] - 65536
        xa = 5 + 2 * (st & 1) + kk
        def wr(ff, mat):
            return [("ds_read_b64_tr_b16 %s, v%d offset:%d" % (vr(fb + 8 + 8 * ff + 4 * mat + 2 * half, 2), (9, 0)[ff], L_W + slot * 16384 + mat * 1024 + kk * 8192 + half * 2048), ("fr", st, kk, ff, mat)) for half in range(2)]
        xr = lambda tt: [("ds_read_b128 %s, v%d offset:%d" % (vr(fb + 4 * tt, 4), xa, xo + tt * 4096), ("fx", st, kk, tt))]
        return [xr(0) + wr(0, 0), xr(1), wr(0, 1), wr(1, 0), wr(1, 1)]
    def mfmas(kk, first=False):
        fb = FR[kk]
        return ["v_mfma_f32_32x32x16_bf16 %s, %s, %s, %s" % (vr(ACC(ff, mat, tt), 16), vr(fb + 8 + 8 * ff + 4 * mat, 4), vr(fb + 4 * tt, 4), "0" if first else vr(ACC(ff, mat, tt), 16))
                for ff in range(2) for mat in range(2) for tt in range(2)]
    def inter(st, kk, groups):
        for i, m in enumerate(mfmas(kk, st == 0 and kk == 0)):
            ff, mat, tt = i >> 2, (i >> 1) & 1, i & 1
            if i == 1: a.wait_ds(("fx", st, kk, 1))
            a.wait_ds(("fr", st, kk, ff, mat))
            a(m)
            for sl, g in groups:
                if sl == i: emit(g)
    def arrive(v, off=0):
        a("v_mov_b32 v13, %d" % v)
        a.ds("ds_write_b8 v12, v13 offset:%d" % off, "sig")
    deferred = []
    chk0 = [0]
    def check(v, kind):
        if "nochk" in EXP and 1 < len(a.vmq) and v < 14 and chk0[0]: return
        chk0[0] = 1
        a("s_getpc_b64 s[20:21]")
        a("v_cmp_gt_u32 vcc, %d, v%d" % (v, 14 if kind == "F" else 16))
        a("s_cbranch_vccnz K_RT_%s" % kind)
    def retries():
        a("s_mov_b32 s18, %d" % (SPIN * 4))
        a("s_branch K_RTE")
        for kind in ("R", "F"):
            r = 14 if kind == "F" else 16
            a.label("K_RT_%s" % kind)
            a("ds_read_b32 v14, v%d" % VFA if kind == "F" else "ds_read_u8 v16, v11 offset:%d" % Y_RD)
            a("s_sub_i32 s18, s18, 1"); a("s_max_i32 s18, s18, 0")
            a("s_cmp_eq_u32 s18, 0"); a("s_cselect_b32 s19, 255, 0")
            a("s_waitcnt lgkmcnt(0)")
            a("v_or_b32 v%d, s19, v%d" % (r, r))
            a("s_setpc_b64 s[20:21]")
        a.label("K_RTE")
    def const_loads():
        for tt in range(2):
            a("buffer_load_dwordx4 %s, v18, s[%d:%d], 0 offen offset:%d" % (vr(RC[tt], 4), SWS, SWS + 3, tt * 512))
        a("s_movk_i32 s%d, %d" % (sT0, CSM))
        for ff in range(2):
            a("buffer_load_dword v%d, v19, s[%d:%d], 0 offen offset:%d" % (CA_ + 4 * ff, SWS, SWS + 3, ff * 256))
            a("buffer_load_dword v%d, v19, s[%d:%d], s%d offen offset:%d" % (CA_ + 4 * ff + 2, SWS, SWS + 3, sT0, ff * 256))
        a("s_mov_b32 s%d, 1" % sLD)
    def get_non():
        a.wait_ds("non")
        a("v_readfirstlane_b32 s%d, v22" % sNON); a("v_readfirstlane_b32 s%d, v23" % (sNON + 1))
    def pollA():
        a.vm("buffer_load_dword v17, v15, s[%d:%d], 0 offen sc1" % (SWS, SWS + 3), "pf")
    def try_const():
        l = L("CL"); lo = L("CLO")
        a.wait_vm("pf")
        a("v_cmp_ne_u32 vcc, s%d, v17" % sNON)
        a("s_cbranch_vccz %s" % lo)
        a.label(l)
        a.mark("cst")
        def slow():
            a.label(lo)
            a("s_cmp_eq_u32 s%d, 0" % (sNON + 1))
            a("s_cbranch_scc1 %s" % l)
            a("s_cmp_lg_u32 s%d, 0" % sLD)
            a("s_cbranch_scc1 %s" % l)
            const_loads()
            a("s_branch %s" % l)
        deferred.append(slow)
    PA = ENV("PA", 3)
    RS = [int(c) for c in os.environ.get("RS", "01245")]
    TP = [int(c) for c in os.environ.get("TP", "9,11").split(",")]
    EARLY = ENV("EARLY", 1)
    retries()
    a("v_mov_b32 v14, 0")
    check(1, "F")
    a.dsq = []
    sf_("st0")
    a("s_setprio %d" % ENV("LPRIO", 3))
    poll = [("ds_read_b32 v14, v%d" % VFA, "pA")]
    for g in rd_frags(0, 0): emit(g)
    DMX = ENV("DMX", 6)
    if EARLY: Q += [(11, g) for g in dma_wd(0)] + [(12, g) for g in dma_wd(1) + dma_wd(2)] + [(13, g) for g in dma_wd(3)]
    SD = []
    for st in range(NST):
        D = []
        while Q and Q[0][0] <= st and len(D) < (DMX if st else 8): D.append(Q.pop(0)[1])
        SD.append(D)
    assert not Q
    if ENV("VERB", 0): print("DMA per stage", [len(d) for d in SD])
    stageD = lambda st: SD[st]
    for st in range(NST):
        if st in (7,) and not NSTA: sf_("st%d" % st)
        if st in (1, 2, 3, 4, 6, 8, 10, 12): sf_("l_%d" % st)
        D = stageD(st)
        DS = [(int(x) // 8, int(x) % 8) for x in os.environ.get("DS", "4,6,9,11,13,15").split(",")] if len(D) <= 6 else [(0, 3), (0, 5), (0, 7), (1, 1), (1, 2), (1, 4), (1, 5), (1, 7)]
        if st == 0: DS = [(0, 0), (0, 2), (0, 4), (0, 6), (1, 1), (1, 3), (1, 5), (1, 7)]
        G = []
        G += [(RS[i], g) for i, g in enumerate(rd_frags(st, 1))]
        if st + 1 in TP: G.append((5, [("ds_read_b64 v[22:23], v10 offset:%d" % (Y_NON - Y_RDA), "non")]))
        if st - 2 in TP: G.append((0, [try_const]))
        if st in TP: G.append((1, [get_non, pollA]))
        if D and st: G.append((ENV("RCK", 3), [lambda: a.wait_ds("pR"), lambda st=st: check(st, "R")]))
        G += [(DS[i][1], g) for i, g in enumerate(D) if DS[i][0] == 0]
        if st + 1 < NST: G.append((PA, poll))
        if ENV("ARS", 5) < 8: G.append((ENV("ARS", 5), [lambda st=st: arrive(st + 1, Y_RD)]))
        inter(st, 0, G)
        G = []
        if st + 1 < NST:
            G.append((0, [lambda: a.wait_ds("pA"), lambda st=st: check(st + 2, "F")]))
            G += [(RS[i], g) for i, g in enumerate(rd_frags(st + 1, 0))]
        if ENV("ARS", 5) >= 8: G.append((ENV("ARS", 5) - 8, [lambda st=st: arrive(st + 1, Y_RD)]))
        G += [(DS[i][1], g) for i, g in enumerate(D) if DS[i][0] == 1]
        if st + 1 == NST or stageD(st + 1): G.append((ENV("PRS", 7), [("ds_read_u8 v16, v11 offset:%d" % Y_RD, "pR")]))
        inter(st, 1, G)
    sf_("loopend")
    a("s_setprio %d" % ENV("GPRIO", 1))
    l = L("CL"); lo = L("CLO"); l1 = L("CLP"); l2 = L("CLP")
    a("s_cmp_eq_u32 s%d, 0" % sLD)
    a("s_cbranch_scc1 %s" % lo)
    a.wait_vm("cst")
    a.label(l)
    def slow(l=l, lo=lo):
        a.label(lo)
        a("s_mov_b32 s%d, %d" % (sCNT, SPIN))
        a.label(l1)
        a("ds_read_b64 v[22:23], v10 offset:%d" % (Y_NON - Y_RDA))
        a("buffer_load_dword v17, v15, s[%d:%d], 0 offen sc1" % (SWS, SWS + 3))
        a("s_waitcnt vmcnt(0) lgkmcnt(0)")
        a("v_readfirstlane_b32 s%d, v22" % sNON); a("v_readfirstlane_b32 s%d, v23" % (sNON + 1))
        a("v_cmp_ne_u32 vcc, s%d, v17" % sNON)
        a("s_cmp_eq_u32 s%d, 0" % (sNON + 1))
        a("s_cselect_b64 s[%d:%d], -1, vcc" % (sT0, sT0 + 1))
        a("s_cmp_eq_u64 s[%d:%d], 0" % (sT0, sT0 + 1))
        a("s_cbranch_scc1 %s" % l2)
        a("s_sleep 2")
        a("s_sub_u32 s%d, s%d, 1" % (sCNT, sCNT)); a("s_cmp_lg_u32 s%d, 0" % sCNT)
        a("s_cbranch_scc1 %s" % l1)
        a.label(l2)
        const_loads()
        a("s_waitcnt vmcnt(0)")
        a("s_branch %s" % l)
    deferred.append(slow)
    for tt in range(2): a("v_mov_b32 v%d, v%d" % (CB_ + 4 * tt, RC[tt]))
    corr = ["v_mfma_f32_32x32x16_bf16 %s, %s, %s, %s" % (vr(ACC(ff, mat, tt), 16), vr(CA_ + 4 * ff + 2 * mat, 4), vr(CB_ + 4 * tt, 4), vr(ACC(ff, mat, tt), 16))
            for ff in range(2) for tt in range(2) for mat in range(2)]
    a(corr[0]); a(corr[1])
    a("v_mov_b32 v2, v52"); WDV = [2, 2]
    a("s_lshl_b32 s%d, s%d, 2" % (sT0, sRT2)); a("s_add_u32 s%d, s%d, s%d" % (sT0, sT0, sWV)); a("s_lshl_b32 s%d, s%d, %d" % (sT0, sT0, FSH + 3))
    a("s_add_u32 s%d, s%d, %d" % (sT0, sT0, WS_HF))
    a("v_lshrrev_b32 v8, 1, v1"); a("v_lshlrev_b32 v8, %d, v8" % FSH); a("v_and_b32 v14, 1, v1"); a("v_lshl_add_u32 v8, v14, 2, v8")
    a("v_add_u32 v8, s%d, v8" % sT0)
    a(corr[2])
    TRB = [[4, 5], [6, 7]]
    a("v_bfe_u32 v13, v1, 2, 2"); a("v_lshrrev_b32 v14, 4, v1")
    a("v_lshl_add_u32 v13, v14, 3, v13")
    a("v_lshlrev_b32 v13, 7, v13")
    a("v_and_b32 v14, 3, v1")
    a("v_lshl_add_u32 v13, v14, 5, v13")
    a("v_bfe_u32 v14, v1, 3, 1")
    a("v_lshl_add_u32 v13, v14, 4, v13")
    a("v_add_u32 v4, s%d, v13" % sOX)
    a("v_xor_b32 v5, 16, v4")
    a("v_add_u32 v6, 65536, v4"); a("v_add_u32 v7, 65536, v5")
    a(corr[3])
    a("s_mov_b32 s%d, %d" % (sHD, 0x2aaa if "nogate" in EXP else 0))
    a.wait_ds("pR")
    check(14, "R")
    a.dsq = []
    sf_("stats")
    NV = ENV("NV", 6); NG = ENV("NG", 0)
    GST = ENV('GST', 0)
    WBK = [160, 128, 176, 144, 64, 112] if GST else [80, 96, 32, 48, 160, 128, 176, 144]
    OB = [80, 96, 32]
    WB = {s: WBK[s] for s in range(NV)}
    def trw(s):
        a.wait_vm(("wd", s))
        hi = WDS[s % NW] >= 65536; of = WDS[s % NW] - 65536 * hi
        for ct in range(4):
            for hf in range(2):
                a.ds("ds_read_b64_tr_b16 %s, v%d offset:%d" % (vr(WB[s] + 4 * ct + 2 * hf, 2), TRB[hi][ct >> 1], of + hf * 512 + 8 * (ct & 1)), ("tw", s))
    HA = [9, 3, 0, 10]
    def hpoll(r=14, tag="hp"):
        a("s_mov_b64 exec, 0x3fff")
        a.vm("buffer_load_dword v%d, v8, s[%d:%d], 0 offen sc1" % (r, SWS, SWS + 3), tag)
        a("s_mov_b64 exec, -1")
    def flag(ff, trk=True):
        if "noflag1" in EXP and ff == 1:
            a.wait_vm(("hst", ff)); return
        if trk: a.wait_vm(("hst", ff))
        a("s_mov_b64 exec, 1")
        t = "buffer_store_dword v22, v21, s[%d:%d], 0 offen offset:%d sc1" % (SWS, SWS + 3, ff * 4)
        if trk: a.vm(t, "hfl")
        else: a(t)
        a("s_mov_b64 exec, -1")
    GD = ENV("GD", 11); GP = 9; PKG = ENV("PKG", 0)
    ev = []
    def at(t, item): ev.append((t, len(ev), item))
    BT = 8 * GP
    for i in range(4, 8): at((i - 4) * 6 + 2, corr[i])
    def sched_dma(t, s, dt=5):
        for q, g in enumerate(dma_wd(s)): at(t + q * dt, lambda g=g: emit(g))
    if EARLY:
        sched_dma(0.1, 4); sched_dma(24.1, 5)
        TW = [float(x) for x in os.environ.get("TW", "0.7,1.4,2.1,2.8,3.5,4.2,5.0,5.7").split(",")]
    else:
        for s in range(6): sched_dma(s * BT + 0.1, s)
        TW = [float(x) for x in os.environ.get("TW", "3,4,5,6,7,8").split(",")]
    if GST:
        for n in range(12):
            def ld_own(n=n):
                emit([setr(sOW, "s_mov_b32 s%d, %d" % (sOW, J(6 + n // 4) * 32 * 896)),
                      ("buffer_load_dwordx4 %s, v%d, s[%d:%d], s%d offen offset:%d" % (vr(OB[n // 4] + 4 * (n % 4), 4), 52 + n % 4, SWD, SWD + 3, sOW, (n % 4) * 1024), "own")])
            at(ENV("GT0", 60) + ENV("GTD", 10) * n + 0.2, ld_own)
    NGT = ENV("NGT", 0)
    for s in range(max(NG, NGT)):
        assert TW[s] * BT > [0, 0, 30, 30, 15 * GP + 4 * GD, 15 * GP + 8 * GD, 31 * GP + 4 * GD, 31 * GP + 8 * GD][s]
        at(TW[s] * BT, lambda s=s: trw(s))
        if s < NG:
            at(TW[s] * BT + 20, lambda s=s: a.wait_ds(("tw", s)))
            sched_dma(TW[s] * BT + 20.1, s + NW)
    at(float(os.environ.get("TF0", "7")) * BT - 0.5, lambda: flag(0))
    n = 0
    for ff in range(2):
        for tt in range(2):
            r0 = RC[tt]
            for qp in range(2):
                blk = n // 8
                HP = 112 + 4 * (blk & 3)
                for q2 in range(2):
                    q = 2 * qp + q2
                    for e in range(4):
                        g = ACC(ff, 0, tt) + 4 * q + e; u = ACC(ff, 1, tt) + 4 * q + e; T = 64 + (n & 15)
                        if PKG:
                            P2 = lambda r: vr(r, 2)
                            ops = [(3, "v_exp_f32 v%d, v%d" % (T, T)), (6, "v_rcp_f32 v%d, v%d" % (T, T))]
                            if e & 1 == 0:
                                ops += [(0, "v_pk_mul_f32 %s, %s, %s" % (P2(T), P2(g), P2(g))),
                                        (1, "v_pk_fma_f32 %s, %s, %s, %s op_sel:[0,0,1] op_sel_hi:[1,0,1]" % (P2(T), P2(T), P2(r0 + 2), P2(r0))),
                                        (2, "v_pk_mul_f32 %s, %s, %s" % (P2(T), P2(T), P2(g))),
                                        (4, "v_pk_mul_f32 %s, %s, %s" % (P2(g), P2(g), P2(u)))]
                            else:
                                ops += [(4.5 - GP / GD, "v_pk_fma_f32 %s, %s, %s, %s op_sel:[0,1,1] op_sel_hi:[1,1,1]" % (P2(T - 1), P2(T - 1), P2(r0 + 2), P2(r0 + 2))),
                                        (7, "v_pk_mul_f32 %s, %s, %s" % (P2(g - 1), P2(g - 1), P2(T - 1))),
                                        (8, "v_cvt_pk_bf16_f32 v%d, v%d, v%d" % (HP + 2 * q2 + e // 2, g - 1, g))]
                                ops[2] = (4, ops[2][1])
                        else:
                            ops = [(0, "v_mul_f32 v%d, v%d, v%d" % (T, g, g)),
                            (1, "v_fma_f32 v%d, v%d, v%d, v%d" % (T, T, r0 + 2, r0 + 1)),
                            (2, "v_mul_f32 v%d, v%d, v%d" % (T, T, g)),
                            (3, "v_exp_f32 v%d, v%d" % (T, T)),
                            (4, "v_mul_f32 v%d, v%d, v%d" % (g, g, u)),
                            (5, "v_fma_f32 v%d, v%d, v%d, v%d" % (T, T, r0 + 3, r0 + 3)),
                            (6, "v_rcp_f32 v%d, v%d" % (T, T)),
                            (7, "v_mul_f32 v%d, v%d, v%d" % (g, g, T))]
                            if e & 1: ops.append((8, "v_cvt_pk_bf16_f32 v%d, v%d, v%d" % (HP + 2 * q2 + e // 2, g - 1, g)))
                        for k, o in ops: at(n * GP + k * GD, o)
                        n += 1
                t = (n - 1) * GP + 8 * GD
                at(t + 4, "v_permlane32_swap_b32 v%d, v%d" % (HP, HP + 2))
                at(t + 5, "v_permlane32_swap_b32 v%d, v%d" % (HP + 1, HP + 3))
                def st_h(HP=HP, ff=ff, tt=tt, qp=qp):
                    a("s_movk_i32 s%d, %d" % (sT0, ff * 4096))
                    a.vm("buffer_store_dwordx4 %s, v20, s[%d:%d], s%d offen offset:%d sc1" % (vr(HP, 4), SWS, SWS + 3, sT0, tt * 2048 + qp * 512), ("hst", ff))
                at(t + 8, st_h)
    for t, _, it in sorted(ev, key=lambda x: (x[0], x[1])):
        if callable(it): it()
        else: a(it)
    sf_("gelu")
    A2 = lambda ct, tt: 192 + 16 * ct + 4 * tt
    free = [48] + OB if GST else [64, 112] + WBK[NV:]
    HB = {}
    def ld_h(s, trk=True):
        if ENV("VERB", 0): print("ld_h", s, free)
        if s not in HB: HB[s] = free.pop(0)
        if ROT: a("s_lshl_b32 s%d, s%d, 6" % (sOW, RJ[s % 7])); a("s_add_u32 s%d, s%d, %d" % (sOW, sOW, WS_H + (s // 7) * 4096))
        else: a("s_mov_b32 s%d, %d" % (sOW, WS_H + J(s) * 4096))
        if "hsame" in EXP: a("s_mov_b32 s%d, 0" % sOW)
        for tt in range(4):
            t = "buffer_load_dwordx4 %s, v%d, s[%d:%d], s%d offen" % (vr(HB[s] + 4 * tt, 4), HA[tt], SWS, SWS + 3, sOW)
            if trk: a.vm(t, ("h", s, tt))
            else: a(t)
    def spin_h(mask, lj, r=14):
        lo = L("HS"); l1 = L("HS")
        def slow():
            a.label(lo)
            a("s_mov_b32 s%d, %d" % (sT3, SPIN))
            a.label(l1)
            a("s_mov_b64 exec, 0x3fff")
            a("buffer_load_dword v%d, v8, s[%d:%d], 0 offen sc1" % (r, SWS, SWS + 3))
            a("s_mov_b64 exec, -1")
            a("s_waitcnt vmcnt(0)")
            a("v_cmp_ne_u32 vcc, s%d, v%d" % (sNON, r))
            a("s_and_b32 s%d, vcc_lo, 0x%x" % (sT0, mask))
            a("s_cbranch_scc0 %s" % lj)
            a("s_sleep %d" % ENV("HSL", 3))
            a("s_sub_u32 s%d, s%d, 1" % (sT3, sT3)); a("s_cmp_lg_u32 s%d, 0" % sT3)
            a("s_cbranch_scc1 %s" % l1)
            a("s_branch %s" % lj)
        deferred.append(slow)
        return lo
    hpoll()
    for s in range(max(NG, NGT), NV): trw(s)
    a("s_mul_i32 s%d, s%d, 14" % (sT1, sWV))
    a("s_mul_i32 s%d, s%d, 56" % (sT0, sRT2))
    a("s_add_u32 s%d, s%d, s%d" % (sT0, sT0, sT1))
    a("s_lshl_b32 s%d, s%d, 12" % (sT0, sT0))
    for r in range(4):
        a("s_add_u32 s%d, s%d, %d" % (sT1, sWV, r)); a("s_and_b32 s%d, s%d, 3" % (sT1, sT1)); a("s_lshl_b32 s%d, s%d, 10" % (sT1, sT1))
        a("s_add_u32 s%d, s%d, s%d" % (sT1, sT1, sT0))
        a("v_lshl_add_u32 v%d, v1, 4, s%d" % (HA[r], sT1))
    a("v_and_b32 v17, 15, v1"); a("v_lshrrev_b32 v13, 4, v1")
    a("s_lshl_b32 s%d, s%d, 6" % (sT0, sRT2)); a("s_lshl_b32 s%d, s%d, 4" % (sT1, sWV)); a("s_add_u32 s%d, s%d, s%d" % (sT0, sT0, sT1))
    a("v_add_u32 v18, s%d, v17" % sT0)
    a("v_mul_u32_u24 v18, 896, v18")
    a("v_lshl_add_u32 v18, v13, 5, v18")
    a("s_lshl_b32 s%d, s%d, 7" % (sT0, sCT))
    a("v_add_u32 v18, s%d, v18" % sT0)
    a.vm("buffer_load_dwordx4 v[24:27], v18, s[%d:%d], 0 offen" % (SX, SX + 3), "x")
    a.vm("buffer_load_dwordx4 v[28:31], v18, s[%d:%d], 0 offen offset:16" % (SX, SX + 3), "x")
    a("v_mul_u32_u24 v16, %d, v13" % STG_W)
    a("v_lshrrev_b32 v13, 2, v17"); a("v_lshl_add_u32 v16, v13, 7, v16")
    a("v_and_b32 v13, 1, v17"); a("v_lshl_add_u32 v16, v13, 3, v16")
    a("v_bfe_u32 v13, v17, 1, 1"); a("v_lshl_add_u32 v16, v13, 6, v16")
    a("s_add_u32 s%d, s%d, %d" % (sT1, sT1, L_STG))
    a("v_add_u32 v16, s%d, v16" % sT1)
    a("v_lshl_add_u32 v19, v1, 4, s%d" % sOX)
    arrive(1, Y_TR)
    if GST:
        a.wait_vm("own")
        for n in range(12):
            hi = WDS[n // 4] >= 65536
            if n == 8: a("v_add_u32 v13, 65536, v19")
            a.ds("ds_write_b128 v%d, %s offset:%d" % ((19, 13)[hi], vr(OB[n // 4] + 4 * (n % 4), 4), WDS[n // 4] - 65536 * hi + (n % 4) * 1024), "ow")
    flag(1)
    sf_("flag1")
    a("s_setprio %d" % ENV("F2PRIO", 0))
    if not GST:
        a("s_waitcnt lgkmcnt(0)"); a.dsq = []
        for s in (6, 7, 8):
            for g in dma_wd(s): emit(g)
    wdq = []
    lj = L("HJ")
    a.wait_vm("hp")
    a("v_cmp_ne_u32 vcc, s%d, v14" % sNON)
    a("s_and_b32 s%d, vcc_lo, 0x1555" % sT0)
    lo = spin_h(0x1555, lj)
    a("s_cbranch_scc1 %s" % lo)
    a.label(lj)
    if ENV("DLY", 0): a("s_sleep %d" % ENV("DLY", 0))
    sf_("hpoll")
    NHM = ENV("NHM", 4)
    assert NSTA == 5 and NV == 6 and not wdq
    sRDY, sISS = sHD, sLD
    WTAB = 22; WOF = list(range(8, 15)); sHM = 16
    PR = [23, 17, 2]
    def dpoll(n):
        l = L("DP")
        a("s_cmp_eq_u32 s%d, 0x2aaa" % sRDY)
        a("s_cbranch_scc1 %s" % l)
        a("s_mov_b64 exec, 0x3fff")
        a("buffer_load_dword v%d, v8, s[%d:%d], 0 offen sc1" % (PR[n % 3], SWS, SWS + 3))
        a("s_mov_b64 exec, -1")
        a.label(l)
        a.mark(("hq", n))
    def deval(n):
        a.wait_vm(("hq", n))
        a("v_cmp_eq_u32 vcc, s%d, v%d" % (sNON, PR[n % 3]))
        a("s_and_b32 s%d, vcc_lo, 0x2aaa" % sT0)
        a("s_or_b32 s%d, s%d, s%d" % (sRDY, sRDY, sT0))
    def dslow():
        a.label("K_DS")
        a("s_mov_b64 exec, 0x3fff")
        a("buffer_load_dword v14, v8, s[%d:%d], 0 offen sc1" % (SWS, SWS + 3))
        a("s_mov_b64 exec, -1")
        a("s_sub_i32 s18, s18, 1"); a("s_max_i32 s18, s18, 0")
        a("s_cmp_eq_u32 s18, 0"); a("s_cselect_b32 s19, -1, 0")
        a("s_waitcnt vmcnt(0)")
        a("v_cmp_eq_u32 vcc, s%d, v14" % sNON)
        a("s_or_b32 s19, s19, vcc_lo")
        a("s_and_b32 s19, s19, 0x2aaa")
        a("s_or_b32 s%d, s%d, s19" % (sRDY, sRDY))
        a("s_setpc_b64 s[20:21]")
    deferred.append(dslow)
    sWL = 17
    def wslow():
        a.label("K_WS")
        a("ds_read_u8 v14, v15 offset:%d" % Y_WS)
        a("s_sub_i32 s18, s18, 1"); a("s_max_i32 s18, s18, 0")
        a("s_cmp_eq_u32 s18, 0"); a("s_cselect_b32 s19, 3, 0")
        a("s_waitcnt lgkmcnt(0)")
        a("v_readfirstlane_b32 s%d, v14" % sWL)
        a("s_sleep 1")
        a("s_or_b32 s%d, s%d, s19" % (sWL, sWL))
        a("s_setpc_b64 s[20:21]")
    deferred.append(wslow)
    def c_issue(s):
        HB[s] = free.pop(0)
        if s < 7: C = [["s_mov_b32 s%d, %d" % (sOW, WS_H + J(s) * 4096)]]
        else:
            C = [["s_getpc_b64 s[20:21]", "s_andn2_b32 s%d, s%d, s%d" % (sT0, sRDY, sISS), "s_cbranch_scc0 K_DS", "s_ff1_i32_b32 s%d, s%d" % (sT1, sT0)],
                 ["s_lshr_b32 m0, s%d, 1" % sT1, "s_lshl_b32 s%d, s%d, 12" % (sOW, sT1), "s_bitset1_b32 s%d, s%d" % (sISS, sT1), "s_movrels_b32 s%d, s%d" % (WOF[s - 7], WTAB)], []]
        for i, tt in enumerate((1, 2, 3, 0) if s == 13 else range(4)):
            ld = ("buffer_load_dwordx4 %s, v%d, s[%d:%d], s%d offen" % (vr(HB[s] + 4 * tt, 4), HA[tt], SWS, SWS + 3, sOW), ("h", s, tt))
            if "hsame" in EXP: C.append(["s_mov_b32 s%d, 0" % sOW, ld])
            elif "nold" in EXP and s >= 4: pass
            elif i == 0 or i % ENV("LB", 2): C[-1].append(ld)
            else: C.append([ld])
        return C
    def c_trw(s):
        WB[s] = free.pop(0)
        if s < 7:
            hi = WDS[s % NW] >= 65536; of = WDS[s % NW] - 65536 * hi
            C = [[lambda: a.wait_vm(("wd", s))]]
        else:
            hi = 1; of = 0
            C = [([lambda: a.wait_vm(("wd", 8))] if s == 7 else []) +
                 ["s_and_b32 s%d, s%d, 3" % (sT2, WOF[s - 7]), "s_getpc_b64 s[20:21]", "s_cmp_gt_u32 s%d, s%d" % (sT2, sWL), "s_cbranch_scc1 K_WS"],
                 ["s_sub_u32 s%d, s%d, s%d" % (WOF[s - 7], WOF[s - 7], sT2)] + ["v_add_u32 v%d, s%d, v%d" % (TRB[1][c2], WOF[s - 7], TRB[0][c2]) for c2 in range(2)], []]
        for ct in range(4):
            rd = [("ds_read_b64_tr_b16 %s, v%d offset:%d" % (vr(WB[s] + 4 * ct + 2 * hf, 2), TRB[hi][ct >> 1], of + hf * 512 + 8 * (ct & 1)), ("tw", s)) for hf in range(2)]
            if "notr" in EXP: continue
            if ct == 0: C[-1] += rd
            else: C.append(rd)
        return C
    nh = 0
    DP0 = ENV("DP0", 2)
    while free and nh < NHM:
        if nh == DP0: dpoll(0)
        for c in c_issue(nh): emit(c)
        nh += 1
    if DP0 >= NHM: dpoll(0)
    a("s_mov_b32 s%d, 0" % sISS)
    a("s_mov_b32 s18, %d" % (SPIN * 2)); a("s_mov_b32 s%d, %d" % (sWL, 3 if "nows" in EXP else 0))
    for k_ in range(5): a("s_mov_b32 s%d, %d" % (WTAB + k_, WDS[k_ + 1] + (k_ >= 2)))
    a("s_mul_i32 s%d, s%d, %d" % (sT0, sWC, CV_CH - 16384)); a("s_add_u32 s%d, s%d, s%d" % (sT0, sT0, sOX)); a("s_add_u32 s%d, s%d, %d" % (WTAB + 5, sT0, L_CV + 2))
    a("s_add_u32 s%d, s%d, 4096" % (WTAB + 6, WTAB + 5))
    a("s_add_u32 s%d, s%d, %d" % (sT0, sWV, L_SYNC)); a("v_mov_b32 v15, s%d" % sT0)
    nw = NV
    for r in range(1, 4):
        a("s_sub_u32 s%d, s%d, %d" % (sT1, sWV, r)); a("s_and_b32 s%d, s%d, 3" % (sT1, sT1)); a("s_lshl_b32 s%d, s%d, 12" % (sT1, sT1))
        a("v_lshl_add_u32 v%d, v1, 4, s%d" % (19 + r, sT1))
    PI = [int(x) for x in os.environ.get("PI", "-1,1,3,5").split(",")]
    PE = [int(x) for x in os.environ.get("PE", "2,4,6,8").split(",")]
    Q2 = []
    for s in range(14):
        a.wait_ds(("tw", s))
        gap = 0
        for tt in ((1, 2, 3, 0) if s == 13 else range(4)):
            a.wait_vm(("h", s, tt))
            for ct in range(4):
                a("v_mfma_f32_16x16x32_bf16 %s, %s, %s, %s" % (vr(A2(ct, tt), 4), vr(WB[s] + 4 * ct, 4), vr(HB[s] + 4 * tt, 4), "0" if s == 0 else vr(A2(ct, tt), 4)))
                gap += 1
                while Q2 and (len(Q2) > 16 - gap or gap == 16): emit(Q2.pop(0))
                if Q2: emit(Q2.pop(0))
                pr = {1: 0, 2: 1, 3: 2, 0: 3}[tt]
                if s == 13 and pr: a("ds_write_b128 v19, %s offset:%d" % (vr(A2(ct, pr), 4), (pr - 1) * 16384 + ct * 1024))
        sf_("s_%d" % s)
        if s == 5: sf_("s5")
        if s == 9: sf_("s9")
        free.append(HB[s]); free.append(WB[s])
        if s + 1 in PE: Q2.append([lambda n=PE.index(s + 1): deval(n)])
        if s + 1 in PI: Q2.append([lambda n=PI.index(s + 1): dpoll(n)])
        if nh < 14: Q2 += c_issue(nh); nh += 1
        if nw < 14 and nw <= s + ENV("TA", 2): Q2 += c_trw(nw); nw += 1
        assert nw > s + 2 or nw == 14
        if s == 12: R1, R2, R3 = [free.pop(0) for _ in range(3)]
        if s == 10:
            XU, YR = [free.pop(0) for _ in range(2)]
            Q2.append([lambda: a.wait_vm("x")])
            for w in range(8):
                Q2.append(["v_lshlrev_b32 v%d, 16, v%d" % (XU + 2 * w, 24 + w), "v_and_b32 v%d, 0xffff0000, v%d" % (XU + 2 * w + 1, 24 + w)])
    arrive(17)
    a("ds_read_u8 v15, v11 offset:%d" % Y_YA)
    sf_("f2end")
    def ya_part(spin=True):
        if spin: spin_lds(11, 15, 1, slp=1, off=Y_YA)
        for q in range(4): a("ds_read_b64_tr_b16 %s, v16 offset:%d" % (vr(YR + 2 * q, 2), q * 512))
        for w in range(8):
            if w % 2 == 0: a("s_waitcnt lgkmcnt(%d)" % (3 - w // 2))
            yw = YR + w; o = XU + 2 * w; t = YR + 8 + 2 * (w & 1)
            a("v_lshlrev_b32 v%d, 16, v%d" % (t, yw)); a("v_and_b32 v%d, 0xffff0000, v%d" % (t + 1, yw))
            a("v_add_f32 v%d, v%d, v%d" % (o, o, t)); a("v_add_f32 v%d, v%d, v%d" % (o + 1, o + 1, t + 1))
            a("v_cvt_pk_bf16_f32 v%d, v%d, v%d" % (o, o, o + 1))
            a("v_and_b32 v%d, 0xffff0000, v%d" % (o + 1, o)); a("v_lshlrev_b32 v%d, 16, v%d" % (o, o))
    def red_part():
        spin_lds(11, 15, 17, slp=0)
        for ct in range(4):
            for r, R in enumerate((R1, R2, R3)):
                a("ds_read_b128 %s, v%d offset:%d" % (vr(R + 4 * ct, 4), 20 + r, r * 16384 + ct * 1024))
        for ct in range(4):
            a("s_waitcnt lgkmcnt(%d)" % (9 - 3 * ct))
            for e in range(4):
                c = 4 * ct + e
                a("v_add_f32 v%d, v%d, v%d" % (R1 + c, R1 + c, A2(ct, 0) + e)); a("v_add_f32 v%d, v%d, v%d" % (R2 + c, R2 + c, R3 + c))
            for e in range(4):
                c = 4 * ct + e
                a("v_add_f32 v%d, v%d, v%d" % (R1 + c, R1 + c, R2 + c))
            for w in range(2):
                b = R1 + 4 * ct + 2 * w
                a("v_cvt_pk_bf16_f32 v%d, v%d, v%d" % (b, b, b + 1))
                a("v_and_b32 v%d, 0xffff0000, v%d" % (b + 1, b)); a("v_lshlrev_b32 v%d, 16, v%d" % (b, b))
    e1, e2 = L("EP"), L("EP")
    a("s_waitcnt lgkmcnt(0)")
    a("v_cmp_gt_u32 vcc, 1, v15")
    a("s_cbranch_vccnz %s" % e1)
    a.begin_opt()
    ya_part(False); red_part()
    a("s_branch %s" % e2)
    a.end_opt()
    a.label(e1)
    a.begin_opt()
    red_part(); ya_part()
    a.end_opt()
    a.label(e2)
    sf_("ya")
    for hc in range(2):
        for w in range(4):
            b = R1 + 8 * hc + 2 * w; o = XU + 8 * hc + 2 * w
            a("v_add_f32 v%d, v%d, v%d" % (b, b, o)); a("v_add_f32 v%d, v%d, v%d" % (b + 1, b + 1, o + 1))
            a("v_cvt_pk_bf16_f32 v%d, v%d, v%d" % (R2 + 4 * hc + w, b, b + 1))
        a("buffer_store_dwordx4 %s, v18, s[%d:%d], 0 offen offset:%d" % (vr(R2 + 4 * hc, 4), SOUT, SOUT + 3, hc * 16) + " " + os.environ.get("OUTM", ""))
    sf_("end")
    sf_.store(24)
    if os.environ.get("MEAS"):
        a("s_sub_u32 s100, s99, s%d" % sNON)
        a("v_mov_b32 v24, s100")
        a("s_cmp_lg_u32 s%d, 0" % sWV); a("s_cbranch_scc1 K_END")
        a("s_mov_b64 exec, 1")
        a("s_lshl_b32 s100, s2, 2"); a("s_add_u32 s100, s100, %d" % WS_DBG); a("v_mov_b32 v25, s100")
        a("buffer_store_dword v24, v25, s[%d:%d], 0 offen sc1" % (SWS, SWS + 3))
    a("s_endpgm")
    for f in deferred: f()
    a.raw(".p2align 2"); a.label("K_TAB"); a.raw(".long " + ", ".join(str(i + 1) for i in range(16)))

    import gen8h
    gen8h.helper(a, sh_, L, spin_lds)
    gen8h.producer(a, sp_, L, spin_lds)
    a.label("K_END")
    a("s_endpgm")
    if STAMP: print("ffn", sf_.names, "\nhelp", sh_.names, "\nprod", sp_.names)
    return a.finalize()

def wrap(kernels):
    out = []
    for name, grid, block, lds, body, nv in kernels:
        if len(kernels) > 1: out.append("; @launch kernel=%s grid=(%d,1,1) block=(%d,1,1) lds=%d" % (name, grid, block, lds))
        else: out.append("; @launch grid=(%d,1,1) block=(%d,1,1) lds=%d" % (grid, block, lds))
    out.append('.amdgcn_target "amdgcn-amd-amdhsa--gfx950"')
    out.append(".text")
    for name, grid, block, lds, body, nv in kernels:
        out += [".globl %s" % name, ".p2align 8", ".type %s,@function" % name, "%s:" % name, body]
    out.append('.section .rodata,"a"')
    for name, grid, block, lds, body, nv in kernels:
        out += [".p2align 6", ".amdhsa_kernel %s" % name,
                "  .amdhsa_next_free_vgpr %d" % nv, "  .amdhsa_next_free_sgpr 102", "  .amdhsa_accum_offset %d" % ((nv + 3) // 4 * 4),
                "  .amdhsa_group_segment_fixed_size 0", "  .amdhsa_kernarg_size 128", "  .amdhsa_user_sgpr_count 2",
                "  .amdhsa_user_sgpr_kernarg_segment_ptr 1", "  .amdhsa_system_sgpr_workgroup_id_x 1", ".end_amdhsa_kernel"]
    return "\n".join(out) + "\n"

if __name__ == "__main__":
    sys.modules["gen8"] = sys.modules["__main__"]
    NAME = "parallel_sum__ssm_conv_s4__glu_gated_geglu__prompt_kernel"
    ks = [(NAME, 256, 512, LDS, gen(), 256)]
    if os.environ.get("MEAS"):
        b = Asm()
        b("s_cmp_ge_u32 s2, 1"); b("s_cbranch_scc1 K3_END")
        b("s_load_dwordx4 s[4:7], s[0:1], 112"); b("s_waitcnt lgkmcnt(0)")
        srd(b, 8, 6, WS_SIZE); srd(b, 12, 4, 256)
        b("v_lshlrev_b32 v1, 2, v0"); b("v_mov_b32 v10, 0")
        for i in range(4):
            b("s_mov_b32 s22, %d" % (WS_DBG + 128 + i * 256 - (32 if i == 3 else 0) * 4))
            b("buffer_load_dword v4, v1, s[8:11], s22 offen sc1"); b("s_waitcnt vmcnt(0)"); b("v_max_u32 v10, v10, v4")
        b("v_readlane_b32 s30, v10, 0")
        for l in range(1, 64):
            b("v_readlane_b32 s22, v10, %d" % l); b("s_max_u32 s30, s30, s22")
        b("s_mov_b64 exec, 1"); b("v_mov_b32 v1, 0"); b("v_mov_b32 v2, s30")
        b("buffer_store_dword v2, v1, s[12:15], 0 offen"); b("s_waitcnt vmcnt(0)")
        b("s_min_u32 s30, s30, 20000"); b("s_mul_i32 s30, s30, %d" % int(os.environ.get("DM", "4")))
        b("s_memrealtime s[24:25]"); b("s_waitcnt lgkmcnt(0)")
        b.label("K3_L")
        b("s_memrealtime s[26:27]"); b("s_waitcnt lgkmcnt(0)"); b("s_sub_u32 s28, s26, s24"); b("s_cmp_lt_u32 s28, s30"); b("s_cbranch_scc1 K3_L")
        b.label("K3_END"); b("s_endpgm")
        ks = [("k1_kernel",) + ks[0][1:], ("k3_kernel", 1, 64, 0, b.finalize(), 64)]
    open(sys.argv[1] if len(sys.argv) > 1 else "k.s", "w").write(wrap(ks))
```

```python
import math, os
from gen8 import *

XST = ENV("XST", 4096); YST = ENV("YST", 4096); YP = ENV("YP", 3)
def get_nonce(a, L, va, vd, pre=False):
    l1, l2, l3 = L("GN"), L("GN"), L("GN")
    a("s_mov_b32 s%d, %d" % (sCNT, SPIN))
    if pre: a("s_branch %s" % l3)
    a.label(l1)
    a("buffer_load_dwordx2 v[%d:%d], v%d, s[%d:%d], 0 offen sc1" % (vd, vd + 1, va, SDBG, SDBG + 3))
    a.label(l3)
    a("s_waitcnt vmcnt(0)")
    a("v_readfirstlane_b32 s%d, v%d" % (sNON, vd)); a("v_readfirstlane_b32 s%d, v%d" % (sNON + 1, vd + 1))
    a("s_cmp_lg_u32 s%d, 0" % (sNON + 1))
    a("s_cbranch_scc1 %s" % l2)
    a("s_sleep 8")
    a("s_sub_u32 s%d, s%d, 1" % (sCNT, sCNT)); a("s_cmp_lg_u32 s%d, 0" % sCNT)
    a("s_cbranch_scc1 %s" % l1)
    a.label(l2)

def helper(a, sk_, L, spin_lds):
    a.label("K_HELP")
    a.vmq = []
    a("s_setprio 3")
    a("s_load_dwordx2 s[60:61], s[0:1], 64")
    a("s_sub_u32 s%d, s%d, 4" % (sKW, sWV))
    a("s_cmp_lg_u32 s%d, 7" % sWV)
    a("s_cbranch_scc1 K_NZ")
    a.begin_opt()
    a("v_lshlrev_b32 v2, 2, v1"); a("v_add_u32 v2, %d, v2" % L_SYNC); a("v_mov_b32 v3, 0")
    a("ds_write_b32 v2, v3")
    if KT: a("v_and_b32 v2, 3, v1"); a("v_mul_u32_u24 v2, %d, v2" % FLS); a("v_add_u32 v2, %d, v2" % (L_FL + 64)); a("ds_write_b32 v2, v3")
    else: a("ds_write_b32 v2, v3 offset:512")
    a.end_opt()
    a.label("K_NZ")
    a("s_and_b32 s%d, s%d, 1" % (sHF, sKW))
    a("s_lshr_b32 s%d, s%d, 1" % (sT0, sKW))
    a("s_sub_u32 s%d, s2, 32" % sCH)
    a("s_lshl_b32 s%d, s%d, 1" % (sCH, sCH))
    a("s_add_u32 s%d, s%d, s%d" % (sCH, sCH, sT0))
    a("s_mul_i32 s%d, s%d, %d" % (sCVB, sT0, CV_CH))
    a("s_add_u32 s%d, s%d, %d" % (sCVB, sCVB, L_CV))
    a("s_lshl_b32 s%d, s%d, 8" % (sT0, sCH))
    a("s_lshl_b32 s%d, s%d, 7" % (sT1, sHF))
    a("s_add_u32 s%d, s%d, s%d" % (sT0, sT0, sT1))
    a("v_add_u32 v2, s%d, v1" % sT0)
    a("v_lshlrev_b32 v2, 1, v2")
    a("s_lshl_b32 s%d, s%d, 1" % (sT1, sCH))
    a("v_mov_b32 v3, s%d" % sT1)
    a("s_waitcnt lgkmcnt(0)")
    P = [[20, 21, 22, 23, 24, 25], [120, 121, 122, 123, 124, 125]]
    a.vm("global_load_ushort v26, v3, s[30:31]", "param")
    for it in range(2):
        for i in range(6):
            a.vm("global_load_ushort v%d, v2, s[%d:%d] offset:%d" % (P[it][i], 18 + 2 * i, 19 + 2 * i, it * 128), "param")
    a.vm("global_load_ushort v160, v3, s[60:61]", "param")
    a("s_setprio %d" % int(os.environ.get("KPRIO", "2")))
    a("s_barrier")
    srd(a, SWS, 14, WS_SIZE)
    a("s_mul_i32 s%d, s%d, %d" % (sSTG, sKW, STG_W))
    a("s_add_u32 s%d, s%d, %d" % (sSTG, sSTG, L_STG))
    a("v_and_b32 v7, 15, v1")
    a("v_lshrrev_b32 v6, 4, v1")
    a("v_mul_u32_u24 v5, 272, v7")
    a("v_lshl_add_u32 v8, v6, 4, s%d" % sSTG)
    a("v_add_u32 v5, v5, v8")
    maps = [[0,1,2,3,4,5,6,7, 8,8,9,10,10,10,11,12],
            [0,0,0,1,1,1,2,2, 3,3,3,4,4,4,5,5],
            [6,6,6,6,6,7,7,7, 8,8,8,8,8,9,9,9],
            [10,10,10,10,10,11,11,11, 12,12,12,12,12,13,13,13]]
    XA = [12, 13, 14, 15]
    a("v_lshlrev_b32 v9, 2, v7")
    a("v_and_b32 v9, 31, v9")
    a("v_cmp_gt_u32 vcc, 8, v7")
    for t in range(4):
        lo = sum(maps[t][i] << (4 * i) for i in range(8)); hi = sum(maps[t][8 + i] << (4 * i) for i in range(8))
        a("v_mov_b32 v10, 0x%x" % hi); a("v_mov_b32 v11, 0x%x" % lo)
        a("v_cndmask_b32 v10, v10, v11, vcc")
        a("v_lshrrev_b32 v10, v9, v10")
        a("v_and_b32 v10, 15, v10")
        a("v_mul_u32_u24 v10, 272, v10")
        a("v_add_u32 v%d, v10, v8" % XA[t])
    D = lambda t, yt: 128 + 8 * t + 4 * yt
    TRIM = ENV("TRIM", 1)
    if not TRIM:
        for r in range(128, 160): a("v_mov_b32 v%d, 0" % r)
    a("s_add_u32 s%d, s%d, %d" % (sT0, sKW, L_SYNC)); a("v_mov_b32 v161, s%d" % sT0)
    a("s_xor_b32 s%d, s%d, 1" % (sT1, sKW)); a("s_add_u32 s%d, s%d, %d" % (sT1, sT1, L_SYNC)); a("v_mov_b32 v162, s%d" % sT1)
    a("v_mov_b32 v163, 1")
    srd(a, SDBG, 12, 256)
    a("s_and_b32 s%d, s2, 7" % sT0); a("s_lshl_b32 s%d, s%d, 13" % (sT0, sT0)); a("s_add_u32 s%d, s%d, %d" % (sT0, sT0, WS_PF))
    a("v_and_b32 v112, 31, v1"); a("v_lshl_add_u32 v112, v112, 8, s%d" % sT0)
    a("v_mov_b32 v113, 64")
    a("v_mov_b32 v114, %d" % (L_SYNC + Y_RDA))
    a("s_cmp_lg_u32 s%d, 0" % sKW)
    a("s_cselect_b32 s%d, 0, 1" % sPM)
    def setf(off):
        a("s_mov_b64 exec, 1")
        a("ds_write_b8 v161, v163 offset:%d" % off)
        a("s_mov_b64 exec, -1")
    def waitp(off, tmp=164, tmpa=165):
        a("v_add_u32 v%d, %d, v162" % (tmpa, off))
        spin_lds(tmpa, tmp, 1)
    hooks = {}
    kc = [0]
    def k(t):
        a(t); kc[0] += 1
        if kc[0] in hooks: hooks.pop(kc[0])()
    if NSTA:
        srd(a, SWD, 8, 1792 * 896)
        a("v_lshrrev_b32 v16, 3, v1")
        a("s_mul_i32 s%d, s%d, %d" % (sT0, sKW, 448 * 896))
        a("v_mul_u32_u24 v16, 896, v16")
        a("s_lshl_b32 s%d, s%d, 7" % (sT1, sCT)); a("s_add_u32 s%d, s%d, s%d" % (sT0, sT0, sT1))
        a("v_add_u32 v16, s%d, v16" % sT0)
        a("v_bfe_u32 v18, v1, 4, 1"); a("v_xor_b32 v17, v1, v18"); a("v_and_b32 v17, 7, v17")
        a("v_lshl_add_u32 v170, v17, 4, v16")
    def st_ld(n):
        s_ = 14 - NSTA + n // 4; q = n % 4
        a("s_mov_b32 s%d, %d" % (sOW, ((2 * (s_ % 7) + s_ // 7) * 32 + 8 * q) * 896))
        a("buffer_load_dwordx4 %s, v%d, s[%d:%d], s%d offen" % (vr(176 + 4 * n, 4), 170, SWD, SWD + 3, sOW))
    SP0 = ENV("SP0", 500); SPD = ENV("SPD", 20)
    if SP0 >= 0:
        for n in range(4 * NSTA): hooks[SP0 + SPD * n] = lambda n=n: (st_ld(n), nst.append(n))
    nst = []
    a("v_lshlrev_b32 v172, 4, v1")
    a("s_cmp_lg_u32 s15, 0"); a("s_cselect_b32 s%d, 31, 30" % sT0); a("s_lshl_b32 s%d, s%d, 2" % (sT0, sT0)); a("v_mov_b32 v173, s%d" % sT0)
    def u_poll():
        a("s_cmp_lg_u32 s%d, 0" % sPM); a("s_cselect_b32 exec_lo, -1, 0"); a("s_mov_b32 exec_hi, 0")
        a("buffer_load_dword v169, v112, s[%d:%d], 0 offen sc1" % (SWS, SWS + 3))
        a("s_mov_b64 exec, -1")
        del nst[:]
    def u_dma():
        a("s_mul_i32 s%d, s%d, %d" % (sOW, sCH, XST))
        a("s_add_u32 s%d, s%d, %d" % (sOW, sOW, WS_XNT))
        for c in range(2):
            a("s_mov_b32 m0, %d" % (L_CV + c * CV_CH + O_U + 480))
            if c: a("s_add_u32 s%d, s%d, %d" % (sOW, sOW, XST))
            for q in range(4): a("buffer_load_dwordx4 v172, s[%d:%d], s%d offen offset:%d lds" % (SWS, SWS + 3, sOW, q * 1024))
        a("s_mov_b32 m0, %d" % (L_SYNC + Y_U))
        a("s_mov_b64 exec, 1")
        a("global_load_lds_dword v173, s[0:1]")
        a("s_mov_b64 exec, -1")
        a("s_mov_b32 s%d, 0" % sPM)
    def u_try():
        l = L("UT")
        a("s_cmp_eq_u32 s%d, 0" % sPM)
        a("s_cbranch_scc1 %s" % l)
        a.begin_opt()
        a("s_waitcnt vmcnt(%d)" % len(nst))
        a("v_cmp_ne_u32 vcc, s%d, v169" % sNON)
        a("s_cmp_lg_u32 vcc_lo, 0")
        a("s_cbranch_scc1 %s" % l)
        u_dma()
        a("s_mov_b32 m0, s%d" % sSTG)
        a.end_opt()
        a.label(l)
        a("s_nop 0")
    for p_ in os.environ.get("UP", "821").split(","):
        hooks[int(p_)] = u_poll; hooks[int(p_) + ENV("UD", 106)] = u_try
    def nonce_pub():
        ln2 = L("NF")
        a("s_cmp_eq_u32 s%d, 0" % sPM)
        a("s_cbranch_scc1 %s" % ln2)
        a.begin_opt()
        get_nonce(a, L, 113, 116, pre=True)
        a("s_mov_b64 exec, 1")
        a("ds_write_b64 v114, v[116:117] offset:%d" % (Y_NON - Y_RDA))
        a("s_mov_b64 exec, -1")
        a.end_opt()
        a.label(ln2)
    def pf_wd():
        srd(a, SWD, 8, 1792 * 896)
        a("s_lshr_b32 s%d, s2, 3" % sT0); a("s_sub_u32 s%d, s%d, 4" % (sT0, sT0)); a("s_lshl_b32 s%d, s%d, 2" % (sT0, sT0)); a("s_add_u32 s%d, s%d, s%d" % (sT0, sT0, sKW))
        a("s_mul_i32 s%d, s%d, %d" % (sT0, sT0, 112 * 128))
        a("v_lshlrev_b32 v200, 7, v1")
        a("s_add_u32 s%d, s%d, %d" % (sT1, sT0, 48 * 128))
        a("buffer_load_dword v201, v200, s[%d:%d], s%d offen" % (SWD, SWD + 3, sT0))
        a("buffer_load_dword v202, v200, s[%d:%d], s%d offen" % (SWD, SWD + 3, sT1))
    PFW = ENV("PFW", -1)
    GB, FB = (171, 175) if TRIM else (6, 7)
    if TRIM:
        a("v_lshl_add_u32 v18, v1, 4, s%d" % sSTG)
        a("s_xor_b32 s%d, s%d, 1" % (sT0, sKW)); a("s_mul_i32 s%d, s%d, %d" % (sT0, sT0, STG_W)); a("s_add_u32 s%d, s%d, %d" % (sT0, sT0, L_STG))
        a("v_lshl_add_u32 v19, v1, 4, s%d" % sT0)
        a("v_and_b32 v10, v6, v7"); a("v_and_b32 v10, s%d, v10" % sHF)
        a("v_cmp_ne_u32 s[16:17], 0, v10")
        a("v_lshrrev_b32 v10, 1, v6"); a("v_lshlrev_b32 v10, 9, v10")
        a("v_lshl_add_u32 v10, v7, 4, v10")
        a("v_and_b32 v11, 1, v6"); a("v_lshl_add_u32 v10, v11, 3, v10")
        a("s_add_u32 s%d, s%d, %d" % (sT0, sCVB, 4088 - 1024 - 256))
        a("s_lshl_b32 s%d, s%d, 11" % (sT2, sHF))
        a("s_sub_u32 s%d, s%d, s%d" % (sT0, sT0, sT2))
        a("v_sub_u32 v115, s%d, v10" % sT0)
        a("v_and_b32 v118, 3, v1"); a("v_add_u32 v118, %d, v118" % (L_SYNC + Y_CNT))
        a("v_lshlrev_b32 v4, 4, v1")
        for r in range(60, 64): a("v_mov_b32 v%d, 0" % r)
        a("v_add_u32 v119, %d, v4" % O_U)
        a("v_bfe_u32 v10, v1, 2, 2")
        a("v_mul_u32_u24 v10, %d, v10" % CPS)
        a("v_and_b32 v11, 3, v1")
        a("v_lshl_add_u32 v10, v11, 4, v10")
        a("v_add_u32 v10, 4096, v10")
        a("v_cmp_gt_u32 vcc, 32, v1")
        a("v_cndmask_b32 v119, v10, v119, vcc")
        a("v_add_u32 v119, s%d, v119" % sCVB)
        a("v_sub_u32 v10, 3, v7"); a("v_and_b32 v10, 3, v10")
        a("v_mul_u32_u24 v171, %d, v10" % CPS)
        a("v_add_u32 v11, v7, v10")
        a("v_sub_u32 v11, %d, v11" % (2031 - 16 * 126))
        a("v_lshl_add_u32 v11, v6, 3, v11")
        a("v_lshl_add_u32 v171, v11, 1, v171")
        a("s_lshl_b32 s%d, s%d, 8" % (sT0, sHF))
        a("s_sub_u32 s%d, s%d, s%d" % (sT1, sCVB, sT0))
        a("v_add_u32 v171, s%d, v171" % sT1)
        a("v_lshlrev_b32 v175, 5, v7")
        a("v_lshl_add_u32 v175, v6, 4, v175")
        a("v_add_u32 v175, %d, v175" % O_U)
        a("v_add_u32 v175, s%d, v175" % sT1)
        a("s_add_u32 s%d, s%d, s%d" % (sT3, sCVB, sT2))
        a("v_add_u32 v168, s%d, v4" % sT3)
        a("s_and_b32 s%d, s%d, 2" % (sT0, sKW)); a("s_lshl_b32 s%d, s%d, 2" % (sT0, sT0)); a("s_add_u32 s%d, s%d, %d" % (sT0, sT0, L_SYNC + Y_KEXP))
        a("v_mov_b32 v9, s%d" % sT0)
    a.wait_vm("param")
    if TRIM: a("v_mov_b32 v2, v7"); a("v_mov_b32 v3, v6")
    if PFW == 0: pf_wd()
    sk_("param")
    a("s_mov_b32 exec_lo, s%d" % sPM); a("s_mov_b32 exec_hi, 0")
    a("buffer_load_dwordx2 v[116:117], v113, s[%d:%d], 0 offen sc1" % (SDBG, SDBG + 3))
    a("s_mov_b64 exec, -1")
    if "nokgen" in EXP: nonce_pub()
    for it in range(2):
        for r in P[it]: k("v_lshlrev_b32 v%d, 16, v%d" % (r, r))
    k("v_lshlrev_b32 v26, 16, v26")
    k("v_mul_f32 v26, %s, v26" % fbits(LOG2E))
    k("v_exp_f32 v26, v26")
    k("v_cvt_pk_bf16_f32 v26, v26, v26")
    k("v_lshlrev_b32 v26, 16, v26")
    WR = [28, 126]
    for it in range(2):
        p = P[it]
        k("v_mul_f32 v%d, v26, v%d" % (p[0], p[0])); k("v_mul_f32 v%d, v26, v%d" % (p[1], p[1]))
        k("v_mul_f32 v%d, v26, v%d" % (p[2], p[2])); k("v_mul_f32 v%d, v26, v%d" % (p[3], p[3]))
        w = WR[it]
        k("v_mul_f32 v%d, v%d, v%d" % (w, p[4], p[2])); k("v_fma_f32 v%d, -v%d, v%d, v%d" % (w, p[5], p[3], w))
        k("v_mul_f32 v%d, v%d, v%d" % (w + 1, p[4], p[3])); k("v_fma_f32 v%d, v%d, v%d, v%d" % (w + 1, p[5], p[2], w + 1))
    k("v_max_f32 v27, abs(v28), abs(v29)")
    k("v_max3_f32 v27, abs(v126), abs(v127), v27")
    for sh in (1, 2, 4, 8):
        k("v_max_f32_dpp v27, v27, v27 row_shr:%d row_mask:0xf bank_mask:0xf" % sh)
    k("v_max_f32_dpp v27, v27, v27 row_bcast:15 row_mask:0xa bank_mask:0xf")
    k("v_max_f32_dpp v27, v27, v27 row_bcast:31 row_mask:0xc bank_mask:0xf")
    k("v_readlane_b32 s%d, v27, 63" % sINV)
    k("s_lshr_b32 s%d, s%d, 23" % (sINV, sINV))
    if TRIM: k("s_add_u32 s%d, s%d, 1" % (sINV, sINV))
    else:
        k("s_sub_u32 s%d, 254, s%d" % (sSC, sINV))
        k("s_lshl_b32 s%d, s%d, 23" % (sSC, sSC))
    k("v_mov_b32 v10, s%d" % sINV)
    k("s_lshl_b32 s%d, s%d, 2" % (sT1, sKW))
    k("s_add_u32 s%d, s%d, %d" % (sT1, sT1, L_SYNC + Y_KEXP))
    k("v_mov_b32 v11, s%d" % sT1)
    k("ds_write_b32 v11, v10")
    def wscale():
        for w in WR:
            k("v_mul_f32 v%d, s%d, v%d" % (w, sSC, w)); k("v_mul_f32 v%d, s%d, v%d" % (w + 1, sSC, w + 1))
    def common_scale():
        l1, l2, l3 = L("KS"), L("KS"), L("KS")
        a("s_mov_b32 s%d, %d" % (sCNT, SPIN))
        a("s_waitcnt lgkmcnt(15)")
        a("s_branch %s" % l3)
        a.label(l1)
        a("ds_read_b64 v[10:11], v9")
        a("s_waitcnt lgkmcnt(0)")
        a.label(l3)
        a("v_readfirstlane_b32 s%d, v10" % sT0); a("v_readfirstlane_b32 s%d, v11" % sT1)
        a("s_min_u32 s%d, s%d, s%d" % (sSC, sT0, sT1))
        a("s_cmp_lg_u32 s%d, 0" % sSC)
        a("s_cbranch_scc1 %s" % l2)
        a("s_sub_u32 s%d, s%d, 1" % (sCNT, sCNT)); a("s_cmp_lg_u32 s%d, 0" % sCNT)
        a("s_cbranch_scc1 %s" % l1)
        a.label(l2)
        a("s_max_u32 s%d, s%d, s%d" % (sINV, sT0, sT1))
        a("s_sub_u32 s%d, 255, s%d" % (sSC, sINV)); a("s_lshl_b32 s%d, s%d, 23" % (sSC, sSC))
        a("s_sub_u32 s%d, s%d, 1" % (sINV, sINV)); a("s_lshl_b32 s%d, s%d, 23" % (sINV, sINV))
        wscale()
    if not TRIM: wscale()
    k("s_mov_b32 m0, s%d" % sSTG)
    E1, E8, E256, E2, E4, E16 = 30, 32, 34, 36, 38, 40
    tmpi = [0]
    def cmul(d, x, y):
        t = 42 + (tmpi[0] & 3); tmpi[0] += 1
        assert d != y
        k("v_mul_f32 v%d, v%d, v%d" % (t, x, y + 1))
        k("v_mul_f32 v%d, v%d, v%d" % (d, x, y))
        k("v_fma_f32 v%d, -v%d, v%d, v%d" % (d, x + 1, y + 1, d))
        k("v_fma_f32 v%d, v%d, v%d, v%d" % (d + 1, x + 1, y, t))
    PK = [46, 47, 48, 49]; pki = [0]
    def put(row, r, negim=False):
        p = PK[pki[0] & 3]; pki[0] += 1
        k("v_cvt_pk_f16_f32 v%d, v%d, %sv%d" % (p, r, "-" if negim else "", r + 1))
        if "nokw" in EXP or ("halfkw" in EXP and (pki[0] & 1)): k("; skip"); return
        k("ds_write_addtid_b32 v%d offset:%d" % (p, row * 272))
    YF = [64, 80]; XFB = 96
    for it in range(2 if "nokgen" not in EXP else 0):
        are, aim = P[it][0], P[it][1]
        if it == 1 and PFW == 1: pf_wd()
        X0 = WR[it]
        def cexp(d, Lx):
            k("v_mul_f32 v16, %s, v%d" % (fbits(Lx * LOG2E), are))
            k("v_mul_f32 v17, %s, v%d" % (fbits(Lx / (2 * math.pi)), aim))
            k("v_exp_f32 v16, v16")
            k("v_fract_f32 v17, v17")
            k("v_cos_f32 v%d, v17" % d)
            k("v_sin_f32 v%d, v17" % (d + 1))
            k("v_mul_f32 v%d, v16, v%d" % (d, d))
            k("v_mul_f32 v%d, v16, v%d" % (d + 1, d + 1))
        cexp(E8, 8); cexp(E1, 1); cexp(E256, 256)
        cmul(E16, E8, E8); cmul(E2, E1, E1); cmul(E4, E2, E2)
        Ya, Yb = 50, 52
        k("v_mov_b32 v50, 1.0"); k("v_mov_b32 v51, 0")
        put(0, Ya); put(1, E8)
        cmul(Yb, E8, E16)
        put(2, E16); put(3, Yb)
        cmul(Ya, E16, E16)
        for j in range(4, 32, 2):
            cmul(Yb, Yb, E16)
            put(j & 15, Ya); put((j + 1) & 15, Yb)
            if j + 2 < 32: cmul(Ya, Ya, E16)
            if TRIM and it == 0 and j == ENV("KSJ", 12): k("ds_read_b64 v[10:11], v9")
            if j == 14:
                for ks in range(4): k("ds_read_b128 %s, v5 offset:%d" % (vr(YF[0] + 4 * ks, 4), ks * 64))
        for ks in range(4): k("ds_read_b128 %s, v5 offset:%d" % (vr(YF[1] + 4 * ks, 4), ks * 64))
        Xa, Xb, Xc = 54, 56, 58
        if it == 0 and TRIM: common_scale()
        if it == 0: nonce_pub()
        put(0, X0, True)
        cmul(Xa, X0, E1); cmul(Xb, X0, E256)
        put(1, Xa, True); put(8, Xb, True)
        cmul(Xc, Xb, E2)
        for r in range(2, 8):
            cmul(Xa, Xa, E1); put(r, Xa, True)
            if r <= 5:
                put(9 + (r - 2), Xc, True)
                if r < 5: cmul(Xc, Xc, E2)
        def xtile(t):
            for ks in range(4): k("ds_read_b128 %s, v%d offset:%d" % (vr(XFB + 4 * ks, 4), XA[t], ks * 64))
        def xmfma(t):
            for ks in range(4):
                for yt in range(2):
                    k("v_mfma_f32_16x16x32_f16 %s, %s, %s, %s" % (vr(D(t, yt), 4), vr(XFB + 4 * ks, 4), vr(YF[yt] + 4 * ks, 4), "0" if TRIM and it == 0 and ks == 0 else vr(D(t, yt), 4)))
        xtile(0)
        for b in range(2):
            cmul(Xb, Xb, E256); put(3 * b, Xb, True)
            cmul(Xc, Xb, E4); put(3 * b + 1, Xc, True)
            cmul(Xa, Xb, E8); put(3 * b + 2, Xa, True)
        k("s_waitcnt lgkmcnt(6)")
        xmfma(0)
        xtile(1)
        for b in range(4):
            cmul(Xb, Xb, E256); put(6 + 2 * b, Xb, True)
            cmul(Xa, Xb, E8); put(7 + 2 * b, Xa, True)
        k("s_waitcnt lgkmcnt(8)")
        xmfma(1)
        for t in (2, 3):
            xtile(t)
            k("s_waitcnt lgkmcnt(0)")
            xmfma(t)
    if ENV("VERB", 0): print("kgen instrs", kc[0])
    if "nokgen" in EXP:
        for kk_ in sorted(hooks): hooks[kk_]()
        hooks.clear()
    assert not hooks
    sk_("kgen")
    a("s_setprio %d" % ENV("XPRIO", 2))
    u_poll()
    if TRIM:
        x1, x2 = L("X"), L("X")
        a("s_cmp_lg_u32 s%d, 0" % sHF)
        a("s_cbranch_scc1 %s" % x1)
        a.begin_opt()
        for i in range(4): a("ds_write_b128 v18, %s offset:%d" % (vr(144 + 4 * i, 4), i * 1024))
        setf(Y_KX)
        waitp(Y_KX)
        for i in range(4): a("ds_read_b128 %s, v19 offset:%d" % (vr(144 + 4 * i, 4), i * 1024))
        a("s_branch %s" % x2)
        a.end_opt()
        a.label(x1)
        a.begin_opt()
        for i in range(4): a("ds_write_b128 v18, %s offset:%d" % (vr(128 + 4 * i, 4), i * 1024))
        setf(Y_KX)
        waitp(Y_KX)
        for i in range(4): a("ds_read_b128 %s, v19 offset:%d" % (vr(128 + 4 * i, 4), i * 1024))
        a.end_opt()
        a.label(x2)
        a("ds_read_u8 v164, v118 offset:%d" % Y_RD)
        a("s_lshl_b32 s%d, s%d, 11" % (sT2, sHF))
        a("s_add_u32 s%d, s%d, s%d" % (sT3, sCVB, sT2))
        for i in range(4):
            b = 128 + 4 * i
            a("s_waitcnt lgkmcnt(%d)" % (4 - i))
            for e in range(4): a("v_add_f32 v%d, v%d, v%d" % (b + e, b + e, b + 16 + e))
            a("v_cndmask_b32 v%d, v%d, v%d, s[16:17]" % (b, b, b + 1))
            a("v_cvt_pk_f16_f32 v%d, v%d, v%d" % (64 + 2 * i, b + 3, b + 2))
            a("v_cvt_pk_f16_f32 v%d, v%d, v%d" % (65 + 2 * i, b + 1, b))
        xs = L("XS")
        a("s_waitcnt lgkmcnt(0)")
        a("v_cmp_gt_u32 vcc, 10, v164")
        a("s_cbranch_vccz %s" % xs)
        a.begin_opt()
        spin_lds(118, 164, 10, slp=4, off=Y_RD)
        a.end_opt()
        a.label(xs)
        for tl in range(2):
            for yt in range(2):
                a("ds_write_b64 v115, %s offset:%d" % (vr(64 + 4 * tl + 2 * yt, 2), (1 - tl) * 1024 + (1 - yt) * 256))
        a("s_setprio %d" % int(os.environ.get("CPRIO", "2")))
        a("s_cmp_lg_u32 s%d, 0" % sHF)
        a("s_cselect_b32 exec_lo, 0, 0x3fffffff"); a("s_cselect_b32 exec_hi, 0, 0xffff")
        a("ds_write_b128 v119, v[60:63]")
        setf(Y_C0)
        a("v_mov_b32 v5, v168")
    else:
        a("v_lshl_add_u32 v18, v1, 4, s%d" % sSTG)
        a("s_xor_b32 s%d, s%d, 1" % (sT0, sKW))
        a("s_mul_i32 s%d, s%d, %d" % (sT0, sT0, STG_W))
        a("s_add_u32 s%d, s%d, %d" % (sT0, sT0, L_STG))
        a("v_lshl_add_u32 v19, v1, 4, s%d" % sT0)
        x1, x2 = L("X"), L("X")
        a("s_cmp_lg_u32 s%d, 0" % sHF)
        a("s_cbranch_scc1 %s" % x1)
        a.begin_opt()
        for i in range(4): a("ds_write_b128 v18, %s offset:%d" % (vr(144 + 4 * i, 4), i * 1024))
        a("s_branch %s" % x2)
        a.end_opt()
        a.label(x1)
        a.begin_opt()
        for i in range(4): a("ds_write_b128 v18, %s offset:%d" % (vr(128 + 4 * i, 4), i * 1024))
        for i in range(16): a("v_mov_b32 v%d, v%d" % (128 + i, 144 + i))
        a.end_opt()
        a.label(x2)
        setf(Y_KX)
        waitp(Y_KX)
        a("s_and_b32 s%d, s%d, 2" % (sT0, sKW))
        a("s_lshl_b32 s%d, s%d, 2" % (sT0, sT0))
        a("s_add_u32 s%d, s%d, %d" % (sT0, sT0, L_SYNC + Y_KEXP))
        a("v_mov_b32 v10, s%d" % sT0)
        a("ds_read_b64 v[10:11], v10")
        for i in range(4): a("ds_read_b128 %s, v19 offset:%d" % (vr(144 + 4 * i, 4), i * 1024))
        a("s_waitcnt lgkmcnt(4)")
        a("v_max_u32 v16, v10, v11")
        a("v_add_u32 v17, v10, v11"); a("v_subrev_u32 v17, s%d, v17" % sINV)
        def fac(dst, esrc):
            a("v_sub_u32 v%d, %s, v16" % (dst, esrc))
            a("v_add_u32 v%d, 127, v%d" % (dst, dst))
            a("v_max_i32 v%d, 0, v%d" % (dst, dst))
            a("v_lshlrev_b32 v%d, 23, v%d" % (dst, dst))
        fac(20, "s%d" % sINV); fac(22, "v17")
        a("v_lshlrev_b32 v9, 23, v16")
        a("s_waitcnt lgkmcnt(0)")
        for i in range(16):
            a("v_mul_f32 v%d, v20, v%d" % (128 + i, 128 + i))
            a("v_fmac_f32 v%d, v22, v%d" % (128 + i, 144 + i))
        a("v_and_b32 v10, v6, v7"); a("v_and_b32 v10, s%d, v10" % sHF)
        a("v_cmp_ne_u32 vcc, 0, v10")
        for i in range(4): a("v_cndmask_b32 v%d, v%d, v%d, vcc" % (128 + 4 * i, 128 + 4 * i, 129 + 4 * i))
        a("v_lshrrev_b32 v10, 1, v6"); a("v_lshlrev_b32 v10, 9, v10")
        a("v_lshl_add_u32 v10, v7, 4, v10")
        a("v_and_b32 v11, 1, v6"); a("v_lshl_add_u32 v10, v11, 3, v10")
        a("s_add_u32 s%d, s%d, %d" % (sT0, sCVB, 4088 - 1024 - 256))
        a("s_lshl_b32 s%d, s%d, 11" % (sT2, sHF))
        a("s_sub_u32 s%d, s%d, s%d" % (sT0, sT0, sT2))
        a("v_sub_u32 v10, s%d, v10" % sT0)
        for tl in range(2):
            for yt in range(2):
                b = 128 + 8 * tl + 4 * yt
                a("v_cvt_pk_f16_f32 v%d, v%d, v%d" % (64 + 4 * tl + 2 * yt, b + 3, b + 2))
                a("v_cvt_pk_f16_f32 v%d, v%d, v%d" % (65 + 4 * tl + 2 * yt, b + 1, b))
        a("v_and_b32 v11, 3, v1"); a("v_add_u32 v11, %d, v11" % (L_SYNC + Y_CNT))
        spin_lds(11, 164, 10, slp=4, off=Y_RD)
        for tl in range(2):
            for yt in range(2):
                a("ds_write_b64 v10, %s offset:%d" % (vr(64 + 4 * tl + 2 * yt, 2), (1 - tl) * 1024 + (1 - yt) * 256))
        if "dbgk" in EXP:
            a("s_mul_i32 s%d, s%d, %d" % (sT0, sCH, KSTRIDE)); a("s_sub_u32 s%d, s%d, s%d" % (sT0, sT0, sCVB)); a("s_add_u32 s%d, s%d, %d" % (sT0, sT0, WS_KREV))
            for tl in range(2):
                for yt in range(2):
                    a("buffer_store_dwordx2 %s, v10, s[%d:%d], s%d offen offset:%d" % (vr(64 + 4 * tl + 2 * yt, 2), SWS, SWS + 3, sT0, (1 - tl) * 1024 + (1 - yt) * 256))
            a("s_lshl_b32 s%d, s%d, 2" % (sT0, sCH)); a("s_add_u32 s%d, s%d, %d" % (sT0, sT0, WS_KSC)); a("v_mov_b32 v11, s%d" % sT0)
            a("buffer_store_dword v9, v11, s[%d:%d], 0 offen" % (SWS, SWS + 3))
        a("s_setprio %d" % int(os.environ.get("CPRIO", "2")))
        a("v_mov_b32 v2, v7"); a("v_mov_b32 v3, v6")
        a("v_lshlrev_b32 v4, 4, v1")
        a("v_mov_b32 v12, 0"); a("v_mov_b32 v13, 0"); a("v_mov_b32 v14, 0"); a("v_mov_b32 v15, 0")
        a("v_add_u32 v5, %d, v4" % O_U)
        a("v_bfe_u32 v6, v1, 2, 2")
        a("v_mul_u32_u24 v6, %d, v6" % CPS)
        a("v_and_b32 v7, 3, v1")
        a("v_lshl_add_u32 v6, v7, 4, v6")
        a("v_add_u32 v6, 4096, v6")
        a("v_cmp_gt_u32 vcc, 32, v1")
        a("v_cndmask_b32 v5, v6, v5, vcc")
        a("v_add_u32 v5, s%d, v5" % sCVB)
        nz = L("NZ")
        a("s_cmp_lg_u32 s%d, 0" % sHF)
        a("s_cbranch_scc1 %s" % nz)
        a.begin_opt()
        a("s_mov_b32 exec_lo, 0x3fffffff"); a("s_mov_b32 exec_hi, 0xffff")
        a("ds_write_b128 v5, v[12:15]")
        a("s_mov_b64 exec, -1")
        a.end_opt()
        a.label(nz)
        setf(Y_C0)
        a("v_sub_u32 v5, 3, v2"); a("v_and_b32 v5, 3, v5")
        a("v_mul_u32_u24 v6, %d, v5" % CPS)
        a("v_add_u32 v7, v2, v5")
        a("v_sub_u32 v7, %d, v7" % (2031 - 16 * 126))
        a("v_lshl_add_u32 v7, v3, 3, v7")
        a("v_lshl_add_u32 v6, v7, 1, v6")
        a("s_lshl_b32 s%d, s%d, 8" % (sT0, sHF))
        a("s_sub_u32 s%d, s%d, s%d" % (sT1, sCVB, sT0))
        a("v_add_u32 v6, s%d, v6" % sT1)
        a("v_lshlrev_b32 v7, 5, v2")
        a("v_lshl_add_u32 v7, v3, 4, v7")
        a("v_add_u32 v7, %d, v7" % O_U)
        a("v_add_u32 v7, s%d, v7" % sT1)
        a("s_add_u32 s%d, s%d, s%d" % (sT3, sCVB, sT2))
        a("v_add_u32 v5, s%d, v4" % sT3)
    lq, lq2, lq3 = L("PB"), L("PB"), L("PB")
    a("s_cmp_eq_u32 s%d, 0" % sPM)
    a("s_cbranch_scc1 %s" % lq3)
    a.begin_opt()
    a("s_mov_b32 s%d, %d" % (sOX, SPIN))
    a.label(lq)
    a("s_waitcnt vmcnt(0)")
    a("v_cmp_ne_u32 vcc, s%d, v169" % sNON)
    a("s_cmp_eq_u32 vcc_lo, 0")
    a("s_cbranch_scc1 %s" % lq2)
    a("s_sleep %d" % int(os.environ.get("PSL", "8")))
    a("s_mov_b32 exec_hi, 0")
    a("buffer_load_dword v169, v112, s[%d:%d], 0 offen sc1" % (SWS, SWS + 3))
    a("s_mov_b64 exec, -1")
    a("s_sub_u32 s%d, s%d, 1" % (sOX, sOX)); a("s_cmp_lg_u32 s%d, 0" % sOX)
    a("s_cbranch_scc1 %s" % lq)
    a.label(lq2)
    u_dma()
    a.end_opt()
    a.label(lq3)
    sk_("rdyB")
    waitp(Y_C0)
    for it in range(2):
        b = 32 + 8 * it
        a("ds_read_b128 %s, v5 offset:%d" % (vr(b, 4), it * 1024))
        a("ds_read_b64 %s, v5 offset:%d" % (vr(b + 4, 2), it * 1024 + 16))
    for it in range(2):
        b = 32 + 8 * it
        a("s_waitcnt lgkmcnt(%d)" % (2 if it == 0 else 3))
        d = [b + i for i in range(6)]
        c1, c2, c3 = 64 + 12 * it, 68 + 12 * it, 72 + 12 * it
        for i in range(4):
            a("v_alignbit_b32 v%d, v%d, v%d, 16" % (c1 + i, d[i + 1], d[i]))
            a("v_mov_b32 v%d, v%d" % (c2 + i, d[i + 1]))
            a("v_alignbit_b32 v%d, v%d, v%d, 16" % (c3 + i, d[i + 2], d[i + 1]))
        a("ds_write_b128 v5, %s offset:%d" % (vr(c1, 4), CPS + it * 1024))
        a("ds_write_b128 v5, %s offset:%d" % (vr(c2, 4), 2 * CPS + it * 1024))
        a("ds_write_b128 v5, %s offset:%d" % (vr(c3, 4), 3 * CPS + it * 1024))
    sk_("copies")
    CA = 16; G = 64; F = 96
    if not TRIM:
        for r in range(CA, CA + 32): a("v_mov_b32 v%d, 0" % r)
    setf(Y_BL)
    spin_lds(114, 164, 1, width="b32", slp=1, off=Y_U - Y_RDA)
    a("ds_read_b64 v[166:167], v114 offset:%d" % (Y_NON - Y_RDA))
    waitp(Y_BL)
    sk_("built")
    if YP == 3 and "nopp" not in EXP:
        a("v_mov_b32 v174, v112")
        a("s_mov_b32 exec_hi, 0")
        a("buffer_load_dword v169, v174, s[%d:%d], 0 offen offset:128 sc1" % (SWS, SWS + 3))
        a("s_mov_b64 exec, -1")
    a("s_setprio %d" % ENV("MPRIO", 1))
    def rg(ri, q):
        o = 32 * (126 - 16 * q - 2 * ri)
        a("ds_read_b64 %s, v%d offset:%d" % (vr(G + 4 * q, 2), GB, o))
        a("ds_read_b64 %s, v%d offset:%d" % (vr(G + 4 * q + 2, 2), GB, o + 8))
    def rf(ri, j):
        a("ds_read_b128 %s, v%d offset:%d" % (vr(F + 4 * j, 4), FB, 32 * (16 * j - 2 * ri + 14)))
    side = []
    S = side.append
    S("v_lshlrev_b32 v8, 16, v160")
    XW, XO = 128, 136
    for i in range(4):
        for pr in range(2):
            xw = XW + 2 * i + pr; o = XO + 4 * i + 2 * pr
            S("v_cvt_f32_f16 v%d, v%d" % (o, xw))
            S("v_lshrrev_b32 v%d, 16, v%d" % (o + 1, xw)); S("v_cvt_f32_f16 v%d, v%d" % (o + 1, o + 1))
            S("v_mul_f32 v%d, v8, v%d" % (o, o)); S("v_mul_f32 v%d, v8, v%d" % (o + 1, o + 1))
            S("v_cvt_pk_bf16_f32 v%d, v%d, v%d" % (o, o, o + 1))
            S("v_and_b32 v%d, 0xffff0000, v%d" % (o + 1, o)); S("v_lshlrev_b32 v%d, 16, v%d" % (o, o))
    S("v_lshl_add_u32 v5, v1, 4, s%d" % sSTG)
    S("s_xor_b32 s%d, s%d, 1" % (sT0, sKW))
    S("s_mul_i32 s%d, s%d, %d" % (sT0, sT0, STG_W))
    S("s_add_u32 s%d, s%d, %d" % (sT0, sT0, L_STG))
    S("v_lshl_add_u32 v152, v1, 4, s%d" % sT0)
    S("v_and_b32 v13, 1, v3"); S("v_lshlrev_b32 v13, 9, v13")
    S("v_lshrrev_b32 v14, 2, v2"); S("v_lshl_add_u32 v13, v14, 7, v13")
    S("v_lshrrev_b32 v14, 1, v3"); S("v_lshl_add_u32 v13, v14, 6, v13")
    S("v_and_b32 v14, 3, v2"); S("v_lshl_add_u32 v13, v14, 4, v13")
    S("v_add_u32 v13, s%d, v13" % sT2)
    S("s_and_b32 s%d, s%d, 0xfffe" % (sT0, sCH)); S("s_add_u32 s%d, s%d, s%d" % (sT0, sT0, sHF)); S("s_lshl_b32 s%d, s%d, 8" % (sT0, sT0))
    S("s_and_b32 s%d, s%d, 1" % (sT1, sCH)); S("s_lshl_b32 s%d, s%d, 3" % (sT1, sT1))
    S("s_add_u32 s%d, s%d, s%d" % (sT0, sT0, sT1))
    S("s_add_u32 s%d, s%d, %d" % (sT0, sT0, WS_CF))
    S("v_mov_b32 v14, s%d" % sT0)
    S("v_readfirstlane_b32 s%d, v166" % sNON); S("v_readfirstlane_b32 s%d, v167" % (sNON + 1))
    S("s_lshl_b32 s%d, s%d, 14" % (sT0, sCT))
    S("s_lshl_b32 s%d, s%d, 12" % (sT1, sKW))
    S("s_add_u32 s%d, s%d, s%d" % (sT0, sT0, sT1))
    S("s_lshr_b32 s%d, s%d, 4" % (sT1, sRT2)); S("s_lshl_b32 s%d, s%d, 8" % (sT1, sT1))
    S("s_add_u32 s%d, s%d, s%d" % (sT0, sT0, sT1))
    S("s_add_u32 s%d, s%d, %d" % (sT0, sT0, WS_CF))
    S("v_lshrrev_b32 v153, 1, v2"); S("v_lshl_add_u32 v153, v153, 9, s%d" % sT0)
    S("v_and_b32 v154, 1, v2"); S("v_lshl_add_u32 v153, v154, 3, v153")
    S("s_lshl_b32 s%d, s%d, 4" % (sT0, sKW))
    S("v_lshrrev_b32 v154, 3, v1")
    S("v_add_u32 v154, s%d, v154" % sT0)
    S("s_lshl_b32 s%d, s%d, 6" % (sT0, sCT))
    S("v_add_u32 v154, s%d, v154" % sT0)
    S("v_mul_u32_u24 v154, %d, v154" % YST)
    S("v_and_b32 v155, 7, v1")
    S("v_lshl_add_u32 v154, v155, 4, v154")
    S("s_lshl_b32 s%d, s%d, 7" % (sT2, sRT2))
    S("s_add_u32 s%d, s%d, %d" % (sT2, sT2, WS_YAT))
    S("s_add_u32 s%d, s%d, %d" % (sT3, sT2, 8 * YST))
    S("s_mul_i32 s%d, s%d, %d" % (sT0, sCH, YST))
    S("s_add_u32 s%d, s%d, %d" % (sT0, sT0, WS_YAT))
    S("v_add_u32 v165, %d, v162" % Y_CX)
    if NSTA:
        S("s_lshl_b32 s%d, s%d, 13" % (sOX, sHF)); S("s_add_u32 s%d, s%d, s%d" % (sOX, sOX, sCVB)); S("v_lshl_add_u32 v157, v1, 4, s%d" % sOX)
        if SP0 < 0:
            side2 = []
            for n in range(4 * NSTA): side2.append(n)
    def copy_part(part):
        for n in range(4 * NSTA):
            s_ = 14 - NSTA + n // 4; q = n % 4
            if (s_ >= 12) != (part == 1): continue
            if s_ >= 12: ad, of = 157, (s_ - 12) * 4096
            elif WDS[s_ % 6] >= 65536: ad, of = 158, WDS[s_ % 6] - 65536
            else: ad, of = 156, WDS[s_ % 6]
            a("ds_write_b128 v%d, %s offset:%d" % (ad, vr(176 + 4 * n, 4), of + q * 1024))
            cw = ENV("CW%d" % part, part + 1)
            if cw >= 100: a("s_sleep %d" % (cw - 100))
            elif cw:
                for _ in range(cw): a("s_nop 7")
        a("v_mov_b32 v159, %d" % (part + 1))
        a("s_mov_b64 exec, 1")
        a("ds_write_b8 v161, v159 offset:%d" % Y_WS)
        a("s_mov_b64 exec, -1")
    def copy_out():
        l = L("CA")
        a("s_cmp_lg_u32 s%d, 0" % sLD)
        a("s_cbranch_scc1 %s" % l)
        copy_part(0)
        a.label(l)
        copy_part(1)
    def copy_try():
        l = L("CA")
        a("v_cmp_gt_u32 vcc, 1, v164")
        a("s_cmp_lg_u32 s%d, 0" % sLD)
        a("s_cbranch_scc1 %s" % l)
        a("s_cbranch_vccnz %s" % l)
        a.begin_opt()
        a("s_waitcnt vmcnt(0)")
        a("s_mov_b32 s%d, 1" % sLD)
        copy_part(0)
        a.end_opt()
        a.label(l)
    CTRY = [int(x) for x in os.environ.get("CTRY", "9").split(",")]
    a("s_mov_b32 s%d, 0" % sLD)
    a("s_lshl_b32 s%d, s%d, 12" % (sOX, sKW)); a("v_lshl_add_u32 v156, v1, 4, s%d" % sOX); a("v_add_u32 v158, 65536, v156")
    a("v_lshlrev_b32 v13, 5, v2")
    a("v_lshl_add_u32 v13, v3, 3, v13")
    a("s_add_u32 s%d, s%d, %d" % (sT1, sT3, O_U + 480))
    a("v_add_u32 v14, s%d, v13" % sT1)
    for i in range(4): a("ds_read_b64 %s, v14 offset:%d" % (vr(XW + 2 * i, 2), i * 512))
    for q in range(8): rg(0, q); rf(0, 7 - q)
    nm = 0
    if "noconv" in EXP:
        a("s_waitcnt lgkmcnt(0)")
        while side: a(side.pop(0))
    EC = ENV("EC", 0); ECR = ENV("ECR", 2); ECS = ENV("ECS", 5); ECN = ENV("ECN", 1)
    ecq = []
    def ec_start():
        a("v_cmp_le_u32 s[86:87], 1, v164")
        a("v_mov_b32 v159, 1")
        a("s_and_b32 s%d, s86, 1" % sLD)
        a("s_waitcnt vmcnt(%d)" % (1 if YP == 3 else 0))
        for n in range(0, 12, ECN):
            ecq.append(["s_mov_b64 exec, s[86:87]"])
            for n_ in range(n, n + ECN):
                s_ = 9 + n_ // 4; hi = WDS[s_ % 6] >= 65536
                ecq[-1].append("ds_write_b128 v%d, %s offset:%d" % ((156, 158)[hi], vr(176 + 4 * n_, 4), WDS[s_ % 6] - 65536 * hi + (n_ % 4) * 1024))
            if n + ECN >= 12: ecq[-1] += ["s_mov_b32 exec_lo, s%d" % sLD, "s_mov_b32 exec_hi, 0", "ds_write_b8 v161, v159 offset:%d" % Y_WS]
            ecq[-1].append("s_mov_b64 exec, -1")
    for ri in range(4 if "noconv" not in EXP else 0):
        for q in range(8):
            for m in range(7, q - 1, -1):
                if q == 0:
                    a("s_waitcnt lgkmcnt(%d)" % min(15, 3 * m))
                a("v_mfma_f32_16x16x32_f16 %s, %s, %s, %s" % (vr(CA + 4 * m, 4), vr(G + 4 * q, 4), vr(F + 4 * (m - q), 4), "0" if TRIM and ri == 0 and q == 0 else vr(CA + 4 * m, 4)))
                nm += 1
                if NSTA and SP0 < 0 and side2 and nm % ENV("SPM", 4) == 0: st_ld(side2.pop(0))
                if nm > 8 and side:
                    a(side.pop(0))
                    while side and side[0].startswith("s_"): a(side.pop(0))
                if ecq and nm % ECS == 0:
                    for x in ecq.pop(0): a(x)
            if q == 0 and ri in CTRY: copy_try()
            if EC and q == 0 and ri == ECR: ec_start()
            if q == 7 and (ri + 1 in CTRY or (EC and ri + 1 == ECR)): a("ds_read_u8 v164, v161 offset:%d" % Y_TR)
            if ri + 1 < 4: rg(ri + 1, q); rf(ri + 1, 7 - q)
    assert not side and not ecq
    sk_("mfma")
    a("s_setprio %d" % ENV("PPRIO", 3))
    x1, x2 = L("X"), L("X")
    a("s_cmp_lg_u32 s%d, 0" % sHF)
    a("s_cbranch_scc1 %s" % x1)
    a.begin_opt()
    for i in range(4): a("ds_write_b128 v5, %s offset:%d" % (vr(CA + 16 + 4 * i, 4), i * 1024))
    a("s_mov_b64 exec, 1")
    a("ds_write_b8 v161, v163 offset:%d" % Y_CX)
    a("s_mov_b64 exec, -1")
    a("s_branch %s" % x2)
    a.end_opt()
    a.label(x1)
    a.begin_opt()
    for i in range(4): a("ds_write_b128 v5, %s offset:%d" % (vr(CA + 4 * i, 4), i * 1024))
    a("s_mov_b64 exec, 1")
    a("ds_write_b8 v161, v163 offset:%d" % Y_CX)
    a("s_mov_b64 exec, -1")
    for i in range(16): a("v_mov_b32 v%d, v%d" % (CA + i, CA + 16 + i))
    a.end_opt()
    a.label(x2)
    if YP == 3 and "nopp" not in EXP:
        lq, lq2 = L("PP"), L("PP")
        a("s_mov_b32 s%d, %d" % (sOX, SPIN))
        a.label(lq)
        a("s_waitcnt vmcnt(0)")
        a("v_cmp_ne_u32 vcc, s%d, v169" % sNON)
        a("s_cmp_eq_u32 vcc_lo, 0")
        a("s_cbranch_scc1 %s" % lq2)
        a("s_sleep 4")
        a("s_mov_b32 exec_hi, 0")
        a("buffer_load_dword v169, v174, s[%d:%d], 0 offen offset:128 sc1" % (SWS, SWS + 3))
        a("s_mov_b64 exec, -1")
        a("s_sub_u32 s%d, s%d, 1" % (sOX, sOX)); a("s_cmp_lg_u32 s%d, 0" % sOX)
        a("s_cbranch_scc1 %s" % lq)
        a.label(lq2)
    spin_lds(165, 164, 1, slp=0)
    if "hx" in EXP: sk_("xch")
    for i in range(4): a("ds_read_b128 %s, v152 offset:%d" % (vr(CA + 16 + 4 * i, 4), i * 1024))
    for i in range(4):
        a("s_waitcnt lgkmcnt(%d)" % (3 - i))
        for pr in range(2):
            y = CA + 4 * i + 2 * pr; o = XO + 4 * i + 2 * pr
            a("v_add_f32 v%d, v%d, v%d" % (y, y, y + 16)); a("v_add_f32 v%d, v%d, v%d" % (y + 1, y + 1, y + 17))
            ks_ = "s%d" % sINV if TRIM else "v9"
            a("v_mul_f32 v%d, %s, v%d" % (y, ks_, y)); a("v_mul_f32 v%d, %s, v%d" % (y + 1, ks_, y + 1))
            a("v_cvt_pk_bf16_f32 v%d, v%d, v%d" % (y, y, y + 1))
            a("v_and_b32 v%d, 0xffff0000, v%d" % (y + 1, y)); a("v_lshlrev_b32 v%d, 16, v%d" % (y, y))
            a("v_add_f32 v%d, v%d, v%d" % (y, y, o)); a("v_add_f32 v%d, v%d, v%d" % (y + 1, y + 1, o + 1))
            a("v_cvt_pk_bf16_f32 v%d, v%d, v%d" % (72 + 2 * i + pr, y, y + 1))
        if i & 1:
            b = 72 + 4 * (i >> 1)
            a("v_permlane16_swap_b32 v%d, v%d" % (b, b + 2)); a("v_permlane16_swap_b32 v%d, v%d" % (b + 1, b + 3))
            a("buffer_store_dwordx4 %s, v13, s[%d:%d], s%d offen offset:%d sc1" % (vr(b, 4), SWS, SWS + 3, sT0, (i >> 1) * 1024))
    setf(Y_XR)
    if "hx" in EXP: sk_("yst")
    def cflag():
        if YP: return
        a("s_waitcnt vmcnt(0)")
        a("s_mov_b64 exec, 1")
        a("buffer_store_dwordx2 v[166:167], v14, s[%d:%d], 0 offen sc1" % (SWS, SWS + 3))
        a("s_mov_b64 exec, -1")
    def yld(m=True):
        if m: a("s_mov_b64 exec, s[84:85]")
        a("buffer_load_dwordx4 v[104:107], v154, s[%d:%d], s%d offen sc1" % (SWS, SWS + 3, sT2))
        if m: a("s_mov_b64 exec, s[86:87]")
        a("buffer_load_dwordx4 v[108:111], v154, s[%d:%d], s%d offen sc1" % (SWS, SWS + 3, sT3))
        if m: a("s_mov_b64 exec, -1")
    if EC:
        assert YP
        c1 = L("CO")
        a("s_setprio %d" % ENV("QPRIO", 0))
        a("s_cmp_lg_u32 s%d, 0" % sLD)
        a("s_cbranch_scc1 %s" % c1)
        a.begin_opt()
        spin_lds(161, 164, 1, slp=1, off=Y_TR)
        copy_part(0)
        a.end_opt()
        a.label(c1)
        sk_("flag")
        if ENV("CSA", 0): a("s_sleep %d" % ENV("CSA", 0))
        if ENV("YE", 1): yld(False)
        copy_part(1)
        lp, ld, le = L("CP"), L("CP"), L("CP")
        a("s_mov_b32 s%d, %d" % (sOX, SPIN))
        if ENV("YE", 1): a("s_branch %s" % le)
        else: a("s_mov_b64 s[84:85], -1"); a("s_mov_b64 s[86:87], -1")
        a.label(lp)
        yld()
        a.label(le)
        a("s_waitcnt vmcnt(0)")
        a("v_cmp_eq_u32 s[84:85], -1, v104")
        a("v_cmp_eq_u32 s[86:87], -1, v108")
        a("s_or_b64 vcc, s[84:85], s[86:87]")
        a("s_cbranch_scc0 %s" % ld)
        a("s_sleep %d" % int(os.environ.get("CSL", "4")))
        a("s_sub_u32 s%d, s%d, 1" % (sOX, sOX)); a("s_cmp_lg_u32 s%d, 0" % sOX)
        a("s_cbranch_scc1 %s" % lp)
        a.label(ld)
        sk_("polled")
        waitp(Y_XR)
        a("ds_write_b128 v5, v[104:107]")
        a("ds_write_b128 v5, v[108:111] offset:1024")
        setf(Y_YA)
        a("s_waitcnt lgkmcnt(0)")
        sk_("end")
        sk_.store(100)
        a("s_endpgm")
        return
    if ENV("COA", 2) == 1:
        cflag()
        sk_("flag")
        spin_lds(161, 164, 1, slp=1, off=Y_TR)
        copy_out()
    elif ENV("COA", 2) == 2:
        a("ds_read_u8 v164, v161 offset:%d" % Y_TR)
        a("s_waitcnt vmcnt(2) lgkmcnt(0)")
        c1 = L("CO")
        a("v_cmp_gt_u32 vcc, 1, v164")
        a("s_cbranch_vccnz %s" % c1)
        a.begin_opt()
        a("s_mov_b32 s%d, 1" % sLD)
        copy_part(0)
        a.end_opt()
        a.label(c1)
        cflag()
        sk_("flag")
        spin_lds(161, 164, 1, slp=1, off=Y_TR)
        copy_out()
    elif NSTA:
        c1, c2 = L("CO"), L("CO")
        a("ds_read_u8 v164, v161 offset:%d" % Y_TR)
        a("s_waitcnt vmcnt(2) lgkmcnt(0)")
        a("v_cmp_gt_u32 vcc, 1, v164")
        a("s_cbranch_vccnz %s" % c1)
        a.begin_opt()
        copy_out(); cflag()
        a("s_branch %s" % c2)
        a.end_opt()
        a.label(c1)
        a.begin_opt()
        cflag()
        spin_lds(161, 164, 1, slp=1, off=Y_TR)
        copy_out()
        a.end_opt()
        a.label(c2)
    else: cflag()
    if not ENV("COA", 2): sk_("flag")
    a("s_setprio 0")
    a("s_sleep %d" % int(os.environ.get("CSL0", "8")))
    lp, ld = L("CP"), L("CP")
    a("s_mov_b32 s%d, %d" % (sOX, SPIN))
    if YP:
        assert YST == 4096
        a("s_mov_b64 s[84:85], -1"); a("s_mov_b64 s[86:87], -1")
        a.label(lp)
        a("s_mov_b64 exec, s[84:85]")
        a("buffer_load_dwordx4 v[104:107], v154, s[%d:%d], s%d offen sc1" % (SWS, SWS + 3, sT2))
        a("s_mov_b64 exec, s[86:87]")
        a("buffer_load_dwordx4 v[108:111], v154, s[%d:%d], s%d offen sc1" % (SWS, SWS + 3, sT3))
        a("s_mov_b64 exec, -1")
        a("s_waitcnt vmcnt(0)")
        a("v_cmp_eq_u32 s[84:85], -1, v104")
        a("v_cmp_eq_u32 s[86:87], -1, v108")
        a("s_or_b64 vcc, s[84:85], s[86:87]")
        a("s_cbranch_scc0 %s" % ld)
        a("s_sleep %d" % int(os.environ.get("CSL", "4")))
        a("s_sub_u32 s%d, s%d, 1" % (sOX, sOX)); a("s_cmp_lg_u32 s%d, 0" % sOX)
        a("s_cbranch_scc1 %s" % lp)
        a.label(ld)
        sk_("polled")
        waitp(Y_XR)
        a("ds_write_b128 v5, v[104:107]")
        a("ds_write_b128 v5, v[108:111] offset:1024")
        setf(Y_YA)
        a("s_waitcnt lgkmcnt(0)")
        sk_("end")
        sk_.store(100)
        a("s_endpgm")
        return
    a.label(lp)
    a("s_mov_b64 exec, 0xffff")
    a("buffer_load_dwordx2 v[20:21], v153, s[%d:%d], 0 offen sc1" % (SWS, SWS + 3))
    a("s_waitcnt vmcnt(0)")
    a("v_cmp_ne_u64 vcc, s[%d:%d], v[20:21]" % (sNON, sNON + 1))
    a("s_mov_b64 exec, -1")
    a("s_cbranch_vccz %s" % ld)
    a("s_sleep %d" % int(os.environ.get("CSL", "4")))
    a("s_sub_u32 s%d, s%d, 1" % (sOX, sOX)); a("s_cmp_lg_u32 s%d, 0" % sOX)
    a("s_cbranch_scc1 %s" % lp)
    a.label(ld)
    sk_("polled")
    a("buffer_load_dwordx4 v[104:107], v154, s[%d:%d], s%d offen" % (SWS, SWS + 3, sT2))
    a("buffer_load_dwordx4 v[108:111], v154, s[%d:%d], s%d offen" % (SWS, SWS + 3, sT3))
    waitp(Y_XR)
    a("s_waitcnt vmcnt(0)")
    a("ds_write_b128 v5, v[104:107]")
    a("ds_write_b128 v5, v[108:111] offset:1024")
    setf(Y_YA)
    a("s_waitcnt lgkmcnt(0)")
    sk_("end")
    sk_.store(100)
    a("s_endpgm")

def producer(a, sp_, L, spin_lds):
    a.label("K_PROD")
    a.vmq = []
    a.nopkw = True
    XT_S = 912
    L_PC = 64 * XT_S
    a("v_lshrrev_b32 v2, 3, v1")
    a("v_and_b32 v3, 7, v1")
    a("s_lshr_b32 s%d, s2, 3" % sT1)
    a("s_bfe_u32 s%d, s2, 0x20001" % sT0); a("s_lshl_b32 s%d, s%d, 3" % (sR, sT0)); a("s_lshl_b32 s%d, s%d, 1" % (sT1, sT1))
    a("s_add_u32 s%d, s%d, s%d" % (sR, sR, sT1)); a("s_and_b32 s%d, s2, 1" % sT0); a("s_add_u32 s%d, s%d, s%d" % (sR, sR, sT0))
    a("s_lshr_b32 s%d, s2, 1" % sF); a("s_min_u32 s%d, s%d, 13" % (sF, sF)); a("s_mul_i32 s%d, s%d, 14" % (sT0, sT0)); a("s_add_u32 s%d, s%d, s%d" % (sF, sF, sT0))
    a("s_lshl_b32 s%d, s%d, 3" % (sT0, sWV))
    a("v_add_u32 v4, s%d, v2" % sT0)
    a("s_lshl_b32 s%d, s%d, 6" % (sT1, sR))
    a("v_add_u32 v5, s%d, v4" % sT1)
    a("v_mul_u32_u24 v6, 896, v5")
    a("v_lshl_add_u32 v6, v3, 4, v6")
    a("s_waitcnt lgkmcnt(0)")
    srd(a, SX, 16, 2048 * 896)
    for i in range(7):
        a.vm("buffer_load_dwordx4 %s, v6, s[%d:%d], 0 offen offset:%d" % (vr(32 + 4 * i, 4), SX, SX + 3, i * 128), "x%d" % i)
    srd(a, SWS, 14, WS_SIZE)
    srd(a, SDBG, 12, 256)
    def poison():
        a("s_lshl_b32 s%d, s2, 3" % sT0); a("s_add_u32 s%d, s%d, s%d" % (sT0, sT0, sWV)); a("s_mul_i32 s%d, s%d, 7168" % (sT0, sT0))
        a("s_add_u32 s%d, s%d, %d" % (sT0, sT0, WS_YAT)); a("s_add_u32 s%d, s%d, 4096" % (sT1, sT0))
        a("v_lshlrev_b32 v140, 4, v1")
        for r in range(136, 140): a("v_mov_b32 v%d, -1" % r)
        for i in range(7):
            a.vm("buffer_store_dwordx4 v[136:139], v140, s[%d:%d], s%d offen offset:%d sc1" % (SWS, SWS + 3, (sT0, sT1)[i >> 2], (i & 3) * 1024), "poi")
    ln = L("NN")
    a("s_or_b32 s%d, s2, s%d" % (sT0, sWV))
    a("s_cbranch_scc1 %s" % ln)
    a.begin_opt()
    a("s_memrealtime s[%d:%d]" % (sNON, sNON + 1))
    a("s_waitcnt lgkmcnt(0)")
    a("s_or_b32 s%d, s%d, 0x40000000" % (sNON + 1, sNON + 1)); a("s_or_b32 s%d, s%d, 1" % (sNON, sNON))
    a("v_mov_b32 v12, s%d" % sNON); a("v_mov_b32 v13, s%d" % (sNON + 1)); a("v_mov_b32 v14, 64")
    a("s_mov_b64 exec, 1")
    a("buffer_store_dwordx2 v[12:13], v14, s[%d:%d], 0 offen sc1" % (SDBG, SDBG + 3))
    a("s_mov_b64 exec, -1")
    a.end_opt()
    a.label(ln)
    if YP == 1: poison()
    a("s_lshr_b32 s%d, s%d, 1" % (sT1, sWV))
    a("s_mul_i32 s%d, s%d, %d" % (sT1, sT1, 112 * 3584))
    a("s_lshl_b32 s%d, s%d, 7" % (sT2, sF))
    a("s_add_u32 s%d, s%d, s%d" % (sT1, sT1, sT2))
    a("v_mul_u32_u24 v9, 3584, v2")
    a("v_lshl_add_u32 v9, v3, 4, v9")
    a("v_add_u32 v9, s%d, v9" % sT1)
    a("s_bitcmp0_b32 s%d, 0" % sWV)
    a("s_cselect_b32 s%d, s32, s34" % SWG)
    a("s_cselect_b32 s%d, s33, s35" % (SWG + 1))
    a("s_and_b32 s%d, s%d, 0xffff" % (SWG + 1, SWG + 1))
    a("s_mov_b32 s%d, 0x%x" % (SWG + 2, 448 * 3584))
    a("s_mov_b32 s%d, 0x00020000" % (SWG + 3))
    wq = list(range(14))
    def ldw(n):
        for _ in range(n):
            if not wq: return
            i = wq.pop(0)
            a("s_mov_b32 s%d, %d" % (sOW, i * 8 * 3584))
            a.vm("buffer_load_dwordx4 %s, v9, s[%d:%d], s%d offen" % (vr(64 + 4 * i, 4), SWG, SWG + 3, sOW), "w%d" % i)
    a("s_mov_b32 s%d, 0x3f803f80" % sONES)
    a("v_mov_b32 v10, 0"); a("v_mov_b32 v11, 0"); a("v_mov_b32 v12, 0"); a("v_mov_b32 v13, 0")
    a("v_mul_u32_u24 v7, %d, v4" % XT_S)
    a("v_lshl_add_u32 v7, v3, 4, v7")
    a("v_lshlrev_b32 v8, 4, v5")
    a("s_lshl_b32 s%d, s2, 8" % sT2); a("s_add_u32 s%d, s%d, %d" % (sT2, sT2, WS_PF))
    a("v_lshl_add_u32 v28, v1, 13, s%d" % sT2)
    a("s_lshl_b32 s%d, s%d, 8" % (sT0, sR)); a("s_add_u32 s%d, s%d, %d" % (sT0, sT0, WS_FR))
    a("s_lshl_b32 s%d, s%d, 8" % (sT1, sF)); a("s_add_u32 s%d, s%d, %d" % (sT1, sT1, WS_FC))
    a("s_cmp_eq_u32 s%d, 0" % sWV); a("s_cselect_b32 s%d, s%d, s%d" % (sT0, sT0, sT1)); a("v_mov_b32 v29, s%d" % sT0)
    a("v_mov_b32 v30, 64")
    for i in range(7):
        a.wait_vm("x%d" % i)
        for r in range(4):
            a("v_dot2_f32_bf16 v%d, v%d, s%d, v%d" % (10 + 2 * (r & 1), 32 + 4 * i + r, sONES, 10 + 2 * (r & 1)))
            a("v_dot2_f32_bf16 v%d, v%d, v%d, v%d" % (11 + 2 * (r & 1), 32 + 4 * i + r, 32 + 4 * i + r, 11 + 2 * (r & 1)))
    ldw(ENV("PW0", 6))
    a("v_add_f32 v10, v10, v12"); a("v_add_f32 v11, v11, v13")
    for mod in ("quad_perm:[1,0,3,2]", "quad_perm:[2,3,0,1]", "row_half_mirror"):
        for r in (10, 11):
            a("v_add_f32_dpp v%d, v%d, v%d %s row_mask:0xf bank_mask:0xf" % (r, r, r, mod))
    c = math.sqrt(2 / math.pi); k1 = -2 * c * LOG2E; k2 = k1 * 0.044715
    a("v_mul_f32 v10, %s, v10" % fbits(1.0 / 448))
    a("v_mul_f32 v11, %s, v11" % fbits(1.0 / 448))
    a("v_fma_f32 v11, -v10, v10, v11")
    a("v_max_f32 v11, 0, v11")
    a("v_cvt_pk_bf16_f32 v10, v10, v11")
    a("v_lshlrev_b32 v12, 16, v10")
    a("v_and_b32 v11, 0xffff0000, v10")
    a("v_add_f32 v11, %s, v11" % fbits(1e-5))
    a("v_cvt_pk_bf16_f32 v11, v11, v11")
    a("v_lshlrev_b32 v11, 16, v11")
    a("v_sqrt_f32 v11, v11")
    a("v_cvt_pk_bf16_f32 v11, v11, v11")
    a("v_lshlrev_b32 v11, 16, v11")
    a("v_rcp_f32 v14, v11")
    a("v_sub_f32 v16, 0, v12")
    a("v_cvt_pk_bf16_f32 v24, v16, v16")
    a("v_mul_f32 v27, v11, v11")
    a("v_mul_f32 v25, %s, v14" % fbits(k1))
    a("v_mul_f32 v10, v14, v14"); a("v_mul_f32 v10, v10, v14")
    a("v_mul_f32 v26, %s, v10" % fbits(k2))
    a("s_mov_b32 s%d, %d" % (sT0, WS_RC))
    a("s_mov_b32 exec_lo, 0x01010101"); a("s_mov_b32 exec_hi, 0x01010101")
    a.vm("buffer_store_dwordx4 v[24:27], v8, s[%d:%d], s%d offen sc1" % (SWS, SWS + 3, sT0), "rc")
    a("s_cmp_lt_u32 s%d, 2" % sWV); a("s_cselect_b32 exec_lo, 1, 0"); a("s_mov_b32 exec_hi, 0")
    a("buffer_load_dwordx2 v[18:19], v30, s[%d:%d], 0 offen sc1" % (SDBG, SDBG + 3))
    a("s_mov_b64 exec, -1")
    sp_("stats")
    def xn_blk(i):
        for r in range(4):
            w = 32 + 4 * i + r; t = 20 + 2 * (r & 1)
            a("v_lshlrev_b32 v%d, 16, v%d" % (t, w)); a("v_and_b32 v%d, 0xffff0000, v%d" % (t + 1, w))
            a("v_pk_add_f32 %s, %s, v[16:17] op_sel_hi:[1,0]" % (vr(t, 2), vr(t, 2)))
            a("v_cvt_pk_bf16_f32 v%d, v%d, v%d" % (t, t, t + 1))
            a("v_and_b32 v%d, 0xffff0000, v%d" % (t + 1, t)); a("v_lshlrev_b32 v%d, 16, v%d" % (t, t))
            a("v_pk_mul_f32 %s, %s, v[14:15] op_sel_hi:[1,0]" % (vr(t, 2), vr(t, 2)))
            a("v_cvt_pk_bf16_f32 v%d, v%d, v%d" % (t, t, t + 1))
            a("v_and_b32 v%d, 0xffff0000, v%d" % (t + 1, t)); a("v_lshlrev_b32 v%d, 16, v%d" % (t, t))
            a("v_cvt_pk_f16_f32 v%d, v%d, v%d" % (w, t, t + 1))
        a("ds_write_b128 v7, %s offset:%d" % (vr(32 + 4 * i, 4), i * 128))
    NXA = ENV("NXA", 4)
    for i in range(NXA):
        xn_blk(i); ldw(ENV("PW1", 2))
    ldw(14)
    a("s_mov_b32 s%d, 0x3f80" % sOX); a("s_mov_b32 s%d, 0x3f800000" % sOW)
    for r in range(120, 128): a("v_mov_b32 v%d, 0" % r)
    for i in range(14):
        a.wait_vm("w%d" % i)
        for r in range(4):
            w = 64 + 4 * i + r
            a("v_dot2_f32_bf16 v%d, v%d, s%d, v%d" % (120 + 2 * r, w, sOX, 120 + 2 * r))
            a("v_dot2_f32_bf16 v%d, v%d, s%d, v%d" % (121 + 2 * r, w, sOW, 121 + 2 * r))
    for r in range(120, 128): a("v_add_f32_dpp v%d, v%d, v%d row_ror:8 row_mask:0xf bank_mask:0xf" % (r, r, r))
    for op in ("v_permlane16_swap_b32", "v_permlane32_swap_b32"):
        for r in range(8): a("v_mov_b32 v%d, v%d" % (128 + r, 120 + r))
        for r in range(8): a("%s v%d, v%d" % (op, 120 + r, 128 + r))
        for r in range(8): a("v_add_f32 v%d, v%d, v%d" % (120 + r, 120 + r, 128 + r))
    a("s_lshl_b32 s%d, s%d, 8" % (sT0, sWV))
    a("s_add_u32 s%d, s%d, %d" % (sT0, sT0, L_PC))
    a("v_lshl_add_u32 v9, v3, 5, s%d" % sT0)
    a("s_mov_b64 exec, 0xff")
    a("ds_write_b128 v9, v[120:123]"); a("ds_write_b128 v9, v[124:127] offset:16")
    a("s_mov_b64 exec, -1")
    lw = L("PA")
    a("s_cmp_gt_u32 s%d, 1" % sWV)
    a("s_cbranch_scc1 %s" % lw)
    a.begin_opt()
    get_nonce(a, L, 30, 18, pre=True)
    a("v_mov_b32 v10, s%d" % sNON)
    a.end_opt()
    a.label(lw)
    a("s_waitcnt vmcnt(0) lgkmcnt(0)"); a.vmq = []
    sp_("sum")
    a("s_barrier")
    sp_("pbar0")
    PFP = ENV("PFP", 0)
    def pf_all():
        srd(a, SWD, 8, 1792 * 896)
        a("s_lshr_b32 s%d, s2, 3" % sT0); a("s_lshl_b32 s%d, s%d, 3" % (sT0, sT0)); a("s_add_u32 s%d, s%d, s%d" % (sT0, sT0, sWV))
        a("s_mul_i32 s%d, s%d, %d" % (sT0, sT0, 392 * 128))
        a("v_lshlrev_b32 v141, 7, v1")
        for i in range(7):
            a("buffer_load_dword v%d, v141, s[%d:%d], s%d offen" % (142 + i, SWD, SWD + 3, sT0))
            if i < 6: a("s_add_u32 s%d, s%d, %d" % (sT0, sT0, 8192 if i < 5 else 1024))
    def pf_mid():
        srd(a, SWD, 8, 1792 * 896)
        lp_ = L("PF")
        a("s_cmp_gt_u32 s%d, 5" % sWV)
        a("s_cbranch_scc1 %s" % lp_)
        a.begin_opt()
        a("s_lshr_b32 s%d, s2, 3" % sT0); a("s_mul_i32 s%d, s%d, %d" % (sT0, sT0, 448 * 896))
        a("s_lshr_b32 s%d, s%d, 1" % (sT2, sWV)); a("s_lshl_b32 s%d, s%d, 2" % (sT2, sT2)); a("s_lshr_b32 s%d, 0x31c, s%d" % (sT2, sT2)); a("s_and_b32 s%d, s%d, 15" % (sT2, sT2))
        a("s_lshl_b32 s%d, s%d, 1" % (sT2, sT2)); a("s_and_b32 s%d, s%d, 1" % (sT3, sWV)); a("s_add_u32 s%d, s%d, s%d" % (sT2, sT2, sT3))
        a("s_mul_i32 s%d, s%d, %d" % (sT2, sT2, 16 * 896)); a("s_add_u32 s%d, s%d, s%d" % (sT0, sT0, sT2))
        a("s_add_u32 s%d, s%d, %d" % (sT2, sT0, 48 * 128))
        a("v_lshlrev_b32 v141, 7, v1")
        a("buffer_load_dword v142, v141, s[%d:%d], s%d offen" % (SWD, SWD + 3, sT0))
        a("buffer_load_dword v143, v141, s[%d:%d], s%d offen" % (SWD, SWD + 3, sT2))
        a.end_opt()
        a.label(lp_)
    if PFP == 2:
        lp_ = L("PF")
        a("s_cmp_lt_u32 s%d, 2" % sWV)
        a("s_cbranch_scc1 %s" % lp_)
        a.begin_opt()
        pf_all()
        a.end_opt()
        a.label(lp_)
    la = L("PA")
    a("s_cmp_lg_u32 s%d, 1" % sWV)
    a("s_cbranch_scc1 %s" % la)
    a.begin_opt()
    a("v_lshlrev_b32 v9, 2, v1")
    a("v_add_u32 v20, %d, v9" % L_PC)
    for i in range(8): a("ds_read_b32 v%d, v20 offset:%d" % (120 + i, i * 256))
    a("s_lshl_b32 s%d, s%d, 9" % (sT2, sF)); a("s_add_u32 s%d, s%d, %d" % (sT0, sT2, WS_CS)); a("s_add_u32 s%d, s%d, %d" % (sT2, sT0, CSM))
    a("v_lshlrev_b32 v9, 3, v1")
    a("s_waitcnt lgkmcnt(0)")
    for m in range(2):
        c = 120 + m; o = 128 + 2 * m
        a("v_add_f32 v%d, v%d, v%d" % (c, c, c + 2)); a("v_add_f32 v%d, v%d, v%d" % (c + 4, c + 4, c + 6))
        a("v_add_f32 v%d, v%d, v%d" % (c, c, c + 4))
        a("v_cvt_pk_bf16_f32 v%d, v%d, v%d" % (c + 2, c, c)); a("v_lshlrev_b32 v%d, 16, v%d" % (c + 2, c + 2))
        a("v_sub_f32 v%d, v%d, v%d" % (c + 2, c, c + 2))
        a("v_cvt_pk_bf16_f32 v%d, v%d, v%d" % (o, c, c + 2)); a("v_and_b32 v%d, 0xffff0000, v%d" % (c + 4, o))
        a("v_sub_f32 v%d, v%d, v%d" % (c + 2, c + 2, c + 4))
        a("v_cvt_pk_bf16_f32 v%d, v%d, 0" % (o + 1, c + 2))
        a("buffer_store_dwordx2 v[%d:%d], v9, s[%d:%d], s%d offen sc1" % (o, o + 1, SWS, SWS + 3, (sT0, sT2)[m]))
    a.end_opt()
    a.label(la)
    for i in range(NXA, 7):
        xn_blk(i)
        if i == min(6, NXA + ENV("NXF", 2)):
            lb = L("PA")
            a("s_cmp_gt_u32 s%d, 1" % sWV)
            a("s_cbranch_scc1 %s" % lb)
            a.begin_opt()
            a("s_waitcnt vmcnt(0)")
            a("s_mov_b64 exec, 1")
            a("buffer_store_dword v10, v29, s[%d:%d], 0 offen sc1" % (SWS, SWS + 3))
            a("s_mov_b64 exec, -1")
            if PFP == 2: pf_all()
            a.end_opt()
            a.label(lb)
            sp_("flagC")
    a("v_lshrrev_b32 v4, 4, v1"); a("v_and_b32 v5, 15, v1")
    a("v_lshrrev_b32 v6, 2, v5"); a("v_lshl_add_u32 v6, v4, 3, v6")
    a("v_bfe_u32 v7, v5, 1, 1"); a("v_lshl_add_u32 v6, v7, 5, v6")
    a("v_mul_u32_u24 v6, %d, v6" % XT_S)
    a("v_and_b32 v7, 1, v5"); a("v_lshl_add_u32 v6, v7, 3, v6")
    a("s_lshl_b32 s%d, s%d, 4" % (sOX, sWV))
    a("v_add_u32 v6, s%d, v6" % sOX)
    a("s_mul_i32 s%d, s%d, %d" % (sOX, sWV, 7 * 1152)); a("s_add_u32 s%d, s%d, %d" % (sOX, sOX, L_PC + 2048))
    a("v_and_b32 v31, 7, v5"); a("v_mul_u32_u24 v31, 144, v31"); a("v_lshl_add_u32 v31, v4, 4, v31")
    a("v_lshrrev_b32 v5, 3, v5"); a("v_lshl_add_u32 v31, v5, 6, v31"); a("v_add_u32 v31, s%d, v31" % sOX)
    a("v_mul_u32_u24 v8, 144, v2"); a("v_lshl_add_u32 v8, v3, 4, v8"); a("v_add_u32 v8, s%d, v8" % sOX)
    a("v_mul_u32_u24 v7, %d, v2" % XST); a("v_lshl_add_u32 v7, v3, 4, v7")
    a("s_lshl_b32 s%d, s%d, 7" % (sT2, sR)); a("s_add_u32 s%d, s%d, %d" % (sT2, sT2, WS_XNT))
    a("s_mul_i32 s%d, s%d, %d" % (sT1, sWV, 8 * XST)); a("s_add_u32 s%d, s%d, s%d" % (sT1, sT1, sT2))
    if YP == 2:
        a("s_mov_b32 s%d, s%d" % (sT3, sT1)); poison(); a("s_mov_b32 s%d, s%d" % (sT1, sT3))
    a("s_waitcnt lgkmcnt(0)")
    a("s_barrier")
    sp_("pbar")
    for i in range(7):
        a("ds_read_b64_tr_b16 %s, v6 offset:%d" % (vr(32 + 4 * i, 2), i * 128))
        a("ds_read_b64_tr_b16 %s, v6 offset:%d" % (vr(34 + 4 * i, 2), i * 128 + 4 * XT_S))
    for i in range(7):
        a("s_waitcnt lgkmcnt(%d)" % 12)
        a("ds_write_b128 v31, %s offset:%d" % (vr(32 + 4 * i, 4), i * 1152))
        a("ds_read_b128 %s, v8 offset:%d" % (vr(64 + 4 * i, 4), i * 1152))
    for i in range(7):
        a("s_waitcnt lgkmcnt(%d)" % (12 - 2 * i))
        a.vm("buffer_store_dwordx4 %s, v7, s[%d:%d], s%d offen sc1" % (vr(64 + 4 * i, 4), SWS, SWS + 3, sT1), "xst")
        if i < 6: a("s_add_u32 s%d, s%d, %d" % (sT1, sT1, 64 * XST))
    sp_("st")
    a("s_waitcnt vmcnt(0)")
    a("s_barrier")
    if YP == 3:
        a("s_cmp_eq_u32 s%d, 1" % sWV); a("s_cselect_b32 exec_lo, 0xff, 0"); a("s_mov_b32 exec_hi, 0")
        a("buffer_store_dword v10, v28, s[%d:%d], 0 offen sc1" % (SWS, SWS + 3))
        a("s_mov_b64 exec, -1")
        sp_("flagB")
        if PFP == 1: pf_mid()
        if PFP == 3: pf_all()
        poison()
        a("s_waitcnt vmcnt(0)")
        a("s_barrier")
    a("s_cmp_lg_u32 s%d, 1" % sWV)
    a("s_cbranch_scc1 K_END")
    a("s_mov_b64 exec, 0xff")
    a("buffer_store_dword v10, v28, s[%d:%d], 0 offen offset:%d sc1" % (SWS, SWS + 3, 128 if YP == 3 else 0))
    a("s_mov_b64 exec, -1")
    sp_("flagB" if YP != 3 else "flagP")
    sp_.store(100)
```

```python
import math, os, sys, struct
from asmlib import Asm
def fbits(x): return "0x%08x" % struct.unpack("<I", struct.pack("<f", x))[0]
LOG2E = math.log2(math.e)
def vr(b, n=1): return "v%d" % b if n == 1 else "v[%d:%d]" % (b, b + n - 1)
EXP = os.environ.get('EXP', '')
STAMP = int(os.environ.get("STAMP", "0"))
RT = os.environ.get("RT", "")
MAPB = int(os.environ.get("MAPB", "0"))
WS_H = 0; WS_XNT = 8 << 20; WS_KREV = 12 << 20; WS_KSC = 16 << 20
WS_HF = 17 << 20
WS_CF = (17 << 20) + (1 << 19)
WS_PF = 18 << 20
WS_FR = WS_PF + 131072
WS_FC = WS_FR + 8192
WS_RC = 19 << 20; WS_CS = (19 << 20) + 65536
WS_YAT = 20 << 20; WS_DBG = 24 << 20; WS_SIZE = 32 << 20
KSTRIDE = 4160
SPIN = 0x8000

def srd(a, d, p, nbytes):
    a("s_mov_b32 s%d, s%d" % (d, p))
    a("s_and_b32 s%d, s%d, 0xffff" % (d + 1, p + 1))
    a("s_mov_b32 s%d, 0x%x" % (d + 2, nbytes))
    a("s_mov_b32 s%d, 0x00020000" % (d + 3))

SX, SWG, SWU, SWS, SWD, SOUT, SDBG = 40, 44, 48, 52, 56, 60, 64
sWV, sR, sF, sWR, sWC, sRT2, sCT = 68, 69, 70, 71, 72, 73, 74
sLD = 75
sT0, sT1, sT2, sT3 = 76, 77, 78, 79
sOX, sOW, sWB, sCNT = 80, 81, 82, 83
sNON = 84
sPM = 86
sCH, sHF, sKW, sSC, sINV = 3, 4, 5, 6, 7
sONES, sCVB, sSTG = 38, 39, 36
STB = 88

class Stamps:
    def __init__(self, a, base=None):
        self.a = a; self.n = base.n if base else 0; self.names = list(base.names) if base else []; self.ffn = False
    def __call__(self, name):
        if os.environ.get("MEAS") == name and self.ffn:
            self.a("s_memrealtime s[100:101]"); self.a("s_waitcnt lgkmcnt(0)"); self.a("s_mov_b32 s99, s100")
        if not STAMP: return
        if RT == "1" and name not in ("start", "end"): return
        if "su" in EXP and self.n >= 11 and name != "end": return
        if "f2a" in EXP and not (name in ("start", "flag1", "hpoll") or (name[:2] == "s_" and int(name[2:]) < 9)) and self.ffn: return
        if "f2b" in EXP and not (name in ("start", "f2end", "end") or (name[:2] == "s_" and int(name[2:]) >= 5)) and self.ffn: return
        if name[:2] == "s_" and "f2" not in EXP: return
        if name[:2] == "l_" and "lp" not in EXP: return
        if "lp" in EXP and self.ffn and not (name[:2] == "l_" or name in ("start", "st0", "loopend", "gelu")): return
        assert self.n < 12, name
        self.a("%s s[100:101]" % ("s_memrealtime" if RT else "s_memtime"))
        self.a("s_waitcnt lgkmcnt(0)")
        self.a("s_mov_b32 s%d, s100" % (STB + self.n))
        self.n += 1; self.names.append(name)
    def store(self, vt):
        if not STAMP: return
        a = self.a
        a("s_lshl_b32 s100, s2, 4"); a("s_add_u32 s100, s100, s%d" % sWV); a("s_lshl_b32 s100, s100, 6")
        a("s_add_u32 s100, s100, %d" % WS_DBG)
        a("s_mov_b64 exec, 1")
        a("v_mov_b32 v%d, s100" % vt)
        for i in range(self.n):
            a("v_mov_b32 v%d, s%d" % (vt + 1, STB + i))
            a("buffer_store_dword v%d, v%d, s[%d:%d], 0 offen offset:%d" % (vt + 1, vt, SWS, SWS + 3, 4 * i))
            a("s_waitcnt vmcnt(0)")
        a("s_mov_b64 exec, -1")

ENV = lambda k, d: int(os.environ.get(k, str(d)))
L_W = 0
L_X = [65536, 98304 + 17408, 81920]
RING = 98304
STG_W = 4352; L_STG = RING
L_CV = RING + 4 * STG_W
CPS = 4160; O_U = 4 * CPS; CV_CH = O_U + 4608
L_SYNC = L_CV + 2 * CV_CH
L_FL = L_SYNC + 512
FLS = 320
LDS = L_FL + 4 * FLS
assert L_X[1] == L_CV and LDS <= 163840
Y_CNT = 0; Y_RDA = 8; Y_RDB = 9; Y_NON = 16; Y_KX = 24; Y_C0 = 28; Y_BL = 32; Y_CX = 36; Y_XR = 40; Y_YA = 44; Y_KEXP = 48; Y_RD = 64; Y_TR = 68; Y_WS = 72; Y_U = 76
NSTA = ENV('NSTA', 5)
WDS = [32768, 49152, 81920, 0, 16384, 65536]
CSM = 1792 * 8
sFW = 36; sHD = 37
FSH = ENV('FSH', 8)

def gen():
    a = Asm()
    lab = [0]
    def L(p): lab[0] += 1; return "%s_%d" % (p, lab[0])
    st_ = Stamps(a)
    def spin_lds(addr, tmp, need, width="u8", slp=1, off=0):
        l1, l2 = L("SP"), L("SD")
        a("s_mov_b32 s%d, %d" % (sCNT, SPIN))
        a.label(l1)
        a("ds_read_%s v%d, v%d offset:%d" % (width, tmp, addr, off))
        a("s_waitcnt lgkmcnt(0)")
        a("v_cmp_gt_u32 vcc, %d, v%d" % (need, tmp))
        a("s_cbranch_vccz %s" % l2)
        if slp: a("s_sleep %d" % slp)
        a("s_sub_u32 s%d, s%d, 1" % (sCNT, sCNT))
        a("s_cmp_lg_u32 s%d, 0" % sCNT)
        a("s_cbranch_scc1 %s" % l1)
        a.label(l2)

    a("s_cmp_ge_u32 s2, 256")
    a("s_cbranch_scc1 K_END")
    st_("start")
    a("s_load_dwordx16 s[16:31], s[0:1], 0")
    a("s_load_dwordx4 s[32:35], s[0:1], 80")
    a("s_load_dwordx8 s[8:15], s[0:1], 96")
    a("v_lshrrev_b32 v1, 6, v0")
    a("v_readfirstlane_b32 s%d, v1" % sWV)
    a("v_and_b32 v1, 63, v0")
    CPF = ENV("CPF", 8)
    if CPF:
        a("s_cmp_ge_u32 s2, %d" % CPF)
        a("s_cbranch_scc1 K_NPF")
        a.begin_opt()
        a("s_getpc_b64 s[4:5]")
        a.label("K_PFB")
        a("v_lshlrev_b32 v2, 7, v0")
        a("v_min_u32 v2, K_END-K_PFB, v2")
        a("global_load_dword v255, v2, s[4:5]")
        a.end_opt()
        a.label("K_NPF")
    a("s_cmp_lt_u32 s2, 32")
    a("s_cbranch_scc1 K_PROD")
    a("s_and_b32 s%d, s2, 7" % sT0)
    a("s_lshr_b32 s%d, s2, 3" % sT1)
    a("s_sub_u32 s%d, s%d, 4" % (sT1, sT1))
    a("s_lshr_b32 s%d, s%d, 1" % (sT2, sT0)); a("s_lshl_b32 s%d, s%d, 2" % (sT2, sT2))
    a("s_and_b32 s%d, s%d, 3" % (sT3, sT1)); a("s_add_u32 s%d, s%d, s%d" % (sR, sT2, sT3))
    a("s_and_b32 s%d, s%d, 1" % (sT2, sT0)); a("s_mul_i32 s%d, s%d, 7" % (sT2, sT2))
    a("s_lshr_b32 s%d, s%d, 2" % (sCT, sT1)); a("s_add_u32 s%d, s%d, s%d" % (sF, sT2, sCT))
    a("s_lshl_b32 s%d, s%d, 2" % (sRT2, sT0)); a("s_add_u32 s%d, s%d, s%d" % (sRT2, sRT2, sT3))
    a("s_cmp_ge_u32 s%d, 4" % sWV)
    a("s_cbranch_scc1 K_HELP")
    sf_ = Stamps(a, st_); sf_.ffn = True; sh_ = Stamps(a, st_); sp_ = Stamps(a, st_)
    NST = 14
    a("s_setprio %d" % ENV("FPRIO", 2))
    a("s_and_b32 s%d, s%d, 1" % (sWR, sWV))
    a("s_lshr_b32 s%d, s%d, 1" % (sWC, sWV))
    a("s_lshl_b32 s%d, s%d, 11" % (sWB, sWV))
    a("s_lshl_b32 s%d, s%d, 12" % (sOX, sWV))
    a("v_lshrrev_b32 v2, 3, v1")
    a("s_lshl_b32 s%d, s%d, 7" % (sT0, sR))
    a("s_lshl_b32 s%d, s%d, 5" % (sT1, sWV))
    a("s_add_u32 s%d, s%d, s%d" % (sT0, sT0, sT1))
    a("v_add_u32 v2, s%d, v2" % sT0)
    a("v_mul_u32_u24 v2, 896, v2")
    a("v_lshrrev_b32 v5, 4, v1")
    a("v_xor_b32 v6, v1, v5")
    a("v_and_b32 v6, 7, v6")
    a("v_xor_b32 v7, 4, v6")
    a("v_lshl_add_u32 v3, v7, 4, v2")
    a("v_add_u32 v3, %d, v3" % (8 * 896 - 1024))
    a("v_lshl_add_u32 v2, v6, 4, v2")
    a("v_add_u32 v56, %d, v2" % (16 * 896 - 2048)); a("v_add_u32 v57, %d, v3" % (16 * 896 - 2048))
    a("v_mul_u32_u24 v4, 3584, v5")
    a("v_lshlrev_b32 v6, 2, v5")
    a("v_xor_b32 v6, v1, v6")
    a("v_and_b32 v6, 15, v6")
    a("v_lshl_add_u32 v4, v6, 4, v4")
    a("s_lshl_b32 s%d, s%d, 8" % (sT0, sF))
    a("s_mul_i32 s%d, s%d, %d" % (sT1, sWV, 8 * 3584)); a("s_add_u32 s%d, s%d, s%d" % (sT0, sT0, sT1))
    a("v_add_u32 v4, s%d, v4" % sT0)
    a("v_add_u32 v58, %d, v4" % (4 * 3584 - 2048))
    a("s_mul_i32 s%d, s%d, %d" % (sFW, sWV, FLS)); a("s_add_u32 s%d, s%d, %d" % (sFW, sFW, L_FL))
    ROT = ENV("ROT", 0); ROT1 = ENV("ROT1", 0); ROT2 = ENV("ROT2", 0)
    RJ = [3, 4, 5, 6, 7, 38, 39]
    a("s_lshl_b32 s%d, s%d, 1" % (sT0, sT3)); a("s_add_u32 s%d, s%d, s%d" % (sT0, sT0, sCT)); a("s_lshl_b32 s%d, s%d, 7" % (sT0, sT0))
    for i in range(7 if ROT or ROT1 else 1 if ROT2 else 0):
        a("s_sub_u32 s%d, s%d, 896" % (sT1, sT0)); a("s_cmp_ge_u32 s%d, 896" % sT0); a("s_cselect_b32 s%d, s%d, s%d" % (RJ[i], sT1, sT0))
        if i < 6: a("s_add_u32 s%d, s%d, 128" % (sT0, RJ[i]))
    a("s_waitcnt lgkmcnt(0)")
    VFL, VFA = 50, 51
    cur = {}
    def setr(r, txt):
        def f():
            if cur.get(r) != txt: cur[r] = txt; a0(txt)
        return f
    a0 = a
    sOW2, sOWX = 5, 6
    def dma_x(b):
        return [[setr("m0", "s_add_u32 m0, s%d, %d" % (sOX, L_X[b % 3])), setr("ox", "s_movk_i32 s%d, %d" % (sOWX, b * 128)),
                 ("buffer_load_dwordx4 v%d, s[%d:%d], s%d offen offset:%d lds" % ((2, 3, 56, 57)[i], SX, SX + 3, sOWX, i * 1024), ("x", b))] for i in range(4)]
    def dma_w(st):
        out = []
        for i in range(2):
            for mat in range(2):
                S = (SWG, SWU)[mat]
                if st == 0 and mat:
                    out.append([setr("m0", "s_add_u32 m0, s%d, %d" % (sOX, L_W + 1024)),
                                ("buffer_load_dwordx4 v%d, s[%d:%d], 0 offen offset:%d lds" % ((4, 58)[i], S, S + 3, i * 2048), ("w", st))])
                    continue
                so = (sOW, sOW2)[mat]
                out.append([setr("m0", "s_add_u32 m0, s%d, %d" % (sOX, L_W + (st % 4) * 16384)), setr(so, "s_mov_b32 s%d, %d" % (so, st * 32 * 3584 - mat * 1024)),
                            ("buffer_load_dwordx4 v%d, s[%d:%d], s%d offen offset:%d lds" % ((4, 58)[i], S, S + 3, so, i * 2048 + mat * 1024), ("w", st))])
        if st == 0: out = [out[0], out[2], out[1], out[3]]
        return out
    def dflag(idx):
        return [setr("m0", "s_mov_b32 m0, s%d" % sFW), ("global_load_lds_dword v%d, s[30:31] offset:%d" % (VFL, 4 * idx), "fl")]
    def emit(g, a=a):
        for x in g:
            if callable(x): x()
            elif isinstance(x, tuple) and x[0].startswith("ds_"): a.ds(x[0], x[1])
            elif isinstance(x, tuple): a.vm(x[0], x[1])
            else: a(x)
    srd(a, SX, 16, 2048 * 896)
    for g in dma_x(0): emit(g)
    srd(a, SWG, 32, 448 * 3584)
    srd(a, SWU, 34, 448 * 3584)
    for g in dma_w(0): emit(g)
    a("v_mov_b32 v%d, 0" % VFL)
    a("s_getpc_b64 s[30:31]")
    a.label("K_TB")
    a("s_add_u32 s30, s30, K_TAB-K_TB"); a("s_addc_u32 s31, s31, 0")
    a("s_barrier")
    emit(dflag(0))
    Q = []
    for k in range(1, 14):
        if k % 2 == 0: Q += [(max(0, k - 4), g) for g in dma_x(k // 2)]
        w_ = dma_w(k); w_[-1] = w_[-1] + dflag(k)
        Q += [(max(0, k - 3), g) for g in w_]
    NPRE = ENV("NPRE", 12)
    pend = [g for _, g in Q[:NPRE]]; Q = Q[NPRE:]
    a_real = a
    ILN = ENV("ILN", 4)
    class IL:
        def __init__(s_): s_.n = 0
        def __call__(s_, t):
            a_real(t); s_.n += 1
            if s_.n % ILN == 0 and pend: emit(pend.pop(0))
    a = IL()
    a("v_lshlrev_b32 v15, 2, v1")
    a("v_and_b32 v11, 3, v1"); a("v_mul_u32_u24 v%d, %d, v11" % (VFA, FLS)); a("v_add_u32 v11, %d, v11" % (L_SYNC + Y_CNT))
    a("v_add_u32 v%d, %d, v%d" % (VFA, L_FL + 64, VFA))
    a("s_add_u32 s%d, s%d, %d" % (sT0, sWV, L_SYNC + Y_CNT)); a("v_mov_b32 v12, s%d" % sT0)
    a("v_add_u32 v13, %d, v15" % (L_SYNC + 128)); a("v_cmp_eq_u32 vcc, 0, v1"); a("v_cndmask_b32 v12, v13, v12, vcc")
    a("v_mov_b32 v10, %d" % (L_SYNC + Y_RDA))
    a("v_and_b32 v16, 31, v1")
    a("s_lshl_b32 s%d, s%d, 6" % (sT0, sWR))
    a("v_add_u32 v22, s%d, v16" % sT0)
    a("v_lshrrev_b32 v17, 5, v1")
    a("v_bfe_u32 v18, v1, 1, 3")
    a("v_xor_b32 v18, v17, v18")
    a("v_lshlrev_b32 v5, 7, v22")
    a("v_lshl_add_u32 v5, v18, 4, v5")
    a("v_add_u32 v5, 65536, v5")
    a("v_xor_b32 v6, 32, v5"); a("v_xor_b32 v7, 64, v5"); a("v_xor_b32 v8, 96, v5")
    a("v_bfe_u32 v19, v1, 2, 2")
    a("v_lshl_add_u32 v20, v17, 4, v19")
    a("v_lshlrev_b32 v9, 8, v20")
    a("v_bfe_u32 v20, v1, 4, 1"); a("v_lshlrev_b32 v20, 1, v20")
    a("v_bfe_u32 v21, v1, 1, 1"); a("v_add_u32 v20, v20, v21")
    a("s_lshl_b32 s%d, s%d, 3" % (sT0, sWC))
    a("v_add_u32 v20, s%d, v20" % sT0)
    a("v_lshlrev_b32 v21, 2, v19")
    a("v_xor_b32 v20, v20, v21")
    a("v_lshl_add_u32 v9, v20, 4, v9")
    a("v_and_b32 v21, 1, v1")
    a("v_lshl_add_u32 v9, v21, 3, v9")
    a("v_xor_b32 v0, 64, v9")
    srd(a, SWS, 14, WS_SIZE)
    srd(a, SWD, 8, 1792 * 896)
    srd(a, SOUT, 10, 2048 * 896)
    a("s_lshl_b32 s%d, s%d, 11" % (sT0, sR)); a("s_add_u32 s%d, s%d, %d" % (sT0, sT0, WS_RC))
    a("v_lshl_add_u32 v18, v22, 4, s%d" % sT0)
    a("s_lshl_b32 s%d, s%d, 10" % (sT0, sF)); a("s_lshl_b32 s%d, s%d, 9" % (sT1, sWC)); a("s_add_u32 s%d, s%d, s%d" % (sT0, sT0, sT1))
    a("s_add_u32 s%d, s%d, %d" % (sT0, sT0, WS_CS))
    a("v_lshl_add_u32 v19, v16, 3, s%d" % sT0)
    a("v_lshl_add_u32 v19, v17, 2, v19")
    a("s_lshl_b32 s%d, s%d, 1" % (sT0, sR))
    a("s_add_u32 s%d, s%d, s%d" % (sT0, sT0, sWR))
    a("s_lshl_b32 s%d, s%d, 1" % (sT1, sF))
    a("s_add_u32 s%d, s%d, s%d" % (sT1, sT1, sWC))
    a("s_lshl_b32 s%d, s%d, 8" % (sT2, sT0)); a("s_add_u32 s%d, s%d, %d" % (sT2, sT2, WS_FR)); a("v_mov_b32 v15, s%d" % sT2)
    a("s_lshl_b32 s%d, s%d, 8" % (sT2, sT1)); a("s_add_u32 s%d, s%d, %d" % (sT2, sT2, WS_FC)); a("v_writelane_b32 v15, s%d, 1" % sT2)
    a("s_mul_i32 s%d, s%d, 37" % (sT3, sT1)); a("s_lshr_b32 s%d, s%d, 8" % (sT3, sT3)); a("s_add_u32 s%d, s%d, s%d" % (sT3, sT3, sT1))
    a("s_lshl_b32 s%d, s%d, 1" % (sT1, sT1))
    a("s_lshl_b32 s%d, s%d, 5" % (sT2, sT0)); a("s_add_u32 s%d, s%d, s%d" % (sT2, sT2, sT3)); a("s_lshl_b32 s%d, s%d, %d" % (sT2, sT2, FSH))
    a("s_add_u32 s%d, s%d, %d" % (sT2, sT2, WS_HF))
    a("v_mov_b32 v21, s%d" % sT2)
    a("s_mul_i32 s%d, s%d, 56" % (sT0, sT0))
    a("s_add_u32 s%d, s%d, s%d" % (sT0, sT0, sT1))
    a("s_lshl_b32 s%d, s%d, 12" % (sT0, sT0))
    a("v_and_b32 v20, 15, v1")
    a("v_lshlrev_b32 v20, 4, v20")
    a("v_bfe_u32 v22, v1, 4, 1")
    a("v_lshl_add_u32 v20, v22, 10, v20")
    a("v_lshl_add_u32 v20, v17, 8, v20")
    a("v_add_u32 v20, s%d, v20" % sT0)
    a("s_mov_b32 s%d, 0" % sLD)
    CA_, CB_ = 32, 42
    for r in range(33, 50):
        if r not in (34, 36, 38, 42, 46): a("v_mov_b32 v%d, 0" % r)
    a("v_lshrrev_b32 v16, 3, v1")
    a("s_mul_i32 s%d, s%d, %d" % (sT0, sWV, 448 * 896))
    a("v_mul_u32_u24 v16, 896, v16")
    a("s_lshl_b32 s%d, s%d, 7" % (sT1, sCT)); a("s_add_u32 s%d, s%d, s%d" % (sT0, sT0, sT1))
    a("v_add_u32 v16, s%d, v16" % sT0)
    a("v_xor_b32 v17, v1, v22"); a("v_and_b32 v17, 7, v17")
    a("v_lshl_add_u32 v52, v17, 4, v16")
    for q in range(1, 4): a("v_add_u32 v%d, %d, v52" % (52 + q, q * (8 * 896 - 1024)))
    a = a_real
    while pend: emit(pend.pop(0))
    ACC = lambda ff, mat, tt: 128 + 64 * ff + 32 * mat + 16 * tt
    FR = [80, 104]
    RC = [24, 28]
    NW = 6
    J = lambda s: 2 * (s % 7) + s // 7
    WDV = [52, 52]
    def dma_wd(s):
        if "now" in EXP and s >= 6: return []
        if s < 6:
            return [[setr("m0", "s_add_u32 m0, s%d, %d" % (sOX, WDS[s % NW])), setr(sOW, "s_mov_b32 s%d, %d" % (sOW, J(s) * 32 * 896)),
                     ("buffer_load_dwordx4 v%d, s[%d:%d], s%d offen offset:%d lds" % (52 + q, SWD, SWD + 3, sOW, q * 1024), ("wd", s))] for q in range(4)]
        return [["s_add_u32 m0, s%d, %d" % (sOX, WDS[s % NW] + q * 1024), "s_mov_b32 s%d, %d" % (sOW, (J(s) * 32 + 8 * q) * 896),
                 ("buffer_load_dwordx4 v2, s[%d:%d], s%d offen lds" % (SWD, SWD + 3, sOW), ("wd", s))] for q in range(4)]
    def rd_frags(st, kk):
        fb = FR[kk]
        slot = st % 4
        xo = L_X[(st >> 1) % 3] - 65536
        xa = 5 + 2 * (st & 1) + kk
        def wr(ff, mat):
            return [("ds_read_b64_tr_b16 %s, v%d offset:%d" % (vr(fb + 8 + 8 * ff + 4 * mat + 2 * half, 2), (9, 0)[ff], L_W + slot * 16384 + mat * 1024 + kk * 8192 + half * 2048), ("fr", st, kk, ff, mat)) for half in range(2)]
        xr = lambda tt: [("ds_read_b128 %s, v%d offset:%d" % (vr(fb + 4 * tt, 4), xa, xo + tt * 4096), ("fx", st, kk, tt))]
        return [xr(0) + wr(0, 0), xr(1), wr(0, 1), wr(1, 0), wr(1, 1)]
    def mfmas(kk, first=False):
        fb = FR[kk]
        return ["v_mfma_f32_32x32x16_bf16 %s, %s, %s, %s" % (vr(ACC(ff, mat, tt), 16), vr(fb + 8 + 8 * ff + 4 * mat, 4), vr(fb + 4 * tt, 4), "0" if first else vr(ACC(ff, mat, tt), 16))
                for ff in range(2) for mat in range(2) for tt in range(2)]
    def inter(st, kk, groups):
        for i, m in enumerate(mfmas(kk, st == 0 and kk == 0)):
            ff, mat, tt = i >> 2, (i >> 1) & 1, i & 1
            if i == 1: a.wait_ds(("fx", st, kk, 1))
            a.wait_ds(("fr", st, kk, ff, mat))
            a(m)
            for sl, g in groups:
                if sl == i: emit(g)
    def arrive(v, off=0):
        a("v_mov_b32 v13, %d" % v)
        a.ds("ds_write_b8 v12, v13 offset:%d" % off, "sig")
    deferred = []
    chk0 = [0]
    def check(v, kind):
        if "nochk" in EXP and 1 < len(a.vmq) and v < 14 and chk0[0]: return
        chk0[0] = 1
        a("s_getpc_b64 s[20:21]")
        a("v_cmp_gt_u32 vcc, %d, v%d" % (v, 14 if kind == "F" else 16))
        a("s_cbranch_vccnz K_RT_%s" % kind)
    def retries():
        a("s_mov_b32 s18, %d" % (SPIN * 4))
        a("s_branch K_RTE")
        for kind in ("R", "F"):
            r = 14 if kind == "F" else 16
            a.label("K_RT_%s" % kind)
            a("ds_read_b32 v14, v%d" % VFA if kind == "F" else "ds_read_u8 v16, v11 offset:%d" % Y_RD)
            a("s_sub_i32 s18, s18, 1"); a("s_max_i32 s18, s18, 0")
            a("s_cmp_eq_u32 s18, 0"); a("s_cselect_b32 s19, 255, 0")
            a("s_waitcnt lgkmcnt(0)")
            a("v_or_b32 v%d, s19, v%d" % (r, r))
            a("s_setpc_b64 s[20:21]")
        a.label("K_RTE")
    def const_loads():
        for tt in range(2):
            a("buffer_load_dwordx4 %s, v18, s[%d:%d], 0 offen offset:%d" % (vr(RC[tt], 4), SWS, SWS + 3, tt * 512))
        a("s_movk_i32 s%d, %d" % (sT0, CSM))
        for ff in range(2):
            a("buffer_load_dword v%d, v19, s[%d:%d], 0 offen offset:%d" % (CA_ + 4 * ff, SWS, SWS + 3, ff * 256))
            a("buffer_load_dword v%d, v19, s[%d:%d], s%d offen offset:%d" % (CA_ + 4 * ff + 2, SWS, SWS + 3, sT0, ff * 256))
        a("s_mov_b32 s%d, 1" % sLD)
    def get_non():
        a.wait_ds("non")
        a("v_readfirstlane_b32 s%d, v22" % sNON); a("v_readfirstlane_b32 s%d, v23" % (sNON + 1))
    def pollA():
        a.vm("buffer_load_dword v17, v15, s[%d:%d], 0 offen sc1" % (SWS, SWS + 3), "pf")
    def try_const():
        l = L("CL"); lo = L("CLO")
        a.wait_vm("pf")
        a("v_cmp_ne_u32 vcc, s%d, v17" % sNON)
        a("s_cbranch_vccz %s" % lo)
        a.label(l)
        a.mark("cst")
        def slow():
            a.label(lo)
            a("s_cmp_eq_u32 s%d, 0" % (sNON + 1))
            a("s_cbranch_scc1 %s" % l)
            a("s_cmp_lg_u32 s%d, 0" % sLD)
            a("s_cbranch_scc1 %s" % l)
            const_loads()
            a("s_branch %s" % l)
        deferred.append(slow)
    PA = ENV("PA", 3)
    RS = [int(c) for c in os.environ.get("RS", "01245")]
    TP = [int(c) for c in os.environ.get("TP", "9,11").split(",")]
    EARLY = ENV("EARLY", 1)
    retries()
    a("v_mov_b32 v14, 0")
    check(1, "F")
    a.dsq = []
    sf_("st0")
    a("s_setprio %d" % ENV("LPRIO", 3))
    poll = [("ds_read_b32 v14, v%d" % VFA, "pA")]
    for g in rd_frags(0, 0): emit(g)
    DMX = ENV("DMX", 6)
    if EARLY: Q += [(11, g) for g in dma_wd(0)] + [(12, g) for g in dma_wd(1) + dma_wd(2)] + [(13, g) for g in dma_wd(3)]
    SD = []
    for st in range(NST):
        D = []
        while Q and Q[0][0] <= st and len(D) < (DMX if st else 8): D.append(Q.pop(0)[1])
        SD.append(D)
    assert not Q
    if ENV("VERB", 0): print("DMA per stage", [len(d) for d in SD])
    stageD = lambda st: SD[st]
    for st in range(NST):
        if st in (7,) and not NSTA: sf_("st%d" % st)
        if st in (1, 2, 3, 4, 6, 8, 10, 12): sf_("l_%d" % st)
        D = stageD(st)
        DS = [(int(x) // 8, int(x) % 8) for x in os.environ.get("DS", "4,6,9,11,13,15").split(",")] if len(D) <= 6 else [(0, 3), (0, 5), (0, 7), (1, 1), (1, 2), (1, 4), (1, 5), (1, 7)]
        if st == 0: DS = [(0, 0), (0, 2), (0, 4), (0, 6), (1, 1), (1, 3), (1, 5), (1, 7)]
        G = []
        G += [(RS[i], g) for i, g in enumerate(rd_frags(st, 1))]
        if st + 1 in TP: G.append((5, [("ds_read_b64 v[22:23], v10 offset:%d" % (Y_NON - Y_RDA), "non")]))
        if st - 2 in TP: G.append((0, [try_const]))
        if st in TP: G.append((1, [get_non, pollA]))
        if D and st: G.append((ENV("RCK", 3), [lambda: a.wait_ds("pR"), lambda st=st: check(st, "R")]))
        G += [(DS[i][1], g) for i, g in enumerate(D) if DS[i][0] == 0]
        if st + 1 < NST: G.append((PA, poll))
        if ENV("ARS", 5) < 8: G.append((ENV("ARS", 5), [lambda st=st: arrive(st + 1, Y_RD)]))
        inter(st, 0, G)
        G = []
        if st + 1 < NST:
            G.append((0, [lambda: a.wait_ds("pA"), lambda st=st: check(st + 2, "F")]))
            G += [(RS[i], g) for i, g in enumerate(rd_frags(st + 1, 0))]
        if ENV("ARS", 5) >= 8: G.append((ENV("ARS", 5) - 8, [lambda st=st: arrive(st + 1, Y_RD)]))
        G += [(DS[i][1], g) for i, g in enumerate(D) if DS[i][0] == 1]
        if st + 1 == NST or stageD(st + 1): G.append((ENV("PRS", 7), [("ds_read_u8 v16, v11 offset:%d" % Y_RD, "pR")]))
        inter(st, 1, G)
    sf_("loopend")
    a("s_setprio %d" % ENV("GPRIO", 1))
    l = L("CL"); lo = L("CLO"); l1 = L("CLP"); l2 = L("CLP")
    a("s_cmp_eq_u32 s%d, 0" % sLD)
    a("s_cbranch_scc1 %s" % lo)
    a.wait_vm("cst")
    a.label(l)
    def slow(l=l, lo=lo):
        a.label(lo)
        a("s_mov_b32 s%d, %d" % (sCNT, SPIN))
        a.label(l1)
        a("ds_read_b64 v[22:23], v10 offset:%d" % (Y_NON - Y_RDA))
        a("buffer_load_dword v17, v15, s[%d:%d], 0 offen sc1" % (SWS, SWS + 3))
        a("s_waitcnt vmcnt(0) lgkmcnt(0)")
        a("v_readfirstlane_b32 s%d, v22" % sNON); a("v_readfirstlane_b32 s%d, v23" % (sNON + 1))
        a("v_cmp_ne_u32 vcc, s%d, v17" % sNON)
        a("s_cmp_eq_u32 s%d, 0" % (sNON + 1))
        a("s_cselect_b64 s[%d:%d], -1, vcc" % (sT0, sT0 + 1))
        a("s_cmp_eq_u64 s[%d:%d], 0" % (sT0, sT0 + 1))
        a("s_cbranch_scc1 %s" % l2)
        a("s_sleep 2")
        a("s_sub_u32 s%d, s%d, 1" % (sCNT, sCNT)); a("s_cmp_lg_u32 s%d, 0" % sCNT)
        a("s_cbranch_scc1 %s" % l1)
        a.label(l2)
        const_loads()
        a("s_waitcnt vmcnt(0)")
        a("s_branch %s" % l)
    deferred.append(slow)
    for tt in range(2): a("v_mov_b32 v%d, v%d" % (CB_ + 4 * tt, RC[tt]))
    corr = ["v_mfma_f32_32x32x16_bf16 %s, %s, %s, %s" % (vr(ACC(ff, mat, tt), 16), vr(CA_ + 4 * ff + 2 * mat, 4), vr(CB_ + 4 * tt, 4), vr(ACC(ff, mat, tt), 16))
            for ff in range(2) for tt in range(2) for mat in range(2)]
    a(corr[0]); a(corr[1])
    a("v_mov_b32 v2, v52"); WDV = [2, 2]
    a("s_lshl_b32 s%d, s%d, 2" % (sT0, sRT2)); a("s_add_u32 s%d, s%d, s%d" % (sT0, sT0, sWV)); a("s_lshl_b32 s%d, s%d, %d" % (sT0, sT0, FSH + 3))
    a("s_add_u32 s%d, s%d, %d" % (sT0, sT0, WS_HF))
    a("v_lshrrev_b32 v8, 1, v1"); a("v_lshlrev_b32 v8, %d, v8" % FSH); a("v_and_b32 v14, 1, v1"); a("v_lshl_add_u32 v8, v14, 2, v8")
    a("v_add_u32 v8, s%d, v8" % sT0)
    a(corr[2])
    TRB = [[4, 5], [6, 7]]
    a("v_bfe_u32 v13, v1, 2, 2"); a("v_lshrrev_b32 v14, 4, v1")
    a("v_lshl_add_u32 v13, v14, 3, v13")
    a("v_lshlrev_b32 v13, 7, v13")
    a("v_and_b32 v14, 3, v1")
    a("v_lshl_add_u32 v13, v14, 5, v13")
    a("v_bfe_u32 v14, v1, 3, 1")
    a("v_lshl_add_u32 v13, v14, 4, v13")
    a("v_add_u32 v4, s%d, v13" % sOX)
    a("v_xor_b32 v5, 16, v4")
    a("v_add_u32 v6, 65536, v4"); a("v_add_u32 v7, 65536, v5")
    a(corr[3])
    a("s_mov_b32 s%d, %d" % (sHD, 0x2aaa if "nogate" in EXP else 0))
    a.wait_ds("pR")
    check(14, "R")
    a.dsq = []
    sf_("stats")
    NV = ENV("NV", 6); NG = ENV("NG", 0)
    GST = ENV('GST', 0)
    WBK = [160, 128, 176, 144, 64, 112] if GST else [80, 96, 32, 48, 160, 128, 176, 144]
    OB = [80, 96, 32]
    WB = {s: WBK[s] for s in range(NV)}
    def trw(s):
        a.wait_vm(("wd", s))
        hi = WDS[s % NW] >= 65536; of = WDS[s % NW] - 65536 * hi
        for ct in range(4):
            for hf in range(2):
                a.ds("ds_read_b64_tr_b16 %s, v%d offset:%d" % (vr(WB[s] + 4 * ct + 2 * hf, 2), TRB[hi][ct >> 1], of + hf * 512 + 8 * (ct & 1)), ("tw", s))
    HA = [9, 3, 0, 10]
    def hpoll(r=14, tag="hp"):
        a("s_mov_b64 exec, 0x3fff")
        a.vm("buffer_load_dword v%d, v8, s[%d:%d], 0 offen sc1" % (r, SWS, SWS + 3), tag)
        a("s_mov_b64 exec, -1")
    def flag(ff, trk=True):
        if "noflag1" in EXP and ff == 1:
            a.wait_vm(("hst", ff)); return
        if trk: a.wait_vm(("hst", ff))
        a("s_mov_b64 exec, 1")
        t = "buffer_store_dword v22, v21, s[%d:%d], 0 offen offset:%d sc1" % (SWS, SWS + 3, ff * 4)
        if trk: a.vm(t, "hfl")
        else: a(t)
        a("s_mov_b64 exec, -1")
    GD = ENV("GD", 11); GP = 9; PKG = ENV("PKG", 0)
    ev = []
    def at(t, item): ev.append((t, len(ev), item))
    BT = 8 * GP
    for i in range(4, 8): at((i - 4) * 6 + 2, corr[i])
    def sched_dma(t, s, dt=5):
        for q, g in enumerate(dma_wd(s)): at(t + q * dt, lambda g=g: emit(g))
    if EARLY:
        sched_dma(0.1, 4); sched_dma(24.1, 5)
        TW = [float(x) for x in os.environ.get("TW", "0.7,1.4,2.1,2.8,3.5,4.2,5.0,5.7").split(",")]
    else:
        for s in range(6): sched_dma(s * BT + 0.1, s)
        TW = [float(x) for x in os.environ.get("TW", "3,4,5,6,7,8").split(",")]
    if GST:
        for n in range(12):
            def ld_own(n=n):
                emit([setr(sOW, "s_mov_b32 s%d, %d" % (sOW, J(6 + n // 4) * 32 * 896)),
                      ("buffer_load_dwordx4 %s, v%d, s[%d:%d], s%d offen offset:%d" % (vr(OB[n // 4] + 4 * (n % 4), 4), 52 + n % 4, SWD, SWD + 3, sOW, (n % 4) * 1024), "own")])
            at(ENV("GT0", 60) + ENV("GTD", 10) * n + 0.2, ld_own)
    NGT = ENV("NGT", 0)
    for s in range(max(NG, NGT)):
        assert TW[s] * BT > [0, 0, 30, 30, 15 * GP + 4 * GD, 15 * GP + 8 * GD, 31 * GP + 4 * GD, 31 * GP + 8 * GD][s]
        at(TW[s] * BT, lambda s=s: trw(s))
        if s < NG:
            at(TW[s] * BT + 20, lambda s=s: a.wait_ds(("tw", s)))
            sched_dma(TW[s] * BT + 20.1, s + NW)
    at(float(os.environ.get("TF0", "7")) * BT - 0.5, lambda: flag(0))
    n = 0
    for ff in range(2):
        for tt in range(2):
            r0 = RC[tt]
            for qp in range(2):
                blk = n // 8
                HP = 112 + 4 * (blk & 3)
                for q2 in range(2):
                    q = 2 * qp + q2
                    for e in range(4):
                        g = ACC(ff, 0, tt) + 4 * q + e; u = ACC(ff, 1, tt) + 4 * q + e; T = 64 + (n & 15)
                        if PKG:
                            P2 = lambda r: vr(r, 2)
                            ops = [(3, "v_exp_f32 v%d, v%d" % (T, T)), (6, "v_rcp_f32 v%d, v%d" % (T, T))]
                            if e & 1 == 0:
                                ops += [(0, "v_pk_mul_f32 %s, %s, %s" % (P2(T), P2(g), P2(g))),
                                        (1, "v_pk_fma_f32 %s, %s, %s, %s op_sel:[0,0,1] op_sel_hi:[1,0,1]" % (P2(T), P2(T), P2(r0 + 2), P2(r0))),
                                        (2, "v_pk_mul_f32 %s, %s, %s" % (P2(T), P2(T), P2(g))),
                                        (4, "v_pk_mul_f32 %s, %s, %s" % (P2(g), P2(g), P2(u)))]
                            else:
                                ops += [(4.5 - GP / GD, "v_pk_fma_f32 %s, %s, %s, %s op_sel:[0,1,1] op_sel_hi:[1,1,1]" % (P2(T - 1), P2(T - 1), P2(r0 + 2), P2(r0 + 2))),
                                        (7, "v_pk_mul_f32 %s, %s, %s" % (P2(g - 1), P2(g - 1), P2(T - 1))),
                                        (8, "v_cvt_pk_bf16_f32 v%d, v%d, v%d" % (HP + 2 * q2 + e // 2, g - 1, g))]
                                ops[2] = (4, ops[2][1])
                        else:
                            ops = [(0, "v_mul_f32 v%d, v%d, v%d" % (T, g, g)),
                            (1, "v_fma_f32 v%d, v%d, v%d, v%d" % (T, T, r0 + 2, r0 + 1)),
                            (2, "v_mul_f32 v%d, v%d, v%d" % (T, T, g)),
                            (3, "v_exp_f32 v%d, v%d" % (T, T)),
                            (4, "v_mul_f32 v%d, v%d, v%d" % (g, g, u)),
                            (5, "v_fma_f32 v%d, v%d, v%d, v%d" % (T, T, r0 + 3, r0 + 3)),
                            (6, "v_rcp_f32 v%d, v%d" % (T, T)),
                            (7, "v_mul_f32 v%d, v%d, v%d" % (g, g, T))]
                            if e & 1: ops.append((8, "v_cvt_pk_bf16_f32 v%d, v%d, v%d" % (HP + 2 * q2 + e // 2, g - 1, g)))
                        for k, o in ops: at(n * GP + k * GD, o)
                        n += 1
                t = (n - 1) * GP + 8 * GD
                at(t + 4, "v_permlane32_swap_b32 v%d, v%d" % (HP, HP + 2))
                at(t + 5, "v_permlane32_swap_b32 v%d, v%d" % (HP + 1, HP + 3))
                def st_h(HP=HP, ff=ff, tt=tt, qp=qp):
                    a("s_movk_i32 s%d, %d" % (sT0, ff * 4096))
                    a.vm("buffer_store_dwordx4 %s, v20, s[%d:%d], s%d offen offset:%d sc1" % (vr(HP, 4), SWS, SWS + 3, sT0, tt * 2048 + qp * 512), ("hst", ff))
                at(t + 8, st_h)
    for t, _, it in sorted(ev, key=lambda x: (x[0], x[1])):
        if callable(it): it()
        else: a(it)
    sf_("gelu")
    A2 = lambda ct, tt: 192 + 16 * ct + 4 * tt
    free = [48] + OB if GST else [64, 112] + WBK[NV:]
    HB = {}
    def ld_h(s, trk=True):
        if ENV("VERB", 0): print("ld_h", s, free)
        if s not in HB: HB[s] = free.pop(0)
        if ROT: a("s_lshl_b32 s%d, s%d, 6" % (sOW, RJ[s % 7])); a("s_add_u32 s%d, s%d, %d" % (sOW, sOW, WS_H + (s // 7) * 4096))
        else: a("s_mov_b32 s%d, %d" % (sOW, WS_H + J(s) * 4096))
        if "hsame" in EXP: a("s_mov_b32 s%d, 0" % sOW)
        for tt in range(4):
            t = "buffer_load_dwordx4 %s, v%d, s[%d:%d], s%d offen" % (vr(HB[s] + 4 * tt, 4), HA[tt], SWS, SWS + 3, sOW)
            if trk: a.vm(t, ("h", s, tt))
            else: a(t)
    def spin_h(mask, lj, r=14, p1=None):
        lo = L("HS"); l1 = L("HS")
        def slow():
            a.label(lo)
            a("s_mov_b32 s%d, %d" % (sT3, SPIN))
            a.label(l1)
            a("s_mov_b64 exec, 0x3fff")
            a("buffer_load_dword v%d, v8, s[%d:%d], 0 offen sc1" % (r, SWS, SWS + 3))
            a("s_mov_b64 exec, -1")
            if p1 is not None:
                a("s_waitcnt vmcnt(%d)" % p1)
                a("v_cmp_ne_u32 vcc, s%d, v23" % sNON)
                a("s_and_b32 s%d, vcc_lo, 0x%x" % (sT0, mask))
                a("s_cbranch_scc0 %s" % lj)
            a("s_waitcnt vmcnt(0)")
            a("v_cmp_ne_u32 vcc, s%d, v%d" % (sNON, r))
            a("s_and_b32 s%d, vcc_lo, 0x%x" % (sT0, mask))
            a("s_cbranch_scc0 %s" % lj)
            a("s_sleep %d" % ENV("HSL", 3))
            a("s_sub_u32 s%d, s%d, 1" % (sT3, sT3)); a("s_cmp_lg_u32 s%d, 0" % sT3)
            a("s_cbranch_scc1 %s" % l1)
            a("s_branch %s" % lj)
        deferred.append(slow)
        return lo
    P0 = ENV("P0", 5)
    if P0 == 0: hpoll()
    for s in range(max(NG, NGT), NV): trw(s)
    a("s_mul_i32 s%d, s%d, 14" % (sT1, sWV))
    a("s_mul_i32 s%d, s%d, 56" % (sT0, sRT2))
    a("s_add_u32 s%d, s%d, s%d" % (sT0, sT0, sT1))
    a("s_lshl_b32 s%d, s%d, 12" % (sT0, sT0))
    for r in range(4):
        a("s_add_u32 s%d, s%d, %d" % (sT1, sWV, r)); a("s_and_b32 s%d, s%d, 3" % (sT1, sT1)); a("s_lshl_b32 s%d, s%d, 10" % (sT1, sT1))
        a("s_add_u32 s%d, s%d, s%d" % (sT1, sT1, sT0))
        a("v_lshl_add_u32 v%d, v1, 4, s%d" % (HA[r], sT1))
    a("v_and_b32 v17, 15, v1"); a("v_lshrrev_b32 v13, 4, v1")
    a("s_lshl_b32 s%d, s%d, 6" % (sT0, sRT2)); a("s_lshl_b32 s%d, s%d, 4" % (sT1, sWV)); a("s_add_u32 s%d, s%d, s%d" % (sT0, sT0, sT1))
    a("v_add_u32 v18, s%d, v17" % sT0)
    a("v_mul_u32_u24 v18, 896, v18")
    a("v_lshl_add_u32 v18, v13, 5, v18")
    a("s_lshl_b32 s%d, s%d, 7" % (sT0, sCT))
    a("v_add_u32 v18, s%d, v18" % sT0)
    a.vm("buffer_load_dwordx4 v[24:27], v18, s[%d:%d], 0 offen" % (SX, SX + 3), "x")
    a.vm("buffer_load_dwordx4 v[28:31], v18, s[%d:%d], 0 offen offset:16" % (SX, SX + 3), "x")
    a("v_mul_u32_u24 v16, %d, v13" % STG_W)
    a("v_lshrrev_b32 v13, 2, v17"); a("v_lshl_add_u32 v16, v13, 7, v16")
    a("v_and_b32 v13, 1, v17"); a("v_lshl_add_u32 v16, v13, 3, v16")
    a("v_bfe_u32 v13, v17, 1, 1"); a("v_lshl_add_u32 v16, v13, 6, v16")
    a("s_add_u32 s%d, s%d, %d" % (sT1, sT1, L_STG))
    a("v_add_u32 v16, s%d, v16" % sT1)
    a("v_lshl_add_u32 v19, v1, 4, s%d" % sOX)
    arrive(1, Y_TR)
    if GST:
        a.wait_vm("own")
        for n in range(12):
            hi = WDS[n // 4] >= 65536
            if n == 8: a("v_add_u32 v13, 65536, v19")
            a.ds("ds_write_b128 v%d, %s offset:%d" % ((19, 13)[hi], vr(OB[n // 4] + 4 * (n % 4), 4), WDS[n // 4] - 65536 * hi + (n % 4) * 1024), "ow")
    if P0 == 1: hpoll()
    flag(1)
    sf_("flag1")
    if P0 == 2: hpoll()
    a("s_setprio %d" % ENV("F2PRIO", 0))
    if not GST:
        a("s_waitcnt lgkmcnt(0)"); a.dsq = []
        P1 = ENV("P1", 0)
        if P1 == 1: hpoll(23, "hp1")
        WO = [int(x) for x in os.environ.get("WO", "-2,-2,-2").split(",")]
        for s in range(6 + NG, 9):
            if WO[s - 6] == -2:
                for g in dma_wd(s): emit(g)
            if P1 == s - 4: hpoll(23, "hp1")
            if P0 == s - 3:
                if ENV("PDL", 4): a("s_sleep %d" % ENV("PDL", 4))
                hpoll()
    wdq = []
    lj = L("HJ")
    a.wait_vm("hp")
    a("v_cmp_ne_u32 vcc, s%d, v14" % sNON)
    a("s_and_b32 s%d, vcc_lo, 0x1555" % sT0)
    lo = spin_h(0x1555, lj, p1=(len(a.vmq) - [t for t in range(len(a.vmq)) if a.vmq[t] == "hp1"][0]) if P1 else None)
    a("s_cbranch_scc1 %s" % lo)
    a.label(lj)
    if ENV("DLY", 0): a("s_sleep %d" % ENV("DLY", 0))
    sf_("hpoll")
    NHM = ENV("NHM", 4)
    assert NSTA == 5 and NV == 6 and not wdq
    sRDY, sISS = sHD, sLD
    WTAB = 22; WOF = list(range(8, 15)); sHM = 16
    PR = [23, 17, 2]
    def dpoll(n):
        l = L("DP")
        a("s_cmp_eq_u32 s%d, 0x2aaa" % sRDY)
        a("s_cbranch_scc1 %s" % l)
        a("s_mov_b64 exec, 0x3fff")
        a("buffer_load_dword v%d, v8, s[%d:%d], 0 offen sc1" % (PR[n % 3], SWS, SWS + 3))
        a("s_mov_b64 exec, -1")
        a.label(l)
        a.mark(("hq", n))
    def deval(n):
        a.wait_vm(("hq", n))
        a("v_cmp_eq_u32 vcc, s%d, v%d" % (sNON, PR[n % 3]))
        a("s_and_b32 s%d, vcc_lo, 0x2aaa" % sT0)
        a("s_or_b32 s%d, s%d, s%d" % (sRDY, sRDY, sT0))
    def dslow():
        a.label("K_DS")
        a("s_mov_b64 exec, 0x3fff")
        a("buffer_load_dword v14, v8, s[%d:%d], 0 offen sc1" % (SWS, SWS + 3))
        a("s_mov_b64 exec, -1")
        a("s_sub_i32 s18, s18, 1"); a("s_max_i32 s18, s18, 0")
        a("s_cmp_eq_u32 s18, 0"); a("s_cselect_b32 s19, -1, 0")
        a("s_waitcnt vmcnt(0)")
        a("v_cmp_eq_u32 vcc, s%d, v14" % sNON)
        a("s_or_b32 s19, s19, vcc_lo")
        a("s_and_b32 s19, s19, 0x2aaa")
        a("s_or_b32 s%d, s%d, s19" % (sRDY, sRDY))
        a("s_setpc_b64 s[20:21]")
    deferred.append(dslow)
    sWL = 17
    def wslow():
        a.label("K_WS")
        a("ds_read_u8 v14, v15 offset:%d" % Y_WS)
        a("s_sub_i32 s18, s18, 1"); a("s_max_i32 s18, s18, 0")
        a("s_cmp_eq_u32 s18, 0"); a("s_cselect_b32 s19, 3, 0")
        a("s_waitcnt lgkmcnt(0)")
        a("v_readfirstlane_b32 s%d, v14" % sWL)
        a("s_sleep 1")
        a("s_or_b32 s%d, s%d, s19" % (sWL, sWL))
        a("s_setpc_b64 s[20:21]")
    deferred.append(wslow)
    def c_issue(s):
        HB[s] = free.pop(0)
        if s < 7 or "stat" in EXP: C = [["s_mov_b32 s%d, %d" % (sOW, WS_H + J(s) * 4096)]]
        else:
            C = [["s_getpc_b64 s[20:21]", "s_andn2_b32 s%d, s%d, s%d" % (sT0, sRDY, sISS), "s_cbranch_scc0 K_DS", "s_ff1_i32_b32 s%d, s%d" % (sT1, sT0)],
                 ["s_lshr_b32 m0, s%d, 1" % sT1, "s_lshl_b32 s%d, s%d, 12" % (sOW, sT1), "s_bitset1_b32 s%d, s%d" % (sISS, sT1), "s_movrels_b32 s%d, s%d" % (WOF[s - 7], WTAB)], []]
        for i, tt in enumerate((1, 2, 3, 0) if s == 13 else range(4)):
            ld = ("buffer_load_dwordx4 %s, v%d, s[%d:%d], s%d offen" % (vr(HB[s] + 4 * tt, 4), HA[tt], SWS, SWS + 3, sOW), ("h", s, tt))
            if "hsame" in EXP: C.append(["s_mov_b32 s%d, 0" % sOW, ld])
            elif "nold" in EXP and s >= 4: pass
            elif i == 0 or i % ENV("LB", 2): C[-1].append(ld)
            else: C.append([ld])
        return C
    def c_trw(s):
        WB[s] = free.pop(0)
        if s < 7 or "stat" in EXP:
            hi = WDS[s % NW] >= 65536; of = WDS[s % NW] - 65536 * hi
            C = [[lambda: a.wait_vm(("wd", min(s, 8)))]]
        else:
            hi = 1; of = 0
            C = [([lambda: a.wait_vm(("wd", 8))] if s == 7 else []) +
                 ["s_and_b32 s%d, s%d, 3" % (sT2, WOF[s - 7]), "s_getpc_b64 s[20:21]", "s_cmp_gt_u32 s%d, s%d" % (sT2, sWL), "s_cbranch_scc1 K_WS"],
                 ["s_sub_u32 s%d, s%d, s%d" % (WOF[s - 7], WOF[s - 7], sT2)] + ["v_add_u32 v%d, s%d, v%d" % (TRB[1][c2], WOF[s - 7], TRB[0][c2]) for c2 in range(2)], []]
        for ct in range(4):
            rd = [("ds_read_b64_tr_b16 %s, v%d offset:%d" % (vr(WB[s] + 4 * ct + 2 * hf, 2), TRB[hi][ct >> 1], of + hf * 512 + 8 * (ct & 1)), ("tw", s)) for hf in range(2)]
            if "notr" in EXP: continue
            if ct == 0: C[-1] += rd
            else: C.append(rd)
        return C
    nh = 0
    DP0 = ENV("DP0", 2)
    PI = [int(x) for x in os.environ.get("PI", "1,5,9").split(",")]
    PE = [int(x) for x in os.environ.get("PE", "5,9,11").split(",")]
    if ENV("HR", 1): a("s_andn2_b32 s%d, 0x2aaa, vcc_lo" % sRDY)
    while free and nh < NHM:
        if nh == DP0 and PI[0] < 0: dpoll(0)
        for c in c_issue(nh): emit(c)
        nh += 1
    if DP0 >= NHM and PI[0] < 0: dpoll(0)
    for s in range(6 + NG, 9):
        if WO[s - 6] == -1:
            for g in dma_wd(s): emit(g)
    a("s_mov_b32 s%d, 0" % sISS)
    a("s_mov_b32 s18, %d" % (SPIN * 2)); a("s_mov_b32 s%d, %d" % (sWL, 3 if "nows" in EXP else 0))
    for k_ in range(5): a("s_mov_b32 s%d, %d" % (WTAB + k_, WDS[k_ + 1] + (k_ >= 2)))
    a("s_mul_i32 s%d, s%d, %d" % (sT0, sWC, CV_CH - 16384)); a("s_add_u32 s%d, s%d, s%d" % (sT0, sT0, sOX)); a("s_add_u32 s%d, s%d, %d" % (WTAB + 5, sT0, L_CV + 2))
    a("s_add_u32 s%d, s%d, 4096" % (WTAB + 6, WTAB + 5))
    a("s_add_u32 s%d, s%d, %d" % (sT0, sWV, L_SYNC)); a("v_mov_b32 v15, s%d" % sT0)
    nw = NV
    for r in range(1, 4):
        a("s_sub_u32 s%d, s%d, %d" % (sT1, sWV, r)); a("s_and_b32 s%d, s%d, 3" % (sT1, sT1)); a("s_lshl_b32 s%d, s%d, 12" % (sT1, sT1))
        a("v_lshl_add_u32 v%d, v1, 4, s%d" % (19 + r, sT1))
    Q2 = [[]] * ENV("PG", 0) + [[lambda: dpoll(PI.index(0))]] if 0 in PI else []
    HXS = [int(x) for x in os.environ.get("HXS", "99").split(",")]
    for s in range(6 + NG, 9):
        if WO[s - 6] == 0: Q2 += dma_wd(s)
    for s in range(14):
        a.wait_ds(("tw", s))
        gap = 0
        for tt in ((1, 2, 3, 0) if s == 13 else range(4)):
            a.wait_vm(("h", s, tt))
            for ct in range(4):
                a("v_mfma_f32_16x16x32_bf16 %s, %s, %s, %s" % (vr(A2(ct, tt), 4), vr(WB[s] + 4 * ct, 4), vr(HB[s] + 4 * tt, 4), "0" if s == 0 else vr(A2(ct, tt), 4)))
                gap += 1
                while Q2 and (len(Q2) > 16 - gap or gap == 16): emit(Q2.pop(0))
                if Q2: emit(Q2.pop(0))
                pr = {1: 0, 2: 1, 3: 2, 0: 3}[tt]
                if s == 13 and pr: a("ds_write_b128 v19, %s offset:%d" % (vr(A2(ct, pr), 4), (pr - 1) * 16384 + ct * 1024))
        sf_("s_%d" % s)
        if s == 5: sf_("s5")
        if s == 9: sf_("s9")
        free.append(HB[s]); free.append(WB[s])
        if s + 1 in PE: Q2.append([lambda n=PE.index(s + 1): deval(n)])
        if s + 1 in PI: Q2.append([lambda n=PI.index(s + 1): dpoll(n)])
        QO = ENV("QO", 0)
        qi = []; qt = []
        if nh < 14: qi += c_issue(nh); nh += 1
        if nh < 14 and s in HXS: qi += c_issue(nh); nh += 1
        if nw < 14 and nw <= s + ENV("TA", 2): qt += c_trw(nw); nw += 1
        for s_ in range(6 + NG, 9):
            if WO[s_ - 6] == s + 1: qi += dma_wd(s_)
        if QO == 0: Q2 += qi + qt
        elif QO == 1: Q2 += qt + qi
        elif QO == 2:
            while qi or qt: Q2.append((qi.pop(0) if qi else []) + (qt.pop(0) if qt else []))
        assert nw > s + 2 or nw == 14
        if s == 12: R1, R2, R3 = [free.pop(0) for _ in range(3)]
        if s == 10:
            XU, YR = [free.pop(0) for _ in range(2)]
            Q2.append([lambda: a.wait_vm("x")])
            for w in range(8):
                Q2.append(["v_lshlrev_b32 v%d, 16, v%d" % (XU + 2 * w, 24 + w), "v_and_b32 v%d, 0xffff0000, v%d" % (XU + 2 * w + 1, 24 + w)])
    arrive(17)
    a("ds_read_u8 v15, v11 offset:%d" % Y_YA)
    sf_("f2end")
    def ya_part(spin=True):
        if spin: spin_lds(11, 15, 1, slp=1, off=Y_YA)
        for q in range(4): a("ds_read_b64_tr_b16 %s, v16 offset:%d" % (vr(YR + 2 * q, 2), q * 512))
        for w in range(8):
            if w % 2 == 0: a("s_waitcnt lgkmcnt(%d)" % (3 - w // 2))
            yw = YR + w; o = XU + 2 * w; t = YR + 8 + 2 * (w & 1)
            a("v_lshlrev_b32 v%d, 16, v%d" % (t, yw)); a("v_and_b32 v%d, 0xffff0000, v%d" % (t + 1, yw))
            a("v_add_f32 v%d, v%d, v%d" % (o, o, t)); a("v_add_f32 v%d, v%d, v%d" % (o + 1, o + 1, t + 1))
            a("v_cvt_pk_bf16_f32 v%d, v%d, v%d" % (o, o, o + 1))
            a("v_and_b32 v%d, 0xffff0000, v%d" % (o + 1, o)); a("v_lshlrev_b32 v%d, 16, v%d" % (o, o))
    def red_part():
        spin_lds(11, 15, 17, slp=0)
        for ct in range(4):
            for r, R in enumerate((R1, R2, R3)):
                a("ds_read_b128 %s, v%d offset:%d" % (vr(R + 4 * ct, 4), 20 + r, r * 16384 + ct * 1024))
        for ct in range(4):
            a("s_waitcnt lgkmcnt(%d)" % (9 - 3 * ct))
            for e in range(4):
                c = 4 * ct + e
                a("v_add_f32 v%d, v%d, v%d" % (R1 + c, R1 + c, A2(ct, 0) + e)); a("v_add_f32 v%d, v%d, v%d" % (R2 + c, R2 + c, R3 + c))
            for e in range(4):
                c = 4 * ct + e
                a("v_add_f32 v%d, v%d, v%d" % (R1 + c, R1 + c, R2 + c))
            for w in range(2):
                b = R1 + 4 * ct + 2 * w
                a("v_cvt_pk_bf16_f32 v%d, v%d, v%d" % (b, b, b + 1))
                a("v_and_b32 v%d, 0xffff0000, v%d" % (b + 1, b)); a("v_lshlrev_b32 v%d, 16, v%d" % (b, b))
    e1, e2 = L("EP"), L("EP")
    a("s_waitcnt lgkmcnt(0)")
    a("v_cmp_gt_u32 vcc, 1, v15")
    a("s_cbranch_vccnz %s" % e1)
    a.begin_opt()
    ya_part(False); red_part()
    a("s_branch %s" % e2)
    a.end_opt()
    a.label(e1)
    a.begin_opt()
    red_part(); ya_part()
    a.end_opt()
    a.label(e2)
    sf_("ya")
    for hc in range(2):
        for w in range(4):
            b = R1 + 8 * hc + 2 * w; o = XU + 8 * hc + 2 * w
            a("v_add_f32 v%d, v%d, v%d" % (b, b, o)); a("v_add_f32 v%d, v%d, v%d" % (b + 1, b + 1, o + 1))
            a("v_cvt_pk_bf16_f32 v%d, v%d, v%d" % (R2 + 4 * hc + w, b, b + 1))
        a("buffer_store_dwordx4 %s, v18, s[%d:%d], 0 offen offset:%d" % (vr(R2 + 4 * hc, 4), SOUT, SOUT + 3, hc * 16) + " " + os.environ.get("OUTM", ""))
    sf_("end")
    sf_.store(24)
    if os.environ.get("MEAS"):
        a("s_sub_u32 s100, s99, s%d" % sNON)
        a("v_mov_b32 v24, s100")
        a("s_cmp_lg_u32 s%d, 0" % sWV); a("s_cbranch_scc1 K_END")
        a("s_mov_b64 exec, 1")
        a("s_lshl_b32 s100, s2, 2"); a("s_add_u32 s100, s100, %d" % WS_DBG); a("v_mov_b32 v25, s100")
        a("buffer_store_dword v24, v25, s[%d:%d], 0 offen sc1" % (SWS, SWS + 3))
    a("s_endpgm")
    for f in deferred: f()
    a.raw(".p2align 2"); a.label("K_TAB"); a.raw(".long " + ", ".join(str(i + 1) for i in range(16)))

    import gen8h
    gen8h.helper(a, sh_, L, spin_lds)
    gen8h.producer(a, sp_, L, spin_lds)
    a.label("K_END")
    a("s_endpgm")
    if STAMP: print("ffn", sf_.names, "\nhelp", sh_.names, "\nprod", sp_.names)
    return a.finalize()

def wrap(kernels):
    out = []
    for name, grid, block, lds, body, nv in kernels:
        if len(kernels) > 1: out.append("; @launch kernel=%s grid=(%d,1,1) block=(%d,1,1) lds=%d" % (name, grid, block, lds))
        else: out.append("; @launch grid=(%d,1,1) block=(%d,1,1) lds=%d" % (grid, block, lds))
    out.append('.amdgcn_target "amdgcn-amd-amdhsa--gfx950"')
    out.append(".text")
    for name, grid, block, lds, body, nv in kernels:
        out += [".globl %s" % name, ".p2align 8", ".type %s,@function" % name, "%s:" % name, body]
    out.append('.section .rodata,"a"')
    for name, grid, block, lds, body, nv in kernels:
        out += [".p2align 6", ".amdhsa_kernel %s" % name,
                "  .amdhsa_next_free_vgpr %d" % nv, "  .amdhsa_next_free_sgpr 102", "  .amdhsa_accum_offset %d" % ((nv + 3) // 4 * 4),
                "  .amdhsa_group_segment_fixed_size 0", "  .amdhsa_kernarg_size 128", "  .amdhsa_user_sgpr_count 2",
                "  .amdhsa_user_sgpr_kernarg_segment_ptr 1", "  .amdhsa_system_sgpr_workgroup_id_x 1", ".end_amdhsa_kernel"]
    return "\n".join(out) + "\n"

if __name__ == "__main__":
    sys.modules["gen8"] = sys.modules["__main__"]
    NAME = "parallel_sum__ssm_conv_s4__glu_gated_geglu__prompt_kernel"
    ks = [(NAME, 256, 512, LDS, gen(), 256)]
    if os.environ.get("MEAS"):
        b = Asm()
        b("s_cmp_ge_u32 s2, 1"); b("s_cbranch_scc1 K3_END")
        b("s_load_dwordx4 s[4:7], s[0:1], 112"); b("s_waitcnt lgkmcnt(0)")
        srd(b, 8, 6, WS_SIZE); srd(b, 12, 4, 256)
        b("v_lshlrev_b32 v1, 2, v0"); b("v_mov_b32 v10, 0")
        for i in range(4):
            b("s_mov_b32 s22, %d" % (WS_DBG + 128 + i * 256 - (32 if i == 3 else 0) * 4))
            b("buffer_load_dword v4, v1, s[8:11], s22 offen sc1"); b("s_waitcnt vmcnt(0)"); b("v_max_u32 v10, v10, v4")
        b("v_readlane_b32 s30, v10, 0")
        for l in range(1, 64):
            b("v_readlane_b32 s22, v10, %d" % l); b("s_max_u32 s30, s30, s22")
        b("s_mov_b64 exec, 1"); b("v_mov_b32 v1, 0"); b("v_mov_b32 v2, s30")
        b("buffer_store_dword v2, v1, s[12:15], 0 offen"); b("s_waitcnt vmcnt(0)")
        b("s_min_u32 s30, s30, 20000"); b("s_mul_i32 s30, s30, %d" % int(os.environ.get("DM", "4")))
        b("s_memrealtime s[24:25]"); b("s_waitcnt lgkmcnt(0)")
        b.label("K3_L")
        b("s_memrealtime s[26:27]"); b("s_waitcnt lgkmcnt(0)"); b("s_sub_u32 s28, s26, s24"); b("s_cmp_lt_u32 s28, s30"); b("s_cbranch_scc1 K3_L")
        b.label("K3_END"); b("s_endpgm")
        ks = [("k1_kernel",) + ks[0][1:], ("k3_kernel", 1, 64, 0, b.finalize(), 64)]
    open(sys.argv[1] if len(sys.argv) > 1 else "k.s", "w").write(wrap(ks))
```

```python
import math, os, sys, struct
from asmlib import Asm
def fbits(x): return "0x%08x" % struct.unpack("<I", struct.pack("<f", x))[0]
LOG2E = math.log2(math.e)
def vr(b, n=1): return "v%d" % b if n == 1 else "v[%d:%d]" % (b, b + n - 1)
EXP = os.environ.get('EXP', '')
STAMP = int(os.environ.get("STAMP", "0"))
RT = os.environ.get("RT", "")
MAPB = int(os.environ.get("MAPB", "0"))
WS_H = 0; WS_XNT = 8 << 20; WS_KREV = 12 << 20; WS_KSC = 16 << 20
WS_HF = 17 << 20
WS_CF = (17 << 20) + (1 << 19)
WS_PF = 18 << 20
WS_FR = WS_PF + 131072
WS_FC = WS_FR + 8192
WS_RC = 19 << 20; WS_CS = (19 << 20) + 65536
WS_YAT = 20 << 20; WS_DBG = 24 << 20; WS_SIZE = 32 << 20
KSTRIDE = 4160
SPIN = 0x8000

def srd(a, d, p, nbytes):
    a("s_mov_b32 s%d, s%d" % (d, p))
    a("s_and_b32 s%d, s%d, 0xffff" % (d + 1, p + 1))
    a("s_mov_b32 s%d, 0x%x" % (d + 2, nbytes))
    a("s_mov_b32 s%d, 0x00020000" % (d + 3))

SX, SWG, SWU, SWS, SWD, SOUT, SDBG = 40, 44, 48, 52, 56, 60, 64
sWV, sR, sF, sWR, sWC, sRT2, sCT = 68, 69, 70, 71, 72, 73, 74
sLD = 75
sT0, sT1, sT2, sT3 = 76, 77, 78, 79
sOX, sOW, sWB, sCNT = 80, 81, 82, 83
sNON = 84
sPM = 86
sCH, sHF, sKW, sSC, sINV = 3, 4, 5, 6, 7
sONES, sCVB, sSTG = 38, 39, 36
STB = 88

class Stamps:
    def __init__(self, a, base=None):
        self.a = a; self.n = base.n if base else 0; self.names = list(base.names) if base else []; self.ffn = False
    def __call__(self, name):
        if os.environ.get("MEAS") == name and self.ffn:
            self.a("s_memrealtime s[100:101]"); self.a("s_waitcnt lgkmcnt(0)"); self.a("s_mov_b32 s99, s100")
        if not STAMP: return
        if RT == "1" and name not in ("start", "end"): return
        if "su" in EXP and self.n >= 11 and name != "end": return
        if "f2a" in EXP and not (name in ("start", "flag1", "hpoll") or (name[:2] == "s_" and int(name[2:]) < 9)) and self.ffn: return
        if "f2b" in EXP and not (name in ("start", "f2end", "end") or (name[:2] == "s_" and int(name[2:]) >= 5)) and self.ffn: return
        if name[:2] == "s_" and "f2" not in EXP: return
        if name[:2] == "l_" and "lp" not in EXP: return
        if "lp" in EXP and self.ffn and not (name[:2] == "l_" or name in ("start", "st0", "loopend", "gelu")): return
        assert self.n < 12, name
        self.a("%s s[100:101]" % ("s_memrealtime" if RT else "s_memtime"))
        self.a("s_waitcnt lgkmcnt(0)")
        self.a("s_mov_b32 s%d, s100" % (STB + self.n))
        self.n += 1; self.names.append(name)
    def store(self, vt):
        if not STAMP: return
        a = self.a
        a("s_lshl_b32 s100, s2, 4"); a("s_add_u32 s100, s100, s%d" % sWV); a("s_lshl_b32 s100, s100, 6")
        a("s_add_u32 s100, s100, %d" % WS_DBG)
        a("s_mov_b64 exec, 1")
        a("v_mov_b32 v%d, s100" % vt)
        for i in range(self.n):
            a("v_mov_b32 v%d, s%d" % (vt + 1, STB + i))
            a("buffer_store_dword v%d, v%d, s[%d:%d], 0 offen offset:%d" % (vt + 1, vt, SWS, SWS + 3, 4 * i))
            a("s_waitcnt vmcnt(0)")
        a("s_mov_b64 exec, -1")

ENV = lambda k, d: int(os.environ.get(k, str(d)))
L_W = 0
L_X = [65536, 98304 + 17408, 81920]
RING = 98304
STG_W = 4352; L_STG = RING
L_CV = RING + 4 * STG_W
CPS = 4160; O_U = 4 * CPS; CV_CH = O_U + 4608
L_SYNC = L_CV + 2 * CV_CH
L_FL = L_SYNC + 512
FLS = 320
KT = ENV("KT", 0)
LDS = L_FL + (4 * FLS if KT else 256)
assert L_X[1] == L_CV and LDS <= 163840
Y_CNT = 0; Y_RDA = 8; Y_RDB = 9; Y_NON = 16; Y_KX = 24; Y_C0 = 28; Y_BL = 32; Y_CX = 36; Y_XR = 40; Y_YA = 44; Y_KEXP = 48; Y_RD = 64; Y_TR = 68; Y_WS = 72; Y_U = 76
NSTA = ENV('NSTA', 5)
WDS = [32768, 49152, 81920, 0, 16384, 65536]
CSM = 1792 * 8
sFW = 36; sHD = 37
FSH = ENV('FSH', 8)

def gen():
    a = Asm()
    lab = [0]
    def L(p): lab[0] += 1; return "%s_%d" % (p, lab[0])
    st_ = Stamps(a)
    def spin_lds(addr, tmp, need, width="u8", slp=1, off=0):
        l1, l2 = L("SP"), L("SD")
        a("s_mov_b32 s%d, %d" % (sCNT, SPIN))
        a.label(l1)
        a("ds_read_%s v%d, v%d offset:%d" % (width, tmp, addr, off))
        a("s_waitcnt lgkmcnt(0)")
        a("v_cmp_gt_u32 vcc, %d, v%d" % (need, tmp))
        a("s_cbranch_vccz %s" % l2)
        if slp: a("s_sleep %d" % slp)
        a("s_sub_u32 s%d, s%d, 1" % (sCNT, sCNT))
        a("s_cmp_lg_u32 s%d, 0" % sCNT)
        a("s_cbranch_scc1 %s" % l1)
        a.label(l2)

    a("s_cmp_ge_u32 s2, 256")
    a("s_cbranch_scc1 K_END")
    st_("start")
    a("s_load_dwordx16 s[16:31], s[0:1], 0")
    a("s_load_dwordx4 s[32:35], s[0:1], 80")
    a("s_load_dwordx8 s[8:15], s[0:1], 96")
    a("v_lshrrev_b32 v1, 6, v0")
    a("v_readfirstlane_b32 s%d, v1" % sWV)
    a("v_and_b32 v1, 63, v0")
    CPF = ENV("CPF", 8)
    if CPF:
        a("s_cmp_ge_u32 s2, %d" % CPF)
        a("s_cbranch_scc1 K_NPF")
        a.begin_opt()
        a("s_getpc_b64 s[4:5]")
        a.label("K_PFB")
        a("v_lshlrev_b32 v2, 7, v0")
        a("v_min_u32 v2, K_END-K_PFB, v2")
        a("global_load_dword v255, v2, s[4:5]")
        a.end_opt()
        a.label("K_NPF")
    a("s_cmp_lt_u32 s2, 32")
    a("s_cbranch_scc1 K_PROD")
    a("s_and_b32 s%d, s2, 7" % sT0)
    a("s_lshr_b32 s%d, s2, 3" % sT1)
    a("s_sub_u32 s%d, s%d, 4" % (sT1, sT1))
    a("s_lshr_b32 s%d, s%d, 1" % (sT2, sT0)); a("s_lshl_b32 s%d, s%d, 2" % (sT2, sT2))
    a("s_and_b32 s%d, s%d, 3" % (sT3, sT1)); a("s_add_u32 s%d, s%d, s%d" % (sR, sT2, sT3))
    a("s_and_b32 s%d, s%d, 1" % (sT2, sT0)); a("s_mul_i32 s%d, s%d, 7" % (sT2, sT2))
    a("s_lshr_b32 s%d, s%d, 2" % (sCT, sT1)); a("s_add_u32 s%d, s%d, s%d" % (sF, sT2, sCT))
    a("s_lshl_b32 s%d, s%d, 2" % (sRT2, sT0)); a("s_add_u32 s%d, s%d, s%d" % (sRT2, sRT2, sT3))
    a("s_cmp_ge_u32 s%d, 4" % sWV)
    a("s_cbranch_scc1 K_HELP")
    sf_ = Stamps(a, st_); sf_.ffn = True; sh_ = Stamps(a, st_); sp_ = Stamps(a, st_)
    NST = 14
    a("s_setprio %d" % ENV("FPRIO", 2))
    a("s_and_b32 s%d, s%d, 1" % (sWR, sWV))
    a("s_lshr_b32 s%d, s%d, 1" % (sWC, sWV))
    a("s_lshl_b32 s%d, s%d, 11" % (sWB, sWV))
    a("s_lshl_b32 s%d, s%d, 12" % (sOX, sWV))
    a("v_lshrrev_b32 v2, 3, v1")
    a("s_lshl_b32 s%d, s%d, 7" % (sT0, sR))
    a("s_lshl_b32 s%d, s%d, 5" % (sT1, sWV))
    a("s_add_u32 s%d, s%d, s%d" % (sT0, sT0, sT1))
    a("v_add_u32 v2, s%d, v2" % sT0)
    a("v_mul_u32_u24 v2, 896, v2")
    a("v_lshrrev_b32 v5, 4, v1")
    a("v_xor_b32 v6, v1, v5")
    a("v_and_b32 v6, 7, v6")
    a("v_xor_b32 v7, 4, v6")
    a("v_lshl_add_u32 v3, v7, 4, v2")
    a("v_add_u32 v3, %d, v3" % (8 * 896 - 1024))
    a("v_lshl_add_u32 v2, v6, 4, v2")
    a("v_add_u32 v56, %d, v2" % (16 * 896 - 2048)); a("v_add_u32 v57, %d, v3" % (16 * 896 - 2048))
    a("v_mul_u32_u24 v4, 3584, v5")
    a("v_lshlrev_b32 v6, 2, v5")
    a("v_xor_b32 v6, v1, v6")
    a("v_and_b32 v6, 15, v6")
    a("v_lshl_add_u32 v4, v6, 4, v4")
    a("s_lshl_b32 s%d, s%d, 8" % (sT0, sF))
    a("s_mul_i32 s%d, s%d, %d" % (sT1, sWV, 8 * 3584)); a("s_add_u32 s%d, s%d, s%d" % (sT0, sT0, sT1))
    a("v_add_u32 v4, s%d, v4" % sT0)
    a("v_add_u32 v58, %d, v4" % (4 * 3584 - 2048))
    a("s_mul_i32 s%d, s%d, %d" % (sFW, sWV, FLS if KT else 4)); a("s_add_u32 s%d, s%d, %d" % (sFW, sFW, L_FL))
    ROT = ENV("ROT", 0); ROT1 = ENV("ROT1", 0); ROT2 = ENV("ROT2", 0)
    RJ = [3, 4, 5, 6, 7, 38, 39]
    a("s_lshl_b32 s%d, s%d, 1" % (sT0, sT3)); a("s_add_u32 s%d, s%d, s%d" % (sT0, sT0, sCT)); a("s_lshl_b32 s%d, s%d, 7" % (sT0, sT0))
    for i in range(7 if ROT or ROT1 else 1 if ROT2 else 0):
        a("s_sub_u32 s%d, s%d, 896" % (sT1, sT0)); a("s_cmp_ge_u32 s%d, 896" % sT0); a("s_cselect_b32 s%d, s%d, s%d" % (RJ[i], sT1, sT0))
        if i < 6: a("s_add_u32 s%d, s%d, 128" % (sT0, RJ[i]))
    a("s_waitcnt lgkmcnt(0)")
    VFL, VFA = 50, 51
    cur = {}
    def setr(r, txt):
        def f():
            if cur.get(r) != txt: cur[r] = txt; a0(txt)
        return f
    a0 = a
    sOW2, sOWX = 5, 6
    def dma_x(b):
        return [[setr("m0", "s_add_u32 m0, s%d, %d" % (sOX, L_X[b % 3])), setr("ox", "s_movk_i32 s%d, %d" % (sOWX, b * 128)),
                 ("buffer_load_dwordx4 v%d, s[%d:%d], s%d offen offset:%d lds" % ((2, 3, 56, 57)[i], SX, SX + 3, sOWX, i * 1024), ("x", b))] for i in range(4)]
    def dma_w(st):
        out = []
        for i in range(2):
            for mat in range(2):
                S = (SWG, SWU)[mat]
                if st == 0 and mat:
                    out.append([setr("m0", "s_add_u32 m0, s%d, %d" % (sOX, L_W + 1024)),
                                ("buffer_load_dwordx4 v%d, s[%d:%d], 0 offen offset:%d lds" % ((4, 58)[i], S, S + 3, i * 2048), ("w", st))])
                    continue
                so = (sOW, sOW2)[mat]
                out.append([setr("m0", "s_add_u32 m0, s%d, %d" % (sOX, L_W + (st % 4) * 16384)), setr(so, "s_mov_b32 s%d, %d" % (so, st * 32 * 3584 - mat * 1024)),
                            ("buffer_load_dwordx4 v%d, s[%d:%d], s%d offen offset:%d lds" % ((4, 58)[i], S, S + 3, so, i * 2048 + mat * 1024), ("w", st))])
        if st == 0: out = [out[0], out[2], out[1], out[3]]
        return out
    def dflag(idx):
        if not KT: return [setr("m0", "s_add_u32 m0, s%d, %d" % (sFW, 16 * idx)), "s_mov_b64 exec, 1", ("global_load_lds_dword v%d, s[0:1]" % VFL, "fl"), "s_mov_b64 exec, -1"]
        return [setr("m0", "s_mov_b32 m0, s%d" % sFW), ("global_load_lds_dword v%d, s[30:31] offset:%d" % (VFL, 4 * idx), "fl")]
    def emit(g, a=a):
        for x in g:
            if callable(x): x()
            elif isinstance(x, tuple) and x[0].startswith("ds_"): a.ds(x[0], x[1])
            elif isinstance(x, tuple): a.vm(x[0], x[1])
            else: a(x)
    srd(a, SX, 16, 2048 * 896)
    for g in dma_x(0): emit(g)
    srd(a, SWG, 32, 448 * 3584)
    srd(a, SWU, 34, 448 * 3584)
    for g in dma_w(0): emit(g)
    if KT:
        a("v_mov_b32 v%d, 0" % VFL)
        a("s_getpc_b64 s[30:31]")
        a.label("K_TB")
        a("s_add_u32 s30, s30, K_TAB-K_TB"); a("s_addc_u32 s31, s31, 0")
    else: a("s_cmp_lg_u32 s15, 0"); a("s_cselect_b32 s%d, 31, 30" % sT0); a("s_lshl_b32 s%d, s%d, 2" % (sT0, sT0)); a("v_mov_b32 v%d, s%d" % (VFL, sT0))
    a("s_barrier")
    emit(dflag(0))
    Q = []
    for k in range(1, 14):
        if k % 2 == 0: Q += [(max(0, k - 4), g) for g in dma_x(k // 2)]
        w_ = dma_w(k); w_[-1] = w_[-1] + dflag(k)
        Q += [(max(0, k - 3), g) for g in w_]
    NPRE = ENV("NPRE", 12)
    pend = [g for _, g in Q[:NPRE]]; Q = Q[NPRE:]
    a_real = a
    ILN = ENV("ILN", 4)
    class IL:
        def __init__(s_): s_.n = 0
        def __call__(s_, t):
            a_real(t); s_.n += 1
            if s_.n % ILN == 0 and pend: emit(pend.pop(0))
    a = IL()
    a("v_lshlrev_b32 v15, 2, v1")
    a("v_and_b32 v11, 3, v1"); a("v_mul_u32_u24 v%d, %d, v11" % (VFA, FLS if KT else 4)); a("v_add_u32 v11, %d, v11" % (L_SYNC + Y_CNT))
    a("v_add_u32 v%d, %d, v%d" % (VFA, L_FL + (64 if KT else 0), VFA))
    a("s_add_u32 s%d, s%d, %d" % (sT0, sWV, L_SYNC + Y_CNT)); a("v_mov_b32 v12, s%d" % sT0)
    a("v_add_u32 v13, %d, v15" % (L_SYNC + 128)); a("v_cmp_eq_u32 vcc, 0, v1"); a("v_cndmask_b32 v12, v13, v12, vcc")
    a("v_mov_b32 v10, %d" % (L_SYNC + Y_RDA))
    a("v_and_b32 v16, 31, v1")
    a("s_lshl_b32 s%d, s%d, 6" % (sT0, sWR))
    a("v_add_u32 v22, s%d, v16" % sT0)
    a("v_lshrrev_b32 v17, 5, v1")
    a("v_bfe_u32 v18, v1, 1, 3")
    a("v_xor_b32 v18, v17, v18")
    a("v_lshlrev_b32 v5, 7, v22")
    a("v_lshl_add_u32 v5, v18, 4, v5")
    a("v_add_u32 v5, 65536, v5")
    a("v_xor_b32 v6, 32, v5"); a("v_xor_b32 v7, 64, v5"); a("v_xor_b32 v8, 96, v5")
    a("v_bfe_u32 v19, v1, 2, 2")
    a("v_lshl_add_u32 v20, v17, 4, v19")
    a("v_lshlrev_b32 v9, 8, v20")
    a("v_bfe_u32 v20, v1, 4, 1"); a("v_lshlrev_b32 v20, 1, v20")
    a("v_bfe_u32 v21, v1, 1, 1"); a("v_add_u32 v20, v20, v21")
    a("s_lshl_b32 s%d, s%d, 3" % (sT0, sWC))
    a("v_add_u32 v20, s%d, v20" % sT0)
    a("v_lshlrev_b32 v21, 2, v19")
    a("v_xor_b32 v20, v20, v21")
    a("v_lshl_add_u32 v9, v20, 4, v9")
    a("v_and_b32 v21, 1, v1")
    a("v_lshl_add_u32 v9, v21, 3, v9")
    a("v_xor_b32 v0, 64, v9")
    srd(a, SWS, 14, WS_SIZE)
    srd(a, SWD, 8, 1792 * 896)
    srd(a, SOUT, 10, 2048 * 896)
    a("s_lshl_b32 s%d, s%d, 11" % (sT0, sR)); a("s_add_u32 s%d, s%d, %d" % (sT0, sT0, WS_RC))
    a("v_lshl_add_u32 v18, v22, 4, s%d" % sT0)
    a("s_lshl_b32 s%d, s%d, 10" % (sT0, sF)); a("s_lshl_b32 s%d, s%d, 9" % (sT1, sWC)); a("s_add_u32 s%d, s%d, s%d" % (sT0, sT0, sT1))
    a("s_add_u32 s%d, s%d, %d" % (sT0, sT0, WS_CS))
    a("v_lshl_add_u32 v19, v16, 3, s%d" % sT0)
    a("v_lshl_add_u32 v19, v17, 2, v19")
    a("s_lshl_b32 s%d, s%d, 1" % (sT0, sR))
    a("s_add_u32 s%d, s%d, s%d" % (sT0, sT0, sWR))
    a("s_lshl_b32 s%d, s%d, 1" % (sT1, sF))
    a("s_add_u32 s%d, s%d, s%d" % (sT1, sT1, sWC))
    a("s_lshl_b32 s%d, s%d, 8" % (sT2, sT0)); a("s_add_u32 s%d, s%d, %d" % (sT2, sT2, WS_FR)); a("v_mov_b32 v15, s%d" % sT2)
    a("s_lshl_b32 s%d, s%d, 8" % (sT2, sT1)); a("s_add_u32 s%d, s%d, %d" % (sT2, sT2, WS_FC)); a("v_writelane_b32 v15, s%d, 1" % sT2)
    a("s_mul_i32 s%d, s%d, 37" % (sT3, sT1)); a("s_lshr_b32 s%d, s%d, 8" % (sT3, sT3)); a("s_add_u32 s%d, s%d, s%d" % (sT3, sT3, sT1))
    a("s_lshl_b32 s%d, s%d, 1" % (sT1, sT1))
    a("s_lshl_b32 s%d, s%d, 5" % (sT2, sT0)); a("s_add_u32 s%d, s%d, s%d" % (sT2, sT2, sT3)); a("s_lshl_b32 s%d, s%d, %d" % (sT2, sT2, FSH))
    a("s_add_u32 s%d, s%d, %d" % (sT2, sT2, WS_HF))
    a("v_mov_b32 v21, s%d" % sT2)
    a("s_mul_i32 s%d, s%d, 56" % (sT0, sT0))
    a("s_add_u32 s%d, s%d, s%d" % (sT0, sT0, sT1))
    a("s_lshl_b32 s%d, s%d, 12" % (sT0, sT0))
    a("v_and_b32 v20, 15, v1")
    a("v_lshlrev_b32 v20, 4, v20")
    a("v_bfe_u32 v22, v1, 4, 1")
    a("v_lshl_add_u32 v20, v22, 10, v20")
    a("v_lshl_add_u32 v20, v17, 8, v20")
    a("v_add_u32 v20, s%d, v20" % sT0)
    a("s_mov_b32 s%d, 0" % sLD)
    CA_, CB_ = 32, 42
    for r in range(33, 50):
        if r not in (34, 36, 38, 42, 46): a("v_mov_b32 v%d, 0" % r)
    a("v_lshrrev_b32 v16, 3, v1")
    a("s_mul_i32 s%d, s%d, %d" % (sT0, sWV, 448 * 896))
    a("v_mul_u32_u24 v16, 896, v16")
    a("s_lshl_b32 s%d, s%d, 7" % (sT1, sCT)); a("s_add_u32 s%d, s%d, s%d" % (sT0, sT0, sT1))
    a("v_add_u32 v16, s%d, v16" % sT0)
    a("v_xor_b32 v17, v1, v22"); a("v_and_b32 v17, 7, v17")
    a("v_lshl_add_u32 v52, v17, 4, v16")
    for q in range(1, 4): a("v_add_u32 v%d, %d, v52" % (52 + q, q * (8 * 896 - 1024)))
    a = a_real
    while pend: emit(pend.pop(0))
    ACC = lambda ff, mat, tt: 128 + 64 * ff + 32 * mat + 16 * tt
    FR = [80, 104]
    RC = [24, 28]
    NW = 6
    J = lambda s: 2 * (s % 7) + s // 7
    WDV = [52, 52]
    def dma_wd(s):
        if "now" in EXP and s >= 6: return []
        if s < 6:
            return [[setr("m0", "s_add_u32 m0, s%d, %d" % (sOX, WDS[s % NW])), setr(sOW, "s_mov_b32 s%d, %d" % (sOW, J(s) * 32 * 896)),
                     ("buffer_load_dwordx4 v%d, s[%d:%d], s%d offen offset:%d lds" % (52 + q, SWD, SWD + 3, sOW, q * 1024), ("wd", s))] for q in range(4)]
        return [["s_add_u32 m0, s%d, %d" % (sOX, WDS[s % NW] + q * 1024), "s_mov_b32 s%d, %d" % (sOW, (J(s) * 32 + 8 * q) * 896),
                 ("buffer_load_dwordx4 v2, s[%d:%d], s%d offen lds" % (SWD, SWD + 3, sOW), ("wd", s))] for q in range(4)]
    def rd_frags(st, kk):
        fb = FR[kk]
        slot = st % 4
        xo = L_X[(st >> 1) % 3] - 65536
        xa = 5 + 2 * (st & 1) + kk
        def wr(ff, mat):
            return [("ds_read_b64_tr_b16 %s, v%d offset:%d" % (vr(fb + 8 + 8 * ff + 4 * mat + 2 * half, 2), (9, 0)[ff], L_W + slot * 16384 + mat * 1024 + kk * 8192 + half * 2048), ("fr", st, kk, ff, mat)) for half in range(2)]
        xr = lambda tt: [("ds_read_b128 %s, v%d offset:%d" % (vr(fb + 4 * tt, 4), xa, xo + tt * 4096), ("fx", st, kk, tt))]
        return [xr(0) + wr(0, 0), xr(1), wr(0, 1), wr(1, 0), wr(1, 1)]
    def mfmas(kk, first=False):
        fb = FR[kk]
        return ["v_mfma_f32_32x32x16_bf16 %s, %s, %s, %s" % (vr(ACC(ff, mat, tt), 16), vr(fb + 8 + 8 * ff + 4 * mat, 4), vr(fb + 4 * tt, 4), "0" if first else vr(ACC(ff, mat, tt), 16))
                for ff in range(2) for mat in range(2) for tt in range(2)]
    def inter(st, kk, groups):
        for i, m in enumerate(mfmas(kk, st == 0 and kk == 0)):
            ff, mat, tt = i >> 2, (i >> 1) & 1, i & 1
            if i == 1: a.wait_ds(("fx", st, kk, 1))
            a.wait_ds(("fr", st, kk, ff, mat))
            a(m)
            for sl, g in groups:
                if sl == i: emit(g)
    def arrive(v, off=0):
        a("v_mov_b32 v13, %d" % v)
        a.ds("ds_write_b8 v12, v13 offset:%d" % off, "sig")
    deferred = []
    chk0 = [0]
    def check(v, kind):
        if "nochk" in EXP and 1 < len(a.vmq) and v < 14 and chk0[0]: return
        chk0[0] = 1
        a("s_getpc_b64 s[20:21]")
        a("v_cmp_gt_u32 vcc, %d, v%d" % (v, 14 if kind == "F" else 16))
        a("s_cbranch_vccnz K_RT_%s" % kind)
    def retries():
        a("s_mov_b32 s18, %d" % (SPIN * 4))
        a("s_branch K_RTE")
        for kind in ("R", "F"):
            r = 14 if kind == "F" else 16
            a.label("K_RT_%s" % kind)
            a("ds_read_b32 v14, v%d" % VFA if kind == "F" else "ds_read_u8 v16, v11 offset:%d" % Y_RD)
            a("s_sub_i32 s18, s18, 1"); a("s_max_i32 s18, s18, 0")
            a("s_cmp_eq_u32 s18, 0"); a("s_cselect_b32 s19, 255, 0")
            a("s_waitcnt lgkmcnt(0)")
            a("v_or_b32 v%d, s19, v%d" % (r, r))
            a("s_setpc_b64 s[20:21]")
        a.label("K_RTE")
    def const_loads():
        for tt in range(2):
            a("buffer_load_dwordx4 %s, v18, s[%d:%d], 0 offen offset:%d" % (vr(RC[tt], 4), SWS, SWS + 3, tt * 512))
        a("s_movk_i32 s%d, %d" % (sT0, CSM))
        for ff in range(2):
            a("buffer_load_dword v%d, v19, s[%d:%d], 0 offen offset:%d" % (CA_ + 4 * ff, SWS, SWS + 3, ff * 256))
            a("buffer_load_dword v%d, v19, s[%d:%d], s%d offen offset:%d" % (CA_ + 4 * ff + 2, SWS, SWS + 3, sT0, ff * 256))
        a("s_mov_b32 s%d, 1" % sLD)
    def get_non():
        a.wait_ds("non")
        a("v_readfirstlane_b32 s%d, v22" % sNON); a("v_readfirstlane_b32 s%d, v23" % (sNON + 1))
    def pollA():
        a.vm("buffer_load_dword v17, v15, s[%d:%d], 0 offen sc1" % (SWS, SWS + 3), "pf")
    def try_const():
        l = L("CL"); lo = L("CLO")
        a.wait_vm("pf")
        a("v_cmp_ne_u32 vcc, s%d, v17" % sNON)
        a("s_cbranch_vccz %s" % lo)
        a.label(l)
        a.mark("cst")
        def slow():
            a.label(lo)
            a("s_cmp_eq_u32 s%d, 0" % (sNON + 1))
            a("s_cbranch_scc1 %s" % l)
            a("s_cmp_lg_u32 s%d, 0" % sLD)
            a("s_cbranch_scc1 %s" % l)
            const_loads()
            a("s_branch %s" % l)
        deferred.append(slow)
    PA = ENV("PA", 3)
    RS = [int(c) for c in os.environ.get("RS", "01245")]
    TP = [int(c) for c in os.environ.get("TP", "9,11").split(",")]
    EARLY = ENV("EARLY", 1)
    retries()
    a("v_mov_b32 v14, 0")
    check(1, "F")
    a.dsq = []
    sf_("st0")
    a("s_setprio %d" % ENV("LPRIO", 3))
    poll = ([] if KT else ["v_add_u32 v%d, 16, v%d" % (VFA, VFA)]) + [("ds_read_b32 v14, v%d" % VFA, "pA")]
    for g in rd_frags(0, 0): emit(g)
    DMX = ENV("DMX", 6)
    if EARLY: Q += [(11, g) for g in dma_wd(0)] + [(12, g) for g in dma_wd(1) + dma_wd(2)] + [(13, g) for g in dma_wd(3)]
    SD = []
    for st in range(NST):
        D = []
        while Q and Q[0][0] <= st and len(D) < (DMX if st else 8): D.append(Q.pop(0)[1])
        SD.append(D)
    assert not Q
    if ENV("VERB", 0): print("DMA per stage", [len(d) for d in SD])
    stageD = lambda st: SD[st]
    for st in range(NST):
        if st in (7,) and not NSTA: sf_("st%d" % st)
        if st in (1, 2, 3, 4, 6, 8, 10, 12): sf_("l_%d" % st)
        D = stageD(st)
        DS = [(int(x) // 8, int(x) % 8) for x in os.environ.get("DS", "4,6,9,11,13,15").split(",")] if len(D) <= 6 else [(0, 3), (0, 5), (0, 7), (1, 1), (1, 2), (1, 4), (1, 5), (1, 7)]
        if st == 0: DS = [(0, 0), (0, 2), (0, 4), (0, 6), (1, 1), (1, 3), (1, 5), (1, 7)]
        G = []
        G += [(RS[i], g) for i, g in enumerate(rd_frags(st, 1))]
        if st + 1 in TP: G.append((5, [("ds_read_b64 v[22:23], v10 offset:%d" % (Y_NON - Y_RDA), "non")]))
        if st - 2 in TP: G.append((0, [try_const]))
        if st in TP: G.append((1, [get_non, pollA]))
        if D and st: G.append((ENV("RCK", 3), [lambda: a.wait_ds("pR"), lambda st=st: check(st, "R")]))
        G += [(DS[i][1], g) for i, g in enumerate(D) if DS[i][0] == 0]
        if st + 1 < NST: G.append((PA, poll))
        if ENV("ARS", 5) < 8: G.append((ENV("ARS", 5), [lambda st=st: arrive(st + 1, Y_RD)]))
        inter(st, 0, G)
        G = []
        if st + 1 < NST:
            G.append((0, [lambda: a.wait_ds("pA"), lambda st=st: check(st + 2 if KT else 1, "F")]))
            G += [(RS[i], g) for i, g in enumerate(rd_frags(st + 1, 0))]
        if ENV("ARS", 5) >= 8: G.append((ENV("ARS", 5) - 8, [lambda st=st: arrive(st + 1, Y_RD)]))
        G += [(DS[i][1], g) for i, g in enumerate(D) if DS[i][0] == 1]
        if st + 1 == NST or stageD(st + 1): G.append((ENV("PRS", 7), [("ds_read_u8 v16, v11 offset:%d" % Y_RD, "pR")]))
        inter(st, 1, G)
    sf_("loopend")
    a("s_setprio %d" % ENV("GPRIO", 1))
    l = L("CL"); lo = L("CLO"); l1 = L("CLP"); l2 = L("CLP")
    a("s_cmp_eq_u32 s%d, 0" % sLD)
    a("s_cbranch_scc1 %s" % lo)
    a.wait_vm("cst")
    a.label(l)
    def slow(l=l, lo=lo):
        a.label(lo)
        a("s_mov_b32 s%d, %d" % (sCNT, SPIN))
        a.label(l1)
        a("ds_read_b64 v[22:23], v10 offset:%d" % (Y_NON - Y_RDA))
        a("buffer_load_dword v17, v15, s[%d:%d], 0 offen sc1" % (SWS, SWS + 3))
        a("s_waitcnt vmcnt(0) lgkmcnt(0)")
        a("v_readfirstlane_b32 s%d, v22" % sNON); a("v_readfirstlane_b32 s%d, v23" % (sNON + 1))
        a("v_cmp_ne_u32 vcc, s%d, v17" % sNON)
        a("s_cmp_eq_u32 s%d, 0" % (sNON + 1))
        a("s_cselect_b64 s[%d:%d], -1, vcc" % (sT0, sT0 + 1))
        a("s_cmp_eq_u64 s[%d:%d], 0" % (sT0, sT0 + 1))
        a("s_cbranch_scc1 %s" % l2)
        a("s_sleep 2")
        a("s_sub_u32 s%d, s%d, 1" % (sCNT, sCNT)); a("s_cmp_lg_u32 s%d, 0" % sCNT)
        a("s_cbranch_scc1 %s" % l1)
        a.label(l2)
        const_loads()
        a("s_waitcnt vmcnt(0)")
        a("s_branch %s" % l)
    deferred.append(slow)
    for tt in range(2): a("v_mov_b32 v%d, v%d" % (CB_ + 4 * tt, RC[tt]))
    corr = ["v_mfma_f32_32x32x16_bf16 %s, %s, %s, %s" % (vr(ACC(ff, mat, tt), 16), vr(CA_ + 4 * ff + 2 * mat, 4), vr(CB_ + 4 * tt, 4), vr(ACC(ff, mat, tt), 16))
            for ff in range(2) for tt in range(2) for mat in range(2)]
    a(corr[0]); a(corr[1])
    a("v_mov_b32 v2, v52"); WDV = [2, 2]
    a("s_lshl_b32 s%d, s%d, 2" % (sT0, sRT2)); a("s_add_u32 s%d, s%d, s%d" % (sT0, sT0, sWV)); a("s_lshl_b32 s%d, s%d, %d" % (sT0, sT0, FSH + 3))
    a("s_add_u32 s%d, s%d, %d" % (sT0, sT0, WS_HF))
    a("v_lshrrev_b32 v8, 1, v1"); a("v_lshlrev_b32 v8, %d, v8" % FSH); a("v_and_b32 v14, 1, v1"); a("v_lshl_add_u32 v8, v14, 2, v8")
    a("v_add_u32 v8, s%d, v8" % sT0)
    a(corr[2])
    TRB = [[4, 5], [6, 7]]
    a("v_bfe_u32 v13, v1, 2, 2"); a("v_lshrrev_b32 v14, 4, v1")
    a("v_lshl_add_u32 v13, v14, 3, v13")
    a("v_lshlrev_b32 v13, 7, v13")
    a("v_and_b32 v14, 3, v1")
    a("v_lshl_add_u32 v13, v14, 5, v13")
    a("v_bfe_u32 v14, v1, 3, 1")
    a("v_lshl_add_u32 v13, v14, 4, v13")
    a("v_add_u32 v4, s%d, v13" % sOX)
    a("v_xor_b32 v5, 16, v4")
    a("v_add_u32 v6, 65536, v4"); a("v_add_u32 v7, 65536, v5")
    a(corr[3])
    a("s_mov_b32 s%d, %d" % (sHD, 0x2aaa if "nogate" in EXP else 0))
    a.wait_ds("pR")
    check(14, "R")
    a.dsq = []
    sf_("stats")
    NV = ENV("NV", 6); NG = ENV("NG", 0)
    GST = ENV('GST', 0)
    WBK = [160, 128, 176, 144, 64, 112] if GST else [80, 96, 32, 48, 160, 128, 176, 144]
    OB = [80, 96, 32]
    WB = {s: WBK[s] for s in range(NV)}
    def trw(s):
        a.wait_vm(("wd", s))
        hi = WDS[s % NW] >= 65536; of = WDS[s % NW] - 65536 * hi
        for ct in range(4):
            for hf in range(2):
                a.ds("ds_read_b64_tr_b16 %s, v%d offset:%d" % (vr(WB[s] + 4 * ct + 2 * hf, 2), TRB[hi][ct >> 1], of + hf * 512 + 8 * (ct & 1)), ("tw", s))
    HA = [9, 3, 0, 10]
    def hpoll(r=14, tag="hp"):
        a("s_mov_b64 exec, 0x3fff")
        a.vm("buffer_load_dword v%d, v8, s[%d:%d], 0 offen sc1" % (r, SWS, SWS + 3), tag)
        a("s_mov_b64 exec, -1")
    def flag(ff, trk=True):
        if "noflag1" in EXP and ff == 1:
            a.wait_vm(("hst", ff)); return
        if trk: a.wait_vm(("hst", ff))
        a("s_mov_b64 exec, 1")
        t = "buffer_store_dword v22, v21, s[%d:%d], 0 offen offset:%d sc1" % (SWS, SWS + 3, ff * 4)
        if trk: a.vm(t, "hfl")
        else: a(t)
        a("s_mov_b64 exec, -1")
    GD = ENV("GD", 11); GP = 9; PKG = ENV("PKG", 0)
    ev = []
    def at(t, item): ev.append((t, len(ev), item))
    BT = 8 * GP
    for i in range(4, 8): at((i - 4) * 6 + 2, corr[i])
    def sched_dma(t, s, dt=5):
        for q, g in enumerate(dma_wd(s)): at(t + q * dt, lambda g=g: emit(g))
    if EARLY:
        sched_dma(0.1, 4); sched_dma(24.1, 5)
        TW = [float(x) for x in os.environ.get("TW", "0.7,1.4,2.1,2.8,3.5,4.2,5.0,5.7").split(",")]
    else:
        for s in range(6): sched_dma(s * BT + 0.1, s)
        TW = [float(x) for x in os.environ.get("TW", "3,4,5,6,7,8").split(",")]
    if GST:
        for n in range(12):
            def ld_own(n=n):
                emit([setr(sOW, "s_mov_b32 s%d, %d" % (sOW, J(6 + n // 4) * 32 * 896)),
                      ("buffer_load_dwordx4 %s, v%d, s[%d:%d], s%d offen offset:%d" % (vr(OB[n // 4] + 4 * (n % 4), 4), 52 + n % 4, SWD, SWD + 3, sOW, (n % 4) * 1024), "own")])
            at(ENV("GT0", 60) + ENV("GTD", 10) * n + 0.2, ld_own)
    NGT = ENV("NGT", 0)
    for s in range(max(NG, NGT)):
        assert TW[s] * BT > [0, 0, 30, 30, 15 * GP + 4 * GD, 15 * GP + 8 * GD, 31 * GP + 4 * GD, 31 * GP + 8 * GD][s]
        at(TW[s] * BT, lambda s=s: trw(s))
        if s < NG:
            at(TW[s] * BT + 20, lambda s=s: a.wait_ds(("tw", s)))
            sched_dma(TW[s] * BT + 20.1, s + NW)
    at(float(os.environ.get("TF0", "7")) * BT - 0.5, lambda: flag(0))
    n = 0
    for ff in range(2):
        for tt in range(2):
            r0 = RC[tt]
            for qp in range(2):
                blk = n // 8
                HP = 112 + 4 * (blk & 3)
                for q2 in range(2):
                    q = 2 * qp + q2
                    for e in range(4):
                        g = ACC(ff, 0, tt) + 4 * q + e; u = ACC(ff, 1, tt) + 4 * q + e; T = 64 + (n & 15)
                        if PKG:
                            P2 = lambda r: vr(r, 2)
                            ops = [(3, "v_exp_f32 v%d, v%d" % (T, T)), (6, "v_rcp_f32 v%d, v%d" % (T, T))]
                            if e & 1 == 0:
                                ops += [(0, "v_pk_mul_f32 %s, %s, %s" % (P2(T), P2(g), P2(g))),
                                        (1, "v_pk_fma_f32 %s, %s, %s, %s op_sel:[0,0,1] op_sel_hi:[1,0,1]" % (P2(T), P2(T), P2(r0 + 2), P2(r0))),
                                        (2, "v_pk_mul_f32 %s, %s, %s" % (P2(T), P2(T), P2(g))),
                                        (4, "v_pk_mul_f32 %s, %s, %s" % (P2(g), P2(g), P2(u)))]
                            else:
                                ops += [(4.5 - GP / GD, "v_pk_fma_f32 %s, %s, %s, %s op_sel:[0,1,1] op_sel_hi:[1,1,1]" % (P2(T - 1), P2(T - 1), P2(r0 + 2), P2(r0 + 2))),
                                        (7, "v_pk_mul_f32 %s, %s, %s" % (P2(g - 1), P2(g - 1), P2(T - 1))),
                                        (8, "v_cvt_pk_bf16_f32 v%d, v%d, v%d" % (HP + 2 * q2 + e // 2, g - 1, g))]
                                ops[2] = (4, ops[2][1])
                        else:
                            ops = [(0, "v_mul_f32 v%d, v%d, v%d" % (T, g, g)),
                            (1, "v_fma_f32 v%d, v%d, v%d, v%d" % (T, T, r0 + 2, r0 + 1)),
                            (2, "v_mul_f32 v%d, v%d, v%d" % (T, T, g)),
                            (3, "v_exp_f32 v%d, v%d" % (T, T)),
                            (4, "v_mul_f32 v%d, v%d, v%d" % (g, g, u)),
                            (5, "v_fma_f32 v%d, v%d, v%d, v%d" % (T, T, r0 + 3, r0 + 3)),
                            (6, "v_rcp_f32 v%d, v%d" % (T, T)),
                            (7, "v_mul_f32 v%d, v%d, v%d" % (g, g, T))]
                            if e & 1: ops.append((8, "v_cvt_pk_bf16_f32 v%d, v%d, v%d" % (HP + 2 * q2 + e // 2, g - 1, g)))
                        for k, o in ops: at(n * GP + k * GD, o)
                        n += 1
                t = (n - 1) * GP + 8 * GD
                at(t + 4, "v_permlane32_swap_b32 v%d, v%d" % (HP, HP + 2))
                at(t + 5, "v_permlane32_swap_b32 v%d, v%d" % (HP + 1, HP + 3))
                def st_h(HP=HP, ff=ff, tt=tt, qp=qp):
                    a("s_movk_i32 s%d, %d" % (sT0, ff * 4096))
                    a.vm("buffer_store_dwordx4 %s, v20, s[%d:%d], s%d offen offset:%d sc1" % (vr(HP, 4), SWS, SWS + 3, sT0, tt * 2048 + qp * 512), ("hst", ff))
                at(t + 8, st_h)
    for t, _, it in sorted(ev, key=lambda x: (x[0], x[1])):
        if callable(it): it()
        else: a(it)
    sf_("gelu")
    A2 = lambda ct, tt: 192 + 16 * ct + 4 * tt
    free = [48] + OB if GST else [64, 112] + WBK[NV:]
    HB = {}
    def ld_h(s, trk=True):
        if ENV("VERB", 0): print("ld_h", s, free)
        if s not in HB: HB[s] = free.pop(0)
        if ROT: a("s_lshl_b32 s%d, s%d, 6" % (sOW, RJ[s % 7])); a("s_add_u32 s%d, s%d, %d" % (sOW, sOW, WS_H + (s // 7) * 4096))
        else: a("s_mov_b32 s%d, %d" % (sOW, WS_H + J(s) * 4096))
        if "hsame" in EXP: a("s_mov_b32 s%d, 0" % sOW)
        for tt in range(4):
            t = "buffer_load_dwordx4 %s, v%d, s[%d:%d], s%d offen" % (vr(HB[s] + 4 * tt, 4), HA[tt], SWS, SWS + 3, sOW)
            if trk: a.vm(t, ("h", s, tt))
            else: a(t)
    def spin_h(mask, lj, r=14, p1=None):
        lo = L("HS"); l1 = L("HS")
        def slow():
            a.label(lo)
            a("s_mov_b32 s%d, %d" % (sT3, SPIN))
            a.label(l1)
            a("s_mov_b64 exec, 0x3fff")
            a("buffer_load_dword v%d, v8, s[%d:%d], 0 offen sc1" % (r, SWS, SWS + 3))
            a("s_mov_b64 exec, -1")
            if p1 is not None:
                a("s_waitcnt vmcnt(%d)" % p1)
                a("v_cmp_ne_u32 vcc, s%d, v23" % sNON)
                a("s_and_b32 s%d, vcc_lo, 0x%x" % (sT0, mask))
                a("s_cbranch_scc0 %s" % lj)
            a("s_waitcnt vmcnt(0)")
            a("v_cmp_ne_u32 vcc, s%d, v%d" % (sNON, r))
            a("s_and_b32 s%d, vcc_lo, 0x%x" % (sT0, mask))
            a("s_cbranch_scc0 %s" % lj)
            a("s_sleep %d" % ENV("HSL", 3))
            a("s_sub_u32 s%d, s%d, 1" % (sT3, sT3)); a("s_cmp_lg_u32 s%d, 0" % sT3)
            a("s_cbranch_scc1 %s" % l1)
            a("s_branch %s" % lj)
        deferred.append(slow)
        return lo
    P0 = ENV("P0", 5)
    if P0 == 0: hpoll()
    for s in range(max(NG, NGT), NV): trw(s)
    a("s_mul_i32 s%d, s%d, 14" % (sT1, sWV))
    a("s_mul_i32 s%d, s%d, 56" % (sT0, sRT2))
    a("s_add_u32 s%d, s%d, s%d" % (sT0, sT0, sT1))
    a("s_lshl_b32 s%d, s%d, 12" % (sT0, sT0))
    for r in range(4):
        a("s_add_u32 s%d, s%d, %d" % (sT1, sWV, r)); a("s_and_b32 s%d, s%d, 3" % (sT1, sT1)); a("s_lshl_b32 s%d, s%d, 10" % (sT1, sT1))
        a("s_add_u32 s%d, s%d, s%d" % (sT1, sT1, sT0))
        a("v_lshl_add_u32 v%d, v1, 4, s%d" % (HA[r], sT1))
    a("v_and_b32 v17, 15, v1"); a("v_lshrrev_b32 v13, 4, v1")
    a("s_lshl_b32 s%d, s%d, 6" % (sT0, sRT2)); a("s_lshl_b32 s%d, s%d, 4" % (sT1, sWV)); a("s_add_u32 s%d, s%d, s%d" % (sT0, sT0, sT1))
    a("v_add_u32 v18, s%d, v17" % sT0)
    a("v_mul_u32_u24 v18, 896, v18")
    a("v_lshl_add_u32 v18, v13, 5, v18")
    a("s_lshl_b32 s%d, s%d, 7" % (sT0, sCT))
    a("v_add_u32 v18, s%d, v18" % sT0)
    a.vm("buffer_load_dwordx4 v[24:27], v18, s[%d:%d], 0 offen" % (SX, SX + 3), "x")
    a.vm("buffer_load_dwordx4 v[28:31], v18, s[%d:%d], 0 offen offset:16" % (SX, SX + 3), "x")
    a("v_mul_u32_u24 v16, %d, v13" % STG_W)
    a("v_lshrrev_b32 v13, 2, v17"); a("v_lshl_add_u32 v16, v13, 7, v16")
    a("v_and_b32 v13, 1, v17"); a("v_lshl_add_u32 v16, v13, 3, v16")
    a("v_bfe_u32 v13, v17, 1, 1"); a("v_lshl_add_u32 v16, v13, 6, v16")
    a("s_add_u32 s%d, s%d, %d" % (sT1, sT1, L_STG))
    a("v_add_u32 v16, s%d, v16" % sT1)
    a("v_lshl_add_u32 v19, v1, 4, s%d" % sOX)
    arrive(1, Y_TR)
    if GST:
        a.wait_vm("own")
        for n in range(12):
            hi = WDS[n // 4] >= 65536
            if n == 8: a("v_add_u32 v13, 65536, v19")
            a.ds("ds_write_b128 v%d, %s offset:%d" % ((19, 13)[hi], vr(OB[n // 4] + 4 * (n % 4), 4), WDS[n // 4] - 65536 * hi + (n % 4) * 1024), "ow")
    if P0 == 1: hpoll()
    flag(1)
    sf_("flag1")
    if P0 == 2: hpoll()
    a("s_setprio %d" % ENV("F2PRIO", 0))
    if not GST:
        a("s_waitcnt lgkmcnt(0)"); a.dsq = []
        P1 = ENV("P1", 0)
        if P1 == 1: hpoll(23, "hp1")
        WO = [int(x) for x in os.environ.get("WO", "-2,-2,-2").split(",")]
        for s in range(6 + NG, 9):
            if WO[s - 6] == -2:
                for g in dma_wd(s): emit(g)
            if P1 == s - 4: hpoll(23, "hp1")
            if P0 == s - 3:
                if ENV("PDL", 4): a("s_sleep %d" % ENV("PDL", 4))
                hpoll()
    wdq = []
    lj = L("HJ")
    a.wait_vm("hp")
    a("v_cmp_ne_u32 vcc, s%d, v14" % sNON)
    a("s_and_b32 s%d, vcc_lo, 0x1555" % sT0)
    lo = spin_h(0x1555, lj, p1=(len(a.vmq) - [t for t in range(len(a.vmq)) if a.vmq[t] == "hp1"][0]) if P1 else None)
    a("s_cbranch_scc1 %s" % lo)
    a.label(lj)
    if ENV("DLY", 0): a("s_sleep %d" % ENV("DLY", 0))
    sf_("hpoll")
    NHM = ENV("NHM", 4)
    assert NSTA == 5 and NV == 6 and not wdq
    sRDY, sISS = sHD, sLD
    WTAB = 22; WOF = list(range(8, 15)); sHM = 16
    PR = [23, 17, 2]
    def dpoll(n):
        l = L("DP")
        a("s_cmp_eq_u32 s%d, 0x2aaa" % sRDY)
        a("s_cbranch_scc1 %s" % l)
        a("s_mov_b64 exec, 0x3fff")
        a("buffer_load_dword v%d, v8, s[%d:%d], 0 offen sc1" % (PR[n % 3], SWS, SWS + 3))
        a("s_mov_b64 exec, -1")
        a.label(l)
        a.mark(("hq", n))
    def deval(n):
        a.wait_vm(("hq", n))
        a("v_cmp_eq_u32 vcc, s%d, v%d" % (sNON, PR[n % 3]))
        a("s_and_b32 s%d, vcc_lo, 0x2aaa" % sT0)
        a("s_or_b32 s%d, s%d, s%d" % (sRDY, sRDY, sT0))
    def dslow():
        a.label("K_DS")
        a("s_mov_b64 exec, 0x3fff")
        a("buffer_load_dword v14, v8, s[%d:%d], 0 offen sc1" % (SWS, SWS + 3))
        a("s_mov_b64 exec, -1")
        a("s_sub_i32 s18, s18, 1"); a("s_max_i32 s18, s18, 0")
        a("s_cmp_eq_u32 s18, 0"); a("s_cselect_b32 s19, -1, 0")
        a("s_waitcnt vmcnt(0)")
        a("v_cmp_eq_u32 vcc, s%d, v14" % sNON)
        a("s_or_b32 s19, s19, vcc_lo")
        a("s_and_b32 s19, s19, 0x2aaa")
        a("s_or_b32 s%d, s%d, s19" % (sRDY, sRDY))
        a("s_setpc_b64 s[20:21]")
    deferred.append(dslow)
    sWL = 17
    def wslow():
        a.label("K_WS")
        a("ds_read_u8 v14, v15 offset:%d" % Y_WS)
        a("s_sub_i32 s18, s18, 1"); a("s_max_i32 s18, s18, 0")
        a("s_cmp_eq_u32 s18, 0"); a("s_cselect_b32 s19, 3, 0")
        a("s_waitcnt lgkmcnt(0)")
        a("v_readfirstlane_b32 s%d, v14" % sWL)
        a("s_sleep 1")
        a("s_or_b32 s%d, s%d, s19" % (sWL, sWL))
        a("s_setpc_b64 s[20:21]")
    deferred.append(wslow)
    def c_issue(s):
        HB[s] = free.pop(0)
        if s < 7 or "stat" in EXP: C = [["s_mov_b32 s%d, %d" % (sOW, WS_H + J(s) * 4096)]]
        else:
            C = [["s_getpc_b64 s[20:21]", "s_andn2_b32 s%d, s%d, s%d" % (sT0, sRDY, sISS), "s_cbranch_scc0 K_DS", "s_ff1_i32_b32 s%d, s%d" % (sT1, sT0)],
                 ["s_lshr_b32 m0, s%d, 1" % sT1, "s_lshl_b32 s%d, s%d, 12" % (sOW, sT1), "s_bitset1_b32 s%d, s%d" % (sISS, sT1), "s_movrels_b32 s%d, s%d" % (WOF[s - 7], WTAB)], []]
        for i, tt in enumerate((1, 2, 3, 0) if s == 13 else range(4)):
            ld = ("buffer_load_dwordx4 %s, v%d, s[%d:%d], s%d offen" % (vr(HB[s] + 4 * tt, 4), HA[tt], SWS, SWS + 3, sOW), ("h", s, tt))
            if "hsame" in EXP: C.append(["s_mov_b32 s%d, 0" % sOW, ld])
            elif "nold" in EXP and s >= 4: pass
            elif i == 0 or i % ENV("LB", 2): C[-1].append(ld)
            else: C.append([ld])
        return C
    def c_trw(s):
        WB[s] = free.pop(0)
        if s < 7 or "stat" in EXP:
            hi = WDS[s % NW] >= 65536; of = WDS[s % NW] - 65536 * hi
            C = [[lambda: a.wait_vm(("wd", min(s, 8)))]]
        else:
            hi = 1; of = 0
            C = [([lambda: a.wait_vm(("wd", 8))] if s == 7 else []) +
                 ["s_and_b32 s%d, s%d, 3" % (sT2, WOF[s - 7]), "s_getpc_b64 s[20:21]", "s_cmp_gt_u32 s%d, s%d" % (sT2, sWL), "s_cbranch_scc1 K_WS"],
                 ["s_sub_u32 s%d, s%d, s%d" % (WOF[s - 7], WOF[s - 7], sT2)] + ["v_add_u32 v%d, s%d, v%d" % (TRB[1][c2], WOF[s - 7], TRB[0][c2]) for c2 in range(2)], []]
        for ct in range(4):
            rd = [("ds_read_b64_tr_b16 %s, v%d offset:%d" % (vr(WB[s] + 4 * ct + 2 * hf, 2), TRB[hi][ct >> 1], of + hf * 512 + 8 * (ct & 1)), ("tw", s)) for hf in range(2)]
            if "notr" in EXP: continue
            if ct == 0: C[-1] += rd
            else: C.append(rd)
        return C
    nh = 0
    DP0 = ENV("DP0", 2)
    PI = [int(x) for x in os.environ.get("PI", "1,5,9").split(",")]
    PE = [int(x) for x in os.environ.get("PE", "5,9,11").split(",")]
    if ENV("HR", 1): a("s_andn2_b32 s%d, 0x2aaa, vcc_lo" % sRDY)
    while free and nh < NHM:
        if nh == DP0 and PI[0] < 0: dpoll(0)
        for c in c_issue(nh): emit(c)
        nh += 1
    if DP0 >= NHM and PI[0] < 0: dpoll(0)
    for s in range(6 + NG, 9):
        if WO[s - 6] == -1:
            for g in dma_wd(s): emit(g)
    a("s_mov_b32 s%d, 0" % sISS)
    a("s_mov_b32 s18, %d" % (SPIN * 2)); a("s_mov_b32 s%d, %d" % (sWL, 3 if "nows" in EXP else 0))
    for k_ in range(5): a("s_mov_b32 s%d, %d" % (WTAB + k_, WDS[k_ + 1] + (k_ >= 2)))
    a("s_mul_i32 s%d, s%d, %d" % (sT0, sWC, CV_CH - 16384)); a("s_add_u32 s%d, s%d, s%d" % (sT0, sT0, sOX)); a("s_add_u32 s%d, s%d, %d" % (WTAB + 5, sT0, L_CV + 2))
    a("s_add_u32 s%d, s%d, 4096" % (WTAB + 6, WTAB + 5))
    a("s_add_u32 s%d, s%d, %d" % (sT0, sWV, L_SYNC)); a("v_mov_b32 v15, s%d" % sT0)
    nw = NV
    for r in range(1, 4):
        a("s_sub_u32 s%d, s%d, %d" % (sT1, sWV, r)); a("s_and_b32 s%d, s%d, 3" % (sT1, sT1)); a("s_lshl_b32 s%d, s%d, 12" % (sT1, sT1))
        a("v_lshl_add_u32 v%d, v1, 4, s%d" % (19 + r, sT1))
    Q2 = [[]] * ENV("PG", 0) + [[lambda: dpoll(PI.index(0))]] if 0 in PI else []
    HXS = [int(x) for x in os.environ.get("HXS", "99").split(",")]
    for s in range(6 + NG, 9):
        if WO[s - 6] == 0: Q2 += dma_wd(s)
    for s in range(14):
        a.wait_ds(("tw", s))
        gap = 0
        for tt in ((1, 2, 3, 0) if s == 13 else range(4)):
            a.wait_vm(("h", s, tt))
            for ct in range(4):
                a("v_mfma_f32_16x16x32_bf16 %s, %s, %s, %s" % (vr(A2(ct, tt), 4), vr(WB[s] + 4 * ct, 4), vr(HB[s] + 4 * tt, 4), "0" if s == 0 else vr(A2(ct, tt), 4)))
                gap += 1
                while Q2 and (len(Q2) > 16 - gap or gap == 16): emit(Q2.pop(0))
                if Q2: emit(Q2.pop(0))
                pr = {1: 0, 2: 1, 3: 2, 0: 3}[tt]
                if s == 13 and pr: a("ds_write_b128 v19, %s offset:%d" % (vr(A2(ct, pr), 4), (pr - 1) * 16384 + ct * 1024))
        sf_("s_%d" % s)
        if s == 5: sf_("s5")
        if s == 9: sf_("s9")
        free.append(HB[s]); free.append(WB[s])
        if s + 1 in PE: Q2.append([lambda n=PE.index(s + 1): deval(n)])
        if s + 1 in PI: Q2.append([lambda n=PI.index(s + 1): dpoll(n)])
        QO = ENV("QO", 0)
        qi = []; qt = []
        if nh < 14: qi += c_issue(nh); nh += 1
        if nh < 14 and s in HXS: qi += c_issue(nh); nh += 1
        if nw < 14 and nw <= s + ENV("TA", 2): qt += c_trw(nw); nw += 1
        for s_ in range(6 + NG, 9):
            if WO[s_ - 6] == s + 1: qi += dma_wd(s_)
        if QO == 0: Q2 += qi + qt
        elif QO == 1: Q2 += qt + qi
        elif QO == 2:
            while qi or qt: Q2.append((qi.pop(0) if qi else []) + (qt.pop(0) if qt else []))
        assert nw > s + 2 or nw == 14
        if s == 12: R1, R2, R3 = [free.pop(0) for _ in range(3)]
        if s == 10:
            XU, YR = [free.pop(0) for _ in range(2)]
            Q2.append([lambda: a.wait_vm("x")])
            for w in range(8):
                Q2.append(["v_lshlrev_b32 v%d, 16, v%d" % (XU + 2 * w, 24 + w), "v_and_b32 v%d, 0xffff0000, v%d" % (XU + 2 * w + 1, 24 + w)])
    arrive(17)
    a("ds_read_u8 v15, v11 offset:%d" % Y_YA)
    sf_("f2end")
    def ya_part(spin=True):
        if spin: spin_lds(11, 15, 1, slp=1, off=Y_YA)
        for q in range(4): a("ds_read_b64_tr_b16 %s, v16 offset:%d" % (vr(YR + 2 * q, 2), q * 512))
        for w in range(8):
            if w % 2 == 0: a("s_waitcnt lgkmcnt(%d)" % (3 - w // 2))
            yw = YR + w; o = XU + 2 * w; t = YR + 8 + 2 * (w & 1)
            a("v_lshlrev_b32 v%d, 16, v%d" % (t, yw)); a("v_and_b32 v%d, 0xffff0000, v%d" % (t + 1, yw))
            a("v_add_f32 v%d, v%d, v%d" % (o, o, t)); a("v_add_f32 v%d, v%d, v%d" % (o + 1, o + 1, t + 1))
            a("v_cvt_pk_bf16_f32 v%d, v%d, v%d" % (o, o, o + 1))
            a("v_and_b32 v%d, 0xffff0000, v%d" % (o + 1, o)); a("v_lshlrev_b32 v%d, 16, v%d" % (o, o))
    def red_part():
        spin_lds(11, 15, 17, slp=0)
        for ct in range(4):
            for r, R in enumerate((R1, R2, R3)):
                a("ds_read_b128 %s, v%d offset:%d" % (vr(R + 4 * ct, 4), 20 + r, r * 16384 + ct * 1024))
        for ct in range(4):
            a("s_waitcnt lgkmcnt(%d)" % (9 - 3 * ct))
            for e in range(4):
                c = 4 * ct + e
                a("v_add_f32 v%d, v%d, v%d" % (R1 + c, R1 + c, A2(ct, 0) + e)); a("v_add_f32 v%d, v%d, v%d" % (R2 + c, R2 + c, R3 + c))
            for e in range(4):
                c = 4 * ct + e
                a("v_add_f32 v%d, v%d, v%d" % (R1 + c, R1 + c, R2 + c))
            for w in range(2):
                b = R1 + 4 * ct + 2 * w
                a("v_cvt_pk_bf16_f32 v%d, v%d, v%d" % (b, b, b + 1))
                a("v_and_b32 v%d, 0xffff0000, v%d" % (b + 1, b)); a("v_lshlrev_b32 v%d, 16, v%d" % (b, b))
    e1, e2 = L("EP"), L("EP")
    a("s_waitcnt lgkmcnt(0)")
    a("v_cmp_gt_u32 vcc, 1, v15")
    a("s_cbranch_vccnz %s" % e1)
    a.begin_opt()
    ya_part(False); red_part()
    a("s_branch %s" % e2)
    a.end_opt()
    a.label(e1)
    a.begin_opt()
    red_part(); ya_part()
    a.end_opt()
    a.label(e2)
    sf_("ya")
    for hc in range(2):
        for w in range(4):
            b = R1 + 8 * hc + 2 * w; o = XU + 8 * hc + 2 * w
            a("v_add_f32 v%d, v%d, v%d" % (b, b, o)); a("v_add_f32 v%d, v%d, v%d" % (b + 1, b + 1, o + 1))
            a("v_cvt_pk_bf16_f32 v%d, v%d, v%d" % (R2 + 4 * hc + w, b, b + 1))
        a("buffer_store_dwordx4 %s, v18, s[%d:%d], 0 offen offset:%d" % (vr(R2 + 4 * hc, 4), SOUT, SOUT + 3, hc * 16) + " " + os.environ.get("OUTM", ""))
    sf_("end")
    sf_.store(24)
    if os.environ.get("MEAS"):
        a("s_sub_u32 s100, s99, s%d" % sNON)
        a("v_mov_b32 v24, s100")
        a("s_cmp_lg_u32 s%d, 0" % sWV); a("s_cbranch_scc1 K_END")
        a("s_mov_b64 exec, 1")
        a("s_lshl_b32 s100, s2, 2"); a("s_add_u32 s100, s100, %d" % WS_DBG); a("v_mov_b32 v25, s100")
        a("buffer_store_dword v24, v25, s[%d:%d], 0 offen sc1" % (SWS, SWS + 3))
    a("s_endpgm")
    for f in deferred: f()
    if KT: a.raw(".p2align 2"); a.label("K_TAB"); a.raw(".long " + ", ".join(str(i + 1) for i in range(16)))

    import gen8h
    gen8h.helper(a, sh_, L, spin_lds)
    gen8h.producer(a, sp_, L, spin_lds)
    a.label("K_END")
    a("s_endpgm")
    if STAMP: print("ffn", sf_.names, "\nhelp", sh_.names, "\nprod", sp_.names)
    return a.finalize()

def wrap(kernels):
    out = []
    for name, grid, block, lds, body, nv in kernels:
        if len(kernels) > 1: out.append("; @launch kernel=%s grid=(%d,1,1) block=(%d,1,1) lds=%d" % (name, grid, block, lds))
        else: out.append("; @launch grid=(%d,1,1) block=(%d,1,1) lds=%d" % (grid, block, lds))
    out.append('.amdgcn_target "amdgcn-amd-amdhsa--gfx950"')
    out.append(".text")
    for name, grid, block, lds, body, nv in kernels:
        out += [".globl %s" % name, ".p2align 8", ".type %s,@function" % name, "%s:" % name, body]
    out.append('.section .rodata,"a"')
    for name, grid, block, lds, body, nv in kernels:
        out += [".p2align 6", ".amdhsa_kernel %s" % name,
                "  .amdhsa_next_free_vgpr %d" % nv, "  .amdhsa_next_free_sgpr 102", "  .amdhsa_accum_offset %d" % ((nv + 3) // 4 * 4),
                "  .amdhsa_group_segment_fixed_size 0", "  .amdhsa_kernarg_size 128", "  .amdhsa_user_sgpr_count 2",
                "  .amdhsa_user_sgpr_kernarg_segment_ptr 1", "  .amdhsa_system_sgpr_workgroup_id_x 1", ".end_amdhsa_kernel"]
    return "\n".join(out) + "\n"

if __name__ == "__main__":
    sys.modules["gen8"] = sys.modules["__main__"]
    NAME = "parallel_sum__ssm_conv_s4__glu_gated_geglu__prompt_kernel"
    ks = [(NAME, 256, 512, LDS, gen(), 256)]
    if os.environ.get("MEAS"):
        b = Asm()
        b("s_cmp_ge_u32 s2, 1"); b("s_cbranch_scc1 K3_END")
        b("s_load_dwordx4 s[4:7], s[0:1], 112"); b("s_waitcnt lgkmcnt(0)")
        srd(b, 8, 6, WS_SIZE); srd(b, 12, 4, 256)
        b("v_lshlrev_b32 v1, 2, v0"); b("v_mov_b32 v10, 0")
        for i in range(4):
            b("s_mov_b32 s22, %d" % (WS_DBG + 128 + i * 256 - (32 if i == 3 else 0) * 4))
            b("buffer_load_dword v4, v1, s[8:11], s22 offen sc1"); b("s_waitcnt vmcnt(0)"); b("v_max_u32 v10, v10, v4")
        b("v_readlane_b32 s30, v10, 0")
        for l in range(1, 64):
            b("v_readlane_b32 s22, v10, %d" % l); b("s_max_u32 s30, s30, s22")
        b("s_mov_b64 exec, 1"); b("v_mov_b32 v1, 0"); b("v_mov_b32 v2, s30")
        b("buffer_store_dword v2, v1, s[12:15], 0 offen"); b("s_waitcnt vmcnt(0)")
        b("s_min_u32 s30, s30, 20000"); b("s_mul_i32 s30, s30, %d" % int(os.environ.get("DM", "4")))
        b("s_memrealtime s[24:25]"); b("s_waitcnt lgkmcnt(0)")
        b.label("K3_L")
        b("s_memrealtime s[26:27]"); b("s_waitcnt lgkmcnt(0)"); b("s_sub_u32 s28, s26, s24"); b("s_cmp_lt_u32 s28, s30"); b("s_cbranch_scc1 K3_L")
        b.label("K3_END"); b("s_endpgm")
        ks = [("k1_kernel",) + ks[0][1:], ("k3_kernel", 1, 64, 0, b.finalize(), 64)]
    open(sys.argv[1] if len(sys.argv) > 1 else "k.s", "w").write(wrap(ks))
```

```python
import math, os
from gen8 import *

XST = ENV("XST", 4096); YST = ENV("YST", 4096); YP = ENV("YP", 3)
def get_nonce(a, L, va, vd, pre=False):
    l1, l2, l3 = L("GN"), L("GN"), L("GN")
    a("s_mov_b32 s%d, %d" % (sCNT, SPIN))
    if pre: a("s_branch %s" % l3)
    a.label(l1)
    a("buffer_load_dwordx2 v[%d:%d], v%d, s[%d:%d], 0 offen sc1" % (vd, vd + 1, va, SDBG, SDBG + 3))
    a.label(l3)
    a("s_waitcnt vmcnt(0)")
    a("v_readfirstlane_b32 s%d, v%d" % (sNON, vd)); a("v_readfirstlane_b32 s%d, v%d" % (sNON + 1, vd + 1))
    a("s_cmp_lg_u32 s%d, 0" % (sNON + 1))
    a("s_cbranch_scc1 %s" % l2)
    a("s_sleep 8")
    a("s_sub_u32 s%d, s%d, 1" % (sCNT, sCNT)); a("s_cmp_lg_u32 s%d, 0" % sCNT)
    a("s_cbranch_scc1 %s" % l1)
    a.label(l2)

def helper(a, sk_, L, spin_lds):
    a.label("K_HELP")
    a.vmq = []
    a("s_setprio 3")
    a("s_load_dwordx2 s[60:61], s[0:1], 64")
    a("s_sub_u32 s%d, s%d, 4" % (sKW, sWV))
    a("s_cmp_lg_u32 s%d, 7" % sWV)
    a("s_cbranch_scc1 K_NZ")
    a.begin_opt()
    a("v_lshlrev_b32 v2, 2, v1"); a("v_add_u32 v2, %d, v2" % L_SYNC); a("v_mov_b32 v3, 0")
    a("ds_write_b32 v2, v3")
    if KT: a("v_and_b32 v2, 3, v1"); a("v_mul_u32_u24 v2, %d, v2" % FLS); a("v_add_u32 v2, %d, v2" % (L_FL + 64)); a("ds_write_b32 v2, v3")
    else: a("ds_write_b32 v2, v3 offset:512")
    a.end_opt()
    a.label("K_NZ")
    a("s_and_b32 s%d, s%d, 1" % (sHF, sKW))
    a("s_lshr_b32 s%d, s%d, 1" % (sT0, sKW))
    a("s_sub_u32 s%d, s2, 32" % sCH)
    a("s_lshl_b32 s%d, s%d, 1" % (sCH, sCH))
    a("s_add_u32 s%d, s%d, s%d" % (sCH, sCH, sT0))
    a("s_mul_i32 s%d, s%d, %d" % (sCVB, sT0, CV_CH))
    a("s_add_u32 s%d, s%d, %d" % (sCVB, sCVB, L_CV))
    a("s_lshl_b32 s%d, s%d, 8" % (sT0, sCH))
    a("s_lshl_b32 s%d, s%d, 7" % (sT1, sHF))
    a("s_add_u32 s%d, s%d, s%d" % (sT0, sT0, sT1))
    a("v_add_u32 v2, s%d, v1" % sT0)
    a("v_lshlrev_b32 v2, 1, v2")
    a("s_lshl_b32 s%d, s%d, 1" % (sT1, sCH))
    a("v_mov_b32 v3, s%d" % sT1)
    a("s_waitcnt lgkmcnt(0)")
    P = [[20, 21, 22, 23, 24, 25], [120, 121, 122, 123, 124, 125]]
    a.vm("global_load_ushort v26, v3, s[30:31]", "param")
    for it in range(2):
        for i in range(6):
            a.vm("global_load_ushort v%d, v2, s[%d:%d] offset:%d" % (P[it][i], 18 + 2 * i, 19 + 2 * i, it * 128), "param")
    a.vm("global_load_ushort v160, v3, s[60:61]", "param")
    a("s_setprio %d" % int(os.environ.get("KPRIO", "2")))
    a("s_barrier")
    srd(a, SWS, 14, WS_SIZE)
    TLW = ENV("TLW", 0)
    if TLW:
        a("v_bfe_u32 v4, v1, 2, 1"); a("v_mul_u32_u24 v4, 56, v4"); a("v_and_b32 v5, 3, v1"); a("v_add_u32 v4, v4, v5")
        a("s_mul_i32 s%d, s%d, 112" % (sT0, sR)); a("s_lshl_b32 s%d, s%d, 2" % (sT1, sF)); a("s_add_u32 s%d, s%d, s%d" % (sT0, sT0, sT1))
        a("v_add_u32 v4, s%d, v4" % sT0); a("v_lshlrev_b32 v4, 12, v4")
        a("s_lshl_b32 s%d, s%d, %d" % (sT0, sR, 6 + FSH)); a("s_add_u32 s%d, s%d, %d" % (sT0, sT0, WS_HF + 7 * 256))
        a("v_writelane_b32 v4, s%d, 8" % sT0)
        a("s_add_u32 s%d, s%d, %d" % (sT0, sT0, 32 << FSH))
        a("v_writelane_b32 v4, s%d, 9" % sT0)
        a("s_cmp_eq_u32 s%d, 1" % sKW); a("s_cselect_b32 exec_lo, 0x3ff, 0"); a("s_mov_b32 exec_hi, 0")
        a.vm("buffer_load_dword v174, v4, s[%d:%d], 0 offen" % (SWS, SWS + 3), "tw")
        a("s_mov_b64 exec, -1")
    if TLW >= 2:
        a("s_mul_i32 s%d, s%d, %d" % (sT0, sRT2, 64 * 896)); a("s_lshl_b32 s%d, s%d, 7" % (sT1, sCT)); a("s_add_u32 s%d, s%d, s%d" % (sT0, sT0, sT1))
        a("v_mul_u32_u24 v5, %d, v1" % (4 * 896)); a("v_add_u32 v5, s%d, v5" % sT0)
        a("s_cmp_eq_u32 s%d, 2" % sKW); a("s_cselect_b32 exec_lo, 0xffff, 0"); a("s_mov_b32 exec_hi, 0")
        a.vm("global_load_dword v174, v5, s[10:11]", "tw")
        a("s_mov_b64 exec, -1")
    a("s_mul_i32 s%d, s%d, %d" % (sSTG, sKW, STG_W))
    a("s_add_u32 s%d, s%d, %d" % (sSTG, sSTG, L_STG))
    a("v_and_b32 v7, 15, v1")
    a("v_lshrrev_b32 v6, 4, v1")
    a("v_mul_u32_u24 v5, 272, v7")
    a("v_lshl_add_u32 v8, v6, 4, s%d" % sSTG)
    a("v_add_u32 v5, v5, v8")
    maps = [[0,1,2,3,4,5,6,7, 8,8,9,10,10,10,11,12],
            [0,0,0,1,1,1,2,2, 3,3,3,4,4,4,5,5],
            [6,6,6,6,6,7,7,7, 8,8,8,8,8,9,9,9],
            [10,10,10,10,10,11,11,11, 12,12,12,12,12,13,13,13]]
    XA = [12, 13, 14, 15]
    a("v_lshlrev_b32 v9, 2, v7")
    a("v_and_b32 v9, 31, v9")
    a("v_cmp_gt_u32 vcc, 8, v7")
    for t in range(4):
        lo = sum(maps[t][i] << (4 * i) for i in range(8)); hi = sum(maps[t][8 + i] << (4 * i) for i in range(8))
        a("v_mov_b32 v10, 0x%x" % hi); a("v_mov_b32 v11, 0x%x" % lo)
        a("v_cndmask_b32 v10, v10, v11, vcc")
        a("v_lshrrev_b32 v10, v9, v10")
        a("v_and_b32 v10, 15, v10")
        a("v_mul_u32_u24 v10, 272, v10")
        a("v_add_u32 v%d, v10, v8" % XA[t])
    D = lambda t, yt: 128 + 8 * t + 4 * yt
    TRIM = ENV("TRIM", 1)
    if not TRIM:
        for r in range(128, 160): a("v_mov_b32 v%d, 0" % r)
    a("s_add_u32 s%d, s%d, %d" % (sT0, sKW, L_SYNC)); a("v_mov_b32 v161, s%d" % sT0)
    a("s_xor_b32 s%d, s%d, 1" % (sT1, sKW)); a("s_add_u32 s%d, s%d, %d" % (sT1, sT1, L_SYNC)); a("v_mov_b32 v162, s%d" % sT1)
    a("v_mov_b32 v163, 1")
    srd(a, SDBG, 12, 256)
    a("s_and_b32 s%d, s2, 7" % sT0); a("s_lshl_b32 s%d, s%d, 13" % (sT0, sT0)); a("s_add_u32 s%d, s%d, %d" % (sT0, sT0, WS_PF))
    a("v_and_b32 v112, 31, v1"); a("v_lshl_add_u32 v112, v112, 8, s%d" % sT0)
    a("v_mov_b32 v113, 64")
    a("v_mov_b32 v114, %d" % (L_SYNC + Y_RDA))
    a("s_cmp_lg_u32 s%d, 0" % sKW)
    a("s_cselect_b32 s%d, 0, 1" % sPM)
    def setf(off):
        a("s_mov_b64 exec, 1")
        a("ds_write_b8 v161, v163 offset:%d" % off)
        a("s_mov_b64 exec, -1")
    def waitp(off, tmp=164, tmpa=165):
        a("v_add_u32 v%d, %d, v162" % (tmpa, off))
        spin_lds(tmpa, tmp, 1)
    hooks = {}
    kc = [0]
    def k(t):
        a(t); kc[0] += 1
        if kc[0] in hooks: hooks.pop(kc[0])()
    if NSTA:
        srd(a, SWD, 8, 1792 * 896)
        a("v_lshrrev_b32 v16, 3, v1")
        a("s_mul_i32 s%d, s%d, %d" % (sT0, sKW, 448 * 896))
        a("v_mul_u32_u24 v16, 896, v16")
        a("s_lshl_b32 s%d, s%d, 7" % (sT1, sCT)); a("s_add_u32 s%d, s%d, s%d" % (sT0, sT0, sT1))
        a("v_add_u32 v16, s%d, v16" % sT0)
        a("v_bfe_u32 v18, v1, 4, 1"); a("v_xor_b32 v17, v1, v18"); a("v_and_b32 v17, 7, v17")
        a("v_lshl_add_u32 v170, v17, 4, v16")
    def st_ld(n):
        s_ = 14 - NSTA + n // 4; q = n % 4
        a("s_mov_b32 s%d, %d" % (sOW, ((2 * (s_ % 7) + s_ // 7) * 32 + 8 * q) * 896))
        a("buffer_load_dwordx4 %s, v%d, s[%d:%d], s%d offen" % (vr(176 + 4 * n, 4), 170, SWD, SWD + 3, sOW))
    SP0 = ENV("SP0", 500); SPD = ENV("SPD", 20)
    if SP0 >= 0:
        for n in range(4 * NSTA): hooks[SP0 + SPD * n] = lambda n=n: (st_ld(n), nst.append(n))
    nst = []
    a("v_lshlrev_b32 v172, 4, v1")
    a("s_cmp_lg_u32 s15, 0"); a("s_cselect_b32 s%d, 31, 30" % sT0); a("s_lshl_b32 s%d, s%d, 2" % (sT0, sT0)); a("v_mov_b32 v173, s%d" % sT0)
    def u_poll():
        a("s_cmp_lg_u32 s%d, 0" % sPM); a("s_cselect_b32 exec_lo, -1, 0"); a("s_mov_b32 exec_hi, 0")
        a("buffer_load_dword v169, v112, s[%d:%d], 0 offen sc1" % (SWS, SWS + 3))
        a("s_mov_b64 exec, -1")
        del nst[:]
    def u_dma():
        a("s_mul_i32 s%d, s%d, %d" % (sOW, sCH, XST))
        a("s_add_u32 s%d, s%d, %d" % (sOW, sOW, WS_XNT))
        for c in range(2):
            a("s_mov_b32 m0, %d" % (L_CV + c * CV_CH + O_U + 480))
            if c: a("s_add_u32 s%d, s%d, %d" % (sOW, sOW, XST))
            for q in range(4): a("buffer_load_dwordx4 v172, s[%d:%d], s%d offen offset:%d lds" % (SWS, SWS + 3, sOW, q * 1024))
        a("s_mov_b32 m0, %d" % (L_SYNC + Y_U))
        a("s_mov_b64 exec, 1")
        a("global_load_lds_dword v173, s[0:1]")
        a("s_mov_b64 exec, -1")
        a("s_mov_b32 s%d, 0" % sPM)
    def u_try():
        l = L("UT")
        a("s_cmp_eq_u32 s%d, 0" % sPM)
        a("s_cbranch_scc1 %s" % l)
        a.begin_opt()
        a("s_waitcnt vmcnt(%d)" % len(nst))
        a("v_cmp_ne_u32 vcc, s%d, v169" % sNON)
        a("s_cmp_lg_u32 vcc_lo, 0")
        a("s_cbranch_scc1 %s" % l)
        u_dma()
        a("s_mov_b32 m0, s%d" % sSTG)
        a.end_opt()
        a.label(l)
        a("s_nop 0")
    for p_ in os.environ.get("UP", "821").split(","):
        hooks[int(p_)] = u_poll; hooks[int(p_) + ENV("UD", 106)] = u_try
    def nonce_pub():
        ln2 = L("NF")
        a("s_cmp_eq_u32 s%d, 0" % sPM)
        a("s_cbranch_scc1 %s" % ln2)
        a.begin_opt()
        get_nonce(a, L, 113, 116, pre=True)
        a("s_mov_b64 exec, 1")
        a("ds_write_b64 v114, v[116:117] offset:%d" % (Y_NON - Y_RDA))
        a("s_mov_b64 exec, -1")
        a.end_opt()
        a.label(ln2)
    def pf_wd():
        srd(a, SWD, 8, 1792 * 896)
        a("s_lshr_b32 s%d, s2, 3" % sT0); a("s_sub_u32 s%d, s%d, 4" % (sT0, sT0)); a("s_lshl_b32 s%d, s%d, 2" % (sT0, sT0)); a("s_add_u32 s%d, s%d, s%d" % (sT0, sT0, sKW))
        a("s_mul_i32 s%d, s%d, %d" % (sT0, sT0, 112 * 128))
        a("v_lshlrev_b32 v200, 7, v1")
        a("s_add_u32 s%d, s%d, %d" % (sT1, sT0, 48 * 128))
        a("buffer_load_dword v201, v200, s[%d:%d], s%d offen" % (SWD, SWD + 3, sT0))
        a("buffer_load_dword v202, v200, s[%d:%d], s%d offen" % (SWD, SWD + 3, sT1))
    PFW = ENV("PFW", -1)
    GB, FB = (171, 175) if TRIM else (6, 7)
    if TRIM:
        a("v_lshl_add_u32 v18, v1, 4, s%d" % sSTG)
        a("s_xor_b32 s%d, s%d, 1" % (sT0, sKW)); a("s_mul_i32 s%d, s%d, %d" % (sT0, sT0, STG_W)); a("s_add_u32 s%d, s%d, %d" % (sT0, sT0, L_STG))
        a("v_lshl_add_u32 v19, v1, 4, s%d" % sT0)
        a("v_and_b32 v10, v6, v7"); a("v_and_b32 v10, s%d, v10" % sHF)
        a("v_cmp_ne_u32 s[16:17], 0, v10")
        a("v_lshrrev_b32 v10, 1, v6"); a("v_lshlrev_b32 v10, 9, v10")
        a("v_lshl_add_u32 v10, v7, 4, v10")
        a("v_and_b32 v11, 1, v6"); a("v_lshl_add_u32 v10, v11, 3, v10")
        a("s_add_u32 s%d, s%d, %d" % (sT0, sCVB, 4088 - 1024 - 256))
        a("s_lshl_b32 s%d, s%d, 11" % (sT2, sHF))
        a("s_sub_u32 s%d, s%d, s%d" % (sT0, sT0, sT2))
        a("v_sub_u32 v115, s%d, v10" % sT0)
        a("v_and_b32 v118, 3, v1"); a("v_add_u32 v118, %d, v118" % (L_SYNC + Y_CNT))
        a("v_lshlrev_b32 v4, 4, v1")
        for r in range(60, 64): a("v_mov_b32 v%d, 0" % r)
        a("v_add_u32 v119, %d, v4" % O_U)
        a("v_bfe_u32 v10, v1, 2, 2")
        a("v_mul_u32_u24 v10, %d, v10" % CPS)
        a("v_and_b32 v11, 3, v1")
        a("v_lshl_add_u32 v10, v11, 4, v10")
        a("v_add_u32 v10, 4096, v10")
        a("v_cmp_gt_u32 vcc, 32, v1")
        a("v_cndmask_b32 v119, v10, v119, vcc")
        a("v_add_u32 v119, s%d, v119" % sCVB)
        a("v_sub_u32 v10, 3, v7"); a("v_and_b32 v10, 3, v10")
        a("v_mul_u32_u24 v171, %d, v10" % CPS)
        a("v_add_u32 v11, v7, v10")
        a("v_sub_u32 v11, %d, v11" % (2031 - 16 * 126))
        a("v_lshl_add_u32 v11, v6, 3, v11")
        a("v_lshl_add_u32 v171, v11, 1, v171")
        a("s_lshl_b32 s%d, s%d, 8" % (sT0, sHF))
        a("s_sub_u32 s%d, s%d, s%d" % (sT1, sCVB, sT0))
        a("v_add_u32 v171, s%d, v171" % sT1)
        a("v_lshlrev_b32 v175, 5, v7")
        a("v_lshl_add_u32 v175, v6, 4, v175")
        a("v_add_u32 v175, %d, v175" % O_U)
        a("v_add_u32 v175, s%d, v175" % sT1)
        a("s_add_u32 s%d, s%d, s%d" % (sT3, sCVB, sT2))
        a("v_add_u32 v168, s%d, v4" % sT3)
        a("s_and_b32 s%d, s%d, 2" % (sT0, sKW)); a("s_lshl_b32 s%d, s%d, 2" % (sT0, sT0)); a("s_add_u32 s%d, s%d, %d" % (sT0, sT0, L_SYNC + Y_KEXP))
        a("v_mov_b32 v9, s%d" % sT0)
    a.wait_vm("param")
    if TRIM: a("v_mov_b32 v2, v7"); a("v_mov_b32 v3, v6")
    if PFW == 0: pf_wd()
    sk_("param")
    a("s_mov_b32 exec_lo, s%d" % sPM); a("s_mov_b32 exec_hi, 0")
    a("buffer_load_dwordx2 v[116:117], v113, s[%d:%d], 0 offen sc1" % (SDBG, SDBG + 3))
    a("s_mov_b64 exec, -1")
    if "nokgen" in EXP: nonce_pub()
    for it in range(2):
        for r in P[it]: k("v_lshlrev_b32 v%d, 16, v%d" % (r, r))
    k("v_lshlrev_b32 v26, 16, v26")
    k("v_mul_f32 v26, %s, v26" % fbits(LOG2E))
    k("v_exp_f32 v26, v26")
    k("v_cvt_pk_bf16_f32 v26, v26, v26")
    k("v_lshlrev_b32 v26, 16, v26")
    WR = [28, 126]
    for it in range(2):
        p = P[it]
        k("v_mul_f32 v%d, v26, v%d" % (p[0], p[0])); k("v_mul_f32 v%d, v26, v%d" % (p[1], p[1]))
        k("v_mul_f32 v%d, v26, v%d" % (p[2], p[2])); k("v_mul_f32 v%d, v26, v%d" % (p[3], p[3]))
        w = WR[it]
        k("v_mul_f32 v%d, v%d, v%d" % (w, p[4], p[2])); k("v_fma_f32 v%d, -v%d, v%d, v%d" % (w, p[5], p[3], w))
        k("v_mul_f32 v%d, v%d, v%d" % (w + 1, p[4], p[3])); k("v_fma_f32 v%d, v%d, v%d, v%d" % (w + 1, p[5], p[2], w + 1))
    k("v_max_f32 v27, abs(v28), abs(v29)")
    k("v_max3_f32 v27, abs(v126), abs(v127), v27")
    for sh in (1, 2, 4, 8):
        k("v_max_f32_dpp v27, v27, v27 row_shr:%d row_mask:0xf bank_mask:0xf" % sh)
    k("v_max_f32_dpp v27, v27, v27 row_bcast:15 row_mask:0xa bank_mask:0xf")
    k("v_max_f32_dpp v27, v27, v27 row_bcast:31 row_mask:0xc bank_mask:0xf")
    k("v_readlane_b32 s%d, v27, 63" % sINV)
    k("s_lshr_b32 s%d, s%d, 23" % (sINV, sINV))
    if TRIM: k("s_add_u32 s%d, s%d, 1" % (sINV, sINV))
    else:
        k("s_sub_u32 s%d, 254, s%d" % (sSC, sINV))
        k("s_lshl_b32 s%d, s%d, 23" % (sSC, sSC))
    k("v_mov_b32 v10, s%d" % sINV)
    k("s_lshl_b32 s%d, s%d, 2" % (sT1, sKW))
    k("s_add_u32 s%d, s%d, %d" % (sT1, sT1, L_SYNC + Y_KEXP))
    k("v_mov_b32 v11, s%d" % sT1)
    k("ds_write_b32 v11, v10")
    def wscale():
        for w in WR:
            k("v_mul_f32 v%d, s%d, v%d" % (w, sSC, w)); k("v_mul_f32 v%d, s%d, v%d" % (w + 1, sSC, w + 1))
    def common_scale():
        l1, l2, l3 = L("KS"), L("KS"), L("KS")
        a("s_mov_b32 s%d, %d" % (sCNT, SPIN))
        a("s_waitcnt lgkmcnt(15)")
        a("s_branch %s" % l3)
        a.label(l1)
        a("ds_read_b64 v[10:11], v9")
        a("s_waitcnt lgkmcnt(0)")
        a.label(l3)
        a("v_readfirstlane_b32 s%d, v10" % sT0); a("v_readfirstlane_b32 s%d, v11" % sT1)
        a("s_min_u32 s%d, s%d, s%d" % (sSC, sT0, sT1))
        a("s_cmp_lg_u32 s%d, 0" % sSC)
        a("s_cbranch_scc1 %s" % l2)
        a("s_sub_u32 s%d, s%d, 1" % (sCNT, sCNT)); a("s_cmp_lg_u32 s%d, 0" % sCNT)
        a("s_cbranch_scc1 %s" % l1)
        a.label(l2)
        a("s_max_u32 s%d, s%d, s%d" % (sINV, sT0, sT1))
        a("s_sub_u32 s%d, 255, s%d" % (sSC, sINV)); a("s_lshl_b32 s%d, s%d, 23" % (sSC, sSC))
        a("s_sub_u32 s%d, s%d, 1" % (sINV, sINV)); a("s_lshl_b32 s%d, s%d, 23" % (sINV, sINV))
        wscale()
    if not TRIM: wscale()
    k("s_mov_b32 m0, s%d" % sSTG)
    E1, E8, E256, E2, E4, E16 = 30, 32, 34, 36, 38, 40
    tmpi = [0]
    def cmul(d, x, y):
        t = 42 + (tmpi[0] & 3); tmpi[0] += 1
        assert d != y
        k("v_mul_f32 v%d, v%d, v%d" % (t, x, y + 1))
        k("v_mul_f32 v%d, v%d, v%d" % (d, x, y))
        k("v_fma_f32 v%d, -v%d, v%d, v%d" % (d, x + 1, y + 1, d))
        k("v_fma_f32 v%d, v%d, v%d, v%d" % (d + 1, x + 1, y, t))
    PK = [46, 47, 48, 49]; pki = [0]
    def put(row, r, negim=False):
        p = PK[pki[0] & 3]; pki[0] += 1
        k("v_cvt_pk_f16_f32 v%d, v%d, %sv%d" % (p, r, "-" if negim else "", r + 1))
        if "nokw" in EXP or ("halfkw" in EXP and (pki[0] & 1)): k("; skip"); return
        k("ds_write_addtid_b32 v%d offset:%d" % (p, row * 272))
    YF = [64, 80]; XFB = 96
    for it in range(2 if "nokgen" not in EXP else 0):
        are, aim = P[it][0], P[it][1]
        if it == 1 and PFW == 1: pf_wd()
        X0 = WR[it]
        def cexp(d, Lx):
            k("v_mul_f32 v16, %s, v%d" % (fbits(Lx * LOG2E), are))
            k("v_mul_f32 v17, %s, v%d" % (fbits(Lx / (2 * math.pi)), aim))
            k("v_exp_f32 v16, v16")
            k("v_fract_f32 v17, v17")
            k("v_cos_f32 v%d, v17" % d)
            k("v_sin_f32 v%d, v17" % (d + 1))
            k("v_mul_f32 v%d, v16, v%d" % (d, d))
            k("v_mul_f32 v%d, v16, v%d" % (d + 1, d + 1))
        cexp(E8, 8); cexp(E1, 1); cexp(E256, 256)
        cmul(E16, E8, E8); cmul(E2, E1, E1); cmul(E4, E2, E2)
        Ya, Yb = 50, 52
        k("v_mov_b32 v50, 1.0"); k("v_mov_b32 v51, 0")
        put(0, Ya); put(1, E8)
        cmul(Yb, E8, E16)
        put(2, E16); put(3, Yb)
        cmul(Ya, E16, E16)
        for j in range(4, 32, 2):
            cmul(Yb, Yb, E16)
            put(j & 15, Ya); put((j + 1) & 15, Yb)
            if j + 2 < 32: cmul(Ya, Ya, E16)
            if TRIM and it == 0 and j == ENV("KSJ", 12): k("ds_read_b64 v[10:11], v9")
            if j == 14:
                for ks in range(4): k("ds_read_b128 %s, v5 offset:%d" % (vr(YF[0] + 4 * ks, 4), ks * 64))
        for ks in range(4): k("ds_read_b128 %s, v5 offset:%d" % (vr(YF[1] + 4 * ks, 4), ks * 64))
        Xa, Xb, Xc = 54, 56, 58
        if it == 0 and TRIM: common_scale()
        if it == 0: nonce_pub()
        put(0, X0, True)
        cmul(Xa, X0, E1); cmul(Xb, X0, E256)
        put(1, Xa, True); put(8, Xb, True)
        cmul(Xc, Xb, E2)
        for r in range(2, 8):
            cmul(Xa, Xa, E1); put(r, Xa, True)
            if r <= 5:
                put(9 + (r - 2), Xc, True)
                if r < 5: cmul(Xc, Xc, E2)
        def xtile(t):
            for ks in range(4): k("ds_read_b128 %s, v%d offset:%d" % (vr(XFB + 4 * ks, 4), XA[t], ks * 64))
        def xmfma(t):
            for ks in range(4):
                for yt in range(2):
                    k("v_mfma_f32_16x16x32_f16 %s, %s, %s, %s" % (vr(D(t, yt), 4), vr(XFB + 4 * ks, 4), vr(YF[yt] + 4 * ks, 4), "0" if TRIM and it == 0 and ks == 0 else vr(D(t, yt), 4)))
        xtile(0)
        for b in range(2):
            cmul(Xb, Xb, E256); put(3 * b, Xb, True)
            cmul(Xc, Xb, E4); put(3 * b + 1, Xc, True)
            cmul(Xa, Xb, E8); put(3 * b + 2, Xa, True)
        k("s_waitcnt lgkmcnt(6)")
        xmfma(0)
        xtile(1)
        for b in range(4):
            cmul(Xb, Xb, E256); put(6 + 2 * b, Xb, True)
            cmul(Xa, Xb, E8); put(7 + 2 * b, Xa, True)
        k("s_waitcnt lgkmcnt(8)")
        xmfma(1)
        for t in (2, 3):
            xtile(t)
            k("s_waitcnt lgkmcnt(0)")
            xmfma(t)
    if ENV("VERB", 0): print("kgen instrs", kc[0])
    if "nokgen" in EXP:
        for kk_ in sorted(hooks): hooks[kk_]()
        hooks.clear()
    assert not hooks
    sk_("kgen")
    a("s_setprio %d" % ENV("XPRIO", 2))
    u_poll()
    if TRIM:
        x1, x2 = L("X"), L("X")
        a("s_cmp_lg_u32 s%d, 0" % sHF)
        a("s_cbranch_scc1 %s" % x1)
        a.begin_opt()
        for i in range(4): a("ds_write_b128 v18, %s offset:%d" % (vr(144 + 4 * i, 4), i * 1024))
        setf(Y_KX)
        waitp(Y_KX)
        for i in range(4): a("ds_read_b128 %s, v19 offset:%d" % (vr(144 + 4 * i, 4), i * 1024))
        a("s_branch %s" % x2)
        a.end_opt()
        a.label(x1)
        a.begin_opt()
        for i in range(4): a("ds_write_b128 v18, %s offset:%d" % (vr(128 + 4 * i, 4), i * 1024))
        setf(Y_KX)
        waitp(Y_KX)
        for i in range(4): a("ds_read_b128 %s, v19 offset:%d" % (vr(128 + 4 * i, 4), i * 1024))
        a.end_opt()
        a.label(x2)
        a("ds_read_u8 v164, v118 offset:%d" % Y_RD)
        a("s_lshl_b32 s%d, s%d, 11" % (sT2, sHF))
        a("s_add_u32 s%d, s%d, s%d" % (sT3, sCVB, sT2))
        for i in range(4):
            b = 128 + 4 * i
            a("s_waitcnt lgkmcnt(%d)" % (4 - i))
            for e in range(4): a("v_add_f32 v%d, v%d, v%d" % (b + e, b + e, b + 16 + e))
            a("v_cndmask_b32 v%d, v%d, v%d, s[16:17]" % (b, b, b + 1))
            a("v_cvt_pk_f16_f32 v%d, v%d, v%d" % (64 + 2 * i, b + 3, b + 2))
            a("v_cvt_pk_f16_f32 v%d, v%d, v%d" % (65 + 2 * i, b + 1, b))
        xs = L("XS")
        a("s_waitcnt lgkmcnt(0)")
        a("v_cmp_gt_u32 vcc, 10, v164")
        a("s_cbranch_vccz %s" % xs)
        a.begin_opt()
        spin_lds(118, 164, 10, slp=4, off=Y_RD)
        a.end_opt()
        a.label(xs)
        for tl in range(2):
            for yt in range(2):
                a("ds_write_b64 v115, %s offset:%d" % (vr(64 + 4 * tl + 2 * yt, 2), (1 - tl) * 1024 + (1 - yt) * 256))
        a("s_setprio %d" % int(os.environ.get("CPRIO", "2")))
        a("s_cmp_lg_u32 s%d, 0" % sHF)
        a("s_cselect_b32 exec_lo, 0, 0x3fffffff"); a("s_cselect_b32 exec_hi, 0, 0xffff")
        a("ds_write_b128 v119, v[60:63]")
        setf(Y_C0)
        a("v_mov_b32 v5, v168")
    else:
        a("v_lshl_add_u32 v18, v1, 4, s%d" % sSTG)
        a("s_xor_b32 s%d, s%d, 1" % (sT0, sKW))
        a("s_mul_i32 s%d, s%d, %d" % (sT0, sT0, STG_W))
        a("s_add_u32 s%d, s%d, %d" % (sT0, sT0, L_STG))
        a("v_lshl_add_u32 v19, v1, 4, s%d" % sT0)
        x1, x2 = L("X"), L("X")
        a("s_cmp_lg_u32 s%d, 0" % sHF)
        a("s_cbranch_scc1 %s" % x1)
        a.begin_opt()
        for i in range(4): a("ds_write_b128 v18, %s offset:%d" % (vr(144 + 4 * i, 4), i * 1024))
        a("s_branch %s" % x2)
        a.end_opt()
        a.label(x1)
        a.begin_opt()
        for i in range(4): a("ds_write_b128 v18, %s offset:%d" % (vr(128 + 4 * i, 4), i * 1024))
        for i in range(16): a("v_mov_b32 v%d, v%d" % (128 + i, 144 + i))
        a.end_opt()
        a.label(x2)
        setf(Y_KX)
        waitp(Y_KX)
        a("s_and_b32 s%d, s%d, 2" % (sT0, sKW))
        a("s_lshl_b32 s%d, s%d, 2" % (sT0, sT0))
        a("s_add_u32 s%d, s%d, %d" % (sT0, sT0, L_SYNC + Y_KEXP))
        a("v_mov_b32 v10, s%d" % sT0)
        a("ds_read_b64 v[10:11], v10")
        for i in range(4): a("ds_read_b128 %s, v19 offset:%d" % (vr(144 + 4 * i, 4), i * 1024))
        a("s_waitcnt lgkmcnt(4)")
        a("v_max_u32 v16, v10, v11")
        a("v_add_u32 v17, v10, v11"); a("v_subrev_u32 v17, s%d, v17" % sINV)
        def fac(dst, esrc):
            a("v_sub_u32 v%d, %s, v16" % (dst, esrc))
            a("v_add_u32 v%d, 127, v%d" % (dst, dst))
            a("v_max_i32 v%d, 0, v%d" % (dst, dst))
            a("v_lshlrev_b32 v%d, 23, v%d" % (dst, dst))
        fac(20, "s%d" % sINV); fac(22, "v17")
        a("v_lshlrev_b32 v9, 23, v16")
        a("s_waitcnt lgkmcnt(0)")
        for i in range(16):
            a("v_mul_f32 v%d, v20, v%d" % (128 + i, 128 + i))
            a("v_fmac_f32 v%d, v22, v%d" % (128 + i, 144 + i))
        a("v_and_b32 v10, v6, v7"); a("v_and_b32 v10, s%d, v10" % sHF)
        a("v_cmp_ne_u32 vcc, 0, v10")
        for i in range(4): a("v_cndmask_b32 v%d, v%d, v%d, vcc" % (128 + 4 * i, 128 + 4 * i, 129 + 4 * i))
        a("v_lshrrev_b32 v10, 1, v6"); a("v_lshlrev_b32 v10, 9, v10")
        a("v_lshl_add_u32 v10, v7, 4, v10")
        a("v_and_b32 v11, 1, v6"); a("v_lshl_add_u32 v10, v11, 3, v10")
        a("s_add_u32 s%d, s%d, %d" % (sT0, sCVB, 4088 - 1024 - 256))
        a("s_lshl_b32 s%d, s%d, 11" % (sT2, sHF))
        a("s_sub_u32 s%d, s%d, s%d" % (sT0, sT0, sT2))
        a("v_sub_u32 v10, s%d, v10" % sT0)
        for tl in range(2):
            for yt in range(2):
                b = 128 + 8 * tl + 4 * yt
                a("v_cvt_pk_f16_f32 v%d, v%d, v%d" % (64 + 4 * tl + 2 * yt, b + 3, b + 2))
                a("v_cvt_pk_f16_f32 v%d, v%d, v%d" % (65 + 4 * tl + 2 * yt, b + 1, b))
        a("v_and_b32 v11, 3, v1"); a("v_add_u32 v11, %d, v11" % (L_SYNC + Y_CNT))
        spin_lds(11, 164, 10, slp=4, off=Y_RD)
        for tl in range(2):
            for yt in range(2):
                a("ds_write_b64 v10, %s offset:%d" % (vr(64 + 4 * tl + 2 * yt, 2), (1 - tl) * 1024 + (1 - yt) * 256))
        if "dbgk" in EXP:
            a("s_mul_i32 s%d, s%d, %d" % (sT0, sCH, KSTRIDE)); a("s_sub_u32 s%d, s%d, s%d" % (sT0, sT0, sCVB)); a("s_add_u32 s%d, s%d, %d" % (sT0, sT0, WS_KREV))
            for tl in range(2):
                for yt in range(2):
                    a("buffer_store_dwordx2 %s, v10, s[%d:%d], s%d offen offset:%d" % (vr(64 + 4 * tl + 2 * yt, 2), SWS, SWS + 3, sT0, (1 - tl) * 1024 + (1 - yt) * 256))
            a("s_lshl_b32 s%d, s%d, 2" % (sT0, sCH)); a("s_add_u32 s%d, s%d, %d" % (sT0, sT0, WS_KSC)); a("v_mov_b32 v11, s%d" % sT0)
            a("buffer_store_dword v9, v11, s[%d:%d], 0 offen" % (SWS, SWS + 3))
        a("s_setprio %d" % int(os.environ.get("CPRIO", "2")))
        a("v_mov_b32 v2, v7"); a("v_mov_b32 v3, v6")
        a("v_lshlrev_b32 v4, 4, v1")
        a("v_mov_b32 v12, 0"); a("v_mov_b32 v13, 0"); a("v_mov_b32 v14, 0"); a("v_mov_b32 v15, 0")
        a("v_add_u32 v5, %d, v4" % O_U)
        a("v_bfe_u32 v6, v1, 2, 2")
        a("v_mul_u32_u24 v6, %d, v6" % CPS)
        a("v_and_b32 v7, 3, v1")
        a("v_lshl_add_u32 v6, v7, 4, v6")
        a("v_add_u32 v6, 4096, v6")
        a("v_cmp_gt_u32 vcc, 32, v1")
        a("v_cndmask_b32 v5, v6, v5, vcc")
        a("v_add_u32 v5, s%d, v5" % sCVB)
        nz = L("NZ")
        a("s_cmp_lg_u32 s%d, 0" % sHF)
        a("s_cbranch_scc1 %s" % nz)
        a.begin_opt()
        a("s_mov_b32 exec_lo, 0x3fffffff"); a("s_mov_b32 exec_hi, 0xffff")
        a("ds_write_b128 v5, v[12:15]")
        a("s_mov_b64 exec, -1")
        a.end_opt()
        a.label(nz)
        setf(Y_C0)
        a("v_sub_u32 v5, 3, v2"); a("v_and_b32 v5, 3, v5")
        a("v_mul_u32_u24 v6, %d, v5" % CPS)
        a("v_add_u32 v7, v2, v5")
        a("v_sub_u32 v7, %d, v7" % (2031 - 16 * 126))
        a("v_lshl_add_u32 v7, v3, 3, v7")
        a("v_lshl_add_u32 v6, v7, 1, v6")
        a("s_lshl_b32 s%d, s%d, 8" % (sT0, sHF))
        a("s_sub_u32 s%d, s%d, s%d" % (sT1, sCVB, sT0))
        a("v_add_u32 v6, s%d, v6" % sT1)
        a("v_lshlrev_b32 v7, 5, v2")
        a("v_lshl_add_u32 v7, v3, 4, v7")
        a("v_add_u32 v7, %d, v7" % O_U)
        a("v_add_u32 v7, s%d, v7" % sT1)
        a("s_add_u32 s%d, s%d, s%d" % (sT3, sCVB, sT2))
        a("v_add_u32 v5, s%d, v4" % sT3)
    lq, lq2, lq3 = L("PB"), L("PB"), L("PB")
    a("s_cmp_eq_u32 s%d, 0" % sPM)
    a("s_cbranch_scc1 %s" % lq3)
    a.begin_opt()
    a("s_mov_b32 s%d, %d" % (sOX, SPIN))
    a.label(lq)
    a("s_waitcnt vmcnt(0)")
    a("v_cmp_ne_u32 vcc, s%d, v169" % sNON)
    a("s_cmp_eq_u32 vcc_lo, 0")
    a("s_cbranch_scc1 %s" % lq2)
    a("s_sleep %d" % int(os.environ.get("PSL", "8")))
    a("s_mov_b32 exec_hi, 0")
    a("buffer_load_dword v169, v112, s[%d:%d], 0 offen sc1" % (SWS, SWS + 3))
    a("s_mov_b64 exec, -1")
    a("s_sub_u32 s%d, s%d, 1" % (sOX, sOX)); a("s_cmp_lg_u32 s%d, 0" % sOX)
    a("s_cbranch_scc1 %s" % lq)
    a.label(lq2)
    u_dma()
    a.end_opt()
    a.label(lq3)
    sk_("rdyB")
    waitp(Y_C0)
    for it in range(2):
        b = 32 + 8 * it
        a("ds_read_b128 %s, v5 offset:%d" % (vr(b, 4), it * 1024))
        a("ds_read_b64 %s, v5 offset:%d" % (vr(b + 4, 2), it * 1024 + 16))
    for it in range(2):
        b = 32 + 8 * it
        a("s_waitcnt lgkmcnt(%d)" % (2 if it == 0 else 3))
        d = [b + i for i in range(6)]
        c1, c2, c3 = 64 + 12 * it, 68 + 12 * it, 72 + 12 * it
        for i in range(4):
            a("v_alignbit_b32 v%d, v%d, v%d, 16" % (c1 + i, d[i + 1], d[i]))
            a("v_mov_b32 v%d, v%d" % (c2 + i, d[i + 1]))
            a("v_alignbit_b32 v%d, v%d, v%d, 16" % (c3 + i, d[i + 2], d[i + 1]))
        a("ds_write_b128 v5, %s offset:%d" % (vr(c1, 4), CPS + it * 1024))
        a("ds_write_b128 v5, %s offset:%d" % (vr(c2, 4), 2 * CPS + it * 1024))
        a("ds_write_b128 v5, %s offset:%d" % (vr(c3, 4), 3 * CPS + it * 1024))
    sk_("copies")
    CA = 16; G = 64; F = 96
    if not TRIM:
        for r in range(CA, CA + 32): a("v_mov_b32 v%d, 0" % r)
    setf(Y_BL)
    spin_lds(114, 164, 1, width="b32", slp=1, off=Y_U - Y_RDA)
    a("ds_read_b64 v[166:167], v114 offset:%d" % (Y_NON - Y_RDA))
    waitp(Y_BL)
    sk_("built")
    if YP == 3 and "nopp" not in EXP:
        a("v_mov_b32 v174, v112")
        a("s_mov_b32 exec_hi, 0")
        a("buffer_load_dword v169, v174, s[%d:%d], 0 offen offset:128 sc1" % (SWS, SWS + 3))
        a("s_mov_b64 exec, -1")
    a("s_setprio %d" % ENV("MPRIO", 1))
    def rg(ri, q):
        o = 32 * (126 - 16 * q - 2 * ri)
        a("ds_read_b64 %s, v%d offset:%d" % (vr(G + 4 * q, 2), GB, o))
        a("ds_read_b64 %s, v%d offset:%d" % (vr(G + 4 * q + 2, 2), GB, o + 8))
    def rf(ri, j):
        a("ds_read_b128 %s, v%d offset:%d" % (vr(F + 4 * j, 4), FB, 32 * (16 * j - 2 * ri + 14)))
    side = []
    S = side.append
    S("v_lshlrev_b32 v8, 16, v160")
    XW, XO = 128, 136
    for i in range(4):
        for pr in range(2):
            xw = XW + 2 * i + pr; o = XO + 4 * i + 2 * pr
            S("v_cvt_f32_f16 v%d, v%d" % (o, xw))
            S("v_lshrrev_b32 v%d, 16, v%d" % (o + 1, xw)); S("v_cvt_f32_f16 v%d, v%d" % (o + 1, o + 1))
            S("v_mul_f32 v%d, v8, v%d" % (o, o)); S("v_mul_f32 v%d, v8, v%d" % (o + 1, o + 1))
            S("v_cvt_pk_bf16_f32 v%d, v%d, v%d" % (o, o, o + 1))
            S("v_and_b32 v%d, 0xffff0000, v%d" % (o + 1, o)); S("v_lshlrev_b32 v%d, 16, v%d" % (o, o))
    S("v_lshl_add_u32 v5, v1, 4, s%d" % sSTG)
    S("s_xor_b32 s%d, s%d, 1" % (sT0, sKW))
    S("s_mul_i32 s%d, s%d, %d" % (sT0, sT0, STG_W))
    S("s_add_u32 s%d, s%d, %d" % (sT0, sT0, L_STG))
    S("v_lshl_add_u32 v152, v1, 4, s%d" % sT0)
    S("v_and_b32 v13, 1, v3"); S("v_lshlrev_b32 v13, 9, v13")
    S("v_lshrrev_b32 v14, 2, v2"); S("v_lshl_add_u32 v13, v14, 7, v13")
    S("v_lshrrev_b32 v14, 1, v3"); S("v_lshl_add_u32 v13, v14, 6, v13")
    S("v_and_b32 v14, 3, v2"); S("v_lshl_add_u32 v13, v14, 4, v13")
    S("v_add_u32 v13, s%d, v13" % sT2)
    S("s_and_b32 s%d, s%d, 0xfffe" % (sT0, sCH)); S("s_add_u32 s%d, s%d, s%d" % (sT0, sT0, sHF)); S("s_lshl_b32 s%d, s%d, 8" % (sT0, sT0))
    S("s_and_b32 s%d, s%d, 1" % (sT1, sCH)); S("s_lshl_b32 s%d, s%d, 3" % (sT1, sT1))
    S("s_add_u32 s%d, s%d, s%d" % (sT0, sT0, sT1))
    S("s_add_u32 s%d, s%d, %d" % (sT0, sT0, WS_CF))
    S("v_mov_b32 v14, s%d" % sT0)
    S("v_readfirstlane_b32 s%d, v166" % sNON); S("v_readfirstlane_b32 s%d, v167" % (sNON + 1))
    S("s_lshl_b32 s%d, s%d, 14" % (sT0, sCT))
    S("s_lshl_b32 s%d, s%d, 12" % (sT1, sKW))
    S("s_add_u32 s%d, s%d, s%d" % (sT0, sT0, sT1))
    S("s_lshr_b32 s%d, s%d, 4" % (sT1, sRT2)); S("s_lshl_b32 s%d, s%d, 8" % (sT1, sT1))
    S("s_add_u32 s%d, s%d, s%d" % (sT0, sT0, sT1))
    S("s_add_u32 s%d, s%d, %d" % (sT0, sT0, WS_CF))
    S("v_lshrrev_b32 v153, 1, v2"); S("v_lshl_add_u32 v153, v153, 9, s%d" % sT0)
    S("v_and_b32 v154, 1, v2"); S("v_lshl_add_u32 v153, v154, 3, v153")
    S("s_lshl_b32 s%d, s%d, 4" % (sT0, sKW))
    S("v_lshrrev_b32 v154, 3, v1")
    S("v_add_u32 v154, s%d, v154" % sT0)
    S("s_lshl_b32 s%d, s%d, 6" % (sT0, sCT))
    S("v_add_u32 v154, s%d, v154" % sT0)
    S("v_mul_u32_u24 v154, %d, v154" % YST)
    S("v_and_b32 v155, 7, v1")
    S("v_lshl_add_u32 v154, v155, 4, v154")
    S("s_lshl_b32 s%d, s%d, 7" % (sT2, sRT2))
    S("s_add_u32 s%d, s%d, %d" % (sT2, sT2, WS_YAT))
    S("s_add_u32 s%d, s%d, %d" % (sT3, sT2, 8 * YST))
    S("s_mul_i32 s%d, s%d, %d" % (sT0, sCH, YST))
    S("s_add_u32 s%d, s%d, %d" % (sT0, sT0, WS_YAT))
    S("v_add_u32 v165, %d, v162" % Y_CX)
    if NSTA:
        S("s_lshl_b32 s%d, s%d, 13" % (sOX, sHF)); S("s_add_u32 s%d, s%d, s%d" % (sOX, sOX, sCVB)); S("v_lshl_add_u32 v157, v1, 4, s%d" % sOX)
        if SP0 < 0:
            side2 = []
            for n in range(4 * NSTA): side2.append(n)
    def copy_part(part):
        for n in range(4 * NSTA):
            s_ = 14 - NSTA + n // 4; q = n % 4
            if (s_ >= 12) != (part == 1): continue
            if s_ >= 12: ad, of = 157, (s_ - 12) * 4096
            elif WDS[s_ % 6] >= 65536: ad, of = 158, WDS[s_ % 6] - 65536
            else: ad, of = 156, WDS[s_ % 6]
            a("ds_write_b128 v%d, %s offset:%d" % (ad, vr(176 + 4 * n, 4), of + q * 1024))
            cw = ENV("CW%d" % part, part + 1)
            if cw >= 100: a("s_sleep %d" % (cw - 100))
            elif cw:
                for _ in range(cw): a("s_nop 7")
        a("v_mov_b32 v159, %d" % (part + 1))
        a("s_mov_b64 exec, 1")
        a("ds_write_b8 v161, v159 offset:%d" % Y_WS)
        a("s_mov_b64 exec, -1")
    def copy_out():
        l = L("CA")
        a("s_cmp_lg_u32 s%d, 0" % sLD)
        a("s_cbranch_scc1 %s" % l)
        copy_part(0)
        a.label(l)
        copy_part(1)
    def copy_try():
        l = L("CA")
        a("v_cmp_gt_u32 vcc, 1, v164")
        a("s_cmp_lg_u32 s%d, 0" % sLD)
        a("s_cbranch_scc1 %s" % l)
        a("s_cbranch_vccnz %s" % l)
        a.begin_opt()
        a("s_waitcnt vmcnt(0)")
        a("s_mov_b32 s%d, 1" % sLD)
        copy_part(0)
        a.end_opt()
        a.label(l)
    CTRY = [int(x) for x in os.environ.get("CTRY", "9").split(",")]
    a("s_mov_b32 s%d, 0" % sLD)
    a("s_lshl_b32 s%d, s%d, 12" % (sOX, sKW)); a("v_lshl_add_u32 v156, v1, 4, s%d" % sOX); a("v_add_u32 v158, 65536, v156")
    a("v_lshlrev_b32 v13, 5, v2")
    a("v_lshl_add_u32 v13, v3, 3, v13")
    a("s_add_u32 s%d, s%d, %d" % (sT1, sT3, O_U + 480))
    a("v_add_u32 v14, s%d, v13" % sT1)
    for i in range(4): a("ds_read_b64 %s, v14 offset:%d" % (vr(XW + 2 * i, 2), i * 512))
    for q in range(8): rg(0, q); rf(0, 7 - q)
    nm = 0
    if "noconv" in EXP:
        a("s_waitcnt lgkmcnt(0)")
        while side: a(side.pop(0))
    EC = ENV("EC", 0); ECR = ENV("ECR", 2); ECS = ENV("ECS", 5); ECN = ENV("ECN", 1)
    ecq = []
    def ec_start():
        a("v_cmp_le_u32 s[86:87], 1, v164")
        a("v_mov_b32 v159, 1")
        a("s_and_b32 s%d, s86, 1" % sLD)
        a("s_waitcnt vmcnt(%d)" % (1 if YP == 3 else 0))
        for n in range(0, 12, ECN):
            ecq.append(["s_mov_b64 exec, s[86:87]"])
            for n_ in range(n, n + ECN):
                s_ = 9 + n_ // 4; hi = WDS[s_ % 6] >= 65536
                ecq[-1].append("ds_write_b128 v%d, %s offset:%d" % ((156, 158)[hi], vr(176 + 4 * n_, 4), WDS[s_ % 6] - 65536 * hi + (n_ % 4) * 1024))
            if n + ECN >= 12: ecq[-1] += ["s_mov_b32 exec_lo, s%d" % sLD, "s_mov_b32 exec_hi, 0", "ds_write_b8 v161, v159 offset:%d" % Y_WS]
            ecq[-1].append("s_mov_b64 exec, -1")
    for ri in range(4 if "noconv" not in EXP else 0):
        for q in range(8):
            for m in range(7, q - 1, -1):
                if q == 0:
                    a("s_waitcnt lgkmcnt(%d)" % min(15, 3 * m))
                a("v_mfma_f32_16x16x32_f16 %s, %s, %s, %s" % (vr(CA + 4 * m, 4), vr(G + 4 * q, 4), vr(F + 4 * (m - q), 4), "0" if TRIM and ri == 0 and q == 0 else vr(CA + 4 * m, 4)))
                nm += 1
                if NSTA and SP0 < 0 and side2 and nm % ENV("SPM", 4) == 0: st_ld(side2.pop(0))
                if nm > 8 and side:
                    a(side.pop(0))
                    while side and side[0].startswith("s_"): a(side.pop(0))
                if ecq and nm % ECS == 0:
                    for x in ecq.pop(0): a(x)
            if q == 0 and ri in CTRY: copy_try()
            if EC and q == 0 and ri == ECR: ec_start()
            if q == 7 and (ri + 1 in CTRY or (EC and ri + 1 == ECR)): a("ds_read_u8 v164, v161 offset:%d" % Y_TR)
            if ri + 1 < 4: rg(ri + 1, q); rf(ri + 1, 7 - q)
    assert not side and not ecq
    sk_("mfma")
    a("s_setprio %d" % ENV("PPRIO", 3))
    x1, x2 = L("X"), L("X")
    a("s_cmp_lg_u32 s%d, 0" % sHF)
    a("s_cbranch_scc1 %s" % x1)
    a.begin_opt()
    for i in range(4): a("ds_write_b128 v5, %s offset:%d" % (vr(CA + 16 + 4 * i, 4), i * 1024))
    a("s_mov_b64 exec, 1")
    a("ds_write_b8 v161, v163 offset:%d" % Y_CX)
    a("s_mov_b64 exec, -1")
    a("s_branch %s" % x2)
    a.end_opt()
    a.label(x1)
    a.begin_opt()
    for i in range(4): a("ds_write_b128 v5, %s offset:%d" % (vr(CA + 4 * i, 4), i * 1024))
    a("s_mov_b64 exec, 1")
    a("ds_write_b8 v161, v163 offset:%d" % Y_CX)
    a("s_mov_b64 exec, -1")
    for i in range(16): a("v_mov_b32 v%d, v%d" % (CA + i, CA + 16 + i))
    a.end_opt()
    a.label(x2)
    if YP == 3 and "nopp" not in EXP:
        lq, lq2 = L("PP"), L("PP")
        a("s_mov_b32 s%d, %d" % (sOX, SPIN))
        a.label(lq)
        a("s_waitcnt vmcnt(0)")
        a("v_cmp_ne_u32 vcc, s%d, v169" % sNON)
        a("s_cmp_eq_u32 vcc_lo, 0")
        a("s_cbranch_scc1 %s" % lq2)
        a("s_sleep 4")
        a("s_mov_b32 exec_hi, 0")
        a("buffer_load_dword v169, v174, s[%d:%d], 0 offen offset:128 sc1" % (SWS, SWS + 3))
        a("s_mov_b64 exec, -1")
        a("s_sub_u32 s%d, s%d, 1" % (sOX, sOX)); a("s_cmp_lg_u32 s%d, 0" % sOX)
        a("s_cbranch_scc1 %s" % lq)
        a.label(lq2)
    spin_lds(165, 164, 1, slp=0)
    if "hx" in EXP: sk_("xch")
    for i in range(4): a("ds_read_b128 %s, v152 offset:%d" % (vr(CA + 16 + 4 * i, 4), i * 1024))
    for i in range(4):
        a("s_waitcnt lgkmcnt(%d)" % (3 - i))
        for pr in range(2):
            y = CA + 4 * i + 2 * pr; o = XO + 4 * i + 2 * pr
            a("v_add_f32 v%d, v%d, v%d" % (y, y, y + 16)); a("v_add_f32 v%d, v%d, v%d" % (y + 1, y + 1, y + 17))
            ks_ = "s%d" % sINV if TRIM else "v9"
            a("v_mul_f32 v%d, %s, v%d" % (y, ks_, y)); a("v_mul_f32 v%d, %s, v%d" % (y + 1, ks_, y + 1))
            a("v_cvt_pk_bf16_f32 v%d, v%d, v%d" % (y, y, y + 1))
            a("v_and_b32 v%d, 0xffff0000, v%d" % (y + 1, y)); a("v_lshlrev_b32 v%d, 16, v%d" % (y, y))
            a("v_add_f32 v%d, v%d, v%d" % (y, y, o)); a("v_add_f32 v%d, v%d, v%d" % (y + 1, y + 1, o + 1))
            a("v_cvt_pk_bf16_f32 v%d, v%d, v%d" % (72 + 2 * i + pr, y, y + 1))
        if i & 1:
            b = 72 + 4 * (i >> 1)
            a("v_permlane16_swap_b32 v%d, v%d" % (b, b + 2)); a("v_permlane16_swap_b32 v%d, v%d" % (b + 1, b + 3))
            a("buffer_store_dwordx4 %s, v13, s[%d:%d], s%d offen offset:%d sc1" % (vr(b, 4), SWS, SWS + 3, sT0, (i >> 1) * 1024))
    setf(Y_XR)
    if "hx" in EXP: sk_("yst")
    def cflag():
        if YP: return
        a("s_waitcnt vmcnt(0)")
        a("s_mov_b64 exec, 1")
        a("buffer_store_dwordx2 v[166:167], v14, s[%d:%d], 0 offen sc1" % (SWS, SWS + 3))
        a("s_mov_b64 exec, -1")
    def yld(m=True):
        if m: a("s_mov_b64 exec, s[84:85]")
        a("buffer_load_dwordx4 v[104:107], v154, s[%d:%d], s%d offen sc1" % (SWS, SWS + 3, sT2))
        if m: a("s_mov_b64 exec, s[86:87]")
        a("buffer_load_dwordx4 v[108:111], v154, s[%d:%d], s%d offen sc1" % (SWS, SWS + 3, sT3))
        if m: a("s_mov_b64 exec, -1")
    if EC:
        assert YP
        c1 = L("CO")
        a("s_setprio %d" % ENV("QPRIO", 0))
        a("s_cmp_lg_u32 s%d, 0" % sLD)
        a("s_cbranch_scc1 %s" % c1)
        a.begin_opt()
        spin_lds(161, 164, 1, slp=1, off=Y_TR)
        copy_part(0)
        a.end_opt()
        a.label(c1)
        sk_("flag")
        if ENV("CSA", 0): a("s_sleep %d" % ENV("CSA", 0))
        if ENV("YE", 1): yld(False)
        copy_part(1)
        lp, ld, le = L("CP"), L("CP"), L("CP")
        a("s_mov_b32 s%d, %d" % (sOX, SPIN))
        if ENV("YE", 1): a("s_branch %s" % le)
        else: a("s_mov_b64 s[84:85], -1"); a("s_mov_b64 s[86:87], -1")
        a.label(lp)
        yld()
        a.label(le)
        a("s_waitcnt vmcnt(0)")
        a("v_cmp_eq_u32 s[84:85], -1, v104")
        a("v_cmp_eq_u32 s[86:87], -1, v108")
        a("s_or_b64 vcc, s[84:85], s[86:87]")
        a("s_cbranch_scc0 %s" % ld)
        a("s_sleep %d" % int(os.environ.get("CSL", "4")))
        a("s_sub_u32 s%d, s%d, 1" % (sOX, sOX)); a("s_cmp_lg_u32 s%d, 0" % sOX)
        a("s_cbranch_scc1 %s" % lp)
        a.label(ld)
        sk_("polled")
        waitp(Y_XR)
        a("ds_write_b128 v5, v[104:107]")
        a("ds_write_b128 v5, v[108:111] offset:1024")
        setf(Y_YA)
        a("s_waitcnt lgkmcnt(0)")
        sk_("end")
        sk_.store(100)
        a("s_endpgm")
        return
    if ENV("COA", 2) == 1:
        cflag()
        sk_("flag")
        spin_lds(161, 164, 1, slp=1, off=Y_TR)
        copy_out()
    elif ENV("COA", 2) == 2:
        a("ds_read_u8 v164, v161 offset:%d" % Y_TR)
        a("s_waitcnt vmcnt(2) lgkmcnt(0)")
        c1 = L("CO")
        a("v_cmp_gt_u32 vcc, 1, v164")
        a("s_cbranch_vccnz %s" % c1)
        a.begin_opt()
        a("s_mov_b32 s%d, 1" % sLD)
        copy_part(0)
        a.end_opt()
        a.label(c1)
        cflag()
        sk_("flag")
        spin_lds(161, 164, 1, slp=1, off=Y_TR)
        copy_out()
    elif NSTA:
        c1, c2 = L("CO"), L("CO")
        a("ds_read_u8 v164, v161 offset:%d" % Y_TR)
        a("s_waitcnt vmcnt(2) lgkmcnt(0)")
        a("v_cmp_gt_u32 vcc, 1, v164")
        a("s_cbranch_vccnz %s" % c1)
        a.begin_opt()
        copy_out(); cflag()
        a("s_branch %s" % c2)
        a.end_opt()
        a.label(c1)
        a.begin_opt()
        cflag()
        spin_lds(161, 164, 1, slp=1, off=Y_TR)
        copy_out()
        a.end_opt()
        a.label(c2)
    else: cflag()
    if not ENV("COA", 2): sk_("flag")
    a("s_setprio 0")
    a("s_sleep %d" % int(os.environ.get("CSL0", "8")))
    lp, ld = L("CP"), L("CP")
    a("s_mov_b32 s%d, %d" % (sOX, SPIN))
    if YP:
        assert YST == 4096
        a("s_mov_b64 s[84:85], -1"); a("s_mov_b64 s[86:87], -1")
        a.label(lp)
        a("s_mov_b64 exec, s[84:85]")
        a("buffer_load_dwordx4 v[104:107], v154, s[%d:%d], s%d offen sc1" % (SWS, SWS + 3, sT2))
        a("s_mov_b64 exec, s[86:87]")
        a("buffer_load_dwordx4 v[108:111], v154, s[%d:%d], s%d offen sc1" % (SWS, SWS + 3, sT3))
        a("s_mov_b64 exec, -1")
        a("s_waitcnt vmcnt(0)")
        a("v_cmp_eq_u32 s[84:85], -1, v104")
        a("v_cmp_eq_u32 s[86:87], -1, v108")
        a("s_or_b64 vcc, s[84:85], s[86:87]")
        a("s_cbranch_scc0 %s" % ld)
        a("s_sleep %d" % int(os.environ.get("CSL", "4")))
        a("s_sub_u32 s%d, s%d, 1" % (sOX, sOX)); a("s_cmp_lg_u32 s%d, 0" % sOX)
        a("s_cbranch_scc1 %s" % lp)
        a.label(ld)
        sk_("polled")
        waitp(Y_XR)
        a("ds_write_b128 v5, v[104:107]")
        a("ds_write_b128 v5, v[108:111] offset:1024")
        setf(Y_YA)
        a("s_waitcnt lgkmcnt(0)")
        sk_("end")
        sk_.store(100)
        a("s_endpgm")
        return
    a.label(lp)
    a("s_mov_b64 exec, 0xffff")
    a("buffer_load_dwordx2 v[20:21], v153, s[%d:%d], 0 offen sc1" % (SWS, SWS + 3))
    a("s_waitcnt vmcnt(0)")
    a("v_cmp_ne_u64 vcc, s[%d:%d], v[20:21]" % (sNON, sNON + 1))
    a("s_mov_b64 exec, -1")
    a("s_cbranch_vccz %s" % ld)
    a("s_sleep %d" % int(os.environ.get("CSL", "4")))
    a("s_sub_u32 s%d, s%d, 1" % (sOX, sOX)); a("s_cmp_lg_u32 s%d, 0" % sOX)
    a("s_cbranch_scc1 %s" % lp)
    a.label(ld)
    sk_("polled")
    a("buffer_load_dwordx4 v[104:107], v154, s[%d:%d], s%d offen" % (SWS, SWS + 3, sT2))
    a("buffer_load_dwordx4 v[108:111], v154, s[%d:%d], s%d offen" % (SWS, SWS + 3, sT3))
    waitp(Y_XR)
    a("s_waitcnt vmcnt(0)")
    a("ds_write_b128 v5, v[104:107]")
    a("ds_write_b128 v5, v[108:111] offset:1024")
    setf(Y_YA)
    a("s_waitcnt lgkmcnt(0)")
    sk_("end")
    sk_.store(100)
    a("s_endpgm")

def producer(a, sp_, L, spin_lds):
    a.label("K_PROD")
    a.vmq = []
    a.nopkw = True
    XT_S = 912
    L_PC = 64 * XT_S
    a("v_lshrrev_b32 v2, 3, v1")
    a("v_and_b32 v3, 7, v1")
    a("s_lshr_b32 s%d, s2, 3" % sT1)
    a("s_bfe_u32 s%d, s2, 0x20001" % sT0); a("s_lshl_b32 s%d, s%d, 3" % (sR, sT0)); a("s_lshl_b32 s%d, s%d, 1" % (sT1, sT1))
    a("s_add_u32 s%d, s%d, s%d" % (sR, sR, sT1)); a("s_and_b32 s%d, s2, 1" % sT0); a("s_add_u32 s%d, s%d, s%d" % (sR, sR, sT0))
    a("s_lshr_b32 s%d, s2, 1" % sF); a("s_min_u32 s%d, s%d, 13" % (sF, sF)); a("s_mul_i32 s%d, s%d, 14" % (sT0, sT0)); a("s_add_u32 s%d, s%d, s%d" % (sF, sF, sT0))
    a("s_lshl_b32 s%d, s%d, 3" % (sT0, sWV))
    a("v_add_u32 v4, s%d, v2" % sT0)
    a("s_lshl_b32 s%d, s%d, 6" % (sT1, sR))
    a("v_add_u32 v5, s%d, v4" % sT1)
    a("v_mul_u32_u24 v6, 896, v5")
    a("v_lshl_add_u32 v6, v3, 4, v6")
    a("s_waitcnt lgkmcnt(0)")
    srd(a, SX, 16, 2048 * 896)
    for i in range(7):
        a.vm("buffer_load_dwordx4 %s, v6, s[%d:%d], 0 offen offset:%d" % (vr(32 + 4 * i, 4), SX, SX + 3, i * 128), "x%d" % i)
    srd(a, SWS, 14, WS_SIZE)
    srd(a, SDBG, 12, 256)
    def poison():
        a("s_lshl_b32 s%d, s2, 3" % sT0); a("s_add_u32 s%d, s%d, s%d" % (sT0, sT0, sWV)); a("s_mul_i32 s%d, s%d, 7168" % (sT0, sT0))
        a("s_add_u32 s%d, s%d, %d" % (sT0, sT0, WS_YAT)); a("s_add_u32 s%d, s%d, 4096" % (sT1, sT0))
        a("v_lshlrev_b32 v140, 4, v1")
        for r in range(136, 140): a("v_mov_b32 v%d, -1" % r)
        for i in range(7):
            a.vm("buffer_store_dwordx4 v[136:139], v140, s[%d:%d], s%d offen offset:%d sc1" % (SWS, SWS + 3, (sT0, sT1)[i >> 2], (i & 3) * 1024), "poi")
    ln = L("NN")
    a("s_or_b32 s%d, s2, s%d" % (sT0, sWV))
    a("s_cbranch_scc1 %s" % ln)
    a.begin_opt()
    a("s_memrealtime s[%d:%d]" % (sNON, sNON + 1))
    a("s_waitcnt lgkmcnt(0)")
    a("s_or_b32 s%d, s%d, 0x40000000" % (sNON + 1, sNON + 1)); a("s_or_b32 s%d, s%d, 1" % (sNON, sNON))
    a("v_mov_b32 v12, s%d" % sNON); a("v_mov_b32 v13, s%d" % (sNON + 1)); a("v_mov_b32 v14, 64")
    a("s_mov_b64 exec, 1")
    a("buffer_store_dwordx2 v[12:13], v14, s[%d:%d], 0 offen sc1" % (SDBG, SDBG + 3))
    a("s_mov_b64 exec, -1")
    a.end_opt()
    a.label(ln)
    if YP == 1: poison()
    a("s_lshr_b32 s%d, s%d, 1" % (sT1, sWV))
    a("s_mul_i32 s%d, s%d, %d" % (sT1, sT1, 112 * 3584))
    a("s_lshl_b32 s%d, s%d, 7" % (sT2, sF))
    a("s_add_u32 s%d, s%d, s%d" % (sT1, sT1, sT2))
    a("v_mul_u32_u24 v9, 3584, v2")
    a("v_lshl_add_u32 v9, v3, 4, v9")
    a("v_add_u32 v9, s%d, v9" % sT1)
    a("s_bitcmp0_b32 s%d, 0" % sWV)
    a("s_cselect_b32 s%d, s32, s34" % SWG)
    a("s_cselect_b32 s%d, s33, s35" % (SWG + 1))
    a("s_and_b32 s%d, s%d, 0xffff" % (SWG + 1, SWG + 1))
    a("s_mov_b32 s%d, 0x%x" % (SWG + 2, 448 * 3584))
    a("s_mov_b32 s%d, 0x00020000" % (SWG + 3))
    wq = list(range(14))
    def ldw(n):
        for _ in range(n):
            if not wq: return
            i = wq.pop(0)
            a("s_mov_b32 s%d, %d" % (sOW, i * 8 * 3584))
            a.vm("buffer_load_dwordx4 %s, v9, s[%d:%d], s%d offen" % (vr(64 + 4 * i, 4), SWG, SWG + 3, sOW), "w%d" % i)
    a("s_mov_b32 s%d, 0x3f803f80" % sONES)
    a("v_mov_b32 v10, 0"); a("v_mov_b32 v11, 0"); a("v_mov_b32 v12, 0"); a("v_mov_b32 v13, 0")
    a("v_mul_u32_u24 v7, %d, v4" % XT_S)
    a("v_lshl_add_u32 v7, v3, 4, v7")
    a("v_lshlrev_b32 v8, 4, v5")
    a("s_lshl_b32 s%d, s2, 8" % sT2); a("s_add_u32 s%d, s%d, %d" % (sT2, sT2, WS_PF))
    a("v_lshl_add_u32 v28, v1, 13, s%d" % sT2)
    a("s_lshl_b32 s%d, s%d, 8" % (sT0, sR)); a("s_add_u32 s%d, s%d, %d" % (sT0, sT0, WS_FR))
    a("s_lshl_b32 s%d, s%d, 8" % (sT1, sF)); a("s_add_u32 s%d, s%d, %d" % (sT1, sT1, WS_FC))
    a("s_cmp_eq_u32 s%d, 0" % sWV); a("s_cselect_b32 s%d, s%d, s%d" % (sT0, sT0, sT1)); a("v_mov_b32 v29, s%d" % sT0)
    a("v_mov_b32 v30, 64")
    for i in range(7):
        a.wait_vm("x%d" % i)
        for r in range(4):
            a("v_dot2_f32_bf16 v%d, v%d, s%d, v%d" % (10 + 2 * (r & 1), 32 + 4 * i + r, sONES, 10 + 2 * (r & 1)))
            a("v_dot2_f32_bf16 v%d, v%d, v%d, v%d" % (11 + 2 * (r & 1), 32 + 4 * i + r, 32 + 4 * i + r, 11 + 2 * (r & 1)))
    ldw(ENV("PW0", 6))
    a("v_add_f32 v10, v10, v12"); a("v_add_f32 v11, v11, v13")
    for mod in ("quad_perm:[1,0,3,2]", "quad_perm:[2,3,0,1]", "row_half_mirror"):
        for r in (10, 11):
            a("v_add_f32_dpp v%d, v%d, v%d %s row_mask:0xf bank_mask:0xf" % (r, r, r, mod))
    c = math.sqrt(2 / math.pi); k1 = -2 * c * LOG2E; k2 = k1 * 0.044715
    a("v_mul_f32 v10, %s, v10" % fbits(1.0 / 448))
    a("v_mul_f32 v11, %s, v11" % fbits(1.0 / 448))
    a("v_fma_f32 v11, -v10, v10, v11")
    a("v_max_f32 v11, 0, v11")
    a("v_cvt_pk_bf16_f32 v10, v10, v11")
    a("v_lshlrev_b32 v12, 16, v10")
    a("v_and_b32 v11, 0xffff0000, v10")
    a("v_add_f32 v11, %s, v11" % fbits(1e-5))
    a("v_cvt_pk_bf16_f32 v11, v11, v11")
    a("v_lshlrev_b32 v11, 16, v11")
    a("v_sqrt_f32 v11, v11")
    a("v_cvt_pk_bf16_f32 v11, v11, v11")
    a("v_lshlrev_b32 v11, 16, v11")
    a("v_rcp_f32 v14, v11")
    a("v_sub_f32 v16, 0, v12")
    a("v_cvt_pk_bf16_f32 v24, v16, v16")
    a("v_mul_f32 v27, v11, v11")
    a("v_mul_f32 v25, %s, v14" % fbits(k1))
    a("v_mul_f32 v10, v14, v14"); a("v_mul_f32 v10, v10, v14")
    a("v_mul_f32 v26, %s, v10" % fbits(k2))
    a("s_mov_b32 s%d, %d" % (sT0, WS_RC))
    a("s_mov_b32 exec_lo, 0x01010101"); a("s_mov_b32 exec_hi, 0x01010101")
    a.vm("buffer_store_dwordx4 v[24:27], v8, s[%d:%d], s%d offen sc1" % (SWS, SWS + 3, sT0), "rc")
    a("s_cmp_lt_u32 s%d, 2" % sWV); a("s_cselect_b32 exec_lo, 1, 0"); a("s_mov_b32 exec_hi, 0")
    a("buffer_load_dwordx2 v[18:19], v30, s[%d:%d], 0 offen sc1" % (SDBG, SDBG + 3))
    a("s_mov_b64 exec, -1")
    sp_("stats")
    def xn_blk(i):
        for r in range(4):
            w = 32 + 4 * i + r; t = 20 + 2 * (r & 1)
            a("v_lshlrev_b32 v%d, 16, v%d" % (t, w)); a("v_and_b32 v%d, 0xffff0000, v%d" % (t + 1, w))
            a("v_pk_add_f32 %s, %s, v[16:17] op_sel_hi:[1,0]" % (vr(t, 2), vr(t, 2)))
            a("v_cvt_pk_bf16_f32 v%d, v%d, v%d" % (t, t, t + 1))
            a("v_and_b32 v%d, 0xffff0000, v%d" % (t + 1, t)); a("v_lshlrev_b32 v%d, 16, v%d" % (t, t))
            a("v_pk_mul_f32 %s, %s, v[14:15] op_sel_hi:[1,0]" % (vr(t, 2), vr(t, 2)))
            a("v_cvt_pk_bf16_f32 v%d, v%d, v%d" % (t, t, t + 1))
            a("v_and_b32 v%d, 0xffff0000, v%d" % (t + 1, t)); a("v_lshlrev_b32 v%d, 16, v%d" % (t, t))
            a("v_cvt_pk_f16_f32 v%d, v%d, v%d" % (w, t, t + 1))
        a("ds_write_b128 v7, %s offset:%d" % (vr(32 + 4 * i, 4), i * 128))
    NXA = ENV("NXA", 4)
    for i in range(NXA):
        xn_blk(i); ldw(ENV("PW1", 2))
    ldw(14)
    a("s_mov_b32 s%d, 0x3f80" % sOX); a("s_mov_b32 s%d, 0x3f800000" % sOW)
    for r in range(120, 128): a("v_mov_b32 v%d, 0" % r)
    for i in range(14):
        a.wait_vm("w%d" % i)
        for r in range(4):
            w = 64 + 4 * i + r
            a("v_dot2_f32_bf16 v%d, v%d, s%d, v%d" % (120 + 2 * r, w, sOX, 120 + 2 * r))
            a("v_dot2_f32_bf16 v%d, v%d, s%d, v%d" % (121 + 2 * r, w, sOW, 121 + 2 * r))
    for r in range(120, 128): a("v_add_f32_dpp v%d, v%d, v%d row_ror:8 row_mask:0xf bank_mask:0xf" % (r, r, r))
    for op in ("v_permlane16_swap_b32", "v_permlane32_swap_b32"):
        for r in range(8): a("v_mov_b32 v%d, v%d" % (128 + r, 120 + r))
        for r in range(8): a("%s v%d, v%d" % (op, 120 + r, 128 + r))
        for r in range(8): a("v_add_f32 v%d, v%d, v%d" % (120 + r, 120 + r, 128 + r))
    a("s_lshl_b32 s%d, s%d, 8" % (sT0, sWV))
    a("s_add_u32 s%d, s%d, %d" % (sT0, sT0, L_PC))
    a("v_lshl_add_u32 v9, v3, 5, s%d" % sT0)
    a("s_mov_b64 exec, 0xff")
    a("ds_write_b128 v9, v[120:123]"); a("ds_write_b128 v9, v[124:127] offset:16")
    a("s_mov_b64 exec, -1")
    lw = L("PA")
    a("s_cmp_gt_u32 s%d, 1" % sWV)
    a("s_cbranch_scc1 %s" % lw)
    a.begin_opt()
    get_nonce(a, L, 30, 18, pre=True)
    a("v_mov_b32 v10, s%d" % sNON)
    a.end_opt()
    a.label(lw)
    a("s_waitcnt vmcnt(0) lgkmcnt(0)"); a.vmq = []
    sp_("sum")
    a("s_barrier")
    sp_("pbar0")
    PFP = ENV("PFP", 0)
    def pf_all():
        srd(a, SWD, 8, 1792 * 896)
        a("s_lshr_b32 s%d, s2, 3" % sT0); a("s_lshl_b32 s%d, s%d, 3" % (sT0, sT0)); a("s_add_u32 s%d, s%d, s%d" % (sT0, sT0, sWV))
        a("s_mul_i32 s%d, s%d, %d" % (sT0, sT0, 392 * 128))
        a("v_lshlrev_b32 v141, 7, v1")
        for i in range(7):
            a("buffer_load_dword v%d, v141, s[%d:%d], s%d offen" % (142 + i, SWD, SWD + 3, sT0))
            if i < 6: a("s_add_u32 s%d, s%d, %d" % (sT0, sT0, 8192 if i < 5 else 1024))
    def pf_mid():
        srd(a, SWD, 8, 1792 * 896)
        lp_ = L("PF")
        a("s_cmp_gt_u32 s%d, 5" % sWV)
        a("s_cbranch_scc1 %s" % lp_)
        a.begin_opt()
        a("s_lshr_b32 s%d, s2, 3" % sT0); a("s_mul_i32 s%d, s%d, %d" % (sT0, sT0, 448 * 896))
        a("s_lshr_b32 s%d, s%d, 1" % (sT2, sWV)); a("s_lshl_b32 s%d, s%d, 2" % (sT2, sT2)); a("s_lshr_b32 s%d, 0x31c, s%d" % (sT2, sT2)); a("s_and_b32 s%d, s%d, 15" % (sT2, sT2))
        a("s_lshl_b32 s%d, s%d, 1" % (sT2, sT2)); a("s_and_b32 s%d, s%d, 1" % (sT3, sWV)); a("s_add_u32 s%d, s%d, s%d" % (sT2, sT2, sT3))
        a("s_mul_i32 s%d, s%d, %d" % (sT2, sT2, 16 * 896)); a("s_add_u32 s%d, s%d, s%d" % (sT0, sT0, sT2))
        a("s_add_u32 s%d, s%d, %d" % (sT2, sT0, 48 * 128))
        a("v_lshlrev_b32 v141, 7, v1")
        a("buffer_load_dword v142, v141, s[%d:%d], s%d offen" % (SWD, SWD + 3, sT0))
        a("buffer_load_dword v143, v141, s[%d:%d], s%d offen" % (SWD, SWD + 3, sT2))
        a.end_opt()
        a.label(lp_)
    if PFP == 2:
        lp_ = L("PF")
        a("s_cmp_lt_u32 s%d, 2" % sWV)
        a("s_cbranch_scc1 %s" % lp_)
        a.begin_opt()
        pf_all()
        a.end_opt()
        a.label(lp_)
    la = L("PA")
    a("s_cmp_lg_u32 s%d, 1" % sWV)
    a("s_cbranch_scc1 %s" % la)
    a.begin_opt()
    a("v_lshlrev_b32 v9, 2, v1")
    a("v_add_u32 v20, %d, v9" % L_PC)
    for i in range(8): a("ds_read_b32 v%d, v20 offset:%d" % (120 + i, i * 256))
    a("s_lshl_b32 s%d, s%d, 9" % (sT2, sF)); a("s_add_u32 s%d, s%d, %d" % (sT0, sT2, WS_CS)); a("s_add_u32 s%d, s%d, %d" % (sT2, sT0, CSM))
    a("v_lshlrev_b32 v9, 3, v1")
    a("s_waitcnt lgkmcnt(0)")
    for m in range(2):
        c = 120 + m; o = 128 + 2 * m
        a("v_add_f32 v%d, v%d, v%d" % (c, c, c + 2)); a("v_add_f32 v%d, v%d, v%d" % (c + 4, c + 4, c + 6))
        a("v_add_f32 v%d, v%d, v%d" % (c, c, c + 4))
        a("v_cvt_pk_bf16_f32 v%d, v%d, v%d" % (c + 2, c, c)); a("v_lshlrev_b32 v%d, 16, v%d" % (c + 2, c + 2))
        a("v_sub_f32 v%d, v%d, v%d" % (c + 2, c, c + 2))
        a("v_cvt_pk_bf16_f32 v%d, v%d, v%d" % (o, c, c + 2)); a("v_and_b32 v%d, 0xffff0000, v%d" % (c + 4, o))
        a("v_sub_f32 v%d, v%d, v%d" % (c + 2, c + 2, c + 4))
        a("v_cvt_pk_bf16_f32 v%d, v%d, 0" % (o + 1, c + 2))
        a("buffer_store_dwordx2 v[%d:%d], v9, s[%d:%d], s%d offen sc1" % (o, o + 1, SWS, SWS + 3, (sT0, sT2)[m]))
    a.end_opt()
    a.label(la)
    for i in range(NXA, 7):
        xn_blk(i)
        if i == min(6, NXA + ENV("NXF", 2)):
            lb = L("PA")
            a("s_cmp_gt_u32 s%d, 1" % sWV)
            a("s_cbranch_scc1 %s" % lb)
            a.begin_opt()
            a("s_waitcnt vmcnt(0)")
            a("s_mov_b64 exec, 1")
            a("buffer_store_dword v10, v29, s[%d:%d], 0 offen sc1" % (SWS, SWS + 3))
            a("s_mov_b64 exec, -1")
            if PFP == 2: pf_all()
            a.end_opt()
            a.label(lb)
            sp_("flagC")
    a("v_lshrrev_b32 v4, 4, v1"); a("v_and_b32 v5, 15, v1")
    a("v_lshrrev_b32 v6, 2, v5"); a("v_lshl_add_u32 v6, v4, 3, v6")
    a("v_bfe_u32 v7, v5, 1, 1"); a("v_lshl_add_u32 v6, v7, 5, v6")
    a("v_mul_u32_u24 v6, %d, v6" % XT_S)
    a("v_and_b32 v7, 1, v5"); a("v_lshl_add_u32 v6, v7, 3, v6")
    a("s_lshl_b32 s%d, s%d, 4" % (sOX, sWV))
    a("v_add_u32 v6, s%d, v6" % sOX)
    a("s_mul_i32 s%d, s%d, %d" % (sOX, sWV, 7 * 1152)); a("s_add_u32 s%d, s%d, %d" % (sOX, sOX, L_PC + 2048))
    a("v_and_b32 v31, 7, v5"); a("v_mul_u32_u24 v31, 144, v31"); a("v_lshl_add_u32 v31, v4, 4, v31")
    a("v_lshrrev_b32 v5, 3, v5"); a("v_lshl_add_u32 v31, v5, 6, v31"); a("v_add_u32 v31, s%d, v31" % sOX)
    a("v_mul_u32_u24 v8, 144, v2"); a("v_lshl_add_u32 v8, v3, 4, v8"); a("v_add_u32 v8, s%d, v8" % sOX)
    a("v_mul_u32_u24 v7, %d, v2" % XST); a("v_lshl_add_u32 v7, v3, 4, v7")
    a("s_lshl_b32 s%d, s%d, 7" % (sT2, sR)); a("s_add_u32 s%d, s%d, %d" % (sT2, sT2, WS_XNT))
    a("s_mul_i32 s%d, s%d, %d" % (sT1, sWV, 8 * XST)); a("s_add_u32 s%d, s%d, s%d" % (sT1, sT1, sT2))
    if YP == 2:
        a("s_mov_b32 s%d, s%d" % (sT3, sT1)); poison(); a("s_mov_b32 s%d, s%d" % (sT1, sT3))
    a("s_waitcnt lgkmcnt(0)")
    a("s_barrier")
    sp_("pbar")
    for i in range(7):
        a("ds_read_b64_tr_b16 %s, v6 offset:%d" % (vr(32 + 4 * i, 2), i * 128))
        a("ds_read_b64_tr_b16 %s, v6 offset:%d" % (vr(34 + 4 * i, 2), i * 128 + 4 * XT_S))
    for i in range(7):
        a("s_waitcnt lgkmcnt(%d)" % 12)
        a("ds_write_b128 v31, %s offset:%d" % (vr(32 + 4 * i, 4), i * 1152))
        a("ds_read_b128 %s, v8 offset:%d" % (vr(64 + 4 * i, 4), i * 1152))
    for i in range(7):
        a("s_waitcnt lgkmcnt(%d)" % (12 - 2 * i))
        a.vm("buffer_store_dwordx4 %s, v7, s[%d:%d], s%d offen sc1" % (vr(64 + 4 * i, 4), SWS, SWS + 3, sT1), "xst")
        if i < 6: a("s_add_u32 s%d, s%d, %d" % (sT1, sT1, 64 * XST))
    sp_("st")
    a("s_waitcnt vmcnt(0)")
    a("s_barrier")
    if YP == 3:
        a("s_cmp_eq_u32 s%d, 1" % sWV); a("s_cselect_b32 exec_lo, 0xff, 0"); a("s_mov_b32 exec_hi, 0")
        a("buffer_store_dword v10, v28, s[%d:%d], 0 offen sc1" % (SWS, SWS + 3))
        a("s_mov_b64 exec, -1")
        sp_("flagB")
        if PFP == 1: pf_mid()
        if PFP == 3: pf_all()
        poison()
        a("s_waitcnt vmcnt(0)")
        a("s_barrier")
    a("s_cmp_lg_u32 s%d, 1" % sWV)
    a("s_cbranch_scc1 K_END")
    a("s_mov_b64 exec, 0xff")
    a("buffer_store_dword v10, v28, s[%d:%d], 0 offen offset:%d sc1" % (SWS, SWS + 3, 128 if YP == 3 else 0))
    a("s_mov_b64 exec, -1")
    sp_("flagB" if YP != 3 else "flagP")
    sp_.store(100)
```

```python
import math, os
from gen8 import *

XST = ENV("XST", 4096); YST = ENV("YST", 4096); YP = ENV("YP", 3)
def get_nonce(a, L, va, vd, pre=False):
    l1, l2, l3 = L("GN"), L("GN"), L("GN")
    a("s_mov_b32 s%d, %d" % (sCNT, SPIN))
    if pre: a("s_branch %s" % l3)
    a.label(l1)
    a("buffer_load_dwordx2 v[%d:%d], v%d, s[%d:%d], 0 offen sc1" % (vd, vd + 1, va, SDBG, SDBG + 3))
    a.label(l3)
    a("s_waitcnt vmcnt(0)")
    a("v_readfirstlane_b32 s%d, v%d" % (sNON, vd)); a("v_readfirstlane_b32 s%d, v%d" % (sNON + 1, vd + 1))
    a("s_cmp_lg_u32 s%d, 0" % (sNON + 1))
    a("s_cbranch_scc1 %s" % l2)
    a("s_sleep 8")
    a("s_sub_u32 s%d, s%d, 1" % (sCNT, sCNT)); a("s_cmp_lg_u32 s%d, 0" % sCNT)
    a("s_cbranch_scc1 %s" % l1)
    a.label(l2)

def helper(a, sk_, L, spin_lds):
    a.label("K_HELP")
    a.vmq = []
    a("s_setprio 3")
    a("s_load_dwordx2 s[60:61], s[0:1], 64")
    a("s_sub_u32 s%d, s%d, 4" % (sKW, sWV))
    a("s_cmp_lg_u32 s%d, 7" % sWV)
    a("s_cbranch_scc1 K_NZ")
    a.begin_opt()
    a("v_lshlrev_b32 v2, 2, v1"); a("v_add_u32 v2, %d, v2" % L_SYNC); a("v_mov_b32 v3, 0")
    a("ds_write_b32 v2, v3")
    if KT: a("v_and_b32 v2, 3, v1"); a("v_mul_u32_u24 v2, %d, v2" % FLS); a("v_add_u32 v2, %d, v2" % (L_FL + 64)); a("ds_write_b32 v2, v3")
    else: a("ds_write_b32 v2, v3 offset:512")
    a.end_opt()
    a.label("K_NZ")
    a("s_and_b32 s%d, s%d, 1" % (sHF, sKW))
    a("s_lshr_b32 s%d, s%d, 1" % (sT0, sKW))
    a("s_sub_u32 s%d, s2, 32" % sCH)
    a("s_lshl_b32 s%d, s%d, 1" % (sCH, sCH))
    a("s_add_u32 s%d, s%d, s%d" % (sCH, sCH, sT0))
    a("s_mul_i32 s%d, s%d, %d" % (sCVB, sT0, CV_CH))
    a("s_add_u32 s%d, s%d, %d" % (sCVB, sCVB, L_CV))
    a("s_lshl_b32 s%d, s%d, 8" % (sT0, sCH))
    a("s_lshl_b32 s%d, s%d, 7" % (sT1, sHF))
    a("s_add_u32 s%d, s%d, s%d" % (sT0, sT0, sT1))
    a("v_add_u32 v2, s%d, v1" % sT0)
    a("v_lshlrev_b32 v2, 1, v2")
    a("s_lshl_b32 s%d, s%d, 1" % (sT1, sCH))
    a("v_mov_b32 v3, s%d" % sT1)
    a("s_waitcnt lgkmcnt(0)")
    P = [[20, 21, 22, 23, 24, 25], [120, 121, 122, 123, 124, 125]]
    a.vm("global_load_ushort v26, v3, s[30:31]", "param")
    for it in range(2):
        for i in range(6):
            a.vm("global_load_ushort v%d, v2, s[%d:%d] offset:%d" % (P[it][i], 18 + 2 * i, 19 + 2 * i, it * 128), "param")
    a.vm("global_load_ushort v160, v3, s[60:61]", "param")
    a("s_setprio %d" % int(os.environ.get("KPRIO", "2")))
    a("s_barrier")
    srd(a, SWS, 14, WS_SIZE)
    TLW = ENV("TLW", 0)
    PFA = ENV("PFA", 0); PFB = ENV("PFB", 0); PFH = ENV("PFH", 0); PFO = ENV("PFO", 0)
    def pf_w(which, trk=True):
        vm = (lambda t: a.vm(t, "tw")) if trk else a
        a("s_sub_u32 s%d, s2, 32" % sT0); a("s_lshl_b32 s%d, s%d, 2" % (sT0, sT0)); a("s_add_u32 s%d, s%d, s%d" % (sT0, sT0, sKW))
        if which == "B":
            n = (448 - PFB) * 28 // 896
            a("s_mul_i32 s%d, s%d, %d" % (sT1, sT0, n * 128)); a("s_add_u32 s%d, s%d, %d" % (sT1, sT1, PFB * 3584))
            a("v_lshl_add_u32 v253, v1, 7, s%d" % sT1)
            a("s_mov_b64 exec, 0x%x" % ((1 << n) - 1))
            vm("global_load_dword v250, v253, s[32:33]"); vm("global_load_dword v251, v253, s[34:35]")
            a("s_mov_b64 exec, -1")
        else:
            a("s_mul_i32 s%d, s%d, 1792" % (sT1, sT0))
            a("v_lshl_add_u32 v252, v1, 7, s%d" % sT1)
            a("s_mov_b64 exec, 0x3fff")
            vm("global_load_dword v252, v252, s[8:9]")
            a("s_mov_b64 exec, -1")
    def pf_h(trk=True):
        a("s_lshl_b32 s%d, s%d, 1" % (sT0, sR)); a("s_add_u32 s%d, s%d, s%d" % (sT0, sT0, sHF)); a("s_mul_i32 s%d, s%d, 56" % (sT0, sT0))
        a("s_lshl_b32 s%d, s%d, 2" % (sT1, sF)); a("s_add_u32 s%d, s%d, s%d" % (sT0, sT0, sT1))
        a("s_and_b32 s%d, s%d, 2" % (sT1, sKW)); a("s_add_u32 s%d, s%d, s%d" % (sT0, sT0, sT1)); a("s_lshl_b32 s%d, s%d, 12" % (sT0, sT0))
        a("v_lshlrev_b32 v174, 7, v1")
        t = "buffer_load_dword v174, v174, s[%d:%d], s%d offen" % (SWS, SWS + 3, sT0)
        if trk: a.vm(t, "tw")
        else: a(t)
    def pf_o(trk=True):
        a("s_lshl_b32 s%d, s%d, 2" % (sT0, sRT2)); a("s_add_u32 s%d, s%d, s%d" % (sT0, sT0, sKW))
        a("s_mul_i32 s%d, s%d, %d" % (sT0, sT0, 16 * 896)); a("s_lshl_b32 s%d, s%d, 7" % (sT1, sCT)); a("s_add_u32 s%d, s%d, s%d" % (sT0, sT0, sT1))
        a("v_mul_u32_u24 v166, 896, v1"); a("v_add_u32 v166, s%d, v166" % sT0)
        a("s_mov_b64 exec, 0xffff")
        t = "global_load_dword v166, v166, s[10:11]"
        if trk: a.vm(t, "tw")
        else: a(t)
        a("s_mov_b64 exec, -1")
    PFBT = ENV("PFBT", 1)
    if PFB and PFBT == 1: pf_w("B")
    if PFA == 1: pf_w("A")
    if PFH == 1: pf_h()
    if PFO == 1: pf_o()
    if TLW:
        a("v_bfe_u32 v4, v1, 2, 1"); a("v_mul_u32_u24 v4, 56, v4"); a("v_and_b32 v5, 3, v1"); a("v_add_u32 v4, v4, v5")
        a("s_mul_i32 s%d, s%d, 112" % (sT0, sR)); a("s_lshl_b32 s%d, s%d, 2" % (sT1, sF)); a("s_add_u32 s%d, s%d, s%d" % (sT0, sT0, sT1))
        a("v_add_u32 v4, s%d, v4" % sT0); a("v_lshlrev_b32 v4, 12, v4")
        a("s_lshl_b32 s%d, s%d, %d" % (sT0, sR, 6 + FSH)); a("s_add_u32 s%d, s%d, %d" % (sT0, sT0, WS_HF + 7 * 256))
        a("v_writelane_b32 v4, s%d, 8" % sT0)
        a("s_add_u32 s%d, s%d, %d" % (sT0, sT0, 32 << FSH))
        a("v_writelane_b32 v4, s%d, 9" % sT0)
        a("s_cmp_eq_u32 s%d, 1" % sKW); a("s_cselect_b32 exec_lo, 0x3ff, 0"); a("s_mov_b32 exec_hi, 0")
        a.vm("buffer_load_dword v174, v4, s[%d:%d], 0 offen" % (SWS, SWS + 3), "tw")
        a("s_mov_b64 exec, -1")
    if TLW >= 2:
        a("s_mul_i32 s%d, s%d, %d" % (sT0, sRT2, 64 * 896)); a("s_lshl_b32 s%d, s%d, 7" % (sT1, sCT)); a("s_add_u32 s%d, s%d, s%d" % (sT0, sT0, sT1))
        a("v_mul_u32_u24 v5, %d, v1" % (4 * 896)); a("v_add_u32 v5, s%d, v5" % sT0)
        a("s_cmp_eq_u32 s%d, 2" % sKW); a("s_cselect_b32 exec_lo, 0xffff, 0"); a("s_mov_b32 exec_hi, 0")
        a.vm("global_load_dword v174, v5, s[10:11]", "tw")
        a("s_mov_b64 exec, -1")
    a("s_mul_i32 s%d, s%d, %d" % (sSTG, sKW, STG_W))
    a("s_add_u32 s%d, s%d, %d" % (sSTG, sSTG, L_STG))
    a("v_and_b32 v7, 15, v1")
    a("v_lshrrev_b32 v6, 4, v1")
    a("v_mul_u32_u24 v5, 272, v7")
    a("v_lshl_add_u32 v8, v6, 4, s%d" % sSTG)
    a("v_add_u32 v5, v5, v8")
    maps = [[0,1,2,3,4,5,6,7, 8,8,9,10,10,10,11,12],
            [0,0,0,1,1,1,2,2, 3,3,3,4,4,4,5,5],
            [6,6,6,6,6,7,7,7, 8,8,8,8,8,9,9,9],
            [10,10,10,10,10,11,11,11, 12,12,12,12,12,13,13,13]]
    XA = [12, 13, 14, 15]
    a("v_lshlrev_b32 v9, 2, v7")
    a("v_and_b32 v9, 31, v9")
    a("v_cmp_gt_u32 vcc, 8, v7")
    for t in range(4):
        lo = sum(maps[t][i] << (4 * i) for i in range(8)); hi = sum(maps[t][8 + i] << (4 * i) for i in range(8))
        a("v_mov_b32 v10, 0x%x" % hi); a("v_mov_b32 v11, 0x%x" % lo)
        a("v_cndmask_b32 v10, v10, v11, vcc")
        a("v_lshrrev_b32 v10, v9, v10")
        a("v_and_b32 v10, 15, v10")
        a("v_mul_u32_u24 v10, 272, v10")
        a("v_add_u32 v%d, v10, v8" % XA[t])
    D = lambda t, yt: 128 + 8 * t + 4 * yt
    TRIM = ENV("TRIM", 1)
    if not TRIM:
        for r in range(128, 160): a("v_mov_b32 v%d, 0" % r)
    a("s_add_u32 s%d, s%d, %d" % (sT0, sKW, L_SYNC)); a("v_mov_b32 v161, s%d" % sT0)
    a("s_xor_b32 s%d, s%d, 1" % (sT1, sKW)); a("s_add_u32 s%d, s%d, %d" % (sT1, sT1, L_SYNC)); a("v_mov_b32 v162, s%d" % sT1)
    a("v_mov_b32 v163, 1")
    srd(a, SDBG, 12, 256)
    a("s_and_b32 s%d, s2, 7" % sT0); a("s_lshl_b32 s%d, s%d, 13" % (sT0, sT0)); a("s_add_u32 s%d, s%d, %d" % (sT0, sT0, WS_PF))
    a("v_and_b32 v112, 31, v1"); a("v_lshl_add_u32 v112, v112, 8, s%d" % sT0)
    a("v_mov_b32 v113, 64")
    a("v_mov_b32 v114, %d" % (L_SYNC + Y_RDA))
    a("s_cmp_lg_u32 s%d, 0" % sKW)
    a("s_cselect_b32 s%d, 0, 1" % sPM)
    def setf(off):
        a("s_mov_b64 exec, 1")
        a("ds_write_b8 v161, v163 offset:%d" % off)
        a("s_mov_b64 exec, -1")
    def waitp(off, tmp=164, tmpa=165):
        a("v_add_u32 v%d, %d, v162" % (tmpa, off))
        spin_lds(tmpa, tmp, 1)
    hooks = {}
    kc = [0]
    def k(t):
        a(t); kc[0] += 1
        if kc[0] in hooks: hooks.pop(kc[0])()
    if NSTA:
        srd(a, SWD, 8, 1792 * 896)
        a("v_lshrrev_b32 v16, 3, v1")
        a("s_mul_i32 s%d, s%d, %d" % (sT0, sKW, 448 * 896))
        a("v_mul_u32_u24 v16, 896, v16")
        a("s_lshl_b32 s%d, s%d, 7" % (sT1, sCT)); a("s_add_u32 s%d, s%d, s%d" % (sT0, sT0, sT1))
        a("v_add_u32 v16, s%d, v16" % sT0)
        a("v_bfe_u32 v18, v1, 4, 1"); a("v_xor_b32 v17, v1, v18"); a("v_and_b32 v17, 7, v17")
        a("v_lshl_add_u32 v170, v17, 4, v16")
    def st_ld(n):
        s_ = 14 - NSTA + n // 4; q = n % 4
        a("s_mov_b32 s%d, %d" % (sOW, ((2 * (s_ % 7) + s_ // 7) * 32 + 8 * q) * 896))
        a("buffer_load_dwordx4 %s, v%d, s[%d:%d], s%d offen" % (vr(176 + 4 * n, 4), 170, SWD, SWD + 3, sOW))
    SP0 = ENV("SP0", 500); SPD = ENV("SPD", 20)
    if SP0 >= 0:
        for n in range(4 * NSTA): hooks[SP0 + SPD * n] = lambda n=n: (st_ld(n), nst.append(n))
    if PFA > 1: hooks[PFA] = lambda: pf_w("A", False)
    if PFB and PFBT > 1: hooks[PFBT] = lambda: pf_w("B", False)
    if PFH > 1: hooks[PFH] = lambda: pf_h(False)
    if PFO > 1: hooks[PFO] = lambda: pf_o(False)
    nst = []
    a("v_lshlrev_b32 v172, 4, v1")
    a("s_cmp_lg_u32 s15, 0"); a("s_cselect_b32 s%d, 31, 30" % sT0); a("s_lshl_b32 s%d, s%d, 2" % (sT0, sT0)); a("v_mov_b32 v173, s%d" % sT0)
    def u_poll():
        a("s_cmp_lg_u32 s%d, 0" % sPM); a("s_cselect_b32 exec_lo, -1, 0"); a("s_mov_b32 exec_hi, 0")
        a("buffer_load_dword v169, v112, s[%d:%d], 0 offen sc1" % (SWS, SWS + 3))
        a("s_mov_b64 exec, -1")
        del nst[:]
    def u_dma():
        a("s_mul_i32 s%d, s%d, %d" % (sOW, sCH, XST))
        a("s_add_u32 s%d, s%d, %d" % (sOW, sOW, WS_XNT))
        for c in range(2):
            a("s_mov_b32 m0, %d" % (L_CV + c * CV_CH + O_U + 480))
            if c: a("s_add_u32 s%d, s%d, %d" % (sOW, sOW, XST))
            for q in range(4): a("buffer_load_dwordx4 v172, s[%d:%d], s%d offen offset:%d lds" % (SWS, SWS + 3, sOW, q * 1024))
        a("s_mov_b32 m0, %d" % (L_SYNC + Y_U))
        a("s_mov_b64 exec, 1")
        a("global_load_lds_dword v173, s[0:1]")
        a("s_mov_b64 exec, -1")
        a("s_mov_b32 s%d, 0" % sPM)
    def u_try():
        l = L("UT")
        a("s_cmp_eq_u32 s%d, 0" % sPM)
        a("s_cbranch_scc1 %s" % l)
        a.begin_opt()
        a("s_waitcnt vmcnt(%d)" % len(nst))
        a("v_cmp_ne_u32 vcc, s%d, v169" % sNON)
        a("s_cmp_lg_u32 vcc_lo, 0")
        a("s_cbranch_scc1 %s" % l)
        u_dma()
        a("s_mov_b32 m0, s%d" % sSTG)
        a.end_opt()
        a.label(l)
        a("s_nop 0")
    for p_ in os.environ.get("UP", "821").split(","):
        hooks[int(p_)] = u_poll; hooks[int(p_) + ENV("UD", 106)] = u_try
    def nonce_pub():
        ln2 = L("NF")
        a("s_cmp_eq_u32 s%d, 0" % sPM)
        a("s_cbranch_scc1 %s" % ln2)
        a.begin_opt()
        get_nonce(a, L, 113, 116, pre=True)
        a("s_mov_b64 exec, 1")
        a("ds_write_b64 v114, v[116:117] offset:%d" % (Y_NON - Y_RDA))
        a("s_mov_b64 exec, -1")
        a.end_opt()
        a.label(ln2)
    def pf_wd():
        srd(a, SWD, 8, 1792 * 896)
        a("s_lshr_b32 s%d, s2, 3" % sT0); a("s_sub_u32 s%d, s%d, 4" % (sT0, sT0)); a("s_lshl_b32 s%d, s%d, 2" % (sT0, sT0)); a("s_add_u32 s%d, s%d, s%d" % (sT0, sT0, sKW))
        a("s_mul_i32 s%d, s%d, %d" % (sT0, sT0, 112 * 128))
        a("v_lshlrev_b32 v200, 7, v1")
        a("s_add_u32 s%d, s%d, %d" % (sT1, sT0, 48 * 128))
        a("buffer_load_dword v201, v200, s[%d:%d], s%d offen" % (SWD, SWD + 3, sT0))
        a("buffer_load_dword v202, v200, s[%d:%d], s%d offen" % (SWD, SWD + 3, sT1))
    PFW = ENV("PFW", -1)
    GB, FB = (171, 175) if TRIM else (6, 7)
    if TRIM:
        a("v_lshl_add_u32 v18, v1, 4, s%d" % sSTG)
        a("s_xor_b32 s%d, s%d, 1" % (sT0, sKW)); a("s_mul_i32 s%d, s%d, %d" % (sT0, sT0, STG_W)); a("s_add_u32 s%d, s%d, %d" % (sT0, sT0, L_STG))
        a("v_lshl_add_u32 v19, v1, 4, s%d" % sT0)
        a("v_and_b32 v10, v6, v7"); a("v_and_b32 v10, s%d, v10" % sHF)
        a("v_cmp_ne_u32 s[16:17], 0, v10")
        a("v_lshrrev_b32 v10, 1, v6"); a("v_lshlrev_b32 v10, 9, v10")
        a("v_lshl_add_u32 v10, v7, 4, v10")
        a("v_and_b32 v11, 1, v6"); a("v_lshl_add_u32 v10, v11, 3, v10")
        a("s_add_u32 s%d, s%d, %d" % (sT0, sCVB, 4088 - 1024 - 256))
        a("s_lshl_b32 s%d, s%d, 11" % (sT2, sHF))
        a("s_sub_u32 s%d, s%d, s%d" % (sT0, sT0, sT2))
        a("v_sub_u32 v115, s%d, v10" % sT0)
        a("v_and_b32 v118, 3, v1"); a("v_add_u32 v118, %d, v118" % (L_SYNC + Y_CNT))
        a("v_lshlrev_b32 v4, 4, v1")
        for r in range(60, 64): a("v_mov_b32 v%d, 0" % r)
        a("v_add_u32 v119, %d, v4" % O_U)
        a("v_bfe_u32 v10, v1, 2, 2")
        a("v_mul_u32_u24 v10, %d, v10" % CPS)
        a("v_and_b32 v11, 3, v1")
        a("v_lshl_add_u32 v10, v11, 4, v10")
        a("v_add_u32 v10, 4096, v10")
        a("v_cmp_gt_u32 vcc, 32, v1")
        a("v_cndmask_b32 v119, v10, v119, vcc")
        a("v_add_u32 v119, s%d, v119" % sCVB)
        a("v_sub_u32 v10, 3, v7"); a("v_and_b32 v10, 3, v10")
        a("v_mul_u32_u24 v171, %d, v10" % CPS)
        a("v_add_u32 v11, v7, v10")
        a("v_sub_u32 v11, %d, v11" % (2031 - 16 * 126))
        a("v_lshl_add_u32 v11, v6, 3, v11")
        a("v_lshl_add_u32 v171, v11, 1, v171")
        a("s_lshl_b32 s%d, s%d, 8" % (sT0, sHF))
        a("s_sub_u32 s%d, s%d, s%d" % (sT1, sCVB, sT0))
        a("v_add_u32 v171, s%d, v171" % sT1)
        a("v_lshlrev_b32 v175, 5, v7")
        a("v_lshl_add_u32 v175, v6, 4, v175")
        a("v_add_u32 v175, %d, v175" % O_U)
        a("v_add_u32 v175, s%d, v175" % sT1)
        a("s_add_u32 s%d, s%d, s%d" % (sT3, sCVB, sT2))
        a("v_add_u32 v168, s%d, v4" % sT3)
        a("s_and_b32 s%d, s%d, 2" % (sT0, sKW)); a("s_lshl_b32 s%d, s%d, 2" % (sT0, sT0)); a("s_add_u32 s%d, s%d, %d" % (sT0, sT0, L_SYNC + Y_KEXP))
        a("v_mov_b32 v9, s%d" % sT0)
    a.wait_vm("param")
    if TRIM: a("v_mov_b32 v2, v7"); a("v_mov_b32 v3, v6")
    if PFW == 0: pf_wd()
    sk_("param")
    a("s_mov_b32 exec_lo, s%d" % sPM); a("s_mov_b32 exec_hi, 0")
    a("buffer_load_dwordx2 v[116:117], v113, s[%d:%d], 0 offen sc1" % (SDBG, SDBG + 3))
    a("s_mov_b64 exec, -1")
    if "nokgen" in EXP: nonce_pub()
    for it in range(2):
        for r in P[it]: k("v_lshlrev_b32 v%d, 16, v%d" % (r, r))
    k("v_lshlrev_b32 v26, 16, v26")
    k("v_mul_f32 v26, %s, v26" % fbits(LOG2E))
    k("v_exp_f32 v26, v26")
    k("v_cvt_pk_bf16_f32 v26, v26, v26")
    k("v_lshlrev_b32 v26, 16, v26")
    WR = [28, 126]
    for it in range(2):
        p = P[it]
        k("v_mul_f32 v%d, v26, v%d" % (p[0], p[0])); k("v_mul_f32 v%d, v26, v%d" % (p[1], p[1]))
        k("v_mul_f32 v%d, v26, v%d" % (p[2], p[2])); k("v_mul_f32 v%d, v26, v%d" % (p[3], p[3]))
        w = WR[it]
        k("v_mul_f32 v%d, v%d, v%d" % (w, p[4], p[2])); k("v_fma_f32 v%d, -v%d, v%d, v%d" % (w, p[5], p[3], w))
        k("v_mul_f32 v%d, v%d, v%d" % (w + 1, p[4], p[3])); k("v_fma_f32 v%d, v%d, v%d, v%d" % (w + 1, p[5], p[2], w + 1))
    k("v_max_f32 v27, abs(v28), abs(v29)")
    k("v_max3_f32 v27, abs(v126), abs(v127), v27")
    for sh in (1, 2, 4, 8):
        k("v_max_f32_dpp v27, v27, v27 row_shr:%d row_mask:0xf bank_mask:0xf" % sh)
    k("v_max_f32_dpp v27, v27, v27 row_bcast:15 row_mask:0xa bank_mask:0xf")
    k("v_max_f32_dpp v27, v27, v27 row_bcast:31 row_mask:0xc bank_mask:0xf")
    k("v_readlane_b32 s%d, v27, 63" % sINV)
    k("s_lshr_b32 s%d, s%d, 23" % (sINV, sINV))
    if TRIM: k("s_add_u32 s%d, s%d, 1" % (sINV, sINV))
    else:
        k("s_sub_u32 s%d, 254, s%d" % (sSC, sINV))
        k("s_lshl_b32 s%d, s%d, 23" % (sSC, sSC))
    k("v_mov_b32 v10, s%d" % sINV)
    k("s_lshl_b32 s%d, s%d, 2" % (sT1, sKW))
    k("s_add_u32 s%d, s%d, %d" % (sT1, sT1, L_SYNC + Y_KEXP))
    k("v_mov_b32 v11, s%d" % sT1)
    k("ds_write_b32 v11, v10")
    def wscale():
        for w in WR:
            k("v_mul_f32 v%d, s%d, v%d" % (w, sSC, w)); k("v_mul_f32 v%d, s%d, v%d" % (w + 1, sSC, w + 1))
    def common_scale():
        l1, l2, l3 = L("KS"), L("KS"), L("KS")
        a("s_mov_b32 s%d, %d" % (sCNT, SPIN))
        a("s_waitcnt lgkmcnt(15)")
        a("s_branch %s" % l3)
        a.label(l1)
        a("ds_read_b64 v[10:11], v9")
        a("s_waitcnt lgkmcnt(0)")
        a.label(l3)
        a("v_readfirstlane_b32 s%d, v10" % sT0); a("v_readfirstlane_b32 s%d, v11" % sT1)
        a("s_min_u32 s%d, s%d, s%d" % (sSC, sT0, sT1))
        a("s_cmp_lg_u32 s%d, 0" % sSC)
        a("s_cbranch_scc1 %s" % l2)
        a("s_sub_u32 s%d, s%d, 1" % (sCNT, sCNT)); a("s_cmp_lg_u32 s%d, 0" % sCNT)
        a("s_cbranch_scc1 %s" % l1)
        a.label(l2)
        a("s_max_u32 s%d, s%d, s%d" % (sINV, sT0, sT1))
        a("s_sub_u32 s%d, 255, s%d" % (sSC, sINV)); a("s_lshl_b32 s%d, s%d, 23" % (sSC, sSC))
        a("s_sub_u32 s%d, s%d, 1" % (sINV, sINV)); a("s_lshl_b32 s%d, s%d, 23" % (sINV, sINV))
        wscale()
    if not TRIM: wscale()
    k("s_mov_b32 m0, s%d" % sSTG)
    E1, E8, E256, E2, E4, E16 = 30, 32, 34, 36, 38, 40
    tmpi = [0]
    def cmul(d, x, y):
        t = 42 + (tmpi[0] & 3); tmpi[0] += 1
        assert d != y
        k("v_mul_f32 v%d, v%d, v%d" % (t, x, y + 1))
        k("v_mul_f32 v%d, v%d, v%d" % (d, x, y))
        k("v_fma_f32 v%d, -v%d, v%d, v%d" % (d, x + 1, y + 1, d))
        k("v_fma_f32 v%d, v%d, v%d, v%d" % (d + 1, x + 1, y, t))
    PK = [46, 47, 48, 49]; pki = [0]
    def put(row, r, negim=False):
        p = PK[pki[0] & 3]; pki[0] += 1
        k("v_cvt_pk_f16_f32 v%d, v%d, %sv%d" % (p, r, "-" if negim else "", r + 1))
        if "nokw" in EXP or ("halfkw" in EXP and (pki[0] & 1)): k("; skip"); return
        k("ds_write_addtid_b32 v%d offset:%d" % (p, row * 272))
    YF = [64, 80]; XFB = 96
    for it in range(2 if "nokgen" not in EXP else 0):
        are, aim = P[it][0], P[it][1]
        if it == 1 and PFW == 1: pf_wd()
        X0 = WR[it]
        def cexp(d, Lx):
            k("v_mul_f32 v16, %s, v%d" % (fbits(Lx * LOG2E), are))
            k("v_mul_f32 v17, %s, v%d" % (fbits(Lx / (2 * math.pi)), aim))
            k("v_exp_f32 v16, v16")
            k("v_fract_f32 v17, v17")
            k("v_cos_f32 v%d, v17" % d)
            k("v_sin_f32 v%d, v17" % (d + 1))
            k("v_mul_f32 v%d, v16, v%d" % (d, d))
            k("v_mul_f32 v%d, v16, v%d" % (d + 1, d + 1))
        cexp(E8, 8); cexp(E1, 1); cexp(E256, 256)
        cmul(E16, E8, E8); cmul(E2, E1, E1); cmul(E4, E2, E2)
        Ya, Yb = 50, 52
        k("v_mov_b32 v50, 1.0"); k("v_mov_b32 v51, 0")
        put(0, Ya); put(1, E8)
        cmul(Yb, E8, E16)
        put(2, E16); put(3, Yb)
        cmul(Ya, E16, E16)
        for j in range(4, 32, 2):
            cmul(Yb, Yb, E16)
            put(j & 15, Ya); put((j + 1) & 15, Yb)
            if j + 2 < 32: cmul(Ya, Ya, E16)
            if TRIM and it == 0 and j == ENV("KSJ", 12): k("ds_read_b64 v[10:11], v9")
            if j == 14:
                for ks in range(4): k("ds_read_b128 %s, v5 offset:%d" % (vr(YF[0] + 4 * ks, 4), ks * 64))
        for ks in range(4): k("ds_read_b128 %s, v5 offset:%d" % (vr(YF[1] + 4 * ks, 4), ks * 64))
        Xa, Xb, Xc = 54, 56, 58
        if it == 0 and TRIM: common_scale()
        if it == 0: nonce_pub()
        put(0, X0, True)
        cmul(Xa, X0, E1); cmul(Xb, X0, E256)
        put(1, Xa, True); put(8, Xb, True)
        cmul(Xc, Xb, E2)
        for r in range(2, 8):
            cmul(Xa, Xa, E1); put(r, Xa, True)
            if r <= 5:
                put(9 + (r - 2), Xc, True)
                if r < 5: cmul(Xc, Xc, E2)
        def xtile(t):
            for ks in range(4): k("ds_read_b128 %s, v%d offset:%d" % (vr(XFB + 4 * ks, 4), XA[t], ks * 64))
        def xmfma(t):
            for ks in range(4):
                for yt in range(2):
                    k("v_mfma_f32_16x16x32_f16 %s, %s, %s, %s" % (vr(D(t, yt), 4), vr(XFB + 4 * ks, 4), vr(YF[yt] + 4 * ks, 4), "0" if TRIM and it == 0 and ks == 0 else vr(D(t, yt), 4)))
        xtile(0)
        for b in range(2):
            cmul(Xb, Xb, E256); put(3 * b, Xb, True)
            cmul(Xc, Xb, E4); put(3 * b + 1, Xc, True)
            cmul(Xa, Xb, E8); put(3 * b + 2, Xa, True)
        k("s_waitcnt lgkmcnt(6)")
        xmfma(0)
        xtile(1)
        for b in range(4):
            cmul(Xb, Xb, E256); put(6 + 2 * b, Xb, True)
            cmul(Xa, Xb, E8); put(7 + 2 * b, Xa, True)
        k("s_waitcnt lgkmcnt(8)")
        xmfma(1)
        for t in (2, 3):
            xtile(t)
            k("s_waitcnt lgkmcnt(0)")
            xmfma(t)
    if ENV("VERB", 0): print("kgen instrs", kc[0])
    if "nokgen" in EXP:
        for kk_ in sorted(hooks): hooks[kk_]()
        hooks.clear()
    assert not hooks
    sk_("kgen")
    a("s_setprio %d" % ENV("XPRIO", 2))
    u_poll()
    if TRIM:
        x1, x2 = L("X"), L("X")
        a("s_cmp_lg_u32 s%d, 0" % sHF)
        a("s_cbranch_scc1 %s" % x1)
        a.begin_opt()
        for i in range(4): a("ds_write_b128 v18, %s offset:%d" % (vr(144 + 4 * i, 4), i * 1024))
        setf(Y_KX)
        waitp(Y_KX)
        for i in range(4): a("ds_read_b128 %s, v19 offset:%d" % (vr(144 + 4 * i, 4), i * 1024))
        a("s_branch %s" % x2)
        a.end_opt()
        a.label(x1)
        a.begin_opt()
        for i in range(4): a("ds_write_b128 v18, %s offset:%d" % (vr(128 + 4 * i, 4), i * 1024))
        setf(Y_KX)
        waitp(Y_KX)
        for i in range(4): a("ds_read_b128 %s, v19 offset:%d" % (vr(128 + 4 * i, 4), i * 1024))
        a.end_opt()
        a.label(x2)
        a("ds_read_u8 v164, v118 offset:%d" % Y_RD)
        a("s_lshl_b32 s%d, s%d, 11" % (sT2, sHF))
        a("s_add_u32 s%d, s%d, s%d" % (sT3, sCVB, sT2))
        for i in range(4):
            b = 128 + 4 * i
            a("s_waitcnt lgkmcnt(%d)" % (4 - i))
            for e in range(4): a("v_add_f32 v%d, v%d, v%d" % (b + e, b + e, b + 16 + e))
            a("v_cndmask_b32 v%d, v%d, v%d, s[16:17]" % (b, b, b + 1))
            a("v_cvt_pk_f16_f32 v%d, v%d, v%d" % (64 + 2 * i, b + 3, b + 2))
            a("v_cvt_pk_f16_f32 v%d, v%d, v%d" % (65 + 2 * i, b + 1, b))
        xs = L("XS")
        a("s_waitcnt lgkmcnt(0)")
        a("v_cmp_gt_u32 vcc, 10, v164")
        a("s_cbranch_vccz %s" % xs)
        a.begin_opt()
        spin_lds(118, 164, 10, slp=4, off=Y_RD)
        a.end_opt()
        a.label(xs)
        for tl in range(2):
            for yt in range(2):
                a("ds_write_b64 v115, %s offset:%d" % (vr(64 + 4 * tl + 2 * yt, 2), (1 - tl) * 1024 + (1 - yt) * 256))
        a("s_setprio %d" % int(os.environ.get("CPRIO", "2")))
        a("s_cmp_lg_u32 s%d, 0" % sHF)
        a("s_cselect_b32 exec_lo, 0, 0x3fffffff"); a("s_cselect_b32 exec_hi, 0, 0xffff")
        a("ds_write_b128 v119, v[60:63]")
        setf(Y_C0)
        a("v_mov_b32 v5, v168")
    else:
        a("v_lshl_add_u32 v18, v1, 4, s%d" % sSTG)
        a("s_xor_b32 s%d, s%d, 1" % (sT0, sKW))
        a("s_mul_i32 s%d, s%d, %d" % (sT0, sT0, STG_W))
        a("s_add_u32 s%d, s%d, %d" % (sT0, sT0, L_STG))
        a("v_lshl_add_u32 v19, v1, 4, s%d" % sT0)
        x1, x2 = L("X"), L("X")
        a("s_cmp_lg_u32 s%d, 0" % sHF)
        a("s_cbranch_scc1 %s" % x1)
        a.begin_opt()
        for i in range(4): a("ds_write_b128 v18, %s offset:%d" % (vr(144 + 4 * i, 4), i * 1024))
        a("s_branch %s" % x2)
        a.end_opt()
        a.label(x1)
        a.begin_opt()
        for i in range(4): a("ds_write_b128 v18, %s offset:%d" % (vr(128 + 4 * i, 4), i * 1024))
        for i in range(16): a("v_mov_b32 v%d, v%d" % (128 + i, 144 + i))
        a.end_opt()
        a.label(x2)
        setf(Y_KX)
        waitp(Y_KX)
        a("s_and_b32 s%d, s%d, 2" % (sT0, sKW))
        a("s_lshl_b32 s%d, s%d, 2" % (sT0, sT0))
        a("s_add_u32 s%d, s%d, %d" % (sT0, sT0, L_SYNC + Y_KEXP))
        a("v_mov_b32 v10, s%d" % sT0)
        a("ds_read_b64 v[10:11], v10")
        for i in range(4): a("ds_read_b128 %s, v19 offset:%d" % (vr(144 + 4 * i, 4), i * 1024))
        a("s_waitcnt lgkmcnt(4)")
        a("v_max_u32 v16, v10, v11")
        a("v_add_u32 v17, v10, v11"); a("v_subrev_u32 v17, s%d, v17" % sINV)
        def fac(dst, esrc):
            a("v_sub_u32 v%d, %s, v16" % (dst, esrc))
            a("v_add_u32 v%d, 127, v%d" % (dst, dst))
            a("v_max_i32 v%d, 0, v%d" % (dst, dst))
            a("v_lshlrev_b32 v%d, 23, v%d" % (dst, dst))
        fac(20, "s%d" % sINV); fac(22, "v17")
        a("v_lshlrev_b32 v9, 23, v16")
        a("s_waitcnt lgkmcnt(0)")
        for i in range(16):
            a("v_mul_f32 v%d, v20, v%d" % (128 + i, 128 + i))
            a("v_fmac_f32 v%d, v22, v%d" % (128 + i, 144 + i))
        a("v_and_b32 v10, v6, v7"); a("v_and_b32 v10, s%d, v10" % sHF)
        a("v_cmp_ne_u32 vcc, 0, v10")
        for i in range(4): a("v_cndmask_b32 v%d, v%d, v%d, vcc" % (128 + 4 * i, 128 + 4 * i, 129 + 4 * i))
        a("v_lshrrev_b32 v10, 1, v6"); a("v_lshlrev_b32 v10, 9, v10")
        a("v_lshl_add_u32 v10, v7, 4, v10")
        a("v_and_b32 v11, 1, v6"); a("v_lshl_add_u32 v10, v11, 3, v10")
        a("s_add_u32 s%d, s%d, %d" % (sT0, sCVB, 4088 - 1024 - 256))
        a("s_lshl_b32 s%d, s%d, 11" % (sT2, sHF))
        a("s_sub_u32 s%d, s%d, s%d" % (sT0, sT0, sT2))
        a("v_sub_u32 v10, s%d, v10" % sT0)
        for tl in range(2):
            for yt in range(2):
                b = 128 + 8 * tl + 4 * yt
                a("v_cvt_pk_f16_f32 v%d, v%d, v%d" % (64 + 4 * tl + 2 * yt, b + 3, b + 2))
                a("v_cvt_pk_f16_f32 v%d, v%d, v%d" % (65 + 4 * tl + 2 * yt, b + 1, b))
        a("v_and_b32 v11, 3, v1"); a("v_add_u32 v11, %d, v11" % (L_SYNC + Y_CNT))
        spin_lds(11, 164, 10, slp=4, off=Y_RD)
        for tl in range(2):
            for yt in range(2):
                a("ds_write_b64 v10, %s offset:%d" % (vr(64 + 4 * tl + 2 * yt, 2), (1 - tl) * 1024 + (1 - yt) * 256))
        if "dbgk" in EXP:
            a("s_mul_i32 s%d, s%d, %d" % (sT0, sCH, KSTRIDE)); a("s_sub_u32 s%d, s%d, s%d" % (sT0, sT0, sCVB)); a("s_add_u32 s%d, s%d, %d" % (sT0, sT0, WS_KREV))
            for tl in range(2):
                for yt in range(2):
                    a("buffer_store_dwordx2 %s, v10, s[%d:%d], s%d offen offset:%d" % (vr(64 + 4 * tl + 2 * yt, 2), SWS, SWS + 3, sT0, (1 - tl) * 1024 + (1 - yt) * 256))
            a("s_lshl_b32 s%d, s%d, 2" % (sT0, sCH)); a("s_add_u32 s%d, s%d, %d" % (sT0, sT0, WS_KSC)); a("v_mov_b32 v11, s%d" % sT0)
            a("buffer_store_dword v9, v11, s[%d:%d], 0 offen" % (SWS, SWS + 3))
        a("s_setprio %d" % int(os.environ.get("CPRIO", "2")))
        a("v_mov_b32 v2, v7"); a("v_mov_b32 v3, v6")
        a("v_lshlrev_b32 v4, 4, v1")
        a("v_mov_b32 v12, 0"); a("v_mov_b32 v13, 0"); a("v_mov_b32 v14, 0"); a("v_mov_b32 v15, 0")
        a("v_add_u32 v5, %d, v4" % O_U)
        a("v_bfe_u32 v6, v1, 2, 2")
        a("v_mul_u32_u24 v6, %d, v6" % CPS)
        a("v_and_b32 v7, 3, v1")
        a("v_lshl_add_u32 v6, v7, 4, v6")
        a("v_add_u32 v6, 4096, v6")
        a("v_cmp_gt_u32 vcc, 32, v1")
        a("v_cndmask_b32 v5, v6, v5, vcc")
        a("v_add_u32 v5, s%d, v5" % sCVB)
        nz = L("NZ")
        a("s_cmp_lg_u32 s%d, 0" % sHF)
        a("s_cbranch_scc1 %s" % nz)
        a.begin_opt()
        a("s_mov_b32 exec_lo, 0x3fffffff"); a("s_mov_b32 exec_hi, 0xffff")
        a("ds_write_b128 v5, v[12:15]")
        a("s_mov_b64 exec, -1")
        a.end_opt()
        a.label(nz)
        setf(Y_C0)
        a("v_sub_u32 v5, 3, v2"); a("v_and_b32 v5, 3, v5")
        a("v_mul_u32_u24 v6, %d, v5" % CPS)
        a("v_add_u32 v7, v2, v5")
        a("v_sub_u32 v7, %d, v7" % (2031 - 16 * 126))
        a("v_lshl_add_u32 v7, v3, 3, v7")
        a("v_lshl_add_u32 v6, v7, 1, v6")
        a("s_lshl_b32 s%d, s%d, 8" % (sT0, sHF))
        a("s_sub_u32 s%d, s%d, s%d" % (sT1, sCVB, sT0))
        a("v_add_u32 v6, s%d, v6" % sT1)
        a("v_lshlrev_b32 v7, 5, v2")
        a("v_lshl_add_u32 v7, v3, 4, v7")
        a("v_add_u32 v7, %d, v7" % O_U)
        a("v_add_u32 v7, s%d, v7" % sT1)
        a("s_add_u32 s%d, s%d, s%d" % (sT3, sCVB, sT2))
        a("v_add_u32 v5, s%d, v4" % sT3)
    lq, lq2, lq3 = L("PB"), L("PB"), L("PB")
    a("s_cmp_eq_u32 s%d, 0" % sPM)
    a("s_cbranch_scc1 %s" % lq3)
    a.begin_opt()
    a("s_mov_b32 s%d, %d" % (sOX, SPIN))
    a.label(lq)
    a("s_waitcnt vmcnt(0)")
    a("v_cmp_ne_u32 vcc, s%d, v169" % sNON)
    a("s_cmp_eq_u32 vcc_lo, 0")
    a("s_cbranch_scc1 %s" % lq2)
    a("s_sleep %d" % int(os.environ.get("PSL", "8")))
    a("s_mov_b32 exec_hi, 0")
    a("buffer_load_dword v169, v112, s[%d:%d], 0 offen sc1" % (SWS, SWS + 3))
    a("s_mov_b64 exec, -1")
    a("s_sub_u32 s%d, s%d, 1" % (sOX, sOX)); a("s_cmp_lg_u32 s%d, 0" % sOX)
    a("s_cbranch_scc1 %s" % lq)
    a.label(lq2)
    u_dma()
    a.end_opt()
    a.label(lq3)
    sk_("rdyB")
    waitp(Y_C0)
    for it in range(2):
        b = 32 + 8 * it
        a("ds_read_b128 %s, v5 offset:%d" % (vr(b, 4), it * 1024))
        a("ds_read_b64 %s, v5 offset:%d" % (vr(b + 4, 2), it * 1024 + 16))
    for it in range(2):
        b = 32 + 8 * it
        a("s_waitcnt lgkmcnt(%d)" % (2 if it == 0 else 3))
        d = [b + i for i in range(6)]
        c1, c2, c3 = 64 + 12 * it, 68 + 12 * it, 72 + 12 * it
        for i in range(4):
            a("v_alignbit_b32 v%d, v%d, v%d, 16" % (c1 + i, d[i + 1], d[i]))
            a("v_mov_b32 v%d, v%d" % (c2 + i, d[i + 1]))
            a("v_alignbit_b32 v%d, v%d, v%d, 16" % (c3 + i, d[i + 2], d[i + 1]))
        a("ds_write_b128 v5, %s offset:%d" % (vr(c1, 4), CPS + it * 1024))
        a("ds_write_b128 v5, %s offset:%d" % (vr(c2, 4), 2 * CPS + it * 1024))
        a("ds_write_b128 v5, %s offset:%d" % (vr(c3, 4), 3 * CPS + it * 1024))
    sk_("copies")
    CA = 16; G = 64; F = 96
    if not TRIM:
        for r in range(CA, CA + 32): a("v_mov_b32 v%d, 0" % r)
    setf(Y_BL)
    spin_lds(114, 164, 1, width="b32", slp=1, off=Y_U - Y_RDA)
    a("ds_read_b64 v[166:167], v114 offset:%d" % (Y_NON - Y_RDA))
    waitp(Y_BL)
    sk_("built")
    if YP == 3 and "nopp" not in EXP:
        a("v_mov_b32 v174, v112")
        a("s_mov_b32 exec_hi, 0")
        a("buffer_load_dword v169, v174, s[%d:%d], 0 offen offset:128 sc1" % (SWS, SWS + 3))
        a("s_mov_b64 exec, -1")
    a("s_setprio %d" % ENV("MPRIO", 1))
    def rg(ri, q):
        o = 32 * (126 - 16 * q - 2 * ri)
        a("ds_read_b64 %s, v%d offset:%d" % (vr(G + 4 * q, 2), GB, o))
        a("ds_read_b64 %s, v%d offset:%d" % (vr(G + 4 * q + 2, 2), GB, o + 8))
    def rf(ri, j):
        a("ds_read_b128 %s, v%d offset:%d" % (vr(F + 4 * j, 4), FB, 32 * (16 * j - 2 * ri + 14)))
    side = []
    S = side.append
    S("v_lshlrev_b32 v8, 16, v160")
    XW, XO = 128, 136
    for i in range(4):
        for pr in range(2):
            xw = XW + 2 * i + pr; o = XO + 4 * i + 2 * pr
            S("v_cvt_f32_f16 v%d, v%d" % (o, xw))
            S("v_lshrrev_b32 v%d, 16, v%d" % (o + 1, xw)); S("v_cvt_f32_f16 v%d, v%d" % (o + 1, o + 1))
            S("v_mul_f32 v%d, v8, v%d" % (o, o)); S("v_mul_f32 v%d, v8, v%d" % (o + 1, o + 1))
            S("v_cvt_pk_bf16_f32 v%d, v%d, v%d" % (o, o, o + 1))
            S("v_and_b32 v%d, 0xffff0000, v%d" % (o + 1, o)); S("v_lshlrev_b32 v%d, 16, v%d" % (o, o))
    S("v_lshl_add_u32 v5, v1, 4, s%d" % sSTG)
    S("s_xor_b32 s%d, s%d, 1" % (sT0, sKW))
    S("s_mul_i32 s%d, s%d, %d" % (sT0, sT0, STG_W))
    S("s_add_u32 s%d, s%d, %d" % (sT0, sT0, L_STG))
    S("v_lshl_add_u32 v152, v1, 4, s%d" % sT0)
    S("v_and_b32 v13, 1, v3"); S("v_lshlrev_b32 v13, 9, v13")
    S("v_lshrrev_b32 v14, 2, v2"); S("v_lshl_add_u32 v13, v14, 7, v13")
    S("v_lshrrev_b32 v14, 1, v3"); S("v_lshl_add_u32 v13, v14, 6, v13")
    S("v_and_b32 v14, 3, v2"); S("v_lshl_add_u32 v13, v14, 4, v13")
    S("v_add_u32 v13, s%d, v13" % sT2)
    S("s_and_b32 s%d, s%d, 0xfffe" % (sT0, sCH)); S("s_add_u32 s%d, s%d, s%d" % (sT0, sT0, sHF)); S("s_lshl_b32 s%d, s%d, 8" % (sT0, sT0))
    S("s_and_b32 s%d, s%d, 1" % (sT1, sCH)); S("s_lshl_b32 s%d, s%d, 3" % (sT1, sT1))
    S("s_add_u32 s%d, s%d, s%d" % (sT0, sT0, sT1))
    S("s_add_u32 s%d, s%d, %d" % (sT0, sT0, WS_CF))
    S("v_mov_b32 v14, s%d" % sT0)
    S("v_readfirstlane_b32 s%d, v166" % sNON); S("v_readfirstlane_b32 s%d, v167" % (sNON + 1))
    S("s_lshl_b32 s%d, s%d, 14" % (sT0, sCT))
    S("s_lshl_b32 s%d, s%d, 12" % (sT1, sKW))
    S("s_add_u32 s%d, s%d, s%d" % (sT0, sT0, sT1))
    S("s_lshr_b32 s%d, s%d, 4" % (sT1, sRT2)); S("s_lshl_b32 s%d, s%d, 8" % (sT1, sT1))
    S("s_add_u32 s%d, s%d, s%d" % (sT0, sT0, sT1))
    S("s_add_u32 s%d, s%d, %d" % (sT0, sT0, WS_CF))
    S("v_lshrrev_b32 v153, 1, v2"); S("v_lshl_add_u32 v153, v153, 9, s%d" % sT0)
    S("v_and_b32 v154, 1, v2"); S("v_lshl_add_u32 v153, v154, 3, v153")
    S("s_lshl_b32 s%d, s%d, 4" % (sT0, sKW))
    S("v_lshrrev_b32 v154, 3, v1")
    S("v_add_u32 v154, s%d, v154" % sT0)
    S("s_lshl_b32 s%d, s%d, 6" % (sT0, sCT))
    S("v_add_u32 v154, s%d, v154" % sT0)
    S("v_mul_u32_u24 v154, %d, v154" % YST)
    S("v_and_b32 v155, 7, v1")
    S("v_lshl_add_u32 v154, v155, 4, v154")
    S("s_lshl_b32 s%d, s%d, 7" % (sT2, sRT2))
    S("s_add_u32 s%d, s%d, %d" % (sT2, sT2, WS_YAT))
    S("s_add_u32 s%d, s%d, %d" % (sT3, sT2, 8 * YST))
    S("s_mul_i32 s%d, s%d, %d" % (sT0, sCH, YST))
    S("s_add_u32 s%d, s%d, %d" % (sT0, sT0, WS_YAT))
    S("v_add_u32 v165, %d, v162" % Y_CX)
    if NSTA:
        S("s_lshl_b32 s%d, s%d, 13" % (sOX, sHF)); S("s_add_u32 s%d, s%d, s%d" % (sOX, sOX, sCVB)); S("v_lshl_add_u32 v157, v1, 4, s%d" % sOX)
        if SP0 < 0:
            side2 = []
            for n in range(4 * NSTA): side2.append(n)
    def copy_part(part):
        for n in range(4 * NSTA):
            s_ = 14 - NSTA + n // 4; q = n % 4
            if (s_ >= 12) != (part == 1): continue
            if s_ >= 12: ad, of = 157, (s_ - 12) * 4096
            elif WDS[s_ % 6] >= 65536: ad, of = 158, WDS[s_ % 6] - 65536
            else: ad, of = 156, WDS[s_ % 6]
            a("ds_write_b128 v%d, %s offset:%d" % (ad, vr(176 + 4 * n, 4), of + q * 1024))
            cw = ENV("CW%d" % part, part + 1)
            if cw >= 100: a("s_sleep %d" % (cw - 100))
            elif cw:
                for _ in range(cw): a("s_nop 7")
        a("v_mov_b32 v159, %d" % (part + 1))
        a("s_mov_b64 exec, 1")
        a("ds_write_b8 v161, v159 offset:%d" % Y_WS)
        a("s_mov_b64 exec, -1")
    def copy_out():
        l = L("CA")
        a("s_cmp_lg_u32 s%d, 0" % sLD)
        a("s_cbranch_scc1 %s" % l)
        copy_part(0)
        a.label(l)
        copy_part(1)
    def copy_try():
        l = L("CA")
        a("v_cmp_gt_u32 vcc, 1, v164")
        a("s_cmp_lg_u32 s%d, 0" % sLD)
        a("s_cbranch_scc1 %s" % l)
        a("s_cbranch_vccnz %s" % l)
        a.begin_opt()
        a("s_waitcnt vmcnt(0)")
        a("s_mov_b32 s%d, 1" % sLD)
        copy_part(0)
        a.end_opt()
        a.label(l)
    CTRY = [int(x) for x in os.environ.get("CTRY", "9").split(",")]
    a("s_mov_b32 s%d, 0" % sLD)
    a("s_lshl_b32 s%d, s%d, 12" % (sOX, sKW)); a("v_lshl_add_u32 v156, v1, 4, s%d" % sOX); a("v_add_u32 v158, 65536, v156")
    a("v_lshlrev_b32 v13, 5, v2")
    a("v_lshl_add_u32 v13, v3, 3, v13")
    a("s_add_u32 s%d, s%d, %d" % (sT1, sT3, O_U + 480))
    a("v_add_u32 v14, s%d, v13" % sT1)
    for i in range(4): a("ds_read_b64 %s, v14 offset:%d" % (vr(XW + 2 * i, 2), i * 512))
    for q in range(8): rg(0, q); rf(0, 7 - q)
    nm = 0
    if "noconv" in EXP:
        a("s_waitcnt lgkmcnt(0)")
        while side: a(side.pop(0))
    EC = ENV("EC", 0); ECR = ENV("ECR", 2); ECS = ENV("ECS", 5); ECN = ENV("ECN", 1)
    ecq = []
    def ec_start():
        a("v_cmp_le_u32 s[86:87], 1, v164")
        a("v_mov_b32 v159, 1")
        a("s_and_b32 s%d, s86, 1" % sLD)
        a("s_waitcnt vmcnt(%d)" % (1 if YP == 3 else 0))
        for n in range(0, 12, ECN):
            ecq.append(["s_mov_b64 exec, s[86:87]"])
            for n_ in range(n, n + ECN):
                s_ = 9 + n_ // 4; hi = WDS[s_ % 6] >= 65536
                ecq[-1].append("ds_write_b128 v%d, %s offset:%d" % ((156, 158)[hi], vr(176 + 4 * n_, 4), WDS[s_ % 6] - 65536 * hi + (n_ % 4) * 1024))
            if n + ECN >= 12: ecq[-1] += ["s_mov_b32 exec_lo, s%d" % sLD, "s_mov_b32 exec_hi, 0", "ds_write_b8 v161, v159 offset:%d" % Y_WS]
            ecq[-1].append("s_mov_b64 exec, -1")
    for ri in range(4 if "noconv" not in EXP else 0):
        for q in range(8):
            for m in range(7, q - 1, -1):
                if q == 0:
                    a("s_waitcnt lgkmcnt(%d)" % min(15, 3 * m))
                a("v_mfma_f32_16x16x32_f16 %s, %s, %s, %s" % (vr(CA + 4 * m, 4), vr(G + 4 * q, 4), vr(F + 4 * (m - q), 4), "0" if TRIM and ri == 0 and q == 0 else vr(CA + 4 * m, 4)))
                nm += 1
                if NSTA and SP0 < 0 and side2 and nm % ENV("SPM", 4) == 0: st_ld(side2.pop(0))
                if nm > 8 and side:
                    a(side.pop(0))
                    while side and side[0].startswith("s_"): a(side.pop(0))
                if ecq and nm % ECS == 0:
                    for x in ecq.pop(0): a(x)
            if q == 0 and ri in CTRY: copy_try()
            if EC and q == 0 and ri == ECR: ec_start()
            if q == 7 and (ri + 1 in CTRY or (EC and ri + 1 == ECR)): a("ds_read_u8 v164, v161 offset:%d" % Y_TR)
            if ri + 1 < 4: rg(ri + 1, q); rf(ri + 1, 7 - q)
    assert not side and not ecq
    sk_("mfma")
    a("s_setprio %d" % ENV("PPRIO", 3))
    x1, x2 = L("X"), L("X")
    a("s_cmp_lg_u32 s%d, 0" % sHF)
    a("s_cbranch_scc1 %s" % x1)
    a.begin_opt()
    for i in range(4): a("ds_write_b128 v5, %s offset:%d" % (vr(CA + 16 + 4 * i, 4), i * 1024))
    a("s_mov_b64 exec, 1")
    a("ds_write_b8 v161, v163 offset:%d" % Y_CX)
    a("s_mov_b64 exec, -1")
    a("s_branch %s" % x2)
    a.end_opt()
    a.label(x1)
    a.begin_opt()
    for i in range(4): a("ds_write_b128 v5, %s offset:%d" % (vr(CA + 4 * i, 4), i * 1024))
    a("s_mov_b64 exec, 1")
    a("ds_write_b8 v161, v163 offset:%d" % Y_CX)
    a("s_mov_b64 exec, -1")
    for i in range(16): a("v_mov_b32 v%d, v%d" % (CA + i, CA + 16 + i))
    a.end_opt()
    a.label(x2)
    if YP == 3 and "nopp" not in EXP:
        lq, lq2 = L("PP"), L("PP")
        a("s_mov_b32 s%d, %d" % (sOX, SPIN))
        a.label(lq)
        a("s_waitcnt vmcnt(0)")
        a("v_cmp_ne_u32 vcc, s%d, v169" % sNON)
        a("s_cmp_eq_u32 vcc_lo, 0")
        a("s_cbranch_scc1 %s" % lq2)
        a("s_sleep 4")
        a("s_mov_b32 exec_hi, 0")
        a("buffer_load_dword v169, v174, s[%d:%d], 0 offen offset:128 sc1" % (SWS, SWS + 3))
        a("s_mov_b64 exec, -1")
        a("s_sub_u32 s%d, s%d, 1" % (sOX, sOX)); a("s_cmp_lg_u32 s%d, 0" % sOX)
        a("s_cbranch_scc1 %s" % lq)
        a.label(lq2)
    spin_lds(165, 164, 1, slp=0)
    if "hx" in EXP: sk_("xch")
    for i in range(4): a("ds_read_b128 %s, v152 offset:%d" % (vr(CA + 16 + 4 * i, 4), i * 1024))
    for i in range(4):
        a("s_waitcnt lgkmcnt(%d)" % (3 - i))
        for pr in range(2):
            y = CA + 4 * i + 2 * pr; o = XO + 4 * i + 2 * pr
            a("v_add_f32 v%d, v%d, v%d" % (y, y, y + 16)); a("v_add_f32 v%d, v%d, v%d" % (y + 1, y + 1, y + 17))
            ks_ = "s%d" % sINV if TRIM else "v9"
            a("v_mul_f32 v%d, %s, v%d" % (y, ks_, y)); a("v_mul_f32 v%d, %s, v%d" % (y + 1, ks_, y + 1))
            a("v_cvt_pk_bf16_f32 v%d, v%d, v%d" % (y, y, y + 1))
            a("v_and_b32 v%d, 0xffff0000, v%d" % (y + 1, y)); a("v_lshlrev_b32 v%d, 16, v%d" % (y, y))
            a("v_add_f32 v%d, v%d, v%d" % (y, y, o)); a("v_add_f32 v%d, v%d, v%d" % (y + 1, y + 1, o + 1))
            a("v_cvt_pk_bf16_f32 v%d, v%d, v%d" % (72 + 2 * i + pr, y, y + 1))
        if i & 1:
            b = 72 + 4 * (i >> 1)
            a("v_permlane16_swap_b32 v%d, v%d" % (b, b + 2)); a("v_permlane16_swap_b32 v%d, v%d" % (b + 1, b + 3))
            a("buffer_store_dwordx4 %s, v13, s[%d:%d], s%d offen offset:%d sc1" % (vr(b, 4), SWS, SWS + 3, sT0, (i >> 1) * 1024))
    setf(Y_XR)
    if "hx" in EXP: sk_("yst")
    def cflag():
        if YP: return
        a("s_waitcnt vmcnt(0)")
        a("s_mov_b64 exec, 1")
        a("buffer_store_dwordx2 v[166:167], v14, s[%d:%d], 0 offen sc1" % (SWS, SWS + 3))
        a("s_mov_b64 exec, -1")
    def yld(m=True):
        if m: a("s_mov_b64 exec, s[84:85]")
        a("buffer_load_dwordx4 v[104:107], v154, s[%d:%d], s%d offen sc1" % (SWS, SWS + 3, sT2))
        if m: a("s_mov_b64 exec, s[86:87]")
        a("buffer_load_dwordx4 v[108:111], v154, s[%d:%d], s%d offen sc1" % (SWS, SWS + 3, sT3))
        if m: a("s_mov_b64 exec, -1")
    if EC:
        assert YP
        c1 = L("CO")
        a("s_setprio %d" % ENV("QPRIO", 0))
        a("s_cmp_lg_u32 s%d, 0" % sLD)
        a("s_cbranch_scc1 %s" % c1)
        a.begin_opt()
        spin_lds(161, 164, 1, slp=1, off=Y_TR)
        copy_part(0)
        a.end_opt()
        a.label(c1)
        sk_("flag")
        if ENV("CSA", 0): a("s_sleep %d" % ENV("CSA", 0))
        if ENV("YE", 1): yld(False)
        copy_part(1)
        lp, ld, le = L("CP"), L("CP"), L("CP")
        a("s_mov_b32 s%d, %d" % (sOX, SPIN))
        if ENV("YE", 1): a("s_branch %s" % le)
        else: a("s_mov_b64 s[84:85], -1"); a("s_mov_b64 s[86:87], -1")
        a.label(lp)
        yld()
        a.label(le)
        a("s_waitcnt vmcnt(0)")
        a("v_cmp_eq_u32 s[84:85], -1, v104")
        a("v_cmp_eq_u32 s[86:87], -1, v108")
        a("s_or_b64 vcc, s[84:85], s[86:87]")
        a("s_cbranch_scc0 %s" % ld)
        a("s_sleep %d" % int(os.environ.get("CSL", "4")))
        a("s_sub_u32 s%d, s%d, 1" % (sOX, sOX)); a("s_cmp_lg_u32 s%d, 0" % sOX)
        a("s_cbranch_scc1 %s" % lp)
        a.label(ld)
        sk_("polled")
        waitp(Y_XR)
        a("ds_write_b128 v5, v[104:107]")
        a("ds_write_b128 v5, v[108:111] offset:1024")
        setf(Y_YA)
        a("s_waitcnt lgkmcnt(0)")
        sk_("end")
        sk_.store(100)
        a("s_endpgm")
        return
    if ENV("COA", 2) == 1:
        cflag()
        sk_("flag")
        spin_lds(161, 164, 1, slp=1, off=Y_TR)
        copy_out()
    elif ENV("COA", 2) == 2:
        a("ds_read_u8 v164, v161 offset:%d" % Y_TR)
        a("s_waitcnt vmcnt(2) lgkmcnt(0)")
        c1 = L("CO")
        a("v_cmp_gt_u32 vcc, 1, v164")
        a("s_cbranch_vccnz %s" % c1)
        a.begin_opt()
        a("s_mov_b32 s%d, 1" % sLD)
        copy_part(0)
        a.end_opt()
        a.label(c1)
        cflag()
        sk_("flag")
        spin_lds(161, 164, 1, slp=1, off=Y_TR)
        copy_out()
    elif NSTA:
        c1, c2 = L("CO"), L("CO")
        a("ds_read_u8 v164, v161 offset:%d" % Y_TR)
        a("s_waitcnt vmcnt(2) lgkmcnt(0)")
        a("v_cmp_gt_u32 vcc, 1, v164")
        a("s_cbranch_vccnz %s" % c1)
        a.begin_opt()
        copy_out(); cflag()
        a("s_branch %s" % c2)
        a.end_opt()
        a.label(c1)
        a.begin_opt()
        cflag()
        spin_lds(161, 164, 1, slp=1, off=Y_TR)
        copy_out()
        a.end_opt()
        a.label(c2)
    else: cflag()
    if not ENV("COA", 2): sk_("flag")
    a("s_setprio 0")
    a("s_sleep %d" % int(os.environ.get("CSL0", "8")))
    lp, ld = L("CP"), L("CP")
    a("s_mov_b32 s%d, %d" % (sOX, SPIN))
    if YP:
        assert YST == 4096
        a("s_mov_b64 s[84:85], -1"); a("s_mov_b64 s[86:87], -1")
        a.label(lp)
        a("s_mov_b64 exec, s[84:85]")
        a("buffer_load_dwordx4 v[104:107], v154, s[%d:%d], s%d offen sc1" % (SWS, SWS + 3, sT2))
        a("s_mov_b64 exec, s[86:87]")
        a("buffer_load_dwordx4 v[108:111], v154, s[%d:%d], s%d offen sc1" % (SWS, SWS + 3, sT3))
        a("s_mov_b64 exec, -1")
        a("s_waitcnt vmcnt(0)")
        a("v_cmp_eq_u32 s[84:85], -1, v104")
        a("v_cmp_eq_u32 s[86:87], -1, v108")
        a("s_or_b64 vcc, s[84:85], s[86:87]")
        a("s_cbranch_scc0 %s" % ld)
        a("s_sleep %d" % int(os.environ.get("CSL", "4")))
        a("s_sub_u32 s%d, s%d, 1" % (sOX, sOX)); a("s_cmp_lg_u32 s%d, 0" % sOX)
        a("s_cbranch_scc1 %s" % lp)
        a.label(ld)
        sk_("polled")
        waitp(Y_XR)
        a("ds_write_b128 v5, v[104:107]")
        a("ds_write_b128 v5, v[108:111] offset:1024")
        setf(Y_YA)
        a("s_waitcnt lgkmcnt(0)")
        sk_("end")
        sk_.store(100)
        a("s_endpgm")
        return
    a.label(lp)
    a("s_mov_b64 exec, 0xffff")
    a("buffer_load_dwordx2 v[20:21], v153, s[%d:%d], 0 offen sc1" % (SWS, SWS + 3))
    a("s_waitcnt vmcnt(0)")
    a("v_cmp_ne_u64 vcc, s[%d:%d], v[20:21]" % (sNON, sNON + 1))
    a("s_mov_b64 exec, -1")
    a("s_cbranch_vccz %s" % ld)
    a("s_sleep %d" % int(os.environ.get("CSL", "4")))
    a("s_sub_u32 s%d, s%d, 1" % (sOX, sOX)); a("s_cmp_lg_u32 s%d, 0" % sOX)
    a("s_cbranch_scc1 %s" % lp)
    a.label(ld)
    sk_("polled")
    a("buffer_load_dwordx4 v[104:107], v154, s[%d:%d], s%d offen" % (SWS, SWS + 3, sT2))
    a("buffer_load_dwordx4 v[108:111], v154, s[%d:%d], s%d offen" % (SWS, SWS + 3, sT3))
    waitp(Y_XR)
    a("s_waitcnt vmcnt(0)")
    a("ds_write_b128 v5, v[104:107]")
    a("ds_write_b128 v5, v[108:111] offset:1024")
    setf(Y_YA)
    a("s_waitcnt lgkmcnt(0)")
    sk_("end")
    sk_.store(100)
    a("s_endpgm")

def producer(a, sp_, L, spin_lds):
    a.label("K_PROD")
    a.vmq = []
    a.nopkw = True
    XT_S = 912
    L_PC = 64 * XT_S
    a("v_lshrrev_b32 v2, 3, v1")
    a("v_and_b32 v3, 7, v1")
    a("s_lshr_b32 s%d, s2, 3" % sT1)
    a("s_bfe_u32 s%d, s2, 0x20001" % sT0); a("s_lshl_b32 s%d, s%d, 3" % (sR, sT0)); a("s_lshl_b32 s%d, s%d, 1" % (sT1, sT1))
    a("s_add_u32 s%d, s%d, s%d" % (sR, sR, sT1)); a("s_and_b32 s%d, s2, 1" % sT0); a("s_add_u32 s%d, s%d, s%d" % (sR, sR, sT0))
    a("s_lshr_b32 s%d, s2, 1" % sF); a("s_min_u32 s%d, s%d, 13" % (sF, sF)); a("s_mul_i32 s%d, s%d, 14" % (sT0, sT0)); a("s_add_u32 s%d, s%d, s%d" % (sF, sF, sT0))
    a("s_lshl_b32 s%d, s%d, 3" % (sT0, sWV))
    a("v_add_u32 v4, s%d, v2" % sT0)
    a("s_lshl_b32 s%d, s%d, 6" % (sT1, sR))
    a("v_add_u32 v5, s%d, v4" % sT1)
    a("v_mul_u32_u24 v6, 896, v5")
    a("v_lshl_add_u32 v6, v3, 4, v6")
    a("s_waitcnt lgkmcnt(0)")
    srd(a, SX, 16, 2048 * 896)
    for i in range(7):
        a.vm("buffer_load_dwordx4 %s, v6, s[%d:%d], 0 offen offset:%d" % (vr(32 + 4 * i, 4), SX, SX + 3, i * 128), "x%d" % i)
    srd(a, SWS, 14, WS_SIZE)
    srd(a, SDBG, 12, 256)
    def poison():
        a("s_lshl_b32 s%d, s2, 3" % sT0); a("s_add_u32 s%d, s%d, s%d" % (sT0, sT0, sWV)); a("s_mul_i32 s%d, s%d, 7168" % (sT0, sT0))
        a("s_add_u32 s%d, s%d, %d" % (sT0, sT0, WS_YAT)); a("s_add_u32 s%d, s%d, 4096" % (sT1, sT0))
        a("v_lshlrev_b32 v140, 4, v1")
        for r in range(136, 140): a("v_mov_b32 v%d, -1" % r)
        for i in range(7):
            a.vm("buffer_store_dwordx4 v[136:139], v140, s[%d:%d], s%d offen offset:%d sc1" % (SWS, SWS + 3, (sT0, sT1)[i >> 2], (i & 3) * 1024), "poi")
    ln = L("NN")
    a("s_or_b32 s%d, s2, s%d" % (sT0, sWV))
    a("s_cbranch_scc1 %s" % ln)
    a.begin_opt()
    a("s_memrealtime s[%d:%d]" % (sNON, sNON + 1))
    a("s_waitcnt lgkmcnt(0)")
    a("s_or_b32 s%d, s%d, 0x40000000" % (sNON + 1, sNON + 1)); a("s_or_b32 s%d, s%d, 1" % (sNON, sNON))
    a("v_mov_b32 v12, s%d" % sNON); a("v_mov_b32 v13, s%d" % (sNON + 1)); a("v_mov_b32 v14, 64")
    a("s_mov_b64 exec, 1")
    a("buffer_store_dwordx2 v[12:13], v14, s[%d:%d], 0 offen sc1" % (SDBG, SDBG + 3))
    a("s_mov_b64 exec, -1")
    a.end_opt()
    a.label(ln)
    if YP == 1: poison()
    a("s_lshr_b32 s%d, s%d, 1" % (sT1, sWV))
    a("s_mul_i32 s%d, s%d, %d" % (sT1, sT1, 112 * 3584))
    a("s_lshl_b32 s%d, s%d, 7" % (sT2, sF))
    a("s_add_u32 s%d, s%d, s%d" % (sT1, sT1, sT2))
    a("v_mul_u32_u24 v9, 3584, v2")
    a("v_lshl_add_u32 v9, v3, 4, v9")
    a("v_add_u32 v9, s%d, v9" % sT1)
    a("s_bitcmp0_b32 s%d, 0" % sWV)
    a("s_cselect_b32 s%d, s32, s34" % SWG)
    a("s_cselect_b32 s%d, s33, s35" % (SWG + 1))
    a("s_and_b32 s%d, s%d, 0xffff" % (SWG + 1, SWG + 1))
    a("s_mov_b32 s%d, 0x%x" % (SWG + 2, 448 * 3584))
    a("s_mov_b32 s%d, 0x00020000" % (SWG + 3))
    wq = list(range(14))
    def ldw(n):
        for _ in range(n):
            if not wq: return
            i = wq.pop(0)
            a("s_mov_b32 s%d, %d" % (sOW, i * 8 * 3584))
            a.vm("buffer_load_dwordx4 %s, v9, s[%d:%d], s%d offen" % (vr(64 + 4 * i, 4), SWG, SWG + 3, sOW), "w%d" % i)
    a("s_mov_b32 s%d, 0x3f803f80" % sONES)
    a("v_mov_b32 v10, 0"); a("v_mov_b32 v11, 0"); a("v_mov_b32 v12, 0"); a("v_mov_b32 v13, 0")
    a("v_mul_u32_u24 v7, %d, v4" % XT_S)
    a("v_lshl_add_u32 v7, v3, 4, v7")
    a("v_lshlrev_b32 v8, 4, v5")
    a("s_lshl_b32 s%d, s2, 8" % sT2); a("s_add_u32 s%d, s%d, %d" % (sT2, sT2, WS_PF))
    a("v_lshl_add_u32 v28, v1, 13, s%d" % sT2)
    a("s_lshl_b32 s%d, s%d, 8" % (sT0, sR)); a("s_add_u32 s%d, s%d, %d" % (sT0, sT0, WS_FR))
    a("s_lshl_b32 s%d, s%d, 8" % (sT1, sF)); a("s_add_u32 s%d, s%d, %d" % (sT1, sT1, WS_FC))
    a("s_cmp_eq_u32 s%d, 0" % sWV); a("s_cselect_b32 s%d, s%d, s%d" % (sT0, sT0, sT1)); a("v_mov_b32 v29, s%d" % sT0)
    a("v_mov_b32 v30, 64")
    for i in range(7):
        a.wait_vm("x%d" % i)
        for r in range(4):
            a("v_dot2_f32_bf16 v%d, v%d, s%d, v%d" % (10 + 2 * (r & 1), 32 + 4 * i + r, sONES, 10 + 2 * (r & 1)))
            a("v_dot2_f32_bf16 v%d, v%d, v%d, v%d" % (11 + 2 * (r & 1), 32 + 4 * i + r, 32 + 4 * i + r, 11 + 2 * (r & 1)))
    ldw(ENV("PW0", 6))
    a("v_add_f32 v10, v10, v12"); a("v_add_f32 v11, v11, v13")
    for mod in ("quad_perm:[1,0,3,2]", "quad_perm:[2,3,0,1]", "row_half_mirror"):
        for r in (10, 11):
            a("v_add_f32_dpp v%d, v%d, v%d %s row_mask:0xf bank_mask:0xf" % (r, r, r, mod))
    c = math.sqrt(2 / math.pi); k1 = -2 * c * LOG2E; k2 = k1 * 0.044715
    a("v_mul_f32 v10, %s, v10" % fbits(1.0 / 448))
    a("v_mul_f32 v11, %s, v11" % fbits(1.0 / 448))
    a("v_fma_f32 v11, -v10, v10, v11")
    a("v_max_f32 v11, 0, v11")
    a("v_cvt_pk_bf16_f32 v10, v10, v11")
    a("v_lshlrev_b32 v12, 16, v10")
    a("v_and_b32 v11, 0xffff0000, v10")
    a("v_add_f32 v11, %s, v11" % fbits(1e-5))
    a("v_cvt_pk_bf16_f32 v11, v11, v11")
    a("v_lshlrev_b32 v11, 16, v11")
    a("v_sqrt_f32 v11, v11")
    a("v_cvt_pk_bf16_f32 v11, v11, v11")
    a("v_lshlrev_b32 v11, 16, v11")
    a("v_rcp_f32 v14, v11")
    a("v_sub_f32 v16, 0, v12")
    a("v_cvt_pk_bf16_f32 v24, v16, v16")
    a("v_mul_f32 v27, v11, v11")
    a("v_mul_f32 v25, %s, v14" % fbits(k1))
    a("v_mul_f32 v10, v14, v14"); a("v_mul_f32 v10, v10, v14")
    a("v_mul_f32 v26, %s, v10" % fbits(k2))
    a("s_mov_b32 s%d, %d" % (sT0, WS_RC))
    a("s_mov_b32 exec_lo, 0x01010101"); a("s_mov_b32 exec_hi, 0x01010101")
    a.vm("buffer_store_dwordx4 v[24:27], v8, s[%d:%d], s%d offen sc1" % (SWS, SWS + 3, sT0), "rc")
    a("s_cmp_lt_u32 s%d, 2" % sWV); a("s_cselect_b32 exec_lo, 1, 0"); a("s_mov_b32 exec_hi, 0")
    a("buffer_load_dwordx2 v[18:19], v30, s[%d:%d], 0 offen sc1" % (SDBG, SDBG + 3))
    a("s_mov_b64 exec, -1")
    sp_("stats")
    def xn_blk(i):
        for r in range(4):
            w = 32 + 4 * i + r; t = 20 + 2 * (r & 1)
            a("v_lshlrev_b32 v%d, 16, v%d" % (t, w)); a("v_and_b32 v%d, 0xffff0000, v%d" % (t + 1, w))
            a("v_pk_add_f32 %s, %s, v[16:17] op_sel_hi:[1,0]" % (vr(t, 2), vr(t, 2)))
            a("v_cvt_pk_bf16_f32 v%d, v%d, v%d" % (t, t, t + 1))
            a("v_and_b32 v%d, 0xffff0000, v%d" % (t + 1, t)); a("v_lshlrev_b32 v%d, 16, v%d" % (t, t))
            a("v_pk_mul_f32 %s, %s, v[14:15] op_sel_hi:[1,0]" % (vr(t, 2), vr(t, 2)))
            a("v_cvt_pk_bf16_f32 v%d, v%d, v%d" % (t, t, t + 1))
            a("v_and_b32 v%d, 0xffff0000, v%d" % (t + 1, t)); a("v_lshlrev_b32 v%d, 16, v%d" % (t, t))
            a("v_cvt_pk_f16_f32 v%d, v%d, v%d" % (w, t, t + 1))
        a("ds_write_b128 v7, %s offset:%d" % (vr(32 + 4 * i, 4), i * 128))
    PO = ENV("PO", 0)
    if PO == 1:
        for i in range(7):
            xn_blk(i); ldw(ENV("PW1", 2))
        ldw(14)
        a("v_lshrrev_b32 v4, 4, v1"); a("v_and_b32 v5, 15, v1")
        a("v_lshrrev_b32 v6, 2, v5"); a("v_lshl_add_u32 v6, v4, 3, v6")
        a("v_bfe_u32 v7, v5, 1, 1"); a("v_lshl_add_u32 v6, v7, 5, v6")
        a("v_mul_u32_u24 v6, %d, v6" % XT_S)
        a("v_and_b32 v7, 1, v5"); a("v_lshl_add_u32 v6, v7, 3, v6")
        a("s_lshl_b32 s%d, s%d, 4" % (sOX, sWV))
        a("v_add_u32 v6, s%d, v6" % sOX)
        a("s_mul_i32 s%d, s%d, %d" % (sOX, sWV, 7 * 1152)); a("s_add_u32 s%d, s%d, %d" % (sOX, sOX, L_PC + 2048))
        a("v_and_b32 v31, 7, v5"); a("v_mul_u32_u24 v31, 144, v31"); a("v_lshl_add_u32 v31, v4, 4, v31")
        a("v_lshrrev_b32 v5, 3, v5"); a("v_lshl_add_u32 v31, v5, 6, v31"); a("v_add_u32 v31, s%d, v31" % sOX)
        a("v_mul_u32_u24 v8, 144, v2"); a("v_lshl_add_u32 v8, v3, 4, v8"); a("v_add_u32 v8, s%d, v8" % sOX)
        a("v_mul_u32_u24 v7, %d, v2" % XST); a("v_lshl_add_u32 v7, v3, 4, v7")
        a("s_lshl_b32 s%d, s%d, 7" % (sT2, sR)); a("s_add_u32 s%d, s%d, %d" % (sT2, sT2, WS_XNT))
        a("s_mul_i32 s%d, s%d, %d" % (sT1, sWV, 8 * XST)); a("s_add_u32 s%d, s%d, s%d" % (sT1, sT1, sT2))
        a("s_waitcnt lgkmcnt(0)")
        sp_("xn")
        a("s_barrier")
        sp_("pbar")
        for i in range(7):
            a("ds_read_b64_tr_b16 %s, v6 offset:%d" % (vr(32 + 4 * i, 2), i * 128))
            a("ds_read_b64_tr_b16 %s, v6 offset:%d" % (vr(34 + 4 * i, 2), i * 128 + 4 * XT_S))
        for i in range(7):
            a("s_waitcnt lgkmcnt(%d)" % 12)
            a("ds_write_b128 v31, %s offset:%d" % (vr(32 + 4 * i, 4), i * 1152))
            a("ds_read_b128 %s, v8 offset:%d" % (vr(144 + 4 * i, 4), i * 1152))
        for i in range(7):
            a("s_waitcnt lgkmcnt(%d)" % (12 - 2 * i))
            a.vm("buffer_store_dwordx4 %s, v7, s[%d:%d], s%d offen sc1" % (vr(144 + 4 * i, 4), SWS, SWS + 3, sT1), "xst")
            if i < 6: a("s_add_u32 s%d, s%d, %d" % (sT1, sT1, 64 * XST))
        sp_("st")
        a("s_mov_b32 s%d, 0x3f80" % sOX); a("s_mov_b32 s%d, 0x3f800000" % sOW)
        for r in range(120, 128): a("v_mov_b32 v%d, 0" % r)
        for i in range(14):
            a.wait_vm("w%d" % i)
            for r in range(4):
                w = 64 + 4 * i + r
                a("v_dot2_f32_bf16 v%d, v%d, s%d, v%d" % (120 + 2 * r, w, sOX, 120 + 2 * r))
                a("v_dot2_f32_bf16 v%d, v%d, s%d, v%d" % (121 + 2 * r, w, sOW, 121 + 2 * r))
        for r in range(120, 128): a("v_add_f32_dpp v%d, v%d, v%d row_ror:8 row_mask:0xf bank_mask:0xf" % (r, r, r))
        for op in ("v_permlane16_swap_b32", "v_permlane32_swap_b32"):
            for r in range(8): a("v_mov_b32 v%d, v%d" % (128 + r, 120 + r))
            for r in range(8): a("%s v%d, v%d" % (op, 120 + r, 128 + r))
            for r in range(8): a("v_add_f32 v%d, v%d, v%d" % (120 + r, 120 + r, 128 + r))
        a("s_lshl_b32 s%d, s%d, 8" % (sT0, sWV))
        a("s_add_u32 s%d, s%d, %d" % (sT0, sT0, L_PC))
        a("v_lshl_add_u32 v9, v3, 5, s%d" % sT0)
        a("s_mov_b64 exec, 0xff")
        a("ds_write_b128 v9, v[120:123]"); a("ds_write_b128 v9, v[124:127] offset:16")
        a("s_mov_b64 exec, -1")
        a("s_waitcnt lgkmcnt(0)")
        sp_("sum")
        a("s_barrier")
        la = L("PA")
        a("s_cmp_lg_u32 s%d, 1" % sWV)
        a("s_cbranch_scc1 %s" % la)
        a.begin_opt()
        a("v_lshlrev_b32 v9, 2, v1")
        a("v_add_u32 v20, %d, v9" % L_PC)
        for i in range(8): a("ds_read_b32 v%d, v20 offset:%d" % (120 + i, i * 256))
        a("s_lshl_b32 s%d, s%d, 9" % (sT2, sF)); a("s_add_u32 s%d, s%d, %d" % (sT0, sT2, WS_CS)); a("s_add_u32 s%d, s%d, %d" % (sT2, sT0, CSM))
        a("v_lshlrev_b32 v9, 3, v1")
        a("s_waitcnt lgkmcnt(0)")
        for m in range(2):
            c = 120 + m; o = 128 + 2 * m
            a("v_add_f32 v%d, v%d, v%d" % (c, c, c + 2)); a("v_add_f32 v%d, v%d, v%d" % (c + 4, c + 4, c + 6))
            a("v_add_f32 v%d, v%d, v%d" % (c, c, c + 4))
            a("v_cvt_pk_bf16_f32 v%d, v%d, v%d" % (c + 2, c, c)); a("v_lshlrev_b32 v%d, 16, v%d" % (c + 2, c + 2))
            a("v_sub_f32 v%d, v%d, v%d" % (c + 2, c, c + 2))
            a("v_cvt_pk_bf16_f32 v%d, v%d, v%d" % (o, c, c + 2)); a("v_and_b32 v%d, 0xffff0000, v%d" % (c + 4, o))
            a("v_sub_f32 v%d, v%d, v%d" % (c + 2, c + 2, c + 4))
            a("v_cvt_pk_bf16_f32 v%d, v%d, 0" % (o + 1, c + 2))
            a("buffer_store_dwordx2 v[%d:%d], v9, s[%d:%d], s%d offen sc1" % (o, o + 1, SWS, SWS + 3, (sT0, sT2)[m]))
        a("s_waitcnt vmcnt(2)")
        a("s_barrier")
        get_nonce(a, L, 30, 18, pre=True)
        a("v_mov_b32 v10, s%d" % sNON)
        a("s_mov_b64 exec, 1")
        a("buffer_store_dword v10, v29, s[%d:%d], 0 offen sc1" % (SWS, SWS + 3))
        a("s_mov_b64 exec, -1")
        sp_("flagC")
        if YP != 3:
            sp_.store(100)
            a("s_endpgm")
        else: a("s_branch K_PP")
        a.end_opt()
        a.label(la)
        a("s_waitcnt vmcnt(0)"); a.vmq = []
        a("s_barrier")
        a("s_cmp_lg_u32 s%d, 0" % sWV)
        a("s_cbranch_scc1 %s" % ("K_PP" if YP == 3 else "K_END"))
        a.begin_opt()
        get_nonce(a, L, 30, 18, pre=True)
        a("v_mov_b32 v10, s%d" % sNON)
        a("s_mov_b64 exec, 0xff")
        a("buffer_store_dword v10, v28, s[%d:%d], 0 offen sc1" % (SWS, SWS + 3))
        a("s_mov_b64 exec, 1")
        a("buffer_store_dword v10, v29, s[%d:%d], 0 offen sc1" % (SWS, SWS + 3))
        a("s_mov_b64 exec, -1")
        a.end_opt()
        if YP == 3:
            a.label("K_PP")
            if ENV("PPS", 0): a("s_sleep %d" % ENV("PPS", 0))
            poison()
            a("s_waitcnt vmcnt(0)")
            a("s_barrier")
            a("s_cmp_lg_u32 s%d, 1" % sWV)
            a("s_cbranch_scc1 K_END")
            a("s_mov_b64 exec, 0xff")
            a("buffer_store_dword v10, v28, s[%d:%d], 0 offen offset:128 sc1" % (SWS, SWS + 3))
            a("s_mov_b64 exec, -1")
            sp_("flagP")
            sp_.store(100)
        return
    def xaddr(sX=sT1):
        a("v_lshrrev_b32 v4, 4, v1"); a("v_and_b32 v5, 15, v1")
        a("v_lshrrev_b32 v6, 2, v5"); a("v_lshl_add_u32 v6, v4, 3, v6")
        a("v_bfe_u32 v7, v5, 1, 1"); a("v_lshl_add_u32 v6, v7, 5, v6")
        a("v_mul_u32_u24 v6, %d, v6" % XT_S)
        a("v_and_b32 v7, 1, v5"); a("v_lshl_add_u32 v6, v7, 3, v6")
        a("s_lshl_b32 s%d, s%d, 4" % (sOX, sWV))
        a("v_add_u32 v6, s%d, v6" % sOX)
        a("s_mul_i32 s%d, s%d, %d" % (sOX, sWV, 7 * 1152)); a("s_add_u32 s%d, s%d, %d" % (sOX, sOX, L_PC + 2048))
        a("v_and_b32 v31, 7, v5"); a("v_mul_u32_u24 v31, 144, v31"); a("v_lshl_add_u32 v31, v4, 4, v31")
        a("v_lshrrev_b32 v5, 3, v5"); a("v_lshl_add_u32 v31, v5, 6, v31"); a("v_add_u32 v31, s%d, v31" % sOX)
        a("v_mul_u32_u24 v8, 144, v2"); a("v_lshl_add_u32 v8, v3, 4, v8"); a("v_add_u32 v8, s%d, v8" % sOX)
        a("v_mul_u32_u24 v7, %d, v2" % XST); a("v_lshl_add_u32 v7, v3, 4, v7")
        a("s_lshl_b32 s%d, s%d, 7" % (sT2, sR)); a("s_add_u32 s%d, s%d, %d" % (sT2, sT2, WS_XNT))
        a("s_mul_i32 s%d, s%d, %d" % (sT1, sWV, 8 * XST)); a("s_add_u32 s%d, s%d, s%d" % (sT1, sT1, sT2))
    NXA = 7 if PO == 2 else ENV("NXA", 4)
    for i in range(NXA):
        xn_blk(i); ldw(ENV("PW1", 2))
    ldw(14)
    a("s_mov_b32 s%d, 0x3f80" % sOX); a("s_mov_b32 s%d, 0x3f800000" % sOW)
    for r in range(120, 128): a("v_mov_b32 v%d, 0" % r)
    for i in range(14):
        a.wait_vm("w%d" % i)
        for r in range(4):
            w = 64 + 4 * i + r
            a("v_dot2_f32_bf16 v%d, v%d, s%d, v%d" % (120 + 2 * r, w, sOX, 120 + 2 * r))
            a("v_dot2_f32_bf16 v%d, v%d, s%d, v%d" % (121 + 2 * r, w, sOW, 121 + 2 * r))
    for r in range(120, 128): a("v_add_f32_dpp v%d, v%d, v%d row_ror:8 row_mask:0xf bank_mask:0xf" % (r, r, r))
    for op in ("v_permlane16_swap_b32", "v_permlane32_swap_b32"):
        for r in range(8): a("v_mov_b32 v%d, v%d" % (128 + r, 120 + r))
        for r in range(8): a("%s v%d, v%d" % (op, 120 + r, 128 + r))
        for r in range(8): a("v_add_f32 v%d, v%d, v%d" % (120 + r, 120 + r, 128 + r))
    a("s_lshl_b32 s%d, s%d, 8" % (sT0, sWV))
    a("s_add_u32 s%d, s%d, %d" % (sT0, sT0, L_PC))
    a("v_lshl_add_u32 v9, v3, 5, s%d" % sT0)
    a("s_mov_b64 exec, 0xff")
    a("ds_write_b128 v9, v[120:123]"); a("ds_write_b128 v9, v[124:127] offset:16")
    a("s_mov_b64 exec, -1")
    if PO == 2: xaddr()
    lw = L("PA")
    a("s_cmp_gt_u32 s%d, 1" % sWV)
    a("s_cbranch_scc1 %s" % lw)
    a.begin_opt()
    get_nonce(a, L, 30, 18, pre=True)
    a("v_mov_b32 v10, s%d" % sNON)
    a.end_opt()
    a.label(lw)
    a("s_waitcnt vmcnt(0) lgkmcnt(0)"); a.vmq = []
    sp_("sum")
    a("s_barrier")
    sp_("pbar0")
    PFP = ENV("PFP", 0)
    def pf_all():
        srd(a, SWD, 8, 1792 * 896)
        a("s_lshr_b32 s%d, s2, 3" % sT0); a("s_lshl_b32 s%d, s%d, 3" % (sT0, sT0)); a("s_add_u32 s%d, s%d, s%d" % (sT0, sT0, sWV))
        a("s_mul_i32 s%d, s%d, %d" % (sT0, sT0, 392 * 128))
        a("v_lshlrev_b32 v141, 7, v1")
        for i in range(7):
            a("buffer_load_dword v%d, v141, s[%d:%d], s%d offen" % (142 + i, SWD, SWD + 3, sT0))
            if i < 6: a("s_add_u32 s%d, s%d, %d" % (sT0, sT0, 8192 if i < 5 else 1024))
    def pf_mid():
        srd(a, SWD, 8, 1792 * 896)
        lp_ = L("PF")
        a("s_cmp_gt_u32 s%d, 5" % sWV)
        a("s_cbranch_scc1 %s" % lp_)
        a.begin_opt()
        a("s_lshr_b32 s%d, s2, 3" % sT0); a("s_mul_i32 s%d, s%d, %d" % (sT0, sT0, 448 * 896))
        a("s_lshr_b32 s%d, s%d, 1" % (sT2, sWV)); a("s_lshl_b32 s%d, s%d, 2" % (sT2, sT2)); a("s_lshr_b32 s%d, 0x31c, s%d" % (sT2, sT2)); a("s_and_b32 s%d, s%d, 15" % (sT2, sT2))
        a("s_lshl_b32 s%d, s%d, 1" % (sT2, sT2)); a("s_and_b32 s%d, s%d, 1" % (sT3, sWV)); a("s_add_u32 s%d, s%d, s%d" % (sT2, sT2, sT3))
        a("s_mul_i32 s%d, s%d, %d" % (sT2, sT2, 16 * 896)); a("s_add_u32 s%d, s%d, s%d" % (sT0, sT0, sT2))
        a("s_add_u32 s%d, s%d, %d" % (sT2, sT0, 48 * 128))
        a("v_lshlrev_b32 v141, 7, v1")
        a("buffer_load_dword v142, v141, s[%d:%d], s%d offen" % (SWD, SWD + 3, sT0))
        a("buffer_load_dword v143, v141, s[%d:%d], s%d offen" % (SWD, SWD + 3, sT2))
        a.end_opt()
        a.label(lp_)
    if PFP == 2:
        lp_ = L("PF")
        a("s_cmp_lt_u32 s%d, 2" % sWV)
        a("s_cbranch_scc1 %s" % lp_)
        a.begin_opt()
        pf_all()
        a.end_opt()
        a.label(lp_)
    la = L("PA")
    a("s_cmp_lg_u32 s%d, 1" % sWV)
    a("s_cbranch_scc1 %s" % la)
    a.begin_opt()
    a("v_lshlrev_b32 v9, 2, v1")
    a("v_add_u32 v20, %d, v9" % L_PC)
    for i in range(8): a("ds_read_b32 v%d, v20 offset:%d" % (120 + i, i * 256))
    a("s_lshl_b32 s%d, s%d, 9" % (sT2, sF)); a("s_add_u32 s%d, s%d, %d" % (sT0, sT2, WS_CS)); a("s_add_u32 s%d, s%d, %d" % (sT2, sT0, CSM))
    a("v_lshlrev_b32 v9, 3, v1")
    a("s_waitcnt lgkmcnt(0)")
    for m in range(2):
        c = 120 + m; o = 128 + 2 * m
        a("v_add_f32 v%d, v%d, v%d" % (c, c, c + 2)); a("v_add_f32 v%d, v%d, v%d" % (c + 4, c + 4, c + 6))
        a("v_add_f32 v%d, v%d, v%d" % (c, c, c + 4))
        a("v_cvt_pk_bf16_f32 v%d, v%d, v%d" % (c + 2, c, c)); a("v_lshlrev_b32 v%d, 16, v%d" % (c + 2, c + 2))
        a("v_sub_f32 v%d, v%d, v%d" % (c + 2, c, c + 2))
        a("v_cvt_pk_bf16_f32 v%d, v%d, v%d" % (o, c, c + 2)); a("v_and_b32 v%d, 0xffff0000, v%d" % (c + 4, o))
        a("v_sub_f32 v%d, v%d, v%d" % (c + 2, c + 2, c + 4))
        a("v_cvt_pk_bf16_f32 v%d, v%d, 0" % (o + 1, c + 2))
        a("buffer_store_dwordx2 v[%d:%d], v9, s[%d:%d], s%d offen sc1" % (o, o + 1, SWS, SWS + 3, (sT0, sT2)[m]))
    a.end_opt()
    a.label(la)
    for i in range(NXA, 7):
        xn_blk(i)
        if i == min(6, NXA + ENV("NXF", 2)):
            lb = L("PA")
            a("s_cmp_gt_u32 s%d, 1" % sWV)
            a("s_cbranch_scc1 %s" % lb)
            a.begin_opt()
            a("s_waitcnt vmcnt(0)")
            a("s_mov_b64 exec, 1")
            a("buffer_store_dword v10, v29, s[%d:%d], 0 offen sc1" % (SWS, SWS + 3))
            a("s_mov_b64 exec, -1")
            if PFP == 2: pf_all()
            a.end_opt()
            a.label(lb)
            sp_("flagC")
    if PO != 2: xaddr()
    if YP == 2:
        a("s_mov_b32 s%d, s%d" % (sT3, sT1)); poison(); a("s_mov_b32 s%d, s%d" % (sT1, sT3))
    if PO == 2:
        a("s_cmp_eq_u32 s%d, 0" % sWV); a("s_cselect_b32 exec_lo, 1, 0"); a("s_mov_b32 exec_hi, 0")
        a("buffer_store_dword v10, v29, s[%d:%d], 0 offen sc1" % (SWS, SWS + 3))
        a("s_mov_b64 exec, -1")
    else:
        a("s_waitcnt lgkmcnt(0)")
        a("s_barrier")
        sp_("pbar")
    for i in range(7):
        a("ds_read_b64_tr_b16 %s, v6 offset:%d" % (vr(32 + 4 * i, 2), i * 128))
        a("ds_read_b64_tr_b16 %s, v6 offset:%d" % (vr(34 + 4 * i, 2), i * 128 + 4 * XT_S))
    for i in range(7):
        a("s_waitcnt lgkmcnt(%d)" % 12)
        a("ds_write_b128 v31, %s offset:%d" % (vr(32 + 4 * i, 4), i * 1152))
        a("ds_read_b128 %s, v8 offset:%d" % (vr(64 + 4 * i, 4), i * 1152))
    for i in range(7):
        a("s_waitcnt lgkmcnt(%d)" % (12 - 2 * i))
        a.vm("buffer_store_dwordx4 %s, v7, s[%d:%d], s%d offen sc1" % (vr(64 + 4 * i, 4), SWS, SWS + 3, sT1), "xst")
        if i < 6: a("s_add_u32 s%d, s%d, %d" % (sT1, sT1, 64 * XST))
    sp_("st")
    if PO == 2:
        a("s_waitcnt vmcnt(7)")
        a("s_cmp_eq_u32 s%d, 1" % sWV); a("s_cselect_b32 exec_lo, 1, 0"); a("s_mov_b32 exec_hi, 0")
        a("buffer_store_dword v10, v29, s[%d:%d], 0 offen sc1" % (SWS, SWS + 3))
        a("s_mov_b64 exec, -1")
        sp_("flagC")
        a("s_waitcnt vmcnt(1)")
    else: a("s_waitcnt vmcnt(0)")
    a("s_barrier")
    if YP == 3:
        a("s_cmp_eq_u32 s%d, 1" % sWV); a("s_cselect_b32 exec_lo, 0xff, 0"); a("s_mov_b32 exec_hi, 0")
        a("buffer_store_dword v10, v28, s[%d:%d], 0 offen sc1" % (SWS, SWS + 3))
        a("s_mov_b64 exec, -1")
        sp_("flagB")
        if PFP == 1: pf_mid()
        if PFP == 3: pf_all()
        poison()
        a("s_waitcnt vmcnt(0)")
        a("s_barrier")
    a("s_cmp_lg_u32 s%d, 1" % sWV)
    a("s_cbranch_scc1 K_END")
    a("s_mov_b64 exec, 0xff")
    a("buffer_store_dword v10, v28, s[%d:%d], 0 offen offset:%d sc1" % (SWS, SWS + 3, 128 if YP == 3 else 0))
    a("s_mov_b64 exec, -1")
    sp_("flagB" if YP != 3 else "flagP")
    sp_.store(100)
```

```python
import math, os
from gen8 import *

XST = ENV("XST", 4096); YST = ENV("YST", 4096); YP = ENV("YP", 0)
def get_nonce(a, L, va, vd, pre=False):
    l1, l2, l3 = L("GN"), L("GN"), L("GN")
    a("s_mov_b32 s%d, %d" % (sCNT, SPIN))
    if pre: a("s_branch %s" % l3)
    a.label(l1)
    a("buffer_load_dwordx2 v[%d:%d], v%d, s[%d:%d], 0 offen sc1" % (vd, vd + 1, va, SDBG, SDBG + 3))
    a.label(l3)
    a("s_waitcnt vmcnt(0)")
    a("v_readfirstlane_b32 s%d, v%d" % (sNON, vd)); a("v_readfirstlane_b32 s%d, v%d" % (sNON + 1, vd + 1))
    a("s_cmp_lg_u32 s%d, 0" % (sNON + 1))
    a("s_cbranch_scc1 %s" % l2)
    a("s_sleep 8")
    a("s_sub_u32 s%d, s%d, 1" % (sCNT, sCNT)); a("s_cmp_lg_u32 s%d, 0" % sCNT)
    a("s_cbranch_scc1 %s" % l1)
    a.label(l2)

def helper(a, sk_, L, spin_lds):
    a.label("K_HELP")
    a.vmq = []
    a("s_setprio 3")
    a("s_load_dwordx2 s[60:61], s[0:1], 64")
    a("s_sub_u32 s%d, s%d, 4" % (sKW, sWV))
    a("s_cmp_lg_u32 s%d, 7" % sWV)
    a("s_cbranch_scc1 K_NZ")
    a.begin_opt()
    a("v_lshlrev_b32 v2, 2, v1"); a("v_add_u32 v2, %d, v2" % L_SYNC); a("v_mov_b32 v3, 0")
    a("ds_write_b32 v2, v3")
    if KT: a("v_and_b32 v2, 3, v1"); a("v_mul_u32_u24 v2, %d, v2" % FLS); a("v_add_u32 v2, %d, v2" % (L_FL + 64)); a("ds_write_b32 v2, v3")
    else: a("ds_write_b32 v2, v3 offset:512")
    a.end_opt()
    a.label("K_NZ")
    a("s_and_b32 s%d, s%d, 1" % (sHF, sKW))
    a("s_lshr_b32 s%d, s%d, 1" % (sT0, sKW))
    a("s_sub_u32 s%d, s2, 32" % sCH)
    a("s_lshl_b32 s%d, s%d, 1" % (sCH, sCH))
    a("s_add_u32 s%d, s%d, s%d" % (sCH, sCH, sT0))
    a("s_mul_i32 s%d, s%d, %d" % (sCVB, sT0, CV_CH))
    a("s_add_u32 s%d, s%d, %d" % (sCVB, sCVB, L_CV))
    a("s_lshl_b32 s%d, s%d, 8" % (sT0, sCH))
    a("s_lshl_b32 s%d, s%d, 7" % (sT1, sHF))
    a("s_add_u32 s%d, s%d, s%d" % (sT0, sT0, sT1))
    a("v_add_u32 v2, s%d, v1" % sT0)
    a("v_lshlrev_b32 v2, 1, v2")
    a("s_lshl_b32 s%d, s%d, 1" % (sT1, sCH))
    a("v_mov_b32 v3, s%d" % sT1)
    a("s_waitcnt lgkmcnt(0)")
    P = [[20, 21, 22, 23, 24, 25], [120, 121, 122, 123, 124, 125]]
    a.vm("global_load_ushort v26, v3, s[30:31]", "param")
    for it in range(2):
        for i in range(6):
            a.vm("global_load_ushort v%d, v2, s[%d:%d] offset:%d" % (P[it][i], 18 + 2 * i, 19 + 2 * i, it * 128), "param")
    a.vm("global_load_ushort v160, v3, s[60:61]", "param")
    a("s_setprio %d" % int(os.environ.get("KPRIO", "2")))
    a("s_barrier")
    srd(a, SWS, 14, WS_SIZE)
    TLW = ENV("TLW", 0)
    PFA = ENV("PFA", 151); PFB = ENV("PFB", 0); PFH = ENV("PFH", 0); PFO = ENV("PFO", 0)
    def pf_w(which, trk=True):
        vm = (lambda t: a.vm(t, "tw")) if trk else a
        a("s_sub_u32 s%d, s2, 32" % sT0); a("s_lshl_b32 s%d, s%d, 2" % (sT0, sT0)); a("s_add_u32 s%d, s%d, s%d" % (sT0, sT0, sKW))
        if which == "B":
            n = (448 - PFB) * 28 // 896
            a("s_mul_i32 s%d, s%d, %d" % (sT1, sT0, n * 128)); a("s_add_u32 s%d, s%d, %d" % (sT1, sT1, PFB * 3584))
            a("v_lshl_add_u32 v253, v1, 7, s%d" % sT1)
            a("s_mov_b64 exec, 0x%x" % ((1 << n) - 1))
            vm("global_load_dword v250, v253, s[32:33]"); vm("global_load_dword v251, v253, s[34:35]")
            a("s_mov_b64 exec, -1")
        else:
            a("s_mul_i32 s%d, s%d, 1792" % (sT1, sT0))
            a("v_lshl_add_u32 v252, v1, 7, s%d" % sT1)
            a("s_mov_b64 exec, 0x3fff")
            vm("global_load_dword v252, v252, s[8:9]")
            a("s_mov_b64 exec, -1")
    def pf_c():
        a("s_and_b32 s%d, s%d, 3" % (sT0, sRT2)); a("s_mul_i32 s%d, s%d, 14" % (sT0, sT0))
        a("s_lshl_b32 s%d, s%d, 2" % (sT1, sKW)); a("s_lshr_b32 s%d, 0x331c, s%d" % (sT1, sT1)); a("s_and_b32 s%d, s%d, 15" % (sT1, sT1))
        a("s_add_u32 s%d, s%d, s%d" % (sT0, sT0, sT1)); a("s_mul_i32 s%d, s%d, 224" % (sT0, sT0)); a("s_add_u32 s%d, s%d, s%d" % (sT0, sT0, sCT)); a("s_lshl_b32 s%d, s%d, 7" % (sT0, sT0))
        a("v_mul_u32_u24 v174, 896, v1")
        a("s_cmp_lt_u32 s%d, 3" % sKW); a("s_cselect_b32 exec_lo, -1, 0"); a("s_mov_b32 exec_hi, 0")
        a("buffer_load_dword v174, v174, s[%d:%d], s%d offen" % (SWD, SWD + 3, sT0))
        a("s_mov_b64 exec, -1")
    def pf_f():
        a("s_lshl_b32 s%d, s%d, 1" % (sT0, sF)); a("s_lshr_b32 s%d, s%d, 1" % (sT1, sKW)); a("s_add_u32 s%d, s%d, s%d" % (sT0, sT0, sT1))
        a("s_mul_i32 s%d, s%d, 37" % (sT1, sT0)); a("s_lshr_b32 s%d, s%d, 8" % (sT1, sT1)); a("s_add_u32 s%d, s%d, s%d" % (sT0, sT0, sT1))
        a("s_lshl_b32 s%d, s%d, 1" % (sT1, sR)); a("s_add_u32 s%d, s%d, s%d" % (sT1, sT1, sHF)); a("s_lshl_b32 s%d, s%d, 5" % (sT1, sT1))
        a("s_add_u32 s%d, s%d, s%d" % (sT0, sT0, sT1)); a("s_lshl_b32 s%d, s%d, %d" % (sT0, sT0, FSH)); a("s_add_u32 s%d, s%d, %d" % (sT0, sT0, WS_HF))
        a("v_mov_b32 v174, s%d" % sT0)
        a("s_and_b32 s%d, s%d, 0xfffe" % (sT0, sCH)); a("s_add_u32 s%d, s%d, s%d" % (sT0, sT0, sHF)); a("s_lshl_b32 s%d, s%d, 8" % (sT0, sT0))
        a("s_add_u32 s%d, s%d, %d" % (sT0, sT0, WS_CF))
        a("v_writelane_b32 v174, s%d, 1" % sT0)
        a("s_mov_b64 exec, 3")
        a("buffer_load_dword v174, v174, s[%d:%d], 0 offen sc1" % (SWS, SWS + 3))
        a("s_mov_b64 exec, -1")
    def pf_h(trk=True):
        a("s_lshl_b32 s%d, s%d, 1" % (sT0, sR)); a("s_add_u32 s%d, s%d, s%d" % (sT0, sT0, sHF)); a("s_mul_i32 s%d, s%d, 56" % (sT0, sT0))
        a("s_lshl_b32 s%d, s%d, 2" % (sT1, sF)); a("s_add_u32 s%d, s%d, s%d" % (sT0, sT0, sT1))
        a("s_and_b32 s%d, s%d, 2" % (sT1, sKW)); a("s_add_u32 s%d, s%d, s%d" % (sT0, sT0, sT1)); a("s_lshl_b32 s%d, s%d, 12" % (sT0, sT0))
        a("v_lshlrev_b32 v174, 7, v1")
        t = "buffer_load_dword v174, v174, s[%d:%d], s%d offen" % (SWS, SWS + 3, sT0)
        if trk: a.vm(t, "tw")
        else: a(t)
    def pf_o(trk=True):
        a("s_lshl_b32 s%d, s%d, 2" % (sT0, sRT2)); a("s_add_u32 s%d, s%d, s%d" % (sT0, sT0, sKW))
        a("s_mul_i32 s%d, s%d, %d" % (sT0, sT0, 16 * 896)); a("s_lshl_b32 s%d, s%d, 7" % (sT1, sCT)); a("s_add_u32 s%d, s%d, s%d" % (sT0, sT0, sT1))
        a("v_mul_u32_u24 v166, 896, v1"); a("v_add_u32 v166, s%d, v166" % sT0)
        a("s_mov_b64 exec, 0xffff")
        t = "global_load_dword v166, v166, s[10:11]"
        if trk: a.vm(t, "tw")
        else: a(t)
        a("s_mov_b64 exec, -1")
    PFBT = ENV("PFBT", 1)
    if PFB and PFBT == 1: pf_w("B")
    if PFA == 1: pf_w("A")
    if PFH == 1: pf_h()
    if PFO == 1: pf_o()
    if TLW:
        a("v_bfe_u32 v4, v1, 2, 1"); a("v_mul_u32_u24 v4, 56, v4"); a("v_and_b32 v5, 3, v1"); a("v_add_u32 v4, v4, v5")
        a("s_mul_i32 s%d, s%d, 112" % (sT0, sR)); a("s_lshl_b32 s%d, s%d, 2" % (sT1, sF)); a("s_add_u32 s%d, s%d, s%d" % (sT0, sT0, sT1))
        a("v_add_u32 v4, s%d, v4" % sT0); a("v_lshlrev_b32 v4, 12, v4")
        a("s_lshl_b32 s%d, s%d, %d" % (sT0, sR, 6 + FSH)); a("s_add_u32 s%d, s%d, %d" % (sT0, sT0, WS_HF + 7 * 256))
        a("v_writelane_b32 v4, s%d, 8" % sT0)
        a("s_add_u32 s%d, s%d, %d" % (sT0, sT0, 32 << FSH))
        a("v_writelane_b32 v4, s%d, 9" % sT0)
        a("s_cmp_eq_u32 s%d, 1" % sKW); a("s_cselect_b32 exec_lo, 0x3ff, 0"); a("s_mov_b32 exec_hi, 0")
        a.vm("buffer_load_dword v174, v4, s[%d:%d], 0 offen" % (SWS, SWS + 3), "tw")
        a("s_mov_b64 exec, -1")
    if TLW >= 2:
        a("s_mul_i32 s%d, s%d, %d" % (sT0, sRT2, 64 * 896)); a("s_lshl_b32 s%d, s%d, 7" % (sT1, sCT)); a("s_add_u32 s%d, s%d, s%d" % (sT0, sT0, sT1))
        a("v_mul_u32_u24 v5, %d, v1" % (4 * 896)); a("v_add_u32 v5, s%d, v5" % sT0)
        a("s_cmp_eq_u32 s%d, 2" % sKW); a("s_cselect_b32 exec_lo, 0xffff, 0"); a("s_mov_b32 exec_hi, 0")
        a.vm("global_load_dword v174, v5, s[10:11]", "tw")
        a("s_mov_b64 exec, -1")
    a("s_mul_i32 s%d, s%d, %d" % (sSTG, sKW, STG_W))
    a("s_add_u32 s%d, s%d, %d" % (sSTG, sSTG, L_STG))
    a("v_and_b32 v7, 15, v1")
    a("v_lshrrev_b32 v6, 4, v1")
    a("v_mul_u32_u24 v5, 272, v7")
    a("v_lshl_add_u32 v8, v6, 4, s%d" % sSTG)
    a("v_add_u32 v5, v5, v8")
    maps = [[0,1,2,3,4,5,6,7, 8,8,9,10,10,10,11,12],
            [0,0,0,1,1,1,2,2, 3,3,3,4,4,4,5,5],
            [6,6,6,6,6,7,7,7, 8,8,8,8,8,9,9,9],
            [10,10,10,10,10,11,11,11, 12,12,12,12,12,13,13,13]]
    XA = [12, 13, 14, 15]
    a("v_lshlrev_b32 v9, 2, v7")
    a("v_and_b32 v9, 31, v9")
    a("v_cmp_gt_u32 vcc, 8, v7")
    for t in range(4):
        lo = sum(maps[t][i] << (4 * i) for i in range(8)); hi = sum(maps[t][8 + i] << (4 * i) for i in range(8))
        a("v_mov_b32 v10, 0x%x" % hi); a("v_mov_b32 v11, 0x%x" % lo)
        a("v_cndmask_b32 v10, v10, v11, vcc")
        a("v_lshrrev_b32 v10, v9, v10")
        a("v_and_b32 v10, 15, v10")
        a("v_mul_u32_u24 v10, 272, v10")
        a("v_add_u32 v%d, v10, v8" % XA[t])
    D = lambda t, yt: 128 + 8 * t + 4 * yt
    TRIM = ENV("TRIM", 1)
    if not TRIM:
        for r in range(128, 160): a("v_mov_b32 v%d, 0" % r)
    a("s_add_u32 s%d, s%d, %d" % (sT0, sKW, L_SYNC)); a("v_mov_b32 v161, s%d" % sT0)
    a("s_xor_b32 s%d, s%d, 1" % (sT1, sKW)); a("s_add_u32 s%d, s%d, %d" % (sT1, sT1, L_SYNC)); a("v_mov_b32 v162, s%d" % sT1)
    a("v_mov_b32 v163, 1")
    srd(a, SDBG, 12, 256)
    a("s_and_b32 s%d, s2, 7" % sT0); a("s_lshl_b32 s%d, s%d, 13" % (sT0, sT0)); a("s_add_u32 s%d, s%d, %d" % (sT0, sT0, WS_PF))
    a("v_and_b32 v112, 31, v1"); a("v_lshl_add_u32 v112, v112, 8, s%d" % sT0)
    a("v_mov_b32 v113, 64")
    a("v_mov_b32 v114, %d" % (L_SYNC + Y_RDA))
    a("s_cmp_lg_u32 s%d, 0" % sKW)
    a("s_cselect_b32 s%d, 0, 1" % sPM)
    def setf(off):
        a("s_mov_b64 exec, 1")
        a("ds_write_b8 v161, v163 offset:%d" % off)
        a("s_mov_b64 exec, -1")
    def waitp(off, tmp=164, tmpa=165):
        a("v_add_u32 v%d, %d, v162" % (tmpa, off))
        spin_lds(tmpa, tmp, 1)
    hooks = {}
    kc = [0]
    def k(t):
        a(t); kc[0] += 1
        if kc[0] in hooks: hooks.pop(kc[0])()
    if NSTA:
        srd(a, SWD, 8, 1792 * 896)
        a("v_lshrrev_b32 v16, 3, v1")
        a("s_mul_i32 s%d, s%d, %d" % (sT0, sKW, 448 * 896))
        a("v_mul_u32_u24 v16, 896, v16")
        a("s_lshl_b32 s%d, s%d, 7" % (sT1, sCT)); a("s_add_u32 s%d, s%d, s%d" % (sT0, sT0, sT1))
        a("v_add_u32 v16, s%d, v16" % sT0)
        a("v_bfe_u32 v18, v1, 4, 1"); a("v_xor_b32 v17, v1, v18"); a("v_and_b32 v17, 7, v17")
        a("v_lshl_add_u32 v170, v17, 4, v16")
    def st_ld(n):
        s_ = 14 - NSTA + n // 4; q = n % 4
        a("s_mov_b32 s%d, %d" % (sOW, ((2 * (s_ % 7) + s_ // 7) * 32 + 8 * q) * 896))
        a("buffer_load_dwordx4 %s, v%d, s[%d:%d], s%d offen" % (vr(176 + 4 * n, 4), 170, SWD, SWD + 3, sOW))
    SP0 = ENV("SP0", 300); SPD = ENV("SPD", 20)
    if SP0 >= 0:
        for n in range(4 * NSTA): hooks[SP0 + SPD * n] = lambda n=n: (st_ld(n), nst.append(n))
    if PFA > 1: hooks[PFA] = lambda: pf_w("A", False)
    if PFB and PFBT > 1: hooks[PFBT] = lambda: pf_w("B", False)
    if ENV("PFC", 0): hooks[ENV("PFC", 0)] = pf_c
    if ENV("PFF", 153): hooks[ENV("PFF", 153)] = pf_f
    if PFH > 1: hooks[PFH] = lambda: pf_h(False)
    if PFO > 1: hooks[PFO] = lambda: pf_o(False)
    nst = []
    a("v_lshlrev_b32 v172, 4, v1")
    a("s_cmp_lg_u32 s15, 0"); a("s_cselect_b32 s%d, 31, 30" % sT0); a("s_lshl_b32 s%d, s%d, 2" % (sT0, sT0)); a("v_mov_b32 v173, s%d" % sT0)
    def u_poll():
        a("s_cmp_lg_u32 s%d, 0" % sPM); a("s_cselect_b32 exec_lo, -1, 0"); a("s_mov_b32 exec_hi, 0")
        a("buffer_load_dword v169, v112, s[%d:%d], 0 offen sc1" % (SWS, SWS + 3))
        a("s_mov_b64 exec, -1")
        del nst[:]
    def u_dma():
        a("s_mul_i32 s%d, s%d, %d" % (sOW, sCH, XST))
        a("s_add_u32 s%d, s%d, %d" % (sOW, sOW, WS_XNT))
        for c in range(2):
            a("s_mov_b32 m0, %d" % (L_CV + c * CV_CH + O_U + 480))
            if c: a("s_add_u32 s%d, s%d, %d" % (sOW, sOW, XST))
            for q in range(4): a("buffer_load_dwordx4 v172, s[%d:%d], s%d offen offset:%d lds" % (SWS, SWS + 3, sOW, q * 1024))
        a("s_mov_b32 m0, %d" % (L_SYNC + Y_U))
        a("s_mov_b64 exec, 1")
        a("global_load_lds_dword v173, s[0:1]")
        a("s_mov_b64 exec, -1")
        a("s_mov_b32 s%d, 0" % sPM)
    def u_try():
        l = L("UT")
        a("s_cmp_eq_u32 s%d, 0" % sPM)
        a("s_cbranch_scc1 %s" % l)
        a.begin_opt()
        a("s_waitcnt vmcnt(%d)" % len(nst))
        a("v_cmp_ne_u32 vcc, s%d, v169" % sNON)
        a("s_cmp_lg_u32 vcc_lo, 0")
        a("s_cbranch_scc1 %s" % l)
        u_dma()
        a("s_mov_b32 m0, s%d" % sSTG)
        a.end_opt()
        a.label(l)
        a("s_nop 0")
    for p_ in os.environ.get("UP", "821").split(","):
        hooks[int(p_)] = u_poll; hooks[int(p_) + ENV("UD", 106)] = u_try
    def nonce_pub():
        ln2 = L("NF")
        a("s_cmp_eq_u32 s%d, 0" % sPM)
        a("s_cbranch_scc1 %s" % ln2)
        a.begin_opt()
        get_nonce(a, L, 113, 116, pre=True)
        a("s_mov_b64 exec, 1")
        a("ds_write_b64 v114, v[116:117] offset:%d" % (Y_NON - Y_RDA))
        a("s_mov_b64 exec, -1")
        a.end_opt()
        a.label(ln2)
    def pf_wd():
        srd(a, SWD, 8, 1792 * 896)
        a("s_lshr_b32 s%d, s2, 3" % sT0); a("s_sub_u32 s%d, s%d, 4" % (sT0, sT0)); a("s_lshl_b32 s%d, s%d, 2" % (sT0, sT0)); a("s_add_u32 s%d, s%d, s%d" % (sT0, sT0, sKW))
        a("s_mul_i32 s%d, s%d, %d" % (sT0, sT0, 112 * 128))
        a("v_lshlrev_b32 v200, 7, v1")
        a("s_add_u32 s%d, s%d, %d" % (sT1, sT0, 48 * 128))
        a("buffer_load_dword v201, v200, s[%d:%d], s%d offen" % (SWD, SWD + 3, sT0))
        a("buffer_load_dword v202, v200, s[%d:%d], s%d offen" % (SWD, SWD + 3, sT1))
    PFW = ENV("PFW", -1)
    GB, FB = (171, 175) if TRIM else (6, 7)
    if TRIM:
        a("v_lshl_add_u32 v18, v1, 4, s%d" % sSTG)
        a("s_xor_b32 s%d, s%d, 1" % (sT0, sKW)); a("s_mul_i32 s%d, s%d, %d" % (sT0, sT0, STG_W)); a("s_add_u32 s%d, s%d, %d" % (sT0, sT0, L_STG))
        a("v_lshl_add_u32 v19, v1, 4, s%d" % sT0)
        a("v_and_b32 v10, v6, v7"); a("v_and_b32 v10, s%d, v10" % sHF)
        a("v_cmp_ne_u32 s[16:17], 0, v10")
        a("v_lshrrev_b32 v10, 1, v6"); a("v_lshlrev_b32 v10, 9, v10")
        a("v_lshl_add_u32 v10, v7, 4, v10")
        a("v_and_b32 v11, 1, v6"); a("v_lshl_add_u32 v10, v11, 3, v10")
        a("s_add_u32 s%d, s%d, %d" % (sT0, sCVB, 4088 - 1024 - 256))
        a("s_lshl_b32 s%d, s%d, 11" % (sT2, sHF))
        a("s_sub_u32 s%d, s%d, s%d" % (sT0, sT0, sT2))
        a("v_sub_u32 v115, s%d, v10" % sT0)
        a("v_and_b32 v118, 3, v1"); a("v_add_u32 v118, %d, v118" % (L_SYNC + Y_CNT))
        a("v_lshlrev_b32 v4, 4, v1")
        for r in range(60, 64): a("v_mov_b32 v%d, 0" % r)
        a("v_add_u32 v119, %d, v4" % O_U)
        a("v_bfe_u32 v10, v1, 2, 2")
        a("v_mul_u32_u24 v10, %d, v10" % CPS)
        a("v_and_b32 v11, 3, v1")
        a("v_lshl_add_u32 v10, v11, 4, v10")
        a("v_add_u32 v10, 4096, v10")
        a("v_cmp_gt_u32 vcc, 32, v1")
        a("v_cndmask_b32 v119, v10, v119, vcc")
        a("v_add_u32 v119, s%d, v119" % sCVB)
        a("v_sub_u32 v10, 3, v7"); a("v_and_b32 v10, 3, v10")
        a("v_mul_u32_u24 v171, %d, v10" % CPS)
        a("v_add_u32 v11, v7, v10")
        a("v_sub_u32 v11, %d, v11" % (2031 - 16 * 126))
        a("v_lshl_add_u32 v11, v6, 3, v11")
        a("v_lshl_add_u32 v171, v11, 1, v171")
        a("s_lshl_b32 s%d, s%d, 8" % (sT0, sHF))
        a("s_sub_u32 s%d, s%d, s%d" % (sT1, sCVB, sT0))
        a("v_add_u32 v171, s%d, v171" % sT1)
        a("v_lshlrev_b32 v175, 5, v7")
        a("v_lshl_add_u32 v175, v6, 4, v175")
        a("v_add_u32 v175, %d, v175" % O_U)
        a("v_add_u32 v175, s%d, v175" % sT1)
        a("s_add_u32 s%d, s%d, s%d" % (sT3, sCVB, sT2))
        a("v_add_u32 v168, s%d, v4" % sT3)
        a("s_and_b32 s%d, s%d, 2" % (sT0, sKW)); a("s_lshl_b32 s%d, s%d, 2" % (sT0, sT0)); a("s_add_u32 s%d, s%d, %d" % (sT0, sT0, L_SYNC + Y_KEXP))
        a("v_mov_b32 v9, s%d" % sT0)
    a.wait_vm("param")
    if TRIM: a("v_mov_b32 v2, v7"); a("v_mov_b32 v3, v6")
    if PFW == 0: pf_wd()
    sk_("param")
    a("s_mov_b32 exec_lo, s%d" % sPM); a("s_mov_b32 exec_hi, 0")
    a("buffer_load_dwordx2 v[116:117], v113, s[%d:%d], 0 offen sc1" % (SDBG, SDBG + 3))
    a("s_mov_b64 exec, -1")
    if "nokgen" in EXP: nonce_pub()
    for it in range(2):
        for r in P[it]: k("v_lshlrev_b32 v%d, 16, v%d" % (r, r))
    k("v_lshlrev_b32 v26, 16, v26")
    k("v_mul_f32 v26, %s, v26" % fbits(LOG2E))
    k("v_exp_f32 v26, v26")
    k("v_cvt_pk_bf16_f32 v26, v26, v26")
    k("v_lshlrev_b32 v26, 16, v26")
    WR = [28, 126]
    for it in range(2):
        p = P[it]
        k("v_mul_f32 v%d, v26, v%d" % (p[0], p[0])); k("v_mul_f32 v%d, v26, v%d" % (p[1], p[1]))
        k("v_mul_f32 v%d, v26, v%d" % (p[2], p[2])); k("v_mul_f32 v%d, v26, v%d" % (p[3], p[3]))
        w = WR[it]
        k("v_mul_f32 v%d, v%d, v%d" % (w, p[4], p[2])); k("v_fma_f32 v%d, -v%d, v%d, v%d" % (w, p[5], p[3], w))
        k("v_mul_f32 v%d, v%d, v%d" % (w + 1, p[4], p[3])); k("v_fma_f32 v%d, v%d, v%d, v%d" % (w + 1, p[5], p[2], w + 1))
    k("v_max_f32 v27, abs(v28), abs(v29)")
    k("v_max3_f32 v27, abs(v126), abs(v127), v27")
    for sh in (1, 2, 4, 8):
        k("v_max_f32_dpp v27, v27, v27 row_shr:%d row_mask:0xf bank_mask:0xf" % sh)
    k("v_max_f32_dpp v27, v27, v27 row_bcast:15 row_mask:0xa bank_mask:0xf")
    k("v_max_f32_dpp v27, v27, v27 row_bcast:31 row_mask:0xc bank_mask:0xf")
    k("v_readlane_b32 s%d, v27, 63" % sINV)
    k("s_lshr_b32 s%d, s%d, 23" % (sINV, sINV))
    if TRIM: k("s_add_u32 s%d, s%d, 1" % (sINV, sINV))
    else:
        k("s_sub_u32 s%d, 254, s%d" % (sSC, sINV))
        k("s_lshl_b32 s%d, s%d, 23" % (sSC, sSC))
    k("v_mov_b32 v10, s%d" % sINV)
    k("s_lshl_b32 s%d, s%d, 2" % (sT1, sKW))
    k("s_add_u32 s%d, s%d, %d" % (sT1, sT1, L_SYNC + Y_KEXP))
    k("v_mov_b32 v11, s%d" % sT1)
    k("ds_write_b32 v11, v10")
    def wscale():
        for w in WR:
            k("v_mul_f32 v%d, s%d, v%d" % (w, sSC, w)); k("v_mul_f32 v%d, s%d, v%d" % (w + 1, sSC, w + 1))
    def common_scale():
        l1, l2, l3 = L("KS"), L("KS"), L("KS")
        a("s_mov_b32 s%d, %d" % (sCNT, SPIN))
        a("s_waitcnt lgkmcnt(15)")
        a("s_branch %s" % l3)
        a.label(l1)
        a("ds_read_b64 v[10:11], v9")
        a("s_waitcnt lgkmcnt(0)")
        a.label(l3)
        a("v_readfirstlane_b32 s%d, v10" % sT0); a("v_readfirstlane_b32 s%d, v11" % sT1)
        a("s_min_u32 s%d, s%d, s%d" % (sSC, sT0, sT1))
        a("s_cmp_lg_u32 s%d, 0" % sSC)
        a("s_cbranch_scc1 %s" % l2)
        a("s_sub_u32 s%d, s%d, 1" % (sCNT, sCNT)); a("s_cmp_lg_u32 s%d, 0" % sCNT)
        a("s_cbranch_scc1 %s" % l1)
        a.label(l2)
        a("s_max_u32 s%d, s%d, s%d" % (sINV, sT0, sT1))
        a("s_sub_u32 s%d, 255, s%d" % (sSC, sINV)); a("s_lshl_b32 s%d, s%d, 23" % (sSC, sSC))
        a("s_sub_u32 s%d, s%d, 1" % (sINV, sINV)); a("s_lshl_b32 s%d, s%d, 23" % (sINV, sINV))
        wscale()
    if not TRIM: wscale()
    k("s_mov_b32 m0, s%d" % sSTG)
    E1, E8, E256, E2, E4, E16 = 30, 32, 34, 36, 38, 40
    tmpi = [0]
    def cmul(d, x, y):
        t = 42 + (tmpi[0] & 3); tmpi[0] += 1
        assert d != y
        k("v_mul_f32 v%d, v%d, v%d" % (t, x, y + 1))
        k("v_mul_f32 v%d, v%d, v%d" % (d, x, y))
        k("v_fma_f32 v%d, -v%d, v%d, v%d" % (d, x + 1, y + 1, d))
        k("v_fma_f32 v%d, v%d, v%d, v%d" % (d + 1, x + 1, y, t))
    PK = [46, 47, 48, 49]; pki = [0]
    def put(row, r, negim=False):
        p = PK[pki[0] & 3]; pki[0] += 1
        k("v_cvt_pk_f16_f32 v%d, v%d, %sv%d" % (p, r, "-" if negim else "", r + 1))
        if "nokw" in EXP or ("halfkw" in EXP and (pki[0] & 1)): k("; skip"); return
        k("ds_write_addtid_b32 v%d offset:%d" % (p, row * 272))
    YF = [64, 80]; XFB = 96
    for it in range(2 if "nokgen" not in EXP else 0):
        are, aim = P[it][0], P[it][1]
        if it == 1 and PFW == 1: pf_wd()
        X0 = WR[it]
        def cexp(d, Lx):
            k("v_mul_f32 v16, %s, v%d" % (fbits(Lx * LOG2E), are))
            k("v_mul_f32 v17, %s, v%d" % (fbits(Lx / (2 * math.pi)), aim))
            k("v_exp_f32 v16, v16")
            k("v_fract_f32 v17, v17")
            k("v_cos_f32 v%d, v17" % d)
            k("v_sin_f32 v%d, v17" % (d + 1))
            k("v_mul_f32 v%d, v16, v%d" % (d, d))
            k("v_mul_f32 v%d, v16, v%d" % (d + 1, d + 1))
        cexp(E8, 8); cexp(E1, 1); cexp(E256, 256)
        cmul(E16, E8, E8); cmul(E2, E1, E1); cmul(E4, E2, E2)
        Ya, Yb = 50, 52
        k("v_mov_b32 v50, 1.0"); k("v_mov_b32 v51, 0")
        put(0, Ya); put(1, E8)
        cmul(Yb, E8, E16)
        put(2, E16); put(3, Yb)
        cmul(Ya, E16, E16)
        for j in range(4, 32, 2):
            cmul(Yb, Yb, E16)
            put(j & 15, Ya); put((j + 1) & 15, Yb)
            if j + 2 < 32: cmul(Ya, Ya, E16)
            if TRIM and it == 0 and j == ENV("KSJ", 12): k("ds_read_b64 v[10:11], v9")
            if j == 14:
                for ks in range(4): k("ds_read_b128 %s, v5 offset:%d" % (vr(YF[0] + 4 * ks, 4), ks * 64))
        for ks in range(4): k("ds_read_b128 %s, v5 offset:%d" % (vr(YF[1] + 4 * ks, 4), ks * 64))
        Xa, Xb, Xc = 54, 56, 58
        if it == 0 and TRIM: common_scale()
        if it == 0: nonce_pub()
        put(0, X0, True)
        cmul(Xa, X0, E1); cmul(Xb, X0, E256)
        put(1, Xa, True); put(8, Xb, True)
        cmul(Xc, Xb, E2)
        for r in range(2, 8):
            cmul(Xa, Xa, E1); put(r, Xa, True)
            if r <= 5:
                put(9 + (r - 2), Xc, True)
                if r < 5: cmul(Xc, Xc, E2)
        def xtile(t):
            for ks in range(4): k("ds_read_b128 %s, v%d offset:%d" % (vr(XFB + 4 * ks, 4), XA[t], ks * 64))
        def xmfma(t):
            for ks in range(4):
                for yt in range(2):
                    k("v_mfma_f32_16x16x32_f16 %s, %s, %s, %s" % (vr(D(t, yt), 4), vr(XFB + 4 * ks, 4), vr(YF[yt] + 4 * ks, 4), "0" if TRIM and it == 0 and ks == 0 else vr(D(t, yt), 4)))
        xtile(0)
        for b in range(2):
            cmul(Xb, Xb, E256); put(3 * b, Xb, True)
            cmul(Xc, Xb, E4); put(3 * b + 1, Xc, True)
            cmul(Xa, Xb, E8); put(3 * b + 2, Xa, True)
        k("s_waitcnt lgkmcnt(6)")
        xmfma(0)
        xtile(1)
        for b in range(4):
            cmul(Xb, Xb, E256); put(6 + 2 * b, Xb, True)
            cmul(Xa, Xb, E8); put(7 + 2 * b, Xa, True)
        k("s_waitcnt lgkmcnt(8)")
        xmfma(1)
        for t in (2, 3):
            xtile(t)
            k("s_waitcnt lgkmcnt(0)")
            xmfma(t)
    if ENV("VERB", 0): print("kgen instrs", kc[0])
    if "nokgen" in EXP:
        for kk_ in sorted(hooks): hooks[kk_]()
        hooks.clear()
    assert not hooks
    sk_("kgen")
    a("s_setprio %d" % ENV("XPRIO", 2))
    u_poll()
    if TRIM:
        x1, x2 = L("X"), L("X")
        a("s_cmp_lg_u32 s%d, 0" % sHF)
        a("s_cbranch_scc1 %s" % x1)
        a.begin_opt()
        for i in range(4): a("ds_write_b128 v18, %s offset:%d" % (vr(144 + 4 * i, 4), i * 1024))
        setf(Y_KX)
        waitp(Y_KX)
        for i in range(4): a("ds_read_b128 %s, v19 offset:%d" % (vr(144 + 4 * i, 4), i * 1024))
        a("s_branch %s" % x2)
        a.end_opt()
        a.label(x1)
        a.begin_opt()
        for i in range(4): a("ds_write_b128 v18, %s offset:%d" % (vr(128 + 4 * i, 4), i * 1024))
        setf(Y_KX)
        waitp(Y_KX)
        for i in range(4): a("ds_read_b128 %s, v19 offset:%d" % (vr(128 + 4 * i, 4), i * 1024))
        a.end_opt()
        a.label(x2)
        a("ds_read_u8 v164, v118 offset:%d" % Y_RD)
        a("s_lshl_b32 s%d, s%d, 11" % (sT2, sHF))
        a("s_add_u32 s%d, s%d, s%d" % (sT3, sCVB, sT2))
        for i in range(4):
            b = 128 + 4 * i
            a("s_waitcnt lgkmcnt(%d)" % (4 - i))
            for e in range(4): a("v_add_f32 v%d, v%d, v%d" % (b + e, b + e, b + 16 + e))
            a("v_cndmask_b32 v%d, v%d, v%d, s[16:17]" % (b, b, b + 1))
            a("v_cvt_pk_f16_f32 v%d, v%d, v%d" % (64 + 2 * i, b + 3, b + 2))
            a("v_cvt_pk_f16_f32 v%d, v%d, v%d" % (65 + 2 * i, b + 1, b))
        xs = L("XS")
        a("s_waitcnt lgkmcnt(0)")
        a("v_cmp_gt_u32 vcc, 10, v164")
        a("s_cbranch_vccz %s" % xs)
        a.begin_opt()
        spin_lds(118, 164, 10, slp=4, off=Y_RD)
        a.end_opt()
        a.label(xs)
        for tl in range(2):
            for yt in range(2):
                a("ds_write_b64 v115, %s offset:%d" % (vr(64 + 4 * tl + 2 * yt, 2), (1 - tl) * 1024 + (1 - yt) * 256))
        a("s_setprio %d" % int(os.environ.get("CPRIO", "2")))
        a("s_cmp_lg_u32 s%d, 0" % sHF)
        a("s_cselect_b32 exec_lo, 0, 0x3fffffff"); a("s_cselect_b32 exec_hi, 0, 0xffff")
        a("ds_write_b128 v119, v[60:63]")
        setf(Y_C0)
        a("v_mov_b32 v5, v168")
    else:
        a("v_lshl_add_u32 v18, v1, 4, s%d" % sSTG)
        a("s_xor_b32 s%d, s%d, 1" % (sT0, sKW))
        a("s_mul_i32 s%d, s%d, %d" % (sT0, sT0, STG_W))
        a("s_add_u32 s%d, s%d, %d" % (sT0, sT0, L_STG))
        a("v_lshl_add_u32 v19, v1, 4, s%d" % sT0)
        x1, x2 = L("X"), L("X")
        a("s_cmp_lg_u32 s%d, 0" % sHF)
        a("s_cbranch_scc1 %s" % x1)
        a.begin_opt()
        for i in range(4): a("ds_write_b128 v18, %s offset:%d" % (vr(144 + 4 * i, 4), i * 1024))
        a("s_branch %s" % x2)
        a.end_opt()
        a.label(x1)
        a.begin_opt()
        for i in range(4): a("ds_write_b128 v18, %s offset:%d" % (vr(128 + 4 * i, 4), i * 1024))
        for i in range(16): a("v_mov_b32 v%d, v%d" % (128 + i, 144 + i))
        a.end_opt()
        a.label(x2)
        setf(Y_KX)
        waitp(Y_KX)
        a("s_and_b32 s%d, s%d, 2" % (sT0, sKW))
        a("s_lshl_b32 s%d, s%d, 2" % (sT0, sT0))
        a("s_add_u32 s%d, s%d, %d" % (sT0, sT0, L_SYNC + Y_KEXP))
        a("v_mov_b32 v10, s%d" % sT0)
        a("ds_read_b64 v[10:11], v10")
        for i in range(4): a("ds_read_b128 %s, v19 offset:%d" % (vr(144 + 4 * i, 4), i * 1024))
        a("s_waitcnt lgkmcnt(4)")
        a("v_max_u32 v16, v10, v11")
        a("v_add_u32 v17, v10, v11"); a("v_subrev_u32 v17, s%d, v17" % sINV)
        def fac(dst, esrc):
            a("v_sub_u32 v%d, %s, v16" % (dst, esrc))
            a("v_add_u32 v%d, 127, v%d" % (dst, dst))
            a("v_max_i32 v%d, 0, v%d" % (dst, dst))
            a("v_lshlrev_b32 v%d, 23, v%d" % (dst, dst))
        fac(20, "s%d" % sINV); fac(22, "v17")
        a("v_lshlrev_b32 v9, 23, v16")
        a("s_waitcnt lgkmcnt(0)")
        for i in range(16):
            a("v_mul_f32 v%d, v20, v%d" % (128 + i, 128 + i))
            a("v_fmac_f32 v%d, v22, v%d" % (128 + i, 144 + i))
        a("v_and_b32 v10, v6, v7"); a("v_and_b32 v10, s%d, v10" % sHF)
        a("v_cmp_ne_u32 vcc, 0, v10")
        for i in range(4): a("v_cndmask_b32 v%d, v%d, v%d, vcc" % (128 + 4 * i, 128 + 4 * i, 129 + 4 * i))
        a("v_lshrrev_b32 v10, 1, v6"); a("v_lshlrev_b32 v10, 9, v10")
        a("v_lshl_add_u32 v10, v7, 4, v10")
        a("v_and_b32 v11, 1, v6"); a("v_lshl_add_u32 v10, v11, 3, v10")
        a("s_add_u32 s%d, s%d, %d" % (sT0, sCVB, 4088 - 1024 - 256))
        a("s_lshl_b32 s%d, s%d, 11" % (sT2, sHF))
        a("s_sub_u32 s%d, s%d, s%d" % (sT0, sT0, sT2))
        a("v_sub_u32 v10, s%d, v10" % sT0)
        for tl in range(2):
            for yt in range(2):
                b = 128 + 8 * tl + 4 * yt
                a("v_cvt_pk_f16_f32 v%d, v%d, v%d" % (64 + 4 * tl + 2 * yt, b + 3, b + 2))
                a("v_cvt_pk_f16_f32 v%d, v%d, v%d" % (65 + 4 * tl + 2 * yt, b + 1, b))
        a("v_and_b32 v11, 3, v1"); a("v_add_u32 v11, %d, v11" % (L_SYNC + Y_CNT))
        spin_lds(11, 164, 10, slp=4, off=Y_RD)
        for tl in range(2):
            for yt in range(2):
                a("ds_write_b64 v10, %s offset:%d" % (vr(64 + 4 * tl + 2 * yt, 2), (1 - tl) * 1024 + (1 - yt) * 256))
        if "dbgk" in EXP:
            a("s_mul_i32 s%d, s%d, %d" % (sT0, sCH, KSTRIDE)); a("s_sub_u32 s%d, s%d, s%d" % (sT0, sT0, sCVB)); a("s_add_u32 s%d, s%d, %d" % (sT0, sT0, WS_KREV))
            for tl in range(2):
                for yt in range(2):
                    a("buffer_store_dwordx2 %s, v10, s[%d:%d], s%d offen offset:%d" % (vr(64 + 4 * tl + 2 * yt, 2), SWS, SWS + 3, sT0, (1 - tl) * 1024 + (1 - yt) * 256))
            a("s_lshl_b32 s%d, s%d, 2" % (sT0, sCH)); a("s_add_u32 s%d, s%d, %d" % (sT0, sT0, WS_KSC)); a("v_mov_b32 v11, s%d" % sT0)
            a("buffer_store_dword v9, v11, s[%d:%d], 0 offen" % (SWS, SWS + 3))
        a("s_setprio %d" % int(os.environ.get("CPRIO", "2")))
        a("v_mov_b32 v2, v7"); a("v_mov_b32 v3, v6")
        a("v_lshlrev_b32 v4, 4, v1")
        a("v_mov_b32 v12, 0"); a("v_mov_b32 v13, 0"); a("v_mov_b32 v14, 0"); a("v_mov_b32 v15, 0")
        a("v_add_u32 v5, %d, v4" % O_U)
        a("v_bfe_u32 v6, v1, 2, 2")
        a("v_mul_u32_u24 v6, %d, v6" % CPS)
        a("v_and_b32 v7, 3, v1")
        a("v_lshl_add_u32 v6, v7, 4, v6")
        a("v_add_u32 v6, 4096, v6")
        a("v_cmp_gt_u32 vcc, 32, v1")
        a("v_cndmask_b32 v5, v6, v5, vcc")
        a("v_add_u32 v5, s%d, v5" % sCVB)
        nz = L("NZ")
        a("s_cmp_lg_u32 s%d, 0" % sHF)
        a("s_cbranch_scc1 %s" % nz)
        a.begin_opt()
        a("s_mov_b32 exec_lo, 0x3fffffff"); a("s_mov_b32 exec_hi, 0xffff")
        a("ds_write_b128 v5, v[12:15]")
        a("s_mov_b64 exec, -1")
        a.end_opt()
        a.label(nz)
        setf(Y_C0)
        a("v_sub_u32 v5, 3, v2"); a("v_and_b32 v5, 3, v5")
        a("v_mul_u32_u24 v6, %d, v5" % CPS)
        a("v_add_u32 v7, v2, v5")
        a("v_sub_u32 v7, %d, v7" % (2031 - 16 * 126))
        a("v_lshl_add_u32 v7, v3, 3, v7")
        a("v_lshl_add_u32 v6, v7, 1, v6")
        a("s_lshl_b32 s%d, s%d, 8" % (sT0, sHF))
        a("s_sub_u32 s%d, s%d, s%d" % (sT1, sCVB, sT0))
        a("v_add_u32 v6, s%d, v6" % sT1)
        a("v_lshlrev_b32 v7, 5, v2")
        a("v_lshl_add_u32 v7, v3, 4, v7")
        a("v_add_u32 v7, %d, v7" % O_U)
        a("v_add_u32 v7, s%d, v7" % sT1)
        a("s_add_u32 s%d, s%d, s%d" % (sT3, sCVB, sT2))
        a("v_add_u32 v5, s%d, v4" % sT3)
    lq, lq2, lq3 = L("PB"), L("PB"), L("PB")
    a("s_cmp_eq_u32 s%d, 0" % sPM)
    a("s_cbranch_scc1 %s" % lq3)
    a.begin_opt()
    a("s_mov_b32 s%d, %d" % (sOX, SPIN))
    a.label(lq)
    a("s_waitcnt vmcnt(0)")
    a("v_cmp_ne_u32 vcc, s%d, v169" % sNON)
    a("s_cmp_eq_u32 vcc_lo, 0")
    a("s_cbranch_scc1 %s" % lq2)
    a("s_sleep %d" % int(os.environ.get("PSL", "20")))
    a("s_mov_b32 exec_hi, 0")
    a("buffer_load_dword v169, v112, s[%d:%d], 0 offen sc1" % (SWS, SWS + 3))
    a("s_mov_b64 exec, -1")
    a("s_sub_u32 s%d, s%d, 1" % (sOX, sOX)); a("s_cmp_lg_u32 s%d, 0" % sOX)
    a("s_cbranch_scc1 %s" % lq)
    a.label(lq2)
    u_dma()
    a.end_opt()
    a.label(lq3)
    sk_("rdyB")
    waitp(Y_C0)
    for it in range(2):
        b = 32 + 8 * it
        a("ds_read_b128 %s, v5 offset:%d" % (vr(b, 4), it * 1024))
        a("ds_read_b64 %s, v5 offset:%d" % (vr(b + 4, 2), it * 1024 + 16))
    for it in range(2):
        b = 32 + 8 * it
        a("s_waitcnt lgkmcnt(%d)" % (2 if it == 0 else 3))
        d = [b + i for i in range(6)]
        c1, c2, c3 = 64 + 12 * it, 68 + 12 * it, 72 + 12 * it
        for i in range(4):
            a("v_alignbit_b32 v%d, v%d, v%d, 16" % (c1 + i, d[i + 1], d[i]))
            a("v_mov_b32 v%d, v%d" % (c2 + i, d[i + 1]))
            a("v_alignbit_b32 v%d, v%d, v%d, 16" % (c3 + i, d[i + 2], d[i + 1]))
        a("ds_write_b128 v5, %s offset:%d" % (vr(c1, 4), CPS + it * 1024))
        a("ds_write_b128 v5, %s offset:%d" % (vr(c2, 4), 2 * CPS + it * 1024))
        a("ds_write_b128 v5, %s offset:%d" % (vr(c3, 4), 3 * CPS + it * 1024))
    sk_("copies")
    CA = 16; G = 64; F = 96
    if not TRIM:
        for r in range(CA, CA + 32): a("v_mov_b32 v%d, 0" % r)
    setf(Y_BL)
    spin_lds(114, 164, 1, width="b32", slp=1, off=Y_U - Y_RDA)
    a("ds_read_b64 v[166:167], v114 offset:%d" % (Y_NON - Y_RDA))
    waitp(Y_BL)
    sk_("built")
    if YP == 3 and "nopp" not in EXP:
        a("v_mov_b32 v174, v112")
        a("s_mov_b32 exec_hi, 0")
        a("buffer_load_dword v169, v174, s[%d:%d], 0 offen offset:128 sc1" % (SWS, SWS + 3))
        a("s_mov_b64 exec, -1")
    a("s_setprio %d" % ENV("MPRIO", 1))
    def rg(ri, q):
        o = 32 * (126 - 16 * q - 2 * ri)
        a("ds_read_b64 %s, v%d offset:%d" % (vr(G + 4 * q, 2), GB, o))
        a("ds_read_b64 %s, v%d offset:%d" % (vr(G + 4 * q + 2, 2), GB, o + 8))
    def rf(ri, j):
        a("ds_read_b128 %s, v%d offset:%d" % (vr(F + 4 * j, 4), FB, 32 * (16 * j - 2 * ri + 14)))
    side = []
    S = side.append
    S("v_lshlrev_b32 v8, 16, v160")
    XW, XO = 128, 136
    for i in range(4):
        for pr in range(2):
            xw = XW + 2 * i + pr; o = XO + 4 * i + 2 * pr
            S("v_cvt_f32_f16 v%d, v%d" % (o, xw))
            S("v_lshrrev_b32 v%d, 16, v%d" % (o + 1, xw)); S("v_cvt_f32_f16 v%d, v%d" % (o + 1, o + 1))
            S("v_mul_f32 v%d, v8, v%d" % (o, o)); S("v_mul_f32 v%d, v8, v%d" % (o + 1, o + 1))
            S("v_cvt_pk_bf16_f32 v%d, v%d, v%d" % (o, o, o + 1))
            S("v_and_b32 v%d, 0xffff0000, v%d" % (o + 1, o)); S("v_lshlrev_b32 v%d, 16, v%d" % (o, o))
    S("v_lshl_add_u32 v5, v1, 4, s%d" % sSTG)
    S("s_xor_b32 s%d, s%d, 1" % (sT0, sKW))
    S("s_mul_i32 s%d, s%d, %d" % (sT0, sT0, STG_W))
    S("s_add_u32 s%d, s%d, %d" % (sT0, sT0, L_STG))
    S("v_lshl_add_u32 v152, v1, 4, s%d" % sT0)
    S("v_and_b32 v13, 1, v3"); S("v_lshlrev_b32 v13, 9, v13")
    S("v_lshrrev_b32 v14, 2, v2"); S("v_lshl_add_u32 v13, v14, 7, v13")
    S("v_lshrrev_b32 v14, 1, v3"); S("v_lshl_add_u32 v13, v14, 6, v13")
    S("v_and_b32 v14, 3, v2"); S("v_lshl_add_u32 v13, v14, 4, v13")
    S("v_add_u32 v13, s%d, v13" % sT2)
    S("s_and_b32 s%d, s%d, 0xfffe" % (sT0, sCH)); S("s_add_u32 s%d, s%d, s%d" % (sT0, sT0, sHF)); S("s_lshl_b32 s%d, s%d, 8" % (sT0, sT0))
    S("s_and_b32 s%d, s%d, 1" % (sT1, sCH)); S("s_lshl_b32 s%d, s%d, 3" % (sT1, sT1))
    S("s_add_u32 s%d, s%d, s%d" % (sT0, sT0, sT1))
    S("s_add_u32 s%d, s%d, %d" % (sT0, sT0, WS_CF))
    S("v_mov_b32 v14, s%d" % sT0)
    S("v_readfirstlane_b32 s%d, v166" % sNON); S("v_readfirstlane_b32 s%d, v167" % (sNON + 1))
    S("s_lshl_b32 s%d, s%d, 14" % (sT0, sCT))
    S("s_lshl_b32 s%d, s%d, 12" % (sT1, sKW))
    S("s_add_u32 s%d, s%d, s%d" % (sT0, sT0, sT1))
    S("s_lshr_b32 s%d, s%d, 4" % (sT1, sRT2)); S("s_lshl_b32 s%d, s%d, 8" % (sT1, sT1))
    S("s_add_u32 s%d, s%d, s%d" % (sT0, sT0, sT1))
    S("s_add_u32 s%d, s%d, %d" % (sT0, sT0, WS_CF))
    S("v_lshrrev_b32 v153, 1, v2"); S("v_lshl_add_u32 v153, v153, 9, s%d" % sT0)
    S("v_and_b32 v154, 1, v2"); S("v_lshl_add_u32 v153, v154, 3, v153")
    S("s_lshl_b32 s%d, s%d, 4" % (sT0, sKW))
    S("v_lshrrev_b32 v154, 3, v1")
    S("v_add_u32 v154, s%d, v154" % sT0)
    S("s_lshl_b32 s%d, s%d, 6" % (sT0, sCT))
    S("v_add_u32 v154, s%d, v154" % sT0)
    S("v_mul_u32_u24 v154, %d, v154" % YST)
    S("v_and_b32 v155, 7, v1")
    S("v_lshl_add_u32 v154, v155, 4, v154")
    S("s_lshl_b32 s%d, s%d, 7" % (sT2, sRT2))
    S("s_add_u32 s%d, s%d, %d" % (sT2, sT2, WS_YAT))
    S("s_add_u32 s%d, s%d, %d" % (sT3, sT2, 8 * YST))
    S("s_mul_i32 s%d, s%d, %d" % (sT0, sCH, YST))
    S("s_add_u32 s%d, s%d, %d" % (sT0, sT0, WS_YAT))
    S("v_add_u32 v165, %d, v162" % Y_CX)
    if NSTA:
        S("s_lshl_b32 s%d, s%d, 13" % (sOX, sHF)); S("s_add_u32 s%d, s%d, s%d" % (sOX, sOX, sCVB)); S("v_lshl_add_u32 v157, v1, 4, s%d" % sOX)
        if SP0 < 0:
            side2 = []
            for n in range(4 * NSTA): side2.append(n)
    def copy_part(part):
        for n in range(4 * NSTA):
            s_ = 14 - NSTA + n // 4; q = n % 4
            if (s_ >= 12) != (part == 1): continue
            if s_ >= 12: ad, of = 157, (s_ - 12) * 4096
            elif WDS[s_ % 6] >= 65536: ad, of = 158, WDS[s_ % 6] - 65536
            else: ad, of = 156, WDS[s_ % 6]
            a("ds_write_b128 v%d, %s offset:%d" % (ad, vr(176 + 4 * n, 4), of + q * 1024))
            cw = ENV("CW%d" % part, part + 1)
            if cw >= 100: a("s_sleep %d" % (cw - 100))
            elif cw:
                for _ in range(cw): a("s_nop 7")
        a("v_mov_b32 v159, %d" % (part + 1))
        a("s_mov_b64 exec, 1")
        a("ds_write_b8 v161, v159 offset:%d" % Y_WS)
        a("s_mov_b64 exec, -1")
    def copy_out():
        l = L("CA")
        a("s_cmp_lg_u32 s%d, 0" % sLD)
        a("s_cbranch_scc1 %s" % l)
        copy_part(0)
        a.label(l)
        copy_part(1)
    def copy_try():
        l = L("CA")
        a("v_cmp_gt_u32 vcc, 1, v164")
        a("s_cmp_lg_u32 s%d, 0" % sLD)
        a("s_cbranch_scc1 %s" % l)
        a("s_cbranch_vccnz %s" % l)
        a.begin_opt()
        a("s_waitcnt vmcnt(0)")
        a("s_mov_b32 s%d, 1" % sLD)
        copy_part(0)
        a.end_opt()
        a.label(l)
    CTRY = [int(x) for x in os.environ.get("CTRY", "9").split(",")]
    a("s_mov_b32 s%d, 0" % sLD)
    a("s_lshl_b32 s%d, s%d, 12" % (sOX, sKW)); a("v_lshl_add_u32 v156, v1, 4, s%d" % sOX); a("v_add_u32 v158, 65536, v156")
    a("v_lshlrev_b32 v13, 5, v2")
    a("v_lshl_add_u32 v13, v3, 3, v13")
    a("s_add_u32 s%d, s%d, %d" % (sT1, sT3, O_U + 480))
    a("v_add_u32 v14, s%d, v13" % sT1)
    for i in range(4): a("ds_read_b64 %s, v14 offset:%d" % (vr(XW + 2 * i, 2), i * 512))
    for q in range(8): rg(0, q); rf(0, 7 - q)
    nm = 0
    if "noconv" in EXP:
        a("s_waitcnt lgkmcnt(0)")
        while side: a(side.pop(0))
    EC = ENV("EC", 0); ECR = ENV("ECR", 2); ECS = ENV("ECS", 5); ECN = ENV("ECN", 1)
    ecq = []
    def ec_start():
        a("v_cmp_le_u32 s[86:87], 1, v164")
        a("v_mov_b32 v159, 1")
        a("s_and_b32 s%d, s86, 1" % sLD)
        a("s_waitcnt vmcnt(%d)" % (1 if YP == 3 else 0))
        for n in range(0, 12, ECN):
            ecq.append(["s_mov_b64 exec, s[86:87]"])
            for n_ in range(n, n + ECN):
                s_ = 9 + n_ // 4; hi = WDS[s_ % 6] >= 65536
                ecq[-1].append("ds_write_b128 v%d, %s offset:%d" % ((156, 158)[hi], vr(176 + 4 * n_, 4), WDS[s_ % 6] - 65536 * hi + (n_ % 4) * 1024))
            if n + ECN >= 12: ecq[-1] += ["s_mov_b32 exec_lo, s%d" % sLD, "s_mov_b32 exec_hi, 0", "ds_write_b8 v161, v159 offset:%d" % Y_WS]
            ecq[-1].append("s_mov_b64 exec, -1")
    for ri in range(4 if "noconv" not in EXP else 0):
        for q in range(8):
            for m in range(7, q - 1, -1):
                if q == 0:
                    a("s_waitcnt lgkmcnt(%d)" % min(15, 3 * m))
                a("v_mfma_f32_16x16x32_f16 %s, %s, %s, %s" % (vr(CA + 4 * m, 4), vr(G + 4 * q, 4), vr(F + 4 * (m - q), 4), "0" if TRIM and ri == 0 and q == 0 else vr(CA + 4 * m, 4)))
                nm += 1
                if NSTA and SP0 < 0 and side2 and nm % ENV("SPM", 4) == 0: st_ld(side2.pop(0))
                if nm > 8 and side:
                    a(side.pop(0))
                    while side and side[0].startswith("s_"): a(side.pop(0))
                if ecq and nm % ECS == 0:
                    for x in ecq.pop(0): a(x)
            if q == 0 and ri in CTRY: copy_try()
            if EC and q == 0 and ri == ECR: ec_start()
            if q == 7 and (ri + 1 in CTRY or (EC and ri + 1 == ECR)): a("ds_read_u8 v164, v161 offset:%d" % Y_TR)
            if ri + 1 < 4: rg(ri + 1, q); rf(ri + 1, 7 - q)
    assert not side and not ecq
    sk_("mfma")
    a("s_setprio %d" % ENV("PPRIO", 3))
    x1, x2 = L("X"), L("X")
    a("s_cmp_lg_u32 s%d, 0" % sHF)
    a("s_cbranch_scc1 %s" % x1)
    a.begin_opt()
    for i in range(4): a("ds_write_b128 v5, %s offset:%d" % (vr(CA + 16 + 4 * i, 4), i * 1024))
    a("s_mov_b64 exec, 1")
    a("ds_write_b8 v161, v163 offset:%d" % Y_CX)
    a("s_mov_b64 exec, -1")
    a("s_branch %s" % x2)
    a.end_opt()
    a.label(x1)
    a.begin_opt()
    for i in range(4): a("ds_write_b128 v5, %s offset:%d" % (vr(CA + 4 * i, 4), i * 1024))
    a("s_mov_b64 exec, 1")
    a("ds_write_b8 v161, v163 offset:%d" % Y_CX)
    a("s_mov_b64 exec, -1")
    for i in range(16): a("v_mov_b32 v%d, v%d" % (CA + i, CA + 16 + i))
    a.end_opt()
    a.label(x2)
    if YP == 3 and "nopp" not in EXP:
        lq, lq2 = L("PP"), L("PP")
        a("s_mov_b32 s%d, %d" % (sOX, SPIN))
        a.label(lq)
        a("s_waitcnt vmcnt(0)")
        a("v_cmp_ne_u32 vcc, s%d, v169" % sNON)
        a("s_cmp_eq_u32 vcc_lo, 0")
        a("s_cbranch_scc1 %s" % lq2)
        a("s_sleep 4")
        a("s_mov_b32 exec_hi, 0")
        a("buffer_load_dword v169, v174, s[%d:%d], 0 offen offset:128 sc1" % (SWS, SWS + 3))
        a("s_mov_b64 exec, -1")
        a("s_sub_u32 s%d, s%d, 1" % (sOX, sOX)); a("s_cmp_lg_u32 s%d, 0" % sOX)
        a("s_cbranch_scc1 %s" % lq)
        a.label(lq2)
    spin_lds(165, 164, 1, slp=0)
    if "hx" in EXP: sk_("xch")
    for i in range(4): a("ds_read_b128 %s, v152 offset:%d" % (vr(CA + 16 + 4 * i, 4), i * 1024))
    for i in range(4):
        a("s_waitcnt lgkmcnt(%d)" % (3 - i))
        for pr in range(2):
            y = CA + 4 * i + 2 * pr; o = XO + 4 * i + 2 * pr
            a("v_add_f32 v%d, v%d, v%d" % (y, y, y + 16)); a("v_add_f32 v%d, v%d, v%d" % (y + 1, y + 1, y + 17))
            ks_ = "s%d" % sINV if TRIM else "v9"
            a("v_mul_f32 v%d, %s, v%d" % (y, ks_, y)); a("v_mul_f32 v%d, %s, v%d" % (y + 1, ks_, y + 1))
            a("v_cvt_pk_bf16_f32 v%d, v%d, v%d" % (y, y, y + 1))
            a("v_and_b32 v%d, 0xffff0000, v%d" % (y + 1, y)); a("v_lshlrev_b32 v%d, 16, v%d" % (y, y))
            a("v_add_f32 v%d, v%d, v%d" % (y, y, o)); a("v_add_f32 v%d, v%d, v%d" % (y + 1, y + 1, o + 1))
            a("v_cvt_pk_bf16_f32 v%d, v%d, v%d" % (72 + 2 * i + pr, y, y + 1))
        if i & 1:
            b = 72 + 4 * (i >> 1)
            a("v_permlane16_swap_b32 v%d, v%d" % (b, b + 2)); a("v_permlane16_swap_b32 v%d, v%d" % (b + 1, b + 3))
            a("buffer_store_dwordx4 %s, v13, s[%d:%d], s%d offen offset:%d %s" % (vr(b, 4), SWS, SWS + 3, sT0, (i >> 1) * 1024, os.environ.get("YSM", "sc1").replace("_", " ")))
    setf(Y_XR)
    if "hx" in EXP: sk_("yst")
    def cflag():
        if YP: return
        a("s_waitcnt vmcnt(0)")
        a("s_mov_b64 exec, 1")
        a("buffer_store_dwordx2 v[166:167], v14, s[%d:%d], 0 offen sc1" % (SWS, SWS + 3))
        a("s_mov_b64 exec, -1")
    def yld(m=True):
        if m: a("s_mov_b64 exec, s[84:85]")
        a("buffer_load_dwordx4 v[104:107], v154, s[%d:%d], s%d offen sc1" % (SWS, SWS + 3, sT2))
        if m: a("s_mov_b64 exec, s[86:87]")
        a("buffer_load_dwordx4 v[108:111], v154, s[%d:%d], s%d offen sc1" % (SWS, SWS + 3, sT3))
        if m: a("s_mov_b64 exec, -1")
    if EC:
        assert YP
        c1 = L("CO")
        a("s_setprio %d" % ENV("QPRIO", 0))
        a("s_cmp_lg_u32 s%d, 0" % sLD)
        a("s_cbranch_scc1 %s" % c1)
        a.begin_opt()
        spin_lds(161, 164, 1, slp=1, off=Y_TR)
        copy_part(0)
        a.end_opt()
        a.label(c1)
        sk_("flag")
        if ENV("CSA", 0): a("s_sleep %d" % ENV("CSA", 0))
        if ENV("YE", 1): yld(False)
        copy_part(1)
        lp, ld, le = L("CP"), L("CP"), L("CP")
        a("s_mov_b32 s%d, %d" % (sOX, SPIN))
        if ENV("YE", 1): a("s_branch %s" % le)
        else: a("s_mov_b64 s[84:85], -1"); a("s_mov_b64 s[86:87], -1")
        a.label(lp)
        yld()
        a.label(le)
        a("s_waitcnt vmcnt(0)")
        a("v_cmp_eq_u32 s[84:85], -1, v104")
        a("v_cmp_eq_u32 s[86:87], -1, v108")
        a("s_or_b64 vcc, s[84:85], s[86:87]")
        a("s_cbranch_scc0 %s" % ld)
        a("s_sleep %d" % int(os.environ.get("CSL", "8")))
        a("s_sub_u32 s%d, s%d, 1" % (sOX, sOX)); a("s_cmp_lg_u32 s%d, 0" % sOX)
        a("s_cbranch_scc1 %s" % lp)
        a.label(ld)
        sk_("polled")
        waitp(Y_XR)
        a("ds_write_b128 v5, v[104:107]")
        a("ds_write_b128 v5, v[108:111] offset:1024")
        setf(Y_YA)
        a("s_waitcnt lgkmcnt(0)")
        sk_("end")
        sk_.store(100)
        a("s_endpgm")
        return
    if ENV("COA", 2) == 1:
        cflag()
        sk_("flag")
        spin_lds(161, 164, 1, slp=1, off=Y_TR)
        copy_out()
    elif ENV("COA", 2) == 2:
        a("ds_read_u8 v164, v161 offset:%d" % Y_TR)
        a("s_waitcnt vmcnt(2) lgkmcnt(0)")
        c1 = L("CO")
        a("v_cmp_gt_u32 vcc, 1, v164")
        a("s_cbranch_vccnz %s" % c1)
        a.begin_opt()
        a("s_mov_b32 s%d, 1" % sLD)
        copy_part(0)
        a.end_opt()
        a.label(c1)
        cflag()
        sk_("flag")
        spin_lds(161, 164, 1, slp=1, off=Y_TR)
        copy_out()
    elif NSTA:
        c1, c2 = L("CO"), L("CO")
        a("ds_read_u8 v164, v161 offset:%d" % Y_TR)
        a("s_waitcnt vmcnt(2) lgkmcnt(0)")
        a("v_cmp_gt_u32 vcc, 1, v164")
        a("s_cbranch_vccnz %s" % c1)
        a.begin_opt()
        copy_out(); cflag()
        a("s_branch %s" % c2)
        a.end_opt()
        a.label(c1)
        a.begin_opt()
        cflag()
        spin_lds(161, 164, 1, slp=1, off=Y_TR)
        copy_out()
        a.end_opt()
        a.label(c2)
    else: cflag()
    if not ENV("COA", 2): sk_("flag")
    a("s_setprio 0")
    a("s_sleep %d" % int(os.environ.get("CSL0", "8")))
    lp, ld = L("CP"), L("CP")
    a("s_mov_b32 s%d, %d" % (sOX, SPIN))
    if YP:
        assert YST == 4096
        a("s_mov_b64 s[84:85], -1"); a("s_mov_b64 s[86:87], -1")
        a.label(lp)
        a("s_mov_b64 exec, s[84:85]")
        a("buffer_load_dwordx4 v[104:107], v154, s[%d:%d], s%d offen sc1" % (SWS, SWS + 3, sT2))
        a("s_mov_b64 exec, s[86:87]")
        a("buffer_load_dwordx4 v[108:111], v154, s[%d:%d], s%d offen sc1" % (SWS, SWS + 3, sT3))
        a("s_mov_b64 exec, -1")
        a("s_waitcnt vmcnt(0)")
        a("v_cmp_eq_u32 s[84:85], -1, v104")
        a("v_cmp_eq_u32 s[86:87], -1, v108")
        a("s_or_b64 vcc, s[84:85], s[86:87]")
        a("s_cbranch_scc0 %s" % ld)
        a("s_sleep %d" % int(os.environ.get("CSL", "8")))
        a("s_sub_u32 s%d, s%d, 1" % (sOX, sOX)); a("s_cmp_lg_u32 s%d, 0" % sOX)
        a("s_cbranch_scc1 %s" % lp)
        a.label(ld)
        sk_("polled")
        waitp(Y_XR)
        a("ds_write_b128 v5, v[104:107]")
        a("ds_write_b128 v5, v[108:111] offset:1024")
        setf(Y_YA)
        a("s_waitcnt lgkmcnt(0)")
        sk_("end")
        sk_.store(100)
        a("s_endpgm")
        return
    a.label(lp)
    a("s_mov_b64 exec, 0xffff")
    a("buffer_load_dwordx2 v[20:21], v153, s[%d:%d], 0 offen sc1" % (SWS, SWS + 3))
    a("s_waitcnt vmcnt(0)")
    a("v_cmp_ne_u64 vcc, s[%d:%d], v[20:21]" % (sNON, sNON + 1))
    a("s_mov_b64 exec, -1")
    a("s_cbranch_vccz %s" % ld)
    a("s_sleep %d" % int(os.environ.get("CSL", "8")))
    a("s_sub_u32 s%d, s%d, 1" % (sOX, sOX)); a("s_cmp_lg_u32 s%d, 0" % sOX)
    a("s_cbranch_scc1 %s" % lp)
    a.label(ld)
    sk_("polled")
    a("buffer_load_dwordx4 v[104:107], v154, s[%d:%d], s%d offen" % (SWS, SWS + 3, sT2))
    a("buffer_load_dwordx4 v[108:111], v154, s[%d:%d], s%d offen" % (SWS, SWS + 3, sT3))
    waitp(Y_XR)
    a("s_waitcnt vmcnt(0)")
    a("ds_write_b128 v5, v[104:107]")
    a("ds_write_b128 v5, v[108:111] offset:1024")
    setf(Y_YA)
    a("s_waitcnt lgkmcnt(0)")
    sk_("end")
    sk_.store(100)
    a("s_endpgm")

def producer(a, sp_, L, spin_lds):
    a.label("K_PROD")
    a.vmq = []
    a.nopkw = True
    XT_S = 912
    L_PC = 64 * XT_S
    a("v_lshrrev_b32 v2, 3, v1")
    a("v_and_b32 v3, 7, v1")
    a("s_lshr_b32 s%d, s2, 3" % sT1)
    a("s_bfe_u32 s%d, s2, 0x20001" % sT0); a("s_lshl_b32 s%d, s%d, 3" % (sR, sT0)); a("s_lshl_b32 s%d, s%d, 1" % (sT1, sT1))
    a("s_add_u32 s%d, s%d, s%d" % (sR, sR, sT1)); a("s_and_b32 s%d, s2, 1" % sT0); a("s_add_u32 s%d, s%d, s%d" % (sR, sR, sT0))
    a("s_lshr_b32 s%d, s2, 1" % sF); a("s_min_u32 s%d, s%d, 13" % (sF, sF)); a("s_mul_i32 s%d, s%d, 14" % (sT0, sT0)); a("s_add_u32 s%d, s%d, s%d" % (sF, sF, sT0))
    a("s_lshl_b32 s%d, s%d, 3" % (sT0, sWV))
    a("v_add_u32 v4, s%d, v2" % sT0)
    a("s_lshl_b32 s%d, s%d, 6" % (sT1, sR))
    a("v_add_u32 v5, s%d, v4" % sT1)
    a("v_mul_u32_u24 v6, 896, v5")
    a("v_lshl_add_u32 v6, v3, 4, v6")
    a("s_waitcnt lgkmcnt(0)")
    srd(a, SX, 16, 2048 * 896)
    for i in range(7):
        a.vm("buffer_load_dwordx4 %s, v6, s[%d:%d], 0 offen offset:%d" % (vr(32 + 4 * i, 4), SX, SX + 3, i * 128), "x%d" % i)
    srd(a, SWS, 14, WS_SIZE)
    srd(a, SDBG, 12, 256)
    def poison():
        a("s_lshl_b32 s%d, s2, 3" % sT0); a("s_add_u32 s%d, s%d, s%d" % (sT0, sT0, sWV)); a("s_mul_i32 s%d, s%d, 7168" % (sT0, sT0))
        a("s_add_u32 s%d, s%d, %d" % (sT0, sT0, WS_YAT)); a("s_add_u32 s%d, s%d, 4096" % (sT1, sT0))
        a("v_lshlrev_b32 v140, 4, v1")
        for r in range(136, 140): a("v_mov_b32 v%d, -1" % r)
        for i in range(7):
            a.vm("buffer_store_dwordx4 v[136:139], v140, s[%d:%d], s%d offen offset:%d sc1" % (SWS, SWS + 3, (sT0, sT1)[i >> 2], (i & 3) * 1024), "poi")
    ln = L("NN")
    a("s_or_b32 s%d, s2, s%d" % (sT0, sWV))
    a("s_cbranch_scc1 %s" % ln)
    a.begin_opt()
    a("s_memrealtime s[%d:%d]" % (sNON, sNON + 1))
    a("s_waitcnt lgkmcnt(0)")
    a("s_or_b32 s%d, s%d, 0x40000000" % (sNON + 1, sNON + 1)); a("s_or_b32 s%d, s%d, 1" % (sNON, sNON))
    a("v_mov_b32 v12, s%d" % sNON); a("v_mov_b32 v13, s%d" % (sNON + 1)); a("v_mov_b32 v14, 64")
    a("s_mov_b64 exec, 1")
    a("buffer_store_dwordx2 v[12:13], v14, s[%d:%d], 0 offen sc1" % (SDBG, SDBG + 3))
    a("s_mov_b64 exec, -1")
    a.end_opt()
    a.label(ln)
    if YP == 1: poison()
    a("s_lshr_b32 s%d, s%d, 1" % (sT1, sWV))
    a("s_mul_i32 s%d, s%d, %d" % (sT1, sT1, 112 * 3584))
    a("s_lshl_b32 s%d, s%d, 7" % (sT2, sF))
    a("s_add_u32 s%d, s%d, s%d" % (sT1, sT1, sT2))
    a("v_mul_u32_u24 v9, 3584, v2")
    a("v_lshl_add_u32 v9, v3, 4, v9")
    a("v_add_u32 v9, s%d, v9" % sT1)
    a("s_bitcmp0_b32 s%d, 0" % sWV)
    a("s_cselect_b32 s%d, s32, s34" % SWG)
    a("s_cselect_b32 s%d, s33, s35" % (SWG + 1))
    a("s_and_b32 s%d, s%d, 0xffff" % (SWG + 1, SWG + 1))
    a("s_mov_b32 s%d, 0x%x" % (SWG + 2, 448 * 3584))
    a("s_mov_b32 s%d, 0x00020000" % (SWG + 3))
    wq = list(range(14))
    def ldw(n):
        for _ in range(n):
            if not wq: return
            i = wq.pop(0)
            a("s_mov_b32 s%d, %d" % (sOW, i * 8 * 3584))
            a.vm("buffer_load_dwordx4 %s, v9, s[%d:%d], s%d offen" % (vr(64 + 4 * i, 4), SWG, SWG + 3, sOW), "w%d" % i)
    a("s_mov_b32 s%d, 0x3f803f80" % sONES)
    a("v_mov_b32 v10, 0"); a("v_mov_b32 v11, 0"); a("v_mov_b32 v12, 0"); a("v_mov_b32 v13, 0")
    a("v_mul_u32_u24 v7, %d, v4" % XT_S)
    a("v_lshl_add_u32 v7, v3, 4, v7")
    a("v_lshlrev_b32 v8, 4, v5")
    a("s_lshl_b32 s%d, s2, 8" % sT2); a("s_add_u32 s%d, s%d, %d" % (sT2, sT2, WS_PF))
    a("v_lshl_add_u32 v28, v1, 13, s%d" % sT2)
    a("s_lshl_b32 s%d, s%d, 8" % (sT0, sR)); a("s_add_u32 s%d, s%d, %d" % (sT0, sT0, WS_FR))
    a("s_lshl_b32 s%d, s%d, 8" % (sT1, sF)); a("s_add_u32 s%d, s%d, %d" % (sT1, sT1, WS_FC))
    a("s_cmp_eq_u32 s%d, 0" % sWV); a("s_cselect_b32 s%d, s%d, s%d" % (sT0, sT0, sT1)); a("v_mov_b32 v29, s%d" % sT0)
    a("v_mov_b32 v30, 64")
    if ENV("PFG", 1):
        a("v_mov_b32 v141, v28"); a("v_writelane_b32 v141, s%d, 8" % sT0)
        a("s_cmp_lt_u32 s%d, 2" % sWV); a("s_cselect_b32 exec_lo, 0x1ff, 0"); a("s_mov_b32 exec_hi, 0")
        a.vm("buffer_load_dword v141, v141, s[%d:%d], 0 offen sc1" % (SWS, SWS + 3), "pfg")
        a("s_mov_b64 exec, -1")
    for i in range(7):
        a.wait_vm("x%d" % i)
        for r in range(4):
            a("v_dot2_f32_bf16 v%d, v%d, s%d, v%d" % (10 + 2 * (r & 1), 32 + 4 * i + r, sONES, 10 + 2 * (r & 1)))
            a("v_dot2_f32_bf16 v%d, v%d, v%d, v%d" % (11 + 2 * (r & 1), 32 + 4 * i + r, 32 + 4 * i + r, 11 + 2 * (r & 1)))
    ldw(ENV("PW0", 3))
    a("v_add_f32 v10, v10, v12"); a("v_add_f32 v11, v11, v13")
    for mod in ("quad_perm:[1,0,3,2]", "quad_perm:[2,3,0,1]", "row_half_mirror"):
        for r in (10, 11):
            a("v_add_f32_dpp v%d, v%d, v%d %s row_mask:0xf bank_mask:0xf" % (r, r, r, mod))
    c = math.sqrt(2 / math.pi); k1 = -2 * c * LOG2E; k2 = k1 * 0.044715
    a("v_mul_f32 v10, %s, v10" % fbits(1.0 / 448))
    a("v_mul_f32 v11, %s, v11" % fbits(1.0 / 448))
    a("v_fma_f32 v11, -v10, v10, v11")
    a("v_max_f32 v11, 0, v11")
    a("v_cvt_pk_bf16_f32 v10, v10, v11")
    a("v_lshlrev_b32 v12, 16, v10")
    a("v_and_b32 v11, 0xffff0000, v10")
    a("v_add_f32 v11, %s, v11" % fbits(1e-5))
    a("v_cvt_pk_bf16_f32 v11, v11, v11")
    a("v_lshlrev_b32 v11, 16, v11")
    a("v_sqrt_f32 v11, v11")
    a("v_cvt_pk_bf16_f32 v11, v11, v11")
    a("v_lshlrev_b32 v11, 16, v11")
    a("v_rcp_f32 v14, v11")
    a("v_sub_f32 v16, 0, v12")
    a("v_cvt_pk_bf16_f32 v24, v16, v16")
    a("v_mul_f32 v27, v11, v11")
    a("v_mul_f32 v25, %s, v14" % fbits(k1))
    a("v_mul_f32 v10, v14, v14"); a("v_mul_f32 v10, v10, v14")
    a("v_mul_f32 v26, %s, v10" % fbits(k2))
    a("s_mov_b32 s%d, %d" % (sT0, WS_RC))
    a("s_mov_b32 exec_lo, 0x01010101"); a("s_mov_b32 exec_hi, 0x01010101")
    a.vm("buffer_store_dwordx4 v[24:27], v8, s[%d:%d], s%d offen sc1" % (SWS, SWS + 3, sT0), "rc")
    a("s_cmp_lt_u32 s%d, 2" % sWV); a("s_cselect_b32 exec_lo, 1, 0"); a("s_mov_b32 exec_hi, 0")
    a("buffer_load_dwordx2 v[18:19], v30, s[%d:%d], 0 offen sc1" % (SDBG, SDBG + 3))
    a("s_mov_b64 exec, -1")
    sp_("stats")
    def xn_blk(i):
        for r in range(4):
            w = 32 + 4 * i + r; t = 20 + 2 * (r & 1)
            a("v_lshlrev_b32 v%d, 16, v%d" % (t, w)); a("v_and_b32 v%d, 0xffff0000, v%d" % (t + 1, w))
            a("v_pk_add_f32 %s, %s, v[16:17] op_sel_hi:[1,0]" % (vr(t, 2), vr(t, 2)))
            a("v_cvt_pk_bf16_f32 v%d, v%d, v%d" % (t, t, t + 1))
            a("v_and_b32 v%d, 0xffff0000, v%d" % (t + 1, t)); a("v_lshlrev_b32 v%d, 16, v%d" % (t, t))
            a("v_pk_mul_f32 %s, %s, v[14:15] op_sel_hi:[1,0]" % (vr(t, 2), vr(t, 2)))
            a("v_cvt_pk_bf16_f32 v%d, v%d, v%d" % (t, t, t + 1))
            a("v_and_b32 v%d, 0xffff0000, v%d" % (t + 1, t)); a("v_lshlrev_b32 v%d, 16, v%d" % (t, t))
            a("v_cvt_pk_f16_f32 v%d, v%d, v%d" % (w, t, t + 1))
        a("ds_write_b128 v7, %s offset:%d" % (vr(32 + 4 * i, 4), i * 128))
    PO = ENV("PO", 2)
    if PO == 1:
        for i in range(7):
            xn_blk(i); ldw(ENV("PW1", 2))
        ldw(14)
        a("v_lshrrev_b32 v4, 4, v1"); a("v_and_b32 v5, 15, v1")
        a("v_lshrrev_b32 v6, 2, v5"); a("v_lshl_add_u32 v6, v4, 3, v6")
        a("v_bfe_u32 v7, v5, 1, 1"); a("v_lshl_add_u32 v6, v7, 5, v6")
        a("v_mul_u32_u24 v6, %d, v6" % XT_S)
        a("v_and_b32 v7, 1, v5"); a("v_lshl_add_u32 v6, v7, 3, v6")
        a("s_lshl_b32 s%d, s%d, 4" % (sOX, sWV))
        a("v_add_u32 v6, s%d, v6" % sOX)
        a("s_mul_i32 s%d, s%d, %d" % (sOX, sWV, 7 * 1152)); a("s_add_u32 s%d, s%d, %d" % (sOX, sOX, L_PC + 2048))
        a("v_and_b32 v31, 7, v5"); a("v_mul_u32_u24 v31, 144, v31"); a("v_lshl_add_u32 v31, v4, 4, v31")
        a("v_lshrrev_b32 v5, 3, v5"); a("v_lshl_add_u32 v31, v5, 6, v31"); a("v_add_u32 v31, s%d, v31" % sOX)
        a("v_mul_u32_u24 v8, 144, v2"); a("v_lshl_add_u32 v8, v3, 4, v8"); a("v_add_u32 v8, s%d, v8" % sOX)
        a("v_mul_u32_u24 v7, %d, v2" % XST); a("v_lshl_add_u32 v7, v3, 4, v7")
        a("s_lshl_b32 s%d, s%d, 7" % (sT2, sR)); a("s_add_u32 s%d, s%d, %d" % (sT2, sT2, WS_XNT))
        a("s_mul_i32 s%d, s%d, %d" % (sT1, sWV, 8 * XST)); a("s_add_u32 s%d, s%d, s%d" % (sT1, sT1, sT2))
        a("s_waitcnt lgkmcnt(0)")
        sp_("xn")
        a("s_barrier")
        sp_("pbar")
        for i in range(7):
            a("ds_read_b64_tr_b16 %s, v6 offset:%d" % (vr(32 + 4 * i, 2), i * 128))
            a("ds_read_b64_tr_b16 %s, v6 offset:%d" % (vr(34 + 4 * i, 2), i * 128 + 4 * XT_S))
        for i in range(7):
            a("s_waitcnt lgkmcnt(%d)" % 12)
            a("ds_write_b128 v31, %s offset:%d" % (vr(32 + 4 * i, 4), i * 1152))
            a("ds_read_b128 %s, v8 offset:%d" % (vr(144 + 4 * i, 4), i * 1152))
        for i in range(7):
            a("s_waitcnt lgkmcnt(%d)" % (12 - 2 * i))
            a.vm("buffer_store_dwordx4 %s, v7, s[%d:%d], s%d offen sc1" % (vr(144 + 4 * i, 4), SWS, SWS + 3, sT1), "xst")
            if i < 6: a("s_add_u32 s%d, s%d, %d" % (sT1, sT1, 64 * XST))
        sp_("st")
        a("s_mov_b32 s%d, 0x3f80" % sOX); a("s_mov_b32 s%d, 0x3f800000" % sOW)
        for r in range(120, 128): a("v_mov_b32 v%d, 0" % r)
        for i in range(14):
            a.wait_vm("w%d" % i)
            for r in range(4):
                w = 64 + 4 * i + r
                a("v_dot2_f32_bf16 v%d, v%d, s%d, v%d" % (120 + 2 * r, w, sOX, 120 + 2 * r))
                a("v_dot2_f32_bf16 v%d, v%d, s%d, v%d" % (121 + 2 * r, w, sOW, 121 + 2 * r))
        for r in range(120, 128): a("v_add_f32_dpp v%d, v%d, v%d row_ror:8 row_mask:0xf bank_mask:0xf" % (r, r, r))
        for op in ("v_permlane16_swap_b32", "v_permlane32_swap_b32"):
            for r in range(8): a("v_mov_b32 v%d, v%d" % (128 + r, 120 + r))
            for r in range(8): a("%s v%d, v%d" % (op, 120 + r, 128 + r))
            for r in range(8): a("v_add_f32 v%d, v%d, v%d" % (120 + r, 120 + r, 128 + r))
        a("s_lshl_b32 s%d, s%d, 8" % (sT0, sWV))
        a("s_add_u32 s%d, s%d, %d" % (sT0, sT0, L_PC))
        a("v_lshl_add_u32 v9, v3, 5, s%d" % sT0)
        a("s_mov_b64 exec, 0xff")
        a("ds_write_b128 v9, v[120:123]"); a("ds_write_b128 v9, v[124:127] offset:16")
        a("s_mov_b64 exec, -1")
        a("s_waitcnt lgkmcnt(0)")
        sp_("sum")
        a("s_barrier")
        la = L("PA")
        a("s_cmp_lg_u32 s%d, 1" % sWV)
        a("s_cbranch_scc1 %s" % la)
        a.begin_opt()
        a("v_lshlrev_b32 v9, 2, v1")
        a("v_add_u32 v20, %d, v9" % L_PC)
        for i in range(8): a("ds_read_b32 v%d, v20 offset:%d" % (120 + i, i * 256))
        a("s_lshl_b32 s%d, s%d, 9" % (sT2, sF)); a("s_add_u32 s%d, s%d, %d" % (sT0, sT2, WS_CS)); a("s_add_u32 s%d, s%d, %d" % (sT2, sT0, CSM))
        a("v_lshlrev_b32 v9, 3, v1")
        a("s_waitcnt lgkmcnt(0)")
        for m in range(2):
            c = 120 + m; o = 128 + 2 * m
            a("v_add_f32 v%d, v%d, v%d" % (c, c, c + 2)); a("v_add_f32 v%d, v%d, v%d" % (c + 4, c + 4, c + 6))
            a("v_add_f32 v%d, v%d, v%d" % (c, c, c + 4))
            a("v_cvt_pk_bf16_f32 v%d, v%d, v%d" % (c + 2, c, c)); a("v_lshlrev_b32 v%d, 16, v%d" % (c + 2, c + 2))
            a("v_sub_f32 v%d, v%d, v%d" % (c + 2, c, c + 2))
            a("v_cvt_pk_bf16_f32 v%d, v%d, v%d" % (o, c, c + 2)); a("v_and_b32 v%d, 0xffff0000, v%d" % (c + 4, o))
            a("v_sub_f32 v%d, v%d, v%d" % (c + 2, c + 2, c + 4))
            a("v_cvt_pk_bf16_f32 v%d, v%d, 0" % (o + 1, c + 2))
            a("buffer_store_dwordx2 v[%d:%d], v9, s[%d:%d], s%d offen sc1" % (o, o + 1, SWS, SWS + 3, (sT0, sT2)[m]))
        a("s_waitcnt vmcnt(2)")
        a("s_barrier")
        get_nonce(a, L, 30, 18, pre=True)
        a("v_mov_b32 v10, s%d" % sNON)
        a("s_mov_b64 exec, 1")
        a("buffer_store_dword v10, v29, s[%d:%d], 0 offen sc1" % (SWS, SWS + 3))
        a("s_mov_b64 exec, -1")
        sp_("flagC")
        if YP != 3:
            sp_.store(100)
            a("s_endpgm")
        else: a("s_branch K_PP")
        a.end_opt()
        a.label(la)
        a("s_waitcnt vmcnt(0)"); a.vmq = []
        a("s_barrier")
        a("s_cmp_lg_u32 s%d, 0" % sWV)
        a("s_cbranch_scc1 %s" % ("K_PP" if YP == 3 else "K_END"))
        a.begin_opt()
        get_nonce(a, L, 30, 18, pre=True)
        a("v_mov_b32 v10, s%d" % sNON)
        a("s_mov_b64 exec, 0xff")
        a("buffer_store_dword v10, v28, s[%d:%d], 0 offen sc1" % (SWS, SWS + 3))
        a("s_mov_b64 exec, 1")
        a("buffer_store_dword v10, v29, s[%d:%d], 0 offen sc1" % (SWS, SWS + 3))
        a("s_mov_b64 exec, -1")
        a.end_opt()
        if YP == 3:
            a.label("K_PP")
            if ENV("PPS", 0): a("s_sleep %d" % ENV("PPS", 0))
            poison()
            a("s_waitcnt vmcnt(0)")
            a("s_barrier")
            a("s_cmp_lg_u32 s%d, 1" % sWV)
            a("s_cbranch_scc1 K_END")
            a("s_mov_b64 exec, 0xff")
            a("buffer_store_dword v10, v28, s[%d:%d], 0 offen offset:128 sc1" % (SWS, SWS + 3))
            a("s_mov_b64 exec, -1")
            sp_("flagP")
            sp_.store(100)
        return
    def xaddr(sX=sT1):
        a("v_lshrrev_b32 v4, 4, v1"); a("v_and_b32 v5, 15, v1")
        a("v_lshrrev_b32 v6, 2, v5"); a("v_lshl_add_u32 v6, v4, 3, v6")
        a("v_bfe_u32 v7, v5, 1, 1"); a("v_lshl_add_u32 v6, v7, 5, v6")
        a("v_mul_u32_u24 v6, %d, v6" % XT_S)
        a("v_and_b32 v7, 1, v5"); a("v_lshl_add_u32 v6, v7, 3, v6")
        a("s_lshl_b32 s%d, s%d, 4" % (sOX, sWV))
        a("v_add_u32 v6, s%d, v6" % sOX)
        a("s_mul_i32 s%d, s%d, %d" % (sOX, sWV, 7 * 1152)); a("s_add_u32 s%d, s%d, %d" % (sOX, sOX, L_PC + 2048))
        a("v_and_b32 v31, 7, v5"); a("v_mul_u32_u24 v31, 144, v31"); a("v_lshl_add_u32 v31, v4, 4, v31")
        a("v_lshrrev_b32 v5, 3, v5"); a("v_lshl_add_u32 v31, v5, 6, v31"); a("v_add_u32 v31, s%d, v31" % sOX)
        a("v_mul_u32_u24 v8, 144, v2"); a("v_lshl_add_u32 v8, v3, 4, v8"); a("v_add_u32 v8, s%d, v8" % sOX)
        a("v_mul_u32_u24 v7, %d, v2" % XST); a("v_lshl_add_u32 v7, v3, 4, v7")
        a("s_lshl_b32 s%d, s%d, 7" % (sT2, sR)); a("s_add_u32 s%d, s%d, %d" % (sT2, sT2, WS_XNT))
        a("s_mul_i32 s%d, s%d, %d" % (sT1, sWV, 8 * XST)); a("s_add_u32 s%d, s%d, s%d" % (sT1, sT1, sT2))
    NXA = 7 if PO == 2 else ENV("NXA", 4)
    for i in range(NXA):
        xn_blk(i); ldw(ENV("PW1", 2))
    ldw(14)
    a("s_mov_b32 s%d, 0x3f80" % sOX); a("s_mov_b32 s%d, 0x3f800000" % sOW)
    for r in range(120, 128): a("v_mov_b32 v%d, 0" % r)
    for i in range(14):
        a.wait_vm("w%d" % i)
        for r in range(4):
            w = 64 + 4 * i + r
            a("v_dot2_f32_bf16 v%d, v%d, s%d, v%d" % (120 + 2 * r, w, sOX, 120 + 2 * r))
            a("v_dot2_f32_bf16 v%d, v%d, s%d, v%d" % (121 + 2 * r, w, sOW, 121 + 2 * r))
    for r in range(120, 128): a("v_add_f32_dpp v%d, v%d, v%d row_ror:8 row_mask:0xf bank_mask:0xf" % (r, r, r))
    for op in ("v_permlane16_swap_b32", "v_permlane32_swap_b32"):
        for r in range(8): a("v_mov_b32 v%d, v%d" % (128 + r, 120 + r))
        for r in range(8): a("%s v%d, v%d" % (op, 120 + r, 128 + r))
        for r in range(8): a("v_add_f32 v%d, v%d, v%d" % (120 + r, 120 + r, 128 + r))
    a("s_lshl_b32 s%d, s%d, 8" % (sT0, sWV))
    a("s_add_u32 s%d, s%d, %d" % (sT0, sT0, L_PC))
    a("v_lshl_add_u32 v9, v3, 5, s%d" % sT0)
    a("s_mov_b64 exec, 0xff")
    a("ds_write_b128 v9, v[120:123]"); a("ds_write_b128 v9, v[124:127] offset:16")
    a("s_mov_b64 exec, -1")
    if PO == 2: xaddr()
    lw = L("PA")
    a("s_cmp_gt_u32 s%d, 1" % sWV)
    a("s_cbranch_scc1 %s" % lw)
    a.begin_opt()
    get_nonce(a, L, 30, 18, pre=True)
    a("v_mov_b32 v10, s%d" % sNON)
    a.end_opt()
    a.label(lw)
    a("s_waitcnt vmcnt(0) lgkmcnt(0)"); a.vmq = []
    sp_("sum")
    a("s_barrier")
    sp_("pbar0")
    PFP = ENV("PFP", 0)
    def pf_all():
        srd(a, SWD, 8, 1792 * 896)
        a("s_lshr_b32 s%d, s2, 3" % sT0); a("s_lshl_b32 s%d, s%d, 3" % (sT0, sT0)); a("s_add_u32 s%d, s%d, s%d" % (sT0, sT0, sWV))
        a("s_mul_i32 s%d, s%d, %d" % (sT0, sT0, 392 * 128))
        a("v_lshlrev_b32 v141, 7, v1")
        for i in range(7):
            a("buffer_load_dword v%d, v141, s[%d:%d], s%d offen" % (142 + i, SWD, SWD + 3, sT0))
            if i < 6: a("s_add_u32 s%d, s%d, %d" % (sT0, sT0, 8192 if i < 5 else 1024))
    def pf_mid():
        srd(a, SWD, 8, 1792 * 896)
        lp_ = L("PF")
        a("s_cmp_gt_u32 s%d, 5" % sWV)
        a("s_cbranch_scc1 %s" % lp_)
        a.begin_opt()
        a("s_lshr_b32 s%d, s2, 3" % sT0); a("s_mul_i32 s%d, s%d, %d" % (sT0, sT0, 448 * 896))
        a("s_lshr_b32 s%d, s%d, 1" % (sT2, sWV)); a("s_lshl_b32 s%d, s%d, 2" % (sT2, sT2)); a("s_lshr_b32 s%d, 0x31c, s%d" % (sT2, sT2)); a("s_and_b32 s%d, s%d, 15" % (sT2, sT2))
        a("s_lshl_b32 s%d, s%d, 1" % (sT2, sT2)); a("s_and_b32 s%d, s%d, 1" % (sT3, sWV)); a("s_add_u32 s%d, s%d, s%d" % (sT2, sT2, sT3))
        a("s_mul_i32 s%d, s%d, %d" % (sT2, sT2, 16 * 896)); a("s_add_u32 s%d, s%d, s%d" % (sT0, sT0, sT2))
        a("s_add_u32 s%d, s%d, %d" % (sT2, sT0, 48 * 128))
        a("v_lshlrev_b32 v141, 7, v1")
        a("buffer_load_dword v142, v141, s[%d:%d], s%d offen" % (SWD, SWD + 3, sT0))
        a("buffer_load_dword v143, v141, s[%d:%d], s%d offen" % (SWD, SWD + 3, sT2))
        a.end_opt()
        a.label(lp_)
    if PFP == 2:
        lp_ = L("PF")
        a("s_cmp_lt_u32 s%d, 2" % sWV)
        a("s_cbranch_scc1 %s" % lp_)
        a.begin_opt()
        pf_all()
        a.end_opt()
        a.label(lp_)
    la = L("PA")
    a("s_cmp_lg_u32 s%d, 1" % sWV)
    a("s_cbranch_scc1 %s" % la)
    a.begin_opt()
    a("v_lshlrev_b32 v9, 2, v1")
    a("v_add_u32 v20, %d, v9" % L_PC)
    for i in range(8): a("ds_read_b32 v%d, v20 offset:%d" % (120 + i, i * 256))
    a("s_lshl_b32 s%d, s%d, 9" % (sT2, sF)); a("s_add_u32 s%d, s%d, %d" % (sT0, sT2, WS_CS)); a("s_add_u32 s%d, s%d, %d" % (sT2, sT0, CSM))
    a("v_lshlrev_b32 v9, 3, v1")
    a("s_waitcnt lgkmcnt(0)")
    for m in range(2):
        c = 120 + m; o = 128 + 2 * m
        a("v_add_f32 v%d, v%d, v%d" % (c, c, c + 2)); a("v_add_f32 v%d, v%d, v%d" % (c + 4, c + 4, c + 6))
        a("v_add_f32 v%d, v%d, v%d" % (c, c, c + 4))
        a("v_cvt_pk_bf16_f32 v%d, v%d, v%d" % (c + 2, c, c)); a("v_lshlrev_b32 v%d, 16, v%d" % (c + 2, c + 2))
        a("v_sub_f32 v%d, v%d, v%d" % (c + 2, c, c + 2))
        a("v_cvt_pk_bf16_f32 v%d, v%d, v%d" % (o, c, c + 2)); a("v_and_b32 v%d, 0xffff0000, v%d" % (c + 4, o))
        a("v_sub_f32 v%d, v%d, v%d" % (c + 2, c + 2, c + 4))
        a("v_cvt_pk_bf16_f32 v%d, v%d, 0" % (o + 1, c + 2))
        a("buffer_store_dwordx2 v[%d:%d], v9, s[%d:%d], s%d offen sc1" % (o, o + 1, SWS, SWS + 3, (sT0, sT2)[m]))
    a.end_opt()
    a.label(la)
    for i in range(NXA, 7):
        xn_blk(i)
        if i == min(6, NXA + ENV("NXF", 2)):
            lb = L("PA")
            a("s_cmp_gt_u32 s%d, 1" % sWV)
            a("s_cbranch_scc1 %s" % lb)
            a.begin_opt()
            a("s_waitcnt vmcnt(0)")
            a("s_mov_b64 exec, 1")
            a("buffer_store_dword v10, v29, s[%d:%d], 0 offen sc1" % (SWS, SWS + 3))
            a("s_mov_b64 exec, -1")
            if PFP == 2: pf_all()
            a.end_opt()
            a.label(lb)
            sp_("flagC")
    if PO != 2: xaddr()
    if YP == 2:
        a("s_mov_b32 s%d, s%d" % (sT3, sT1)); poison(); a("s_mov_b32 s%d, s%d" % (sT1, sT3))
    if PO == 2:
        a("s_cmp_eq_u32 s%d, 0" % sWV); a("s_cselect_b32 exec_lo, 1, 0"); a("s_mov_b32 exec_hi, 0")
        a("buffer_store_dword v10, v29, s[%d:%d], 0 offen sc1" % (SWS, SWS + 3))
        a("s_mov_b64 exec, -1")
    else:
        a("s_waitcnt lgkmcnt(0)")
        a("s_barrier")
        sp_("pbar")
    for i in range(7):
        a("ds_read_b64_tr_b16 %s, v6 offset:%d" % (vr(32 + 4 * i, 2), i * 128))
        a("ds_read_b64_tr_b16 %s, v6 offset:%d" % (vr(34 + 4 * i, 2), i * 128 + 4 * XT_S))
    for i in range(7):
        a("s_waitcnt lgkmcnt(%d)" % 12)
        a("ds_write_b128 v31, %s offset:%d" % (vr(32 + 4 * i, 4), i * 1152))
        a("ds_read_b128 %s, v8 offset:%d" % (vr(64 + 4 * i, 4), i * 1152))
    for i in range(7):
        a("s_waitcnt lgkmcnt(%d)" % (12 - 2 * i))
        a.vm("buffer_store_dwordx4 %s, v7, s[%d:%d], s%d offen %s" % (vr(64 + 4 * i, 4), SWS, SWS + 3, sT1, os.environ.get("XSM", "sc1").replace("_", " ")), "xst")
        if i < 6: a("s_add_u32 s%d, s%d, %d" % (sT1, sT1, 64 * XST))
    sp_("st")
    if PO == 2:
        a("s_waitcnt vmcnt(7)")
        a("s_cmp_eq_u32 s%d, 1" % sWV); a("s_cselect_b32 exec_lo, 1, 0"); a("s_mov_b32 exec_hi, 0")
        a("buffer_store_dword v10, v29, s[%d:%d], 0 offen sc1" % (SWS, SWS + 3))
        a("s_mov_b64 exec, -1")
        sp_("flagC")
        a("s_waitcnt vmcnt(1)")
    else: a("s_waitcnt vmcnt(0)")
    a("s_barrier")
    if YP == 3:
        a("s_cmp_eq_u32 s%d, 1" % sWV); a("s_cselect_b32 exec_lo, 0xff, 0"); a("s_mov_b32 exec_hi, 0")
        a("buffer_store_dword v10, v28, s[%d:%d], 0 offen sc1" % (SWS, SWS + 3))
        a("s_mov_b64 exec, -1")
        sp_("flagB")
        if PFP == 1: pf_mid()
        if PFP == 3: pf_all()
        poison()
        a("s_waitcnt vmcnt(0)")
        a("s_barrier")
    a("s_cmp_lg_u32 s%d, 1" % sWV)
    a("s_cbranch_scc1 K_END")
    a("s_mov_b64 exec, 0xff")
    a("buffer_store_dword v10, v28, s[%d:%d], 0 offen offset:%d sc1" % (SWS, SWS + 3, 128 if YP == 3 else 0))
    a("s_mov_b64 exec, -1")
    sp_("flagB" if YP != 3 else "flagP")
    sp_.store(100)
```

```python
import math, os, sys, struct
from asmlib import Asm
def fbits(x): return "0x%08x" % struct.unpack("<I", struct.pack("<f", x))[0]
LOG2E = math.log2(math.e)
def vr(b, n=1): return "v%d" % b if n == 1 else "v[%d:%d]" % (b, b + n - 1)
EXP = os.environ.get('EXP', '')
STAMP = int(os.environ.get("STAMP", "0"))
RT = os.environ.get("RT", "")
MAPB = int(os.environ.get("MAPB", "0"))
WS_H = 0; WS_XNT = 8 << 20; WS_KREV = 12 << 20; WS_KSC = 16 << 20
WS_HF = 17 << 20
WS_CF = (17 << 20) + (1 << 19)
WS_PF = 18 << 20
WS_FR = WS_PF + 131072
WS_FC = WS_FR + 8192
WS_RC = 19 << 20; WS_CS = (19 << 20) + 65536
WS_YAT = 20 << 20; WS_DBG = 24 << 20; WS_SIZE = 32 << 20
KSTRIDE = 4160
SPIN = 0x8000

def srd(a, d, p, nbytes):
    a("s_mov_b32 s%d, s%d" % (d, p))
    a("s_and_b32 s%d, s%d, 0xffff" % (d + 1, p + 1))
    a("s_mov_b32 s%d, 0x%x" % (d + 2, nbytes))
    a("s_mov_b32 s%d, 0x00020000" % (d + 3))

SX, SWG, SWU, SWS, SWD, SOUT, SDBG = 40, 44, 48, 52, 56, 60, 64
sWV, sR, sF, sWR, sWC, sRT2, sCT = 68, 69, 70, 71, 72, 73, 74
sLD = 75
sT0, sT1, sT2, sT3 = 76, 77, 78, 79
sOX, sOW, sWB, sCNT = 80, 81, 82, 83
sNON = 84
sPM = 86
sCH, sHF, sKW, sSC, sINV = 3, 4, 5, 6, 7
sONES, sCVB, sSTG = 38, 39, 36
STB = 88

class Stamps:
    def __init__(self, a, base=None):
        self.a = a; self.n = base.n if base else 0; self.names = list(base.names) if base else []; self.ffn = False
    def __call__(self, name):
        if os.environ.get("MEAS") == name and self.ffn:
            self.a("s_memrealtime s[100:101]"); self.a("s_waitcnt lgkmcnt(0)"); self.a("s_mov_b32 s99, s100")
        if not STAMP: return
        if RT == "1" and name not in ("start", "end"): return
        if "su" in EXP and self.n >= 11 and name != "end": return
        if "f2a" in EXP and not (name in ("start", "flag1", "hpoll") or (name[:2] == "s_" and int(name[2:]) < 9)) and self.ffn: return
        if "f2b" in EXP and not (name in ("start", "f2end", "end") or (name[:2] == "s_" and int(name[2:]) >= 5)) and self.ffn: return
        if name[:2] == "s_" and "f2" not in EXP: return
        if name[:2] == "l_" and "lp" not in EXP: return
        if "lp" in EXP and self.ffn and not (name[:2] == "l_" or name in ("start", "st0", "loopend", "gelu")): return
        assert self.n < 12, name
        self.a("%s s[100:101]" % ("s_memrealtime" if RT else "s_memtime"))
        self.a("s_waitcnt lgkmcnt(0)")
        self.a("s_mov_b32 s%d, s100" % (STB + self.n))
        self.n += 1; self.names.append(name)
    def store(self, vt):
        if not STAMP: return
        a = self.a
        a("s_lshl_b32 s100, s2, 4"); a("s_add_u32 s100, s100, s%d" % sWV); a("s_lshl_b32 s100, s100, 6")
        a("s_add_u32 s100, s100, %d" % WS_DBG)
        a("s_mov_b64 exec, 1")
        a("v_mov_b32 v%d, s100" % vt)
        for i in range(self.n):
            a("v_mov_b32 v%d, s%d" % (vt + 1, STB + i))
            a("buffer_store_dword v%d, v%d, s[%d:%d], 0 offen offset:%d" % (vt + 1, vt, SWS, SWS + 3, 4 * i))
            a("s_waitcnt vmcnt(0)")
        a("s_mov_b64 exec, -1")

ENV = lambda k, d: int(os.environ.get(k, str(d)))
L_W = 0
L_X = [65536, 98304 + 17408, 81920]
RING = 98304
STG_W = 4352; L_STG = RING
L_CV = RING + 4 * STG_W
CPS = 4160; O_U = 4 * CPS; CV_CH = O_U + 4608
L_SYNC = L_CV + 2 * CV_CH
L_FL = L_SYNC + 512
FLS = 320
KT = ENV("KT", 0)
LDS = L_FL + (4 * FLS if KT else 256)
assert L_X[1] == L_CV and LDS <= 163840
Y_CNT = 0; Y_RDA = 8; Y_RDB = 9; Y_NON = 16; Y_KX = 24; Y_C0 = 28; Y_BL = 32; Y_CX = 36; Y_XR = 40; Y_YA = 44; Y_KEXP = 48; Y_RD = 64; Y_TR = 68; Y_WS = 72; Y_U = 76
NSTA = ENV('NSTA', 5)
WDS = [32768, 49152, 81920, 0, 16384, 65536]
CSM = 1792 * 8
sFW = 36; sHD = 37
FSH = ENV('FSH', 8)

def gen():
    a = Asm()
    lab = [0]
    def L(p): lab[0] += 1; return "%s_%d" % (p, lab[0])
    st_ = Stamps(a)
    def spin_lds(addr, tmp, need, width="u8", slp=1, off=0):
        l1, l2 = L("SP"), L("SD")
        a("s_mov_b32 s%d, %d" % (sCNT, SPIN))
        a.label(l1)
        a("ds_read_%s v%d, v%d offset:%d" % (width, tmp, addr, off))
        a("s_waitcnt lgkmcnt(0)")
        a("v_cmp_gt_u32 vcc, %d, v%d" % (need, tmp))
        a("s_cbranch_vccz %s" % l2)
        if slp: a("s_sleep %d" % slp)
        a("s_sub_u32 s%d, s%d, 1" % (sCNT, sCNT))
        a("s_cmp_lg_u32 s%d, 0" % sCNT)
        a("s_cbranch_scc1 %s" % l1)
        a.label(l2)

    a("s_cmp_ge_u32 s2, 256")
    a("s_cbranch_scc1 K_END")
    st_("start")
    a("s_load_dwordx16 s[16:31], s[0:1], 0")
    a("s_load_dwordx4 s[32:35], s[0:1], 80")
    a("s_load_dwordx8 s[8:15], s[0:1], 96")
    a("v_lshrrev_b32 v1, 6, v0")
    a("v_readfirstlane_b32 s%d, v1" % sWV)
    a("v_and_b32 v1, 63, v0")
    CPF = ENV("CPF", 8)
    if CPF:
        a("s_cmp_ge_u32 s2, %d" % CPF)
        a("s_cbranch_scc1 K_NPF")
        a.begin_opt()
        a("s_getpc_b64 s[4:5]")
        a.label("K_PFB")
        a("v_lshlrev_b32 v2, 7, v0")
        a("v_min_u32 v2, K_END-K_PFB, v2")
        a("global_load_dword v255, v2, s[4:5]")
        a.end_opt()
        a.label("K_NPF")
    a("s_cmp_lt_u32 s2, 32")
    a("s_cbranch_scc1 K_PROD")
    a("s_and_b32 s%d, s2, 7" % sT0)
    a("s_lshr_b32 s%d, s2, 3" % sT1)
    a("s_sub_u32 s%d, s%d, 4" % (sT1, sT1))
    a("s_lshr_b32 s%d, s%d, 1" % (sT2, sT0)); a("s_lshl_b32 s%d, s%d, 2" % (sT2, sT2))
    a("s_and_b32 s%d, s%d, 3" % (sT3, sT1)); a("s_add_u32 s%d, s%d, s%d" % (sR, sT2, sT3))
    a("s_and_b32 s%d, s%d, 1" % (sT2, sT0)); a("s_mul_i32 s%d, s%d, 7" % (sT2, sT2))
    a("s_lshr_b32 s%d, s%d, 2" % (sCT, sT1)); a("s_add_u32 s%d, s%d, s%d" % (sF, sT2, sCT))
    a("s_lshl_b32 s%d, s%d, 2" % (sRT2, sT0)); a("s_add_u32 s%d, s%d, s%d" % (sRT2, sRT2, sT3))
    a("s_cmp_ge_u32 s%d, 4" % sWV)
    a("s_cbranch_scc1 K_HELP")
    sf_ = Stamps(a, st_); sf_.ffn = True; sh_ = Stamps(a, st_); sp_ = Stamps(a, st_)
    NST = 14
    a("s_setprio %d" % ENV("FPRIO", 2))
    a("s_and_b32 s%d, s%d, 1" % (sWR, sWV))
    a("s_lshr_b32 s%d, s%d, 1" % (sWC, sWV))
    a("s_lshl_b32 s%d, s%d, 11" % (sWB, sWV))
    a("s_lshl_b32 s%d, s%d, 12" % (sOX, sWV))
    a("v_lshrrev_b32 v2, 3, v1")
    a("s_lshl_b32 s%d, s%d, 7" % (sT0, sR))
    a("s_lshl_b32 s%d, s%d, 5" % (sT1, sWV))
    a("s_add_u32 s%d, s%d, s%d" % (sT0, sT0, sT1))
    a("v_add_u32 v2, s%d, v2" % sT0)
    a("v_mul_u32_u24 v2, 896, v2")
    a("v_lshrrev_b32 v5, 4, v1")
    a("v_xor_b32 v6, v1, v5")
    a("v_and_b32 v6, 7, v6")
    a("v_xor_b32 v7, 4, v6")
    a("v_lshl_add_u32 v3, v7, 4, v2")
    a("v_add_u32 v3, %d, v3" % (8 * 896 - 1024))
    a("v_lshl_add_u32 v2, v6, 4, v2")
    a("v_add_u32 v56, %d, v2" % (16 * 896 - 2048)); a("v_add_u32 v57, %d, v3" % (16 * 896 - 2048))
    a("v_mul_u32_u24 v4, 3584, v5")
    a("v_lshlrev_b32 v6, 2, v5")
    a("v_xor_b32 v6, v1, v6")
    a("v_and_b32 v6, 15, v6")
    a("v_lshl_add_u32 v4, v6, 4, v4")
    a("s_lshl_b32 s%d, s%d, 8" % (sT0, sF))
    a("s_mul_i32 s%d, s%d, %d" % (sT1, sWV, 8 * 3584)); a("s_add_u32 s%d, s%d, s%d" % (sT0, sT0, sT1))
    a("v_add_u32 v4, s%d, v4" % sT0)
    a("v_add_u32 v58, %d, v4" % (4 * 3584 - 2048))
    a("s_mul_i32 s%d, s%d, %d" % (sFW, sWV, FLS if KT else 4)); a("s_add_u32 s%d, s%d, %d" % (sFW, sFW, L_FL))
    ROT = ENV("ROT", 0); ROT1 = ENV("ROT1", 0); ROT2 = ENV("ROT2", 0)
    RJ = [3, 4, 5, 6, 7, 38, 39]
    a("s_lshl_b32 s%d, s%d, 1" % (sT0, sT3)); a("s_add_u32 s%d, s%d, s%d" % (sT0, sT0, sCT)); a("s_lshl_b32 s%d, s%d, 7" % (sT0, sT0))
    def rj(i):
        if i: a("s_add_u32 s%d, s%d, 128" % (sT0, RJ[i - 1]))
        a("s_sub_u32 s%d, s%d, 896" % (sT1, sT0)); a("s_cmp_ge_u32 s%d, 896" % sT0); a("s_cselect_b32 s%d, s%d, s%d" % (RJ[i], sT1, sT0))
    if ROT1 == 2: a("s_lshl_b32 s%d, s%d, 8" % (sT0, sT3))
    if ROT1 == 3: a("s_lshl_b32 s%d, s%d, 7" % (sT0, sCT))
    if ROT1: rj(0)
    a("s_waitcnt lgkmcnt(0)")
    VFL, VFA = 50, 51
    cur = {}
    def setr(r, txt):
        def f():
            if cur.get(r) != txt: cur[r] = txt; a0(txt)
        return f
    a0 = a
    sOW2, sOWX = 5, 6
    def dma_x(b):
        if ROT1: return [[setr("m0", "s_add_u32 m0, s%d, %d" % (sOX, L_X[b % 3])),
                 ("buffer_load_dwordx4 v%d, s[%d:%d], s%d offen offset:%d lds" % ((2, 3, 56, 57)[i], SX, SX + 3, RJ[b], i * 1024), ("x", b))] for i in range(4)]
        return [[setr("m0", "s_add_u32 m0, s%d, %d" % (sOX, L_X[b % 3])), setr("ox", "s_movk_i32 s%d, %d" % (sOWX, b * 128)),
                 ("buffer_load_dwordx4 v%d, s[%d:%d], s%d offen offset:%d lds" % ((2, 3, 56, 57)[i], SX, SX + 3, sOWX, i * 1024), ("x", b))] for i in range(4)]
    def dma_w(st):
        out = []
        if ROT1:
            for mat in range(2):
                for i in range(2):
                    S = (SWG, SWU)[mat]
                    out.append([setr("m0", "s_add_u32 m0, s%d, %d" % (sOX, L_W + (st % 4) * 16384 + mat * 1024)),
                                setr(sOW, "s_mul_i32 s%d, s%d, 1792" % (sOW, RJ[st >> 1]) + ("\ns_add_u32 s%d, s%d, %d" % (sOW, sOW, 32 * 3584) if st & 1 else "")),
                                ("buffer_load_dwordx4 v%d, s[%d:%d], s%d offen offset:%d lds" % ((4, 58)[i], S, S + 3, sOW, i * 2048), ("w", st))])
            return out
        for i in range(2):
            for mat in range(2):
                S = (SWG, SWU)[mat]
                if st == 0 and mat:
                    out.append([setr("m0", "s_add_u32 m0, s%d, %d" % (sOX, L_W + 1024)),
                                ("buffer_load_dwordx4 v%d, s[%d:%d], 0 offen offset:%d lds" % ((4, 58)[i], S, S + 3, i * 2048), ("w", st))])
                    continue
                so = (sOW, sOW2)[mat]
                out.append([setr("m0", "s_add_u32 m0, s%d, %d" % (sOX, L_W + (st % 4) * 16384)), setr(so, "s_mov_b32 s%d, %d" % (so, st * 32 * 3584 - mat * 1024)),
                            ("buffer_load_dwordx4 v%d, s[%d:%d], s%d offen offset:%d lds" % ((4, 58)[i], S, S + 3, so, i * 2048 + mat * 1024), ("w", st))])
        if st == 0: out = [out[0], out[2], out[1], out[3]]
        return out
    def dflag(idx):
        if not KT: return [setr("m0", "s_add_u32 m0, s%d, %d" % (sFW, 16 * idx)), "s_mov_b64 exec, 1", ("global_load_lds_dword v%d, s[0:1]" % VFL, "fl"), "s_mov_b64 exec, -1"]
        return [setr("m0", "s_mov_b32 m0, s%d" % sFW), ("global_load_lds_dword v%d, s[30:31] offset:%d" % (VFL, 4 * idx), "fl")]
    def emit(g, a=a):
        for x in g:
            if callable(x): x()
            elif isinstance(x, tuple) and x[0].startswith("ds_"): a.ds(x[0], x[1])
            elif isinstance(x, tuple): a.vm(x[0], x[1])
            else: a(x)
    srd(a, SX, 16, 2048 * 896)
    for g in dma_x(0): emit(g)
    srd(a, SWG, 32, 448 * 3584)
    srd(a, SWU, 34, 448 * 3584)
    for g in dma_w(0): emit(g)
    if ROT1:
        for i in range(1, 7): rj(i)
    if KT:
        a("v_mov_b32 v%d, 0" % VFL)
        a("s_getpc_b64 s[30:31]")
        a.label("K_TB")
        a("s_add_u32 s30, s30, K_TAB-K_TB"); a("s_addc_u32 s31, s31, 0")
    else: a("s_cmp_lg_u32 s15, 0"); a("s_cselect_b32 s%d, 31, 30" % sT0); a("s_lshl_b32 s%d, s%d, 2" % (sT0, sT0)); a("v_mov_b32 v%d, s%d" % (VFL, sT0))
    a("s_barrier")
    emit(dflag(0))
    Q = []
    for k in range(1, 14):
        if k % 2 == 0: Q += [(max(0, k - 4), g) for g in dma_x(k // 2)]
        w_ = dma_w(k); w_[-1] = w_[-1] + dflag(k)
        Q += [(max(0, k - 3), g) for g in w_]
    NPRE = ENV("NPRE", 12)
    pend = [g for _, g in Q[:NPRE]]; Q = Q[NPRE:]
    a_real = a
    ILN = ENV("ILN", 4)
    class IL:
        def __init__(s_): s_.n = 0
        def __call__(s_, t):
            a_real(t); s_.n += 1
            if s_.n % ILN == 0 and pend: emit(pend.pop(0))
    a = IL()
    a("v_lshlrev_b32 v15, 2, v1")
    a("v_and_b32 v11, 3, v1"); a("v_mul_u32_u24 v%d, %d, v11" % (VFA, FLS if KT else 4)); a("v_add_u32 v11, %d, v11" % (L_SYNC + Y_CNT))
    a("v_add_u32 v%d, %d, v%d" % (VFA, L_FL + (64 if KT else 0), VFA))
    a("s_add_u32 s%d, s%d, %d" % (sT0, sWV, L_SYNC + Y_CNT)); a("v_mov_b32 v12, s%d" % sT0)
    a("v_add_u32 v13, %d, v15" % (L_SYNC + 128)); a("v_cmp_eq_u32 vcc, 0, v1"); a("v_cndmask_b32 v12, v13, v12, vcc")
    a("v_mov_b32 v10, %d" % (L_SYNC + Y_RDA))
    a("v_and_b32 v16, 31, v1")
    a("s_lshl_b32 s%d, s%d, 6" % (sT0, sWR))
    a("v_add_u32 v22, s%d, v16" % sT0)
    a("v_lshrrev_b32 v17, 5, v1")
    a("v_bfe_u32 v18, v1, 1, 3")
    a("v_xor_b32 v18, v17, v18")
    a("v_lshlrev_b32 v5, 7, v22")
    a("v_lshl_add_u32 v5, v18, 4, v5")
    a("v_add_u32 v5, 65536, v5")
    a("v_xor_b32 v6, 32, v5"); a("v_xor_b32 v7, 64, v5"); a("v_xor_b32 v8, 96, v5")
    a("v_bfe_u32 v19, v1, 2, 2")
    a("v_lshl_add_u32 v20, v17, 4, v19")
    a("v_lshlrev_b32 v9, 8, v20")
    a("v_bfe_u32 v20, v1, 4, 1"); a("v_lshlrev_b32 v20, 1, v20")
    a("v_bfe_u32 v21, v1, 1, 1"); a("v_add_u32 v20, v20, v21")
    a("s_lshl_b32 s%d, s%d, 3" % (sT0, sWC))
    a("v_add_u32 v20, s%d, v20" % sT0)
    a("v_lshlrev_b32 v21, 2, v19")
    a("v_xor_b32 v20, v20, v21")
    a("v_lshl_add_u32 v9, v20, 4, v9")
    a("v_and_b32 v21, 1, v1")
    a("v_lshl_add_u32 v9, v21, 3, v9")
    a("v_xor_b32 v0, 64, v9")
    srd(a, SWS, 14, WS_SIZE)
    srd(a, SWD, 8, 1792 * 896)
    srd(a, SOUT, 10, 2048 * 896)
    a("s_lshl_b32 s%d, s%d, 11" % (sT0, sR)); a("s_add_u32 s%d, s%d, %d" % (sT0, sT0, WS_RC))
    a("v_lshl_add_u32 v18, v22, 4, s%d" % sT0)
    a("s_lshl_b32 s%d, s%d, 10" % (sT0, sF)); a("s_lshl_b32 s%d, s%d, 9" % (sT1, sWC)); a("s_add_u32 s%d, s%d, s%d" % (sT0, sT0, sT1))
    a("s_add_u32 s%d, s%d, %d" % (sT0, sT0, WS_CS))
    a("v_lshl_add_u32 v19, v16, 3, s%d" % sT0)
    a("v_lshl_add_u32 v19, v17, 2, v19")
    a("s_lshl_b32 s%d, s%d, 1" % (sT0, sR))
    a("s_add_u32 s%d, s%d, s%d" % (sT0, sT0, sWR))
    a("s_lshl_b32 s%d, s%d, 1" % (sT1, sF))
    a("s_add_u32 s%d, s%d, s%d" % (sT1, sT1, sWC))
    a("s_lshl_b32 s%d, s%d, 8" % (sT2, sT0)); a("s_add_u32 s%d, s%d, %d" % (sT2, sT2, WS_FR)); a("v_mov_b32 v15, s%d" % sT2)
    a("s_lshl_b32 s%d, s%d, 8" % (sT2, sT1)); a("s_add_u32 s%d, s%d, %d" % (sT2, sT2, WS_FC)); a("v_writelane_b32 v15, s%d, 1" % sT2)
    a("s_mul_i32 s%d, s%d, 37" % (sT3, sT1)); a("s_lshr_b32 s%d, s%d, 8" % (sT3, sT3)); a("s_add_u32 s%d, s%d, s%d" % (sT3, sT3, sT1))
    a("s_lshl_b32 s%d, s%d, 1" % (sT1, sT1))
    a("s_lshl_b32 s%d, s%d, 5" % (sT2, sT0)); a("s_add_u32 s%d, s%d, s%d" % (sT2, sT2, sT3)); a("s_lshl_b32 s%d, s%d, %d" % (sT2, sT2, FSH))
    a("s_add_u32 s%d, s%d, %d" % (sT2, sT2, WS_HF))
    a("v_mov_b32 v21, s%d" % sT2)
    a("s_mul_i32 s%d, s%d, 56" % (sT0, sT0))
    a("s_add_u32 s%d, s%d, s%d" % (sT0, sT0, sT1))
    a("s_lshl_b32 s%d, s%d, 12" % (sT0, sT0))
    a("v_and_b32 v20, 15, v1")
    a("v_lshlrev_b32 v20, 4, v20")
    a("v_bfe_u32 v22, v1, 4, 1")
    a("v_lshl_add_u32 v20, v22, 10, v20")
    a("v_lshl_add_u32 v20, v17, 8, v20")
    a("v_add_u32 v20, s%d, v20" % sT0)
    a("s_mov_b32 s%d, 0" % sLD)
    CA_, CB_ = 32, 42
    for r in range(33, 50):
        if r not in (34, 36, 38, 42, 46): a("v_mov_b32 v%d, 0" % r)
    a("v_lshrrev_b32 v16, 3, v1")
    a("s_mul_i32 s%d, s%d, %d" % (sT0, sWV, 448 * 896))
    a("v_mul_u32_u24 v16, 896, v16")
    a("s_lshl_b32 s%d, s%d, 7" % (sT1, sCT)); a("s_add_u32 s%d, s%d, s%d" % (sT0, sT0, sT1))
    a("v_add_u32 v16, s%d, v16" % sT0)
    a("v_xor_b32 v17, v1, v22"); a("v_and_b32 v17, 7, v17")
    a("v_lshl_add_u32 v52, v17, 4, v16")
    for q in range(1, 4): a("v_add_u32 v%d, %d, v52" % (52 + q, q * (8 * 896 - 1024)))
    a = a_real
    while pend: emit(pend.pop(0))
    ACC = lambda ff, mat, tt: 128 + 64 * ff + 32 * mat + 16 * tt
    FR = [80, 104]
    RC = [24, 28]
    NW = 6
    J = lambda s: 2 * (s % 7) + s // 7
    WDV = [52, 52]
    def dma_wd(s):
        if "now" in EXP and s >= 6: return []
        if s < 6:
            return [[setr("m0", "s_add_u32 m0, s%d, %d" % (sOX, WDS[s % NW])), setr(sOW, "s_mov_b32 s%d, %d" % (sOW, J(s) * 32 * 896)),
                     ("buffer_load_dwordx4 v%d, s[%d:%d], s%d offen offset:%d lds" % (52 + q, SWD, SWD + 3, sOW, q * 1024), ("wd", s))] for q in range(4)]
        return [["s_add_u32 m0, s%d, %d" % (sOX, WDS[s % NW] + q * 1024), "s_mov_b32 s%d, %d" % (sOW, (J(s) * 32 + 8 * q) * 896),
                 ("buffer_load_dwordx4 v2, s[%d:%d], s%d offen lds" % (SWD, SWD + 3, sOW), ("wd", s))] for q in range(4)]
    def rd_frags(st, kk):
        fb = FR[kk]
        slot = st % 4
        xo = L_X[(st >> 1) % 3] - 65536
        xa = 5 + 2 * (st & 1) + kk
        def wr(ff, mat):
            return [("ds_read_b64_tr_b16 %s, v%d offset:%d" % (vr(fb + 8 + 8 * ff + 4 * mat + 2 * half, 2), (9, 0)[ff], L_W + slot * 16384 + mat * 1024 + kk * 8192 + half * 2048), ("fr", st, kk, ff, mat)) for half in range(2)]
        xr = lambda tt: [("ds_read_b128 %s, v%d offset:%d" % (vr(fb + 4 * tt, 4), xa, xo + tt * 4096), ("fx", st, kk, tt))]
        return [xr(0) + wr(0, 0), xr(1), wr(0, 1), wr(1, 0), wr(1, 1)]
    def mfmas(kk, first=False):
        fb = FR[kk]
        return ["v_mfma_f32_32x32x16_bf16 %s, %s, %s, %s" % (vr(ACC(ff, mat, tt), 16), vr(fb + 8 + 8 * ff + 4 * mat, 4), vr(fb + 4 * tt, 4), "0" if first else vr(ACC(ff, mat, tt), 16))
                for ff in range(2) for mat in range(2) for tt in range(2)]
    def inter(st, kk, groups):
        for i, m in enumerate(mfmas(kk, st == 0 and kk == 0)):
            ff, mat, tt = i >> 2, (i >> 1) & 1, i & 1
            if i == 1: a.wait_ds(("fx", st, kk, 1))
            a.wait_ds(("fr", st, kk, ff, mat))
            a(m)
            for sl, g in groups:
                if sl == i: emit(g)
    def arrive(v, off=0):
        a("v_mov_b32 v13, %d" % v)
        a.ds("ds_write_b8 v12, v13 offset:%d" % off, "sig")
    deferred = []
    chk0 = [0]
    def check(v, kind):
        if "nochk" in EXP and 1 < len(a.vmq) and v < 14 and chk0[0]: return
        chk0[0] = 1
        a("s_getpc_b64 s[20:21]")
        a("v_cmp_gt_u32 vcc, %d, v%d" % (v, 14 if kind == "F" else 16))
        a("s_cbranch_vccnz K_RT_%s" % kind)
    def retries():
        a("s_mov_b32 s18, %d" % (SPIN * 4))
        a("s_branch K_RTE")
        for kind in ("R", "F"):
            r = 14 if kind == "F" else 16
            a.label("K_RT_%s" % kind)
            a("ds_read_b32 v14, v%d" % VFA if kind == "F" else "ds_read_u8 v16, v11 offset:%d" % Y_RD)
            a("s_sub_i32 s18, s18, 1"); a("s_max_i32 s18, s18, 0")
            a("s_cmp_eq_u32 s18, 0"); a("s_cselect_b32 s19, 255, 0")
            a("s_waitcnt lgkmcnt(0)")
            a("v_or_b32 v%d, s19, v%d" % (r, r))
            a("s_setpc_b64 s[20:21]")
        a.label("K_RTE")
    def const_loads():
        for tt in range(2):
            a("buffer_load_dwordx4 %s, v18, s[%d:%d], 0 offen offset:%d" % (vr(RC[tt], 4), SWS, SWS + 3, tt * 512))
        a("s_movk_i32 s%d, %d" % (sT0, CSM))
        for ff in range(2):
            a("buffer_load_dword v%d, v19, s[%d:%d], 0 offen offset:%d" % (CA_ + 4 * ff, SWS, SWS + 3, ff * 256))
            a("buffer_load_dword v%d, v19, s[%d:%d], s%d offen offset:%d" % (CA_ + 4 * ff + 2, SWS, SWS + 3, sT0, ff * 256))
        a("s_mov_b32 s%d, 1" % sLD)
    def get_non():
        a.wait_ds("non")
        a("v_readfirstlane_b32 s%d, v22" % sNON); a("v_readfirstlane_b32 s%d, v23" % (sNON + 1))
    def pollA():
        a.vm("buffer_load_dword v17, v15, s[%d:%d], 0 offen sc1" % (SWS, SWS + 3), "pf")
    def try_const():
        l = L("CL"); lo = L("CLO")
        a.wait_vm("pf")
        a("v_cmp_ne_u32 vcc, s%d, v17" % sNON)
        a("s_cbranch_vccz %s" % lo)
        a.label(l)
        a.mark("cst")
        def slow():
            a.label(lo)
            a("s_cmp_eq_u32 s%d, 0" % (sNON + 1))
            a("s_cbranch_scc1 %s" % l)
            a("s_cmp_lg_u32 s%d, 0" % sLD)
            a("s_cbranch_scc1 %s" % l)
            const_loads()
            a("s_branch %s" % l)
        deferred.append(slow)
    PA = ENV("PA", 3)
    RS = [int(c) for c in os.environ.get("RS", "01245")]
    TP = [int(c) for c in os.environ.get("TP", "9,11").split(",")]
    EARLY = ENV("EARLY", 1)
    retries()
    a("v_mov_b32 v14, 0")
    check(1, "F")
    a.dsq = []
    sf_("st0")
    a("s_setprio %d" % ENV("LPRIO", 3))
    poll = ([] if KT else ["v_add_u32 v%d, 16, v%d" % (VFA, VFA)]) + [("ds_read_b32 v14, v%d" % VFA, "pA")]
    for g in rd_frags(0, 0): emit(g)
    DMX = ENV("DMX", 6)
    if EARLY: Q += [(11, g) for g in dma_wd(0)] + [(12, g) for g in dma_wd(1) + dma_wd(2)] + [(13, g) for g in dma_wd(3)]
    SD = []
    for st in range(NST):
        D = []
        while Q and Q[0][0] <= st and len(D) < (DMX if st else 8): D.append(Q.pop(0)[1])
        SD.append(D)
    assert not Q
    if ENV("VERB", 0): print("DMA per stage", [len(d) for d in SD])
    stageD = lambda st: SD[st]
    for st in range(NST):
        if st in (7,) and not NSTA: sf_("st%d" % st)
        if st in (1, 2, 3, 4, 6, 8, 10, 12): sf_("l_%d" % st)
        D = stageD(st)
        DS = [(int(x) // 8, int(x) % 8) for x in os.environ.get("DS", "4,6,9,11,13,15").split(",")] if len(D) <= 6 else [(0, 3), (0, 5), (0, 7), (1, 1), (1, 2), (1, 4), (1, 5), (1, 7)]
        if st == 0: DS = [(0, 0), (0, 2), (0, 4), (0, 6), (1, 1), (1, 3), (1, 5), (1, 7)]
        G = []
        G += [(RS[i], g) for i, g in enumerate(rd_frags(st, 1))]
        if st + 1 in TP: G.append((5, [("ds_read_b64 v[22:23], v10 offset:%d" % (Y_NON - Y_RDA), "non")]))
        if st - 2 in TP: G.append((0, [try_const]))
        if st in TP: G.append((1, [get_non, pollA]))
        if D and st: G.append((ENV("RCK", 3), [lambda: a.wait_ds("pR"), lambda st=st: check(st, "R")]))
        G += [(DS[i][1], g) for i, g in enumerate(D) if DS[i][0] == 0]
        if st + 1 < NST: G.append((PA, poll))
        if ENV("ARS", 5) < 8: G.append((ENV("ARS", 5), [lambda st=st: arrive(st + 1, Y_RD)]))
        inter(st, 0, G)
        G = []
        if st + 1 < NST:
            G.append((0, [lambda: a.wait_ds("pA"), lambda st=st: check(st + 2 if KT else 1, "F")]))
            G += [(RS[i], g) for i, g in enumerate(rd_frags(st + 1, 0))]
        if ENV("ARS", 5) >= 8: G.append((ENV("ARS", 5) - 8, [lambda st=st: arrive(st + 1, Y_RD)]))
        G += [(DS[i][1], g) for i, g in enumerate(D) if DS[i][0] == 1]
        if st + 1 == NST or stageD(st + 1): G.append((ENV("PRS", 7), [("ds_read_u8 v16, v11 offset:%d" % Y_RD, "pR")]))
        inter(st, 1, G)
    sf_("loopend")
    a("s_setprio %d" % ENV("GPRIO", 1))
    l = L("CL"); lo = L("CLO"); l1 = L("CLP"); l2 = L("CLP")
    a("s_cmp_eq_u32 s%d, 0" % sLD)
    a("s_cbranch_scc1 %s" % lo)
    a.wait_vm("cst")
    a.label(l)
    def slow(l=l, lo=lo):
        a.label(lo)
        a("s_mov_b32 s%d, %d" % (sCNT, SPIN))
        a.label(l1)
        a("ds_read_b64 v[22:23], v10 offset:%d" % (Y_NON - Y_RDA))
        a("buffer_load_dword v17, v15, s[%d:%d], 0 offen sc1" % (SWS, SWS + 3))
        a("s_waitcnt vmcnt(0) lgkmcnt(0)")
        a("v_readfirstlane_b32 s%d, v22" % sNON); a("v_readfirstlane_b32 s%d, v23" % (sNON + 1))
        a("v_cmp_ne_u32 vcc, s%d, v17" % sNON)
        a("s_cmp_eq_u32 s%d, 0" % (sNON + 1))
        a("s_cselect_b64 s[%d:%d], -1, vcc" % (sT0, sT0 + 1))
        a("s_cmp_eq_u64 s[%d:%d], 0" % (sT0, sT0 + 1))
        a("s_cbranch_scc1 %s" % l2)
        a("s_sleep 2")
        a("s_sub_u32 s%d, s%d, 1" % (sCNT, sCNT)); a("s_cmp_lg_u32 s%d, 0" % sCNT)
        a("s_cbranch_scc1 %s" % l1)
        a.label(l2)
        const_loads()
        a("s_waitcnt vmcnt(0)")
        a("s_branch %s" % l)
    deferred.append(slow)
    for tt in range(2): a("v_mov_b32 v%d, v%d" % (CB_ + 4 * tt, RC[tt]))
    corr = ["v_mfma_f32_32x32x16_bf16 %s, %s, %s, %s" % (vr(ACC(ff, mat, tt), 16), vr(CA_ + 4 * ff + 2 * mat, 4), vr(CB_ + 4 * tt, 4), vr(ACC(ff, mat, tt), 16))
            for ff in range(2) for tt in range(2) for mat in range(2)]
    a(corr[0]); a(corr[1])
    a("v_mov_b32 v2, v52"); WDV = [2, 2]
    a("s_lshl_b32 s%d, s%d, 2" % (sT0, sRT2)); a("s_add_u32 s%d, s%d, s%d" % (sT0, sT0, sWV)); a("s_lshl_b32 s%d, s%d, %d" % (sT0, sT0, FSH + 3))
    a("s_add_u32 s%d, s%d, %d" % (sT0, sT0, WS_HF))
    a("v_lshrrev_b32 v8, 1, v1"); a("v_lshlrev_b32 v8, %d, v8" % FSH); a("v_and_b32 v14, 1, v1"); a("v_lshl_add_u32 v8, v14, 2, v8")
    a("v_add_u32 v8, s%d, v8" % sT0)
    a(corr[2])
    TRB = [[4, 5], [6, 7]]
    a("v_bfe_u32 v13, v1, 2, 2"); a("v_lshrrev_b32 v14, 4, v1")
    a("v_lshl_add_u32 v13, v14, 3, v13")
    a("v_lshlrev_b32 v13, 7, v13")
    a("v_and_b32 v14, 3, v1")
    a("v_lshl_add_u32 v13, v14, 5, v13")
    a("v_bfe_u32 v14, v1, 3, 1")
    a("v_lshl_add_u32 v13, v14, 4, v13")
    a("v_add_u32 v4, s%d, v13" % sOX)
    a("v_xor_b32 v5, 16, v4")
    a("v_add_u32 v6, 65536, v4"); a("v_add_u32 v7, 65536, v5")
    a(corr[3])
    a("s_mov_b32 s%d, %d" % (sHD, 0x2aaa if "nogate" in EXP else 0))
    a.wait_ds("pR")
    check(14, "R")
    a.dsq = []
    sf_("stats")
    NV = ENV("NV", 6); NG = ENV("NG", 0)
    GST = ENV('GST', 0)
    WBK = [160, 128, 176, 144, 64, 112] if GST else [80, 96, 32, 48, 160, 128, 176, 144]
    OB = [80, 96, 32]
    WB = {s: WBK[s] for s in range(NV)}
    def trw(s):
        a.wait_vm(("wd", s))
        hi = WDS[s % NW] >= 65536; of = WDS[s % NW] - 65536 * hi
        for ct in range(4):
            for hf in range(2):
                a.ds("ds_read_b64_tr_b16 %s, v%d offset:%d" % (vr(WB[s] + 4 * ct + 2 * hf, 2), TRB[hi][ct >> 1], of + hf * 512 + 8 * (ct & 1)), ("tw", s))
    HA = [9, 3, 0, 10]
    def hpoll(r=14, tag="hp"):
        a("s_mov_b64 exec, 0x3fff")
        a.vm("buffer_load_dword v%d, v8, s[%d:%d], 0 offen sc1" % (r, SWS, SWS + 3), tag)
        a("s_mov_b64 exec, -1")
    def flag(ff, trk=True):
        if "noflag1" in EXP and ff == 1:
            a.wait_vm(("hst", ff)); return
        if trk: a.wait_vm(("hst", ff))
        a("s_mov_b64 exec, 1")
        t = "buffer_store_dword v22, v21, s[%d:%d], 0 offen offset:%d sc1" % (SWS, SWS + 3, ff * 4)
        if trk: a.vm(t, "hfl")
        else: a(t)
        a("s_mov_b64 exec, -1")
    GD = ENV("GD", 11); GP = 9; PKG = ENV("PKG", 0)
    ev = []
    def at(t, item): ev.append((t, len(ev), item))
    BT = 8 * GP
    for i in range(4, 8): at((i - 4) * 6 + 2, corr[i])
    def sched_dma(t, s, dt=5):
        for q, g in enumerate(dma_wd(s)): at(t + q * dt, lambda g=g: emit(g))
    if EARLY:
        sched_dma(0.1, 4); sched_dma(24.1, 5)
        TW = [float(x) for x in os.environ.get("TW", "0.7,1.4,2.1,2.8,3.5,4.2,5.0,5.7").split(",")]
    else:
        for s in range(6): sched_dma(s * BT + 0.1, s)
        TW = [float(x) for x in os.environ.get("TW", "3,4,5,6,7,8").split(",")]
    if GST:
        for n in range(12):
            def ld_own(n=n):
                emit([setr(sOW, "s_mov_b32 s%d, %d" % (sOW, J(6 + n // 4) * 32 * 896)),
                      ("buffer_load_dwordx4 %s, v%d, s[%d:%d], s%d offen offset:%d" % (vr(OB[n // 4] + 4 * (n % 4), 4), 52 + n % 4, SWD, SWD + 3, sOW, (n % 4) * 1024), "own")])
            at(ENV("GT0", 60) + ENV("GTD", 10) * n + 0.2, ld_own)
    NGT = ENV("NGT", 0)
    for s in range(max(NG, NGT)):
        assert TW[s] * BT > [0, 0, 30, 30, 15 * GP + 4 * GD, 15 * GP + 8 * GD, 31 * GP + 4 * GD, 31 * GP + 8 * GD][s]
        at(TW[s] * BT, lambda s=s: trw(s))
        if s < NG:
            at(TW[s] * BT + 20, lambda s=s: a.wait_ds(("tw", s)))
            sched_dma(TW[s] * BT + 20.1, s + NW)
    at(float(os.environ.get("TF0", "7.9")) * BT - 0.5, lambda: flag(0))
    n = 0
    for ff in range(2):
        for tt in range(2):
            r0 = RC[tt]
            for qp in range(2):
                blk = n // 8
                HP = 112 + 4 * (blk & 3)
                for q2 in range(2):
                    q = 2 * qp + q2
                    for e in range(4):
                        g = ACC(ff, 0, tt) + 4 * q + e; u = ACC(ff, 1, tt) + 4 * q + e; T = 64 + (n & 15)
                        if PKG:
                            P2 = lambda r: vr(r, 2)
                            ops = [(3, "v_exp_f32 v%d, v%d" % (T, T)), (6, "v_rcp_f32 v%d, v%d" % (T, T))]
                            if e & 1 == 0:
                                ops += [(0, "v_pk_mul_f32 %s, %s, %s" % (P2(T), P2(g), P2(g))),
                                        (1, "v_pk_fma_f32 %s, %s, %s, %s op_sel:[0,0,1] op_sel_hi:[1,0,1]" % (P2(T), P2(T), P2(r0 + 2), P2(r0))),
                                        (2, "v_pk_mul_f32 %s, %s, %s" % (P2(T), P2(T), P2(g))),
                                        (4, "v_pk_mul_f32 %s, %s, %s" % (P2(g), P2(g), P2(u)))]
                            else:
                                ops += [(4.5 - GP / GD, "v_pk_fma_f32 %s, %s, %s, %s op_sel:[0,1,1] op_sel_hi:[1,1,1]" % (P2(T - 1), P2(T - 1), P2(r0 + 2), P2(r0 + 2))),
                                        (7, "v_pk_mul_f32 %s, %s, %s" % (P2(g - 1), P2(g - 1), P2(T - 1))),
                                        (8, "v_cvt_pk_bf16_f32 v%d, v%d, v%d" % (HP + 2 * q2 + e // 2, g - 1, g))]
                                ops[2] = (4, ops[2][1])
                        else:
                            ops = [(0, "v_mul_f32 v%d, v%d, v%d" % (T, g, g)),
                            (1, "v_fma_f32 v%d, v%d, v%d, v%d" % (T, T, r0 + 2, r0 + 1)),
                            (2, "v_mul_f32 v%d, v%d, v%d" % (T, T, g)),
                            (3, "v_exp_f32 v%d, v%d" % (T, T)),
                            (4, "v_mul_f32 v%d, v%d, v%d" % (g, g, u)),
                            (5, "v_fma_f32 v%d, v%d, v%d, v%d" % (T, T, r0 + 3, r0 + 3)),
                            (6, "v_rcp_f32 v%d, v%d" % (T, T)),
                            (7, "v_mul_f32 v%d, v%d, v%d" % (g, g, T))]
                            if e & 1: ops.append((8, "v_cvt_pk_bf16_f32 v%d, v%d, v%d" % (HP + 2 * q2 + e // 2, g - 1, g)))
                        for k, o in ops: at(n * GP + k * GD, o)
                        n += 1
                t = (n - 1) * GP + 8 * GD
                at(t + 4, "v_permlane32_swap_b32 v%d, v%d" % (HP, HP + 2))
                at(t + 5, "v_permlane32_swap_b32 v%d, v%d" % (HP + 1, HP + 3))
                def st_h(HP=HP, ff=ff, tt=tt, qp=qp):
                    a("s_movk_i32 s%d, %d" % (sT0, ff * 4096))
                    a.vm("buffer_store_dwordx4 %s, v20, s[%d:%d], s%d offen offset:%d %s" % (vr(HP, 4), SWS, SWS + 3, sT0, tt * 2048 + qp * 512, os.environ.get("HSM", "sc1").replace("_", " ")), ("hst", ff))
                at(t + 8, st_h)
    for t, _, it in sorted(ev, key=lambda x: (x[0], x[1])):
        if callable(it): it()
        else: a(it)
    sf_("gelu")
    A2 = lambda ct, tt: 192 + 16 * ct + 4 * tt
    free = [48] + OB if GST else [64, 112] + WBK[NV:]
    HB = {}
    def ld_h(s, trk=True):
        if ENV("VERB", 0): print("ld_h", s, free)
        if s not in HB: HB[s] = free.pop(0)
        if ROT: a("s_lshl_b32 s%d, s%d, 6" % (sOW, RJ[s % 7])); a("s_add_u32 s%d, s%d, %d" % (sOW, sOW, WS_H + (s // 7) * 4096))
        else: a("s_mov_b32 s%d, %d" % (sOW, WS_H + J(s) * 4096))
        if "hsame" in EXP: a("s_mov_b32 s%d, 0" % sOW)
        for tt in range(4):
            t = "buffer_load_dwordx4 %s, v%d, s[%d:%d], s%d offen" % (vr(HB[s] + 4 * tt, 4), HA[tt], SWS, SWS + 3, sOW)
            if trk: a.vm(t, ("h", s, tt))
            else: a(t)
    def spin_h(mask, lj, r=14, p1=None):
        lo = L("HS"); l1 = L("HS")
        def slow():
            a.label(lo)
            a("s_mov_b32 s%d, %d" % (sT3, SPIN))
            a.label(l1)
            a("s_mov_b64 exec, 0x3fff")
            a("buffer_load_dword v%d, v8, s[%d:%d], 0 offen sc1" % (r, SWS, SWS + 3))
            a("s_mov_b64 exec, -1")
            if p1 is not None:
                a("s_waitcnt vmcnt(%d)" % p1)
                a("v_cmp_ne_u32 vcc, s%d, v23" % sNON)
                a("s_and_b32 s%d, vcc_lo, 0x%x" % (sT0, mask))
                a("s_cbranch_scc0 %s" % lj)
            a("s_waitcnt vmcnt(0)")
            a("v_cmp_ne_u32 vcc, s%d, v%d" % (sNON, r))
            a("s_and_b32 s%d, vcc_lo, 0x%x" % (sT0, mask))
            a("s_cbranch_scc0 %s" % lj)
            a("s_sleep %d" % ENV("HSL", 3))
            a("s_sub_u32 s%d, s%d, 1" % (sT3, sT3)); a("s_cmp_lg_u32 s%d, 0" % sT3)
            a("s_cbranch_scc1 %s" % l1)
            a("s_branch %s" % lj)
        deferred.append(slow)
        return lo
    P0 = ENV("P0", 5)
    if P0 == 0: hpoll()
    for s in range(max(NG, NGT), NV): trw(s)
    a("s_mul_i32 s%d, s%d, 14" % (sT1, sWV))
    a("s_mul_i32 s%d, s%d, 56" % (sT0, sRT2))
    a("s_add_u32 s%d, s%d, s%d" % (sT0, sT0, sT1))
    a("s_lshl_b32 s%d, s%d, 12" % (sT0, sT0))
    for r in range(4):
        a("s_add_u32 s%d, s%d, %d" % (sT1, sWV, r)); a("s_and_b32 s%d, s%d, 3" % (sT1, sT1)); a("s_lshl_b32 s%d, s%d, 10" % (sT1, sT1))
        a("s_add_u32 s%d, s%d, s%d" % (sT1, sT1, sT0))
        a("v_lshl_add_u32 v%d, v1, 4, s%d" % (HA[r], sT1))
    a("v_and_b32 v17, 15, v1"); a("v_lshrrev_b32 v13, 4, v1")
    a("s_lshl_b32 s%d, s%d, 6" % (sT0, sRT2)); a("s_lshl_b32 s%d, s%d, 4" % (sT1, sWV)); a("s_add_u32 s%d, s%d, s%d" % (sT0, sT0, sT1))
    a("v_add_u32 v18, s%d, v17" % sT0)
    a("v_mul_u32_u24 v18, 896, v18")
    a("v_lshl_add_u32 v18, v13, 5, v18")
    a("s_lshl_b32 s%d, s%d, 7" % (sT0, sCT))
    a("v_add_u32 v18, s%d, v18" % sT0)
    a.vm("buffer_load_dwordx4 v[24:27], v18, s[%d:%d], 0 offen" % (SX, SX + 3), "x")
    a.vm("buffer_load_dwordx4 v[28:31], v18, s[%d:%d], 0 offen offset:16" % (SX, SX + 3), "x")
    a("v_mul_u32_u24 v16, %d, v13" % STG_W)
    a("v_lshrrev_b32 v13, 2, v17"); a("v_lshl_add_u32 v16, v13, 7, v16")
    a("v_and_b32 v13, 1, v17"); a("v_lshl_add_u32 v16, v13, 3, v16")
    a("v_bfe_u32 v13, v17, 1, 1"); a("v_lshl_add_u32 v16, v13, 6, v16")
    a("s_add_u32 s%d, s%d, %d" % (sT1, sT1, L_STG))
    a("v_add_u32 v16, s%d, v16" % sT1)
    a("v_lshl_add_u32 v19, v1, 4, s%d" % sOX)
    arrive(1, Y_TR)
    if GST:
        a.wait_vm("own")
        for n in range(12):
            hi = WDS[n // 4] >= 65536
            if n == 8: a("v_add_u32 v13, 65536, v19")
            a.ds("ds_write_b128 v%d, %s offset:%d" % ((19, 13)[hi], vr(OB[n // 4] + 4 * (n % 4), 4), WDS[n // 4] - 65536 * hi + (n % 4) * 1024), "ow")
    if P0 == 1: hpoll()
    flag(1)
    sf_("flag1")
    if P0 == 2: hpoll()
    a("s_setprio %d" % ENV("F2PRIO", 0))
    if not GST:
        a("s_waitcnt lgkmcnt(0)"); a.dsq = []
        P1 = ENV("P1", 0)
        if P1 == 1: hpoll(23, "hp1")
        WO = [int(x) for x in os.environ.get("WO", "-2,-2,-2").split(",")]
        for s in range(6 + NG, 9):
            if WO[s - 6] == -2:
                for g in dma_wd(s): emit(g)
            if P1 == s - 4: hpoll(23, "hp1")
            if P0 == s - 3:
                if ENV("PDL", 4): a("s_sleep %d" % ENV("PDL", 4))
                hpoll()
    wdq = []
    lj = L("HJ")
    a.wait_vm("hp")
    a("v_cmp_ne_u32 vcc, s%d, v14" % sNON)
    a("s_and_b32 s%d, vcc_lo, 0x1555" % sT0)
    lo = spin_h(0x1555, lj, p1=(len(a.vmq) - [t for t in range(len(a.vmq)) if a.vmq[t] == "hp1"][0]) if P1 else None)
    a("s_cbranch_scc1 %s" % lo)
    a.label(lj)
    if ENV("DLY", 0): a("s_sleep %d" % ENV("DLY", 0))
    sf_("hpoll")
    NHM = ENV("NHM", 4)
    assert NSTA == 5 and NV == 6 and not wdq
    sRDY, sISS = sHD, sLD
    WTAB = 22; WOF = list(range(8, 15)); sHM = 16
    PR = [23, 17, 2]
    def dpoll(n):
        l = L("DP")
        a("s_cmp_eq_u32 s%d, 0x2aaa" % sRDY)
        a("s_cbranch_scc1 %s" % l)
        a("s_mov_b64 exec, 0x3fff")
        a("buffer_load_dword v%d, v8, s[%d:%d], 0 offen sc1" % (PR[n % 3], SWS, SWS + 3))
        a("s_mov_b64 exec, -1")
        a.label(l)
        a.mark(("hq", n))
    def deval(n):
        a.wait_vm(("hq", n))
        a("v_cmp_eq_u32 vcc, s%d, v%d" % (sNON, PR[n % 3]))
        a("s_and_b32 s%d, vcc_lo, 0x2aaa" % sT0)
        a("s_or_b32 s%d, s%d, s%d" % (sRDY, sRDY, sT0))
    def dslow():
        a.label("K_DS")
        a("s_mov_b64 exec, 0x3fff")
        a("buffer_load_dword v14, v8, s[%d:%d], 0 offen sc1" % (SWS, SWS + 3))
        a("s_mov_b64 exec, -1")
        a("s_sub_i32 s18, s18, 1"); a("s_max_i32 s18, s18, 0")
        a("s_cmp_eq_u32 s18, 0"); a("s_cselect_b32 s19, -1, 0")
        a("s_waitcnt vmcnt(0)")
        a("v_cmp_eq_u32 vcc, s%d, v14" % sNON)
        a("s_or_b32 s19, s19, vcc_lo")
        a("s_and_b32 s19, s19, 0x2aaa")
        a("s_or_b32 s%d, s%d, s19" % (sRDY, sRDY))
        a("s_setpc_b64 s[20:21]")
    deferred.append(dslow)
    sWL = 17
    def wslow():
        a.label("K_WS")
        a("ds_read_u8 v14, v15 offset:%d" % Y_WS)
        a("s_sub_i32 s18, s18, 1"); a("s_max_i32 s18, s18, 0")
        a("s_cmp_eq_u32 s18, 0"); a("s_cselect_b32 s19, 3, 0")
        a("s_waitcnt lgkmcnt(0)")
        a("v_readfirstlane_b32 s%d, v14" % sWL)
        a("s_sleep 1")
        a("s_or_b32 s%d, s%d, s19" % (sWL, sWL))
        a("s_setpc_b64 s[20:21]")
    deferred.append(wslow)
    def c_issue(s):
        HB[s] = free.pop(0)
        if s < 7 or "stat" in EXP: C = [["s_mov_b32 s%d, %d" % (sOW, WS_H + J(s) * 4096)]]
        else:
            C = [["s_getpc_b64 s[20:21]", "s_andn2_b32 s%d, s%d, s%d" % (sT0, sRDY, sISS), "s_cbranch_scc0 K_DS", "s_ff1_i32_b32 s%d, s%d" % (sT1, sT0)],
                 ["s_lshr_b32 m0, s%d, 1" % sT1, "s_lshl_b32 s%d, s%d, 12" % (sOW, sT1), "s_bitset1_b32 s%d, s%d" % (sISS, sT1), "s_movrels_b32 s%d, s%d" % (WOF[s - 7], WTAB)], []]
        for i, tt in enumerate((1, 2, 3, 0) if s == 13 else range(4)):
            ld = ("buffer_load_dwordx4 %s, v%d, s[%d:%d], s%d offen" % (vr(HB[s] + 4 * tt, 4), HA[tt], SWS, SWS + 3, sOW), ("h", s, tt))
            if "hsame" in EXP: C.append(["s_mov_b32 s%d, 0" % sOW, ld])
            elif "nold" in EXP and s >= 4: pass
            elif i == 0 or i % ENV("LB", 2): C[-1].append(ld)
            else: C.append([ld])
        return C
    def c_trw(s):
        WB[s] = free.pop(0)
        if s < 7 or "stat" in EXP:
            hi = WDS[s % NW] >= 65536; of = WDS[s % NW] - 65536 * hi
            C = [[lambda: a.wait_vm(("wd", min(s, 8)))]]
        else:
            hi = 1; of = 0
            C = [([lambda: a.wait_vm(("wd", 8))] if s == 7 else []) +
                 ["s_and_b32 s%d, s%d, 3" % (sT2, WOF[s - 7]), "s_getpc_b64 s[20:21]", "s_cmp_gt_u32 s%d, s%d" % (sT2, sWL), "s_cbranch_scc1 K_WS"],
                 ["s_sub_u32 s%d, s%d, s%d" % (WOF[s - 7], WOF[s - 7], sT2)] + ["v_add_u32 v%d, s%d, v%d" % (TRB[1][c2], WOF[s - 7], TRB[0][c2]) for c2 in range(2)], []]
        for ct in range(4):
            rd = [("ds_read_b64_tr_b16 %s, v%d offset:%d" % (vr(WB[s] + 4 * ct + 2 * hf, 2), TRB[hi][ct >> 1], of + hf * 512 + 8 * (ct & 1)), ("tw", s)) for hf in range(2)]
            if "notr" in EXP: continue
            if ct == 0: C[-1] += rd
            else: C.append(rd)
        return C
    nh = 0
    DP0 = ENV("DP0", 2)
    PI = [int(x) for x in os.environ.get("PI", "1,5,9").split(",")]
    PE = [int(x) for x in os.environ.get("PE", "5,9,11").split(",")]
    if ENV("HR", 1): a("s_andn2_b32 s%d, 0x2aaa, vcc_lo" % sRDY)
    while free and nh < NHM:
        if nh == DP0 and PI[0] < 0: dpoll(0)
        for c in c_issue(nh): emit(c)
        nh += 1
    if DP0 >= NHM and PI[0] < 0: dpoll(0)
    for s in range(6 + NG, 9):
        if WO[s - 6] == -1:
            for g in dma_wd(s): emit(g)
    a("s_mov_b32 s%d, 0" % sISS)
    a("s_mov_b32 s18, %d" % (SPIN * 2)); a("s_mov_b32 s%d, %d" % (sWL, 3 if "nows" in EXP else 0))
    for k_ in range(5): a("s_mov_b32 s%d, %d" % (WTAB + k_, WDS[k_ + 1] + (k_ >= 2)))
    a("s_mul_i32 s%d, s%d, %d" % (sT0, sWC, CV_CH - 16384)); a("s_add_u32 s%d, s%d, s%d" % (sT0, sT0, sOX)); a("s_add_u32 s%d, s%d, %d" % (WTAB + 5, sT0, L_CV + 2))
    a("s_add_u32 s%d, s%d, 4096" % (WTAB + 6, WTAB + 5))
    a("s_add_u32 s%d, s%d, %d" % (sT0, sWV, L_SYNC)); a("v_mov_b32 v15, s%d" % sT0)
    nw = NV
    for r in range(1, 4):
        a("s_sub_u32 s%d, s%d, %d" % (sT1, sWV, r)); a("s_and_b32 s%d, s%d, 3" % (sT1, sT1)); a("s_lshl_b32 s%d, s%d, 12" % (sT1, sT1))
        a("v_lshl_add_u32 v%d, v1, 4, s%d" % (19 + r, sT1))
    Q2 = [[]] * ENV("PG", 0) + [[lambda: dpoll(PI.index(0))]] if 0 in PI else []
    HXS = [int(x) for x in os.environ.get("HXS", "99").split(",")]
    for s in range(6 + NG, 9):
        if WO[s - 6] == 0: Q2 += dma_wd(s)
    for s in range(14):
        a.wait_ds(("tw", s))
        gap = 0
        for tt in ((1, 2, 3, 0) if s == 13 else range(4)):
            a.wait_vm(("h", s, tt))
            for ct in range(4):
                a("v_mfma_f32_16x16x32_bf16 %s, %s, %s, %s" % (vr(A2(ct, tt), 4), vr(WB[s] + 4 * ct, 4), vr(HB[s] + 4 * tt, 4), "0" if s == 0 else vr(A2(ct, tt), 4)))
                gap += 1
                while Q2 and (len(Q2) > 16 - gap or gap == 16): emit(Q2.pop(0))
                if Q2: emit(Q2.pop(0))
                pr = {1: 0, 2: 1, 3: 2, 0: 3}[tt]
                if s == 13 and pr: a("ds_write_b128 v19, %s offset:%d" % (vr(A2(ct, pr), 4), (pr - 1) * 16384 + ct * 1024))
        sf_("s_%d" % s)
        if s == 5: sf_("s5")
        if s == 9: sf_("s9")
        free.append(HB[s]); free.append(WB[s])
        if s + 1 in PE: Q2.append([lambda n=PE.index(s + 1): deval(n)])
        if s + 1 in PI: Q2.append([lambda n=PI.index(s + 1): dpoll(n)])
        QO = ENV("QO", 0)
        qi = []; qt = []
        if nh < 14: qi += c_issue(nh); nh += 1
        if nh < 14 and s in HXS: qi += c_issue(nh); nh += 1
        if nw < 14 and nw <= s + ENV("TA", 2): qt += c_trw(nw); nw += 1
        for s_ in range(6 + NG, 9):
            if WO[s_ - 6] == s + 1: qi += dma_wd(s_)
        if QO == 0: Q2 += qi + qt
        elif QO == 1: Q2 += qt + qi
        elif QO == 2:
            while qi or qt: Q2.append((qi.pop(0) if qi else []) + (qt.pop(0) if qt else []))
        assert nw > s + 2 or nw == 14
        if s == 12: R1, R2, R3 = [free.pop(0) for _ in range(3)]
        if s == 10:
            XU, YR = [free.pop(0) for _ in range(2)]
            Q2.append([lambda: a.wait_vm("x")])
            for w in range(8):
                Q2.append(["v_lshlrev_b32 v%d, 16, v%d" % (XU + 2 * w, 24 + w), "v_and_b32 v%d, 0xffff0000, v%d" % (XU + 2 * w + 1, 24 + w)])
    arrive(17)
    a("ds_read_u8 v15, v11 offset:%d" % Y_YA)
    sf_("f2end")
    def ya_part(spin=True):
        if spin: spin_lds(11, 15, 1, slp=1, off=Y_YA)
        for q in range(4): a("ds_read_b64_tr_b16 %s, v16 offset:%d" % (vr(YR + 2 * q, 2), q * 512))
        for w in range(8):
            if w % 2 == 0: a("s_waitcnt lgkmcnt(%d)" % (3 - w // 2))
            yw = YR + w; o = XU + 2 * w; t = YR + 8 + 2 * (w & 1)
            a("v_lshlrev_b32 v%d, 16, v%d" % (t, yw)); a("v_and_b32 v%d, 0xffff0000, v%d" % (t + 1, yw))
            a("v_add_f32 v%d, v%d, v%d" % (o, o, t)); a("v_add_f32 v%d, v%d, v%d" % (o + 1, o + 1, t + 1))
            a("v_cvt_pk_bf16_f32 v%d, v%d, v%d" % (o, o, o + 1))
            a("v_and_b32 v%d, 0xffff0000, v%d" % (o + 1, o)); a("v_lshlrev_b32 v%d, 16, v%d" % (o, o))
    def red_part():
        spin_lds(11, 15, 17, slp=0)
        for ct in range(4):
            for r, R in enumerate((R1, R2, R3)):
                a("ds_read_b128 %s, v%d offset:%d" % (vr(R + 4 * ct, 4), 20 + r, r * 16384 + ct * 1024))
        for ct in range(4):
            a("s_waitcnt lgkmcnt(%d)" % (9 - 3 * ct))
            for e in range(4):
                c = 4 * ct + e
                a("v_add_f32 v%d, v%d, v%d" % (R1 + c, R1 + c, A2(ct, 0) + e)); a("v_add_f32 v%d, v%d, v%d" % (R2 + c, R2 + c, R3 + c))
            for e in range(4):
                c = 4 * ct + e
                a("v_add_f32 v%d, v%d, v%d" % (R1 + c, R1 + c, R2 + c))
            for w in range(2):
                b = R1 + 4 * ct + 2 * w
                a("v_cvt_pk_bf16_f32 v%d, v%d, v%d" % (b, b, b + 1))
                a("v_and_b32 v%d, 0xffff0000, v%d" % (b + 1, b)); a("v_lshlrev_b32 v%d, 16, v%d" % (b, b))
    e1, e2 = L("EP"), L("EP")
    a("s_waitcnt lgkmcnt(0)")
    a("v_cmp_gt_u32 vcc, 1, v15")
    a("s_cbranch_vccnz %s" % e1)
    a.begin_opt()
    ya_part(False); red_part()
    a("s_branch %s" % e2)
    a.end_opt()
    a.label(e1)
    a.begin_opt()
    red_part(); ya_part()
    a.end_opt()
    a.label(e2)
    sf_("ya")
    for hc in range(2):
        for w in range(4):
            b = R1 + 8 * hc + 2 * w; o = XU + 8 * hc + 2 * w
            a("v_add_f32 v%d, v%d, v%d" % (b, b, o)); a("v_add_f32 v%d, v%d, v%d" % (b + 1, b + 1, o + 1))
            a("v_cvt_pk_bf16_f32 v%d, v%d, v%d" % (R2 + 4 * hc + w, b, b + 1))
        a("buffer_store_dwordx4 %s, v18, s[%d:%d], 0 offen offset:%d" % (vr(R2 + 4 * hc, 4), SOUT, SOUT + 3, hc * 16) + " " + os.environ.get("OUTM", ""))
    sf_("end")
    sf_.store(24)
    if os.environ.get("MEAS"):
        a("s_sub_u32 s100, s99, s%d" % sNON)
        a("v_mov_b32 v24, s100")
        a("s_cmp_lg_u32 s%d, 0" % sWV); a("s_cbranch_scc1 K_END")
        a("s_mov_b64 exec, 1")
        a("s_lshl_b32 s100, s2, 2"); a("s_add_u32 s100, s100, %d" % WS_DBG); a("v_mov_b32 v25, s100")
        a("buffer_store_dword v24, v25, s[%d:%d], 0 offen sc1" % (SWS, SWS + 3))
    a("s_endpgm")
    for f in deferred: f()
    if KT: a.raw(".p2align 2"); a.label("K_TAB"); a.raw(".long " + ", ".join(str(i + 1) for i in range(16)))

    import gen8h
    gen8h.helper(a, sh_, L, spin_lds)
    gen8h.producer(a, sp_, L, spin_lds)
    a.label("K_END")
    a("s_endpgm")
    if STAMP: print("ffn", sf_.names, "\nhelp", sh_.names, "\nprod", sp_.names)
    return a.finalize()

def wrap(kernels):
    out = []
    for name, grid, block, lds, body, nv in kernels:
        if len(kernels) > 1: out.append("; @launch kernel=%s grid=(%d,1,1) block=(%d,1,1) lds=%d" % (name, grid, block, lds))
        else: out.append("; @launch grid=(%d,1,1) block=(%d,1,1) lds=%d" % (grid, block, lds))
    out.append('.amdgcn_target "amdgcn-amd-amdhsa--gfx950"')
    out.append(".text")
    for name, grid, block, lds, body, nv in kernels:
        out += [".globl %s" % name, ".p2align 8", ".type %s,@function" % name, "%s:" % name, body]
    out.append('.section .rodata,"a"')
    for name, grid, block, lds, body, nv in kernels:
        out += [".p2align 6", ".amdhsa_kernel %s" % name,
                "  .amdhsa_next_free_vgpr %d" % nv, "  .amdhsa_next_free_sgpr 102", "  .amdhsa_accum_offset %d" % ((nv + 3) // 4 * 4),
                "  .amdhsa_group_segment_fixed_size 0", "  .amdhsa_kernarg_size 128", "  .amdhsa_user_sgpr_count 2",
                "  .amdhsa_user_sgpr_kernarg_segment_ptr 1", "  .amdhsa_system_sgpr_workgroup_id_x 1", ".end_amdhsa_kernel"]
    return "\n".join(out) + "\n"

if __name__ == "__main__":
    sys.modules["gen8"] = sys.modules["__main__"]
    NAME = "parallel_sum__ssm_conv_s4__glu_gated_geglu__prompt_kernel"
    ks = [(NAME, 256, 512, LDS, gen(), 256)]
    if os.environ.get("MEAS"):
        b = Asm()
        b("s_cmp_ge_u32 s2, 1"); b("s_cbranch_scc1 K3_END")
        b("s_load_dwordx4 s[4:7], s[0:1], 112"); b("s_waitcnt lgkmcnt(0)")
        srd(b, 8, 6, WS_SIZE); srd(b, 12, 4, 256)
        b("v_lshlrev_b32 v1, 2, v0"); b("v_mov_b32 v10, 0")
        for i in range(4):
            b("s_mov_b32 s22, %d" % (WS_DBG + 128 + i * 256 - (32 if i == 3 else 0) * 4))
            b("buffer_load_dword v4, v1, s[8:11], s22 offen sc1"); b("s_waitcnt vmcnt(0)"); b("v_max_u32 v10, v10, v4")
        b("v_readlane_b32 s30, v10, 0")
        for l in range(1, 64):
            b("v_readlane_b32 s22, v10, %d" % l); b("s_max_u32 s30, s30, s22")
        b("s_mov_b64 exec, 1"); b("v_mov_b32 v1, 0"); b("v_mov_b32 v2, s30")
        b("buffer_store_dword v2, v1, s[12:15], 0 offen"); b("s_waitcnt vmcnt(0)")
        b("s_min_u32 s30, s30, 20000"); b("s_mul_i32 s30, s30, %d" % int(os.environ.get("DM", "4")))
        b("s_memrealtime s[24:25]"); b("s_waitcnt lgkmcnt(0)")
        b.label("K3_L")
        b("s_memrealtime s[26:27]"); b("s_waitcnt lgkmcnt(0)"); b("s_sub_u32 s28, s26, s24"); b("s_cmp_lt_u32 s28, s30"); b("s_cbranch_scc1 K3_L")
        b.label("K3_END"); b("s_endpgm")
        ks = [("k1_kernel",) + ks[0][1:], ("k3_kernel", 1, 64, 0, b.finalize(), 64)]
    open(sys.argv[1] if len(sys.argv) > 1 else "k.s", "w").write(wrap(ks))
```

```python
import math, os
from gen8 import *

XST = ENV("XST", 4096); YST = ENV("YST", 4096); YP = ENV("YP", 0)
def get_nonce(a, L, va, vd, pre=False):
    l1, l2, l3 = L("GN"), L("GN"), L("GN")
    a("s_mov_b32 s%d, %d" % (sCNT, SPIN))
    if pre: a("s_branch %s" % l3)
    a.label(l1)
    a("buffer_load_dwordx2 v[%d:%d], v%d, s[%d:%d], 0 offen sc1" % (vd, vd + 1, va, SDBG, SDBG + 3))
    a.label(l3)
    a("s_waitcnt vmcnt(0)")
    a("v_readfirstlane_b32 s%d, v%d" % (sNON, vd)); a("v_readfirstlane_b32 s%d, v%d" % (sNON + 1, vd + 1))
    a("s_cmp_lg_u32 s%d, 0" % (sNON + 1))
    a("s_cbranch_scc1 %s" % l2)
    a("s_sleep 8")
    a("s_sub_u32 s%d, s%d, 1" % (sCNT, sCNT)); a("s_cmp_lg_u32 s%d, 0" % sCNT)
    a("s_cbranch_scc1 %s" % l1)
    a.label(l2)

def helper(a, sk_, L, spin_lds):
    a.label("K_HELP")
    a.vmq = []
    a("s_setprio 3")
    a("s_load_dwordx2 s[60:61], s[0:1], 64")
    a("s_sub_u32 s%d, s%d, 4" % (sKW, sWV))
    a("s_cmp_lg_u32 s%d, 7" % sWV)
    a("s_cbranch_scc1 K_NZ")
    a.begin_opt()
    a("v_lshlrev_b32 v2, 2, v1"); a("v_add_u32 v2, %d, v2" % L_SYNC); a("v_mov_b32 v3, 0")
    a("ds_write_b32 v2, v3")
    if KT: a("v_and_b32 v2, 3, v1"); a("v_mul_u32_u24 v2, %d, v2" % FLS); a("v_add_u32 v2, %d, v2" % (L_FL + 64)); a("ds_write_b32 v2, v3")
    else: a("ds_write_b32 v2, v3 offset:512")
    a.end_opt()
    a.label("K_NZ")
    a("s_and_b32 s%d, s%d, 1" % (sHF, sKW))
    a("s_lshr_b32 s%d, s%d, 1" % (sT0, sKW))
    a("s_sub_u32 s%d, s2, 32" % sCH)
    a("s_lshl_b32 s%d, s%d, 1" % (sCH, sCH))
    a("s_add_u32 s%d, s%d, s%d" % (sCH, sCH, sT0))
    a("s_mul_i32 s%d, s%d, %d" % (sCVB, sT0, CV_CH))
    a("s_add_u32 s%d, s%d, %d" % (sCVB, sCVB, L_CV))
    a("s_lshl_b32 s%d, s%d, 8" % (sT0, sCH))
    a("s_lshl_b32 s%d, s%d, 7" % (sT1, sHF))
    a("s_add_u32 s%d, s%d, s%d" % (sT0, sT0, sT1))
    a("v_add_u32 v2, s%d, v1" % sT0)
    a("v_lshlrev_b32 v2, 1, v2")
    a("s_lshl_b32 s%d, s%d, 1" % (sT1, sCH))
    a("v_mov_b32 v3, s%d" % sT1)
    a("s_waitcnt lgkmcnt(0)")
    P = [[20, 21, 22, 23, 24, 25], [120, 121, 122, 123, 124, 125]]
    a.vm("global_load_ushort v26, v3, s[30:31]", "param")
    for it in range(2):
        for i in range(6):
            a.vm("global_load_ushort v%d, v2, s[%d:%d] offset:%d" % (P[it][i], 18 + 2 * i, 19 + 2 * i, it * 128), "param")
    a.vm("global_load_ushort v160, v3, s[60:61]", "param")
    PE0, PE1 = ENV("PE0", 0), ENV("PE1", 0)
    if PE1:
        n = (PE1 - PE0) * 28 // 896
        a("s_lshl_b32 s%d, s%d, 1" % (sT0, sCH)); a("s_add_u32 s%d, s%d, s%d" % (sT0, sT0, sHF))
        a("s_mul_i32 s%d, s%d, %d" % (sT1, sT0, n * 128)); a("s_add_u32 s%d, s%d, %d" % (sT1, sT1, PE0 * 3584))
        a("v_lshl_add_u32 v253, v1, 7, s%d" % sT1)
        a("s_mov_b64 exec, 0x%x" % ((1 << n) - 1))
        a.vm("global_load_dword v250, v253, s[32:33]", "tw"); a.vm("global_load_dword v251, v253, s[34:35]", "tw")
        a("s_mov_b64 exec, -1")
    a("s_setprio %d" % int(os.environ.get("KPRIO", "2")))
    a("s_barrier")
    srd(a, SWS, 14, WS_SIZE)
    TLW = ENV("TLW", 0)
    PFA = ENV("PFA", 151); PFB = ENV("PFB", 0); PFH = ENV("PFH", 0); PFO = ENV("PFO", 0)
    def pf_w(which, trk=True):
        vm = (lambda t: a.vm(t, "tw")) if trk else a
        a("s_sub_u32 s%d, s2, 32" % sT0); a("s_lshl_b32 s%d, s%d, 2" % (sT0, sT0)); a("s_add_u32 s%d, s%d, s%d" % (sT0, sT0, sKW))
        if which == "B":
            n = (448 - PFB) * 28 // 896
            a("s_mul_i32 s%d, s%d, %d" % (sT1, sT0, n * 128)); a("s_add_u32 s%d, s%d, %d" % (sT1, sT1, PFB * 3584))
            a("v_lshl_add_u32 v253, v1, 7, s%d" % sT1)
            a("s_mov_b64 exec, 0x%x" % ((1 << n) - 1))
            vm("global_load_dword v250, v253, s[32:33]"); vm("global_load_dword v251, v253, s[34:35]")
            a("s_mov_b64 exec, -1")
        else:
            a("s_mul_i32 s%d, s%d, 1792" % (sT1, sT0))
            a("v_lshl_add_u32 v252, v1, 7, s%d" % sT1)
            a("s_mov_b64 exec, 0x3fff")
            vm("global_load_dword v252, v252, s[8:9]")
            a("s_mov_b64 exec, -1")
    def pf_c():
        a("s_and_b32 s%d, s%d, 3" % (sT0, sRT2)); a("s_mul_i32 s%d, s%d, 14" % (sT0, sT0))
        a("s_lshl_b32 s%d, s%d, 2" % (sT1, sKW)); a("s_lshr_b32 s%d, 0x331c, s%d" % (sT1, sT1)); a("s_and_b32 s%d, s%d, 15" % (sT1, sT1))
        a("s_add_u32 s%d, s%d, s%d" % (sT0, sT0, sT1)); a("s_mul_i32 s%d, s%d, 224" % (sT0, sT0)); a("s_add_u32 s%d, s%d, s%d" % (sT0, sT0, sCT)); a("s_lshl_b32 s%d, s%d, 7" % (sT0, sT0))
        a("v_mul_u32_u24 v174, 896, v1")
        a("s_cmp_lt_u32 s%d, 3" % sKW); a("s_cselect_b32 exec_lo, -1, 0"); a("s_mov_b32 exec_hi, 0")
        a("buffer_load_dword v174, v174, s[%d:%d], s%d offen" % (SWD, SWD + 3, sT0))
        a("s_mov_b64 exec, -1")
    def pf_f():
        a("s_lshl_b32 s%d, s%d, 1" % (sT0, sF)); a("s_lshr_b32 s%d, s%d, 1" % (sT1, sKW)); a("s_add_u32 s%d, s%d, s%d" % (sT0, sT0, sT1))
        a("s_mul_i32 s%d, s%d, 37" % (sT1, sT0)); a("s_lshr_b32 s%d, s%d, 8" % (sT1, sT1)); a("s_add_u32 s%d, s%d, s%d" % (sT0, sT0, sT1))
        a("s_lshl_b32 s%d, s%d, 1" % (sT1, sR)); a("s_add_u32 s%d, s%d, s%d" % (sT1, sT1, sHF)); a("s_lshl_b32 s%d, s%d, 5" % (sT1, sT1))
        a("s_add_u32 s%d, s%d, s%d" % (sT0, sT0, sT1)); a("s_lshl_b32 s%d, s%d, %d" % (sT0, sT0, FSH)); a("s_add_u32 s%d, s%d, %d" % (sT0, sT0, WS_HF))
        a("v_mov_b32 v174, s%d" % sT0)
        a("s_and_b32 s%d, s%d, 0xfffe" % (sT0, sCH)); a("s_add_u32 s%d, s%d, s%d" % (sT0, sT0, sHF)); a("s_lshl_b32 s%d, s%d, 8" % (sT0, sT0))
        a("s_add_u32 s%d, s%d, %d" % (sT0, sT0, WS_CF))
        a("v_writelane_b32 v174, s%d, 1" % sT0)
        a("s_mov_b64 exec, 3")
        a("buffer_load_dword v174, v174, s[%d:%d], 0 offen sc1" % (SWS, SWS + 3))
        a("s_mov_b64 exec, -1")
    def pf_h(trk=True):
        a("s_lshl_b32 s%d, s%d, 1" % (sT0, sR)); a("s_add_u32 s%d, s%d, s%d" % (sT0, sT0, sHF)); a("s_mul_i32 s%d, s%d, 56" % (sT0, sT0))
        a("s_lshl_b32 s%d, s%d, 2" % (sT1, sF)); a("s_add_u32 s%d, s%d, s%d" % (sT0, sT0, sT1))
        a("s_and_b32 s%d, s%d, 2" % (sT1, sKW)); a("s_add_u32 s%d, s%d, s%d" % (sT0, sT0, sT1)); a("s_lshl_b32 s%d, s%d, 12" % (sT0, sT0))
        a("v_lshlrev_b32 v174, 7, v1")
        t = "buffer_load_dword v174, v174, s[%d:%d], s%d offen" % (SWS, SWS + 3, sT0)
        if trk: a.vm(t, "tw")
        else: a(t)
    def pf_o(trk=True):
        a("s_lshl_b32 s%d, s%d, 2" % (sT0, sRT2)); a("s_add_u32 s%d, s%d, s%d" % (sT0, sT0, sKW))
        a("s_mul_i32 s%d, s%d, %d" % (sT0, sT0, 16 * 896)); a("s_lshl_b32 s%d, s%d, 7" % (sT1, sCT)); a("s_add_u32 s%d, s%d, s%d" % (sT0, sT0, sT1))
        a("v_mul_u32_u24 v166, 896, v1"); a("v_add_u32 v166, s%d, v166" % sT0)
        a("s_mov_b64 exec, 0xffff")
        t = "global_load_dword v166, v166, s[10:11]"
        if trk: a.vm(t, "tw")
        else: a(t)
        a("s_mov_b64 exec, -1")
    PFBT = ENV("PFBT", 1)
    if PFB and PFBT == 1: pf_w("B")
    if PFA == 1: pf_w("A")
    if PFH == 1: pf_h()
    if PFO == 1: pf_o()
    if TLW:
        a("v_bfe_u32 v4, v1, 2, 1"); a("v_mul_u32_u24 v4, 56, v4"); a("v_and_b32 v5, 3, v1"); a("v_add_u32 v4, v4, v5")
        a("s_mul_i32 s%d, s%d, 112" % (sT0, sR)); a("s_lshl_b32 s%d, s%d, 2" % (sT1, sF)); a("s_add_u32 s%d, s%d, s%d" % (sT0, sT0, sT1))
        a("v_add_u32 v4, s%d, v4" % sT0); a("v_lshlrev_b32 v4, 12, v4")
        a("s_lshl_b32 s%d, s%d, %d" % (sT0, sR, 6 + FSH)); a("s_add_u32 s%d, s%d, %d" % (sT0, sT0, WS_HF + 7 * 256))
        a("v_writelane_b32 v4, s%d, 8" % sT0)
        a("s_add_u32 s%d, s%d, %d" % (sT0, sT0, 32 << FSH))
        a("v_writelane_b32 v4, s%d, 9" % sT0)
        a("s_cmp_eq_u32 s%d, 1" % sKW); a("s_cselect_b32 exec_lo, 0x3ff, 0"); a("s_mov_b32 exec_hi, 0")
        a.vm("buffer_load_dword v174, v4, s[%d:%d], 0 offen" % (SWS, SWS + 3), "tw")
        a("s_mov_b64 exec, -1")
    if TLW >= 2:
        a("s_mul_i32 s%d, s%d, %d" % (sT0, sRT2, 64 * 896)); a("s_lshl_b32 s%d, s%d, 7" % (sT1, sCT)); a("s_add_u32 s%d, s%d, s%d" % (sT0, sT0, sT1))
        a("v_mul_u32_u24 v5, %d, v1" % (4 * 896)); a("v_add_u32 v5, s%d, v5" % sT0)
        a("s_cmp_eq_u32 s%d, 2" % sKW); a("s_cselect_b32 exec_lo, 0xffff, 0"); a("s_mov_b32 exec_hi, 0")
        a.vm("global_load_dword v174, v5, s[10:11]", "tw")
        a("s_mov_b64 exec, -1")
    a("s_mul_i32 s%d, s%d, %d" % (sSTG, sKW, STG_W))
    a("s_add_u32 s%d, s%d, %d" % (sSTG, sSTG, L_STG))
    a("v_and_b32 v7, 15, v1")
    a("v_lshrrev_b32 v6, 4, v1")
    a("v_mul_u32_u24 v5, 272, v7")
    a("v_lshl_add_u32 v8, v6, 4, s%d" % sSTG)
    a("v_add_u32 v5, v5, v8")
    maps = [[0,1,2,3,4,5,6,7, 8,8,9,10,10,10,11,12],
            [0,0,0,1,1,1,2,2, 3,3,3,4,4,4,5,5],
            [6,6,6,6,6,7,7,7, 8,8,8,8,8,9,9,9],
            [10,10,10,10,10,11,11,11, 12,12,12,12,12,13,13,13]]
    XA = [12, 13, 14, 15]
    a("v_lshlrev_b32 v9, 2, v7")
    a("v_and_b32 v9, 31, v9")
    a("v_cmp_gt_u32 vcc, 8, v7")
    for t in range(4):
        lo = sum(maps[t][i] << (4 * i) for i in range(8)); hi = sum(maps[t][8 + i] << (4 * i) for i in range(8))
        a("v_mov_b32 v10, 0x%x" % hi); a("v_mov_b32 v11, 0x%x" % lo)
        a("v_cndmask_b32 v10, v10, v11, vcc")
        a("v_lshrrev_b32 v10, v9, v10")
        a("v_and_b32 v10, 15, v10")
        a("v_mul_u32_u24 v10, 272, v10")
        a("v_add_u32 v%d, v10, v8" % XA[t])
    D = lambda t, yt: 128 + 8 * t + 4 * yt
    TRIM = ENV("TRIM", 1)
    if not TRIM:
        for r in range(128, 160): a("v_mov_b32 v%d, 0" % r)
    a("s_add_u32 s%d, s%d, %d" % (sT0, sKW, L_SYNC)); a("v_mov_b32 v161, s%d" % sT0)
    a("s_xor_b32 s%d, s%d, 1" % (sT1, sKW)); a("s_add_u32 s%d, s%d, %d" % (sT1, sT1, L_SYNC)); a("v_mov_b32 v162, s%d" % sT1)
    a("v_mov_b32 v163, 1")
    srd(a, SDBG, 12, 256)
    a("s_and_b32 s%d, s2, 7" % sT0); a("s_lshl_b32 s%d, s%d, 13" % (sT0, sT0)); a("s_add_u32 s%d, s%d, %d" % (sT0, sT0, WS_PF))
    a("v_and_b32 v112, 31, v1"); a("v_lshl_add_u32 v112, v112, 8, s%d" % sT0)
    a("v_mov_b32 v113, 64")
    a("v_mov_b32 v114, %d" % (L_SYNC + Y_RDA))
    a("s_cmp_lg_u32 s%d, 0" % sKW)
    a("s_cselect_b32 s%d, 0, 1" % sPM)
    def setf(off):
        a("s_mov_b64 exec, 1")
        a("ds_write_b8 v161, v163 offset:%d" % off)
        a("s_mov_b64 exec, -1")
    def waitp(off, tmp=164, tmpa=165):
        a("v_add_u32 v%d, %d, v162" % (tmpa, off))
        spin_lds(tmpa, tmp, 1)
    hooks = {}
    kc = [0]
    def k(t):
        a(t); kc[0] += 1
        if kc[0] in hooks: hooks.pop(kc[0])()
    if NSTA:
        srd(a, SWD, 8, 1792 * 896)
        a("v_lshrrev_b32 v16, 3, v1")
        a("s_mul_i32 s%d, s%d, %d" % (sT0, sKW, 448 * 896))
        a("v_mul_u32_u24 v16, 896, v16")
        a("s_lshl_b32 s%d, s%d, 7" % (sT1, sCT)); a("s_add_u32 s%d, s%d, s%d" % (sT0, sT0, sT1))
        a("v_add_u32 v16, s%d, v16" % sT0)
        a("v_bfe_u32 v18, v1, 4, 1"); a("v_xor_b32 v17, v1, v18"); a("v_and_b32 v17, 7, v17")
        a("v_lshl_add_u32 v170, v17, 4, v16")
    def st_ld(n):
        s_ = 14 - NSTA + n // 4; q = n % 4
        a("s_mov_b32 s%d, %d" % (sOW, ((2 * (s_ % 7) + s_ // 7) * 32 + 8 * q) * 896))
        a("buffer_load_dwordx4 %s, v%d, s[%d:%d], s%d offen" % (vr(176 + 4 * n, 4), 170, SWD, SWD + 3, sOW))
    SP0 = ENV("SP0", 300); SPD = ENV("SPD", 20)
    if SP0 >= 0:
        for n in range(4 * NSTA): hooks[SP0 + SPD * n] = lambda n=n: (st_ld(n), nst.append(n))
    if PFA > 1: hooks[PFA] = lambda: pf_w("A", False)
    if PFB and PFBT > 1: hooks[PFBT] = lambda: pf_w("B", False)
    if ENV("PFC", 0): hooks[ENV("PFC", 0)] = pf_c
    if ENV("PFF", 153): hooks[ENV("PFF", 153)] = pf_f
    if PFH > 1: hooks[PFH] = lambda: pf_h(False)
    if PFO > 1: hooks[PFO] = lambda: pf_o(False)
    nst = []
    a("v_lshlrev_b32 v172, 4, v1")
    a("s_cmp_lg_u32 s15, 0"); a("s_cselect_b32 s%d, 31, 30" % sT0); a("s_lshl_b32 s%d, s%d, 2" % (sT0, sT0)); a("v_mov_b32 v173, s%d" % sT0)
    def u_poll():
        a("s_cmp_lg_u32 s%d, 0" % sPM); a("s_cselect_b32 exec_lo, -1, 0"); a("s_mov_b32 exec_hi, 0")
        a("buffer_load_dword v169, v112, s[%d:%d], 0 offen sc1" % (SWS, SWS + 3))
        a("s_mov_b64 exec, -1")
        del nst[:]
    def u_dma():
        a("s_mul_i32 s%d, s%d, %d" % (sOW, sCH, XST))
        a("s_add_u32 s%d, s%d, %d" % (sOW, sOW, WS_XNT))
        for c in range(2):
            a("s_mov_b32 m0, %d" % (L_CV + c * CV_CH + O_U + 480))
            if c: a("s_add_u32 s%d, s%d, %d" % (sOW, sOW, XST))
            for q in range(4): a("buffer_load_dwordx4 v172, s[%d:%d], s%d offen offset:%d lds" % (SWS, SWS + 3, sOW, q * 1024))
        a("s_mov_b32 m0, %d" % (L_SYNC + Y_U))
        a("s_mov_b64 exec, 1")
        a("global_load_lds_dword v173, s[0:1]")
        a("s_mov_b64 exec, -1")
        a("s_mov_b32 s%d, 0" % sPM)
    def u_try():
        l = L("UT")
        a("s_cmp_eq_u32 s%d, 0" % sPM)
        a("s_cbranch_scc1 %s" % l)
        a.begin_opt()
        a("s_waitcnt vmcnt(%d)" % len(nst))
        a("v_cmp_ne_u32 vcc, s%d, v169" % sNON)
        a("s_cmp_lg_u32 vcc_lo, 0")
        a("s_cbranch_scc1 %s" % l)
        u_dma()
        a("s_mov_b32 m0, s%d" % sSTG)
        a.end_opt()
        a.label(l)
        a("s_nop 0")
    for p_ in os.environ.get("UP", "821").split(","):
        hooks[int(p_)] = u_poll; hooks[int(p_) + ENV("UD", 106)] = u_try
    def nonce_pub():
        ln2 = L("NF")
        a("s_cmp_eq_u32 s%d, 0" % sPM)
        a("s_cbranch_scc1 %s" % ln2)
        a.begin_opt()
        get_nonce(a, L, 113, 116, pre=True)
        a("s_mov_b64 exec, 1")
        a("ds_write_b64 v114, v[116:117] offset:%d" % (Y_NON - Y_RDA))
        a("s_mov_b64 exec, -1")
        a.end_opt()
        a.label(ln2)
    def pf_wd():
        srd(a, SWD, 8, 1792 * 896)
        a("s_lshr_b32 s%d, s2, 3" % sT0); a("s_sub_u32 s%d, s%d, 4" % (sT0, sT0)); a("s_lshl_b32 s%d, s%d, 2" % (sT0, sT0)); a("s_add_u32 s%d, s%d, s%d" % (sT0, sT0, sKW))
        a("s_mul_i32 s%d, s%d, %d" % (sT0, sT0, 112 * 128))
        a("v_lshlrev_b32 v200, 7, v1")
        a("s_add_u32 s%d, s%d, %d" % (sT1, sT0, 48 * 128))
        a("buffer_load_dword v201, v200, s[%d:%d], s%d offen" % (SWD, SWD + 3, sT0))
        a("buffer_load_dword v202, v200, s[%d:%d], s%d offen" % (SWD, SWD + 3, sT1))
    PFW = ENV("PFW", -1)
    GB, FB = (171, 175) if TRIM else (6, 7)
    if TRIM:
        a("v_lshl_add_u32 v18, v1, 4, s%d" % sSTG)
        a("s_xor_b32 s%d, s%d, 1" % (sT0, sKW)); a("s_mul_i32 s%d, s%d, %d" % (sT0, sT0, STG_W)); a("s_add_u32 s%d, s%d, %d" % (sT0, sT0, L_STG))
        a("v_lshl_add_u32 v19, v1, 4, s%d" % sT0)
        a("v_and_b32 v10, v6, v7"); a("v_and_b32 v10, s%d, v10" % sHF)
        a("v_cmp_ne_u32 s[16:17], 0, v10")
        a("v_lshrrev_b32 v10, 1, v6"); a("v_lshlrev_b32 v10, 9, v10")
        a("v_lshl_add_u32 v10, v7, 4, v10")
        a("v_and_b32 v11, 1, v6"); a("v_lshl_add_u32 v10, v11, 3, v10")
        a("s_add_u32 s%d, s%d, %d" % (sT0, sCVB, 4088 - 1024 - 256))
        a("s_lshl_b32 s%d, s%d, 11" % (sT2, sHF))
        a("s_sub_u32 s%d, s%d, s%d" % (sT0, sT0, sT2))
        a("v_sub_u32 v115, s%d, v10" % sT0)
        a("v_and_b32 v118, 3, v1"); a("v_add_u32 v118, %d, v118" % (L_SYNC + Y_CNT))
        a("v_lshlrev_b32 v4, 4, v1")
        for r in range(60, 64): a("v_mov_b32 v%d, 0" % r)
        a("v_add_u32 v119, %d, v4" % O_U)
        a("v_bfe_u32 v10, v1, 2, 2")
        a("v_mul_u32_u24 v10, %d, v10" % CPS)
        a("v_and_b32 v11, 3, v1")
        a("v_lshl_add_u32 v10, v11, 4, v10")
        a("v_add_u32 v10, 4096, v10")
        a("v_cmp_gt_u32 vcc, 32, v1")
        a("v_cndmask_b32 v119, v10, v119, vcc")
        a("v_add_u32 v119, s%d, v119" % sCVB)
        a("v_sub_u32 v10, 3, v7"); a("v_and_b32 v10, 3, v10")
        a("v_mul_u32_u24 v171, %d, v10" % CPS)
        a("v_add_u32 v11, v7, v10")
        a("v_sub_u32 v11, %d, v11" % (2031 - 16 * 126))
        a("v_lshl_add_u32 v11, v6, 3, v11")
        a("v_lshl_add_u32 v171, v11, 1, v171")
        a("s_lshl_b32 s%d, s%d, 8" % (sT0, sHF))
        a("s_sub_u32 s%d, s%d, s%d" % (sT1, sCVB, sT0))
        a("v_add_u32 v171, s%d, v171" % sT1)
        a("v_lshlrev_b32 v175, 5, v7")
        a("v_lshl_add_u32 v175, v6, 4, v175")
        a("v_add_u32 v175, %d, v175" % O_U)
        a("v_add_u32 v175, s%d, v175" % sT1)
        a("s_add_u32 s%d, s%d, s%d" % (sT3, sCVB, sT2))
        a("v_add_u32 v168, s%d, v4" % sT3)
        a("s_and_b32 s%d, s%d, 2" % (sT0, sKW)); a("s_lshl_b32 s%d, s%d, 2" % (sT0, sT0)); a("s_add_u32 s%d, s%d, %d" % (sT0, sT0, L_SYNC + Y_KEXP))
        a("v_mov_b32 v9, s%d" % sT0)
    a.wait_vm("param")
    if TRIM: a("v_mov_b32 v2, v7"); a("v_mov_b32 v3, v6")
    if PFW == 0: pf_wd()
    sk_("param")
    a("s_mov_b32 exec_lo, s%d" % sPM); a("s_mov_b32 exec_hi, 0")
    a("buffer_load_dwordx2 v[116:117], v113, s[%d:%d], 0 offen sc1" % (SDBG, SDBG + 3))
    a("s_mov_b64 exec, -1")
    if "nokgen" in EXP: nonce_pub()
    for it in range(2):
        for r in P[it]: k("v_lshlrev_b32 v%d, 16, v%d" % (r, r))
    k("v_lshlrev_b32 v26, 16, v26")
    k("v_mul_f32 v26, %s, v26" % fbits(LOG2E))
    k("v_exp_f32 v26, v26")
    k("v_cvt_pk_bf16_f32 v26, v26, v26")
    k("v_lshlrev_b32 v26, 16, v26")
    WR = [28, 126]
    for it in range(2):
        p = P[it]
        k("v_mul_f32 v%d, v26, v%d" % (p[0], p[0])); k("v_mul_f32 v%d, v26, v%d" % (p[1], p[1]))
        k("v_mul_f32 v%d, v26, v%d" % (p[2], p[2])); k("v_mul_f32 v%d, v26, v%d" % (p[3], p[3]))
        w = WR[it]
        k("v_mul_f32 v%d, v%d, v%d" % (w, p[4], p[2])); k("v_fma_f32 v%d, -v%d, v%d, v%d" % (w, p[5], p[3], w))
        k("v_mul_f32 v%d, v%d, v%d" % (w + 1, p[4], p[3])); k("v_fma_f32 v%d, v%d, v%d, v%d" % (w + 1, p[5], p[2], w + 1))
    k("v_max_f32 v27, abs(v28), abs(v29)")
    k("v_max3_f32 v27, abs(v126), abs(v127), v27")
    for sh in (1, 2, 4, 8):
        k("v_max_f32_dpp v27, v27, v27 row_shr:%d row_mask:0xf bank_mask:0xf" % sh)
    k("v_max_f32_dpp v27, v27, v27 row_bcast:15 row_mask:0xa bank_mask:0xf")
    k("v_max_f32_dpp v27, v27, v27 row_bcast:31 row_mask:0xc bank_mask:0xf")
    k("v_readlane_b32 s%d, v27, 63" % sINV)
    k("s_lshr_b32 s%d, s%d, 23" % (sINV, sINV))
    if TRIM: k("s_add_u32 s%d, s%d, 1" % (sINV, sINV))
    else:
        k("s_sub_u32 s%d, 254, s%d" % (sSC, sINV))
        k("s_lshl_b32 s%d, s%d, 23" % (sSC, sSC))
    k("v_mov_b32 v10, s%d" % sINV)
    k("s_lshl_b32 s%d, s%d, 2" % (sT1, sKW))
    k("s_add_u32 s%d, s%d, %d" % (sT1, sT1, L_SYNC + Y_KEXP))
    k("v_mov_b32 v11, s%d" % sT1)
    k("ds_write_b32 v11, v10")
    def wscale():
        for w in WR:
            k("v_mul_f32 v%d, s%d, v%d" % (w, sSC, w)); k("v_mul_f32 v%d, s%d, v%d" % (w + 1, sSC, w + 1))
    def common_scale():
        l1, l2, l3 = L("KS"), L("KS"), L("KS")
        a("s_mov_b32 s%d, %d" % (sCNT, SPIN))
        a("s_waitcnt lgkmcnt(15)")
        a("s_branch %s" % l3)
        a.label(l1)
        a("ds_read_b64 v[10:11], v9")
        a("s_waitcnt lgkmcnt(0)")
        a.label(l3)
        a("v_readfirstlane_b32 s%d, v10" % sT0); a("v_readfirstlane_b32 s%d, v11" % sT1)
        a("s_min_u32 s%d, s%d, s%d" % (sSC, sT0, sT1))
        a("s_cmp_lg_u32 s%d, 0" % sSC)
        a("s_cbranch_scc1 %s" % l2)
        a("s_sub_u32 s%d, s%d, 1" % (sCNT, sCNT)); a("s_cmp_lg_u32 s%d, 0" % sCNT)
        a("s_cbranch_scc1 %s" % l1)
        a.label(l2)
        a("s_max_u32 s%d, s%d, s%d" % (sINV, sT0, sT1))
        a("s_sub_u32 s%d, 255, s%d" % (sSC, sINV)); a("s_lshl_b32 s%d, s%d, 23" % (sSC, sSC))
        a("s_sub_u32 s%d, s%d, 1" % (sINV, sINV)); a("s_lshl_b32 s%d, s%d, 23" % (sINV, sINV))
        wscale()
    if not TRIM: wscale()
    k("s_mov_b32 m0, s%d" % sSTG)
    E1, E8, E256, E2, E4, E16 = 30, 32, 34, 36, 38, 40
    tmpi = [0]
    def cmul(d, x, y):
        t = 42 + (tmpi[0] & 3); tmpi[0] += 1
        assert d != y
        k("v_mul_f32 v%d, v%d, v%d" % (t, x, y + 1))
        k("v_mul_f32 v%d, v%d, v%d" % (d, x, y))
        k("v_fma_f32 v%d, -v%d, v%d, v%d" % (d, x + 1, y + 1, d))
        k("v_fma_f32 v%d, v%d, v%d, v%d" % (d + 1, x + 1, y, t))
    PK = [46, 47, 48, 49]; pki = [0]
    def put(row, r, negim=False):
        p = PK[pki[0] & 3]; pki[0] += 1
        k("v_cvt_pk_f16_f32 v%d, v%d, %sv%d" % (p, r, "-" if negim else "", r + 1))
        if "nokw" in EXP or ("halfkw" in EXP and (pki[0] & 1)): k("; skip"); return
        k("ds_write_addtid_b32 v%d offset:%d" % (p, row * 272))
    YF = [64, 80]; XFB = 96
    for it in range(2 if "nokgen" not in EXP else 0):
        are, aim = P[it][0], P[it][1]
        if it == 1 and PFW == 1: pf_wd()
        X0 = WR[it]
        def cexp(d, Lx):
            k("v_mul_f32 v16, %s, v%d" % (fbits(Lx * LOG2E), are))
            k("v_mul_f32 v17, %s, v%d" % (fbits(Lx / (2 * math.pi)), aim))
            k("v_exp_f32 v16, v16")
            k("v_fract_f32 v17, v17")
            k("v_cos_f32 v%d, v17" % d)
            k("v_sin_f32 v%d, v17" % (d + 1))
            k("v_mul_f32 v%d, v16, v%d" % (d, d))
            k("v_mul_f32 v%d, v16, v%d" % (d + 1, d + 1))
        cexp(E8, 8); cexp(E1, 1); cexp(E256, 256)
        cmul(E16, E8, E8); cmul(E2, E1, E1); cmul(E4, E2, E2)
        Ya, Yb = 50, 52
        k("v_mov_b32 v50, 1.0"); k("v_mov_b32 v51, 0")
        put(0, Ya); put(1, E8)
        cmul(Yb, E8, E16)
        put(2, E16); put(3, Yb)
        cmul(Ya, E16, E16)
        for j in range(4, 32, 2):
            cmul(Yb, Yb, E16)
            put(j & 15, Ya); put((j + 1) & 15, Yb)
            if j + 2 < 32: cmul(Ya, Ya, E16)
            if TRIM and it == 0 and j == ENV("KSJ", 12): k("ds_read_b64 v[10:11], v9")
            if j == 14:
                for ks in range(4): k("ds_read_b128 %s, v5 offset:%d" % (vr(YF[0] + 4 * ks, 4), ks * 64))
        for ks in range(4): k("ds_read_b128 %s, v5 offset:%d" % (vr(YF[1] + 4 * ks, 4), ks * 64))
        Xa, Xb, Xc = 54, 56, 58
        if it == 0 and TRIM: common_scale()
        if it == 0: nonce_pub()
        put(0, X0, True)
        cmul(Xa, X0, E1); cmul(Xb, X0, E256)
        put(1, Xa, True); put(8, Xb, True)
        cmul(Xc, Xb, E2)
        for r in range(2, 8):
            cmul(Xa, Xa, E1); put(r, Xa, True)
            if r <= 5:
                put(9 + (r - 2), Xc, True)
                if r < 5: cmul(Xc, Xc, E2)
        def xtile(t):
            for ks in range(4): k("ds_read_b128 %s, v%d offset:%d" % (vr(XFB + 4 * ks, 4), XA[t], ks * 64))
        def xmfma(t):
            for ks in range(4):
                for yt in range(2):
                    k("v_mfma_f32_16x16x32_f16 %s, %s, %s, %s" % (vr(D(t, yt), 4), vr(XFB + 4 * ks, 4), vr(YF[yt] + 4 * ks, 4), "0" if TRIM and it == 0 and ks == 0 else vr(D(t, yt), 4)))
        xtile(0)
        for b in range(2):
            cmul(Xb, Xb, E256); put(3 * b, Xb, True)
            cmul(Xc, Xb, E4); put(3 * b + 1, Xc, True)
            cmul(Xa, Xb, E8); put(3 * b + 2, Xa, True)
        k("s_waitcnt lgkmcnt(6)")
        xmfma(0)
        xtile(1)
        for b in range(4):
            cmul(Xb, Xb, E256); put(6 + 2 * b, Xb, True)
            cmul(Xa, Xb, E8); put(7 + 2 * b, Xa, True)
        k("s_waitcnt lgkmcnt(8)")
        xmfma(1)
        for t in (2, 3):
            xtile(t)
            k("s_waitcnt lgkmcnt(0)")
            xmfma(t)
    if ENV("VERB", 0): print("kgen instrs", kc[0])
    if "nokgen" in EXP:
        for kk_ in sorted(hooks): hooks[kk_]()
        hooks.clear()
    assert not hooks
    sk_("kgen")
    a("s_setprio %d" % ENV("XPRIO", 2))
    u_poll()
    if TRIM:
        x1, x2 = L("X"), L("X")
        a("s_cmp_lg_u32 s%d, 0" % sHF)
        a("s_cbranch_scc1 %s" % x1)
        a.begin_opt()
        for i in range(4): a("ds_write_b128 v18, %s offset:%d" % (vr(144 + 4 * i, 4), i * 1024))
        setf(Y_KX)
        waitp(Y_KX)
        for i in range(4): a("ds_read_b128 %s, v19 offset:%d" % (vr(144 + 4 * i, 4), i * 1024))
        a("s_branch %s" % x2)
        a.end_opt()
        a.label(x1)
        a.begin_opt()
        for i in range(4): a("ds_write_b128 v18, %s offset:%d" % (vr(128 + 4 * i, 4), i * 1024))
        setf(Y_KX)
        waitp(Y_KX)
        for i in range(4): a("ds_read_b128 %s, v19 offset:%d" % (vr(128 + 4 * i, 4), i * 1024))
        a.end_opt()
        a.label(x2)
        a("ds_read_u8 v164, v118 offset:%d" % Y_RD)
        a("s_lshl_b32 s%d, s%d, 11" % (sT2, sHF))
        a("s_add_u32 s%d, s%d, s%d" % (sT3, sCVB, sT2))
        for i in range(4):
            b = 128 + 4 * i
            a("s_waitcnt lgkmcnt(%d)" % (4 - i))
            for e in range(4): a("v_add_f32 v%d, v%d, v%d" % (b + e, b + e, b + 16 + e))
            a("v_cndmask_b32 v%d, v%d, v%d, s[16:17]" % (b, b, b + 1))
            a("v_cvt_pk_f16_f32 v%d, v%d, v%d" % (64 + 2 * i, b + 3, b + 2))
            a("v_cvt_pk_f16_f32 v%d, v%d, v%d" % (65 + 2 * i, b + 1, b))
        xs = L("XS")
        a("s_waitcnt lgkmcnt(0)")
        a("v_cmp_gt_u32 vcc, 10, v164")
        a("s_cbranch_vccz %s" % xs)
        a.begin_opt()
        spin_lds(118, 164, 10, slp=4, off=Y_RD)
        a.end_opt()
        a.label(xs)
        for tl in range(2):
            for yt in range(2):
                a("ds_write_b64 v115, %s offset:%d" % (vr(64 + 4 * tl + 2 * yt, 2), (1 - tl) * 1024 + (1 - yt) * 256))
        a("s_setprio %d" % int(os.environ.get("CPRIO", "2")))
        a("s_cmp_lg_u32 s%d, 0" % sHF)
        a("s_cselect_b32 exec_lo, 0, 0x3fffffff"); a("s_cselect_b32 exec_hi, 0, 0xffff")
        a("ds_write_b128 v119, v[60:63]")
        setf(Y_C0)
        a("v_mov_b32 v5, v168")
    else:
        a("v_lshl_add_u32 v18, v1, 4, s%d" % sSTG)
        a("s_xor_b32 s%d, s%d, 1" % (sT0, sKW))
        a("s_mul_i32 s%d, s%d, %d" % (sT0, sT0, STG_W))
        a("s_add_u32 s%d, s%d, %d" % (sT0, sT0, L_STG))
        a("v_lshl_add_u32 v19, v1, 4, s%d" % sT0)
        x1, x2 = L("X"), L("X")
        a("s_cmp_lg_u32 s%d, 0" % sHF)
        a("s_cbranch_scc1 %s" % x1)
        a.begin_opt()
        for i in range(4): a("ds_write_b128 v18, %s offset:%d" % (vr(144 + 4 * i, 4), i * 1024))
        a("s_branch %s" % x2)
        a.end_opt()
        a.label(x1)
        a.begin_opt()
        for i in range(4): a("ds_write_b128 v18, %s offset:%d" % (vr(128 + 4 * i, 4), i * 1024))
        for i in range(16): a("v_mov_b32 v%d, v%d" % (128 + i, 144 + i))
        a.end_opt()
        a.label(x2)
        setf(Y_KX)
        waitp(Y_KX)
        a("s_and_b32 s%d, s%d, 2" % (sT0, sKW))
        a("s_lshl_b32 s%d, s%d, 2" % (sT0, sT0))
        a("s_add_u32 s%d, s%d, %d" % (sT0, sT0, L_SYNC + Y_KEXP))
        a("v_mov_b32 v10, s%d" % sT0)
        a("ds_read_b64 v[10:11], v10")
        for i in range(4): a("ds_read_b128 %s, v19 offset:%d" % (vr(144 + 4 * i, 4), i * 1024))
        a("s_waitcnt lgkmcnt(4)")
        a("v_max_u32 v16, v10, v11")
        a("v_add_u32 v17, v10, v11"); a("v_subrev_u32 v17, s%d, v17" % sINV)
        def fac(dst, esrc):
            a("v_sub_u32 v%d, %s, v16" % (dst, esrc))
            a("v_add_u32 v%d, 127, v%d" % (dst, dst))
            a("v_max_i32 v%d, 0, v%d" % (dst, dst))
            a("v_lshlrev_b32 v%d, 23, v%d" % (dst, dst))
        fac(20, "s%d" % sINV); fac(22, "v17")
        a("v_lshlrev_b32 v9, 23, v16")
        a("s_waitcnt lgkmcnt(0)")
        for i in range(16):
            a("v_mul_f32 v%d, v20, v%d" % (128 + i, 128 + i))
            a("v_fmac_f32 v%d, v22, v%d" % (128 + i, 144 + i))
        a("v_and_b32 v10, v6, v7"); a("v_and_b32 v10, s%d, v10" % sHF)
        a("v_cmp_ne_u32 vcc, 0, v10")
        for i in range(4): a("v_cndmask_b32 v%d, v%d, v%d, vcc" % (128 + 4 * i, 128 + 4 * i, 129 + 4 * i))
        a("v_lshrrev_b32 v10, 1, v6"); a("v_lshlrev_b32 v10, 9, v10")
        a("v_lshl_add_u32 v10, v7, 4, v10")
        a("v_and_b32 v11, 1, v6"); a("v_lshl_add_u32 v10, v11, 3, v10")
        a("s_add_u32 s%d, s%d, %d" % (sT0, sCVB, 4088 - 1024 - 256))
        a("s_lshl_b32 s%d, s%d, 11" % (sT2, sHF))
        a("s_sub_u32 s%d, s%d, s%d" % (sT0, sT0, sT2))
        a("v_sub_u32 v10, s%d, v10" % sT0)
        for tl in range(2):
            for yt in range(2):
                b = 128 + 8 * tl + 4 * yt
                a("v_cvt_pk_f16_f32 v%d, v%d, v%d" % (64 + 4 * tl + 2 * yt, b + 3, b + 2))
                a("v_cvt_pk_f16_f32 v%d, v%d, v%d" % (65 + 4 * tl + 2 * yt, b + 1, b))
        a("v_and_b32 v11, 3, v1"); a("v_add_u32 v11, %d, v11" % (L_SYNC + Y_CNT))
        spin_lds(11, 164, 10, slp=4, off=Y_RD)
        for tl in range(2):
            for yt in range(2):
                a("ds_write_b64 v10, %s offset:%d" % (vr(64 + 4 * tl + 2 * yt, 2), (1 - tl) * 1024 + (1 - yt) * 256))
        if "dbgk" in EXP:
            a("s_mul_i32 s%d, s%d, %d" % (sT0, sCH, KSTRIDE)); a("s_sub_u32 s%d, s%d, s%d" % (sT0, sT0, sCVB)); a("s_add_u32 s%d, s%d, %d" % (sT0, sT0, WS_KREV))
            for tl in range(2):
                for yt in range(2):
                    a("buffer_store_dwordx2 %s, v10, s[%d:%d], s%d offen offset:%d" % (vr(64 + 4 * tl + 2 * yt, 2), SWS, SWS + 3, sT0, (1 - tl) * 1024 + (1 - yt) * 256))
            a("s_lshl_b32 s%d, s%d, 2" % (sT0, sCH)); a("s_add_u32 s%d, s%d, %d" % (sT0, sT0, WS_KSC)); a("v_mov_b32 v11, s%d" % sT0)
            a("buffer_store_dword v9, v11, s[%d:%d], 0 offen" % (SWS, SWS + 3))
        a("s_setprio %d" % int(os.environ.get("CPRIO", "2")))
        a("v_mov_b32 v2, v7"); a("v_mov_b32 v3, v6")
        a("v_lshlrev_b32 v4, 4, v1")
        a("v_mov_b32 v12, 0"); a("v_mov_b32 v13, 0"); a("v_mov_b32 v14, 0"); a("v_mov_b32 v15, 0")
        a("v_add_u32 v5, %d, v4" % O_U)
        a("v_bfe_u32 v6, v1, 2, 2")
        a("v_mul_u32_u24 v6, %d, v6" % CPS)
        a("v_and_b32 v7, 3, v1")
        a("v_lshl_add_u32 v6, v7, 4, v6")
        a("v_add_u32 v6, 4096, v6")
        a("v_cmp_gt_u32 vcc, 32, v1")
        a("v_cndmask_b32 v5, v6, v5, vcc")
        a("v_add_u32 v5, s%d, v5" % sCVB)
        nz = L("NZ")
        a("s_cmp_lg_u32 s%d, 0" % sHF)
        a("s_cbranch_scc1 %s" % nz)
        a.begin_opt()
        a("s_mov_b32 exec_lo, 0x3fffffff"); a("s_mov_b32 exec_hi, 0xffff")
        a("ds_write_b128 v5, v[12:15]")
        a("s_mov_b64 exec, -1")
        a.end_opt()
        a.label(nz)
        setf(Y_C0)
        a("v_sub_u32 v5, 3, v2"); a("v_and_b32 v5, 3, v5")
        a("v_mul_u32_u24 v6, %d, v5" % CPS)
        a("v_add_u32 v7, v2, v5")
        a("v_sub_u32 v7, %d, v7" % (2031 - 16 * 126))
        a("v_lshl_add_u32 v7, v3, 3, v7")
        a("v_lshl_add_u32 v6, v7, 1, v6")
        a("s_lshl_b32 s%d, s%d, 8" % (sT0, sHF))
        a("s_sub_u32 s%d, s%d, s%d" % (sT1, sCVB, sT0))
        a("v_add_u32 v6, s%d, v6" % sT1)
        a("v_lshlrev_b32 v7, 5, v2")
        a("v_lshl_add_u32 v7, v3, 4, v7")
        a("v_add_u32 v7, %d, v7" % O_U)
        a("v_add_u32 v7, s%d, v7" % sT1)
        a("s_add_u32 s%d, s%d, s%d" % (sT3, sCVB, sT2))
        a("v_add_u32 v5, s%d, v4" % sT3)
    lq, lq2, lq3 = L("PB"), L("PB"), L("PB")
    a("s_cmp_eq_u32 s%d, 0" % sPM)
    a("s_cbranch_scc1 %s" % lq3)
    a.begin_opt()
    a("s_mov_b32 s%d, %d" % (sOX, SPIN))
    a.label(lq)
    a("s_waitcnt vmcnt(0)")
    a("v_cmp_ne_u32 vcc, s%d, v169" % sNON)
    a("s_cmp_eq_u32 vcc_lo, 0")
    a("s_cbranch_scc1 %s" % lq2)
    a("s_sleep %d" % int(os.environ.get("PSL", "20")))
    a("s_mov_b32 exec_hi, 0")
    a("buffer_load_dword v169, v112, s[%d:%d], 0 offen sc1" % (SWS, SWS + 3))
    a("s_mov_b64 exec, -1")
    a("s_sub_u32 s%d, s%d, 1" % (sOX, sOX)); a("s_cmp_lg_u32 s%d, 0" % sOX)
    a("s_cbranch_scc1 %s" % lq)
    a.label(lq2)
    u_dma()
    a.end_opt()
    a.label(lq3)
    sk_("rdyB")
    waitp(Y_C0)
    for it in range(2):
        b = 32 + 8 * it
        a("ds_read_b128 %s, v5 offset:%d" % (vr(b, 4), it * 1024))
        a("ds_read_b64 %s, v5 offset:%d" % (vr(b + 4, 2), it * 1024 + 16))
    for it in range(2):
        b = 32 + 8 * it
        a("s_waitcnt lgkmcnt(%d)" % (2 if it == 0 else 3))
        d = [b + i for i in range(6)]
        c1, c2, c3 = 64 + 12 * it, 68 + 12 * it, 72 + 12 * it
        for i in range(4):
            a("v_alignbit_b32 v%d, v%d, v%d, 16" % (c1 + i, d[i + 1], d[i]))
            a("v_mov_b32 v%d, v%d" % (c2 + i, d[i + 1]))
            a("v_alignbit_b32 v%d, v%d, v%d, 16" % (c3 + i, d[i + 2], d[i + 1]))
        a("ds_write_b128 v5, %s offset:%d" % (vr(c1, 4), CPS + it * 1024))
        a("ds_write_b128 v5, %s offset:%d" % (vr(c2, 4), 2 * CPS + it * 1024))
        a("ds_write_b128 v5, %s offset:%d" % (vr(c3, 4), 3 * CPS + it * 1024))
    sk_("copies")
    CA = 16; G = 64; F = 96
    if not TRIM:
        for r in range(CA, CA + 32): a("v_mov_b32 v%d, 0" % r)
    setf(Y_BL)
    spin_lds(114, 164, 1, width="b32", slp=1, off=Y_U - Y_RDA)
    a("ds_read_b64 v[166:167], v114 offset:%d" % (Y_NON - Y_RDA))
    waitp(Y_BL)
    sk_("built")
    if YP == 3 and "nopp" not in EXP:
        a("v_mov_b32 v174, v112")
        a("s_mov_b32 exec_hi, 0")
        a("buffer_load_dword v169, v174, s[%d:%d], 0 offen offset:128 sc1" % (SWS, SWS + 3))
        a("s_mov_b64 exec, -1")
    a("s_setprio %d" % ENV("MPRIO", 1))
    def rg(ri, q):
        o = 32 * (126 - 16 * q - 2 * ri)
        a("ds_read_b64 %s, v%d offset:%d" % (vr(G + 4 * q, 2), GB, o))
        a("ds_read_b64 %s, v%d offset:%d" % (vr(G + 4 * q + 2, 2), GB, o + 8))
    def rf(ri, j):
        a("ds_read_b128 %s, v%d offset:%d" % (vr(F + 4 * j, 4), FB, 32 * (16 * j - 2 * ri + 14)))
    side = []
    S = side.append
    S("v_lshlrev_b32 v8, 16, v160")
    XW, XO = 128, 136
    for i in range(4):
        for pr in range(2):
            xw = XW + 2 * i + pr; o = XO + 4 * i + 2 * pr
            S("v_cvt_f32_f16 v%d, v%d" % (o, xw))
            S("v_lshrrev_b32 v%d, 16, v%d" % (o + 1, xw)); S("v_cvt_f32_f16 v%d, v%d" % (o + 1, o + 1))
            S("v_mul_f32 v%d, v8, v%d" % (o, o)); S("v_mul_f32 v%d, v8, v%d" % (o + 1, o + 1))
            S("v_cvt_pk_bf16_f32 v%d, v%d, v%d" % (o, o, o + 1))
            S("v_and_b32 v%d, 0xffff0000, v%d" % (o + 1, o)); S("v_lshlrev_b32 v%d, 16, v%d" % (o, o))
    S("v_lshl_add_u32 v5, v1, 4, s%d" % sSTG)
    S("s_xor_b32 s%d, s%d, 1" % (sT0, sKW))
    S("s_mul_i32 s%d, s%d, %d" % (sT0, sT0, STG_W))
    S("s_add_u32 s%d, s%d, %d" % (sT0, sT0, L_STG))
    S("v_lshl_add_u32 v152, v1, 4, s%d" % sT0)
    S("v_and_b32 v13, 1, v3"); S("v_lshlrev_b32 v13, 9, v13")
    S("v_lshrrev_b32 v14, 2, v2"); S("v_lshl_add_u32 v13, v14, 7, v13")
    S("v_lshrrev_b32 v14, 1, v3"); S("v_lshl_add_u32 v13, v14, 6, v13")
    S("v_and_b32 v14, 3, v2"); S("v_lshl_add_u32 v13, v14, 4, v13")
    S("v_add_u32 v13, s%d, v13" % sT2)
    S("s_and_b32 s%d, s%d, 0xfffe" % (sT0, sCH)); S("s_add_u32 s%d, s%d, s%d" % (sT0, sT0, sHF)); S("s_lshl_b32 s%d, s%d, 8" % (sT0, sT0))
    S("s_and_b32 s%d, s%d, 1" % (sT1, sCH)); S("s_lshl_b32 s%d, s%d, 3" % (sT1, sT1))
    S("s_add_u32 s%d, s%d, s%d" % (sT0, sT0, sT1))
    S("s_add_u32 s%d, s%d, %d" % (sT0, sT0, WS_CF))
    S("v_mov_b32 v14, s%d" % sT0)
    S("v_readfirstlane_b32 s%d, v166" % sNON); S("v_readfirstlane_b32 s%d, v167" % (sNON + 1))
    S("s_lshl_b32 s%d, s%d, 14" % (sT0, sCT))
    S("s_lshl_b32 s%d, s%d, 12" % (sT1, sKW))
    S("s_add_u32 s%d, s%d, s%d" % (sT0, sT0, sT1))
    S("s_lshr_b32 s%d, s%d, 4" % (sT1, sRT2)); S("s_lshl_b32 s%d, s%d, 8" % (sT1, sT1))
    S("s_add_u32 s%d, s%d, s%d" % (sT0, sT0, sT1))
    S("s_add_u32 s%d, s%d, %d" % (sT0, sT0, WS_CF))
    S("v_lshrrev_b32 v153, 1, v2"); S("v_lshl_add_u32 v153, v153, 9, s%d" % sT0)
    S("v_and_b32 v154, 1, v2"); S("v_lshl_add_u32 v153, v154, 3, v153")
    S("s_lshl_b32 s%d, s%d, 4" % (sT0, sKW))
    S("v_lshrrev_b32 v154, 3, v1")
    S("v_add_u32 v154, s%d, v154" % sT0)
    S("s_lshl_b32 s%d, s%d, 6" % (sT0, sCT))
    S("v_add_u32 v154, s%d, v154" % sT0)
    S("v_mul_u32_u24 v154, %d, v154" % YST)
    S("v_and_b32 v155, 7, v1")
    S("v_lshl_add_u32 v154, v155, 4, v154")
    S("s_lshl_b32 s%d, s%d, 7" % (sT2, sRT2))
    S("s_add_u32 s%d, s%d, %d" % (sT2, sT2, WS_YAT))
    S("s_add_u32 s%d, s%d, %d" % (sT3, sT2, 8 * YST))
    S("s_mul_i32 s%d, s%d, %d" % (sT0, sCH, YST))
    S("s_add_u32 s%d, s%d, %d" % (sT0, sT0, WS_YAT))
    S("v_add_u32 v165, %d, v162" % Y_CX)
    if NSTA:
        S("s_lshl_b32 s%d, s%d, 13" % (sOX, sHF)); S("s_add_u32 s%d, s%d, s%d" % (sOX, sOX, sCVB)); S("v_lshl_add_u32 v157, v1, 4, s%d" % sOX)
        if SP0 < 0:
            side2 = []
            for n in range(4 * NSTA): side2.append(n)
    def copy_part(part):
        for n in range(4 * NSTA):
            s_ = 14 - NSTA + n // 4; q = n % 4
            if (s_ >= 12) != (part == 1): continue
            if s_ >= 12: ad, of = 157, (s_ - 12) * 4096
            elif WDS[s_ % 6] >= 65536: ad, of = 158, WDS[s_ % 6] - 65536
            else: ad, of = 156, WDS[s_ % 6]
            a("ds_write_b128 v%d, %s offset:%d" % (ad, vr(176 + 4 * n, 4), of + q * 1024))
            cw = ENV("CW%d" % part, part + 1)
            if cw >= 100: a("s_sleep %d" % (cw - 100))
            elif cw:
                for _ in range(cw): a("s_nop 7")
        a("v_mov_b32 v159, %d" % (part + 1))
        a("s_mov_b64 exec, 1")
        a("ds_write_b8 v161, v159 offset:%d" % Y_WS)
        a("s_mov_b64 exec, -1")
    def copy_out():
        l = L("CA")
        a("s_cmp_lg_u32 s%d, 0" % sLD)
        a("s_cbranch_scc1 %s" % l)
        copy_part(0)
        a.label(l)
        copy_part(1)
    def copy_try():
        l = L("CA")
        a("v_cmp_gt_u32 vcc, 1, v164")
        a("s_cmp_lg_u32 s%d, 0" % sLD)
        a("s_cbranch_scc1 %s" % l)
        a("s_cbranch_vccnz %s" % l)
        a.begin_opt()
        a("s_waitcnt vmcnt(0)")
        a("s_mov_b32 s%d, 1" % sLD)
        copy_part(0)
        a.end_opt()
        a.label(l)
    CTRY = [int(x) for x in os.environ.get("CTRY", "9").split(",")]
    a("s_mov_b32 s%d, 0" % sLD)
    a("s_lshl_b32 s%d, s%d, 12" % (sOX, sKW)); a("v_lshl_add_u32 v156, v1, 4, s%d" % sOX); a("v_add_u32 v158, 65536, v156")
    a("v_lshlrev_b32 v13, 5, v2")
    a("v_lshl_add_u32 v13, v3, 3, v13")
    a("s_add_u32 s%d, s%d, %d" % (sT1, sT3, O_U + 480))
    a("v_add_u32 v14, s%d, v13" % sT1)
    for i in range(4): a("ds_read_b64 %s, v14 offset:%d" % (vr(XW + 2 * i, 2), i * 512))
    for q in range(8): rg(0, q); rf(0, 7 - q)
    nm = 0
    if "noconv" in EXP:
        a("s_waitcnt lgkmcnt(0)")
        while side: a(side.pop(0))
    EC = ENV("EC", 0); ECR = ENV("ECR", 2); ECS = ENV("ECS", 5); ECN = ENV("ECN", 1)
    ecq = []
    def ec_start():
        a("v_cmp_le_u32 s[86:87], 1, v164")
        a("v_mov_b32 v159, 1")
        a("s_and_b32 s%d, s86, 1" % sLD)
        a("s_waitcnt vmcnt(%d)" % (1 if YP == 3 else 0))
        for n in range(0, 12, ECN):
            ecq.append(["s_mov_b64 exec, s[86:87]"])
            for n_ in range(n, n + ECN):
                s_ = 9 + n_ // 4; hi = WDS[s_ % 6] >= 65536
                ecq[-1].append("ds_write_b128 v%d, %s offset:%d" % ((156, 158)[hi], vr(176 + 4 * n_, 4), WDS[s_ % 6] - 65536 * hi + (n_ % 4) * 1024))
            if n + ECN >= 12: ecq[-1] += ["s_mov_b32 exec_lo, s%d" % sLD, "s_mov_b32 exec_hi, 0", "ds_write_b8 v161, v159 offset:%d" % Y_WS]
            ecq[-1].append("s_mov_b64 exec, -1")
    for ri in range(4 if "noconv" not in EXP else 0):
        for q in range(8):
            for m in range(7, q - 1, -1):
                if q == 0:
                    a("s_waitcnt lgkmcnt(%d)" % min(15, 3 * m))
                a("v_mfma_f32_16x16x32_f16 %s, %s, %s, %s" % (vr(CA + 4 * m, 4), vr(G + 4 * q, 4), vr(F + 4 * (m - q), 4), "0" if TRIM and ri == 0 and q == 0 else vr(CA + 4 * m, 4)))
                nm += 1
                if NSTA and SP0 < 0 and side2 and nm % ENV("SPM", 4) == 0: st_ld(side2.pop(0))
                if nm > 8 and side:
                    a(side.pop(0))
                    while side and side[0].startswith("s_"): a(side.pop(0))
                if ecq and nm % ECS == 0:
                    for x in ecq.pop(0): a(x)
            if q == 0 and ri in CTRY: copy_try()
            if EC and q == 0 and ri == ECR: ec_start()
            if q == 7 and (ri + 1 in CTRY or (EC and ri + 1 == ECR)): a("ds_read_u8 v164, v161 offset:%d" % Y_TR)
            if ri + 1 < 4: rg(ri + 1, q); rf(ri + 1, 7 - q)
    assert not side and not ecq
    sk_("mfma")
    a("s_setprio %d" % ENV("PPRIO", 3))
    x1, x2 = L("X"), L("X")
    a("s_cmp_lg_u32 s%d, 0" % sHF)
    a("s_cbranch_scc1 %s" % x1)
    a.begin_opt()
    for i in range(4): a("ds_write_b128 v5, %s offset:%d" % (vr(CA + 16 + 4 * i, 4), i * 1024))
    a("s_mov_b64 exec, 1")
    a("ds_write_b8 v161, v163 offset:%d" % Y_CX)
    a("s_mov_b64 exec, -1")
    a("s_branch %s" % x2)
    a.end_opt()
    a.label(x1)
    a.begin_opt()
    for i in range(4): a("ds_write_b128 v5, %s offset:%d" % (vr(CA + 4 * i, 4), i * 1024))
    a("s_mov_b64 exec, 1")
    a("ds_write_b8 v161, v163 offset:%d" % Y_CX)
    a("s_mov_b64 exec, -1")
    for i in range(16): a("v_mov_b32 v%d, v%d" % (CA + i, CA + 16 + i))
    a.end_opt()
    a.label(x2)
    if YP == 3 and "nopp" not in EXP:
        lq, lq2 = L("PP"), L("PP")
        a("s_mov_b32 s%d, %d" % (sOX, SPIN))
        a.label(lq)
        a("s_waitcnt vmcnt(0)")
        a("v_cmp_ne_u32 vcc, s%d, v169" % sNON)
        a("s_cmp_eq_u32 vcc_lo, 0")
        a("s_cbranch_scc1 %s" % lq2)
        a("s_sleep 4")
        a("s_mov_b32 exec_hi, 0")
        a("buffer_load_dword v169, v174, s[%d:%d], 0 offen offset:128 sc1" % (SWS, SWS + 3))
        a("s_mov_b64 exec, -1")
        a("s_sub_u32 s%d, s%d, 1" % (sOX, sOX)); a("s_cmp_lg_u32 s%d, 0" % sOX)
        a("s_cbranch_scc1 %s" % lq)
        a.label(lq2)
    spin_lds(165, 164, 1, slp=0)
    if "hx" in EXP: sk_("xch")
    for i in range(4): a("ds_read_b128 %s, v152 offset:%d" % (vr(CA + 16 + 4 * i, 4), i * 1024))
    for i in range(4):
        a("s_waitcnt lgkmcnt(%d)" % (3 - i))
        for pr in range(2):
            y = CA + 4 * i + 2 * pr; o = XO + 4 * i + 2 * pr
            a("v_add_f32 v%d, v%d, v%d" % (y, y, y + 16)); a("v_add_f32 v%d, v%d, v%d" % (y + 1, y + 1, y + 17))
            ks_ = "s%d" % sINV if TRIM else "v9"
            a("v_mul_f32 v%d, %s, v%d" % (y, ks_, y)); a("v_mul_f32 v%d, %s, v%d" % (y + 1, ks_, y + 1))
            a("v_cvt_pk_bf16_f32 v%d, v%d, v%d" % (y, y, y + 1))
            a("v_and_b32 v%d, 0xffff0000, v%d" % (y + 1, y)); a("v_lshlrev_b32 v%d, 16, v%d" % (y, y))
            a("v_add_f32 v%d, v%d, v%d" % (y, y, o)); a("v_add_f32 v%d, v%d, v%d" % (y + 1, y + 1, o + 1))
            a("v_cvt_pk_bf16_f32 v%d, v%d, v%d" % (72 + 2 * i + pr, y, y + 1))
        if i & 1:
            b = 72 + 4 * (i >> 1)
            a("v_permlane16_swap_b32 v%d, v%d" % (b, b + 2)); a("v_permlane16_swap_b32 v%d, v%d" % (b + 1, b + 3))
            a("buffer_store_dwordx4 %s, v13, s[%d:%d], s%d offen offset:%d %s" % (vr(b, 4), SWS, SWS + 3, sT0, (i >> 1) * 1024, os.environ.get("YSM", "sc1").replace("_", " ")))
    setf(Y_XR)
    if "hx" in EXP: sk_("yst")
    def cflag():
        if YP: return
        a("s_waitcnt vmcnt(0)")
        a("s_mov_b64 exec, 1")
        a("buffer_store_dwordx2 v[166:167], v14, s[%d:%d], 0 offen sc1" % (SWS, SWS + 3))
        a("s_mov_b64 exec, -1")
    def yld(m=True):
        if m: a("s_mov_b64 exec, s[84:85]")
        a("buffer_load_dwordx4 v[104:107], v154, s[%d:%d], s%d offen sc1" % (SWS, SWS + 3, sT2))
        if m: a("s_mov_b64 exec, s[86:87]")
        a("buffer_load_dwordx4 v[108:111], v154, s[%d:%d], s%d offen sc1" % (SWS, SWS + 3, sT3))
        if m: a("s_mov_b64 exec, -1")
    if EC:
        assert YP
        c1 = L("CO")
        a("s_setprio %d" % ENV("QPRIO", 0))
        a("s_cmp_lg_u32 s%d, 0" % sLD)
        a("s_cbranch_scc1 %s" % c1)
        a.begin_opt()
        spin_lds(161, 164, 1, slp=1, off=Y_TR)
        copy_part(0)
        a.end_opt()
        a.label(c1)
        sk_("flag")
        if ENV("CSA", 0): a("s_sleep %d" % ENV("CSA", 0))
        if ENV("YE", 1): yld(False)
        copy_part(1)
        lp, ld, le = L("CP"), L("CP"), L("CP")
        a("s_mov_b32 s%d, %d" % (sOX, SPIN))
        if ENV("YE", 1): a("s_branch %s" % le)
        else: a("s_mov_b64 s[84:85], -1"); a("s_mov_b64 s[86:87], -1")
        a.label(lp)
        yld()
        a.label(le)
        a("s_waitcnt vmcnt(0)")
        a("v_cmp_eq_u32 s[84:85], -1, v104")
        a("v_cmp_eq_u32 s[86:87], -1, v108")
        a("s_or_b64 vcc, s[84:85], s[86:87]")
        a("s_cbranch_scc0 %s" % ld)
        a("s_sleep %d" % int(os.environ.get("CSL", "8")))
        a("s_sub_u32 s%d, s%d, 1" % (sOX, sOX)); a("s_cmp_lg_u32 s%d, 0" % sOX)
        a("s_cbranch_scc1 %s" % lp)
        a.label(ld)
        sk_("polled")
        waitp(Y_XR)
        a("ds_write_b128 v5, v[104:107]")
        a("ds_write_b128 v5, v[108:111] offset:1024")
        setf(Y_YA)
        a("s_waitcnt lgkmcnt(0)")
        sk_("end")
        sk_.store(100)
        a("s_endpgm")
        return
    if ENV("COA", 2) == 1:
        cflag()
        sk_("flag")
        spin_lds(161, 164, 1, slp=1, off=Y_TR)
        copy_out()
    elif ENV("COA", 2) == 2:
        a("ds_read_u8 v164, v161 offset:%d" % Y_TR)
        a("s_waitcnt vmcnt(2) lgkmcnt(0)")
        c1 = L("CO")
        a("v_cmp_gt_u32 vcc, 1, v164")
        a("s_cbranch_vccnz %s" % c1)
        a.begin_opt()
        a("s_mov_b32 s%d, 1" % sLD)
        copy_part(0)
        a.end_opt()
        a.label(c1)
        cflag()
        sk_("flag")
        spin_lds(161, 164, 1, slp=1, off=Y_TR)
        copy_out()
    elif NSTA:
        c1, c2 = L("CO"), L("CO")
        a("ds_read_u8 v164, v161 offset:%d" % Y_TR)
        a("s_waitcnt vmcnt(2) lgkmcnt(0)")
        a("v_cmp_gt_u32 vcc, 1, v164")
        a("s_cbranch_vccnz %s" % c1)
        a.begin_opt()
        copy_out(); cflag()
        a("s_branch %s" % c2)
        a.end_opt()
        a.label(c1)
        a.begin_opt()
        cflag()
        spin_lds(161, 164, 1, slp=1, off=Y_TR)
        copy_out()
        a.end_opt()
        a.label(c2)
    else: cflag()
    if not ENV("COA", 2): sk_("flag")
    a("s_setprio 0")
    a("s_sleep %d" % int(os.environ.get("CSL0", "8")))
    lp, ld = L("CP"), L("CP")
    a("s_mov_b32 s%d, %d" % (sOX, SPIN))
    if YP:
        assert YST == 4096
        a("s_mov_b64 s[84:85], -1"); a("s_mov_b64 s[86:87], -1")
        a.label(lp)
        a("s_mov_b64 exec, s[84:85]")
        a("buffer_load_dwordx4 v[104:107], v154, s[%d:%d], s%d offen sc1" % (SWS, SWS + 3, sT2))
        a("s_mov_b64 exec, s[86:87]")
        a("buffer_load_dwordx4 v[108:111], v154, s[%d:%d], s%d offen sc1" % (SWS, SWS + 3, sT3))
        a("s_mov_b64 exec, -1")
        a("s_waitcnt vmcnt(0)")
        a("v_cmp_eq_u32 s[84:85], -1, v104")
        a("v_cmp_eq_u32 s[86:87], -1, v108")
        a("s_or_b64 vcc, s[84:85], s[86:87]")
        a("s_cbranch_scc0 %s" % ld)
        a("s_sleep %d" % int(os.environ.get("CSL", "8")))
        a("s_sub_u32 s%d, s%d, 1" % (sOX, sOX)); a("s_cmp_lg_u32 s%d, 0" % sOX)
        a("s_cbranch_scc1 %s" % lp)
        a.label(ld)
        sk_("polled")
        waitp(Y_XR)
        a("ds_write_b128 v5, v[104:107]")
        a("ds_write_b128 v5, v[108:111] offset:1024")
        setf(Y_YA)
        a("s_waitcnt lgkmcnt(0)")
        sk_("end")
        sk_.store(100)
        a("s_endpgm")
        return
    a.label(lp)
    a("s_mov_b64 exec, 0xffff")
    a("buffer_load_dwordx2 v[20:21], v153, s[%d:%d], 0 offen sc1" % (SWS, SWS + 3))
    a("s_waitcnt vmcnt(0)")
    a("v_cmp_ne_u64 vcc, s[%d:%d], v[20:21]" % (sNON, sNON + 1))
    a("s_mov_b64 exec, -1")
    a("s_cbranch_vccz %s" % ld)
    a("s_sleep %d" % int(os.environ.get("CSL", "8")))
    a("s_sub_u32 s%d, s%d, 1" % (sOX, sOX)); a("s_cmp_lg_u32 s%d, 0" % sOX)
    a("s_cbranch_scc1 %s" % lp)
    a.label(ld)
    sk_("polled")
    a("buffer_load_dwordx4 v[104:107], v154, s[%d:%d], s%d offen" % (SWS, SWS + 3, sT2))
    a("buffer_load_dwordx4 v[108:111], v154, s[%d:%d], s%d offen" % (SWS, SWS + 3, sT3))
    waitp(Y_XR)
    a("s_waitcnt vmcnt(0)")
    a("ds_write_b128 v5, v[104:107]")
    a("ds_write_b128 v5, v[108:111] offset:1024")
    setf(Y_YA)
    a("s_waitcnt lgkmcnt(0)")
    sk_("end")
    sk_.store(100)
    a("s_endpgm")

def producer(a, sp_, L, spin_lds):
    a.label("K_PROD")
    a.vmq = []
    a.nopkw = True
    XT_S = 912
    L_PC = 64 * XT_S
    a("v_lshrrev_b32 v2, 3, v1")
    a("v_and_b32 v3, 7, v1")
    a("s_lshr_b32 s%d, s2, 3" % sT1)
    a("s_bfe_u32 s%d, s2, 0x20001" % sT0); a("s_lshl_b32 s%d, s%d, 3" % (sR, sT0)); a("s_lshl_b32 s%d, s%d, 1" % (sT1, sT1))
    a("s_add_u32 s%d, s%d, s%d" % (sR, sR, sT1)); a("s_and_b32 s%d, s2, 1" % sT0); a("s_add_u32 s%d, s%d, s%d" % (sR, sR, sT0))
    if ENV("SWP", 0) == 1: a("s_xor_b32 s%d, s%d, 1" % (sT0, sT0))
    a("s_lshr_b32 s%d, s2, 1" % sF); a("s_min_u32 s%d, s%d, 13" % (sF, sF)); a("s_mul_i32 s%d, s%d, 14" % (sT0, sT0)); a("s_add_u32 s%d, s%d, s%d" % (sF, sF, sT0))
    a("s_lshl_b32 s%d, s%d, 3" % (sT0, sWV))
    a("v_add_u32 v4, s%d, v2" % sT0)
    a("s_lshl_b32 s%d, s%d, 6" % (sT1, sR))
    a("v_add_u32 v5, s%d, v4" % sT1)
    a("v_mul_u32_u24 v6, 896, v5")
    a("v_lshl_add_u32 v6, v3, 4, v6")
    a("s_waitcnt lgkmcnt(0)")
    srd(a, SX, 16, 2048 * 896)
    for i in range(7):
        a.vm("buffer_load_dwordx4 %s, v6, s[%d:%d], 0 offen offset:%d" % (vr(32 + 4 * i, 4), SX, SX + 3, i * 128), "x%d" % i)
    srd(a, SWS, 14, WS_SIZE)
    srd(a, SDBG, 12, 256)
    def poison():
        a("s_lshl_b32 s%d, s2, 3" % sT0); a("s_add_u32 s%d, s%d, s%d" % (sT0, sT0, sWV)); a("s_mul_i32 s%d, s%d, 7168" % (sT0, sT0))
        a("s_add_u32 s%d, s%d, %d" % (sT0, sT0, WS_YAT)); a("s_add_u32 s%d, s%d, 4096" % (sT1, sT0))
        a("v_lshlrev_b32 v140, 4, v1")
        for r in range(136, 140): a("v_mov_b32 v%d, -1" % r)
        for i in range(7):
            a.vm("buffer_store_dwordx4 v[136:139], v140, s[%d:%d], s%d offen offset:%d sc1" % (SWS, SWS + 3, (sT0, sT1)[i >> 2], (i & 3) * 1024), "poi")
    ln = L("NN")
    a("s_or_b32 s%d, s2, s%d" % (sT0, sWV))
    a("s_cbranch_scc1 %s" % ln)
    a.begin_opt()
    a("s_memrealtime s[%d:%d]" % (sNON, sNON + 1))
    a("s_waitcnt lgkmcnt(0)")
    a("s_or_b32 s%d, s%d, 0x40000000" % (sNON + 1, sNON + 1)); a("s_or_b32 s%d, s%d, 1" % (sNON, sNON))
    a("v_mov_b32 v12, s%d" % sNON); a("v_mov_b32 v13, s%d" % (sNON + 1)); a("v_mov_b32 v14, 64")
    a("s_mov_b64 exec, 1")
    a("buffer_store_dwordx2 v[12:13], v14, s[%d:%d], 0 offen sc1" % (SDBG, SDBG + 3))
    a("s_mov_b64 exec, -1")
    a.end_opt()
    a.label(ln)
    if YP == 1: poison()
    a("s_lshr_b32 s%d, s%d, 1" % (sT1, sWV))
    a("s_mul_i32 s%d, s%d, %d" % (sT1, sT1, 112 * 3584))
    a("s_lshl_b32 s%d, s%d, 7" % (sT2, sF))
    a("s_add_u32 s%d, s%d, s%d" % (sT1, sT1, sT2))
    a("v_mul_u32_u24 v9, 3584, v2")
    a("v_lshl_add_u32 v9, v3, 4, v9")
    a("v_add_u32 v9, s%d, v9" % sT1)
    a("s_bitcmp0_b32 s%d, 0" % sWV)
    a("s_cselect_b32 s%d, s32, s34" % SWG)
    a("s_cselect_b32 s%d, s33, s35" % (SWG + 1))
    a("s_and_b32 s%d, s%d, 0xffff" % (SWG + 1, SWG + 1))
    a("s_mov_b32 s%d, 0x%x" % (SWG + 2, 448 * 3584))
    a("s_mov_b32 s%d, 0x00020000" % (SWG + 3))
    wq = list(range(14))
    def ldw(n):
        for _ in range(n):
            if not wq: return
            i = wq.pop(0)
            a("s_mov_b32 s%d, %d" % (sOW, i * 8 * 3584))
            a.vm("buffer_load_dwordx4 %s, v9, s[%d:%d], s%d offen" % (vr(64 + 4 * i, 4), SWG, SWG + 3, sOW), "w%d" % i)
    a("s_mov_b32 s%d, 0x3f803f80" % sONES)
    a("v_mov_b32 v10, 0"); a("v_mov_b32 v11, 0"); a("v_mov_b32 v12, 0"); a("v_mov_b32 v13, 0")
    a("v_mul_u32_u24 v7, %d, v4" % XT_S)
    a("v_lshl_add_u32 v7, v3, 4, v7")
    a("v_lshlrev_b32 v8, 4, v5")
    a("s_lshl_b32 s%d, s2, 8" % sT2); a("s_add_u32 s%d, s%d, %d" % (sT2, sT2, WS_PF))
    a("v_lshl_add_u32 v28, v1, 13, s%d" % sT2)
    a("s_lshl_b32 s%d, s%d, 8" % (sT0, sR)); a("s_add_u32 s%d, s%d, %d" % (sT0, sT0, WS_FR))
    a("s_lshl_b32 s%d, s%d, 8" % (sT1, sF)); a("s_add_u32 s%d, s%d, %d" % (sT1, sT1, WS_FC))
    a("s_cmp_eq_u32 s%d, 0" % sWV); a("s_cselect_b32 s%d, s%d, s%d" % (sT0, sT0, sT1)); a("v_mov_b32 v29, s%d" % sT0)
    a("v_mov_b32 v30, 64")
    if ENV("PFG", 1):
        a("v_mov_b32 v141, v28"); a("v_writelane_b32 v141, s%d, 8" % sT0)
        a("s_cmp_lt_u32 s%d, 2" % sWV); a("s_cselect_b32 exec_lo, 0x1ff, 0"); a("s_mov_b32 exec_hi, 0")
        a.vm("buffer_load_dword v141, v141, s[%d:%d], 0 offen sc1" % (SWS, SWS + 3), "pfg")
        a("s_mov_b64 exec, -1")
    for i in range(7):
        a.wait_vm("x%d" % i)
        for r in range(4):
            a("v_dot2_f32_bf16 v%d, v%d, s%d, v%d" % (10 + 2 * (r & 1), 32 + 4 * i + r, sONES, 10 + 2 * (r & 1)))
            a("v_dot2_f32_bf16 v%d, v%d, v%d, v%d" % (11 + 2 * (r & 1), 32 + 4 * i + r, 32 + 4 * i + r, 11 + 2 * (r & 1)))
    ldw(ENV("PW0", 3))
    a("v_add_f32 v10, v10, v12"); a("v_add_f32 v11, v11, v13")
    for mod in ("quad_perm:[1,0,3,2]", "quad_perm:[2,3,0,1]", "row_half_mirror"):
        for r in (10, 11):
            a("v_add_f32_dpp v%d, v%d, v%d %s row_mask:0xf bank_mask:0xf" % (r, r, r, mod))
    c = math.sqrt(2 / math.pi); k1 = -2 * c * LOG2E; k2 = k1 * 0.044715
    a("v_mul_f32 v10, %s, v10" % fbits(1.0 / 448))
    a("v_mul_f32 v11, %s, v11" % fbits(1.0 / 448))
    a("v_fma_f32 v11, -v10, v10, v11")
    a("v_max_f32 v11, 0, v11")
    a("v_cvt_pk_bf16_f32 v10, v10, v11")
    a("v_lshlrev_b32 v12, 16, v10")
    a("v_and_b32 v11, 0xffff0000, v10")
    a("v_add_f32 v11, %s, v11" % fbits(1e-5))
    a("v_cvt_pk_bf16_f32 v11, v11, v11")
    a("v_lshlrev_b32 v11, 16, v11")
    a("v_sqrt_f32 v11, v11")
    a("v_cvt_pk_bf16_f32 v11, v11, v11")
    a("v_lshlrev_b32 v11, 16, v11")
    a("v_rcp_f32 v14, v11")
    a("v_sub_f32 v16, 0, v12")
    a("v_cvt_pk_bf16_f32 v24, v16, v16")
    a("v_mul_f32 v27, v11, v11")
    a("v_mul_f32 v25, %s, v14" % fbits(k1))
    a("v_mul_f32 v10, v14, v14"); a("v_mul_f32 v10, v10, v14")
    a("v_mul_f32 v26, %s, v10" % fbits(k2))
    a("s_mov_b32 s%d, %d" % (sT0, WS_RC))
    a("s_mov_b32 exec_lo, 0x01010101"); a("s_mov_b32 exec_hi, 0x01010101")
    a.vm("buffer_store_dwordx4 v[24:27], v8, s[%d:%d], s%d offen sc1" % (SWS, SWS + 3, sT0), "rc")
    a("s_cmp_lt_u32 s%d, 2" % sWV); a("s_cselect_b32 exec_lo, 1, 0"); a("s_mov_b32 exec_hi, 0")
    a("buffer_load_dwordx2 v[18:19], v30, s[%d:%d], 0 offen sc1" % (SDBG, SDBG + 3))
    a("s_mov_b64 exec, -1")
    sp_("stats")
    def xn_blk(i):
        for r in range(4):
            w = 32 + 4 * i + r; t = 20 + 2 * (r & 1)
            a("v_lshlrev_b32 v%d, 16, v%d" % (t, w)); a("v_and_b32 v%d, 0xffff0000, v%d" % (t + 1, w))
            a("v_pk_add_f32 %s, %s, v[16:17] op_sel_hi:[1,0]" % (vr(t, 2), vr(t, 2)))
            a("v_cvt_pk_bf16_f32 v%d, v%d, v%d" % (t, t, t + 1))
            a("v_and_b32 v%d, 0xffff0000, v%d" % (t + 1, t)); a("v_lshlrev_b32 v%d, 16, v%d" % (t, t))
            a("v_pk_mul_f32 %s, %s, v[14:15] op_sel_hi:[1,0]" % (vr(t, 2), vr(t, 2)))
            a("v_cvt_pk_bf16_f32 v%d, v%d, v%d" % (t, t, t + 1))
            a("v_and_b32 v%d, 0xffff0000, v%d" % (t + 1, t)); a("v_lshlrev_b32 v%d, 16, v%d" % (t, t))
            a("v_cvt_pk_f16_f32 v%d, v%d, v%d" % (w, t, t + 1))
        a("ds_write_b128 v7, %s offset:%d" % (vr(32 + 4 * i, 4), i * 128))
    PO = ENV("PO", 2)
    if PO == 1:
        for i in range(7):
            xn_blk(i); ldw(ENV("PW1", 2))
        ldw(14)
        a("v_lshrrev_b32 v4, 4, v1"); a("v_and_b32 v5, 15, v1")
        a("v_lshrrev_b32 v6, 2, v5"); a("v_lshl_add_u32 v6, v4, 3, v6")
        a("v_bfe_u32 v7, v5, 1, 1"); a("v_lshl_add_u32 v6, v7, 5, v6")
        a("v_mul_u32_u24 v6, %d, v6" % XT_S)
        a("v_and_b32 v7, 1, v5"); a("v_lshl_add_u32 v6, v7, 3, v6")
        a("s_lshl_b32 s%d, s%d, 4" % (sOX, sWV))
        a("v_add_u32 v6, s%d, v6" % sOX)
        a("s_mul_i32 s%d, s%d, %d" % (sOX, sWV, 7 * 1152)); a("s_add_u32 s%d, s%d, %d" % (sOX, sOX, L_PC + 2048))
        a("v_and_b32 v31, 7, v5"); a("v_mul_u32_u24 v31, 144, v31"); a("v_lshl_add_u32 v31, v4, 4, v31")
        a("v_lshrrev_b32 v5, 3, v5"); a("v_lshl_add_u32 v31, v5, 6, v31"); a("v_add_u32 v31, s%d, v31" % sOX)
        a("v_mul_u32_u24 v8, 144, v2"); a("v_lshl_add_u32 v8, v3, 4, v8"); a("v_add_u32 v8, s%d, v8" % sOX)
        a("v_mul_u32_u24 v7, %d, v2" % XST); a("v_lshl_add_u32 v7, v3, 4, v7")
        a("s_lshl_b32 s%d, s%d, 7" % (sT2, sR)); a("s_add_u32 s%d, s%d, %d" % (sT2, sT2, WS_XNT))
        a("s_mul_i32 s%d, s%d, %d" % (sT1, sWV, 8 * XST)); a("s_add_u32 s%d, s%d, s%d" % (sT1, sT1, sT2))
        a("s_waitcnt lgkmcnt(0)")
        sp_("xn")
        a("s_barrier")
        sp_("pbar")
        for i in range(7):
            a("ds_read_b64_tr_b16 %s, v6 offset:%d" % (vr(32 + 4 * i, 2), i * 128))
            a("ds_read_b64_tr_b16 %s, v6 offset:%d" % (vr(34 + 4 * i, 2), i * 128 + 4 * XT_S))
        for i in range(7):
            a("s_waitcnt lgkmcnt(%d)" % 12)
            a("ds_write_b128 v31, %s offset:%d" % (vr(32 + 4 * i, 4), i * 1152))
            a("ds_read_b128 %s, v8 offset:%d" % (vr(144 + 4 * i, 4), i * 1152))
        for i in range(7):
            a("s_waitcnt lgkmcnt(%d)" % (12 - 2 * i))
            a.vm("buffer_store_dwordx4 %s, v7, s[%d:%d], s%d offen sc1" % (vr(144 + 4 * i, 4), SWS, SWS + 3, sT1), "xst")
            if i < 6: a("s_add_u32 s%d, s%d, %d" % (sT1, sT1, 64 * XST))
        sp_("st")
        a("s_mov_b32 s%d, 0x3f80" % sOX); a("s_mov_b32 s%d, 0x3f800000" % sOW)
        for r in range(120, 128): a("v_mov_b32 v%d, 0" % r)
        for i in range(14):
            a.wait_vm("w%d" % i)
            for r in range(4):
                w = 64 + 4 * i + r
                a("v_dot2_f32_bf16 v%d, v%d, s%d, v%d" % (120 + 2 * r, w, sOX, 120 + 2 * r))
                a("v_dot2_f32_bf16 v%d, v%d, s%d, v%d" % (121 + 2 * r, w, sOW, 121 + 2 * r))
        for r in range(120, 128): a("v_add_f32_dpp v%d, v%d, v%d row_ror:8 row_mask:0xf bank_mask:0xf" % (r, r, r))
        for op in ("v_permlane16_swap_b32", "v_permlane32_swap_b32"):
            for r in range(8): a("v_mov_b32 v%d, v%d" % (128 + r, 120 + r))
            for r in range(8): a("%s v%d, v%d" % (op, 120 + r, 128 + r))
            for r in range(8): a("v_add_f32 v%d, v%d, v%d" % (120 + r, 120 + r, 128 + r))
        a("s_lshl_b32 s%d, s%d, 8" % (sT0, sWV))
        a("s_add_u32 s%d, s%d, %d" % (sT0, sT0, L_PC))
        a("v_lshl_add_u32 v9, v3, 5, s%d" % sT0)
        a("s_mov_b64 exec, 0xff")
        a("ds_write_b128 v9, v[120:123]"); a("ds_write_b128 v9, v[124:127] offset:16")
        a("s_mov_b64 exec, -1")
        a("s_waitcnt lgkmcnt(0)")
        sp_("sum")
        a("s_barrier")
        la = L("PA")
        a("s_cmp_lg_u32 s%d, 1" % sWV)
        a("s_cbranch_scc1 %s" % la)
        a.begin_opt()
        a("v_lshlrev_b32 v9, 2, v1")
        a("v_add_u32 v20, %d, v9" % L_PC)
        for i in range(8): a("ds_read_b32 v%d, v20 offset:%d" % (120 + i, i * 256))
        a("s_lshl_b32 s%d, s%d, 9" % (sT2, sF)); a("s_add_u32 s%d, s%d, %d" % (sT0, sT2, WS_CS)); a("s_add_u32 s%d, s%d, %d" % (sT2, sT0, CSM))
        a("v_lshlrev_b32 v9, 3, v1")
        a("s_waitcnt lgkmcnt(0)")
        for m in range(2):
            c = 120 + m; o = 128 + 2 * m
            a("v_add_f32 v%d, v%d, v%d" % (c, c, c + 2)); a("v_add_f32 v%d, v%d, v%d" % (c + 4, c + 4, c + 6))
            a("v_add_f32 v%d, v%d, v%d" % (c, c, c + 4))
            a("v_cvt_pk_bf16_f32 v%d, v%d, v%d" % (c + 2, c, c)); a("v_lshlrev_b32 v%d, 16, v%d" % (c + 2, c + 2))
            a("v_sub_f32 v%d, v%d, v%d" % (c + 2, c, c + 2))
            a("v_cvt_pk_bf16_f32 v%d, v%d, v%d" % (o, c, c + 2)); a("v_and_b32 v%d, 0xffff0000, v%d" % (c + 4, o))
            a("v_sub_f32 v%d, v%d, v%d" % (c + 2, c + 2, c + 4))
            a("v_cvt_pk_bf16_f32 v%d, v%d, 0" % (o + 1, c + 2))
            a("buffer_store_dwordx2 v[%d:%d], v9, s[%d:%d], s%d offen sc1" % (o, o + 1, SWS, SWS + 3, (sT0, sT2)[m]))
        a("s_waitcnt vmcnt(2)")
        a("s_barrier")
        get_nonce(a, L, 30, 18, pre=True)
        a("v_mov_b32 v10, s%d" % sNON)
        a("s_mov_b64 exec, 1")
        a("buffer_store_dword v10, v29, s[%d:%d], 0 offen sc1" % (SWS, SWS + 3))
        a("s_mov_b64 exec, -1")
        sp_("flagC")
        if YP != 3:
            sp_.store(100)
            a("s_endpgm")
        else: a("s_branch K_PP")
        a.end_opt()
        a.label(la)
        a("s_waitcnt vmcnt(0)"); a.vmq = []
        a("s_barrier")
        a("s_cmp_lg_u32 s%d, 0" % sWV)
        a("s_cbranch_scc1 %s" % ("K_PP" if YP == 3 else "K_END"))
        a.begin_opt()
        get_nonce(a, L, 30, 18, pre=True)
        a("v_mov_b32 v10, s%d" % sNON)
        a("s_mov_b64 exec, 0xff")
        a("buffer_store_dword v10, v28, s[%d:%d], 0 offen sc1" % (SWS, SWS + 3))
        a("s_mov_b64 exec, 1")
        a("buffer_store_dword v10, v29, s[%d:%d], 0 offen sc1" % (SWS, SWS + 3))
        a("s_mov_b64 exec, -1")
        a.end_opt()
        if YP == 3:
            a.label("K_PP")
            if ENV("PPS", 0): a("s_sleep %d" % ENV("PPS", 0))
            poison()
            a("s_waitcnt vmcnt(0)")
            a("s_barrier")
            a("s_cmp_lg_u32 s%d, 1" % sWV)
            a("s_cbranch_scc1 K_END")
            a("s_mov_b64 exec, 0xff")
            a("buffer_store_dword v10, v28, s[%d:%d], 0 offen offset:128 sc1" % (SWS, SWS + 3))
            a("s_mov_b64 exec, -1")
            sp_("flagP")
            sp_.store(100)
        return
    def xaddr(sX=sT1):
        a("v_lshrrev_b32 v4, 4, v1"); a("v_and_b32 v5, 15, v1")
        a("v_lshrrev_b32 v6, 2, v5"); a("v_lshl_add_u32 v6, v4, 3, v6")
        a("v_bfe_u32 v7, v5, 1, 1"); a("v_lshl_add_u32 v6, v7, 5, v6")
        a("v_mul_u32_u24 v6, %d, v6" % XT_S)
        a("v_and_b32 v7, 1, v5"); a("v_lshl_add_u32 v6, v7, 3, v6")
        a("s_lshl_b32 s%d, s%d, 4" % (sOX, sWV))
        a("v_add_u32 v6, s%d, v6" % sOX)
        a("s_mul_i32 s%d, s%d, %d" % (sOX, sWV, 7 * 1152)); a("s_add_u32 s%d, s%d, %d" % (sOX, sOX, L_PC + 2048))
        a("v_and_b32 v31, 7, v5"); a("v_mul_u32_u24 v31, 144, v31"); a("v_lshl_add_u32 v31, v4, 4, v31")
        a("v_lshrrev_b32 v5, 3, v5"); a("v_lshl_add_u32 v31, v5, 6, v31"); a("v_add_u32 v31, s%d, v31" % sOX)
        a("v_mul_u32_u24 v8, 144, v2"); a("v_lshl_add_u32 v8, v3, 4, v8"); a("v_add_u32 v8, s%d, v8" % sOX)
        a("v_mul_u32_u24 v7, %d, v2" % XST); a("v_lshl_add_u32 v7, v3, 4, v7")
        a("s_lshl_b32 s%d, s%d, 7" % (sT2, sR)); a("s_add_u32 s%d, s%d, %d" % (sT2, sT2, WS_XNT))
        a("s_mul_i32 s%d, s%d, %d" % (sT1, sWV, 8 * XST)); a("s_add_u32 s%d, s%d, s%d" % (sT1, sT1, sT2))
    NXA = 7 if PO == 2 else ENV("NXA", 4)
    for i in range(NXA):
        xn_blk(i); ldw(ENV("PW1", 2))
    ldw(14)
    a("s_mov_b32 s%d, 0x3f80" % sOX); a("s_mov_b32 s%d, 0x3f800000" % sOW)
    for r in range(120, 128): a("v_mov_b32 v%d, 0" % r)
    for i in range(14):
        a.wait_vm("w%d" % i)
        for r in range(4):
            w = 64 + 4 * i + r
            a("v_dot2_f32_bf16 v%d, v%d, s%d, v%d" % (120 + 2 * r, w, sOX, 120 + 2 * r))
            a("v_dot2_f32_bf16 v%d, v%d, s%d, v%d" % (121 + 2 * r, w, sOW, 121 + 2 * r))
    for r in range(120, 128): a("v_add_f32_dpp v%d, v%d, v%d row_ror:8 row_mask:0xf bank_mask:0xf" % (r, r, r))
    for op in ("v_permlane16_swap_b32", "v_permlane32_swap_b32"):
        for r in range(8): a("v_mov_b32 v%d, v%d" % (128 + r, 120 + r))
        for r in range(8): a("%s v%d, v%d" % (op, 120 + r, 128 + r))
        for r in range(8): a("v_add_f32 v%d, v%d, v%d" % (120 + r, 120 + r, 128 + r))
    a("s_lshl_b32 s%d, s%d, 8" % (sT0, sWV))
    a("s_add_u32 s%d, s%d, %d" % (sT0, sT0, L_PC))
    a("v_lshl_add_u32 v9, v3, 5, s%d" % sT0)
    a("s_mov_b64 exec, 0xff")
    a("ds_write_b128 v9, v[120:123]"); a("ds_write_b128 v9, v[124:127] offset:16")
    a("s_mov_b64 exec, -1")
    if PO == 2: xaddr()
    lw = L("PA")
    a("s_cmp_gt_u32 s%d, 1" % sWV)
    a("s_cbranch_scc1 %s" % lw)
    a.begin_opt()
    get_nonce(a, L, 30, 18, pre=True)
    a("v_mov_b32 v10, s%d" % sNON)
    a.end_opt()
    a.label(lw)
    a("s_waitcnt vmcnt(0) lgkmcnt(0)"); a.vmq = []
    sp_("sum")
    a("s_barrier")
    sp_("pbar0")
    PFP = ENV("PFP", 0)
    def pf_all():
        srd(a, SWD, 8, 1792 * 896)
        a("s_lshr_b32 s%d, s2, 3" % sT0); a("s_lshl_b32 s%d, s%d, 3" % (sT0, sT0)); a("s_add_u32 s%d, s%d, s%d" % (sT0, sT0, sWV))
        a("s_mul_i32 s%d, s%d, %d" % (sT0, sT0, 392 * 128))
        a("v_lshlrev_b32 v141, 7, v1")
        for i in range(7):
            a("buffer_load_dword v%d, v141, s[%d:%d], s%d offen" % (142 + i, SWD, SWD + 3, sT0))
            if i < 6: a("s_add_u32 s%d, s%d, %d" % (sT0, sT0, 8192 if i < 5 else 1024))
    def pf_mid():
        srd(a, SWD, 8, 1792 * 896)
        lp_ = L("PF")
        a("s_cmp_gt_u32 s%d, 5" % sWV)
        a("s_cbranch_scc1 %s" % lp_)
        a.begin_opt()
        a("s_lshr_b32 s%d, s2, 3" % sT0); a("s_mul_i32 s%d, s%d, %d" % (sT0, sT0, 448 * 896))
        a("s_lshr_b32 s%d, s%d, 1" % (sT2, sWV)); a("s_lshl_b32 s%d, s%d, 2" % (sT2, sT2)); a("s_lshr_b32 s%d, 0x31c, s%d" % (sT2, sT2)); a("s_and_b32 s%d, s%d, 15" % (sT2, sT2))
        a("s_lshl_b32 s%d, s%d, 1" % (sT2, sT2)); a("s_and_b32 s%d, s%d, 1" % (sT3, sWV)); a("s_add_u32 s%d, s%d, s%d" % (sT2, sT2, sT3))
        a("s_mul_i32 s%d, s%d, %d" % (sT2, sT2, 16 * 896)); a("s_add_u32 s%d, s%d, s%d" % (sT0, sT0, sT2))
        a("s_add_u32 s%d, s%d, %d" % (sT2, sT0, 48 * 128))
        a("v_lshlrev_b32 v141, 7, v1")
        a("buffer_load_dword v142, v141, s[%d:%d], s%d offen" % (SWD, SWD + 3, sT0))
        a("buffer_load_dword v143, v141, s[%d:%d], s%d offen" % (SWD, SWD + 3, sT2))
        a.end_opt()
        a.label(lp_)
    if PFP == 2:
        lp_ = L("PF")
        a("s_cmp_lt_u32 s%d, 2" % sWV)
        a("s_cbranch_scc1 %s" % lp_)
        a.begin_opt()
        pf_all()
        a.end_opt()
        a.label(lp_)
    la = L("PA")
    a("s_cmp_lg_u32 s%d, 1" % sWV)
    a("s_cbranch_scc1 %s" % la)
    a.begin_opt()
    a("v_lshlrev_b32 v9, 2, v1")
    a("v_add_u32 v20, %d, v9" % L_PC)
    for i in range(8): a("ds_read_b32 v%d, v20 offset:%d" % (120 + i, i * 256))
    a("s_lshl_b32 s%d, s%d, 9" % (sT2, sF)); a("s_add_u32 s%d, s%d, %d" % (sT0, sT2, WS_CS)); a("s_add_u32 s%d, s%d, %d" % (sT2, sT0, CSM))
    a("v_lshlrev_b32 v9, 3, v1")
    a("s_waitcnt lgkmcnt(0)")
    for m in range(2):
        c = 120 + m; o = 128 + 2 * m
        a("v_add_f32 v%d, v%d, v%d" % (c, c, c + 2)); a("v_add_f32 v%d, v%d, v%d" % (c + 4, c + 4, c + 6))
        a("v_add_f32 v%d, v%d, v%d" % (c, c, c + 4))
        a("v_cvt_pk_bf16_f32 v%d, v%d, v%d" % (c + 2, c, c)); a("v_lshlrev_b32 v%d, 16, v%d" % (c + 2, c + 2))
        a("v_sub_f32 v%d, v%d, v%d" % (c + 2, c, c + 2))
        a("v_cvt_pk_bf16_f32 v%d, v%d, v%d" % (o, c, c + 2)); a("v_and_b32 v%d, 0xffff0000, v%d" % (c + 4, o))
        a("v_sub_f32 v%d, v%d, v%d" % (c + 2, c + 2, c + 4))
        a("v_cvt_pk_bf16_f32 v%d, v%d, 0" % (o + 1, c + 2))
        a("buffer_store_dwordx2 v[%d:%d], v9, s[%d:%d], s%d offen sc1" % (o, o + 1, SWS, SWS + 3, (sT0, sT2)[m]))
    a.end_opt()
    a.label(la)
    for i in range(NXA, 7):
        xn_blk(i)
        if i == min(6, NXA + ENV("NXF", 2)):
            lb = L("PA")
            a("s_cmp_gt_u32 s%d, 1" % sWV)
            a("s_cbranch_scc1 %s" % lb)
            a.begin_opt()
            a("s_waitcnt vmcnt(0)")
            a("s_mov_b64 exec, 1")
            a("buffer_store_dword v10, v29, s[%d:%d], 0 offen sc1" % (SWS, SWS + 3))
            a("s_mov_b64 exec, -1")
            if PFP == 2: pf_all()
            a.end_opt()
            a.label(lb)
            sp_("flagC")
    if PO != 2: xaddr()
    if YP == 2:
        a("s_mov_b32 s%d, s%d" % (sT3, sT1)); poison(); a("s_mov_b32 s%d, s%d" % (sT1, sT3))
    if PO == 2:
        a("s_cmp_eq_u32 s%d, 0" % sWV); a("s_cselect_b32 exec_lo, 1, 0"); a("s_mov_b32 exec_hi, 0")
        a("buffer_store_dword v10, v29, s[%d:%d], 0 offen sc1" % (SWS, SWS + 3))
        a("s_mov_b64 exec, -1")
    else:
        a("s_waitcnt lgkmcnt(0)")
        a("s_barrier")
        sp_("pbar")
    for i in range(7):
        a("ds_read_b64_tr_b16 %s, v6 offset:%d" % (vr(32 + 4 * i, 2), i * 128))
        a("ds_read_b64_tr_b16 %s, v6 offset:%d" % (vr(34 + 4 * i, 2), i * 128 + 4 * XT_S))
    for i in range(7):
        a("s_waitcnt lgkmcnt(%d)" % 12)
        a("ds_write_b128 v31, %s offset:%d" % (vr(32 + 4 * i, 4), i * 1152))
        a("ds_read_b128 %s, v8 offset:%d" % (vr(64 + 4 * i, 4), i * 1152))
    for i in range(7):
        a("s_waitcnt lgkmcnt(%d)" % (12 - 2 * i))
        a.vm("buffer_store_dwordx4 %s, v7, s[%d:%d], s%d offen %s" % (vr(64 + 4 * i, 4), SWS, SWS + 3, sT1, os.environ.get("XSM", "sc1").replace("_", " ")), "xst")
        if i < 6: a("s_add_u32 s%d, s%d, %d" % (sT1, sT1, 64 * XST))
    sp_("st")
    if PO == 2:
        a("s_waitcnt vmcnt(7)")
        a("s_cmp_eq_u32 s%d, 1" % sWV); a("s_cselect_b32 exec_lo, 1, 0"); a("s_mov_b32 exec_hi, 0")
        a("buffer_store_dword v10, v29, s[%d:%d], 0 offen sc1" % (SWS, SWS + 3))
        a("s_mov_b64 exec, -1")
        sp_("flagC")
        a("s_waitcnt vmcnt(1)")
    else: a("s_waitcnt vmcnt(0)")
    a("s_barrier")
    if YP == 3:
        a("s_cmp_eq_u32 s%d, 1" % sWV); a("s_cselect_b32 exec_lo, 0xff, 0"); a("s_mov_b32 exec_hi, 0")
        a("buffer_store_dword v10, v28, s[%d:%d], 0 offen sc1" % (SWS, SWS + 3))
        a("s_mov_b64 exec, -1")
        sp_("flagB")
        if PFP == 1: pf_mid()
        if PFP == 3: pf_all()
        poison()
        a("s_waitcnt vmcnt(0)")
        a("s_barrier")
    a("s_cmp_lg_u32 s%d, 1" % sWV)
    a("s_cbranch_scc1 K_END")
    a("s_mov_b64 exec, 0xff")
    a("buffer_store_dword v10, v28, s[%d:%d], 0 offen offset:%d sc1" % (SWS, SWS + 3, 128 if YP == 3 else 0))
    a("s_mov_b64 exec, -1")
    sp_("flagB" if YP != 3 else "flagP")
    sp_.store(100)
```

```python
import math, os, sys, struct
from asmlib import Asm
def fbits(x): return "0x%08x" % struct.unpack("<I", struct.pack("<f", x))[0]
LOG2E = math.log2(math.e)
def vr(b, n=1): return "v%d" % b if n == 1 else "v[%d:%d]" % (b, b + n - 1)
EXP = os.environ.get('EXP', '')
STAMP = int(os.environ.get("STAMP", "0"))
RT = os.environ.get("RT", "")
MAPB = int(os.environ.get("MAPB", "0"))
WS_H = 0; WS_XNT = 8 << 20; WS_KREV = 12 << 20; WS_KSC = 16 << 20
WS_HF = 17 << 20
WS_CF = (17 << 20) + (1 << 19)
WS_PF = 18 << 20
WS_FR = WS_PF + 131072
WS_FC = WS_FR + 8192
WS_RC = 19 << 20; WS_CS = (19 << 20) + 65536
WS_YAT = 20 << 20; WS_DBG = 24 << 20; WS_SIZE = 32 << 20
KSTRIDE = 4160
SPIN = 0x8000

def srd(a, d, p, nbytes):
    a("s_mov_b32 s%d, s%d" % (d, p))
    a("s_and_b32 s%d, s%d, 0xffff" % (d + 1, p + 1))
    a("s_mov_b32 s%d, 0x%x" % (d + 2, nbytes))
    a("s_mov_b32 s%d, 0x00020000" % (d + 3))

SX, SWG, SWU, SWS, SWD, SOUT, SDBG = 40, 44, 48, 52, 56, 60, 64
sWV, sR, sF, sWR, sWC, sRT2, sCT = 68, 69, 70, 71, 72, 73, 74
sLD = 75
sT0, sT1, sT2, sT3 = 76, 77, 78, 79
sOX, sOW, sWB, sCNT = 80, 81, 82, 83
sNON = 84
sPM = 86
sCH, sHF, sKW, sSC, sINV = 3, 4, 5, 6, 7
sONES, sCVB, sSTG = 38, 39, 36
STB = 88

class Stamps:
    def __init__(self, a, base=None):
        self.a = a; self.n = base.n if base else 0; self.names = list(base.names) if base else []; self.ffn = False
    def __call__(self, name):
        if os.environ.get("MEAS") == name and self.ffn:
            self.a("s_memrealtime s[100:101]"); self.a("s_waitcnt lgkmcnt(0)"); self.a("s_mov_b32 s99, s100")
        if not STAMP: return
        if RT == "1" and name not in ("start", "end"): return
        if "su" in EXP and self.n >= 11 and name != "end": return
        if "f2a" in EXP and not (name in ("start", "flag1", "hpoll") or (name[:2] == "s_" and int(name[2:]) < 9)) and self.ffn: return
        if "f2b" in EXP and not (name in ("start", "f2end", "end") or (name[:2] == "s_" and int(name[2:]) >= 5)) and self.ffn: return
        if name[:2] == "s_" and "f2" not in EXP: return
        if name[:2] == "l_" and "lp" not in EXP: return
        if name[:2] == "u_" and "sv" not in EXP: return
        if "sv" in EXP and self.ffn and not (name[:2] == "u_" or name in ("start", "st0", "loopend", "end")): return
        if "lp" in EXP and self.ffn and not (name[:2] == "l_" or name in ("start", "st0", "loopend", "gelu")): return
        assert self.n < 12, name
        self.a("%s s[100:101]" % ("s_memrealtime" if RT else "s_memtime"))
        self.a("s_waitcnt lgkmcnt(0)")
        self.a("s_mov_b32 s%d, s100" % (STB + self.n))
        self.n += 1; self.names.append(name)
    def store(self, vt):
        if not STAMP: return
        a = self.a
        a("s_lshl_b32 s100, s2, 4"); a("s_add_u32 s100, s100, s%d" % sWV); a("s_lshl_b32 s100, s100, 6")
        a("s_add_u32 s100, s100, %d" % WS_DBG)
        a("s_mov_b64 exec, 1")
        a("v_mov_b32 v%d, s100" % vt)
        for i in range(self.n):
            a("v_mov_b32 v%d, s%d" % (vt + 1, STB + i))
            a("buffer_store_dword v%d, v%d, s[%d:%d], 0 offen offset:%d" % (vt + 1, vt, SWS, SWS + 3, 4 * i))
            a("s_waitcnt vmcnt(0)")
        a("s_mov_b64 exec, -1")

ENV = lambda k, d: int(os.environ.get(k, str(d)))
L_W = 0
L_X = [65536, 98304 + 17408, 81920]
RING = 98304
STG_W = 4352; L_STG = RING
L_CV = RING + 4 * STG_W
CPS = 4160; O_U = 4 * CPS; CV_CH = O_U + 4608
L_SYNC = L_CV + 2 * CV_CH
L_FL = L_SYNC + 512
FLS = 320
KT = ENV("KT", 0)
LDS = L_FL + (4 * FLS if KT else 256)
assert L_X[1] == L_CV and LDS <= 163840
Y_CNT = 0; Y_RDA = 8; Y_RDB = 9; Y_NON = 16; Y_KX = 24; Y_C0 = 28; Y_BL = 32; Y_CX = 36; Y_XR = 40; Y_YA = 44; Y_KEXP = 48; Y_RD = 64; Y_TR = 68; Y_WS = 72; Y_U = 76
NSTA = ENV('NSTA', 5)
WDS = [32768, 49152, 81920, 0, 16384, 65536]
CSM = 1792 * 8
sFW = 36; sHD = 37
FSH = ENV('FSH', 8)

def gen():
    a = Asm()
    lab = [0]
    def L(p): lab[0] += 1; return "%s_%d" % (p, lab[0])
    st_ = Stamps(a)
    def spin_lds(addr, tmp, need, width="u8", slp=1, off=0):
        l1, l2 = L("SP"), L("SD")
        a("s_mov_b32 s%d, %d" % (sCNT, SPIN))
        a.label(l1)
        a("ds_read_%s v%d, v%d offset:%d" % (width, tmp, addr, off))
        a("s_waitcnt lgkmcnt(0)")
        a("v_cmp_gt_u32 vcc, %d, v%d" % (need, tmp))
        a("s_cbranch_vccz %s" % l2)
        if slp: a("s_sleep %d" % slp)
        a("s_sub_u32 s%d, s%d, 1" % (sCNT, sCNT))
        a("s_cmp_lg_u32 s%d, 0" % sCNT)
        a("s_cbranch_scc1 %s" % l1)
        a.label(l2)

    a("s_cmp_ge_u32 s2, 256")
    a("s_cbranch_scc1 K_END")
    st_("start")
    a("s_load_dwordx16 s[16:31], s[0:1], 0")
    a("s_load_dwordx4 s[32:35], s[0:1], 80")
    a("s_load_dwordx8 s[8:15], s[0:1], 96")
    a("v_lshrrev_b32 v1, 6, v0")
    a("v_readfirstlane_b32 s%d, v1" % sWV)
    a("v_and_b32 v1, 63, v0")
    CPF = ENV("CPF", 8)
    if CPF:
        a("s_cmp_ge_u32 s2, %d" % CPF)
        a("s_cbranch_scc1 K_NPF")
        a.begin_opt()
        a("s_getpc_b64 s[4:5]")
        a.label("K_PFB")
        a("v_lshlrev_b32 v2, 7, v0")
        a("v_min_u32 v2, K_END-K_PFB, v2")
        a("global_load_dword v255, v2, s[4:5]")
        a.end_opt()
        a.label("K_NPF")
    a("s_cmp_lt_u32 s2, 32")
    a("s_cbranch_scc1 K_PROD")
    a("s_and_b32 s%d, s2, 7" % sT0)
    a("s_lshr_b32 s%d, s2, 3" % sT1)
    a("s_sub_u32 s%d, s%d, 4" % (sT1, sT1))
    a("s_lshr_b32 s%d, s%d, 1" % (sT2, sT0)); a("s_lshl_b32 s%d, s%d, 2" % (sT2, sT2))
    a("s_and_b32 s%d, s%d, 3" % (sT3, sT1)); a("s_add_u32 s%d, s%d, s%d" % (sR, sT2, sT3))
    a("%s s%d, %s" % (("s_andn2_b32", sT2, "1, s%d" % sT0) if ENV("SWP", 1) else ("s_and_b32", sT2, "s%d, 1" % sT0))); a("s_mul_i32 s%d, s%d, 7" % (sT2, sT2))
    a("s_lshr_b32 s%d, s%d, 2" % (sCT, sT1)); a("s_add_u32 s%d, s%d, s%d" % (sF, sT2, sCT))
    a("s_lshl_b32 s%d, s%d, 2" % (sRT2, sT0)); a("s_add_u32 s%d, s%d, s%d" % (sRT2, sRT2, sT3))
    a("s_cmp_ge_u32 s%d, 4" % sWV)
    a("s_cbranch_scc1 K_HELP")
    sf_ = Stamps(a, st_); sf_.ffn = True; sh_ = Stamps(a, st_); sp_ = Stamps(a, st_)
    NST = 14
    a("s_setprio %d" % ENV("FPRIO", 2))
    a("s_and_b32 s%d, s%d, 1" % (sWR, sWV))
    a("s_lshr_b32 s%d, s%d, 1" % (sWC, sWV))
    a("s_lshl_b32 s%d, s%d, 11" % (sWB, sWV))
    a("s_lshl_b32 s%d, s%d, 12" % (sOX, sWV))
    a("v_lshrrev_b32 v2, 3, v1")
    a("s_lshl_b32 s%d, s%d, 7" % (sT0, sR))
    a("s_lshl_b32 s%d, s%d, 5" % (sT1, sWV))
    a("s_add_u32 s%d, s%d, s%d" % (sT0, sT0, sT1))
    a("v_add_u32 v2, s%d, v2" % sT0)
    a("v_mul_u32_u24 v2, 896, v2")
    a("v_lshrrev_b32 v5, 4, v1")
    a("v_xor_b32 v6, v1, v5")
    a("v_and_b32 v6, 7, v6")
    a("v_xor_b32 v7, 4, v6")
    a("v_lshl_add_u32 v3, v7, 4, v2")
    a("v_add_u32 v3, %d, v3" % (8 * 896 - 1024))
    a("v_lshl_add_u32 v2, v6, 4, v2")
    a("v_add_u32 v56, %d, v2" % (16 * 896 - 2048)); a("v_add_u32 v57, %d, v3" % (16 * 896 - 2048))
    a("v_mul_u32_u24 v4, 3584, v5")
    a("v_lshlrev_b32 v6, 2, v5")
    a("v_xor_b32 v6, v1, v6")
    a("v_and_b32 v6, 15, v6")
    a("v_lshl_add_u32 v4, v6, 4, v4")
    a("s_lshl_b32 s%d, s%d, 8" % (sT0, sF))
    a("s_mul_i32 s%d, s%d, %d" % (sT1, sWV, 8 * 3584)); a("s_add_u32 s%d, s%d, s%d" % (sT0, sT0, sT1))
    a("v_add_u32 v4, s%d, v4" % sT0)
    a("v_add_u32 v58, %d, v4" % (4 * 3584 - 2048))
    a("s_mul_i32 s%d, s%d, %d" % (sFW, sWV, FLS if KT else 4)); a("s_add_u32 s%d, s%d, %d" % (sFW, sFW, L_FL))
    ROT = ENV("ROT", 0); ROT1 = ENV("ROT1", 0); ROT2 = ENV("ROT2", 0)
    RJ = [3, 4, 5, 6, 7, 38, 39]
    a("s_lshl_b32 s%d, s%d, 1" % (sT0, sT3)); a("s_add_u32 s%d, s%d, s%d" % (sT0, sT0, sCT)); a("s_lshl_b32 s%d, s%d, 7" % (sT0, sT0))
    def rj(i):
        if i: a("s_add_u32 s%d, s%d, 128" % (sT0, RJ[i - 1]))
        a("s_sub_u32 s%d, s%d, 896" % (sT1, sT0)); a("s_cmp_ge_u32 s%d, 896" % sT0); a("s_cselect_b32 s%d, s%d, s%d" % (RJ[i], sT1, sT0))
    if ROT1 == 2: a("s_lshl_b32 s%d, s%d, 8" % (sT0, sT3))
    if ROT1 == 3: a("s_lshl_b32 s%d, s%d, 7" % (sT0, sCT))
    if ROT1: rj(0)
    sf_("u_addr")
    a("s_waitcnt lgkmcnt(0)")
    VFL, VFA = 50, 51
    cur = {}
    def setr(r, txt):
        def f():
            if cur.get(r) != txt: cur[r] = txt; a0(txt)
        return f
    a0 = a
    sOW2, sOWX = 5, 6
    def dma_x(b):
        if ROT1: return [[setr("m0", "s_add_u32 m0, s%d, %d" % (sOX, L_X[b % 3])),
                 ("buffer_load_dwordx4 v%d, s[%d:%d], s%d offen offset:%d lds" % ((2, 3, 56, 57)[i], SX, SX + 3, RJ[b], i * 1024), ("x", b))] for i in range(4)]
        return [[setr("m0", "s_add_u32 m0, s%d, %d" % (sOX, L_X[b % 3])), setr("ox", "s_movk_i32 s%d, %d" % (sOWX, b * 128)),
                 ("buffer_load_dwordx4 v%d, s[%d:%d], s%d offen offset:%d lds" % ((2, 3, 56, 57)[i], SX, SX + 3, sOWX, i * 1024), ("x", b))] for i in range(4)]
    def dma_w(st):
        out = []
        if ROT1:
            for mat in range(2):
                for i in range(2):
                    S = (SWG, SWU)[mat]
                    out.append([setr("m0", "s_add_u32 m0, s%d, %d" % (sOX, L_W + (st % 4) * 16384 + mat * 1024)),
                                setr(sOW, "s_mul_i32 s%d, s%d, 1792" % (sOW, RJ[st >> 1]) + ("\ns_add_u32 s%d, s%d, %d" % (sOW, sOW, 32 * 3584) if st & 1 else "")),
                                ("buffer_load_dwordx4 v%d, s[%d:%d], s%d offen offset:%d lds" % ((4, 58)[i], S, S + 3, sOW, i * 2048), ("w", st))])
            return out
        for i in range(2):
            for mat in range(2):
                S = (SWG, SWU)[mat]
                if st == 0 and mat:
                    out.append([setr("m0", "s_add_u32 m0, s%d, %d" % (sOX, L_W + 1024)),
                                ("buffer_load_dwordx4 v%d, s[%d:%d], 0 offen offset:%d lds" % ((4, 58)[i], S, S + 3, i * 2048), ("w", st))])
                    continue
                so = (sOW, sOW2)[mat]
                out.append([setr("m0", "s_add_u32 m0, s%d, %d" % (sOX, L_W + (st % 4) * 16384)), setr(so, "s_mov_b32 s%d, %d" % (so, st * 32 * 3584 - mat * 1024)),
                            ("buffer_load_dwordx4 v%d, s[%d:%d], s%d offen offset:%d lds" % ((4, 58)[i], S, S + 3, so, i * 2048 + mat * 1024), ("w", st))])
        if st == 0: out = [out[0], out[2], out[1], out[3]]
        return out
    def dflag(idx):
        if not KT: return [setr("m0", "s_add_u32 m0, s%d, %d" % (sFW, 16 * idx)), "s_mov_b64 exec, 1", ("global_load_lds_dword v%d, s[0:1]" % VFL, "fl"), "s_mov_b64 exec, -1"]
        return [setr("m0", "s_mov_b32 m0, s%d" % sFW), ("global_load_lds_dword v%d, s[30:31] offset:%d" % (VFL, 4 * idx), "fl")]
    def emit(g, a=a):
        for x in g:
            if callable(x): x()
            elif isinstance(x, tuple) and x[0].startswith("ds_"): a.ds(x[0], x[1])
            elif isinstance(x, tuple): a.vm(x[0], x[1])
            else: a(x)
    srd(a, SX, 16, 2048 * 896)
    for g in dma_x(0): emit(g)
    srd(a, SWG, 32, 448 * 3584)
    srd(a, SWU, 34, 448 * 3584)
    for g in dma_w(0): emit(g)
    if ROT1:
        for i in range(1, 7): rj(i)
    if KT:
        a("v_mov_b32 v%d, 0" % VFL)
        a("s_getpc_b64 s[30:31]")
        a.label("K_TB")
        a("s_add_u32 s30, s30, K_TAB-K_TB"); a("s_addc_u32 s31, s31, 0")
    else: a("s_cmp_lg_u32 s15, 0"); a("s_cselect_b32 s%d, 31, 30" % sT0); a("s_lshl_b32 s%d, s%d, 2" % (sT0, sT0)); a("v_mov_b32 v%d, s%d" % (VFL, sT0))
    sf_("u_dma0")
    a("s_barrier")
    sf_("u_bar")
    emit(dflag(0))
    Q = []
    for k in range(1, 14):
        if k % 2 == 0: Q += [(max(0, k - 4), g) for g in dma_x(k // 2)]
        w_ = dma_w(k); w_[-1] = w_[-1] + dflag(k)
        Q += [(max(0, k - 3), g) for g in w_]
    NPRE = ENV("NPRE", 12)
    pend = [g for _, g in Q[:NPRE]]; Q = Q[NPRE:]
    a_real = a
    ILN = ENV("ILN", 4)
    class IL:
        def __init__(s_): s_.n = 0
        def __call__(s_, t):
            a_real(t); s_.n += 1
            if s_.n % ILN == 0 and pend: emit(pend.pop(0))
    a = IL()
    a("v_lshlrev_b32 v15, 2, v1")
    a("v_and_b32 v11, 3, v1"); a("v_mul_u32_u24 v%d, %d, v11" % (VFA, FLS if KT else 4)); a("v_add_u32 v11, %d, v11" % (L_SYNC + Y_CNT))
    a("v_add_u32 v%d, %d, v%d" % (VFA, L_FL + (64 if KT else 0), VFA))
    a("s_add_u32 s%d, s%d, %d" % (sT0, sWV, L_SYNC + Y_CNT)); a("v_mov_b32 v12, s%d" % sT0)
    a("v_add_u32 v13, %d, v15" % (L_SYNC + 128)); a("v_cmp_eq_u32 vcc, 0, v1"); a("v_cndmask_b32 v12, v13, v12, vcc")
    a("v_mov_b32 v10, %d" % (L_SYNC + Y_RDA))
    a("v_and_b32 v16, 31, v1")
    a("s_lshl_b32 s%d, s%d, 6" % (sT0, sWR))
    a("v_add_u32 v22, s%d, v16" % sT0)
    a("v_lshrrev_b32 v17, 5, v1")
    a("v_bfe_u32 v18, v1, 1, 3")
    a("v_xor_b32 v18, v17, v18")
    a("v_lshlrev_b32 v5, 7, v22")
    a("v_lshl_add_u32 v5, v18, 4, v5")
    a("v_add_u32 v5, 65536, v5")
    a("v_xor_b32 v6, 32, v5"); a("v_xor_b32 v7, 64, v5"); a("v_xor_b32 v8, 96, v5")
    a("v_bfe_u32 v19, v1, 2, 2")
    a("v_lshl_add_u32 v20, v17, 4, v19")
    a("v_lshlrev_b32 v9, 8, v20")
    a("v_bfe_u32 v20, v1, 4, 1"); a("v_lshlrev_b32 v20, 1, v20")
    a("v_bfe_u32 v21, v1, 1, 1"); a("v_add_u32 v20, v20, v21")
    a("s_lshl_b32 s%d, s%d, 3" % (sT0, sWC))
    a("v_add_u32 v20, s%d, v20" % sT0)
    a("v_lshlrev_b32 v21, 2, v19")
    a("v_xor_b32 v20, v20, v21")
    a("v_lshl_add_u32 v9, v20, 4, v9")
    a("v_and_b32 v21, 1, v1")
    a("v_lshl_add_u32 v9, v21, 3, v9")
    a("v_xor_b32 v0, 64, v9")
    srd(a, SWS, 14, WS_SIZE)
    srd(a, SWD, 8, 1792 * 896)
    srd(a, SOUT, 10, 2048 * 896)
    a("s_lshl_b32 s%d, s%d, 11" % (sT0, sR)); a("s_add_u32 s%d, s%d, %d" % (sT0, sT0, WS_RC))
    a("v_lshl_add_u32 v18, v22, 4, s%d" % sT0)
    a("s_lshl_b32 s%d, s%d, 10" % (sT0, sF)); a("s_lshl_b32 s%d, s%d, 9" % (sT1, sWC)); a("s_add_u32 s%d, s%d, s%d" % (sT0, sT0, sT1))
    a("s_add_u32 s%d, s%d, %d" % (sT0, sT0, WS_CS))
    a("v_lshl_add_u32 v19, v16, 3, s%d" % sT0)
    a("v_lshl_add_u32 v19, v17, 2, v19")
    a("s_lshl_b32 s%d, s%d, 1" % (sT0, sR))
    a("s_add_u32 s%d, s%d, s%d" % (sT0, sT0, sWR))
    a("s_lshl_b32 s%d, s%d, 1" % (sT1, sF))
    a("s_add_u32 s%d, s%d, s%d" % (sT1, sT1, sWC))
    a("s_lshl_b32 s%d, s%d, 8" % (sT2, sT0)); a("s_add_u32 s%d, s%d, %d" % (sT2, sT2, WS_FR)); a("v_mov_b32 v15, s%d" % sT2)
    a("s_lshl_b32 s%d, s%d, 8" % (sT2, sT1)); a("s_add_u32 s%d, s%d, %d" % (sT2, sT2, WS_FC)); a("v_writelane_b32 v15, s%d, 1" % sT2)
    a("s_mul_i32 s%d, s%d, 37" % (sT3, sT1)); a("s_lshr_b32 s%d, s%d, 8" % (sT3, sT3)); a("s_add_u32 s%d, s%d, s%d" % (sT3, sT3, sT1))
    a("s_lshl_b32 s%d, s%d, 1" % (sT1, sT1))
    a("s_lshl_b32 s%d, s%d, 5" % (sT2, sT0)); a("s_add_u32 s%d, s%d, s%d" % (sT2, sT2, sT3)); a("s_lshl_b32 s%d, s%d, %d" % (sT2, sT2, FSH))
    a("s_add_u32 s%d, s%d, %d" % (sT2, sT2, WS_HF))
    a("v_mov_b32 v21, s%d" % sT2)
    a("s_mul_i32 s%d, s%d, 56" % (sT0, sT0))
    a("s_add_u32 s%d, s%d, s%d" % (sT0, sT0, sT1))
    a("s_lshl_b32 s%d, s%d, 12" % (sT0, sT0))
    a("v_and_b32 v20, 15, v1")
    a("v_lshlrev_b32 v20, 4, v20")
    a("v_bfe_u32 v22, v1, 4, 1")
    a("v_lshl_add_u32 v20, v22, 10, v20")
    a("v_lshl_add_u32 v20, v17, 8, v20")
    a("v_add_u32 v20, s%d, v20" % sT0)
    a("s_mov_b32 s%d, 0" % sLD)
    CA_, CB_ = 32, 42
    for r in range(33, 50):
        if r not in (34, 36, 38, 42, 46): a("v_mov_b32 v%d, 0" % r)
    a("v_lshrrev_b32 v16, 3, v1")
    a("s_mul_i32 s%d, s%d, %d" % (sT0, sWV, 448 * 896))
    a("v_mul_u32_u24 v16, 896, v16")
    a("s_lshl_b32 s%d, s%d, 7" % (sT1, sCT)); a("s_add_u32 s%d, s%d, s%d" % (sT0, sT0, sT1))
    a("v_add_u32 v16, s%d, v16" % sT0)
    a("v_xor_b32 v17, v1, v22"); a("v_and_b32 v17, 7, v17")
    a("v_lshl_add_u32 v52, v17, 4, v16")
    for q in range(1, 4): a("v_add_u32 v%d, %d, v52" % (52 + q, q * (8 * 896 - 1024)))
    a = a_real
    while pend: emit(pend.pop(0))
    ACC = lambda ff, mat, tt: 128 + 64 * ff + 32 * mat + 16 * tt
    FR = [80, 104]
    RC = [24, 28]
    NW = 6
    J = lambda s: 2 * (s % 7) + s // 7
    WDV = [52, 52]
    def dma_wd(s):
        if "now" in EXP and s >= 6: return []
        if s < 6:
            return [[setr("m0", "s_add_u32 m0, s%d, %d" % (sOX, WDS[s % NW])), setr(sOW, "s_mov_b32 s%d, %d" % (sOW, J(s) * 32 * 896)),
                     ("buffer_load_dwordx4 v%d, s[%d:%d], s%d offen offset:%d lds" % (52 + q, SWD, SWD + 3, sOW, q * 1024), ("wd", s))] for q in range(4)]
        return [["s_add_u32 m0, s%d, %d" % (sOX, WDS[s % NW] + q * 1024), "s_mov_b32 s%d, %d" % (sOW, (J(s) * 32 + 8 * q) * 896),
                 ("buffer_load_dwordx4 v2, s[%d:%d], s%d offen lds" % (SWD, SWD + 3, sOW), ("wd", s))] for q in range(4)]
    def rd_frags(st, kk):
        fb = FR[kk]
        slot = st % 4
        xo = L_X[(st >> 1) % 3] - 65536
        xa = 5 + 2 * (st & 1) + kk
        def wr(ff, mat):
            return [("ds_read_b64_tr_b16 %s, v%d offset:%d" % (vr(fb + 8 + 8 * ff + 4 * mat + 2 * half, 2), (9, 0)[ff], L_W + slot * 16384 + mat * 1024 + kk * 8192 + half * 2048), ("fr", st, kk, ff, mat)) for half in range(2)]
        xr = lambda tt: [("ds_read_b128 %s, v%d offset:%d" % (vr(fb + 4 * tt, 4), xa, xo + tt * 4096), ("fx", st, kk, tt))]
        return [xr(0) + wr(0, 0), xr(1), wr(0, 1), wr(1, 0), wr(1, 1)]
    def mfmas(kk, first=False):
        fb = FR[kk]
        return ["v_mfma_f32_32x32x16_bf16 %s, %s, %s, %s" % (vr(ACC(ff, mat, tt), 16), vr(fb + 8 + 8 * ff + 4 * mat, 4), vr(fb + 4 * tt, 4), "0" if first else vr(ACC(ff, mat, tt), 16))
                for ff in range(2) for mat in range(2) for tt in range(2)]
    def inter(st, kk, groups):
        for i, m in enumerate(mfmas(kk, st == 0 and kk == 0)):
            ff, mat, tt = i >> 2, (i >> 1) & 1, i & 1
            if i == 1: a.wait_ds(("fx", st, kk, 1))
            a.wait_ds(("fr", st, kk, ff, mat))
            a(m)
            for sl, g in groups:
                if sl == i: emit(g)
    def arrive(v, off=0):
        a("v_mov_b32 v13, %d" % v)
        a.ds("ds_write_b8 v12, v13 offset:%d" % off, "sig")
    deferred = []
    chk0 = [0]
    def check(v, kind):
        if "nochk" in EXP and 1 < len(a.vmq) and v < 14 and chk0[0]: return
        chk0[0] = 1
        a("s_getpc_b64 s[20:21]")
        a("v_cmp_gt_u32 vcc, %d, v%d" % (v, 14 if kind == "F" else 16))
        a("s_cbranch_vccnz K_RT_%s" % kind)
    def retries():
        a("s_mov_b32 s18, %d" % (SPIN * 4))
        a("s_branch K_RTE")
        for kind in ("R", "F"):
            r = 14 if kind == "F" else 16
            a.label("K_RT_%s" % kind)
            a("ds_read_b32 v14, v%d" % VFA if kind == "F" else "ds_read_u8 v16, v11 offset:%d" % Y_RD)
            a("s_sub_i32 s18, s18, 1"); a("s_max_i32 s18, s18, 0")
            a("s_cmp_eq_u32 s18, 0"); a("s_cselect_b32 s19, 255, 0")
            a("s_waitcnt lgkmcnt(0)")
            a("v_or_b32 v%d, s19, v%d" % (r, r))
            a("s_setpc_b64 s[20:21]")
        a.label("K_RTE")
    def const_loads():
        for tt in range(2):
            a("buffer_load_dwordx4 %s, v18, s[%d:%d], 0 offen offset:%d" % (vr(RC[tt], 4), SWS, SWS + 3, tt * 512))
        a("s_movk_i32 s%d, %d" % (sT0, CSM))
        for ff in range(2):
            a("buffer_load_dword v%d, v19, s[%d:%d], 0 offen offset:%d" % (CA_ + 4 * ff, SWS, SWS + 3, ff * 256))
            a("buffer_load_dword v%d, v19, s[%d:%d], s%d offen offset:%d" % (CA_ + 4 * ff + 2, SWS, SWS + 3, sT0, ff * 256))
        a("s_mov_b32 s%d, 1" % sLD)
    def get_non():
        a.wait_ds("non")
        a("v_readfirstlane_b32 s%d, v22" % sNON); a("v_readfirstlane_b32 s%d, v23" % (sNON + 1))
    def pollA():
        a.vm("buffer_load_dword v17, v15, s[%d:%d], 0 offen sc1" % (SWS, SWS + 3), "pf")
    def try_const():
        l = L("CL"); lo = L("CLO")
        a.wait_vm("pf")
        a("v_cmp_ne_u32 vcc, s%d, v17" % sNON)
        a("s_cbranch_vccz %s" % lo)
        a.label(l)
        a.mark("cst")
        def slow():
            a.label(lo)
            a("s_cmp_eq_u32 s%d, 0" % (sNON + 1))
            a("s_cbranch_scc1 %s" % l)
            a("s_cmp_lg_u32 s%d, 0" % sLD)
            a("s_cbranch_scc1 %s" % l)
            const_loads()
            a("s_branch %s" % l)
        deferred.append(slow)
    PA = ENV("PA", 3)
    RS = [int(c) for c in os.environ.get("RS", "01245")]
    TP = [int(c) for c in os.environ.get("TP", "9,11").split(",")]
    EARLY = ENV("EARLY", 1)
    sf_("u_pre")
    if "sv" in EXP: a.wait_vm(("x", 0)); sf_("u_x0"); a.wait_vm(("w", 0)); sf_("u_w0")
    retries()
    a("v_mov_b32 v14, 0")
    check(1, "F")
    a.dsq = []
    sf_("st0")
    a("s_setprio %d" % ENV("LPRIO", 3))
    poll = ([] if KT else ["v_add_u32 v%d, 16, v%d" % (VFA, VFA)]) + [("ds_read_b32 v14, v%d" % VFA, "pA")]
    for g in rd_frags(0, 0): emit(g)
    DMX = ENV("DMX", 6)
    if EARLY: Q += [(11, g) for g in dma_wd(0)] + [(12, g) for g in dma_wd(1) + dma_wd(2)] + [(13, g) for g in dma_wd(3)]
    SD = []
    for st in range(NST):
        D = []
        while Q and Q[0][0] <= st and len(D) < (DMX if st else 8): D.append(Q.pop(0)[1])
        SD.append(D)
    assert not Q
    if ENV("VERB", 0): print("DMA per stage", [len(d) for d in SD])
    stageD = lambda st: SD[st]
    for st in range(NST):
        if st in (7,) and not NSTA: sf_("st%d" % st)
        if st in (1, 2, 3, 4, 6, 8, 10, 12): sf_("l_%d" % st)
        D = stageD(st)
        DS = [(int(x) // 8, int(x) % 8) for x in os.environ.get("DS", "4,6,9,11,13,15").split(",")] if len(D) <= 6 else [(0, 3), (0, 5), (0, 7), (1, 1), (1, 2), (1, 4), (1, 5), (1, 7)]
        if st == 0: DS = [(0, 0), (0, 2), (0, 4), (0, 6), (1, 1), (1, 3), (1, 5), (1, 7)]
        G = []
        G += [(RS[i], g) for i, g in enumerate(rd_frags(st, 1))]
        if st + 1 in TP: G.append((5, [("ds_read_b64 v[22:23], v10 offset:%d" % (Y_NON - Y_RDA), "non")]))
        if st - 2 in TP: G.append((0, [try_const]))
        if st in TP: G.append((1, [get_non, pollA]))
        if D and st: G.append((ENV("RCK", 3), [lambda: a.wait_ds("pR"), lambda st=st: check(st, "R")]))
        G += [(DS[i][1], g) for i, g in enumerate(D) if DS[i][0] == 0]
        if st + 1 < NST: G.append((PA, poll))
        if ENV("ARS", 5) < 8: G.append((ENV("ARS", 5), [lambda st=st: arrive(st + 1, Y_RD)]))
        inter(st, 0, G)
        G = []
        if st + 1 < NST:
            G.append((0, [lambda: a.wait_ds("pA"), lambda st=st: check(st + 2 if KT else 1, "F")]))
            G += [(RS[i], g) for i, g in enumerate(rd_frags(st + 1, 0))]
        if ENV("ARS", 5) >= 8: G.append((ENV("ARS", 5) - 8, [lambda st=st: arrive(st + 1, Y_RD)]))
        G += [(DS[i][1], g) for i, g in enumerate(D) if DS[i][0] == 1]
        if st + 1 == NST or stageD(st + 1): G.append((ENV("PRS", 7), [("ds_read_u8 v16, v11 offset:%d" % Y_RD, "pR")]))
        inter(st, 1, G)
    sf_("loopend")
    a("s_setprio %d" % ENV("GPRIO", 1))
    l = L("CL"); lo = L("CLO"); l1 = L("CLP"); l2 = L("CLP")
    a("s_cmp_eq_u32 s%d, 0" % sLD)
    a("s_cbranch_scc1 %s" % lo)
    a.wait_vm("cst")
    a.label(l)
    def slow(l=l, lo=lo):
        a.label(lo)
        a("s_mov_b32 s%d, %d" % (sCNT, SPIN))
        a.label(l1)
        a("ds_read_b64 v[22:23], v10 offset:%d" % (Y_NON - Y_RDA))
        a("buffer_load_dword v17, v15, s[%d:%d], 0 offen sc1" % (SWS, SWS + 3))
        a("s_waitcnt vmcnt(0) lgkmcnt(0)")
        a("v_readfirstlane_b32 s%d, v22" % sNON); a("v_readfirstlane_b32 s%d, v23" % (sNON + 1))
        a("v_cmp_ne_u32 vcc, s%d, v17" % sNON)
        a("s_cmp_eq_u32 s%d, 0" % (sNON + 1))
        a("s_cselect_b64 s[%d:%d], -1, vcc" % (sT0, sT0 + 1))
        a("s_cmp_eq_u64 s[%d:%d], 0" % (sT0, sT0 + 1))
        a("s_cbranch_scc1 %s" % l2)
        a("s_sleep 2")
        a("s_sub_u32 s%d, s%d, 1" % (sCNT, sCNT)); a("s_cmp_lg_u32 s%d, 0" % sCNT)
        a("s_cbranch_scc1 %s" % l1)
        a.label(l2)
        const_loads()
        a("s_waitcnt vmcnt(0)")
        a("s_branch %s" % l)
    deferred.append(slow)
    for tt in range(2): a("v_mov_b32 v%d, v%d" % (CB_ + 4 * tt, RC[tt]))
    corr = ["v_mfma_f32_32x32x16_bf16 %s, %s, %s, %s" % (vr(ACC(ff, mat, tt), 16), vr(CA_ + 4 * ff + 2 * mat, 4), vr(CB_ + 4 * tt, 4), vr(ACC(ff, mat, tt), 16))
            for ff in range(2) for tt in range(2) for mat in range(2)]
    a(corr[0]); a(corr[1])
    a("v_mov_b32 v2, v52"); WDV = [2, 2]
    a("s_lshl_b32 s%d, s%d, 2" % (sT0, sRT2)); a("s_add_u32 s%d, s%d, s%d" % (sT0, sT0, sWV)); a("s_lshl_b32 s%d, s%d, %d" % (sT0, sT0, FSH + 3))
    a("s_add_u32 s%d, s%d, %d" % (sT0, sT0, WS_HF))
    a("v_lshrrev_b32 v8, 1, v1"); a("v_lshlrev_b32 v8, %d, v8" % FSH); a("v_and_b32 v14, 1, v1"); a("v_lshl_add_u32 v8, v14, 2, v8")
    a("v_add_u32 v8, s%d, v8" % sT0)
    a(corr[2])
    TRB = [[4, 5], [6, 7]]
    a("v_bfe_u32 v13, v1, 2, 2"); a("v_lshrrev_b32 v14, 4, v1")
    a("v_lshl_add_u32 v13, v14, 3, v13")
    a("v_lshlrev_b32 v13, 7, v13")
    a("v_and_b32 v14, 3, v1")
    a("v_lshl_add_u32 v13, v14, 5, v13")
    a("v_bfe_u32 v14, v1, 3, 1")
    a("v_lshl_add_u32 v13, v14, 4, v13")
    a("v_add_u32 v4, s%d, v13" % sOX)
    a("v_xor_b32 v5, 16, v4")
    a("v_add_u32 v6, 65536, v4"); a("v_add_u32 v7, 65536, v5")
    a(corr[3])
    a("s_mov_b32 s%d, %d" % (sHD, 0x2aaa if "nogate" in EXP else 0))
    a.wait_ds("pR")
    check(14, "R")
    a.dsq = []
    sf_("stats")
    NV = ENV("NV", 6); NG = ENV("NG", 0)
    GST = ENV('GST', 0)
    WBK = [160, 128, 176, 144, 64, 112] if GST else [80, 96, 32, 48, 160, 128, 176, 144]
    OB = [80, 96, 32]
    WB = {s: WBK[s] for s in range(NV)}
    def trw(s):
        a.wait_vm(("wd", s))
        hi = WDS[s % NW] >= 65536; of = WDS[s % NW] - 65536 * hi
        for ct in range(4):
            for hf in range(2):
                a.ds("ds_read_b64_tr_b16 %s, v%d offset:%d" % (vr(WB[s] + 4 * ct + 2 * hf, 2), TRB[hi][ct >> 1], of + hf * 512 + 8 * (ct & 1)), ("tw", s))
    HA = [9, 3, 0, 10]
    def hpoll(r=14, tag="hp"):
        a("s_mov_b64 exec, 0x3fff")
        a.vm("buffer_load_dword v%d, v8, s[%d:%d], 0 offen sc1" % (r, SWS, SWS + 3), tag)
        a("s_mov_b64 exec, -1")
    def flag(ff, trk=True):
        if "noflag1" in EXP and ff == 1:
            a.wait_vm(("hst", ff)); return
        if trk: a.wait_vm(("hst", ff))
        a("s_mov_b64 exec, 1")
        t = "buffer_store_dword v22, v21, s[%d:%d], 0 offen offset:%d sc1" % (SWS, SWS + 3, ff * 4)
        if trk: a.vm(t, "hfl")
        else: a(t)
        a("s_mov_b64 exec, -1")
    GD = ENV("GD", 11); GP = 9; PKG = ENV("PKG", 0)
    ev = []
    def at(t, item): ev.append((t, len(ev), item))
    BT = 8 * GP
    for i in range(4, 8): at((i - 4) * 6 + 2, corr[i])
    def sched_dma(t, s, dt=5):
        for q, g in enumerate(dma_wd(s)): at(t + q * dt, lambda g=g: emit(g))
    if EARLY:
        sched_dma(0.1, 4); sched_dma(24.1, 5)
        TW = [float(x) for x in os.environ.get("TW", "0.7,1.4,2.1,2.8,3.5,4.2,5.0,5.7").split(",")]
    else:
        for s in range(6): sched_dma(s * BT + 0.1, s)
        TW = [float(x) for x in os.environ.get("TW", "3,4,5,6,7,8").split(",")]
    if GST:
        for n in range(12):
            def ld_own(n=n):
                emit([setr(sOW, "s_mov_b32 s%d, %d" % (sOW, J(6 + n // 4) * 32 * 896)),
                      ("buffer_load_dwordx4 %s, v%d, s[%d:%d], s%d offen offset:%d" % (vr(OB[n // 4] + 4 * (n % 4), 4), 52 + n % 4, SWD, SWD + 3, sOW, (n % 4) * 1024), "own")])
            at(ENV("GT0", 60) + ENV("GTD", 10) * n + 0.2, ld_own)
    NGT = ENV("NGT", 0)
    for s in range(max(NG, NGT)):
        assert TW[s] * BT > [0, 0, 30, 30, 15 * GP + 4 * GD, 15 * GP + 8 * GD, 31 * GP + 4 * GD, 31 * GP + 8 * GD][s]
        at(TW[s] * BT, lambda s=s: trw(s))
        if s < NG:
            at(TW[s] * BT + 20, lambda s=s: a.wait_ds(("tw", s)))
            sched_dma(TW[s] * BT + 20.1, s + NW)
    at(float(os.environ.get("TF0", "7.9")) * BT - 0.5, lambda: flag(0))
    n = 0
    for ff in range(2):
        for tt in range(2):
            r0 = RC[tt]
            for qp in range(2):
                blk = n // 8
                HP = 112 + 4 * (blk & 3)
                for q2 in range(2):
                    q = 2 * qp + q2
                    for e in range(4):
                        g = ACC(ff, 0, tt) + 4 * q + e; u = ACC(ff, 1, tt) + 4 * q + e; T = 64 + (n & 15)
                        if PKG:
                            P2 = lambda r: vr(r, 2)
                            ops = [(3, "v_exp_f32 v%d, v%d" % (T, T)), (6, "v_rcp_f32 v%d, v%d" % (T, T))]
                            if e & 1 == 0:
                                ops += [(0, "v_pk_mul_f32 %s, %s, %s" % (P2(T), P2(g), P2(g))),
                                        (1, "v_pk_fma_f32 %s, %s, %s, %s op_sel:[0,0,1] op_sel_hi:[1,0,1]" % (P2(T), P2(T), P2(r0 + 2), P2(r0))),
                                        (2, "v_pk_mul_f32 %s, %s, %s" % (P2(T), P2(T), P2(g))),
                                        (4, "v_pk_mul_f32 %s, %s, %s" % (P2(g), P2(g), P2(u)))]
                            else:
                                ops += [(4.5 - GP / GD, "v_pk_fma_f32 %s, %s, %s, %s op_sel:[0,1,1] op_sel_hi:[1,1,1]" % (P2(T - 1), P2(T - 1), P2(r0 + 2), P2(r0 + 2))),
                                        (7, "v_pk_mul_f32 %s, %s, %s" % (P2(g - 1), P2(g - 1), P2(T - 1))),
                                        (8, "v_cvt_pk_bf16_f32 v%d, v%d, v%d" % (HP + 2 * q2 + e // 2, g - 1, g))]
                                ops[2] = (4, ops[2][1])
                        else:
                            ops = [(0, "v_mul_f32 v%d, v%d, v%d" % (T, g, g)),
                            (1, "v_fma_f32 v%d, v%d, v%d, v%d" % (T, T, r0 + 2, r0 + 1)),
                            (2, "v_mul_f32 v%d, v%d, v%d" % (T, T, g)),
                            (3, "v_exp_f32 v%d, v%d" % (T, T)),
                            (4, "v_mul_f32 v%d, v%d, v%d" % (g, g, u)),
                            (5, "v_fma_f32 v%d, v%d, v%d, v%d" % (T, T, r0 + 3, r0 + 3)),
                            (6, "v_rcp_f32 v%d, v%d" % (T, T)),
                            (7, "v_mul_f32 v%d, v%d, v%d" % (g, g, T))]
                            if e & 1: ops.append((8, "v_cvt_pk_bf16_f32 v%d, v%d, v%d" % (HP + 2 * q2 + e // 2, g - 1, g)))
                        for k, o in ops: at(n * GP + k * GD, o)
                        n += 1
                t = (n - 1) * GP + 8 * GD
                at(t + 4, "v_permlane32_swap_b32 v%d, v%d" % (HP, HP + 2))
                at(t + 5, "v_permlane32_swap_b32 v%d, v%d" % (HP + 1, HP + 3))
                def st_h(HP=HP, ff=ff, tt=tt, qp=qp):
                    a("s_movk_i32 s%d, %d" % (sT0, ff * 4096))
                    a.vm("buffer_store_dwordx4 %s, v20, s[%d:%d], s%d offen offset:%d %s" % (vr(HP, 4), SWS, SWS + 3, sT0, tt * 2048 + qp * 512, os.environ.get("HSM", "sc1").replace("_", " ")), ("hst", ff))
                at(t + 8, st_h)
    for t, _, it in sorted(ev, key=lambda x: (x[0], x[1])):
        if callable(it): it()
        else: a(it)
    sf_("gelu")
    A2 = lambda ct, tt: 192 + 16 * ct + 4 * tt
    free = [48] + OB if GST else [64, 112] + WBK[NV:]
    HB = {}
    def ld_h(s, trk=True):
        if ENV("VERB", 0): print("ld_h", s, free)
        if s not in HB: HB[s] = free.pop(0)
        if ROT: a("s_lshl_b32 s%d, s%d, 6" % (sOW, RJ[s % 7])); a("s_add_u32 s%d, s%d, %d" % (sOW, sOW, WS_H + (s // 7) * 4096))
        else: a("s_mov_b32 s%d, %d" % (sOW, WS_H + J(s) * 4096))
        if "hsame" in EXP: a("s_mov_b32 s%d, 0" % sOW)
        for tt in range(4):
            t = "buffer_load_dwordx4 %s, v%d, s[%d:%d], s%d offen" % (vr(HB[s] + 4 * tt, 4), HA[tt], SWS, SWS + 3, sOW)
            if trk: a.vm(t, ("h", s, tt))
            else: a(t)
    def spin_h(mask, lj, r=14, p1=None):
        lo = L("HS"); l1 = L("HS")
        def slow():
            a.label(lo)
            a("s_mov_b32 s%d, %d" % (sT3, SPIN))
            a.label(l1)
            a("s_mov_b64 exec, 0x3fff")
            a("buffer_load_dword v%d, v8, s[%d:%d], 0 offen sc1" % (r, SWS, SWS + 3))
            a("s_mov_b64 exec, -1")
            if p1 is not None:
                a("s_waitcnt vmcnt(%d)" % p1)
                a("v_cmp_ne_u32 vcc, s%d, v23" % sNON)
                a("s_and_b32 s%d, vcc_lo, 0x%x" % (sT0, mask))
                a("s_cbranch_scc0 %s" % lj)
            a("s_waitcnt vmcnt(0)")
            a("v_cmp_ne_u32 vcc, s%d, v%d" % (sNON, r))
            a("s_and_b32 s%d, vcc_lo, 0x%x" % (sT0, mask))
            a("s_cbranch_scc0 %s" % lj)
            a("s_sleep %d" % ENV("HSL", 3))
            a("s_sub_u32 s%d, s%d, 1" % (sT3, sT3)); a("s_cmp_lg_u32 s%d, 0" % sT3)
            a("s_cbranch_scc1 %s" % l1)
            a("s_branch %s" % lj)
        deferred.append(slow)
        return lo
    P0 = ENV("P0", 5)
    if P0 == 0: hpoll()
    for s in range(max(NG, NGT), NV): trw(s)
    a("s_mul_i32 s%d, s%d, 14" % (sT1, sWV))
    a("s_mul_i32 s%d, s%d, 56" % (sT0, sRT2))
    a("s_add_u32 s%d, s%d, s%d" % (sT0, sT0, sT1))
    a("s_lshl_b32 s%d, s%d, 12" % (sT0, sT0))
    for r in range(4):
        a("s_add_u32 s%d, s%d, %d" % (sT1, sWV, r)); a("s_and_b32 s%d, s%d, 3" % (sT1, sT1)); a("s_lshl_b32 s%d, s%d, 10" % (sT1, sT1))
        a("s_add_u32 s%d, s%d, s%d" % (sT1, sT1, sT0))
        a("v_lshl_add_u32 v%d, v1, 4, s%d" % (HA[r], sT1))
    a("v_and_b32 v17, 15, v1"); a("v_lshrrev_b32 v13, 4, v1")
    a("s_lshl_b32 s%d, s%d, 6" % (sT0, sRT2)); a("s_lshl_b32 s%d, s%d, 4" % (sT1, sWV)); a("s_add_u32 s%d, s%d, s%d" % (sT0, sT0, sT1))
    a("v_add_u32 v18, s%d, v17" % sT0)
    a("v_mul_u32_u24 v18, 896, v18")
    a("v_lshl_add_u32 v18, v13, 5, v18")
    a("s_lshl_b32 s%d, s%d, 7" % (sT0, sCT))
    a("v_add_u32 v18, s%d, v18" % sT0)
    a.vm("buffer_load_dwordx4 v[24:27], v18, s[%d:%d], 0 offen" % (SX, SX + 3), "x")
    a.vm("buffer_load_dwordx4 v[28:31], v18, s[%d:%d], 0 offen offset:16" % (SX, SX + 3), "x")
    a("v_mul_u32_u24 v16, %d, v13" % STG_W)
    a("v_lshrrev_b32 v13, 2, v17"); a("v_lshl_add_u32 v16, v13, 7, v16")
    a("v_and_b32 v13, 1, v17"); a("v_lshl_add_u32 v16, v13, 3, v16")
    a("v_bfe_u32 v13, v17, 1, 1"); a("v_lshl_add_u32 v16, v13, 6, v16")
    a("s_add_u32 s%d, s%d, %d" % (sT1, sT1, L_STG))
    a("v_add_u32 v16, s%d, v16" % sT1)
    a("v_lshl_add_u32 v19, v1, 4, s%d" % sOX)
    arrive(1, Y_TR)
    if GST:
        a.wait_vm("own")
        for n in range(12):
            hi = WDS[n // 4] >= 65536
            if n == 8: a("v_add_u32 v13, 65536, v19")
            a.ds("ds_write_b128 v%d, %s offset:%d" % ((19, 13)[hi], vr(OB[n // 4] + 4 * (n % 4), 4), WDS[n // 4] - 65536 * hi + (n % 4) * 1024), "ow")
    if P0 == 1: hpoll()
    flag(1)
    sf_("flag1")
    if P0 == 2: hpoll()
    a("s_setprio %d" % ENV("F2PRIO", 0))
    if not GST:
        a("s_waitcnt lgkmcnt(0)"); a.dsq = []
        P1 = ENV("P1", 0)
        if P1 == 1: hpoll(23, "hp1")
        WO = [int(x) for x in os.environ.get("WO", "-2,-2,-2").split(",")]
        for s in range(6 + NG, 9):
            if WO[s - 6] == -2:
                for g in dma_wd(s): emit(g)
            if P1 == s - 4: hpoll(23, "hp1")
            if P0 == s - 3:
                if ENV("PDL", 4): a("s_sleep %d" % ENV("PDL", 4))
                hpoll()
    wdq = []
    lj = L("HJ")
    a.wait_vm("hp")
    a("v_cmp_ne_u32 vcc, s%d, v14" % sNON)
    a("s_and_b32 s%d, vcc_lo, 0x1555" % sT0)
    lo = spin_h(0x1555, lj, p1=(len(a.vmq) - [t for t in range(len(a.vmq)) if a.vmq[t] == "hp1"][0]) if P1 else None)
    a("s_cbranch_scc1 %s" % lo)
    a.label(lj)
    if ENV("DLY", 0): a("s_sleep %d" % ENV("DLY", 0))
    sf_("hpoll")
    NHM = ENV("NHM", 4)
    assert NSTA == 5 and NV == 6 and not wdq
    sRDY, sISS = sHD, sLD
    WTAB = 22; WOF = list(range(8, 15)); sHM = 16
    PR = [23, 17, 2]
    def dpoll(n):
        l = L("DP")
        a("s_cmp_eq_u32 s%d, 0x2aaa" % sRDY)
        a("s_cbranch_scc1 %s" % l)
        a("s_mov_b64 exec, 0x3fff")
        a("buffer_load_dword v%d, v8, s[%d:%d], 0 offen sc1" % (PR[n % 3], SWS, SWS + 3))
        a("s_mov_b64 exec, -1")
        a.label(l)
        a.mark(("hq", n))
    def deval(n):
        a.wait_vm(("hq", n))
        a("v_cmp_eq_u32 vcc, s%d, v%d" % (sNON, PR[n % 3]))
        a("s_and_b32 s%d, vcc_lo, 0x2aaa" % sT0)
        a("s_or_b32 s%d, s%d, s%d" % (sRDY, sRDY, sT0))
    def dslow():
        a.label("K_DS")
        a("s_mov_b64 exec, 0x3fff")
        a("buffer_load_dword v14, v8, s[%d:%d], 0 offen sc1" % (SWS, SWS + 3))
        a("s_mov_b64 exec, -1")
        a("s_sub_i32 s18, s18, 1"); a("s_max_i32 s18, s18, 0")
        a("s_cmp_eq_u32 s18, 0"); a("s_cselect_b32 s19, -1, 0")
        a("s_waitcnt vmcnt(0)")
        a("v_cmp_eq_u32 vcc, s%d, v14" % sNON)
        a("s_or_b32 s19, s19, vcc_lo")
        a("s_and_b32 s19, s19, 0x2aaa")
        a("s_or_b32 s%d, s%d, s19" % (sRDY, sRDY))
        a("s_setpc_b64 s[20:21]")
    deferred.append(dslow)
    sWL = 17
    def wslow():
        a.label("K_WS")
        a("ds_read_u8 v14, v15 offset:%d" % Y_WS)
        a("s_sub_i32 s18, s18, 1"); a("s_max_i32 s18, s18, 0")
        a("s_cmp_eq_u32 s18, 0"); a("s_cselect_b32 s19, 3, 0")
        a("s_waitcnt lgkmcnt(0)")
        a("v_readfirstlane_b32 s%d, v14" % sWL)
        a("s_sleep 1")
        a("s_or_b32 s%d, s%d, s19" % (sWL, sWL))
        a("s_setpc_b64 s[20:21]")
    deferred.append(wslow)
    def c_issue(s):
        HB[s] = free.pop(0)
        if s < 7 or "stat" in EXP: C = [["s_mov_b32 s%d, %d" % (sOW, WS_H + J(s) * 4096)]]
        else:
            C = [["s_getpc_b64 s[20:21]", "s_andn2_b32 s%d, s%d, s%d" % (sT0, sRDY, sISS), "s_cbranch_scc0 K_DS", "s_ff1_i32_b32 s%d, s%d" % (sT1, sT0)],
                 ["s_lshr_b32 m0, s%d, 1" % sT1, "s_lshl_b32 s%d, s%d, 12" % (sOW, sT1), "s_bitset1_b32 s%d, s%d" % (sISS, sT1), "s_movrels_b32 s%d, s%d" % (WOF[s - 7], WTAB)], []]
        for i, tt in enumerate((1, 2, 3, 0) if s == 13 else range(4)):
            ld = ("buffer_load_dwordx4 %s, v%d, s[%d:%d], s%d offen" % (vr(HB[s] + 4 * tt, 4), HA[tt], SWS, SWS + 3, sOW), ("h", s, tt))
            if "hsame" in EXP: C.append(["s_mov_b32 s%d, 0" % sOW, ld])
            elif "nold" in EXP and s >= 4: pass
            elif i == 0 or i % ENV("LB", 2): C[-1].append(ld)
            else: C.append([ld])
        return C
    def c_trw(s):
        WB[s] = free.pop(0)
        if s < 7 or "stat" in EXP:
            hi = WDS[s % NW] >= 65536; of = WDS[s % NW] - 65536 * hi
            C = [[lambda: a.wait_vm(("wd", min(s, 8)))]]
        else:
            hi = 1; of = 0
            C = [([lambda: a.wait_vm(("wd", 8))] if s == 7 else []) +
                 ["s_and_b32 s%d, s%d, 3" % (sT2, WOF[s - 7]), "s_getpc_b64 s[20:21]", "s_cmp_gt_u32 s%d, s%d" % (sT2, sWL), "s_cbranch_scc1 K_WS"],
                 ["s_sub_u32 s%d, s%d, s%d" % (WOF[s - 7], WOF[s - 7], sT2)] + ["v_add_u32 v%d, s%d, v%d" % (TRB[1][c2], WOF[s - 7], TRB[0][c2]) for c2 in range(2)], []]
        for ct in range(4):
            rd = [("ds_read_b64_tr_b16 %s, v%d offset:%d" % (vr(WB[s] + 4 * ct + 2 * hf, 2), TRB[hi][ct >> 1], of + hf * 512 + 8 * (ct & 1)), ("tw", s)) for hf in range(2)]
            if "notr" in EXP: continue
            if ct == 0: C[-1] += rd
            else: C.append(rd)
        return C
    nh = 0
    DP0 = ENV("DP0", 2)
    PI = [int(x) for x in os.environ.get("PI", "1,5,9").split(",")]
    PE = [int(x) for x in os.environ.get("PE", "5,9,11").split(",")]
    if ENV("HR", 1): a("s_andn2_b32 s%d, 0x2aaa, vcc_lo" % sRDY)
    while free and nh < NHM:
        if nh == DP0 and PI[0] < 0: dpoll(0)
        for c in c_issue(nh): emit(c)
        nh += 1
    if DP0 >= NHM and PI[0] < 0: dpoll(0)
    for s in range(6 + NG, 9):
        if WO[s - 6] == -1:
            for g in dma_wd(s): emit(g)
    a("s_mov_b32 s%d, 0" % sISS)
    a("s_mov_b32 s18, %d" % (SPIN * 2)); a("s_mov_b32 s%d, %d" % (sWL, 3 if "nows" in EXP else 0))
    for k_ in range(5): a("s_mov_b32 s%d, %d" % (WTAB + k_, WDS[k_ + 1] + (k_ >= 2)))
    a("s_mul_i32 s%d, s%d, %d" % (sT0, sWC, CV_CH - 16384)); a("s_add_u32 s%d, s%d, s%d" % (sT0, sT0, sOX)); a("s_add_u32 s%d, s%d, %d" % (WTAB + 5, sT0, L_CV + 2))
    a("s_add_u32 s%d, s%d, 4096" % (WTAB + 6, WTAB + 5))
    a("s_add_u32 s%d, s%d, %d" % (sT0, sWV, L_SYNC)); a("v_mov_b32 v15, s%d" % sT0)
    nw = NV
    for r in range(1, 4):
        a("s_sub_u32 s%d, s%d, %d" % (sT1, sWV, r)); a("s_and_b32 s%d, s%d, 3" % (sT1, sT1)); a("s_lshl_b32 s%d, s%d, 12" % (sT1, sT1))
        a("v_lshl_add_u32 v%d, v1, 4, s%d" % (19 + r, sT1))
    Q2 = [[]] * ENV("PG", 0) + [[lambda: dpoll(PI.index(0))]] if 0 in PI else []
    HXS = [int(x) for x in os.environ.get("HXS", "99").split(",")]
    for s in range(6 + NG, 9):
        if WO[s - 6] == 0: Q2 += dma_wd(s)
    for s in range(14):
        a.wait_ds(("tw", s))
        gap = 0
        for tt in ((1, 2, 3, 0) if s == 13 else range(4)):
            a.wait_vm(("h", s, tt))
            for ct in range(4):
                a("v_mfma_f32_16x16x32_bf16 %s, %s, %s, %s" % (vr(A2(ct, tt), 4), vr(WB[s] + 4 * ct, 4), vr(HB[s] + 4 * tt, 4), "0" if s == 0 else vr(A2(ct, tt), 4)))
                gap += 1
                while Q2 and (len(Q2) > 16 - gap or gap == 16): emit(Q2.pop(0))
                if Q2: emit(Q2.pop(0))
                pr = {1: 0, 2: 1, 3: 2, 0: 3}[tt]
                if s == 13 and pr: a("ds_write_b128 v19, %s offset:%d" % (vr(A2(ct, pr), 4), (pr - 1) * 16384 + ct * 1024))
        sf_("s_%d" % s)
        if s == 5: sf_("s5")
        if s == 9: sf_("s9")
        free.append(HB[s]); free.append(WB[s])
        if s + 1 in PE: Q2.append([lambda n=PE.index(s + 1): deval(n)])
        if s + 1 in PI: Q2.append([lambda n=PI.index(s + 1): dpoll(n)])
        QO = ENV("QO", 0)
        qi = []; qt = []
        if nh < 14: qi += c_issue(nh); nh += 1
        if nh < 14 and s in HXS: qi += c_issue(nh); nh += 1
        if nw < 14 and nw <= s + ENV("TA", 2): qt += c_trw(nw); nw += 1
        for s_ in range(6 + NG, 9):
            if WO[s_ - 6] == s + 1: qi += dma_wd(s_)
        if QO == 0: Q2 += qi + qt
        elif QO == 1: Q2 += qt + qi
        elif QO == 2:
            while qi or qt: Q2.append((qi.pop(0) if qi else []) + (qt.pop(0) if qt else []))
        assert nw > s + 2 or nw == 14
        if s == 12: R1, R2, R3 = [free.pop(0) for _ in range(3)]
        if s == 10:
            XU, YR = [free.pop(0) for _ in range(2)]
            Q2.append([lambda: a.wait_vm("x")])
            for w in range(8):
                Q2.append(["v_lshlrev_b32 v%d, 16, v%d" % (XU + 2 * w, 24 + w), "v_and_b32 v%d, 0xffff0000, v%d" % (XU + 2 * w + 1, 24 + w)])
    arrive(17)
    a("ds_read_u8 v15, v11 offset:%d" % Y_YA)
    sf_("f2end")
    def ya_part(spin=True):
        if spin: spin_lds(11, 15, 1, slp=1, off=Y_YA)
        for q in range(4): a("ds_read_b64_tr_b16 %s, v16 offset:%d" % (vr(YR + 2 * q, 2), q * 512))
        for w in range(8):
            if w % 2 == 0: a("s_waitcnt lgkmcnt(%d)" % (3 - w // 2))
            yw = YR + w; o = XU + 2 * w; t = YR + 8 + 2 * (w & 1)
            a("v_lshlrev_b32 v%d, 16, v%d" % (t, yw)); a("v_and_b32 v%d, 0xffff0000, v%d" % (t + 1, yw))
            a("v_add_f32 v%d, v%d, v%d" % (o, o, t)); a("v_add_f32 v%d, v%d, v%d" % (o + 1, o + 1, t + 1))
            a("v_cvt_pk_bf16_f32 v%d, v%d, v%d" % (o, o, o + 1))
            a("v_and_b32 v%d, 0xffff0000, v%d" % (o + 1, o)); a("v_lshlrev_b32 v%d, 16, v%d" % (o, o))
    def red_part():
        spin_lds(11, 15, 17, slp=0)
        for ct in range(4):
            for r, R in enumerate((R1, R2, R3)):
                a("ds_read_b128 %s, v%d offset:%d" % (vr(R + 4 * ct, 4), 20 + r, r * 16384 + ct * 1024))
        for ct in range(4):
            a("s_waitcnt lgkmcnt(%d)" % (9 - 3 * ct))
            for e in range(4):
                c = 4 * ct + e
                a("v_add_f32 v%d, v%d, v%d" % (R1 + c, R1 + c, A2(ct, 0) + e)); a("v_add_f32 v%d, v%d, v%d" % (R2 + c, R2 + c, R3 + c))
            for e in range(4):
                c = 4 * ct + e
                a("v_add_f32 v%d, v%d, v%d" % (R1 + c, R1 + c, R2 + c))
            for w in range(2):
                b = R1 + 4 * ct + 2 * w
                a("v_cvt_pk_bf16_f32 v%d, v%d, v%d" % (b, b, b + 1))
                a("v_and_b32 v%d, 0xffff0000, v%d" % (b + 1, b)); a("v_lshlrev_b32 v%d, 16, v%d" % (b, b))
    e1, e2 = L("EP"), L("EP")
    a("s_waitcnt lgkmcnt(0)")
    a("v_cmp_gt_u32 vcc, 1, v15")
    a("s_cbranch_vccnz %s" % e1)
    a.begin_opt()
    ya_part(False); red_part()
    a("s_branch %s" % e2)
    a.end_opt()
    a.label(e1)
    a.begin_opt()
    red_part(); ya_part()
    a.end_opt()
    a.label(e2)
    sf_("ya")
    for hc in range(2):
        for w in range(4):
            b = R1 + 8 * hc + 2 * w; o = XU + 8 * hc + 2 * w
            a("v_add_f32 v%d, v%d, v%d" % (b, b, o)); a("v_add_f32 v%d, v%d, v%d" % (b + 1, b + 1, o + 1))
            a("v_cvt_pk_bf16_f32 v%d, v%d, v%d" % (R2 + 4 * hc + w, b, b + 1))
        a("buffer_store_dwordx4 %s, v18, s[%d:%d], 0 offen offset:%d" % (vr(R2 + 4 * hc, 4), SOUT, SOUT + 3, hc * 16) + " " + os.environ.get("OUTM", ""))
    sf_("end")
    sf_.store(24)
    if os.environ.get("MEAS"):
        a("s_sub_u32 s100, s99, s%d" % sNON)
        a("v_mov_b32 v24, s100")
        a("s_cmp_lg_u32 s%d, 0" % sWV); a("s_cbranch_scc1 K_END")
        a("s_mov_b64 exec, 1")
        a("s_lshl_b32 s100, s2, 2"); a("s_add_u32 s100, s100, %d" % WS_DBG); a("v_mov_b32 v25, s100")
        a("buffer_store_dword v24, v25, s[%d:%d], 0 offen sc1" % (SWS, SWS + 3))
    a("s_endpgm")
    for f in deferred: f()
    if KT: a.raw(".p2align 2"); a.label("K_TAB"); a.raw(".long " + ", ".join(str(i + 1) for i in range(16)))

    import gen8h
    gen8h.helper(a, sh_, L, spin_lds)
    gen8h.producer(a, sp_, L, spin_lds)
    a.label("K_END")
    a("s_endpgm")
    if STAMP: print("ffn", sf_.names, "\nhelp", sh_.names, "\nprod", sp_.names)
    return a.finalize()

def wrap(kernels):
    out = []
    for name, grid, block, lds, body, nv in kernels:
        if len(kernels) > 1: out.append("; @launch kernel=%s grid=(%d,1,1) block=(%d,1,1) lds=%d" % (name, grid, block, lds))
        else: out.append("; @launch grid=(%d,1,1) block=(%d,1,1) lds=%d" % (grid, block, lds))
    out.append('.amdgcn_target "amdgcn-amd-amdhsa--gfx950"')
    out.append(".text")
    for name, grid, block, lds, body, nv in kernels:
        out += [".globl %s" % name, ".p2align 8", ".type %s,@function" % name, "%s:" % name, body]
    out.append('.section .rodata,"a"')
    for name, grid, block, lds, body, nv in kernels:
        out += [".p2align 6", ".amdhsa_kernel %s" % name,
                "  .amdhsa_next_free_vgpr %d" % nv, "  .amdhsa_next_free_sgpr 102", "  .amdhsa_accum_offset %d" % ((nv + 3) // 4 * 4),
                "  .amdhsa_group_segment_fixed_size 0", "  .amdhsa_kernarg_size 128", "  .amdhsa_user_sgpr_count 2",
                "  .amdhsa_user_sgpr_kernarg_segment_ptr 1", "  .amdhsa_system_sgpr_workgroup_id_x 1", ".end_amdhsa_kernel"]
    return "\n".join(out) + "\n"

if __name__ == "__main__":
    sys.modules["gen8"] = sys.modules["__main__"]
    NAME = "parallel_sum__ssm_conv_s4__glu_gated_geglu__prompt_kernel"
    ks = [(NAME, 256, 512, LDS, gen(), 256)]
    if os.environ.get("MEAS"):
        b = Asm()
        b("s_cmp_ge_u32 s2, 1"); b("s_cbranch_scc1 K3_END")
        b("s_load_dwordx4 s[4:7], s[0:1], 112"); b("s_waitcnt lgkmcnt(0)")
        srd(b, 8, 6, WS_SIZE); srd(b, 12, 4, 256)
        b("v_lshlrev_b32 v1, 2, v0"); b("v_mov_b32 v10, 0")
        for i in range(4):
            b("s_mov_b32 s22, %d" % (WS_DBG + 128 + i * 256 - (32 if i == 3 else 0) * 4))
            b("buffer_load_dword v4, v1, s[8:11], s22 offen sc1"); b("s_waitcnt vmcnt(0)"); b("v_max_u32 v10, v10, v4")
        b("v_readlane_b32 s30, v10, 0")
        for l in range(1, 64):
            b("v_readlane_b32 s22, v10, %d" % l); b("s_max_u32 s30, s30, s22")
        b("s_mov_b64 exec, 1"); b("v_mov_b32 v1, 0"); b("v_mov_b32 v2, s30")
        b("buffer_store_dword v2, v1, s[12:15], 0 offen"); b("s_waitcnt vmcnt(0)")
        b("s_min_u32 s30, s30, 20000"); b("s_mul_i32 s30, s30, %d" % int(os.environ.get("DM", "4")))
        b("s_memrealtime s[24:25]"); b("s_waitcnt lgkmcnt(0)")
        b.label("K3_L")
        b("s_memrealtime s[26:27]"); b("s_waitcnt lgkmcnt(0)"); b("s_sub_u32 s28, s26, s24"); b("s_cmp_lt_u32 s28, s30"); b("s_cbranch_scc1 K3_L")
        b.label("K3_END"); b("s_endpgm")
        ks = [("k1_kernel",) + ks[0][1:], ("k3_kernel", 1, 64, 0, b.finalize(), 64)]
    open(sys.argv[1] if len(sys.argv) > 1 else "k.s", "w").write(wrap(ks))
```

```python
import math, os
from gen8 import *

XST = ENV("XST", 4096); YST = ENV("YST", 4096); YP = ENV("YP", 0)
AL = ENV("AL", 2)
if AL == 1: WS_YAT = WS_XNT
TS = 64 * 896
NF = ENV("NF", 1)
def get_nonce(a, L, va, vd, pre=False):
    l1, l2, l3 = L("GN"), L("GN"), L("GN")
    a("s_mov_b32 s%d, %d" % (sCNT, SPIN))
    if NF: a("s_mov_b32 s49, 2")
    if pre: a("s_branch %s" % l3)
    a.label(l1)
    a("buffer_load_dwordx2 v[%d:%d], v%d, s[%d:%d], 0 offen sc1" % (vd, vd + 1, va, SDBG, SDBG + 3))
    a.label(l3)
    a("s_waitcnt vmcnt(0)")
    a("v_readfirstlane_b32 s%d, v%d" % (sNON, vd)); a("v_readfirstlane_b32 s%d, v%d" % (sNON + 1, vd + 1))
    if NF:
        l4 = L("GN")
        a("s_cmp_eq_u32 s%d, 0" % (sNON + 1))
        a("s_cbranch_scc1 %s" % l4)
        a("s_sub_u32 s%d, s48, s%d" % (sT0, sNON))
        a("s_cmp_lt_i32 s%d, 800" % sT0)
        a("s_cbranch_scc1 %s" % l2)
        a("s_sub_u32 s49, s49, 1")
        a("s_cbranch_scc1 %s" % l2)
        a.label(l4)
    else:
        a("s_cmp_lg_u32 s%d, 0" % (sNON + 1))
        a("s_cbranch_scc1 %s" % l2)
    a("s_sleep 8")
    a("s_sub_u32 s%d, s%d, 1" % (sCNT, sCNT)); a("s_cmp_lg_u32 s%d, 0" % sCNT)
    a("s_cbranch_scc1 %s" % l1)
    a.label(l2)

def helper(a, sk_, L, spin_lds):
    a.label("K_HELP")
    a.vmq = []
    a("s_setprio 3")
    DK = "s[36:37]" if AL == 2 else "s[60:61]"
    a("s_load_dwordx2 %s, s[0:1], 64" % DK)
    if NF: a("s_memrealtime s[48:49]")
    a("s_sub_u32 s%d, s%d, 4" % (sKW, sWV))
    a("s_cmp_lg_u32 s%d, 7" % sWV)
    a("s_cbranch_scc1 K_NZ")
    a.begin_opt()
    a("v_lshlrev_b32 v2, 2, v1"); a("v_add_u32 v2, %d, v2" % L_SYNC); a("v_mov_b32 v3, 0")
    a("ds_write_b32 v2, v3")
    if KT: a("v_and_b32 v2, 3, v1"); a("v_mul_u32_u24 v2, %d, v2" % FLS); a("v_add_u32 v2, %d, v2" % (L_FL + 64)); a("ds_write_b32 v2, v3")
    else: a("ds_write_b32 v2, v3 offset:512")
    a.end_opt()
    a.label("K_NZ")
    a("s_and_b32 s%d, s%d, 1" % (sHF, sKW))
    a("s_lshr_b32 s%d, s%d, 1" % (sT0, sKW))
    a("s_sub_u32 s%d, s2, 32" % sCH)
    a("s_lshl_b32 s%d, s%d, 1" % (sCH, sCH))
    a("s_add_u32 s%d, s%d, s%d" % (sCH, sCH, sT0))
    a("s_mul_i32 s%d, s%d, %d" % (sCVB, sT0, CV_CH))
    a("s_add_u32 s%d, s%d, %d" % (sCVB, sCVB, L_CV))
    a("s_lshl_b32 s%d, s%d, 8" % (sT0, sCH))
    a("s_lshl_b32 s%d, s%d, 7" % (sT1, sHF))
    a("s_add_u32 s%d, s%d, s%d" % (sT0, sT0, sT1))
    a("v_add_u32 v2, s%d, v1" % sT0)
    a("v_lshlrev_b32 v2, 1, v2")
    a("s_lshl_b32 s%d, s%d, 1" % (sT1, sCH))
    a("v_mov_b32 v3, s%d" % sT1)
    a("s_waitcnt lgkmcnt(0)")
    P = [[20, 21, 22, 23, 24, 25], [120, 121, 122, 123, 124, 125]]
    a.vm("global_load_ushort v26, v3, s[30:31]", "param")
    for it in range(2):
        for i in range(6):
            a.vm("global_load_ushort v%d, v2, s[%d:%d] offset:%d" % (P[it][i], 18 + 2 * i, 19 + 2 * i, it * 128), "param")
    a.vm("global_load_ushort v160, v3, %s" % DK, "param")
    PE0, PE1 = ENV("PE0", 0), ENV("PE1", 0)
    if PE1:
        n = (PE1 - PE0) * 28 // 896
        a("s_lshl_b32 s%d, s%d, 1" % (sT0, sCH)); a("s_add_u32 s%d, s%d, s%d" % (sT0, sT0, sHF))
        a("s_mul_i32 s%d, s%d, %d" % (sT1, sT0, n * 128)); a("s_add_u32 s%d, s%d, %d" % (sT1, sT1, PE0 * 3584))
        a("v_lshl_add_u32 v253, v1, 7, s%d" % sT1)
        a("s_mov_b64 exec, 0x%x" % ((1 << n) - 1))
        a.vm("global_load_dword v250, v253, s[32:33]", "tw"); a.vm("global_load_dword v251, v253, s[34:35]", "tw")
        a("s_mov_b64 exec, -1")
    a("s_setprio %d" % int(os.environ.get("KPRIO", "2")))
    a("s_barrier")
    srd(a, SWS, 14, WS_SIZE)
    TLW = ENV("TLW", 0)
    PFA = ENV("PFA", 151); PFB = ENV("PFB", 0); PFH = ENV("PFH", 0); PFO = ENV("PFO", 0)
    def pf_w(which, trk=True):
        vm = (lambda t: a.vm(t, "tw")) if trk else a
        a("s_sub_u32 s%d, s2, 32" % sT0); a("s_lshl_b32 s%d, s%d, 2" % (sT0, sT0)); a("s_add_u32 s%d, s%d, s%d" % (sT0, sT0, sKW))
        if which == "B":
            n = (448 - PFB) * 28 // 896
            a("s_mul_i32 s%d, s%d, %d" % (sT1, sT0, n * 128)); a("s_add_u32 s%d, s%d, %d" % (sT1, sT1, PFB * 3584))
            a("v_lshl_add_u32 v253, v1, 7, s%d" % sT1)
            a("s_mov_b64 exec, 0x%x" % ((1 << n) - 1))
            vm("global_load_dword v250, v253, s[32:33]"); vm("global_load_dword v251, v253, s[34:35]")
            a("s_mov_b64 exec, -1")
        else:
            a("s_mul_i32 s%d, s%d, 1792" % (sT1, sT0))
            a("v_lshl_add_u32 v252, v1, 7, s%d" % sT1)
            a("s_mov_b64 exec, 0x3fff")
            vm("global_load_dword v252, v252, s[8:9]")
            a("s_mov_b64 exec, -1")
    def pf_c():
        a("s_and_b32 s%d, s%d, 3" % (sT0, sRT2)); a("s_mul_i32 s%d, s%d, 14" % (sT0, sT0))
        a("s_lshl_b32 s%d, s%d, 2" % (sT1, sKW)); a("s_lshr_b32 s%d, 0x331c, s%d" % (sT1, sT1)); a("s_and_b32 s%d, s%d, 15" % (sT1, sT1))
        a("s_add_u32 s%d, s%d, s%d" % (sT0, sT0, sT1)); a("s_mul_i32 s%d, s%d, 224" % (sT0, sT0)); a("s_add_u32 s%d, s%d, s%d" % (sT0, sT0, sCT)); a("s_lshl_b32 s%d, s%d, 7" % (sT0, sT0))
        a("v_mul_u32_u24 v174, 896, v1")
        a("s_cmp_lt_u32 s%d, 3" % sKW); a("s_cselect_b32 exec_lo, -1, 0"); a("s_mov_b32 exec_hi, 0")
        a("buffer_load_dword v174, v174, s[%d:%d], s%d offen" % (SWD, SWD + 3, sT0))
        a("s_mov_b64 exec, -1")
    def pf_f():
        a("s_lshl_b32 s%d, s%d, 1" % (sT0, sF)); a("s_lshr_b32 s%d, s%d, 1" % (sT1, sKW)); a("s_add_u32 s%d, s%d, s%d" % (sT0, sT0, sT1))
        a("s_mul_i32 s%d, s%d, 37" % (sT1, sT0)); a("s_lshr_b32 s%d, s%d, 8" % (sT1, sT1)); a("s_add_u32 s%d, s%d, s%d" % (sT0, sT0, sT1))
        a("s_lshl_b32 s%d, s%d, 1" % (sT1, sR)); a("s_add_u32 s%d, s%d, s%d" % (sT1, sT1, sHF)); a("s_lshl_b32 s%d, s%d, 5" % (sT1, sT1))
        a("s_add_u32 s%d, s%d, s%d" % (sT0, sT0, sT1)); a("s_lshl_b32 s%d, s%d, %d" % (sT0, sT0, FSH)); a("s_add_u32 s%d, s%d, %d" % (sT0, sT0, WS_HF))
        a("v_mov_b32 v174, s%d" % sT0)
        a("s_and_b32 s%d, s%d, 0xfffe" % (sT0, sCH)); a("s_add_u32 s%d, s%d, s%d" % (sT0, sT0, sHF)); a("s_lshl_b32 s%d, s%d, 8" % (sT0, sT0))
        a("s_add_u32 s%d, s%d, %d" % (sT0, sT0, WS_CF))
        a("v_writelane_b32 v174, s%d, 1" % sT0)
        a("s_mov_b64 exec, 3")
        a("buffer_load_dword v174, v174, s[%d:%d], 0 offen sc1" % (SWS, SWS + 3))
        a("s_mov_b64 exec, -1")
    def pf_h(trk=True):
        a("s_lshl_b32 s%d, s%d, 1" % (sT0, sR)); a("s_add_u32 s%d, s%d, s%d" % (sT0, sT0, sHF)); a("s_mul_i32 s%d, s%d, 56" % (sT0, sT0))
        a("s_lshl_b32 s%d, s%d, 2" % (sT1, sF)); a("s_add_u32 s%d, s%d, s%d" % (sT0, sT0, sT1))
        a("s_and_b32 s%d, s%d, 2" % (sT1, sKW)); a("s_add_u32 s%d, s%d, s%d" % (sT0, sT0, sT1)); a("s_lshl_b32 s%d, s%d, 12" % (sT0, sT0))
        a("v_lshlrev_b32 v174, 7, v1")
        t = "buffer_load_dword v174, v174, s[%d:%d], s%d offen" % (SWS, SWS + 3, sT0)
        if trk: a.vm(t, "tw")
        else: a(t)
    def pf_o(trk=True):
        a("s_lshl_b32 s%d, s%d, 2" % (sT0, sRT2)); a("s_add_u32 s%d, s%d, s%d" % (sT0, sT0, sKW))
        a("s_mul_i32 s%d, s%d, %d" % (sT0, sT0, 16 * 896)); a("s_lshl_b32 s%d, s%d, 7" % (sT1, sCT)); a("s_add_u32 s%d, s%d, s%d" % (sT0, sT0, sT1))
        a("v_mul_u32_u24 v166, 896, v1"); a("v_add_u32 v166, s%d, v166" % sT0)
        a("s_mov_b64 exec, 0xffff")
        t = "global_load_dword v166, v166, s[10:11]"
        if trk: a.vm(t, "tw")
        else: a(t)
        a("s_mov_b64 exec, -1")
    PFBT = ENV("PFBT", 1)
    if PFB and PFBT == 1: pf_w("B")
    if PFA == 1: pf_w("A")
    if PFH == 1: pf_h()
    if PFO == 1: pf_o()
    if TLW:
        a("v_bfe_u32 v4, v1, 2, 1"); a("v_mul_u32_u24 v4, 56, v4"); a("v_and_b32 v5, 3, v1"); a("v_add_u32 v4, v4, v5")
        a("s_mul_i32 s%d, s%d, 112" % (sT0, sR)); a("s_lshl_b32 s%d, s%d, 2" % (sT1, sF)); a("s_add_u32 s%d, s%d, s%d" % (sT0, sT0, sT1))
        a("v_add_u32 v4, s%d, v4" % sT0); a("v_lshlrev_b32 v4, 12, v4")
        a("s_lshl_b32 s%d, s%d, %d" % (sT0, sR, 6 + FSH)); a("s_add_u32 s%d, s%d, %d" % (sT0, sT0, WS_HF + 7 * 256))
        a("v_writelane_b32 v4, s%d, 8" % sT0)
        a("s_add_u32 s%d, s%d, %d" % (sT0, sT0, 32 << FSH))
        a("v_writelane_b32 v4, s%d, 9" % sT0)
        a("s_cmp_eq_u32 s%d, 1" % sKW); a("s_cselect_b32 exec_lo, 0x3ff, 0"); a("s_mov_b32 exec_hi, 0")
        a.vm("buffer_load_dword v174, v4, s[%d:%d], 0 offen" % (SWS, SWS + 3), "tw")
        a("s_mov_b64 exec, -1")
    if TLW >= 2:
        a("s_mul_i32 s%d, s%d, %d" % (sT0, sRT2, 64 * 896)); a("s_lshl_b32 s%d, s%d, 7" % (sT1, sCT)); a("s_add_u32 s%d, s%d, s%d" % (sT0, sT0, sT1))
        a("v_mul_u32_u24 v5, %d, v1" % (4 * 896)); a("v_add_u32 v5, s%d, v5" % sT0)
        a("s_cmp_eq_u32 s%d, 2" % sKW); a("s_cselect_b32 exec_lo, 0xffff, 0"); a("s_mov_b32 exec_hi, 0")
        a.vm("global_load_dword v174, v5, s[10:11]", "tw")
        a("s_mov_b64 exec, -1")
    a("s_mul_i32 s%d, s%d, %d" % (sSTG, sKW, STG_W))
    a("s_add_u32 s%d, s%d, %d" % (sSTG, sSTG, L_STG))
    a("v_and_b32 v7, 15, v1")
    a("v_lshrrev_b32 v6, 4, v1")
    a("v_mul_u32_u24 v5, 272, v7")
    a("v_lshl_add_u32 v8, v6, 4, s%d" % sSTG)
    a("v_add_u32 v5, v5, v8")
    maps = [[0,1,2,3,4,5,6,7, 8,8,9,10,10,10,11,12],
            [0,0,0,1,1,1,2,2, 3,3,3,4,4,4,5,5],
            [6,6,6,6,6,7,7,7, 8,8,8,8,8,9,9,9],
            [10,10,10,10,10,11,11,11, 12,12,12,12,12,13,13,13]]
    XA = [12, 13, 14, 15]
    a("v_lshlrev_b32 v9, 2, v7")
    a("v_and_b32 v9, 31, v9")
    a("v_cmp_gt_u32 vcc, 8, v7")
    for t in range(4):
        lo = sum(maps[t][i] << (4 * i) for i in range(8)); hi = sum(maps[t][8 + i] << (4 * i) for i in range(8))
        a("v_mov_b32 v10, 0x%x" % hi); a("v_mov_b32 v11, 0x%x" % lo)
        a("v_cndmask_b32 v10, v10, v11, vcc")
        a("v_lshrrev_b32 v10, v9, v10")
        a("v_and_b32 v10, 15, v10")
        a("v_mul_u32_u24 v10, 272, v10")
        a("v_add_u32 v%d, v10, v8" % XA[t])
    D = lambda t, yt: 128 + 8 * t + 4 * yt
    TRIM = ENV("TRIM", 1)
    if not TRIM:
        for r in range(128, 160): a("v_mov_b32 v%d, 0" % r)
    a("s_add_u32 s%d, s%d, %d" % (sT0, sKW, L_SYNC)); a("v_mov_b32 v161, s%d" % sT0)
    a("s_xor_b32 s%d, s%d, 1" % (sT1, sKW)); a("s_add_u32 s%d, s%d, %d" % (sT1, sT1, L_SYNC)); a("v_mov_b32 v162, s%d" % sT1)
    a("v_mov_b32 v163, 1")
    srd(a, SDBG, 12, 256)
    a("s_and_b32 s%d, s2, 7" % sT0); a("s_lshl_b32 s%d, s%d, 13" % (sT0, sT0)); a("s_add_u32 s%d, s%d, %d" % (sT0, sT0, WS_PF))
    a("v_and_b32 v112, 31, v1"); a("v_lshl_add_u32 v112, v112, 8, s%d" % sT0)
    a("v_mov_b32 v113, 64")
    a("v_mov_b32 v114, %d" % (L_SYNC + Y_RDA))
    a("s_cmp_lg_u32 s%d, 0" % sKW)
    a("s_cselect_b32 s%d, 0, 1" % sPM)
    def setf(off):
        a("s_mov_b64 exec, 1")
        a("ds_write_b8 v161, v163 offset:%d" % off)
        a("s_mov_b64 exec, -1")
    def waitp(off, tmp=164, tmpa=165):
        a("v_add_u32 v%d, %d, v162" % (tmpa, off))
        spin_lds(tmpa, tmp, 1)
    hooks = {}
    kc = [0]
    def k(t):
        a(t); kc[0] += 1
        if kc[0] in hooks: hooks.pop(kc[0])()
    if NSTA:
        srd(a, SWD, 8, 1792 * 896)
        a("v_lshrrev_b32 v16, 3, v1")
        a("s_mul_i32 s%d, s%d, %d" % (sT0, sKW, 448 * 896))
        a("v_mul_u32_u24 v16, 896, v16")
        a("s_lshl_b32 s%d, s%d, 7" % (sT1, sCT)); a("s_add_u32 s%d, s%d, s%d" % (sT0, sT0, sT1))
        a("v_add_u32 v16, s%d, v16" % sT0)
        a("v_bfe_u32 v18, v1, 4, 1"); a("v_xor_b32 v17, v1, v18"); a("v_and_b32 v17, 7, v17")
        a("v_lshl_add_u32 v170, v17, 4, v16")
    def st_ld(n):
        s_ = 14 - NSTA + n // 4; q = n % 4
        a("s_mov_b32 s%d, %d" % (sOW, ((2 * (s_ % 7) + s_ // 7) * 32 + 8 * q) * 896))
        a("buffer_load_dwordx4 %s, v%d, s[%d:%d], s%d offen" % (vr(176 + 4 * n, 4), 170, SWD, SWD + 3, sOW))
    SP0 = ENV("SP0", 300); SPD = ENV("SPD", 20)
    if SP0 >= 0:
        for n in range(4 * NSTA): hooks[SP0 + SPD * n] = lambda n=n: (st_ld(n), nst.append(n))
    if PFA > 1: hooks[PFA] = lambda: pf_w("A", False)
    if PFB and PFBT > 1: hooks[PFBT] = lambda: pf_w("B", False)
    if ENV("PFC", 0): hooks[ENV("PFC", 0)] = pf_c
    if ENV("PFF", 153): hooks[ENV("PFF", 153)] = pf_f
    if PFH > 1: hooks[PFH] = lambda: pf_h(False)
    if PFO > 1: hooks[PFO] = lambda: pf_o(False)
    nst = []
    a("v_lshlrev_b32 v172, 4, v1")
    if AL == 2:
        srd(a, SOUT, 10, 2048 * 896)
        a("v_lshrrev_b32 v16, 3, v1"); a("v_mul_u32_u24 v16, %d, v16" % (TS - 128)); a("v_add_u32 v172, v172, v16")
    a("s_cmp_lg_u32 s15, 0"); a("s_cselect_b32 s%d, 31, 30" % sT0); a("s_lshl_b32 s%d, s%d, 2" % (sT0, sT0)); a("v_mov_b32 v173, s%d" % sT0)
    def u_poll():
        a("s_cmp_lg_u32 s%d, 0" % sPM); a("s_cselect_b32 exec_lo, -1, 0"); a("s_mov_b32 exec_hi, 0")
        a("buffer_load_dword v169, v112, s[%d:%d], 0 offen sc1" % (SWS, SWS + 3))
        a("s_mov_b64 exec, -1")
        del nst[:]
    def u_dma():
        if AL == 2:
            a("s_and_b32 s%d, s%d, 63" % (sOW, sCH)); a("s_mul_i32 s%d, s%d, 7" % (sOW, sOW)); a("s_lshr_b32 s%d, s%d, 6" % (sPM, sCH))
            a("s_add_u32 s%d, s%d, s%d" % (sOW, sOW, sPM)); a("s_lshl_b32 s%d, s%d, 7" % (sOW, sOW))
            for c in range(2):
                a("s_mov_b32 m0, %d" % (L_CV + c * CV_CH + O_U + 480))
                for q in range(4):
                    a("buffer_load_dwordx4 v172, s[%d:%d], s%d offen offset:%d lds" % (SOUT, SOUT + 3, sOW, q * 1024))
                    if q < 3: a("s_add_u32 s%d, s%d, %d" % (sOW, sOW, 8 * TS - 1024))
                    elif c == 0: a("s_sub_u32 s%d, s%d, %d" % (sOW, sOW, 3 * (8 * TS - 1024) - 896))
        else:
            a("s_mul_i32 s%d, s%d, %d" % (sOW, sCH, XST))
            a("s_add_u32 s%d, s%d, %d" % (sOW, sOW, WS_XNT))
        for c in range(2 if AL != 2 else 0):
            a("s_mov_b32 m0, %d" % (L_CV + c * CV_CH + O_U + 480))
            if c: a("s_add_u32 s%d, s%d, %d" % (sOW, sOW, XST))
            for q in range(4): a("buffer_load_dwordx4 v172, s[%d:%d], s%d offen offset:%d lds" % (SWS, SWS + 3, sOW, q * 1024))
        a("s_mov_b32 m0, %d" % (L_SYNC + Y_U))
        a("s_mov_b64 exec, 1")
        a("global_load_lds_dword v173, s[0:1]")
        a("s_mov_b64 exec, -1")
        a("s_mov_b32 s%d, 0" % sPM)
    def u_try():
        l = L("UT")
        a("s_cmp_eq_u32 s%d, 0" % sPM)
        a("s_cbranch_scc1 %s" % l)
        a.begin_opt()
        a("s_waitcnt vmcnt(%d)" % len(nst))
        a("v_cmp_ne_u32 vcc, s%d, v169" % sNON)
        a("s_cmp_lg_u32 vcc_lo, 0")
        a("s_cbranch_scc1 %s" % l)
        u_dma()
        a("s_mov_b32 m0, s%d" % sSTG)
        a.end_opt()
        a.label(l)
        a("s_nop 0")
    for p_ in os.environ.get("UP", "781,851").split(","):
        hooks[int(p_)] = u_poll; hooks[int(p_) + ENV("UD", 66)] = u_try
    def nonce_pub():
        ln2 = L("NF")
        a("s_cmp_eq_u32 s%d, 0" % sPM)
        a("s_cbranch_scc1 %s" % ln2)
        a.begin_opt()
        get_nonce(a, L, 113, 116, pre=True)
        a("s_mov_b64 exec, 1")
        a("ds_write_b64 v114, v[116:117] offset:%d" % (Y_NON - Y_RDA))
        a("s_mov_b64 exec, -1")
        a.end_opt()
        a.label(ln2)
    def pf_wd():
        srd(a, SWD, 8, 1792 * 896)
        a("s_lshr_b32 s%d, s2, 3" % sT0); a("s_sub_u32 s%d, s%d, 4" % (sT0, sT0)); a("s_lshl_b32 s%d, s%d, 2" % (sT0, sT0)); a("s_add_u32 s%d, s%d, s%d" % (sT0, sT0, sKW))
        a("s_mul_i32 s%d, s%d, %d" % (sT0, sT0, 112 * 128))
        a("v_lshlrev_b32 v200, 7, v1")
        a("s_add_u32 s%d, s%d, %d" % (sT1, sT0, 48 * 128))
        a("buffer_load_dword v201, v200, s[%d:%d], s%d offen" % (SWD, SWD + 3, sT0))
        a("buffer_load_dword v202, v200, s[%d:%d], s%d offen" % (SWD, SWD + 3, sT1))
    PFW = ENV("PFW", -1)
    GB, FB = (171, 175) if TRIM else (6, 7)
    if TRIM:
        a("v_lshl_add_u32 v18, v1, 4, s%d" % sSTG)
        a("s_xor_b32 s%d, s%d, 1" % (sT0, sKW)); a("s_mul_i32 s%d, s%d, %d" % (sT0, sT0, STG_W)); a("s_add_u32 s%d, s%d, %d" % (sT0, sT0, L_STG))
        a("v_lshl_add_u32 v19, v1, 4, s%d" % sT0)
        a("v_and_b32 v10, v6, v7"); a("v_and_b32 v10, s%d, v10" % sHF)
        a("v_cmp_ne_u32 s[16:17], 0, v10")
        a("v_lshrrev_b32 v10, 1, v6"); a("v_lshlrev_b32 v10, 9, v10")
        a("v_lshl_add_u32 v10, v7, 4, v10")
        a("v_and_b32 v11, 1, v6"); a("v_lshl_add_u32 v10, v11, 3, v10")
        a("s_add_u32 s%d, s%d, %d" % (sT0, sCVB, 4088 - 1024 - 256))
        a("s_lshl_b32 s%d, s%d, 11" % (sT2, sHF))
        a("s_sub_u32 s%d, s%d, s%d" % (sT0, sT0, sT2))
        a("v_sub_u32 v115, s%d, v10" % sT0)
        a("v_and_b32 v118, 3, v1"); a("v_add_u32 v118, %d, v118" % (L_SYNC + Y_CNT))
        a("v_lshlrev_b32 v4, 4, v1")
        for r in range(60, 64): a("v_mov_b32 v%d, 0" % r)
        a("v_add_u32 v119, %d, v4" % O_U)
        a("v_bfe_u32 v10, v1, 2, 2")
        a("v_mul_u32_u24 v10, %d, v10" % CPS)
        a("v_and_b32 v11, 3, v1")
        a("v_lshl_add_u32 v10, v11, 4, v10")
        a("v_add_u32 v10, 4096, v10")
        a("v_cmp_gt_u32 vcc, 32, v1")
        a("v_cndmask_b32 v119, v10, v119, vcc")
        a("v_add_u32 v119, s%d, v119" % sCVB)
        a("v_sub_u32 v10, 3, v7"); a("v_and_b32 v10, 3, v10")
        a("v_mul_u32_u24 v171, %d, v10" % CPS)
        a("v_add_u32 v11, v7, v10")
        a("v_sub_u32 v11, %d, v11" % (2031 - 16 * 126))
        a("v_lshl_add_u32 v11, v6, 3, v11")
        a("v_lshl_add_u32 v171, v11, 1, v171")
        a("s_lshl_b32 s%d, s%d, 8" % (sT0, sHF))
        a("s_sub_u32 s%d, s%d, s%d" % (sT1, sCVB, sT0))
        a("v_add_u32 v171, s%d, v171" % sT1)
        a("v_lshlrev_b32 v175, 5, v7")
        a("v_lshl_add_u32 v175, v6, 4, v175")
        a("v_add_u32 v175, %d, v175" % O_U)
        a("v_add_u32 v175, s%d, v175" % sT1)
        a("s_add_u32 s%d, s%d, s%d" % (sT3, sCVB, sT2))
        a("v_add_u32 v168, s%d, v4" % sT3)
        a("s_and_b32 s%d, s%d, 2" % (sT0, sKW)); a("s_lshl_b32 s%d, s%d, 2" % (sT0, sT0)); a("s_add_u32 s%d, s%d, %d" % (sT0, sT0, L_SYNC + Y_KEXP))
        a("v_mov_b32 v9, s%d" % sT0)
    a.wait_vm("param")
    if TRIM: a("v_mov_b32 v2, v7"); a("v_mov_b32 v3, v6")
    if PFW == 0: pf_wd()
    sk_("param")
    a("s_mov_b32 exec_lo, s%d" % sPM); a("s_mov_b32 exec_hi, 0")
    a("buffer_load_dwordx2 v[116:117], v113, s[%d:%d], 0 offen sc1" % (SDBG, SDBG + 3))
    a("s_mov_b64 exec, -1")
    if "nokgen" in EXP: nonce_pub()
    for it in range(2):
        for r in P[it]: k("v_lshlrev_b32 v%d, 16, v%d" % (r, r))
    k("v_lshlrev_b32 v26, 16, v26")
    k("v_mul_f32 v26, %s, v26" % fbits(LOG2E))
    k("v_exp_f32 v26, v26")
    k("v_cvt_pk_bf16_f32 v26, v26, v26")
    k("v_lshlrev_b32 v26, 16, v26")
    WR = [28, 126]
    for it in range(2):
        p = P[it]
        k("v_mul_f32 v%d, v26, v%d" % (p[0], p[0])); k("v_mul_f32 v%d, v26, v%d" % (p[1], p[1]))
        k("v_mul_f32 v%d, v26, v%d" % (p[2], p[2])); k("v_mul_f32 v%d, v26, v%d" % (p[3], p[3]))
        w = WR[it]
        k("v_mul_f32 v%d, v%d, v%d" % (w, p[4], p[2])); k("v_fma_f32 v%d, -v%d, v%d, v%d" % (w, p[5], p[3], w))
        k("v_mul_f32 v%d, v%d, v%d" % (w + 1, p[4], p[3])); k("v_fma_f32 v%d, v%d, v%d, v%d" % (w + 1, p[5], p[2], w + 1))
    k("v_max_f32 v27, abs(v28), abs(v29)")
    k("v_max3_f32 v27, abs(v126), abs(v127), v27")
    for sh in (1, 2, 4, 8):
        k("v_max_f32_dpp v27, v27, v27 row_shr:%d row_mask:0xf bank_mask:0xf" % sh)
    k("v_max_f32_dpp v27, v27, v27 row_bcast:15 row_mask:0xa bank_mask:0xf")
    k("v_max_f32_dpp v27, v27, v27 row_bcast:31 row_mask:0xc bank_mask:0xf")
    k("v_readlane_b32 s%d, v27, 63" % sINV)
    k("s_lshr_b32 s%d, s%d, 23" % (sINV, sINV))
    if TRIM: k("s_add_u32 s%d, s%d, 1" % (sINV, sINV))
    else:
        k("s_sub_u32 s%d, 254, s%d" % (sSC, sINV))
        k("s_lshl_b32 s%d, s%d, 23" % (sSC, sSC))
    k("v_mov_b32 v10, s%d" % sINV)
    k("s_lshl_b32 s%d, s%d, 2" % (sT1, sKW))
    k("s_add_u32 s%d, s%d, %d" % (sT1, sT1, L_SYNC + Y_KEXP))
    k("v_mov_b32 v11, s%d" % sT1)
    k("ds_write_b32 v11, v10")
    def wscale():
        for w in WR:
            k("v_mul_f32 v%d, s%d, v%d" % (w, sSC, w)); k("v_mul_f32 v%d, s%d, v%d" % (w + 1, sSC, w + 1))
    def common_scale():
        l1, l2, l3 = L("KS"), L("KS"), L("KS")
        a("s_mov_b32 s%d, %d" % (sCNT, SPIN))
        a("s_waitcnt lgkmcnt(15)")
        a("s_branch %s" % l3)
        a.label(l1)
        a("ds_read_b64 v[10:11], v9")
        a("s_waitcnt lgkmcnt(0)")
        a.label(l3)
        a("v_readfirstlane_b32 s%d, v10" % sT0); a("v_readfirstlane_b32 s%d, v11" % sT1)
        a("s_min_u32 s%d, s%d, s%d" % (sSC, sT0, sT1))
        a("s_cmp_lg_u32 s%d, 0" % sSC)
        a("s_cbranch_scc1 %s" % l2)
        a("s_sub_u32 s%d, s%d, 1" % (sCNT, sCNT)); a("s_cmp_lg_u32 s%d, 0" % sCNT)
        a("s_cbranch_scc1 %s" % l1)
        a.label(l2)
        a("s_max_u32 s%d, s%d, s%d" % (sINV, sT0, sT1))
        a("s_sub_u32 s%d, 255, s%d" % (sSC, sINV)); a("s_lshl_b32 s%d, s%d, 23" % (sSC, sSC))
        a("s_sub_u32 s%d, s%d, 1" % (sINV, sINV)); a("s_lshl_b32 s%d, s%d, 23" % (sINV, sINV))
        wscale()
    if not TRIM: wscale()
    k("s_mov_b32 m0, s%d" % sSTG)
    E1, E8, E256, E2, E4, E16 = 30, 32, 34, 36, 38, 40
    tmpi = [0]
    def cmul(d, x, y):
        t = 42 + (tmpi[0] & 3); tmpi[0] += 1
        assert d != y
        k("v_mul_f32 v%d, v%d, v%d" % (t, x, y + 1))
        k("v_mul_f32 v%d, v%d, v%d" % (d, x, y))
        k("v_fma_f32 v%d, -v%d, v%d, v%d" % (d, x + 1, y + 1, d))
        k("v_fma_f32 v%d, v%d, v%d, v%d" % (d + 1, x + 1, y, t))
    PK = [46, 47, 48, 49]; pki = [0]
    def put(row, r, negim=False):
        p = PK[pki[0] & 3]; pki[0] += 1
        k("v_cvt_pk_f16_f32 v%d, v%d, %sv%d" % (p, r, "-" if negim else "", r + 1))
        if "nokw" in EXP or ("halfkw" in EXP and (pki[0] & 1)): k("; skip"); return
        k("ds_write_addtid_b32 v%d offset:%d" % (p, row * 272))
    YF = [64, 80]; XFB = 96
    for it in range(2 if "nokgen" not in EXP else 0):
        are, aim = P[it][0], P[it][1]
        if it == 1 and PFW == 1: pf_wd()
        X0 = WR[it]
        def cexp(d, Lx):
            k("v_mul_f32 v16, %s, v%d" % (fbits(Lx * LOG2E), are))
            k("v_mul_f32 v17, %s, v%d" % (fbits(Lx / (2 * math.pi)), aim))
            k("v_exp_f32 v16, v16")
            k("v_fract_f32 v17, v17")
            k("v_cos_f32 v%d, v17" % d)
            k("v_sin_f32 v%d, v17" % (d + 1))
            k("v_mul_f32 v%d, v16, v%d" % (d, d))
            k("v_mul_f32 v%d, v16, v%d" % (d + 1, d + 1))
        cexp(E8, 8); cexp(E1, 1); cexp(E256, 256)
        cmul(E16, E8, E8); cmul(E2, E1, E1); cmul(E4, E2, E2)
        Ya, Yb = 50, 52
        k("v_mov_b32 v50, 1.0"); k("v_mov_b32 v51, 0")
        put(0, Ya); put(1, E8)
        cmul(Yb, E8, E16)
        put(2, E16); put(3, Yb)
        cmul(Ya, E16, E16)
        for j in range(4, 32, 2):
            cmul(Yb, Yb, E16)
            put(j & 15, Ya); put((j + 1) & 15, Yb)
            if j + 2 < 32: cmul(Ya, Ya, E16)
            if TRIM and it == 0 and j == ENV("KSJ", 12): k("ds_read_b64 v[10:11], v9")
            if j == 14:
                for ks in range(4): k("ds_read_b128 %s, v5 offset:%d" % (vr(YF[0] + 4 * ks, 4), ks * 64))
        for ks in range(4): k("ds_read_b128 %s, v5 offset:%d" % (vr(YF[1] + 4 * ks, 4), ks * 64))
        Xa, Xb, Xc = 54, 56, 58
        if it == 0 and TRIM: common_scale()
        if it == 0: nonce_pub()
        put(0, X0, True)
        cmul(Xa, X0, E1); cmul(Xb, X0, E256)
        put(1, Xa, True); put(8, Xb, True)
        cmul(Xc, Xb, E2)
        for r in range(2, 8):
            cmul(Xa, Xa, E1); put(r, Xa, True)
            if r <= 5:
                put(9 + (r - 2), Xc, True)
                if r < 5: cmul(Xc, Xc, E2)
        def xtile(t):
            for ks in range(4): k("ds_read_b128 %s, v%d offset:%d" % (vr(XFB + 4 * ks, 4), XA[t], ks * 64))
        def xmfma(t):
            for ks in range(4):
                for yt in range(2):
                    k("v_mfma_f32_16x16x32_f16 %s, %s, %s, %s" % (vr(D(t, yt), 4), vr(XFB + 4 * ks, 4), vr(YF[yt] + 4 * ks, 4), "0" if TRIM and it == 0 and ks == 0 else vr(D(t, yt), 4)))
        xtile(0)
        for b in range(2):
            cmul(Xb, Xb, E256); put(3 * b, Xb, True)
            cmul(Xc, Xb, E4); put(3 * b + 1, Xc, True)
            cmul(Xa, Xb, E8); put(3 * b + 2, Xa, True)
        k("s_waitcnt lgkmcnt(6)")
        xmfma(0)
        xtile(1)
        for b in range(4):
            cmul(Xb, Xb, E256); put(6 + 2 * b, Xb, True)
            cmul(Xa, Xb, E8); put(7 + 2 * b, Xa, True)
        k("s_waitcnt lgkmcnt(8)")
        xmfma(1)
        for t in (2, 3):
            xtile(t)
            k("s_waitcnt lgkmcnt(0)")
            xmfma(t)
    if ENV("VERB", 0): print("kgen instrs", kc[0])
    if "nokgen" in EXP:
        for kk_ in sorted(hooks): hooks[kk_]()
        hooks.clear()
    assert not hooks
    sk_("kgen")
    a("s_setprio %d" % ENV("XPRIO", 2))
    u_poll()
    if TRIM:
        x1, x2 = L("X"), L("X")
        a("s_cmp_lg_u32 s%d, 0" % sHF)
        a("s_cbranch_scc1 %s" % x1)
        a.begin_opt()
        for i in range(4): a("ds_write_b128 v18, %s offset:%d" % (vr(144 + 4 * i, 4), i * 1024))
        setf(Y_KX)
        waitp(Y_KX)
        for i in range(4): a("ds_read_b128 %s, v19 offset:%d" % (vr(144 + 4 * i, 4), i * 1024))
        a("s_branch %s" % x2)
        a.end_opt()
        a.label(x1)
        a.begin_opt()
        for i in range(4): a("ds_write_b128 v18, %s offset:%d" % (vr(128 + 4 * i, 4), i * 1024))
        setf(Y_KX)
        waitp(Y_KX)
        for i in range(4): a("ds_read_b128 %s, v19 offset:%d" % (vr(128 + 4 * i, 4), i * 1024))
        a.end_opt()
        a.label(x2)
        a("ds_read_u8 v164, v118 offset:%d" % Y_RD)
        a("s_lshl_b32 s%d, s%d, 11" % (sT2, sHF))
        a("s_add_u32 s%d, s%d, s%d" % (sT3, sCVB, sT2))
        for i in range(4):
            b = 128 + 4 * i
            a("s_waitcnt lgkmcnt(%d)" % (4 - i))
            for e in range(4): a("v_add_f32 v%d, v%d, v%d" % (b + e, b + e, b + 16 + e))
            a("v_cndmask_b32 v%d, v%d, v%d, s[16:17]" % (b, b, b + 1))
            a("v_cvt_pk_f16_f32 v%d, v%d, v%d" % (64 + 2 * i, b + 3, b + 2))
            a("v_cvt_pk_f16_f32 v%d, v%d, v%d" % (65 + 2 * i, b + 1, b))
        xs = L("XS")
        a("s_waitcnt lgkmcnt(0)")
        a("v_cmp_gt_u32 vcc, 10, v164")
        a("s_cbranch_vccz %s" % xs)
        a.begin_opt()
        spin_lds(118, 164, 10, slp=4, off=Y_RD)
        a.end_opt()
        a.label(xs)
        for tl in range(2):
            for yt in range(2):
                a("ds_write_b64 v115, %s offset:%d" % (vr(64 + 4 * tl + 2 * yt, 2), (1 - tl) * 1024 + (1 - yt) * 256))
        a("s_setprio %d" % int(os.environ.get("CPRIO", "2")))
        a("s_cmp_lg_u32 s%d, 0" % sHF)
        a("s_cselect_b32 exec_lo, 0, 0x3fffffff"); a("s_cselect_b32 exec_hi, 0, 0xffff")
        a("ds_write_b128 v119, v[60:63]")
        setf(Y_C0)
        a("v_mov_b32 v5, v168")
    else:
        a("v_lshl_add_u32 v18, v1, 4, s%d" % sSTG)
        a("s_xor_b32 s%d, s%d, 1" % (sT0, sKW))
        a("s_mul_i32 s%d, s%d, %d" % (sT0, sT0, STG_W))
        a("s_add_u32 s%d, s%d, %d" % (sT0, sT0, L_STG))
        a("v_lshl_add_u32 v19, v1, 4, s%d" % sT0)
        x1, x2 = L("X"), L("X")
        a("s_cmp_lg_u32 s%d, 0" % sHF)
        a("s_cbranch_scc1 %s" % x1)
        a.begin_opt()
        for i in range(4): a("ds_write_b128 v18, %s offset:%d" % (vr(144 + 4 * i, 4), i * 1024))
        a("s_branch %s" % x2)
        a.end_opt()
        a.label(x1)
        a.begin_opt()
        for i in range(4): a("ds_write_b128 v18, %s offset:%d" % (vr(128 + 4 * i, 4), i * 1024))
        for i in range(16): a("v_mov_b32 v%d, v%d" % (128 + i, 144 + i))
        a.end_opt()
        a.label(x2)
        setf(Y_KX)
        waitp(Y_KX)
        a("s_and_b32 s%d, s%d, 2" % (sT0, sKW))
        a("s_lshl_b32 s%d, s%d, 2" % (sT0, sT0))
        a("s_add_u32 s%d, s%d, %d" % (sT0, sT0, L_SYNC + Y_KEXP))
        a("v_mov_b32 v10, s%d" % sT0)
        a("ds_read_b64 v[10:11], v10")
        for i in range(4): a("ds_read_b128 %s, v19 offset:%d" % (vr(144 + 4 * i, 4), i * 1024))
        a("s_waitcnt lgkmcnt(4)")
        a("v_max_u32 v16, v10, v11")
        a("v_add_u32 v17, v10, v11"); a("v_subrev_u32 v17, s%d, v17" % sINV)
        def fac(dst, esrc):
            a("v_sub_u32 v%d, %s, v16" % (dst, esrc))
            a("v_add_u32 v%d, 127, v%d" % (dst, dst))
            a("v_max_i32 v%d, 0, v%d" % (dst, dst))
            a("v_lshlrev_b32 v%d, 23, v%d" % (dst, dst))
        fac(20, "s%d" % sINV); fac(22, "v17")
        a("v_lshlrev_b32 v9, 23, v16")
        a("s_waitcnt lgkmcnt(0)")
        for i in range(16):
            a("v_mul_f32 v%d, v20, v%d" % (128 + i, 128 + i))
            a("v_fmac_f32 v%d, v22, v%d" % (128 + i, 144 + i))
        a("v_and_b32 v10, v6, v7"); a("v_and_b32 v10, s%d, v10" % sHF)
        a("v_cmp_ne_u32 vcc, 0, v10")
        for i in range(4): a("v_cndmask_b32 v%d, v%d, v%d, vcc" % (128 + 4 * i, 128 + 4 * i, 129 + 4 * i))
        a("v_lshrrev_b32 v10, 1, v6"); a("v_lshlrev_b32 v10, 9, v10")
        a("v_lshl_add_u32 v10, v7, 4, v10")
        a("v_and_b32 v11, 1, v6"); a("v_lshl_add_u32 v10, v11, 3, v10")
        a("s_add_u32 s%d, s%d, %d" % (sT0, sCVB, 4088 - 1024 - 256))
        a("s_lshl_b32 s%d, s%d, 11" % (sT2, sHF))
        a("s_sub_u32 s%d, s%d, s%d" % (sT0, sT0, sT2))
        a("v_sub_u32 v10, s%d, v10" % sT0)
        for tl in range(2):
            for yt in range(2):
                b = 128 + 8 * tl + 4 * yt
                a("v_cvt_pk_f16_f32 v%d, v%d, v%d" % (64 + 4 * tl + 2 * yt, b + 3, b + 2))
                a("v_cvt_pk_f16_f32 v%d, v%d, v%d" % (65 + 4 * tl + 2 * yt, b + 1, b))
        a("v_and_b32 v11, 3, v1"); a("v_add_u32 v11, %d, v11" % (L_SYNC + Y_CNT))
        spin_lds(11, 164, 10, slp=4, off=Y_RD)
        for tl in range(2):
            for yt in range(2):
                a("ds_write_b64 v10, %s offset:%d" % (vr(64 + 4 * tl + 2 * yt, 2), (1 - tl) * 1024 + (1 - yt) * 256))
        if "dbgk" in EXP:
            a("s_mul_i32 s%d, s%d, %d" % (sT0, sCH, KSTRIDE)); a("s_sub_u32 s%d, s%d, s%d" % (sT0, sT0, sCVB)); a("s_add_u32 s%d, s%d, %d" % (sT0, sT0, WS_KREV))
            for tl in range(2):
                for yt in range(2):
                    a("buffer_store_dwordx2 %s, v10, s[%d:%d], s%d offen offset:%d" % (vr(64 + 4 * tl + 2 * yt, 2), SWS, SWS + 3, sT0, (1 - tl) * 1024 + (1 - yt) * 256))
            a("s_lshl_b32 s%d, s%d, 2" % (sT0, sCH)); a("s_add_u32 s%d, s%d, %d" % (sT0, sT0, WS_KSC)); a("v_mov_b32 v11, s%d" % sT0)
            a("buffer_store_dword v9, v11, s[%d:%d], 0 offen" % (SWS, SWS + 3))
        a("s_setprio %d" % int(os.environ.get("CPRIO", "2")))
        a("v_mov_b32 v2, v7"); a("v_mov_b32 v3, v6")
        a("v_lshlrev_b32 v4, 4, v1")
        a("v_mov_b32 v12, 0"); a("v_mov_b32 v13, 0"); a("v_mov_b32 v14, 0"); a("v_mov_b32 v15, 0")
        a("v_add_u32 v5, %d, v4" % O_U)
        a("v_bfe_u32 v6, v1, 2, 2")
        a("v_mul_u32_u24 v6, %d, v6" % CPS)
        a("v_and_b32 v7, 3, v1")
        a("v_lshl_add_u32 v6, v7, 4, v6")
        a("v_add_u32 v6, 4096, v6")
        a("v_cmp_gt_u32 vcc, 32, v1")
        a("v_cndmask_b32 v5, v6, v5, vcc")
        a("v_add_u32 v5, s%d, v5" % sCVB)
        nz = L("NZ")
        a("s_cmp_lg_u32 s%d, 0" % sHF)
        a("s_cbranch_scc1 %s" % nz)
        a.begin_opt()
        a("s_mov_b32 exec_lo, 0x3fffffff"); a("s_mov_b32 exec_hi, 0xffff")
        a("ds_write_b128 v5, v[12:15]")
        a("s_mov_b64 exec, -1")
        a.end_opt()
        a.label(nz)
        setf(Y_C0)
        a("v_sub_u32 v5, 3, v2"); a("v_and_b32 v5, 3, v5")
        a("v_mul_u32_u24 v6, %d, v5" % CPS)
        a("v_add_u32 v7, v2, v5")
        a("v_sub_u32 v7, %d, v7" % (2031 - 16 * 126))
        a("v_lshl_add_u32 v7, v3, 3, v7")
        a("v_lshl_add_u32 v6, v7, 1, v6")
        a("s_lshl_b32 s%d, s%d, 8" % (sT0, sHF))
        a("s_sub_u32 s%d, s%d, s%d" % (sT1, sCVB, sT0))
        a("v_add_u32 v6, s%d, v6" % sT1)
        a("v_lshlrev_b32 v7, 5, v2")
        a("v_lshl_add_u32 v7, v3, 4, v7")
        a("v_add_u32 v7, %d, v7" % O_U)
        a("v_add_u32 v7, s%d, v7" % sT1)
        a("s_add_u32 s%d, s%d, s%d" % (sT3, sCVB, sT2))
        a("v_add_u32 v5, s%d, v4" % sT3)
    lq, lq2, lq3 = L("PB"), L("PB"), L("PB")
    a("s_cmp_eq_u32 s%d, 0" % sPM)
    a("s_cbranch_scc1 %s" % lq3)
    a.begin_opt()
    a("s_mov_b32 s%d, %d" % (sOX, SPIN))
    a.label(lq)
    a("s_waitcnt vmcnt(0)")
    a("v_cmp_ne_u32 vcc, s%d, v169" % sNON)
    a("s_cmp_eq_u32 vcc_lo, 0")
    a("s_cbranch_scc1 %s" % lq2)
    a("s_sleep %d" % int(os.environ.get("PSL", "20")))
    a("s_mov_b32 exec_hi, 0")
    a("buffer_load_dword v169, v112, s[%d:%d], 0 offen sc1" % (SWS, SWS + 3))
    a("s_mov_b64 exec, -1")
    a("s_sub_u32 s%d, s%d, 1" % (sOX, sOX)); a("s_cmp_lg_u32 s%d, 0" % sOX)
    a("s_cbranch_scc1 %s" % lq)
    a.label(lq2)
    u_dma()
    a.end_opt()
    a.label(lq3)
    sk_("rdyB")
    waitp(Y_C0)
    for it in range(2):
        b = 32 + 8 * it
        a("ds_read_b128 %s, v5 offset:%d" % (vr(b, 4), it * 1024))
        a("ds_read_b64 %s, v5 offset:%d" % (vr(b + 4, 2), it * 1024 + 16))
    for it in range(2):
        b = 32 + 8 * it
        a("s_waitcnt lgkmcnt(%d)" % (2 if it == 0 else 3))
        d = [b + i for i in range(6)]
        c1, c2, c3 = 64 + 12 * it, 68 + 12 * it, 72 + 12 * it
        for i in range(4):
            a("v_alignbit_b32 v%d, v%d, v%d, 16" % (c1 + i, d[i + 1], d[i]))
            a("v_mov_b32 v%d, v%d" % (c2 + i, d[i + 1]))
            a("v_alignbit_b32 v%d, v%d, v%d, 16" % (c3 + i, d[i + 2], d[i + 1]))
        a("ds_write_b128 v5, %s offset:%d" % (vr(c1, 4), CPS + it * 1024))
        a("ds_write_b128 v5, %s offset:%d" % (vr(c2, 4), 2 * CPS + it * 1024))
        a("ds_write_b128 v5, %s offset:%d" % (vr(c3, 4), 3 * CPS + it * 1024))
    sk_("copies")
    CA = 16; G = 64; F = 96
    if not TRIM:
        for r in range(CA, CA + 32): a("v_mov_b32 v%d, 0" % r)
    setf(Y_BL)
    spin_lds(114, 164, 1, width="b32", slp=1, off=Y_U - Y_RDA)
    a("ds_read_b64 v[166:167], v114 offset:%d" % (Y_NON - Y_RDA))
    waitp(Y_BL)
    sk_("built")
    if YP == 3 and "nopp" not in EXP:
        a("v_mov_b32 v174, v112")
        a("s_mov_b32 exec_hi, 0")
        a("buffer_load_dword v169, v174, s[%d:%d], 0 offen offset:128 sc1" % (SWS, SWS + 3))
        a("s_mov_b64 exec, -1")
    a("s_setprio %d" % ENV("MPRIO", 1))
    def rg(ri, q):
        o = 32 * (126 - 16 * q - 2 * ri)
        a("ds_read_b64 %s, v%d offset:%d" % (vr(G + 4 * q, 2), GB, o))
        a("ds_read_b64 %s, v%d offset:%d" % (vr(G + 4 * q + 2, 2), GB, o + 8))
    def rf(ri, j):
        a("ds_read_b128 %s, v%d offset:%d" % (vr(F + 4 * j, 4), FB, 32 * (16 * j - 2 * ri + 14)))
    side = []
    S = side.append
    S("v_lshlrev_b32 v8, 16, v160")
    XW, XO = 128, 136
    for i in range(4):
        for pr in range(2):
            xw = XW + 2 * i + pr; o = XO + 4 * i + 2 * pr
            S("v_cvt_f32_f16 v%d, v%d" % (o, xw))
            S("v_lshrrev_b32 v%d, 16, v%d" % (o + 1, xw)); S("v_cvt_f32_f16 v%d, v%d" % (o + 1, o + 1))
            S("v_mul_f32 v%d, v8, v%d" % (o, o)); S("v_mul_f32 v%d, v8, v%d" % (o + 1, o + 1))
            S("v_cvt_pk_bf16_f32 v%d, v%d, v%d" % (o, o, o + 1))
            S("v_and_b32 v%d, 0xffff0000, v%d" % (o + 1, o)); S("v_lshlrev_b32 v%d, 16, v%d" % (o, o))
    S("v_lshl_add_u32 v5, v1, 4, s%d" % sSTG)
    S("s_xor_b32 s%d, s%d, 1" % (sT0, sKW))
    S("s_mul_i32 s%d, s%d, %d" % (sT0, sT0, STG_W))
    S("s_add_u32 s%d, s%d, %d" % (sT0, sT0, L_STG))
    S("v_lshl_add_u32 v152, v1, 4, s%d" % sT0)
    if AL == 2:
        S("v_and_b32 v13, 1, v3"); S("v_lshrrev_b32 v14, 2, v2"); S("v_lshl_add_u32 v13, v13, 2, v14"); S("v_mul_u32_u24 v13, %d, v13" % TS)
        S("s_mul_i32 s%d, s%d, %d" % (sT2, sHF, 16 * TS))
    else:
        S("v_and_b32 v13, 1, v3"); S("v_lshlrev_b32 v13, 9, v13")
        S("v_lshrrev_b32 v14, 2, v2"); S("v_lshl_add_u32 v13, v14, 7, v13")
    S("v_lshrrev_b32 v14, 1, v3"); S("v_lshl_add_u32 v13, v14, 6, v13")
    S("v_and_b32 v14, 3, v2"); S("v_lshl_add_u32 v13, v14, 4, v13")
    S("v_add_u32 v13, s%d, v13" % sT2)
    S("s_and_b32 s%d, s%d, 0xfffe" % (sT0, sCH)); S("s_add_u32 s%d, s%d, s%d" % (sT0, sT0, sHF)); S("s_lshl_b32 s%d, s%d, 8" % (sT0, sT0))
    S("s_and_b32 s%d, s%d, 1" % (sT1, sCH)); S("s_lshl_b32 s%d, s%d, 3" % (sT1, sT1))
    S("s_add_u32 s%d, s%d, s%d" % (sT0, sT0, sT1))
    S("s_add_u32 s%d, s%d, %d" % (sT0, sT0, WS_CF))
    S("v_mov_b32 v14, s%d" % sT0)
    S("v_readfirstlane_b32 s%d, v166" % sNON); S("v_readfirstlane_b32 s%d, v167" % (sNON + 1))
    S("s_lshl_b32 s%d, s%d, 14" % (sT0, sCT))
    S("s_lshl_b32 s%d, s%d, 12" % (sT1, sKW))
    S("s_add_u32 s%d, s%d, s%d" % (sT0, sT0, sT1))
    S("s_lshr_b32 s%d, s%d, 4" % (sT1, sRT2)); S("s_lshl_b32 s%d, s%d, 8" % (sT1, sT1))
    S("s_add_u32 s%d, s%d, s%d" % (sT0, sT0, sT1))
    S("s_add_u32 s%d, s%d, %d" % (sT0, sT0, WS_CF))
    S("v_lshrrev_b32 v153, 1, v2"); S("v_lshl_add_u32 v153, v153, 9, s%d" % sT0)
    S("v_and_b32 v154, 1, v2"); S("v_lshl_add_u32 v153, v154, 3, v153")
    S("s_lshl_b32 s%d, s%d, 4" % (sT0, sKW))
    S("v_lshrrev_b32 v154, 3, v1")
    S("v_add_u32 v154, s%d, v154" % sT0)
    if AL == 2:
        S("v_mul_u32_u24 v154, 896, v154")
        S("v_and_b32 v155, 7, v1")
        S("v_lshl_add_u32 v154, v155, 4, v154")
        S("s_mul_i32 s%d, s%d, %d" % (sT2, sRT2, TS)); S("s_lshl_b32 s%d, s%d, 7" % (sT0, sCT)); S("s_add_u32 s%d, s%d, s%d" % (sT2, sT2, sT0))
        S("s_add_u32 s%d, s%d, %d" % (sT3, sT2, 8 * 896))
        S("s_and_b32 s%d, s%d, 63" % (sT0, sCH)); S("s_mul_i32 s%d, s%d, 7" % (sT0, sT0)); S("s_lshr_b32 s%d, s%d, 6" % (sOW, sCH))
        S("s_add_u32 s%d, s%d, s%d" % (sT0, sT0, sOW)); S("s_lshl_b32 s%d, s%d, 7" % (sT0, sT0))
        S("s_add_u32 s%d, s%d, %d" % (sOW, sT0, 8 * TS))
    else:
        S("s_lshl_b32 s%d, s%d, 6" % (sT0, sCT))
        S("v_add_u32 v154, s%d, v154" % sT0)
        S("v_mul_u32_u24 v154, %d, v154" % YST)
        S("v_and_b32 v155, 7, v1")
        S("v_lshl_add_u32 v154, v155, 4, v154")
        S("s_lshl_b32 s%d, s%d, 7" % (sT2, sRT2))
        S("s_add_u32 s%d, s%d, %d" % (sT2, sT2, WS_YAT))
        S("s_add_u32 s%d, s%d, %d" % (sT3, sT2, 8 * YST))
        S("s_mul_i32 s%d, s%d, %d" % (sT0, sCH, YST))
        S("s_add_u32 s%d, s%d, %d" % (sT0, sT0, WS_YAT))
    S("v_add_u32 v165, %d, v162" % Y_CX)
    if NSTA:
        S("s_lshl_b32 s%d, s%d, 13" % (sOX, sHF)); S("s_add_u32 s%d, s%d, s%d" % (sOX, sOX, sCVB)); S("v_lshl_add_u32 v157, v1, 4, s%d" % sOX)
        if SP0 < 0:
            side2 = []
            for n in range(4 * NSTA): side2.append(n)
    def copy_part(part):
        for n in range(4 * NSTA):
            s_ = 14 - NSTA + n // 4; q = n % 4
            if (s_ >= 12) != (part == 1): continue
            if s_ >= 12: ad, of = 157, (s_ - 12) * 4096
            elif WDS[s_ % 6] >= 65536: ad, of = 158, WDS[s_ % 6] - 65536
            else: ad, of = 156, WDS[s_ % 6]
            a("ds_write_b128 v%d, %s offset:%d" % (ad, vr(176 + 4 * n, 4), of + q * 1024))
            cw = ENV("CW%d" % part, part + 1)
            if cw >= 100: a("s_sleep %d" % (cw - 100))
            elif cw:
                for _ in range(cw): a("s_nop 7")
        a("v_mov_b32 v159, %d" % (part + 1))
        a("s_mov_b64 exec, 1")
        a("ds_write_b8 v161, v159 offset:%d" % Y_WS)
        a("s_mov_b64 exec, -1")
    def copy_out():
        l = L("CA")
        a("s_cmp_lg_u32 s%d, 0" % sLD)
        a("s_cbranch_scc1 %s" % l)
        copy_part(0)
        a.label(l)
        copy_part(1)
    def copy_try():
        l = L("CA")
        a("v_cmp_gt_u32 vcc, 1, v164")
        a("s_cmp_lg_u32 s%d, 0" % sLD)
        a("s_cbranch_scc1 %s" % l)
        a("s_cbranch_vccnz %s" % l)
        a.begin_opt()
        a("s_waitcnt vmcnt(0)")
        a("s_mov_b32 s%d, 1" % sLD)
        copy_part(0)
        a.end_opt()
        a.label(l)
    CTRY = [int(x) for x in os.environ.get("CTRY", "9").split(",")]
    a("s_mov_b32 s%d, 0" % sLD)
    a("s_lshl_b32 s%d, s%d, 12" % (sOX, sKW)); a("v_lshl_add_u32 v156, v1, 4, s%d" % sOX); a("v_add_u32 v158, 65536, v156")
    a("v_lshlrev_b32 v13, 5, v2")
    a("v_lshl_add_u32 v13, v3, 3, v13")
    a("s_add_u32 s%d, s%d, %d" % (sT1, sT3, O_U + 480))
    a("v_add_u32 v14, s%d, v13" % sT1)
    for i in range(4): a("ds_read_b64 %s, v14 offset:%d" % (vr(XW + 2 * i, 2), i * 512))
    for q in range(8): rg(0, q); rf(0, 7 - q)
    nm = 0
    if "noconv" in EXP:
        a("s_waitcnt lgkmcnt(0)")
        while side: a(side.pop(0))
    EC = ENV("EC", 0); ECR = ENV("ECR", 2); ECS = ENV("ECS", 5); ECN = ENV("ECN", 1)
    ecq = []
    def ec_start():
        a("v_cmp_le_u32 s[86:87], 1, v164")
        a("v_mov_b32 v159, 1")
        a("s_and_b32 s%d, s86, 1" % sLD)
        a("s_waitcnt vmcnt(%d)" % (1 if YP == 3 else 0))
        for n in range(0, 12, ECN):
            ecq.append(["s_mov_b64 exec, s[86:87]"])
            for n_ in range(n, n + ECN):
                s_ = 9 + n_ // 4; hi = WDS[s_ % 6] >= 65536
                ecq[-1].append("ds_write_b128 v%d, %s offset:%d" % ((156, 158)[hi], vr(176 + 4 * n_, 4), WDS[s_ % 6] - 65536 * hi + (n_ % 4) * 1024))
            if n + ECN >= 12: ecq[-1] += ["s_mov_b32 exec_lo, s%d" % sLD, "s_mov_b32 exec_hi, 0", "ds_write_b8 v161, v159 offset:%d" % Y_WS]
            ecq[-1].append("s_mov_b64 exec, -1")
    for ri in range(4 if "noconv" not in EXP else 0):
        for q in range(8):
            for m in range(7, q - 1, -1):
                if q == 0:
                    a("s_waitcnt lgkmcnt(%d)" % min(15, 3 * m))
                a("v_mfma_f32_16x16x32_f16 %s, %s, %s, %s" % (vr(CA + 4 * m, 4), vr(G + 4 * q, 4), vr(F + 4 * (m - q), 4), "0" if TRIM and ri == 0 and q == 0 else vr(CA + 4 * m, 4)))
                nm += 1
                if NSTA and SP0 < 0 and side2 and nm % ENV("SPM", 4) == 0: st_ld(side2.pop(0))
                if nm > 8 and side:
                    a(side.pop(0))
                    while side and side[0].startswith("s_"): a(side.pop(0))
                if ecq and nm % ECS == 0:
                    for x in ecq.pop(0): a(x)
            if q == 0 and ri in CTRY: copy_try()
            if EC and q == 0 and ri == ECR: ec_start()
            if q == 7 and (ri + 1 in CTRY or (EC and ri + 1 == ECR)): a("ds_read_u8 v164, v161 offset:%d" % Y_TR)
            if ri + 1 < 4: rg(ri + 1, q); rf(ri + 1, 7 - q)
    assert not side and not ecq
    sk_("mfma")
    a("s_setprio %d" % ENV("PPRIO", 3))
    x1, x2 = L("X"), L("X")
    a("s_cmp_lg_u32 s%d, 0" % sHF)
    a("s_cbranch_scc1 %s" % x1)
    a.begin_opt()
    for i in range(4): a("ds_write_b128 v5, %s offset:%d" % (vr(CA + 16 + 4 * i, 4), i * 1024))
    a("s_mov_b64 exec, 1")
    a("ds_write_b8 v161, v163 offset:%d" % Y_CX)
    a("s_mov_b64 exec, -1")
    a("s_branch %s" % x2)
    a.end_opt()
    a.label(x1)
    a.begin_opt()
    for i in range(4): a("ds_write_b128 v5, %s offset:%d" % (vr(CA + 4 * i, 4), i * 1024))
    a("s_mov_b64 exec, 1")
    a("ds_write_b8 v161, v163 offset:%d" % Y_CX)
    a("s_mov_b64 exec, -1")
    for i in range(16): a("v_mov_b32 v%d, v%d" % (CA + i, CA + 16 + i))
    a.end_opt()
    a.label(x2)
    if YP == 3 and "nopp" not in EXP:
        lq, lq2 = L("PP"), L("PP")
        a("s_mov_b32 s%d, %d" % (sOX, SPIN))
        a.label(lq)
        a("s_waitcnt vmcnt(0)")
        a("v_cmp_ne_u32 vcc, s%d, v169" % sNON)
        a("s_cmp_eq_u32 vcc_lo, 0")
        a("s_cbranch_scc1 %s" % lq2)
        a("s_sleep 4")
        a("s_mov_b32 exec_hi, 0")
        a("buffer_load_dword v169, v174, s[%d:%d], 0 offen offset:128 sc1" % (SWS, SWS + 3))
        a("s_mov_b64 exec, -1")
        a("s_sub_u32 s%d, s%d, 1" % (sOX, sOX)); a("s_cmp_lg_u32 s%d, 0" % sOX)
        a("s_cbranch_scc1 %s" % lq)
        a.label(lq2)
    spin_lds(165, 164, 1, slp=0)
    if "hx" in EXP: sk_("xch")
    for i in range(4): a("ds_read_b128 %s, v152 offset:%d" % (vr(CA + 16 + 4 * i, 4), i * 1024))
    for i in range(4):
        a("s_waitcnt lgkmcnt(%d)" % (3 - i))
        for pr in range(2):
            y = CA + 4 * i + 2 * pr; o = XO + 4 * i + 2 * pr
            a("v_add_f32 v%d, v%d, v%d" % (y, y, y + 16)); a("v_add_f32 v%d, v%d, v%d" % (y + 1, y + 1, y + 17))
            ks_ = "s%d" % sINV if TRIM else "v9"
            a("v_mul_f32 v%d, %s, v%d" % (y, ks_, y)); a("v_mul_f32 v%d, %s, v%d" % (y + 1, ks_, y + 1))
            a("v_cvt_pk_bf16_f32 v%d, v%d, v%d" % (y, y, y + 1))
            a("v_and_b32 v%d, 0xffff0000, v%d" % (y + 1, y)); a("v_lshlrev_b32 v%d, 16, v%d" % (y, y))
            a("v_add_f32 v%d, v%d, v%d" % (y, y, o)); a("v_add_f32 v%d, v%d, v%d" % (y + 1, y + 1, o + 1))
            a("v_cvt_pk_bf16_f32 v%d, v%d, v%d" % (72 + 2 * i + pr, y, y + 1))
        if i & 1:
            b = 72 + 4 * (i >> 1)
            a("v_permlane16_swap_b32 v%d, v%d" % (b, b + 2)); a("v_permlane16_swap_b32 v%d, v%d" % (b + 1, b + 3))
            if AL == 2: a("buffer_store_dwordx4 %s, v13, s[%d:%d], s%d offen sc1" % (vr(b, 4), SOUT, SOUT + 3, (sT0, sOW)[i >> 1]))
            else: a("buffer_store_dwordx4 %s, v13, s[%d:%d], s%d offen offset:%d %s" % (vr(b, 4), SWS, SWS + 3, sT0, (i >> 1) * 1024, os.environ.get("YSM", "sc1").replace("_", " ")))
    setf(Y_XR)
    if "hx" in EXP: sk_("yst")
    def cflag():
        if YP: return
        a("s_waitcnt vmcnt(0)")
        a("s_mov_b64 exec, 1")
        a("buffer_store_dwordx2 v[166:167], v14, s[%d:%d], 0 offen sc1" % (SWS, SWS + 3))
        a("s_mov_b64 exec, -1")
    def yld(m=True):
        if m: a("s_mov_b64 exec, s[84:85]")
        a("buffer_load_dwordx4 v[104:107], v154, s[%d:%d], s%d offen sc1" % (SWS, SWS + 3, sT2))
        if m: a("s_mov_b64 exec, s[86:87]")
        a("buffer_load_dwordx4 v[108:111], v154, s[%d:%d], s%d offen sc1" % (SWS, SWS + 3, sT3))
        if m: a("s_mov_b64 exec, -1")
    if EC:
        assert YP
        c1 = L("CO")
        a("s_setprio %d" % ENV("QPRIO", 0))
        a("s_cmp_lg_u32 s%d, 0" % sLD)
        a("s_cbranch_scc1 %s" % c1)
        a.begin_opt()
        spin_lds(161, 164, 1, slp=1, off=Y_TR)
        copy_part(0)
        a.end_opt()
        a.label(c1)
        sk_("flag")
        if ENV("CSA", 0): a("s_sleep %d" % ENV("CSA", 0))
        if ENV("YE", 1): yld(False)
        copy_part(1)
        lp, ld, le = L("CP"), L("CP"), L("CP")
        a("s_mov_b32 s%d, %d" % (sOX, SPIN))
        if ENV("YE", 1): a("s_branch %s" % le)
        else: a("s_mov_b64 s[84:85], -1"); a("s_mov_b64 s[86:87], -1")
        a.label(lp)
        yld()
        a.label(le)
        a("s_waitcnt vmcnt(0)")
        a("v_cmp_eq_u32 s[84:85], -1, v104")
        a("v_cmp_eq_u32 s[86:87], -1, v108")
        a("s_or_b64 vcc, s[84:85], s[86:87]")
        a("s_cbranch_scc0 %s" % ld)
        a("s_sleep %d" % int(os.environ.get("CSL", "8")))
        a("s_sub_u32 s%d, s%d, 1" % (sOX, sOX)); a("s_cmp_lg_u32 s%d, 0" % sOX)
        a("s_cbranch_scc1 %s" % lp)
        a.label(ld)
        sk_("polled")
        waitp(Y_XR)
        a("ds_write_b128 v5, v[104:107]")
        a("ds_write_b128 v5, v[108:111] offset:1024")
        setf(Y_YA)
        a("s_waitcnt lgkmcnt(0)")
        sk_("end")
        sk_.store(100)
        a("s_endpgm")
        return
    if ENV("COA", 2) == 1:
        cflag()
        sk_("flag")
        spin_lds(161, 164, 1, slp=1, off=Y_TR)
        copy_out()
    elif ENV("COA", 2) == 2:
        a("ds_read_u8 v164, v161 offset:%d" % Y_TR)
        a("s_waitcnt vmcnt(2) lgkmcnt(0)")
        c1 = L("CO")
        a("v_cmp_gt_u32 vcc, 1, v164")
        a("s_cbranch_vccnz %s" % c1)
        a.begin_opt()
        a("s_mov_b32 s%d, 1" % sLD)
        copy_part(0)
        a.end_opt()
        a.label(c1)
        cflag()
        sk_("flag")
        spin_lds(161, 164, 1, slp=1, off=Y_TR)
        copy_out()
    elif NSTA:
        c1, c2 = L("CO"), L("CO")
        a("ds_read_u8 v164, v161 offset:%d" % Y_TR)
        a("s_waitcnt vmcnt(2) lgkmcnt(0)")
        a("v_cmp_gt_u32 vcc, 1, v164")
        a("s_cbranch_vccnz %s" % c1)
        a.begin_opt()
        copy_out(); cflag()
        a("s_branch %s" % c2)
        a.end_opt()
        a.label(c1)
        a.begin_opt()
        cflag()
        spin_lds(161, 164, 1, slp=1, off=Y_TR)
        copy_out()
        a.end_opt()
        a.label(c2)
    else: cflag()
    if not ENV("COA", 2): sk_("flag")
    a("s_setprio 0")
    a("s_sleep %d" % int(os.environ.get("CSL0", "8")))
    lp, ld = L("CP"), L("CP")
    a("s_mov_b32 s%d, %d" % (sOX, SPIN))
    if YP:
        assert YST == 4096
        a("s_mov_b64 s[84:85], -1"); a("s_mov_b64 s[86:87], -1")
        a.label(lp)
        a("s_mov_b64 exec, s[84:85]")
        a("buffer_load_dwordx4 v[104:107], v154, s[%d:%d], s%d offen sc1" % (SWS, SWS + 3, sT2))
        a("s_mov_b64 exec, s[86:87]")
        a("buffer_load_dwordx4 v[108:111], v154, s[%d:%d], s%d offen sc1" % (SWS, SWS + 3, sT3))
        a("s_mov_b64 exec, -1")
        a("s_waitcnt vmcnt(0)")
        a("v_cmp_eq_u32 s[84:85], -1, v104")
        a("v_cmp_eq_u32 s[86:87], -1, v108")
        a("s_or_b64 vcc, s[84:85], s[86:87]")
        a("s_cbranch_scc0 %s" % ld)
        a("s_sleep %d" % int(os.environ.get("CSL", "8")))
        a("s_sub_u32 s%d, s%d, 1" % (sOX, sOX)); a("s_cmp_lg_u32 s%d, 0" % sOX)
        a("s_cbranch_scc1 %s" % lp)
        a.label(ld)
        sk_("polled")
        waitp(Y_XR)
        a("ds_write_b128 v5, v[104:107]")
        a("ds_write_b128 v5, v[108:111] offset:1024")
        setf(Y_YA)
        a("s_waitcnt lgkmcnt(0)")
        sk_("end")
        sk_.store(100)
        a("s_endpgm")
        return
    a.label(lp)
    a("s_mov_b64 exec, 0xffff")
    a("buffer_load_dwordx2 v[20:21], v153, s[%d:%d], 0 offen sc1" % (SWS, SWS + 3))
    a("s_waitcnt vmcnt(0)")
    a("v_cmp_ne_u64 vcc, s[%d:%d], v[20:21]" % (sNON, sNON + 1))
    a("s_mov_b64 exec, -1")
    a("s_cbranch_vccz %s" % ld)
    a("s_sleep %d" % int(os.environ.get("CSL", "8")))
    a("s_sub_u32 s%d, s%d, 1" % (sOX, sOX)); a("s_cmp_lg_u32 s%d, 0" % sOX)
    a("s_cbranch_scc1 %s" % lp)
    a.label(ld)
    sk_("polled")
    SY = SOUT if AL == 2 else SWS
    a("buffer_load_dwordx4 v[104:107], v154, s[%d:%d], s%d offen%s" % (SY, SY + 3, sT2, " sc1" if AL else ""))
    a("buffer_load_dwordx4 v[108:111], v154, s[%d:%d], s%d offen%s" % (SY, SY + 3, sT3, " sc1" if AL else ""))
    waitp(Y_XR)
    a("s_waitcnt vmcnt(0)")
    a("ds_write_b128 v5, v[104:107]")
    a("ds_write_b128 v5, v[108:111] offset:1024")
    setf(Y_YA)
    a("s_waitcnt lgkmcnt(0)")
    sk_("end")
    sk_.store(100)
    a("s_endpgm")

def producer(a, sp_, L, spin_lds):
    a.label("K_PROD")
    a.vmq = []
    a.nopkw = True
    if NF: a("s_memrealtime s[48:49]")
    XT_S = 912
    L_PC = 64 * XT_S
    a("v_lshrrev_b32 v2, 3, v1")
    a("v_and_b32 v3, 7, v1")
    a("s_lshr_b32 s%d, s2, 3" % sT1)
    a("s_bfe_u32 s%d, s2, 0x20001" % sT0); a("s_lshl_b32 s%d, s%d, 3" % (sR, sT0)); a("s_lshl_b32 s%d, s%d, 1" % (sT1, sT1))
    a("s_add_u32 s%d, s%d, s%d" % (sR, sR, sT1)); a("s_and_b32 s%d, s2, 1" % sT0); a("s_add_u32 s%d, s%d, s%d" % (sR, sR, sT0))
    if ENV("SWP", 1) == 1: a("s_xor_b32 s%d, s%d, 1" % (sT0, sT0))
    a("s_lshr_b32 s%d, s2, 1" % sF); a("s_min_u32 s%d, s%d, 13" % (sF, sF)); a("s_mul_i32 s%d, s%d, 14" % (sT0, sT0)); a("s_add_u32 s%d, s%d, s%d" % (sF, sF, sT0))
    a("s_lshl_b32 s%d, s%d, 3" % (sT0, sWV))
    a("v_add_u32 v4, s%d, v2" % sT0)
    a("s_lshl_b32 s%d, s%d, 6" % (sT1, sR))
    a("v_add_u32 v5, s%d, v4" % sT1)
    a("v_mul_u32_u24 v6, 896, v5")
    a("v_lshl_add_u32 v6, v3, 4, v6")
    a("s_waitcnt lgkmcnt(0)")
    srd(a, SX, 16, 2048 * 896)
    for i in range(7):
        a.vm("buffer_load_dwordx4 %s, v6, s[%d:%d], 0 offen offset:%d" % (vr(32 + 4 * i, 4), SX, SX + 3, i * 128), "x%d" % i)
    srd(a, SWS, 14, WS_SIZE)
    srd(a, SDBG, 12, 256)
    def poison():
        a("s_lshl_b32 s%d, s2, 3" % sT0); a("s_add_u32 s%d, s%d, s%d" % (sT0, sT0, sWV)); a("s_mul_i32 s%d, s%d, 7168" % (sT0, sT0))
        a("s_add_u32 s%d, s%d, %d" % (sT0, sT0, WS_YAT)); a("s_add_u32 s%d, s%d, 4096" % (sT1, sT0))
        a("v_lshlrev_b32 v140, 4, v1")
        for r in range(136, 140): a("v_mov_b32 v%d, -1" % r)
        for i in range(7):
            a.vm("buffer_store_dwordx4 v[136:139], v140, s[%d:%d], s%d offen offset:%d sc1" % (SWS, SWS + 3, (sT0, sT1)[i >> 2], (i & 3) * 1024), "poi")
    ln = L("NN")
    a("s_or_b32 s%d, s2, s%d" % (sT0, sWV))
    a("s_cbranch_scc1 %s" % ln)
    a.begin_opt()
    a("s_memrealtime s[%d:%d]" % (sNON, sNON + 1))
    a("s_waitcnt lgkmcnt(0)")
    a("s_or_b32 s%d, s%d, 0x40000000" % (sNON + 1, sNON + 1)); a("s_or_b32 s%d, s%d, 1" % (sNON, sNON))
    a("v_mov_b32 v12, s%d" % sNON); a("v_mov_b32 v13, s%d" % (sNON + 1)); a("v_mov_b32 v14, 64")
    a("s_mov_b64 exec, 1")
    a("buffer_store_dwordx2 v[12:13], v14, s[%d:%d], 0 offen sc1" % (SDBG, SDBG + 3))
    a("s_mov_b64 exec, -1")
    a.end_opt()
    a.label(ln)
    if YP == 1: poison()
    a("s_lshr_b32 s%d, s%d, 1" % (sT1, sWV))
    a("s_mul_i32 s%d, s%d, %d" % (sT1, sT1, 112 * 3584))
    a("s_lshl_b32 s%d, s%d, 7" % (sT2, sF))
    a("s_add_u32 s%d, s%d, s%d" % (sT1, sT1, sT2))
    a("v_mul_u32_u24 v9, 3584, v2")
    a("v_lshl_add_u32 v9, v3, 4, v9")
    a("v_add_u32 v9, s%d, v9" % sT1)
    a("s_bitcmp0_b32 s%d, 0" % sWV)
    a("s_cselect_b32 s%d, s32, s34" % SWG)
    a("s_cselect_b32 s%d, s33, s35" % (SWG + 1))
    a("s_and_b32 s%d, s%d, 0xffff" % (SWG + 1, SWG + 1))
    a("s_mov_b32 s%d, 0x%x" % (SWG + 2, 448 * 3584))
    a("s_mov_b32 s%d, 0x00020000" % (SWG + 3))
    wq = list(range(14))
    def ldw(n):
        for _ in range(n):
            if not wq: return
            i = wq.pop(0)
            a("s_mov_b32 s%d, %d" % (sOW, i * 8 * 3584))
            a.vm("buffer_load_dwordx4 %s, v9, s[%d:%d], s%d offen" % (vr(64 + 4 * i, 4), SWG, SWG + 3, sOW), "w%d" % i)
    a("s_mov_b32 s%d, 0x3f803f80" % sONES)
    a("v_mov_b32 v10, 0"); a("v_mov_b32 v11, 0"); a("v_mov_b32 v12, 0"); a("v_mov_b32 v13, 0")
    a("v_mul_u32_u24 v7, %d, v4" % XT_S)
    a("v_lshl_add_u32 v7, v3, 4, v7")
    a("v_lshlrev_b32 v8, 4, v5")
    a("s_lshl_b32 s%d, s2, 8" % sT2); a("s_add_u32 s%d, s%d, %d" % (sT2, sT2, WS_PF))
    a("v_lshl_add_u32 v28, v1, 13, s%d" % sT2)
    a("s_lshl_b32 s%d, s%d, 8" % (sT0, sR)); a("s_add_u32 s%d, s%d, %d" % (sT0, sT0, WS_FR))
    a("s_lshl_b32 s%d, s%d, 8" % (sT1, sF)); a("s_add_u32 s%d, s%d, %d" % (sT1, sT1, WS_FC))
    a("s_cmp_eq_u32 s%d, 0" % sWV); a("s_cselect_b32 s%d, s%d, s%d" % (sT0, sT0, sT1)); a("v_mov_b32 v29, s%d" % sT0)
    a("v_mov_b32 v30, 64")
    if ENV("PFG", 1):
        a("v_mov_b32 v141, v28"); a("v_writelane_b32 v141, s%d, 8" % sT0)
        a("s_cmp_lt_u32 s%d, 2" % sWV); a("s_cselect_b32 exec_lo, 0x1ff, 0"); a("s_mov_b32 exec_hi, 0")
        a.vm("buffer_load_dword v141, v141, s[%d:%d], 0 offen sc1" % (SWS, SWS + 3), "pfg")
        a("s_mov_b64 exec, -1")
    for i in range(7):
        a.wait_vm("x%d" % i)
        for r in range(4):
            a("v_dot2_f32_bf16 v%d, v%d, s%d, v%d" % (10 + 2 * (r & 1), 32 + 4 * i + r, sONES, 10 + 2 * (r & 1)))
            a("v_dot2_f32_bf16 v%d, v%d, v%d, v%d" % (11 + 2 * (r & 1), 32 + 4 * i + r, 32 + 4 * i + r, 11 + 2 * (r & 1)))
    ldw(ENV("PW0", 3))
    a("v_add_f32 v10, v10, v12"); a("v_add_f32 v11, v11, v13")
    for mod in ("quad_perm:[1,0,3,2]", "quad_perm:[2,3,0,1]", "row_half_mirror"):
        for r in (10, 11):
            a("v_add_f32_dpp v%d, v%d, v%d %s row_mask:0xf bank_mask:0xf" % (r, r, r, mod))
    c = math.sqrt(2 / math.pi); k1 = -2 * c * LOG2E; k2 = k1 * 0.044715
    a("v_mul_f32 v10, %s, v10" % fbits(1.0 / 448))
    a("v_mul_f32 v11, %s, v11" % fbits(1.0 / 448))
    a("v_fma_f32 v11, -v10, v10, v11")
    a("v_max_f32 v11, 0, v11")
    a("v_cvt_pk_bf16_f32 v10, v10, v11")
    a("v_lshlrev_b32 v12, 16, v10")
    a("v_and_b32 v11, 0xffff0000, v10")
    a("v_add_f32 v11, %s, v11" % fbits(1e-5))
    a("v_cvt_pk_bf16_f32 v11, v11, v11")
    a("v_lshlrev_b32 v11, 16, v11")
    a("v_sqrt_f32 v11, v11")
    a("v_cvt_pk_bf16_f32 v11, v11, v11")
    a("v_lshlrev_b32 v11, 16, v11")
    a("v_rcp_f32 v14, v11")
    a("v_sub_f32 v16, 0, v12")
    a("v_cvt_pk_bf16_f32 v24, v16, v16")
    a("v_mul_f32 v27, v11, v11")
    a("v_mul_f32 v25, %s, v14" % fbits(k1))
    a("v_mul_f32 v10, v14, v14"); a("v_mul_f32 v10, v10, v14")
    a("v_mul_f32 v26, %s, v10" % fbits(k2))
    a("s_mov_b32 s%d, %d" % (sT0, WS_RC))
    a("s_mov_b32 exec_lo, 0x01010101"); a("s_mov_b32 exec_hi, 0x01010101")
    a.vm("buffer_store_dwordx4 v[24:27], v8, s[%d:%d], s%d offen sc1" % (SWS, SWS + 3, sT0), "rc")
    a("s_cmp_lt_u32 s%d, 2" % sWV); a("s_cselect_b32 exec_lo, 1, 0"); a("s_mov_b32 exec_hi, 0")
    a("buffer_load_dwordx2 v[18:19], v30, s[%d:%d], 0 offen sc1" % (SDBG, SDBG + 3))
    a("s_mov_b64 exec, -1")
    sp_("stats")
    def xn_blk(i):
        for r in range(4):
            w = 32 + 4 * i + r; t = 20 + 2 * (r & 1)
            a("v_lshlrev_b32 v%d, 16, v%d" % (t, w)); a("v_and_b32 v%d, 0xffff0000, v%d" % (t + 1, w))
            a("v_pk_add_f32 %s, %s, v[16:17] op_sel_hi:[1,0]" % (vr(t, 2), vr(t, 2)))
            a("v_cvt_pk_bf16_f32 v%d, v%d, v%d" % (t, t, t + 1))
            a("v_and_b32 v%d, 0xffff0000, v%d" % (t + 1, t)); a("v_lshlrev_b32 v%d, 16, v%d" % (t, t))
            a("v_pk_mul_f32 %s, %s, v[14:15] op_sel_hi:[1,0]" % (vr(t, 2), vr(t, 2)))
            a("v_cvt_pk_bf16_f32 v%d, v%d, v%d" % (t, t, t + 1))
            a("v_and_b32 v%d, 0xffff0000, v%d" % (t + 1, t)); a("v_lshlrev_b32 v%d, 16, v%d" % (t, t))
            a("v_cvt_pk_f16_f32 v%d, v%d, v%d" % (w, t, t + 1))
        a("ds_write_b128 v7, %s offset:%d" % (vr(32 + 4 * i, 4), i * 128))
    PO = ENV("PO", 2)
    if PO == 1:
        for i in range(7):
            xn_blk(i); ldw(ENV("PW1", 2))
        ldw(14)
        a("v_lshrrev_b32 v4, 4, v1"); a("v_and_b32 v5, 15, v1")
        a("v_lshrrev_b32 v6, 2, v5"); a("v_lshl_add_u32 v6, v4, 3, v6")
        a("v_bfe_u32 v7, v5, 1, 1"); a("v_lshl_add_u32 v6, v7, 5, v6")
        a("v_mul_u32_u24 v6, %d, v6" % XT_S)
        a("v_and_b32 v7, 1, v5"); a("v_lshl_add_u32 v6, v7, 3, v6")
        a("s_lshl_b32 s%d, s%d, 4" % (sOX, sWV))
        a("v_add_u32 v6, s%d, v6" % sOX)
        a("s_mul_i32 s%d, s%d, %d" % (sOX, sWV, 7 * 1152)); a("s_add_u32 s%d, s%d, %d" % (sOX, sOX, L_PC + 2048))
        a("v_and_b32 v31, 7, v5"); a("v_mul_u32_u24 v31, 144, v31"); a("v_lshl_add_u32 v31, v4, 4, v31")
        a("v_lshrrev_b32 v5, 3, v5"); a("v_lshl_add_u32 v31, v5, 6, v31"); a("v_add_u32 v31, s%d, v31" % sOX)
        a("v_mul_u32_u24 v8, 144, v2"); a("v_lshl_add_u32 v8, v3, 4, v8"); a("v_add_u32 v8, s%d, v8" % sOX)
        a("v_mul_u32_u24 v7, %d, v2" % XST); a("v_lshl_add_u32 v7, v3, 4, v7")
        a("s_lshl_b32 s%d, s%d, 7" % (sT2, sR)); a("s_add_u32 s%d, s%d, %d" % (sT2, sT2, WS_XNT))
        a("s_mul_i32 s%d, s%d, %d" % (sT1, sWV, 8 * XST)); a("s_add_u32 s%d, s%d, s%d" % (sT1, sT1, sT2))
        a("s_waitcnt lgkmcnt(0)")
        sp_("xn")
        a("s_barrier")
        sp_("pbar")
        for i in range(7):
            a("ds_read_b64_tr_b16 %s, v6 offset:%d" % (vr(32 + 4 * i, 2), i * 128))
            a("ds_read_b64_tr_b16 %s, v6 offset:%d" % (vr(34 + 4 * i, 2), i * 128 + 4 * XT_S))
        for i in range(7):
            a("s_waitcnt lgkmcnt(%d)" % 12)
            a("ds_write_b128 v31, %s offset:%d" % (vr(32 + 4 * i, 4), i * 1152))
            a("ds_read_b128 %s, v8 offset:%d" % (vr(144 + 4 * i, 4), i * 1152))
        for i in range(7):
            a("s_waitcnt lgkmcnt(%d)" % (12 - 2 * i))
            a.vm("buffer_store_dwordx4 %s, v7, s[%d:%d], s%d offen sc1" % (vr(144 + 4 * i, 4), SWS, SWS + 3, sT1), "xst")
            if i < 6: a("s_add_u32 s%d, s%d, %d" % (sT1, sT1, 64 * XST))
        sp_("st")
        a("s_mov_b32 s%d, 0x3f80" % sOX); a("s_mov_b32 s%d, 0x3f800000" % sOW)
        for r in range(120, 128): a("v_mov_b32 v%d, 0" % r)
        for i in range(14):
            a.wait_vm("w%d" % i)
            for r in range(4):
                w = 64 + 4 * i + r
                a("v_dot2_f32_bf16 v%d, v%d, s%d, v%d" % (120 + 2 * r, w, sOX, 120 + 2 * r))
                a("v_dot2_f32_bf16 v%d, v%d, s%d, v%d" % (121 + 2 * r, w, sOW, 121 + 2 * r))
        for r in range(120, 128): a("v_add_f32_dpp v%d, v%d, v%d row_ror:8 row_mask:0xf bank_mask:0xf" % (r, r, r))
        for op in ("v_permlane16_swap_b32", "v_permlane32_swap_b32"):
            for r in range(8): a("v_mov_b32 v%d, v%d" % (128 + r, 120 + r))
            for r in range(8): a("%s v%d, v%d" % (op, 120 + r, 128 + r))
            for r in range(8): a("v_add_f32 v%d, v%d, v%d" % (120 + r, 120 + r, 128 + r))
        a("s_lshl_b32 s%d, s%d, 8" % (sT0, sWV))
        a("s_add_u32 s%d, s%d, %d" % (sT0, sT0, L_PC))
        a("v_lshl_add_u32 v9, v3, 5, s%d" % sT0)
        a("s_mov_b64 exec, 0xff")
        a("ds_write_b128 v9, v[120:123]"); a("ds_write_b128 v9, v[124:127] offset:16")
        a("s_mov_b64 exec, -1")
        a("s_waitcnt lgkmcnt(0)")
        sp_("sum")
        a("s_barrier")
        la = L("PA")
        a("s_cmp_lg_u32 s%d, 1" % sWV)
        a("s_cbranch_scc1 %s" % la)
        a.begin_opt()
        a("v_lshlrev_b32 v9, 2, v1")
        a("v_add_u32 v20, %d, v9" % L_PC)
        for i in range(8): a("ds_read_b32 v%d, v20 offset:%d" % (120 + i, i * 256))
        a("s_lshl_b32 s%d, s%d, 9" % (sT2, sF)); a("s_add_u32 s%d, s%d, %d" % (sT0, sT2, WS_CS)); a("s_add_u32 s%d, s%d, %d" % (sT2, sT0, CSM))
        a("v_lshlrev_b32 v9, 3, v1")
        a("s_waitcnt lgkmcnt(0)")
        for m in range(2):
            c = 120 + m; o = 128 + 2 * m
            a("v_add_f32 v%d, v%d, v%d" % (c, c, c + 2)); a("v_add_f32 v%d, v%d, v%d" % (c + 4, c + 4, c + 6))
            a("v_add_f32 v%d, v%d, v%d" % (c, c, c + 4))
            a("v_cvt_pk_bf16_f32 v%d, v%d, v%d" % (c + 2, c, c)); a("v_lshlrev_b32 v%d, 16, v%d" % (c + 2, c + 2))
            a("v_sub_f32 v%d, v%d, v%d" % (c + 2, c, c + 2))
            a("v_cvt_pk_bf16_f32 v%d, v%d, v%d" % (o, c, c + 2)); a("v_and_b32 v%d, 0xffff0000, v%d" % (c + 4, o))
            a("v_sub_f32 v%d, v%d, v%d" % (c + 2, c + 2, c + 4))
            a("v_cvt_pk_bf16_f32 v%d, v%d, 0" % (o + 1, c + 2))
            a("buffer_store_dwordx2 v[%d:%d], v9, s[%d:%d], s%d offen sc1" % (o, o + 1, SWS, SWS + 3, (sT0, sT2)[m]))
        a("s_waitcnt vmcnt(2)")
        a("s_barrier")
        get_nonce(a, L, 30, 18, pre=True)
        a("v_mov_b32 v10, s%d" % sNON)
        a("s_mov_b64 exec, 1")
        a("buffer_store_dword v10, v29, s[%d:%d], 0 offen sc1" % (SWS, SWS + 3))
        a("s_mov_b64 exec, -1")
        sp_("flagC")
        if YP != 3:
            sp_.store(100)
            a("s_endpgm")
        else: a("s_branch K_PP")
        a.end_opt()
        a.label(la)
        a("s_waitcnt vmcnt(0)"); a.vmq = []
        a("s_barrier")
        a("s_cmp_lg_u32 s%d, 0" % sWV)
        a("s_cbranch_scc1 %s" % ("K_PP" if YP == 3 else "K_END"))
        a.begin_opt()
        get_nonce(a, L, 30, 18, pre=True)
        a("v_mov_b32 v10, s%d" % sNON)
        a("s_mov_b64 exec, 0xff")
        a("buffer_store_dword v10, v28, s[%d:%d], 0 offen sc1" % (SWS, SWS + 3))
        a("s_mov_b64 exec, 1")
        a("buffer_store_dword v10, v29, s[%d:%d], 0 offen sc1" % (SWS, SWS + 3))
        a("s_mov_b64 exec, -1")
        a.end_opt()
        if YP == 3:
            a.label("K_PP")
            if ENV("PPS", 0): a("s_sleep %d" % ENV("PPS", 0))
            poison()
            a("s_waitcnt vmcnt(0)")
            a("s_barrier")
            a("s_cmp_lg_u32 s%d, 1" % sWV)
            a("s_cbranch_scc1 K_END")
            a("s_mov_b64 exec, 0xff")
            a("buffer_store_dword v10, v28, s[%d:%d], 0 offen offset:128 sc1" % (SWS, SWS + 3))
            a("s_mov_b64 exec, -1")
            sp_("flagP")
            sp_.store(100)
        return
    def xaddr(sX=sT1):
        a("v_lshrrev_b32 v4, 4, v1"); a("v_and_b32 v5, 15, v1")
        a("v_lshrrev_b32 v6, 2, v5"); a("v_lshl_add_u32 v6, v4, 3, v6")
        a("v_bfe_u32 v7, v5, 1, 1"); a("v_lshl_add_u32 v6, v7, 5, v6")
        a("v_mul_u32_u24 v6, %d, v6" % XT_S)
        a("v_and_b32 v7, 1, v5"); a("v_lshl_add_u32 v6, v7, 3, v6")
        a("s_lshl_b32 s%d, s%d, 4" % (sOX, sWV))
        a("v_add_u32 v6, s%d, v6" % sOX)
        a("s_mul_i32 s%d, s%d, %d" % (sOX, sWV, 7 * 1152)); a("s_add_u32 s%d, s%d, %d" % (sOX, sOX, L_PC + 2048))
        a("v_and_b32 v31, 7, v5"); a("v_mul_u32_u24 v31, 144, v31"); a("v_lshl_add_u32 v31, v4, 4, v31")
        a("v_lshrrev_b32 v5, 3, v5"); a("v_lshl_add_u32 v31, v5, 6, v31"); a("v_add_u32 v31, s%d, v31" % sOX)
        a("v_mul_u32_u24 v8, 144, v2"); a("v_lshl_add_u32 v8, v3, 4, v8"); a("v_add_u32 v8, s%d, v8" % sOX)
        if AL == 2:
            srd(a, SOUT, 10, 2048 * 896)
            a("v_mul_u32_u24 v7, 896, v2"); a("v_lshl_add_u32 v7, v3, 4, v7")
            a("s_lshl_b32 s%d, s%d, 3" % (sT1, sR)); a("s_add_u32 s%d, s%d, s%d" % (sT1, sT1, sWV)); a("s_mul_i32 s%d, s%d, %d" % (sT1, sT1, 8 * 896))
            return
        a("v_mul_u32_u24 v7, %d, v2" % XST); a("v_lshl_add_u32 v7, v3, 4, v7")
        a("s_lshl_b32 s%d, s%d, 7" % (sT2, sR)); a("s_add_u32 s%d, s%d, %d" % (sT2, sT2, WS_XNT))
        a("s_mul_i32 s%d, s%d, %d" % (sT1, sWV, 8 * XST)); a("s_add_u32 s%d, s%d, s%d" % (sT1, sT1, sT2))
    NXA = 7 if PO == 2 else ENV("NXA", 4)
    for i in range(NXA):
        xn_blk(i); ldw(ENV("PW1", 2))
    ldw(14)
    a("s_mov_b32 s%d, 0x3f80" % sOX); a("s_mov_b32 s%d, 0x3f800000" % sOW)
    for r in range(120, 128): a("v_mov_b32 v%d, 0" % r)
    for i in range(14):
        a.wait_vm("w%d" % i)
        for r in range(4):
            w = 64 + 4 * i + r
            a("v_dot2_f32_bf16 v%d, v%d, s%d, v%d" % (120 + 2 * r, w, sOX, 120 + 2 * r))
            a("v_dot2_f32_bf16 v%d, v%d, s%d, v%d" % (121 + 2 * r, w, sOW, 121 + 2 * r))
    for r in range(120, 128): a("v_add_f32_dpp v%d, v%d, v%d row_ror:8 row_mask:0xf bank_mask:0xf" % (r, r, r))
    for op in ("v_permlane16_swap_b32", "v_permlane32_swap_b32"):
        for r in range(8): a("v_mov_b32 v%d, v%d" % (128 + r, 120 + r))
        for r in range(8): a("%s v%d, v%d" % (op, 120 + r, 128 + r))
        for r in range(8): a("v_add_f32 v%d, v%d, v%d" % (120 + r, 120 + r, 128 + r))
    a("s_lshl_b32 s%d, s%d, 8" % (sT0, sWV))
    a("s_add_u32 s%d, s%d, %d" % (sT0, sT0, L_PC))
    a("v_lshl_add_u32 v9, v3, 5, s%d" % sT0)
    a("s_mov_b64 exec, 0xff")
    a("ds_write_b128 v9, v[120:123]"); a("ds_write_b128 v9, v[124:127] offset:16")
    a("s_mov_b64 exec, -1")
    if PO == 2: xaddr()
    lw = L("PA")
    a("s_cmp_gt_u32 s%d, 1" % sWV)
    a("s_cbranch_scc1 %s" % lw)
    a.begin_opt()
    get_nonce(a, L, 30, 18, pre=True)
    a("v_mov_b32 v10, s%d" % sNON)
    a.end_opt()
    a.label(lw)
    a("s_waitcnt vmcnt(0) lgkmcnt(0)"); a.vmq = []
    sp_("sum")
    a("s_barrier")
    sp_("pbar0")
    PFP = ENV("PFP", 0)
    def pf_all():
        srd(a, SWD, 8, 1792 * 896)
        a("s_lshr_b32 s%d, s2, 3" % sT0); a("s_lshl_b32 s%d, s%d, 3" % (sT0, sT0)); a("s_add_u32 s%d, s%d, s%d" % (sT0, sT0, sWV))
        a("s_mul_i32 s%d, s%d, %d" % (sT0, sT0, 392 * 128))
        a("v_lshlrev_b32 v141, 7, v1")
        for i in range(7):
            a("buffer_load_dword v%d, v141, s[%d:%d], s%d offen" % (142 + i, SWD, SWD + 3, sT0))
            if i < 6: a("s_add_u32 s%d, s%d, %d" % (sT0, sT0, 8192 if i < 5 else 1024))
    def pf_mid():
        srd(a, SWD, 8, 1792 * 896)
        lp_ = L("PF")
        a("s_cmp_gt_u32 s%d, 5" % sWV)
        a("s_cbranch_scc1 %s" % lp_)
        a.begin_opt()
        a("s_lshr_b32 s%d, s2, 3" % sT0); a("s_mul_i32 s%d, s%d, %d" % (sT0, sT0, 448 * 896))
        a("s_lshr_b32 s%d, s%d, 1" % (sT2, sWV)); a("s_lshl_b32 s%d, s%d, 2" % (sT2, sT2)); a("s_lshr_b32 s%d, 0x31c, s%d" % (sT2, sT2)); a("s_and_b32 s%d, s%d, 15" % (sT2, sT2))
        a("s_lshl_b32 s%d, s%d, 1" % (sT2, sT2)); a("s_and_b32 s%d, s%d, 1" % (sT3, sWV)); a("s_add_u32 s%d, s%d, s%d" % (sT2, sT2, sT3))
        a("s_mul_i32 s%d, s%d, %d" % (sT2, sT2, 16 * 896)); a("s_add_u32 s%d, s%d, s%d" % (sT0, sT0, sT2))
        a("s_add_u32 s%d, s%d, %d" % (sT2, sT0, 48 * 128))
        a("v_lshlrev_b32 v141, 7, v1")
        a("buffer_load_dword v142, v141, s[%d:%d], s%d offen" % (SWD, SWD + 3, sT0))
        a("buffer_load_dword v143, v141, s[%d:%d], s%d offen" % (SWD, SWD + 3, sT2))
        a.end_opt()
        a.label(lp_)
    if PFP == 2:
        lp_ = L("PF")
        a("s_cmp_lt_u32 s%d, 2" % sWV)
        a("s_cbranch_scc1 %s" % lp_)
        a.begin_opt()
        pf_all()
        a.end_opt()
        a.label(lp_)
    la = L("PA")
    a("s_cmp_lg_u32 s%d, 1" % sWV)
    a("s_cbranch_scc1 %s" % la)
    a.begin_opt()
    a("v_lshlrev_b32 v9, 2, v1")
    a("v_add_u32 v20, %d, v9" % L_PC)
    for i in range(8): a("ds_read_b32 v%d, v20 offset:%d" % (120 + i, i * 256))
    a("s_lshl_b32 s%d, s%d, 9" % (sT2, sF)); a("s_add_u32 s%d, s%d, %d" % (sT0, sT2, WS_CS)); a("s_add_u32 s%d, s%d, %d" % (sT2, sT0, CSM))
    a("v_lshlrev_b32 v9, 3, v1")
    a("s_waitcnt lgkmcnt(0)")
    for m in range(2):
        c = 120 + m; o = 128 + 2 * m
        a("v_add_f32 v%d, v%d, v%d" % (c, c, c + 2)); a("v_add_f32 v%d, v%d, v%d" % (c + 4, c + 4, c + 6))
        a("v_add_f32 v%d, v%d, v%d" % (c, c, c + 4))
        a("v_cvt_pk_bf16_f32 v%d, v%d, v%d" % (c + 2, c, c)); a("v_lshlrev_b32 v%d, 16, v%d" % (c + 2, c + 2))
        a("v_sub_f32 v%d, v%d, v%d" % (c + 2, c, c + 2))
        a("v_cvt_pk_bf16_f32 v%d, v%d, v%d" % (o, c, c + 2)); a("v_and_b32 v%d, 0xffff0000, v%d" % (c + 4, o))
        a("v_sub_f32 v%d, v%d, v%d" % (c + 2, c + 2, c + 4))
        a("v_cvt_pk_bf16_f32 v%d, v%d, 0" % (o + 1, c + 2))
        a("buffer_store_dwordx2 v[%d:%d], v9, s[%d:%d], s%d offen sc1" % (o, o + 1, SWS, SWS + 3, (sT0, sT2)[m]))
    a.end_opt()
    a.label(la)
    for i in range(NXA, 7):
        xn_blk(i)
        if i == min(6, NXA + ENV("NXF", 2)):
            lb = L("PA")
            a("s_cmp_gt_u32 s%d, 1" % sWV)
            a("s_cbranch_scc1 %s" % lb)
            a.begin_opt()
            a("s_waitcnt vmcnt(0)")
            a("s_mov_b64 exec, 1")
            a("buffer_store_dword v10, v29, s[%d:%d], 0 offen sc1" % (SWS, SWS + 3))
            a("s_mov_b64 exec, -1")
            if PFP == 2: pf_all()
            a.end_opt()
            a.label(lb)
            sp_("flagC")
    if PO != 2: xaddr()
    if YP == 2:
        a("s_mov_b32 s%d, s%d" % (sT3, sT1)); poison(); a("s_mov_b32 s%d, s%d" % (sT1, sT3))
    if PO == 2:
        a("s_cmp_eq_u32 s%d, 0" % sWV); a("s_cselect_b32 exec_lo, 1, 0"); a("s_mov_b32 exec_hi, 0")
        a("buffer_store_dword v10, v29, s[%d:%d], 0 offen sc1" % (SWS, SWS + 3))
        a("s_mov_b64 exec, -1")
    else:
        a("s_waitcnt lgkmcnt(0)")
        a("s_barrier")
        sp_("pbar")
    for i in range(7):
        a("ds_read_b64_tr_b16 %s, v6 offset:%d" % (vr(32 + 4 * i, 2), i * 128))
        a("ds_read_b64_tr_b16 %s, v6 offset:%d" % (vr(34 + 4 * i, 2), i * 128 + 4 * XT_S))
    for i in range(7):
        a("s_waitcnt lgkmcnt(%d)" % 12)
        a("ds_write_b128 v31, %s offset:%d" % (vr(32 + 4 * i, 4), i * 1152))
        a("ds_read_b128 %s, v8 offset:%d" % (vr(64 + 4 * i, 4), i * 1152))
    for i in range(7):
        a("s_waitcnt lgkmcnt(%d)" % (12 - 2 * i))
        if AL == 2:
            a.vm("buffer_store_dwordx4 %s, v7, s[%d:%d], s%d offen offset:%d sc1" % (vr(64 + 4 * i, 4), SOUT, SOUT + 3, sT1, i * 128), "xst")
            continue
        a.vm("buffer_store_dwordx4 %s, v7, s[%d:%d], s%d offen %s" % (vr(64 + 4 * i, 4), SWS, SWS + 3, sT1, os.environ.get("XSM", "sc1").replace("_", " ")), "xst")
        if i < 6: a("s_add_u32 s%d, s%d, %d" % (sT1, sT1, 64 * XST))
    sp_("st")
    if PO == 2:
        a("s_waitcnt vmcnt(7)")
        a("s_cmp_eq_u32 s%d, 1" % sWV); a("s_cselect_b32 exec_lo, 1, 0"); a("s_mov_b32 exec_hi, 0")
        a("buffer_store_dword v10, v29, s[%d:%d], 0 offen sc1" % (SWS, SWS + 3))
        a("s_mov_b64 exec, -1")
        sp_("flagC")
        a("s_waitcnt vmcnt(1)")
    else: a("s_waitcnt vmcnt(0)")
    a("s_barrier")
    if YP == 3:
        a("s_cmp_eq_u32 s%d, 1" % sWV); a("s_cselect_b32 exec_lo, 0xff, 0"); a("s_mov_b32 exec_hi, 0")
        a("buffer_store_dword v10, v28, s[%d:%d], 0 offen sc1" % (SWS, SWS + 3))
        a("s_mov_b64 exec, -1")
        sp_("flagB")
        if PFP == 1: pf_mid()
        if PFP == 3: pf_all()
        poison()
        a("s_waitcnt vmcnt(0)")
        a("s_barrier")
    if ENV("PFD", 0):
        a("s_cmp_eq_u32 s%d, 1" % sWV); a("s_cselect_b32 exec_lo, 0xff, 0"); a("s_mov_b32 exec_hi, 0")
        a("buffer_store_dword v10, v28, s[%d:%d], 0 offen sc1" % (SWS, SWS + 3))
        a("s_mov_b64 exec, -1")
        sp_("flagB")
        for _ in range(ENV("PFD", 0) - 1): a("s_sleep 64")
        a("s_lshl_b32 s%d, s2, 3" % sT0); a("s_add_u32 s%d, s%d, s%d" % (sT0, sT0, sWV)); a("s_mul_i32 s%d, s%d, 7168" % (sT0, sT0))
        a("v_lshl_add_u32 v141, v1, 7, s%d" % sT0)
        a("s_mov_b32 exec_hi, 0xffffff")
        a("global_load_dword v141, v141, s[10:11]")
        a("s_mov_b64 exec, -1")
        a("s_waitcnt vmcnt(0)")
        sp_("pfd")
        a("s_cmp_lg_u32 s%d, 1" % sWV)
        a("s_cbranch_scc1 K_END")
        sp_.store(100)
        return
    a("s_cmp_lg_u32 s%d, 1" % sWV)
    a("s_cbranch_scc1 K_END")
    a("s_mov_b64 exec, 0xff")
    a("buffer_store_dword v10, v28, s[%d:%d], 0 offen offset:%d sc1" % (SWS, SWS + 3, 128 if YP == 3 else 0))
    a("s_mov_b64 exec, -1")
    sp_("flagB" if YP != 3 else "flagP")
    sp_.store(100)
```

```python
import math, os
from gen8 import *

XST = ENV("XST", 4096); YST = ENV("YST", 4096); YP = ENV("YP", 0)
AL = ENV("AL", 2)
if AL == 1: WS_YAT = WS_XNT
TS = 64 * 896
NF = ENV("NF", 1)
def get_nonce(a, L, va, vd, pre=False):
    l1, l2, l3 = L("GN"), L("GN"), L("GN")
    a("s_mov_b32 s%d, %d" % (sCNT, SPIN))
    if NF: a("s_mov_b32 s49, 2")
    if pre: a("s_branch %s" % l3)
    a.label(l1)
    a("buffer_load_dwordx2 v[%d:%d], v%d, s[%d:%d], 0 offen sc1" % (vd, vd + 1, va, SDBG, SDBG + 3))
    a.label(l3)
    a("s_waitcnt vmcnt(0)")
    a("v_readfirstlane_b32 s%d, v%d" % (sNON, vd)); a("v_readfirstlane_b32 s%d, v%d" % (sNON + 1, vd + 1))
    if NF:
        l4 = L("GN")
        a("s_cmp_eq_u32 s%d, 0" % (sNON + 1))
        a("s_cbranch_scc1 %s" % l4)
        a("s_sub_u32 s%d, s48, s%d" % (sT0, sNON))
        a("s_cmp_lt_i32 s%d, 800" % sT0)
        a("s_cbranch_scc1 %s" % l2)
        a("s_sub_u32 s49, s49, 1")
        a("s_cbranch_scc1 %s" % l2)
        a.label(l4)
    else:
        a("s_cmp_lg_u32 s%d, 0" % (sNON + 1))
        a("s_cbranch_scc1 %s" % l2)
    a("s_sleep 8")
    a("s_sub_u32 s%d, s%d, 1" % (sCNT, sCNT)); a("s_cmp_lg_u32 s%d, 0" % sCNT)
    a("s_cbranch_scc1 %s" % l1)
    a.label(l2)

def helper(a, sk_, L, spin_lds):
    a.label("K_HELP")
    a.vmq = []
    a("s_setprio 3")
    DK = "s[36:37]" if AL == 2 else "s[60:61]"
    a("s_load_dwordx2 %s, s[0:1], 64" % DK)
    if NF: a("s_memrealtime s[48:49]")
    a("s_sub_u32 s%d, s%d, 4" % (sKW, sWV))
    a("s_cmp_lg_u32 s%d, 7" % sWV)
    a("s_cbranch_scc1 K_NZ")
    a.begin_opt()
    a("v_lshlrev_b32 v2, 2, v1"); a("v_add_u32 v2, %d, v2" % L_SYNC); a("v_mov_b32 v3, 0")
    a("ds_write_b32 v2, v3")
    if KT: a("v_and_b32 v2, 3, v1"); a("v_mul_u32_u24 v2, %d, v2" % FLS); a("v_add_u32 v2, %d, v2" % (L_FL + 64)); a("ds_write_b32 v2, v3")
    else: a("ds_write_b32 v2, v3 offset:512")
    a.end_opt()
    a.label("K_NZ")
    a("s_and_b32 s%d, s%d, 1" % (sHF, sKW))
    a("s_lshr_b32 s%d, s%d, 1" % (sT0, sKW))
    a("s_sub_u32 s%d, s2, 32" % sCH)
    a("s_lshl_b32 s%d, s%d, 1" % (sCH, sCH))
    a("s_add_u32 s%d, s%d, s%d" % (sCH, sCH, sT0))
    a("s_mul_i32 s%d, s%d, %d" % (sCVB, sT0, CV_CH))
    a("s_add_u32 s%d, s%d, %d" % (sCVB, sCVB, L_CV))
    a("s_lshl_b32 s%d, s%d, 8" % (sT0, sCH))
    a("s_lshl_b32 s%d, s%d, 7" % (sT1, sHF))
    a("s_add_u32 s%d, s%d, s%d" % (sT0, sT0, sT1))
    a("v_add_u32 v2, s%d, v1" % sT0)
    a("v_lshlrev_b32 v2, 1, v2")
    a("s_lshl_b32 s%d, s%d, 1" % (sT1, sCH))
    a("v_mov_b32 v3, s%d" % sT1)
    a("s_waitcnt lgkmcnt(0)")
    P = [[20, 21, 22, 23, 24, 25], [120, 121, 122, 123, 124, 125]]
    a.vm("global_load_ushort v26, v3, s[30:31]", "param")
    for it in range(2):
        for i in range(6):
            a.vm("global_load_ushort v%d, v2, s[%d:%d] offset:%d" % (P[it][i], 18 + 2 * i, 19 + 2 * i, it * 128), "param")
    a.vm("global_load_ushort v160, v3, %s" % DK, "param")
    PE0, PE1 = ENV("PE0", 0), ENV("PE1", 0)
    if PE1:
        n = (PE1 - PE0) * 28 // 896
        a("s_lshl_b32 s%d, s%d, 1" % (sT0, sCH)); a("s_add_u32 s%d, s%d, s%d" % (sT0, sT0, sHF))
        a("s_mul_i32 s%d, s%d, %d" % (sT1, sT0, n * 128)); a("s_add_u32 s%d, s%d, %d" % (sT1, sT1, PE0 * 3584))
        a("v_lshl_add_u32 v253, v1, 7, s%d" % sT1)
        a("s_mov_b64 exec, 0x%x" % ((1 << n) - 1))
        a.vm("global_load_dword v250, v253, s[32:33]", "tw"); a.vm("global_load_dword v251, v253, s[34:35]", "tw")
        a("s_mov_b64 exec, -1")
    a("s_setprio %d" % int(os.environ.get("KPRIO", "2")))
    a("s_barrier")
    srd(a, SWS, 14, WS_SIZE)
    TLW = ENV("TLW", 0)
    PFA = ENV("PFA", 151); PFB = ENV("PFB", 0); PFH = ENV("PFH", 0); PFO = ENV("PFO", 0)
    def pf_w(which, trk=True):
        vm = (lambda t: a.vm(t, "tw")) if trk else a
        a("s_sub_u32 s%d, s2, 32" % sT0); a("s_lshl_b32 s%d, s%d, 2" % (sT0, sT0)); a("s_add_u32 s%d, s%d, s%d" % (sT0, sT0, sKW))
        if which == "B":
            n = (448 - PFB) * 28 // 896
            a("s_mul_i32 s%d, s%d, %d" % (sT1, sT0, n * 128)); a("s_add_u32 s%d, s%d, %d" % (sT1, sT1, PFB * 3584))
            a("v_lshl_add_u32 v253, v1, 7, s%d" % sT1)
            a("s_mov_b64 exec, 0x%x" % ((1 << n) - 1))
            vm("global_load_dword v250, v253, s[32:33]"); vm("global_load_dword v251, v253, s[34:35]")
            a("s_mov_b64 exec, -1")
        else:
            a("s_mul_i32 s%d, s%d, 1792" % (sT1, sT0))
            a("v_lshl_add_u32 v252, v1, 7, s%d" % sT1)
            a("s_mov_b64 exec, 0x3fff")
            vm("global_load_dword v252, v252, s[8:9]")
            a("s_mov_b64 exec, -1")
    def pf_c():
        a("s_and_b32 s%d, s%d, 3" % (sT0, sRT2)); a("s_mul_i32 s%d, s%d, 14" % (sT0, sT0))
        a("s_lshl_b32 s%d, s%d, 2" % (sT1, sKW)); a("s_lshr_b32 s%d, 0x331c, s%d" % (sT1, sT1)); a("s_and_b32 s%d, s%d, 15" % (sT1, sT1))
        a("s_add_u32 s%d, s%d, s%d" % (sT0, sT0, sT1)); a("s_mul_i32 s%d, s%d, 224" % (sT0, sT0)); a("s_add_u32 s%d, s%d, s%d" % (sT0, sT0, sCT)); a("s_lshl_b32 s%d, s%d, 7" % (sT0, sT0))
        a("v_mul_u32_u24 v174, 896, v1")
        a("s_cmp_lt_u32 s%d, 3" % sKW); a("s_cselect_b32 exec_lo, -1, 0"); a("s_mov_b32 exec_hi, 0")
        a("buffer_load_dword v174, v174, s[%d:%d], s%d offen" % (SWD, SWD + 3, sT0))
        a("s_mov_b64 exec, -1")
    def pf_f():
        if MIX:
            a("s_lshr_b32 s%d, s%d, 1" % (sT1, sKW)); a("s_add_u32 s%d, s%d, s%d" % (sT0, sF, sT1)); a("s_lshl_b32 s%d, s%d, 1" % (sT0, sT0))
            a("s_and_b32 s%d, s%d, 1" % (sT1, sF)); a("s_sub_u32 s%d, s%d, s%d" % (sT0, sT0, sT1))
        else: a("s_lshl_b32 s%d, s%d, 1" % (sT0, sF)); a("s_lshr_b32 s%d, s%d, 1" % (sT1, sKW)); a("s_add_u32 s%d, s%d, s%d" % (sT0, sT0, sT1))
        a("s_mul_i32 s%d, s%d, 37" % (sT1, sT0)); a("s_lshr_b32 s%d, s%d, 8" % (sT1, sT1)); a("s_add_u32 s%d, s%d, s%d" % (sT0, sT0, sT1))
        a("s_lshl_b32 s%d, s%d, 1" % (sT1, sR)); a("s_add_u32 s%d, s%d, s%d" % (sT1, sT1, sHF)); a("s_lshl_b32 s%d, s%d, 5" % (sT1, sT1))
        a("s_add_u32 s%d, s%d, s%d" % (sT0, sT0, sT1)); a("s_lshl_b32 s%d, s%d, %d" % (sT0, sT0, FSH)); a("s_add_u32 s%d, s%d, %d" % (sT0, sT0, WS_HF))
        a("v_mov_b32 v174, s%d" % sT0)
        a("s_and_b32 s%d, s%d, 0xfffe" % (sT0, sCH)); a("s_add_u32 s%d, s%d, s%d" % (sT0, sT0, sHF)); a("s_lshl_b32 s%d, s%d, 8" % (sT0, sT0))
        a("s_add_u32 s%d, s%d, %d" % (sT0, sT0, WS_CF))
        a("v_writelane_b32 v174, s%d, 1" % sT0)
        if ENV("PFT", 1):
            a("s_lshl_b32 s%d, s%d, 1" % (sT0, sR)); a("s_add_u32 s%d, s%d, s%d" % (sT0, sT0, sHF)); a("s_mul_i32 s%d, s%d, 56" % (sT0, sT0))
            a("s_lshl_b32 s%d, s%d, 2" % (sT1, sF)); a("s_add_u32 s%d, s%d, s%d" % (sT0, sT0, sT1))
            a("s_and_b32 s%d, s%d, 2" % (sT1, sKW)); a("s_add_u32 s%d, s%d, s%d" % (sT0, sT0, sT1)); a("s_lshl_b32 s%d, s%d, 12" % (sT0, sT0))
            a("v_writelane_b32 v174, s%d, 2" % sT0)
            a("s_add_u32 s%d, s%d, 4096" % (sT0, sT0))
            a("v_writelane_b32 v174, s%d, 3" % sT0)
        a("s_mov_b64 exec, %d" % [3, 7, 15][ENV("PFT", 1)])
        a("buffer_load_dword v174, v174, s[%d:%d], 0 offen sc1" % (SWS, SWS + 3))
        a("s_mov_b64 exec, -1")
    def pf_h(trk=True):
        a("s_lshl_b32 s%d, s%d, 1" % (sT0, sR)); a("s_add_u32 s%d, s%d, s%d" % (sT0, sT0, sHF)); a("s_mul_i32 s%d, s%d, 56" % (sT0, sT0))
        a("s_lshl_b32 s%d, s%d, 2" % (sT1, sF)); a("s_add_u32 s%d, s%d, s%d" % (sT0, sT0, sT1))
        a("s_and_b32 s%d, s%d, 2" % (sT1, sKW)); a("s_add_u32 s%d, s%d, s%d" % (sT0, sT0, sT1)); a("s_lshl_b32 s%d, s%d, 12" % (sT0, sT0))
        a("v_lshlrev_b32 v174, 7, v1")
        t = "buffer_load_dword v174, v174, s[%d:%d], s%d offen" % (SWS, SWS + 3, sT0)
        if trk: a.vm(t, "tw")
        else: a(t)
    def pf_o(trk=True):
        a("s_lshl_b32 s%d, s%d, 2" % (sT0, sRT2)); a("s_add_u32 s%d, s%d, s%d" % (sT0, sT0, sKW))
        a("s_mul_i32 s%d, s%d, %d" % (sT0, sT0, 16 * 896)); a("s_lshl_b32 s%d, s%d, 7" % (sT1, sCT)); a("s_add_u32 s%d, s%d, s%d" % (sT0, sT0, sT1))
        a("v_mul_u32_u24 v166, 896, v1"); a("v_add_u32 v166, s%d, v166" % sT0)
        a("s_mov_b64 exec, 0xffff")
        t = "global_load_dword v166, v166, s[10:11]"
        if trk: a.vm(t, "tw")
        else: a(t)
        a("s_mov_b64 exec, -1")
    PFBT = ENV("PFBT", 1)
    if PFB and PFBT == 1: pf_w("B")
    if PFA == 1: pf_w("A")
    if PFH == 1: pf_h()
    if PFO == 1: pf_o()
    if TLW:
        a("v_bfe_u32 v4, v1, 2, 1"); a("v_mul_u32_u24 v4, 56, v4"); a("v_and_b32 v5, 3, v1"); a("v_add_u32 v4, v4, v5")
        a("s_mul_i32 s%d, s%d, 112" % (sT0, sR)); a("s_lshl_b32 s%d, s%d, 2" % (sT1, sF)); a("s_add_u32 s%d, s%d, s%d" % (sT0, sT0, sT1))
        a("v_add_u32 v4, s%d, v4" % sT0); a("v_lshlrev_b32 v4, 12, v4")
        a("s_lshl_b32 s%d, s%d, %d" % (sT0, sR, 6 + FSH)); a("s_add_u32 s%d, s%d, %d" % (sT0, sT0, WS_HF + 7 * 256))
        a("v_writelane_b32 v4, s%d, 8" % sT0)
        a("s_add_u32 s%d, s%d, %d" % (sT0, sT0, 32 << FSH))
        a("v_writelane_b32 v4, s%d, 9" % sT0)
        a("s_cmp_eq_u32 s%d, 1" % sKW); a("s_cselect_b32 exec_lo, 0x3ff, 0"); a("s_mov_b32 exec_hi, 0")
        a.vm("buffer_load_dword v174, v4, s[%d:%d], 0 offen" % (SWS, SWS + 3), "tw")
        a("s_mov_b64 exec, -1")
    if TLW >= 2:
        a("s_mul_i32 s%d, s%d, %d" % (sT0, sRT2, 64 * 896)); a("s_lshl_b32 s%d, s%d, 7" % (sT1, sCT)); a("s_add_u32 s%d, s%d, s%d" % (sT0, sT0, sT1))
        a("v_mul_u32_u24 v5, %d, v1" % (4 * 896)); a("v_add_u32 v5, s%d, v5" % sT0)
        a("s_cmp_eq_u32 s%d, 2" % sKW); a("s_cselect_b32 exec_lo, 0xffff, 0"); a("s_mov_b32 exec_hi, 0")
        a.vm("global_load_dword v174, v5, s[10:11]", "tw")
        a("s_mov_b64 exec, -1")
    a("s_mul_i32 s%d, s%d, %d" % (sSTG, sKW, STG_W))
    a("s_add_u32 s%d, s%d, %d" % (sSTG, sSTG, L_STG))
    a("v_and_b32 v7, 15, v1")
    a("v_lshrrev_b32 v6, 4, v1")
    a("v_mul_u32_u24 v5, 272, v7")
    a("v_lshl_add_u32 v8, v6, 4, s%d" % sSTG)
    a("v_add_u32 v5, v5, v8")
    maps = [[0,1,2,3,4,5,6,7, 8,8,9,10,10,10,11,12],
            [0,0,0,1,1,1,2,2, 3,3,3,4,4,4,5,5],
            [6,6,6,6,6,7,7,7, 8,8,8,8,8,9,9,9],
            [10,10,10,10,10,11,11,11, 12,12,12,12,12,13,13,13]]
    XA = [12, 13, 14, 15]
    a("v_lshlrev_b32 v9, 2, v7")
    a("v_and_b32 v9, 31, v9")
    a("v_cmp_gt_u32 vcc, 8, v7")
    for t in range(4):
        lo = sum(maps[t][i] << (4 * i) for i in range(8)); hi = sum(maps[t][8 + i] << (4 * i) for i in range(8))
        a("v_mov_b32 v10, 0x%x" % hi); a("v_mov_b32 v11, 0x%x" % lo)
        a("v_cndmask_b32 v10, v10, v11, vcc")
        a("v_lshrrev_b32 v10, v9, v10")
        a("v_and_b32 v10, 15, v10")
        a("v_mul_u32_u24 v10, 272, v10")
        a("v_add_u32 v%d, v10, v8" % XA[t])
    D = lambda t, yt: 128 + 8 * t + 4 * yt
    TRIM = ENV("TRIM", 1)
    if not TRIM:
        for r in range(128, 160): a("v_mov_b32 v%d, 0" % r)
    a("s_add_u32 s%d, s%d, %d" % (sT0, sKW, L_SYNC)); a("v_mov_b32 v161, s%d" % sT0)
    a("s_xor_b32 s%d, s%d, 1" % (sT1, sKW)); a("s_add_u32 s%d, s%d, %d" % (sT1, sT1, L_SYNC)); a("v_mov_b32 v162, s%d" % sT1)
    a("v_mov_b32 v163, 1")
    srd(a, SDBG, 12, 256)
    a("s_and_b32 s%d, s2, 7" % sT0); a("s_lshl_b32 s%d, s%d, 13" % (sT0, sT0)); a("s_add_u32 s%d, s%d, %d" % (sT0, sT0, WS_PF))
    a("v_and_b32 v112, 31, v1"); a("v_lshl_add_u32 v112, v112, 8, s%d" % sT0)
    a("v_mov_b32 v113, 64")
    a("v_mov_b32 v114, %d" % (L_SYNC + Y_RDA))
    a("s_cmp_lg_u32 s%d, 0" % sKW)
    a("s_cselect_b32 s%d, 0, 1" % sPM)
    def setf(off):
        a("s_mov_b64 exec, 1")
        a("ds_write_b8 v161, v163 offset:%d" % off)
        a("s_mov_b64 exec, -1")
    def waitp(off, tmp=164, tmpa=165):
        a("v_add_u32 v%d, %d, v162" % (tmpa, off))
        spin_lds(tmpa, tmp, 1)
    hooks = {}
    kc = [0]
    def k(t):
        a(t); kc[0] += 1
        if kc[0] in hooks: hooks.pop(kc[0])()
    if NSTA:
        srd(a, SWD, 8, 1792 * 896)
        a("v_lshrrev_b32 v16, 3, v1")
        a("s_mul_i32 s%d, s%d, %d" % (sT0, sKW, 448 * 896))
        a("v_mul_u32_u24 v16, 896, v16")
        a("s_lshl_b32 s%d, s%d, 7" % (sT1, sCT)); a("s_add_u32 s%d, s%d, s%d" % (sT0, sT0, sT1))
        a("v_add_u32 v16, s%d, v16" % sT0)
        a("v_bfe_u32 v18, v1, 4, 1"); a("v_xor_b32 v17, v1, v18"); a("v_and_b32 v17, 7, v17")
        a("v_lshl_add_u32 v170, v17, 4, v16")
    def st_ld(n):
        s_ = 14 - NSTA + n // 4; q = n % 4
        a("s_mov_b32 s%d, %d" % (sOW, ((2 * (s_ % 7) + s_ // 7) * 32 + 8 * q) * 896))
        a("buffer_load_dwordx4 %s, v%d, s[%d:%d], s%d offen" % (vr(176 + 4 * n, 4), 170, SWD, SWD + 3, sOW))
    SP0 = ENV("SP0", 300); SPD = ENV("SPD", 20)
    if SP0 >= 0:
        for n in range(4 * NSTA): hooks[SP0 + SPD * n] = lambda n=n: (st_ld(n), nst.append(n))
    if PFA > 1: hooks[PFA] = lambda: pf_w("A", False)
    if PFB and PFBT > 1: hooks[PFBT] = lambda: pf_w("B", False)
    if ENV("PFC", 0): hooks[ENV("PFC", 0)] = pf_c
    if ENV("PFF", 153): hooks[ENV("PFF", 153)] = pf_f
    if PFH > 1: hooks[PFH] = lambda: pf_h(False)
    if PFO > 1: hooks[PFO] = lambda: pf_o(False)
    nst = []
    a("v_lshlrev_b32 v172, 4, v1")
    if AL == 2:
        srd(a, SOUT, 10, 2048 * 896)
        a("v_lshrrev_b32 v16, 3, v1"); a("v_mul_u32_u24 v16, %d, v16" % (TS - 128)); a("v_add_u32 v172, v172, v16")
    a("s_cmp_lg_u32 s15, 0"); a("s_cselect_b32 s%d, 31, 30" % sT0); a("s_lshl_b32 s%d, s%d, 2" % (sT0, sT0)); a("v_mov_b32 v173, s%d" % sT0)
    def u_poll():
        a("s_cmp_lg_u32 s%d, 0" % sPM); a("s_cselect_b32 exec_lo, -1, 0"); a("s_mov_b32 exec_hi, 0")
        a("buffer_load_dword v169, v112, s[%d:%d], 0 offen sc1" % (SWS, SWS + 3))
        a("s_mov_b64 exec, -1")
        del nst[:]
    def u_dma():
        if AL == 2:
            a("s_and_b32 s%d, s%d, 63" % (sOW, sCH)); a("s_mul_i32 s%d, s%d, 7" % (sOW, sOW)); a("s_lshr_b32 s%d, s%d, 6" % (sPM, sCH))
            a("s_add_u32 s%d, s%d, s%d" % (sOW, sOW, sPM)); a("s_lshl_b32 s%d, s%d, 7" % (sOW, sOW))
            for c in range(2):
                a("s_mov_b32 m0, %d" % (L_CV + c * CV_CH + O_U + 480))
                for q in range(4):
                    a("buffer_load_dwordx4 v172, s[%d:%d], s%d offen offset:%d lds" % (SOUT, SOUT + 3, sOW, q * 1024))
                    if q < 3: a("s_add_u32 s%d, s%d, %d" % (sOW, sOW, 8 * TS - 1024))
                    elif c == 0: a("s_sub_u32 s%d, s%d, %d" % (sOW, sOW, 3 * (8 * TS - 1024) - 896))
        else:
            a("s_mul_i32 s%d, s%d, %d" % (sOW, sCH, XST))
            a("s_add_u32 s%d, s%d, %d" % (sOW, sOW, WS_XNT))
        for c in range(2 if AL != 2 else 0):
            a("s_mov_b32 m0, %d" % (L_CV + c * CV_CH + O_U + 480))
            if c: a("s_add_u32 s%d, s%d, %d" % (sOW, sOW, XST))
            for q in range(4): a("buffer_load_dwordx4 v172, s[%d:%d], s%d offen offset:%d lds" % (SWS, SWS + 3, sOW, q * 1024))
        a("s_mov_b32 m0, %d" % (L_SYNC + Y_U))
        a("s_mov_b64 exec, 1")
        a("global_load_lds_dword v173, s[0:1]")
        a("s_mov_b64 exec, -1")
        a("s_mov_b32 s%d, 0" % sPM)
    def u_try():
        l = L("UT")
        a("s_cmp_eq_u32 s%d, 0" % sPM)
        a("s_cbranch_scc1 %s" % l)
        a.begin_opt()
        a("s_waitcnt vmcnt(%d)" % len(nst))
        a("v_cmp_ne_u32 vcc, s%d, v169" % sNON)
        a("s_cmp_lg_u32 vcc_lo, 0")
        a("s_cbranch_scc1 %s" % l)
        u_dma()
        a("s_mov_b32 m0, s%d" % sSTG)
        a.end_opt()
        a.label(l)
        a("s_nop 0")
    for p_ in os.environ.get("UP", "781,851").split(","):
        hooks[int(p_)] = u_poll; hooks[int(p_) + ENV("UD", 66)] = u_try
    def nonce_pub():
        ln2 = L("NF")
        a("s_cmp_eq_u32 s%d, 0" % sPM)
        a("s_cbranch_scc1 %s" % ln2)
        a.begin_opt()
        get_nonce(a, L, 113, 116, pre=True)
        a("s_mov_b64 exec, 1")
        a("ds_write_b64 v114, v[116:117] offset:%d" % (Y_NON - Y_RDA))
        a("s_mov_b64 exec, -1")
        a.end_opt()
        a.label(ln2)
    def pf_wd():
        srd(a, SWD, 8, 1792 * 896)
        a("s_lshr_b32 s%d, s2, 3" % sT0); a("s_sub_u32 s%d, s%d, 4" % (sT0, sT0)); a("s_lshl_b32 s%d, s%d, 2" % (sT0, sT0)); a("s_add_u32 s%d, s%d, s%d" % (sT0, sT0, sKW))
        a("s_mul_i32 s%d, s%d, %d" % (sT0, sT0, 112 * 128))
        a("v_lshlrev_b32 v200, 7, v1")
        a("s_add_u32 s%d, s%d, %d" % (sT1, sT0, 48 * 128))
        a("buffer_load_dword v201, v200, s[%d:%d], s%d offen" % (SWD, SWD + 3, sT0))
        a("buffer_load_dword v202, v200, s[%d:%d], s%d offen" % (SWD, SWD + 3, sT1))
    PFW = ENV("PFW", -1)
    GB, FB = (171, 175) if TRIM else (6, 7)
    if TRIM:
        a("v_lshl_add_u32 v18, v1, 4, s%d" % sSTG)
        a("s_xor_b32 s%d, s%d, 1" % (sT0, sKW)); a("s_mul_i32 s%d, s%d, %d" % (sT0, sT0, STG_W)); a("s_add_u32 s%d, s%d, %d" % (sT0, sT0, L_STG))
        a("v_lshl_add_u32 v19, v1, 4, s%d" % sT0)
        a("v_and_b32 v10, v6, v7"); a("v_and_b32 v10, s%d, v10" % sHF)
        a("v_cmp_ne_u32 s[16:17], 0, v10")
        a("v_lshrrev_b32 v10, 1, v6"); a("v_lshlrev_b32 v10, 9, v10")
        a("v_lshl_add_u32 v10, v7, 4, v10")
        a("v_and_b32 v11, 1, v6"); a("v_lshl_add_u32 v10, v11, 3, v10")
        a("s_add_u32 s%d, s%d, %d" % (sT0, sCVB, 4088 - 1024 - 256))
        a("s_lshl_b32 s%d, s%d, 11" % (sT2, sHF))
        a("s_sub_u32 s%d, s%d, s%d" % (sT0, sT0, sT2))
        a("v_sub_u32 v115, s%d, v10" % sT0)
        a("v_and_b32 v118, 3, v1"); a("v_add_u32 v118, %d, v118" % (L_SYNC + Y_CNT))
        a("v_lshlrev_b32 v4, 4, v1")
        for r in range(60, 64): a("v_mov_b32 v%d, 0" % r)
        a("v_add_u32 v119, %d, v4" % O_U)
        a("v_bfe_u32 v10, v1, 2, 2")
        a("v_mul_u32_u24 v10, %d, v10" % CPS)
        a("v_and_b32 v11, 3, v1")
        a("v_lshl_add_u32 v10, v11, 4, v10")
        a("v_add_u32 v10, 4096, v10")
        a("v_cmp_gt_u32 vcc, 32, v1")
        a("v_cndmask_b32 v119, v10, v119, vcc")
        a("v_add_u32 v119, s%d, v119" % sCVB)
        a("v_sub_u32 v10, 3, v7"); a("v_and_b32 v10, 3, v10")
        a("v_mul_u32_u24 v171, %d, v10" % CPS)
        a("v_add_u32 v11, v7, v10")
        a("v_sub_u32 v11, %d, v11" % (2031 - 16 * 126))
        a("v_lshl_add_u32 v11, v6, 3, v11")
        a("v_lshl_add_u32 v171, v11, 1, v171")
        a("s_lshl_b32 s%d, s%d, 8" % (sT0, sHF))
        a("s_sub_u32 s%d, s%d, s%d" % (sT1, sCVB, sT0))
        a("v_add_u32 v171, s%d, v171" % sT1)
        a("v_lshlrev_b32 v175, 5, v7")
        a("v_lshl_add_u32 v175, v6, 4, v175")
        a("v_add_u32 v175, %d, v175" % O_U)
        a("v_add_u32 v175, s%d, v175" % sT1)
        a("s_add_u32 s%d, s%d, s%d" % (sT3, sCVB, sT2))
        a("v_add_u32 v168, s%d, v4" % sT3)
        a("s_and_b32 s%d, s%d, 2" % (sT0, sKW)); a("s_lshl_b32 s%d, s%d, 2" % (sT0, sT0)); a("s_add_u32 s%d, s%d, %d" % (sT0, sT0, L_SYNC + Y_KEXP))
        a("v_mov_b32 v9, s%d" % sT0)
    a.wait_vm("param")
    if TRIM: a("v_mov_b32 v2, v7"); a("v_mov_b32 v3, v6")
    if PFW == 0: pf_wd()
    sk_("param")
    a("s_mov_b32 exec_lo, s%d" % sPM); a("s_mov_b32 exec_hi, 0")
    a("buffer_load_dwordx2 v[116:117], v113, s[%d:%d], 0 offen sc1" % (SDBG, SDBG + 3))
    a("s_mov_b64 exec, -1")
    if "nokgen" in EXP: nonce_pub()
    for it in range(2):
        for r in P[it]: k("v_lshlrev_b32 v%d, 16, v%d" % (r, r))
    k("v_lshlrev_b32 v26, 16, v26")
    k("v_mul_f32 v26, %s, v26" % fbits(LOG2E))
    k("v_exp_f32 v26, v26")
    k("v_cvt_pk_bf16_f32 v26, v26, v26")
    k("v_lshlrev_b32 v26, 16, v26")
    WR = [28, 126]
    for it in range(2):
        p = P[it]
        k("v_mul_f32 v%d, v26, v%d" % (p[0], p[0])); k("v_mul_f32 v%d, v26, v%d" % (p[1], p[1]))
        k("v_mul_f32 v%d, v26, v%d" % (p[2], p[2])); k("v_mul_f32 v%d, v26, v%d" % (p[3], p[3]))
        w = WR[it]
        k("v_mul_f32 v%d, v%d, v%d" % (w, p[4], p[2])); k("v_fma_f32 v%d, -v%d, v%d, v%d" % (w, p[5], p[3], w))
        k("v_mul_f32 v%d, v%d, v%d" % (w + 1, p[4], p[3])); k("v_fma_f32 v%d, v%d, v%d, v%d" % (w + 1, p[5], p[2], w + 1))
    k("v_max_f32 v27, abs(v28), abs(v29)")
    k("v_max3_f32 v27, abs(v126), abs(v127), v27")
    for sh in (1, 2, 4, 8):
        k("v_max_f32_dpp v27, v27, v27 row_shr:%d row_mask:0xf bank_mask:0xf" % sh)
    k("v_max_f32_dpp v27, v27, v27 row_bcast:15 row_mask:0xa bank_mask:0xf")
    k("v_max_f32_dpp v27, v27, v27 row_bcast:31 row_mask:0xc bank_mask:0xf")
    k("v_readlane_b32 s%d, v27, 63" % sINV)
    k("s_lshr_b32 s%d, s%d, 23" % (sINV, sINV))
    if TRIM: k("s_add_u32 s%d, s%d, 1" % (sINV, sINV))
    else:
        k("s_sub_u32 s%d, 254, s%d" % (sSC, sINV))
        k("s_lshl_b32 s%d, s%d, 23" % (sSC, sSC))
    k("v_mov_b32 v10, s%d" % sINV)
    k("s_lshl_b32 s%d, s%d, 2" % (sT1, sKW))
    k("s_add_u32 s%d, s%d, %d" % (sT1, sT1, L_SYNC + Y_KEXP))
    k("v_mov_b32 v11, s%d" % sT1)
    k("ds_write_b32 v11, v10")
    def wscale():
        for w in WR:
            k("v_mul_f32 v%d, s%d, v%d" % (w, sSC, w)); k("v_mul_f32 v%d, s%d, v%d" % (w + 1, sSC, w + 1))
    def common_scale():
        l1, l2, l3 = L("KS"), L("KS"), L("KS")
        a("s_mov_b32 s%d, %d" % (sCNT, SPIN))
        a("s_waitcnt lgkmcnt(15)")
        a("s_branch %s" % l3)
        a.label(l1)
        a("ds_read_b64 v[10:11], v9")
        a("s_waitcnt lgkmcnt(0)")
        a.label(l3)
        a("v_readfirstlane_b32 s%d, v10" % sT0); a("v_readfirstlane_b32 s%d, v11" % sT1)
        a("s_min_u32 s%d, s%d, s%d" % (sSC, sT0, sT1))
        a("s_cmp_lg_u32 s%d, 0" % sSC)
        a("s_cbranch_scc1 %s" % l2)
        a("s_sub_u32 s%d, s%d, 1" % (sCNT, sCNT)); a("s_cmp_lg_u32 s%d, 0" % sCNT)
        a("s_cbranch_scc1 %s" % l1)
        a.label(l2)
        a("s_max_u32 s%d, s%d, s%d" % (sINV, sT0, sT1))
        a("s_sub_u32 s%d, 255, s%d" % (sSC, sINV)); a("s_lshl_b32 s%d, s%d, 23" % (sSC, sSC))
        a("s_sub_u32 s%d, s%d, 1" % (sINV, sINV)); a("s_lshl_b32 s%d, s%d, 23" % (sINV, sINV))
        wscale()
    if not TRIM: wscale()
    k("s_mov_b32 m0, s%d" % sSTG)
    if ENV("KV", 0):
        k("v_lshl_add_u32 v164, v1, 2, s%d" % sSTG)
        for i in range(1, 4): k("v_add_u32 v%d, %d, v164" % (164 + i, i * 4 * 272))
    E1, E8, E256, E2, E4, E16 = 30, 32, 34, 36, 38, 40
    tmpi = [0]
    def cmul(d, x, y):
        t = 42 + (tmpi[0] & 3); tmpi[0] += 1
        assert d != y
        k("v_mul_f32 v%d, v%d, v%d" % (t, x, y + 1))
        k("v_mul_f32 v%d, v%d, v%d" % (d, x, y))
        k("v_fma_f32 v%d, -v%d, v%d, v%d" % (d, x + 1, y + 1, d))
        k("v_fma_f32 v%d, v%d, v%d, v%d" % (d + 1, x + 1, y, t))
    PK = [46, 47, 48, 49]; pki = [0]
    def put(row, r, negim=False):
        p = PK[pki[0] & 3]; pki[0] += 1
        k("v_cvt_pk_f16_f32 v%d, v%d, %sv%d" % (p, r, "-" if negim else "", r + 1))
        if "nokw" in EXP or ("halfkw" in EXP and (pki[0] & 1)): k("; skip"); return
        k("ds_write_addtid_b32 v%d offset:%d" % (p, row * 272))
    KV = ENV("KV", 0)
    KB = [164, 165, 166, 167]
    def wr2(row, st, single=False):
        if single: k("ds_write_b32 v%d, v%d offset:%d" % (KB[row >> 2], PK[2 * st], (row & 3) * 272))
        elif row & 1: k("ds_write2_b32 v%d, v%d, v%d offset0:%d offset1:%d" % (KB[row >> 2], PK[2 * st], PK[2 * st + 1], ((row & 3) - 1) * 68, (row & 3) * 68))
    def put2(row, r, negim=False, st=None, single=False):
        if st is None: st = (row >> 1) & 1
        k("v_cvt_pk_f16_f32 v%d, v%d, %sv%d" % (PK[2 * st + (row & 1)], r, "-" if negim else "", r + 1))
        wr2(row, st, single)
    def leaf(row, x, y, negim=False, st=None, single=False):
        if st is None: st = (row >> 1) & 1
        p_ = PK[2 * st + (row & 1)]; n_ = "-" if negim else ""
        t = 42 + (tmpi[0] & 3); t2 = 42 + ((tmpi[0] + 1) & 3); tmpi[0] += 2
        k("v_mul_f32 v%d, v%d, v%d" % (t, x + 1, y + 1))
        k("v_mul_f32 v%d, v%d, v%d" % (t2, x, y + 1))
        k("v_fma_mixlo_f16 v%d, v%d, v%d, -v%d" % (p_, x, y, t))
        return lambda: (k("v_fma_mixhi_f16 v%d, %sv%d, v%d, %sv%d" % (p_, n_, x + 1, y, n_, t2)), wr2(row, st, single))
    YF = [64, 80]; XFB = 96
    for it in range(2 if "nokgen" not in EXP else 0):
        are, aim = P[it][0], P[it][1]
        if it == 1 and PFW == 1: pf_wd()
        X0 = WR[it]
        def cexp(d, Lx):
            k("v_mul_f32 v16, %s, v%d" % (fbits(Lx * LOG2E), are))
            k("v_mul_f32 v17, %s, v%d" % (fbits(Lx / (2 * math.pi)), aim))
            k("v_exp_f32 v16, v16")
            k("v_fract_f32 v17, v17")
            k("v_cos_f32 v%d, v17" % d)
            k("v_sin_f32 v%d, v17" % (d + 1))
            k("v_mul_f32 v%d, v16, v%d" % (d, d))
            k("v_mul_f32 v%d, v16, v%d" % (d + 1, d + 1))
        cexp(E8, 8); cexp(E1, 1); cexp(E256, 256)
        cmul(E16, E8, E8); cmul(E2, E1, E1); cmul(E4, E2, E2)
        def xtile(t):
            for ks in range(4): k("ds_read_b128 %s, v%d offset:%d" % (vr(XFB + 4 * ks, 4), XA[t], ks * 64))
        def xmfma(t):
            for ks in range(4):
                for yt in range(2):
                    k("v_mfma_f32_16x16x32_f16 %s, %s, %s, %s" % (vr(D(t, yt), 4), vr(XFB + 4 * ks, 4), vr(YF[yt] + 4 * ks, 4), "0" if TRIM and it == 0 and ks == 0 else vr(D(t, yt), 4)))
        if KV:
            YY = [50, 52]
            k("v_mov_b32 v%d, 0x3c00" % PK[0])
            put2(1, E8)
            cur = E16
            for j in range(2, 32, 2):
                f_ = leaf((j + 1) & 15, cur, E8)
                put2(j & 15, cur)
                f_()
                if j + 2 < 32:
                    nx = YY[(j >> 1) & 1]; cmul(nx, cur, E16); cur = nx
                if TRIM and it == 0 and j == 10: k("ds_read_b64 v[10:11], v9")
                if j == 14:
                    for ks in range(4): k("ds_read_b128 %s, v5 offset:%d" % (vr(YF[0] + 4 * ks, 4), ks * 64))
            for ks in range(4): k("ds_read_b128 %s, v5 offset:%d" % (vr(YF[1] + 4 * ks, 4), ks * 64))
            Xa, Xb, Xc = 54, 56, 58
            if it == 0 and TRIM: common_scale()
            if it == 0: nonce_pub()
            cmul(Xb, X0, E256)
            ca, cb = X0, Xb
            for i in range(4):
                f_ = leaf(2 * i + 1, ca, E1, True, 0); put2(2 * i, ca, True, 0); f_()
                if i < 3:
                    nx = (Xa, 50)[i & 1]; cmul(nx, ca, E2); ca = nx
                if i < 2:
                    f_ = leaf(9 + 2 * i, cb, E2, True, 1); put2(8 + 2 * i, cb, True, 1); f_()
                    if i == 0: cmul(Xc, cb, E4); cb = Xc
                if i == 2:
                    f_ = leaf(12, cb, E4, True, 1, True); k("s_nop 0"); f_()
            xtile(0)
            XX = [Xa, Xb]
            cmul(Xa, Xb, E256)
            f_ = leaf(1, Xa, E4, True); put2(0, Xa, True); f_()
            cmul(Xb, Xa, E256)
            f_ = leaf(2, Xa, E8, True); k("v_cvt_pk_f16_f32 v%d, v%d, -v%d" % (PK[3], Xb, Xb + 1)); f_(); wr2(3, 1)
            f_ = leaf(4, Xb, E4, True); g_ = leaf(5, Xb, E8, True); f_(); g_()
            k("s_waitcnt lgkmcnt(3)")
            xmfma(0)
            xtile(1)
            cur = Xb
            for b in range(4):
                nx = XX[b & 1]; cmul(nx, cur, E256); cur = nx
                f_ = leaf(7 + 2 * b, cur, E8, True); put2(6 + 2 * b, cur, True); f_()
            k("s_waitcnt lgkmcnt(4)")
            xmfma(1)
        else:
            Ya, Yb = 50, 52
            k("v_mov_b32 v50, 1.0"); k("v_mov_b32 v51, 0")
            put(0, Ya); put(1, E8)
            cmul(Yb, E8, E16)
            put(2, E16); put(3, Yb)
            cmul(Ya, E16, E16)
            for j in range(4, 32, 2):
                cmul(Yb, Yb, E16)
                put(j & 15, Ya); put((j + 1) & 15, Yb)
                if j + 2 < 32: cmul(Ya, Ya, E16)
                if TRIM and it == 0 and j == ENV("KSJ", 12): k("ds_read_b64 v[10:11], v9")
                if j == 14:
                    for ks in range(4): k("ds_read_b128 %s, v5 offset:%d" % (vr(YF[0] + 4 * ks, 4), ks * 64))
            for ks in range(4): k("ds_read_b128 %s, v5 offset:%d" % (vr(YF[1] + 4 * ks, 4), ks * 64))
            Xa, Xb, Xc = 54, 56, 58
            if it == 0 and TRIM: common_scale()
            if it == 0: nonce_pub()
            put(0, X0, True)
            cmul(Xa, X0, E1); cmul(Xb, X0, E256)
            put(1, Xa, True); put(8, Xb, True)
            cmul(Xc, Xb, E2)
            for r in range(2, 8):
                cmul(Xa, Xa, E1); put(r, Xa, True)
                if r <= 5:
                    put(9 + (r - 2), Xc, True)
                    if r < 5: cmul(Xc, Xc, E2)
            def xtile(t):
                for ks in range(4): k("ds_read_b128 %s, v%d offset:%d" % (vr(XFB + 4 * ks, 4), XA[t], ks * 64))
            def xmfma(t):
                for ks in range(4):
                    for yt in range(2):
                        k("v_mfma_f32_16x16x32_f16 %s, %s, %s, %s" % (vr(D(t, yt), 4), vr(XFB + 4 * ks, 4), vr(YF[yt] + 4 * ks, 4), "0" if TRIM and it == 0 and ks == 0 else vr(D(t, yt), 4)))
            xtile(0)
            for b in range(2):
                cmul(Xb, Xb, E256); put(3 * b, Xb, True)
                cmul(Xc, Xb, E4); put(3 * b + 1, Xc, True)
                cmul(Xa, Xb, E8); put(3 * b + 2, Xa, True)
            k("s_waitcnt lgkmcnt(6)")
            xmfma(0)
            xtile(1)
            for b in range(4):
                cmul(Xb, Xb, E256); put(6 + 2 * b, Xb, True)
                cmul(Xa, Xb, E8); put(7 + 2 * b, Xa, True)
            k("s_waitcnt lgkmcnt(8)")
            xmfma(1)
        for t in (2, 3):
            xtile(t)
            k("s_waitcnt lgkmcnt(0)")
            xmfma(t)
    if ENV("VERB", 0): print("kgen instrs", kc[0])
    if "nokgen" in EXP:
        for kk_ in sorted(hooks): hooks[kk_]()
        hooks.clear()
    assert not hooks
    sk_("kgen")
    a("s_setprio %d" % ENV("XPRIO", 2))
    u_poll()
    if TRIM:
        x1, x2 = L("X"), L("X")
        a("s_cmp_lg_u32 s%d, 0" % sHF)
        a("s_cbranch_scc1 %s" % x1)
        a.begin_opt()
        for i in range(4): a("ds_write_b128 v18, %s offset:%d" % (vr(144 + 4 * i, 4), i * 1024))
        setf(Y_KX)
        waitp(Y_KX)
        for i in range(4): a("ds_read_b128 %s, v19 offset:%d" % (vr(144 + 4 * i, 4), i * 1024))
        a("s_branch %s" % x2)
        a.end_opt()
        a.label(x1)
        a.begin_opt()
        for i in range(4): a("ds_write_b128 v18, %s offset:%d" % (vr(128 + 4 * i, 4), i * 1024))
        setf(Y_KX)
        waitp(Y_KX)
        for i in range(4): a("ds_read_b128 %s, v19 offset:%d" % (vr(128 + 4 * i, 4), i * 1024))
        a.end_opt()
        a.label(x2)
        a("ds_read_u8 v164, v118 offset:%d" % Y_RD)
        a("s_lshl_b32 s%d, s%d, 11" % (sT2, sHF))
        a("s_add_u32 s%d, s%d, s%d" % (sT3, sCVB, sT2))
        for i in range(4):
            b = 128 + 4 * i
            a("s_waitcnt lgkmcnt(%d)" % (4 - i))
            for e in range(4): a("v_add_f32 v%d, v%d, v%d" % (b + e, b + e, b + 16 + e))
            a("v_cndmask_b32 v%d, v%d, v%d, s[16:17]" % (b, b, b + 1))
            a("v_cvt_pk_f16_f32 v%d, v%d, v%d" % (64 + 2 * i, b + 3, b + 2))
            a("v_cvt_pk_f16_f32 v%d, v%d, v%d" % (65 + 2 * i, b + 1, b))
        xs = L("XS")
        a("s_waitcnt lgkmcnt(0)")
        a("v_cmp_gt_u32 vcc, 10, v164")
        a("s_cbranch_vccz %s" % xs)
        a.begin_opt()
        spin_lds(118, 164, 10, slp=4, off=Y_RD)
        a.end_opt()
        a.label(xs)
        for tl in range(2):
            for yt in range(2):
                a("ds_write_b64 v115, %s offset:%d" % (vr(64 + 4 * tl + 2 * yt, 2), (1 - tl) * 1024 + (1 - yt) * 256))
        a("s_setprio %d" % int(os.environ.get("CPRIO", "2")))
        a("s_cmp_lg_u32 s%d, 0" % sHF)
        a("s_cselect_b32 exec_lo, 0, 0x3fffffff"); a("s_cselect_b32 exec_hi, 0, 0xffff")
        a("ds_write_b128 v119, v[60:63]")
        setf(Y_C0)
        a("v_mov_b32 v5, v168")
    else:
        a("v_lshl_add_u32 v18, v1, 4, s%d" % sSTG)
        a("s_xor_b32 s%d, s%d, 1" % (sT0, sKW))
        a("s_mul_i32 s%d, s%d, %d" % (sT0, sT0, STG_W))
        a("s_add_u32 s%d, s%d, %d" % (sT0, sT0, L_STG))
        a("v_lshl_add_u32 v19, v1, 4, s%d" % sT0)
        x1, x2 = L("X"), L("X")
        a("s_cmp_lg_u32 s%d, 0" % sHF)
        a("s_cbranch_scc1 %s" % x1)
        a.begin_opt()
        for i in range(4): a("ds_write_b128 v18, %s offset:%d" % (vr(144 + 4 * i, 4), i * 1024))
        a("s_branch %s" % x2)
        a.end_opt()
        a.label(x1)
        a.begin_opt()
        for i in range(4): a("ds_write_b128 v18, %s offset:%d" % (vr(128 + 4 * i, 4), i * 1024))
        for i in range(16): a("v_mov_b32 v%d, v%d" % (128 + i, 144 + i))
        a.end_opt()
        a.label(x2)
        setf(Y_KX)
        waitp(Y_KX)
        a("s_and_b32 s%d, s%d, 2" % (sT0, sKW))
        a("s_lshl_b32 s%d, s%d, 2" % (sT0, sT0))
        a("s_add_u32 s%d, s%d, %d" % (sT0, sT0, L_SYNC + Y_KEXP))
        a("v_mov_b32 v10, s%d" % sT0)
        a("ds_read_b64 v[10:11], v10")
        for i in range(4): a("ds_read_b128 %s, v19 offset:%d" % (vr(144 + 4 * i, 4), i * 1024))
        a("s_waitcnt lgkmcnt(4)")
        a("v_max_u32 v16, v10, v11")
        a("v_add_u32 v17, v10, v11"); a("v_subrev_u32 v17, s%d, v17" % sINV)
        def fac(dst, esrc):
            a("v_sub_u32 v%d, %s, v16" % (dst, esrc))
            a("v_add_u32 v%d, 127, v%d" % (dst, dst))
            a("v_max_i32 v%d, 0, v%d" % (dst, dst))
            a("v_lshlrev_b32 v%d, 23, v%d" % (dst, dst))
        fac(20, "s%d" % sINV); fac(22, "v17")
        a("v_lshlrev_b32 v9, 23, v16")
        a("s_waitcnt lgkmcnt(0)")
        for i in range(16):
            a("v_mul_f32 v%d, v20, v%d" % (128 + i, 128 + i))
            a("v_fmac_f32 v%d, v22, v%d" % (128 + i, 144 + i))
        a("v_and_b32 v10, v6, v7"); a("v_and_b32 v10, s%d, v10" % sHF)
        a("v_cmp_ne_u32 vcc, 0, v10")
        for i in range(4): a("v_cndmask_b32 v%d, v%d, v%d, vcc" % (128 + 4 * i, 128 + 4 * i, 129 + 4 * i))
        a("v_lshrrev_b32 v10, 1, v6"); a("v_lshlrev_b32 v10, 9, v10")
        a("v_lshl_add_u32 v10, v7, 4, v10")
        a("v_and_b32 v11, 1, v6"); a("v_lshl_add_u32 v10, v11, 3, v10")
        a("s_add_u32 s%d, s%d, %d" % (sT0, sCVB, 4088 - 1024 - 256))
        a("s_lshl_b32 s%d, s%d, 11" % (sT2, sHF))
        a("s_sub_u32 s%d, s%d, s%d" % (sT0, sT0, sT2))
        a("v_sub_u32 v10, s%d, v10" % sT0)
        for tl in range(2):
            for yt in range(2):
                b = 128 + 8 * tl + 4 * yt
                a("v_cvt_pk_f16_f32 v%d, v%d, v%d" % (64 + 4 * tl + 2 * yt, b + 3, b + 2))
                a("v_cvt_pk_f16_f32 v%d, v%d, v%d" % (65 + 4 * tl + 2 * yt, b + 1, b))
        a("v_and_b32 v11, 3, v1"); a("v_add_u32 v11, %d, v11" % (L_SYNC + Y_CNT))
        spin_lds(11, 164, 10, slp=4, off=Y_RD)
        for tl in range(2):
            for yt in range(2):
                a("ds_write_b64 v10, %s offset:%d" % (vr(64 + 4 * tl + 2 * yt, 2), (1 - tl) * 1024 + (1 - yt) * 256))
        if "dbgk" in EXP:
            a("s_mul_i32 s%d, s%d, %d" % (sT0, sCH, KSTRIDE)); a("s_sub_u32 s%d, s%d, s%d" % (sT0, sT0, sCVB)); a("s_add_u32 s%d, s%d, %d" % (sT0, sT0, WS_KREV))
            for tl in range(2):
                for yt in range(2):
                    a("buffer_store_dwordx2 %s, v10, s[%d:%d], s%d offen offset:%d" % (vr(64 + 4 * tl + 2 * yt, 2), SWS, SWS + 3, sT0, (1 - tl) * 1024 + (1 - yt) * 256))
            a("s_lshl_b32 s%d, s%d, 2" % (sT0, sCH)); a("s_add_u32 s%d, s%d, %d" % (sT0, sT0, WS_KSC)); a("v_mov_b32 v11, s%d" % sT0)
            a("buffer_store_dword v9, v11, s[%d:%d], 0 offen" % (SWS, SWS + 3))
        a("s_setprio %d" % int(os.environ.get("CPRIO", "2")))
        a("v_mov_b32 v2, v7"); a("v_mov_b32 v3, v6")
        a("v_lshlrev_b32 v4, 4, v1")
        a("v_mov_b32 v12, 0"); a("v_mov_b32 v13, 0"); a("v_mov_b32 v14, 0"); a("v_mov_b32 v15, 0")
        a("v_add_u32 v5, %d, v4" % O_U)
        a("v_bfe_u32 v6, v1, 2, 2")
        a("v_mul_u32_u24 v6, %d, v6" % CPS)
        a("v_and_b32 v7, 3, v1")
        a("v_lshl_add_u32 v6, v7, 4, v6")
        a("v_add_u32 v6, 4096, v6")
        a("v_cmp_gt_u32 vcc, 32, v1")
        a("v_cndmask_b32 v5, v6, v5, vcc")
        a("v_add_u32 v5, s%d, v5" % sCVB)
        nz = L("NZ")
        a("s_cmp_lg_u32 s%d, 0" % sHF)
        a("s_cbranch_scc1 %s" % nz)
        a.begin_opt()
        a("s_mov_b32 exec_lo, 0x3fffffff"); a("s_mov_b32 exec_hi, 0xffff")
        a("ds_write_b128 v5, v[12:15]")
        a("s_mov_b64 exec, -1")
        a.end_opt()
        a.label(nz)
        setf(Y_C0)
        a("v_sub_u32 v5, 3, v2"); a("v_and_b32 v5, 3, v5")
        a("v_mul_u32_u24 v6, %d, v5" % CPS)
        a("v_add_u32 v7, v2, v5")
        a("v_sub_u32 v7, %d, v7" % (2031 - 16 * 126))
        a("v_lshl_add_u32 v7, v3, 3, v7")
        a("v_lshl_add_u32 v6, v7, 1, v6")
        a("s_lshl_b32 s%d, s%d, 8" % (sT0, sHF))
        a("s_sub_u32 s%d, s%d, s%d" % (sT1, sCVB, sT0))
        a("v_add_u32 v6, s%d, v6" % sT1)
        a("v_lshlrev_b32 v7, 5, v2")
        a("v_lshl_add_u32 v7, v3, 4, v7")
        a("v_add_u32 v7, %d, v7" % O_U)
        a("v_add_u32 v7, s%d, v7" % sT1)
        a("s_add_u32 s%d, s%d, s%d" % (sT3, sCVB, sT2))
        a("v_add_u32 v5, s%d, v4" % sT3)
    lq, lq2, lq3 = L("PB"), L("PB"), L("PB")
    a("s_cmp_eq_u32 s%d, 0" % sPM)
    a("s_cbranch_scc1 %s" % lq3)
    a.begin_opt()
    a("s_mov_b32 s%d, %d" % (sOX, SPIN))
    a.label(lq)
    a("s_waitcnt vmcnt(0)")
    a("v_cmp_ne_u32 vcc, s%d, v169" % sNON)
    a("s_cmp_eq_u32 vcc_lo, 0")
    a("s_cbranch_scc1 %s" % lq2)
    a("s_sleep %d" % int(os.environ.get("PSL", "20")))
    a("s_mov_b32 exec_hi, 0")
    a("buffer_load_dword v169, v112, s[%d:%d], 0 offen sc1" % (SWS, SWS + 3))
    a("s_mov_b64 exec, -1")
    a("s_sub_u32 s%d, s%d, 1" % (sOX, sOX)); a("s_cmp_lg_u32 s%d, 0" % sOX)
    a("s_cbranch_scc1 %s" % lq)
    a.label(lq2)
    u_dma()
    a.end_opt()
    a.label(lq3)
    sk_("rdyB")
    waitp(Y_C0)
    for it in range(2):
        b = 32 + 8 * it
        a("ds_read_b128 %s, v5 offset:%d" % (vr(b, 4), it * 1024))
        a("ds_read_b64 %s, v5 offset:%d" % (vr(b + 4, 2), it * 1024 + 16))
    for it in range(2):
        b = 32 + 8 * it
        a("s_waitcnt lgkmcnt(%d)" % (2 if it == 0 else 3))
        d = [b + i for i in range(6)]
        c1, c2, c3 = 64 + 12 * it, 68 + 12 * it, 72 + 12 * it
        for i in range(4):
            a("v_alignbit_b32 v%d, v%d, v%d, 16" % (c1 + i, d[i + 1], d[i]))
            a("v_mov_b32 v%d, v%d" % (c2 + i, d[i + 1]))
            a("v_alignbit_b32 v%d, v%d, v%d, 16" % (c3 + i, d[i + 2], d[i + 1]))
        a("ds_write_b128 v5, %s offset:%d" % (vr(c1, 4), CPS + it * 1024))
        a("ds_write_b128 v5, %s offset:%d" % (vr(c2, 4), 2 * CPS + it * 1024))
        a("ds_write_b128 v5, %s offset:%d" % (vr(c3, 4), 3 * CPS + it * 1024))
    sk_("copies")
    CA = 16; G = 64; F = 96
    if not TRIM:
        for r in range(CA, CA + 32): a("v_mov_b32 v%d, 0" % r)
    setf(Y_BL)
    spin_lds(114, 164, 1, width="b32", slp=1, off=Y_U - Y_RDA)
    a("ds_read_b64 v[166:167], v114 offset:%d" % (Y_NON - Y_RDA))
    waitp(Y_BL)
    sk_("built")
    if YP == 3 and "nopp" not in EXP:
        a("v_mov_b32 v174, v112")
        a("s_mov_b32 exec_hi, 0")
        a("buffer_load_dword v169, v174, s[%d:%d], 0 offen offset:128 sc1" % (SWS, SWS + 3))
        a("s_mov_b64 exec, -1")
    a("s_setprio %d" % ENV("MPRIO", 1))
    def rg(ri, q):
        o = 32 * (126 - 16 * q - 2 * ri)
        a("ds_read_b64 %s, v%d offset:%d" % (vr(G + 4 * q, 2), GB, o))
        a("ds_read_b64 %s, v%d offset:%d" % (vr(G + 4 * q + 2, 2), GB, o + 8))
    def rf(ri, j):
        a("ds_read_b128 %s, v%d offset:%d" % (vr(F + 4 * j, 4), FB, 32 * (16 * j - 2 * ri + 14)))
    side = []
    S = side.append
    S("v_lshlrev_b32 v8, 16, v160")
    XW, XO = 128, 136
    for i in range(4):
        for pr in range(2):
            xw = XW + 2 * i + pr; o = XO + 4 * i + 2 * pr
            S("v_cvt_f32_f16 v%d, v%d" % (o, xw))
            S("v_lshrrev_b32 v%d, 16, v%d" % (o + 1, xw)); S("v_cvt_f32_f16 v%d, v%d" % (o + 1, o + 1))
            S("v_mul_f32 v%d, v8, v%d" % (o, o)); S("v_mul_f32 v%d, v8, v%d" % (o + 1, o + 1))
            S("v_cvt_pk_bf16_f32 v%d, v%d, v%d" % (o, o, o + 1))
            S("v_and_b32 v%d, 0xffff0000, v%d" % (o + 1, o)); S("v_lshlrev_b32 v%d, 16, v%d" % (o, o))
    S("v_lshl_add_u32 v5, v1, 4, s%d" % sSTG)
    S("s_xor_b32 s%d, s%d, 1" % (sT0, sKW))
    S("s_mul_i32 s%d, s%d, %d" % (sT0, sT0, STG_W))
    S("s_add_u32 s%d, s%d, %d" % (sT0, sT0, L_STG))
    S("v_lshl_add_u32 v152, v1, 4, s%d" % sT0)
    if AL == 2:
        S("v_and_b32 v13, 1, v3"); S("v_lshrrev_b32 v14, 2, v2"); S("v_lshl_add_u32 v13, v13, 2, v14"); S("v_mul_u32_u24 v13, %d, v13" % TS)
        S("s_mul_i32 s%d, s%d, %d" % (sT2, sHF, 16 * TS))
    else:
        S("v_and_b32 v13, 1, v3"); S("v_lshlrev_b32 v13, 9, v13")
        S("v_lshrrev_b32 v14, 2, v2"); S("v_lshl_add_u32 v13, v14, 7, v13")
    S("v_lshrrev_b32 v14, 1, v3"); S("v_lshl_add_u32 v13, v14, 6, v13")
    S("v_and_b32 v14, 3, v2"); S("v_lshl_add_u32 v13, v14, 4, v13")
    S("v_add_u32 v13, s%d, v13" % sT2)
    S("s_and_b32 s%d, s%d, 0xfffe" % (sT0, sCH)); S("s_add_u32 s%d, s%d, s%d" % (sT0, sT0, sHF)); S("s_lshl_b32 s%d, s%d, 8" % (sT0, sT0))
    S("s_and_b32 s%d, s%d, 1" % (sT1, sCH)); S("s_lshl_b32 s%d, s%d, 3" % (sT1, sT1))
    S("s_add_u32 s%d, s%d, s%d" % (sT0, sT0, sT1))
    S("s_add_u32 s%d, s%d, %d" % (sT0, sT0, WS_CF))
    S("v_mov_b32 v14, s%d" % sT0)
    S("v_readfirstlane_b32 s%d, v166" % sNON); S("v_readfirstlane_b32 s%d, v167" % (sNON + 1))
    S("s_lshl_b32 s%d, s%d, 14" % (sT0, sCT))
    S("s_lshl_b32 s%d, s%d, 12" % (sT1, sKW))
    S("s_add_u32 s%d, s%d, s%d" % (sT0, sT0, sT1))
    S("s_lshr_b32 s%d, s%d, 4" % (sT1, sRT2)); S("s_lshl_b32 s%d, s%d, 8" % (sT1, sT1))
    S("s_add_u32 s%d, s%d, s%d" % (sT0, sT0, sT1))
    S("s_add_u32 s%d, s%d, %d" % (sT0, sT0, WS_CF))
    S("v_lshrrev_b32 v153, 1, v2"); S("v_lshl_add_u32 v153, v153, 9, s%d" % sT0)
    S("v_and_b32 v154, 1, v2"); S("v_lshl_add_u32 v153, v154, 3, v153")
    S("s_lshl_b32 s%d, s%d, 4" % (sT0, sKW))
    S("v_lshrrev_b32 v154, 3, v1")
    S("v_add_u32 v154, s%d, v154" % sT0)
    if AL == 2:
        S("v_mul_u32_u24 v154, 896, v154")
        S("v_and_b32 v155, 7, v1")
        S("v_lshl_add_u32 v154, v155, 4, v154")
        S("s_mul_i32 s%d, s%d, %d" % (sT2, sRT2, TS)); S("s_lshl_b32 s%d, s%d, 7" % (sT0, sCT)); S("s_add_u32 s%d, s%d, s%d" % (sT2, sT2, sT0))
        S("s_add_u32 s%d, s%d, %d" % (sT3, sT2, 8 * 896))
        S("s_and_b32 s%d, s%d, 63" % (sT0, sCH)); S("s_mul_i32 s%d, s%d, 7" % (sT0, sT0)); S("s_lshr_b32 s%d, s%d, 6" % (sOW, sCH))
        S("s_add_u32 s%d, s%d, s%d" % (sT0, sT0, sOW)); S("s_lshl_b32 s%d, s%d, 7" % (sT0, sT0))
        S("s_add_u32 s%d, s%d, %d" % (sOW, sT0, 8 * TS))
    else:
        S("s_lshl_b32 s%d, s%d, 6" % (sT0, sCT))
        S("v_add_u32 v154, s%d, v154" % sT0)
        S("v_mul_u32_u24 v154, %d, v154" % YST)
        S("v_and_b32 v155, 7, v1")
        S("v_lshl_add_u32 v154, v155, 4, v154")
        S("s_lshl_b32 s%d, s%d, 7" % (sT2, sRT2))
        S("s_add_u32 s%d, s%d, %d" % (sT2, sT2, WS_YAT))
        S("s_add_u32 s%d, s%d, %d" % (sT3, sT2, 8 * YST))
        S("s_mul_i32 s%d, s%d, %d" % (sT0, sCH, YST))
        S("s_add_u32 s%d, s%d, %d" % (sT0, sT0, WS_YAT))
    S("v_add_u32 v165, %d, v162" % Y_CX)
    if NSTA:
        S("s_lshl_b32 s%d, s%d, 13" % (sOX, sHF)); S("s_add_u32 s%d, s%d, s%d" % (sOX, sOX, sCVB)); S("v_lshl_add_u32 v157, v1, 4, s%d" % sOX)
        if SP0 < 0:
            side2 = []
            for n in range(4 * NSTA): side2.append(n)
    def copy_part(part):
        for n in range(4 * NSTA):
            s_ = 14 - NSTA + n // 4; q = n % 4
            if (s_ >= 12) != (part == 1): continue
            if s_ >= 12: ad, of = 157, (s_ - 12) * 4096
            elif WDS[s_ % 6] >= 65536: ad, of = 158, WDS[s_ % 6] - 65536
            else: ad, of = 156, WDS[s_ % 6]
            a("ds_write_b128 v%d, %s offset:%d" % (ad, vr(176 + 4 * n, 4), of + q * 1024))
            cw = ENV("CW%d" % part, part + 1)
            if cw >= 100: a("s_sleep %d" % (cw - 100))
            elif cw:
                for _ in range(cw): a("s_nop 7")
        a("v_mov_b32 v159, %d" % (part + 1))
        a("s_mov_b64 exec, 1")
        a("ds_write_b8 v161, v159 offset:%d" % Y_WS)
        a("s_mov_b64 exec, -1")
    def copy_out():
        l = L("CA")
        a("s_cmp_lg_u32 s%d, 0" % sLD)
        a("s_cbranch_scc1 %s" % l)
        copy_part(0)
        a.label(l)
        copy_part(1)
    def copy_try():
        l = L("CA")
        a("v_cmp_gt_u32 vcc, 1, v164")
        a("s_cmp_lg_u32 s%d, 0" % sLD)
        a("s_cbranch_scc1 %s" % l)
        a("s_cbranch_vccnz %s" % l)
        a.begin_opt()
        a("s_waitcnt vmcnt(0)")
        a("s_mov_b32 s%d, 1" % sLD)
        copy_part(0)
        a.end_opt()
        a.label(l)
    CTRY = [int(x) for x in os.environ.get("CTRY", "9").split(",")]
    a("s_mov_b32 s%d, 0" % sLD)
    a("s_lshl_b32 s%d, s%d, 12" % (sOX, sKW)); a("v_lshl_add_u32 v156, v1, 4, s%d" % sOX); a("v_add_u32 v158, 65536, v156")
    a("v_lshlrev_b32 v13, 5, v2")
    a("v_lshl_add_u32 v13, v3, 3, v13")
    a("s_add_u32 s%d, s%d, %d" % (sT1, sT3, O_U + 480))
    a("v_add_u32 v14, s%d, v13" % sT1)
    for i in range(4): a("ds_read_b64 %s, v14 offset:%d" % (vr(XW + 2 * i, 2), i * 512))
    for q in range(8): rg(0, q); rf(0, 7 - q)
    nm = 0
    if "noconv" in EXP:
        a("s_waitcnt lgkmcnt(0)")
        while side: a(side.pop(0))
    EC = ENV("EC", 0); ECR = ENV("ECR", 2); ECS = ENV("ECS", 5); ECN = ENV("ECN", 1)
    ecq = []
    def ec_start():
        a("v_cmp_le_u32 s[86:87], 1, v164")
        a("v_mov_b32 v159, 1")
        a("s_and_b32 s%d, s86, 1" % sLD)
        a("s_waitcnt vmcnt(%d)" % (1 if YP == 3 else 0))
        for n in range(0, 12, ECN):
            ecq.append(["s_mov_b64 exec, s[86:87]"])
            for n_ in range(n, n + ECN):
                s_ = 9 + n_ // 4; hi = WDS[s_ % 6] >= 65536
                ecq[-1].append("ds_write_b128 v%d, %s offset:%d" % ((156, 158)[hi], vr(176 + 4 * n_, 4), WDS[s_ % 6] - 65536 * hi + (n_ % 4) * 1024))
            if n + ECN >= 12: ecq[-1] += ["s_mov_b32 exec_lo, s%d" % sLD, "s_mov_b32 exec_hi, 0", "ds_write_b8 v161, v159 offset:%d" % Y_WS]
            ecq[-1].append("s_mov_b64 exec, -1")
    for ri in range(4 if "noconv" not in EXP else 0):
        for q in range(8):
            for m in range(7, q - 1, -1):
                if q == 0:
                    a("s_waitcnt lgkmcnt(%d)" % min(15, 3 * m))
                a("v_mfma_f32_16x16x32_f16 %s, %s, %s, %s" % (vr(CA + 4 * m, 4), vr(G + 4 * q, 4), vr(F + 4 * (m - q), 4), "0" if TRIM and ri == 0 and q == 0 else vr(CA + 4 * m, 4)))
                nm += 1
                if NSTA and SP0 < 0 and side2 and nm % ENV("SPM", 4) == 0: st_ld(side2.pop(0))
                if nm > 8 and side:
                    a(side.pop(0))
                    while side and side[0].startswith("s_"): a(side.pop(0))
                if ecq and nm % ECS == 0:
                    for x in ecq.pop(0): a(x)
            if q == 0 and ri in CTRY: copy_try()
            if EC and q == 0 and ri == ECR: ec_start()
            if q == 7 and (ri + 1 in CTRY or (EC and ri + 1 == ECR)): a("ds_read_u8 v164, v161 offset:%d" % Y_TR)
            if ri + 1 < 4: rg(ri + 1, q); rf(ri + 1, 7 - q)
    assert not side and not ecq
    sk_("mfma")
    a("s_setprio %d" % ENV("PPRIO", 3))
    x1, x2 = L("X"), L("X")
    a("s_cmp_lg_u32 s%d, 0" % sHF)
    a("s_cbranch_scc1 %s" % x1)
    a.begin_opt()
    for i in range(4): a("ds_write_b128 v5, %s offset:%d" % (vr(CA + 16 + 4 * i, 4), i * 1024))
    a("s_mov_b64 exec, 1")
    a("ds_write_b8 v161, v163 offset:%d" % Y_CX)
    a("s_mov_b64 exec, -1")
    a("s_branch %s" % x2)
    a.end_opt()
    a.label(x1)
    a.begin_opt()
    for i in range(4): a("ds_write_b128 v5, %s offset:%d" % (vr(CA + 4 * i, 4), i * 1024))
    a("s_mov_b64 exec, 1")
    a("ds_write_b8 v161, v163 offset:%d" % Y_CX)
    a("s_mov_b64 exec, -1")
    for i in range(16): a("v_mov_b32 v%d, v%d" % (CA + i, CA + 16 + i))
    a.end_opt()
    a.label(x2)
    if YP == 3 and "nopp" not in EXP:
        lq, lq2 = L("PP"), L("PP")
        a("s_mov_b32 s%d, %d" % (sOX, SPIN))
        a.label(lq)
        a("s_waitcnt vmcnt(0)")
        a("v_cmp_ne_u32 vcc, s%d, v169" % sNON)
        a("s_cmp_eq_u32 vcc_lo, 0")
        a("s_cbranch_scc1 %s" % lq2)
        a("s_sleep 4")
        a("s_mov_b32 exec_hi, 0")
        a("buffer_load_dword v169, v174, s[%d:%d], 0 offen offset:128 sc1" % (SWS, SWS + 3))
        a("s_mov_b64 exec, -1")
        a("s_sub_u32 s%d, s%d, 1" % (sOX, sOX)); a("s_cmp_lg_u32 s%d, 0" % sOX)
        a("s_cbranch_scc1 %s" % lq)
        a.label(lq2)
    spin_lds(165, 164, 1, slp=0)
    if "hx" in EXP: sk_("xch")
    for i in range(4): a("ds_read_b128 %s, v152 offset:%d" % (vr(CA + 16 + 4 * i, 4), i * 1024))
    for i in range(4):
        a("s_waitcnt lgkmcnt(%d)" % (3 - i))
        for pr in range(2):
            y = CA + 4 * i + 2 * pr; o = XO + 4 * i + 2 * pr
            a("v_add_f32 v%d, v%d, v%d" % (y, y, y + 16)); a("v_add_f32 v%d, v%d, v%d" % (y + 1, y + 1, y + 17))
            ks_ = "s%d" % sINV if TRIM else "v9"
            a("v_mul_f32 v%d, %s, v%d" % (y, ks_, y)); a("v_mul_f32 v%d, %s, v%d" % (y + 1, ks_, y + 1))
            a("v_cvt_pk_bf16_f32 v%d, v%d, v%d" % (y, y, y + 1))
            a("v_and_b32 v%d, 0xffff0000, v%d" % (y + 1, y)); a("v_lshlrev_b32 v%d, 16, v%d" % (y, y))
            a("v_add_f32 v%d, v%d, v%d" % (y, y, o)); a("v_add_f32 v%d, v%d, v%d" % (y + 1, y + 1, o + 1))
            a("v_cvt_pk_bf16_f32 v%d, v%d, v%d" % (72 + 2 * i + pr, y, y + 1))
        if i & 1:
            b = 72 + 4 * (i >> 1)
            a("v_permlane16_swap_b32 v%d, v%d" % (b, b + 2)); a("v_permlane16_swap_b32 v%d, v%d" % (b + 1, b + 3))
            if AL == 2: a("buffer_store_dwordx4 %s, v13, s[%d:%d], s%d offen sc1" % (vr(b, 4), SOUT, SOUT + 3, (sT0, sOW)[i >> 1]))
            else: a("buffer_store_dwordx4 %s, v13, s[%d:%d], s%d offen offset:%d %s" % (vr(b, 4), SWS, SWS + 3, sT0, (i >> 1) * 1024, os.environ.get("YSM", "sc1").replace("_", " ")))
    setf(Y_XR)
    if "hx" in EXP: sk_("yst")
    def cflag():
        if YP: return
        a("s_waitcnt vmcnt(0)")
        a("s_mov_b64 exec, 1")
        a("buffer_store_dwordx2 v[166:167], v14, s[%d:%d], 0 offen sc1" % (SWS, SWS + 3))
        a("s_mov_b64 exec, -1")
    def yld(m=True):
        if m: a("s_mov_b64 exec, s[84:85]")
        a("buffer_load_dwordx4 v[104:107], v154, s[%d:%d], s%d offen sc1" % (SWS, SWS + 3, sT2))
        if m: a("s_mov_b64 exec, s[86:87]")
        a("buffer_load_dwordx4 v[108:111], v154, s[%d:%d], s%d offen sc1" % (SWS, SWS + 3, sT3))
        if m: a("s_mov_b64 exec, -1")
    if EC:
        assert YP
        c1 = L("CO")
        a("s_setprio %d" % ENV("QPRIO", 0))
        a("s_cmp_lg_u32 s%d, 0" % sLD)
        a("s_cbranch_scc1 %s" % c1)
        a.begin_opt()
        spin_lds(161, 164, 1, slp=1, off=Y_TR)
        copy_part(0)
        a.end_opt()
        a.label(c1)
        sk_("flag")
        if ENV("CSA", 0): a("s_sleep %d" % ENV("CSA", 0))
        if ENV("YE", 1): yld(False)
        copy_part(1)
        lp, ld, le = L("CP"), L("CP"), L("CP")
        a("s_mov_b32 s%d, %d" % (sOX, SPIN))
        if ENV("YE", 1): a("s_branch %s" % le)
        else: a("s_mov_b64 s[84:85], -1"); a("s_mov_b64 s[86:87], -1")
        a.label(lp)
        yld()
        a.label(le)
        a("s_waitcnt vmcnt(0)")
        a("v_cmp_eq_u32 s[84:85], -1, v104")
        a("v_cmp_eq_u32 s[86:87], -1, v108")
        a("s_or_b64 vcc, s[84:85], s[86:87]")
        a("s_cbranch_scc0 %s" % ld)
        a("s_sleep %d" % int(os.environ.get("CSL", "8")))
        a("s_sub_u32 s%d, s%d, 1" % (sOX, sOX)); a("s_cmp_lg_u32 s%d, 0" % sOX)
        a("s_cbranch_scc1 %s" % lp)
        a.label(ld)
        sk_("polled")
        waitp(Y_XR)
        a("ds_write_b128 v5, v[104:107]")
        a("ds_write_b128 v5, v[108:111] offset:1024")
        setf(Y_YA)
        a("s_waitcnt lgkmcnt(0)")
        sk_("end")
        sk_.store(100)
        a("s_endpgm")
        return
    if ENV("COA", 2) == 1:
        cflag()
        sk_("flag")
        spin_lds(161, 164, 1, slp=1, off=Y_TR)
        copy_out()
    elif ENV("COA", 2) == 2:
        a("ds_read_u8 v164, v161 offset:%d" % Y_TR)
        a("s_waitcnt vmcnt(2) lgkmcnt(0)")
        c1 = L("CO")
        a("v_cmp_gt_u32 vcc, 1, v164")
        a("s_cbranch_vccnz %s" % c1)
        a.begin_opt()
        a("s_mov_b32 s%d, 1" % sLD)
        copy_part(0)
        a.end_opt()
        a.label(c1)
        cflag()
        sk_("flag")
        spin_lds(161, 164, 1, slp=1, off=Y_TR)
        copy_out()
    elif NSTA:
        c1, c2 = L("CO"), L("CO")
        a("ds_read_u8 v164, v161 offset:%d" % Y_TR)
        a("s_waitcnt vmcnt(2) lgkmcnt(0)")
        a("v_cmp_gt_u32 vcc, 1, v164")
        a("s_cbranch_vccnz %s" % c1)
        a.begin_opt()
        copy_out(); cflag()
        a("s_branch %s" % c2)
        a.end_opt()
        a.label(c1)
        a.begin_opt()
        cflag()
        spin_lds(161, 164, 1, slp=1, off=Y_TR)
        copy_out()
        a.end_opt()
        a.label(c2)
    else: cflag()
    if not ENV("COA", 2): sk_("flag")
    a("s_setprio 0")
    a("s_sleep %d" % int(os.environ.get("CSL0", "8")))
    lp, ld = L("CP"), L("CP")
    a("s_mov_b32 s%d, %d" % (sOX, SPIN))
    if YP:
        assert YST == 4096
        a("s_mov_b64 s[84:85], -1"); a("s_mov_b64 s[86:87], -1")
        a.label(lp)
        a("s_mov_b64 exec, s[84:85]")
        a("buffer_load_dwordx4 v[104:107], v154, s[%d:%d], s%d offen sc1" % (SWS, SWS + 3, sT2))
        a("s_mov_b64 exec, s[86:87]")
        a("buffer_load_dwordx4 v[108:111], v154, s[%d:%d], s%d offen sc1" % (SWS, SWS + 3, sT3))
        a("s_mov_b64 exec, -1")
        a("s_waitcnt vmcnt(0)")
        a("v_cmp_eq_u32 s[84:85], -1, v104")
        a("v_cmp_eq_u32 s[86:87], -1, v108")
        a("s_or_b64 vcc, s[84:85], s[86:87]")
        a("s_cbranch_scc0 %s" % ld)
        a("s_sleep %d" % int(os.environ.get("CSL", "8")))
        a("s_sub_u32 s%d, s%d, 1" % (sOX, sOX)); a("s_cmp_lg_u32 s%d, 0" % sOX)
        a("s_cbranch_scc1 %s" % lp)
        a.label(ld)
        sk_("polled")
        waitp(Y_XR)
        a("ds_write_b128 v5, v[104:107]")
        a("ds_write_b128 v5, v[108:111] offset:1024")
        setf(Y_YA)
        a("s_waitcnt lgkmcnt(0)")
        sk_("end")
        sk_.store(100)
        a("s_endpgm")
        return
    a.label(lp)
    a("s_mov_b64 exec, 0xffff")
    a("buffer_load_dwordx2 v[20:21], v153, s[%d:%d], 0 offen sc1" % (SWS, SWS + 3))
    a("s_waitcnt vmcnt(0)")
    a("v_cmp_ne_u64 vcc, s[%d:%d], v[20:21]" % (sNON, sNON + 1))
    a("s_mov_b64 exec, -1")
    a("s_cbranch_vccz %s" % ld)
    a("s_sleep %d" % int(os.environ.get("CSL", "8")))
    a("s_sub_u32 s%d, s%d, 1" % (sOX, sOX)); a("s_cmp_lg_u32 s%d, 0" % sOX)
    a("s_cbranch_scc1 %s" % lp)
    a.label(ld)
    sk_("polled")
    SY = SOUT if AL == 2 else SWS
    a("buffer_load_dwordx4 v[104:107], v154, s[%d:%d], s%d offen%s" % (SY, SY + 3, sT2, " sc1" if AL else ""))
    a("buffer_load_dwordx4 v[108:111], v154, s[%d:%d], s%d offen%s" % (SY, SY + 3, sT3, " sc1" if AL else ""))
    waitp(Y_XR)
    a("s_waitcnt vmcnt(0)")
    a("ds_write_b128 v5, v[104:107]")
    a("ds_write_b128 v5, v[108:111] offset:1024")
    setf(Y_YA)
    a("s_waitcnt lgkmcnt(0)")
    sk_("end")
    sk_.store(100)
    a("s_endpgm")

def producer(a, sp_, L, spin_lds):
    a.label("K_PROD")
    a.vmq = []
    a.nopkw = True
    if NF: a("s_memrealtime s[48:49]")
    XT_S = 912
    L_PC = 64 * XT_S
    a("v_lshrrev_b32 v2, 3, v1")
    a("v_and_b32 v3, 7, v1")
    a("s_lshr_b32 s%d, s2, 3" % sT1)
    a("s_bfe_u32 s%d, s2, 0x20001" % sT0); a("s_lshl_b32 s%d, s%d, 3" % (sR, sT0)); a("s_lshl_b32 s%d, s%d, 1" % (sT1, sT1))
    a("s_add_u32 s%d, s%d, s%d" % (sR, sR, sT1)); a("s_and_b32 s%d, s2, 1" % sT0); a("s_add_u32 s%d, s%d, s%d" % (sR, sR, sT0))
    if ENV("SWP", 1) == 1: a("s_xor_b32 s%d, s%d, 1" % (sT0, sT0))
    a("s_lshr_b32 s%d, s2, 1" % sF); a("s_min_u32 s%d, s%d, 13" % (sF, sF)); a("s_mul_i32 s%d, s%d, 14" % (sT0, sT0)); a("s_add_u32 s%d, s%d, s%d" % (sF, sF, sT0))
    a("s_lshl_b32 s%d, s%d, 3" % (sT0, sWV))
    a("v_add_u32 v4, s%d, v2" % sT0)
    a("s_lshl_b32 s%d, s%d, 6" % (sT1, sR))
    a("v_add_u32 v5, s%d, v4" % sT1)
    a("v_mul_u32_u24 v6, 896, v5")
    a("v_lshl_add_u32 v6, v3, 4, v6")
    a("s_waitcnt lgkmcnt(0)")
    srd(a, SX, 16, 2048 * 896)
    for i in range(7):
        a.vm("buffer_load_dwordx4 %s, v6, s[%d:%d], 0 offen offset:%d" % (vr(32 + 4 * i, 4), SX, SX + 3, i * 128), "x%d" % i)
    srd(a, SWS, 14, WS_SIZE)
    srd(a, SDBG, 12, 256)
    def poison():
        a("s_lshl_b32 s%d, s2, 3" % sT0); a("s_add_u32 s%d, s%d, s%d" % (sT0, sT0, sWV)); a("s_mul_i32 s%d, s%d, 7168" % (sT0, sT0))
        a("s_add_u32 s%d, s%d, %d" % (sT0, sT0, WS_YAT)); a("s_add_u32 s%d, s%d, 4096" % (sT1, sT0))
        a("v_lshlrev_b32 v140, 4, v1")
        for r in range(136, 140): a("v_mov_b32 v%d, -1" % r)
        for i in range(7):
            a.vm("buffer_store_dwordx4 v[136:139], v140, s[%d:%d], s%d offen offset:%d sc1" % (SWS, SWS + 3, (sT0, sT1)[i >> 2], (i & 3) * 1024), "poi")
    ln = L("NN")
    a("s_or_b32 s%d, s2, s%d" % (sT0, sWV))
    a("s_cbranch_scc1 %s" % ln)
    a.begin_opt()
    a("s_memrealtime s[%d:%d]" % (sNON, sNON + 1))
    a("s_waitcnt lgkmcnt(0)")
    a("s_or_b32 s%d, s%d, 0x40000000" % (sNON + 1, sNON + 1)); a("s_or_b32 s%d, s%d, 1" % (sNON, sNON))
    a("v_mov_b32 v12, s%d" % sNON); a("v_mov_b32 v13, s%d" % (sNON + 1)); a("v_mov_b32 v14, 64")
    a("s_mov_b64 exec, 1")
    a("buffer_store_dwordx2 v[12:13], v14, s[%d:%d], 0 offen sc1" % (SDBG, SDBG + 3))
    a("s_mov_b64 exec, -1")
    a.end_opt()
    a.label(ln)
    if YP == 1: poison()
    a("s_lshr_b32 s%d, s%d, 1" % (sT1, sWV))
    a("s_mul_i32 s%d, s%d, %d" % (sT1, sT1, 112 * 3584))
    a("s_lshl_b32 s%d, s%d, 7" % (sT2, sF))
    a("s_add_u32 s%d, s%d, s%d" % (sT1, sT1, sT2))
    a("v_mul_u32_u24 v9, 3584, v2")
    a("v_lshl_add_u32 v9, v3, 4, v9")
    a("v_add_u32 v9, s%d, v9" % sT1)
    a("s_bitcmp0_b32 s%d, 0" % sWV)
    a("s_cselect_b32 s%d, s32, s34" % SWG)
    a("s_cselect_b32 s%d, s33, s35" % (SWG + 1))
    a("s_and_b32 s%d, s%d, 0xffff" % (SWG + 1, SWG + 1))
    a("s_mov_b32 s%d, 0x%x" % (SWG + 2, 448 * 3584))
    a("s_mov_b32 s%d, 0x00020000" % (SWG + 3))
    wq = list(range(14))
    def ldw(n):
        for _ in range(n):
            if not wq: return
            i = wq.pop(0)
            a("s_mov_b32 s%d, %d" % (sOW, i * 8 * 3584))
            a.vm("buffer_load_dwordx4 %s, v9, s[%d:%d], s%d offen" % (vr(64 + 4 * i, 4), SWG, SWG + 3, sOW), "w%d" % i)
    a("s_mov_b32 s%d, 0x3f803f80" % sONES)
    a("v_mov_b32 v10, 0"); a("v_mov_b32 v11, 0"); a("v_mov_b32 v12, 0"); a("v_mov_b32 v13, 0")
    a("v_mul_u32_u24 v7, %d, v4" % XT_S)
    a("v_lshl_add_u32 v7, v3, 4, v7")
    a("v_lshlrev_b32 v8, 4, v5")
    a("s_lshl_b32 s%d, s2, 8" % sT2); a("s_add_u32 s%d, s%d, %d" % (sT2, sT2, WS_PF))
    a("v_lshl_add_u32 v28, v1, 13, s%d" % sT2)
    a("s_lshl_b32 s%d, s%d, 8" % (sT0, sR)); a("s_add_u32 s%d, s%d, %d" % (sT0, sT0, WS_FR))
    a("s_lshl_b32 s%d, s%d, 8" % (sT1, sF)); a("s_add_u32 s%d, s%d, %d" % (sT1, sT1, WS_FC))
    a("s_cmp_eq_u32 s%d, 0" % sWV); a("s_cselect_b32 s%d, s%d, s%d" % (sT0, sT0, sT1)); a("v_mov_b32 v29, s%d" % sT0)
    a("v_mov_b32 v30, 64")
    if ENV("PFG", 1):
        a("v_mov_b32 v141, v28"); a("v_writelane_b32 v141, s%d, 8" % sT0)
        a("s_cmp_lt_u32 s%d, 2" % sWV); a("s_cselect_b32 exec_lo, 0x1ff, 0"); a("s_mov_b32 exec_hi, 0")
        a.vm("buffer_load_dword v141, v141, s[%d:%d], 0 offen sc1" % (SWS, SWS + 3), "pfg")
        a("s_mov_b64 exec, -1")
    for i in range(7):
        a.wait_vm("x%d" % i)
        for r in range(4):
            a("v_dot2_f32_bf16 v%d, v%d, s%d, v%d" % (10 + 2 * (r & 1), 32 + 4 * i + r, sONES, 10 + 2 * (r & 1)))
            a("v_dot2_f32_bf16 v%d, v%d, v%d, v%d" % (11 + 2 * (r & 1), 32 + 4 * i + r, 32 + 4 * i + r, 11 + 2 * (r & 1)))
    ldw(ENV("PW0", 3))
    a("v_add_f32 v10, v10, v12"); a("v_add_f32 v11, v11, v13")
    for mod in ("quad_perm:[1,0,3,2]", "quad_perm:[2,3,0,1]", "row_half_mirror"):
        for r in (10, 11):
            a("v_add_f32_dpp v%d, v%d, v%d %s row_mask:0xf bank_mask:0xf" % (r, r, r, mod))
    c = math.sqrt(2 / math.pi); k1 = -2 * c * LOG2E; k2 = k1 * 0.044715
    a("v_mul_f32 v10, %s, v10" % fbits(1.0 / 448))
    a("v_mul_f32 v11, %s, v11" % fbits(1.0 / 448))
    a("v_fma_f32 v11, -v10, v10, v11")
    a("v_max_f32 v11, 0, v11")
    a("v_cvt_pk_bf16_f32 v10, v10, v11")
    a("v_lshlrev_b32 v12, 16, v10")
    a("v_and_b32 v11, 0xffff0000, v10")
    a("v_add_f32 v11, %s, v11" % fbits(1e-5))
    a("v_cvt_pk_bf16_f32 v11, v11, v11")
    a("v_lshlrev_b32 v11, 16, v11")
    a("v_sqrt_f32 v11, v11")
    a("v_cvt_pk_bf16_f32 v11, v11, v11")
    a("v_lshlrev_b32 v11, 16, v11")
    a("v_rcp_f32 v14, v11")
    a("v_sub_f32 v16, 0, v12")
    a("v_cvt_pk_bf16_f32 v24, v16, v16")
    a("v_mul_f32 v27, v11, v11")
    a("v_mul_f32 v25, %s, v14" % fbits(k1))
    a("v_mul_f32 v10, v14, v14"); a("v_mul_f32 v10, v10, v14")
    a("v_mul_f32 v26, %s, v10" % fbits(k2))
    a("s_mov_b32 s%d, %d" % (sT0, WS_RC))
    a("s_mov_b32 exec_lo, 0x01010101"); a("s_mov_b32 exec_hi, 0x01010101")
    a.vm("buffer_store_dwordx4 v[24:27], v8, s[%d:%d], s%d offen sc1" % (SWS, SWS + 3, sT0), "rc")
    a("s_cmp_lt_u32 s%d, 2" % sWV); a("s_cselect_b32 exec_lo, 1, 0"); a("s_mov_b32 exec_hi, 0")
    a("buffer_load_dwordx2 v[18:19], v30, s[%d:%d], 0 offen sc1" % (SDBG, SDBG + 3))
    a("s_mov_b64 exec, -1")
    sp_("stats")
    def xn_blk(i):
        for r in range(4):
            w = 32 + 4 * i + r; t = 20 + 2 * (r & 1)
            a("v_lshlrev_b32 v%d, 16, v%d" % (t, w)); a("v_and_b32 v%d, 0xffff0000, v%d" % (t + 1, w))
            a("v_pk_add_f32 %s, %s, v[16:17] op_sel_hi:[1,0]" % (vr(t, 2), vr(t, 2)))
            a("v_cvt_pk_bf16_f32 v%d, v%d, v%d" % (t, t, t + 1))
            a("v_and_b32 v%d, 0xffff0000, v%d" % (t + 1, t)); a("v_lshlrev_b32 v%d, 16, v%d" % (t, t))
            a("v_pk_mul_f32 %s, %s, v[14:15] op_sel_hi:[1,0]" % (vr(t, 2), vr(t, 2)))
            a("v_cvt_pk_bf16_f32 v%d, v%d, v%d" % (t, t, t + 1))
            a("v_and_b32 v%d, 0xffff0000, v%d" % (t + 1, t)); a("v_lshlrev_b32 v%d, 16, v%d" % (t, t))
            a("v_cvt_pk_f16_f32 v%d, v%d, v%d" % (w, t, t + 1))
        a("ds_write_b128 v7, %s offset:%d" % (vr(32 + 4 * i, 4), i * 128))
    PO = ENV("PO", 2)
    if PO == 1:
        for i in range(7):
            xn_blk(i); ldw(ENV("PW1", 2))
        ldw(14)
        a("v_lshrrev_b32 v4, 4, v1"); a("v_and_b32 v5, 15, v1")
        a("v_lshrrev_b32 v6, 2, v5"); a("v_lshl_add_u32 v6, v4, 3, v6")
        a("v_bfe_u32 v7, v5, 1, 1"); a("v_lshl_add_u32 v6, v7, 5, v6")
        a("v_mul_u32_u24 v6, %d, v6" % XT_S)
        a("v_and_b32 v7, 1, v5"); a("v_lshl_add_u32 v6, v7, 3, v6")
        a("s_lshl_b32 s%d, s%d, 4" % (sOX, sWV))
        a("v_add_u32 v6, s%d, v6" % sOX)
        a("s_mul_i32 s%d, s%d, %d" % (sOX, sWV, 7 * 1152)); a("s_add_u32 s%d, s%d, %d" % (sOX, sOX, L_PC + 2048))
        a("v_and_b32 v31, 7, v5"); a("v_mul_u32_u24 v31, 144, v31"); a("v_lshl_add_u32 v31, v4, 4, v31")
        a("v_lshrrev_b32 v5, 3, v5"); a("v_lshl_add_u32 v31, v5, 6, v31"); a("v_add_u32 v31, s%d, v31" % sOX)
        a("v_mul_u32_u24 v8, 144, v2"); a("v_lshl_add_u32 v8, v3, 4, v8"); a("v_add_u32 v8, s%d, v8" % sOX)
        a("v_mul_u32_u24 v7, %d, v2" % XST); a("v_lshl_add_u32 v7, v3, 4, v7")
        a("s_lshl_b32 s%d, s%d, 7" % (sT2, sR)); a("s_add_u32 s%d, s%d, %d" % (sT2, sT2, WS_XNT))
        a("s_mul_i32 s%d, s%d, %d" % (sT1, sWV, 8 * XST)); a("s_add_u32 s%d, s%d, s%d" % (sT1, sT1, sT2))
        a("s_waitcnt lgkmcnt(0)")
        sp_("xn")
        a("s_barrier")
        sp_("pbar")
        for i in range(7):
            a("ds_read_b64_tr_b16 %s, v6 offset:%d" % (vr(32 + 4 * i, 2), i * 128))
            a("ds_read_b64_tr_b16 %s, v6 offset:%d" % (vr(34 + 4 * i, 2), i * 128 + 4 * XT_S))
        for i in range(7):
            a("s_waitcnt lgkmcnt(%d)" % 12)
            a("ds_write_b128 v31, %s offset:%d" % (vr(32 + 4 * i, 4), i * 1152))
            a("ds_read_b128 %s, v8 offset:%d" % (vr(144 + 4 * i, 4), i * 1152))
        for i in range(7):
            a("s_waitcnt lgkmcnt(%d)" % (12 - 2 * i))
            a.vm("buffer_store_dwordx4 %s, v7, s[%d:%d], s%d offen sc1" % (vr(144 + 4 * i, 4), SWS, SWS + 3, sT1), "xst")
            if i < 6: a("s_add_u32 s%d, s%d, %d" % (sT1, sT1, 64 * XST))
        sp_("st")
        a("s_mov_b32 s%d, 0x3f80" % sOX); a("s_mov_b32 s%d, 0x3f800000" % sOW)
        for r in range(120, 128): a("v_mov_b32 v%d, 0" % r)
        for i in range(14):
            a.wait_vm("w%d" % i)
            for r in range(4):
                w = 64 + 4 * i + r
                a("v_dot2_f32_bf16 v%d, v%d, s%d, v%d" % (120 + 2 * r, w, sOX, 120 + 2 * r))
                a("v_dot2_f32_bf16 v%d, v%d, s%d, v%d" % (121 + 2 * r, w, sOW, 121 + 2 * r))
        for r in range(120, 128): a("v_add_f32_dpp v%d, v%d, v%d row_ror:8 row_mask:0xf bank_mask:0xf" % (r, r, r))
        for op in ("v_permlane16_swap_b32", "v_permlane32_swap_b32"):
            for r in range(8): a("v_mov_b32 v%d, v%d" % (128 + r, 120 + r))
            for r in range(8): a("%s v%d, v%d" % (op, 120 + r, 128 + r))
            for r in range(8): a("v_add_f32 v%d, v%d, v%d" % (120 + r, 120 + r, 128 + r))
        a("s_lshl_b32 s%d, s%d, 8" % (sT0, sWV))
        a("s_add_u32 s%d, s%d, %d" % (sT0, sT0, L_PC))
        a("v_lshl_add_u32 v9, v3, 5, s%d" % sT0)
        a("s_mov_b64 exec, 0xff")
        a("ds_write_b128 v9, v[120:123]"); a("ds_write_b128 v9, v[124:127] offset:16")
        a("s_mov_b64 exec, -1")
        a("s_waitcnt lgkmcnt(0)")
        sp_("sum")
        a("s_barrier")
        la = L("PA")
        a("s_cmp_lg_u32 s%d, 1" % sWV)
        a("s_cbranch_scc1 %s" % la)
        a.begin_opt()
        a("v_lshlrev_b32 v9, 2, v1")
        a("v_add_u32 v20, %d, v9" % L_PC)
        for i in range(8): a("ds_read_b32 v%d, v20 offset:%d" % (120 + i, i * 256))
        a("s_lshl_b32 s%d, s%d, 9" % (sT2, sF)); a("s_add_u32 s%d, s%d, %d" % (sT0, sT2, WS_CS)); a("s_add_u32 s%d, s%d, %d" % (sT2, sT0, CSM))
        a("v_lshlrev_b32 v9, 3, v1")
        a("s_waitcnt lgkmcnt(0)")
        for m in range(2):
            c = 120 + m; o = 128 + 2 * m
            a("v_add_f32 v%d, v%d, v%d" % (c, c, c + 2)); a("v_add_f32 v%d, v%d, v%d" % (c + 4, c + 4, c + 6))
            a("v_add_f32 v%d, v%d, v%d" % (c, c, c + 4))
            a("v_cvt_pk_bf16_f32 v%d, v%d, v%d" % (c + 2, c, c)); a("v_lshlrev_b32 v%d, 16, v%d" % (c + 2, c + 2))
            a("v_sub_f32 v%d, v%d, v%d" % (c + 2, c, c + 2))
            a("v_cvt_pk_bf16_f32 v%d, v%d, v%d" % (o, c, c + 2)); a("v_and_b32 v%d, 0xffff0000, v%d" % (c + 4, o))
            a("v_sub_f32 v%d, v%d, v%d" % (c + 2, c + 2, c + 4))
            a("v_cvt_pk_bf16_f32 v%d, v%d, 0" % (o + 1, c + 2))
            a("buffer_store_dwordx2 v[%d:%d], v9, s[%d:%d], s%d offen sc1" % (o, o + 1, SWS, SWS + 3, (sT0, sT2)[m]))
        a("s_waitcnt vmcnt(2)")
        a("s_barrier")
        get_nonce(a, L, 30, 18, pre=True)
        a("v_mov_b32 v10, s%d" % sNON)
        a("s_mov_b64 exec, 1")
        a("buffer_store_dword v10, v29, s[%d:%d], 0 offen sc1" % (SWS, SWS + 3))
        a("s_mov_b64 exec, -1")
        sp_("flagC")
        if YP != 3:
            sp_.store(100)
            a("s_endpgm")
        else: a("s_branch K_PP")
        a.end_opt()
        a.label(la)
        a("s_waitcnt vmcnt(0)"); a.vmq = []
        a("s_barrier")
        a("s_cmp_lg_u32 s%d, 0" % sWV)
        a("s_cbranch_scc1 %s" % ("K_PP" if YP == 3 else "K_END"))
        a.begin_opt()
        get_nonce(a, L, 30, 18, pre=True)
        a("v_mov_b32 v10, s%d" % sNON)
        a("s_mov_b64 exec, 0xff")
        a("buffer_store_dword v10, v28, s[%d:%d], 0 offen sc1" % (SWS, SWS + 3))
        a("s_mov_b64 exec, 1")
        a("buffer_store_dword v10, v29, s[%d:%d], 0 offen sc1" % (SWS, SWS + 3))
        a("s_mov_b64 exec, -1")
        a.end_opt()
        if YP == 3:
            a.label("K_PP")
            if ENV("PPS", 0): a("s_sleep %d" % ENV("PPS", 0))
            poison()
            a("s_waitcnt vmcnt(0)")
            a("s_barrier")
            a("s_cmp_lg_u32 s%d, 1" % sWV)
            a("s_cbranch_scc1 K_END")
            a("s_mov_b64 exec, 0xff")
            a("buffer_store_dword v10, v28, s[%d:%d], 0 offen offset:128 sc1" % (SWS, SWS + 3))
            a("s_mov_b64 exec, -1")
            sp_("flagP")
            sp_.store(100)
        return
    def xaddr(sX=sT1):
        a("v_lshrrev_b32 v4, 4, v1"); a("v_and_b32 v5, 15, v1")
        a("v_lshrrev_b32 v6, 2, v5"); a("v_lshl_add_u32 v6, v4, 3, v6")
        a("v_bfe_u32 v7, v5, 1, 1"); a("v_lshl_add_u32 v6, v7, 5, v6")
        a("v_mul_u32_u24 v6, %d, v6" % XT_S)
        a("v_and_b32 v7, 1, v5"); a("v_lshl_add_u32 v6, v7, 3, v6")
        a("s_lshl_b32 s%d, s%d, 4" % (sOX, sWV))
        a("v_add_u32 v6, s%d, v6" % sOX)
        a("s_mul_i32 s%d, s%d, %d" % (sOX, sWV, 7 * 1152)); a("s_add_u32 s%d, s%d, %d" % (sOX, sOX, L_PC + 2048))
        a("v_and_b32 v31, 7, v5"); a("v_mul_u32_u24 v31, 144, v31"); a("v_lshl_add_u32 v31, v4, 4, v31")
        a("v_lshrrev_b32 v5, 3, v5"); a("v_lshl_add_u32 v31, v5, 6, v31"); a("v_add_u32 v31, s%d, v31" % sOX)
        a("v_mul_u32_u24 v8, 144, v2"); a("v_lshl_add_u32 v8, v3, 4, v8"); a("v_add_u32 v8, s%d, v8" % sOX)
        if AL == 2:
            srd(a, SOUT, 10, 2048 * 896)
            a("v_mul_u32_u24 v7, 896, v2"); a("v_lshl_add_u32 v7, v3, 4, v7")
            a("s_lshl_b32 s%d, s%d, 3" % (sT1, sR)); a("s_add_u32 s%d, s%d, s%d" % (sT1, sT1, sWV)); a("s_mul_i32 s%d, s%d, %d" % (sT1, sT1, 8 * 896))
            return
        a("v_mul_u32_u24 v7, %d, v2" % XST); a("v_lshl_add_u32 v7, v3, 4, v7")
        a("s_lshl_b32 s%d, s%d, 7" % (sT2, sR)); a("s_add_u32 s%d, s%d, %d" % (sT2, sT2, WS_XNT))
        a("s_mul_i32 s%d, s%d, %d" % (sT1, sWV, 8 * XST)); a("s_add_u32 s%d, s%d, s%d" % (sT1, sT1, sT2))
    NXA = 7 if PO == 2 else ENV("NXA", 4)
    for i in range(NXA):
        xn_blk(i); ldw(ENV("PW1", 2))
    ldw(14)
    a("s_mov_b32 s%d, 0x3f80" % sOX); a("s_mov_b32 s%d, 0x3f800000" % sOW)
    for r in range(120, 128): a("v_mov_b32 v%d, 0" % r)
    for i in range(14):
        a.wait_vm("w%d" % i)
        for r in range(4):
            w = 64 + 4 * i + r
            a("v_dot2_f32_bf16 v%d, v%d, s%d, v%d" % (120 + 2 * r, w, sOX, 120 + 2 * r))
            a("v_dot2_f32_bf16 v%d, v%d, s%d, v%d" % (121 + 2 * r, w, sOW, 121 + 2 * r))
    for r in range(120, 128): a("v_add_f32_dpp v%d, v%d, v%d row_ror:8 row_mask:0xf bank_mask:0xf" % (r, r, r))
    for op in ("v_permlane16_swap_b32", "v_permlane32_swap_b32"):
        for r in range(8): a("v_mov_b32 v%d, v%d" % (128 + r, 120 + r))
        for r in range(8): a("%s v%d, v%d" % (op, 120 + r, 128 + r))
        for r in range(8): a("v_add_f32 v%d, v%d, v%d" % (120 + r, 120 + r, 128 + r))
    a("s_lshl_b32 s%d, s%d, 8" % (sT0, sWV))
    a("s_add_u32 s%d, s%d, %d" % (sT0, sT0, L_PC))
    a("v_lshl_add_u32 v9, v3, 5, s%d" % sT0)
    a("s_mov_b64 exec, 0xff")
    a("ds_write_b128 v9, v[120:123]"); a("ds_write_b128 v9, v[124:127] offset:16")
    a("s_mov_b64 exec, -1")
    if PO == 2: xaddr()
    lw = L("PA")
    a("s_cmp_gt_u32 s%d, 1" % sWV)
    a("s_cbranch_scc1 %s" % lw)
    a.begin_opt()
    get_nonce(a, L, 30, 18, pre=True)
    a("v_mov_b32 v10, s%d" % sNON)
    a.end_opt()
    a.label(lw)
    a("s_waitcnt vmcnt(0) lgkmcnt(0)"); a.vmq = []
    sp_("sum")
    a("s_barrier")
    sp_("pbar0")
    PFP = ENV("PFP", 0)
    def pf_all():
        srd(a, SWD, 8, 1792 * 896)
        a("s_lshr_b32 s%d, s2, 3" % sT0); a("s_lshl_b32 s%d, s%d, 3" % (sT0, sT0)); a("s_add_u32 s%d, s%d, s%d" % (sT0, sT0, sWV))
        a("s_mul_i32 s%d, s%d, %d" % (sT0, sT0, 392 * 128))
        a("v_lshlrev_b32 v141, 7, v1")
        for i in range(7):
            a("buffer_load_dword v%d, v141, s[%d:%d], s%d offen" % (142 + i, SWD, SWD + 3, sT0))
            if i < 6: a("s_add_u32 s%d, s%d, %d" % (sT0, sT0, 8192 if i < 5 else 1024))
    def pf_mid():
        srd(a, SWD, 8, 1792 * 896)
        lp_ = L("PF")
        a("s_cmp_gt_u32 s%d, 5" % sWV)
        a("s_cbranch_scc1 %s" % lp_)
        a.begin_opt()
        a("s_lshr_b32 s%d, s2, 3" % sT0); a("s_mul_i32 s%d, s%d, %d" % (sT0, sT0, 448 * 896))
        a("s_lshr_b32 s%d, s%d, 1" % (sT2, sWV)); a("s_lshl_b32 s%d, s%d, 2" % (sT2, sT2)); a("s_lshr_b32 s%d, 0x31c, s%d" % (sT2, sT2)); a("s_and_b32 s%d, s%d, 15" % (sT2, sT2))
        a("s_lshl_b32 s%d, s%d, 1" % (sT2, sT2)); a("s_and_b32 s%d, s%d, 1" % (sT3, sWV)); a("s_add_u32 s%d, s%d, s%d" % (sT2, sT2, sT3))
        a("s_mul_i32 s%d, s%d, %d" % (sT2, sT2, 16 * 896)); a("s_add_u32 s%d, s%d, s%d" % (sT0, sT0, sT2))
        a("s_add_u32 s%d, s%d, %d" % (sT2, sT0, 48 * 128))
        a("v_lshlrev_b32 v141, 7, v1")
        a("buffer_load_dword v142, v141, s[%d:%d], s%d offen" % (SWD, SWD + 3, sT0))
        a("buffer_load_dword v143, v141, s[%d:%d], s%d offen" % (SWD, SWD + 3, sT2))
        a.end_opt()
        a.label(lp_)
    if PFP == 2:
        lp_ = L("PF")
        a("s_cmp_lt_u32 s%d, 2" % sWV)
        a("s_cbranch_scc1 %s" % lp_)
        a.begin_opt()
        pf_all()
        a.end_opt()
        a.label(lp_)
    la = L("PA")
    a("s_cmp_lg_u32 s%d, 1" % sWV)
    a("s_cbranch_scc1 %s" % la)
    a.begin_opt()
    a("v_lshlrev_b32 v9, 2, v1")
    a("v_add_u32 v20, %d, v9" % L_PC)
    for i in range(8): a("ds_read_b32 v%d, v20 offset:%d" % (120 + i, i * 256))
    a("s_lshl_b32 s%d, s%d, 9" % (sT2, sF)); a("s_add_u32 s%d, s%d, %d" % (sT0, sT2, WS_CS)); a("s_add_u32 s%d, s%d, %d" % (sT2, sT0, CSM))
    a("v_lshlrev_b32 v9, 3, v1")
    a("s_waitcnt lgkmcnt(0)")
    for m in range(2):
        c = 120 + m; o = 128 + 2 * m
        a("v_add_f32 v%d, v%d, v%d" % (c, c, c + 2)); a("v_add_f32 v%d, v%d, v%d" % (c + 4, c + 4, c + 6))
        a("v_add_f32 v%d, v%d, v%d" % (c, c, c + 4))
        a("v_cvt_pk_bf16_f32 v%d, v%d, v%d" % (c + 2, c, c)); a("v_lshlrev_b32 v%d, 16, v%d" % (c + 2, c + 2))
        a("v_sub_f32 v%d, v%d, v%d" % (c + 2, c, c + 2))
        a("v_cvt_pk_bf16_f32 v%d, v%d, v%d" % (o, c, c + 2)); a("v_and_b32 v%d, 0xffff0000, v%d" % (c + 4, o))
        a("v_sub_f32 v%d, v%d, v%d" % (c + 2, c + 2, c + 4))
        a("v_cvt_pk_bf16_f32 v%d, v%d, 0" % (o + 1, c + 2))
        a("buffer_store_dwordx2 v[%d:%d], v9, s[%d:%d], s%d offen sc1" % (o, o + 1, SWS, SWS + 3, (sT0, sT2)[m]))
    a.end_opt()
    a.label(la)
    for i in range(NXA, 7):
        xn_blk(i)
        if i == min(6, NXA + ENV("NXF", 2)):
            lb = L("PA")
            a("s_cmp_gt_u32 s%d, 1" % sWV)
            a("s_cbranch_scc1 %s" % lb)
            a.begin_opt()
            a("s_waitcnt vmcnt(0)")
            a("s_mov_b64 exec, 1")
            a("buffer_store_dword v10, v29, s[%d:%d], 0 offen sc1" % (SWS, SWS + 3))
            a("s_mov_b64 exec, -1")
            if PFP == 2: pf_all()
            a.end_opt()
            a.label(lb)
            sp_("flagC")
    if PO != 2: xaddr()
    if YP == 2:
        a("s_mov_b32 s%d, s%d" % (sT3, sT1)); poison(); a("s_mov_b32 s%d, s%d" % (sT1, sT3))
    if PO == 2:
        a("s_cmp_eq_u32 s%d, 0" % sWV); a("s_cselect_b32 exec_lo, 1, 0"); a("s_mov_b32 exec_hi, 0")
        a("buffer_store_dword v10, v29, s[%d:%d], 0 offen sc1" % (SWS, SWS + 3))
        a("s_mov_b64 exec, -1")
    else:
        a("s_waitcnt lgkmcnt(0)")
        a("s_barrier")
        sp_("pbar")
    for i in range(7):
        a("ds_read_b64_tr_b16 %s, v6 offset:%d" % (vr(32 + 4 * i, 2), i * 128))
        a("ds_read_b64_tr_b16 %s, v6 offset:%d" % (vr(34 + 4 * i, 2), i * 128 + 4 * XT_S))
    for i in range(7):
        a("s_waitcnt lgkmcnt(%d)" % 12)
        a("ds_write_b128 v31, %s offset:%d" % (vr(32 + 4 * i, 4), i * 1152))
        a("ds_read_b128 %s, v8 offset:%d" % (vr(64 + 4 * i, 4), i * 1152))
    for i in range(7):
        a("s_waitcnt lgkmcnt(%d)" % (12 - 2 * i))
        if AL == 2:
            a.vm("buffer_store_dwordx4 %s, v7, s[%d:%d], s%d offen offset:%d sc1" % (vr(64 + 4 * i, 4), SOUT, SOUT + 3, sT1, i * 128), "xst")
            continue
        a.vm("buffer_store_dwordx4 %s, v7, s[%d:%d], s%d offen %s" % (vr(64 + 4 * i, 4), SWS, SWS + 3, sT1, os.environ.get("XSM", "sc1").replace("_", " ")), "xst")
        if i < 6: a("s_add_u32 s%d, s%d, %d" % (sT1, sT1, 64 * XST))
    sp_("st")
    if PO == 2:
        a("s_waitcnt vmcnt(7)")
        a("s_cmp_eq_u32 s%d, 1" % sWV); a("s_cselect_b32 exec_lo, 1, 0"); a("s_mov_b32 exec_hi, 0")
        a("buffer_store_dword v10, v29, s[%d:%d], 0 offen sc1" % (SWS, SWS + 3))
        a("s_mov_b64 exec, -1")
        sp_("flagC")
        a("s_waitcnt vmcnt(1)")
    else: a("s_waitcnt vmcnt(0)")
    a("s_barrier")
    if YP == 3:
        a("s_cmp_eq_u32 s%d, 1" % sWV); a("s_cselect_b32 exec_lo, 0xff, 0"); a("s_mov_b32 exec_hi, 0")
        a("buffer_store_dword v10, v28, s[%d:%d], 0 offen sc1" % (SWS, SWS + 3))
        a("s_mov_b64 exec, -1")
        sp_("flagB")
        if PFP == 1: pf_mid()
        if PFP == 3: pf_all()
        poison()
        a("s_waitcnt vmcnt(0)")
        a("s_barrier")
    if ENV("PFD", 0):
        a("s_cmp_eq_u32 s%d, 1" % sWV); a("s_cselect_b32 exec_lo, 0xff, 0"); a("s_mov_b32 exec_hi, 0")
        a("buffer_store_dword v10, v28, s[%d:%d], 0 offen sc1" % (SWS, SWS + 3))
        a("s_mov_b64 exec, -1")
        sp_("flagB")
        for _ in range(ENV("PFD", 0) - 1): a("s_sleep 64")
        a("s_lshl_b32 s%d, s2, 3" % sT0); a("s_add_u32 s%d, s%d, s%d" % (sT0, sT0, sWV)); a("s_mul_i32 s%d, s%d, 7168" % (sT0, sT0))
        a("v_lshl_add_u32 v141, v1, 7, s%d" % sT0)
        a("s_mov_b32 exec_hi, 0xffffff")
        a("global_load_dword v141, v141, s[10:11]")
        a("s_mov_b64 exec, -1")
        a("s_waitcnt vmcnt(0)")
        sp_("pfd")
        a("s_cmp_lg_u32 s%d, 1" % sWV)
        a("s_cbranch_scc1 K_END")
        sp_.store(100)
        return
    a("s_cmp_lg_u32 s%d, 1" % sWV)
    a("s_cbranch_scc1 K_END")
    a("s_mov_b64 exec, 0xff")
    a("buffer_store_dword v10, v28, s[%d:%d], 0 offen offset:%d sc1" % (SWS, SWS + 3, 128 if YP == 3 else 0))
    a("s_mov_b64 exec, -1")
    sp_("flagB" if YP != 3 else "flagP")
    sp_.store(100)
```

```python
import math, os, sys, struct
from asmlib import Asm
def fbits(x): return "0x%08x" % struct.unpack("<I", struct.pack("<f", x))[0]
LOG2E = math.log2(math.e)
def vr(b, n=1): return "v%d" % b if n == 1 else "v[%d:%d]" % (b, b + n - 1)
EXP = os.environ.get('EXP', '')
STAMP = int(os.environ.get("STAMP", "0"))
RT = os.environ.get("RT", "")
MAPB = int(os.environ.get("MAPB", "0"))
WS_H = 0; WS_XNT = 8 << 20; WS_KREV = 12 << 20; WS_KSC = 16 << 20
WS_HF = 17 << 20
WS_CF = (17 << 20) + (1 << 19)
WS_PF = 18 << 20
WS_FR = WS_PF + 131072
WS_FC = WS_FR + 8192
WS_RC = 19 << 20; WS_CS = (19 << 20) + 65536
if int(os.environ.get("CMPW", "0")):
    WS_HF = 7 << 20; WS_CF = WS_HF + (1 << 18); WS_PF = WS_CF + (1 << 17); WS_FR = WS_PF + 131072; WS_FC = WS_FR + 8192
    WS_RC = WS_FC + 8192; WS_CS = WS_RC + 65536
WS_YAT = 20 << 20; WS_DBG = 24 << 20; WS_SIZE = 32 << 20
KSTRIDE = 4160
SPIN = 0x8000

def srd(a, d, p, nbytes):
    a("s_mov_b32 s%d, s%d" % (d, p))
    a("s_and_b32 s%d, s%d, 0xffff" % (d + 1, p + 1))
    a("s_mov_b32 s%d, 0x%x" % (d + 2, nbytes))
    a("s_mov_b32 s%d, 0x00020000" % (d + 3))

SX, SWG, SWU, SWS, SWD, SOUT, SDBG = 40, 44, 48, 52, 56, 60, 64
sWV, sR, sF, sWR, sWC, sRT2, sCT = 68, 69, 70, 71, 72, 73, 74
sLD = 75
sT0, sT1, sT2, sT3 = 76, 77, 78, 79
sOX, sOW, sWB, sCNT = 80, 81, 82, 83
sNON = 84
sPM = 86
sCH, sHF, sKW, sSC, sINV = 3, 4, 5, 6, 7
sONES, sCVB, sSTG = 38, 39, 36
STB = 88

class Stamps:
    def __init__(self, a, base=None):
        self.a = a; self.n = base.n if base else 0; self.names = list(base.names) if base else []; self.ffn = False
    def __call__(self, name):
        if os.environ.get("MEAS") == name and self.ffn:
            self.a("s_memrealtime s[100:101]"); self.a("s_waitcnt lgkmcnt(0)"); self.a("s_mov_b32 s99, s100")
        if not STAMP: return
        if RT == "1" and name not in ("start", "end"): return
        if "su" in EXP and self.n >= 11 and name != "end": return
        if "f2a" in EXP and not (name in ("start", "flag1", "hpoll") or (name[:2] == "s_" and int(name[2:]) < 9)) and self.ffn: return
        if "f2b" in EXP and not (name in ("start", "f2end", "end") or (name[:2] == "s_" and int(name[2:]) >= 5)) and self.ffn: return
        if name[:2] == "s_" and "f2" not in EXP: return
        if name[:2] == "l_" and "lp" not in EXP: return
        if name[:2] == "u_" and "sv" not in EXP: return
        if "sv" in EXP and self.ffn and not (name[:2] == "u_" or name in ("start", "st0", "loopend", "end")): return
        if "lp" in EXP and self.ffn and not (name[:2] == "l_" or name in ("start", "st0", "loopend", "gelu")): return
        assert self.n < 12, name
        self.a("%s s[100:101]" % ("s_memrealtime" if RT else "s_memtime"))
        self.a("s_waitcnt lgkmcnt(0)")
        self.a("s_mov_b32 s%d, s100" % (STB + self.n))
        self.n += 1; self.names.append(name)
    def store(self, vt):
        if not STAMP: return
        a = self.a
        a("s_lshl_b32 s100, s2, 4"); a("s_add_u32 s100, s100, s%d" % sWV); a("s_lshl_b32 s100, s100, 6")
        a("s_add_u32 s100, s100, %d" % WS_DBG)
        a("s_mov_b64 exec, 1")
        a("v_mov_b32 v%d, s100" % vt)
        for i in range(self.n):
            a("v_mov_b32 v%d, s%d" % (vt + 1, STB + i))
            a("buffer_store_dword v%d, v%d, s[%d:%d], 0 offen offset:%d" % (vt + 1, vt, SWS, SWS + 3, 4 * i))
            a("s_waitcnt vmcnt(0)")
        a("s_mov_b64 exec, -1")

ENV = lambda k, d: int(os.environ.get(k, str(d)))
L_W = 0
L_X = [65536, 98304 + 17408, 81920]
RING = 98304
STG_W = 4352; L_STG = RING
L_CV = RING + 4 * STG_W
CPS = 4160; O_U = 4 * CPS; CV_CH = O_U + 4608
L_SYNC = L_CV + 2 * CV_CH
L_FL = L_SYNC + 512
FLS = 320
KT = ENV("KT", 0)
MIX = ENV("MIX", 0)
LDS = L_FL + (4 * FLS if KT else 256)
assert L_X[1] == L_CV and LDS <= 163840
Y_CNT = 0; Y_RDA = 8; Y_RDB = 9; Y_NON = 16; Y_KX = 24; Y_C0 = 28; Y_BL = 32; Y_CX = 36; Y_XR = 40; Y_YA = 44; Y_KEXP = 48; Y_RD = 64; Y_TR = 68; Y_WS = 72; Y_U = 76
NSTA = ENV('NSTA', 5)
WDS = [32768, 49152, 81920, 0, 16384, 65536]
CSM = 1792 * 8
sFW = 36; sHD = 37
FSH = ENV('FSH', 8)

def gen():
    a = Asm()
    lab = [0]
    def L(p): lab[0] += 1; return "%s_%d" % (p, lab[0])
    st_ = Stamps(a)
    def spin_lds(addr, tmp, need, width="u8", slp=1, off=0):
        l1, l2 = L("SP"), L("SD")
        a("s_mov_b32 s%d, %d" % (sCNT, SPIN))
        a.label(l1)
        a("ds_read_%s v%d, v%d offset:%d" % (width, tmp, addr, off))
        a("s_waitcnt lgkmcnt(0)")
        a("v_cmp_gt_u32 vcc, %d, v%d" % (need, tmp))
        a("s_cbranch_vccz %s" % l2)
        if slp: a("s_sleep %d" % slp)
        a("s_sub_u32 s%d, s%d, 1" % (sCNT, sCNT))
        a("s_cmp_lg_u32 s%d, 0" % sCNT)
        a("s_cbranch_scc1 %s" % l1)
        a.label(l2)

    a("s_cmp_ge_u32 s2, 256")
    a("s_cbranch_scc1 K_END")
    st_("start")
    a("s_load_dwordx16 s[16:31], s[0:1], 0")
    a("s_load_dwordx4 s[32:35], s[0:1], 80")
    a("s_load_dwordx8 s[8:15], s[0:1], 96")
    a("v_lshrrev_b32 v1, 6, v0")
    a("v_readfirstlane_b32 s%d, v1" % sWV)
    a("v_and_b32 v1, 63, v0")
    CPF = ENV("CPF", 8)
    if CPF:
        a("s_cmp_ge_u32 s2, %d" % CPF)
        a("s_cbranch_scc1 K_NPF")
        a.begin_opt()
        a("s_getpc_b64 s[4:5]")
        a.label("K_PFB")
        a("v_lshlrev_b32 v2, 7, v0")
        a("v_min_u32 v2, K_END-K_PFB, v2")
        a("global_load_dword v255, v2, s[4:5]")
        a.end_opt()
        a.label("K_NPF")
    a("s_cmp_lt_u32 s2, 32")
    a("s_cbranch_scc1 K_PROD")
    a("s_and_b32 s%d, s2, 7" % sT0)
    a("s_lshr_b32 s%d, s2, 3" % sT1)
    a("s_sub_u32 s%d, s%d, 4" % (sT1, sT1))
    a("s_lshr_b32 s%d, s%d, 1" % (sT2, sT0)); a("s_lshl_b32 s%d, s%d, 2" % (sT2, sT2))
    a("s_and_b32 s%d, s%d, 3" % (sT3, sT1)); a("s_add_u32 s%d, s%d, s%d" % (sR, sT2, sT3))
    a("%s s%d, %s" % (("s_andn2_b32", sT2, "1, s%d" % sT0) if ENV("SWP", 1) else ("s_and_b32", sT2, "s%d, 1" % sT0))); a("s_mul_i32 s%d, s%d, 7" % (sT2, sT2))
    a("s_lshr_b32 s%d, s%d, 2" % (sCT, sT1)); a("s_add_u32 s%d, s%d, s%d" % (sF, sT2, sCT))
    a("s_lshl_b32 s%d, s%d, 2" % (sRT2, sT0)); a("s_add_u32 s%d, s%d, s%d" % (sRT2, sRT2, sT3))
    a("s_cmp_ge_u32 s%d, 4" % sWV)
    a("s_cbranch_scc1 K_HELP")
    sf_ = Stamps(a, st_); sf_.ffn = True; sh_ = Stamps(a, st_); sp_ = Stamps(a, st_)
    NST = 14
    a("s_setprio %d" % ENV("FPRIO", 2))
    a("s_and_b32 s%d, s%d, 1" % (sWR, sWV))
    a("s_lshr_b32 s%d, s%d, 1" % (sWC, sWV))
    a("s_lshl_b32 s%d, s%d, 11" % (sWB, sWV))
    a("s_lshl_b32 s%d, s%d, 12" % (sOX, sWV))
    a("v_lshrrev_b32 v2, 3, v1")
    a("s_lshl_b32 s%d, s%d, 7" % (sT0, sR))
    a("s_lshl_b32 s%d, s%d, 5" % (sT1, sWV))
    a("s_add_u32 s%d, s%d, s%d" % (sT0, sT0, sT1))
    a("v_add_u32 v2, s%d, v2" % sT0)
    a("v_mul_u32_u24 v2, 896, v2")
    a("v_lshrrev_b32 v5, 4, v1")
    a("v_xor_b32 v6, v1, v5")
    a("v_and_b32 v6, 7, v6")
    a("v_xor_b32 v7, 4, v6")
    a("v_lshl_add_u32 v3, v7, 4, v2")
    a("v_add_u32 v3, %d, v3" % (8 * 896 - 1024))
    a("v_lshl_add_u32 v2, v6, 4, v2")
    a("v_add_u32 v56, %d, v2" % (16 * 896 - 2048)); a("v_add_u32 v57, %d, v3" % (16 * 896 - 2048))
    a("v_mul_u32_u24 v4, 3584, v5")
    a("v_lshlrev_b32 v6, 2, v5")
    a("v_xor_b32 v6, v1, v6")
    a("v_and_b32 v6, 15, v6")
    a("v_lshl_add_u32 v4, v6, 4, v4")
    a("s_lshl_b32 s%d, s%d, 8" % (sT0, sF))
    if MIX:
        a("v_lshrrev_b32 v6, 3, v6"); a("v_lshl_add_u32 v4, v6, 7, v4")
        a("s_and_b32 s%d, s%d, 1" % (sT1, sF)); a("s_lshl_b32 s%d, s%d, 7" % (sT1, sT1)); a("s_sub_u32 s%d, s%d, s%d" % (sT0, sT0, sT1))
    a("s_mul_i32 s%d, s%d, %d" % (sT1, sWV, 8 * 3584)); a("s_add_u32 s%d, s%d, s%d" % (sT0, sT0, sT1))
    a("v_add_u32 v4, s%d, v4" % sT0)
    a("v_add_u32 v58, %d, v4" % (4 * 3584 - 2048))
    a("s_mul_i32 s%d, s%d, %d" % (sFW, sWV, FLS if KT else 4)); a("s_add_u32 s%d, s%d, %d" % (sFW, sFW, L_FL))
    ROT = ENV("ROT", 0); ROT1 = ENV("ROT1", 0); ROT2 = ENV("ROT2", 0)
    RJ = [3, 4, 5, 6, 7, 38, 39]
    a("s_lshl_b32 s%d, s%d, 1" % (sT0, sT3)); a("s_add_u32 s%d, s%d, s%d" % (sT0, sT0, sCT)); a("s_lshl_b32 s%d, s%d, 7" % (sT0, sT0))
    def rj(i):
        if i: a("s_add_u32 s%d, s%d, 128" % (sT0, RJ[i - 1]))
        a("s_sub_u32 s%d, s%d, 896" % (sT1, sT0)); a("s_cmp_ge_u32 s%d, 896" % sT0); a("s_cselect_b32 s%d, s%d, s%d" % (RJ[i], sT1, sT0))
    if ROT1 == 2: a("s_lshl_b32 s%d, s%d, 8" % (sT0, sT3))
    if ROT1 == 3: a("s_lshl_b32 s%d, s%d, 7" % (sT0, sCT))
    if ROT1: rj(0)
    sf_("u_addr")
    a("s_waitcnt lgkmcnt(0)")
    VFL, VFA = 50, 51
    cur = {}
    def setr(r, txt):
        def f():
            if cur.get(r) != txt: cur[r] = txt; a0(txt)
        return f
    a0 = a
    sOW2, sOWX = 5, 6
    def dma_x(b):
        if ROT1: return [[setr("m0", "s_add_u32 m0, s%d, %d" % (sOX, L_X[b % 3])),
                 ("buffer_load_dwordx4 v%d, s[%d:%d], s%d offen offset:%d lds" % ((2, 3, 56, 57)[i], SX, SX + 3, RJ[b], i * 1024), ("x", b))] for i in range(4)]
        return [[setr("m0", "s_add_u32 m0, s%d, %d" % (sOX, L_X[b % 3])), setr("ox", "s_movk_i32 s%d, %d" % (sOWX, b * 128)),
                 ("buffer_load_dwordx4 v%d, s[%d:%d], s%d offen offset:%d lds" % ((2, 3, 56, 57)[i], SX, SX + 3, sOWX, i * 1024), ("x", b))] for i in range(4)]
    def dma_w(st):
        out = []
        if ROT1:
            for mat in range(2):
                for i in range(2):
                    S = (SWG, SWU)[mat]
                    out.append([setr("m0", "s_add_u32 m0, s%d, %d" % (sOX, L_W + (st % 4) * 16384 + mat * 1024)),
                                setr(sOW, "s_mul_i32 s%d, s%d, 1792" % (sOW, RJ[st >> 1]) + ("\ns_add_u32 s%d, s%d, %d" % (sOW, sOW, 32 * 3584) if st & 1 else "")),
                                ("buffer_load_dwordx4 v%d, s[%d:%d], s%d offen offset:%d lds" % ((4, 58)[i], S, S + 3, sOW, i * 2048), ("w", st))])
            return out
        for i in range(2):
            for mat in range(2):
                S = (SWG, SWU)[mat]
                if st == 0 and mat:
                    out.append([setr("m0", "s_add_u32 m0, s%d, %d" % (sOX, L_W + 1024)),
                                ("buffer_load_dwordx4 v%d, s[%d:%d], 0 offen offset:%d lds" % ((4, 58)[i], S, S + 3, i * 2048), ("w", st))])
                    continue
                so = (sOW, sOW2)[mat]
                out.append([setr("m0", "s_add_u32 m0, s%d, %d" % (sOX, L_W + (st % 4) * 16384)), setr(so, "s_mov_b32 s%d, %d" % (so, st * 32 * 3584 - mat * 1024)),
                            ("buffer_load_dwordx4 v%d, s[%d:%d], s%d offen offset:%d lds" % ((4, 58)[i], S, S + 3, so, i * 2048 + mat * 1024), ("w", st))])
        if st == 0: out = [out[0], out[2], out[1], out[3]]
        return out
    def dflag(idx):
        if not KT: return [setr("m0", "s_add_u32 m0, s%d, %d" % (sFW, 16 * idx)), "s_mov_b64 exec, 1", ("global_load_lds_dword v%d, s[0:1]" % VFL, "fl"), "s_mov_b64 exec, -1"]
        return [setr("m0", "s_mov_b32 m0, s%d" % sFW), ("global_load_lds_dword v%d, s[30:31] offset:%d" % (VFL, 4 * idx), "fl")]
    def emit(g, a=a):
        for x in g:
            if callable(x): x()
            elif isinstance(x, tuple) and x[0].startswith("ds_"): a.ds(x[0], x[1])
            elif isinstance(x, tuple): a.vm(x[0], x[1])
            else: a(x)
    srd(a, SX, 16, 2048 * 896)
    for g in dma_x(0): emit(g)
    srd(a, SWG, 32, 448 * 3584)
    srd(a, SWU, 34, 448 * 3584)
    for g in dma_w(0): emit(g)
    if ROT1:
        for i in range(1, 7): rj(i)
    if KT:
        a("v_mov_b32 v%d, 0" % VFL)
        a("s_getpc_b64 s[30:31]")
        a.label("K_TB")
        a("s_add_u32 s30, s30, K_TAB-K_TB"); a("s_addc_u32 s31, s31, 0")
    else: a("s_cmp_lg_u32 s15, 0"); a("s_cselect_b32 s%d, 31, 30" % sT0); a("s_lshl_b32 s%d, s%d, 2" % (sT0, sT0)); a("v_mov_b32 v%d, s%d" % (VFL, sT0))
    sf_("u_dma0")
    a("s_barrier")
    sf_("u_bar")
    emit(dflag(0))
    Q = []
    for k in range(1, 14):
        if k % 2 == 0: Q += [(max(0, k - 4), g) for g in dma_x(k // 2)]
        w_ = dma_w(k); w_[-1] = w_[-1] + dflag(k)
        Q += [(max(0, k - 3), g) for g in w_]
    NPRE = ENV("NPRE", 12)
    pend = [g for _, g in Q[:NPRE]]; Q = Q[NPRE:]
    a_real = a
    ILN = ENV("ILN", 4)
    class IL:
        def __init__(s_): s_.n = 0
        def __call__(s_, t):
            a_real(t); s_.n += 1
            if s_.n % ILN == 0 and pend: emit(pend.pop(0))
    a = IL()
    a("v_lshlrev_b32 v15, 2, v1")
    a("v_and_b32 v11, 3, v1"); a("v_mul_u32_u24 v%d, %d, v11" % (VFA, FLS if KT else 4)); a("v_add_u32 v11, %d, v11" % (L_SYNC + Y_CNT))
    a("v_add_u32 v%d, %d, v%d" % (VFA, L_FL + (64 if KT else 0), VFA))
    a("s_add_u32 s%d, s%d, %d" % (sT0, sWV, L_SYNC + Y_CNT)); a("v_mov_b32 v12, s%d" % sT0)
    a("v_add_u32 v13, %d, v15" % (L_SYNC + 128)); a("v_cmp_eq_u32 vcc, 0, v1"); a("v_cndmask_b32 v12, v13, v12, vcc")
    a("v_mov_b32 v10, %d" % (L_SYNC + Y_RDA))
    a("v_and_b32 v16, 31, v1")
    a("s_lshl_b32 s%d, s%d, 6" % (sT0, sWR))
    a("v_add_u32 v22, s%d, v16" % sT0)
    a("v_lshrrev_b32 v17, 5, v1")
    a("v_bfe_u32 v18, v1, 1, 3")
    a("v_xor_b32 v18, v17, v18")
    a("v_lshlrev_b32 v5, 7, v22")
    a("v_lshl_add_u32 v5, v18, 4, v5")
    a("v_add_u32 v5, 65536, v5")
    a("v_xor_b32 v6, 32, v5"); a("v_xor_b32 v7, 64, v5"); a("v_xor_b32 v8, 96, v5")
    a("v_bfe_u32 v19, v1, 2, 2")
    a("v_lshl_add_u32 v20, v17, 4, v19")
    a("v_lshlrev_b32 v9, 8, v20")
    a("v_bfe_u32 v20, v1, 4, 1"); a("v_lshlrev_b32 v20, 1, v20")
    a("v_bfe_u32 v21, v1, 1, 1"); a("v_add_u32 v20, v20, v21")
    a("s_lshl_b32 s%d, s%d, 3" % (sT0, sWC))
    a("v_add_u32 v20, s%d, v20" % sT0)
    a("v_lshlrev_b32 v21, 2, v19")
    a("v_xor_b32 v20, v20, v21")
    a("v_lshl_add_u32 v9, v20, 4, v9")
    a("v_and_b32 v21, 1, v1")
    a("v_lshl_add_u32 v9, v21, 3, v9")
    a("v_xor_b32 v0, 64, v9")
    srd(a, SWS, 14, WS_SIZE)
    srd(a, SWD, 8, 1792 * 896)
    srd(a, SOUT, 10, 2048 * 896)
    a("s_lshl_b32 s%d, s%d, 11" % (sT0, sR)); a("s_add_u32 s%d, s%d, %d" % (sT0, sT0, WS_RC))
    a("v_lshl_add_u32 v18, v22, 4, s%d" % sT0)
    if MIX:
        a("s_add_u32 s%d, s%d, s%d" % (sT0, sF, sWC)); a("s_lshl_b32 s%d, s%d, 1" % (sT0, sT0)); a("s_and_b32 s%d, s%d, 1" % (sT1, sF)); a("s_sub_u32 s%d, s%d, s%d" % (sT1, sT0, sT1))
        a("s_lshl_b32 s%d, s%d, 9" % (sT0, sT1))
    else: a("s_lshl_b32 s%d, s%d, 10" % (sT0, sF)); a("s_lshl_b32 s%d, s%d, 9" % (sT1, sWC)); a("s_add_u32 s%d, s%d, s%d" % (sT0, sT0, sT1))
    a("s_add_u32 s%d, s%d, %d" % (sT0, sT0, WS_CS))
    a("v_lshl_add_u32 v19, v16, 3, s%d" % sT0)
    a("v_lshl_add_u32 v19, v17, 2, v19")
    a("s_lshl_b32 s%d, s%d, 1" % (sT0, sR))
    a("s_add_u32 s%d, s%d, s%d" % (sT0, sT0, sWR))
    if not MIX:
        a("s_lshl_b32 s%d, s%d, 1" % (sT1, sF))
        a("s_add_u32 s%d, s%d, s%d" % (sT1, sT1, sWC))
    a("s_lshl_b32 s%d, s%d, 8" % (sT2, sT0)); a("s_add_u32 s%d, s%d, %d" % (sT2, sT2, WS_FR)); a("v_mov_b32 v15, s%d" % sT2)
    a("s_lshl_b32 s%d, s%d, 8" % (sT2, sT1)); a("s_add_u32 s%d, s%d, %d" % (sT2, sT2, WS_FC)); a("v_writelane_b32 v15, s%d, 1" % sT2)
    a("s_mul_i32 s%d, s%d, 37" % (sT3, sT1)); a("s_lshr_b32 s%d, s%d, 8" % (sT3, sT3)); a("s_add_u32 s%d, s%d, s%d" % (sT3, sT3, sT1))
    a("s_lshl_b32 s%d, s%d, 1" % (sT1, sT1))
    a("s_lshl_b32 s%d, s%d, 5" % (sT2, sT0)); a("s_add_u32 s%d, s%d, s%d" % (sT2, sT2, sT3)); a("s_lshl_b32 s%d, s%d, %d" % (sT2, sT2, FSH))
    a("s_add_u32 s%d, s%d, %d" % (sT2, sT2, WS_HF))
    a("v_mov_b32 v21, s%d" % sT2)
    a("s_mul_i32 s%d, s%d, 56" % (sT0, sT0))
    a("s_add_u32 s%d, s%d, s%d" % (sT0, sT0, sT1))
    a("s_lshl_b32 s%d, s%d, 12" % (sT0, sT0))
    a("v_and_b32 v20, 15, v1")
    a("v_lshlrev_b32 v20, 4, v20")
    a("v_bfe_u32 v22, v1, 4, 1")
    a("v_lshl_add_u32 v20, v22, 10, v20")
    a("v_lshl_add_u32 v20, v17, 8, v20")
    a("v_add_u32 v20, s%d, v20" % sT0)
    a("s_mov_b32 s%d, 0" % sLD)
    CA_, CB_ = 32, 42
    for r in range(33, 50):
        if r not in (34, 36, 38, 42, 46): a("v_mov_b32 v%d, 0" % r)
    a("v_lshrrev_b32 v16, 3, v1")
    a("s_mul_i32 s%d, s%d, %d" % (sT0, sWV, 448 * 896))
    a("v_mul_u32_u24 v16, 896, v16")
    a("s_lshl_b32 s%d, s%d, 7" % (sT1, sCT)); a("s_add_u32 s%d, s%d, s%d" % (sT0, sT0, sT1))
    a("v_add_u32 v16, s%d, v16" % sT0)
    a("v_xor_b32 v17, v1, v22"); a("v_and_b32 v17, 7, v17")
    a("v_lshl_add_u32 v52, v17, 4, v16")
    for q in range(1, 4): a("v_add_u32 v%d, %d, v52" % (52 + q, q * (8 * 896 - 1024)))
    a = a_real
    while pend: emit(pend.pop(0))
    ACC = lambda ff, mat, tt: 128 + 64 * ff + 32 * mat + 16 * tt
    FR = [80, 104]
    RC = [24, 28]
    NW = 6
    J = lambda s: 2 * (s % 7) + s // 7
    WDV = [52, 52]
    def dma_wd(s):
        if "now" in EXP and s >= 6: return []
        if s < 6:
            return [[setr("m0", "s_add_u32 m0, s%d, %d" % (sOX, WDS[s % NW])), setr(sOW, "s_mov_b32 s%d, %d" % (sOW, J(s) * 32 * 896)),
                     ("buffer_load_dwordx4 v%d, s[%d:%d], s%d offen offset:%d lds" % (52 + q, SWD, SWD + 3, sOW, q * 1024), ("wd", s))] for q in range(4)]
        return [["s_add_u32 m0, s%d, %d" % (sOX, WDS[s % NW] + q * 1024), "s_mov_b32 s%d, %d" % (sOW, (J(s) * 32 + 8 * q) * 896),
                 ("buffer_load_dwordx4 v2, s[%d:%d], s%d offen lds" % (SWD, SWD + 3, sOW), ("wd", s))] for q in range(4)]
    def rd_frags(st, kk):
        fb = FR[kk]
        slot = st % 4
        xo = L_X[(st >> 1) % 3] - 65536
        xa = 5 + 2 * (st & 1) + kk
        def wr(ff, mat):
            return [("ds_read_b64_tr_b16 %s, v%d offset:%d" % (vr(fb + 8 + 8 * ff + 4 * mat + 2 * half, 2), (9, 0)[ff], L_W + slot * 16384 + mat * 1024 + kk * 8192 + half * 2048), ("fr", st, kk, ff, mat)) for half in range(2)]
        xr = lambda tt: [("ds_read_b128 %s, v%d offset:%d" % (vr(fb + 4 * tt, 4), xa, xo + tt * 4096), ("fx", st, kk, tt))]
        return [xr(0) + wr(0, 0), xr(1), wr(0, 1), wr(1, 0), wr(1, 1)]
    def mfmas(kk, first=False):
        fb = FR[kk]
        return ["v_mfma_f32_32x32x16_bf16 %s, %s, %s, %s" % (vr(ACC(ff, mat, tt), 16), vr(fb + 8 + 8 * ff + 4 * mat, 4), vr(fb + 4 * tt, 4), "0" if first else vr(ACC(ff, mat, tt), 16))
                for ff in range(2) for mat in range(2) for tt in range(2)]
    def inter(st, kk, groups):
        for i, m in enumerate(mfmas(kk, st == 0 and kk == 0)):
            ff, mat, tt = i >> 2, (i >> 1) & 1, i & 1
            if i == 1: a.wait_ds(("fx", st, kk, 1))
            a.wait_ds(("fr", st, kk, ff, mat))
            a(m)
            for sl, g in groups:
                if sl == i: emit(g)
    def arrive(v, off=0):
        a("v_mov_b32 v13, %d" % v)
        a.ds("ds_write_b8 v12, v13 offset:%d" % off, "sig")
    deferred = []
    chk0 = [0]
    def check(v, kind):
        if "nochk" in EXP and 1 < len(a.vmq) and v < 14 and chk0[0]: return
        chk0[0] = 1
        a("s_getpc_b64 s[20:21]")
        a("v_cmp_gt_u32 vcc, %d, v%d" % (v, 14 if kind == "F" else 16))
        a("s_cbranch_vccnz K_RT_%s" % kind)
    def retries():
        a("s_mov_b32 s18, %d" % (SPIN * 4))
        a("s_branch K_RTE")
        for kind in ("R", "F"):
            r = 14 if kind == "F" else 16
            a.label("K_RT_%s" % kind)
            a("ds_read_b32 v14, v%d" % VFA if kind == "F" else "ds_read_u8 v16, v11 offset:%d" % Y_RD)
            a("s_sub_i32 s18, s18, 1"); a("s_max_i32 s18, s18, 0")
            a("s_cmp_eq_u32 s18, 0"); a("s_cselect_b32 s19, 255, 0")
            a("s_waitcnt lgkmcnt(0)")
            a("v_or_b32 v%d, s19, v%d" % (r, r))
            a("s_setpc_b64 s[20:21]")
        a.label("K_RTE")
    def const_loads():
        for tt in range(2):
            a("buffer_load_dwordx4 %s, v18, s[%d:%d], 0 offen offset:%d" % (vr(RC[tt], 4), SWS, SWS + 3, tt * 512))
        a("s_movk_i32 s%d, %d" % (sT0, CSM))
        for ff in range(2):
            a("buffer_load_dword v%d, v19, s[%d:%d], 0 offen offset:%d" % (CA_ + 4 * ff, SWS, SWS + 3, ff * 256))
            a("buffer_load_dword v%d, v19, s[%d:%d], s%d offen offset:%d" % (CA_ + 4 * ff + 2, SWS, SWS + 3, sT0, ff * 256))
        a("s_mov_b32 s%d, 1" % sLD)
    def get_non():
        a.wait_ds("non")
        a("v_readfirstlane_b32 s%d, v22" % sNON); a("v_readfirstlane_b32 s%d, v23" % (sNON + 1))
    def pollA():
        a.vm("buffer_load_dword v17, v15, s[%d:%d], 0 offen sc1" % (SWS, SWS + 3), "pf")
    def try_const():
        l = L("CL"); lo = L("CLO")
        a.wait_vm("pf")
        a("v_cmp_ne_u32 vcc, s%d, v17" % sNON)
        a("s_cbranch_vccz %s" % lo)
        a.label(l)
        a.mark("cst")
        def slow():
            a.label(lo)
            a("s_cmp_eq_u32 s%d, 0" % (sNON + 1))
            a("s_cbranch_scc1 %s" % l)
            a("s_cmp_lg_u32 s%d, 0" % sLD)
            a("s_cbranch_scc1 %s" % l)
            const_loads()
            a("s_branch %s" % l)
        deferred.append(slow)
    PA = ENV("PA", 3)
    RS = [int(c) for c in os.environ.get("RS", "01245")]
    TP = [int(c) for c in os.environ.get("TP", "9,11").split(",")]
    EARLY = ENV("EARLY", 1)
    sf_("u_pre")
    if "sv" in EXP: a.wait_vm(("x", 0)); sf_("u_x0"); a.wait_vm(("w", 0)); sf_("u_w0")
    retries()
    a("v_mov_b32 v14, 0")
    check(1, "F")
    a.dsq = []
    sf_("st0")
    a("s_setprio %d" % ENV("LPRIO", 3))
    poll = ([] if KT else ["v_add_u32 v%d, 16, v%d" % (VFA, VFA)]) + [("ds_read_b32 v14, v%d" % VFA, "pA")]
    for g in rd_frags(0, 0): emit(g)
    DMX = ENV("DMX", 6)
    if EARLY: Q += [(11, g) for g in dma_wd(0)] + [(12, g) for g in dma_wd(1) + dma_wd(2)] + [(13, g) for g in dma_wd(3)]
    SD = []
    for st in range(NST):
        D = []
        while Q and Q[0][0] <= st and len(D) < (DMX if st else 8): D.append(Q.pop(0)[1])
        SD.append(D)
    assert not Q
    if ENV("VERB", 0): print("DMA per stage", [len(d) for d in SD])
    stageD = lambda st: SD[st]
    for st in range(NST):
        if st in (7,) and not NSTA: sf_("st%d" % st)
        if st in (1, 2, 3, 4, 6, 8, 10, 12): sf_("l_%d" % st)
        D = stageD(st)
        DS = [(int(x) // 8, int(x) % 8) for x in os.environ.get("DS", "4,6,9,11,13,15").split(",")] if len(D) <= 6 else [(0, 3), (0, 5), (0, 7), (1, 1), (1, 2), (1, 4), (1, 5), (1, 7)]
        if st == 0: DS = [(0, 0), (0, 2), (0, 4), (0, 6), (1, 1), (1, 3), (1, 5), (1, 7)]
        G = []
        G += [(RS[i], g) for i, g in enumerate(rd_frags(st, 1))]
        if st + 1 in TP: G.append((5, [("ds_read_b64 v[22:23], v10 offset:%d" % (Y_NON - Y_RDA), "non")]))
        if st - 2 in TP: G.append((0, [try_const]))
        if st in TP: G.append((1, [get_non, pollA]))
        if D and st: G.append((ENV("RCK", 3), [lambda: a.wait_ds("pR"), lambda st=st: check(st, "R")]))
        G += [(DS[i][1], g) for i, g in enumerate(D) if DS[i][0] == 0]
        if st + 1 < NST: G.append((PA, poll))
        if ENV("ARS", 5) < 8: G.append((ENV("ARS", 5), [lambda st=st: arrive(st + 1, Y_RD)]))
        inter(st, 0, G)
        G = []
        if st + 1 < NST:
            G.append((0, [lambda: a.wait_ds("pA"), lambda st=st: check(st + 2 if KT else 1, "F")]))
            G += [(RS[i], g) for i, g in enumerate(rd_frags(st + 1, 0))]
        if ENV("ARS", 5) >= 8: G.append((ENV("ARS", 5) - 8, [lambda st=st: arrive(st + 1, Y_RD)]))
        G += [(DS[i][1], g) for i, g in enumerate(D) if DS[i][0] == 1]
        if st + 1 == NST or stageD(st + 1): G.append((ENV("PRS", 7), [("ds_read_u8 v16, v11 offset:%d" % Y_RD, "pR")]))
        inter(st, 1, G)
    sf_("loopend")
    a("s_setprio %d" % ENV("GPRIO", 1))
    l = L("CL"); lo = L("CLO"); l1 = L("CLP"); l2 = L("CLP")
    a("s_cmp_eq_u32 s%d, 0" % sLD)
    a("s_cbranch_scc1 %s" % lo)
    a.wait_vm("cst")
    a.label(l)
    def slow(l=l, lo=lo):
        a.label(lo)
        a("s_mov_b32 s%d, %d" % (sCNT, SPIN))
        a.label(l1)
        a("ds_read_b64 v[22:23], v10 offset:%d" % (Y_NON - Y_RDA))
        a("buffer_load_dword v17, v15, s[%d:%d], 0 offen sc1" % (SWS, SWS + 3))
        a("s_waitcnt vmcnt(0) lgkmcnt(0)")
        a("v_readfirstlane_b32 s%d, v22" % sNON); a("v_readfirstlane_b32 s%d, v23" % (sNON + 1))
        a("v_cmp_ne_u32 vcc, s%d, v17" % sNON)
        a("s_cmp_eq_u32 s%d, 0" % (sNON + 1))
        a("s_cselect_b64 s[%d:%d], -1, vcc" % (sT0, sT0 + 1))
        a("s_cmp_eq_u64 s[%d:%d], 0" % (sT0, sT0 + 1))
        a("s_cbranch_scc1 %s" % l2)
        a("s_sleep 2")
        a("s_sub_u32 s%d, s%d, 1" % (sCNT, sCNT)); a("s_cmp_lg_u32 s%d, 0" % sCNT)
        a("s_cbranch_scc1 %s" % l1)
        a.label(l2)
        const_loads()
        a("s_waitcnt vmcnt(0)")
        a("s_branch %s" % l)
    deferred.append(slow)
    for tt in range(2): a("v_mov_b32 v%d, v%d" % (CB_ + 4 * tt, RC[tt]))
    corr = ["v_mfma_f32_32x32x16_bf16 %s, %s, %s, %s" % (vr(ACC(ff, mat, tt), 16), vr(CA_ + 4 * ff + 2 * mat, 4), vr(CB_ + 4 * tt, 4), vr(ACC(ff, mat, tt), 16))
            for ff in range(2) for tt in range(2) for mat in range(2)]
    a(corr[0]); a(corr[1])
    a("v_mov_b32 v2, v52"); WDV = [2, 2]
    a("s_lshl_b32 s%d, s%d, 2" % (sT0, sRT2)); a("s_add_u32 s%d, s%d, s%d" % (sT0, sT0, sWV)); a("s_lshl_b32 s%d, s%d, %d" % (sT0, sT0, FSH + 3))
    a("s_add_u32 s%d, s%d, %d" % (sT0, sT0, WS_HF))
    a("v_lshrrev_b32 v8, 1, v1"); a("v_lshlrev_b32 v8, %d, v8" % FSH); a("v_and_b32 v14, 1, v1"); a("v_lshl_add_u32 v8, v14, 2, v8")
    a("v_add_u32 v8, s%d, v8" % sT0)
    a(corr[2])
    TRB = [[4, 5], [6, 7]]
    a("v_bfe_u32 v13, v1, 2, 2"); a("v_lshrrev_b32 v14, 4, v1")
    a("v_lshl_add_u32 v13, v14, 3, v13")
    a("v_lshlrev_b32 v13, 7, v13")
    a("v_and_b32 v14, 3, v1")
    a("v_lshl_add_u32 v13, v14, 5, v13")
    a("v_bfe_u32 v14, v1, 3, 1")
    a("v_lshl_add_u32 v13, v14, 4, v13")
    a("v_add_u32 v4, s%d, v13" % sOX)
    a("v_xor_b32 v5, 16, v4")
    a("v_add_u32 v6, 65536, v4"); a("v_add_u32 v7, 65536, v5")
    a(corr[3])
    a("s_mov_b32 s%d, %d" % (sHD, 0x2aaa if "nogate" in EXP else 0))
    a.wait_ds("pR")
    check(14, "R")
    a.dsq = []
    sf_("stats")
    NV = ENV("NV", 6); NG = ENV("NG", 0)
    GST = ENV('GST', 0)
    WBK = [160, 128, 176, 144, 64, 112] if GST else [80, 96, 32, 48, 160, 128, 176, 144]
    OB = [80, 96, 32]
    WB = {s: WBK[s] for s in range(NV)}
    def trw(s):
        a.wait_vm(("wd", s))
        hi = WDS[s % NW] >= 65536; of = WDS[s % NW] - 65536 * hi
        for ct in range(4):
            for hf in range(2):
                a.ds("ds_read_b64_tr_b16 %s, v%d offset:%d" % (vr(WB[s] + 4 * ct + 2 * hf, 2), TRB[hi][ct >> 1], of + hf * 512 + 8 * (ct & 1)), ("tw", s))
    HA = [9, 3, 0, 10]
    def hpoll(r=14, tag="hp"):
        a("s_mov_b64 exec, 0x3fff")
        a.vm("buffer_load_dword v%d, v8, s[%d:%d], 0 offen sc1" % (r, SWS, SWS + 3), tag)
        a("s_mov_b64 exec, -1")
    def flag(ff, trk=True):
        if "noflag1" in EXP and ff == 1:
            a.wait_vm(("hst", ff)); return
        if trk: a.wait_vm(("hst", ff))
        a("s_mov_b64 exec, 1")
        t = "buffer_store_dword v22, v21, s[%d:%d], 0 offen offset:%d sc1" % (SWS, SWS + 3, ff * 4)
        if trk: a.vm(t, "hfl")
        else: a(t)
        a("s_mov_b64 exec, -1")
    GD = ENV("GD", 11); GP = 9; PKG = ENV("PKG", 0)
    ev = []
    def at(t, item): ev.append((t, len(ev), item))
    BT = 8 * GP
    for i in range(4, 8): at((i - 4) * 6 + 2, corr[i])
    def sched_dma(t, s, dt=5):
        for q, g in enumerate(dma_wd(s)): at(t + q * dt, lambda g=g: emit(g))
    if EARLY:
        sched_dma(0.1, 4); sched_dma(24.1, 5)
        TW = [float(x) for x in os.environ.get("TW", "0.7,1.4,2.1,2.8,3.5,4.2,5.0,5.7").split(",")]
    else:
        for s in range(6): sched_dma(s * BT + 0.1, s)
        TW = [float(x) for x in os.environ.get("TW", "3,4,5,6,7,8").split(",")]
    if GST:
        for n in range(12):
            def ld_own(n=n):
                emit([setr(sOW, "s_mov_b32 s%d, %d" % (sOW, J(6 + n // 4) * 32 * 896)),
                      ("buffer_load_dwordx4 %s, v%d, s[%d:%d], s%d offen offset:%d" % (vr(OB[n // 4] + 4 * (n % 4), 4), 52 + n % 4, SWD, SWD + 3, sOW, (n % 4) * 1024), "own")])
            at(ENV("GT0", 60) + ENV("GTD", 10) * n + 0.2, ld_own)
    NGT = ENV("NGT", 0)
    for s in range(max(NG, NGT)):
        assert TW[s] * BT > [0, 0, 30, 30, 15 * GP + 4 * GD, 15 * GP + 8 * GD, 31 * GP + 4 * GD, 31 * GP + 8 * GD][s]
        at(TW[s] * BT, lambda s=s: trw(s))
        if s < NG:
            at(TW[s] * BT + 20, lambda s=s: a.wait_ds(("tw", s)))
            sched_dma(TW[s] * BT + 20.1, s + NW)
    at(float(os.environ.get("TF0", "7.9")) * BT - 0.5, lambda: flag(0))
    n = 0
    for ff in range(2):
        for tt in range(2):
            r0 = RC[tt]
            for qp in range(2):
                blk = n // 8
                HP = 112 + 4 * (blk & 3)
                for q2 in range(2):
                    q = 2 * qp + q2
                    for e in range(4):
                        g = ACC(ff, 0, tt) + 4 * q + e; u = ACC(ff, 1, tt) + 4 * q + e; T = 64 + (n & 15)
                        if PKG:
                            P2 = lambda r: vr(r, 2)
                            ops = [(3, "v_exp_f32 v%d, v%d" % (T, T)), (6, "v_rcp_f32 v%d, v%d" % (T, T))]
                            if e & 1 == 0:
                                ops += [(0, "v_pk_mul_f32 %s, %s, %s" % (P2(T), P2(g), P2(g))),
                                        (1, "v_pk_fma_f32 %s, %s, %s, %s op_sel:[0,0,1] op_sel_hi:[1,0,1]" % (P2(T), P2(T), P2(r0 + 2), P2(r0))),
                                        (2, "v_pk_mul_f32 %s, %s, %s" % (P2(T), P2(T), P2(g))),
                                        (4, "v_pk_mul_f32 %s, %s, %s" % (P2(g), P2(g), P2(u)))]
                            else:
                                ops += [(4.5 - GP / GD, "v_pk_fma_f32 %s, %s, %s, %s op_sel:[0,1,1] op_sel_hi:[1,1,1]" % (P2(T - 1), P2(T - 1), P2(r0 + 2), P2(r0 + 2))),
                                        (7, "v_pk_mul_f32 %s, %s, %s" % (P2(g - 1), P2(g - 1), P2(T - 1))),
                                        (8, "v_cvt_pk_bf16_f32 v%d, v%d, v%d" % (HP + 2 * q2 + e // 2, g - 1, g))]
                                ops[2] = (4, ops[2][1])
                        else:
                            ops = [(0, "v_mul_f32 v%d, v%d, v%d" % (T, g, g)),
                            (1, "v_fma_f32 v%d, v%d, v%d, v%d" % (T, T, r0 + 2, r0 + 1)),
                            (2, "v_mul_f32 v%d, v%d, v%d" % (T, T, g)),
                            (3, "v_exp_f32 v%d, v%d" % (T, T)),
                            (4, "v_mul_f32 v%d, v%d, v%d" % (g, g, u)),
                            (5, "v_fma_f32 v%d, v%d, v%d, v%d" % (T, T, r0 + 3, r0 + 3)),
                            (6, "v_rcp_f32 v%d, v%d" % (T, T)),
                            (7, "v_mul_f32 v%d, v%d, v%d" % (g, g, T))]
                            if e & 1: ops.append((8, "v_cvt_pk_bf16_f32 v%d, v%d, v%d" % (HP + 2 * q2 + e // 2, g - 1, g)))
                        for k, o in ops: at(n * GP + k * GD, o)
                        n += 1
                t = (n - 1) * GP + 8 * GD
                at(t + 4, "v_permlane32_swap_b32 v%d, v%d" % (HP, HP + 2))
                at(t + 5, "v_permlane32_swap_b32 v%d, v%d" % (HP + 1, HP + 3))
                def st_h(HP=HP, ff=ff, tt=tt, qp=qp):
                    a("s_movk_i32 s%d, %d" % (sT0, ff * 4096))
                    a.vm("buffer_store_dwordx4 %s, v20, s[%d:%d], s%d offen offset:%d %s" % (vr(HP, 4), SWS, SWS + 3, sT0, tt * 2048 + qp * 512, os.environ.get("HSM", "sc1").replace("_", " ")), ("hst", ff))
                at(t + 8, st_h)
    for t, _, it in sorted(ev, key=lambda x: (x[0], x[1])):
        if callable(it): it()
        else: a(it)
    sf_("gelu")
    A2 = lambda ct, tt: 192 + 16 * ct + 4 * tt
    free = [48] + OB if GST else [64, 112] + WBK[NV:]
    HB = {}
    def ld_h(s, trk=True):
        if ENV("VERB", 0): print("ld_h", s, free)
        if s not in HB: HB[s] = free.pop(0)
        if ROT: a("s_lshl_b32 s%d, s%d, 6" % (sOW, RJ[s % 7])); a("s_add_u32 s%d, s%d, %d" % (sOW, sOW, WS_H + (s // 7) * 4096))
        else: a("s_mov_b32 s%d, %d" % (sOW, WS_H + J(s) * 4096))
        if "hsame" in EXP: a("s_mov_b32 s%d, 0" % sOW)
        for tt in range(4):
            t = "buffer_load_dwordx4 %s, v%d, s[%d:%d], s%d offen" % (vr(HB[s] + 4 * tt, 4), HA[tt], SWS, SWS + 3, sOW)
            if trk: a.vm(t, ("h", s, tt))
            else: a(t)
    def spin_h(mask, lj, r=14, p1=None):
        lo = L("HS"); l1 = L("HS")
        def slow():
            a.label(lo)
            a("s_mov_b32 s%d, %d" % (sT3, SPIN))
            a.label(l1)
            a("s_mov_b64 exec, 0x3fff")
            a("buffer_load_dword v%d, v8, s[%d:%d], 0 offen sc1" % (r, SWS, SWS + 3))
            a("s_mov_b64 exec, -1")
            if p1 is not None:
                a("s_waitcnt vmcnt(%d)" % p1)
                a("v_cmp_ne_u32 vcc, s%d, v23" % sNON)
                a("s_and_b32 s%d, vcc_lo, 0x%x" % (sT0, mask))
                a("s_cbranch_scc0 %s" % lj)
            a("s_waitcnt vmcnt(0)")
            a("v_cmp_ne_u32 vcc, s%d, v%d" % (sNON, r))
            a("s_and_b32 s%d, vcc_lo, 0x%x" % (sT0, mask))
            a("s_cbranch_scc0 %s" % lj)
            a("s_sleep %d" % ENV("HSL", 3))
            a("s_sub_u32 s%d, s%d, 1" % (sT3, sT3)); a("s_cmp_lg_u32 s%d, 0" % sT3)
            a("s_cbranch_scc1 %s" % l1)
            a("s_branch %s" % lj)
        deferred.append(slow)
        return lo
    P0 = ENV("P0", 5)
    if P0 == 0: hpoll()
    for s in range(max(NG, NGT), NV): trw(s)
    a("s_mul_i32 s%d, s%d, 14" % (sT1, sWV))
    a("s_mul_i32 s%d, s%d, 56" % (sT0, sRT2))
    a("s_add_u32 s%d, s%d, s%d" % (sT0, sT0, sT1))
    a("s_lshl_b32 s%d, s%d, 12" % (sT0, sT0))
    for r in range(4):
        a("s_add_u32 s%d, s%d, %d" % (sT1, sWV, r)); a("s_and_b32 s%d, s%d, 3" % (sT1, sT1)); a("s_lshl_b32 s%d, s%d, 10" % (sT1, sT1))
        a("s_add_u32 s%d, s%d, s%d" % (sT1, sT1, sT0))
        a("v_lshl_add_u32 v%d, v1, 4, s%d" % (HA[r], sT1))
    a("v_and_b32 v17, 15, v1"); a("v_lshrrev_b32 v13, 4, v1")
    a("s_lshl_b32 s%d, s%d, 6" % (sT0, sRT2)); a("s_lshl_b32 s%d, s%d, 4" % (sT1, sWV)); a("s_add_u32 s%d, s%d, s%d" % (sT0, sT0, sT1))
    a("v_add_u32 v18, s%d, v17" % sT0)
    a("v_mul_u32_u24 v18, 896, v18")
    a("v_lshl_add_u32 v18, v13, 5, v18")
    a("s_lshl_b32 s%d, s%d, 7" % (sT0, sCT))
    a("v_add_u32 v18, s%d, v18" % sT0)
    a.vm("buffer_load_dwordx4 v[24:27], v18, s[%d:%d], 0 offen" % (SX, SX + 3), "x")
    a.vm("buffer_load_dwordx4 v[28:31], v18, s[%d:%d], 0 offen offset:16" % (SX, SX + 3), "x")
    a("v_mul_u32_u24 v16, %d, v13" % STG_W)
    a("v_lshrrev_b32 v13, 2, v17"); a("v_lshl_add_u32 v16, v13, 7, v16")
    a("v_and_b32 v13, 1, v17"); a("v_lshl_add_u32 v16, v13, 3, v16")
    a("v_bfe_u32 v13, v17, 1, 1"); a("v_lshl_add_u32 v16, v13, 6, v16")
    a("s_add_u32 s%d, s%d, %d" % (sT1, sT1, L_STG))
    a("v_add_u32 v16, s%d, v16" % sT1)
    a("v_lshl_add_u32 v19, v1, 4, s%d" % sOX)
    arrive(1, Y_TR)
    if GST:
        a.wait_vm("own")
        for n in range(12):
            hi = WDS[n // 4] >= 65536
            if n == 8: a("v_add_u32 v13, 65536, v19")
            a.ds("ds_write_b128 v%d, %s offset:%d" % ((19, 13)[hi], vr(OB[n // 4] + 4 * (n % 4), 4), WDS[n // 4] - 65536 * hi + (n % 4) * 1024), "ow")
    if P0 == 1: hpoll()
    flag(1)
    sf_("flag1")
    if P0 == 2: hpoll()
    a("s_setprio %d" % ENV("F2PRIO", 0))
    if not GST:
        a("s_waitcnt lgkmcnt(0)"); a.dsq = []
        P1 = ENV("P1", 0)
        if P1 == 1: hpoll(23, "hp1")
        WO = [int(x) for x in os.environ.get("WO", "-2,-2,-2").split(",")]
        for s in range(6 + NG, 9):
            if WO[s - 6] == -2:
                for g in dma_wd(s): emit(g)
            if P1 == s - 4: hpoll(23, "hp1")
            if P0 == s - 3:
                if ENV("PDL", 4): a("s_sleep %d" % ENV("PDL", 4))
                hpoll()
    wdq = []
    lj = L("HJ")
    a.wait_vm("hp")
    a("v_cmp_ne_u32 vcc, s%d, v14" % sNON)
    a("s_and_b32 s%d, vcc_lo, 0x1555" % sT0)
    lo = spin_h(0x1555, lj, p1=(len(a.vmq) - [t for t in range(len(a.vmq)) if a.vmq[t] == "hp1"][0]) if P1 else None)
    a("s_cbranch_scc1 %s" % lo)
    a.label(lj)
    if ENV("DLY", 0): a("s_sleep %d" % ENV("DLY", 0))
    sf_("hpoll")
    NHM = ENV("NHM", 4)
    assert NSTA == 5 and NV == 6 and not wdq
    sRDY, sISS = sHD, sLD
    WTAB = 22; WOF = list(range(8, 15)); sHM = 16
    PR = [23, 17, 2]
    def dpoll(n):
        l = L("DP")
        a("s_cmp_eq_u32 s%d, 0x2aaa" % sRDY)
        a("s_cbranch_scc1 %s" % l)
        a("s_mov_b64 exec, 0x3fff")
        a("buffer_load_dword v%d, v8, s[%d:%d], 0 offen sc1" % (PR[n % 3], SWS, SWS + 3))
        a("s_mov_b64 exec, -1")
        a.label(l)
        a.mark(("hq", n))
    def deval(n):
        a.wait_vm(("hq", n))
        a("v_cmp_eq_u32 vcc, s%d, v%d" % (sNON, PR[n % 3]))
        a("s_and_b32 s%d, vcc_lo, 0x2aaa" % sT0)
        a("s_or_b32 s%d, s%d, s%d" % (sRDY, sRDY, sT0))
    def dslow():
        a.label("K_DS")
        a("s_mov_b64 exec, 0x3fff")
        a("buffer_load_dword v14, v8, s[%d:%d], 0 offen sc1" % (SWS, SWS + 3))
        a("s_mov_b64 exec, -1")
        a("s_sub_i32 s18, s18, 1"); a("s_max_i32 s18, s18, 0")
        a("s_cmp_eq_u32 s18, 0"); a("s_cselect_b32 s19, -1, 0")
        a("s_waitcnt vmcnt(0)")
        a("v_cmp_eq_u32 vcc, s%d, v14" % sNON)
        a("s_or_b32 s19, s19, vcc_lo")
        a("s_and_b32 s19, s19, 0x2aaa")
        a("s_or_b32 s%d, s%d, s19" % (sRDY, sRDY))
        a("s_setpc_b64 s[20:21]")
    deferred.append(dslow)
    sWL = 17
    ST2 = ENV("ST2", 0)
    def wslow():
        a.label("K_WS")
        a("ds_read_u8 v14, v15 offset:%d" % Y_WS)
        a("s_sub_i32 s18, s18, 1"); a("s_max_i32 s18, s18, 0")
        a("s_cmp_eq_u32 s18, 0"); a("s_cselect_b32 s19, 3, 0")
        a("s_waitcnt lgkmcnt(0)")
        a("v_readfirstlane_b32 s%d, v14" % sWL)
        a("s_sleep 1")
        a("s_or_b32 s%d, s%d, s19" % (sWL, sWL))
        a("s_setpc_b64 s[20:21]")
    deferred.append(wslow)
    def c_issue(s):
        HB[s] = free.pop(0)
        if s < 7 or "stat" in EXP: C = [["s_mov_b32 s%d, %d" % (sOW, WS_H + J(s) * 4096)]]
        elif ST2: C = [["s_getpc_b64 s[20:21]", "s_bitcmp1_b32 s%d, %d" % (sRDY, J(s)), "s_cbranch_scc0 K_DS"], ["s_mov_b32 s%d, %d" % (sOW, WS_H + J(s) * 4096)]]
        else:
            C = [["s_getpc_b64 s[20:21]", "s_andn2_b32 s%d, s%d, s%d" % (sT0, sRDY, sISS), "s_cbranch_scc0 K_DS", "s_ff1_i32_b32 s%d, s%d" % (sT1, sT0)],
                 ["s_lshr_b32 m0, s%d, 1" % sT1, "s_lshl_b32 s%d, s%d, 12" % (sOW, sT1), "s_bitset1_b32 s%d, s%d" % (sISS, sT1), "s_movrels_b32 s%d, s%d" % (WOF[s - 7], WTAB)], []]
        for i, tt in enumerate((1, 2, 3, 0) if s == 13 else range(4)):
            ld = ("buffer_load_dwordx4 %s, v%d, s[%d:%d], s%d offen" % (vr(HB[s] + 4 * tt, 4), HA[tt], SWS, SWS + 3, sOW), ("h", s, tt))
            if "hsame" in EXP: C.append(["s_mov_b32 s%d, 0" % sOW, ld])
            elif "nold" in EXP and s >= 4: pass
            elif i == 0 or i % ENV("LB", 2): C[-1].append(ld)
            else: C.append([ld])
        return C
    def c_trw(s):
        WB[s] = free.pop(0)
        if s < 7 or "stat" in EXP:
            hi = WDS[s % NW] >= 65536; of = WDS[s % NW] - 65536 * hi
            C = [[lambda: a.wait_vm(("wd", min(s, 8)))]]
        elif ST2:
            hi = WDS[s % NW] >= 65536; of = WDS[s % NW] - 65536 * hi
            C = [[lambda: a.wait_vm(("wd", min(s, 8)))]]
            if s in (9, 12): C = [["s_getpc_b64 s[20:21]", "s_cmp_lt_u32 s%d, %d" % (sWL, 1 + (s == 12)), "s_cbranch_scc1 K_WS"], []]
            if s >= 12: hi = 1; of = (s - 12) * 4096
            if s == 12: C = C[:1] + [["v_add_u32 v%d, s%d, v%d" % (TRB[1][c2], WTAB + 5, TRB[0][c2]) for c2 in range(2)], []]
        else:
            hi = 1; of = 0
            C = [([lambda: a.wait_vm(("wd", 8))] if s == 7 else []) +
                 ["s_and_b32 s%d, s%d, 3" % (sT2, WOF[s - 7]), "s_getpc_b64 s[20:21]", "s_cmp_gt_u32 s%d, s%d" % (sT2, sWL), "s_cbranch_scc1 K_WS"],
                 ["s_sub_u32 s%d, s%d, s%d" % (WOF[s - 7], WOF[s - 7], sT2)] + ["v_add_u32 v%d, s%d, v%d" % (TRB[1][c2], WOF[s - 7], TRB[0][c2]) for c2 in range(2)], []]
        for ct in range(4):
            rd = [("ds_read_b64_tr_b16 %s, v%d offset:%d" % (vr(WB[s] + 4 * ct + 2 * hf, 2), TRB[hi][ct >> 1], of + hf * 512 + 8 * (ct & 1)), ("tw", s)) for hf in range(2)]
            if "notr" in EXP: continue
            if ct == 0: C[-1] += rd
            else: C.append(rd)
        return C
    nh = 0
    DP0 = ENV("DP0", 2)
    PI = [int(x) for x in os.environ.get("PI", "1,5,9").split(",")]
    PE = [int(x) for x in os.environ.get("PE", "5,9,11").split(",")]
    if ENV("HR", 1): a("s_andn2_b32 s%d, 0x2aaa, vcc_lo" % sRDY)
    while free and nh < NHM:
        if nh == DP0 and PI[0] < 0: dpoll(0)
        for c in c_issue(nh): emit(c)
        nh += 1
    if DP0 >= NHM and PI[0] < 0: dpoll(0)
    for s in range(6 + NG, 9):
        if WO[s - 6] == -1:
            for g in dma_wd(s): emit(g)
    a("s_mov_b32 s%d, 0" % sISS)
    a("s_mov_b32 s18, %d" % (SPIN * 2)); a("s_mov_b32 s%d, %d" % (sWL, 3 if "nows" in EXP else 0))
    for k_ in range(0 if ST2 else 5): a("s_mov_b32 s%d, %d" % (WTAB + k_, WDS[k_ + 1] + (k_ >= 2)))
    a("s_mul_i32 s%d, s%d, %d" % (sT0, sWC, CV_CH - 16384)); a("s_add_u32 s%d, s%d, s%d" % (sT0, sT0, sOX)); a("s_add_u32 s%d, s%d, %d" % (WTAB + 5, sT0, L_CV + (0 if ST2 else 2)))
    a("s_add_u32 s%d, s%d, 4096" % (WTAB + 6, WTAB + 5))
    a("s_add_u32 s%d, s%d, %d" % (sT0, sWV, L_SYNC)); a("v_mov_b32 v15, s%d" % sT0)
    nw = NV
    for r in range(1, 4):
        a("s_sub_u32 s%d, s%d, %d" % (sT1, sWV, r)); a("s_and_b32 s%d, s%d, 3" % (sT1, sT1)); a("s_lshl_b32 s%d, s%d, 12" % (sT1, sT1))
        a("v_lshl_add_u32 v%d, v1, 4, s%d" % (19 + r, sT1))
    Q2 = [[]] * ENV("PG", 0) + [[lambda: dpoll(PI.index(0))]] if 0 in PI else []
    HXS = [int(x) for x in os.environ.get("HXS", "99").split(",")]
    for s in range(6 + NG, 9):
        if WO[s - 6] == 0: Q2 += dma_wd(s)
    for s in range(14):
        a.wait_ds(("tw", s))
        gap = 0
        for tt in ((1, 2, 3, 0) if s == 13 else range(4)):
            a.wait_vm(("h", s, tt))
            for ct in range(4):
                a("v_mfma_f32_16x16x32_bf16 %s, %s, %s, %s" % (vr(A2(ct, tt), 4), vr(WB[s] + 4 * ct, 4), vr(HB[s] + 4 * tt, 4), "0" if s == 0 else vr(A2(ct, tt), 4)))
                gap += 1
                while Q2 and (len(Q2) > 16 - gap or gap == 16): emit(Q2.pop(0))
                if Q2: emit(Q2.pop(0))
                pr = {1: 0, 2: 1, 3: 2, 0: 3}[tt]
                if s == 13 and pr: a("ds_write_b128 v19, %s offset:%d" % (vr(A2(ct, pr), 4), (pr - 1) * 16384 + ct * 1024))
        sf_("s_%d" % s)
        if s == 5: sf_("s5")
        if s == 9: sf_("s9")
        free.append(HB[s]); free.append(WB[s])
        if s + 1 in PE: Q2.append([lambda n=PE.index(s + 1): deval(n)])
        if s + 1 in PI: Q2.append([lambda n=PI.index(s + 1): dpoll(n)])
        QO = ENV("QO", 0)
        qi = []; qt = []
        if nh < 14: qi += c_issue(nh); nh += 1
        if nh < 14 and s in HXS: qi += c_issue(nh); nh += 1
        if nw < 14 and nw <= s + ENV("TA", 2): qt += c_trw(nw); nw += 1
        for s_ in range(6 + NG, 9):
            if WO[s_ - 6] == s + 1: qi += dma_wd(s_)
        if QO == 0: Q2 += qi + qt
        elif QO == 1: Q2 += qt + qi
        elif QO == 2:
            while qi or qt: Q2.append((qi.pop(0) if qi else []) + (qt.pop(0) if qt else []))
        assert nw > s + 2 or nw == 14
        if s == 12: R1, R2, R3 = [free.pop(0) for _ in range(3)]
        if s == 10:
            XU, YR = [free.pop(0) for _ in range(2)]
            Q2.append([lambda: a.wait_vm("x")])
            for w in range(8):
                Q2.append(["v_lshlrev_b32 v%d, 16, v%d" % (XU + 2 * w, 24 + w), "v_and_b32 v%d, 0xffff0000, v%d" % (XU + 2 * w + 1, 24 + w)])
    arrive(17)
    a("ds_read_u8 v15, v11 offset:%d" % Y_YA)
    sf_("f2end")
    def ya_part(spin=True):
        if spin: spin_lds(11, 15, 1, slp=1, off=Y_YA)
        for q in range(4): a("ds_read_b64_tr_b16 %s, v16 offset:%d" % (vr(YR + 2 * q, 2), q * 512))
        for w in range(8):
            if w % 2 == 0: a("s_waitcnt lgkmcnt(%d)" % (3 - w // 2))
            yw = YR + w; o = XU + 2 * w; t = YR + 8 + 2 * (w & 1)
            a("v_lshlrev_b32 v%d, 16, v%d" % (t, yw)); a("v_and_b32 v%d, 0xffff0000, v%d" % (t + 1, yw))
            a("v_add_f32 v%d, v%d, v%d" % (o, o, t)); a("v_add_f32 v%d, v%d, v%d" % (o + 1, o + 1, t + 1))
            a("v_cvt_pk_bf16_f32 v%d, v%d, v%d" % (o, o, o + 1))
            a("v_and_b32 v%d, 0xffff0000, v%d" % (o + 1, o)); a("v_lshlrev_b32 v%d, 16, v%d" % (o, o))
    def red_part():
        spin_lds(11, 15, 17, slp=0)
        for ct in range(4):
            for r, R in enumerate((R1, R2, R3)):
                a("ds_read_b128 %s, v%d offset:%d" % (vr(R + 4 * ct, 4), 20 + r, r * 16384 + ct * 1024))
        for ct in range(4):
            a("s_waitcnt lgkmcnt(%d)" % (9 - 3 * ct))
            for e in range(4):
                c = 4 * ct + e
                a("v_add_f32 v%d, v%d, v%d" % (R1 + c, R1 + c, A2(ct, 0) + e)); a("v_add_f32 v%d, v%d, v%d" % (R2 + c, R2 + c, R3 + c))
            for e in range(4):
                c = 4 * ct + e
                a("v_add_f32 v%d, v%d, v%d" % (R1 + c, R1 + c, R2 + c))
            for w in range(2):
                b = R1 + 4 * ct + 2 * w
                a("v_cvt_pk_bf16_f32 v%d, v%d, v%d" % (b, b, b + 1))
                a("v_and_b32 v%d, 0xffff0000, v%d" % (b + 1, b)); a("v_lshlrev_b32 v%d, 16, v%d" % (b, b))
    e1, e2 = L("EP"), L("EP")
    a("s_waitcnt lgkmcnt(0)")
    a("v_cmp_gt_u32 vcc, 1, v15")
    a("s_cbranch_vccnz %s" % e1)
    a.begin_opt()
    ya_part(False); red_part()
    a("s_branch %s" % e2)
    a.end_opt()
    a.label(e1)
    a.begin_opt()
    red_part(); ya_part()
    a.end_opt()
    a.label(e2)
    sf_("ya")
    for hc in range(2):
        for w in range(4):
            b = R1 + 8 * hc + 2 * w; o = XU + 8 * hc + 2 * w
            a("v_add_f32 v%d, v%d, v%d" % (b, b, o)); a("v_add_f32 v%d, v%d, v%d" % (b + 1, b + 1, o + 1))
            a("v_cvt_pk_bf16_f32 v%d, v%d, v%d" % (R2 + 4 * hc + w, b, b + 1))
        a("buffer_store_dwordx4 %s, v18, s[%d:%d], 0 offen offset:%d" % (vr(R2 + 4 * hc, 4), SOUT, SOUT + 3, hc * 16) + " " + os.environ.get("OUTM", ""))
    sf_("end")
    sf_.store(24)
    if os.environ.get("MEAS"):
        a("s_sub_u32 s100, s99, s%d" % sNON)
        a("v_mov_b32 v24, s100")
        a("s_cmp_lg_u32 s%d, 0" % sWV); a("s_cbranch_scc1 K_END")
        a("s_mov_b64 exec, 1")
        a("s_lshl_b32 s100, s2, 2"); a("s_add_u32 s100, s100, %d" % WS_DBG); a("v_mov_b32 v25, s100")
        a("buffer_store_dword v24, v25, s[%d:%d], 0 offen sc1" % (SWS, SWS + 3))
    a("s_endpgm")
    for f in deferred: f()
    if KT: a.raw(".p2align 2"); a.label("K_TAB"); a.raw(".long " + ", ".join(str(i + 1) for i in range(16)))

    import gen8h
    gen8h.helper(a, sh_, L, spin_lds)
    gen8h.producer(a, sp_, L, spin_lds)
    a.label("K_END")
    a("s_endpgm")
    if STAMP: print("ffn", sf_.names, "\nhelp", sh_.names, "\nprod", sp_.names)
    return a.finalize()

def wrap(kernels):
    out = []
    for name, grid, block, lds, body, nv in kernels:
        if len(kernels) > 1: out.append("; @launch kernel=%s grid=(%d,1,1) block=(%d,1,1) lds=%d" % (name, grid, block, lds))
        else: out.append("; @launch grid=(%d,1,1) block=(%d,1,1) lds=%d" % (grid, block, lds))
    out.append('.amdgcn_target "amdgcn-amd-amdhsa--gfx950"')
    out.append(".text")
    for name, grid, block, lds, body, nv in kernels:
        out += [".globl %s" % name, ".p2align 8", ".type %s,@function" % name, "%s:" % name, body]
    out.append('.section .rodata,"a"')
    for name, grid, block, lds, body, nv in kernels:
        out += [".p2align 6", ".amdhsa_kernel %s" % name,
                "  .amdhsa_next_free_vgpr %d" % nv, "  .amdhsa_next_free_sgpr 102", "  .amdhsa_accum_offset %d" % ((nv + 3) // 4 * 4),
                "  .amdhsa_group_segment_fixed_size 0", "  .amdhsa_kernarg_size 128", "  .amdhsa_user_sgpr_count 2",
                "  .amdhsa_user_sgpr_kernarg_segment_ptr 1", "  .amdhsa_system_sgpr_workgroup_id_x 1", ".end_amdhsa_kernel"]
    return "\n".join(out) + "\n"

if __name__ == "__main__":
    sys.modules["gen8"] = sys.modules["__main__"]
    NAME = "parallel_sum__ssm_conv_s4__glu_gated_geglu__prompt_kernel"
    ks = [(NAME, 256, 512, LDS, gen(), 256)]
    if os.environ.get("MEAS"):
        b = Asm()
        b("s_cmp_ge_u32 s2, 1"); b("s_cbranch_scc1 K3_END")
        b("s_load_dwordx4 s[4:7], s[0:1], 112"); b("s_waitcnt lgkmcnt(0)")
        srd(b, 8, 6, WS_SIZE); srd(b, 12, 4, 256)
        b("v_lshlrev_b32 v1, 2, v0"); b("v_mov_b32 v10, 0")
        for i in range(4):
            b("s_mov_b32 s22, %d" % (WS_DBG + 128 + i * 256 - (32 if i == 3 else 0) * 4))
            b("buffer_load_dword v4, v1, s[8:11], s22 offen sc1"); b("s_waitcnt vmcnt(0)"); b("v_max_u32 v10, v10, v4")
        b("v_readlane_b32 s30, v10, 0")
        for l in range(1, 64):
            b("v_readlane_b32 s22, v10, %d" % l); b("s_max_u32 s30, s30, s22")
        b("s_mov_b64 exec, 1"); b("v_mov_b32 v1, 0"); b("v_mov_b32 v2, s30")
        b("buffer_store_dword v2, v1, s[12:15], 0 offen"); b("s_waitcnt vmcnt(0)")
        b("s_min_u32 s30, s30, 20000"); b("s_mul_i32 s30, s30, %d" % int(os.environ.get("DM", "4")))
        b("s_memrealtime s[24:25]"); b("s_waitcnt lgkmcnt(0)")
        b.label("K3_L")
        b("s_memrealtime s[26:27]"); b("s_waitcnt lgkmcnt(0)"); b("s_sub_u32 s28, s26, s24"); b("s_cmp_lt_u32 s28, s30"); b("s_cbranch_scc1 K3_L")
        b.label("K3_END"); b("s_endpgm")
        ks = [("k1_kernel",) + ks[0][1:], ("k3_kernel", 1, 64, 0, b.finalize(), 64)]
    open(sys.argv[1] if len(sys.argv) > 1 else "k.s", "w").write(wrap(ks))
```

```python
import math, os
from gen8 import *

XST = ENV("XST", 4096); YST = ENV("YST", 4096); YP = ENV("YP", 0)
AL = ENV("AL", 2)
if AL == 1: WS_YAT = WS_XNT
TS = 64 * 896
NF = ENV("NF", 1)
def get_nonce(a, L, va, vd, pre=False):
    l1, l2, l3 = L("GN"), L("GN"), L("GN")
    a("s_mov_b32 s%d, %d" % (sCNT, SPIN))
    if NF: a("s_mov_b32 s49, 2")
    if pre: a("s_branch %s" % l3)
    a.label(l1)
    a("buffer_load_dwordx2 v[%d:%d], v%d, s[%d:%d], 0 offen sc1" % (vd, vd + 1, va, SDBG, SDBG + 3))
    a.label(l3)
    a("s_waitcnt vmcnt(0)")
    a("v_readfirstlane_b32 s%d, v%d" % (sNON, vd)); a("v_readfirstlane_b32 s%d, v%d" % (sNON + 1, vd + 1))
    if NF:
        l4 = L("GN")
        a("s_cmp_eq_u32 s%d, 0" % (sNON + 1))
        a("s_cbranch_scc1 %s" % l4)
        a("s_sub_u32 s%d, s48, s%d" % (sT0, sNON))
        a("s_cmp_lt_i32 s%d, 800" % sT0)
        a("s_cbranch_scc1 %s" % l2)
        a("s_sub_u32 s49, s49, 1")
        a("s_cbranch_scc1 %s" % l2)
        a.label(l4)
    else:
        a("s_cmp_lg_u32 s%d, 0" % (sNON + 1))
        a("s_cbranch_scc1 %s" % l2)
    a("s_sleep 8")
    a("s_sub_u32 s%d, s%d, 1" % (sCNT, sCNT)); a("s_cmp_lg_u32 s%d, 0" % sCNT)
    a("s_cbranch_scc1 %s" % l1)
    a.label(l2)

def helper(a, sk_, L, spin_lds):
    a.label("K_HELP")
    a.vmq = []
    a("s_setprio 3")
    DK = "s[36:37]" if AL == 2 else "s[60:61]"
    a("s_load_dwordx2 %s, s[0:1], 64" % DK)
    if NF: a("s_memrealtime s[48:49]")
    a("s_sub_u32 s%d, s%d, 4" % (sKW, sWV))
    a("s_cmp_lg_u32 s%d, 7" % sWV)
    a("s_cbranch_scc1 K_NZ")
    a.begin_opt()
    a("v_lshlrev_b32 v2, 2, v1"); a("v_add_u32 v2, %d, v2" % L_SYNC); a("v_mov_b32 v3, 0")
    a("ds_write_b32 v2, v3")
    if KT: a("v_and_b32 v2, 3, v1"); a("v_mul_u32_u24 v2, %d, v2" % FLS); a("v_add_u32 v2, %d, v2" % (L_FL + 64)); a("ds_write_b32 v2, v3")
    else: a("ds_write_b32 v2, v3 offset:512")
    a.end_opt()
    a.label("K_NZ")
    a("s_and_b32 s%d, s%d, 1" % (sHF, sKW))
    a("s_lshr_b32 s%d, s%d, 1" % (sT0, sKW))
    a("s_sub_u32 s%d, s2, 32" % sCH)
    a("s_lshl_b32 s%d, s%d, 1" % (sCH, sCH))
    a("s_add_u32 s%d, s%d, s%d" % (sCH, sCH, sT0))
    a("s_mul_i32 s%d, s%d, %d" % (sCVB, sT0, CV_CH))
    a("s_add_u32 s%d, s%d, %d" % (sCVB, sCVB, L_CV))
    a("s_lshl_b32 s%d, s%d, 8" % (sT0, sCH))
    a("s_lshl_b32 s%d, s%d, 7" % (sT1, sHF))
    a("s_add_u32 s%d, s%d, s%d" % (sT0, sT0, sT1))
    a("v_add_u32 v2, s%d, v1" % sT0)
    a("v_lshlrev_b32 v2, 1, v2")
    a("s_lshl_b32 s%d, s%d, 1" % (sT1, sCH))
    a("v_mov_b32 v3, s%d" % sT1)
    a("s_waitcnt lgkmcnt(0)")
    P = [[20, 21, 22, 23, 24, 25], [120, 121, 122, 123, 124, 125]]
    a.vm("global_load_ushort v26, v3, s[30:31]", "param")
    for it in range(2):
        for i in range(6):
            a.vm("global_load_ushort v%d, v2, s[%d:%d] offset:%d" % (P[it][i], 18 + 2 * i, 19 + 2 * i, it * 128), "param")
    a.vm("global_load_ushort v160, v3, %s" % DK, "param")
    PE0, PE1 = ENV("PE0", 0), ENV("PE1", 0)
    if PE1:
        n = (PE1 - PE0) * 28 // 896
        a("s_lshl_b32 s%d, s%d, 1" % (sT0, sCH)); a("s_add_u32 s%d, s%d, s%d" % (sT0, sT0, sHF))
        a("s_mul_i32 s%d, s%d, %d" % (sT1, sT0, n * 128)); a("s_add_u32 s%d, s%d, %d" % (sT1, sT1, PE0 * 3584))
        a("v_lshl_add_u32 v253, v1, 7, s%d" % sT1)
        a("s_mov_b64 exec, 0x%x" % ((1 << n) - 1))
        a.vm("global_load_dword v250, v253, s[32:33]", "tw"); a.vm("global_load_dword v251, v253, s[34:35]", "tw")
        a("s_mov_b64 exec, -1")
    a("s_setprio %d" % int(os.environ.get("KPRIO", "2")))
    a("s_barrier")
    srd(a, SWS, 14, WS_SIZE)
    TLW = ENV("TLW", 0)
    PFA = ENV("PFA", 151); PFB = ENV("PFB", 0); PFH = ENV("PFH", 0); PFO = ENV("PFO", 0)
    def pf_w(which, trk=True):
        vm = (lambda t: a.vm(t, "tw")) if trk else a
        a("s_sub_u32 s%d, s2, 32" % sT0); a("s_lshl_b32 s%d, s%d, 2" % (sT0, sT0)); a("s_add_u32 s%d, s%d, s%d" % (sT0, sT0, sKW))
        if which == "B":
            n = (448 - PFB) * 28 // 896
            a("s_mul_i32 s%d, s%d, %d" % (sT1, sT0, n * 128)); a("s_add_u32 s%d, s%d, %d" % (sT1, sT1, PFB * 3584))
            a("v_lshl_add_u32 v253, v1, 7, s%d" % sT1)
            a("s_mov_b64 exec, 0x%x" % ((1 << n) - 1))
            vm("global_load_dword v250, v253, s[32:33]"); vm("global_load_dword v251, v253, s[34:35]")
            a("s_mov_b64 exec, -1")
        else:
            a("s_mul_i32 s%d, s%d, 1792" % (sT1, sT0))
            a("v_lshl_add_u32 v252, v1, 7, s%d" % sT1)
            a("s_mov_b64 exec, 0x3fff")
            vm("global_load_dword v252, v252, s[8:9]")
            a("s_mov_b64 exec, -1")
    def pf_c():
        a("s_and_b32 s%d, s%d, 3" % (sT0, sRT2)); a("s_mul_i32 s%d, s%d, 14" % (sT0, sT0))
        a("s_lshl_b32 s%d, s%d, 2" % (sT1, sKW)); a("s_lshr_b32 s%d, 0x331c, s%d" % (sT1, sT1)); a("s_and_b32 s%d, s%d, 15" % (sT1, sT1))
        a("s_add_u32 s%d, s%d, s%d" % (sT0, sT0, sT1)); a("s_mul_i32 s%d, s%d, 224" % (sT0, sT0)); a("s_add_u32 s%d, s%d, s%d" % (sT0, sT0, sCT)); a("s_lshl_b32 s%d, s%d, 7" % (sT0, sT0))
        a("v_mul_u32_u24 v174, 896, v1")
        a("s_cmp_lt_u32 s%d, 3" % sKW); a("s_cselect_b32 exec_lo, -1, 0"); a("s_mov_b32 exec_hi, 0")
        a("buffer_load_dword v174, v174, s[%d:%d], s%d offen" % (SWD, SWD + 3, sT0))
        a("s_mov_b64 exec, -1")
    def pf_x():
        a("s_andn2_b32 s%d, 1, s2" % sT1); a("s_lshl_b32 s%d, s%d, 1" % (sT0, sR)); a("s_add_u32 s%d, s%d, s%d" % (sT0, sT0, sT1))
        a("s_lshl_b32 s%d, s%d, 2" % (sT0, sT0)); a("s_add_u32 s%d, s%d, s%d" % (sT0, sT0, sKW)); a("s_mul_i32 s%d, s%d, %d" % (sT0, sT0, 16 * 7))
        a("s_add_u32 s%d, s%d, s%d" % (sT0, sT0, sCT)); a("s_lshl_b32 s%d, s%d, 7" % (sT0, sT0))
        a("v_mul_u32_u24 v249, 896, v1"); a("v_add_u32 v249, s%d, v249" % sT0)
        a("s_mov_b64 exec, 0xffff")
        a("global_load_dword v249, v249, s[46:47]")
        a("s_mov_b64 exec, -1")
    def pf_l(n):
        r0, nr = [(128, 64), (192, 64), (256, 64), (320, 64), (384, 64)][n]
        a("s_and_b32 s%d, s%d, 3" % (sT0, sR)); a("s_lshl_b32 s%d, s%d, 1" % (sT0, sT0)); a("s_add_u32 s%d, s%d, s%d" % (sT0, sT0, sHF))
        a("s_mul_i32 s%d, s%d, %d" % (sT0, sT0, 8 * 3584)); a("s_lshl_b32 s%d, s%d, 8" % (sT1, sF)); a("s_add_u32 s%d, s%d, s%d" % (sT0, sT0, sT1))
        a("s_add_u32 s%d, s%d, %d" % (sT0, sT0, r0 * 3584))
        a("v_add_u32 v248, s%d, v247" % sT0)
        a("s_mov_b64 exec, 0xffff")
        a("global_load_dword v246, v248, s[44:45]")
        a("s_mov_b64 exec, -1")
    def pf_f():
        if MIX:
            a("s_lshr_b32 s%d, s%d, 1" % (sT1, sKW)); a("s_add_u32 s%d, s%d, s%d" % (sT0, sF, sT1)); a("s_lshl_b32 s%d, s%d, 1" % (sT0, sT0))
            a("s_and_b32 s%d, s%d, 1" % (sT1, sF)); a("s_sub_u32 s%d, s%d, s%d" % (sT0, sT0, sT1))
        else: a("s_lshl_b32 s%d, s%d, 1" % (sT0, sF)); a("s_lshr_b32 s%d, s%d, 1" % (sT1, sKW)); a("s_add_u32 s%d, s%d, s%d" % (sT0, sT0, sT1))
        a("s_mul_i32 s%d, s%d, 37" % (sT1, sT0)); a("s_lshr_b32 s%d, s%d, 8" % (sT1, sT1)); a("s_add_u32 s%d, s%d, s%d" % (sT0, sT0, sT1))
        a("s_lshl_b32 s%d, s%d, 1" % (sT1, sR)); a("s_add_u32 s%d, s%d, s%d" % (sT1, sT1, sHF)); a("s_lshl_b32 s%d, s%d, 5" % (sT1, sT1))
        a("s_add_u32 s%d, s%d, s%d" % (sT0, sT0, sT1)); a("s_lshl_b32 s%d, s%d, %d" % (sT0, sT0, FSH)); a("s_add_u32 s%d, s%d, %d" % (sT0, sT0, WS_HF))
        a("v_mov_b32 v174, s%d" % sT0)
        a("s_and_b32 s%d, s%d, 0xfffe" % (sT0, sCH)); a("s_add_u32 s%d, s%d, s%d" % (sT0, sT0, sHF)); a("s_lshl_b32 s%d, s%d, 8" % (sT0, sT0))
        a("s_add_u32 s%d, s%d, %d" % (sT0, sT0, WS_CF))
        a("v_writelane_b32 v174, s%d, 1" % sT0)
        if ENV("PFT", 0):
            a("s_lshl_b32 s%d, s%d, 1" % (sT0, sR)); a("s_add_u32 s%d, s%d, s%d" % (sT0, sT0, sHF)); a("s_mul_i32 s%d, s%d, 56" % (sT0, sT0))
            a("s_lshl_b32 s%d, s%d, 2" % (sT1, sF)); a("s_add_u32 s%d, s%d, s%d" % (sT0, sT0, sT1))
            a("s_and_b32 s%d, s%d, 2" % (sT1, sKW)); a("s_add_u32 s%d, s%d, s%d" % (sT0, sT0, sT1)); a("s_lshl_b32 s%d, s%d, 12" % (sT0, sT0))
            a("v_writelane_b32 v174, s%d, 2" % sT0)
            a("s_add_u32 s%d, s%d, 4096" % (sT0, sT0))
            a("v_writelane_b32 v174, s%d, 3" % sT0)
        a("s_mov_b64 exec, %d" % [3, 7, 15][ENV("PFT", 0)])
        a("buffer_load_dword v174, v174, s[%d:%d], 0 offen sc1" % (SWS, SWS + 3))
        a("s_mov_b64 exec, -1")
    def pf_h(trk=True):
        a("s_lshl_b32 s%d, s%d, 1" % (sT0, sR)); a("s_add_u32 s%d, s%d, s%d" % (sT0, sT0, sHF)); a("s_mul_i32 s%d, s%d, 56" % (sT0, sT0))
        a("s_lshl_b32 s%d, s%d, 2" % (sT1, sF)); a("s_add_u32 s%d, s%d, s%d" % (sT0, sT0, sT1))
        a("s_and_b32 s%d, s%d, 2" % (sT1, sKW)); a("s_add_u32 s%d, s%d, s%d" % (sT0, sT0, sT1)); a("s_lshl_b32 s%d, s%d, 12" % (sT0, sT0))
        a("v_lshlrev_b32 v174, 7, v1")
        t = "buffer_load_dword v174, v174, s[%d:%d], s%d offen" % (SWS, SWS + 3, sT0)
        if trk: a.vm(t, "tw")
        else: a(t)
    def pf_o(trk=True):
        a("s_lshl_b32 s%d, s%d, 2" % (sT0, sRT2)); a("s_add_u32 s%d, s%d, s%d" % (sT0, sT0, sKW))
        a("s_mul_i32 s%d, s%d, %d" % (sT0, sT0, 16 * 896)); a("s_lshl_b32 s%d, s%d, 7" % (sT1, sCT)); a("s_add_u32 s%d, s%d, s%d" % (sT0, sT0, sT1))
        a("v_mul_u32_u24 v166, 896, v1"); a("v_add_u32 v166, s%d, v166" % sT0)
        a("s_mov_b64 exec, 0xffff")
        t = "global_load_dword v166, v166, s[10:11]"
        if trk: a.vm(t, "tw")
        else: a(t)
        a("s_mov_b64 exec, -1")
    PFBT = ENV("PFBT", 1)
    if PFB and PFBT == 1: pf_w("B")
    if PFA == 1: pf_w("A")
    if PFH == 1: pf_h()
    if PFO == 1: pf_o()
    if TLW:
        a("v_bfe_u32 v4, v1, 2, 1"); a("v_mul_u32_u24 v4, 56, v4"); a("v_and_b32 v5, 3, v1"); a("v_add_u32 v4, v4, v5")
        a("s_mul_i32 s%d, s%d, 112" % (sT0, sR)); a("s_lshl_b32 s%d, s%d, 2" % (sT1, sF)); a("s_add_u32 s%d, s%d, s%d" % (sT0, sT0, sT1))
        a("v_add_u32 v4, s%d, v4" % sT0); a("v_lshlrev_b32 v4, 12, v4")
        a("s_lshl_b32 s%d, s%d, %d" % (sT0, sR, 6 + FSH)); a("s_add_u32 s%d, s%d, %d" % (sT0, sT0, WS_HF + 7 * 256))
        a("v_writelane_b32 v4, s%d, 8" % sT0)
        a("s_add_u32 s%d, s%d, %d" % (sT0, sT0, 32 << FSH))
        a("v_writelane_b32 v4, s%d, 9" % sT0)
        a("s_cmp_eq_u32 s%d, 1" % sKW); a("s_cselect_b32 exec_lo, 0x3ff, 0"); a("s_mov_b32 exec_hi, 0")
        a.vm("buffer_load_dword v174, v4, s[%d:%d], 0 offen" % (SWS, SWS + 3), "tw")
        a("s_mov_b64 exec, -1")
    if TLW >= 2:
        a("s_mul_i32 s%d, s%d, %d" % (sT0, sRT2, 64 * 896)); a("s_lshl_b32 s%d, s%d, 7" % (sT1, sCT)); a("s_add_u32 s%d, s%d, s%d" % (sT0, sT0, sT1))
        a("v_mul_u32_u24 v5, %d, v1" % (4 * 896)); a("v_add_u32 v5, s%d, v5" % sT0)
        a("s_cmp_eq_u32 s%d, 2" % sKW); a("s_cselect_b32 exec_lo, 0xffff, 0"); a("s_mov_b32 exec_hi, 0")
        a.vm("global_load_dword v174, v5, s[10:11]", "tw")
        a("s_mov_b64 exec, -1")
    a("s_mul_i32 s%d, s%d, %d" % (sSTG, sKW, STG_W))
    a("s_add_u32 s%d, s%d, %d" % (sSTG, sSTG, L_STG))
    a("v_and_b32 v7, 15, v1")
    a("v_lshrrev_b32 v6, 4, v1")
    a("v_mul_u32_u24 v5, 272, v7")
    a("v_lshl_add_u32 v8, v6, 4, s%d" % sSTG)
    a("v_add_u32 v5, v5, v8")
    maps = [[0,1,2,3,4,5,6,7, 8,8,9,10,10,10,11,12],
            [0,0,0,1,1,1,2,2, 3,3,3,4,4,4,5,5],
            [6,6,6,6,6,7,7,7, 8,8,8,8,8,9,9,9],
            [10,10,10,10,10,11,11,11, 12,12,12,12,12,13,13,13]]
    XA = [12, 13, 14, 15]
    a("v_lshlrev_b32 v9, 2, v7")
    a("v_and_b32 v9, 31, v9")
    a("v_cmp_gt_u32 vcc, 8, v7")
    for t in range(4):
        lo = sum(maps[t][i] << (4 * i) for i in range(8)); hi = sum(maps[t][8 + i] << (4 * i) for i in range(8))
        a("v_mov_b32 v10, 0x%x" % hi); a("v_mov_b32 v11, 0x%x" % lo)
        a("v_cndmask_b32 v10, v10, v11, vcc")
        a("v_lshrrev_b32 v10, v9, v10")
        a("v_and_b32 v10, 15, v10")
        a("v_mul_u32_u24 v10, 272, v10")
        a("v_add_u32 v%d, v10, v8" % XA[t])
    D = lambda t, yt: 128 + 8 * t + 4 * yt
    TRIM = ENV("TRIM", 1)
    if not TRIM:
        for r in range(128, 160): a("v_mov_b32 v%d, 0" % r)
    a("s_add_u32 s%d, s%d, %d" % (sT0, sKW, L_SYNC)); a("v_mov_b32 v161, s%d" % sT0)
    a("s_xor_b32 s%d, s%d, 1" % (sT1, sKW)); a("s_add_u32 s%d, s%d, %d" % (sT1, sT1, L_SYNC)); a("v_mov_b32 v162, s%d" % sT1)
    a("v_mov_b32 v163, 1")
    srd(a, SDBG, 12, 256)
    a("s_and_b32 s%d, s2, 7" % sT0); a("s_lshl_b32 s%d, s%d, 13" % (sT0, sT0)); a("s_add_u32 s%d, s%d, %d" % (sT0, sT0, WS_PF))
    a("v_and_b32 v112, 31, v1"); a("v_lshl_add_u32 v112, v112, 8, s%d" % sT0)
    a("v_mov_b32 v113, 64")
    a("v_mov_b32 v114, %d" % (L_SYNC + Y_RDA))
    a("s_cmp_lg_u32 s%d, 0" % sKW)
    a("s_cselect_b32 s%d, 0, 1" % sPM)
    def setf(off):
        a("s_mov_b64 exec, 1")
        a("ds_write_b8 v161, v163 offset:%d" % off)
        a("s_mov_b64 exec, -1")
    def waitp(off, tmp=164, tmpa=165):
        a("v_add_u32 v%d, %d, v162" % (tmpa, off))
        spin_lds(tmpa, tmp, 1)
    hooks = {}
    kc = [0]
    def k(t):
        a(t); kc[0] += 1
        if kc[0] in hooks: hooks.pop(kc[0])()
    if NSTA:
        srd(a, SWD, 8, 1792 * 896)
        a("v_lshrrev_b32 v16, 3, v1")
        a("s_mul_i32 s%d, s%d, %d" % (sT0, sKW, 448 * 896))
        a("v_mul_u32_u24 v16, 896, v16")
        a("s_lshl_b32 s%d, s%d, 7" % (sT1, sCT)); a("s_add_u32 s%d, s%d, s%d" % (sT0, sT0, sT1))
        a("v_add_u32 v16, s%d, v16" % sT0)
        a("v_bfe_u32 v18, v1, 4, 1"); a("v_xor_b32 v17, v1, v18"); a("v_and_b32 v17, 7, v17")
        a("v_lshl_add_u32 v170, v17, 4, v16")
    def st_ld(n):
        s_ = 14 - NSTA + n // 4; q = n % 4
        a("s_mov_b32 s%d, %d" % (sOW, ((2 * (s_ % 7) + s_ // 7) * 32 + 8 * q) * 896))
        a("buffer_load_dwordx4 %s, v%d, s[%d:%d], s%d offen" % (vr(176 + 4 * n, 4), 170, SWD, SWD + 3, sOW))
    SP0 = ENV("SP0", 300); SPD = ENV("SPD", 20)
    if SP0 >= 0:
        for n in range(4 * NSTA): hooks[SP0 + SPD * n] = lambda n=n: (st_ld(n), nst.append(n))
    if PFA > 1: hooks[PFA] = lambda: pf_w("A", False)
    if PFB and PFBT > 1: hooks[PFBT] = lambda: pf_w("B", False)
    if ENV("PFX", 0):
        a("s_mov_b64 s[46:47], s[16:17]")
        hooks[ENV("PFX", 0)] = pf_x
    if ENV("PFL", 0):
        a("s_bitcmp1_b32 s%d, 1" % sKW); a("s_cselect_b64 s[44:45], s[34:35], s[32:33]")
        a("v_lshrrev_b32 v247, 1, v1"); a("v_mul_u32_u24 v247, 3584, v247"); a("v_and_b32 v248, 1, v1"); a("v_lshl_add_u32 v247, v248, 7, v247")
        for n in range(5): hooks[ENV("PFL", 0) + ENV("PFLD", 60) * n] = lambda n=n: pf_l(n)
    if ENV("PFC", 0): hooks[ENV("PFC", 0)] = pf_c
    if ENV("PFF", 153): hooks[ENV("PFF", 153)] = pf_f
    if PFH > 1: hooks[PFH] = lambda: pf_h(False)
    if PFO > 1: hooks[PFO] = lambda: pf_o(False)
    nst = []
    a("v_lshlrev_b32 v172, 4, v1")
    if AL == 2:
        srd(a, SOUT, 10, 2048 * 896)
        a("v_lshrrev_b32 v16, 3, v1"); a("v_mul_u32_u24 v16, %d, v16" % (TS - 128)); a("v_add_u32 v172, v172, v16")
    a("s_cmp_lg_u32 s15, 0"); a("s_cselect_b32 s%d, 31, 30" % sT0); a("s_lshl_b32 s%d, s%d, 2" % (sT0, sT0)); a("v_mov_b32 v173, s%d" % sT0)
    def u_poll():
        a("s_cmp_lg_u32 s%d, 0" % sPM); a("s_cselect_b32 exec_lo, -1, 0"); a("s_mov_b32 exec_hi, 0")
        a("buffer_load_dword v169, v112, s[%d:%d], 0 offen sc1" % (SWS, SWS + 3))
        a("s_mov_b64 exec, -1")
        del nst[:]
    def u_dma():
        if AL == 2:
            a("s_and_b32 s%d, s%d, 63" % (sOW, sCH)); a("s_mul_i32 s%d, s%d, 7" % (sOW, sOW)); a("s_lshr_b32 s%d, s%d, 6" % (sPM, sCH))
            a("s_add_u32 s%d, s%d, s%d" % (sOW, sOW, sPM)); a("s_lshl_b32 s%d, s%d, 7" % (sOW, sOW))
            for c in range(2):
                a("s_mov_b32 m0, %d" % (L_CV + c * CV_CH + O_U + 480))
                for q in range(4):
                    a("buffer_load_dwordx4 v172, s[%d:%d], s%d offen offset:%d lds" % (SOUT, SOUT + 3, sOW, q * 1024))
                    if q < 3: a("s_add_u32 s%d, s%d, %d" % (sOW, sOW, 8 * TS - 1024))
                    elif c == 0: a("s_sub_u32 s%d, s%d, %d" % (sOW, sOW, 3 * (8 * TS - 1024) - 896))
        else:
            a("s_mul_i32 s%d, s%d, %d" % (sOW, sCH, XST))
            a("s_add_u32 s%d, s%d, %d" % (sOW, sOW, WS_XNT))
        for c in range(2 if AL != 2 else 0):
            a("s_mov_b32 m0, %d" % (L_CV + c * CV_CH + O_U + 480))
            if c: a("s_add_u32 s%d, s%d, %d" % (sOW, sOW, XST))
            for q in range(4): a("buffer_load_dwordx4 v172, s[%d:%d], s%d offen offset:%d lds" % (SWS, SWS + 3, sOW, q * 1024))
        a("s_mov_b32 m0, %d" % (L_SYNC + Y_U))
        a("s_mov_b64 exec, 1")
        a("global_load_lds_dword v173, s[0:1]")
        a("s_mov_b64 exec, -1")
        a("s_mov_b32 s%d, 0" % sPM)
    def u_try():
        l = L("UT")
        a("s_cmp_eq_u32 s%d, 0" % sPM)
        a("s_cbranch_scc1 %s" % l)
        a.begin_opt()
        a("s_waitcnt vmcnt(%d)" % len(nst))
        a("v_cmp_ne_u32 vcc, s%d, v169" % sNON)
        a("s_cmp_lg_u32 vcc_lo, 0")
        a("s_cbranch_scc1 %s" % l)
        u_dma()
        a("s_mov_b32 m0, s%d" % sSTG)
        a.end_opt()
        a.label(l)
        a("s_nop 0")
    for p_ in os.environ.get("UP", "781,851").split(","):
        hooks[int(p_)] = u_poll; hooks[int(p_) + ENV("UD", 66)] = u_try
    def nonce_pub():
        ln2 = L("NF")
        a("s_cmp_eq_u32 s%d, 0" % sPM)
        a("s_cbranch_scc1 %s" % ln2)
        a.begin_opt()
        get_nonce(a, L, 113, 116, pre=True)
        a("s_mov_b64 exec, 1")
        a("ds_write_b64 v114, v[116:117] offset:%d" % (Y_NON - Y_RDA))
        a("s_mov_b64 exec, -1")
        a.end_opt()
        a.label(ln2)
    def pf_wd():
        srd(a, SWD, 8, 1792 * 896)
        a("s_lshr_b32 s%d, s2, 3" % sT0); a("s_sub_u32 s%d, s%d, 4" % (sT0, sT0)); a("s_lshl_b32 s%d, s%d, 2" % (sT0, sT0)); a("s_add_u32 s%d, s%d, s%d" % (sT0, sT0, sKW))
        a("s_mul_i32 s%d, s%d, %d" % (sT0, sT0, 112 * 128))
        a("v_lshlrev_b32 v200, 7, v1")
        a("s_add_u32 s%d, s%d, %d" % (sT1, sT0, 48 * 128))
        a("buffer_load_dword v201, v200, s[%d:%d], s%d offen" % (SWD, SWD + 3, sT0))
        a("buffer_load_dword v202, v200, s[%d:%d], s%d offen" % (SWD, SWD + 3, sT1))
    PFW = ENV("PFW", -1)
    GB, FB = (171, 175) if TRIM else (6, 7)
    if TRIM:
        a("v_lshl_add_u32 v18, v1, 4, s%d" % sSTG)
        a("s_xor_b32 s%d, s%d, 1" % (sT0, sKW)); a("s_mul_i32 s%d, s%d, %d" % (sT0, sT0, STG_W)); a("s_add_u32 s%d, s%d, %d" % (sT0, sT0, L_STG))
        a("v_lshl_add_u32 v19, v1, 4, s%d" % sT0)
        a("v_and_b32 v10, v6, v7"); a("v_and_b32 v10, s%d, v10" % sHF)
        a("v_cmp_ne_u32 s[16:17], 0, v10")
        a("v_lshrrev_b32 v10, 1, v6"); a("v_lshlrev_b32 v10, 9, v10")
        a("v_lshl_add_u32 v10, v7, 4, v10")
        a("v_and_b32 v11, 1, v6"); a("v_lshl_add_u32 v10, v11, 3, v10")
        a("s_add_u32 s%d, s%d, %d" % (sT0, sCVB, 4088 - 1024 - 256))
        a("s_lshl_b32 s%d, s%d, 11" % (sT2, sHF))
        a("s_sub_u32 s%d, s%d, s%d" % (sT0, sT0, sT2))
        a("v_sub_u32 v115, s%d, v10" % sT0)
        a("v_and_b32 v118, 3, v1"); a("v_add_u32 v118, %d, v118" % (L_SYNC + Y_CNT))
        a("v_lshlrev_b32 v4, 4, v1")
        for r in range(60, 64): a("v_mov_b32 v%d, 0" % r)
        a("v_add_u32 v119, %d, v4" % O_U)
        a("v_bfe_u32 v10, v1, 2, 2")
        a("v_mul_u32_u24 v10, %d, v10" % CPS)
        a("v_and_b32 v11, 3, v1")
        a("v_lshl_add_u32 v10, v11, 4, v10")
        a("v_add_u32 v10, 4096, v10")
        a("v_cmp_gt_u32 vcc, 32, v1")
        a("v_cndmask_b32 v119, v10, v119, vcc")
        a("v_add_u32 v119, s%d, v119" % sCVB)
        a("v_sub_u32 v10, 3, v7"); a("v_and_b32 v10, 3, v10")
        a("v_mul_u32_u24 v171, %d, v10" % CPS)
        a("v_add_u32 v11, v7, v10")
        a("v_sub_u32 v11, %d, v11" % (2031 - 16 * 126))
        a("v_lshl_add_u32 v11, v6, 3, v11")
        a("v_lshl_add_u32 v171, v11, 1, v171")
        a("s_lshl_b32 s%d, s%d, 8" % (sT0, sHF))
        a("s_sub_u32 s%d, s%d, s%d" % (sT1, sCVB, sT0))
        a("v_add_u32 v171, s%d, v171" % sT1)
        a("v_lshlrev_b32 v175, 5, v7")
        a("v_lshl_add_u32 v175, v6, 4, v175")
        a("v_add_u32 v175, %d, v175" % O_U)
        a("v_add_u32 v175, s%d, v175" % sT1)
        a("s_add_u32 s%d, s%d, s%d" % (sT3, sCVB, sT2))
        a("v_add_u32 v168, s%d, v4" % sT3)
        a("s_and_b32 s%d, s%d, 2" % (sT0, sKW)); a("s_lshl_b32 s%d, s%d, 2" % (sT0, sT0)); a("s_add_u32 s%d, s%d, %d" % (sT0, sT0, L_SYNC + Y_KEXP))
        a("v_mov_b32 v9, s%d" % sT0)
    a.wait_vm("param")
    if TRIM: a("v_mov_b32 v2, v7"); a("v_mov_b32 v3, v6")
    if PFW == 0: pf_wd()
    sk_("param")
    a("s_mov_b32 exec_lo, s%d" % sPM); a("s_mov_b32 exec_hi, 0")
    a("buffer_load_dwordx2 v[116:117], v113, s[%d:%d], 0 offen sc1" % (SDBG, SDBG + 3))
    a("s_mov_b64 exec, -1")
    if "nokgen" in EXP: nonce_pub()
    for it in range(2):
        for r in P[it]: k("v_lshlrev_b32 v%d, 16, v%d" % (r, r))
    k("v_lshlrev_b32 v26, 16, v26")
    k("v_mul_f32 v26, %s, v26" % fbits(LOG2E))
    k("v_exp_f32 v26, v26")
    k("v_cvt_pk_bf16_f32 v26, v26, v26")
    k("v_lshlrev_b32 v26, 16, v26")
    WR = [28, 126]
    for it in range(2):
        p = P[it]
        k("v_mul_f32 v%d, v26, v%d" % (p[0], p[0])); k("v_mul_f32 v%d, v26, v%d" % (p[1], p[1]))
        k("v_mul_f32 v%d, v26, v%d" % (p[2], p[2])); k("v_mul_f32 v%d, v26, v%d" % (p[3], p[3]))
        w = WR[it]
        k("v_mul_f32 v%d, v%d, v%d" % (w, p[4], p[2])); k("v_fma_f32 v%d, -v%d, v%d, v%d" % (w, p[5], p[3], w))
        k("v_mul_f32 v%d, v%d, v%d" % (w + 1, p[4], p[3])); k("v_fma_f32 v%d, v%d, v%d, v%d" % (w + 1, p[5], p[2], w + 1))
    k("v_max_f32 v27, abs(v28), abs(v29)")
    k("v_max3_f32 v27, abs(v126), abs(v127), v27")
    for sh in (1, 2, 4, 8):
        k("v_max_f32_dpp v27, v27, v27 row_shr:%d row_mask:0xf bank_mask:0xf" % sh)
    k("v_max_f32_dpp v27, v27, v27 row_bcast:15 row_mask:0xa bank_mask:0xf")
    k("v_max_f32_dpp v27, v27, v27 row_bcast:31 row_mask:0xc bank_mask:0xf")
    k("v_readlane_b32 s%d, v27, 63" % sINV)
    k("s_lshr_b32 s%d, s%d, 23" % (sINV, sINV))
    if TRIM: k("s_add_u32 s%d, s%d, 1" % (sINV, sINV))
    else:
        k("s_sub_u32 s%d, 254, s%d" % (sSC, sINV))
        k("s_lshl_b32 s%d, s%d, 23" % (sSC, sSC))
    k("v_mov_b32 v10, s%d" % sINV)
    k("s_lshl_b32 s%d, s%d, 2" % (sT1, sKW))
    k("s_add_u32 s%d, s%d, %d" % (sT1, sT1, L_SYNC + Y_KEXP))
    k("v_mov_b32 v11, s%d" % sT1)
    k("ds_write_b32 v11, v10")
    def wscale():
        for w in WR:
            k("v_mul_f32 v%d, s%d, v%d" % (w, sSC, w)); k("v_mul_f32 v%d, s%d, v%d" % (w + 1, sSC, w + 1))
    def common_scale():
        l1, l2, l3 = L("KS"), L("KS"), L("KS")
        a("s_mov_b32 s%d, %d" % (sCNT, SPIN))
        a("s_waitcnt lgkmcnt(15)")
        a("s_branch %s" % l3)
        a.label(l1)
        a("ds_read_b64 v[10:11], v9")
        a("s_waitcnt lgkmcnt(0)")
        a.label(l3)
        a("v_readfirstlane_b32 s%d, v10" % sT0); a("v_readfirstlane_b32 s%d, v11" % sT1)
        a("s_min_u32 s%d, s%d, s%d" % (sSC, sT0, sT1))
        a("s_cmp_lg_u32 s%d, 0" % sSC)
        a("s_cbranch_scc1 %s" % l2)
        a("s_sub_u32 s%d, s%d, 1" % (sCNT, sCNT)); a("s_cmp_lg_u32 s%d, 0" % sCNT)
        a("s_cbranch_scc1 %s" % l1)
        a.label(l2)
        a("s_max_u32 s%d, s%d, s%d" % (sINV, sT0, sT1))
        a("s_sub_u32 s%d, 255, s%d" % (sSC, sINV)); a("s_lshl_b32 s%d, s%d, 23" % (sSC, sSC))
        a("s_sub_u32 s%d, s%d, 1" % (sINV, sINV)); a("s_lshl_b32 s%d, s%d, 23" % (sINV, sINV))
        wscale()
    if not TRIM: wscale()
    k("s_mov_b32 m0, s%d" % sSTG)
    if ENV("KV", 0):
        k("v_lshl_add_u32 v164, v1, 2, s%d" % sSTG)
        for i in range(1, 4): k("v_add_u32 v%d, %d, v164" % (164 + i, i * 4 * 272))
    E1, E8, E256, E2, E4, E16 = 30, 32, 34, 36, 38, 40
    tmpi = [0]
    def cmul(d, x, y):
        t = 42 + (tmpi[0] & 3); tmpi[0] += 1
        assert d != y
        k("v_mul_f32 v%d, v%d, v%d" % (t, x, y + 1))
        k("v_mul_f32 v%d, v%d, v%d" % (d, x, y))
        k("v_fma_f32 v%d, -v%d, v%d, v%d" % (d, x + 1, y + 1, d))
        k("v_fma_f32 v%d, v%d, v%d, v%d" % (d + 1, x + 1, y, t))
    PK = [46, 47, 48, 49]; pki = [0]
    def put(row, r, negim=False):
        p = PK[pki[0] & 3]; pki[0] += 1
        k("v_cvt_pk_f16_f32 v%d, v%d, %sv%d" % (p, r, "-" if negim else "", r + 1))
        if "nokw" in EXP or ("halfkw" in EXP and (pki[0] & 1)): k("; skip"); return
        k("ds_write_addtid_b32 v%d offset:%d" % (p, row * 272))
    KV = ENV("KV", 0)
    KB = [164, 165, 166, 167]
    def wr2(row, st, single=False):
        if single: k("ds_write_b32 v%d, v%d offset:%d" % (KB[row >> 2], PK[2 * st], (row & 3) * 272))
        elif row & 1: k("ds_write2_b32 v%d, v%d, v%d offset0:%d offset1:%d" % (KB[row >> 2], PK[2 * st], PK[2 * st + 1], ((row & 3) - 1) * 68, (row & 3) * 68))
    def put2(row, r, negim=False, st=None, single=False):
        if st is None: st = (row >> 1) & 1
        k("v_cvt_pk_f16_f32 v%d, v%d, %sv%d" % (PK[2 * st + (row & 1)], r, "-" if negim else "", r + 1))
        wr2(row, st, single)
    def leaf(row, x, y, negim=False, st=None, single=False):
        if st is None: st = (row >> 1) & 1
        p_ = PK[2 * st + (row & 1)]; n_ = "-" if negim else ""
        t = 42 + (tmpi[0] & 3); t2 = 42 + ((tmpi[0] + 1) & 3); tmpi[0] += 2
        k("v_mul_f32 v%d, v%d, v%d" % (t, x + 1, y + 1))
        k("v_mul_f32 v%d, v%d, v%d" % (t2, x, y + 1))
        k("v_fma_mixlo_f16 v%d, v%d, v%d, -v%d" % (p_, x, y, t))
        return lambda: (k("v_fma_mixhi_f16 v%d, %sv%d, v%d, %sv%d" % (p_, n_, x + 1, y, n_, t2)), wr2(row, st, single))
    YF = [64, 80]; XFB = 96
    for it in range(2 if "nokgen" not in EXP else 0):
        are, aim = P[it][0], P[it][1]
        if it == 1 and PFW == 1: pf_wd()
        X0 = WR[it]
        def cexp(d, Lx):
            k("v_mul_f32 v16, %s, v%d" % (fbits(Lx * LOG2E), are))
            k("v_mul_f32 v17, %s, v%d" % (fbits(Lx / (2 * math.pi)), aim))
            k("v_exp_f32 v16, v16")
            k("v_fract_f32 v17, v17")
            k("v_cos_f32 v%d, v17" % d)
            k("v_sin_f32 v%d, v17" % (d + 1))
            k("v_mul_f32 v%d, v16, v%d" % (d, d))
            k("v_mul_f32 v%d, v16, v%d" % (d + 1, d + 1))
        cexp(E8, 8); cexp(E1, 1); cexp(E256, 256)
        cmul(E16, E8, E8); cmul(E2, E1, E1); cmul(E4, E2, E2)
        def xtile(t):
            for ks in range(4): k("ds_read_b128 %s, v%d offset:%d" % (vr(XFB + 4 * ks, 4), XA[t], ks * 64))
        def xmfma(t):
            for ks in range(4):
                for yt in range(2):
                    k("v_mfma_f32_16x16x32_f16 %s, %s, %s, %s" % (vr(D(t, yt), 4), vr(XFB + 4 * ks, 4), vr(YF[yt] + 4 * ks, 4), "0" if TRIM and it == 0 and ks == 0 else vr(D(t, yt), 4)))
        if KV:
            YY = [50, 52]
            k("v_mov_b32 v%d, 0x3c00" % PK[0])
            put2(1, E8)
            cur = E16
            for j in range(2, 32, 2):
                f_ = leaf((j + 1) & 15, cur, E8)
                put2(j & 15, cur)
                f_()
                if j + 2 < 32:
                    nx = YY[(j >> 1) & 1]; cmul(nx, cur, E16); cur = nx
                if TRIM and it == 0 and j == 10: k("ds_read_b64 v[10:11], v9")
                if j == 14:
                    for ks in range(4): k("ds_read_b128 %s, v5 offset:%d" % (vr(YF[0] + 4 * ks, 4), ks * 64))
            for ks in range(4): k("ds_read_b128 %s, v5 offset:%d" % (vr(YF[1] + 4 * ks, 4), ks * 64))
            Xa, Xb, Xc = 54, 56, 58
            if it == 0 and TRIM: common_scale()
            if it == 0: nonce_pub()
            cmul(Xb, X0, E256)
            ca, cb = X0, Xb
            for i in range(4):
                f_ = leaf(2 * i + 1, ca, E1, True, 0); put2(2 * i, ca, True, 0); f_()
                if i < 3:
                    nx = (Xa, 50)[i & 1]; cmul(nx, ca, E2); ca = nx
                if i < 2:
                    f_ = leaf(9 + 2 * i, cb, E2, True, 1); put2(8 + 2 * i, cb, True, 1); f_()
                    if i == 0: cmul(Xc, cb, E4); cb = Xc
                if i == 2:
                    f_ = leaf(12, cb, E4, True, 1, True); k("s_nop 0"); f_()
            xtile(0)
            XX = [Xa, Xb]
            cmul(Xa, Xb, E256)
            f_ = leaf(1, Xa, E4, True); put2(0, Xa, True); f_()
            cmul(Xb, Xa, E256)
            f_ = leaf(2, Xa, E8, True); k("v_cvt_pk_f16_f32 v%d, v%d, -v%d" % (PK[3], Xb, Xb + 1)); f_(); wr2(3, 1)
            f_ = leaf(4, Xb, E4, True); g_ = leaf(5, Xb, E8, True); f_(); g_()
            k("s_waitcnt lgkmcnt(3)")
            xmfma(0)
            xtile(1)
            cur = Xb
            for b in range(4):
                nx = XX[b & 1]; cmul(nx, cur, E256); cur = nx
                f_ = leaf(7 + 2 * b, cur, E8, True); put2(6 + 2 * b, cur, True); f_()
            k("s_waitcnt lgkmcnt(4)")
            xmfma(1)
        else:
            Ya, Yb = 50, 52
            k("v_mov_b32 v50, 1.0"); k("v_mov_b32 v51, 0")
            put(0, Ya); put(1, E8)
            cmul(Yb, E8, E16)
            put(2, E16); put(3, Yb)
            cmul(Ya, E16, E16)
            for j in range(4, 32, 2):
                cmul(Yb, Yb, E16)
                put(j & 15, Ya); put((j + 1) & 15, Yb)
                if j + 2 < 32: cmul(Ya, Ya, E16)
                if TRIM and it == 0 and j == ENV("KSJ", 12): k("ds_read_b64 v[10:11], v9")
                if j == 14:
                    for ks in range(4): k("ds_read_b128 %s, v5 offset:%d" % (vr(YF[0] + 4 * ks, 4), ks * 64))
            for ks in range(4): k("ds_read_b128 %s, v5 offset:%d" % (vr(YF[1] + 4 * ks, 4), ks * 64))
            Xa, Xb, Xc = 54, 56, 58
            if it == 0 and TRIM: common_scale()
            if it == 0: nonce_pub()
            put(0, X0, True)
            cmul(Xa, X0, E1); cmul(Xb, X0, E256)
            put(1, Xa, True); put(8, Xb, True)
            cmul(Xc, Xb, E2)
            for r in range(2, 8):
                cmul(Xa, Xa, E1); put(r, Xa, True)
                if r <= 5:
                    put(9 + (r - 2), Xc, True)
                    if r < 5: cmul(Xc, Xc, E2)
            def xtile(t):
                for ks in range(4): k("ds_read_b128 %s, v%d offset:%d" % (vr(XFB + 4 * ks, 4), XA[t], ks * 64))
            def xmfma(t):
                for ks in range(4):
                    for yt in range(2):
                        k("v_mfma_f32_16x16x32_f16 %s, %s, %s, %s" % (vr(D(t, yt), 4), vr(XFB + 4 * ks, 4), vr(YF[yt] + 4 * ks, 4), "0" if TRIM and it == 0 and ks == 0 else vr(D(t, yt), 4)))
            xtile(0)
            for b in range(2):
                cmul(Xb, Xb, E256); put(3 * b, Xb, True)
                cmul(Xc, Xb, E4); put(3 * b + 1, Xc, True)
                cmul(Xa, Xb, E8); put(3 * b + 2, Xa, True)
            k("s_waitcnt lgkmcnt(6)")
            xmfma(0)
            xtile(1)
            for b in range(4):
                cmul(Xb, Xb, E256); put(6 + 2 * b, Xb, True)
                cmul(Xa, Xb, E8); put(7 + 2 * b, Xa, True)
            k("s_waitcnt lgkmcnt(8)")
            xmfma(1)
        for t in (2, 3):
            xtile(t)
            k("s_waitcnt lgkmcnt(0)")
            xmfma(t)
    if ENV("VERB", 0): print("kgen instrs", kc[0])
    if "nokgen" in EXP:
        for kk_ in sorted(hooks): hooks[kk_]()
        hooks.clear()
    assert not hooks
    sk_("kgen")
    a("s_setprio %d" % ENV("XPRIO", 2))
    u_poll()
    if TRIM:
        x1, x2 = L("X"), L("X")
        a("s_cmp_lg_u32 s%d, 0" % sHF)
        a("s_cbranch_scc1 %s" % x1)
        a.begin_opt()
        for i in range(4): a("ds_write_b128 v18, %s offset:%d" % (vr(144 + 4 * i, 4), i * 1024))
        setf(Y_KX)
        waitp(Y_KX)
        for i in range(4): a("ds_read_b128 %s, v19 offset:%d" % (vr(144 + 4 * i, 4), i * 1024))
        a("s_branch %s" % x2)
        a.end_opt()
        a.label(x1)
        a.begin_opt()
        for i in range(4): a("ds_write_b128 v18, %s offset:%d" % (vr(128 + 4 * i, 4), i * 1024))
        setf(Y_KX)
        waitp(Y_KX)
        for i in range(4): a("ds_read_b128 %s, v19 offset:%d" % (vr(128 + 4 * i, 4), i * 1024))
        a.end_opt()
        a.label(x2)
        a("ds_read_u8 v164, v118 offset:%d" % Y_RD)
        a("s_lshl_b32 s%d, s%d, 11" % (sT2, sHF))
        a("s_add_u32 s%d, s%d, s%d" % (sT3, sCVB, sT2))
        for i in range(4):
            b = 128 + 4 * i
            a("s_waitcnt lgkmcnt(%d)" % (4 - i))
            for e in range(4): a("v_add_f32 v%d, v%d, v%d" % (b + e, b + e, b + 16 + e))
            a("v_cndmask_b32 v%d, v%d, v%d, s[16:17]" % (b, b, b + 1))
            a("v_cvt_pk_f16_f32 v%d, v%d, v%d" % (64 + 2 * i, b + 3, b + 2))
            a("v_cvt_pk_f16_f32 v%d, v%d, v%d" % (65 + 2 * i, b + 1, b))
        xs = L("XS")
        a("s_waitcnt lgkmcnt(0)")
        a("v_cmp_gt_u32 vcc, 10, v164")
        a("s_cbranch_vccz %s" % xs)
        a.begin_opt()
        spin_lds(118, 164, 10, slp=4, off=Y_RD)
        a.end_opt()
        a.label(xs)
        for tl in range(2):
            for yt in range(2):
                a("ds_write_b64 v115, %s offset:%d" % (vr(64 + 4 * tl + 2 * yt, 2), (1 - tl) * 1024 + (1 - yt) * 256))
        a("s_setprio %d" % int(os.environ.get("CPRIO", "2")))
        a("s_cmp_lg_u32 s%d, 0" % sHF)
        a("s_cselect_b32 exec_lo, 0, 0x3fffffff"); a("s_cselect_b32 exec_hi, 0, 0xffff")
        a("ds_write_b128 v119, v[60:63]")
        setf(Y_C0)
        a("v_mov_b32 v5, v168")
    else:
        a("v_lshl_add_u32 v18, v1, 4, s%d" % sSTG)
        a("s_xor_b32 s%d, s%d, 1" % (sT0, sKW))
        a("s_mul_i32 s%d, s%d, %d" % (sT0, sT0, STG_W))
        a("s_add_u32 s%d, s%d, %d" % (sT0, sT0, L_STG))
        a("v_lshl_add_u32 v19, v1, 4, s%d" % sT0)
        x1, x2 = L("X"), L("X")
        a("s_cmp_lg_u32 s%d, 0" % sHF)
        a("s_cbranch_scc1 %s" % x1)
        a.begin_opt()
        for i in range(4): a("ds_write_b128 v18, %s offset:%d" % (vr(144 + 4 * i, 4), i * 1024))
        a("s_branch %s" % x2)
        a.end_opt()
        a.label(x1)
        a.begin_opt()
        for i in range(4): a("ds_write_b128 v18, %s offset:%d" % (vr(128 + 4 * i, 4), i * 1024))
        for i in range(16): a("v_mov_b32 v%d, v%d" % (128 + i, 144 + i))
        a.end_opt()
        a.label(x2)
        setf(Y_KX)
        waitp(Y_KX)
        a("s_and_b32 s%d, s%d, 2" % (sT0, sKW))
        a("s_lshl_b32 s%d, s%d, 2" % (sT0, sT0))
        a("s_add_u32 s%d, s%d, %d" % (sT0, sT0, L_SYNC + Y_KEXP))
        a("v_mov_b32 v10, s%d" % sT0)
        a("ds_read_b64 v[10:11], v10")
        for i in range(4): a("ds_read_b128 %s, v19 offset:%d" % (vr(144 + 4 * i, 4), i * 1024))
        a("s_waitcnt lgkmcnt(4)")
        a("v_max_u32 v16, v10, v11")
        a("v_add_u32 v17, v10, v11"); a("v_subrev_u32 v17, s%d, v17" % sINV)
        def fac(dst, esrc):
            a("v_sub_u32 v%d, %s, v16" % (dst, esrc))
            a("v_add_u32 v%d, 127, v%d" % (dst, dst))
            a("v_max_i32 v%d, 0, v%d" % (dst, dst))
            a("v_lshlrev_b32 v%d, 23, v%d" % (dst, dst))
        fac(20, "s%d" % sINV); fac(22, "v17")
        a("v_lshlrev_b32 v9, 23, v16")
        a("s_waitcnt lgkmcnt(0)")
        for i in range(16):
            a("v_mul_f32 v%d, v20, v%d" % (128 + i, 128 + i))
            a("v_fmac_f32 v%d, v22, v%d" % (128 + i, 144 + i))
        a("v_and_b32 v10, v6, v7"); a("v_and_b32 v10, s%d, v10" % sHF)
        a("v_cmp_ne_u32 vcc, 0, v10")
        for i in range(4): a("v_cndmask_b32 v%d, v%d, v%d, vcc" % (128 + 4 * i, 128 + 4 * i, 129 + 4 * i))
        a("v_lshrrev_b32 v10, 1, v6"); a("v_lshlrev_b32 v10, 9, v10")
        a("v_lshl_add_u32 v10, v7, 4, v10")
        a("v_and_b32 v11, 1, v6"); a("v_lshl_add_u32 v10, v11, 3, v10")
        a("s_add_u32 s%d, s%d, %d" % (sT0, sCVB, 4088 - 1024 - 256))
        a("s_lshl_b32 s%d, s%d, 11" % (sT2, sHF))
        a("s_sub_u32 s%d, s%d, s%d" % (sT0, sT0, sT2))
        a("v_sub_u32 v10, s%d, v10" % sT0)
        for tl in range(2):
            for yt in range(2):
                b = 128 + 8 * tl + 4 * yt
                a("v_cvt_pk_f16_f32 v%d, v%d, v%d" % (64 + 4 * tl + 2 * yt, b + 3, b + 2))
                a("v_cvt_pk_f16_f32 v%d, v%d, v%d" % (65 + 4 * tl + 2 * yt, b + 1, b))
        a("v_and_b32 v11, 3, v1"); a("v_add_u32 v11, %d, v11" % (L_SYNC + Y_CNT))
        spin_lds(11, 164, 10, slp=4, off=Y_RD)
        for tl in range(2):
            for yt in range(2):
                a("ds_write_b64 v10, %s offset:%d" % (vr(64 + 4 * tl + 2 * yt, 2), (1 - tl) * 1024 + (1 - yt) * 256))
        if "dbgk" in EXP:
            a("s_mul_i32 s%d, s%d, %d" % (sT0, sCH, KSTRIDE)); a("s_sub_u32 s%d, s%d, s%d" % (sT0, sT0, sCVB)); a("s_add_u32 s%d, s%d, %d" % (sT0, sT0, WS_KREV))
            for tl in range(2):
                for yt in range(2):
                    a("buffer_store_dwordx2 %s, v10, s[%d:%d], s%d offen offset:%d" % (vr(64 + 4 * tl + 2 * yt, 2), SWS, SWS + 3, sT0, (1 - tl) * 1024 + (1 - yt) * 256))
            a("s_lshl_b32 s%d, s%d, 2" % (sT0, sCH)); a("s_add_u32 s%d, s%d, %d" % (sT0, sT0, WS_KSC)); a("v_mov_b32 v11, s%d" % sT0)
            a("buffer_store_dword v9, v11, s[%d:%d], 0 offen" % (SWS, SWS + 3))
        a("s_setprio %d" % int(os.environ.get("CPRIO", "2")))
        a("v_mov_b32 v2, v7"); a("v_mov_b32 v3, v6")
        a("v_lshlrev_b32 v4, 4, v1")
        a("v_mov_b32 v12, 0"); a("v_mov_b32 v13, 0"); a("v_mov_b32 v14, 0"); a("v_mov_b32 v15, 0")
        a("v_add_u32 v5, %d, v4" % O_U)
        a("v_bfe_u32 v6, v1, 2, 2")
        a("v_mul_u32_u24 v6, %d, v6" % CPS)
        a("v_and_b32 v7, 3, v1")
        a("v_lshl_add_u32 v6, v7, 4, v6")
        a("v_add_u32 v6, 4096, v6")
        a("v_cmp_gt_u32 vcc, 32, v1")
        a("v_cndmask_b32 v5, v6, v5, vcc")
        a("v_add_u32 v5, s%d, v5" % sCVB)
        nz = L("NZ")
        a("s_cmp_lg_u32 s%d, 0" % sHF)
        a("s_cbranch_scc1 %s" % nz)
        a.begin_opt()
        a("s_mov_b32 exec_lo, 0x3fffffff"); a("s_mov_b32 exec_hi, 0xffff")
        a("ds_write_b128 v5, v[12:15]")
        a("s_mov_b64 exec, -1")
        a.end_opt()
        a.label(nz)
        setf(Y_C0)
        a("v_sub_u32 v5, 3, v2"); a("v_and_b32 v5, 3, v5")
        a("v_mul_u32_u24 v6, %d, v5" % CPS)
        a("v_add_u32 v7, v2, v5")
        a("v_sub_u32 v7, %d, v7" % (2031 - 16 * 126))
        a("v_lshl_add_u32 v7, v3, 3, v7")
        a("v_lshl_add_u32 v6, v7, 1, v6")
        a("s_lshl_b32 s%d, s%d, 8" % (sT0, sHF))
        a("s_sub_u32 s%d, s%d, s%d" % (sT1, sCVB, sT0))
        a("v_add_u32 v6, s%d, v6" % sT1)
        a("v_lshlrev_b32 v7, 5, v2")
        a("v_lshl_add_u32 v7, v3, 4, v7")
        a("v_add_u32 v7, %d, v7" % O_U)
        a("v_add_u32 v7, s%d, v7" % sT1)
        a("s_add_u32 s%d, s%d, s%d" % (sT3, sCVB, sT2))
        a("v_add_u32 v5, s%d, v4" % sT3)
    lq, lq2, lq3 = L("PB"), L("PB"), L("PB")
    a("s_cmp_eq_u32 s%d, 0" % sPM)
    a("s_cbranch_scc1 %s" % lq3)
    a.begin_opt()
    a("s_mov_b32 s%d, %d" % (sOX, SPIN))
    a.label(lq)
    a("s_waitcnt vmcnt(0)")
    a("v_cmp_ne_u32 vcc, s%d, v169" % sNON)
    a("s_cmp_eq_u32 vcc_lo, 0")
    a("s_cbranch_scc1 %s" % lq2)
    a("s_sleep %d" % int(os.environ.get("PSL", "20")))
    a("s_mov_b32 exec_hi, 0")
    a("buffer_load_dword v169, v112, s[%d:%d], 0 offen sc1" % (SWS, SWS + 3))
    a("s_mov_b64 exec, -1")
    a("s_sub_u32 s%d, s%d, 1" % (sOX, sOX)); a("s_cmp_lg_u32 s%d, 0" % sOX)
    a("s_cbranch_scc1 %s" % lq)
    a.label(lq2)
    u_dma()
    a.end_opt()
    a.label(lq3)
    sk_("rdyB")
    waitp(Y_C0)
    for it in range(2):
        b = 32 + 8 * it
        a("ds_read_b128 %s, v5 offset:%d" % (vr(b, 4), it * 1024))
        a("ds_read_b64 %s, v5 offset:%d" % (vr(b + 4, 2), it * 1024 + 16))
    for it in range(2):
        b = 32 + 8 * it
        a("s_waitcnt lgkmcnt(%d)" % (2 if it == 0 else 3))
        d = [b + i for i in range(6)]
        c1, c2, c3 = 64 + 12 * it, 68 + 12 * it, 72 + 12 * it
        for i in range(4):
            a("v_alignbit_b32 v%d, v%d, v%d, 16" % (c1 + i, d[i + 1], d[i]))
            a("v_mov_b32 v%d, v%d" % (c2 + i, d[i + 1]))
            a("v_alignbit_b32 v%d, v%d, v%d, 16" % (c3 + i, d[i + 2], d[i + 1]))
        a("ds_write_b128 v5, %s offset:%d" % (vr(c1, 4), CPS + it * 1024))
        a("ds_write_b128 v5, %s offset:%d" % (vr(c2, 4), 2 * CPS + it * 1024))
        a("ds_write_b128 v5, %s offset:%d" % (vr(c3, 4), 3 * CPS + it * 1024))
    sk_("copies")
    CA = 16; G = 64; F = 96
    if not TRIM:
        for r in range(CA, CA + 32): a("v_mov_b32 v%d, 0" % r)
    setf(Y_BL)
    spin_lds(114, 164, 1, width="b32", slp=1, off=Y_U - Y_RDA)
    a("ds_read_b64 v[166:167], v114 offset:%d" % (Y_NON - Y_RDA))
    waitp(Y_BL)
    sk_("built")
    if YP == 3 and "nopp" not in EXP:
        a("v_mov_b32 v174, v112")
        a("s_mov_b32 exec_hi, 0")
        a("buffer_load_dword v169, v174, s[%d:%d], 0 offen offset:128 sc1" % (SWS, SWS + 3))
        a("s_mov_b64 exec, -1")
    a("s_setprio %d" % ENV("MPRIO", 1))
    def rg(ri, q):
        o = 32 * (126 - 16 * q - 2 * ri)
        a("ds_read_b64 %s, v%d offset:%d" % (vr(G + 4 * q, 2), GB, o))
        a("ds_read_b64 %s, v%d offset:%d" % (vr(G + 4 * q + 2, 2), GB, o + 8))
    def rf(ri, j):
        a("ds_read_b128 %s, v%d offset:%d" % (vr(F + 4 * j, 4), FB, 32 * (16 * j - 2 * ri + 14)))
    side = []
    S = side.append
    S("v_lshlrev_b32 v8, 16, v160")
    XW, XO = 128, 136
    for i in range(4):
        for pr in range(2):
            xw = XW + 2 * i + pr; o = XO + 4 * i + 2 * pr
            S("v_cvt_f32_f16 v%d, v%d" % (o, xw))
            S("v_lshrrev_b32 v%d, 16, v%d" % (o + 1, xw)); S("v_cvt_f32_f16 v%d, v%d" % (o + 1, o + 1))
            S("v_mul_f32 v%d, v8, v%d" % (o, o)); S("v_mul_f32 v%d, v8, v%d" % (o + 1, o + 1))
            S("v_cvt_pk_bf16_f32 v%d, v%d, v%d" % (o, o, o + 1))
            S("v_and_b32 v%d, 0xffff0000, v%d" % (o + 1, o)); S("v_lshlrev_b32 v%d, 16, v%d" % (o, o))
    S("v_lshl_add_u32 v5, v1, 4, s%d" % sSTG)
    S("s_xor_b32 s%d, s%d, 1" % (sT0, sKW))
    S("s_mul_i32 s%d, s%d, %d" % (sT0, sT0, STG_W))
    S("s_add_u32 s%d, s%d, %d" % (sT0, sT0, L_STG))
    S("v_lshl_add_u32 v152, v1, 4, s%d" % sT0)
    if AL == 2:
        S("v_and_b32 v13, 1, v3"); S("v_lshrrev_b32 v14, 2, v2"); S("v_lshl_add_u32 v13, v13, 2, v14"); S("v_mul_u32_u24 v13, %d, v13" % TS)
        S("s_mul_i32 s%d, s%d, %d" % (sT2, sHF, 16 * TS))
    else:
        S("v_and_b32 v13, 1, v3"); S("v_lshlrev_b32 v13, 9, v13")
        S("v_lshrrev_b32 v14, 2, v2"); S("v_lshl_add_u32 v13, v14, 7, v13")
    S("v_lshrrev_b32 v14, 1, v3"); S("v_lshl_add_u32 v13, v14, 6, v13")
    S("v_and_b32 v14, 3, v2"); S("v_lshl_add_u32 v13, v14, 4, v13")
    S("v_add_u32 v13, s%d, v13" % sT2)
    S("s_and_b32 s%d, s%d, 0xfffe" % (sT0, sCH)); S("s_add_u32 s%d, s%d, s%d" % (sT0, sT0, sHF)); S("s_lshl_b32 s%d, s%d, 8" % (sT0, sT0))
    S("s_and_b32 s%d, s%d, 1" % (sT1, sCH)); S("s_lshl_b32 s%d, s%d, 3" % (sT1, sT1))
    S("s_add_u32 s%d, s%d, s%d" % (sT0, sT0, sT1))
    S("s_add_u32 s%d, s%d, %d" % (sT0, sT0, WS_CF))
    S("v_mov_b32 v14, s%d" % sT0)
    S("v_readfirstlane_b32 s%d, v166" % sNON); S("v_readfirstlane_b32 s%d, v167" % (sNON + 1))
    S("s_lshl_b32 s%d, s%d, 14" % (sT0, sCT))
    S("s_lshl_b32 s%d, s%d, 12" % (sT1, sKW))
    S("s_add_u32 s%d, s%d, s%d" % (sT0, sT0, sT1))
    S("s_lshr_b32 s%d, s%d, 4" % (sT1, sRT2)); S("s_lshl_b32 s%d, s%d, 8" % (sT1, sT1))
    S("s_add_u32 s%d, s%d, s%d" % (sT0, sT0, sT1))
    S("s_add_u32 s%d, s%d, %d" % (sT0, sT0, WS_CF))
    S("v_lshrrev_b32 v153, 1, v2"); S("v_lshl_add_u32 v153, v153, 9, s%d" % sT0)
    S("v_and_b32 v154, 1, v2"); S("v_lshl_add_u32 v153, v154, 3, v153")
    S("s_lshl_b32 s%d, s%d, 4" % (sT0, sKW))
    S("v_lshrrev_b32 v154, 3, v1")
    S("v_add_u32 v154, s%d, v154" % sT0)
    if AL == 2:
        S("v_mul_u32_u24 v154, 896, v154")
        S("v_and_b32 v155, 7, v1")
        S("v_lshl_add_u32 v154, v155, 4, v154")
        S("s_mul_i32 s%d, s%d, %d" % (sT2, sRT2, TS)); S("s_lshl_b32 s%d, s%d, 7" % (sT0, sCT)); S("s_add_u32 s%d, s%d, s%d" % (sT2, sT2, sT0))
        S("s_add_u32 s%d, s%d, %d" % (sT3, sT2, 8 * 896))
        S("s_and_b32 s%d, s%d, 63" % (sT0, sCH)); S("s_mul_i32 s%d, s%d, 7" % (sT0, sT0)); S("s_lshr_b32 s%d, s%d, 6" % (sOW, sCH))
        S("s_add_u32 s%d, s%d, s%d" % (sT0, sT0, sOW)); S("s_lshl_b32 s%d, s%d, 7" % (sT0, sT0))
        S("s_add_u32 s%d, s%d, %d" % (sOW, sT0, 8 * TS))
    else:
        S("s_lshl_b32 s%d, s%d, 6" % (sT0, sCT))
        S("v_add_u32 v154, s%d, v154" % sT0)
        S("v_mul_u32_u24 v154, %d, v154" % YST)
        S("v_and_b32 v155, 7, v1")
        S("v_lshl_add_u32 v154, v155, 4, v154")
        S("s_lshl_b32 s%d, s%d, 7" % (sT2, sRT2))
        S("s_add_u32 s%d, s%d, %d" % (sT2, sT2, WS_YAT))
        S("s_add_u32 s%d, s%d, %d" % (sT3, sT2, 8 * YST))
        S("s_mul_i32 s%d, s%d, %d" % (sT0, sCH, YST))
        S("s_add_u32 s%d, s%d, %d" % (sT0, sT0, WS_YAT))
    S("v_add_u32 v165, %d, v162" % Y_CX)
    if NSTA:
        S("s_lshl_b32 s%d, s%d, 13" % (sOX, sHF)); S("s_add_u32 s%d, s%d, s%d" % (sOX, sOX, sCVB)); S("v_lshl_add_u32 v157, v1, 4, s%d" % sOX)
        if SP0 < 0:
            side2 = []
            for n in range(4 * NSTA): side2.append(n)
    def copy_part(part):
        for n in range(4 * NSTA):
            s_ = 14 - NSTA + n // 4; q = n % 4
            if (s_ >= 12) != (part == 1): continue
            if s_ >= 12: ad, of = 157, (s_ - 12) * 4096
            elif WDS[s_ % 6] >= 65536: ad, of = 158, WDS[s_ % 6] - 65536
            else: ad, of = 156, WDS[s_ % 6]
            a("ds_write_b128 v%d, %s offset:%d" % (ad, vr(176 + 4 * n, 4), of + q * 1024))
            cw = ENV("CW%d" % part, part + 1)
            if cw >= 100: a("s_sleep %d" % (cw - 100))
            elif cw:
                for _ in range(cw): a("s_nop 7")
        a("v_mov_b32 v159, %d" % (part + 1))
        a("s_mov_b64 exec, 1")
        a("ds_write_b8 v161, v159 offset:%d" % Y_WS)
        a("s_mov_b64 exec, -1")
    def copy_out():
        l = L("CA")
        a("s_cmp_lg_u32 s%d, 0" % sLD)
        a("s_cbranch_scc1 %s" % l)
        copy_part(0)
        a.label(l)
        copy_part(1)
    def copy_try():
        l = L("CA")
        a("v_cmp_gt_u32 vcc, 1, v164")
        a("s_cmp_lg_u32 s%d, 0" % sLD)
        a("s_cbranch_scc1 %s" % l)
        a("s_cbranch_vccnz %s" % l)
        a.begin_opt()
        a("s_waitcnt vmcnt(0)")
        a("s_mov_b32 s%d, 1" % sLD)
        copy_part(0)
        a.end_opt()
        a.label(l)
    CTRY = [int(x) for x in os.environ.get("CTRY", "9").split(",")]
    a("s_mov_b32 s%d, 0" % sLD)
    a("s_lshl_b32 s%d, s%d, 12" % (sOX, sKW)); a("v_lshl_add_u32 v156, v1, 4, s%d" % sOX); a("v_add_u32 v158, 65536, v156")
    a("v_lshlrev_b32 v13, 5, v2")
    a("v_lshl_add_u32 v13, v3, 3, v13")
    a("s_add_u32 s%d, s%d, %d" % (sT1, sT3, O_U + 480))
    a("v_add_u32 v14, s%d, v13" % sT1)
    for i in range(4): a("ds_read_b64 %s, v14 offset:%d" % (vr(XW + 2 * i, 2), i * 512))
    for q in range(8): rg(0, q); rf(0, 7 - q)
    nm = 0
    if "noconv" in EXP:
        a("s_waitcnt lgkmcnt(0)")
        while side: a(side.pop(0))
    EC = ENV("EC", 0); ECR = ENV("ECR", 2); ECS = ENV("ECS", 5); ECN = ENV("ECN", 1)
    ecq = []
    def ec_start():
        a("v_cmp_le_u32 s[86:87], 1, v164")
        a("v_mov_b32 v159, 1")
        a("s_and_b32 s%d, s86, 1" % sLD)
        a("s_waitcnt vmcnt(%d)" % (1 if YP == 3 else 0))
        for n in range(0, 12, ECN):
            ecq.append(["s_mov_b64 exec, s[86:87]"])
            for n_ in range(n, n + ECN):
                s_ = 9 + n_ // 4; hi = WDS[s_ % 6] >= 65536
                ecq[-1].append("ds_write_b128 v%d, %s offset:%d" % ((156, 158)[hi], vr(176 + 4 * n_, 4), WDS[s_ % 6] - 65536 * hi + (n_ % 4) * 1024))
            if n + ECN >= 12: ecq[-1] += ["s_mov_b32 exec_lo, s%d" % sLD, "s_mov_b32 exec_hi, 0", "ds_write_b8 v161, v159 offset:%d" % Y_WS]
            ecq[-1].append("s_mov_b64 exec, -1")
    for ri in range(4 if "noconv" not in EXP else 0):
        for q in range(8):
            for m in range(7, q - 1, -1):
                if q == 0:
                    a("s_waitcnt lgkmcnt(%d)" % min(15, 3 * m))
                a("v_mfma_f32_16x16x32_f16 %s, %s, %s, %s" % (vr(CA + 4 * m, 4), vr(G + 4 * q, 4), vr(F + 4 * (m - q), 4), "0" if TRIM and ri == 0 and q == 0 else vr(CA + 4 * m, 4)))
                nm += 1
                if NSTA and SP0 < 0 and side2 and nm % ENV("SPM", 4) == 0: st_ld(side2.pop(0))
                if nm > 8 and side:
                    a(side.pop(0))
                    while side and side[0].startswith("s_"): a(side.pop(0))
                if ecq and nm % ECS == 0:
                    for x in ecq.pop(0): a(x)
            if q == 0 and ri in CTRY: copy_try()
            if EC and q == 0 and ri == ECR: ec_start()
            if q == 7 and (ri + 1 in CTRY or (EC and ri + 1 == ECR)): a("ds_read_u8 v164, v161 offset:%d" % Y_TR)
            if ri + 1 < 4: rg(ri + 1, q); rf(ri + 1, 7 - q)
    assert not side and not ecq
    sk_("mfma")
    a("s_setprio %d" % ENV("PPRIO", 3))
    x1, x2 = L("X"), L("X")
    a("s_cmp_lg_u32 s%d, 0" % sHF)
    a("s_cbranch_scc1 %s" % x1)
    a.begin_opt()
    for i in range(4): a("ds_write_b128 v5, %s offset:%d" % (vr(CA + 16 + 4 * i, 4), i * 1024))
    a("s_mov_b64 exec, 1")
    a("ds_write_b8 v161, v163 offset:%d" % Y_CX)
    a("s_mov_b64 exec, -1")
    a("s_branch %s" % x2)
    a.end_opt()
    a.label(x1)
    a.begin_opt()
    for i in range(4): a("ds_write_b128 v5, %s offset:%d" % (vr(CA + 4 * i, 4), i * 1024))
    a("s_mov_b64 exec, 1")
    a("ds_write_b8 v161, v163 offset:%d" % Y_CX)
    a("s_mov_b64 exec, -1")
    for i in range(16): a("v_mov_b32 v%d, v%d" % (CA + i, CA + 16 + i))
    a.end_opt()
    a.label(x2)
    if YP == 3 and "nopp" not in EXP:
        lq, lq2 = L("PP"), L("PP")
        a("s_mov_b32 s%d, %d" % (sOX, SPIN))
        a.label(lq)
        a("s_waitcnt vmcnt(0)")
        a("v_cmp_ne_u32 vcc, s%d, v169" % sNON)
        a("s_cmp_eq_u32 vcc_lo, 0")
        a("s_cbranch_scc1 %s" % lq2)
        a("s_sleep 4")
        a("s_mov_b32 exec_hi, 0")
        a("buffer_load_dword v169, v174, s[%d:%d], 0 offen offset:128 sc1" % (SWS, SWS + 3))
        a("s_mov_b64 exec, -1")
        a("s_sub_u32 s%d, s%d, 1" % (sOX, sOX)); a("s_cmp_lg_u32 s%d, 0" % sOX)
        a("s_cbranch_scc1 %s" % lq)
        a.label(lq2)
    spin_lds(165, 164, 1, slp=0)
    if "hx" in EXP: sk_("xch")
    for i in range(4): a("ds_read_b128 %s, v152 offset:%d" % (vr(CA + 16 + 4 * i, 4), i * 1024))
    for i in range(4):
        a("s_waitcnt lgkmcnt(%d)" % (3 - i))
        for pr in range(2):
            y = CA + 4 * i + 2 * pr; o = XO + 4 * i + 2 * pr
            a("v_add_f32 v%d, v%d, v%d" % (y, y, y + 16)); a("v_add_f32 v%d, v%d, v%d" % (y + 1, y + 1, y + 17))
            ks_ = "s%d" % sINV if TRIM else "v9"
            a("v_mul_f32 v%d, %s, v%d" % (y, ks_, y)); a("v_mul_f32 v%d, %s, v%d" % (y + 1, ks_, y + 1))
            a("v_cvt_pk_bf16_f32 v%d, v%d, v%d" % (y, y, y + 1))
            a("v_and_b32 v%d, 0xffff0000, v%d" % (y + 1, y)); a("v_lshlrev_b32 v%d, 16, v%d" % (y, y))
            a("v_add_f32 v%d, v%d, v%d" % (y, y, o)); a("v_add_f32 v%d, v%d, v%d" % (y + 1, y + 1, o + 1))
            a("v_cvt_pk_bf16_f32 v%d, v%d, v%d" % (72 + 2 * i + pr, y, y + 1))
        if i & 1:
            b = 72 + 4 * (i >> 1)
            a("v_permlane16_swap_b32 v%d, v%d" % (b, b + 2)); a("v_permlane16_swap_b32 v%d, v%d" % (b + 1, b + 3))
            if AL == 2: a("buffer_store_dwordx4 %s, v13, s[%d:%d], s%d offen sc1" % (vr(b, 4), SOUT, SOUT + 3, (sT0, sOW)[i >> 1]))
            else: a("buffer_store_dwordx4 %s, v13, s[%d:%d], s%d offen offset:%d %s" % (vr(b, 4), SWS, SWS + 3, sT0, (i >> 1) * 1024, os.environ.get("YSM", "sc1").replace("_", " ")))
    setf(Y_XR)
    if "hx" in EXP: sk_("yst")
    def cflag():
        if YP: return
        a("s_waitcnt vmcnt(0)")
        a("s_mov_b64 exec, 1")
        a("buffer_store_dwordx2 v[166:167], v14, s[%d:%d], 0 offen sc1" % (SWS, SWS + 3))
        a("s_mov_b64 exec, -1")
    def yld(m=True):
        if m: a("s_mov_b64 exec, s[84:85]")
        a("buffer_load_dwordx4 v[104:107], v154, s[%d:%d], s%d offen sc1" % (SWS, SWS + 3, sT2))
        if m: a("s_mov_b64 exec, s[86:87]")
        a("buffer_load_dwordx4 v[108:111], v154, s[%d:%d], s%d offen sc1" % (SWS, SWS + 3, sT3))
        if m: a("s_mov_b64 exec, -1")
    if EC:
        assert YP
        c1 = L("CO")
        a("s_setprio %d" % ENV("QPRIO", 0))
        a("s_cmp_lg_u32 s%d, 0" % sLD)
        a("s_cbranch_scc1 %s" % c1)
        a.begin_opt()
        spin_lds(161, 164, 1, slp=1, off=Y_TR)
        copy_part(0)
        a.end_opt()
        a.label(c1)
        sk_("flag")
        if ENV("CSA", 0): a("s_sleep %d" % ENV("CSA", 0))
        if ENV("YE", 1): yld(False)
        copy_part(1)
        lp, ld, le = L("CP"), L("CP"), L("CP")
        a("s_mov_b32 s%d, %d" % (sOX, SPIN))
        if ENV("YE", 1): a("s_branch %s" % le)
        else: a("s_mov_b64 s[84:85], -1"); a("s_mov_b64 s[86:87], -1")
        a.label(lp)
        yld()
        a.label(le)
        a("s_waitcnt vmcnt(0)")
        a("v_cmp_eq_u32 s[84:85], -1, v104")
        a("v_cmp_eq_u32 s[86:87], -1, v108")
        a("s_or_b64 vcc, s[84:85], s[86:87]")
        a("s_cbranch_scc0 %s" % ld)
        a("s_sleep %d" % int(os.environ.get("CSL", "8")))
        a("s_sub_u32 s%d, s%d, 1" % (sOX, sOX)); a("s_cmp_lg_u32 s%d, 0" % sOX)
        a("s_cbranch_scc1 %s" % lp)
        a.label(ld)
        sk_("polled")
        waitp(Y_XR)
        a("ds_write_b128 v5, v[104:107]")
        a("ds_write_b128 v5, v[108:111] offset:1024")
        setf(Y_YA)
        a("s_waitcnt lgkmcnt(0)")
        sk_("end")
        sk_.store(100)
        a("s_endpgm")
        return
    if ENV("COA", 2) == 1:
        cflag()
        sk_("flag")
        spin_lds(161, 164, 1, slp=1, off=Y_TR)
        copy_out()
    elif ENV("COA", 2) == 2:
        a("ds_read_u8 v164, v161 offset:%d" % Y_TR)
        a("s_waitcnt vmcnt(2) lgkmcnt(0)")
        c1 = L("CO")
        a("v_cmp_gt_u32 vcc, 1, v164")
        a("s_cbranch_vccnz %s" % c1)
        a.begin_opt()
        a("s_mov_b32 s%d, 1" % sLD)
        copy_part(0)
        a.end_opt()
        a.label(c1)
        cflag()
        sk_("flag")
        spin_lds(161, 164, 1, slp=1, off=Y_TR)
        copy_out()
    elif NSTA:
        c1, c2 = L("CO"), L("CO")
        a("ds_read_u8 v164, v161 offset:%d" % Y_TR)
        a("s_waitcnt vmcnt(2) lgkmcnt(0)")
        a("v_cmp_gt_u32 vcc, 1, v164")
        a("s_cbranch_vccnz %s" % c1)
        a.begin_opt()
        copy_out(); cflag()
        a("s_branch %s" % c2)
        a.end_opt()
        a.label(c1)
        a.begin_opt()
        cflag()
        spin_lds(161, 164, 1, slp=1, off=Y_TR)
        copy_out()
        a.end_opt()
        a.label(c2)
    else: cflag()
    if not ENV("COA", 2): sk_("flag")
    a("s_setprio 0")
    a("s_sleep %d" % int(os.environ.get("CSL0", "8")))
    lp, ld = L("CP"), L("CP")
    a("s_mov_b32 s%d, %d" % (sOX, SPIN))
    if YP:
        assert YST == 4096
        a("s_mov_b64 s[84:85], -1"); a("s_mov_b64 s[86:87], -1")
        a.label(lp)
        a("s_mov_b64 exec, s[84:85]")
        a("buffer_load_dwordx4 v[104:107], v154, s[%d:%d], s%d offen sc1" % (SWS, SWS + 3, sT2))
        a("s_mov_b64 exec, s[86:87]")
        a("buffer_load_dwordx4 v[108:111], v154, s[%d:%d], s%d offen sc1" % (SWS, SWS + 3, sT3))
        a("s_mov_b64 exec, -1")
        a("s_waitcnt vmcnt(0)")
        a("v_cmp_eq_u32 s[84:85], -1, v104")
        a("v_cmp_eq_u32 s[86:87], -1, v108")
        a("s_or_b64 vcc, s[84:85], s[86:87]")
        a("s_cbranch_scc0 %s" % ld)
        a("s_sleep %d" % int(os.environ.get("CSL", "8")))
        a("s_sub_u32 s%d, s%d, 1" % (sOX, sOX)); a("s_cmp_lg_u32 s%d, 0" % sOX)
        a("s_cbranch_scc1 %s" % lp)
        a.label(ld)
        sk_("polled")
        waitp(Y_XR)
        a("ds_write_b128 v5, v[104:107]")
        a("ds_write_b128 v5, v[108:111] offset:1024")
        setf(Y_YA)
        a("s_waitcnt lgkmcnt(0)")
        sk_("end")
        sk_.store(100)
        a("s_endpgm")
        return
    a.label(lp)
    a("s_mov_b64 exec, 0xffff")
    a("buffer_load_dwordx2 v[20:21], v153, s[%d:%d], 0 offen sc1" % (SWS, SWS + 3))
    a("s_waitcnt vmcnt(0)")
    a("v_cmp_ne_u64 vcc, s[%d:%d], v[20:21]" % (sNON, sNON + 1))
    a("s_mov_b64 exec, -1")
    a("s_cbranch_vccz %s" % ld)
    a("s_sleep %d" % int(os.environ.get("CSL", "8")))
    a("s_sub_u32 s%d, s%d, 1" % (sOX, sOX)); a("s_cmp_lg_u32 s%d, 0" % sOX)
    a("s_cbranch_scc1 %s" % lp)
    a.label(ld)
    sk_("polled")
    SY = SOUT if AL == 2 else SWS
    a("buffer_load_dwordx4 v[104:107], v154, s[%d:%d], s%d offen%s" % (SY, SY + 3, sT2, " sc1" if AL else ""))
    a("buffer_load_dwordx4 v[108:111], v154, s[%d:%d], s%d offen%s" % (SY, SY + 3, sT3, " sc1" if AL else ""))
    waitp(Y_XR)
    a("s_waitcnt vmcnt(0)")
    a("ds_write_b128 v5, v[104:107]")
    a("ds_write_b128 v5, v[108:111] offset:1024")
    setf(Y_YA)
    a("s_waitcnt lgkmcnt(0)")
    sk_("end")
    sk_.store(100)
    a("s_endpgm")

def producer(a, sp_, L, spin_lds):
    a.label("K_PROD")
    a.vmq = []
    a.nopkw = True
    if NF: a("s_memrealtime s[48:49]")
    XT_S = 912
    L_PC = 64 * XT_S
    a("v_lshrrev_b32 v2, 3, v1")
    a("v_and_b32 v3, 7, v1")
    a("s_lshr_b32 s%d, s2, 3" % sT1)
    a("s_bfe_u32 s%d, s2, 0x20001" % sT0); a("s_lshl_b32 s%d, s%d, 3" % (sR, sT0)); a("s_lshl_b32 s%d, s%d, 1" % (sT1, sT1))
    a("s_add_u32 s%d, s%d, s%d" % (sR, sR, sT1)); a("s_and_b32 s%d, s2, 1" % sT0); a("s_add_u32 s%d, s%d, s%d" % (sR, sR, sT0))
    if ENV("SWP", 1) == 1: a("s_xor_b32 s%d, s%d, 1" % (sT0, sT0))
    a("s_lshr_b32 s%d, s2, 1" % sF); a("s_min_u32 s%d, s%d, 13" % (sF, sF)); a("s_mul_i32 s%d, s%d, 14" % (sT0, sT0)); a("s_add_u32 s%d, s%d, s%d" % (sF, sF, sT0))
    a("s_lshl_b32 s%d, s%d, 3" % (sT0, sWV))
    a("v_add_u32 v4, s%d, v2" % sT0)
    a("s_lshl_b32 s%d, s%d, 6" % (sT1, sR))
    a("v_add_u32 v5, s%d, v4" % sT1)
    a("v_mul_u32_u24 v6, 896, v5")
    a("v_lshl_add_u32 v6, v3, 4, v6")
    a("s_waitcnt lgkmcnt(0)")
    srd(a, SX, 16, 2048 * 896)
    for i in range(7):
        a.vm("buffer_load_dwordx4 %s, v6, s[%d:%d], 0 offen offset:%d" % (vr(32 + 4 * i, 4), SX, SX + 3, i * 128), "x%d" % i)
    srd(a, SWS, 14, WS_SIZE)
    srd(a, SDBG, 12, 256)
    def poison():
        a("s_lshl_b32 s%d, s2, 3" % sT0); a("s_add_u32 s%d, s%d, s%d" % (sT0, sT0, sWV)); a("s_mul_i32 s%d, s%d, 7168" % (sT0, sT0))
        a("s_add_u32 s%d, s%d, %d" % (sT0, sT0, WS_YAT)); a("s_add_u32 s%d, s%d, 4096" % (sT1, sT0))
        a("v_lshlrev_b32 v140, 4, v1")
        for r in range(136, 140): a("v_mov_b32 v%d, -1" % r)
        for i in range(7):
            a.vm("buffer_store_dwordx4 v[136:139], v140, s[%d:%d], s%d offen offset:%d sc1" % (SWS, SWS + 3, (sT0, sT1)[i >> 2], (i & 3) * 1024), "poi")
    ln = L("NN")
    a("s_or_b32 s%d, s2, s%d" % (sT0, sWV))
    a("s_cbranch_scc1 %s" % ln)
    a.begin_opt()
    a("s_memrealtime s[%d:%d]" % (sNON, sNON + 1))
    a("s_waitcnt lgkmcnt(0)")
    a("s_or_b32 s%d, s%d, 0x40000000" % (sNON + 1, sNON + 1)); a("s_or_b32 s%d, s%d, 1" % (sNON, sNON))
    a("v_mov_b32 v12, s%d" % sNON); a("v_mov_b32 v13, s%d" % (sNON + 1)); a("v_mov_b32 v14, 64")
    a("s_mov_b64 exec, 1")
    a("buffer_store_dwordx2 v[12:13], v14, s[%d:%d], 0 offen sc1" % (SDBG, SDBG + 3))
    a("s_mov_b64 exec, -1")
    a.end_opt()
    a.label(ln)
    if YP == 1: poison()
    a("s_lshr_b32 s%d, s%d, 1" % (sT1, sWV))
    a("s_mul_i32 s%d, s%d, %d" % (sT1, sT1, 112 * 3584))
    a("s_lshl_b32 s%d, s%d, 7" % (sT2, sF))
    a("s_add_u32 s%d, s%d, s%d" % (sT1, sT1, sT2))
    a("v_mul_u32_u24 v9, 3584, v2")
    a("v_lshl_add_u32 v9, v3, 4, v9")
    a("v_add_u32 v9, s%d, v9" % sT1)
    a("s_bitcmp0_b32 s%d, 0" % sWV)
    a("s_cselect_b32 s%d, s32, s34" % SWG)
    a("s_cselect_b32 s%d, s33, s35" % (SWG + 1))
    a("s_and_b32 s%d, s%d, 0xffff" % (SWG + 1, SWG + 1))
    a("s_mov_b32 s%d, 0x%x" % (SWG + 2, 448 * 3584))
    a("s_mov_b32 s%d, 0x00020000" % (SWG + 3))
    wq = list(range(14))
    def ldw(n):
        for _ in range(n):
            if not wq: return
            i = wq.pop(0)
            a("s_mov_b32 s%d, %d" % (sOW, i * 8 * 3584))
            a.vm("buffer_load_dwordx4 %s, v9, s[%d:%d], s%d offen" % (vr(64 + 4 * i, 4), SWG, SWG + 3, sOW), "w%d" % i)
    a("s_mov_b32 s%d, 0x3f803f80" % sONES)
    a("v_mov_b32 v10, 0"); a("v_mov_b32 v11, 0"); a("v_mov_b32 v12, 0"); a("v_mov_b32 v13, 0")
    a("v_mul_u32_u24 v7, %d, v4" % XT_S)
    a("v_lshl_add_u32 v7, v3, 4, v7")
    a("v_lshlrev_b32 v8, 4, v5")
    a("s_lshl_b32 s%d, s2, 8" % sT2); a("s_add_u32 s%d, s%d, %d" % (sT2, sT2, WS_PF))
    a("v_lshl_add_u32 v28, v1, 13, s%d" % sT2)
    a("s_lshl_b32 s%d, s%d, 8" % (sT0, sR)); a("s_add_u32 s%d, s%d, %d" % (sT0, sT0, WS_FR))
    a("s_lshl_b32 s%d, s%d, 8" % (sT1, sF)); a("s_add_u32 s%d, s%d, %d" % (sT1, sT1, WS_FC))
    a("s_cmp_eq_u32 s%d, 0" % sWV); a("s_cselect_b32 s%d, s%d, s%d" % (sT0, sT0, sT1)); a("v_mov_b32 v29, s%d" % sT0)
    a("v_mov_b32 v30, 64")
    if ENV("PFG", 1):
        a("v_mov_b32 v141, v28"); a("v_writelane_b32 v141, s%d, 8" % sT0)
        a("s_cmp_lt_u32 s%d, 2" % sWV); a("s_cselect_b32 exec_lo, 0x1ff, 0"); a("s_mov_b32 exec_hi, 0")
        a.vm("buffer_load_dword v141, v141, s[%d:%d], 0 offen sc1" % (SWS, SWS + 3), "pfg")
        a("s_mov_b64 exec, -1")
    for i in range(7):
        a.wait_vm("x%d" % i)
        for r in range(4):
            a("v_dot2_f32_bf16 v%d, v%d, s%d, v%d" % (10 + 2 * (r & 1), 32 + 4 * i + r, sONES, 10 + 2 * (r & 1)))
            a("v_dot2_f32_bf16 v%d, v%d, v%d, v%d" % (11 + 2 * (r & 1), 32 + 4 * i + r, 32 + 4 * i + r, 11 + 2 * (r & 1)))
    ldw(ENV("PW0", 3))
    a("v_add_f32 v10, v10, v12"); a("v_add_f32 v11, v11, v13")
    for mod in ("quad_perm:[1,0,3,2]", "quad_perm:[2,3,0,1]", "row_half_mirror"):
        for r in (10, 11):
            a("v_add_f32_dpp v%d, v%d, v%d %s row_mask:0xf bank_mask:0xf" % (r, r, r, mod))
    c = math.sqrt(2 / math.pi); k1 = -2 * c * LOG2E; k2 = k1 * 0.044715
    a("v_mul_f32 v10, %s, v10" % fbits(1.0 / 448))
    a("v_mul_f32 v11, %s, v11" % fbits(1.0 / 448))
    a("v_fma_f32 v11, -v10, v10, v11")
    a("v_max_f32 v11, 0, v11")
    a("v_cvt_pk_bf16_f32 v10, v10, v11")
    a("v_lshlrev_b32 v12, 16, v10")
    a("v_and_b32 v11, 0xffff0000, v10")
    a("v_add_f32 v11, %s, v11" % fbits(1e-5))
    a("v_cvt_pk_bf16_f32 v11, v11, v11")
    a("v_lshlrev_b32 v11, 16, v11")
    a("v_sqrt_f32 v11, v11")
    a("v_cvt_pk_bf16_f32 v11, v11, v11")
    a("v_lshlrev_b32 v11, 16, v11")
    a("v_rcp_f32 v14, v11")
    a("v_sub_f32 v16, 0, v12")
    a("v_cvt_pk_bf16_f32 v24, v16, v16")
    a("v_mul_f32 v27, v11, v11")
    a("v_mul_f32 v25, %s, v14" % fbits(k1))
    a("v_mul_f32 v10, v14, v14"); a("v_mul_f32 v10, v10, v14")
    a("v_mul_f32 v26, %s, v10" % fbits(k2))
    a("s_mov_b32 s%d, %d" % (sT0, WS_RC))
    a("s_mov_b32 exec_lo, 0x01010101"); a("s_mov_b32 exec_hi, 0x01010101")
    a.vm("buffer_store_dwordx4 v[24:27], v8, s[%d:%d], s%d offen sc1" % (SWS, SWS + 3, sT0), "rc")
    a("s_cmp_lt_u32 s%d, 2" % sWV); a("s_cselect_b32 exec_lo, 1, 0"); a("s_mov_b32 exec_hi, 0")
    a("buffer_load_dwordx2 v[18:19], v30, s[%d:%d], 0 offen sc1" % (SDBG, SDBG + 3))
    a("s_mov_b64 exec, -1")
    sp_("stats")
    def xn_blk(i):
        for r in range(4):
            w = 32 + 4 * i + r; t = 20 + 2 * (r & 1)
            a("v_lshlrev_b32 v%d, 16, v%d" % (t, w)); a("v_and_b32 v%d, 0xffff0000, v%d" % (t + 1, w))
            a("v_pk_add_f32 %s, %s, v[16:17] op_sel_hi:[1,0]" % (vr(t, 2), vr(t, 2)))
            a("v_cvt_pk_bf16_f32 v%d, v%d, v%d" % (t, t, t + 1))
            a("v_and_b32 v%d, 0xffff0000, v%d" % (t + 1, t)); a("v_lshlrev_b32 v%d, 16, v%d" % (t, t))
            a("v_pk_mul_f32 %s, %s, v[14:15] op_sel_hi:[1,0]" % (vr(t, 2), vr(t, 2)))
            a("v_cvt_pk_bf16_f32 v%d, v%d, v%d" % (t, t, t + 1))
            a("v_and_b32 v%d, 0xffff0000, v%d" % (t + 1, t)); a("v_lshlrev_b32 v%d, 16, v%d" % (t, t))
            a("v_cvt_pk_f16_f32 v%d, v%d, v%d" % (w, t, t + 1))
        a("ds_write_b128 v7, %s offset:%d" % (vr(32 + 4 * i, 4), i * 128))
    PO = ENV("PO", 2)
    if PO == 1:
        for i in range(7):
            xn_blk(i); ldw(ENV("PW1", 2))
        ldw(14)
        a("v_lshrrev_b32 v4, 4, v1"); a("v_and_b32 v5, 15, v1")
        a("v_lshrrev_b32 v6, 2, v5"); a("v_lshl_add_u32 v6, v4, 3, v6")
        a("v_bfe_u32 v7, v5, 1, 1"); a("v_lshl_add_u32 v6, v7, 5, v6")
        a("v_mul_u32_u24 v6, %d, v6" % XT_S)
        a("v_and_b32 v7, 1, v5"); a("v_lshl_add_u32 v6, v7, 3, v6")
        a("s_lshl_b32 s%d, s%d, 4" % (sOX, sWV))
        a("v_add_u32 v6, s%d, v6" % sOX)
        a("s_mul_i32 s%d, s%d, %d" % (sOX, sWV, 7 * 1152)); a("s_add_u32 s%d, s%d, %d" % (sOX, sOX, L_PC + 2048))
        a("v_and_b32 v31, 7, v5"); a("v_mul_u32_u24 v31, 144, v31"); a("v_lshl_add_u32 v31, v4, 4, v31")
        a("v_lshrrev_b32 v5, 3, v5"); a("v_lshl_add_u32 v31, v5, 6, v31"); a("v_add_u32 v31, s%d, v31" % sOX)
        a("v_mul_u32_u24 v8, 144, v2"); a("v_lshl_add_u32 v8, v3, 4, v8"); a("v_add_u32 v8, s%d, v8" % sOX)
        a("v_mul_u32_u24 v7, %d, v2" % XST); a("v_lshl_add_u32 v7, v3, 4, v7")
        a("s_lshl_b32 s%d, s%d, 7" % (sT2, sR)); a("s_add_u32 s%d, s%d, %d" % (sT2, sT2, WS_XNT))
        a("s_mul_i32 s%d, s%d, %d" % (sT1, sWV, 8 * XST)); a("s_add_u32 s%d, s%d, s%d" % (sT1, sT1, sT2))
        a("s_waitcnt lgkmcnt(0)")
        sp_("xn")
        a("s_barrier")
        sp_("pbar")
        for i in range(7):
            a("ds_read_b64_tr_b16 %s, v6 offset:%d" % (vr(32 + 4 * i, 2), i * 128))
            a("ds_read_b64_tr_b16 %s, v6 offset:%d" % (vr(34 + 4 * i, 2), i * 128 + 4 * XT_S))
        for i in range(7):
            a("s_waitcnt lgkmcnt(%d)" % 12)
            a("ds_write_b128 v31, %s offset:%d" % (vr(32 + 4 * i, 4), i * 1152))
            a("ds_read_b128 %s, v8 offset:%d" % (vr(144 + 4 * i, 4), i * 1152))
        for i in range(7):
            a("s_waitcnt lgkmcnt(%d)" % (12 - 2 * i))
            a.vm("buffer_store_dwordx4 %s, v7, s[%d:%d], s%d offen sc1" % (vr(144 + 4 * i, 4), SWS, SWS + 3, sT1), "xst")
            if i < 6: a("s_add_u32 s%d, s%d, %d" % (sT1, sT1, 64 * XST))
        sp_("st")
        a("s_mov_b32 s%d, 0x3f80" % sOX); a("s_mov_b32 s%d, 0x3f800000" % sOW)
        for r in range(120, 128): a("v_mov_b32 v%d, 0" % r)
        for i in range(14):
            a.wait_vm("w%d" % i)
            for r in range(4):
                w = 64 + 4 * i + r
                a("v_dot2_f32_bf16 v%d, v%d, s%d, v%d" % (120 + 2 * r, w, sOX, 120 + 2 * r))
                a("v_dot2_f32_bf16 v%d, v%d, s%d, v%d" % (121 + 2 * r, w, sOW, 121 + 2 * r))
        for r in range(120, 128): a("v_add_f32_dpp v%d, v%d, v%d row_ror:8 row_mask:0xf bank_mask:0xf" % (r, r, r))
        for op in ("v_permlane16_swap_b32", "v_permlane32_swap_b32"):
            for r in range(8): a("v_mov_b32 v%d, v%d" % (128 + r, 120 + r))
            for r in range(8): a("%s v%d, v%d" % (op, 120 + r, 128 + r))
            for r in range(8): a("v_add_f32 v%d, v%d, v%d" % (120 + r, 120 + r, 128 + r))
        a("s_lshl_b32 s%d, s%d, 8" % (sT0, sWV))
        a("s_add_u32 s%d, s%d, %d" % (sT0, sT0, L_PC))
        a("v_lshl_add_u32 v9, v3, 5, s%d" % sT0)
        a("s_mov_b64 exec, 0xff")
        a("ds_write_b128 v9, v[120:123]"); a("ds_write_b128 v9, v[124:127] offset:16")
        a("s_mov_b64 exec, -1")
        a("s_waitcnt lgkmcnt(0)")
        sp_("sum")
        a("s_barrier")
        la = L("PA")
        a("s_cmp_lg_u32 s%d, 1" % sWV)
        a("s_cbranch_scc1 %s" % la)
        a.begin_opt()
        a("v_lshlrev_b32 v9, 2, v1")
        a("v_add_u32 v20, %d, v9" % L_PC)
        for i in range(8): a("ds_read_b32 v%d, v20 offset:%d" % (120 + i, i * 256))
        a("s_lshl_b32 s%d, s%d, 9" % (sT2, sF)); a("s_add_u32 s%d, s%d, %d" % (sT0, sT2, WS_CS)); a("s_add_u32 s%d, s%d, %d" % (sT2, sT0, CSM))
        a("v_lshlrev_b32 v9, 3, v1")
        a("s_waitcnt lgkmcnt(0)")
        for m in range(2):
            c = 120 + m; o = 128 + 2 * m
            a("v_add_f32 v%d, v%d, v%d" % (c, c, c + 2)); a("v_add_f32 v%d, v%d, v%d" % (c + 4, c + 4, c + 6))
            a("v_add_f32 v%d, v%d, v%d" % (c, c, c + 4))
            a("v_cvt_pk_bf16_f32 v%d, v%d, v%d" % (c + 2, c, c)); a("v_lshlrev_b32 v%d, 16, v%d" % (c + 2, c + 2))
            a("v_sub_f32 v%d, v%d, v%d" % (c + 2, c, c + 2))
            a("v_cvt_pk_bf16_f32 v%d, v%d, v%d" % (o, c, c + 2)); a("v_and_b32 v%d, 0xffff0000, v%d" % (c + 4, o))
            a("v_sub_f32 v%d, v%d, v%d" % (c + 2, c + 2, c + 4))
            a("v_cvt_pk_bf16_f32 v%d, v%d, 0" % (o + 1, c + 2))
            a("buffer_store_dwordx2 v[%d:%d], v9, s[%d:%d], s%d offen sc1" % (o, o + 1, SWS, SWS + 3, (sT0, sT2)[m]))
        a("s_waitcnt vmcnt(2)")
        a("s_barrier")
        get_nonce(a, L, 30, 18, pre=True)
        a("v_mov_b32 v10, s%d" % sNON)
        a("s_mov_b64 exec, 1")
        a("buffer_store_dword v10, v29, s[%d:%d], 0 offen sc1" % (SWS, SWS + 3))
        a("s_mov_b64 exec, -1")
        sp_("flagC")
        if YP != 3:
            sp_.store(100)
            a("s_endpgm")
        else: a("s_branch K_PP")
        a.end_opt()
        a.label(la)
        a("s_waitcnt vmcnt(0)"); a.vmq = []
        a("s_barrier")
        a("s_cmp_lg_u32 s%d, 0" % sWV)
        a("s_cbranch_scc1 %s" % ("K_PP" if YP == 3 else "K_END"))
        a.begin_opt()
        get_nonce(a, L, 30, 18, pre=True)
        a("v_mov_b32 v10, s%d" % sNON)
        a("s_mov_b64 exec, 0xff")
        a("buffer_store_dword v10, v28, s[%d:%d], 0 offen sc1" % (SWS, SWS + 3))
        a("s_mov_b64 exec, 1")
        a("buffer_store_dword v10, v29, s[%d:%d], 0 offen sc1" % (SWS, SWS + 3))
        a("s_mov_b64 exec, -1")
        a.end_opt()
        if YP == 3:
            a.label("K_PP")
            if ENV("PPS", 0): a("s_sleep %d" % ENV("PPS", 0))
            poison()
            a("s_waitcnt vmcnt(0)")
            a("s_barrier")
            a("s_cmp_lg_u32 s%d, 1" % sWV)
            a("s_cbranch_scc1 K_END")
            a("s_mov_b64 exec, 0xff")
            a("buffer_store_dword v10, v28, s[%d:%d], 0 offen offset:128 sc1" % (SWS, SWS + 3))
            a("s_mov_b64 exec, -1")
            sp_("flagP")
            sp_.store(100)
        return
    def xaddr(sX=sT1):
        a("v_lshrrev_b32 v4, 4, v1"); a("v_and_b32 v5, 15, v1")
        a("v_lshrrev_b32 v6, 2, v5"); a("v_lshl_add_u32 v6, v4, 3, v6")
        a("v_bfe_u32 v7, v5, 1, 1"); a("v_lshl_add_u32 v6, v7, 5, v6")
        a("v_mul_u32_u24 v6, %d, v6" % XT_S)
        a("v_and_b32 v7, 1, v5"); a("v_lshl_add_u32 v6, v7, 3, v6")
        a("s_lshl_b32 s%d, s%d, 4" % (sOX, sWV))
        a("v_add_u32 v6, s%d, v6" % sOX)
        a("s_mul_i32 s%d, s%d, %d" % (sOX, sWV, 7 * 1152)); a("s_add_u32 s%d, s%d, %d" % (sOX, sOX, L_PC + 2048))
        a("v_and_b32 v31, 7, v5"); a("v_mul_u32_u24 v31, 144, v31"); a("v_lshl_add_u32 v31, v4, 4, v31")
        a("v_lshrrev_b32 v5, 3, v5"); a("v_lshl_add_u32 v31, v5, 6, v31"); a("v_add_u32 v31, s%d, v31" % sOX)
        a("v_mul_u32_u24 v8, 144, v2"); a("v_lshl_add_u32 v8, v3, 4, v8"); a("v_add_u32 v8, s%d, v8" % sOX)
        if AL == 2:
            srd(a, SOUT, 10, 2048 * 896)
            a("v_mul_u32_u24 v7, 896, v2"); a("v_lshl_add_u32 v7, v3, 4, v7")
            a("s_lshl_b32 s%d, s%d, 3" % (sT1, sR)); a("s_add_u32 s%d, s%d, s%d" % (sT1, sT1, sWV)); a("s_mul_i32 s%d, s%d, %d" % (sT1, sT1, 8 * 896))
            return
        a("v_mul_u32_u24 v7, %d, v2" % XST); a("v_lshl_add_u32 v7, v3, 4, v7")
        a("s_lshl_b32 s%d, s%d, 7" % (sT2, sR)); a("s_add_u32 s%d, s%d, %d" % (sT2, sT2, WS_XNT))
        a("s_mul_i32 s%d, s%d, %d" % (sT1, sWV, 8 * XST)); a("s_add_u32 s%d, s%d, s%d" % (sT1, sT1, sT2))
    NXA = 7 if PO == 2 else ENV("NXA", 4)
    for i in range(NXA):
        xn_blk(i); ldw(ENV("PW1", 2))
    ldw(14)
    a("s_mov_b32 s%d, 0x3f80" % sOX); a("s_mov_b32 s%d, 0x3f800000" % sOW)
    for r in range(120, 128): a("v_mov_b32 v%d, 0" % r)
    for i in range(14):
        a.wait_vm("w%d" % i)
        for r in range(4):
            w = 64 + 4 * i + r
            a("v_dot2_f32_bf16 v%d, v%d, s%d, v%d" % (120 + 2 * r, w, sOX, 120 + 2 * r))
            a("v_dot2_f32_bf16 v%d, v%d, s%d, v%d" % (121 + 2 * r, w, sOW, 121 + 2 * r))
    for r in range(120, 128): a("v_add_f32_dpp v%d, v%d, v%d row_ror:8 row_mask:0xf bank_mask:0xf" % (r, r, r))
    for op in ("v_permlane16_swap_b32", "v_permlane32_swap_b32"):
        for r in range(8): a("v_mov_b32 v%d, v%d" % (128 + r, 120 + r))
        for r in range(8): a("%s v%d, v%d" % (op, 120 + r, 128 + r))
        for r in range(8): a("v_add_f32 v%d, v%d, v%d" % (120 + r, 120 + r, 128 + r))
    a("s_lshl_b32 s%d, s%d, 8" % (sT0, sWV))
    a("s_add_u32 s%d, s%d, %d" % (sT0, sT0, L_PC))
    a("v_lshl_add_u32 v9, v3, 5, s%d" % sT0)
    a("s_mov_b64 exec, 0xff")
    a("ds_write_b128 v9, v[120:123]"); a("ds_write_b128 v9, v[124:127] offset:16")
    a("s_mov_b64 exec, -1")
    if PO == 2: xaddr()
    lw = L("PA")
    a("s_cmp_gt_u32 s%d, 1" % sWV)
    a("s_cbranch_scc1 %s" % lw)
    a.begin_opt()
    get_nonce(a, L, 30, 18, pre=True)
    a("v_mov_b32 v10, s%d" % sNON)
    a.end_opt()
    a.label(lw)
    a("s_waitcnt vmcnt(0) lgkmcnt(0)"); a.vmq = []
    sp_("sum")
    a("s_barrier")
    sp_("pbar0")
    PFP = ENV("PFP", 0)
    def pf_all():
        srd(a, SWD, 8, 1792 * 896)
        a("s_lshr_b32 s%d, s2, 3" % sT0); a("s_lshl_b32 s%d, s%d, 3" % (sT0, sT0)); a("s_add_u32 s%d, s%d, s%d" % (sT0, sT0, sWV))
        a("s_mul_i32 s%d, s%d, %d" % (sT0, sT0, 392 * 128))
        a("v_lshlrev_b32 v141, 7, v1")
        for i in range(7):
            a("buffer_load_dword v%d, v141, s[%d:%d], s%d offen" % (142 + i, SWD, SWD + 3, sT0))
            if i < 6: a("s_add_u32 s%d, s%d, %d" % (sT0, sT0, 8192 if i < 5 else 1024))
    def pf_mid():
        srd(a, SWD, 8, 1792 * 896)
        lp_ = L("PF")
        a("s_cmp_gt_u32 s%d, 5" % sWV)
        a("s_cbranch_scc1 %s" % lp_)
        a.begin_opt()
        a("s_lshr_b32 s%d, s2, 3" % sT0); a("s_mul_i32 s%d, s%d, %d" % (sT0, sT0, 448 * 896))
        a("s_lshr_b32 s%d, s%d, 1" % (sT2, sWV)); a("s_lshl_b32 s%d, s%d, 2" % (sT2, sT2)); a("s_lshr_b32 s%d, 0x31c, s%d" % (sT2, sT2)); a("s_and_b32 s%d, s%d, 15" % (sT2, sT2))
        a("s_lshl_b32 s%d, s%d, 1" % (sT2, sT2)); a("s_and_b32 s%d, s%d, 1" % (sT3, sWV)); a("s_add_u32 s%d, s%d, s%d" % (sT2, sT2, sT3))
        a("s_mul_i32 s%d, s%d, %d" % (sT2, sT2, 16 * 896)); a("s_add_u32 s%d, s%d, s%d" % (sT0, sT0, sT2))
        a("s_add_u32 s%d, s%d, %d" % (sT2, sT0, 48 * 128))
        a("v_lshlrev_b32 v141, 7, v1")
        a("buffer_load_dword v142, v141, s[%d:%d], s%d offen" % (SWD, SWD + 3, sT0))
        a("buffer_load_dword v143, v141, s[%d:%d], s%d offen" % (SWD, SWD + 3, sT2))
        a.end_opt()
        a.label(lp_)
    if PFP == 2:
        lp_ = L("PF")
        a("s_cmp_lt_u32 s%d, 2" % sWV)
        a("s_cbranch_scc1 %s" % lp_)
        a.begin_opt()
        pf_all()
        a.end_opt()
        a.label(lp_)
    la = L("PA")
    a("s_cmp_lg_u32 s%d, 1" % sWV)
    a("s_cbranch_scc1 %s" % la)
    a.begin_opt()
    a("v_lshlrev_b32 v9, 2, v1")
    a("v_add_u32 v20, %d, v9" % L_PC)
    for i in range(8): a("ds_read_b32 v%d, v20 offset:%d" % (120 + i, i * 256))
    a("s_lshl_b32 s%d, s%d, 9" % (sT2, sF)); a("s_add_u32 s%d, s%d, %d" % (sT0, sT2, WS_CS)); a("s_add_u32 s%d, s%d, %d" % (sT2, sT0, CSM))
    a("v_lshlrev_b32 v9, 3, v1")
    a("s_waitcnt lgkmcnt(0)")
    for m in range(2):
        c = 120 + m; o = 128 + 2 * m
        a("v_add_f32 v%d, v%d, v%d" % (c, c, c + 2)); a("v_add_f32 v%d, v%d, v%d" % (c + 4, c + 4, c + 6))
        a("v_add_f32 v%d, v%d, v%d" % (c, c, c + 4))
        a("v_cvt_pk_bf16_f32 v%d, v%d, v%d" % (c + 2, c, c)); a("v_lshlrev_b32 v%d, 16, v%d" % (c + 2, c + 2))
        a("v_sub_f32 v%d, v%d, v%d" % (c + 2, c, c + 2))
        a("v_cvt_pk_bf16_f32 v%d, v%d, v%d" % (o, c, c + 2)); a("v_and_b32 v%d, 0xffff0000, v%d" % (c + 4, o))
        a("v_sub_f32 v%d, v%d, v%d" % (c + 2, c + 2, c + 4))
        a("v_cvt_pk_bf16_f32 v%d, v%d, 0" % (o + 1, c + 2))
        a("buffer_store_dwordx2 v[%d:%d], v9, s[%d:%d], s%d offen sc1" % (o, o + 1, SWS, SWS + 3, (sT0, sT2)[m]))
    a.end_opt()
    a.label(la)
    for i in range(NXA, 7):
        xn_blk(i)
        if i == min(6, NXA + ENV("NXF", 2)):
            lb = L("PA")
            a("s_cmp_gt_u32 s%d, 1" % sWV)
            a("s_cbranch_scc1 %s" % lb)
            a.begin_opt()
            a("s_waitcnt vmcnt(0)")
            a("s_mov_b64 exec, 1")
            a("buffer_store_dword v10, v29, s[%d:%d], 0 offen sc1" % (SWS, SWS + 3))
            a("s_mov_b64 exec, -1")
            if PFP == 2: pf_all()
            a.end_opt()
            a.label(lb)
            sp_("flagC")
    if PO != 2: xaddr()
    if YP == 2:
        a("s_mov_b32 s%d, s%d" % (sT3, sT1)); poison(); a("s_mov_b32 s%d, s%d" % (sT1, sT3))
    if PO == 2:
        a("s_cmp_eq_u32 s%d, 0" % sWV); a("s_cselect_b32 exec_lo, 1, 0"); a("s_mov_b32 exec_hi, 0")
        a("buffer_store_dword v10, v29, s[%d:%d], 0 offen sc1" % (SWS, SWS + 3))
        a("s_mov_b64 exec, -1")
    else:
        a("s_waitcnt lgkmcnt(0)")
        a("s_barrier")
        sp_("pbar")
    for i in range(7):
        a("ds_read_b64_tr_b16 %s, v6 offset:%d" % (vr(32 + 4 * i, 2), i * 128))
        a("ds_read_b64_tr_b16 %s, v6 offset:%d" % (vr(34 + 4 * i, 2), i * 128 + 4 * XT_S))
    for i in range(7):
        a("s_waitcnt lgkmcnt(%d)" % 12)
        a("ds_write_b128 v31, %s offset:%d" % (vr(32 + 4 * i, 4), i * 1152))
        a("ds_read_b128 %s, v8 offset:%d" % (vr(64 + 4 * i, 4), i * 1152))
    for i in range(7):
        a("s_waitcnt lgkmcnt(%d)" % (12 - 2 * i))
        if AL == 2:
            a.vm("buffer_store_dwordx4 %s, v7, s[%d:%d], s%d offen offset:%d sc1" % (vr(64 + 4 * i, 4), SOUT, SOUT + 3, sT1, i * 128), "xst")
            continue
        a.vm("buffer_store_dwordx4 %s, v7, s[%d:%d], s%d offen %s" % (vr(64 + 4 * i, 4), SWS, SWS + 3, sT1, os.environ.get("XSM", "sc1").replace("_", " ")), "xst")
        if i < 6: a("s_add_u32 s%d, s%d, %d" % (sT1, sT1, 64 * XST))
    sp_("st")
    if PO == 2:
        a("s_waitcnt vmcnt(7)")
        a("s_cmp_eq_u32 s%d, 1" % sWV); a("s_cselect_b32 exec_lo, 1, 0"); a("s_mov_b32 exec_hi, 0")
        a("buffer_store_dword v10, v29, s[%d:%d], 0 offen sc1" % (SWS, SWS + 3))
        a("s_mov_b64 exec, -1")
        sp_("flagC")
        a("s_waitcnt vmcnt(1)")
    else: a("s_waitcnt vmcnt(0)")
    a("s_barrier")
    if YP == 3:
        a("s_cmp_eq_u32 s%d, 1" % sWV); a("s_cselect_b32 exec_lo, 0xff, 0"); a("s_mov_b32 exec_hi, 0")
        a("buffer_store_dword v10, v28, s[%d:%d], 0 offen sc1" % (SWS, SWS + 3))
        a("s_mov_b64 exec, -1")
        sp_("flagB")
        if PFP == 1: pf_mid()
        if PFP == 3: pf_all()
        poison()
        a("s_waitcnt vmcnt(0)")
        a("s_barrier")
    if ENV("CPF2", 0):
        a("s_cmp_eq_u32 s%d, 1" % sWV); a("s_cselect_b32 exec_lo, 0xff, 0"); a("s_mov_b32 exec_hi, 0")
        a("buffer_store_dword v10, v28, s[%d:%d], 0 offen sc1" % (SWS, SWS + 3))
        a("s_mov_b64 exec, -1")
        sp_("flagB")
        a("s_getpc_b64 s[4:5]")
        a.label("K_PF2")
        a("s_sub_u32 s4, s4, K_PF2-K_PFB"); a("s_subb_u32 s5, s5, 0")
        a("s_lshr_b32 s%d, s2, 3" % sT0)
        a("v_lshl_add_u32 v2, s%d, 7, v0" % sT0)
        a("v_lshlrev_b32 v2, 7, v2")
        a("v_min_u32 v2, K_END-K_PFB, v2")
        for i in range(ENV("CPF2", 0)):
            if i: a("s_sleep 40")
            a("s_cmp_lt_u32 s%d, 2" % sWV); a("s_cselect_b64 exec, -1, 0")
            a("global_load_dword v255, v2, s[4:5]")
            a("s_mov_b64 exec, -1")
            a("s_waitcnt vmcnt(0)")
        a("s_cmp_lg_u32 s%d, 1" % sWV)
        a("s_cbranch_scc1 K_END")
        sp_.store(100)
        return
    if ENV("PFD", 0):
        a("s_cmp_eq_u32 s%d, 1" % sWV); a("s_cselect_b32 exec_lo, 0xff, 0"); a("s_mov_b32 exec_hi, 0")
        a("buffer_store_dword v10, v28, s[%d:%d], 0 offen sc1" % (SWS, SWS + 3))
        a("s_mov_b64 exec, -1")
        sp_("flagB")
        for _ in range(ENV("PFD", 0) - 1): a("s_sleep 64")
        a("s_lshl_b32 s%d, s2, 3" % sT0); a("s_add_u32 s%d, s%d, s%d" % (sT0, sT0, sWV)); a("s_mul_i32 s%d, s%d, 7168" % (sT0, sT0))
        a("v_lshl_add_u32 v141, v1, 7, s%d" % sT0)
        a("s_mov_b32 exec_hi, 0xffffff")
        a("global_load_dword v141, v141, s[10:11]")
        a("s_mov_b64 exec, -1")
        a("s_waitcnt vmcnt(0)")
        sp_("pfd")
        a("s_cmp_lg_u32 s%d, 1" % sWV)
        a("s_cbranch_scc1 K_END")
        sp_.store(100)
        return
    a("s_cmp_lg_u32 s%d, 1" % sWV)
    a("s_cbranch_scc1 K_END")
    a("s_mov_b64 exec, 0xff")
    a("buffer_store_dword v10, v28, s[%d:%d], 0 offen offset:%d sc1" % (SWS, SWS + 3, 128 if YP == 3 else 0))
    a("s_mov_b64 exec, -1")
    sp_("flagB" if YP != 3 else "flagP")
    sp_.store(100)
```

```python
import math, os, sys, struct
from asmlib import Asm
def fbits(x): return "0x%08x" % struct.unpack("<I", struct.pack("<f", x))[0]
LOG2E = math.log2(math.e)
def vr(b, n=1): return "v%d" % b if n == 1 else "v[%d:%d]" % (b, b + n - 1)
EXP = os.environ.get('EXP', '')
STAMP = int(os.environ.get("STAMP", "0"))
RT = os.environ.get("RT", "")
MAPB = int(os.environ.get("MAPB", "0"))
WS_H = 0; WS_XNT = 8 << 20; WS_KREV = 12 << 20; WS_KSC = 16 << 20
WS_HF = 17 << 20
WS_CF = (17 << 20) + (1 << 19)
WS_PF = 18 << 20
WS_FR = WS_PF + 131072
WS_FC = WS_FR + 8192
WS_RC = 19 << 20; WS_CS = (19 << 20) + 65536
if int(os.environ.get("CMPW", "0")):
    WS_HF = 7 << 20; WS_CF = WS_HF + (1 << 18); WS_PF = WS_CF + (1 << 17); WS_FR = WS_PF + 131072; WS_FC = WS_FR + 8192
    WS_RC = WS_FC + 8192; WS_CS = WS_RC + 65536
WS_YAT = 20 << 20; WS_DBG = 24 << 20; WS_SIZE = 32 << 20
KSTRIDE = 4160
SPIN = 0x8000

def srd(a, d, p, nbytes):
    a("s_mov_b32 s%d, s%d" % (d, p))
    a("s_and_b32 s%d, s%d, 0xffff" % (d + 1, p + 1))
    a("s_mov_b32 s%d, 0x%x" % (d + 2, nbytes))
    a("s_mov_b32 s%d, 0x00020000" % (d + 3))

SX, SWG, SWU, SWS, SWD, SOUT, SDBG = 40, 44, 48, 52, 56, 60, 64
sWV, sR, sF, sWR, sWC, sRT2, sCT = 68, 69, 70, 71, 72, 73, 74
sLD = 75
sT0, sT1, sT2, sT3 = 76, 77, 78, 79
sOX, sOW, sWB, sCNT = 80, 81, 82, 83
sNON = 84
sPM = 86
sCH, sHF, sKW, sSC, sINV = 3, 4, 5, 6, 7
sONES, sCVB, sSTG = 38, 39, 36
STB = 88

class Stamps:
    def __init__(self, a, base=None):
        self.a = a; self.n = base.n if base else 0; self.names = list(base.names) if base else []; self.ffn = False
    def __call__(self, name):
        if os.environ.get("MEAS") == name and self.ffn:
            self.a("s_memrealtime s[100:101]"); self.a("s_waitcnt lgkmcnt(0)"); self.a("s_mov_b32 s99, s100")
        if not STAMP: return
        if RT == "1" and name not in ("start", "end"): return
        if "su" in EXP and self.n >= 11 and name != "end": return
        if "f2a" in EXP and not (name in ("start", "flag1", "hpoll") or (name[:2] == "s_" and int(name[2:]) < 9)) and self.ffn: return
        if "f2b" in EXP and not (name in ("start", "f2end", "end") or (name[:2] == "s_" and int(name[2:]) >= 5)) and self.ffn: return
        if name[:2] == "s_" and "f2" not in EXP: return
        if name[:2] == "l_" and "lp" not in EXP: return
        if name[:2] == "u_" and "sv" not in EXP: return
        if "sv" in EXP and self.ffn and not (name[:2] == "u_" or name in ("start", "st0", "loopend", "end")): return
        if "lp" in EXP and self.ffn and not (name[:2] == "l_" or name in ("start", "st0", "loopend", "gelu")): return
        assert self.n < 12, name
        self.a("%s s[100:101]" % ("s_memrealtime" if RT else "s_memtime"))
        self.a("s_waitcnt lgkmcnt(0)")
        self.a("s_mov_b32 s%d, s100" % (STB + self.n))
        self.n += 1; self.names.append(name)
    def store(self, vt):
        if not STAMP: return
        a = self.a
        a("s_lshl_b32 s100, s2, 4"); a("s_add_u32 s100, s100, s%d" % sWV); a("s_lshl_b32 s100, s100, 6")
        a("s_add_u32 s100, s100, %d" % WS_DBG)
        a("s_mov_b64 exec, 1")
        a("v_mov_b32 v%d, s100" % vt)
        for i in range(self.n):
            a("v_mov_b32 v%d, s%d" % (vt + 1, STB + i))
            a("buffer_store_dword v%d, v%d, s[%d:%d], 0 offen offset:%d" % (vt + 1, vt, SWS, SWS + 3, 4 * i))
            a("s_waitcnt vmcnt(0)")
        a("s_mov_b64 exec, -1")

ENV = lambda k, d: int(os.environ.get(k, str(d)))
L_W = 0
L_X = [65536, 98304 + 17408, 81920]
RING = 98304
STG_W = 4352; L_STG = RING
L_CV = RING + 4 * STG_W
CPS = 4160; O_U = 4 * CPS; CV_CH = O_U + 4608
L_SYNC = L_CV + 2 * CV_CH
L_FL = L_SYNC + 512
FLS = 320
KT = ENV("KT", 0)
MIX = ENV("MIX", 0)
LDS = L_FL + (4 * FLS if KT else 256)
assert L_X[1] == L_CV and LDS <= 163840
Y_CNT = 0; Y_RDA = 8; Y_RDB = 9; Y_NON = 16; Y_KX = 24; Y_C0 = 28; Y_BL = 32; Y_CX = 36; Y_XR = 40; Y_YA = 44; Y_KEXP = 48; Y_RD = 64; Y_TR = 68; Y_WS = 72; Y_U = 76
NSTA = ENV('NSTA', 5)
WDS = [32768, 49152, 81920, 0, 16384, 65536]
CSM = 1792 * 8
sFW = 36; sHD = 37
FSH = ENV('FSH', 8)

def gen():
    a = Asm()
    lab = [0]
    def L(p): lab[0] += 1; return "%s_%d" % (p, lab[0])
    st_ = Stamps(a)
    def spin_lds(addr, tmp, need, width="u8", slp=1, off=0):
        l1, l2 = L("SP"), L("SD")
        a("s_mov_b32 s%d, %d" % (sCNT, SPIN))
        a.label(l1)
        a("ds_read_%s v%d, v%d offset:%d" % (width, tmp, addr, off))
        a("s_waitcnt lgkmcnt(0)")
        a("v_cmp_gt_u32 vcc, %d, v%d" % (need, tmp))
        a("s_cbranch_vccz %s" % l2)
        if slp: a("s_sleep %d" % slp)
        a("s_sub_u32 s%d, s%d, 1" % (sCNT, sCNT))
        a("s_cmp_lg_u32 s%d, 0" % sCNT)
        a("s_cbranch_scc1 %s" % l1)
        a.label(l2)

    a("s_cmp_ge_u32 s2, 256")
    a("s_cbranch_scc1 K_END")
    st_("start")
    a("s_load_dwordx16 s[16:31], s[0:1], 0")
    a("s_load_dwordx4 s[32:35], s[0:1], 80")
    a("s_load_dwordx8 s[8:15], s[0:1], 96")
    a("v_lshrrev_b32 v1, 6, v0")
    a("v_readfirstlane_b32 s%d, v1" % sWV)
    a("v_and_b32 v1, 63, v0")
    CPF = ENV("CPF", 8)
    if CPF:
        CPW = ENV("CPW", 2)
        if CPW == 1: a("s_cmp_lg_u32 s%d, 6" % sWV)
        elif CPW == 2: a("s_cmp_ge_u32 s2, 32")
        else: a("s_cmp_ge_u32 s2, %d" % CPF)
        a("s_cbranch_scc1 K_NPF")
        a.begin_opt()
        a("s_getpc_b64 s[4:5]")
        a.label("K_PFB")
        if CPW == 1:
            a("s_lshr_b32 s6, s2, 3"); a("v_lshl_add_u32 v2, s6, 4, v1"); a("v_lshlrev_b32 v2, 7, v2"); a("s_mov_b64 exec, 0xffff")
        elif CPW == 2:
            a("s_and_b32 s6, s2, 24"); a("s_add_u32 s6, s6, s%d" % sWV); a("v_lshl_add_u32 v2, s6, 4, v1"); a("v_lshlrev_b32 v2, 7, v2"); a("s_mov_b64 exec, 0xffff")
        else: a("v_lshlrev_b32 v2, 7, v0")
        a("v_min_u32 v2, K_END-K_PFB, v2")
        a("global_load_dword v255, v2, s[4:5]")
        if CPW: a("s_mov_b64 exec, -1")
        a.end_opt()
        a.label("K_NPF")
    a("s_cmp_lt_u32 s2, 32")
    a("s_cbranch_scc1 K_PROD")
    a("s_and_b32 s%d, s2, 7" % sT0)
    a("s_lshr_b32 s%d, s2, 3" % sT1)
    a("s_sub_u32 s%d, s%d, 4" % (sT1, sT1))
    a("s_lshr_b32 s%d, s%d, 1" % (sT2, sT0)); a("s_lshl_b32 s%d, s%d, 2" % (sT2, sT2))
    a("s_and_b32 s%d, s%d, 3" % (sT3, sT1)); a("s_add_u32 s%d, s%d, s%d" % (sR, sT2, sT3))
    a("%s s%d, %s" % (("s_andn2_b32", sT2, "1, s%d" % sT0) if ENV("SWP", 1) else ("s_and_b32", sT2, "s%d, 1" % sT0))); a("s_mul_i32 s%d, s%d, 7" % (sT2, sT2))
    a("s_lshr_b32 s%d, s%d, 2" % (sCT, sT1)); a("s_add_u32 s%d, s%d, s%d" % (sF, sT2, sCT))
    a("s_lshl_b32 s%d, s%d, 2" % (sRT2, sT0)); a("s_add_u32 s%d, s%d, s%d" % (sRT2, sRT2, sT3))
    a("s_cmp_ge_u32 s%d, 4" % sWV)
    a("s_cbranch_scc1 K_HELP")
    sf_ = Stamps(a, st_); sf_.ffn = True; sh_ = Stamps(a, st_); sp_ = Stamps(a, st_)
    NST = 14
    a("s_setprio %d" % ENV("FPRIO", 2))
    a("s_and_b32 s%d, s%d, 1" % (sWR, sWV))
    a("s_lshr_b32 s%d, s%d, 1" % (sWC, sWV))
    a("s_lshl_b32 s%d, s%d, 11" % (sWB, sWV))
    a("s_lshl_b32 s%d, s%d, 12" % (sOX, sWV))
    a("v_lshrrev_b32 v2, 3, v1")
    a("s_lshl_b32 s%d, s%d, 7" % (sT0, sR))
    a("s_lshl_b32 s%d, s%d, 5" % (sT1, sWV))
    a("s_add_u32 s%d, s%d, s%d" % (sT0, sT0, sT1))
    a("v_add_u32 v2, s%d, v2" % sT0)
    a("v_mul_u32_u24 v2, 896, v2")
    a("v_lshrrev_b32 v5, 4, v1")
    a("v_xor_b32 v6, v1, v5")
    a("v_and_b32 v6, 7, v6")
    a("v_xor_b32 v7, 4, v6")
    a("v_lshl_add_u32 v3, v7, 4, v2")
    a("v_add_u32 v3, %d, v3" % (8 * 896 - 1024))
    a("v_lshl_add_u32 v2, v6, 4, v2")
    a("v_add_u32 v56, %d, v2" % (16 * 896 - 2048)); a("v_add_u32 v57, %d, v3" % (16 * 896 - 2048))
    a("v_mul_u32_u24 v4, 3584, v5")
    a("v_lshlrev_b32 v6, 2, v5")
    a("v_xor_b32 v6, v1, v6")
    a("v_and_b32 v6, 15, v6")
    a("v_lshl_add_u32 v4, v6, 4, v4")
    a("s_lshl_b32 s%d, s%d, 8" % (sT0, sF))
    if MIX:
        a("v_lshrrev_b32 v6, 3, v6"); a("v_lshl_add_u32 v4, v6, 7, v4")
        a("s_and_b32 s%d, s%d, 1" % (sT1, sF)); a("s_lshl_b32 s%d, s%d, 7" % (sT1, sT1)); a("s_sub_u32 s%d, s%d, s%d" % (sT0, sT0, sT1))
    a("s_mul_i32 s%d, s%d, %d" % (sT1, sWV, 8 * 3584)); a("s_add_u32 s%d, s%d, s%d" % (sT0, sT0, sT1))
    a("v_add_u32 v4, s%d, v4" % sT0)
    a("v_add_u32 v58, %d, v4" % (4 * 3584 - 2048))
    a("s_mul_i32 s%d, s%d, %d" % (sFW, sWV, FLS if KT else 4)); a("s_add_u32 s%d, s%d, %d" % (sFW, sFW, L_FL))
    ROT = ENV("ROT", 0); ROT1 = ENV("ROT1", 0); ROT2 = ENV("ROT2", 0)
    RJ = [3, 4, 5, 6, 7, 38, 39]
    a("s_lshl_b32 s%d, s%d, 1" % (sT0, sT3)); a("s_add_u32 s%d, s%d, s%d" % (sT0, sT0, sCT)); a("s_lshl_b32 s%d, s%d, 7" % (sT0, sT0))
    def rj(i):
        if i: a("s_add_u32 s%d, s%d, 128" % (sT0, RJ[i - 1]))
        a("s_sub_u32 s%d, s%d, 896" % (sT1, sT0)); a("s_cmp_ge_u32 s%d, 896" % sT0); a("s_cselect_b32 s%d, s%d, s%d" % (RJ[i], sT1, sT0))
    if ROT1 == 2: a("s_lshl_b32 s%d, s%d, 8" % (sT0, sT3))
    if ROT1 == 3: a("s_lshl_b32 s%d, s%d, 7" % (sT0, sCT))
    if ROT1 >= 4: a("s_and_b32 s%d, s%d, 1" % (sT0, sF)); a("s_xor_b32 s%d, s%d, %d" % (sT0, sT0, ROT1 & 1)); a("s_mul_i32 s%d, s%d, %d" % (sT0, sT0, 128 * ENV("RSH", 1)))
    if ROT1: rj(0)
    sf_("u_addr")
    a("s_waitcnt lgkmcnt(0)")
    VFL, VFA = 50, 51
    cur = {}
    def setr(r, txt):
        def f():
            if cur.get(r) != txt: cur[r] = txt; a0(txt)
        return f
    a0 = a
    sOW2, sOWX = 5, 6
    def dma_x(b):
        if ROT1: return [[setr("m0", "s_add_u32 m0, s%d, %d" % (sOX, L_X[b % 3])),
                 ("buffer_load_dwordx4 v%d, s[%d:%d], s%d offen offset:%d lds" % ((2, 3, 56, 57)[i], SX, SX + 3, RJ[b], i * 1024), ("x", b))] for i in range(4)]
        return [[setr("m0", "s_add_u32 m0, s%d, %d" % (sOX, L_X[b % 3])), setr("ox", "s_movk_i32 s%d, %d" % (sOWX, b * 128)),
                 ("buffer_load_dwordx4 v%d, s[%d:%d], s%d offen offset:%d lds" % ((2, 3, 56, 57)[i], SX, SX + 3, sOWX, i * 1024), ("x", b))] for i in range(4)]
    def dma_w(st):
        out = []
        if ROT1:
            for mat in range(2):
                for i in range(2):
                    S = (SWG, SWU)[mat]
                    out.append([setr("m0", "s_add_u32 m0, s%d, %d" % (sOX, L_W + (st % 4) * 16384 + mat * 1024)),
                                setr(sOW, "s_mul_i32 s%d, s%d, 1792" % (sOW, RJ[st >> 1]) + ("\ns_add_u32 s%d, s%d, %d" % (sOW, sOW, 32 * 3584) if st & 1 else "")),
                                ("buffer_load_dwordx4 v%d, s[%d:%d], s%d offen offset:%d lds" % ((4, 58)[i], S, S + 3, sOW, i * 2048), ("w", st))])
            return out
        for i in range(2):
            for mat in range(2):
                S = (SWG, SWU)[mat]
                if st == 0 and mat:
                    out.append([setr("m0", "s_add_u32 m0, s%d, %d" % (sOX, L_W + 1024)),
                                ("buffer_load_dwordx4 v%d, s[%d:%d], 0 offen offset:%d lds" % ((4, 58)[i], S, S + 3, i * 2048), ("w", st))])
                    continue
                so = (sOW, sOW2)[mat]
                out.append([setr("m0", "s_add_u32 m0, s%d, %d" % (sOX, L_W + (st % 4) * 16384)), setr(so, "s_mov_b32 s%d, %d" % (so, st * 32 * 3584 - mat * 1024)),
                            ("buffer_load_dwordx4 v%d, s[%d:%d], s%d offen offset:%d lds" % ((4, 58)[i], S, S + 3, so, i * 2048 + mat * 1024), ("w", st))])
        if st == 0: out = [out[0], out[2], out[1], out[3]]
        return out
    def dflag(idx):
        if not KT: return [setr("m0", "s_add_u32 m0, s%d, %d" % (sFW, 16 * idx)), "s_mov_b64 exec, 1", ("global_load_lds_dword v%d, s[0:1]" % VFL, "fl"), "s_mov_b64 exec, -1"]
        return [setr("m0", "s_mov_b32 m0, s%d" % sFW), ("global_load_lds_dword v%d, s[30:31] offset:%d" % (VFL, 4 * idx), "fl")]
    def emit(g, a=a):
        for x in g:
            if callable(x): x()
            elif isinstance(x, tuple) and x[0].startswith("ds_"): a.ds(x[0], x[1])
            elif isinstance(x, tuple): a.vm(x[0], x[1])
            else: a(x)
    srd(a, SX, 16, 2048 * 896)
    for g in dma_x(0): emit(g)
    srd(a, SWG, 32, 448 * 3584)
    srd(a, SWU, 34, 448 * 3584)
    for g in dma_w(0): emit(g)
    if ROT1:
        for i in range(1, 7): rj(i)
    if KT:
        a("v_mov_b32 v%d, 0" % VFL)
        a("s_getpc_b64 s[30:31]")
        a.label("K_TB")
        a("s_add_u32 s30, s30, K_TAB-K_TB"); a("s_addc_u32 s31, s31, 0")
    else: a("s_cmp_lg_u32 s15, 0"); a("s_cselect_b32 s%d, 31, 30" % sT0); a("s_lshl_b32 s%d, s%d, 2" % (sT0, sT0)); a("v_mov_b32 v%d, s%d" % (VFL, sT0))
    sf_("u_dma0")
    a("s_barrier")
    sf_("u_bar")
    emit(dflag(0))
    Q = []
    for k in range(1, 14):
        if k % 2 == 0: Q += [(max(0, k - 4), g) for g in dma_x(k // 2)]
        w_ = dma_w(k); w_[-1] = w_[-1] + dflag(k)
        Q += [(max(0, k - 3), g) for g in w_]
    NPRE = ENV("NPRE", 12)
    pend = [g for _, g in Q[:NPRE]]; Q = Q[NPRE:]
    a_real = a
    ILN = ENV("ILN", 4)
    class IL:
        def __init__(s_): s_.n = 0
        def __call__(s_, t):
            a_real(t); s_.n += 1
            if s_.n % ILN == 0 and pend: emit(pend.pop(0))
    a = IL()
    a("v_lshlrev_b32 v15, 2, v1")
    a("v_and_b32 v11, 3, v1"); a("v_mul_u32_u24 v%d, %d, v11" % (VFA, FLS if KT else 4)); a("v_add_u32 v11, %d, v11" % (L_SYNC + Y_CNT))
    a("v_add_u32 v%d, %d, v%d" % (VFA, L_FL + (64 if KT else 0), VFA))
    a("s_add_u32 s%d, s%d, %d" % (sT0, sWV, L_SYNC + Y_CNT)); a("v_mov_b32 v12, s%d" % sT0)
    a("v_add_u32 v13, %d, v15" % (L_SYNC + 128)); a("v_cmp_eq_u32 vcc, 0, v1"); a("v_cndmask_b32 v12, v13, v12, vcc")
    a("v_mov_b32 v10, %d" % (L_SYNC + Y_RDA))
    a("v_and_b32 v16, 31, v1")
    a("s_lshl_b32 s%d, s%d, 6" % (sT0, sWR))
    a("v_add_u32 v22, s%d, v16" % sT0)
    a("v_lshrrev_b32 v17, 5, v1")
    a("v_bfe_u32 v18, v1, 1, 3")
    a("v_xor_b32 v18, v17, v18")
    a("v_lshlrev_b32 v5, 7, v22")
    a("v_lshl_add_u32 v5, v18, 4, v5")
    a("v_add_u32 v5, 65536, v5")
    a("v_xor_b32 v6, 32, v5"); a("v_xor_b32 v7, 64, v5"); a("v_xor_b32 v8, 96, v5")
    a("v_bfe_u32 v19, v1, 2, 2")
    a("v_lshl_add_u32 v20, v17, 4, v19")
    a("v_lshlrev_b32 v9, 8, v20")
    a("v_bfe_u32 v20, v1, 4, 1"); a("v_lshlrev_b32 v20, 1, v20")
    a("v_bfe_u32 v21, v1, 1, 1"); a("v_add_u32 v20, v20, v21")
    a("s_lshl_b32 s%d, s%d, 3" % (sT0, sWC))
    a("v_add_u32 v20, s%d, v20" % sT0)
    a("v_lshlrev_b32 v21, 2, v19")
    a("v_xor_b32 v20, v20, v21")
    a("v_lshl_add_u32 v9, v20, 4, v9")
    a("v_and_b32 v21, 1, v1")
    a("v_lshl_add_u32 v9, v21, 3, v9")
    a("v_xor_b32 v0, 64, v9")
    srd(a, SWS, 14, WS_SIZE)
    srd(a, SWD, 8, 1792 * 896)
    srd(a, SOUT, 10, 2048 * 896)
    a("s_lshl_b32 s%d, s%d, 11" % (sT0, sR)); a("s_add_u32 s%d, s%d, %d" % (sT0, sT0, WS_RC))
    a("v_lshl_add_u32 v18, v22, 4, s%d" % sT0)
    if MIX:
        a("s_add_u32 s%d, s%d, s%d" % (sT0, sF, sWC)); a("s_lshl_b32 s%d, s%d, 1" % (sT0, sT0)); a("s_and_b32 s%d, s%d, 1" % (sT1, sF)); a("s_sub_u32 s%d, s%d, s%d" % (sT1, sT0, sT1))
        a("s_lshl_b32 s%d, s%d, 9" % (sT0, sT1))
    else: a("s_lshl_b32 s%d, s%d, 10" % (sT0, sF)); a("s_lshl_b32 s%d, s%d, 9" % (sT1, sWC)); a("s_add_u32 s%d, s%d, s%d" % (sT0, sT0, sT1))
    a("s_add_u32 s%d, s%d, %d" % (sT0, sT0, WS_CS))
    a("v_lshl_add_u32 v19, v16, 3, s%d" % sT0)
    a("v_lshl_add_u32 v19, v17, 2, v19")
    a("s_lshl_b32 s%d, s%d, 1" % (sT0, sR))
    a("s_add_u32 s%d, s%d, s%d" % (sT0, sT0, sWR))
    if not MIX:
        a("s_lshl_b32 s%d, s%d, 1" % (sT1, sF))
        a("s_add_u32 s%d, s%d, s%d" % (sT1, sT1, sWC))
    a("s_lshl_b32 s%d, s%d, 8" % (sT2, sT0)); a("s_add_u32 s%d, s%d, %d" % (sT2, sT2, WS_FR)); a("v_mov_b32 v15, s%d" % sT2)
    a("s_lshl_b32 s%d, s%d, 8" % (sT2, sT1)); a("s_add_u32 s%d, s%d, %d" % (sT2, sT2, WS_FC)); a("v_writelane_b32 v15, s%d, 1" % sT2)
    a("s_mul_i32 s%d, s%d, 37" % (sT3, sT1)); a("s_lshr_b32 s%d, s%d, 8" % (sT3, sT3)); a("s_add_u32 s%d, s%d, s%d" % (sT3, sT3, sT1))
    a("s_lshl_b32 s%d, s%d, 1" % (sT1, sT1))
    a("s_lshl_b32 s%d, s%d, 5" % (sT2, sT0)); a("s_add_u32 s%d, s%d, s%d" % (sT2, sT2, sT3)); a("s_lshl_b32 s%d, s%d, %d" % (sT2, sT2, FSH))
    a("s_add_u32 s%d, s%d, %d" % (sT2, sT2, WS_HF))
    a("v_mov_b32 v21, s%d" % sT2)
    a("s_mul_i32 s%d, s%d, 56" % (sT0, sT0))
    a("s_add_u32 s%d, s%d, s%d" % (sT0, sT0, sT1))
    a("s_lshl_b32 s%d, s%d, 12" % (sT0, sT0))
    a("v_and_b32 v20, 15, v1")
    a("v_lshlrev_b32 v20, 4, v20")
    a("v_bfe_u32 v22, v1, 4, 1")
    a("v_lshl_add_u32 v20, v22, 10, v20")
    a("v_lshl_add_u32 v20, v17, 8, v20")
    a("v_add_u32 v20, s%d, v20" % sT0)
    a("s_mov_b32 s%d, 0" % sLD)
    CA_, CB_ = 32, 42
    for r in range(33, 50):
        if r not in (34, 36, 38, 42, 46): a("v_mov_b32 v%d, 0" % r)
    a("v_lshrrev_b32 v16, 3, v1")
    a("s_mul_i32 s%d, s%d, %d" % (sT0, sWV, 448 * 896))
    a("v_mul_u32_u24 v16, 896, v16")
    a("s_lshl_b32 s%d, s%d, 7" % (sT1, sCT)); a("s_add_u32 s%d, s%d, s%d" % (sT0, sT0, sT1))
    a("v_add_u32 v16, s%d, v16" % sT0)
    a("v_xor_b32 v17, v1, v22"); a("v_and_b32 v17, 7, v17")
    a("v_lshl_add_u32 v52, v17, 4, v16")
    for q in range(1, 4): a("v_add_u32 v%d, %d, v52" % (52 + q, q * (8 * 896 - 1024)))
    a = a_real
    while pend: emit(pend.pop(0))
    ACC = lambda ff, mat, tt: 128 + 64 * ff + 32 * mat + 16 * tt
    FR = [80, 104]
    RC = [24, 28]
    NW = 6
    J = lambda s: 2 * (s % 7) + s // 7
    WDV = [52, 52]
    def dma_wd(s):
        if "now" in EXP and s >= 6: return []
        if s < 6:
            return [[setr("m0", "s_add_u32 m0, s%d, %d" % (sOX, WDS[s % NW])), setr(sOW, "s_mov_b32 s%d, %d" % (sOW, J(s) * 32 * 896)),
                     ("buffer_load_dwordx4 v%d, s[%d:%d], s%d offen offset:%d lds" % (52 + q, SWD, SWD + 3, sOW, q * 1024), ("wd", s))] for q in range(4)]
        return [["s_add_u32 m0, s%d, %d" % (sOX, WDS[s % NW] + q * 1024), "s_mov_b32 s%d, %d" % (sOW, (J(s) * 32 + 8 * q) * 896),
                 ("buffer_load_dwordx4 v2, s[%d:%d], s%d offen lds" % (SWD, SWD + 3, sOW), ("wd", s))] for q in range(4)]
    def rd_frags(st, kk):
        fb = FR[kk]
        slot = st % 4
        xo = L_X[(st >> 1) % 3] - 65536
        xa = 5 + 2 * (st & 1) + kk
        def wr(ff, mat):
            return [("ds_read_b64_tr_b16 %s, v%d offset:%d" % (vr(fb + 8 + 8 * ff + 4 * mat + 2 * half, 2), (9, 0)[ff], L_W + slot * 16384 + mat * 1024 + kk * 8192 + half * 2048), ("fr", st, kk, ff, mat)) for half in range(2)]
        xr = lambda tt: [("ds_read_b128 %s, v%d offset:%d" % (vr(fb + 4 * tt, 4), xa, xo + tt * 4096), ("fx", st, kk, tt))]
        return [xr(0) + wr(0, 0), xr(1), wr(0, 1), wr(1, 0), wr(1, 1)]
    def mfmas(kk, first=False):
        fb = FR[kk]
        return ["v_mfma_f32_32x32x16_bf16 %s, %s, %s, %s" % (vr(ACC(ff, mat, tt), 16), vr(fb + 8 + 8 * ff + 4 * mat, 4), vr(fb + 4 * tt, 4), "0" if first else vr(ACC(ff, mat, tt), 16))
                for ff in range(2) for mat in range(2) for tt in range(2)]
    def inter(st, kk, groups):
        for i, m in enumerate(mfmas(kk, st == 0 and kk == 0)):
            ff, mat, tt = i >> 2, (i >> 1) & 1, i & 1
            if i == 1: a.wait_ds(("fx", st, kk, 1))
            a.wait_ds(("fr", st, kk, ff, mat))
            a(m)
            for sl, g in groups:
                if sl == i: emit(g)
    def arrive(v, off=0):
        a("v_mov_b32 v13, %d" % v)
        a.ds("ds_write_b8 v12, v13 offset:%d" % off, "sig")
    deferred = []
    chk0 = [0]
    def check(v, kind):
        if "nochk" in EXP and 1 < len(a.vmq) and v < 14 and chk0[0]: return
        chk0[0] = 1
        a("s_getpc_b64 s[20:21]")
        a("v_cmp_gt_u32 vcc, %d, v%d" % (v, 14 if kind == "F" else 16))
        a("s_cbranch_vccnz K_RT_%s" % kind)
    def retries():
        a("s_mov_b32 s18, %d" % (SPIN * 4))
        a("s_branch K_RTE")
        for kind in ("R", "F"):
            r = 14 if kind == "F" else 16
            a.label("K_RT_%s" % kind)
            if ENV("RTS" + kind, 0): a("s_sleep %d" % ENV("RTS" + kind, 0))
            a("ds_read_b32 v14, v%d" % VFA if kind == "F" else "ds_read_u8 v16, v11 offset:%d" % Y_RD)
            a("s_sub_i32 s18, s18, 1"); a("s_max_i32 s18, s18, 0")
            a("s_cmp_eq_u32 s18, 0"); a("s_cselect_b32 s19, 255, 0")
            a("s_waitcnt lgkmcnt(0)")
            a("v_or_b32 v%d, s19, v%d" % (r, r))
            a("s_setpc_b64 s[20:21]")
        a.label("K_RTE")
    def const_loads():
        for tt in range(2):
            a("buffer_load_dwordx4 %s, v18, s[%d:%d], 0 offen offset:%d" % (vr(RC[tt], 4), SWS, SWS + 3, tt * 512))
        a("s_movk_i32 s%d, %d" % (sT0, CSM))
        for ff in range(2):
            a("buffer_load_dword v%d, v19, s[%d:%d], 0 offen offset:%d" % (CA_ + 4 * ff, SWS, SWS + 3, ff * 256))
            a("buffer_load_dword v%d, v19, s[%d:%d], s%d offen offset:%d" % (CA_ + 4 * ff + 2, SWS, SWS + 3, sT0, ff * 256))
        a("s_mov_b32 s%d, 1" % sLD)
    def get_non():
        a.wait_ds("non")
        a("v_readfirstlane_b32 s%d, v22" % sNON); a("v_readfirstlane_b32 s%d, v23" % (sNON + 1))
    def pollA():
        a.vm("buffer_load_dword v17, v15, s[%d:%d], 0 offen sc1" % (SWS, SWS + 3), "pf")
    def try_const():
        l = L("CL"); lo = L("CLO")
        a.wait_vm("pf")
        a("v_cmp_ne_u32 vcc, s%d, v17" % sNON)
        a("s_cbranch_vccz %s" % lo)
        a.label(l)
        a.mark("cst")
        def slow():
            a.label(lo)
            a("s_cmp_eq_u32 s%d, 0" % (sNON + 1))
            a("s_cbranch_scc1 %s" % l)
            a("s_cmp_lg_u32 s%d, 0" % sLD)
            a("s_cbranch_scc1 %s" % l)
            const_loads()
            a("s_branch %s" % l)
        deferred.append(slow)
    PA = ENV("PA", 3)
    RS = [int(c) for c in os.environ.get("RS", "01245")]
    TP = [int(c) for c in os.environ.get("TP", "9,11").split(",")]
    EARLY = ENV("EARLY", 1)
    sf_("u_pre")
    if "sv" in EXP: a.wait_vm(("x", 0)); sf_("u_x0"); a.wait_vm(("w", 0)); sf_("u_w0")
    retries()
    a("v_mov_b32 v14, 0")
    check(1, "F")
    a.dsq = []
    sf_("st0")
    a("s_setprio %d" % ENV("LPRIO", 3))
    poll = ([] if KT else ["v_add_u32 v%d, 16, v%d" % (VFA, VFA)]) + [("ds_read_b32 v14, v%d" % VFA, "pA")]
    for g in rd_frags(0, 0): emit(g)
    DMX = ENV("DMX", 6)
    if EARLY: Q += [(11, g) for g in dma_wd(0)] + [(12, g) for g in dma_wd(1) + dma_wd(2)] + [(13, g) for g in dma_wd(3)]
    SD = []
    for st in range(NST):
        D = []
        while Q and Q[0][0] <= st and len(D) < (DMX if st else 8): D.append(Q.pop(0)[1])
        SD.append(D)
    assert not Q
    if ENV("VERB", 0): print("DMA per stage", [len(d) for d in SD])
    stageD = lambda st: SD[st]
    for st in range(NST):
        if st in (7,) and not NSTA: sf_("st%d" % st)
        if st in (1, 2, 3, 4, 6, 8, 10, 12): sf_("l_%d" % st)
        D = stageD(st)
        DS = [(int(x) // 8, int(x) % 8) for x in os.environ.get("DS", "4,6,9,11,13,15").split(",")] if len(D) <= 6 else [(0, 3), (0, 5), (0, 7), (1, 1), (1, 2), (1, 4), (1, 5), (1, 7)]
        if st == 0: DS = [(0, 0), (0, 2), (0, 4), (0, 6), (1, 1), (1, 3), (1, 5), (1, 7)]
        G = []
        G += [(RS[i], g) for i, g in enumerate(rd_frags(st, 1))]
        if st + 1 in TP: G.append((5, [("ds_read_b64 v[22:23], v10 offset:%d" % (Y_NON - Y_RDA), "non")]))
        if st - 2 in TP: G.append((0, [try_const]))
        if st in TP: G.append((1, [get_non, pollA]))
        if D and st: G.append((ENV("RCK", 3), [lambda: a.wait_ds("pR"), lambda st=st: check(st, "R")]))
        G += [(DS[i][1], g) for i, g in enumerate(D) if DS[i][0] == 0]
        if st + 1 < NST: G.append((PA, poll))
        if ENV("ARS", 5) < 8: G.append((ENV("ARS", 5), [lambda st=st: arrive(st + 1, Y_RD)]))
        inter(st, 0, G)
        G = []
        if st + 1 < NST:
            G.append((0, [lambda: a.wait_ds("pA"), lambda st=st: check(st + 2 if KT else 1, "F")]))
            G += [(RS[i], g) for i, g in enumerate(rd_frags(st + 1, 0))]
        if ENV("ARS", 5) >= 8: G.append((ENV("ARS", 5) - 8, [lambda st=st: arrive(st + 1, Y_RD)]))
        G += [(DS[i][1], g) for i, g in enumerate(D) if DS[i][0] == 1]
        if st + 1 == NST or stageD(st + 1): G.append((ENV("PRS", 7), [("ds_read_u8 v16, v11 offset:%d" % Y_RD, "pR")]))
        inter(st, 1, G)
    sf_("loopend")
    a("s_setprio %d" % ENV("GPRIO", 1))
    l = L("CL"); lo = L("CLO"); l1 = L("CLP"); l2 = L("CLP")
    a("s_cmp_eq_u32 s%d, 0" % sLD)
    a("s_cbranch_scc1 %s" % lo)
    a.wait_vm("cst")
    a.label(l)
    def slow(l=l, lo=lo):
        a.label(lo)
        a("s_mov_b32 s%d, %d" % (sCNT, SPIN))
        a.label(l1)
        a("ds_read_b64 v[22:23], v10 offset:%d" % (Y_NON - Y_RDA))
        a("buffer_load_dword v17, v15, s[%d:%d], 0 offen sc1" % (SWS, SWS + 3))
        a("s_waitcnt vmcnt(0) lgkmcnt(0)")
        a("v_readfirstlane_b32 s%d, v22" % sNON); a("v_readfirstlane_b32 s%d, v23" % (sNON + 1))
        a("v_cmp_ne_u32 vcc, s%d, v17" % sNON)
        a("s_cmp_eq_u32 s%d, 0" % (sNON + 1))
        a("s_cselect_b64 s[%d:%d], -1, vcc" % (sT0, sT0 + 1))
        a("s_cmp_eq_u64 s[%d:%d], 0" % (sT0, sT0 + 1))
        a("s_cbranch_scc1 %s" % l2)
        a("s_sleep 2")
        a("s_sub_u32 s%d, s%d, 1" % (sCNT, sCNT)); a("s_cmp_lg_u32 s%d, 0" % sCNT)
        a("s_cbranch_scc1 %s" % l1)
        a.label(l2)
        const_loads()
        a("s_waitcnt vmcnt(0)")
        a("s_branch %s" % l)
    deferred.append(slow)
    for tt in range(2): a("v_mov_b32 v%d, v%d" % (CB_ + 4 * tt, RC[tt]))
    corr = ["v_mfma_f32_32x32x16_bf16 %s, %s, %s, %s" % (vr(ACC(ff, mat, tt), 16), vr(CA_ + 4 * ff + 2 * mat, 4), vr(CB_ + 4 * tt, 4), vr(ACC(ff, mat, tt), 16))
            for ff in range(2) for tt in range(2) for mat in range(2)]
    a(corr[0]); a(corr[1])
    a("v_mov_b32 v2, v52"); WDV = [2, 2]
    a("s_lshl_b32 s%d, s%d, 2" % (sT0, sRT2)); a("s_add_u32 s%d, s%d, s%d" % (sT0, sT0, sWV)); a("s_lshl_b32 s%d, s%d, %d" % (sT0, sT0, FSH + 3))
    a("s_add_u32 s%d, s%d, %d" % (sT0, sT0, WS_HF))
    a("v_lshrrev_b32 v8, 1, v1"); a("v_lshlrev_b32 v8, %d, v8" % FSH); a("v_and_b32 v14, 1, v1"); a("v_lshl_add_u32 v8, v14, 2, v8")
    a("v_add_u32 v8, s%d, v8" % sT0)
    a(corr[2])
    TRB = [[4, 5], [6, 7]]
    a("v_bfe_u32 v13, v1, 2, 2"); a("v_lshrrev_b32 v14, 4, v1")
    a("v_lshl_add_u32 v13, v14, 3, v13")
    a("v_lshlrev_b32 v13, 7, v13")
    a("v_and_b32 v14, 3, v1")
    a("v_lshl_add_u32 v13, v14, 5, v13")
    a("v_bfe_u32 v14, v1, 3, 1")
    a("v_lshl_add_u32 v13, v14, 4, v13")
    a("v_add_u32 v4, s%d, v13" % sOX)
    a("v_xor_b32 v5, 16, v4")
    a("v_add_u32 v6, 65536, v4"); a("v_add_u32 v7, 65536, v5")
    a(corr[3])
    a("s_mov_b32 s%d, %d" % (sHD, 0x2aaa if "nogate" in EXP else 0))
    a.wait_ds("pR")
    check(14, "R")
    a.dsq = []
    sf_("stats")
    NV = ENV("NV", 6); NG = ENV("NG", 0)
    GST = ENV('GST', 0)
    WBK = [160, 128, 176, 144, 64, 112] if GST else [80, 96, 32, 48, 160, 128, 176, 144]
    OB = [80, 96, 32]
    WB = {s: WBK[s] for s in range(NV)}
    def trw(s):
        a.wait_vm(("wd", s))
        hi = WDS[s % NW] >= 65536; of = WDS[s % NW] - 65536 * hi
        for ct in range(4):
            for hf in range(2):
                a.ds("ds_read_b64_tr_b16 %s, v%d offset:%d" % (vr(WB[s] + 4 * ct + 2 * hf, 2), TRB[hi][ct >> 1], of + hf * 512 + 8 * (ct & 1)), ("tw", s))
    HA = [9, 3, 0, 10]
    def hpoll(r=14, tag="hp"):
        a("s_mov_b64 exec, 0x3fff")
        a.vm("buffer_load_dword v%d, v8, s[%d:%d], 0 offen sc1" % (r, SWS, SWS + 3), tag)
        a("s_mov_b64 exec, -1")
    def flag(ff, trk=True):
        if "noflag1" in EXP and ff == 1:
            a.wait_vm(("hst", ff)); return
        if trk: a.wait_vm(("hst", ff))
        a("s_mov_b64 exec, 1")
        t = "buffer_store_dword v22, v21, s[%d:%d], 0 offen offset:%d sc1" % (SWS, SWS + 3, ff * 4)
        if trk: a.vm(t, "hfl")
        else: a(t)
        a("s_mov_b64 exec, -1")
    GD = ENV("GD", 11); GP = 9; PKG = ENV("PKG", 0)
    ev = []
    def at(t, item): ev.append((t, len(ev), item))
    BT = 8 * GP
    for i in range(4, 8): at((i - 4) * 6 + 2, corr[i])
    def sched_dma(t, s, dt=5):
        for q, g in enumerate(dma_wd(s)): at(t + q * dt, lambda g=g: emit(g))
    if EARLY:
        sched_dma(0.1, 4); sched_dma(24.1, 5)
        TW = [float(x) for x in os.environ.get("TW", "0.7,1.4,2.1,2.8,3.5,4.2,5.0,5.7").split(",")]
    else:
        for s in range(6): sched_dma(s * BT + 0.1, s)
        TW = [float(x) for x in os.environ.get("TW", "3,4,5,6,7,8").split(",")]
    if GST:
        for n in range(12):
            def ld_own(n=n):
                emit([setr(sOW, "s_mov_b32 s%d, %d" % (sOW, J(6 + n // 4) * 32 * 896)),
                      ("buffer_load_dwordx4 %s, v%d, s[%d:%d], s%d offen offset:%d" % (vr(OB[n // 4] + 4 * (n % 4), 4), 52 + n % 4, SWD, SWD + 3, sOW, (n % 4) * 1024), "own")])
            at(ENV("GT0", 60) + ENV("GTD", 10) * n + 0.2, ld_own)
    NGT = ENV("NGT", 0)
    for s in range(max(NG, NGT)):
        assert TW[s] * BT > [0, 0, 30, 30, 15 * GP + 4 * GD, 15 * GP + 8 * GD, 31 * GP + 4 * GD, 31 * GP + 8 * GD][s]
        at(TW[s] * BT, lambda s=s: trw(s))
        if s < NG:
            at(TW[s] * BT + 20, lambda s=s: a.wait_ds(("tw", s)))
            sched_dma(TW[s] * BT + 20.1, s + NW)
    at(float(os.environ.get("TF0", "7.9")) * BT - 0.5, lambda: flag(0))
    n = 0
    for ff in range(2):
        for tt in range(2):
            r0 = RC[tt]
            for qp in range(2):
                blk = n // 8
                HP = 112 + 4 * (blk & 3)
                for q2 in range(2):
                    q = 2 * qp + q2
                    for e in range(4):
                        g = ACC(ff, 0, tt) + 4 * q + e; u = ACC(ff, 1, tt) + 4 * q + e; T = 64 + (n & 15)
                        if PKG:
                            P2 = lambda r: vr(r, 2)
                            ops = [(3, "v_exp_f32 v%d, v%d" % (T, T)), (6, "v_rcp_f32 v%d, v%d" % (T, T))]
                            if e & 1 == 0:
                                ops += [(0, "v_pk_mul_f32 %s, %s, %s" % (P2(T), P2(g), P2(g))),
                                        (1, "v_pk_fma_f32 %s, %s, %s, %s op_sel:[0,0,1] op_sel_hi:[1,0,1]" % (P2(T), P2(T), P2(r0 + 2), P2(r0))),
                                        (2, "v_pk_mul_f32 %s, %s, %s" % (P2(T), P2(T), P2(g))),
                                        (4, "v_pk_mul_f32 %s, %s, %s" % (P2(g), P2(g), P2(u)))]
                            else:
                                ops += [(4.5 - GP / GD, "v_pk_fma_f32 %s, %s, %s, %s op_sel:[0,1,1] op_sel_hi:[1,1,1]" % (P2(T - 1), P2(T - 1), P2(r0 + 2), P2(r0 + 2))),
                                        (7, "v_pk_mul_f32 %s, %s, %s" % (P2(g - 1), P2(g - 1), P2(T - 1))),
                                        (8, "v_cvt_pk_bf16_f32 v%d, v%d, v%d" % (HP + 2 * q2 + e // 2, g - 1, g))]
                                ops[2] = (4, ops[2][1])
                        else:
                            ops = [(0, "v_mul_f32 v%d, v%d, v%d" % (T, g, g)),
                            (1, "v_fma_f32 v%d, v%d, v%d, v%d" % (T, T, r0 + 2, r0 + 1)),
                            (2, "v_mul_f32 v%d, v%d, v%d" % (T, T, g)),
                            (3, "v_exp_f32 v%d, v%d" % (T, T)),
                            (4, "v_mul_f32 v%d, v%d, v%d" % (g, g, u)),
                            (5, "v_fma_f32 v%d, v%d, v%d, v%d" % (T, T, r0 + 3, r0 + 3)),
                            (6, "v_rcp_f32 v%d, v%d" % (T, T)),
                            (7, "v_mul_f32 v%d, v%d, v%d" % (g, g, T))]
                            if e & 1: ops.append((8, "v_cvt_pk_bf16_f32 v%d, v%d, v%d" % (HP + 2 * q2 + e // 2, g - 1, g)))
                        for k, o in ops: at(n * GP + k * GD, o)
                        n += 1
                t = (n - 1) * GP + 8 * GD
                at(t + 4, "v_permlane32_swap_b32 v%d, v%d" % (HP, HP + 2))
                at(t + 5, "v_permlane32_swap_b32 v%d, v%d" % (HP + 1, HP + 3))
                def st_h(HP=HP, ff=ff, tt=tt, qp=qp):
                    a("s_movk_i32 s%d, %d" % (sT0, ff * 4096))
                    a.vm("buffer_store_dwordx4 %s, v20, s[%d:%d], s%d offen offset:%d %s" % (vr(HP, 4), SWS, SWS + 3, sT0, tt * 2048 + qp * 512, os.environ.get("HSM", "sc1").replace("_", " ")), ("hst", ff))
                at(t + 8, st_h)
    for t, _, it in sorted(ev, key=lambda x: (x[0], x[1])):
        if callable(it): it()
        else: a(it)
    sf_("gelu")
    A2 = lambda ct, tt: 192 + 16 * ct + 4 * tt
    free = [48] + OB if GST else [64, 112] + WBK[NV:]
    HB = {}
    def ld_h(s, trk=True):
        if ENV("VERB", 0): print("ld_h", s, free)
        if s not in HB: HB[s] = free.pop(0)
        if ROT: a("s_lshl_b32 s%d, s%d, 6" % (sOW, RJ[s % 7])); a("s_add_u32 s%d, s%d, %d" % (sOW, sOW, WS_H + (s // 7) * 4096))
        else: a("s_mov_b32 s%d, %d" % (sOW, WS_H + J(s) * 4096))
        if "hsame" in EXP: a("s_mov_b32 s%d, 0" % sOW)
        for tt in range(4):
            t = "buffer_load_dwordx4 %s, v%d, s[%d:%d], s%d offen" % (vr(HB[s] + 4 * tt, 4), HA[tt], SWS, SWS + 3, sOW)
            if trk: a.vm(t, ("h", s, tt))
            else: a(t)
    def spin_h(mask, lj, r=14, p1=None):
        lo = L("HS"); l1 = L("HS")
        def slow():
            a.label(lo)
            a("s_mov_b32 s%d, %d" % (sT3, SPIN))
            a.label(l1)
            a("s_mov_b64 exec, 0x3fff")
            a("buffer_load_dword v%d, v8, s[%d:%d], 0 offen sc1" % (r, SWS, SWS + 3))
            a("s_mov_b64 exec, -1")
            if p1 is not None:
                a("s_waitcnt vmcnt(%d)" % p1)
                a("v_cmp_ne_u32 vcc, s%d, v23" % sNON)
                a("s_and_b32 s%d, vcc_lo, 0x%x" % (sT0, mask))
                a("s_cbranch_scc0 %s" % lj)
            a("s_waitcnt vmcnt(0)")
            a("v_cmp_ne_u32 vcc, s%d, v%d" % (sNON, r))
            a("s_and_b32 s%d, vcc_lo, 0x%x" % (sT0, mask))
            a("s_cbranch_scc0 %s" % lj)
            a("s_sleep %d" % ENV("HSL", 3))
            a("s_sub_u32 s%d, s%d, 1" % (sT3, sT3)); a("s_cmp_lg_u32 s%d, 0" % sT3)
            a("s_cbranch_scc1 %s" % l1)
            a("s_branch %s" % lj)
        deferred.append(slow)
        return lo
    P0 = ENV("P0", 5)
    if P0 == 0: hpoll()
    RO = ENV("RO", 0)
    for s in range(max(NG, NGT), 3 if RO else NV): trw(s)
    a("s_mul_i32 s%d, s%d, 14" % (sT1, sWV))
    a("s_mul_i32 s%d, s%d, 56" % (sT0, sRT2))
    a("s_add_u32 s%d, s%d, s%d" % (sT0, sT0, sT1))
    a("s_lshl_b32 s%d, s%d, 12" % (sT0, sT0))
    for r in range(4):
        a("s_add_u32 s%d, s%d, %d" % (sT1, sWV, r)); a("s_and_b32 s%d, s%d, 3" % (sT1, sT1)); a("s_lshl_b32 s%d, s%d, 10" % (sT1, sT1))
        a("s_add_u32 s%d, s%d, s%d" % (sT1, sT1, sT0))
        a("v_lshl_add_u32 v%d, v1, 4, s%d" % (HA[r], sT1))
    a("v_and_b32 v17, 15, v1"); a("v_lshrrev_b32 v13, 4, v1")
    a("s_lshl_b32 s%d, s%d, 6" % (sT0, sRT2)); a("s_lshl_b32 s%d, s%d, 4" % (sT1, sWV)); a("s_add_u32 s%d, s%d, s%d" % (sT0, sT0, sT1))
    a("v_add_u32 v18, s%d, v17" % sT0)
    a("v_mul_u32_u24 v18, 896, v18")
    a("v_lshl_add_u32 v18, v13, 5, v18")
    a("s_lshl_b32 s%d, s%d, 7" % (sT0, sCT))
    a("v_add_u32 v18, s%d, v18" % sT0)
    a.vm("buffer_load_dwordx4 v[24:27], v18, s[%d:%d], 0 offen" % (SX, SX + 3), "x")
    a.vm("buffer_load_dwordx4 v[28:31], v18, s[%d:%d], 0 offen offset:16" % (SX, SX + 3), "x")
    if RO:
        if RO == 1: flag(1); sf_("flag1")
        a("s_waitcnt lgkmcnt(0)"); a.dsq = []
        for s in range(6, 9):
            for g in dma_wd(s): emit(g)
            if RO == s - 4: flag(1); sf_("flag1")
        for s in range(3, NV): trw(s)
    a("v_mul_u32_u24 v16, %d, v13" % STG_W)
    a("v_lshrrev_b32 v13, 2, v17"); a("v_lshl_add_u32 v16, v13, 7, v16")
    a("v_and_b32 v13, 1, v17"); a("v_lshl_add_u32 v16, v13, 3, v16")
    a("v_bfe_u32 v13, v17, 1, 1"); a("v_lshl_add_u32 v16, v13, 6, v16")
    a("s_add_u32 s%d, s%d, %d" % (sT1, sT1, L_STG))
    a("v_add_u32 v16, s%d, v16" % sT1)
    a("v_lshl_add_u32 v19, v1, 4, s%d" % sOX)
    arrive(1, Y_TR)
    if GST:
        a.wait_vm("own")
        for n in range(12):
            hi = WDS[n // 4] >= 65536
            if n == 8: a("v_add_u32 v13, 65536, v19")
            a.ds("ds_write_b128 v%d, %s offset:%d" % ((19, 13)[hi], vr(OB[n // 4] + 4 * (n % 4), 4), WDS[n // 4] - 65536 * hi + (n % 4) * 1024), "ow")
    if P0 == 1: hpoll()
    WB4 = ENV("WB4", 0)
    if WB4:
        a("s_waitcnt lgkmcnt(0)"); a.dsq = []
        for s in range(6, 6 + WB4):
            for g in dma_wd(s): emit(g)
    if not RO:
        flag(1)
        sf_("flag1")
    if P0 == 2: hpoll()
    a("s_setprio %d" % ENV("F2PRIO", 0))
    if not GST:
        if not RO: a("s_waitcnt lgkmcnt(0)"); a.dsq = []
        P1 = ENV("P1", 0)
        if P1 == 1: hpoll(23, "hp1")
        WO = [int(x) for x in os.environ.get("WO", "-2,-2,-2").split(",")]
        for s in range(6 + NG, 9):
            if WO[s - 6] == -2 and s >= 6 + WB4 and not RO:
                for g in dma_wd(s): emit(g)
            if P1 == s - 4: hpoll(23, "hp1")
            if P0 == s - 3:
                if ENV("PDL", 4): a("s_sleep %d" % ENV("PDL", 4))
                hpoll()
    wdq = []
    lj = L("HJ")
    a.wait_vm("hp")
    a("v_cmp_ne_u32 vcc, s%d, v14" % sNON)
    a("s_and_b32 s%d, vcc_lo, 0x1555" % sT0)
    lo = spin_h(0x1555, lj, p1=(len(a.vmq) - [t for t in range(len(a.vmq)) if a.vmq[t] == "hp1"][0]) if P1 else None)
    a("s_cbranch_scc1 %s" % lo)
    a.label(lj)
    if ENV("DLY", 0): a("s_sleep %d" % ENV("DLY", 0))
    sf_("hpoll")
    NHM = ENV("NHM", 4)
    assert NSTA == 5 and NV == 6 and not wdq
    sRDY, sISS = sHD, sLD
    WTAB = 22; WOF = list(range(8, 15)); sHM = 16
    PR = [23, 17, 2]
    def dpoll(n):
        l = L("DP")
        a("s_cmp_eq_u32 s%d, 0x2aaa" % sRDY)
        a("s_cbranch_scc1 %s" % l)
        a("s_mov_b64 exec, 0x3fff")
        a("buffer_load_dword v%d, v8, s[%d:%d], 0 offen sc1" % (PR[n % 3], SWS, SWS + 3))
        a("s_mov_b64 exec, -1")
        a.label(l)
        a.mark(("hq", n))
    def deval(n):
        a.wait_vm(("hq", n))
        a("v_cmp_eq_u32 vcc, s%d, v%d" % (sNON, PR[n % 3]))
        a("s_and_b32 s%d, vcc_lo, 0x2aaa" % sT0)
        a("s_or_b32 s%d, s%d, s%d" % (sRDY, sRDY, sT0))
    def dslow():
        a.label("K_DS")
        a("s_mov_b64 exec, 0x3fff")
        a("buffer_load_dword v14, v8, s[%d:%d], 0 offen sc1" % (SWS, SWS + 3))
        a("s_mov_b64 exec, -1")
        a("s_sub_i32 s18, s18, 1"); a("s_max_i32 s18, s18, 0")
        a("s_cmp_eq_u32 s18, 0"); a("s_cselect_b32 s19, -1, 0")
        a("s_waitcnt vmcnt(0)")
        a("v_cmp_eq_u32 vcc, s%d, v14" % sNON)
        a("s_or_b32 s19, s19, vcc_lo")
        a("s_and_b32 s19, s19, 0x2aaa")
        a("s_or_b32 s%d, s%d, s19" % (sRDY, sRDY))
        a("s_setpc_b64 s[20:21]")
    deferred.append(dslow)
    sWL = 17
    ST2 = ENV("ST2", 0)
    def wslow():
        a.label("K_WS")
        a("ds_read_u8 v14, v15 offset:%d" % Y_WS)
        a("s_sub_i32 s18, s18, 1"); a("s_max_i32 s18, s18, 0")
        a("s_cmp_eq_u32 s18, 0"); a("s_cselect_b32 s19, 3, 0")
        a("s_waitcnt lgkmcnt(0)")
        a("v_readfirstlane_b32 s%d, v14" % sWL)
        a("s_sleep 1")
        a("s_or_b32 s%d, s%d, s19" % (sWL, sWL))
        a("s_setpc_b64 s[20:21]")
    deferred.append(wslow)
    def c_issue(s):
        HB[s] = free.pop(0)
        if s < 7 or "stat" in EXP: C = [["s_mov_b32 s%d, %d" % (sOW, WS_H + J(s) * 4096)]]
        elif ST2: C = [["s_getpc_b64 s[20:21]", "s_bitcmp1_b32 s%d, %d" % (sRDY, J(s)), "s_cbranch_scc0 K_DS"], ["s_mov_b32 s%d, %d" % (sOW, WS_H + J(s) * 4096)]]
        else:
            C = [["s_getpc_b64 s[20:21]", "s_andn2_b32 s%d, s%d, s%d" % (sT0, sRDY, sISS), "s_cbranch_scc0 K_DS", "s_ff1_i32_b32 s%d, s%d" % (sT1, sT0)],
                 ["s_lshr_b32 m0, s%d, 1" % sT1, "s_lshl_b32 s%d, s%d, 12" % (sOW, sT1), "s_bitset1_b32 s%d, s%d" % (sISS, sT1), "s_movrels_b32 s%d, s%d" % (WOF[s - 7], WTAB)], []]
        for i, tt in enumerate((1, 2, 3, 0) if s == 13 else range(4)):
            ld = ("buffer_load_dwordx4 %s, v%d, s[%d:%d], s%d offen" % (vr(HB[s] + 4 * tt, 4), HA[tt], SWS, SWS + 3, sOW), ("h", s, tt))
            if "hsame" in EXP: C.append(["s_mov_b32 s%d, 0" % sOW, ld])
            elif "nold" in EXP and s >= 4: pass
            elif i == 0 or i % ENV("LB", 2): C[-1].append(ld)
            else: C.append([ld])
        return C
    def c_trw(s):
        WB[s] = free.pop(0)
        if s < 7 or "stat" in EXP:
            hi = WDS[s % NW] >= 65536; of = WDS[s % NW] - 65536 * hi
            C = [[lambda: a.wait_vm(("wd", min(s, 8)))]]
        elif ST2:
            hi = WDS[s % NW] >= 65536; of = WDS[s % NW] - 65536 * hi
            C = [[lambda: a.wait_vm(("wd", min(s, 8)))]]
            if s in (9, 12): C = [["s_getpc_b64 s[20:21]", "s_cmp_lt_u32 s%d, %d" % (sWL, 1 + (s == 12)), "s_cbranch_scc1 K_WS"], []]
            if s >= 12: hi = 1; of = (s - 12) * 4096
            if s == 12: C = C[:1] + [["v_add_u32 v%d, s%d, v%d" % (TRB[1][c2], WTAB + 5, TRB[0][c2]) for c2 in range(2)], []]
        else:
            hi = 1; of = 0
            C = [([lambda: a.wait_vm(("wd", 8))] if s == 7 else []) +
                 ["s_and_b32 s%d, s%d, 3" % (sT2, WOF[s - 7]), "s_getpc_b64 s[20:21]", "s_cmp_gt_u32 s%d, s%d" % (sT2, sWL), "s_cbranch_scc1 K_WS"],
                 ["s_sub_u32 s%d, s%d, s%d" % (WOF[s - 7], WOF[s - 7], sT2)] + ["v_add_u32 v%d, s%d, v%d" % (TRB[1][c2], WOF[s - 7], TRB[0][c2]) for c2 in range(2)], []]
        for ct in range(4):
            rd = [("ds_read_b64_tr_b16 %s, v%d offset:%d" % (vr(WB[s] + 4 * ct + 2 * hf, 2), TRB[hi][ct >> 1], of + hf * 512 + 8 * (ct & 1)), ("tw", s)) for hf in range(2)]
            if "notr" in EXP: continue
            if ct == 0: C[-1] += rd
            else: C.append(rd)
        return C
    nh = 0
    DP0 = ENV("DP0", 2)
    PI = [int(x) for x in os.environ.get("PI", "1,5,9").split(",")]
    PE = [int(x) for x in os.environ.get("PE", "5,9,11").split(",")]
    if ENV("HR", 1): a("s_andn2_b32 s%d, 0x2aaa, vcc_lo" % sRDY)
    while free and nh < NHM:
        if nh == DP0 and PI[0] < 0: dpoll(0)
        for c in c_issue(nh): emit(c)
        nh += 1
    if DP0 >= NHM and PI[0] < 0: dpoll(0)
    for s in range(6 + NG, 9):
        if WO[s - 6] == -1:
            for g in dma_wd(s): emit(g)
    a("s_mov_b32 s%d, 0" % sISS)
    a("s_mov_b32 s18, %d" % (SPIN * 2)); a("s_mov_b32 s%d, %d" % (sWL, 3 if "nows" in EXP else 0))
    for k_ in range(0 if ST2 else 5): a("s_mov_b32 s%d, %d" % (WTAB + k_, WDS[k_ + 1] + (k_ >= 2)))
    a("s_mul_i32 s%d, s%d, %d" % (sT0, sWC, CV_CH - 16384)); a("s_add_u32 s%d, s%d, s%d" % (sT0, sT0, sOX)); a("s_add_u32 s%d, s%d, %d" % (WTAB + 5, sT0, L_CV + (0 if ST2 else 2)))
    a("s_add_u32 s%d, s%d, 4096" % (WTAB + 6, WTAB + 5))
    a("s_add_u32 s%d, s%d, %d" % (sT0, sWV, L_SYNC)); a("v_mov_b32 v15, s%d" % sT0)
    nw = NV
    for r in range(1, 4):
        a("s_sub_u32 s%d, s%d, %d" % (sT1, sWV, r)); a("s_and_b32 s%d, s%d, 3" % (sT1, sT1)); a("s_lshl_b32 s%d, s%d, 12" % (sT1, sT1))
        a("v_lshl_add_u32 v%d, v1, 4, s%d" % (19 + r, sT1))
    Q2 = [[]] * ENV("PG", 0) + [[lambda: dpoll(PI.index(0))]] if 0 in PI else []
    HXS = [int(x) for x in os.environ.get("HXS", "99").split(",")]
    for s in range(6 + NG, 9):
        if WO[s - 6] == 0: Q2 += dma_wd(s)
    for s in range(14):
        a.wait_ds(("tw", s))
        gap = 0
        for tt in ((1, 2, 3, 0) if s == 13 else range(4)):
            a.wait_vm(("h", s, tt))
            for ct in range(4):
                a("v_mfma_f32_16x16x32_bf16 %s, %s, %s, %s" % (vr(A2(ct, tt), 4), vr(WB[s] + 4 * ct, 4), vr(HB[s] + 4 * tt, 4), "0" if s == 0 else vr(A2(ct, tt), 4)))
                gap += 1
                while Q2 and (len(Q2) > 16 - gap or gap == 16): emit(Q2.pop(0))
                if Q2: emit(Q2.pop(0))
                pr = {1: 0, 2: 1, 3: 2, 0: 3}[tt]
                if s == 13 and pr: a("ds_write_b128 v19, %s offset:%d" % (vr(A2(ct, pr), 4), (pr - 1) * 16384 + ct * 1024))
        sf_("s_%d" % s)
        if s == 5: sf_("s5")
        if s == 9: sf_("s9")
        free.append(HB[s]); free.append(WB[s])
        if s + 1 in PE: Q2.append([lambda n=PE.index(s + 1): deval(n)])
        if s + 1 in PI: Q2.append([lambda n=PI.index(s + 1): dpoll(n)])
        QO = ENV("QO", 0)
        qi = []; qt = []
        if nh < 14: qi += c_issue(nh); nh += 1
        if nh < 14 and s in HXS: qi += c_issue(nh); nh += 1
        if nw < 14 and nw <= s + ENV("TA", 2): qt += c_trw(nw); nw += 1
        for s_ in range(6 + NG, 9):
            if WO[s_ - 6] == s + 1: qi += dma_wd(s_)
        if QO == 0: Q2 += qi + qt
        elif QO == 1: Q2 += qt + qi
        elif QO == 2:
            while qi or qt: Q2.append((qi.pop(0) if qi else []) + (qt.pop(0) if qt else []))
        assert nw > s + 2 or nw == 14
        if s == 12: R1, R2, R3 = [free.pop(0) for _ in range(3)]
        if s == 10:
            XU, YR = [free.pop(0) for _ in range(2)]
            Q2.append([lambda: a.wait_vm("x")])
            for w in range(8):
                Q2.append(["v_lshlrev_b32 v%d, 16, v%d" % (XU + 2 * w, 24 + w), "v_and_b32 v%d, 0xffff0000, v%d" % (XU + 2 * w + 1, 24 + w)])
    arrive(17)
    a("ds_read_u8 v15, v11 offset:%d" % Y_YA)
    sf_("f2end")
    def ya_part(spin=True):
        if spin: spin_lds(11, 15, 1, slp=1, off=Y_YA)
        for q in range(4): a("ds_read_b64_tr_b16 %s, v16 offset:%d" % (vr(YR + 2 * q, 2), q * 512))
        for w in range(8):
            if w % 2 == 0: a("s_waitcnt lgkmcnt(%d)" % (3 - w // 2))
            yw = YR + w; o = XU + 2 * w; t = YR + 8 + 2 * (w & 1)
            a("v_lshlrev_b32 v%d, 16, v%d" % (t, yw)); a("v_and_b32 v%d, 0xffff0000, v%d" % (t + 1, yw))
            a("v_add_f32 v%d, v%d, v%d" % (o, o, t)); a("v_add_f32 v%d, v%d, v%d" % (o + 1, o + 1, t + 1))
            a("v_cvt_pk_bf16_f32 v%d, v%d, v%d" % (o, o, o + 1))
            a("v_and_b32 v%d, 0xffff0000, v%d" % (o + 1, o)); a("v_lshlrev_b32 v%d, 16, v%d" % (o, o))
    def red_part():
        spin_lds(11, 15, 17, slp=0)
        for ct in range(4):
            for r, R in enumerate((R1, R2, R3)):
                a("ds_read_b128 %s, v%d offset:%d" % (vr(R + 4 * ct, 4), 20 + r, r * 16384 + ct * 1024))
        for ct in range(4):
            a("s_waitcnt lgkmcnt(%d)" % (9 - 3 * ct))
            for e in range(4):
                c = 4 * ct + e
                a("v_add_f32 v%d, v%d, v%d" % (R1 + c, R1 + c, A2(ct, 0) + e)); a("v_add_f32 v%d, v%d, v%d" % (R2 + c, R2 + c, R3 + c))
            for e in range(4):
                c = 4 * ct + e
                a("v_add_f32 v%d, v%d, v%d" % (R1 + c, R1 + c, R2 + c))
            for w in range(2):
                b = R1 + 4 * ct + 2 * w
                a("v_cvt_pk_bf16_f32 v%d, v%d, v%d" % (b, b, b + 1))
                a("v_and_b32 v%d, 0xffff0000, v%d" % (b + 1, b)); a("v_lshlrev_b32 v%d, 16, v%d" % (b, b))
    e1, e2 = L("EP"), L("EP")
    a("s_waitcnt lgkmcnt(0)")
    a("v_cmp_gt_u32 vcc, 1, v15")
    a("s_cbranch_vccnz %s" % e1)
    a.begin_opt()
    ya_part(False); red_part()
    a("s_branch %s" % e2)
    a.end_opt()
    a.label(e1)
    a.begin_opt()
    red_part(); ya_part()
    a.end_opt()
    a.label(e2)
    sf_("ya")
    for hc in range(2):
        for w in range(4):
            b = R1 + 8 * hc + 2 * w; o = XU + 8 * hc + 2 * w
            a("v_add_f32 v%d, v%d, v%d" % (b, b, o)); a("v_add_f32 v%d, v%d, v%d" % (b + 1, b + 1, o + 1))
            a("v_cvt_pk_bf16_f32 v%d, v%d, v%d" % (R2 + 4 * hc + w, b, b + 1))
        a("buffer_store_dwordx4 %s, v18, s[%d:%d], 0 offen offset:%d" % (vr(R2 + 4 * hc, 4), SOUT, SOUT + 3, hc * 16) + " " + os.environ.get("OUTM", ""))
    sf_("end")
    sf_.store(24)
    if os.environ.get("MEAS"):
        a("s_sub_u32 s100, s99, s%d" % sNON)
        a("v_mov_b32 v24, s100")
        a("s_cmp_lg_u32 s%d, 0" % sWV); a("s_cbranch_scc1 K_END")
        a("s_mov_b64 exec, 1")
        a("s_lshl_b32 s100, s2, 2"); a("s_add_u32 s100, s100, %d" % WS_DBG); a("v_mov_b32 v25, s100")
        a("buffer_store_dword v24, v25, s[%d:%d], 0 offen sc1" % (SWS, SWS + 3))
    a("s_endpgm")
    for f in deferred: f()
    if KT: a.raw(".p2align 2"); a.label("K_TAB"); a.raw(".long " + ", ".join(str(i + 1) for i in range(16)))

    import gen8h
    gen8h.helper(a, sh_, L, spin_lds)
    gen8h.producer(a, sp_, L, spin_lds)
    a.label("K_END")
    a("s_endpgm")
    if STAMP: print("ffn", sf_.names, "\nhelp", sh_.names, "\nprod", sp_.names)
    return a.finalize()

def wrap(kernels):
    out = []
    for name, grid, block, lds, body, nv in kernels:
        if len(kernels) > 1: out.append("; @launch kernel=%s grid=(%d,1,1) block=(%d,1,1) lds=%d" % (name, grid, block, lds))
        else: out.append("; @launch grid=(%d,1,1) block=(%d,1,1) lds=%d" % (grid, block, lds))
    out.append('.amdgcn_target "amdgcn-amd-amdhsa--gfx950"')
    out.append(".text")
    for name, grid, block, lds, body, nv in kernels:
        out += [".globl %s" % name, ".p2align 8", ".type %s,@function" % name, "%s:" % name, body]
    out.append('.section .rodata,"a"')
    for name, grid, block, lds, body, nv in kernels:
        out += [".p2align 6", ".amdhsa_kernel %s" % name,
                "  .amdhsa_next_free_vgpr %d" % nv, "  .amdhsa_next_free_sgpr 102", "  .amdhsa_accum_offset %d" % ((nv + 3) // 4 * 4),
                "  .amdhsa_group_segment_fixed_size 0", "  .amdhsa_kernarg_size 128", "  .amdhsa_user_sgpr_count 2",
                "  .amdhsa_user_sgpr_kernarg_segment_ptr 1", "  .amdhsa_system_sgpr_workgroup_id_x 1", ".end_amdhsa_kernel"]
    return "\n".join(out) + "\n"

if __name__ == "__main__":
    sys.modules["gen8"] = sys.modules["__main__"]
    NAME = "parallel_sum__ssm_conv_s4__glu_gated_geglu__prompt_kernel"
    ks = [(NAME, 256, 512, LDS, gen(), 256)]
    if os.environ.get("MEAS"):
        b = Asm()
        b("s_cmp_ge_u32 s2, 1"); b("s_cbranch_scc1 K3_END")
        b("s_load_dwordx4 s[4:7], s[0:1], 112"); b("s_waitcnt lgkmcnt(0)")
        srd(b, 8, 6, WS_SIZE); srd(b, 12, 4, 256)
        b("v_lshlrev_b32 v1, 2, v0"); b("v_mov_b32 v10, 0")
        for i in range(4):
            b("s_mov_b32 s22, %d" % (WS_DBG + 128 + i * 256 - (32 if i == 3 else 0) * 4))
            b("buffer_load_dword v4, v1, s[8:11], s22 offen sc1"); b("s_waitcnt vmcnt(0)"); b("v_max_u32 v10, v10, v4")
        b("v_readlane_b32 s30, v10, 0")
        for l in range(1, 64):
            b("v_readlane_b32 s22, v10, %d" % l); b("s_max_u32 s30, s30, s22")
        b("s_mov_b64 exec, 1"); b("v_mov_b32 v1, 0"); b("v_mov_b32 v2, s30")
        b("buffer_store_dword v2, v1, s[12:15], 0 offen"); b("s_waitcnt vmcnt(0)")
        b("s_min_u32 s30, s30, 20000"); b("s_mul_i32 s30, s30, %d" % int(os.environ.get("DM", "4")))
        b("s_memrealtime s[24:25]"); b("s_waitcnt lgkmcnt(0)")
        b.label("K3_L")
        b("s_memrealtime s[26:27]"); b("s_waitcnt lgkmcnt(0)"); b("s_sub_u32 s28, s26, s24"); b("s_cmp_lt_u32 s28, s30"); b("s_cbranch_scc1 K3_L")
        b.label("K3_END"); b("s_endpgm")
        ks = [("k1_kernel",) + ks[0][1:], ("k3_kernel", 1, 64, 0, b.finalize(), 64)]
    open(sys.argv[1] if len(sys.argv) > 1 else "k.s", "w").write(wrap(ks))
```

```python
import math, os
from gen8 import *

XST = ENV("XST", 4096); YST = ENV("YST", 4096); YP = ENV("YP", 0)
AL = ENV("AL", 2)
if AL == 1: WS_YAT = WS_XNT
TS = 64 * 896
NF = ENV("NF", 1)
def get_nonce(a, L, va, vd, pre=False):
    l1, l2, l3 = L("GN"), L("GN"), L("GN")
    a("s_mov_b32 s%d, %d" % (sCNT, SPIN))
    if NF: a("s_mov_b32 s49, 2")
    if pre: a("s_branch %s" % l3)
    a.label(l1)
    a("buffer_load_dwordx2 v[%d:%d], v%d, s[%d:%d], 0 offen sc1" % (vd, vd + 1, va, SDBG, SDBG + 3))
    a.label(l3)
    a("s_waitcnt vmcnt(0)")
    a("v_readfirstlane_b32 s%d, v%d" % (sNON, vd)); a("v_readfirstlane_b32 s%d, v%d" % (sNON + 1, vd + 1))
    if NF:
        l4 = L("GN")
        a("s_cmp_eq_u32 s%d, 0" % (sNON + 1))
        a("s_cbranch_scc1 %s" % l4)
        a("s_sub_u32 s%d, s48, s%d" % (sT0, sNON))
        a("s_cmp_lt_i32 s%d, 800" % sT0)
        a("s_cbranch_scc1 %s" % l2)
        a("s_sub_u32 s49, s49, 1")
        a("s_cbranch_scc1 %s" % l2)
        a.label(l4)
    else:
        a("s_cmp_lg_u32 s%d, 0" % (sNON + 1))
        a("s_cbranch_scc1 %s" % l2)
    a("s_sleep 8")
    a("s_sub_u32 s%d, s%d, 1" % (sCNT, sCNT)); a("s_cmp_lg_u32 s%d, 0" % sCNT)
    a("s_cbranch_scc1 %s" % l1)
    a.label(l2)

def helper(a, sk_, L, spin_lds):
    a.label("K_HELP")
    a.vmq = []
    a("s_setprio 3")
    DK = "s[36:37]" if AL == 2 else "s[60:61]"
    a("s_load_dwordx2 %s, s[0:1], 64" % DK)
    if NF: a("s_memrealtime s[48:49]")
    a("s_sub_u32 s%d, s%d, 4" % (sKW, sWV))
    a("s_cmp_lg_u32 s%d, 7" % sWV)
    a("s_cbranch_scc1 K_NZ")
    a.begin_opt()
    a("v_lshlrev_b32 v2, 2, v1"); a("v_add_u32 v2, %d, v2" % L_SYNC); a("v_mov_b32 v3, 0")
    a("ds_write_b32 v2, v3")
    if KT: a("v_and_b32 v2, 3, v1"); a("v_mul_u32_u24 v2, %d, v2" % FLS); a("v_add_u32 v2, %d, v2" % (L_FL + 64)); a("ds_write_b32 v2, v3")
    else: a("ds_write_b32 v2, v3 offset:512")
    a.end_opt()
    a.label("K_NZ")
    a("s_and_b32 s%d, s%d, 1" % (sHF, sKW))
    a("s_lshr_b32 s%d, s%d, 1" % (sT0, sKW))
    a("s_sub_u32 s%d, s2, 32" % sCH)
    a("s_lshl_b32 s%d, s%d, 1" % (sCH, sCH))
    a("s_add_u32 s%d, s%d, s%d" % (sCH, sCH, sT0))
    a("s_mul_i32 s%d, s%d, %d" % (sCVB, sT0, CV_CH))
    a("s_add_u32 s%d, s%d, %d" % (sCVB, sCVB, L_CV))
    a("s_lshl_b32 s%d, s%d, 8" % (sT0, sCH))
    a("s_lshl_b32 s%d, s%d, 7" % (sT1, sHF))
    a("s_add_u32 s%d, s%d, s%d" % (sT0, sT0, sT1))
    a("v_add_u32 v2, s%d, v1" % sT0)
    a("v_lshlrev_b32 v2, 1, v2")
    a("s_lshl_b32 s%d, s%d, 1" % (sT1, sCH))
    a("v_mov_b32 v3, s%d" % sT1)
    a("s_waitcnt lgkmcnt(0)")
    P = [[20, 21, 22, 23, 24, 25], [120, 121, 122, 123, 124, 125]]
    a.vm("global_load_ushort v26, v3, s[30:31]", "param")
    for it in range(2):
        for i in range(6):
            a.vm("global_load_ushort v%d, v2, s[%d:%d] offset:%d" % (P[it][i], 18 + 2 * i, 19 + 2 * i, it * 128), "param")
    a.vm("global_load_ushort v160, v3, %s" % DK, "param")
    PE0, PE1 = ENV("PE0", 0), ENV("PE1", 0)
    if PE1:
        n = (PE1 - PE0) * 28 // 896
        a("s_lshl_b32 s%d, s%d, 1" % (sT0, sCH)); a("s_add_u32 s%d, s%d, s%d" % (sT0, sT0, sHF))
        a("s_mul_i32 s%d, s%d, %d" % (sT1, sT0, n * 128)); a("s_add_u32 s%d, s%d, %d" % (sT1, sT1, PE0 * 3584))
        a("v_lshl_add_u32 v253, v1, 7, s%d" % sT1)
        a("s_mov_b64 exec, 0x%x" % ((1 << n) - 1))
        a.vm("global_load_dword v250, v253, s[32:33]", "tw"); a.vm("global_load_dword v251, v253, s[34:35]", "tw")
        a("s_mov_b64 exec, -1")
    a("s_setprio %d" % int(os.environ.get("KPRIO", "2")))
    a("s_barrier")
    srd(a, SWS, 14, WS_SIZE)
    TLW = ENV("TLW", 0)
    PFA = ENV("PFA", 151); PFB = ENV("PFB", 0); PFH = ENV("PFH", 0); PFO = ENV("PFO", 0)
    def pf_w(which, trk=True):
        vm = (lambda t: a.vm(t, "tw")) if trk else a
        a("s_sub_u32 s%d, s2, 32" % sT0); a("s_lshl_b32 s%d, s%d, 2" % (sT0, sT0)); a("s_add_u32 s%d, s%d, s%d" % (sT0, sT0, sKW))
        if which == "B":
            n = (448 - PFB) * 28 // 896
            a("s_mul_i32 s%d, s%d, %d" % (sT1, sT0, n * 128)); a("s_add_u32 s%d, s%d, %d" % (sT1, sT1, PFB * 3584))
            a("v_lshl_add_u32 v253, v1, 7, s%d" % sT1)
            a("s_mov_b64 exec, 0x%x" % ((1 << n) - 1))
            vm("global_load_dword v250, v253, s[32:33]"); vm("global_load_dword v251, v253, s[34:35]")
            a("s_mov_b64 exec, -1")
        else:
            a("s_mul_i32 s%d, s%d, 1792" % (sT1, sT0))
            a("v_lshl_add_u32 v252, v1, 7, s%d" % sT1)
            a("s_mov_b64 exec, 0x3fff")
            vm("global_load_dword v252, v252, s[8:9]")
            a("s_mov_b64 exec, -1")
    def pf_c():
        a("s_and_b32 s%d, s%d, 3" % (sT0, sRT2)); a("s_mul_i32 s%d, s%d, 14" % (sT0, sT0))
        a("s_lshl_b32 s%d, s%d, 2" % (sT1, sKW)); a("s_lshr_b32 s%d, 0x331c, s%d" % (sT1, sT1)); a("s_and_b32 s%d, s%d, 15" % (sT1, sT1))
        a("s_add_u32 s%d, s%d, s%d" % (sT0, sT0, sT1)); a("s_mul_i32 s%d, s%d, 224" % (sT0, sT0)); a("s_add_u32 s%d, s%d, s%d" % (sT0, sT0, sCT)); a("s_lshl_b32 s%d, s%d, 7" % (sT0, sT0))
        a("v_mul_u32_u24 v174, 896, v1")
        a("s_cmp_lt_u32 s%d, 3" % sKW); a("s_cselect_b32 exec_lo, -1, 0"); a("s_mov_b32 exec_hi, 0")
        a("buffer_load_dword v174, v174, s[%d:%d], s%d offen" % (SWD, SWD + 3, sT0))
        a("s_mov_b64 exec, -1")
    def pf_x():
        a("s_andn2_b32 s%d, 1, s2" % sT1); a("s_lshl_b32 s%d, s%d, 1" % (sT0, sR)); a("s_add_u32 s%d, s%d, s%d" % (sT0, sT0, sT1))
        a("s_lshl_b32 s%d, s%d, 2" % (sT0, sT0)); a("s_add_u32 s%d, s%d, s%d" % (sT0, sT0, sKW)); a("s_mul_i32 s%d, s%d, %d" % (sT0, sT0, 16 * 7))
        a("s_add_u32 s%d, s%d, s%d" % (sT0, sT0, sCT)); a("s_lshl_b32 s%d, s%d, 7" % (sT0, sT0))
        a("v_mul_u32_u24 v249, 896, v1"); a("v_add_u32 v249, s%d, v249" % sT0)
        a("s_mov_b64 exec, 0xffff")
        a("global_load_dword v249, v249, s[46:47]")
        a("s_mov_b64 exec, -1")
    def pf_l(n):
        r0, nr = [(128, 64), (192, 64), (256, 64), (320, 64), (384, 64)][n]
        a("s_and_b32 s%d, s%d, 3" % (sT0, sR)); a("s_lshl_b32 s%d, s%d, 1" % (sT0, sT0)); a("s_add_u32 s%d, s%d, s%d" % (sT0, sT0, sHF))
        a("s_mul_i32 s%d, s%d, %d" % (sT0, sT0, 8 * 3584)); a("s_lshl_b32 s%d, s%d, 8" % (sT1, sF)); a("s_add_u32 s%d, s%d, s%d" % (sT0, sT0, sT1))
        a("s_add_u32 s%d, s%d, %d" % (sT0, sT0, r0 * 3584))
        a("v_add_u32 v248, s%d, v247" % sT0)
        a("s_mov_b64 exec, 0xffff")
        a("global_load_dword v246, v248, s[44:45]")
        a("s_mov_b64 exec, -1")
    def pf_f():
        if MIX:
            a("s_lshr_b32 s%d, s%d, 1" % (sT1, sKW)); a("s_add_u32 s%d, s%d, s%d" % (sT0, sF, sT1)); a("s_lshl_b32 s%d, s%d, 1" % (sT0, sT0))
            a("s_and_b32 s%d, s%d, 1" % (sT1, sF)); a("s_sub_u32 s%d, s%d, s%d" % (sT0, sT0, sT1))
        else: a("s_lshl_b32 s%d, s%d, 1" % (sT0, sF)); a("s_lshr_b32 s%d, s%d, 1" % (sT1, sKW)); a("s_add_u32 s%d, s%d, s%d" % (sT0, sT0, sT1))
        a("s_mul_i32 s%d, s%d, 37" % (sT1, sT0)); a("s_lshr_b32 s%d, s%d, 8" % (sT1, sT1)); a("s_add_u32 s%d, s%d, s%d" % (sT0, sT0, sT1))
        a("s_lshl_b32 s%d, s%d, 1" % (sT1, sR)); a("s_add_u32 s%d, s%d, s%d" % (sT1, sT1, sHF)); a("s_lshl_b32 s%d, s%d, 5" % (sT1, sT1))
        a("s_add_u32 s%d, s%d, s%d" % (sT0, sT0, sT1)); a("s_lshl_b32 s%d, s%d, %d" % (sT0, sT0, FSH)); a("s_add_u32 s%d, s%d, %d" % (sT0, sT0, WS_HF))
        a("v_mov_b32 v174, s%d" % sT0)
        a("s_and_b32 s%d, s%d, 0xfffe" % (sT0, sCH)); a("s_add_u32 s%d, s%d, s%d" % (sT0, sT0, sHF)); a("s_lshl_b32 s%d, s%d, 8" % (sT0, sT0))
        a("s_add_u32 s%d, s%d, %d" % (sT0, sT0, WS_CF))
        a("v_writelane_b32 v174, s%d, 1" % sT0)
        if ENV("PFT", 0):
            a("s_lshl_b32 s%d, s%d, 1" % (sT0, sR)); a("s_add_u32 s%d, s%d, s%d" % (sT0, sT0, sHF)); a("s_mul_i32 s%d, s%d, 56" % (sT0, sT0))
            a("s_lshl_b32 s%d, s%d, 2" % (sT1, sF)); a("s_add_u32 s%d, s%d, s%d" % (sT0, sT0, sT1))
            a("s_and_b32 s%d, s%d, 2" % (sT1, sKW)); a("s_add_u32 s%d, s%d, s%d" % (sT0, sT0, sT1)); a("s_lshl_b32 s%d, s%d, 12" % (sT0, sT0))
            a("v_writelane_b32 v174, s%d, 2" % sT0)
            a("s_add_u32 s%d, s%d, 4096" % (sT0, sT0))
            a("v_writelane_b32 v174, s%d, 3" % sT0)
        a("s_mov_b64 exec, %d" % [3, 7, 15][ENV("PFT", 0)])
        a("buffer_load_dword v174, v174, s[%d:%d], 0 offen sc1" % (SWS, SWS + 3))
        a("s_mov_b64 exec, -1")
    def pf_h(trk=True):
        a("s_lshl_b32 s%d, s%d, 1" % (sT0, sR)); a("s_add_u32 s%d, s%d, s%d" % (sT0, sT0, sHF)); a("s_mul_i32 s%d, s%d, 56" % (sT0, sT0))
        a("s_lshl_b32 s%d, s%d, 2" % (sT1, sF)); a("s_add_u32 s%d, s%d, s%d" % (sT0, sT0, sT1))
        a("s_and_b32 s%d, s%d, 2" % (sT1, sKW)); a("s_add_u32 s%d, s%d, s%d" % (sT0, sT0, sT1)); a("s_lshl_b32 s%d, s%d, 12" % (sT0, sT0))
        a("v_lshlrev_b32 v174, 7, v1")
        t = "buffer_load_dword v174, v174, s[%d:%d], s%d offen" % (SWS, SWS + 3, sT0)
        if trk: a.vm(t, "tw")
        else: a(t)
    def pf_o(trk=True):
        a("s_lshl_b32 s%d, s%d, 2" % (sT0, sRT2)); a("s_add_u32 s%d, s%d, s%d" % (sT0, sT0, sKW))
        a("s_mul_i32 s%d, s%d, %d" % (sT0, sT0, 16 * 896)); a("s_lshl_b32 s%d, s%d, 7" % (sT1, sCT)); a("s_add_u32 s%d, s%d, s%d" % (sT0, sT0, sT1))
        a("v_mul_u32_u24 v166, 896, v1"); a("v_add_u32 v166, s%d, v166" % sT0)
        a("s_mov_b64 exec, 0xffff")
        t = "global_load_dword v166, v166, s[10:11]"
        if trk: a.vm(t, "tw")
        else: a(t)
        a("s_mov_b64 exec, -1")
    PFBT = ENV("PFBT", 1)
    if PFB and PFBT == 1: pf_w("B")
    if PFA == 1: pf_w("A")
    if PFH == 1: pf_h()
    if PFO == 1: pf_o()
    if TLW:
        a("v_bfe_u32 v4, v1, 2, 1"); a("v_mul_u32_u24 v4, 56, v4"); a("v_and_b32 v5, 3, v1"); a("v_add_u32 v4, v4, v5")
        a("s_mul_i32 s%d, s%d, 112" % (sT0, sR)); a("s_lshl_b32 s%d, s%d, 2" % (sT1, sF)); a("s_add_u32 s%d, s%d, s%d" % (sT0, sT0, sT1))
        a("v_add_u32 v4, s%d, v4" % sT0); a("v_lshlrev_b32 v4, 12, v4")
        a("s_lshl_b32 s%d, s%d, %d" % (sT0, sR, 6 + FSH)); a("s_add_u32 s%d, s%d, %d" % (sT0, sT0, WS_HF + 7 * 256))
        a("v_writelane_b32 v4, s%d, 8" % sT0)
        a("s_add_u32 s%d, s%d, %d" % (sT0, sT0, 32 << FSH))
        a("v_writelane_b32 v4, s%d, 9" % sT0)
        a("s_cmp_eq_u32 s%d, 1" % sKW); a("s_cselect_b32 exec_lo, 0x3ff, 0"); a("s_mov_b32 exec_hi, 0")
        a.vm("buffer_load_dword v174, v4, s[%d:%d], 0 offen" % (SWS, SWS + 3), "tw")
        a("s_mov_b64 exec, -1")
    if TLW >= 2:
        a("s_mul_i32 s%d, s%d, %d" % (sT0, sRT2, 64 * 896)); a("s_lshl_b32 s%d, s%d, 7" % (sT1, sCT)); a("s_add_u32 s%d, s%d, s%d" % (sT0, sT0, sT1))
        a("v_mul_u32_u24 v5, %d, v1" % (4 * 896)); a("v_add_u32 v5, s%d, v5" % sT0)
        a("s_cmp_eq_u32 s%d, 2" % sKW); a("s_cselect_b32 exec_lo, 0xffff, 0"); a("s_mov_b32 exec_hi, 0")
        a.vm("global_load_dword v174, v5, s[10:11]", "tw")
        a("s_mov_b64 exec, -1")
    a("s_mul_i32 s%d, s%d, %d" % (sSTG, sKW, STG_W))
    a("s_add_u32 s%d, s%d, %d" % (sSTG, sSTG, L_STG))
    a("v_and_b32 v7, 15, v1")
    a("v_lshrrev_b32 v6, 4, v1")
    a("v_mul_u32_u24 v5, 272, v7")
    a("v_lshl_add_u32 v8, v6, 4, s%d" % sSTG)
    a("v_add_u32 v5, v5, v8")
    maps = [[0,1,2,3,4,5,6,7, 8,8,9,10,10,10,11,12],
            [0,0,0,1,1,1,2,2, 3,3,3,4,4,4,5,5],
            [6,6,6,6,6,7,7,7, 8,8,8,8,8,9,9,9],
            [10,10,10,10,10,11,11,11, 12,12,12,12,12,13,13,13]]
    XA = [12, 13, 14, 15]
    a("v_lshlrev_b32 v9, 2, v7")
    a("v_and_b32 v9, 31, v9")
    a("v_cmp_gt_u32 vcc, 8, v7")
    for t in range(4):
        lo = sum(maps[t][i] << (4 * i) for i in range(8)); hi = sum(maps[t][8 + i] << (4 * i) for i in range(8))
        a("v_mov_b32 v10, 0x%x" % hi); a("v_mov_b32 v11, 0x%x" % lo)
        a("v_cndmask_b32 v10, v10, v11, vcc")
        a("v_lshrrev_b32 v10, v9, v10")
        a("v_and_b32 v10, 15, v10")
        a("v_mul_u32_u24 v10, 272, v10")
        a("v_add_u32 v%d, v10, v8" % XA[t])
    D = lambda t, yt: 128 + 8 * t + 4 * yt
    TRIM = ENV("TRIM", 1)
    if not TRIM:
        for r in range(128, 160): a("v_mov_b32 v%d, 0" % r)
    a("s_add_u32 s%d, s%d, %d" % (sT0, sKW, L_SYNC)); a("v_mov_b32 v161, s%d" % sT0)
    a("s_xor_b32 s%d, s%d, 1" % (sT1, sKW)); a("s_add_u32 s%d, s%d, %d" % (sT1, sT1, L_SYNC)); a("v_mov_b32 v162, s%d" % sT1)
    a("v_mov_b32 v163, 1")
    srd(a, SDBG, 12, 256)
    a("s_and_b32 s%d, s2, 7" % sT0); a("s_lshl_b32 s%d, s%d, 13" % (sT0, sT0)); a("s_add_u32 s%d, s%d, %d" % (sT0, sT0, WS_PF))
    a("v_and_b32 v112, 31, v1"); a("v_lshl_add_u32 v112, v112, 8, s%d" % sT0)
    a("v_mov_b32 v113, 64")
    a("v_mov_b32 v114, %d" % (L_SYNC + Y_RDA))
    a("s_cmp_lg_u32 s%d, 0" % sKW)
    a("s_cselect_b32 s%d, 0, 1" % sPM)
    def setf(off):
        a("s_mov_b64 exec, 1")
        a("ds_write_b8 v161, v163 offset:%d" % off)
        a("s_mov_b64 exec, -1")
    def waitp(off, tmp=164, tmpa=165):
        a("v_add_u32 v%d, %d, v162" % (tmpa, off))
        spin_lds(tmpa, tmp, 1)
    hooks = {}
    kc = [0]
    def k(t):
        a(t); kc[0] += 1
        if kc[0] in hooks: hooks.pop(kc[0])()
    if NSTA:
        srd(a, SWD, 8, 1792 * 896)
        a("v_lshrrev_b32 v16, 3, v1")
        a("s_mul_i32 s%d, s%d, %d" % (sT0, sKW, 448 * 896))
        a("v_mul_u32_u24 v16, 896, v16")
        a("s_lshl_b32 s%d, s%d, 7" % (sT1, sCT)); a("s_add_u32 s%d, s%d, s%d" % (sT0, sT0, sT1))
        a("v_add_u32 v16, s%d, v16" % sT0)
        a("v_bfe_u32 v18, v1, 4, 1"); a("v_xor_b32 v17, v1, v18"); a("v_and_b32 v17, 7, v17")
        a("v_lshl_add_u32 v170, v17, 4, v16")
    def st_ld(n):
        s_ = 14 - NSTA + n // 4; q = n % 4
        a("s_mov_b32 s%d, %d" % (sOW, ((2 * (s_ % 7) + s_ // 7) * 32 + 8 * q) * 896))
        a("buffer_load_dwordx4 %s, v%d, s[%d:%d], s%d offen" % (vr(176 + 4 * n, 4), 170, SWD, SWD + 3, sOW))
    SP0 = ENV("SP0", 300); SPD = ENV("SPD", 20)
    if SP0 >= 0:
        for n in range(4 * NSTA): hooks[SP0 + SPD * n] = lambda n=n: (st_ld(n), nst.append(n))
    if PFA > 1: hooks[PFA] = lambda: pf_w("A", False)
    if PFB and PFBT > 1: hooks[PFBT] = lambda: pf_w("B", False)
    if ENV("PFX", 0):
        a("s_mov_b64 s[46:47], s[16:17]")
        hooks[ENV("PFX", 0)] = pf_x
    if ENV("PFL", 0):
        a("s_bitcmp1_b32 s%d, 1" % sKW); a("s_cselect_b64 s[44:45], s[34:35], s[32:33]")
        a("v_lshrrev_b32 v247, 1, v1"); a("v_mul_u32_u24 v247, 3584, v247"); a("v_and_b32 v248, 1, v1"); a("v_lshl_add_u32 v247, v248, 7, v247")
        for n in range(5): hooks[ENV("PFL", 0) + ENV("PFLD", 60) * n] = lambda n=n: pf_l(n)
    if ENV("PFC", 0): hooks[ENV("PFC", 0)] = pf_c
    if ENV("PFF", 153): hooks[ENV("PFF", 153)] = pf_f
    if PFH > 1: hooks[PFH] = lambda: pf_h(False)
    if PFO > 1: hooks[PFO] = lambda: pf_o(False)
    nst = []
    a("v_lshlrev_b32 v172, 4, v1")
    if AL == 2:
        srd(a, SOUT, 10, 2048 * 896)
        a("v_lshrrev_b32 v16, 3, v1"); a("v_mul_u32_u24 v16, %d, v16" % (TS - 128)); a("v_add_u32 v172, v172, v16")
    a("s_cmp_lg_u32 s15, 0"); a("s_cselect_b32 s%d, 31, 30" % sT0); a("s_lshl_b32 s%d, s%d, 2" % (sT0, sT0)); a("v_mov_b32 v173, s%d" % sT0)
    def u_poll():
        a("s_cmp_lg_u32 s%d, 0" % sPM); a("s_cselect_b32 exec_lo, -1, 0"); a("s_mov_b32 exec_hi, 0")
        a("buffer_load_dword v169, v112, s[%d:%d], 0 offen sc1" % (SWS, SWS + 3))
        a("s_mov_b64 exec, -1")
        del nst[:]
    def u_dma():
        if AL == 2:
            a("s_and_b32 s%d, s%d, 63" % (sOW, sCH)); a("s_mul_i32 s%d, s%d, 7" % (sOW, sOW)); a("s_lshr_b32 s%d, s%d, 6" % (sPM, sCH))
            a("s_add_u32 s%d, s%d, s%d" % (sOW, sOW, sPM)); a("s_lshl_b32 s%d, s%d, 7" % (sOW, sOW))
            for c in range(2):
                a("s_mov_b32 m0, %d" % (L_CV + c * CV_CH + O_U + 480))
                for q in range(4):
                    a("buffer_load_dwordx4 v172, s[%d:%d], s%d offen offset:%d lds" % (SOUT, SOUT + 3, sOW, q * 1024))
                    if q < 3: a("s_add_u32 s%d, s%d, %d" % (sOW, sOW, 8 * TS - 1024))
                    elif c == 0: a("s_sub_u32 s%d, s%d, %d" % (sOW, sOW, 3 * (8 * TS - 1024) - 896))
        else:
            a("s_mul_i32 s%d, s%d, %d" % (sOW, sCH, XST))
            a("s_add_u32 s%d, s%d, %d" % (sOW, sOW, WS_XNT))
        for c in range(2 if AL != 2 else 0):
            a("s_mov_b32 m0, %d" % (L_CV + c * CV_CH + O_U + 480))
            if c: a("s_add_u32 s%d, s%d, %d" % (sOW, sOW, XST))
            for q in range(4): a("buffer_load_dwordx4 v172, s[%d:%d], s%d offen offset:%d lds" % (SWS, SWS + 3, sOW, q * 1024))
        a("s_mov_b32 m0, %d" % (L_SYNC + Y_U))
        a("s_mov_b64 exec, 1")
        a("global_load_lds_dword v173, s[0:1]")
        a("s_mov_b64 exec, -1")
        a("s_mov_b32 s%d, 0" % sPM)
    def u_try():
        l = L("UT")
        a("s_cmp_eq_u32 s%d, 0" % sPM)
        a("s_cbranch_scc1 %s" % l)
        a.begin_opt()
        a("s_waitcnt vmcnt(%d)" % len(nst))
        a("v_cmp_ne_u32 vcc, s%d, v169" % sNON)
        a("s_cmp_lg_u32 vcc_lo, 0")
        a("s_cbranch_scc1 %s" % l)
        u_dma()
        a("s_mov_b32 m0, s%d" % sSTG)
        a.end_opt()
        a.label(l)
        a("s_nop 0")
    for p_ in os.environ.get("UP", "781,851").split(","):
        hooks[int(p_)] = u_poll; hooks[int(p_) + ENV("UD", 66)] = u_try
    def nonce_pub():
        ln2 = L("NF")
        a("s_cmp_eq_u32 s%d, 0" % sPM)
        a("s_cbranch_scc1 %s" % ln2)
        a.begin_opt()
        get_nonce(a, L, 113, 116, pre=True)
        a("s_mov_b64 exec, 1")
        a("ds_write_b64 v114, v[116:117] offset:%d" % (Y_NON - Y_RDA))
        a("s_mov_b64 exec, -1")
        a.end_opt()
        a.label(ln2)
    def pf_wd():
        srd(a, SWD, 8, 1792 * 896)
        a("s_lshr_b32 s%d, s2, 3" % sT0); a("s_sub_u32 s%d, s%d, 4" % (sT0, sT0)); a("s_lshl_b32 s%d, s%d, 2" % (sT0, sT0)); a("s_add_u32 s%d, s%d, s%d" % (sT0, sT0, sKW))
        a("s_mul_i32 s%d, s%d, %d" % (sT0, sT0, 112 * 128))
        a("v_lshlrev_b32 v200, 7, v1")
        a("s_add_u32 s%d, s%d, %d" % (sT1, sT0, 48 * 128))
        a("buffer_load_dword v201, v200, s[%d:%d], s%d offen" % (SWD, SWD + 3, sT0))
        a("buffer_load_dword v202, v200, s[%d:%d], s%d offen" % (SWD, SWD + 3, sT1))
    PFW = ENV("PFW", -1)
    GB, FB = (171, 175) if TRIM else (6, 7)
    if TRIM:
        a("v_lshl_add_u32 v18, v1, 4, s%d" % sSTG)
        a("s_xor_b32 s%d, s%d, 1" % (sT0, sKW)); a("s_mul_i32 s%d, s%d, %d" % (sT0, sT0, STG_W)); a("s_add_u32 s%d, s%d, %d" % (sT0, sT0, L_STG))
        a("v_lshl_add_u32 v19, v1, 4, s%d" % sT0)
        a("v_and_b32 v10, v6, v7"); a("v_and_b32 v10, s%d, v10" % sHF)
        a("v_cmp_ne_u32 s[16:17], 0, v10")
        a("v_lshrrev_b32 v10, 1, v6"); a("v_lshlrev_b32 v10, 9, v10")
        a("v_lshl_add_u32 v10, v7, 4, v10")
        a("v_and_b32 v11, 1, v6"); a("v_lshl_add_u32 v10, v11, 3, v10")
        a("s_add_u32 s%d, s%d, %d" % (sT0, sCVB, 4088 - 1024 - 256))
        a("s_lshl_b32 s%d, s%d, 11" % (sT2, sHF))
        a("s_sub_u32 s%d, s%d, s%d" % (sT0, sT0, sT2))
        a("v_sub_u32 v115, s%d, v10" % sT0)
        a("v_and_b32 v118, 3, v1"); a("v_add_u32 v118, %d, v118" % (L_SYNC + Y_CNT))
        a("v_lshlrev_b32 v4, 4, v1")
        for r in range(60, 64): a("v_mov_b32 v%d, 0" % r)
        a("v_add_u32 v119, %d, v4" % O_U)
        a("v_bfe_u32 v10, v1, 2, 2")
        a("v_mul_u32_u24 v10, %d, v10" % CPS)
        a("v_and_b32 v11, 3, v1")
        a("v_lshl_add_u32 v10, v11, 4, v10")
        a("v_add_u32 v10, 4096, v10")
        a("v_cmp_gt_u32 vcc, 32, v1")
        a("v_cndmask_b32 v119, v10, v119, vcc")
        a("v_add_u32 v119, s%d, v119" % sCVB)
        a("v_sub_u32 v10, 3, v7"); a("v_and_b32 v10, 3, v10")
        a("v_mul_u32_u24 v171, %d, v10" % CPS)
        a("v_add_u32 v11, v7, v10")
        a("v_sub_u32 v11, %d, v11" % (2031 - 16 * 126))
        a("v_lshl_add_u32 v11, v6, 3, v11")
        a("v_lshl_add_u32 v171, v11, 1, v171")
        a("s_lshl_b32 s%d, s%d, 8" % (sT0, sHF))
        a("s_sub_u32 s%d, s%d, s%d" % (sT1, sCVB, sT0))
        a("v_add_u32 v171, s%d, v171" % sT1)
        a("v_lshlrev_b32 v175, 5, v7")
        a("v_lshl_add_u32 v175, v6, 4, v175")
        a("v_add_u32 v175, %d, v175" % O_U)
        a("v_add_u32 v175, s%d, v175" % sT1)
        a("s_add_u32 s%d, s%d, s%d" % (sT3, sCVB, sT2))
        a("v_add_u32 v168, s%d, v4" % sT3)
        a("s_and_b32 s%d, s%d, 2" % (sT0, sKW)); a("s_lshl_b32 s%d, s%d, 2" % (sT0, sT0)); a("s_add_u32 s%d, s%d, %d" % (sT0, sT0, L_SYNC + Y_KEXP))
        a("v_mov_b32 v9, s%d" % sT0)
    a.wait_vm("param")
    if TRIM: a("v_mov_b32 v2, v7"); a("v_mov_b32 v3, v6")
    if PFW == 0: pf_wd()
    sk_("param")
    a("s_mov_b32 exec_lo, s%d" % sPM); a("s_mov_b32 exec_hi, 0")
    a("buffer_load_dwordx2 v[116:117], v113, s[%d:%d], 0 offen sc1" % (SDBG, SDBG + 3))
    a("s_mov_b64 exec, -1")
    if "nokgen" in EXP: nonce_pub()
    for it in range(2):
        for r in P[it]: k("v_lshlrev_b32 v%d, 16, v%d" % (r, r))
    k("v_lshlrev_b32 v26, 16, v26")
    k("v_mul_f32 v26, %s, v26" % fbits(LOG2E))
    k("v_exp_f32 v26, v26")
    k("v_cvt_pk_bf16_f32 v26, v26, v26")
    k("v_lshlrev_b32 v26, 16, v26")
    WR = [28, 126]
    for it in range(2):
        p = P[it]
        k("v_mul_f32 v%d, v26, v%d" % (p[0], p[0])); k("v_mul_f32 v%d, v26, v%d" % (p[1], p[1]))
        k("v_mul_f32 v%d, v26, v%d" % (p[2], p[2])); k("v_mul_f32 v%d, v26, v%d" % (p[3], p[3]))
        w = WR[it]
        k("v_mul_f32 v%d, v%d, v%d" % (w, p[4], p[2])); k("v_fma_f32 v%d, -v%d, v%d, v%d" % (w, p[5], p[3], w))
        k("v_mul_f32 v%d, v%d, v%d" % (w + 1, p[4], p[3])); k("v_fma_f32 v%d, v%d, v%d, v%d" % (w + 1, p[5], p[2], w + 1))
    k("v_max_f32 v27, abs(v28), abs(v29)")
    k("v_max3_f32 v27, abs(v126), abs(v127), v27")
    for sh in (1, 2, 4, 8):
        k("v_max_f32_dpp v27, v27, v27 row_shr:%d row_mask:0xf bank_mask:0xf" % sh)
    k("v_max_f32_dpp v27, v27, v27 row_bcast:15 row_mask:0xa bank_mask:0xf")
    k("v_max_f32_dpp v27, v27, v27 row_bcast:31 row_mask:0xc bank_mask:0xf")
    k("v_readlane_b32 s%d, v27, 63" % sINV)
    k("s_lshr_b32 s%d, s%d, 23" % (sINV, sINV))
    if TRIM: k("s_add_u32 s%d, s%d, 1" % (sINV, sINV))
    else:
        k("s_sub_u32 s%d, 254, s%d" % (sSC, sINV))
        k("s_lshl_b32 s%d, s%d, 23" % (sSC, sSC))
    k("v_mov_b32 v10, s%d" % sINV)
    k("s_lshl_b32 s%d, s%d, 2" % (sT1, sKW))
    k("s_add_u32 s%d, s%d, %d" % (sT1, sT1, L_SYNC + Y_KEXP))
    k("v_mov_b32 v11, s%d" % sT1)
    k("ds_write_b32 v11, v10")
    def wscale():
        for w in WR:
            k("v_mul_f32 v%d, s%d, v%d" % (w, sSC, w)); k("v_mul_f32 v%d, s%d, v%d" % (w + 1, sSC, w + 1))
    def common_scale():
        l1, l2, l3 = L("KS"), L("KS"), L("KS")
        a("s_mov_b32 s%d, %d" % (sCNT, SPIN))
        a("s_waitcnt lgkmcnt(15)")
        a("s_branch %s" % l3)
        a.label(l1)
        a("ds_read_b64 v[10:11], v9")
        a("s_waitcnt lgkmcnt(0)")
        a.label(l3)
        a("v_readfirstlane_b32 s%d, v10" % sT0); a("v_readfirstlane_b32 s%d, v11" % sT1)
        a("s_min_u32 s%d, s%d, s%d" % (sSC, sT0, sT1))
        a("s_cmp_lg_u32 s%d, 0" % sSC)
        a("s_cbranch_scc1 %s" % l2)
        a("s_sub_u32 s%d, s%d, 1" % (sCNT, sCNT)); a("s_cmp_lg_u32 s%d, 0" % sCNT)
        a("s_cbranch_scc1 %s" % l1)
        a.label(l2)
        a("s_max_u32 s%d, s%d, s%d" % (sINV, sT0, sT1))
        a("s_sub_u32 s%d, 255, s%d" % (sSC, sINV)); a("s_lshl_b32 s%d, s%d, 23" % (sSC, sSC))
        a("s_sub_u32 s%d, s%d, 1" % (sINV, sINV)); a("s_lshl_b32 s%d, s%d, 23" % (sINV, sINV))
        wscale()
    if not TRIM: wscale()
    k("s_mov_b32 m0, s%d" % sSTG)
    if ENV("KV", 0):
        k("v_lshl_add_u32 v164, v1, 2, s%d" % sSTG)
        for i in range(1, 4): k("v_add_u32 v%d, %d, v164" % (164 + i, i * 4 * 272))
    E1, E8, E256, E2, E4, E16 = 30, 32, 34, 36, 38, 40
    tmpi = [0]
    def cmul(d, x, y):
        t = 42 + (tmpi[0] & 3); tmpi[0] += 1
        assert d != y
        k("v_mul_f32 v%d, v%d, v%d" % (t, x, y + 1))
        k("v_mul_f32 v%d, v%d, v%d" % (d, x, y))
        k("v_fma_f32 v%d, -v%d, v%d, v%d" % (d, x + 1, y + 1, d))
        k("v_fma_f32 v%d, v%d, v%d, v%d" % (d + 1, x + 1, y, t))
    PK = [46, 47, 48, 49]; pki = [0]
    def put(row, r, negim=False):
        p = PK[pki[0] & 3]; pki[0] += 1
        k("v_cvt_pk_f16_f32 v%d, v%d, %sv%d" % (p, r, "-" if negim else "", r + 1))
        if "nokw" in EXP or ("halfkw" in EXP and (pki[0] & 1)): k("; skip"); return
        k("ds_write_addtid_b32 v%d offset:%d" % (p, row * 272))
    KV = ENV("KV", 0)
    KB = [164, 165, 166, 167]
    def wr2(row, st, single=False):
        if single: k("ds_write_b32 v%d, v%d offset:%d" % (KB[row >> 2], PK[2 * st], (row & 3) * 272))
        elif row & 1: k("ds_write2_b32 v%d, v%d, v%d offset0:%d offset1:%d" % (KB[row >> 2], PK[2 * st], PK[2 * st + 1], ((row & 3) - 1) * 68, (row & 3) * 68))
    def put2(row, r, negim=False, st=None, single=False):
        if st is None: st = (row >> 1) & 1
        k("v_cvt_pk_f16_f32 v%d, v%d, %sv%d" % (PK[2 * st + (row & 1)], r, "-" if negim else "", r + 1))
        wr2(row, st, single)
    def leaf(row, x, y, negim=False, st=None, single=False):
        if st is None: st = (row >> 1) & 1
        p_ = PK[2 * st + (row & 1)]; n_ = "-" if negim else ""
        t = 42 + (tmpi[0] & 3); t2 = 42 + ((tmpi[0] + 1) & 3); tmpi[0] += 2
        k("v_mul_f32 v%d, v%d, v%d" % (t, x + 1, y + 1))
        k("v_mul_f32 v%d, v%d, v%d" % (t2, x, y + 1))
        k("v_fma_mixlo_f16 v%d, v%d, v%d, -v%d" % (p_, x, y, t))
        return lambda: (k("v_fma_mixhi_f16 v%d, %sv%d, v%d, %sv%d" % (p_, n_, x + 1, y, n_, t2)), wr2(row, st, single))
    YF = [64, 80]; XFB = 96
    for it in range(2 if "nokgen" not in EXP else 0):
        are, aim = P[it][0], P[it][1]
        if it == 1 and PFW == 1: pf_wd()
        X0 = WR[it]
        def cexp(d, Lx):
            k("v_mul_f32 v16, %s, v%d" % (fbits(Lx * LOG2E), are))
            k("v_mul_f32 v17, %s, v%d" % (fbits(Lx / (2 * math.pi)), aim))
            k("v_exp_f32 v16, v16")
            k("v_fract_f32 v17, v17")
            k("v_cos_f32 v%d, v17" % d)
            k("v_sin_f32 v%d, v17" % (d + 1))
            k("v_mul_f32 v%d, v16, v%d" % (d, d))
            k("v_mul_f32 v%d, v16, v%d" % (d + 1, d + 1))
        cexp(E8, 8); cexp(E1, 1); cexp(E256, 256)
        cmul(E16, E8, E8); cmul(E2, E1, E1); cmul(E4, E2, E2)
        def xtile(t):
            for ks in range(4): k("ds_read_b128 %s, v%d offset:%d" % (vr(XFB + 4 * ks, 4), XA[t], ks * 64))
        def xmfma(t):
            for ks in range(4):
                for yt in range(2):
                    k("v_mfma_f32_16x16x32_f16 %s, %s, %s, %s" % (vr(D(t, yt), 4), vr(XFB + 4 * ks, 4), vr(YF[yt] + 4 * ks, 4), "0" if TRIM and it == 0 and ks == 0 else vr(D(t, yt), 4)))
        if KV:
            YY = [50, 52]
            k("v_mov_b32 v%d, 0x3c00" % PK[0])
            put2(1, E8)
            cur = E16
            for j in range(2, 32, 2):
                f_ = leaf((j + 1) & 15, cur, E8)
                put2(j & 15, cur)
                f_()
                if j + 2 < 32:
                    nx = YY[(j >> 1) & 1]; cmul(nx, cur, E16); cur = nx
                if TRIM and it == 0 and j == 10: k("ds_read_b64 v[10:11], v9")
                if j == 14:
                    for ks in range(4): k("ds_read_b128 %s, v5 offset:%d" % (vr(YF[0] + 4 * ks, 4), ks * 64))
            for ks in range(4): k("ds_read_b128 %s, v5 offset:%d" % (vr(YF[1] + 4 * ks, 4), ks * 64))
            Xa, Xb, Xc = 54, 56, 58
            if it == 0 and TRIM: common_scale()
            if it == 0: nonce_pub()
            cmul(Xb, X0, E256)
            ca, cb = X0, Xb
            for i in range(4):
                f_ = leaf(2 * i + 1, ca, E1, True, 0); put2(2 * i, ca, True, 0); f_()
                if i < 3:
                    nx = (Xa, 50)[i & 1]; cmul(nx, ca, E2); ca = nx
                if i < 2:
                    f_ = leaf(9 + 2 * i, cb, E2, True, 1); put2(8 + 2 * i, cb, True, 1); f_()
                    if i == 0: cmul(Xc, cb, E4); cb = Xc
                if i == 2:
                    f_ = leaf(12, cb, E4, True, 1, True); k("s_nop 0"); f_()
            xtile(0)
            XX = [Xa, Xb]
            cmul(Xa, Xb, E256)
            f_ = leaf(1, Xa, E4, True); put2(0, Xa, True); f_()
            cmul(Xb, Xa, E256)
            f_ = leaf(2, Xa, E8, True); k("v_cvt_pk_f16_f32 v%d, v%d, -v%d" % (PK[3], Xb, Xb + 1)); f_(); wr2(3, 1)
            f_ = leaf(4, Xb, E4, True); g_ = leaf(5, Xb, E8, True); f_(); g_()
            k("s_waitcnt lgkmcnt(3)")
            xmfma(0)
            xtile(1)
            cur = Xb
            for b in range(4):
                nx = XX[b & 1]; cmul(nx, cur, E256); cur = nx
                f_ = leaf(7 + 2 * b, cur, E8, True); put2(6 + 2 * b, cur, True); f_()
            k("s_waitcnt lgkmcnt(4)")
            xmfma(1)
        else:
            Ya, Yb = 50, 52
            k("v_mov_b32 v50, 1.0"); k("v_mov_b32 v51, 0")
            put(0, Ya); put(1, E8)
            cmul(Yb, E8, E16)
            put(2, E16); put(3, Yb)
            cmul(Ya, E16, E16)
            for j in range(4, 32, 2):
                cmul(Yb, Yb, E16)
                put(j & 15, Ya); put((j + 1) & 15, Yb)
                if j + 2 < 32: cmul(Ya, Ya, E16)
                if TRIM and it == 0 and j == ENV("KSJ", 12): k("ds_read_b64 v[10:11], v9")
                if j == 14:
                    for ks in range(4): k("ds_read_b128 %s, v5 offset:%d" % (vr(YF[0] + 4 * ks, 4), ks * 64))
            for ks in range(4): k("ds_read_b128 %s, v5 offset:%d" % (vr(YF[1] + 4 * ks, 4), ks * 64))
            Xa, Xb, Xc = 54, 56, 58
            if it == 0 and TRIM: common_scale()
            if it == 0: nonce_pub()
            put(0, X0, True)
            cmul(Xa, X0, E1); cmul(Xb, X0, E256)
            put(1, Xa, True); put(8, Xb, True)
            cmul(Xc, Xb, E2)
            for r in range(2, 8):
                cmul(Xa, Xa, E1); put(r, Xa, True)
                if r <= 5:
                    put(9 + (r - 2), Xc, True)
                    if r < 5: cmul(Xc, Xc, E2)
            def xtile(t):
                for ks in range(4): k("ds_read_b128 %s, v%d offset:%d" % (vr(XFB + 4 * ks, 4), XA[t], ks * 64))
            def xmfma(t):
                for ks in range(4):
                    for yt in range(2):
                        k("v_mfma_f32_16x16x32_f16 %s, %s, %s, %s" % (vr(D(t, yt), 4), vr(XFB + 4 * ks, 4), vr(YF[yt] + 4 * ks, 4), "0" if TRIM and it == 0 and ks == 0 else vr(D(t, yt), 4)))
            xtile(0)
            for b in range(2):
                cmul(Xb, Xb, E256); put(3 * b, Xb, True)
                cmul(Xc, Xb, E4); put(3 * b + 1, Xc, True)
                cmul(Xa, Xb, E8); put(3 * b + 2, Xa, True)
            k("s_waitcnt lgkmcnt(6)")
            xmfma(0)
            xtile(1)
            for b in range(4):
                cmul(Xb, Xb, E256); put(6 + 2 * b, Xb, True)
                cmul(Xa, Xb, E8); put(7 + 2 * b, Xa, True)
            k("s_waitcnt lgkmcnt(8)")
            xmfma(1)
        for t in (2, 3):
            xtile(t)
            k("s_waitcnt lgkmcnt(0)")
            xmfma(t)
    if ENV("VERB", 0): print("kgen instrs", kc[0])
    if "nokgen" in EXP:
        for kk_ in sorted(hooks): hooks[kk_]()
        hooks.clear()
    assert not hooks
    sk_("kgen")
    a("s_setprio %d" % ENV("XPRIO", 2))
    u_poll()
    if TRIM:
        x1, x2 = L("X"), L("X")
        a("s_cmp_lg_u32 s%d, 0" % sHF)
        a("s_cbranch_scc1 %s" % x1)
        a.begin_opt()
        for i in range(4): a("ds_write_b128 v18, %s offset:%d" % (vr(144 + 4 * i, 4), i * 1024))
        setf(Y_KX)
        waitp(Y_KX)
        for i in range(4): a("ds_read_b128 %s, v19 offset:%d" % (vr(144 + 4 * i, 4), i * 1024))
        a("s_branch %s" % x2)
        a.end_opt()
        a.label(x1)
        a.begin_opt()
        for i in range(4): a("ds_write_b128 v18, %s offset:%d" % (vr(128 + 4 * i, 4), i * 1024))
        setf(Y_KX)
        waitp(Y_KX)
        for i in range(4): a("ds_read_b128 %s, v19 offset:%d" % (vr(128 + 4 * i, 4), i * 1024))
        a.end_opt()
        a.label(x2)
        a("ds_read_u8 v164, v118 offset:%d" % Y_RD)
        a("s_lshl_b32 s%d, s%d, 11" % (sT2, sHF))
        a("s_add_u32 s%d, s%d, s%d" % (sT3, sCVB, sT2))
        for i in range(4):
            b = 128 + 4 * i
            a("s_waitcnt lgkmcnt(%d)" % (4 - i))
            for e in range(4): a("v_add_f32 v%d, v%d, v%d" % (b + e, b + e, b + 16 + e))
            a("v_cndmask_b32 v%d, v%d, v%d, s[16:17]" % (b, b, b + 1))
            a("v_cvt_pk_f16_f32 v%d, v%d, v%d" % (64 + 2 * i, b + 3, b + 2))
            a("v_cvt_pk_f16_f32 v%d, v%d, v%d" % (65 + 2 * i, b + 1, b))
        xs = L("XS")
        a("s_waitcnt lgkmcnt(0)")
        a("v_cmp_gt_u32 vcc, 10, v164")
        a("s_cbranch_vccz %s" % xs)
        a.begin_opt()
        spin_lds(118, 164, 10, slp=4, off=Y_RD)
        a.end_opt()
        a.label(xs)
        for tl in range(2):
            for yt in range(2):
                a("ds_write_b64 v115, %s offset:%d" % (vr(64 + 4 * tl + 2 * yt, 2), (1 - tl) * 1024 + (1 - yt) * 256))
        a("s_setprio %d" % int(os.environ.get("CPRIO", "2")))
        a("s_cmp_lg_u32 s%d, 0" % sHF)
        a("s_cselect_b32 exec_lo, 0, 0x3fffffff"); a("s_cselect_b32 exec_hi, 0, 0xffff")
        a("ds_write_b128 v119, v[60:63]")
        setf(Y_C0)
        a("v_mov_b32 v5, v168")
    else:
        a("v_lshl_add_u32 v18, v1, 4, s%d" % sSTG)
        a("s_xor_b32 s%d, s%d, 1" % (sT0, sKW))
        a("s_mul_i32 s%d, s%d, %d" % (sT0, sT0, STG_W))
        a("s_add_u32 s%d, s%d, %d" % (sT0, sT0, L_STG))
        a("v_lshl_add_u32 v19, v1, 4, s%d" % sT0)
        x1, x2 = L("X"), L("X")
        a("s_cmp_lg_u32 s%d, 0" % sHF)
        a("s_cbranch_scc1 %s" % x1)
        a.begin_opt()
        for i in range(4): a("ds_write_b128 v18, %s offset:%d" % (vr(144 + 4 * i, 4), i * 1024))
        a("s_branch %s" % x2)
        a.end_opt()
        a.label(x1)
        a.begin_opt()
        for i in range(4): a("ds_write_b128 v18, %s offset:%d" % (vr(128 + 4 * i, 4), i * 1024))
        for i in range(16): a("v_mov_b32 v%d, v%d" % (128 + i, 144 + i))
        a.end_opt()
        a.label(x2)
        setf(Y_KX)
        waitp(Y_KX)
        a("s_and_b32 s%d, s%d, 2" % (sT0, sKW))
        a("s_lshl_b32 s%d, s%d, 2" % (sT0, sT0))
        a("s_add_u32 s%d, s%d, %d" % (sT0, sT0, L_SYNC + Y_KEXP))
        a("v_mov_b32 v10, s%d" % sT0)
        a("ds_read_b64 v[10:11], v10")
        for i in range(4): a("ds_read_b128 %s, v19 offset:%d" % (vr(144 + 4 * i, 4), i * 1024))
        a("s_waitcnt lgkmcnt(4)")
        a("v_max_u32 v16, v10, v11")
        a("v_add_u32 v17, v10, v11"); a("v_subrev_u32 v17, s%d, v17" % sINV)
        def fac(dst, esrc):
            a("v_sub_u32 v%d, %s, v16" % (dst, esrc))
            a("v_add_u32 v%d, 127, v%d" % (dst, dst))
            a("v_max_i32 v%d, 0, v%d" % (dst, dst))
            a("v_lshlrev_b32 v%d, 23, v%d" % (dst, dst))
        fac(20, "s%d" % sINV); fac(22, "v17")
        a("v_lshlrev_b32 v9, 23, v16")
        a("s_waitcnt lgkmcnt(0)")
        for i in range(16):
            a("v_mul_f32 v%d, v20, v%d" % (128 + i, 128 + i))
            a("v_fmac_f32 v%d, v22, v%d" % (128 + i, 144 + i))
        a("v_and_b32 v10, v6, v7"); a("v_and_b32 v10, s%d, v10" % sHF)
        a("v_cmp_ne_u32 vcc, 0, v10")
        for i in range(4): a("v_cndmask_b32 v%d, v%d, v%d, vcc" % (128 + 4 * i, 128 + 4 * i, 129 + 4 * i))
        a("v_lshrrev_b32 v10, 1, v6"); a("v_lshlrev_b32 v10, 9, v10")
        a("v_lshl_add_u32 v10, v7, 4, v10")
        a("v_and_b32 v11, 1, v6"); a("v_lshl_add_u32 v10, v11, 3, v10")
        a("s_add_u32 s%d, s%d, %d" % (sT0, sCVB, 4088 - 1024 - 256))
        a("s_lshl_b32 s%d, s%d, 11" % (sT2, sHF))
        a("s_sub_u32 s%d, s%d, s%d" % (sT0, sT0, sT2))
        a("v_sub_u32 v10, s%d, v10" % sT0)
        for tl in range(2):
            for yt in range(2):
                b = 128 + 8 * tl + 4 * yt
                a("v_cvt_pk_f16_f32 v%d, v%d, v%d" % (64 + 4 * tl + 2 * yt, b + 3, b + 2))
                a("v_cvt_pk_f16_f32 v%d, v%d, v%d" % (65 + 4 * tl + 2 * yt, b + 1, b))
        a("v_and_b32 v11, 3, v1"); a("v_add_u32 v11, %d, v11" % (L_SYNC + Y_CNT))
        spin_lds(11, 164, 10, slp=4, off=Y_RD)
        for tl in range(2):
            for yt in range(2):
                a("ds_write_b64 v10, %s offset:%d" % (vr(64 + 4 * tl + 2 * yt, 2), (1 - tl) * 1024 + (1 - yt) * 256))
        if "dbgk" in EXP:
            a("s_mul_i32 s%d, s%d, %d" % (sT0, sCH, KSTRIDE)); a("s_sub_u32 s%d, s%d, s%d" % (sT0, sT0, sCVB)); a("s_add_u32 s%d, s%d, %d" % (sT0, sT0, WS_KREV))
            for tl in range(2):
                for yt in range(2):
                    a("buffer_store_dwordx2 %s, v10, s[%d:%d], s%d offen offset:%d" % (vr(64 + 4 * tl + 2 * yt, 2), SWS, SWS + 3, sT0, (1 - tl) * 1024 + (1 - yt) * 256))
            a("s_lshl_b32 s%d, s%d, 2" % (sT0, sCH)); a("s_add_u32 s%d, s%d, %d" % (sT0, sT0, WS_KSC)); a("v_mov_b32 v11, s%d" % sT0)
            a("buffer_store_dword v9, v11, s[%d:%d], 0 offen" % (SWS, SWS + 3))
        a("s_setprio %d" % int(os.environ.get("CPRIO", "2")))
        a("v_mov_b32 v2, v7"); a("v_mov_b32 v3, v6")
        a("v_lshlrev_b32 v4, 4, v1")
        a("v_mov_b32 v12, 0"); a("v_mov_b32 v13, 0"); a("v_mov_b32 v14, 0"); a("v_mov_b32 v15, 0")
        a("v_add_u32 v5, %d, v4" % O_U)
        a("v_bfe_u32 v6, v1, 2, 2")
        a("v_mul_u32_u24 v6, %d, v6" % CPS)
        a("v_and_b32 v7, 3, v1")
        a("v_lshl_add_u32 v6, v7, 4, v6")
        a("v_add_u32 v6, 4096, v6")
        a("v_cmp_gt_u32 vcc, 32, v1")
        a("v_cndmask_b32 v5, v6, v5, vcc")
        a("v_add_u32 v5, s%d, v5" % sCVB)
        nz = L("NZ")
        a("s_cmp_lg_u32 s%d, 0" % sHF)
        a("s_cbranch_scc1 %s" % nz)
        a.begin_opt()
        a("s_mov_b32 exec_lo, 0x3fffffff"); a("s_mov_b32 exec_hi, 0xffff")
        a("ds_write_b128 v5, v[12:15]")
        a("s_mov_b64 exec, -1")
        a.end_opt()
        a.label(nz)
        setf(Y_C0)
        a("v_sub_u32 v5, 3, v2"); a("v_and_b32 v5, 3, v5")
        a("v_mul_u32_u24 v6, %d, v5" % CPS)
        a("v_add_u32 v7, v2, v5")
        a("v_sub_u32 v7, %d, v7" % (2031 - 16 * 126))
        a("v_lshl_add_u32 v7, v3, 3, v7")
        a("v_lshl_add_u32 v6, v7, 1, v6")
        a("s_lshl_b32 s%d, s%d, 8" % (sT0, sHF))
        a("s_sub_u32 s%d, s%d, s%d" % (sT1, sCVB, sT0))
        a("v_add_u32 v6, s%d, v6" % sT1)
        a("v_lshlrev_b32 v7, 5, v2")
        a("v_lshl_add_u32 v7, v3, 4, v7")
        a("v_add_u32 v7, %d, v7" % O_U)
        a("v_add_u32 v7, s%d, v7" % sT1)
        a("s_add_u32 s%d, s%d, s%d" % (sT3, sCVB, sT2))
        a("v_add_u32 v5, s%d, v4" % sT3)
    lq, lq2, lq3 = L("PB"), L("PB"), L("PB")
    a("s_cmp_eq_u32 s%d, 0" % sPM)
    a("s_cbranch_scc1 %s" % lq3)
    a.begin_opt()
    a("s_mov_b32 s%d, %d" % (sOX, SPIN))
    a.label(lq)
    a("s_waitcnt vmcnt(0)")
    a("v_cmp_ne_u32 vcc, s%d, v169" % sNON)
    a("s_cmp_eq_u32 vcc_lo, 0")
    a("s_cbranch_scc1 %s" % lq2)
    a("s_sleep %d" % int(os.environ.get("PSL", "20")))
    a("s_mov_b32 exec_hi, 0")
    a("buffer_load_dword v169, v112, s[%d:%d], 0 offen sc1" % (SWS, SWS + 3))
    a("s_mov_b64 exec, -1")
    a("s_sub_u32 s%d, s%d, 1" % (sOX, sOX)); a("s_cmp_lg_u32 s%d, 0" % sOX)
    a("s_cbranch_scc1 %s" % lq)
    a.label(lq2)
    u_dma()
    a.end_opt()
    a.label(lq3)
    sk_("rdyB")
    waitp(Y_C0)
    for it in range(2):
        b = 32 + 8 * it
        a("ds_read_b128 %s, v5 offset:%d" % (vr(b, 4), it * 1024))
        a("ds_read_b64 %s, v5 offset:%d" % (vr(b + 4, 2), it * 1024 + 16))
    for it in range(2):
        b = 32 + 8 * it
        a("s_waitcnt lgkmcnt(%d)" % (2 if it == 0 else 3))
        d = [b + i for i in range(6)]
        c1, c2, c3 = 64 + 12 * it, 68 + 12 * it, 72 + 12 * it
        for i in range(4):
            a("v_alignbit_b32 v%d, v%d, v%d, 16" % (c1 + i, d[i + 1], d[i]))
            a("v_mov_b32 v%d, v%d" % (c2 + i, d[i + 1]))
            a("v_alignbit_b32 v%d, v%d, v%d, 16" % (c3 + i, d[i + 2], d[i + 1]))
        a("ds_write_b128 v5, %s offset:%d" % (vr(c1, 4), CPS + it * 1024))
        a("ds_write_b128 v5, %s offset:%d" % (vr(c2, 4), 2 * CPS + it * 1024))
        a("ds_write_b128 v5, %s offset:%d" % (vr(c3, 4), 3 * CPS + it * 1024))
    sk_("copies")
    CA = 16; G = 64; F = 96
    if not TRIM:
        for r in range(CA, CA + 32): a("v_mov_b32 v%d, 0" % r)
    setf(Y_BL)
    spin_lds(114, 164, 1, width="b32", slp=1, off=Y_U - Y_RDA)
    a("ds_read_b64 v[166:167], v114 offset:%d" % (Y_NON - Y_RDA))
    waitp(Y_BL)
    sk_("built")
    if YP == 3 and "nopp" not in EXP:
        a("v_mov_b32 v174, v112")
        a("s_mov_b32 exec_hi, 0")
        a("buffer_load_dword v169, v174, s[%d:%d], 0 offen offset:128 sc1" % (SWS, SWS + 3))
        a("s_mov_b64 exec, -1")
    a("s_setprio %d" % ENV("MPRIO", 1))
    def rg(ri, q):
        o = 32 * (126 - 16 * q - 2 * ri)
        a("ds_read_b64 %s, v%d offset:%d" % (vr(G + 4 * q, 2), GB, o))
        a("ds_read_b64 %s, v%d offset:%d" % (vr(G + 4 * q + 2, 2), GB, o + 8))
    def rf(ri, j):
        a("ds_read_b128 %s, v%d offset:%d" % (vr(F + 4 * j, 4), FB, 32 * (16 * j - 2 * ri + 14)))
    side = []
    S = side.append
    S("v_lshlrev_b32 v8, 16, v160")
    XW, XO = 128, 136
    for i in range(4):
        for pr in range(2):
            xw = XW + 2 * i + pr; o = XO + 4 * i + 2 * pr
            S("v_cvt_f32_f16 v%d, v%d" % (o, xw))
            S("v_lshrrev_b32 v%d, 16, v%d" % (o + 1, xw)); S("v_cvt_f32_f16 v%d, v%d" % (o + 1, o + 1))
            S("v_mul_f32 v%d, v8, v%d" % (o, o)); S("v_mul_f32 v%d, v8, v%d" % (o + 1, o + 1))
            S("v_cvt_pk_bf16_f32 v%d, v%d, v%d" % (o, o, o + 1))
            S("v_and_b32 v%d, 0xffff0000, v%d" % (o + 1, o)); S("v_lshlrev_b32 v%d, 16, v%d" % (o, o))
    S("v_lshl_add_u32 v5, v1, 4, s%d" % sSTG)
    S("s_xor_b32 s%d, s%d, 1" % (sT0, sKW))
    S("s_mul_i32 s%d, s%d, %d" % (sT0, sT0, STG_W))
    S("s_add_u32 s%d, s%d, %d" % (sT0, sT0, L_STG))
    S("v_lshl_add_u32 v152, v1, 4, s%d" % sT0)
    if AL == 2:
        S("v_and_b32 v13, 1, v3"); S("v_lshrrev_b32 v14, 2, v2"); S("v_lshl_add_u32 v13, v13, 2, v14"); S("v_mul_u32_u24 v13, %d, v13" % TS)
        S("s_mul_i32 s%d, s%d, %d" % (sT2, sHF, 16 * TS))
    else:
        S("v_and_b32 v13, 1, v3"); S("v_lshlrev_b32 v13, 9, v13")
        S("v_lshrrev_b32 v14, 2, v2"); S("v_lshl_add_u32 v13, v14, 7, v13")
    S("v_lshrrev_b32 v14, 1, v3"); S("v_lshl_add_u32 v13, v14, 6, v13")
    S("v_and_b32 v14, 3, v2"); S("v_lshl_add_u32 v13, v14, 4, v13")
    S("v_add_u32 v13, s%d, v13" % sT2)
    S("s_and_b32 s%d, s%d, 0xfffe" % (sT0, sCH)); S("s_add_u32 s%d, s%d, s%d" % (sT0, sT0, sHF)); S("s_lshl_b32 s%d, s%d, 8" % (sT0, sT0))
    S("s_and_b32 s%d, s%d, 1" % (sT1, sCH)); S("s_lshl_b32 s%d, s%d, 3" % (sT1, sT1))
    S("s_add_u32 s%d, s%d, s%d" % (sT0, sT0, sT1))
    S("s_add_u32 s%d, s%d, %d" % (sT0, sT0, WS_CF))
    S("v_mov_b32 v14, s%d" % sT0)
    S("v_readfirstlane_b32 s%d, v166" % sNON); S("v_readfirstlane_b32 s%d, v167" % (sNON + 1))
    S("s_lshl_b32 s%d, s%d, 14" % (sT0, sCT))
    S("s_lshl_b32 s%d, s%d, 12" % (sT1, sKW))
    S("s_add_u32 s%d, s%d, s%d" % (sT0, sT0, sT1))
    S("s_lshr_b32 s%d, s%d, 4" % (sT1, sRT2)); S("s_lshl_b32 s%d, s%d, 8" % (sT1, sT1))
    S("s_add_u32 s%d, s%d, s%d" % (sT0, sT0, sT1))
    S("s_add_u32 s%d, s%d, %d" % (sT0, sT0, WS_CF))
    S("v_lshrrev_b32 v153, 1, v2"); S("v_lshl_add_u32 v153, v153, 9, s%d" % sT0)
    S("v_and_b32 v154, 1, v2"); S("v_lshl_add_u32 v153, v154, 3, v153")
    S("s_lshl_b32 s%d, s%d, 4" % (sT0, sKW))
    S("v_lshrrev_b32 v154, 3, v1")
    S("v_add_u32 v154, s%d, v154" % sT0)
    if AL == 2:
        S("v_mul_u32_u24 v154, 896, v154")
        S("v_and_b32 v155, 7, v1")
        S("v_lshl_add_u32 v154, v155, 4, v154")
        S("s_mul_i32 s%d, s%d, %d" % (sT2, sRT2, TS)); S("s_lshl_b32 s%d, s%d, 7" % (sT0, sCT)); S("s_add_u32 s%d, s%d, s%d" % (sT2, sT2, sT0))
        S("s_add_u32 s%d, s%d, %d" % (sT3, sT2, 8 * 896))
        S("s_and_b32 s%d, s%d, 63" % (sT0, sCH)); S("s_mul_i32 s%d, s%d, 7" % (sT0, sT0)); S("s_lshr_b32 s%d, s%d, 6" % (sOW, sCH))
        S("s_add_u32 s%d, s%d, s%d" % (sT0, sT0, sOW)); S("s_lshl_b32 s%d, s%d, 7" % (sT0, sT0))
        S("s_add_u32 s%d, s%d, %d" % (sOW, sT0, 8 * TS))
    else:
        S("s_lshl_b32 s%d, s%d, 6" % (sT0, sCT))
        S("v_add_u32 v154, s%d, v154" % sT0)
        S("v_mul_u32_u24 v154, %d, v154" % YST)
        S("v_and_b32 v155, 7, v1")
        S("v_lshl_add_u32 v154, v155, 4, v154")
        S("s_lshl_b32 s%d, s%d, 7" % (sT2, sRT2))
        S("s_add_u32 s%d, s%d, %d" % (sT2, sT2, WS_YAT))
        S("s_add_u32 s%d, s%d, %d" % (sT3, sT2, 8 * YST))
        S("s_mul_i32 s%d, s%d, %d" % (sT0, sCH, YST))
        S("s_add_u32 s%d, s%d, %d" % (sT0, sT0, WS_YAT))
    S("v_add_u32 v165, %d, v162" % Y_CX)
    if NSTA:
        S("s_lshl_b32 s%d, s%d, 13" % (sOX, sHF)); S("s_add_u32 s%d, s%d, s%d" % (sOX, sOX, sCVB)); S("v_lshl_add_u32 v157, v1, 4, s%d" % sOX)
        if SP0 < 0:
            side2 = []
            for n in range(4 * NSTA): side2.append(n)
    def copy_part(part):
        for n in range(4 * NSTA):
            s_ = 14 - NSTA + n // 4; q = n % 4
            if (s_ >= 12) != (part == 1): continue
            if s_ >= 12: ad, of = 157, (s_ - 12) * 4096
            elif WDS[s_ % 6] >= 65536: ad, of = 158, WDS[s_ % 6] - 65536
            else: ad, of = 156, WDS[s_ % 6]
            a("ds_write_b128 v%d, %s offset:%d" % (ad, vr(176 + 4 * n, 4), of + q * 1024))
            cw = ENV("CW%d" % part, part + 1)
            if cw >= 100: a("s_sleep %d" % (cw - 100))
            elif cw:
                for _ in range(cw): a("s_nop 7")
        a("v_mov_b32 v159, %d" % (part + 1))
        a("s_mov_b64 exec, 1")
        a("ds_write_b8 v161, v159 offset:%d" % Y_WS)
        a("s_mov_b64 exec, -1")
    def copy_out():
        l = L("CA")
        a("s_cmp_lg_u32 s%d, 0" % sLD)
        a("s_cbranch_scc1 %s" % l)
        copy_part(0)
        a.label(l)
        copy_part(1)
    def copy_try():
        l = L("CA")
        a("v_cmp_gt_u32 vcc, 1, v164")
        a("s_cmp_lg_u32 s%d, 0" % sLD)
        a("s_cbranch_scc1 %s" % l)
        a("s_cbranch_vccnz %s" % l)
        a.begin_opt()
        a("s_waitcnt vmcnt(0)")
        a("s_mov_b32 s%d, 1" % sLD)
        copy_part(0)
        a.end_opt()
        a.label(l)
    CTRY = [int(x) for x in os.environ.get("CTRY", "9").split(",")]
    a("s_mov_b32 s%d, 0" % sLD)
    a("s_lshl_b32 s%d, s%d, 12" % (sOX, sKW)); a("v_lshl_add_u32 v156, v1, 4, s%d" % sOX); a("v_add_u32 v158, 65536, v156")
    a("v_lshlrev_b32 v13, 5, v2")
    a("v_lshl_add_u32 v13, v3, 3, v13")
    a("s_add_u32 s%d, s%d, %d" % (sT1, sT3, O_U + 480))
    a("v_add_u32 v14, s%d, v13" % sT1)
    for i in range(4): a("ds_read_b64 %s, v14 offset:%d" % (vr(XW + 2 * i, 2), i * 512))
    for q in range(8): rg(0, q); rf(0, 7 - q)
    nm = 0
    if "noconv" in EXP:
        a("s_waitcnt lgkmcnt(0)")
        while side: a(side.pop(0))
    EC = ENV("EC", 0); ECR = ENV("ECR", 2); ECS = ENV("ECS", 5); ECN = ENV("ECN", 1)
    ecq = []
    def ec_start():
        a("v_cmp_le_u32 s[86:87], 1, v164")
        a("v_mov_b32 v159, 1")
        a("s_and_b32 s%d, s86, 1" % sLD)
        a("s_waitcnt vmcnt(%d)" % (1 if YP == 3 else 0))
        for n in range(0, 12, ECN):
            ecq.append(["s_mov_b64 exec, s[86:87]"])
            for n_ in range(n, n + ECN):
                s_ = 9 + n_ // 4; hi = WDS[s_ % 6] >= 65536
                ecq[-1].append("ds_write_b128 v%d, %s offset:%d" % ((156, 158)[hi], vr(176 + 4 * n_, 4), WDS[s_ % 6] - 65536 * hi + (n_ % 4) * 1024))
            if n + ECN >= 12: ecq[-1] += ["s_mov_b32 exec_lo, s%d" % sLD, "s_mov_b32 exec_hi, 0", "ds_write_b8 v161, v159 offset:%d" % Y_WS]
            ecq[-1].append("s_mov_b64 exec, -1")
    for ri in range(4 if "noconv" not in EXP else 0):
        for q in range(8):
            for m in range(7, q - 1, -1):
                if q == 0:
                    a("s_waitcnt lgkmcnt(%d)" % min(15, 3 * m))
                a("v_mfma_f32_16x16x32_f16 %s, %s, %s, %s" % (vr(CA + 4 * m, 4), vr(G + 4 * q, 4), vr(F + 4 * (m - q), 4), "0" if TRIM and ri == 0 and q == 0 else vr(CA + 4 * m, 4)))
                nm += 1
                if NSTA and SP0 < 0 and side2 and nm % ENV("SPM", 4) == 0: st_ld(side2.pop(0))
                if nm > 8 and side:
                    a(side.pop(0))
                    while side and side[0].startswith("s_"): a(side.pop(0))
                if ecq and nm % ECS == 0:
                    for x in ecq.pop(0): a(x)
            if q == 0 and ri in CTRY: copy_try()
            if EC and q == 0 and ri == ECR: ec_start()
            if q == 7 and (ri + 1 in CTRY or (EC and ri + 1 == ECR)): a("ds_read_u8 v164, v161 offset:%d" % Y_TR)
            if ri + 1 < 4: rg(ri + 1, q); rf(ri + 1, 7 - q)
    assert not side and not ecq
    sk_("mfma")
    a("s_setprio %d" % ENV("PPRIO", 3))
    x1, x2 = L("X"), L("X")
    a("s_cmp_lg_u32 s%d, 0" % sHF)
    a("s_cbranch_scc1 %s" % x1)
    a.begin_opt()
    for i in range(4): a("ds_write_b128 v5, %s offset:%d" % (vr(CA + 16 + 4 * i, 4), i * 1024))
    a("s_mov_b64 exec, 1")
    a("ds_write_b8 v161, v163 offset:%d" % Y_CX)
    a("s_mov_b64 exec, -1")
    a("s_branch %s" % x2)
    a.end_opt()
    a.label(x1)
    a.begin_opt()
    for i in range(4): a("ds_write_b128 v5, %s offset:%d" % (vr(CA + 4 * i, 4), i * 1024))
    a("s_mov_b64 exec, 1")
    a("ds_write_b8 v161, v163 offset:%d" % Y_CX)
    a("s_mov_b64 exec, -1")
    for i in range(16): a("v_mov_b32 v%d, v%d" % (CA + i, CA + 16 + i))
    a.end_opt()
    a.label(x2)
    if YP == 3 and "nopp" not in EXP:
        lq, lq2 = L("PP"), L("PP")
        a("s_mov_b32 s%d, %d" % (sOX, SPIN))
        a.label(lq)
        a("s_waitcnt vmcnt(0)")
        a("v_cmp_ne_u32 vcc, s%d, v169" % sNON)
        a("s_cmp_eq_u32 vcc_lo, 0")
        a("s_cbranch_scc1 %s" % lq2)
        a("s_sleep 4")
        a("s_mov_b32 exec_hi, 0")
        a("buffer_load_dword v169, v174, s[%d:%d], 0 offen offset:128 sc1" % (SWS, SWS + 3))
        a("s_mov_b64 exec, -1")
        a("s_sub_u32 s%d, s%d, 1" % (sOX, sOX)); a("s_cmp_lg_u32 s%d, 0" % sOX)
        a("s_cbranch_scc1 %s" % lq)
        a.label(lq2)
    spin_lds(165, 164, 1, slp=0)
    if "hx" in EXP: sk_("xch")
    for i in range(4): a("ds_read_b128 %s, v152 offset:%d" % (vr(CA + 16 + 4 * i, 4), i * 1024))
    for i in range(4):
        a("s_waitcnt lgkmcnt(%d)" % (3 - i))
        for pr in range(2):
            y = CA + 4 * i + 2 * pr; o = XO + 4 * i + 2 * pr
            a("v_add_f32 v%d, v%d, v%d" % (y, y, y + 16)); a("v_add_f32 v%d, v%d, v%d" % (y + 1, y + 1, y + 17))
            ks_ = "s%d" % sINV if TRIM else "v9"
            a("v_mul_f32 v%d, %s, v%d" % (y, ks_, y)); a("v_mul_f32 v%d, %s, v%d" % (y + 1, ks_, y + 1))
            a("v_cvt_pk_bf16_f32 v%d, v%d, v%d" % (y, y, y + 1))
            a("v_and_b32 v%d, 0xffff0000, v%d" % (y + 1, y)); a("v_lshlrev_b32 v%d, 16, v%d" % (y, y))
            a("v_add_f32 v%d, v%d, v%d" % (y, y, o)); a("v_add_f32 v%d, v%d, v%d" % (y + 1, y + 1, o + 1))
            a("v_cvt_pk_bf16_f32 v%d, v%d, v%d" % (72 + 2 * i + pr, y, y + 1))
        if i & 1:
            b = 72 + 4 * (i >> 1)
            a("v_permlane16_swap_b32 v%d, v%d" % (b, b + 2)); a("v_permlane16_swap_b32 v%d, v%d" % (b + 1, b + 3))
            if AL == 2: a("buffer_store_dwordx4 %s, v13, s[%d:%d], s%d offen sc1" % (vr(b, 4), SOUT, SOUT + 3, (sT0, sOW)[i >> 1]))
            else: a("buffer_store_dwordx4 %s, v13, s[%d:%d], s%d offen offset:%d %s" % (vr(b, 4), SWS, SWS + 3, sT0, (i >> 1) * 1024, os.environ.get("YSM", "sc1").replace("_", " ")))
    setf(Y_XR)
    if "hx" in EXP: sk_("yst")
    def cflag():
        if YP: return
        a("s_waitcnt vmcnt(0)")
        a("s_mov_b64 exec, 1")
        a("buffer_store_dwordx2 v[166:167], v14, s[%d:%d], 0 offen sc1" % (SWS, SWS + 3))
        a("s_mov_b64 exec, -1")
    def yld(m=True):
        if m: a("s_mov_b64 exec, s[84:85]")
        a("buffer_load_dwordx4 v[104:107], v154, s[%d:%d], s%d offen sc1" % (SWS, SWS + 3, sT2))
        if m: a("s_mov_b64 exec, s[86:87]")
        a("buffer_load_dwordx4 v[108:111], v154, s[%d:%d], s%d offen sc1" % (SWS, SWS + 3, sT3))
        if m: a("s_mov_b64 exec, -1")
    if EC:
        assert YP
        c1 = L("CO")
        a("s_setprio %d" % ENV("QPRIO", 0))
        a("s_cmp_lg_u32 s%d, 0" % sLD)
        a("s_cbranch_scc1 %s" % c1)
        a.begin_opt()
        spin_lds(161, 164, 1, slp=1, off=Y_TR)
        copy_part(0)
        a.end_opt()
        a.label(c1)
        sk_("flag")
        if ENV("CSA", 0): a("s_sleep %d" % ENV("CSA", 0))
        if ENV("YE", 1): yld(False)
        copy_part(1)
        lp, ld, le = L("CP"), L("CP"), L("CP")
        a("s_mov_b32 s%d, %d" % (sOX, SPIN))
        if ENV("YE", 1): a("s_branch %s" % le)
        else: a("s_mov_b64 s[84:85], -1"); a("s_mov_b64 s[86:87], -1")
        a.label(lp)
        yld()
        a.label(le)
        a("s_waitcnt vmcnt(0)")
        a("v_cmp_eq_u32 s[84:85], -1, v104")
        a("v_cmp_eq_u32 s[86:87], -1, v108")
        a("s_or_b64 vcc, s[84:85], s[86:87]")
        a("s_cbranch_scc0 %s" % ld)
        a("s_sleep %d" % int(os.environ.get("CSL", "8")))
        a("s_sub_u32 s%d, s%d, 1" % (sOX, sOX)); a("s_cmp_lg_u32 s%d, 0" % sOX)
        a("s_cbranch_scc1 %s" % lp)
        a.label(ld)
        sk_("polled")
        waitp(Y_XR)
        a("ds_write_b128 v5, v[104:107]")
        a("ds_write_b128 v5, v[108:111] offset:1024")
        setf(Y_YA)
        a("s_waitcnt lgkmcnt(0)")
        sk_("end")
        sk_.store(100)
        a("s_endpgm")
        return
    if ENV("COA", 2) == 1:
        cflag()
        sk_("flag")
        spin_lds(161, 164, 1, slp=1, off=Y_TR)
        copy_out()
    elif ENV("COA", 2) == 2:
        a("ds_read_u8 v164, v161 offset:%d" % Y_TR)
        a("s_waitcnt vmcnt(2) lgkmcnt(0)")
        c1 = L("CO")
        a("v_cmp_gt_u32 vcc, 1, v164")
        a("s_cbranch_vccnz %s" % c1)
        a.begin_opt()
        a("s_mov_b32 s%d, 1" % sLD)
        copy_part(0)
        a.end_opt()
        a.label(c1)
        cflag()
        sk_("flag")
        spin_lds(161, 164, 1, slp=1, off=Y_TR)
        copy_out()
    elif NSTA:
        c1, c2 = L("CO"), L("CO")
        a("ds_read_u8 v164, v161 offset:%d" % Y_TR)
        a("s_waitcnt vmcnt(2) lgkmcnt(0)")
        a("v_cmp_gt_u32 vcc, 1, v164")
        a("s_cbranch_vccnz %s" % c1)
        a.begin_opt()
        copy_out(); cflag()
        a("s_branch %s" % c2)
        a.end_opt()
        a.label(c1)
        a.begin_opt()
        cflag()
        spin_lds(161, 164, 1, slp=1, off=Y_TR)
        copy_out()
        a.end_opt()
        a.label(c2)
    else: cflag()
    if not ENV("COA", 2): sk_("flag")
    a("s_setprio 0")
    a("s_sleep %d" % int(os.environ.get("CSL0", "8")))
    lp, ld = L("CP"), L("CP")
    a("s_mov_b32 s%d, %d" % (sOX, SPIN))
    if YP:
        assert YST == 4096
        a("s_mov_b64 s[84:85], -1"); a("s_mov_b64 s[86:87], -1")
        a.label(lp)
        a("s_mov_b64 exec, s[84:85]")
        a("buffer_load_dwordx4 v[104:107], v154, s[%d:%d], s%d offen sc1" % (SWS, SWS + 3, sT2))
        a("s_mov_b64 exec, s[86:87]")
        a("buffer_load_dwordx4 v[108:111], v154, s[%d:%d], s%d offen sc1" % (SWS, SWS + 3, sT3))
        a("s_mov_b64 exec, -1")
        a("s_waitcnt vmcnt(0)")
        a("v_cmp_eq_u32 s[84:85], -1, v104")
        a("v_cmp_eq_u32 s[86:87], -1, v108")
        a("s_or_b64 vcc, s[84:85], s[86:87]")
        a("s_cbranch_scc0 %s" % ld)
        a("s_sleep %d" % int(os.environ.get("CSL", "8")))
        a("s_sub_u32 s%d, s%d, 1" % (sOX, sOX)); a("s_cmp_lg_u32 s%d, 0" % sOX)
        a("s_cbranch_scc1 %s" % lp)
        a.label(ld)
        sk_("polled")
        waitp(Y_XR)
        a("ds_write_b128 v5, v[104:107]")
        a("ds_write_b128 v5, v[108:111] offset:1024")
        setf(Y_YA)
        a("s_waitcnt lgkmcnt(0)")
        sk_("end")
        sk_.store(100)
        a("s_endpgm")
        return
    a.label(lp)
    a("s_mov_b64 exec, 0xffff")
    a("buffer_load_dwordx2 v[20:21], v153, s[%d:%d], 0 offen sc1" % (SWS, SWS + 3))
    a("s_waitcnt vmcnt(0)")
    a("v_cmp_ne_u64 vcc, s[%d:%d], v[20:21]" % (sNON, sNON + 1))
    a("s_mov_b64 exec, -1")
    a("s_cbranch_vccz %s" % ld)
    a("s_sleep %d" % int(os.environ.get("CSL", "8")))
    a("s_sub_u32 s%d, s%d, 1" % (sOX, sOX)); a("s_cmp_lg_u32 s%d, 0" % sOX)
    a("s_cbranch_scc1 %s" % lp)
    a.label(ld)
    sk_("polled")
    SY = SOUT if AL == 2 else SWS
    a("buffer_load_dwordx4 v[104:107], v154, s[%d:%d], s%d offen%s" % (SY, SY + 3, sT2, " sc1" if AL else ""))
    a("buffer_load_dwordx4 v[108:111], v154, s[%d:%d], s%d offen%s" % (SY, SY + 3, sT3, " sc1" if AL else ""))
    waitp(Y_XR)
    a("s_waitcnt vmcnt(0)")
    a("ds_write_b128 v5, v[104:107]")
    a("ds_write_b128 v5, v[108:111] offset:1024")
    setf(Y_YA)
    a("s_waitcnt lgkmcnt(0)")
    sk_("end")
    sk_.store(100)
    a("s_endpgm")

def producer(a, sp_, L, spin_lds):
    a.label("K_PROD")
    a.vmq = []
    a.nopkw = True
    if NF: a("s_memrealtime s[48:49]")
    XT_S = 912
    L_PC = 64 * XT_S
    a("v_lshrrev_b32 v2, 3, v1")
    a("v_and_b32 v3, 7, v1")
    a("s_lshr_b32 s%d, s2, 3" % sT1)
    a("s_bfe_u32 s%d, s2, 0x20001" % sT0); a("s_lshl_b32 s%d, s%d, 3" % (sR, sT0)); a("s_lshl_b32 s%d, s%d, 1" % (sT1, sT1))
    a("s_add_u32 s%d, s%d, s%d" % (sR, sR, sT1)); a("s_and_b32 s%d, s2, 1" % sT0); a("s_add_u32 s%d, s%d, s%d" % (sR, sR, sT0))
    if ENV("SWP", 1) == 1: a("s_xor_b32 s%d, s%d, 1" % (sT0, sT0))
    a("s_lshr_b32 s%d, s2, 1" % sF); a("s_min_u32 s%d, s%d, 13" % (sF, sF)); a("s_mul_i32 s%d, s%d, 14" % (sT0, sT0)); a("s_add_u32 s%d, s%d, s%d" % (sF, sF, sT0))
    a("s_lshl_b32 s%d, s%d, 3" % (sT0, sWV))
    a("v_add_u32 v4, s%d, v2" % sT0)
    a("s_lshl_b32 s%d, s%d, 6" % (sT1, sR))
    a("v_add_u32 v5, s%d, v4" % sT1)
    a("v_mul_u32_u24 v6, 896, v5")
    a("v_lshl_add_u32 v6, v3, 4, v6")
    a("s_waitcnt lgkmcnt(0)")
    srd(a, SX, 16, 2048 * 896)
    for i in range(7):
        a.vm("buffer_load_dwordx4 %s, v6, s[%d:%d], 0 offen offset:%d" % (vr(32 + 4 * i, 4), SX, SX + 3, i * 128), "x%d" % i)
    srd(a, SWS, 14, WS_SIZE)
    srd(a, SDBG, 12, 256)
    def poison():
        a("s_lshl_b32 s%d, s2, 3" % sT0); a("s_add_u32 s%d, s%d, s%d" % (sT0, sT0, sWV)); a("s_mul_i32 s%d, s%d, 7168" % (sT0, sT0))
        a("s_add_u32 s%d, s%d, %d" % (sT0, sT0, WS_YAT)); a("s_add_u32 s%d, s%d, 4096" % (sT1, sT0))
        a("v_lshlrev_b32 v140, 4, v1")
        for r in range(136, 140): a("v_mov_b32 v%d, -1" % r)
        for i in range(7):
            a.vm("buffer_store_dwordx4 v[136:139], v140, s[%d:%d], s%d offen offset:%d sc1" % (SWS, SWS + 3, (sT0, sT1)[i >> 2], (i & 3) * 1024), "poi")
    ln = L("NN")
    a("s_or_b32 s%d, s2, s%d" % (sT0, sWV))
    a("s_cbranch_scc1 %s" % ln)
    a.begin_opt()
    a("s_memrealtime s[%d:%d]" % (sNON, sNON + 1))
    a("s_waitcnt lgkmcnt(0)")
    a("s_or_b32 s%d, s%d, 0x40000000" % (sNON + 1, sNON + 1)); a("s_or_b32 s%d, s%d, 1" % (sNON, sNON))
    a("v_mov_b32 v12, s%d" % sNON); a("v_mov_b32 v13, s%d" % (sNON + 1)); a("v_mov_b32 v14, 64")
    a("s_mov_b64 exec, 1")
    a("buffer_store_dwordx2 v[12:13], v14, s[%d:%d], 0 offen sc1" % (SDBG, SDBG + 3))
    a("s_mov_b64 exec, -1")
    a.end_opt()
    a.label(ln)
    if YP == 1: poison()
    a("s_lshr_b32 s%d, s%d, 1" % (sT1, sWV))
    a("s_mul_i32 s%d, s%d, %d" % (sT1, sT1, 112 * 3584))
    a("s_lshl_b32 s%d, s%d, 7" % (sT2, sF))
    a("s_add_u32 s%d, s%d, s%d" % (sT1, sT1, sT2))
    a("v_mul_u32_u24 v9, 3584, v2")
    a("v_lshl_add_u32 v9, v3, 4, v9")
    a("v_add_u32 v9, s%d, v9" % sT1)
    a("s_bitcmp0_b32 s%d, 0" % sWV)
    a("s_cselect_b32 s%d, s32, s34" % SWG)
    a("s_cselect_b32 s%d, s33, s35" % (SWG + 1))
    a("s_and_b32 s%d, s%d, 0xffff" % (SWG + 1, SWG + 1))
    a("s_mov_b32 s%d, 0x%x" % (SWG + 2, 448 * 3584))
    a("s_mov_b32 s%d, 0x00020000" % (SWG + 3))
    wq = list(range(14))
    def ldw(n):
        for _ in range(n):
            if not wq: return
            i = wq.pop(0)
            a("s_mov_b32 s%d, %d" % (sOW, i * 8 * 3584))
            a.vm("buffer_load_dwordx4 %s, v9, s[%d:%d], s%d offen" % (vr(64 + 4 * i, 4), SWG, SWG + 3, sOW), "w%d" % i)
    a("s_mov_b32 s%d, 0x3f803f80" % sONES)
    a("v_mov_b32 v10, 0"); a("v_mov_b32 v11, 0"); a("v_mov_b32 v12, 0"); a("v_mov_b32 v13, 0")
    a("v_mul_u32_u24 v7, %d, v4" % XT_S)
    a("v_lshl_add_u32 v7, v3, 4, v7")
    a("v_lshlrev_b32 v8, 4, v5")
    a("s_lshl_b32 s%d, s2, 8" % sT2); a("s_add_u32 s%d, s%d, %d" % (sT2, sT2, WS_PF))
    a("v_lshl_add_u32 v28, v1, 13, s%d" % sT2)
    a("s_lshl_b32 s%d, s%d, 8" % (sT0, sR)); a("s_add_u32 s%d, s%d, %d" % (sT0, sT0, WS_FR))
    a("s_lshl_b32 s%d, s%d, 8" % (sT1, sF)); a("s_add_u32 s%d, s%d, %d" % (sT1, sT1, WS_FC))
    a("s_cmp_eq_u32 s%d, 0" % sWV); a("s_cselect_b32 s%d, s%d, s%d" % (sT0, sT0, sT1)); a("v_mov_b32 v29, s%d" % sT0)
    a("v_mov_b32 v30, 64")
    if ENV("PFG", 1):
        a("v_mov_b32 v141, v28"); a("v_writelane_b32 v141, s%d, 8" % sT0)
        a("s_cmp_lt_u32 s%d, 2" % sWV); a("s_cselect_b32 exec_lo, 0x1ff, 0"); a("s_mov_b32 exec_hi, 0")
        a("buffer_load_dword v141, v141, s[%d:%d], 0 offen sc1" % (SWS, SWS + 3))
        a("s_mov_b64 exec, -1")
    for i in range(7):
        a.wait_vm("x%d" % i)
        for r in range(4):
            a("v_dot2_f32_bf16 v%d, v%d, s%d, v%d" % (10 + 2 * (r & 1), 32 + 4 * i + r, sONES, 10 + 2 * (r & 1)))
            a("v_dot2_f32_bf16 v%d, v%d, v%d, v%d" % (11 + 2 * (r & 1), 32 + 4 * i + r, 32 + 4 * i + r, 11 + 2 * (r & 1)))
    ldw(ENV("PW0", 3))
    a("v_add_f32 v10, v10, v12"); a("v_add_f32 v11, v11, v13")
    for mod in ("quad_perm:[1,0,3,2]", "quad_perm:[2,3,0,1]", "row_half_mirror"):
        for r in (10, 11):
            a("v_add_f32_dpp v%d, v%d, v%d %s row_mask:0xf bank_mask:0xf" % (r, r, r, mod))
    c = math.sqrt(2 / math.pi); k1 = -2 * c * LOG2E; k2 = k1 * 0.044715
    a("v_mul_f32 v10, %s, v10" % fbits(1.0 / 448))
    a("v_mul_f32 v11, %s, v11" % fbits(1.0 / 448))
    a("v_fma_f32 v11, -v10, v10, v11")
    a("v_max_f32 v11, 0, v11")
    a("v_cvt_pk_bf16_f32 v10, v10, v11")
    a("v_lshlrev_b32 v12, 16, v10")
    a("v_and_b32 v11, 0xffff0000, v10")
    a("v_add_f32 v11, %s, v11" % fbits(1e-5))
    a("v_cvt_pk_bf16_f32 v11, v11, v11")
    a("v_lshlrev_b32 v11, 16, v11")
    a("v_sqrt_f32 v11, v11")
    a("v_cvt_pk_bf16_f32 v11, v11, v11")
    a("v_lshlrev_b32 v11, 16, v11")
    a("v_rcp_f32 v14, v11")
    a("v_sub_f32 v16, 0, v12")
    a("v_cvt_pk_bf16_f32 v24, v16, v16")
    a("v_mul_f32 v27, v11, v11")
    a("v_mul_f32 v25, %s, v14" % fbits(k1))
    a("v_mul_f32 v10, v14, v14"); a("v_mul_f32 v10, v10, v14")
    a("v_mul_f32 v26, %s, v10" % fbits(k2))
    a("s_mov_b32 s%d, %d" % (sT0, WS_RC))
    a("s_mov_b32 exec_lo, 0x01010101"); a("s_mov_b32 exec_hi, 0x01010101")
    a.vm("buffer_store_dwordx4 v[24:27], v8, s[%d:%d], s%d offen sc1" % (SWS, SWS + 3, sT0), "rc")
    a("s_cmp_lt_u32 s%d, 2" % sWV); a("s_cselect_b32 exec_lo, 1, 0"); a("s_mov_b32 exec_hi, 0")
    a("buffer_load_dwordx2 v[18:19], v30, s[%d:%d], 0 offen sc1" % (SDBG, SDBG + 3))
    a("s_mov_b64 exec, -1")
    sp_("stats")
    def xn_blk(i):
        for r in range(4):
            w = 32 + 4 * i + r; t = 20 + 2 * (r & 1)
            a("v_lshlrev_b32 v%d, 16, v%d" % (t, w)); a("v_and_b32 v%d, 0xffff0000, v%d" % (t + 1, w))
            a("v_pk_add_f32 %s, %s, v[16:17] op_sel_hi:[1,0]" % (vr(t, 2), vr(t, 2)))
            a("v_cvt_pk_bf16_f32 v%d, v%d, v%d" % (t, t, t + 1))
            a("v_and_b32 v%d, 0xffff0000, v%d" % (t + 1, t)); a("v_lshlrev_b32 v%d, 16, v%d" % (t, t))
            a("v_pk_mul_f32 %s, %s, v[14:15] op_sel_hi:[1,0]" % (vr(t, 2), vr(t, 2)))
            a("v_cvt_pk_bf16_f32 v%d, v%d, v%d" % (t, t, t + 1))
            a("v_and_b32 v%d, 0xffff0000, v%d" % (t + 1, t)); a("v_lshlrev_b32 v%d, 16, v%d" % (t, t))
            a("v_cvt_pk_f16_f32 v%d, v%d, v%d" % (w, t, t + 1))
        a("ds_write_b128 v7, %s offset:%d" % (vr(32 + 4 * i, 4), i * 128))
    PO = ENV("PO", 2)
    if PO == 1:
        for i in range(7):
            xn_blk(i); ldw(ENV("PW1", 2))
        ldw(14)
        a("v_lshrrev_b32 v4, 4, v1"); a("v_and_b32 v5, 15, v1")
        a("v_lshrrev_b32 v6, 2, v5"); a("v_lshl_add_u32 v6, v4, 3, v6")
        a("v_bfe_u32 v7, v5, 1, 1"); a("v_lshl_add_u32 v6, v7, 5, v6")
        a("v_mul_u32_u24 v6, %d, v6" % XT_S)
        a("v_and_b32 v7, 1, v5"); a("v_lshl_add_u32 v6, v7, 3, v6")
        a("s_lshl_b32 s%d, s%d, 4" % (sOX, sWV))
        a("v_add_u32 v6, s%d, v6" % sOX)
        a("s_mul_i32 s%d, s%d, %d" % (sOX, sWV, 7 * 1152)); a("s_add_u32 s%d, s%d, %d" % (sOX, sOX, L_PC + 2048))
        a("v_and_b32 v31, 7, v5"); a("v_mul_u32_u24 v31, 144, v31"); a("v_lshl_add_u32 v31, v4, 4, v31")
        a("v_lshrrev_b32 v5, 3, v5"); a("v_lshl_add_u32 v31, v5, 6, v31"); a("v_add_u32 v31, s%d, v31" % sOX)
        a("v_mul_u32_u24 v8, 144, v2"); a("v_lshl_add_u32 v8, v3, 4, v8"); a("v_add_u32 v8, s%d, v8" % sOX)
        a("v_mul_u32_u24 v7, %d, v2" % XST); a("v_lshl_add_u32 v7, v3, 4, v7")
        a("s_lshl_b32 s%d, s%d, 7" % (sT2, sR)); a("s_add_u32 s%d, s%d, %d" % (sT2, sT2, WS_XNT))
        a("s_mul_i32 s%d, s%d, %d" % (sT1, sWV, 8 * XST)); a("s_add_u32 s%d, s%d, s%d" % (sT1, sT1, sT2))
        a("s_waitcnt lgkmcnt(0)")
        sp_("xn")
        a("s_barrier")
        sp_("pbar")
        for i in range(7):
            a("ds_read_b64_tr_b16 %s, v6 offset:%d" % (vr(32 + 4 * i, 2), i * 128))
            a("ds_read_b64_tr_b16 %s, v6 offset:%d" % (vr(34 + 4 * i, 2), i * 128 + 4 * XT_S))
        for i in range(7):
            a("s_waitcnt lgkmcnt(%d)" % 12)
            a("ds_write_b128 v31, %s offset:%d" % (vr(32 + 4 * i, 4), i * 1152))
            a("ds_read_b128 %s, v8 offset:%d" % (vr(144 + 4 * i, 4), i * 1152))
        for i in range(7):
            a("s_waitcnt lgkmcnt(%d)" % (12 - 2 * i))
            a.vm("buffer_store_dwordx4 %s, v7, s[%d:%d], s%d offen sc1" % (vr(144 + 4 * i, 4), SWS, SWS + 3, sT1), "xst")
            if i < 6: a("s_add_u32 s%d, s%d, %d" % (sT1, sT1, 64 * XST))
        sp_("st")
        a("s_mov_b32 s%d, 0x3f80" % sOX); a("s_mov_b32 s%d, 0x3f800000" % sOW)
        for r in range(120, 128): a("v_mov_b32 v%d, 0" % r)
        for i in range(14):
            a.wait_vm("w%d" % i)
            for r in range(4):
                w = 64 + 4 * i + r
                a("v_dot2_f32_bf16 v%d, v%d, s%d, v%d" % (120 + 2 * r, w, sOX, 120 + 2 * r))
                a("v_dot2_f32_bf16 v%d, v%d, s%d, v%d" % (121 + 2 * r, w, sOW, 121 + 2 * r))
        for r in range(120, 128): a("v_add_f32_dpp v%d, v%d, v%d row_ror:8 row_mask:0xf bank_mask:0xf" % (r, r, r))
        for op in ("v_permlane16_swap_b32", "v_permlane32_swap_b32"):
            for r in range(8): a("v_mov_b32 v%d, v%d" % (128 + r, 120 + r))
            for r in range(8): a("%s v%d, v%d" % (op, 120 + r, 128 + r))
            for r in range(8): a("v_add_f32 v%d, v%d, v%d" % (120 + r, 120 + r, 128 + r))
        a("s_lshl_b32 s%d, s%d, 8" % (sT0, sWV))
        a("s_add_u32 s%d, s%d, %d" % (sT0, sT0, L_PC))
        a("v_lshl_add_u32 v9, v3, 5, s%d" % sT0)
        a("s_mov_b64 exec, 0xff")
        a("ds_write_b128 v9, v[120:123]"); a("ds_write_b128 v9, v[124:127] offset:16")
        a("s_mov_b64 exec, -1")
        a("s_waitcnt lgkmcnt(0)")
        sp_("sum")
        a("s_barrier")
        la = L("PA")
        a("s_cmp_lg_u32 s%d, 1" % sWV)
        a("s_cbranch_scc1 %s" % la)
        a.begin_opt()
        a("v_lshlrev_b32 v9, 2, v1")
        a("v_add_u32 v20, %d, v9" % L_PC)
        for i in range(8): a("ds_read_b32 v%d, v20 offset:%d" % (120 + i, i * 256))
        a("s_lshl_b32 s%d, s%d, 9" % (sT2, sF)); a("s_add_u32 s%d, s%d, %d" % (sT0, sT2, WS_CS)); a("s_add_u32 s%d, s%d, %d" % (sT2, sT0, CSM))
        a("v_lshlrev_b32 v9, 3, v1")
        a("s_waitcnt lgkmcnt(0)")
        for m in range(2):
            c = 120 + m; o = 128 + 2 * m
            a("v_add_f32 v%d, v%d, v%d" % (c, c, c + 2)); a("v_add_f32 v%d, v%d, v%d" % (c + 4, c + 4, c + 6))
            a("v_add_f32 v%d, v%d, v%d" % (c, c, c + 4))
            a("v_cvt_pk_bf16_f32 v%d, v%d, v%d" % (c + 2, c, c)); a("v_lshlrev_b32 v%d, 16, v%d" % (c + 2, c + 2))
            a("v_sub_f32 v%d, v%d, v%d" % (c + 2, c, c + 2))
            a("v_cvt_pk_bf16_f32 v%d, v%d, v%d" % (o, c, c + 2)); a("v_and_b32 v%d, 0xffff0000, v%d" % (c + 4, o))
            a("v_sub_f32 v%d, v%d, v%d" % (c + 2, c + 2, c + 4))
            a("v_cvt_pk_bf16_f32 v%d, v%d, 0" % (o + 1, c + 2))
            a("buffer_store_dwordx2 v[%d:%d], v9, s[%d:%d], s%d offen sc1" % (o, o + 1, SWS, SWS + 3, (sT0, sT2)[m]))
        a("s_waitcnt vmcnt(2)")
        a("s_barrier")
        get_nonce(a, L, 30, 18, pre=True)
        a("v_mov_b32 v10, s%d" % sNON)
        a("s_mov_b64 exec, 1")
        a("buffer_store_dword v10, v29, s[%d:%d], 0 offen sc1" % (SWS, SWS + 3))
        a("s_mov_b64 exec, -1")
        sp_("flagC")
        if YP != 3:
            sp_.store(100)
            a("s_endpgm")
        else: a("s_branch K_PP")
        a.end_opt()
        a.label(la)
        a("s_waitcnt vmcnt(0)"); a.vmq = []
        a("s_barrier")
        a("s_cmp_lg_u32 s%d, 0" % sWV)
        a("s_cbranch_scc1 %s" % ("K_PP" if YP == 3 else "K_END"))
        a.begin_opt()
        get_nonce(a, L, 30, 18, pre=True)
        a("v_mov_b32 v10, s%d" % sNON)
        a("s_mov_b64 exec, 0xff")
        a("buffer_store_dword v10, v28, s[%d:%d], 0 offen sc1" % (SWS, SWS + 3))
        a("s_mov_b64 exec, 1")
        a("buffer_store_dword v10, v29, s[%d:%d], 0 offen sc1" % (SWS, SWS + 3))
        a("s_mov_b64 exec, -1")
        a.end_opt()
        if YP == 3:
            a.label("K_PP")
            if ENV("PPS", 0): a("s_sleep %d" % ENV("PPS", 0))
            poison()
            a("s_waitcnt vmcnt(0)")
            a("s_barrier")
            a("s_cmp_lg_u32 s%d, 1" % sWV)
            a("s_cbranch_scc1 K_END")
            a("s_mov_b64 exec, 0xff")
            a("buffer_store_dword v10, v28, s[%d:%d], 0 offen offset:128 sc1" % (SWS, SWS + 3))
            a("s_mov_b64 exec, -1")
            sp_("flagP")
            sp_.store(100)
        return
    def xaddr(sX=sT1):
        a("v_lshrrev_b32 v4, 4, v1"); a("v_and_b32 v5, 15, v1")
        a("v_lshrrev_b32 v6, 2, v5"); a("v_lshl_add_u32 v6, v4, 3, v6")
        a("v_bfe_u32 v7, v5, 1, 1"); a("v_lshl_add_u32 v6, v7, 5, v6")
        a("v_mul_u32_u24 v6, %d, v6" % XT_S)
        a("v_and_b32 v7, 1, v5"); a("v_lshl_add_u32 v6, v7, 3, v6")
        a("s_lshl_b32 s%d, s%d, 4" % (sOX, sWV))
        a("v_add_u32 v6, s%d, v6" % sOX)
        a("s_mul_i32 s%d, s%d, %d" % (sOX, sWV, 7 * 1152)); a("s_add_u32 s%d, s%d, %d" % (sOX, sOX, L_PC + 2048))
        a("v_and_b32 v31, 7, v5"); a("v_mul_u32_u24 v31, 144, v31"); a("v_lshl_add_u32 v31, v4, 4, v31")
        a("v_lshrrev_b32 v5, 3, v5"); a("v_lshl_add_u32 v31, v5, 6, v31"); a("v_add_u32 v31, s%d, v31" % sOX)
        a("v_mul_u32_u24 v8, 144, v2"); a("v_lshl_add_u32 v8, v3, 4, v8"); a("v_add_u32 v8, s%d, v8" % sOX)
        if AL == 2:
            srd(a, SOUT, 10, 2048 * 896)
            a("v_mul_u32_u24 v7, 896, v2"); a("v_lshl_add_u32 v7, v3, 4, v7")
            a("s_lshl_b32 s%d, s%d, 3" % (sT1, sR)); a("s_add_u32 s%d, s%d, s%d" % (sT1, sT1, sWV)); a("s_mul_i32 s%d, s%d, %d" % (sT1, sT1, 8 * 896))
            return
        a("v_mul_u32_u24 v7, %d, v2" % XST); a("v_lshl_add_u32 v7, v3, 4, v7")
        a("s_lshl_b32 s%d, s%d, 7" % (sT2, sR)); a("s_add_u32 s%d, s%d, %d" % (sT2, sT2, WS_XNT))
        a("s_mul_i32 s%d, s%d, %d" % (sT1, sWV, 8 * XST)); a("s_add_u32 s%d, s%d, s%d" % (sT1, sT1, sT2))
    NXA = 7 if PO == 2 else ENV("NXA", 4)
    for i in range(NXA):
        xn_blk(i); ldw(ENV("PW1", 2))
    ldw(14)
    a("s_mov_b32 s%d, 0x3f80" % sOX); a("s_mov_b32 s%d, 0x3f800000" % sOW)
    for r in range(120, 128): a("v_mov_b32 v%d, 0" % r)
    for i in range(14):
        a.wait_vm("w%d" % i)
        for r in range(4):
            w = 64 + 4 * i + r
            a("v_dot2_f32_bf16 v%d, v%d, s%d, v%d" % (120 + 2 * r, w, sOX, 120 + 2 * r))
            a("v_dot2_f32_bf16 v%d, v%d, s%d, v%d" % (121 + 2 * r, w, sOW, 121 + 2 * r))
    for r in range(120, 128): a("v_add_f32_dpp v%d, v%d, v%d row_ror:8 row_mask:0xf bank_mask:0xf" % (r, r, r))
    for op in ("v_permlane16_swap_b32", "v_permlane32_swap_b32"):
        for r in range(8): a("v_mov_b32 v%d, v%d" % (128 + r, 120 + r))
        for r in range(8): a("%s v%d, v%d" % (op, 120 + r, 128 + r))
        for r in range(8): a("v_add_f32 v%d, v%d, v%d" % (120 + r, 120 + r, 128 + r))
    a("s_lshl_b32 s%d, s%d, 8" % (sT0, sWV))
    a("s_add_u32 s%d, s%d, %d" % (sT0, sT0, L_PC))
    a("v_lshl_add_u32 v9, v3, 5, s%d" % sT0)
    a("s_mov_b64 exec, 0xff")
    a("ds_write_b128 v9, v[120:123]"); a("ds_write_b128 v9, v[124:127] offset:16")
    a("s_mov_b64 exec, -1")
    if PO == 2: xaddr()
    lw = L("PA")
    a("s_cmp_gt_u32 s%d, 1" % sWV)
    a("s_cbranch_scc1 %s" % lw)
    a.begin_opt()
    get_nonce(a, L, 30, 18, pre=True)
    a("v_mov_b32 v10, s%d" % sNON)
    a.end_opt()
    a.label(lw)
    a("s_waitcnt vmcnt(0) lgkmcnt(0)"); a.vmq = []
    sp_("sum")
    a("s_barrier")
    sp_("pbar0")
    PFP = ENV("PFP", 0)
    def pf_all():
        srd(a, SWD, 8, 1792 * 896)
        a("s_lshr_b32 s%d, s2, 3" % sT0); a("s_lshl_b32 s%d, s%d, 3" % (sT0, sT0)); a("s_add_u32 s%d, s%d, s%d" % (sT0, sT0, sWV))
        a("s_mul_i32 s%d, s%d, %d" % (sT0, sT0, 392 * 128))
        a("v_lshlrev_b32 v141, 7, v1")
        for i in range(7):
            a("buffer_load_dword v%d, v141, s[%d:%d], s%d offen" % (142 + i, SWD, SWD + 3, sT0))
            if i < 6: a("s_add_u32 s%d, s%d, %d" % (sT0, sT0, 8192 if i < 5 else 1024))
    def pf_mid():
        srd(a, SWD, 8, 1792 * 896)
        lp_ = L("PF")
        a("s_cmp_gt_u32 s%d, 5" % sWV)
        a("s_cbranch_scc1 %s" % lp_)
        a.begin_opt()
        a("s_lshr_b32 s%d, s2, 3" % sT0); a("s_mul_i32 s%d, s%d, %d" % (sT0, sT0, 448 * 896))
        a("s_lshr_b32 s%d, s%d, 1" % (sT2, sWV)); a("s_lshl_b32 s%d, s%d, 2" % (sT2, sT2)); a("s_lshr_b32 s%d, 0x31c, s%d" % (sT2, sT2)); a("s_and_b32 s%d, s%d, 15" % (sT2, sT2))
        a("s_lshl_b32 s%d, s%d, 1" % (sT2, sT2)); a("s_and_b32 s%d, s%d, 1" % (sT3, sWV)); a("s_add_u32 s%d, s%d, s%d" % (sT2, sT2, sT3))
        a("s_mul_i32 s%d, s%d, %d" % (sT2, sT2, 16 * 896)); a("s_add_u32 s%d, s%d, s%d" % (sT0, sT0, sT2))
        a("s_add_u32 s%d, s%d, %d" % (sT2, sT0, 48 * 128))
        a("v_lshlrev_b32 v141, 7, v1")
        a("buffer_load_dword v142, v141, s[%d:%d], s%d offen" % (SWD, SWD + 3, sT0))
        a("buffer_load_dword v143, v141, s[%d:%d], s%d offen" % (SWD, SWD + 3, sT2))
        a.end_opt()
        a.label(lp_)
    if PFP == 2:
        lp_ = L("PF")
        a("s_cmp_lt_u32 s%d, 2" % sWV)
        a("s_cbranch_scc1 %s" % lp_)
        a.begin_opt()
        pf_all()
        a.end_opt()
        a.label(lp_)
    la = L("PA")
    a("s_cmp_lg_u32 s%d, 1" % sWV)
    a("s_cbranch_scc1 %s" % la)
    a.begin_opt()
    a("v_lshlrev_b32 v9, 2, v1")
    a("v_add_u32 v20, %d, v9" % L_PC)
    for i in range(8): a("ds_read_b32 v%d, v20 offset:%d" % (120 + i, i * 256))
    a("s_lshl_b32 s%d, s%d, 9" % (sT2, sF)); a("s_add_u32 s%d, s%d, %d" % (sT0, sT2, WS_CS)); a("s_add_u32 s%d, s%d, %d" % (sT2, sT0, CSM))
    a("v_lshlrev_b32 v9, 3, v1")
    a("s_waitcnt lgkmcnt(0)")
    for m in range(2):
        c = 120 + m; o = 128 + 2 * m
        a("v_add_f32 v%d, v%d, v%d" % (c, c, c + 2)); a("v_add_f32 v%d, v%d, v%d" % (c + 4, c + 4, c + 6))
        a("v_add_f32 v%d, v%d, v%d" % (c, c, c + 4))
        a("v_cvt_pk_bf16_f32 v%d, v%d, v%d" % (c + 2, c, c)); a("v_lshlrev_b32 v%d, 16, v%d" % (c + 2, c + 2))
        a("v_sub_f32 v%d, v%d, v%d" % (c + 2, c, c + 2))
        a("v_cvt_pk_bf16_f32 v%d, v%d, v%d" % (o, c, c + 2)); a("v_and_b32 v%d, 0xffff0000, v%d" % (c + 4, o))
        a("v_sub_f32 v%d, v%d, v%d" % (c + 2, c + 2, c + 4))
        a("v_cvt_pk_bf16_f32 v%d, v%d, 0" % (o + 1, c + 2))
        a("buffer_store_dwordx2 v[%d:%d], v9, s[%d:%d], s%d offen sc1" % (o, o + 1, SWS, SWS + 3, (sT0, sT2)[m]))
    a.end_opt()
    a.label(la)
    for i in range(NXA, 7):
        xn_blk(i)
        if i == min(6, NXA + ENV("NXF", 2)):
            lb = L("PA")
            a("s_cmp_gt_u32 s%d, 1" % sWV)
            a("s_cbranch_scc1 %s" % lb)
            a.begin_opt()
            a("s_waitcnt vmcnt(0)")
            a("s_mov_b64 exec, 1")
            a("buffer_store_dword v10, v29, s[%d:%d], 0 offen sc1" % (SWS, SWS + 3))
            a("s_mov_b64 exec, -1")
            if PFP == 2: pf_all()
            a.end_opt()
            a.label(lb)
            sp_("flagC")
    if PO != 2: xaddr()
    if YP == 2:
        a("s_mov_b32 s%d, s%d" % (sT3, sT1)); poison(); a("s_mov_b32 s%d, s%d" % (sT1, sT3))
    if PO == 2:
        a("s_cmp_eq_u32 s%d, 0" % sWV); a("s_cselect_b32 exec_lo, 1, 0"); a("s_mov_b32 exec_hi, 0")
        a("buffer_store_dword v10, v29, s[%d:%d], 0 offen sc1" % (SWS, SWS + 3))
        a("s_mov_b64 exec, -1")
    else:
        a("s_waitcnt lgkmcnt(0)")
        a("s_barrier")
        sp_("pbar")
    for i in range(7):
        a("ds_read_b64_tr_b16 %s, v6 offset:%d" % (vr(32 + 4 * i, 2), i * 128))
        a("ds_read_b64_tr_b16 %s, v6 offset:%d" % (vr(34 + 4 * i, 2), i * 128 + 4 * XT_S))
    for i in range(7):
        a("s_waitcnt lgkmcnt(%d)" % 12)
        a("ds_write_b128 v31, %s offset:%d" % (vr(32 + 4 * i, 4), i * 1152))
        a("ds_read_b128 %s, v8 offset:%d" % (vr(64 + 4 * i, 4), i * 1152))
    for i in range(7):
        a("s_waitcnt lgkmcnt(%d)" % (12 - 2 * i))
        if AL == 2:
            a.vm("buffer_store_dwordx4 %s, v7, s[%d:%d], s%d offen offset:%d sc1" % (vr(64 + 4 * i, 4), SOUT, SOUT + 3, sT1, i * 128), "xst")
            continue
        a.vm("buffer_store_dwordx4 %s, v7, s[%d:%d], s%d offen %s" % (vr(64 + 4 * i, 4), SWS, SWS + 3, sT1, os.environ.get("XSM", "sc1").replace("_", " ")), "xst")
        if i < 6: a("s_add_u32 s%d, s%d, %d" % (sT1, sT1, 64 * XST))
    sp_("st")
    if PO == 2:
        lc1, lc2 = L("PC"), L("PC")
        a("s_cmp_lg_u32 s%d, 1" % sWV)
        a("s_cbranch_scc1 %s" % lc1)
        a.begin_opt()
        a("s_waitcnt vmcnt(7)")
        a("s_mov_b64 exec, 1")
        a("buffer_store_dword v10, v29, s[%d:%d], 0 offen sc1" % (SWS, SWS + 3))
        a("s_mov_b64 exec, -1")
        sp_("flagC")
        a("s_waitcnt vmcnt(1)")
        a("s_branch %s" % lc2)
        a.end_opt()
        a.label(lc1)
        a("s_waitcnt vmcnt(0)")
        a.label(lc2)
    else: a("s_waitcnt vmcnt(0)")
    a("s_barrier")
    if YP == 3:
        a("s_cmp_eq_u32 s%d, 1" % sWV); a("s_cselect_b32 exec_lo, 0xff, 0"); a("s_mov_b32 exec_hi, 0")
        a("buffer_store_dword v10, v28, s[%d:%d], 0 offen sc1" % (SWS, SWS + 3))
        a("s_mov_b64 exec, -1")
        sp_("flagB")
        if PFP == 1: pf_mid()
        if PFP == 3: pf_all()
        poison()
        a("s_waitcnt vmcnt(0)")
        a("s_barrier")
    if ENV("CPF2", 0):
        a("s_cmp_eq_u32 s%d, 1" % sWV); a("s_cselect_b32 exec_lo, 0xff, 0"); a("s_mov_b32 exec_hi, 0")
        a("buffer_store_dword v10, v28, s[%d:%d], 0 offen sc1" % (SWS, SWS + 3))
        a("s_mov_b64 exec, -1")
        sp_("flagB")
        a("s_getpc_b64 s[4:5]")
        a.label("K_PF2")
        a("s_sub_u32 s4, s4, K_PF2-K_PFB"); a("s_subb_u32 s5, s5, 0")
        a("s_lshr_b32 s%d, s2, 3" % sT0)
        a("v_lshl_add_u32 v2, s%d, 7, v0" % sT0)
        a("v_lshlrev_b32 v2, 7, v2")
        a("v_min_u32 v2, K_END-K_PFB, v2")
        for i in range(ENV("CPF2", 0)):
            if i: a("s_sleep 40")
            a("s_cmp_lt_u32 s%d, 2" % sWV); a("s_cselect_b64 exec, -1, 0")
            a("global_load_dword v255, v2, s[4:5]")
            a("s_mov_b64 exec, -1")
            a("s_waitcnt vmcnt(0)")
        a("s_cmp_lg_u32 s%d, 1" % sWV)
        a("s_cbranch_scc1 K_END")
        sp_.store(100)
        return
    if ENV("PFD", 0):
        a("s_cmp_eq_u32 s%d, 1" % sWV); a("s_cselect_b32 exec_lo, 0xff, 0"); a("s_mov_b32 exec_hi, 0")
        a("buffer_store_dword v10, v28, s[%d:%d], 0 offen sc1" % (SWS, SWS + 3))
        a("s_mov_b64 exec, -1")
        sp_("flagB")
        for _ in range(ENV("PFD", 0) - 1): a("s_sleep 64")
        a("s_lshl_b32 s%d, s2, 3" % sT0); a("s_add_u32 s%d, s%d, s%d" % (sT0, sT0, sWV)); a("s_mul_i32 s%d, s%d, 7168" % (sT0, sT0))
        a("v_lshl_add_u32 v141, v1, 7, s%d" % sT0)
        a("s_mov_b32 exec_hi, 0xffffff")
        a("global_load_dword v141, v141, s[10:11]")
        a("s_mov_b64 exec, -1")
        a("s_waitcnt vmcnt(0)")
        sp_("pfd")
        a("s_cmp_lg_u32 s%d, 1" % sWV)
        a("s_cbranch_scc1 K_END")
        sp_.store(100)
        return
    a("s_cmp_lg_u32 s%d, 1" % sWV)
    a("s_cbranch_scc1 K_END")
    a("s_mov_b64 exec, 0xff")
    a("buffer_store_dword v10, v28, s[%d:%d], 0 offen offset:%d sc1" % (SWS, SWS + 3, 128 if YP == 3 else 0))
    a("s_mov_b64 exec, -1")
    sp_("flagB" if YP != 3 else "flagP")
    sp_.store(100)
```

```python
import math, os, sys, struct
from asmlib import Asm
def fbits(x): return "0x%08x" % struct.unpack("<I", struct.pack("<f", x))[0]
LOG2E = math.log2(math.e)
def vr(b, n=1): return "v%d" % b if n == 1 else "v[%d:%d]" % (b, b + n - 1)
EXP = os.environ.get('EXP', '')
STAMP = int(os.environ.get("STAMP", "0"))
RT = os.environ.get("RT", "")
MAPB = int(os.environ.get("MAPB", "0"))
WS_H = 0; WS_XNT = 8 << 20; WS_KREV = 12 << 20; WS_KSC = 16 << 20
WS_HF = 17 << 20
WS_CF = (17 << 20) + (1 << 19)
WS_PF = 18 << 20
WS_FR = WS_PF + 131072
WS_FC = WS_FR + 8192
WS_RC = 19 << 20; WS_CS = (19 << 20) + 65536
if int(os.environ.get("CMPW", "0")):
    WS_HF = 7 << 20; WS_CF = WS_HF + (1 << 18); WS_PF = WS_CF + (1 << 17); WS_FR = WS_PF + 131072; WS_FC = WS_FR + 8192
    WS_RC = WS_FC + 8192; WS_CS = WS_RC + 65536
WS_YAT = 20 << 20; WS_DBG = 24 << 20; WS_SIZE = 32 << 20
KSTRIDE = 4160
SPIN = 0x8000

def srd(a, d, p, nbytes):
    off = int(os.environ.get("WSB", "112")) << 20
    if p == 14 and off:
        a("s_add_u32 s%d, s%d, 0x%x" % (d, p, off))
        a("s_addc_u32 s%d, s%d, 0" % (d + 1, p + 1))
        a("s_and_b32 s%d, s%d, 0xffff" % (d + 1, d + 1))
        if int(os.environ.get("WSA", "0")): a("s_and_b32 s%d, s%d, 0xfe000000" % (d, d))
        a("s_mov_b32 s%d, 0x%x" % (d + 2, nbytes))
        a("s_mov_b32 s%d, 0x00020000" % (d + 3))
        return
    a("s_mov_b32 s%d, s%d" % (d, p))
    a("s_and_b32 s%d, s%d, 0xffff" % (d + 1, p + 1))
    a("s_mov_b32 s%d, 0x%x" % (d + 2, nbytes))
    a("s_mov_b32 s%d, 0x00020000" % (d + 3))

SX, SWG, SWU, SWS, SWD, SOUT, SDBG = 40, 44, 48, 52, 56, 60, 64
sWV, sR, sF, sWR, sWC, sRT2, sCT = 68, 69, 70, 71, 72, 73, 74
sLD = 75
sT0, sT1, sT2, sT3 = 76, 77, 78, 79
sOX, sOW, sWB, sCNT = 80, 81, 82, 83
sNON = 84
sPM = 86
sCH, sHF, sKW, sSC, sINV = 3, 4, 5, 6, 7
sONES, sCVB, sSTG = 38, 39, 36
STB = 88

class Stamps:
    def __init__(self, a, base=None):
        self.a = a; self.n = base.n if base else 0; self.names = list(base.names) if base else []; self.ffn = False
    def __call__(self, name):
        if os.environ.get("MEAS") == name and self.ffn:
            self.a("s_memrealtime s[100:101]"); self.a("s_waitcnt lgkmcnt(0)"); self.a("s_mov_b32 s99, s100")
        if not STAMP: return
        if RT == "1" and name not in ("start", "end"): return
        if "su" in EXP and self.n >= 11 and name != "end": return
        if "f2a" in EXP and not (name in ("start", "flag1", "hpoll") or (name[:2] == "s_" and int(name[2:]) < 9)) and self.ffn: return
        if "f2b" in EXP and not (name in ("start", "f2end", "end") or (name[:2] == "s_" and int(name[2:]) >= 5)) and self.ffn: return
        if name[:2] == "s_" and "f2" not in EXP: return
        if name[:2] == "l_" and "lp" not in EXP: return
        if name[:2] == "u_" and "sv" not in EXP: return
        if "sv" in EXP and self.ffn and not (name[:2] == "u_" or name in ("start", "st0", "loopend", "end")): return
        if "lp" in EXP and self.ffn and not (name[:2] == "l_" or name in ("start", "st0", "loopend", "gelu")): return
        assert self.n < 12, name
        self.a("%s s[100:101]" % ("s_memrealtime" if RT else "s_memtime"))
        self.a("s_waitcnt lgkmcnt(0)")
        self.a("s_mov_b32 s%d, s100" % (STB + self.n))
        self.n += 1; self.names.append(name)
    def store(self, vt):
        if not STAMP: return
        a = self.a
        a("s_lshl_b32 s100, s2, 4"); a("s_add_u32 s100, s100, s%d" % sWV); a("s_lshl_b32 s100, s100, 6")
        a("s_add_u32 s100, s100, %d" % WS_DBG)
        a("s_mov_b64 exec, 1")
        a("v_mov_b32 v%d, s100" % vt)
        for i in range(self.n):
            a("v_mov_b32 v%d, s%d" % (vt + 1, STB + i))
            a("buffer_store_dword v%d, v%d, s[%d:%d], 0 offen offset:%d" % (vt + 1, vt, SWS, SWS + 3, 4 * i))
            a("s_waitcnt vmcnt(0)")
        a("s_mov_b64 exec, -1")

ENV = lambda k, d: int(os.environ.get(k, str(d)))
L_W = 0
L_X = [65536, 98304 + 17408, 81920]
RING = 98304
STG_W = 4352; L_STG = RING
L_CV = RING + 4 * STG_W
CPS = 4160; O_U = 4 * CPS; CV_CH = O_U + 4608
L_SYNC = L_CV + 2 * CV_CH
L_FL = L_SYNC + 512
FLS = 320
KT = ENV("KT", 0)
MIX = ENV("MIX", 0)
LDS = L_FL + (4 * FLS if KT else 256)
assert L_X[1] == L_CV and LDS <= 163840
Y_CNT = 0; Y_RDA = 8; Y_RDB = 9; Y_NON = 16; Y_KX = 24; Y_C0 = 28; Y_BL = 32; Y_CX = 36; Y_XR = 40; Y_YA = 44; Y_KEXP = 48; Y_RD = 64; Y_TR = 68; Y_WS = 72; Y_U = 76
NSTA = ENV('NSTA', 5)
WDS = [32768, 49152, 81920, 0, 16384, 65536]
CSM = 1792 * 8
sFW = 36; sHD = 37
FSH = ENV('FSH', 8)

def gen():
    a = Asm()
    lab = [0]
    def L(p): lab[0] += 1; return "%s_%d" % (p, lab[0])
    st_ = Stamps(a)
    def spin_lds(addr, tmp, need, width="u8", slp=1, off=0):
        l1, l2 = L("SP"), L("SD")
        a("s_mov_b32 s%d, %d" % (sCNT, SPIN))
        a.label(l1)
        a("ds_read_%s v%d, v%d offset:%d" % (width, tmp, addr, off))
        a("s_waitcnt lgkmcnt(0)")
        a("v_cmp_gt_u32 vcc, %d, v%d" % (need, tmp))
        a("s_cbranch_vccz %s" % l2)
        if slp: a("s_sleep %d" % slp)
        a("s_sub_u32 s%d, s%d, 1" % (sCNT, sCNT))
        a("s_cmp_lg_u32 s%d, 0" % sCNT)
        a("s_cbranch_scc1 %s" % l1)
        a.label(l2)

    a("s_cmp_ge_u32 s2, 256")
    a("s_cbranch_scc1 K_END")
    st_("start")
    a("s_load_dwordx16 s[16:31], s[0:1], 0")
    a("s_load_dwordx4 s[32:35], s[0:1], 80")
    a("s_load_dwordx8 s[8:15], s[0:1], 96")
    a("v_lshrrev_b32 v1, 6, v0")
    a("v_readfirstlane_b32 s%d, v1" % sWV)
    a("v_and_b32 v1, 63, v0")
    CPF = ENV("CPF", 8)
    if CPF:
        CPW = ENV("CPW", 2)
        if CPW == 1: a("s_cmp_lg_u32 s%d, 6" % sWV)
        elif CPW == 2: a("s_cmp_ge_u32 s2, 32")
        else: a("s_cmp_ge_u32 s2, %d" % CPF)
        a("s_cbranch_scc1 K_NPF")
        a.begin_opt()
        a("s_getpc_b64 s[4:5]")
        a.label("K_PFB")
        if CPW == 1:
            a("s_lshr_b32 s6, s2, 3"); a("v_lshl_add_u32 v2, s6, 4, v1"); a("v_lshlrev_b32 v2, 7, v2"); a("s_mov_b64 exec, 0xffff")
        elif CPW == 2:
            a("s_and_b32 s6, s2, 24"); a("s_add_u32 s6, s6, s%d" % sWV); a("v_lshl_add_u32 v2, s6, 4, v1"); a("v_lshlrev_b32 v2, 7, v2"); a("s_mov_b64 exec, 0xffff")
        else: a("v_lshlrev_b32 v2, 7, v0")
        a("v_min_u32 v2, K_END-K_PFB, v2")
        a("global_load_dword v255, v2, s[4:5]")
        if CPW: a("s_mov_b64 exec, -1")
        a.end_opt()
        a.label("K_NPF")
    a("s_cmp_lt_u32 s2, 32")
    a("s_cbranch_scc1 K_PROD")
    a("s_and_b32 s%d, s2, 7" % sT0)
    a("s_lshr_b32 s%d, s2, 3" % sT1)
    a("s_sub_u32 s%d, s%d, 4" % (sT1, sT1))
    a("s_lshr_b32 s%d, s%d, 1" % (sT2, sT0)); a("s_lshl_b32 s%d, s%d, 2" % (sT2, sT2))
    a("s_and_b32 s%d, s%d, 3" % (sT3, sT1)); a("s_add_u32 s%d, s%d, s%d" % (sR, sT2, sT3))
    a("%s s%d, %s" % (("s_andn2_b32", sT2, "1, s%d" % sT0) if ENV("SWP", 1) else ("s_and_b32", sT2, "s%d, 1" % sT0))); a("s_mul_i32 s%d, s%d, 7" % (sT2, sT2))
    a("s_lshr_b32 s%d, s%d, 2" % (sCT, sT1)); a("s_add_u32 s%d, s%d, s%d" % (sF, sT2, sCT))
    a("s_lshl_b32 s%d, s%d, 2" % (sRT2, sT0)); a("s_add_u32 s%d, s%d, s%d" % (sRT2, sRT2, sT3))
    a("s_cmp_ge_u32 s%d, 4" % sWV)
    a("s_cbranch_scc1 K_HELP")
    sf_ = Stamps(a, st_); sf_.ffn = True; sh_ = Stamps(a, st_); sp_ = Stamps(a, st_)
    NST = 14
    a("s_setprio %d" % ENV("FPRIO", 2))
    a("s_and_b32 s%d, s%d, 1" % (sWR, sWV))
    a("s_lshr_b32 s%d, s%d, 1" % (sWC, sWV))
    a("s_lshl_b32 s%d, s%d, 11" % (sWB, sWV))
    a("s_lshl_b32 s%d, s%d, 12" % (sOX, sWV))
    a("v_lshrrev_b32 v2, 3, v1")
    a("s_lshl_b32 s%d, s%d, 7" % (sT0, sR))
    a("s_lshl_b32 s%d, s%d, 5" % (sT1, sWV))
    a("s_add_u32 s%d, s%d, s%d" % (sT0, sT0, sT1))
    a("v_add_u32 v2, s%d, v2" % sT0)
    a("v_mul_u32_u24 v2, 896, v2")
    a("v_lshrrev_b32 v5, 4, v1")
    a("v_xor_b32 v6, v1, v5")
    a("v_and_b32 v6, 7, v6")
    a("v_xor_b32 v7, 4, v6")
    a("v_lshl_add_u32 v3, v7, 4, v2")
    a("v_add_u32 v3, %d, v3" % (8 * 896 - 1024))
    a("v_lshl_add_u32 v2, v6, 4, v2")
    a("v_add_u32 v56, %d, v2" % (16 * 896 - 2048)); a("v_add_u32 v57, %d, v3" % (16 * 896 - 2048))
    a("v_mul_u32_u24 v4, 3584, v5")
    a("v_lshlrev_b32 v6, 2, v5")
    a("v_xor_b32 v6, v1, v6")
    a("v_and_b32 v6, 15, v6")
    a("v_lshl_add_u32 v4, v6, 4, v4")
    a("s_lshl_b32 s%d, s%d, 8" % (sT0, sF))
    if MIX:
        a("v_lshrrev_b32 v6, 3, v6"); a("v_lshl_add_u32 v4, v6, 7, v4")
        a("s_and_b32 s%d, s%d, 1" % (sT1, sF)); a("s_lshl_b32 s%d, s%d, 7" % (sT1, sT1)); a("s_sub_u32 s%d, s%d, s%d" % (sT0, sT0, sT1))
    a("s_mul_i32 s%d, s%d, %d" % (sT1, sWV, 8 * 3584)); a("s_add_u32 s%d, s%d, s%d" % (sT0, sT0, sT1))
    a("v_add_u32 v4, s%d, v4" % sT0)
    a("v_add_u32 v58, %d, v4" % (4 * 3584 - 2048))
    a("s_mul_i32 s%d, s%d, %d" % (sFW, sWV, FLS if KT else 4)); a("s_add_u32 s%d, s%d, %d" % (sFW, sFW, L_FL))
    ROT = ENV("ROT", 0); ROT1 = ENV("ROT1", 0); ROT2 = ENV("ROT2", 0)
    RJ = [3, 4, 5, 6, 7, 38, 39]
    a("s_lshl_b32 s%d, s%d, 1" % (sT0, sT3)); a("s_add_u32 s%d, s%d, s%d" % (sT0, sT0, sCT)); a("s_lshl_b32 s%d, s%d, 7" % (sT0, sT0))
    def rj(i):
        if i: a("s_add_u32 s%d, s%d, 128" % (sT0, RJ[i - 1]))
        a("s_sub_u32 s%d, s%d, 896" % (sT1, sT0)); a("s_cmp_ge_u32 s%d, 896" % sT0); a("s_cselect_b32 s%d, s%d, s%d" % (RJ[i], sT1, sT0))
    if ROT1 == 2: a("s_lshl_b32 s%d, s%d, 8" % (sT0, sT3))
    if ROT1 == 3: a("s_lshl_b32 s%d, s%d, 7" % (sT0, sCT))
    if ROT1 >= 4: a("s_and_b32 s%d, s%d, 1" % (sT0, sF)); a("s_xor_b32 s%d, s%d, %d" % (sT0, sT0, ROT1 & 1)); a("s_mul_i32 s%d, s%d, %d" % (sT0, sT0, 128 * ENV("RSH", 1)))
    if ROT1: rj(0)
    sf_("u_addr")
    a("s_waitcnt lgkmcnt(0)")
    VFL, VFA = 50, 51
    cur = {}
    def setr(r, txt):
        def f():
            if cur.get(r) != txt: cur[r] = txt; a0(txt)
        return f
    a0 = a
    sOW2, sOWX = 5, 6
    def dma_x(b):
        if ROT1: return [[setr("m0", "s_add_u32 m0, s%d, %d" % (sOX, L_X[b % 3])),
                 ("buffer_load_dwordx4 v%d, s[%d:%d], s%d offen offset:%d lds" % ((2, 3, 56, 57)[i], SX, SX + 3, RJ[b], i * 1024), ("x", b))] for i in range(4)]
        return [[setr("m0", "s_add_u32 m0, s%d, %d" % (sOX, L_X[b % 3])), setr("ox", "s_movk_i32 s%d, %d" % (sOWX, b * 128)),
                 ("buffer_load_dwordx4 v%d, s[%d:%d], s%d offen offset:%d lds" % ((2, 3, 56, 57)[i], SX, SX + 3, sOWX, i * 1024), ("x", b))] for i in range(4)]
    def dma_w(st):
        out = []
        if ROT1:
            for mat in range(2):
                for i in range(2):
                    S = (SWG, SWU)[mat]
                    out.append([setr("m0", "s_add_u32 m0, s%d, %d" % (sOX, L_W + (st % 4) * 16384 + mat * 1024)),
                                setr(sOW, "s_mul_i32 s%d, s%d, 1792" % (sOW, RJ[st >> 1]) + ("\ns_add_u32 s%d, s%d, %d" % (sOW, sOW, 32 * 3584) if st & 1 else "")),
                                ("buffer_load_dwordx4 v%d, s[%d:%d], s%d offen offset:%d lds" % ((4, 58)[i], S, S + 3, sOW, i * 2048), ("w", st))])
            return out
        for i in range(2):
            for mat in range(2):
                S = (SWG, SWU)[mat]
                if st == 0 and mat:
                    out.append([setr("m0", "s_add_u32 m0, s%d, %d" % (sOX, L_W + 1024)),
                                ("buffer_load_dwordx4 v%d, s[%d:%d], 0 offen offset:%d lds" % ((4, 58)[i], S, S + 3, i * 2048), ("w", st))])
                    continue
                so = (sOW, sOW2)[mat]
                out.append([setr("m0", "s_add_u32 m0, s%d, %d" % (sOX, L_W + (st % 4) * 16384)), setr(so, "s_mov_b32 s%d, %d" % (so, st * 32 * 3584 - mat * 1024)),
                            ("buffer_load_dwordx4 v%d, s[%d:%d], s%d offen offset:%d lds" % ((4, 58)[i], S, S + 3, so, i * 2048 + mat * 1024), ("w", st))])
        if st == 0: out = [out[0], out[2], out[1], out[3]]
        return out
    def dflag(idx):
        if not KT: return [setr("m0", "s_add_u32 m0, s%d, %d" % (sFW, 16 * idx)), "s_mov_b64 exec, 1", ("global_load_lds_dword v%d, s[30:31]" % 59 if ENV("KS", 0) and idx >= ENV("KS", 0) - 1 else "global_load_lds_dword v%d, s[0:1]" % VFL, "fl"), "s_mov_b64 exec, -1"]
        return [setr("m0", "s_mov_b32 m0, s%d" % sFW), ("global_load_lds_dword v%d, s[30:31] offset:%d" % (VFL, 4 * idx), "fl")]
    def emit(g, a=a):
        for x in g:
            if callable(x): x()
            elif isinstance(x, tuple) and x[0].startswith("ds_"): a.ds(x[0], x[1])
            elif isinstance(x, tuple): a.vm(x[0], x[1])
            else: a(x)
    srd(a, SX, 16, 2048 * 896)
    for g in dma_x(0): emit(g)
    srd(a, SWG, 32, 448 * 3584)
    srd(a, SWU, 34, 448 * 3584)
    for g in dma_w(0): emit(g)
    if ROT1:
        for i in range(1, 7): rj(i)
    if KT:
        a("v_mov_b32 v%d, 0" % VFL)
        a("s_getpc_b64 s[30:31]")
        a.label("K_TB")
        a("s_add_u32 s30, s30, K_TAB-K_TB"); a("s_addc_u32 s31, s31, 0")
    else: a("s_cmp_lg_u32 s15, 0"); a("s_cselect_b32 s%d, 31, 30" % sT0); a("s_lshl_b32 s%d, s%d, 2" % (sT0, sT0)); a("v_mov_b32 v%d, s%d" % (VFL, sT0))
    if ENV("KS", 0): a("s_getpc_b64 s[30:31]"); a("v_mov_b32 v59, 0")
    sf_("u_dma0")
    a("s_barrier")
    sf_("u_bar")
    emit(dflag(0))
    Q = []
    for k in range(1, 14):
        if k % 2 == 0: Q += [(max(0, k - 4), g) for g in dma_x(k // 2)]
        w_ = dma_w(k); w_[-1] = w_[-1] + dflag(k)
        Q += [(max(0, k - 3), g) for g in w_]
    NPRE = ENV("NPRE", 12)
    pend = [g for _, g in Q[:NPRE]]; Q = Q[NPRE:]
    a_real = a
    ILN = ENV("ILN", 4)
    class IL:
        def __init__(s_): s_.n = 0
        def __call__(s_, t):
            a_real(t); s_.n += 1
            if s_.n % ILN == 0 and pend: emit(pend.pop(0))
    a = IL()
    a("v_lshlrev_b32 v15, 2, v1")
    a("v_and_b32 v11, 3, v1"); a("v_mul_u32_u24 v%d, %d, v11" % (VFA, FLS if KT else 4)); a("v_add_u32 v11, %d, v11" % (L_SYNC + Y_CNT))
    a("v_add_u32 v%d, %d, v%d" % (VFA, L_FL + (64 if KT else 0), VFA))
    a("s_add_u32 s%d, s%d, %d" % (sT0, sWV, L_SYNC + Y_CNT)); a("v_mov_b32 v12, s%d" % sT0)
    a("v_add_u32 v13, %d, v15" % (L_SYNC + 128)); a("v_cmp_eq_u32 vcc, 0, v1"); a("v_cndmask_b32 v12, v13, v12, vcc")
    a("v_mov_b32 v10, %d" % (L_SYNC + Y_RDA))
    a("v_and_b32 v16, 31, v1")
    a("s_lshl_b32 s%d, s%d, 6" % (sT0, sWR))
    a("v_add_u32 v22, s%d, v16" % sT0)
    a("v_lshrrev_b32 v17, 5, v1")
    a("v_bfe_u32 v18, v1, 1, 3")
    a("v_xor_b32 v18, v17, v18")
    a("v_lshlrev_b32 v5, 7, v22")
    a("v_lshl_add_u32 v5, v18, 4, v5")
    a("v_add_u32 v5, 65536, v5")
    a("v_xor_b32 v6, 32, v5"); a("v_xor_b32 v7, 64, v5"); a("v_xor_b32 v8, 96, v5")
    a("v_bfe_u32 v19, v1, 2, 2")
    a("v_lshl_add_u32 v20, v17, 4, v19")
    a("v_lshlrev_b32 v9, 8, v20")
    a("v_bfe_u32 v20, v1, 4, 1"); a("v_lshlrev_b32 v20, 1, v20")
    a("v_bfe_u32 v21, v1, 1, 1"); a("v_add_u32 v20, v20, v21")
    a("s_lshl_b32 s%d, s%d, 3" % (sT0, sWC))
    a("v_add_u32 v20, s%d, v20" % sT0)
    a("v_lshlrev_b32 v21, 2, v19")
    a("v_xor_b32 v20, v20, v21")
    a("v_lshl_add_u32 v9, v20, 4, v9")
    a("v_and_b32 v21, 1, v1")
    a("v_lshl_add_u32 v9, v21, 3, v9")
    a("v_xor_b32 v0, 64, v9")
    srd(a, SWS, 14, WS_SIZE)
    srd(a, SWD, 8, 1792 * 896)
    srd(a, SOUT, 10, 2048 * 896)
    a("s_lshl_b32 s%d, s%d, 11" % (sT0, sR)); a("s_add_u32 s%d, s%d, %d" % (sT0, sT0, WS_RC))
    a("v_lshl_add_u32 v18, v22, 4, s%d" % sT0)
    if MIX:
        a("s_add_u32 s%d, s%d, s%d" % (sT0, sF, sWC)); a("s_lshl_b32 s%d, s%d, 1" % (sT0, sT0)); a("s_and_b32 s%d, s%d, 1" % (sT1, sF)); a("s_sub_u32 s%d, s%d, s%d" % (sT1, sT0, sT1))
        a("s_lshl_b32 s%d, s%d, 9" % (sT0, sT1))
    else: a("s_lshl_b32 s%d, s%d, 10" % (sT0, sF)); a("s_lshl_b32 s%d, s%d, 9" % (sT1, sWC)); a("s_add_u32 s%d, s%d, s%d" % (sT0, sT0, sT1))
    a("s_add_u32 s%d, s%d, %d" % (sT0, sT0, WS_CS))
    a("v_lshl_add_u32 v19, v16, 3, s%d" % sT0)
    a("v_lshl_add_u32 v19, v17, 2, v19")
    a("s_lshl_b32 s%d, s%d, 1" % (sT0, sR))
    a("s_add_u32 s%d, s%d, s%d" % (sT0, sT0, sWR))
    if not MIX:
        a("s_lshl_b32 s%d, s%d, 1" % (sT1, sF))
        a("s_add_u32 s%d, s%d, s%d" % (sT1, sT1, sWC))
    a("s_lshl_b32 s%d, s%d, 8" % (sT2, sT0)); a("s_add_u32 s%d, s%d, %d" % (sT2, sT2, WS_FR)); a("v_mov_b32 v15, s%d" % sT2)
    a("s_lshl_b32 s%d, s%d, 8" % (sT2, sT1)); a("s_add_u32 s%d, s%d, %d" % (sT2, sT2, WS_FC)); a("v_writelane_b32 v15, s%d, 1" % sT2)
    a("s_mul_i32 s%d, s%d, 37" % (sT3, sT1)); a("s_lshr_b32 s%d, s%d, 8" % (sT3, sT3)); a("s_add_u32 s%d, s%d, s%d" % (sT3, sT3, sT1))
    a("s_lshl_b32 s%d, s%d, 1" % (sT1, sT1))
    a("s_lshl_b32 s%d, s%d, 5" % (sT2, sT0)); a("s_add_u32 s%d, s%d, s%d" % (sT2, sT2, sT3)); a("s_lshl_b32 s%d, s%d, %d" % (sT2, sT2, FSH))
    a("s_add_u32 s%d, s%d, %d" % (sT2, sT2, WS_HF))
    a("v_mov_b32 v21, s%d" % sT2)
    a("s_mul_i32 s%d, s%d, 56" % (sT0, sT0))
    a("s_add_u32 s%d, s%d, s%d" % (sT0, sT0, sT1))
    a("s_lshl_b32 s%d, s%d, 12" % (sT0, sT0))
    a("v_and_b32 v20, 15, v1")
    a("v_lshlrev_b32 v20, 4, v20")
    a("v_bfe_u32 v22, v1, 4, 1")
    a("v_lshl_add_u32 v20, v22, 10, v20")
    a("v_lshl_add_u32 v20, v17, 8, v20")
    a("v_add_u32 v20, s%d, v20" % sT0)
    a("s_mov_b32 s%d, 0" % sLD)
    CA_, CB_ = 32, 42
    for r in range(33, 50):
        if r not in (34, 36, 38, 42, 46): a("v_mov_b32 v%d, 0" % r)
    a("v_lshrrev_b32 v16, 3, v1")
    a("s_mul_i32 s%d, s%d, %d" % (sT0, sWV, 448 * 896))
    a("v_mul_u32_u24 v16, 896, v16")
    a("s_lshl_b32 s%d, s%d, 7" % (sT1, sCT)); a("s_add_u32 s%d, s%d, s%d" % (sT0, sT0, sT1))
    a("v_add_u32 v16, s%d, v16" % sT0)
    a("v_xor_b32 v17, v1, v22"); a("v_and_b32 v17, 7, v17")
    a("v_lshl_add_u32 v52, v17, 4, v16")
    for q in range(1, 4): a("v_add_u32 v%d, %d, v52" % (52 + q, q * (8 * 896 - 1024)))
    a = a_real
    while pend: emit(pend.pop(0))
    ACC = lambda ff, mat, tt: 128 + 64 * ff + 32 * mat + 16 * tt
    FR = [80, 104]
    RC = [24, 28]
    NW = 6
    J = lambda s: 2 * (s % 7) + s // 7
    WDV = [52, 52]
    def dma_wd(s):
        if "now" in EXP and s >= 6: return []
        if s < 6:
            return [[setr("m0", "s_add_u32 m0, s%d, %d" % (sOX, WDS[s % NW])), setr(sOW, "s_mov_b32 s%d, %d" % (sOW, J(s) * 32 * 896)),
                     ("buffer_load_dwordx4 v%d, s[%d:%d], s%d offen offset:%d lds" % (52 + q, SWD, SWD + 3, sOW, q * 1024), ("wd", s))] for q in range(4)]
        return [["s_add_u32 m0, s%d, %d" % (sOX, WDS[s % NW] + q * 1024), "s_mov_b32 s%d, %d" % (sOW, (J(s) * 32 + 8 * q) * 896),
                 ("buffer_load_dwordx4 v2, s[%d:%d], s%d offen lds" % (SWD, SWD + 3, sOW), ("wd", s))] for q in range(4)]
    def rd_frags(st, kk):
        fb = FR[kk]
        slot = st % 4
        xo = L_X[(st >> 1) % 3] - 65536
        xa = 5 + 2 * (st & 1) + kk
        def wr(ff, mat):
            return [("ds_read_b64_tr_b16 %s, v%d offset:%d" % (vr(fb + 8 + 8 * ff + 4 * mat + 2 * half, 2), (9, 0)[ff], L_W + slot * 16384 + mat * 1024 + kk * 8192 + half * 2048), ("fr", st, kk, ff, mat)) for half in range(2)]
        xr = lambda tt: [("ds_read_b128 %s, v%d offset:%d" % (vr(fb + 4 * tt, 4), xa, xo + tt * 4096), ("fx", st, kk, tt))]
        return [xr(0) + wr(0, 0), xr(1), wr(0, 1), wr(1, 0), wr(1, 1)]
    def mfmas(kk, first=False):
        fb = FR[kk]
        return ["v_mfma_f32_32x32x16_bf16 %s, %s, %s, %s" % (vr(ACC(ff, mat, tt), 16), vr(fb + 8 + 8 * ff + 4 * mat, 4), vr(fb + 4 * tt, 4), "0" if first else vr(ACC(ff, mat, tt), 16))
                for ff in range(2) for mat in range(2) for tt in range(2)]
    def inter(st, kk, groups):
        for i, m in enumerate(mfmas(kk, st == 0 and kk == 0)):
            ff, mat, tt = i >> 2, (i >> 1) & 1, i & 1
            if i == 1: a.wait_ds(("fx", st, kk, 1))
            a.wait_ds(("fr", st, kk, ff, mat))
            a(m)
            for sl, g in groups:
                if sl == i: emit(g)
    def arrive(v, off=0):
        a("v_mov_b32 v13, %d" % v)
        a.ds("ds_write_b8 v12, v13 offset:%d" % off, "sig")
    deferred = []
    chk0 = [0]
    def check(v, kind):
        if "nochk" in EXP and 1 < len(a.vmq) and v < 14 and chk0[0]: return
        chk0[0] = 1
        a("s_getpc_b64 s[20:21]")
        a("v_cmp_gt_u32 vcc, %d, v%d" % (v, 14 if kind == "F" else 16))
        a("s_cbranch_vccnz K_RT_%s" % kind)
    def retries():
        a("s_mov_b32 s18, %d" % (SPIN * 4))
        a("s_branch K_RTE")
        for kind in ("R", "F"):
            r = 14 if kind == "F" else 16
            a.label("K_RT_%s" % kind)
            if ENV("RTS" + kind, 0): a("s_sleep %d" % ENV("RTS" + kind, 0))
            a("ds_read_b32 v14, v%d" % VFA if kind == "F" else "ds_read_u8 v16, v11 offset:%d" % Y_RD)
            a("s_sub_i32 s18, s18, 1"); a("s_max_i32 s18, s18, 0")
            a("s_cmp_eq_u32 s18, 0"); a("s_cselect_b32 s19, 255, 0")
            a("s_waitcnt lgkmcnt(0)")
            a("v_or_b32 v%d, s19, v%d" % (r, r))
            a("s_setpc_b64 s[20:21]")
        a.label("K_RTE")
    def const_loads():
        for tt in range(2):
            a("buffer_load_dwordx4 %s, v18, s[%d:%d], 0 offen offset:%d" % (vr(RC[tt], 4), SWS, SWS + 3, tt * 512))
        a("s_movk_i32 s%d, %d" % (sT0, CSM))
        for ff in range(2):
            a("buffer_load_dword v%d, v19, s[%d:%d], 0 offen offset:%d" % (CA_ + 4 * ff, SWS, SWS + 3, ff * 256))
            a("buffer_load_dword v%d, v19, s[%d:%d], s%d offen offset:%d" % (CA_ + 4 * ff + 2, SWS, SWS + 3, sT0, ff * 256))
        a("s_mov_b32 s%d, 1" % sLD)
    def get_non():
        a.wait_ds("non")
        a("v_readfirstlane_b32 s%d, v22" % sNON); a("v_readfirstlane_b32 s%d, v23" % (sNON + 1))
    def pollA():
        a.vm("buffer_load_dword v17, v15, s[%d:%d], 0 offen sc1" % (SWS, SWS + 3), "pf")
    def try_const():
        l = L("CL"); lo = L("CLO")
        a.wait_vm("pf")
        a("v_cmp_ne_u32 vcc, s%d, v17" % sNON)
        a("s_cbranch_vccz %s" % lo)
        a.label(l)
        a.mark("cst")
        def slow():
            a.label(lo)
            a("s_cmp_eq_u32 s%d, 0" % (sNON + 1))
            a("s_cbranch_scc1 %s" % l)
            a("s_cmp_lg_u32 s%d, 0" % sLD)
            a("s_cbranch_scc1 %s" % l)
            const_loads()
            a("s_branch %s" % l)
        deferred.append(slow)
    PA = ENV("PA", 3)
    RS = [int(c) for c in os.environ.get("RS", "01245")]
    TP = [int(c) for c in os.environ.get("TP", "9,11").split(",")]
    EARLY = ENV("EARLY", 1)
    sf_("u_pre")
    if "sv" in EXP: a.wait_vm(("x", 0)); sf_("u_x0"); a.wait_vm(("w", 0)); sf_("u_w0")
    retries()
    a("v_mov_b32 v14, 0")
    check(1, "F")
    a.dsq = []
    sf_("st0")
    a("s_setprio %d" % ENV("LPRIO", 3))
    poll = ([] if KT else ["v_add_u32 v%d, 16, v%d" % (VFA, VFA)]) + [("ds_read_b32 v14, v%d" % VFA, "pA")]
    for g in rd_frags(0, 0): emit(g)
    DMX = ENV("DMX", 6)
    if EARLY: Q += [(11, g) for g in dma_wd(0)] + [(12, g) for g in dma_wd(1) + dma_wd(2)] + [(13, g) for g in dma_wd(3)]
    SD = []
    for st in range(NST):
        D = []
        while Q and Q[0][0] <= st and len(D) < (DMX if st else 8): D.append(Q.pop(0)[1])
        SD.append(D)
    assert not Q
    if ENV("VERB", 0): print("DMA per stage", [len(d) for d in SD])
    stageD = lambda st: SD[st]
    for st in range(NST):
        if st in (7,) and not NSTA: sf_("st%d" % st)
        if st in (1, 2, 3, 4, 6, 8, 10, 12): sf_("l_%d" % st)
        D = stageD(st)
        DS = [(int(x) // 8, int(x) % 8) for x in os.environ.get("DS", "4,6,9,11,13,15").split(",")] if len(D) <= 6 else [(0, 3), (0, 5), (0, 7), (1, 1), (1, 2), (1, 4), (1, 5), (1, 7)]
        if st == 0: DS = [(0, 0), (0, 2), (0, 4), (0, 6), (1, 1), (1, 3), (1, 5), (1, 7)]
        G = []
        G += [(RS[i], g) for i, g in enumerate(rd_frags(st, 1))]
        if st + 1 in TP: G.append((5, [("ds_read_b64 v[22:23], v10 offset:%d" % (Y_NON - Y_RDA), "non")]))
        if st - 2 in TP: G.append((0, [try_const]))
        if st in TP: G.append((1, [get_non, pollA]))
        if D and st: G.append((ENV("RCK", 3), [lambda: a.wait_ds("pR"), lambda st=st: check(st, "R")]))
        G += [(DS[i][1], g) for i, g in enumerate(D) if DS[i][0] == 0]
        if st + 1 < NST: G.append((PA, poll))
        if ENV("ARS", 5) < 8: G.append((ENV("ARS", 5), [lambda st=st: arrive(st + 1, Y_RD)]))
        inter(st, 0, G)
        G = []
        if st + 1 < NST:
            G.append((0, [lambda: a.wait_ds("pA"), lambda st=st: check(st + 2 if KT else 1, "F")]))
            G += [(RS[i], g) for i, g in enumerate(rd_frags(st + 1, 0))]
        if ENV("ARS", 5) >= 8: G.append((ENV("ARS", 5) - 8, [lambda st=st: arrive(st + 1, Y_RD)]))
        G += [(DS[i][1], g) for i, g in enumerate(D) if DS[i][0] == 1]
        if st + 1 == NST or stageD(st + 1): G.append((ENV("PRS", 7), [("ds_read_u8 v16, v11 offset:%d" % Y_RD, "pR")]))
        inter(st, 1, G)
    sf_("loopend")
    a("s_setprio %d" % ENV("GPRIO", 1))
    l = L("CL"); lo = L("CLO"); l1 = L("CLP"); l2 = L("CLP")
    a("s_cmp_eq_u32 s%d, 0" % sLD)
    a("s_cbranch_scc1 %s" % lo)
    a.wait_vm("cst")
    a.label(l)
    def slow(l=l, lo=lo):
        a.label(lo)
        a("s_mov_b32 s%d, %d" % (sCNT, SPIN))
        a.label(l1)
        a("ds_read_b64 v[22:23], v10 offset:%d" % (Y_NON - Y_RDA))
        a("buffer_load_dword v17, v15, s[%d:%d], 0 offen sc1" % (SWS, SWS + 3))
        a("s_waitcnt vmcnt(0) lgkmcnt(0)")
        a("v_readfirstlane_b32 s%d, v22" % sNON); a("v_readfirstlane_b32 s%d, v23" % (sNON + 1))
        a("v_cmp_ne_u32 vcc, s%d, v17" % sNON)
        a("s_cmp_eq_u32 s%d, 0" % (sNON + 1))
        a("s_cselect_b64 s[%d:%d], -1, vcc" % (sT0, sT0 + 1))
        a("s_cmp_eq_u64 s[%d:%d], 0" % (sT0, sT0 + 1))
        a("s_cbranch_scc1 %s" % l2)
        a("s_sleep 2")
        a("s_sub_u32 s%d, s%d, 1" % (sCNT, sCNT)); a("s_cmp_lg_u32 s%d, 0" % sCNT)
        a("s_cbranch_scc1 %s" % l1)
        a.label(l2)
        const_loads()
        a("s_waitcnt vmcnt(0)")
        a("s_branch %s" % l)
    deferred.append(slow)
    for tt in range(2): a("v_mov_b32 v%d, v%d" % (CB_ + 4 * tt, RC[tt]))
    corr = ["v_mfma_f32_32x32x16_bf16 %s, %s, %s, %s" % (vr(ACC(ff, mat, tt), 16), vr(CA_ + 4 * ff + 2 * mat, 4), vr(CB_ + 4 * tt, 4), vr(ACC(ff, mat, tt), 16))
            for ff in range(2) for tt in range(2) for mat in range(2)]
    a(corr[0]); a(corr[1])
    a("v_mov_b32 v2, v52"); WDV = [2, 2]
    a("s_lshl_b32 s%d, s%d, 2" % (sT0, sRT2)); a("s_add_u32 s%d, s%d, s%d" % (sT0, sT0, sWV)); a("s_lshl_b32 s%d, s%d, %d" % (sT0, sT0, FSH + 3))
    a("s_add_u32 s%d, s%d, %d" % (sT0, sT0, WS_HF))
    a("v_lshrrev_b32 v8, 1, v1"); a("v_lshlrev_b32 v8, %d, v8" % FSH); a("v_and_b32 v14, 1, v1"); a("v_lshl_add_u32 v8, v14, 2, v8")
    a("v_add_u32 v8, s%d, v8" % sT0)
    a(corr[2])
    TRB = [[4, 5], [6, 7]]
    a("v_bfe_u32 v13, v1, 2, 2"); a("v_lshrrev_b32 v14, 4, v1")
    a("v_lshl_add_u32 v13, v14, 3, v13")
    a("v_lshlrev_b32 v13, 7, v13")
    a("v_and_b32 v14, 3, v1")
    a("v_lshl_add_u32 v13, v14, 5, v13")
    a("v_bfe_u32 v14, v1, 3, 1")
    a("v_lshl_add_u32 v13, v14, 4, v13")
    a("v_add_u32 v4, s%d, v13" % sOX)
    a("v_xor_b32 v5, 16, v4")
    a("v_add_u32 v6, 65536, v4"); a("v_add_u32 v7, 65536, v5")
    a(corr[3])
    a("s_mov_b32 s%d, %d" % (sHD, 0x2aaa if "nogate" in EXP else 0))
    a.wait_ds("pR")
    check(14, "R")
    a.dsq = []
    sf_("stats")
    NV = ENV("NV", 6); NG = ENV("NG", 0)
    GST = ENV('GST', 0)
    WBK = [160, 128, 176, 144, 64, 112] if GST else [80, 96, 32, 48, 160, 128, 176, 144]
    OB = [80, 96, 32]
    WB = {s: WBK[s] for s in range(NV)}
    def trw(s):
        a.wait_vm(("wd", s))
        hi = WDS[s % NW] >= 65536; of = WDS[s % NW] - 65536 * hi
        for ct in range(4):
            for hf in range(2):
                a.ds("ds_read_b64_tr_b16 %s, v%d offset:%d" % (vr(WB[s] + 4 * ct + 2 * hf, 2), TRB[hi][ct >> 1], of + hf * 512 + 8 * (ct & 1)), ("tw", s))
    HA = [9, 3, 0, 10]
    def hpoll(r=14, tag="hp"):
        a("s_mov_b64 exec, 0x3fff")
        a.vm("buffer_load_dword v%d, v8, s[%d:%d], 0 offen sc1" % (r, SWS, SWS + 3), tag)
        a("s_mov_b64 exec, -1")
    def flag(ff, trk=True):
        if "noflag1" in EXP and ff == 1:
            a.wait_vm(("hst", ff)); return
        if trk: a.wait_vm(("hst", ff))
        a("s_mov_b64 exec, 1")
        t = "buffer_store_dword v22, v21, s[%d:%d], 0 offen offset:%d sc1" % (SWS, SWS + 3, ff * 4)
        if trk: a.vm(t, "hfl")
        else: a(t)
        a("s_mov_b64 exec, -1")
    GD = ENV("GD", 11); GP = 9; PKG = ENV("PKG", 0)
    ev = []
    def at(t, item): ev.append((t, len(ev), item))
    BT = 8 * GP
    for i in range(4, 8): at((i - 4) * 6 + 2, corr[i])
    def sched_dma(t, s, dt=5):
        for q, g in enumerate(dma_wd(s)): at(t + q * dt, lambda g=g: emit(g))
    if EARLY:
        sched_dma(0.1, 4); sched_dma(24.1, 5)
        TW = [float(x) for x in os.environ.get("TW", "0.7,1.4,2.1,2.8,3.5,4.2,5.0,5.7").split(",")]
    else:
        for s in range(6): sched_dma(s * BT + 0.1, s)
        TW = [float(x) for x in os.environ.get("TW", "3,4,5,6,7,8").split(",")]
    if GST:
        for n in range(12):
            def ld_own(n=n):
                emit([setr(sOW, "s_mov_b32 s%d, %d" % (sOW, J(6 + n // 4) * 32 * 896)),
                      ("buffer_load_dwordx4 %s, v%d, s[%d:%d], s%d offen offset:%d" % (vr(OB[n // 4] + 4 * (n % 4), 4), 52 + n % 4, SWD, SWD + 3, sOW, (n % 4) * 1024), "own")])
            at(ENV("GT0", 60) + ENV("GTD", 10) * n + 0.2, ld_own)
    NGT = ENV("NGT", 0)
    for s in range(max(NG, NGT)):
        assert TW[s] * BT > [0, 0, 30, 30, 15 * GP + 4 * GD, 15 * GP + 8 * GD, 31 * GP + 4 * GD, 31 * GP + 8 * GD][s]
        at(TW[s] * BT, lambda s=s: trw(s))
        if s < NG:
            at(TW[s] * BT + 20, lambda s=s: a.wait_ds(("tw", s)))
            sched_dma(TW[s] * BT + 20.1, s + NW)
    at(float(os.environ.get("TF0", "7.9")) * BT - 0.5, lambda: flag(0))
    n = 0
    for ff in range(2):
        for tt in range(2):
            r0 = RC[tt]
            for qp in range(2):
                blk = n // 8
                HP = 112 + 4 * (blk & 3)
                for q2 in range(2):
                    q = 2 * qp + q2
                    for e in range(4):
                        g = ACC(ff, 0, tt) + 4 * q + e; u = ACC(ff, 1, tt) + 4 * q + e; T = 64 + (n & 15)
                        if PKG:
                            P2 = lambda r: vr(r, 2)
                            ops = [(3, "v_exp_f32 v%d, v%d" % (T, T)), (6, "v_rcp_f32 v%d, v%d" % (T, T))]
                            if e & 1 == 0:
                                ops += [(0, "v_pk_mul_f32 %s, %s, %s" % (P2(T), P2(g), P2(g))),
                                        (1, "v_pk_fma_f32 %s, %s, %s, %s op_sel:[0,0,1] op_sel_hi:[1,0,1]" % (P2(T), P2(T), P2(r0 + 2), P2(r0))),
                                        (2, "v_pk_mul_f32 %s, %s, %s" % (P2(T), P2(T), P2(g))),
                                        (4, "v_pk_mul_f32 %s, %s, %s" % (P2(g), P2(g), P2(u)))]
                            else:
                                ops += [(4.5 - GP / GD, "v_pk_fma_f32 %s, %s, %s, %s op_sel:[0,1,1] op_sel_hi:[1,1,1]" % (P2(T - 1), P2(T - 1), P2(r0 + 2), P2(r0 + 2))),
                                        (7, "v_pk_mul_f32 %s, %s, %s" % (P2(g - 1), P2(g - 1), P2(T - 1))),
                                        (8, "v_cvt_pk_bf16_f32 v%d, v%d, v%d" % (HP + 2 * q2 + e // 2, g - 1, g))]
                                ops[2] = (4, ops[2][1])
                        else:
                            ops = [(0, "v_mul_f32 v%d, v%d, v%d" % (T, g, g)),
                            (1, "v_fma_f32 v%d, v%d, v%d, v%d" % (T, T, r0 + 2, r0 + 1)),
                            (2, "v_mul_f32 v%d, v%d, v%d" % (T, T, g)),
                            (3, "v_exp_f32 v%d, v%d" % (T, T)),
                            (4, "v_mul_f32 v%d, v%d, v%d" % (g, g, u)),
                            (5, "v_fma_f32 v%d, v%d, v%d, v%d" % (T, T, r0 + 3, r0 + 3)),
                            (6, "v_rcp_f32 v%d, v%d" % (T, T)),
                            (7, "v_mul_f32 v%d, v%d, v%d" % (g, g, T))]
                            if e & 1: ops.append((8, "v_cvt_pk_bf16_f32 v%d, v%d, v%d" % (HP + 2 * q2 + e // 2, g - 1, g)))
                        for k, o in ops: at(n * GP + k * GD, o)
                        n += 1
                t = (n - 1) * GP + 8 * GD
                at(t + 4, "v_permlane32_swap_b32 v%d, v%d" % (HP, HP + 2))
                at(t + 5, "v_permlane32_swap_b32 v%d, v%d" % (HP + 1, HP + 3))
                def st_h(HP=HP, ff=ff, tt=tt, qp=qp):
                    a("s_movk_i32 s%d, %d" % (sT0, ff * 4096))
                    a.vm("buffer_store_dwordx4 %s, v20, s[%d:%d], s%d offen offset:%d %s" % (vr(HP, 4), SWS, SWS + 3, sT0, tt * 2048 + qp * 512, os.environ.get("HSM", "sc1").replace("_", " ")), ("hst", ff))
                at(t + 8, st_h)
    for t, _, it in sorted(ev, key=lambda x: (x[0], x[1])):
        if callable(it): it()
        else: a(it)
    sf_("gelu")
    A2 = lambda ct, tt: 192 + 16 * ct + 4 * tt
    free = [48] + OB if GST else [64, 112] + WBK[NV:]
    HB = {}
    def ld_h(s, trk=True):
        if ENV("VERB", 0): print("ld_h", s, free)
        if s not in HB: HB[s] = free.pop(0)
        if ROT: a("s_lshl_b32 s%d, s%d, 6" % (sOW, RJ[s % 7])); a("s_add_u32 s%d, s%d, %d" % (sOW, sOW, WS_H + (s // 7) * 4096))
        else: a("s_mov_b32 s%d, %d" % (sOW, WS_H + J(s) * 4096))
        if "hsame" in EXP: a("s_mov_b32 s%d, 0" % sOW)
        for tt in range(4):
            t = "buffer_load_dwordx4 %s, v%d, s[%d:%d], s%d offen" % (vr(HB[s] + 4 * tt, 4), HA[tt], SWS, SWS + 3, sOW)
            if trk: a.vm(t, ("h", s, tt))
            else: a(t)
    def spin_h(mask, lj, r=14, p1=None):
        lo = L("HS"); l1 = L("HS")
        def slow():
            a.label(lo)
            a("s_mov_b32 s%d, %d" % (sT3, SPIN))
            a.label(l1)
            a("s_mov_b64 exec, 0x3fff")
            a("buffer_load_dword v%d, v8, s[%d:%d], 0 offen sc1" % (r, SWS, SWS + 3))
            a("s_mov_b64 exec, -1")
            if p1 is not None:
                a("s_waitcnt vmcnt(%d)" % p1)
                a("v_cmp_ne_u32 vcc, s%d, v23" % sNON)
                a("s_and_b32 s%d, vcc_lo, 0x%x" % (sT0, mask))
                a("s_cbranch_scc0 %s" % lj)
            a("s_waitcnt vmcnt(0)")
            a("v_cmp_ne_u32 vcc, s%d, v%d" % (sNON, r))
            a("s_and_b32 s%d, vcc_lo, 0x%x" % (sT0, mask))
            a("s_cbranch_scc0 %s" % lj)
            a("s_sleep %d" % ENV("HSL", 3))
            a("s_sub_u32 s%d, s%d, 1" % (sT3, sT3)); a("s_cmp_lg_u32 s%d, 0" % sT3)
            a("s_cbranch_scc1 %s" % l1)
            a("s_branch %s" % lj)
        deferred.append(slow)
        return lo
    P0 = ENV("P0", 5)
    if P0 == 0: hpoll()
    RO = ENV("RO", 0)
    for s in range(max(NG, NGT), 3 if RO else NV): trw(s)
    a("s_mul_i32 s%d, s%d, 14" % (sT1, sWV))
    a("s_mul_i32 s%d, s%d, 56" % (sT0, sRT2))
    a("s_add_u32 s%d, s%d, s%d" % (sT0, sT0, sT1))
    a("s_lshl_b32 s%d, s%d, 12" % (sT0, sT0))
    for r in range(4):
        a("s_add_u32 s%d, s%d, %d" % (sT1, sWV, r)); a("s_and_b32 s%d, s%d, 3" % (sT1, sT1)); a("s_lshl_b32 s%d, s%d, 10" % (sT1, sT1))
        a("s_add_u32 s%d, s%d, s%d" % (sT1, sT1, sT0))
        a("v_lshl_add_u32 v%d, v1, 4, s%d" % (HA[r], sT1))
    a("v_and_b32 v17, 15, v1"); a("v_lshrrev_b32 v13, 4, v1")
    a("s_lshl_b32 s%d, s%d, 6" % (sT0, sRT2)); a("s_lshl_b32 s%d, s%d, 4" % (sT1, sWV)); a("s_add_u32 s%d, s%d, s%d" % (sT0, sT0, sT1))
    a("v_add_u32 v18, s%d, v17" % sT0)
    a("v_mul_u32_u24 v18, 896, v18")
    a("v_lshl_add_u32 v18, v13, 5, v18")
    a("s_lshl_b32 s%d, s%d, 7" % (sT0, sCT))
    a("v_add_u32 v18, s%d, v18" % sT0)
    a.vm("buffer_load_dwordx4 v[24:27], v18, s[%d:%d], 0 offen" % (SX, SX + 3), "x")
    a.vm("buffer_load_dwordx4 v[28:31], v18, s[%d:%d], 0 offen offset:16" % (SX, SX + 3), "x")
    if RO:
        if RO == 1: flag(1); sf_("flag1")
        a("s_waitcnt lgkmcnt(0)"); a.dsq = []
        for s in range(6, 9):
            for g in dma_wd(s): emit(g)
            if RO == s - 4: flag(1); sf_("flag1")
        for s in range(3, NV): trw(s)
    a("v_mul_u32_u24 v16, %d, v13" % STG_W)
    a("v_lshrrev_b32 v13, 2, v17"); a("v_lshl_add_u32 v16, v13, 7, v16")
    a("v_and_b32 v13, 1, v17"); a("v_lshl_add_u32 v16, v13, 3, v16")
    a("v_bfe_u32 v13, v17, 1, 1"); a("v_lshl_add_u32 v16, v13, 6, v16")
    a("s_add_u32 s%d, s%d, %d" % (sT1, sT1, L_STG))
    a("v_add_u32 v16, s%d, v16" % sT1)
    a("v_lshl_add_u32 v19, v1, 4, s%d" % sOX)
    arrive(1, Y_TR)
    if GST:
        a.wait_vm("own")
        for n in range(12):
            hi = WDS[n // 4] >= 65536
            if n == 8: a("v_add_u32 v13, 65536, v19")
            a.ds("ds_write_b128 v%d, %s offset:%d" % ((19, 13)[hi], vr(OB[n // 4] + 4 * (n % 4), 4), WDS[n // 4] - 65536 * hi + (n % 4) * 1024), "ow")
    if P0 == 1: hpoll()
    WB4 = ENV("WB4", 0)
    if WB4:
        a("s_waitcnt lgkmcnt(0)"); a.dsq = []
        for s in range(6, 6 + WB4):
            for g in dma_wd(s): emit(g)
    if not RO:
        flag(1)
        sf_("flag1")
    if P0 == 2: hpoll()
    a("s_setprio %d" % ENV("F2PRIO", 0))
    if not GST:
        if not RO: a("s_waitcnt lgkmcnt(0)"); a.dsq = []
        P1 = ENV("P1", 0)
        if P1 == 1: hpoll(23, "hp1")
        WO = [int(x) for x in os.environ.get("WO", "-2,-2,-2").split(",")]
        for s in range(6 + NG, 9):
            if WO[s - 6] == -2 and s >= 6 + WB4 and not RO:
                for g in dma_wd(s): emit(g)
            if P1 == s - 4: hpoll(23, "hp1")
            if P0 == s - 3:
                if ENV("PDL", 4): a("s_sleep %d" % ENV("PDL", 4))
                hpoll()
    wdq = []
    lj = L("HJ")
    a.wait_vm("hp")
    a("v_cmp_ne_u32 vcc, s%d, v14" % sNON)
    a("s_and_b32 s%d, vcc_lo, 0x1555" % sT0)
    lo = spin_h(0x1555, lj, p1=(len(a.vmq) - [t for t in range(len(a.vmq)) if a.vmq[t] == "hp1"][0]) if P1 else None)
    a("s_cbranch_scc1 %s" % lo)
    a.label(lj)
    if ENV("DLY", 0): a("s_sleep %d" % ENV("DLY", 0))
    sf_("hpoll")
    NHM = ENV("NHM", 4)
    assert NSTA == 5 and NV == 6 and not wdq
    sRDY, sISS = sHD, sLD
    WTAB = 22; WOF = list(range(8, 15)); sHM = 16
    PR = [23, 17, 2]
    def dpoll(n):
        l = L("DP")
        a("s_cmp_eq_u32 s%d, 0x2aaa" % sRDY)
        a("s_cbranch_scc1 %s" % l)
        a("s_mov_b64 exec, 0x3fff")
        a("buffer_load_dword v%d, v8, s[%d:%d], 0 offen sc1" % (PR[n % 3], SWS, SWS + 3))
        a("s_mov_b64 exec, -1")
        a.label(l)
        a.mark(("hq", n))
    def deval(n):
        a.wait_vm(("hq", n))
        a("v_cmp_eq_u32 vcc, s%d, v%d" % (sNON, PR[n % 3]))
        a("s_and_b32 s%d, vcc_lo, 0x2aaa" % sT0)
        a("s_or_b32 s%d, s%d, s%d" % (sRDY, sRDY, sT0))
    def dslow():
        a.label("K_DS")
        a("s_mov_b64 exec, 0x3fff")
        a("buffer_load_dword v14, v8, s[%d:%d], 0 offen sc1" % (SWS, SWS + 3))
        a("s_mov_b64 exec, -1")
        a("s_sub_i32 s18, s18, 1"); a("s_max_i32 s18, s18, 0")
        a("s_cmp_eq_u32 s18, 0"); a("s_cselect_b32 s19, -1, 0")
        a("s_waitcnt vmcnt(0)")
        a("v_cmp_eq_u32 vcc, s%d, v14" % sNON)
        a("s_or_b32 s19, s19, vcc_lo")
        a("s_and_b32 s19, s19, 0x2aaa")
        a("s_or_b32 s%d, s%d, s19" % (sRDY, sRDY))
        a("s_setpc_b64 s[20:21]")
    deferred.append(dslow)
    sWL = 17
    ST2 = ENV("ST2", 0)
    def wslow():
        a.label("K_WS")
        a("ds_read_u8 v14, v15 offset:%d" % Y_WS)
        a("s_sub_i32 s18, s18, 1"); a("s_max_i32 s18, s18, 0")
        a("s_cmp_eq_u32 s18, 0"); a("s_cselect_b32 s19, 3, 0")
        a("s_waitcnt lgkmcnt(0)")
        a("v_readfirstlane_b32 s%d, v14" % sWL)
        a("s_sleep 1")
        a("s_or_b32 s%d, s%d, s19" % (sWL, sWL))
        a("s_setpc_b64 s[20:21]")
    deferred.append(wslow)
    def c_issue(s):
        HB[s] = free.pop(0)
        if s < 7 or "stat" in EXP: C = [["s_mov_b32 s%d, %d" % (sOW, WS_H + J(s) * 4096)]]
        elif ST2: C = [["s_getpc_b64 s[20:21]", "s_bitcmp1_b32 s%d, %d" % (sRDY, J(s)), "s_cbranch_scc0 K_DS"], ["s_mov_b32 s%d, %d" % (sOW, WS_H + J(s) * 4096)]]
        else:
            C = [["s_getpc_b64 s[20:21]", "s_andn2_b32 s%d, s%d, s%d" % (sT0, sRDY, sISS), "s_cbranch_scc0 K_DS", "s_ff1_i32_b32 s%d, s%d" % (sT1, sT0)],
                 ["s_lshr_b32 m0, s%d, 1" % sT1, "s_lshl_b32 s%d, s%d, 12" % (sOW, sT1), "s_bitset1_b32 s%d, s%d" % (sISS, sT1), "s_movrels_b32 s%d, s%d" % (WOF[s - 7], WTAB)], []]
        for i, tt in enumerate((1, 2, 3, 0) if s == 13 else range(4)):
            ld = ("buffer_load_dwordx4 %s, v%d, s[%d:%d], s%d offen" % (vr(HB[s] + 4 * tt, 4), HA[tt], SWS, SWS + 3, sOW), ("h", s, tt))
            if "hsame" in EXP: C.append(["s_mov_b32 s%d, 0" % sOW, ld])
            elif "nold" in EXP and s >= 4: pass
            elif i == 0 or i % ENV("LB", 2): C[-1].append(ld)
            else: C.append([ld])
        return C
    def c_trw(s):
        WB[s] = free.pop(0)
        if s < 7 or "stat" in EXP:
            hi = WDS[s % NW] >= 65536; of = WDS[s % NW] - 65536 * hi
            C = [[lambda: a.wait_vm(("wd", min(s, 8)))]]
        elif ST2:
            hi = WDS[s % NW] >= 65536; of = WDS[s % NW] - 65536 * hi
            C = [[lambda: a.wait_vm(("wd", min(s, 8)))]]
            if s in (9, 12): C = [["s_getpc_b64 s[20:21]", "s_cmp_lt_u32 s%d, %d" % (sWL, 1 + (s == 12)), "s_cbranch_scc1 K_WS"], []]
            if s >= 12: hi = 1; of = (s - 12) * 4096
            if s == 12: C = C[:1] + [["v_add_u32 v%d, s%d, v%d" % (TRB[1][c2], WTAB + 5, TRB[0][c2]) for c2 in range(2)], []]
        else:
            hi = 1; of = 0
            C = [([lambda: a.wait_vm(("wd", 8))] if s == 7 else []) +
                 ["s_and_b32 s%d, s%d, 3" % (sT2, WOF[s - 7]), "s_getpc_b64 s[20:21]", "s_cmp_gt_u32 s%d, s%d" % (sT2, sWL), "s_cbranch_scc1 K_WS"],
                 ["s_sub_u32 s%d, s%d, s%d" % (WOF[s - 7], WOF[s - 7], sT2)] + ["v_add_u32 v%d, s%d, v%d" % (TRB[1][c2], WOF[s - 7], TRB[0][c2]) for c2 in range(2)], []]
        for ct in range(4):
            rd = [("ds_read_b64_tr_b16 %s, v%d offset:%d" % (vr(WB[s] + 4 * ct + 2 * hf, 2), TRB[hi][ct >> 1], of + hf * 512 + 8 * (ct & 1)), ("tw", s)) for hf in range(2)]
            if "notr" in EXP: continue
            if ct == 0: C[-1] += rd
            else: C.append(rd)
        return C
    nh = 0
    DP0 = ENV("DP0", 2)
    PI = [int(x) for x in os.environ.get("PI", "1,5,9").split(",")]
    PE = [int(x) for x in os.environ.get("PE", "5,9,11").split(",")]
    if ENV("HR", 1): a("s_andn2_b32 s%d, 0x2aaa, vcc_lo" % sRDY)
    while free and nh < NHM:
        if nh == DP0 and PI[0] < 0: dpoll(0)
        for c in c_issue(nh): emit(c)
        nh += 1
    if DP0 >= NHM and PI[0] < 0: dpoll(0)
    for s in range(6 + NG, 9):
        if WO[s - 6] == -1:
            for g in dma_wd(s): emit(g)
    a("s_mov_b32 s%d, 0" % sISS)
    a("s_mov_b32 s18, %d" % (SPIN * 2)); a("s_mov_b32 s%d, %d" % (sWL, 3 if "nows" in EXP else 0))
    for k_ in range(0 if ST2 else 5): a("s_mov_b32 s%d, %d" % (WTAB + k_, WDS[k_ + 1] + (k_ >= 2)))
    a("s_mul_i32 s%d, s%d, %d" % (sT0, sWC, CV_CH - 16384)); a("s_add_u32 s%d, s%d, s%d" % (sT0, sT0, sOX)); a("s_add_u32 s%d, s%d, %d" % (WTAB + 5, sT0, L_CV + (0 if ST2 else 2)))
    a("s_add_u32 s%d, s%d, 4096" % (WTAB + 6, WTAB + 5))
    a("s_add_u32 s%d, s%d, %d" % (sT0, sWV, L_SYNC)); a("v_mov_b32 v15, s%d" % sT0)
    nw = NV
    for r in range(1, 4):
        a("s_sub_u32 s%d, s%d, %d" % (sT1, sWV, r)); a("s_and_b32 s%d, s%d, 3" % (sT1, sT1)); a("s_lshl_b32 s%d, s%d, 12" % (sT1, sT1))
        a("v_lshl_add_u32 v%d, v1, 4, s%d" % (19 + r, sT1))
    Q2 = [[]] * ENV("PG", 0) + [[lambda: dpoll(PI.index(0))]] if 0 in PI else []
    HXS = [int(x) for x in os.environ.get("HXS", "99").split(",")]
    for s in range(6 + NG, 9):
        if WO[s - 6] == 0: Q2 += dma_wd(s)
    for s in range(14):
        a.wait_ds(("tw", s))
        gap = 0
        for tt in ((1, 2, 3, 0) if s == 13 else range(4)):
            a.wait_vm(("h", s, tt))
            for ct in range(4):
                a("v_mfma_f32_16x16x32_bf16 %s, %s, %s, %s" % (vr(A2(ct, tt), 4), vr(WB[s] + 4 * ct, 4), vr(HB[s] + 4 * tt, 4), "0" if s == 0 else vr(A2(ct, tt), 4)))
                gap += 1
                while Q2 and (len(Q2) > 16 - gap or gap == 16): emit(Q2.pop(0))
                if Q2: emit(Q2.pop(0))
                pr = {1: 0, 2: 1, 3: 2, 0: 3}[tt]
                if s == 13 and pr: a("ds_write_b128 v19, %s offset:%d" % (vr(A2(ct, pr), 4), (pr - 1) * 16384 + ct * 1024))
        sf_("s_%d" % s)
        if s == 5: sf_("s5")
        if s == 9: sf_("s9")
        free.append(HB[s]); free.append(WB[s])
        if s + 1 in PE: Q2.append([lambda n=PE.index(s + 1): deval(n)])
        if s + 1 in PI: Q2.append([lambda n=PI.index(s + 1): dpoll(n)])
        QO = ENV("QO", 0)
        qi = []; qt = []
        if nh < 14: qi += c_issue(nh); nh += 1
        if nh < 14 and s in HXS: qi += c_issue(nh); nh += 1
        if nw < 14 and nw <= s + ENV("TA", 2): qt += c_trw(nw); nw += 1
        for s_ in range(6 + NG, 9):
            if WO[s_ - 6] == s + 1: qi += dma_wd(s_)
        if QO == 0: Q2 += qi + qt
        elif QO == 1: Q2 += qt + qi
        elif QO == 2:
            while qi or qt: Q2.append((qi.pop(0) if qi else []) + (qt.pop(0) if qt else []))
        assert nw > s + 2 or nw == 14
        if s == 12: R1, R2, R3 = [free.pop(0) for _ in range(3)]
        if s == 10:
            XU, YR = [free.pop(0) for _ in range(2)]
            Q2.append([lambda: a.wait_vm("x")])
            for w in range(8):
                Q2.append(["v_lshlrev_b32 v%d, 16, v%d" % (XU + 2 * w, 24 + w), "v_and_b32 v%d, 0xffff0000, v%d" % (XU + 2 * w + 1, 24 + w)])
    arrive(17)
    a("ds_read_u8 v15, v11 offset:%d" % Y_YA)
    sf_("f2end")
    def ya_part(spin=True):
        if spin: spin_lds(11, 15, 1, slp=1, off=Y_YA)
        for q in range(4): a("ds_read_b64_tr_b16 %s, v16 offset:%d" % (vr(YR + 2 * q, 2), q * 512))
        for w in range(8):
            if w % 2 == 0: a("s_waitcnt lgkmcnt(%d)" % (3 - w // 2))
            yw = YR + w; o = XU + 2 * w; t = YR + 8 + 2 * (w & 1)
            a("v_lshlrev_b32 v%d, 16, v%d" % (t, yw)); a("v_and_b32 v%d, 0xffff0000, v%d" % (t + 1, yw))
            a("v_add_f32 v%d, v%d, v%d" % (o, o, t)); a("v_add_f32 v%d, v%d, v%d" % (o + 1, o + 1, t + 1))
            a("v_cvt_pk_bf16_f32 v%d, v%d, v%d" % (o, o, o + 1))
            a("v_and_b32 v%d, 0xffff0000, v%d" % (o + 1, o)); a("v_lshlrev_b32 v%d, 16, v%d" % (o, o))
    def red_part():
        spin_lds(11, 15, 17, slp=0)
        for ct in range(4):
            for r, R in enumerate((R1, R2, R3)):
                a("ds_read_b128 %s, v%d offset:%d" % (vr(R + 4 * ct, 4), 20 + r, r * 16384 + ct * 1024))
        for ct in range(4):
            a("s_waitcnt lgkmcnt(%d)" % (9 - 3 * ct))
            for e in range(4):
                c = 4 * ct + e
                a("v_add_f32 v%d, v%d, v%d" % (R1 + c, R1 + c, A2(ct, 0) + e)); a("v_add_f32 v%d, v%d, v%d" % (R2 + c, R2 + c, R3 + c))
            for e in range(4):
                c = 4 * ct + e
                a("v_add_f32 v%d, v%d, v%d" % (R1 + c, R1 + c, R2 + c))
            for w in range(2):
                b = R1 + 4 * ct + 2 * w
                a("v_cvt_pk_bf16_f32 v%d, v%d, v%d" % (b, b, b + 1))
                a("v_and_b32 v%d, 0xffff0000, v%d" % (b + 1, b)); a("v_lshlrev_b32 v%d, 16, v%d" % (b, b))
    e1, e2 = L("EP"), L("EP")
    a("s_waitcnt lgkmcnt(0)")
    a("v_cmp_gt_u32 vcc, 1, v15")
    a("s_cbranch_vccnz %s" % e1)
    a.begin_opt()
    ya_part(False); red_part()
    a("s_branch %s" % e2)
    a.end_opt()
    a.label(e1)
    a.begin_opt()
    red_part(); ya_part()
    a.end_opt()
    a.label(e2)
    sf_("ya")
    for hc in range(2):
        for w in range(4):
            b = R1 + 8 * hc + 2 * w; o = XU + 8 * hc + 2 * w
            a("v_add_f32 v%d, v%d, v%d" % (b, b, o)); a("v_add_f32 v%d, v%d, v%d" % (b + 1, b + 1, o + 1))
            a("v_cvt_pk_bf16_f32 v%d, v%d, v%d" % (R2 + 4 * hc + w, b, b + 1))
        a("buffer_store_dwordx4 %s, v18, s[%d:%d], 0 offen offset:%d" % (vr(R2 + 4 * hc, 4), SOUT, SOUT + 3, hc * 16) + " " + os.environ.get("OUTM", ""))
    sf_("end")
    sf_.store(24)
    if os.environ.get("MEAS"):
        a("s_sub_u32 s100, s99, s%d" % sNON)
        a("v_mov_b32 v24, s100")
        a("s_cmp_lg_u32 s%d, 0" % sWV); a("s_cbranch_scc1 K_END")
        a("s_mov_b64 exec, 1")
        a("s_lshl_b32 s100, s2, 2"); a("s_add_u32 s100, s100, %d" % WS_DBG); a("v_mov_b32 v25, s100")
        a("buffer_store_dword v24, v25, s[%d:%d], 0 offen sc1" % (SWS, SWS + 3))
    a("s_endpgm")
    for f in deferred: f()
    if KT: a.raw(".p2align 2"); a.label("K_TAB"); a.raw(".long " + ", ".join(str(i + 1) for i in range(16)))

    import gen8h
    gen8h.helper(a, sh_, L, spin_lds)
    gen8h.producer(a, sp_, L, spin_lds)
    a.label("K_END")
    a("s_endpgm")
    if STAMP: print("ffn", sf_.names, "\nhelp", sh_.names, "\nprod", sp_.names)
    return a.finalize()

def wrap(kernels):
    out = []
    for name, grid, block, lds, body, nv in kernels:
        if len(kernels) > 1: out.append("; @launch kernel=%s grid=(%d,1,1) block=(%d,1,1) lds=%d" % (name, grid, block, lds))
        else: out.append("; @launch grid=(%d,1,1) block=(%d,1,1) lds=%d" % (grid, block, lds))
    out.append('.amdgcn_target "amdgcn-amd-amdhsa--gfx950"')
    out.append(".text")
    for name, grid, block, lds, body, nv in kernels:
        out += [".globl %s" % name, ".p2align 8", ".type %s,@function" % name, "%s:" % name, body]
    out.append('.section .rodata,"a"')
    for name, grid, block, lds, body, nv in kernels:
        out += [".p2align 6", ".amdhsa_kernel %s" % name,
                "  .amdhsa_next_free_vgpr %d" % nv, "  .amdhsa_next_free_sgpr 102", "  .amdhsa_accum_offset %d" % ((nv + 3) // 4 * 4),
                "  .amdhsa_group_segment_fixed_size 0", "  .amdhsa_kernarg_size 128", "  .amdhsa_user_sgpr_count 2",
                "  .amdhsa_user_sgpr_kernarg_segment_ptr 1", "  .amdhsa_system_sgpr_workgroup_id_x 1", ".end_amdhsa_kernel"]
    return "\n".join(out) + "\n"

if __name__ == "__main__":
    sys.modules["gen8"] = sys.modules["__main__"]
    NAME = "parallel_sum__ssm_conv_s4__glu_gated_geglu__prompt_kernel"
    ks = [(NAME, 256, 512, LDS, gen(), 256)]
    if os.environ.get("MEAS"):
        b = Asm()
        b("s_cmp_ge_u32 s2, 1"); b("s_cbranch_scc1 K3_END")
        b("s_load_dwordx4 s[4:7], s[0:1], 112"); b("s_waitcnt lgkmcnt(0)")
        srd(b, 8, 6, WS_SIZE); srd(b, 12, 4, 256)
        b("v_lshlrev_b32 v1, 2, v0"); b("v_mov_b32 v10, 0")
        for i in range(4):
            b("s_mov_b32 s22, %d" % (WS_DBG + 128 + i * 256 - (32 if i == 3 else 0) * 4))
            b("buffer_load_dword v4, v1, s[8:11], s22 offen sc1"); b("s_waitcnt vmcnt(0)"); b("v_max_u32 v10, v10, v4")
        b("v_readlane_b32 s30, v10, 0")
        for l in range(1, 64):
            b("v_readlane_b32 s22, v10, %d" % l); b("s_max_u32 s30, s30, s22")
        b("s_mov_b64 exec, 1"); b("v_mov_b32 v1, 0"); b("v_mov_b32 v2, s30")
        b("buffer_store_dword v2, v1, s[12:15], 0 offen"); b("s_waitcnt vmcnt(0)")
        b("s_min_u32 s30, s30, 20000"); b("s_mul_i32 s30, s30, %d" % int(os.environ.get("DM", "4")))
        b("s_memrealtime s[24:25]"); b("s_waitcnt lgkmcnt(0)")
        b.label("K3_L")
        b("s_memrealtime s[26:27]"); b("s_waitcnt lgkmcnt(0)"); b("s_sub_u32 s28, s26, s24"); b("s_cmp_lt_u32 s28, s30"); b("s_cbranch_scc1 K3_L")
        b.label("K3_END"); b("s_endpgm")
        ks = [("k1_kernel",) + ks[0][1:], ("k3_kernel", 1, 64, 0, b.finalize(), 64)]
    open(sys.argv[1] if len(sys.argv) > 1 else "k.s", "w").write(wrap(ks))
```
